```python
import torch

def _softmax(x, axis=-1):
    return torch.softmax(x, dim=axis)
def _gelu(x):
    return torch.nn.functional.gelu(x, approximate="tanh")
def _silu(x):
    return torch.nn.functional.silu(x)
def _sigmoid(x):
    return torch.sigmoid(x)
def _layernorm(x, axis=-1, eps=1e-5):
    m = x.mean(dim=axis, keepdim=True)
    v = x.var(dim=axis, keepdim=True, unbiased=False)
    return (x - m) / torch.sqrt(v + eps)
def _scatter_add(tgt, idx, src, axis=0):
    return tgt.clone().index_add_(axis, idx, src)
def _segment_sum(src, seg, n):
    out = torch.zeros((n,) + src.shape[1:], dtype=src.dtype)
    return out.index_add_(0, seg, src)
def _pad(x, pw):
    flat = tuple(v for pair in reversed(pw) for v in pair)
    return torch.nn.functional.pad(x, flat)

kernel_name = 'parallel_sum__sliding_block__dense_activation_relu__prompt'

def setup_inputs():

    _w = (lambda a: (lambda t: t.to(torch.bfloat16) if t.is_floating_point() else t)(torch.as_tensor(a)))
    def _A_setup():
        B, S, D = 1, 2048, 1024
        return {
            "x": _w((lambda *s: torch.randn(*s, dtype=torch.bfloat16) * 0.05)(B, S, D)),
            "wqkv": _w((lambda *s: torch.randn(*s, dtype=torch.bfloat16) * 0.05)(D, 3 * D)),
            "wo": _w((lambda *s: torch.randn(*s, dtype=torch.bfloat16) * 0.05)(D, D)),
        }
    _A_in = _A_setup()

    def _B_setup():
        B, S, D, Dff = 1, 2048, 1024, 3584
        return {
            "x": _w((lambda *s: torch.randn(*s, dtype=torch.bfloat16) * 0.05)(B, S, D)),
            "w1": _w((lambda *s: torch.randn(*s, dtype=torch.bfloat16) * 0.05)(D, Dff)),
            "w2": _w((lambda *s: torch.randn(*s, dtype=torch.bfloat16) * 0.05)(Dff, D)),
        }
    _B_in = _B_setup()

    return {
        "A_x": _A_in["x"],
        "A_wqkv": _A_in["wqkv"],
        "A_wo": _A_in["wo"],
        "B_x": _B_in["x"],
        "B_w1": _B_in["w1"],
        "B_w2": _B_in["w2"],
    }

def reference(A_x, A_wqkv, A_wo, B_x, B_w1, B_w2):
    def _A_ref(x, wqkv, wo):
        B, S, D = x.shape
        H = 32; Dh = D // H; W = 256
        qkv = (lambda x, *d: x.permute(*d))((x @ wqkv).reshape(B, S, 3, H, Dh), 2, 0, 3, 1, 4)
        q, k, v = qkv[0], qkv[1], qkv[2]
        scores = torch.einsum("bhqd,bhkd->bhqk", q, k) * (Dh ** -0.5)
        idx = torch.arange(S)
        mask = (idx[:, None] - idx[None, :] >= 0) & (idx[:, None] - idx[None, :] < W)
        scores = torch.where(mask[None, None], scores, -1e9)
        p = _softmax(scores, axis=-1)
        o = torch.einsum("bhqk,bhkd->bhqd", p, v)
        return (lambda x, *d: x.permute(*d))(o, 0, 2, 1, 3).reshape(B, S, D) @ wo

    def _B_ref(x, w1, w2):
        h = torch.einsum("bsd,df->bsf", x, w1)
        zero = torch.zeros_like(h)
        h = torch.maximum(h, zero)
        return torch.einsum("bsf,fd->bsd", h, w2)

    x = A_x
    xn = _layernorm(x, axis=-1)
    return x + _A_ref(xn, A_wqkv, A_wo) + _B_ref(xn, B_w1, B_w2)
```

```python
class Asm:
    def __init__(self):
        self.lines = []
        self.nlab = 0
    def __call__(self, s):
        for l in s.split("\n"):
            l = l.strip()
            if l:
                self.lines.append("    " + l)
    def label(self, n):
        self.lines.append(n + ":")
    def newlabel(self, p="L"):
        self.nlab += 1
        return "%s_%d" % (p, self.nlab)
    def raw(self, s):
        self.lines.append(s)
    def text(self):
        return "\n".join(self.lines) + "\n"

def kernel_begin(a, name):
    a.raw(".text")
    a.raw(".globl %s" % name)
    a.raw(".p2align 8")
    a.raw(".type %s,@function" % name)
    a.label(name)

def kernel_desc(a, name, vgpr, sgpr=102, accum=None, agpr=0):
    if accum is None:
        accum = (vgpr + 3) // 4 * 4
    nfv = accum + agpr if agpr else vgpr
    a.raw('.section .rodata,"a"')
    a.raw(".p2align 6")
    a.raw(".amdhsa_kernel %s" % name)
    a.raw("  .amdhsa_next_free_vgpr %d" % nfv)
    a.raw("  .amdhsa_next_free_sgpr %d" % sgpr)
    a.raw("  .amdhsa_accum_offset %d" % accum)
    a.raw("  .amdhsa_group_segment_fixed_size 0")
    a.raw("  .amdhsa_kernarg_size 72")
    a.raw("  .amdhsa_user_sgpr_count 2")
    a.raw("  .amdhsa_user_sgpr_kernarg_segment_ptr 1")
    a.raw("  .amdhsa_system_sgpr_workgroup_id_x 1")
    a.raw("  .amdhsa_float_denorm_mode_32 3")
    a.raw(".end_amdhsa_kernel")

def srd(a, d, base, nbytes):
    a("s_mov_b32 s%d, s%d" % (d, base))
    a("s_and_b32 s%d, s%d, 0xffff" % (d + 1, base + 1))
    a("s_mov_b32 s%d, 0x%x" % (d + 2, nbytes))
    a("s_mov_b32 s%d, 0x00020000" % (d + 3))
```

```python
import sys, math
from asmlib import *

NAME = "parallel_sum__sliding_block__dense_activation_relu__prompt"
S, D, DFF, H = 2048, 1024, 3584, 32
WS_XN = 0x0100000
WS_Q  = 0x0500000
WS_K  = 0x0900000
WS_V  = 0x0D00000
WS_A2 = 0x1100000
A2_BYTES = 128 * 144 * 1024
WS_XC = WS_A2 + A2_BYTES
XC_BYTES = 256 * 4 * 3 * 4096
WS_FL = WS_XC + XC_BYTES
FL_BYTES = 256 * 4 * 128
WS_END = WS_FL + FL_BYTES
QSCALE = (32 ** -0.5) * math.log2(math.e)

import struct
def f2u(f): return struct.unpack("<I", struct.pack("<f", f))[0]

class Prog(Asm):
    def __init__(self):
        super().__init__()
        self.reset()
    def reset(self):
        self.vm = []; self.vm_done = 0
        self.lg = []; self.lg_done = 0
    def vmem(self, text, tag=None):
        self(text); self.vm.append(tag)
    def lds(self, text, tag=None):
        self(text); self.lg.append(tag)
    def _need(self, q, done, tag, cap):
        idx = max(i for i, t in enumerate(q) if t == tag)
        if idx < done: return None, done
        n = len(q) - idx - 1
        n = min(n, cap)
        return n, len(q) - n
    def wait(self, vm=None, lg=None):
        parts = []
        if vm is not None:
            n, self.vm_done = self._need(self.vm, self.vm_done, vm, 63)
            if n is not None: parts.append("vmcnt(%d)" % n)
        if lg is not None:
            n, self.lg_done = self._need(self.lg, self.lg_done, lg, 15)
            if n is not None: parts.append("lgkmcnt(%d)" % n)
        if parts:
            self("s_waitcnt " + " ".join(parts)); return True
        return False
    def wait_all(self, vm=True, lg=True):
        parts = []
        if vm: parts.append("vmcnt(0)"); self.vm_done = len(self.vm)
        if lg: parts.append("lgkmcnt(0)"); self.lg_done = len(self.lg)
        self("s_waitcnt " + " ".join(parts))

def r4(p, b): return "%s[%d:%d]" % (p, b, b + 3)
def r2(p, b): return "%s[%d:%d]" % (p, b, b + 1)

def srd_off(a, d, base, off, nbytes):
    a("s_add_u32 s%d, s%d, 0x%x" % (d, base, off))
    a("s_addc_u32 s%d, s%d, 0" % (d + 1, base + 1))
    a("s_and_b32 s%d, s%d, 0xffff" % (d + 1, d + 1))
    a("s_mov_b32 s%d, 0x%x" % (d + 2, nbytes))
    a("s_mov_b32 s%d, 0x00020000" % (d + 3))

def stamp(a, cfg, idx, sreg):
    if cfg.get("stamp"):
        a("s_memtime s[%d:%d]" % (sreg, sreg + 1))

def gen_ln(a, cfg):
    MT = cfg["g1_mt"]
    name = "ln_kernel"
    kernel_begin(a, name)
    a.reset()
    a("s_cmp_ge_u32 s2, 256")
    a("s_cbranch_scc1 LN_end")
    a("s_load_dwordx2 s[4:5], s[0:1], 0")
    a("s_load_dwordx2 s[6:7], s[0:1], 64")
    a("s_load_dwordx2 s[20:21], s[0:1], 8")
    a("s_load_dwordx2 s[22:23], s[0:1], 32")
    a("v_and_b32 v1, 63, v0")
    a("v_lshrrev_b32 v2, 6, v0")
    a("v_and_b32 v3, 7, v1")
    a("v_lshrrev_b32 v4, 3, v1")
    a("s_lshl_b32 s3, s2, 14")
    a("v_lshlrev_b32 v5, 11, v3")
    a("v_lshl_add_u32 v5, v2, 9, v5")
    a("v_lshl_add_u32 v5, v4, 4, v5")
    a("s_waitcnt lgkmcnt(0)")
    srd(a, 8, 4, S * D * 2)
    srd_off(a, 12, 6, WS_XN, S * D * 2)
    for i in range(4):
        a("buffer_load_dwordx4 %s, v5, s[8:11], s3 offen offset:%d" % (r4("v", 8 + 4 * i), i * 128))
    srd_off(a, 36, 6, WS_FL, FL_BYTES)
    a("s_lshl_b32 s16, s2, 9")
    a("v_lshlrev_b32 v70, 2, v0")
    a("v_lshrrev_b32 v71, 7, v0")
    a("v_lshl_add_u32 v70, v71, 30, v70")
    a("v_mov_b32 v71, 0")
    a("buffer_store_dword v71, v70, s[36:39], s16 offen")
    CPF = cfg.get("ln_cpf", 1)
    if CPF:
        a("s_getpc_b64 s[40:41]")
        a.label("LN_pc")
        a("s_mov_b32 s42, CODE_END - LN_pc")
        a("s_and_b32 s41, s41, 0xffff")
        a("s_mov_b32 s43, 0x00020000")
        a("s_lshr_b32 s16, s2, 3")
        a("s_lshl_b32 s16, s16, 12")
        a("v_lshlrev_b32 v70, 7, v0")
        a("v_lshrrev_b32 v71, 5, v0")
        a("v_lshl_add_u32 v70, v71, 24, v70")
        a("buffer_load_dword v76, v70, s[40:43], s16 offen")
    LPF = cfg.get("ln_pf", 2)
    if LPF:
        srd(a, 24, 20, D * 3 * D * 2)
        srd(a, 28, 22, D * DFF * 2)
        a("s_lshr_b32 s16, s2, 3")
        a("s_mul_i32 s16, s16, %d" % (4 * LPF))
        a("s_bfe_u32 s17, s2, 0x20001")
        a("s_lshl_b32 s18, s17, 9")
        a("s_mul_i32 s19, s17, 1792")
        a("v_lshrrev_b32 v70, 4, v1")
        a("v_cmp_le_u32 s[32:33], %d, v70" % LPF)
        a("v_mad_u32_u24 v70, v2, %d, v70" % LPF)
        a("v_add_u32 v70, s16, v70")
        a("v_and_b32 v71, 15, v1")
        a("v_cmp_le_u32 vcc, 12, v71")
        a("s_or_b64 s[34:35], vcc, s[32:33]")
        a("v_cmp_le_u32 vcc, 14, v71")
        a("s_or_b64 s[32:33], vcc, s[32:33]")
        a("v_mul_u32_u24 v72, 7168, v70")
        a("v_lshl_add_u32 v72, v71, 7, v72")
        a("v_mul_u32_u24 v70, 6144, v70")
        a("v_lshrrev_b32 v73, 2, v71")
        a("v_lshl_add_u32 v70, v73, 11, v70")
        a("v_and_b32 v73, 3, v71")
        a("v_lshl_add_u32 v70, v73, 7, v70")
        a("v_bfrev_b32 v73, 1")
        a("v_cndmask_b32 v70, v70, v73, s[34:35]")
        a("v_cndmask_b32 v72, v72, v73, s[32:33]")
        a("buffer_load_dword v74, v70, s[24:27], s18 offen")
        a("buffer_load_dword v75, v72, s[28:31], s19 offen")
    lmt = int(math.log2(MT))
    a("s_lshr_b32 s16, s2, 1")
    a("s_lshr_b32 s17, s16, %d" % lmt)
    a("s_lshl_b32 s17, s17, %d" % (15 + lmt))
    a("s_and_b32 s18, s16, %d" % (MT - 1))
    a("s_lshl_b32 s18, s18, 10")
    a("s_add_u32 s17, s17, s18")
    a("s_and_b32 s18, s2, 1")
    a("s_lshl_b32 s18, s18, 7")
    a("s_add_u32 s17, s17, s18")
    a("v_lshrrev_b32 v6, 2, v4")
    a("v_lshl_add_u32 v6, v2, 3, v6")
    a("v_lshlrev_b32 v6, %d, v6" % (10 + lmt))
    a("v_and_b32 v7, 3, v4")
    a("v_lshl_add_u32 v6, v7, 8, v6")
    a("v_lshl_add_u32 v6, v3, 4, v6")
    a("v_lshl_add_u32 v7, v2, 3, v3")
    a("v_lshlrev_b32 v7, 3, v7")
    a("v_lshlrev_b32 v60, 3, v3")
    a("s_waitcnt vmcnt(%d)" % (1 + (2 if LPF else 0) + (1 if CPF else 0)))
    for i in range(16):
        a("v_lshlrev_b32 v%d, 16, v%d" % (24 + 2 * i, 8 + i))
        a("v_and_b32 v%d, 0xffff0000, v%d" % (25 + 2 * i, 8 + i))
    a("v_add_f32 v56, v24, v25")
    a("v_add_f32 v57, v26, v27")
    for i in range(4, 32, 2):
        a("v_add_f32 v56, v56, v%d" % (24 + i))
        a("v_add_f32 v57, v57, v%d" % (25 + i))
    a("v_add_f32 v56, v56, v57")
    def xlane_sum(r, t):
        a("s_nop 1")
        a("v_add_f32_dpp v%d, v%d, v%d row_ror:8 row_mask:0xf bank_mask:0xf" % (r, r, r))
        a("v_mov_b32 v%d, v%d" % (t, r))
        a("s_nop 1")
        a("v_permlane16_swap_b32 v%d, v%d" % (r, t))
        a("s_nop 1")
        a("v_add_f32 v%d, v%d, v%d" % (r, r, t))
        a("v_mov_b32 v%d, v%d" % (t, r))
        a("s_nop 1")
        a("v_permlane32_swap_b32 v%d, v%d" % (r, t))
        a("s_nop 1")
        a("v_add_f32 v%d, v%d, v%d" % (r, r, t))
    xlane_sum(56, 57)
    a("v_mul_f32 v56, 0x%x, v56" % f2u(1.0 / 256))
    a("v_mov_b32 v57, 0")
    a("v_mov_b32 v58, 0")
    for i in range(0, 32, 2):
        a("v_sub_f32 v59, v%d, v56" % (24 + i))
        a("v_sub_f32 v61, v%d, v56" % (25 + i))
        a("v_fmac_f32 v57, v59, v59")
        a("v_fmac_f32 v58, v61, v61")
    a("v_add_f32 v57, v57, v58")
    xlane_sum(57, 58)
    a("ds_write_b64 v7, v[56:57]")
    a("s_waitcnt lgkmcnt(0)")
    a("s_barrier")
    a("ds_read_b64 v[62:63], v60")
    a("ds_read_b64 v[64:65], v60 offset:64")
    a("ds_read_b64 v[66:67], v60 offset:128")
    a("ds_read_b64 v[68:69], v60 offset:192")
    a("s_waitcnt lgkmcnt(0)")
    a("v_add_f32 v56, v62, v64")
    a("v_add_f32 v57, v66, v68")
    a("v_add_f32 v56, v56, v57")
    a("v_mul_f32 v56, 0.25, v56") if False else a("v_mul_f32 v56, 0x3e800000, v56")
    a("v_add_f32 v57, v63, v65")
    a("v_add_f32 v58, v67, v69")
    a("v_add_f32 v57, v57, v58")
    a("v_mov_b32 v58, 0")
    for r in (62, 64, 66, 68):
        a("v_sub_f32 v59, v%d, v56" % r)
        a("v_fmac_f32 v58, v59, v59")
    a("v_mov_b32 v59, 0x43800000")
    a("v_fmac_f32 v57, v58, v59")
    a("v_mul_f32 v57, 0x%x, v57" % f2u(1.0 / 1024))
    a("v_cvt_pk_bf16_f32 v58, v56, v57")
    a("v_lshlrev_b32 v56, 16, v58")
    a("v_and_b32 v57, 0xffff0000, v58")
    a("v_add_f32 v57, 0x%x, v57" % f2u(1e-5))
    a("v_cvt_pk_bf16_f32 v57, v57, v57")
    a("v_and_b32 v57, 0xffff0000, v57")
    a("v_sqrt_f32 v57, v57")
    a("s_nop 0")
    a("v_cvt_pk_bf16_f32 v57, v57, v57")
    a("v_and_b32 v57, 0xffff0000, v57")
    a("v_rcp_f32 v57, v57")
    for i in range(0, 32, 2):
        a("v_sub_f32 v%d, v%d, v56" % (24 + i, 24 + i))
        a("v_sub_f32 v%d, v%d, v56" % (25 + i, 25 + i))
        a("v_cvt_pk_bf16_f32 v58, v%d, v%d" % (24 + i, 25 + i))
        a("v_lshlrev_b32 v59, 16, v58")
        a("v_and_b32 v58, 0xffff0000, v58")
        a("v_mul_f32 v59, v59, v57")
        a("v_mul_f32 v58, v58, v57")
        a("v_cvt_pk_bf16_f32 v%d, v59, v58" % (8 + i // 2))
    for i in range(4):
        a("buffer_store_dwordx4 %s, v6, s[12:15], s17 offen" % r4("v", 8 + 4 * i))
        if i < 3: a("s_add_u32 s17, s17, %d" % (2 * MT * 1024))
    a.label("LN_end")
    a("s_endpgm")
    kernel_desc(a, name, 80, sgpr=48)
    return "; @launch kernel=%s grid=(256,1,1) block=(256,1,1) lds=256" % name

def gen_g1(a, cfg):
    name = "g1_kernel"
    NW, MT, NT = 4, 4, 13
    assert cfg["g1_mt"] == MT
    NS = cfg.get("g1_stages", 5)
    LA = cfg.get("g1_la", 6)
    RA = LA + 1
    DB = cfg.get("g1_db", 3)
    RB = DB + 2
    REG = 7168; STAGE = 4 * REG
    KS = 32
    ACC = 0
    def acc(mt, t): return ACC + (t * MT + mt) * 4
    V_L16 = 208; V_QKV = 209; V_W1 = 210; V_LEFT = 211
    V_RD = 212
    V_T = 224
    A_PD = 255
    AR = 0; BR = RA * 16
    assert BR + RB * 4 <= 256
    kernel_begin(a, name)
    a.reset()
    stamp(a, cfg, 0, 60)
    if cfg.get("stamp"): a("s_memrealtime s[70:71]")
    a("s_cmp_ge_u32 s2, 256")
    a("s_cbranch_scc1 G1_end")
    a("s_load_dwordx2 s[4:5], s[0:1], 8")
    a("s_load_dwordx2 s[6:7], s[0:1], 32")
    a("s_load_dwordx2 s[8:9], s[0:1], 64")
    a("s_load_dwordx2 s[52:53], s[0:1], 40")
    a("s_load_dwordx2 s[54:55], s[0:1], 16")
    T = V_T
    a("v_and_b32 v%d, 63, v0" % T)
    a("v_lshrrev_b32 v%d, 6, v0" % (T + 1))
    a("v_lshlrev_b32 v%d, 4, v%d" % (V_L16, T))
    a("v_readfirstlane_b32 s24, v%d" % (T + 1))
    a("s_and_b32 s25, s2, 1")
    a("s_lshl_b32 s25, s25, 2")
    a("s_bfe_u32 s26, s2, 0x20003")
    a("s_add_u32 s25, s25, s26")
    a("s_bfe_u32 s26, s2, 0x20001")
    a("s_lshl_b32 s26, s26, 3")
    a("s_lshr_b32 s27, s2, 5")
    a("s_add_u32 s26, s26, s27")
    a("s_and_b32 s27, s26, 1")
    a("v_lshrrev_b32 v%d, 2, v%d" % (T + 2, T))
    a("v_lshl_add_u32 v%d, v%d, 4, v%d" % (T + 2, T + 1, T + 2))
    a("v_lshrrev_b32 v%d, 4, v%d" % (T + 3, T))
    a("v_and_b32 v%d, 2, v%d" % (T + 3, T + 3))
    a("v_and_b32 v%d, 3, v%d" % (T + 4, T))
    a("v_xor_b32 v%d, v%d, v%d" % (T + 3, T + 3, T + 4))
    a("v_lshlrev_b32 v%d, 4, v%d" % (T + 3, T + 3))
    a("v_mul_u32_u24 v%d, 6144, v%d" % (V_QKV, T + 2))
    a("v_add_u32 v%d, v%d, v%d" % (V_QKV, V_QKV, T + 3))
    a("v_mul_u32_u24 v%d, 7168, v%d" % (V_W1, T + 2))
    a("v_add_u32 v%d, v%d, v%d" % (V_W1, V_W1, T + 3))
    a("v_bfe_u32 v%d, v%d, 3, 1" % (T + 2, T))
    a("v_lshlrev_b32 v%d, 3, v%d" % (T + 2, T + 2))
    a("v_bfe_u32 v%d, v%d, 4, 1" % (T + 3, T))
    a("v_lshl_add_u32 v%d, v%d, 2, v%d" % (T + 2, T + 3, T + 2))
    a("v_bfe_u32 v%d, v%d, 1, 2" % (T + 3, T))
    a("v_add_u32 v%d, v%d, v%d" % (T + 2, T + 2, T + 3))
    a("v_lshl_add_u32 v%d, v%d, 4, v%d" % (T + 2, T + 1, T + 2))
    a("v_mul_u32_u24 v%d, 7168, v%d" % (V_LEFT, T + 2))
    a("v_and_b32 v%d, 1, v%d" % (T + 3, T))
    a("v_lshl_add_u32 v%d, v%d, 4, v%d" % (V_LEFT, T + 3, V_LEFT))
    a("v_lshrrev_b32 v%d, 5, v%d" % (T + 3, T))
    a("v_lshl_add_u32 v%d, v%d, 30, v%d" % (V_LEFT, T + 3, V_LEFT))
    a("s_lshl_b32 s30, s26, 6")
    a("s_add_u32 s31, s30, 4096")
    a("s_mul_i32 s33, s26, 224")
    a("s_lshl_b32 s28, s27, 5")
    a("s_add_u32 s32, s33, s28")
    a("s_xor_b32 s28, s27, 1")
    a("s_mul_i32 s28, s28, 192")
    a("s_add_u32 s33, s33, s28")
    a("s_mul_i32 s34, s24, %d" % REG)
    a("s_lshl_b32 s35, s25, 2")
    a("s_add_u32 s35, s35, s24")
    a("s_lshl_b32 s35, s35, 17")
    a("s_waitcnt lgkmcnt(0)")
    srd(a, 12, 4, D * 3 * D * 2)
    srd(a, 16, 6, D * DFF * 2)
    srd_off(a, 20, 8, WS_XN, S * D * 2)
    PF = cfg.get("g1_pf", 1)
    ST0 = cfg.get("g1_pfst", 4)
    V_P0, V_P1, V_P2 = 221, 222, 223
    if PF:
        srd(a, 44, 52, DFF * D * 2)
        srd(a, 48, 54, D * D * 2)
        a("s_bfe_u32 s56, s2, 0x30003")
        a("s_lshr_b32 s57, s2, 6")
        a("s_lshl_b32 s57, s57, 3")
        a("s_and_b32 s58, s2, 7")
        a("s_add_u32 s57, s57, s58")
        a("s_lshl_b32 s57, s57, 2")
        a("s_add_u32 s57, s57, s24")
        a("v_lshlrev_b32 v%d, 7, v%d" % (T + 5, T))
        a("v_bfrev_b32 v%d, 1" % (T + 6))
        a("s_mul_i32 s58, s57, 3072")
        a("v_add_u32 v%d, s58, v%d" % (V_P0, T + 5))
        a("v_cmp_le_u32 vcc, 24, v%d" % T)
        a("s_mul_i32 s58, s57, 3584")
        a("v_add_u32 v%d, s58, v%d" % (V_P1, T + 5))
        a("v_cndmask_b32 v%d, v%d, v%d, vcc" % (V_P0, V_P0, T + 6))
        a("v_cmp_le_u32 vcc, 28, v%d" % T)
        a("s_lshl_b32 s58, s57, 13")
        a("v_add_u32 v%d, s58, v%d" % (V_P2, T + 5))
        a("v_cndmask_b32 v%d, v%d, v%d, vcc" % (V_P1, V_P1, T + 6))
    NSLOT1 = 16 - ST0
    def touch(n):
        lab = a.newlabel("G1_pf")
        a("s_cmp_lg_u32 s56, %d" % (n & 7))
        a("s_cbranch_scc1 %s" % lab)
        if n < NSLOT1:
            a("s_mov_b32 s58, %d" % ((ST0 + n) * 64 * 6144))
            a("s_mov_b32 s59, %d" % ((ST0 + n) * 64 * 7168))
            a("buffer_load_dword a%d, v%d, s[12:15], s58 offen" % (A_PD, V_P0))
            a("buffer_load_dword a%d, v%d, s[16:19], s59 offen" % (A_PD - 1, V_P1))
        else:
            m = n - NSLOT1
            a("s_mov_b32 s58, %d" % ((m if m < 7 else m - 7) << 20))
            a("buffer_load_dword a%d, v%d, s[%d:%d], s58 offen" % ((A_PD, V_P2) + ((44, 47) if m < 7 else (48, 51))))
        a.label(lab)

    def dma_ops(g):
        slot = g % NS
        ops = []
        def one(p, vreg, srdb, soff, imm):
            ops.append((["s_add_u32 m0, s34, %d" % (slot * STAGE + p * 1024 - imm + (1 << 32 if slot * STAGE + p * 1024 - imm < 0 else 0))],
                        "buffer_load_dwordx4 v%d, s[%d:%d], s%d offen offset:%d lds" % (vreg, srdb, srdb + 3, soff, imm)))
        one(0, V_QKV, 12, 30, 0)
        one(2, V_QKV, 12, 30, 2048)
        one(1, V_QKV, 12, 31, 0)
        one(3, V_W1, 16, 32, 0)
        one(4, V_W1, 16, 32, 64)
        one(5, V_W1, 16, 32, 128)
        one(6, V_LEFT, 16, 33, 0)
        post = ["s_add_u32 s30, s30, %d" % (64 * 6144), "s_add_u32 s31, s31, %d" % (64 * 6144),
                "s_add_u32 s32, s32, %d" % (64 * 7168), "s_add_u32 s33, s33, %d" % (64 * 7168)]
        return ops, post
    PAIRPOS = [0, 2, 1, 3, 4, 5]
    def a_load(s, mt):
        a.vmem("buffer_load_dwordx4 %s, v%d, s[20:23], s35 offen offset:%d" % (r4("a", AR + (s % RA) * 16 + mt * 4), V_L16, mt * 1024), ("A", s))
        if mt == MT - 1: a("s_add_u32 s35, s35, 4096")
    def emit_dma(g, k):
        ops, post = dma_ops(g)
        pre, txt = ops[k]
        for x in pre: a(x)
        a("s_nop 0")
        a.vmem(txt, ("B", g))
        if k == 6:
            for x in post: a(x)
    pend = []
    nA = 0
    for g in range(NS - 1):
        for k in range(7): pend.append(("B", g, k))
        for _ in range(2):
            if nA < LA:
                for mt in range(MT): pend.append(("A", nA, mt))
                nA += 1
    while nA < LA:
        for mt in range(MT): pend.append(("A", nA, mt))
        nA += 1
    PRO = cfg.get("g1_pro", 15)
    for _ in range(PRO):
        op = pend.pop(0)
        if op[0] == "A": a_load(op[1], op[2])
        else: emit_dma(op[1], op[2])
    a("v_lshrrev_b32 v%d, 5, v%d" % (T + 2, T))
    a("v_mul_u32_u24 v%d, %d, v%d" % (T + 2, REG, T + 2))
    a("v_and_b32 v%d, 3, v%d" % (T + 3, T))
    a("v_lshl_add_u32 v%d, v%d, 3, v%d" % (T + 2, T + 3, T + 2))
    a("v_bfe_u32 v%d, v%d, 2, 2" % (T + 3, T))
    a("v_bfe_u32 v%d, v%d, 4, 1" % (T + 4, T))
    a("v_lshl_add_u32 v%d, v%d, 6, v%d" % (V_RD, T + 3, T + 2))
    a("v_lshl_add_u32 v%d, v%d, 9, v%d" % (V_RD, T + 4, V_RD))
    a("v_lshl_add_u32 v%d, v%d, 5, v%d" % (V_RD, T + 4, V_RD))
    a("v_xor_b32 v%d, 32, v%d" % (V_RD + 1, V_RD))
    a("v_lshl_add_u32 v%d, v%d, 5, v%d" % (V_RD + 2, T + 3, T + 2))
    a("v_lshl_add_u32 v%d, v%d, 7, v%d" % (V_RD + 2, T + 4, V_RD + 2))
    for st in (1, 2):
        for x in range(3):
            a("v_add_u32 v%d, %d, v%d" % (V_RD + 3 * st + x, st * 2 * STAGE, V_RD + x))
    stamp(a, cfg, 1, 62)

    def b_read(u, j2):
        s, t = divmod(u, NT)
        g = s // 2; slot = g % NS
        st = slot // 2
        off = (slot % 2) * STAGE + (s % 2) * 2 * REG + j2 * 256
        if t < 12:
            off += PAIRPOS[t // 2] * 1024; vr = V_RD + 3 * st + (t % 2)
        else:
            off += 6144; vr = V_RD + 3 * st + 2
        a.lds("ds_read_b64_tr_b16 %s, v%d offset:%d" % (r2("a", BR + (u % RB) * 4 + j2 * 2), vr, off), ("b", u))
    def barrier_for(g):
        a.wait(vm=("B", g))
        a("s_barrier")
    NU = KS * NT
    barrier_for(0)
    stamp(a, cfg, 2, 64)
    for u in range(DB):
        b_read(u, 0); b_read(u, 1)
    for u in range(NU):
        s, t = divmod(u, NT)
        if t == 0 and s + LA < KS:
            for mt in range(MT): pend.append(("A", s + LA, mt))
        un = u + DB
        if un < NU and un % (2 * NT) == 0:
            g = un // (2 * NT)
            barrier_for(g)
            if g + NS - 2 < KS // 2:
                for k in range(7): pend.append(("B", g + NS - 2, k))
        if PF and t == 5 and s < NSLOT1 + 9: touch(s)
        a.wait(vm=("A", s) if t == 0 else None, lg=("b", u))
        bf = r4("a", BR + (u % RB) * 4)
        nxt = pend.pop(0) if (pend and (u % 2 == 0 or len(pend) > 6)) else None
        for mt in range(MT):
            mz = mt if t % 2 == 0 else MT - 1 - mt
            af = r4("a", AR + (s % RA) * 16 + mz * 4)
            c = r4("v", acc(mz, t))
            src = "0" if s == 0 else c
            if t in (4, 5): a("v_mfma_f32_16x16x32_bf16 %s, %s, %s, %s" % (c, af, bf, src))
            else:           a("v_mfma_f32_16x16x32_bf16 %s, %s, %s, %s" % (c, bf, af, src))
            if mt < 2 and un < NU: b_read(un, mt)
            if mt == 2 and nxt and nxt[0] == "B":
                ops, post = dma_ops(nxt[1])
                for x in ops[nxt[2]][0]: a(x)
            if mt == 3 and nxt:
                if nxt[0] == "A": a_load(nxt[1], nxt[2])
                else:
                    ops, post = dma_ops(nxt[1])
                    a.vmem(ops[nxt[2]][1], ("B", nxt[1]))
                    if nxt[2] == 6:
                        for x in post: a(x)
    assert not pend
    stamp(a, cfg, 3, 66)
    srd_off(a, 12, 8, 0, WS_END)
    a("s_lshl_b32 s36, s26, 7")
    a("s_lshl_b32 s37, s25, 4")
    a("s_add_u32 s36, s36, s37")
    a("s_lshl_b32 s37, s24, 2")
    a("s_add_u32 s36, s36, s37")
    a("s_lshl_b32 s36, s36, 10")
    a("s_add_u32 s37, s36, 0x%x" % WS_K)
    a("s_add_u32 s38, s36, 0x%x" % WS_V)
    a("s_add_u32 s36, s36, 0x%x" % WS_Q)
    a("s_lshl_b32 s39, s25, 2")
    a("s_add_u32 s39, s39, s24")
    a("s_mul_i32 s39, s39, %d" % (144 * 4096))
    a("s_add_u32 s39, s39, 0x%x" % WS_A2)
    a("s_mul_i32 s40, s26, 7")
    a("s_add_u32 s41, s40, s27")
    a("s_lshl_b32 s41, s41, 11")
    a("s_add_u32 s41, s41, s39")
    a("s_lshr_b32 s40, s26, 3")
    a("s_lshl_b32 s40, s40, 15")
    a("s_add_u32 s41, s41, s40")
    a("s_add_u32 s42, s41, 4096")
    a("s_add_u32 s43, s41, 8192")
    a("s_mul_i32 s44, s27, %d" % (-4096 + 8 - 3 * 4096))
    a("s_add_u32 s44, s44, %d" % (3 * 4096))
    a("s_add_u32 s44, s44, s41")
    a("s_mov_b32 s47, 0x%x" % f2u(QSCALE))
    a("s_nop 7")
    tmp = [V_T + 4 * i for i in range(8)]
    ti = [0]
    def pack_store(src0, src1, soff, imm, relu=False, scale=False):
        tr = tmp[ti[0] % 8]; ti[0] += 1
        for hh, sr in enumerate((src0, src1)):
            if sr is None: continue
            if scale:
                for e in range(4): a("v_mul_f32 v%d, s47, v%d" % (sr + e, sr + e))
            a("v_cvt_pk_bf16_f32 v%d, v%d, v%d" % (tr + 2 * hh, sr, sr + 1))
            a("v_cvt_pk_bf16_f32 v%d, v%d, v%d" % (tr + 2 * hh + 1, sr + 2, sr + 3))
            if relu:
                a("v_pk_max_i16 v%d, v%d, 0" % (tr + 2 * hh, tr + 2 * hh))
                a("v_pk_max_i16 v%d, v%d, 0" % (tr + 2 * hh + 1, tr + 2 * hh + 1))
        if src1 is None:
            a.vmem("buffer_store_dwordx2 %s, v%d, s[12:15], s%d offen offset:%d" % (r2("v", tr), V_L16, soff, imm))
        else:
            a.vmem("buffer_store_dwordx4 %s, v%d, s[12:15], s%d offen offset:%d" % (r4("v", tr), V_L16, soff, imm))
    for mt in range(MT): pack_store(acc(mt, 0), acc(mt, 1), 36, mt * 1024, scale=True)
    for mt in range(MT): pack_store(acc(mt, 2), acc(mt, 3), 37, mt * 1024)
    for b in range(2):
        for dt in range(2): pack_store(acc(2 * b, 4 + dt), acc(2 * b + 1, 4 + dt), 38, (b * 2 + dt) * 1024)
    for p in range(3):
        for mt in range(MT):
            pack_store(acc(mt, 6 + 2 * p), acc(mt, 7 + 2 * p), 41 + p, mt * 1024, relu=True)
    for mt in range(MT):
        pack_store(acc(mt, 12), None, 44, mt * 1024, relu=True)
    if cfg.get("stamp"):
        a("s_waitcnt vmcnt(0)")
        a("s_memtime s[68:69]")
        a("s_memrealtime s[72:73]")
        a("s_waitcnt lgkmcnt(0)")
        for i in range(4): a("s_sub_u32 s%d, s%d, s60" % (62 + 2 * i, 62 + 2 * i))
        for i in range(4): a("v_mov_b32 v%d, s%d" % (i, 62 + 2 * i))
        a("v_mov_b32 v4, s70")
        a("v_mov_b32 v5, s72")
        a("s_lshl_b32 s50, s2, 2")
        a("s_add_u32 s50, s50, s24")
        a("s_lshl_b32 s50, s50, 5")
        a("v_mov_b32 v8, 0")
        a("s_nop 4")
        a("buffer_store_dwordx4 v[0:3], v8, s[12:15], s50 offen")
        a("buffer_store_dwordx4 v[4:7], v8, s[12:15], s50 offen offset:16")
    a.label("G1_end")
    a("s_endpgm")
    kernel_desc(a, name, 256, sgpr=80, accum=256, agpr=256)
    return "; @launch kernel=%s grid=(256,1,1) block=(256,1,1) lds=%d" % (name, NS * STAGE)


def stamp_out(a, cfg, nst, s0, swave, srdb, wsoff, nw):
    if not cfg.get("stamp"): return
    a("s_waitcnt vmcnt(0)")
    a("s_memtime s[68:69]")
    a("s_memrealtime s[72:73]")
    a("s_waitcnt lgkmcnt(0)")
    for i in range(4): a("s_sub_u32 s%d, s%d, s60" % (62 + 2 * i, 62 + 2 * i))
    for i in range(4): a("v_mov_b32 v%d, s%d" % (i, 62 + 2 * i))
    a("v_mov_b32 v4, s70")
    a("v_mov_b32 v5, s72")
    a("s_mul_i32 s50, s2, %d" % nw)
    a("s_add_u32 s50, s50, s%d" % swave)
    a("s_lshl_b32 s50, s50, 5")
    a("s_add_u32 s50, s50, 0x%x" % wsoff)
    a("v_mov_b32 v8, 0")
    a("s_nop 4")
    a("buffer_store_dwordx4 v[0:3], v8, s[%d:%d], s50 offen" % (srdb, srdb + 3))
    a("buffer_store_dwordx4 v[4:7], v8, s[%d:%d], s50 offen offset:16" % (srdb, srdb + 3))

def gen_at(a, cfg):
    name = "at_kernel"
    kernel_begin(a, name)
    a.reset()
    stamp(a, cfg, 0, 60)
    if cfg.get("stamp"): a("s_memrealtime s[70:71]")
    a("s_cmp_ge_u32 s2, 256")
    a("s_cbranch_scc1 AT_end")
    a("s_load_dwordx2 s[8:9], s[0:1], 64")
    def sreg(qa, kt): return (qa * 18 + kt) * 4
    VQ = 144; VO = 152; VS = 168; VONE = 176
    V_L16 = 180; T = 181; VM = 182; VNEG = 183
    a("v_and_b32 v%d, 63, v0" % T)
    a("v_lshrrev_b32 v%d, 6, v0" % VM)
    a("v_lshlrev_b32 v%d, 4, v%d" % (V_L16, T))
    a("v_readfirstlane_b32 s24, v%d" % VM)
    a("s_and_b32 s25, s2, 1")
    a("s_lshl_b32 s25, s25, 2")
    a("s_bfe_u32 s26, s2, 0x20003")
    a("s_add_u32 s25, s25, s26")
    a("s_bfe_u32 s26, s2, 0x20001")
    a("s_lshl_b32 s26, s26, 3")
    a("s_lshr_b32 s27, s2, 5")
    a("s_add_u32 s26, s26, s27")
    a("s_lshl_b32 s27, s26, 17")
    a("s_lshl_b32 s28, s25, 14")
    a("s_lshl_b32 s29, s24, 12")
    a("s_add_u32 s28, s28, s29")
    a("s_sub_u32 s28, s28, 16384")
    a("v_add_u32 v%d, s28, v%d" % (VM, V_L16))
    a("s_lshl_b32 s30, s25, 14")
    a("s_lshl_b32 s31, s24, 11")
    a("s_add_u32 s30, s30, s31")
    a("s_waitcnt lgkmcnt(0)")
    a("s_add_u32 s4, s8, s27")
    a("s_addc_u32 s5, s9, 0")
    srd_off(a, 12, 4, WS_K, 131072)
    srd_off(a, 16, 4, WS_V, 131072)
    srd_off(a, 20, 4, WS_Q, 131072)
    a("s_mov_b32 m0, s29")
    a("s_nop 0")
    for i in range(4): a("buffer_load_dwordx4 v%d, s[12:15], 0 offen offset:%d lds" % (VM, i * 1024))
    for qa in range(2): a("buffer_load_dwordx4 %s, v%d, s[20:23], s30 offen offset:%d" % (r4("v", VQ + 4 * qa), V_L16, qa * 1024))
    a("s_add_u32 m0, s29, 32768")
    a("s_nop 0")
    for i in range(4): a("buffer_load_dwordx4 v%d, s[16:19], 0 offen offset:%d lds" % (VM, i * 1024))
    a("v_lshrrev_b32 v0, 4, v%d" % T)
    a("v_lshlrev_b32 v0, 2, v0")
    a("v_and_b32 v1, 15, v%d" % T)
    for e in range(4):
        a("v_add_u32 v2, %d, v0" % e)
        a("v_cmp_le_u32 s[%d:%d], v2, v1" % (40 + 2 * e, 41 + 2 * e))
    a("v_mov_b32 v%d, 0x%x" % (VNEG, f2u(-1e30)))
    for e in range(4): a("v_mov_b32 v%d, 0x3f803f80" % (VONE + e))
    a("v_add_u32 v%d, s31, v%d" % (T, V_L16))
    a("s_sub_u32 s32, 8, s24")
    a("s_cmp_eq_u32 s25, 0")
    a("s_cselect_b32 s32, s32, 0")
    a("s_cbranch_scc0 AT_nofill")
    for r in range(144): a("v_mov_b32 v%d, v%d" % (r, VNEG))
    a.label("AT_nofill")
    a("s_lshl_b32 s33, s25, 2")
    a("s_lshr_b32 s34, s24, 1")
    a("s_add_u32 s33, s33, s34")
    a("s_mul_i32 s33, s33, 144")
    a("s_lshr_b32 s34, s26, 3")
    a("s_mul_i32 s34, s34, 28")
    a("s_add_u32 s33, s33, s34")
    a("s_add_u32 s33, s33, s26")
    a("s_add_u32 s33, s33, 28")
    a("s_lshl_b32 s33, s33, 12")
    a("s_and_b32 s34, s24, 1")
    a("s_lshl_b32 s34, s34, 11")
    a("s_add_u32 s33, s33, s34")
    a("s_add_u32 s33, s33, 0x%x" % WS_A2)
    a("s_waitcnt vmcnt(4)")
    a("s_barrier")
    stamp(a, cfg, 1, 62)
    for kt in range(18): a("ds_read_b128 %s, v%d offset:%d" % (r4("a", 4 * kt), T, kt * 1024))
    srd_off(a, 12, 8, 0, WS_END)
    a("s_waitcnt lgkmcnt(0)")
    for b in range(9):
        if b < 8:
            a("s_cmp_gt_u32 s32, %d" % b)
            a("s_cbranch_scc1 AT_skip%d" % b)
        for kt in (2 * b, 2 * b + 1):
            for qa in range(2):
                if (qa, kt) in ((0, 17), (1, 0)): continue
                a("v_mfma_f32_16x16x32_bf16 %s, %s, %s, 0" % (r4("v", sreg(qa, kt)), r4("a", 4 * kt), r4("v", VQ + 4 * qa)))
        if b < 8: a.label("AT_skip%d" % b)
    a("s_waitcnt vmcnt(0)")
    a("s_barrier")
    for f in range(18): a("ds_read_b128 %s, v%d offset:%d" % (r4("a", 4 * f), T, 32768 + f * 1024))
    stamp(a, cfg, 2, 64)
    for qa in range(2):
        k0 = qa; k1 = 16 + qa
        for e in range(4):
            a("v_cndmask_b32 v%d, v%d, v%d, s[%d:%d]" % (sreg(qa, k0) + e, sreg(qa, k0) + e, VNEG, 40 + 2 * e, 41 + 2 * e))
            a("v_cndmask_b32 v%d, v%d, v%d, s[%d:%d]" % (sreg(qa, k1) + e, VNEG, sreg(qa, k1) + e, 40 + 2 * e, 41 + 2 * e))
        regs = [sreg(qa, kt) + e for kt in range(k0, k1 + 1) for e in range(4)]
        m0, m1 = VO, VO + 1
        a("v_max_f32 v%d, v%d, v%d" % (m0, regs[0], regs[1]))
        a("v_max_f32 v%d, v%d, v%d" % (m1, regs[2], regs[3]))
        for x in range(4, 68, 4):
            a("v_max3_f32 v%d, v%d, v%d, v%d" % (m0, m0, regs[x], regs[x + 1]))
            a("v_max3_f32 v%d, v%d, v%d, v%d" % (m1, m1, regs[x + 2], regs[x + 3]))
        a("v_max_f32 v%d, v%d, v%d" % (m0, m0, m1))
        for op in ("v_permlane16_swap_b32", "v_permlane32_swap_b32"):
            a("v_mov_b32 v%d, v%d" % (m1, m0))
            a("s_nop 1")
            a("%s v%d, v%d" % (op, m0, m1))
            a("s_nop 1")
            a("v_max_f32 v%d, v%d, v%d" % (m0, m0, m1))
        for x in regs: a("v_sub_f32 v%d, v%d, v%d" % (x, x, m0))
        for x in regs: a("v_exp_f32 v%d, v%d" % (x, x))
        a("s_nop 0")
        for b in range(9):
            d = sreg(qa, 2 * b)
            for hh in range(2):
                kt = 2 * b + hh
                if (qa, kt) in ((0, 17), (1, 0)):
                    a("v_mov_b32 v%d, 0" % (d + 2 * hh)); a("v_mov_b32 v%d, 0" % (d + 2 * hh + 1))
                else:
                    sr = sreg(qa, kt)
                    a("v_cvt_pk_bf16_f32 v%d, v%d, v%d" % (d + 2 * hh, sr, sr + 1))
                    a("v_cvt_pk_bf16_f32 v%d, v%d, v%d" % (d + 2 * hh + 1, sr + 2, sr + 3))
    a("s_waitcnt lgkmcnt(0)")
    a("s_nop 1")
    for b in range(9):
        for qa in range(2):
            p = r4("v", sreg(qa, 2 * b))
            for dt in range(2):
                o = r4("v", VO + (qa * 2 + dt) * 4)
                a("v_mfma_f32_16x16x32_bf16 %s, %s, %s, %s" % (o, r4("a", (2 * b + dt) * 4), p, "0" if b == 0 else o))
            o = r4("v", VS + qa * 4)
            a("v_mfma_f32_16x16x32_bf16 %s, %s, %s, %s" % (o, r4("v", VONE), p, "0" if b == 0 else o))
    a("s_nop 7")
    stamp(a, cfg, 3, 66)
    for qa in range(2):
        a("v_rcp_f32 v%d, v%d" % (VS + qa * 4, VS + qa * 4))
    a("s_nop 0")
    for qa in range(2):
        for x in range(8): a("v_mul_f32 v%d, v%d, v%d" % (VO + qa * 8 + x, VO + qa * 8 + x, VS + qa * 4))
        for x in range(4): a("v_cvt_pk_bf16_f32 v%d, v%d, v%d" % (qa * 4 + x, VO + qa * 8 + 2 * x, VO + qa * 8 + 2 * x + 1))
        a("buffer_store_dwordx4 %s, v%d, s[12:15], s33 offen offset:%d" % (r4("v", qa * 4), V_L16, qa * 1024))
    stamp_out(a, cfg, 4, 60, 24, 12, 0x10000, 8)
    a.label("AT_end")
    a("s_endpgm")
    kernel_desc(a, name, 184, sgpr=80, accum=184, agpr=72)
    return "; @launch kernel=%s grid=(256,1,1) block=(512,1,1) lds=65536" % name

def gen_g2(a, cfg):
    name = "g2_kernel"
    MT, NT = 4, 8
    KS = 36; NG = 18
    DL = cfg.get("g2_dl", 6)
    NS = cfg.get("g2_stages", 7)
    RA = cfg.get("g2_ra", 10)
    DB = cfg.get("g2_db", 3); RB = DB + 2
    STAGE = 16384
    S1 = KS - DL
    def acc(mt, t): return (t * MT + mt) * 4
    VX = 128
    VP = 144
    V_L16 = 192; V_DMA = 193; V_XO = 195; V_FL = 196; V_ONE = 197
    V_RD = 200
    VPK = 216
    T = 232
    AR = 0; BR = RA * 16
    assert BR + RB * 4 <= 256 and NS <= 8
    kernel_begin(a, name)
    a.reset()
    stamp(a, cfg, 0, 60)
    if cfg.get("stamp"): a("s_memrealtime s[70:71]")
    a("s_cmp_ge_u32 s2, 256")
    a("s_cbranch_scc1 G2_end")
    a("s_load_dwordx2 s[4:5], s[0:1], 40")
    a("s_load_dwordx2 s[6:7], s[0:1], 16")
    a("s_load_dwordx2 s[8:9], s[0:1], 64")
    a("s_load_dwordx2 s[10:11], s[0:1], 0")
    a("s_load_dwordx2 s[36:37], s[0:1], 48")
    a("v_and_b32 v%d, 63, v0" % T)
    a("v_lshrrev_b32 v%d, 6, v0" % (T + 1))
    a("v_lshlrev_b32 v%d, 4, v%d" % (V_L16, T))
    a("v_readfirstlane_b32 s24, v%d" % (T + 1))
    a("s_and_b32 s25, s2, 1")
    a("s_lshl_b32 s25, s25, 2")
    a("s_bfe_u32 s26, s2, 0x20003")
    a("s_add_u32 s25, s25, s26")
    a("s_bfe_u32 s26, s2, 0x20001")
    a("s_lshr_b32 s27, s2, 5")
    a("v_lshrrev_b32 v%d, 4, v%d" % (T + 2, T))
    a("v_lshlrev_b32 v%d, 11, v%d" % (V_DMA, T + 2))
    a("v_lshlrev_b32 v%d, 1, v%d" % (T + 2, T + 2))
    a("v_and_b32 v%d, 15, v%d" % (T + 3, T))
    a("v_xor_b32 v%d, v%d, v%d" % (T + 2, T + 2, T + 3))
    a("v_lshl_add_u32 v%d, v%d, 4, v%d" % (V_DMA, T + 2, V_DMA))
    a("v_xor_b32 v%d, 128, v%d" % (V_DMA + 1, V_DMA))
    a("s_lshl_b32 s31, s24, 15")
    a("s_lshl_b32 s32, s27, 8")
    a("s_add_u32 s31, s31, s32")
    a("s_mul_i32 s30, s26, %d" % (896 * 2048))
    a("s_add_u32 s30, s30, s31")
    a("s_lshl_b32 s38, s26, 19")
    a("s_add_u32 s38, s38, s31")
    a("s_lshl_b32 s34, s24, 12")
    a("s_lshl_b32 s33, s25, 2")
    a("s_add_u32 s33, s33, s24")
    a("s_mul_i32 s35, s33, 144")
    a("s_mul_i32 s39, s26, 36")
    a("s_add_u32 s35, s35, s39")
    a("s_lshl_b32 s35, s35, 12")
    a("s_lshl_b32 s39, s33, 17")
    a("s_add_u32 s39, s39, s32")
    a("s_lshl_b32 s33, s26, 6")
    a("s_add_u32 s39, s39, s33")
    a("s_waitcnt lgkmcnt(0)")
    srd(a, 12, 4, DFF * D * 2)
    srd(a, 16, 6, D * D * 2)
    srd_off(a, 20, 8, WS_A2, A2_BYTES)
    def a_load(s, mt):
        FK = cfg.get("g2_fake", 0)
        if FK & 4 and s >= RA:
            a.vmem("s_nop 0", ("A", s)); return
        a.vmem("buffer_load_dwordx4 %s, v%d, s[20:23], s35 offen offset:%d%s" % (r4("a", AR + (s % RA) * 16 + mt * 4), V_L16, mt * 1024, " sc1" if FK & 1 else ""), ("A", s))
        if mt == MT - 1: a("s_add_u32 s35, s35, %d" % (0 if FK & 1 and s >= 3 else 4096))
    def dma_pre(g, k): a("s_add_u32 m0, s34, %d" % ((g % NS) * STAGE + k * 1024))
    def dma(g, k):
        FK = cfg.get("g2_fake", 0)
        if FK & 8 and g >= NS:
            a.vmem("s_nop 0", ("B", g)); return
        sb = 12 if g < 14 else 16
        a.vmem("buffer_load_dwordx4 v%d, s[%d:%d], s30 offen%s lds" % (V_DMA + (k & 1), sb, sb + 3, " sc1" if FK & 2 else ""), ("B", g))
        if k == 3 and g == 13: a("s_mov_b32 s30, s38")
        elif FK & 2 and k == 3: a("s_add_u32 s30, s30, %d" % (-3 * 8192))
        else: a("s_add_u32 s30, s30, %d" % (8192 if k < 3 else 8192 + 48 * 2048))
    order = []
    for g in range(NG):
        for k in range(4): order.append(("B", g, k))
        for s in (2 * g, 2 * g + 1):
            for mt in range(MT): order.append(("A", s, mt))
    st = dict(bar=-1, step=-1)
    def can(op):
        if op[0] == "B": return op[1] < NS - 1 or op[1] - NS + 2 <= st["bar"]
        return op[1] - RA <= st["step"]
    PRO = cfg.get("g2_pro", 12)
    for _ in range(PRO):
        op = order.pop(0)
        if op[0] == "A": a_load(op[1], op[2])
        else:
            dma_pre(op[1], op[2]); a("s_nop 0"); dma(op[1], op[2])
    srd(a, 40, 10, S * D * 2)
    srd(a, 44, 36, S * D * 2)
    srd_off(a, 48, 8, WS_XC, XC_BYTES + FL_BYTES)
    a("v_and_b32 v%d, 15, v%d" % (T + 2, T))
    a("v_lshlrev_b32 v%d, 11, v%d" % (V_XO, T + 2))
    a("v_bfe_u32 v%d, v%d, 4, 1" % (T + 2, T))
    a("v_lshl_add_u32 v%d, v%d, 5, v%d" % (V_XO, T + 2, V_XO))
    a("v_lshrrev_b32 v%d, 5, v%d" % (T + 2, T))
    a("v_lshl_add_u32 v%d, v%d, 4, v%d" % (V_XO, T + 2, V_XO))
    a("v_lshrrev_b32 v%d, 2, v%d" % (T + 2, T))
    a("v_and_b32 v%d, 7, v%d" % (T + 4, T + 2))
    a("v_lshlrev_b32 v%d, 8, v%d" % (T + 2, T + 2))
    a("v_and_b32 v%d, 3, v%d" % (T + 3, T))
    a("v_lshl_add_u32 v%d, v%d, 3, v%d" % (T + 2, T + 3, T + 2))
    a("v_lshl_add_u32 v%d, v%d, 5, v%d" % (V_RD, T + 4, T + 2))
    a("s_xor_b32 s33, s33, 192")
    a("v_xor_b32 v%d, s33, v%d" % (V_RD, V_RD))
    for t in range(1, 8): a("v_xor_b32 v%d, %d, v%d" % (V_RD + t, t * 32, V_RD))
    for t in range(8): a("v_add_u32 v%d, 0x10000, v%d" % (V_RD + 8 + t, V_RD + t))
    for lam in range(3):
        a("s_xor_b32 s52, s2, %d" % ((lam ^ 3) << 1))
        a("s_lshl_b32 s52, s52, 2")
        a("s_add_u32 s52, s52, s24")
        a("s_mul_i32 s%d, s52, 12288" % (53 + lam))
        if lam: a("s_add_u32 s%d, s%d, %d" % (53 + lam, 53 + lam, lam * 4096))
        a("s_lshl_b32 s%d, s52, 7" % (56 + lam))
        a("s_add_u32 s%d, s%d, %d" % (56 + lam, 56 + lam, XC_BYTES + lam * 4))
    a("s_lshl_b32 s52, s2, 2")
    a("s_add_u32 s52, s52, s24")
    a("s_lshl_b32 s59, s52, 7")
    a("s_add_u32 s59, s59, %d" % XC_BYTES)
    a("s_mul_i32 s52, s52, 12288")
    a("v_cmp_ne_u32 vcc, 0, v%d" % T)
    a("v_bfrev_b32 v%d, 1" % (T + 2))
    a("v_mov_b32 v%d, 1" % V_ONE)
    a("v_cndmask_b32 v%d, 0, v%d, vcc" % (V_FL, T + 2))
    PF = cfg.get("g2_pf", 0)
    V_P = 198
    if PF:
        a("s_bfe_u32 s74, s2, 0x30003")
        a("s_lshr_b32 s75, s2, 6")
        a("s_lshl_b32 s75, s75, 2")
        a("s_add_u32 s75, s75, s24")
        a("s_and_b32 s76, s2, 1")
        a("s_lshl_b32 s76, s76, 4")
        a("s_add_u32 s76, s76, s75")
        a("s_mul_i32 s76, s76, 144")
        a("s_mul_i32 s77, s26, 36")
        a("s_add_u32 s76, s76, s77")
        a("s_lshl_b32 s76, s76, 12")
        a("s_lshl_b32 s75, s75, 12")
        a("s_mul_i32 s77, s26, %d" % (896 * 2048))
        a("s_add_u32 s77, s77, s75")
        a("s_lshl_b32 s78, s26, 19")
        a("s_add_u32 s78, s78, s75")
        a("v_lshlrev_b32 v%d, 7, v%d" % (V_P, T))
        a("v_lshrrev_b32 v%d, 5, v%d" % (T + 2, T))
        a("v_lshl_add_u32 v%d, v%d, 30, v%d" % (V_P, T + 2, V_P))
    def touch(cls, s):
        lab = a.newlabel("G2_pf")
        a("s_cmp_lg_u32 s74, %d" % cls)
        a("s_cbranch_scc1 %s" % lab)
        a("s_add_u32 s79, s76, %d" % (s * 4096))
        a("buffer_load_dword v%d, v%d, s[20:23], s79 offen" % (V_P + 1, V_P))
        if s < 28:
            a("s_add_u32 s79, s77, %d" % (s * 65536))
            a("buffer_load_dword v%d, v%d, s[12:15], s79 offen" % (V_P + 1, V_P))
        else:
            a("s_add_u32 s79, s78, %d" % ((s - 28) * 65536))
            a("buffer_load_dword v%d, v%d, s[16:19], s79 offen" % (V_P + 1, V_P))
        a.label(lab)
    pfq = list(range(cfg.get("g2_pf0", 2), KS))
    pfn = [0]
    PFU = cfg.get("g2_pfu", 6)
    if PF:
        for _ in range(PF):
            touch(pfn[0] & 7, pfq.pop(0)); pfn[0] += 1
    stamp(a, cfg, 1, 62)
    units = [(s, t) for s in range(S1) for t in range(NT)]
    for lam in range(4):
        units += [(s, t) for s in range(S1, KS) for t in (2 * lam, 2 * lam + 1)]
    NU = len(units)
    def b_read(u, j2):
        s, t = units[u]
        slot = (s // 2) % NS
        off = (slot % 4) * STAGE + (s % 2) * 8192 + j2 * 4096
        a.lds("ds_read_b64_tr_b16 %s, v%d offset:%d" % (r2("a", BR + (u % RB) * 4 + j2 * 2), V_RD + 8 * (slot // 4) + t, off), ("b", u))
    def flush_until(tag):
        while any(o[:2] == tag for o in order):
            op = order.pop(0)
            assert can(op), (op, st)
            if op[0] == "A": a_load(op[1], op[2])
            else:
                dma_pre(op[1], op[2]); a("s_nop 0"); dma(op[1], op[2])
    def need_stage(u):
        g = units[u][0] // 2
        if g > st["bar"]:
            flush_until(("B", g))
            a.wait(vm=("B", g)); a("s_barrier"); st["bar"] = g
    need_stage(0)
    stamp(a, cfg, 2, 64)
    for u in range(DB):
        b_read(u, 0); b_read(u, 1)
    side = []
    seenA = set()
    xload_done = False
    for u in range(NU):
        s, t = units[u]
        un = u + DB
        if un < NU: need_stage(un)
        if s not in seenA:
            flush_until(("A", s)); seenA.add(s)
            a.wait(vm=("A", s), lg=("b", u))
        else:
            a.wait(lg=("b", u))
        if PF and pfq and u % PFU == PFU - 1:
            touch(pfn[0] & 7, pfq.pop(0)); pfn[0] += 1
        bf = r4("a", BR + (u % RB) * 4)
        LAU = cfg.get("g2_lau", 100)
        def soon(op):
            stp = op[1] * 2 if op[0] == "B" else op[1]
            return stp <= u / PFU + LAU
        nxt = order.pop(0) if (order and can(order[0]) and soon(order[0])) else None
        if not order and not xload_done and nxt is None:
            xload_done = True
            for mt in range(MT):
                def f(mt=mt):
                    a.vmem("buffer_load_dwordx4 %s, v%d, s[40:43], s39 offen" % (r4("v", VX + 4 * mt), V_XO), "X")
                    a("s_add_u32 s39, s39, %d" % (32768 if mt < 3 else -3 * 32768))
                side.append(f)
        for mt in range(MT):
            mz = mt if u % 2 == 0 else MT - 1 - mt
            af = r4("a", AR + (s % RA) * 16 + mz * 4)
            c = r4("v", acc(mz, t))
            a("v_mfma_f32_16x16x32_bf16 %s, %s, %s, %s" % (c, bf, af, "0" if s == 0 else c))
            if mt < 2 and un < NU: b_read(un, mt)
            if mt == 2 and nxt and nxt[0] == "B": dma_pre(nxt[1], nxt[2])
            if mt == 3 and nxt:
                if nxt[0] == "A": a_load(nxt[1], nxt[2])
                else: dma(nxt[1], nxt[2])
            k = 1 if mt < 2 else 2
            for _ in range(k):
                if side:
                    f = side.pop(0)
                    if f: f()
        if u < S1 * NT and t == NT - 1: st["step"] = s
        if u >= S1 * NT and (u - S1 * NT) % (2 * DL) == 2 * DL - 1:
            lam = (u - S1 * NT) // (2 * DL)
            if lam < 3:
                side += [None] * 6
                for mt in range(MT):
                    for hh in range(2):
                        for e2 in range(2):
                            def f(mt=mt, hh=hh, e2=e2, lam=lam):
                                c = acc(mt, 2 * lam + hh) + 2 * e2
                                a("v_cvt_pk_bf16_f32 v%d, v%d, v%d" % (VPK + 4 * mt + 2 * hh + e2, c, c + 1))
                            side.append(f)
                    def f(mt=mt, lam=lam):
                        a.vmem("buffer_store_dwordx4 %s, v%d, s[48:51], s%d offen offset:%d sc1" % (r4("v", VPK + 4 * mt), V_L16, 53 + lam, mt * 1024), ("S", lam))
                    side.append(f)
    for f in side:
        if f: f()
    assert not order and xload_done
    stamp(a, cfg, 3, 66)
    for lam in range(3):
        a.wait(vm=("S", lam))
        a.vmem("buffer_store_dword v%d, v%d, s[48:51], s%d offen sc1" % (V_ONE, V_FL, 56 + lam), ("F", lam))
    a("v_mov_b32 v%d, 0" % (T + 1))
    a("s_mov_b32 s54, 0x40000")
    a.label("G2_poll")
    a("s_sub_u32 s54, s54, 1")
    a("s_cbranch_scc1 G2_go")
    a("buffer_load_dwordx3 v[%d:%d], v%d, s[48:51], s59 offen sc1" % (T + 4, T + 6, T + 1))
    a("s_waitcnt vmcnt(0)")
    a("v_and_b32 v%d, v%d, v%d" % (T + 4, T + 4, T + 5))
    a("v_and_b32 v%d, v%d, v%d" % (T + 4, T + 4, T + 6))
    a("s_nop 0")
    a("v_readfirstlane_b32 s53, v%d" % (T + 4))
    a("s_cmp_eq_u32 s53, 1")
    a("s_cbranch_scc0 G2_poll")
    a.label("G2_go")
    a.reset()
    if cfg.get("stamp"): a("s_memtime s[62:63]")
    for lam in range(3):
        for mt in range(MT):
            a.vmem("buffer_load_dwordx4 %s, v%d, s[48:51], s52 offen offset:%d sc1" % (r4("v", VP + 16 * lam + 4 * mt), V_L16, mt * 1024), ("R", lam, mt))
        if lam < 2: a("s_add_u32 s52, s52, 4096")
    for lam in range(3):
        for mt in range(MT):
            a.wait(vm=("R", lam, mt))
            for hh in range(2):
                for e2 in range(2):
                    p = VP + 16 * lam + 4 * mt + 2 * hh + e2
                    c = acc(mt, 6 + hh) + 2 * e2
                    a("v_lshlrev_b32 v%d, 16, v%d" % (T, p))
                    a("v_and_b32 v%d, 0xffff0000, v%d" % (T + 1, p))
                    a("v_add_f32 v%d, v%d, v%d" % (c, c, T))
                    a("v_add_f32 v%d, v%d, v%d" % (c + 1, c + 1, T + 1))
            if lam == 2:
                c0, c1 = acc(mt, 6), acc(mt, 7)
                a("s_nop 1")
                for e in range(4): a("v_permlane16_swap_b32 v%d, v%d" % (c0 + e, c1 + e))
                a("s_nop 1")
                xr = VX + 4 * mt
                for hh, c in enumerate((c0, c1)):
                    for e2 in range(2):
                        xx = xr + 2 * hh + e2
                        a("v_lshlrev_b32 v%d, 16, v%d" % (T, xx))
                        a("v_and_b32 v%d, 0xffff0000, v%d" % (T + 1, xx))
                        a("v_add_f32 v%d, v%d, v%d" % (T, T, c + 2 * e2))
                        a("v_add_f32 v%d, v%d, v%d" % (T + 1, T + 1, c + 2 * e2 + 1))
                        a("v_cvt_pk_bf16_f32 v%d, v%d, v%d" % (xx, T, T + 1))
                a.vmem("buffer_store_dwordx4 %s, v%d, s[44:47], s39 offen" % (r4("v", xr), V_XO), "O")
                if mt < 3: a("s_add_u32 s39, s39, 32768")
    if cfg.get("stamp"): srd_off(a, 12, 8, 0, WS_END)
    stamp_out(a, cfg, 4, 60, 24, 12, 0x30000, 4)
    a.label("G2_end")
    a("s_endpgm")
    kernel_desc(a, name, 240, sgpr=96, accum=240, agpr=BR + RB * 4)
    return "; @launch kernel=%s grid=(256,1,1) block=(256,1,1) lds=%d" % (name, NS * STAGE)

def gen_pf(a, cfg):
    name = "pf_kernel"
    kernel_begin(a, name)
    a.reset()
    stamp(a, cfg, 0, 60)
    if cfg.get("stamp"): a("s_memrealtime s[70:71]")
    a("s_cmp_ge_u32 s2, 256")
    a("s_cbranch_scc1 PF_end")
    a("s_load_dwordx4 s[4:7], s[0:1], 8")
    a("s_load_dwordx4 s[8:11], s[0:1], 32")
    a("s_load_dwordx2 s[36:37], s[0:1], 64")
    a("v_lshrrev_b32 v2, 6, v0")
    a("s_nop 0")
    a("v_readfirstlane_b32 s34, v2")
    mode = cfg.get("pf_mode", 0)
    gran = cfg.get("pf_gran", 128)
    if mode == 0: gran = 16
    if mode == 2:
        a("s_lshr_b32 s3, s2, 3")
        a("s_lshl_b32 s3, s3, 9")
        nthr = 32 * 512
    else:
        a("s_lshl_b32 s3, s2, 9")
        nthr = 256 * 512
    a("v_add_u32 v1, s3, v0")
    a("s_mov_b32 s31, %d" % gran)
    a("v_mul_lo_u32 v1, s31, v1")
    if nthr * gran >= (1 << 32):
        a("v_add_u32 v3, s3, v0")
        a("v_min_u32 v3, 200, v3")
        a("v_mul_lo_u32 v1, s31, v3")
    a("s_waitcnt lgkmcnt(0)")
    sizes = [D * 3 * D * 2, D * D * 2, D * DFF * 2, D * DFF * 2]
    order = [0, 2, 3, 1]
    mask = cfg.get("pf_mask", 15)
    n = 0
    for b in order:
        if not (mask >> b) & 1: continue
        srd(a, 12 + 4 * b, 4 + 2 * b, sizes[b])
        step = nthr * gran
        for off in range(0, sizes[b], step):
            a("s_mov_b32 s30, 0x%x" % off)
            if mode == 0: a("buffer_load_dwordx4 %s, v1, s[%d:%d], s30 offen" % (r4("v", 8 + 4 * n), 12 + 4 * b, 15 + 4 * b))
            else: a("buffer_load_dword v%d, v1, s[%d:%d], s30 offen" % (8 + n, 12 + 4 * b, 15 + 4 * b))
            n += 1
    stamp(a, cfg, 1, 62); stamp(a, cfg, 2, 64); stamp(a, cfg, 3, 66)
    a("s_waitcnt vmcnt(0)")
    if cfg.get("stamp"): srd_off(a, 12, 36, 0, WS_END)
    stamp_out(a, cfg, 4, 60, 34, 12, 0x50000, 8)
    a.label("PF_end")
    a("s_endpgm")
    kernel_desc(a, name, 72, sgpr=80)
    return "; @launch kernel=%s grid=(256,1,1) block=(512,1,1) lds=0" % name

def gen_em(a, cfg):
    kernel_begin(a, "em_kernel")
    a("s_endpgm")
    kernel_desc(a, "em_kernel", 8, sgpr=16)
    return "; @launch kernel=em_kernel grid=(256,1,1) block=(256,1,1) lds=0"

def build(cfg, kernels):
    a = Prog()
    heads = []
    for k in kernels:
        heads.append(globals()["gen_" + k](a, cfg))
    a.raw(".text")
    a.label("CODE_END")
    for _ in range(cfg.get("nempty", 0)): heads.append(heads[-1])
    hdr = "\n".join(heads) + "\n" + '.amdgcn_target "amdgcn-amd-amdhsa--gfx950"\n'
    return hdr + a.text()

if __name__ == "__main__":
    cfg = dict(g1_mt=4)
    out = sys.argv[1]
    kernels = sys.argv[2].split(",")
    for kv in sys.argv[3:]:
        k, v = kv.split("="); cfg[k] = int(v)
    open(out, "w").write(build(cfg, kernels))
```

```python
import sys, math
from asmlib import *

NAME = "parallel_sum__sliding_block__dense_activation_relu__prompt"
S, D, DFF, H = 2048, 1024, 3584, 32
WS_XN = 0x0100000
WS_Q  = 0x0500000
WS_K  = 0x0900000
WS_V  = 0x0D00000
WS_A2 = 0x1100000
A2_BYTES = 128 * 144 * 1024
WS_XC = WS_A2 + A2_BYTES
XC_BYTES = 256 * 4 * 3 * 4096
WS_FL = WS_XC + XC_BYTES
FL_BYTES = 256 * 4 * 128
WS_END = WS_FL + FL_BYTES
QSCALE = (32 ** -0.5) * math.log2(math.e)

import struct
def f2u(f): return struct.unpack("<I", struct.pack("<f", f))[0]

class Prog(Asm):
    def __init__(self):
        super().__init__()
        self.reset()
    def reset(self):
        self.vm = []; self.vm_done = 0
        self.lg = []; self.lg_done = 0
    def vmem(self, text, tag=None):
        self(text); self.vm.append(tag)
    def lds(self, text, tag=None):
        self(text); self.lg.append(tag)
    def _need(self, q, done, tag, cap):
        idx = max(i for i, t in enumerate(q) if t == tag)
        if idx < done: return None, done
        n = len(q) - idx - 1
        n = min(n, cap)
        return n, len(q) - n
    def wait(self, vm=None, lg=None):
        parts = []
        if vm is not None:
            n, self.vm_done = self._need(self.vm, self.vm_done, vm, 63)
            if n is not None: parts.append("vmcnt(%d)" % n)
        if lg is not None:
            n, self.lg_done = self._need(self.lg, self.lg_done, lg, 15)
            if n is not None: parts.append("lgkmcnt(%d)" % n)
        if parts:
            self("s_waitcnt " + " ".join(parts)); return True
        return False
    def wait_all(self, vm=True, lg=True):
        parts = []
        if vm: parts.append("vmcnt(0)"); self.vm_done = len(self.vm)
        if lg: parts.append("lgkmcnt(0)"); self.lg_done = len(self.lg)
        self("s_waitcnt " + " ".join(parts))

def r4(p, b): return "%s[%d:%d]" % (p, b, b + 3)
def r2(p, b): return "%s[%d:%d]" % (p, b, b + 1)

def srd_off(a, d, base, off, nbytes):
    a("s_add_u32 s%d, s%d, 0x%x" % (d, base, off))
    a("s_addc_u32 s%d, s%d, 0" % (d + 1, base + 1))
    a("s_and_b32 s%d, s%d, 0xffff" % (d + 1, d + 1))
    a("s_mov_b32 s%d, 0x%x" % (d + 2, nbytes))
    a("s_mov_b32 s%d, 0x00020000" % (d + 3))

def stamp(a, cfg, idx, sreg):
    if cfg.get("stamp"):
        a("s_memtime s[%d:%d]" % (sreg, sreg + 1))

def gen_ln(a, cfg):
    MT = cfg["g1_mt"]
    name = "ln_kernel"
    kernel_begin(a, name)
    a.reset()
    for r in (60, 62, 64, 66): stamp(a, cfg, 0, r)
    if cfg.get("stamp"): a("s_memrealtime s[70:71]")
    a("s_cmp_ge_u32 s2, 256")
    a("s_cbranch_scc1 LN_end")
    a("s_load_dwordx2 s[4:5], s[0:1], 0")
    a("s_load_dwordx2 s[6:7], s[0:1], 64")
    a("s_load_dwordx2 s[20:21], s[0:1], 8")
    a("s_load_dwordx2 s[22:23], s[0:1], 32")
    a("v_and_b32 v1, 63, v0")
    a("v_lshrrev_b32 v2, 6, v0")
    a("v_and_b32 v3, 7, v1")
    a("v_lshrrev_b32 v4, 3, v1")
    a("s_lshl_b32 s3, s2, 14")
    a("v_lshlrev_b32 v5, 11, v3")
    a("v_lshl_add_u32 v5, v2, 9, v5")
    a("v_lshl_add_u32 v5, v4, 4, v5")
    a("s_waitcnt lgkmcnt(0)")
    srd(a, 8, 4, S * D * 2)
    srd_off(a, 12, 6, WS_XN, S * D * 2)
    for i in range(4):
        a("buffer_load_dwordx4 %s, v5, s[8:11], s3 offen offset:%d" % (r4("v", 8 + 4 * i), i * 128))
    srd_off(a, 36, 6, WS_FL, FL_BYTES)
    a("s_lshl_b32 s16, s2, 9")
    a("v_lshlrev_b32 v70, 2, v0")
    a("v_lshrrev_b32 v71, 7, v0")
    a("v_lshl_add_u32 v70, v71, 30, v70")
    a("v_mov_b32 v71, 0")
    a("buffer_store_dword v71, v70, s[36:39], s16 offen")
    CPF = cfg.get("ln_cpf", 1)
    if CPF:
        a("s_getpc_b64 s[40:41]")
        a.label("LN_pc")
        a("s_mov_b32 s42, CODE_END - LN_pc")
        a("s_and_b32 s41, s41, 0xffff")
        a("s_mov_b32 s43, 0x00020000")
        a("s_lshr_b32 s16, s2, 3")
        a("s_lshl_b32 s16, s16, 12")
        a("v_lshlrev_b32 v70, 7, v0")
        a("v_lshrrev_b32 v71, 5, v0")
        a("v_lshl_add_u32 v70, v71, 24, v70")
        a("buffer_load_dword v76, v70, s[40:43], s16 offen")
    LPF = cfg.get("ln_pf", 2)
    if LPF:
        srd(a, 24, 20, D * 3 * D * 2)
        srd(a, 28, 22, D * DFF * 2)
        a("s_lshr_b32 s16, s2, 3")
        a("s_mul_i32 s16, s16, %d" % (4 * LPF))
        a("s_bfe_u32 s17, s2, 0x20001")
        a("s_lshl_b32 s18, s17, 9")
        a("s_mul_i32 s19, s17, 1792")
        a("v_lshrrev_b32 v70, 4, v1")
        a("v_cmp_le_u32 s[32:33], %d, v70" % LPF)
        a("v_mad_u32_u24 v70, v2, %d, v70" % LPF)
        a("v_add_u32 v70, s16, v70")
        a("v_and_b32 v71, 15, v1")
        a("v_cmp_le_u32 vcc, 12, v71")
        a("s_or_b64 s[34:35], vcc, s[32:33]")
        a("v_cmp_le_u32 vcc, 14, v71")
        a("s_or_b64 s[32:33], vcc, s[32:33]")
        a("v_mul_u32_u24 v72, 7168, v70")
        a("v_lshl_add_u32 v72, v71, 7, v72")
        a("v_mul_u32_u24 v70, 6144, v70")
        a("v_lshrrev_b32 v73, 2, v71")
        a("v_lshl_add_u32 v70, v73, 11, v70")
        a("v_and_b32 v73, 3, v71")
        a("v_lshl_add_u32 v70, v73, 7, v70")
        a("v_bfrev_b32 v73, 1")
        a("v_cndmask_b32 v70, v70, v73, s[34:35]")
        a("v_cndmask_b32 v72, v72, v73, s[32:33]")
        a("buffer_load_dword v74, v70, s[24:27], s18 offen")
        a("buffer_load_dword v75, v72, s[28:31], s19 offen")
    lmt = int(math.log2(MT))
    a("s_lshr_b32 s16, s2, 1")
    a("s_lshr_b32 s17, s16, %d" % lmt)
    a("s_lshl_b32 s17, s17, %d" % (15 + lmt))
    a("s_and_b32 s18, s16, %d" % (MT - 1))
    a("s_lshl_b32 s18, s18, 10")
    a("s_add_u32 s17, s17, s18")
    a("s_and_b32 s18, s2, 1")
    a("s_lshl_b32 s18, s18, 7")
    a("s_add_u32 s17, s17, s18")
    a("v_lshrrev_b32 v6, 2, v4")
    a("v_lshl_add_u32 v6, v2, 3, v6")
    a("v_lshlrev_b32 v6, %d, v6" % (10 + lmt))
    a("v_and_b32 v7, 3, v4")
    a("v_lshl_add_u32 v6, v7, 8, v6")
    a("v_lshl_add_u32 v6, v3, 4, v6")
    a("v_lshl_add_u32 v7, v2, 3, v3")
    a("v_lshlrev_b32 v7, 3, v7")
    a("v_lshlrev_b32 v60, 3, v3")
    a("s_waitcnt vmcnt(%d)" % (1 + (2 if LPF else 0) + (1 if CPF else 0)))
    for i in range(16):
        a("v_lshlrev_b32 v%d, 16, v%d" % (24 + 2 * i, 8 + i))
        a("v_and_b32 v%d, 0xffff0000, v%d" % (25 + 2 * i, 8 + i))
    a("v_add_f32 v56, v24, v25")
    a("v_add_f32 v57, v26, v27")
    for i in range(4, 32, 2):
        a("v_add_f32 v56, v56, v%d" % (24 + i))
        a("v_add_f32 v57, v57, v%d" % (25 + i))
    a("v_add_f32 v56, v56, v57")
    def xlane_sum(r, t):
        a("s_nop 1")
        a("v_add_f32_dpp v%d, v%d, v%d row_ror:8 row_mask:0xf bank_mask:0xf" % (r, r, r))
        a("v_mov_b32 v%d, v%d" % (t, r))
        a("s_nop 1")
        a("v_permlane16_swap_b32 v%d, v%d" % (r, t))
        a("s_nop 1")
        a("v_add_f32 v%d, v%d, v%d" % (r, r, t))
        a("v_mov_b32 v%d, v%d" % (t, r))
        a("s_nop 1")
        a("v_permlane32_swap_b32 v%d, v%d" % (r, t))
        a("s_nop 1")
        a("v_add_f32 v%d, v%d, v%d" % (r, r, t))
    xlane_sum(56, 57)
    a("v_mul_f32 v56, 0x%x, v56" % f2u(1.0 / 256))
    a("v_mov_b32 v57, 0")
    a("v_mov_b32 v58, 0")
    for i in range(0, 32, 2):
        a("v_sub_f32 v59, v%d, v56" % (24 + i))
        a("v_sub_f32 v61, v%d, v56" % (25 + i))
        a("v_fmac_f32 v57, v59, v59")
        a("v_fmac_f32 v58, v61, v61")
    a("v_add_f32 v57, v57, v58")
    xlane_sum(57, 58)
    a("ds_write_b64 v7, v[56:57]")
    a("s_waitcnt lgkmcnt(0)")
    a("s_barrier")
    a("ds_read_b64 v[62:63], v60")
    a("ds_read_b64 v[64:65], v60 offset:64")
    a("ds_read_b64 v[66:67], v60 offset:128")
    a("ds_read_b64 v[68:69], v60 offset:192")
    a("s_waitcnt lgkmcnt(0)")
    a("v_add_f32 v56, v62, v64")
    a("v_add_f32 v57, v66, v68")
    a("v_add_f32 v56, v56, v57")
    a("v_mul_f32 v56, 0.25, v56") if False else a("v_mul_f32 v56, 0x3e800000, v56")
    a("v_add_f32 v57, v63, v65")
    a("v_add_f32 v58, v67, v69")
    a("v_add_f32 v57, v57, v58")
    a("v_mov_b32 v58, 0")
    for r in (62, 64, 66, 68):
        a("v_sub_f32 v59, v%d, v56" % r)
        a("v_fmac_f32 v58, v59, v59")
    a("v_mov_b32 v59, 0x43800000")
    a("v_fmac_f32 v57, v58, v59")
    a("v_mul_f32 v57, 0x%x, v57" % f2u(1.0 / 1024))
    a("v_cvt_pk_bf16_f32 v58, v56, v57")
    a("v_lshlrev_b32 v56, 16, v58")
    a("v_and_b32 v57, 0xffff0000, v58")
    a("v_add_f32 v57, 0x%x, v57" % f2u(1e-5))
    a("v_cvt_pk_bf16_f32 v57, v57, v57")
    a("v_and_b32 v57, 0xffff0000, v57")
    a("v_sqrt_f32 v57, v57")
    a("s_nop 0")
    a("v_cvt_pk_bf16_f32 v57, v57, v57")
    a("v_and_b32 v57, 0xffff0000, v57")
    a("v_rcp_f32 v57, v57")
    for i in range(0, 32, 2):
        a("v_sub_f32 v%d, v%d, v56" % (24 + i, 24 + i))
        a("v_sub_f32 v%d, v%d, v56" % (25 + i, 25 + i))
        a("v_cvt_pk_bf16_f32 v58, v%d, v%d" % (24 + i, 25 + i))
        a("v_lshlrev_b32 v59, 16, v58")
        a("v_and_b32 v58, 0xffff0000, v58")
        a("v_mul_f32 v59, v59, v57")
        a("v_mul_f32 v58, v58, v57")
        a("v_cvt_pk_bf16_f32 v%d, v59, v58" % (8 + i // 2))
    for i in range(4):
        a("buffer_store_dwordx4 %s, v6, s[12:15], s17 offen" % r4("v", 8 + 4 * i))
        if i < 3: a("s_add_u32 s17, s17, %d" % (2 * MT * 1024))
    if cfg.get("stamp"):
        srd_off(a, 12, 6, 0, WS_END)
        a("v_readfirstlane_b32 s24, v2")
    stamp_out(a, cfg, 4, 60, 24, 12, 0x70000, 4)
    a.label("LN_end")
    a("s_endpgm")
    kernel_desc(a, name, 80, sgpr=80)
    return "; @launch kernel=%s grid=(256,1,1) block=(256,1,1) lds=256" % name

def gen_g1(a, cfg):
    name = "g1_kernel"
    NW, MT, NT = 4, 4, 13
    assert cfg["g1_mt"] == MT
    NS = cfg.get("g1_stages", 5)
    LA = cfg.get("g1_la", 6)
    RA = LA + 1
    DB = cfg.get("g1_db", 3)
    RB = DB + 2
    REG = 7168; STAGE = 4 * REG
    KS = 32
    ACC = 0
    def acc(mt, t): return ACC + (t * MT + mt) * 4
    V_L16 = 208; V_QKV = 209; V_W1 = 210; V_LEFT = 211
    V_RD = 212
    V_T = 224
    A_PD = 255
    AR = 0; BR = RA * 16
    assert BR + RB * 4 <= 256
    kernel_begin(a, name)
    a.reset()
    stamp(a, cfg, 0, 60)
    if cfg.get("stamp"): a("s_memrealtime s[70:71]")
    a("s_cmp_ge_u32 s2, 256")
    a("s_cbranch_scc1 G1_end")
    a("s_load_dwordx2 s[4:5], s[0:1], 8")
    a("s_load_dwordx2 s[6:7], s[0:1], 32")
    a("s_load_dwordx2 s[8:9], s[0:1], 64")
    a("s_load_dwordx2 s[52:53], s[0:1], 40")
    a("s_load_dwordx2 s[54:55], s[0:1], 16")
    T = V_T
    a("v_and_b32 v%d, 63, v0" % T)
    a("v_lshrrev_b32 v%d, 6, v0" % (T + 1))
    a("v_lshlrev_b32 v%d, 4, v%d" % (V_L16, T))
    a("v_readfirstlane_b32 s24, v%d" % (T + 1))
    a("s_and_b32 s25, s2, 1")
    a("s_lshl_b32 s25, s25, 2")
    a("s_bfe_u32 s26, s2, 0x20003")
    a("s_add_u32 s25, s25, s26")
    a("s_bfe_u32 s26, s2, 0x20001")
    a("s_lshl_b32 s26, s26, 3")
    a("s_lshr_b32 s27, s2, 5")
    a("s_add_u32 s26, s26, s27")
    a("s_and_b32 s27, s26, 1")
    a("v_lshrrev_b32 v%d, 2, v%d" % (T + 2, T))
    a("v_lshl_add_u32 v%d, v%d, 4, v%d" % (T + 2, T + 1, T + 2))
    a("v_lshrrev_b32 v%d, 4, v%d" % (T + 3, T))
    a("v_and_b32 v%d, 2, v%d" % (T + 3, T + 3))
    a("v_and_b32 v%d, 3, v%d" % (T + 4, T))
    a("v_xor_b32 v%d, v%d, v%d" % (T + 3, T + 3, T + 4))
    a("v_lshlrev_b32 v%d, 4, v%d" % (T + 3, T + 3))
    a("v_mul_u32_u24 v%d, 6144, v%d" % (V_QKV, T + 2))
    a("v_add_u32 v%d, v%d, v%d" % (V_QKV, V_QKV, T + 3))
    a("v_mul_u32_u24 v%d, 7168, v%d" % (V_W1, T + 2))
    a("v_add_u32 v%d, v%d, v%d" % (V_W1, V_W1, T + 3))
    a("v_bfe_u32 v%d, v%d, 3, 1" % (T + 2, T))
    a("v_lshlrev_b32 v%d, 3, v%d" % (T + 2, T + 2))
    a("v_bfe_u32 v%d, v%d, 4, 1" % (T + 3, T))
    a("v_lshl_add_u32 v%d, v%d, 2, v%d" % (T + 2, T + 3, T + 2))
    a("v_bfe_u32 v%d, v%d, 1, 2" % (T + 3, T))
    a("v_add_u32 v%d, v%d, v%d" % (T + 2, T + 2, T + 3))
    a("v_lshl_add_u32 v%d, v%d, 4, v%d" % (T + 2, T + 1, T + 2))
    a("v_mul_u32_u24 v%d, 7168, v%d" % (V_LEFT, T + 2))
    a("v_and_b32 v%d, 1, v%d" % (T + 3, T))
    a("v_lshl_add_u32 v%d, v%d, 4, v%d" % (V_LEFT, T + 3, V_LEFT))
    a("v_lshrrev_b32 v%d, 5, v%d" % (T + 3, T))
    a("v_lshl_add_u32 v%d, v%d, 30, v%d" % (V_LEFT, T + 3, V_LEFT))
    a("s_lshl_b32 s30, s26, 6")
    a("s_add_u32 s31, s30, 4096")
    a("s_mul_i32 s33, s26, 224")
    a("s_lshl_b32 s28, s27, 5")
    a("s_add_u32 s32, s33, s28")
    a("s_xor_b32 s28, s27, 1")
    a("s_mul_i32 s28, s28, 192")
    a("s_add_u32 s33, s33, s28")
    a("s_mul_i32 s34, s24, %d" % REG)
    a("s_lshl_b32 s35, s25, 2")
    a("s_add_u32 s35, s35, s24")
    a("s_lshl_b32 s35, s35, 17")
    a("s_waitcnt lgkmcnt(0)")
    srd(a, 12, 4, D * 3 * D * 2)
    srd(a, 16, 6, D * DFF * 2)
    srd_off(a, 20, 8, WS_XN, S * D * 2)
    PF = cfg.get("g1_pf", 1)
    ST0 = cfg.get("g1_pfst", 4)
    V_P0, V_P1, V_P2 = 221, 222, 223
    if PF:
        srd(a, 44, 52, DFF * D * 2)
        srd(a, 48, 54, D * D * 2)
        a("s_bfe_u32 s56, s2, 0x30003")
        a("s_lshr_b32 s57, s2, 6")
        a("s_lshl_b32 s57, s57, 3")
        a("s_and_b32 s58, s2, 7")
        a("s_add_u32 s57, s57, s58")
        a("s_lshl_b32 s57, s57, 2")
        a("s_add_u32 s57, s57, s24")
        a("v_lshlrev_b32 v%d, 7, v%d" % (T + 5, T))
        a("v_bfrev_b32 v%d, 1" % (T + 6))
        a("s_mul_i32 s58, s57, 3072")
        a("v_add_u32 v%d, s58, v%d" % (V_P0, T + 5))
        a("v_cmp_le_u32 vcc, 24, v%d" % T)
        a("s_mul_i32 s58, s57, 3584")
        a("v_add_u32 v%d, s58, v%d" % (V_P1, T + 5))
        a("v_cndmask_b32 v%d, v%d, v%d, vcc" % (V_P0, V_P0, T + 6))
        a("v_cmp_le_u32 vcc, 28, v%d" % T)
        a("s_lshl_b32 s58, s57, 13")
        a("v_add_u32 v%d, s58, v%d" % (V_P2, T + 5))
        a("v_cndmask_b32 v%d, v%d, v%d, vcc" % (V_P1, V_P1, T + 6))
    NSLOT1 = 16 - ST0
    def touch(n):
        lab = a.newlabel("G1_pf")
        a("s_cmp_lg_u32 s56, %d" % (n & 7))
        a("s_cbranch_scc1 %s" % lab)
        if n < NSLOT1:
            a("s_mov_b32 s58, %d" % ((ST0 + n) * 64 * 6144))
            a("s_mov_b32 s59, %d" % ((ST0 + n) * 64 * 7168))
            a("buffer_load_dword a%d, v%d, s[12:15], s58 offen" % (A_PD, V_P0))
            a("buffer_load_dword a%d, v%d, s[16:19], s59 offen" % (A_PD - 1, V_P1))
        else:
            m = n - NSLOT1
            a("s_mov_b32 s58, %d" % ((m if m < 7 else m - 7) << 20))
            a("buffer_load_dword a%d, v%d, s[%d:%d], s58 offen" % ((A_PD, V_P2) + ((44, 47) if m < 7 else (48, 51))))
        a.label(lab)

    def dma_ops(g):
        slot = g % NS
        ops = []
        def one(p, vreg, srdb, soff, imm):
            ops.append((["s_add_u32 m0, s34, %d" % (slot * STAGE + p * 1024 - imm + (1 << 32 if slot * STAGE + p * 1024 - imm < 0 else 0))],
                        "buffer_load_dwordx4 v%d, s[%d:%d], s%d offen offset:%d lds" % (vreg, srdb, srdb + 3, soff, imm)))
        one(0, V_QKV, 12, 30, 0)
        one(2, V_QKV, 12, 30, 2048)
        one(1, V_QKV, 12, 31, 0)
        one(3, V_W1, 16, 32, 0)
        one(4, V_W1, 16, 32, 64)
        one(5, V_W1, 16, 32, 128)
        one(6, V_LEFT, 16, 33, 0)
        post = ["s_add_u32 s30, s30, %d" % (64 * 6144), "s_add_u32 s31, s31, %d" % (64 * 6144),
                "s_add_u32 s32, s32, %d" % (64 * 7168), "s_add_u32 s33, s33, %d" % (64 * 7168)]
        return ops, post
    PAIRPOS = [0, 2, 1, 3, 4, 5]
    def a_load(s, mt):
        a.vmem("buffer_load_dwordx4 %s, v%d, s[20:23], s35 offen offset:%d" % (r4("a", AR + (s % RA) * 16 + mt * 4), V_L16, mt * 1024), ("A", s))
        if mt == MT - 1: a("s_add_u32 s35, s35, 4096")
    def emit_dma(g, k):
        ops, post = dma_ops(g)
        pre, txt = ops[k]
        for x in pre: a(x)
        a("s_nop 0")
        a.vmem(txt, ("B", g))
        if k == 6:
            for x in post: a(x)
    pend = []
    nA = 0
    for g in range(NS - 1):
        for k in range(7): pend.append(("B", g, k))
        for _ in range(2):
            if nA < LA:
                for mt in range(MT): pend.append(("A", nA, mt))
                nA += 1
    while nA < LA:
        for mt in range(MT): pend.append(("A", nA, mt))
        nA += 1
    PRO = cfg.get("g1_pro", 15)
    for _ in range(PRO):
        op = pend.pop(0)
        if op[0] == "A": a_load(op[1], op[2])
        else: emit_dma(op[1], op[2])
    a("v_lshrrev_b32 v%d, 5, v%d" % (T + 2, T))
    a("v_mul_u32_u24 v%d, %d, v%d" % (T + 2, REG, T + 2))
    a("v_and_b32 v%d, 3, v%d" % (T + 3, T))
    a("v_lshl_add_u32 v%d, v%d, 3, v%d" % (T + 2, T + 3, T + 2))
    a("v_bfe_u32 v%d, v%d, 2, 2" % (T + 3, T))
    a("v_bfe_u32 v%d, v%d, 4, 1" % (T + 4, T))
    a("v_lshl_add_u32 v%d, v%d, 6, v%d" % (V_RD, T + 3, T + 2))
    a("v_lshl_add_u32 v%d, v%d, 9, v%d" % (V_RD, T + 4, V_RD))
    a("v_lshl_add_u32 v%d, v%d, 5, v%d" % (V_RD, T + 4, V_RD))
    a("v_xor_b32 v%d, 32, v%d" % (V_RD + 1, V_RD))
    a("v_lshl_add_u32 v%d, v%d, 5, v%d" % (V_RD + 2, T + 3, T + 2))
    a("v_lshl_add_u32 v%d, v%d, 7, v%d" % (V_RD + 2, T + 4, V_RD + 2))
    for st in (1, 2):
        for x in range(3):
            a("v_add_u32 v%d, %d, v%d" % (V_RD + 3 * st + x, st * 2 * STAGE, V_RD + x))
    stamp(a, cfg, 1, 62)

    def b_read(u, j2):
        s, t = divmod(u, NT)
        g = s // 2; slot = g % NS
        st = slot // 2
        off = (slot % 2) * STAGE + (s % 2) * 2 * REG + j2 * 256
        if t < 12:
            off += PAIRPOS[t // 2] * 1024; vr = V_RD + 3 * st + (t % 2)
        else:
            off += 6144; vr = V_RD + 3 * st + 2
        a.lds("ds_read_b64_tr_b16 %s, v%d offset:%d" % (r2("a", BR + (u % RB) * 4 + j2 * 2), vr, off), ("b", u))
    def barrier_for(g):
        a.wait(vm=("B", g))
        a("s_barrier")
    NU = KS * NT
    barrier_for(0)
    stamp(a, cfg, 2, 64)
    for u in range(DB):
        b_read(u, 0); b_read(u, 1)
    for u in range(NU):
        s, t = divmod(u, NT)
        if t == 0 and s + LA < KS:
            for mt in range(MT): pend.append(("A", s + LA, mt))
        un = u + DB
        if un < NU and un % (2 * NT) == 0:
            g = un // (2 * NT)
            barrier_for(g)
            if g + NS - 2 < KS // 2:
                for k in range(7): pend.append(("B", g + NS - 2, k))
        if PF and t == 5 and s < NSLOT1 + 9: touch(s)
        a.wait(vm=("A", s) if t == 0 else None, lg=("b", u))
        bf = r4("a", BR + (u % RB) * 4)
        nxt = pend.pop(0) if (pend and (u % 2 == 0 or len(pend) > 6)) else None
        for mt in range(MT):
            mz = mt if t % 2 == 0 else MT - 1 - mt
            af = r4("a", AR + (s % RA) * 16 + mz * 4)
            c = r4("v", acc(mz, t))
            src = "0" if s == 0 else c
            if t in (4, 5): a("v_mfma_f32_16x16x32_bf16 %s, %s, %s, %s" % (c, af, bf, src))
            else:           a("v_mfma_f32_16x16x32_bf16 %s, %s, %s, %s" % (c, bf, af, src))
            if mt < 2 and un < NU: b_read(un, mt)
            if mt == 2 and nxt and nxt[0] == "B":
                ops, post = dma_ops(nxt[1])
                for x in ops[nxt[2]][0]: a(x)
            if mt == 3 and nxt:
                if nxt[0] == "A": a_load(nxt[1], nxt[2])
                else:
                    ops, post = dma_ops(nxt[1])
                    a.vmem(ops[nxt[2]][1], ("B", nxt[1]))
                    if nxt[2] == 6:
                        for x in post: a(x)
    assert not pend
    stamp(a, cfg, 3, 66)
    srd_off(a, 12, 8, 0, WS_END)
    a("s_lshl_b32 s36, s26, 7")
    a("s_lshl_b32 s37, s25, 4")
    a("s_add_u32 s36, s36, s37")
    a("s_lshl_b32 s37, s24, 2")
    a("s_add_u32 s36, s36, s37")
    a("s_lshl_b32 s36, s36, 10")
    a("s_add_u32 s37, s36, 0x%x" % WS_K)
    a("s_add_u32 s38, s36, 0x%x" % WS_V)
    a("s_add_u32 s36, s36, 0x%x" % WS_Q)
    a("s_lshl_b32 s39, s25, 2")
    a("s_add_u32 s39, s39, s24")
    a("s_mul_i32 s39, s39, %d" % (144 * 4096))
    a("s_add_u32 s39, s39, 0x%x" % WS_A2)
    a("s_mul_i32 s40, s26, 7")
    a("s_add_u32 s41, s40, s27")
    a("s_lshl_b32 s41, s41, 11")
    a("s_add_u32 s41, s41, s39")
    a("s_lshr_b32 s40, s26, 3")
    a("s_lshl_b32 s40, s40, 15")
    a("s_add_u32 s41, s41, s40")
    a("s_add_u32 s42, s41, 4096")
    a("s_add_u32 s43, s41, 8192")
    a("s_mul_i32 s44, s27, %d" % (-4096 + 8 - 3 * 4096))
    a("s_add_u32 s44, s44, %d" % (3 * 4096))
    a("s_add_u32 s44, s44, s41")
    a("s_mov_b32 s47, 0x%x" % f2u(QSCALE))
    a("s_nop 7")
    tmp = [V_T + 4 * i for i in range(8)]
    ti = [0]
    def pack_store(src0, src1, soff, imm, relu=False, scale=False):
        tr = tmp[ti[0] % 8]; ti[0] += 1
        for hh, sr in enumerate((src0, src1)):
            if sr is None: continue
            if scale:
                for e in range(4): a("v_mul_f32 v%d, s47, v%d" % (sr + e, sr + e))
            a("v_cvt_pk_bf16_f32 v%d, v%d, v%d" % (tr + 2 * hh, sr, sr + 1))
            a("v_cvt_pk_bf16_f32 v%d, v%d, v%d" % (tr + 2 * hh + 1, sr + 2, sr + 3))
            if relu:
                a("v_pk_max_i16 v%d, v%d, 0" % (tr + 2 * hh, tr + 2 * hh))
                a("v_pk_max_i16 v%d, v%d, 0" % (tr + 2 * hh + 1, tr + 2 * hh + 1))
        if src1 is None:
            a.vmem("buffer_store_dwordx2 %s, v%d, s[12:15], s%d offen offset:%d" % (r2("v", tr), V_L16, soff, imm))
        else:
            a.vmem("buffer_store_dwordx4 %s, v%d, s[12:15], s%d offen offset:%d" % (r4("v", tr), V_L16, soff, imm))
    for mt in range(MT): pack_store(acc(mt, 0), acc(mt, 1), 36, mt * 1024, scale=True)
    for mt in range(MT): pack_store(acc(mt, 2), acc(mt, 3), 37, mt * 1024)
    for b in range(2):
        for dt in range(2): pack_store(acc(2 * b, 4 + dt), acc(2 * b + 1, 4 + dt), 38, (b * 2 + dt) * 1024)
    for p in range(3):
        for mt in range(MT):
            pack_store(acc(mt, 6 + 2 * p), acc(mt, 7 + 2 * p), 41 + p, mt * 1024, relu=True)
    for mt in range(MT):
        pack_store(acc(mt, 12), None, 44, mt * 1024, relu=True)
    if cfg.get("stamp"):
        a("s_waitcnt vmcnt(0)")
        a("s_memtime s[68:69]")
        a("s_memrealtime s[72:73]")
        a("s_waitcnt lgkmcnt(0)")
        for i in range(4): a("s_sub_u32 s%d, s%d, s60" % (62 + 2 * i, 62 + 2 * i))
        for i in range(4): a("v_mov_b32 v%d, s%d" % (i, 62 + 2 * i))
        a("v_mov_b32 v4, s70")
        a("v_mov_b32 v5, s72")
        a("s_lshl_b32 s50, s2, 2")
        a("s_add_u32 s50, s50, s24")
        a("s_lshl_b32 s50, s50, 5")
        a("v_mov_b32 v8, 0")
        a("s_nop 4")
        a("buffer_store_dwordx4 v[0:3], v8, s[12:15], s50 offen")
        a("buffer_store_dwordx4 v[4:7], v8, s[12:15], s50 offen offset:16")
    a.label("G1_end")
    a("s_endpgm")
    kernel_desc(a, name, 256, sgpr=80, accum=256, agpr=256)
    return "; @launch kernel=%s grid=(256,1,1) block=(256,1,1) lds=%d" % (name, NS * STAGE)


def stamp_out(a, cfg, nst, s0, swave, srdb, wsoff, nw):
    if not cfg.get("stamp"): return
    a("s_waitcnt vmcnt(0)")
    a("s_memtime s[68:69]")
    a("s_memrealtime s[72:73]")
    a("s_waitcnt lgkmcnt(0)")
    for i in range(4): a("s_sub_u32 s%d, s%d, s60" % (62 + 2 * i, 62 + 2 * i))
    for i in range(4): a("v_mov_b32 v%d, s%d" % (i, 62 + 2 * i))
    a("v_mov_b32 v4, s70")
    a("v_mov_b32 v5, s72")
    a("s_mul_i32 s50, s2, %d" % nw)
    a("s_add_u32 s50, s50, s%d" % swave)
    a("s_lshl_b32 s50, s50, 5")
    a("s_add_u32 s50, s50, 0x%x" % wsoff)
    a("v_mov_b32 v8, 0")
    a("s_nop 4")
    a("buffer_store_dwordx4 v[0:3], v8, s[%d:%d], s50 offen" % (srdb, srdb + 3))
    a("buffer_store_dwordx4 v[4:7], v8, s[%d:%d], s50 offen offset:16" % (srdb, srdb + 3))

def gen_at(a, cfg):
    name = "at_kernel"
    kernel_begin(a, name)
    a.reset()
    stamp(a, cfg, 0, 60)
    if cfg.get("stamp"): a("s_memrealtime s[70:71]")
    a("s_cmp_ge_u32 s2, 256")
    a("s_cbranch_scc1 AT_end")
    a("s_load_dwordx2 s[8:9], s[0:1], 64")
    def sreg(qa, kt): return (qa * 18 + kt) * 4
    VQ = 144; VO = 152; VS = 168; VONE = 176
    V_L16 = 180; T = 181; VM = 182; VNEG = 183
    a("v_and_b32 v%d, 63, v0" % T)
    a("v_lshrrev_b32 v%d, 6, v0" % VM)
    a("v_lshlrev_b32 v%d, 4, v%d" % (V_L16, T))
    a("v_readfirstlane_b32 s24, v%d" % VM)
    a("s_and_b32 s25, s2, 1")
    a("s_lshl_b32 s25, s25, 2")
    a("s_bfe_u32 s26, s2, 0x20003")
    a("s_add_u32 s25, s25, s26")
    a("s_bfe_u32 s26, s2, 0x20001")
    a("s_lshl_b32 s26, s26, 3")
    a("s_lshr_b32 s27, s2, 5")
    a("s_add_u32 s26, s26, s27")
    a("s_lshl_b32 s27, s26, 17")
    a("s_lshl_b32 s28, s25, 14")
    a("s_lshl_b32 s29, s24, 12")
    a("s_add_u32 s28, s28, s29")
    a("s_sub_u32 s28, s28, 16384")
    a("v_add_u32 v%d, s28, v%d" % (VM, V_L16))
    a("s_lshl_b32 s30, s25, 14")
    a("s_lshl_b32 s31, s24, 11")
    a("s_add_u32 s30, s30, s31")
    a("s_waitcnt lgkmcnt(0)")
    a("s_add_u32 s4, s8, s27")
    a("s_addc_u32 s5, s9, 0")
    srd_off(a, 12, 4, WS_K, 131072)
    srd_off(a, 16, 4, WS_V, 131072)
    srd_off(a, 20, 4, WS_Q, 131072)
    a("s_mov_b32 m0, s29")
    a("s_nop 0")
    for i in range(4): a("buffer_load_dwordx4 v%d, s[12:15], 0 offen offset:%d lds" % (VM, i * 1024))
    for qa in range(2): a("buffer_load_dwordx4 %s, v%d, s[20:23], s30 offen offset:%d" % (r4("v", VQ + 4 * qa), V_L16, qa * 1024))
    a("s_add_u32 m0, s29, 32768")
    a("s_nop 0")
    for i in range(4): a("buffer_load_dwordx4 v%d, s[16:19], 0 offen offset:%d lds" % (VM, i * 1024))
    a("v_lshrrev_b32 v0, 4, v%d" % T)
    a("v_lshlrev_b32 v0, 2, v0")
    a("v_and_b32 v1, 15, v%d" % T)
    for e in range(4):
        a("v_add_u32 v2, %d, v0" % e)
        a("v_cmp_le_u32 s[%d:%d], v2, v1" % (40 + 2 * e, 41 + 2 * e))
    a("v_mov_b32 v%d, 0x%x" % (VNEG, f2u(-1e30)))
    for e in range(4): a("v_mov_b32 v%d, 0x3f803f80" % (VONE + e))
    a("v_add_u32 v%d, s31, v%d" % (T, V_L16))
    a("s_sub_u32 s32, 8, s24")
    a("s_cmp_eq_u32 s25, 0")
    a("s_cselect_b32 s32, s32, 0")
    a("s_cbranch_scc0 AT_nofill")
    for r in range(144): a("v_mov_b32 v%d, v%d" % (r, VNEG))
    a.label("AT_nofill")
    a("s_lshl_b32 s33, s25, 2")
    a("s_lshr_b32 s34, s24, 1")
    a("s_add_u32 s33, s33, s34")
    a("s_mul_i32 s33, s33, 144")
    a("s_lshr_b32 s34, s26, 3")
    a("s_mul_i32 s34, s34, 28")
    a("s_add_u32 s33, s33, s34")
    a("s_add_u32 s33, s33, s26")
    a("s_add_u32 s33, s33, 28")
    a("s_lshl_b32 s33, s33, 12")
    a("s_and_b32 s34, s24, 1")
    a("s_lshl_b32 s34, s34, 11")
    a("s_add_u32 s33, s33, s34")
    a("s_add_u32 s33, s33, 0x%x" % WS_A2)
    a("s_waitcnt vmcnt(4)")
    a("s_barrier")
    stamp(a, cfg, 1, 62)
    for kt in range(18): a("ds_read_b128 %s, v%d offset:%d" % (r4("a", 4 * kt), T, kt * 1024))
    srd_off(a, 12, 8, 0, WS_END)
    a("s_waitcnt lgkmcnt(0)")
    for b in range(9):
        if b < 8:
            a("s_cmp_gt_u32 s32, %d" % b)
            a("s_cbranch_scc1 AT_skip%d" % b)
        for kt in (2 * b, 2 * b + 1):
            for qa in range(2):
                if (qa, kt) in ((0, 17), (1, 0)): continue
                a("v_mfma_f32_16x16x32_bf16 %s, %s, %s, 0" % (r4("v", sreg(qa, kt)), r4("a", 4 * kt), r4("v", VQ + 4 * qa)))
        if b < 8: a.label("AT_skip%d" % b)
    a("s_waitcnt vmcnt(0)")
    a("s_barrier")
    for f in range(18): a("ds_read_b128 %s, v%d offset:%d" % (r4("a", 4 * f), T, 32768 + f * 1024))
    stamp(a, cfg, 2, 64)
    for qa in range(2):
        k0 = qa; k1 = 16 + qa
        for e in range(4):
            a("v_cndmask_b32 v%d, v%d, v%d, s[%d:%d]" % (sreg(qa, k0) + e, sreg(qa, k0) + e, VNEG, 40 + 2 * e, 41 + 2 * e))
            a("v_cndmask_b32 v%d, v%d, v%d, s[%d:%d]" % (sreg(qa, k1) + e, VNEG, sreg(qa, k1) + e, 40 + 2 * e, 41 + 2 * e))
        regs = [sreg(qa, kt) + e for kt in range(k0, k1 + 1) for e in range(4)]
        m0, m1 = VO, VO + 1
        a("v_max_f32 v%d, v%d, v%d" % (m0, regs[0], regs[1]))
        a("v_max_f32 v%d, v%d, v%d" % (m1, regs[2], regs[3]))
        for x in range(4, 68, 4):
            a("v_max3_f32 v%d, v%d, v%d, v%d" % (m0, m0, regs[x], regs[x + 1]))
            a("v_max3_f32 v%d, v%d, v%d, v%d" % (m1, m1, regs[x + 2], regs[x + 3]))
        a("v_max_f32 v%d, v%d, v%d" % (m0, m0, m1))
        for op in ("v_permlane16_swap_b32", "v_permlane32_swap_b32"):
            a("v_mov_b32 v%d, v%d" % (m1, m0))
            a("s_nop 1")
            a("%s v%d, v%d" % (op, m0, m1))
            a("s_nop 1")
            a("v_max_f32 v%d, v%d, v%d" % (m0, m0, m1))
        for x in regs: a("v_sub_f32 v%d, v%d, v%d" % (x, x, m0))
        for x in regs: a("v_exp_f32 v%d, v%d" % (x, x))
        a("s_nop 0")
        for b in range(9):
            d = sreg(qa, 2 * b)
            for hh in range(2):
                kt = 2 * b + hh
                if (qa, kt) in ((0, 17), (1, 0)):
                    a("v_mov_b32 v%d, 0" % (d + 2 * hh)); a("v_mov_b32 v%d, 0" % (d + 2 * hh + 1))
                else:
                    sr = sreg(qa, kt)
                    a("v_cvt_pk_bf16_f32 v%d, v%d, v%d" % (d + 2 * hh, sr, sr + 1))
                    a("v_cvt_pk_bf16_f32 v%d, v%d, v%d" % (d + 2 * hh + 1, sr + 2, sr + 3))
    a("s_waitcnt lgkmcnt(0)")
    a("s_nop 1")
    for b in range(9):
        for qa in range(2):
            p = r4("v", sreg(qa, 2 * b))
            for dt in range(2):
                o = r4("v", VO + (qa * 2 + dt) * 4)
                a("v_mfma_f32_16x16x32_bf16 %s, %s, %s, %s" % (o, r4("a", (2 * b + dt) * 4), p, "0" if b == 0 else o))
            o = r4("v", VS + qa * 4)
            a("v_mfma_f32_16x16x32_bf16 %s, %s, %s, %s" % (o, r4("v", VONE), p, "0" if b == 0 else o))
    a("s_nop 7")
    stamp(a, cfg, 3, 66)
    for qa in range(2):
        a("v_rcp_f32 v%d, v%d" % (VS + qa * 4, VS + qa * 4))
    a("s_nop 0")
    for qa in range(2):
        for x in range(8): a("v_mul_f32 v%d, v%d, v%d" % (VO + qa * 8 + x, VO + qa * 8 + x, VS + qa * 4))
        for x in range(4): a("v_cvt_pk_bf16_f32 v%d, v%d, v%d" % (qa * 4 + x, VO + qa * 8 + 2 * x, VO + qa * 8 + 2 * x + 1))
        a("buffer_store_dwordx4 %s, v%d, s[12:15], s33 offen offset:%d" % (r4("v", qa * 4), V_L16, qa * 1024))
    stamp_out(a, cfg, 4, 60, 24, 12, 0x10000, 8)
    a.label("AT_end")
    a("s_endpgm")
    kernel_desc(a, name, 184, sgpr=80, accum=184, agpr=72)
    return "; @launch kernel=%s grid=(256,1,1) block=(512,1,1) lds=65536" % name

def gen_g2(a, cfg):
    name = "g2_kernel"
    MT, NT = 4, 8
    KS = 36; NG = 18
    DL = cfg.get("g2_dl", 6)
    NS = cfg.get("g2_stages", 7)
    RA = cfg.get("g2_ra", 10)
    DB = cfg.get("g2_db", 3); RB = DB + 2
    STAGE = 16384
    S1 = KS - DL
    def acc(mt, t): return (t * MT + mt) * 4
    VX = 128
    VP = 144
    V_L16 = 192; V_DMA = 193; V_XO = 195; V_FL = 196; V_ONE = 197
    V_RD = 200
    VPK = 216
    T = 232
    AR = 0; BR = RA * 16
    assert BR + RB * 4 <= 256 and NS <= 8
    kernel_begin(a, name)
    a.reset()
    stamp(a, cfg, 0, 60)
    if cfg.get("stamp"): a("s_memrealtime s[70:71]")
    a("s_cmp_ge_u32 s2, 256")
    a("s_cbranch_scc1 G2_end")
    a("s_load_dwordx2 s[4:5], s[0:1], 40")
    a("s_load_dwordx2 s[6:7], s[0:1], 16")
    a("s_load_dwordx2 s[8:9], s[0:1], 64")
    a("s_load_dwordx2 s[10:11], s[0:1], 0")
    a("s_load_dwordx2 s[36:37], s[0:1], 48")
    a("v_and_b32 v%d, 63, v0" % T)
    a("v_lshrrev_b32 v%d, 6, v0" % (T + 1))
    a("v_lshlrev_b32 v%d, 4, v%d" % (V_L16, T))
    a("v_readfirstlane_b32 s24, v%d" % (T + 1))
    a("s_and_b32 s25, s2, 1")
    a("s_lshl_b32 s25, s25, 2")
    a("s_bfe_u32 s26, s2, 0x20003")
    a("s_add_u32 s25, s25, s26")
    a("s_bfe_u32 s26, s2, 0x20001")
    a("s_lshr_b32 s27, s2, 5")
    a("v_lshrrev_b32 v%d, 4, v%d" % (T + 2, T))
    a("v_lshlrev_b32 v%d, 11, v%d" % (V_DMA, T + 2))
    a("v_lshlrev_b32 v%d, 1, v%d" % (T + 2, T + 2))
    a("v_and_b32 v%d, 15, v%d" % (T + 3, T))
    a("v_xor_b32 v%d, v%d, v%d" % (T + 2, T + 2, T + 3))
    a("v_lshl_add_u32 v%d, v%d, 4, v%d" % (V_DMA, T + 2, V_DMA))
    a("v_xor_b32 v%d, 128, v%d" % (V_DMA + 1, V_DMA))
    a("s_lshl_b32 s31, s24, 15")
    a("s_lshl_b32 s32, s27, 8")
    a("s_add_u32 s31, s31, s32")
    a("s_mul_i32 s30, s26, %d" % (896 * 2048))
    a("s_add_u32 s30, s30, s31")
    a("s_lshl_b32 s38, s26, 19")
    a("s_add_u32 s38, s38, s31")
    a("s_lshl_b32 s34, s24, 12")
    a("s_lshl_b32 s33, s25, 2")
    a("s_add_u32 s33, s33, s24")
    a("s_mul_i32 s35, s33, 144")
    a("s_mul_i32 s39, s26, 36")
    a("s_add_u32 s35, s35, s39")
    a("s_lshl_b32 s35, s35, 12")
    a("s_lshl_b32 s39, s33, 17")
    a("s_add_u32 s39, s39, s32")
    a("s_lshl_b32 s33, s26, 6")
    a("s_add_u32 s39, s39, s33")
    a("s_waitcnt lgkmcnt(0)")
    srd(a, 12, 4, DFF * D * 2)
    srd(a, 16, 6, D * D * 2)
    srd_off(a, 20, 8, WS_A2, A2_BYTES)
    def a_load(s, mt):
        FK = cfg.get("g2_fake", 0)
        if FK & 4 and s >= RA:
            a.vmem("s_nop 0", ("A", s)); return
        a.vmem("buffer_load_dwordx4 %s, v%d, s[20:23], s35 offen offset:%d%s" % (r4("a", AR + (s % RA) * 16 + mt * 4), V_L16, mt * 1024, " sc1" if FK & 1 else ""), ("A", s))
        if mt == MT - 1: a("s_add_u32 s35, s35, %d" % (0 if FK & 1 and s >= 3 else 4096))
    def dma_pre(g, k): a("s_add_u32 m0, s34, %d" % ((g % NS) * STAGE + k * 1024))
    def dma(g, k):
        FK = cfg.get("g2_fake", 0)
        if FK & 8 and g >= NS:
            a.vmem("s_nop 0", ("B", g)); return
        sb = 12 if g < 14 else 16
        a.vmem("buffer_load_dwordx4 v%d, s[%d:%d], s30 offen%s lds" % (V_DMA + (k & 1), sb, sb + 3, " sc1" if FK & 2 else ""), ("B", g))
        if k == 3 and g == 13: a("s_mov_b32 s30, s38")
        elif FK & 2 and k == 3: a("s_add_u32 s30, s30, %d" % (-3 * 8192))
        else: a("s_add_u32 s30, s30, %d" % (8192 if k < 3 else 8192 + 48 * 2048))
    order = []
    for g in range(NG):
        for k in range(4): order.append(("B", g, k))
        for s in (2 * g, 2 * g + 1):
            for mt in range(MT): order.append(("A", s, mt))
    st = dict(bar=-1, step=-1)
    def can(op):
        if op[0] == "B": return op[1] < NS - 1 or op[1] - NS + 2 <= st["bar"]
        return op[1] - RA <= st["step"]
    PRO = cfg.get("g2_pro", 12)
    for _ in range(PRO):
        op = order.pop(0)
        if op[0] == "A": a_load(op[1], op[2])
        else:
            dma_pre(op[1], op[2]); a("s_nop 0"); dma(op[1], op[2])
    srd(a, 40, 10, S * D * 2)
    srd(a, 44, 36, S * D * 2)
    srd_off(a, 48, 8, WS_XC, XC_BYTES + FL_BYTES)
    a("v_and_b32 v%d, 15, v%d" % (T + 2, T))
    a("v_lshlrev_b32 v%d, 11, v%d" % (V_XO, T + 2))
    a("v_bfe_u32 v%d, v%d, 4, 1" % (T + 2, T))
    a("v_lshl_add_u32 v%d, v%d, 5, v%d" % (V_XO, T + 2, V_XO))
    a("v_lshrrev_b32 v%d, 5, v%d" % (T + 2, T))
    a("v_lshl_add_u32 v%d, v%d, 4, v%d" % (V_XO, T + 2, V_XO))
    a("v_lshrrev_b32 v%d, 2, v%d" % (T + 2, T))
    a("v_and_b32 v%d, 7, v%d" % (T + 4, T + 2))
    a("v_lshlrev_b32 v%d, 8, v%d" % (T + 2, T + 2))
    a("v_and_b32 v%d, 3, v%d" % (T + 3, T))
    a("v_lshl_add_u32 v%d, v%d, 3, v%d" % (T + 2, T + 3, T + 2))
    a("v_lshl_add_u32 v%d, v%d, 5, v%d" % (V_RD, T + 4, T + 2))
    a("s_xor_b32 s33, s33, 192")
    a("v_xor_b32 v%d, s33, v%d" % (V_RD, V_RD))
    for t in range(1, 8): a("v_xor_b32 v%d, %d, v%d" % (V_RD + t, t * 32, V_RD))
    for t in range(8): a("v_add_u32 v%d, 0x10000, v%d" % (V_RD + 8 + t, V_RD + t))
    for lam in range(3):
        a("s_xor_b32 s52, s2, %d" % ((lam ^ 3) << 1))
        a("s_lshl_b32 s52, s52, 2")
        a("s_add_u32 s52, s52, s24")
        a("s_mul_i32 s%d, s52, 12288" % (53 + lam))
        if lam: a("s_add_u32 s%d, s%d, %d" % (53 + lam, 53 + lam, lam * 4096))
        a("s_lshl_b32 s%d, s52, 7" % (56 + lam))
        a("s_add_u32 s%d, s%d, %d" % (56 + lam, 56 + lam, XC_BYTES + lam * 4))
    a("s_lshl_b32 s52, s2, 2")
    a("s_add_u32 s52, s52, s24")
    a("s_lshl_b32 s59, s52, 7")
    a("s_add_u32 s59, s59, %d" % XC_BYTES)
    a("s_mul_i32 s52, s52, 12288")
    a("v_cmp_ne_u32 vcc, 0, v%d" % T)
    a("v_bfrev_b32 v%d, 1" % (T + 2))
    a("v_mov_b32 v%d, 1" % V_ONE)
    a("v_cndmask_b32 v%d, 0, v%d, vcc" % (V_FL, T + 2))
    PF = cfg.get("g2_pf", 0)
    V_P = 198
    if PF:
        a("s_bfe_u32 s74, s2, 0x30003")
        a("s_lshr_b32 s75, s2, 6")
        a("s_lshl_b32 s75, s75, 2")
        a("s_add_u32 s75, s75, s24")
        a("s_and_b32 s76, s2, 1")
        a("s_lshl_b32 s76, s76, 4")
        a("s_add_u32 s76, s76, s75")
        a("s_mul_i32 s76, s76, 144")
        a("s_mul_i32 s77, s26, 36")
        a("s_add_u32 s76, s76, s77")
        a("s_lshl_b32 s76, s76, 12")
        a("s_lshl_b32 s75, s75, 12")
        a("s_mul_i32 s77, s26, %d" % (896 * 2048))
        a("s_add_u32 s77, s77, s75")
        a("s_lshl_b32 s78, s26, 19")
        a("s_add_u32 s78, s78, s75")
        a("v_lshlrev_b32 v%d, 7, v%d" % (V_P, T))
        a("v_lshrrev_b32 v%d, 5, v%d" % (T + 2, T))
        a("v_lshl_add_u32 v%d, v%d, 30, v%d" % (V_P, T + 2, V_P))
    def touch(cls, s):
        lab = a.newlabel("G2_pf")
        a("s_cmp_lg_u32 s74, %d" % cls)
        a("s_cbranch_scc1 %s" % lab)
        a("s_add_u32 s79, s76, %d" % (s * 4096))
        a("buffer_load_dword v%d, v%d, s[20:23], s79 offen" % (V_P + 1, V_P))
        if s < 28:
            a("s_add_u32 s79, s77, %d" % (s * 65536))
            a("buffer_load_dword v%d, v%d, s[12:15], s79 offen" % (V_P + 1, V_P))
        else:
            a("s_add_u32 s79, s78, %d" % ((s - 28) * 65536))
            a("buffer_load_dword v%d, v%d, s[16:19], s79 offen" % (V_P + 1, V_P))
        a.label(lab)
    pfq = list(range(cfg.get("g2_pf0", 2), KS))
    pfn = [0]
    PFU = cfg.get("g2_pfu", 6)
    if PF:
        for _ in range(PF):
            touch(pfn[0] & 7, pfq.pop(0)); pfn[0] += 1
    stamp(a, cfg, 1, 62)
    units = [(s, t) for s in range(S1) for t in range(NT)]
    for lam in range(4):
        units += [(s, t) for s in range(S1, KS) for t in (2 * lam, 2 * lam + 1)]
    NU = len(units)
    def b_read(u, j2):
        s, t = units[u]
        slot = (s // 2) % NS
        off = (slot % 4) * STAGE + (s % 2) * 8192 + j2 * 4096
        a.lds("ds_read_b64_tr_b16 %s, v%d offset:%d" % (r2("a", BR + (u % RB) * 4 + j2 * 2), V_RD + 8 * (slot // 4) + t, off), ("b", u))
    def flush_until(tag):
        while any(o[:2] == tag for o in order):
            op = order.pop(0)
            assert can(op), (op, st)
            if op[0] == "A": a_load(op[1], op[2])
            else:
                dma_pre(op[1], op[2]); a("s_nop 0"); dma(op[1], op[2])
    def need_stage(u):
        g = units[u][0] // 2
        if g > st["bar"]:
            flush_until(("B", g))
            a.wait(vm=("B", g)); a("s_barrier"); st["bar"] = g
    need_stage(0)
    stamp(a, cfg, 2, 64)
    for u in range(DB):
        b_read(u, 0); b_read(u, 1)
    side = []
    seenA = set()
    xload_done = False
    for u in range(NU):
        s, t = units[u]
        un = u + DB
        if un < NU: need_stage(un)
        if s not in seenA:
            flush_until(("A", s)); seenA.add(s)
            a.wait(vm=("A", s), lg=("b", u))
        else:
            a.wait(lg=("b", u))
        if PF and pfq and u % PFU == PFU - 1:
            touch(pfn[0] & 7, pfq.pop(0)); pfn[0] += 1
        bf = r4("a", BR + (u % RB) * 4)
        LAU = cfg.get("g2_lau", 100)
        def soon(op):
            stp = op[1] * 2 if op[0] == "B" else op[1]
            return stp <= u / PFU + LAU
        nxt = order.pop(0) if (order and can(order[0]) and soon(order[0])) else None
        if not order and not xload_done and nxt is None:
            xload_done = True
            for mt in range(MT):
                def f(mt=mt):
                    a.vmem("buffer_load_dwordx4 %s, v%d, s[40:43], s39 offen" % (r4("v", VX + 4 * mt), V_XO), "X")
                    a("s_add_u32 s39, s39, %d" % (32768 if mt < 3 else -3 * 32768))
                side.append(f)
        for mt in range(MT):
            mz = mt if u % 2 == 0 else MT - 1 - mt
            af = r4("a", AR + (s % RA) * 16 + mz * 4)
            c = r4("v", acc(mz, t))
            a("v_mfma_f32_16x16x32_bf16 %s, %s, %s, %s" % (c, bf, af, "0" if s == 0 else c))
            if mt < 2 and un < NU: b_read(un, mt)
            if mt == 2 and nxt and nxt[0] == "B": dma_pre(nxt[1], nxt[2])
            if mt == 3 and nxt:
                if nxt[0] == "A": a_load(nxt[1], nxt[2])
                else: dma(nxt[1], nxt[2])
            k = 1 if mt < 2 else 2
            for _ in range(k):
                if side:
                    f = side.pop(0)
                    if f: f()
        if u < S1 * NT and t == NT - 1: st["step"] = s
        if u >= S1 * NT and (u - S1 * NT) % (2 * DL) == 2 * DL - 1:
            lam = (u - S1 * NT) // (2 * DL)
            if lam < 3:
                side += [None] * 6
                for mt in range(MT):
                    for hh in range(2):
                        for e2 in range(2):
                            def f(mt=mt, hh=hh, e2=e2, lam=lam):
                                c = acc(mt, 2 * lam + hh) + 2 * e2
                                a("v_cvt_pk_bf16_f32 v%d, v%d, v%d" % (VPK + 4 * mt + 2 * hh + e2, c, c + 1))
                            side.append(f)
                    def f(mt=mt, lam=lam):
                        a.vmem("buffer_store_dwordx4 %s, v%d, s[48:51], s%d offen offset:%d sc1" % (r4("v", VPK + 4 * mt), V_L16, 53 + lam, mt * 1024), ("S", lam))
                    side.append(f)
    for f in side:
        if f: f()
    assert not order and xload_done
    stamp(a, cfg, 3, 66)
    for lam in range(3):
        a.wait(vm=("S", lam))
        a.vmem("buffer_store_dword v%d, v%d, s[48:51], s%d offen sc1" % (V_ONE, V_FL, 56 + lam), ("F", lam))
    a("v_mov_b32 v%d, 0" % (T + 1))
    a("s_mov_b32 s54, 0x40000")
    a.label("G2_poll")
    a("s_sub_u32 s54, s54, 1")
    a("s_cbranch_scc1 G2_go")
    a("buffer_load_dwordx3 v[%d:%d], v%d, s[48:51], s59 offen sc1" % (T + 4, T + 6, T + 1))
    a("s_waitcnt vmcnt(0)")
    a("v_and_b32 v%d, v%d, v%d" % (T + 4, T + 4, T + 5))
    a("v_and_b32 v%d, v%d, v%d" % (T + 4, T + 4, T + 6))
    a("s_nop 0")
    a("v_readfirstlane_b32 s53, v%d" % (T + 4))
    a("s_cmp_eq_u32 s53, 1")
    a("s_cbranch_scc0 G2_poll")
    a.label("G2_go")
    a.reset()
    if cfg.get("stamp"): a("s_memtime s[62:63]")
    for lam in range(3):
        for mt in range(MT):
            a.vmem("buffer_load_dwordx4 %s, v%d, s[48:51], s52 offen offset:%d sc1" % (r4("v", VP + 16 * lam + 4 * mt), V_L16, mt * 1024), ("R", lam, mt))
        if lam < 2: a("s_add_u32 s52, s52, 4096")
    for lam in range(3):
        for mt in range(MT):
            a.wait(vm=("R", lam, mt))
            for hh in range(2):
                for e2 in range(2):
                    p = VP + 16 * lam + 4 * mt + 2 * hh + e2
                    c = acc(mt, 6 + hh) + 2 * e2
                    a("v_lshlrev_b32 v%d, 16, v%d" % (T, p))
                    a("v_and_b32 v%d, 0xffff0000, v%d" % (T + 1, p))
                    a("v_add_f32 v%d, v%d, v%d" % (c, c, T))
                    a("v_add_f32 v%d, v%d, v%d" % (c + 1, c + 1, T + 1))
            if lam == 2:
                c0, c1 = acc(mt, 6), acc(mt, 7)
                a("s_nop 1")
                for e in range(4): a("v_permlane16_swap_b32 v%d, v%d" % (c0 + e, c1 + e))
                a("s_nop 1")
                xr = VX + 4 * mt
                for hh, c in enumerate((c0, c1)):
                    for e2 in range(2):
                        xx = xr + 2 * hh + e2
                        a("v_lshlrev_b32 v%d, 16, v%d" % (T, xx))
                        a("v_and_b32 v%d, 0xffff0000, v%d" % (T + 1, xx))
                        a("v_add_f32 v%d, v%d, v%d" % (T, T, c + 2 * e2))
                        a("v_add_f32 v%d, v%d, v%d" % (T + 1, T + 1, c + 2 * e2 + 1))
                        a("v_cvt_pk_bf16_f32 v%d, v%d, v%d" % (xx, T, T + 1))
                a.vmem("buffer_store_dwordx4 %s, v%d, s[44:47], s39 offen" % (r4("v", xr), V_XO), "O")
                if mt < 3: a("s_add_u32 s39, s39, 32768")
    if cfg.get("stamp"): srd_off(a, 12, 8, 0, WS_END)
    stamp_out(a, cfg, 4, 60, 24, 12, 0x30000, 4)
    a.label("G2_end")
    a("s_endpgm")
    kernel_desc(a, name, 240, sgpr=96, accum=240, agpr=BR + RB * 4)
    return "; @launch kernel=%s grid=(256,1,1) block=(256,1,1) lds=%d" % (name, NS * STAGE)

def gen_pf(a, cfg):
    name = "pf_kernel"
    kernel_begin(a, name)
    a.reset()
    stamp(a, cfg, 0, 60)
    if cfg.get("stamp"): a("s_memrealtime s[70:71]")
    a("s_cmp_ge_u32 s2, 256")
    a("s_cbranch_scc1 PF_end")
    a("s_load_dwordx4 s[4:7], s[0:1], 8")
    a("s_load_dwordx4 s[8:11], s[0:1], 32")
    a("s_load_dwordx2 s[36:37], s[0:1], 64")
    a("v_lshrrev_b32 v2, 6, v0")
    a("s_nop 0")
    a("v_readfirstlane_b32 s34, v2")
    mode = cfg.get("pf_mode", 0)
    gran = cfg.get("pf_gran", 128)
    if mode == 0: gran = 16
    if mode == 2:
        a("s_lshr_b32 s3, s2, 3")
        a("s_lshl_b32 s3, s3, 9")
        nthr = 32 * 512
    else:
        a("s_lshl_b32 s3, s2, 9")
        nthr = 256 * 512
    a("v_add_u32 v1, s3, v0")
    a("s_mov_b32 s31, %d" % gran)
    a("v_mul_lo_u32 v1, s31, v1")
    if nthr * gran >= (1 << 32):
        a("v_add_u32 v3, s3, v0")
        a("v_min_u32 v3, 200, v3")
        a("v_mul_lo_u32 v1, s31, v3")
    a("s_waitcnt lgkmcnt(0)")
    sizes = [D * 3 * D * 2, D * D * 2, D * DFF * 2, D * DFF * 2]
    order = [0, 2, 3, 1]
    mask = cfg.get("pf_mask", 15)
    n = 0
    for b in order:
        if not (mask >> b) & 1: continue
        srd(a, 12 + 4 * b, 4 + 2 * b, sizes[b])
        step = nthr * gran
        for off in range(0, sizes[b], step):
            a("s_mov_b32 s30, 0x%x" % off)
            if mode == 0: a("buffer_load_dwordx4 %s, v1, s[%d:%d], s30 offen" % (r4("v", 8 + 4 * n), 12 + 4 * b, 15 + 4 * b))
            else: a("buffer_load_dword v%d, v1, s[%d:%d], s30 offen" % (8 + n, 12 + 4 * b, 15 + 4 * b))
            n += 1
    stamp(a, cfg, 1, 62); stamp(a, cfg, 2, 64); stamp(a, cfg, 3, 66)
    a("s_waitcnt vmcnt(0)")
    if cfg.get("stamp"): srd_off(a, 12, 36, 0, WS_END)
    stamp_out(a, cfg, 4, 60, 34, 12, 0x50000, 8)
    a.label("PF_end")
    a("s_endpgm")
    kernel_desc(a, name, 72, sgpr=80)
    return "; @launch kernel=%s grid=(256,1,1) block=(512,1,1) lds=0" % name

def gen_em(a, cfg):
    kernel_begin(a, "em_kernel")
    a("s_endpgm")
    kernel_desc(a, "em_kernel", 8, sgpr=16)
    return "; @launch kernel=em_kernel grid=(256,1,1) block=(256,1,1) lds=0"

def gen_amp(a, cfg):
    kernel_begin(a, "amp_kernel")
    a("s_cmp_ge_u32 s2, 1")
    a("s_cbranch_scc1 AMP_end")
    a("s_load_dwordx2 s[8:9], s[0:1], 64")
    a("s_waitcnt lgkmcnt(0)")
    a("s_load_dword s10, s[8:9], 0x%x" % cfg["amp_a"])
    a("s_load_dword s11, s[8:9], 0x%x" % cfg["amp_b"])
    a("s_memrealtime s[12:13]")
    a("s_waitcnt lgkmcnt(0)")
    if cfg.get("amp_abs"): a("s_mov_b32 s10, 0")
    a("s_sub_u32 s10, s11, s10")
    a("s_mul_i32 s10, s10, %d" % cfg.get("amp_k", 10))
    a("s_lshr_b32 s10, s10, %d" % cfg.get("amp_sh", 0))
    a("s_min_u32 s10, s10, 100000")
    a.label("AMP_l")
    a("s_memrealtime s[14:15]")
    a("s_waitcnt lgkmcnt(0)")
    a("s_sub_u32 s14, s14, s12")
    a("s_cmp_lt_u32 s14, s10")
    a("s_cbranch_scc1 AMP_l")
    a.label("AMP_end")
    a("s_endpgm")
    kernel_desc(a, "amp_kernel", 8, sgpr=24)
    return "; @launch kernel=amp_kernel grid=(1,1,1) block=(64,1,1) lds=0"

def build(cfg, kernels):
    a = Prog()
    heads = []
    for k in kernels:
        heads.append(globals()["gen_" + k](a, cfg))
    a.raw(".text")
    a.label("CODE_END")
    for _ in range(cfg.get("nempty", 0)): heads.append(heads[-1])
    hdr = "\n".join(heads) + "\n" + '.amdgcn_target "amdgcn-amd-amdhsa--gfx950"\n'
    return hdr + a.text()

if __name__ == "__main__":
    cfg = dict(g1_mt=4)
    out = sys.argv[1]
    kernels = sys.argv[2].split(",")
    for kv in sys.argv[3:]:
        k, v = kv.split("="); cfg[k] = int(v, 0)
    open(out, "w").write(build(cfg, kernels))
```

```python
import sys, math
from asmlib import *
import gen
from gen import *

class SA:
    def __init__(self, start, end):
        self.n = start; self.end = end; self.m = {}
    def new(self, name, cnt=1, align=1):
        self.n = (self.n + align - 1) // align * align
        r = self.n; self.n += cnt
        assert self.n <= self.end, "out of sgprs"
        self.m[name] = r
        return r

def s4(b): return "s[%d:%d]" % (b, b + 3)
MF = "v_mfma_f32_16x16x32_bf16"

def gen_f(a, cfg):
    name = "f_kernel"
    ST = cfg.get("stamp")
    MT = 4
    sa = SA(3, 84)
    P_WQ = sa.new("pwq", 2, 2); P_W1 = sa.new("pw1", 2, 2); P_WS = sa.new("pws", 2, 2); P_X = sa.new("px", 2, 2)
    P_W2 = sa.new("pw2", 2, 2); P_WO = sa.new("pwo", 2, 2); P_OUT = sa.new("pout", 2, 2)
    R_WQ = sa.new("rwq", 4, 4); R_W1 = sa.new("rw1", 4, 4); R_W2 = sa.new("rw2", 4, 4); R_WO = sa.new("rwo", 4, 4)
    R_WS = sa.new("rws", 4, 4)
    sW = sa.new("w"); sI = sa.new("i"); sJ = sa.new("j"); sJ1 = sa.new("j1"); sQ = sa.new("q"); sN = sa.new("n")
    sBQ = sa.new("bq"); sBV = sa.new("bv"); sBW = sa.new("bw"); sBL = sa.new("bl"); sLB = sa.new("lb"); sA = sa.new("a")
    sCLS = sa.new("cls"); t0 = sa.new("t0"); t1 = sa.new("t1"); t2 = sa.new("t2"); t3 = sa.new("t3")
    sMK = sa.new("mask", 8, 2)
    sKV = sa.new("kv"); sKV2 = sa.new("kv2"); sKP = sa.new("kp"); sKP2 = sa.new("kp2"); sFK = sa.new("fk"); sFO = sa.new("fo")
    sH = sa.new("h", 4); sO = sa.new("o"); sSC = sa.new("sc"); sAE = sa.new("aend"); sBE = sa.new("bend")
    sXO = sa.new("xo"); sSP = sa.new("spin")
    STB = 84
    SETS = {1: ["start", "bar0", "g1end", "attbeg", "attend", "g2beg", "g2end", "end"],
            2: ["start", "g1half", "g1tail", "g1kv", "g1flag0", "g1flag1", "g1chk", "g1end"],
            3: ["start", "attbeg", "att0", "att1", "att2", "att3", "att4", "attend"],
            4: ["start", "g2beg", "g2h", "g2p3", "g2p12", "g2p20", "g2tail", "g2end"],
            5: ["start", "g2end", "x1", "x2", "x3", "x4", "x5", "end"],
            6: ["start", "bar0", "g1s2", "g1s4", "g1s8", "g1half", "g1s20", "g1tail"]}
    def stampr(nm):
        if ST and nm in SETS[ST]:
            i = SETS[ST].index(nm)
            a("s_memrealtime s[%d:%d]" % (STB + 2 * i, STB + 2 * i + 1))

    NT = 13; KS = 32
    NS = 5; REG = 7168; STAGE = 4 * REG
    D1 = cfg.get("f_d1", 8)
    RA = cfg.get("f_ra1", 11)
    LA = cfg.get("f_la1", 4)
    DB = cfg.get("f_db1", 3); RB = DB + 2
    S1 = KS - D1
    def slot1(g): return (15 - g) % 5
    KVB = 96 * 1024
    def acc(mt, t): return (t * MT + mt) * 4
    V_L16 = 208; V_QKV = 209; V_W1 = 210; V_LEFT = 211
    V_RD = 212
    V_P0, V_P1, V_P2 = 221, 222, 223
    V_LANE = 224; V_FL0 = 225; V_ONE = 226; V_POLL = 227; V_KVW = 228; V_FG = 229; V_PL = 230
    T = 232
    A_PD = 255
    AR = 0; BR = RA * 16
    assert BR + RB * 4 <= 254

    kernel_begin(a, name)
    a.reset()
    stampr("start")
    a("s_cmp_ge_u32 s2, 256")
    a("s_cbranch_scc1 F_end")
    a("s_load_dwordx2 s[%d:%d], s[0:1], 8" % (P_WQ, P_WQ + 1))
    a("s_load_dwordx2 s[%d:%d], s[0:1], 32" % (P_W1, P_W1 + 1))
    a("s_load_dwordx2 s[%d:%d], s[0:1], 64" % (P_WS, P_WS + 1))
    a("s_load_dwordx2 s[%d:%d], s[0:1], 0" % (P_X, P_X + 1))
    a("s_load_dwordx2 s[%d:%d], s[0:1], 40" % (P_W2, P_W2 + 1))
    a("s_load_dwordx2 s[%d:%d], s[0:1], 16" % (P_WO, P_WO + 1))
    a("s_load_dwordx2 s[%d:%d], s[0:1], 48" % (P_OUT, P_OUT + 1))
    L = V_LANE
    a("v_and_b32 v%d, 63, v0" % L)
    a("v_lshrrev_b32 v%d, 6, v0" % (T + 1))
    a("v_lshlrev_b32 v%d, 4, v%d" % (V_L16, L))
    a("v_readfirstlane_b32 s%d, v%d" % (sW, T + 1))
    a("s_and_b32 s%d, s2, 1" % sI)
    a("s_lshl_b32 s%d, s%d, 2" % (sI, sI))
    a("s_bfe_u32 s%d, s2, 0x20003" % t0)
    a("s_add_u32 s%d, s%d, s%d" % (sI, sI, t0))
    a("s_bfe_u32 s%d, s2, 0x20001" % sQ)
    a("s_lshr_b32 s%d, s2, 5" % sN)
    a("s_lshl_b32 s%d, s%d, 3" % (sJ, sQ))
    a("s_add_u32 s%d, s%d, s%d" % (sJ, sJ, sN))
    a("s_and_b32 s%d, s%d, 1" % (sJ1, sN))
    a("v_lshrrev_b32 v%d, 2, v%d" % (T + 2, L))
    a("v_lshl_add_u32 v%d, v%d, 4, v%d" % (T + 2, T + 1, T + 2))
    a("v_lshrrev_b32 v%d, 4, v%d" % (T + 3, L))
    a("v_and_b32 v%d, 2, v%d" % (T + 3, T + 3))
    a("v_and_b32 v%d, 3, v%d" % (T + 4, L))
    a("v_xor_b32 v%d, v%d, v%d" % (T + 3, T + 3, T + 4))
    a("v_lshlrev_b32 v%d, 4, v%d" % (T + 3, T + 3))
    a("v_mul_u32_u24 v%d, 6144, v%d" % (V_QKV, T + 2))
    a("v_add_u32 v%d, v%d, v%d" % (V_QKV, V_QKV, T + 3))
    a("v_mul_u32_u24 v%d, 7168, v%d" % (V_W1, T + 2))
    a("v_add_u32 v%d, v%d, v%d" % (V_W1, V_W1, T + 3))
    a("v_bfe_u32 v%d, v%d, 3, 1" % (T + 2, L))
    a("v_lshlrev_b32 v%d, 3, v%d" % (T + 2, T + 2))
    a("v_bfe_u32 v%d, v%d, 4, 1" % (T + 3, L))
    a("v_lshl_add_u32 v%d, v%d, 2, v%d" % (T + 2, T + 3, T + 2))
    a("v_bfe_u32 v%d, v%d, 1, 2" % (T + 3, L))
    a("v_add_u32 v%d, v%d, v%d" % (T + 2, T + 2, T + 3))
    a("v_lshl_add_u32 v%d, v%d, 4, v%d" % (T + 2, T + 1, T + 2))
    a("v_mul_u32_u24 v%d, 7168, v%d" % (V_LEFT, T + 2))
    a("v_and_b32 v%d, 1, v%d" % (T + 3, L))
    a("v_lshl_add_u32 v%d, v%d, 4, v%d" % (V_LEFT, T + 3, V_LEFT))
    a("v_lshrrev_b32 v%d, 5, v%d" % (T + 3, L))
    a("v_lshl_add_u32 v%d, v%d, 30, v%d" % (V_LEFT, T + 3, V_LEFT))
    a("s_lshl_b32 s%d, s%d, 6" % (sBQ, sJ))
    a("s_add_u32 s%d, s%d, 4096" % (sBV, sBQ))
    a("s_mul_i32 s%d, s%d, 224" % (sBL, sJ))
    a("s_lshl_b32 s%d, s%d, 5" % (t0, sJ1))
    a("s_add_u32 s%d, s%d, s%d" % (sBW, sBL, t0))
    a("s_xor_b32 s%d, s%d, 1" % (t0, sJ1))
    a("s_mul_i32 s%d, s%d, 192" % (t0, t0))
    a("s_add_u32 s%d, s%d, s%d" % (sBL, sBL, t0))
    a("s_mul_i32 s%d, s%d, %d" % (sLB, sW, REG))
    a("s_lshl_b32 s%d, s%d, 2" % (sA, sI))
    a("s_add_u32 s%d, s%d, s%d" % (sA, sA, sW))
    a("s_lshl_b32 s%d, s%d, 17" % (sA, sA))
    a("s_add_u32 s%d, s%d, 0x%x" % (sA, sA, WS_XN))
    a("s_waitcnt lgkmcnt(0)")
    srd(a, R_WQ, P_WQ, D * 3 * D * 2)
    srd(a, R_W1, P_W1, D * DFF * 2)
    srd(a, R_WS, P_WS, WS_END)

    PAIRPOS = [0, 2, 1, 3, 4, 5]
    def dma1(g, k, part):
        p, vreg, sb, so, imm = [(0, V_QKV, R_WQ, sBQ, 0), (2, V_QKV, R_WQ, sBQ, 2048), (1, V_QKV, R_WQ, sBV, 0),
                                (3, V_W1, R_W1, sBW, 0), (4, V_W1, R_W1, sBW, 64), (5, V_W1, R_W1, sBW, 128), (6, V_LEFT, R_W1, sBL, 0)][k]
        if part == 0:
            a("s_add_u32 m0, s%d, %d" % (sLB, slot1(g) * STAGE + p * 1024 - imm))
        else:
            a.vmem("buffer_load_dwordx4 v%d, %s, s%d offen offset:%d lds" % (vreg, s4(sb), so, imm), ("B", g))
            if k == 1: a("s_add_u32 s%d, s%d, %d" % (sBQ, sBQ, 64 * 6144))
            if k == 2: a("s_add_u32 s%d, s%d, %d" % (sBV, sBV, 64 * 6144))
            if k == 5: a("s_add_u32 s%d, s%d, %d" % (sBW, sBW, 64 * 7168))
            if k == 6: a("s_add_u32 s%d, s%d, %d" % (sBL, sBL, 64 * 7168))
    def aload1(s, mt):
        a.vmem("buffer_load_dwordx4 %s, v%d, %s, s%d offen offset:%d" % (r4("a", AR + (s % RA) * 16 + mt * 4), V_L16, s4(R_WS), sA, mt * 1024), ("A", s))
        if mt == MT - 1: a("s_add_u32 s%d, s%d, 4096" % (sA, sA))
    order = []
    for g in range(16):
        for k in range(7): order.append(("B", g, k))
        for s in (2 * g, 2 * g + 1):
            for mt in range(MT): order.append(("A", s, mt))
    def issue1(op):
        if op[0] == "A": aload1(op[1], op[2])
        else:
            dma1(op[1], op[2], 0); a("s_nop 0"); dma1(op[1], op[2], 1)
    for _ in range(cfg.get("f_pro1", 15)): issue1(order.pop(0))

    srd(a, R_W2, P_W2, DFF * D * 2)
    srd(a, R_WO, P_WO, D * D * 2)
    a("s_bfe_u32 s%d, s2, 0x30003" % sCLS)
    a("s_lshr_b32 s%d, s2, 6" % t1)
    a("s_lshl_b32 s%d, s%d, 2" % (t1, t1))
    a("s_add_u32 s%d, s%d, s%d" % (t1, t1, sW))
    a("v_bfrev_b32 v%d, 1" % (T + 6))
    a("v_lshrrev_b32 v%d, 5, v%d" % (T + 2, L))
    a("s_lshl_b32 s%d, s%d, 1" % (t0, t1))
    a("v_add_u32 v%d, s%d, v%d" % (T + 2, t0, T + 2))
    a("v_and_b32 v%d, 31, v%d" % (T + 3, L))
    a("v_mul_u32_u24 v%d, 7168, v%d" % (V_P1, T + 2))
    a("v_lshl_add_u32 v%d, v%d, 7, v%d" % (V_P1, T + 3, V_P1))
    a("s_mul_i32 s%d, s%d, 1792" % (t0, sQ))
    a("v_add_u32 v%d, s%d, v%d" % (V_P1, t0, V_P1))
    a("v_mul_u32_u24 v%d, 6144, v%d" % (V_P0, T + 2))
    a("v_lshrrev_b32 v%d, 2, v%d" % (T + 4, T + 3))
    a("v_lshl_add_u32 v%d, v%d, 11, v%d" % (V_P0, T + 4, V_P0))
    a("v_and_b32 v%d, 3, v%d" % (T + 4, T + 3))
    a("v_lshl_add_u32 v%d, v%d, 7, v%d" % (V_P0, T + 4, V_P0))
    a("s_lshl_b32 s%d, s%d, 9" % (t0, sQ))
    a("v_add_u32 v%d, s%d, v%d" % (V_P0, t0, V_P0))
    a("v_cmp_le_u32 vcc, 12, v%d" % (T + 3))
    a("s_and_b32 s%d, s2, 1" % t0)
    a("s_lshl_b32 s%d, s%d, 4" % (t0, t0))
    a("v_cndmask_b32 v%d, v%d, v%d, vcc" % (V_P0, V_P0, T + 6))
    a("v_cmp_le_u32 vcc, 14, v%d" % (T + 3))
    a("s_add_u32 s%d, s%d, s%d" % (t0, t0, t1))
    a("s_lshl_b32 s%d, s%d, 17" % (t0, t0))
    a("v_cndmask_b32 v%d, v%d, v%d, vcc" % (V_P1, V_P1, T + 6))
    a("s_add_u32 s%d, s%d, 0x%x" % (t0, t0, WS_XN))
    a("v_lshlrev_b32 v%d, 7, v%d" % (V_P2, L))
    a("v_add_u32 v%d, s%d, v%d" % (V_P2, t0, V_P2))
    a("v_cmp_le_u32 vcc, 32, v%d" % L)
    a("s_lshl_b32 s%d, s%d, 12" % (t0, sCLS))
    a("s_nop 0")
    a("v_cndmask_b32 v%d, v%d, v%d, vcc" % (V_P2, V_P2, T + 6))
    PFM = cfg.get("f_pf", 3)
    PF0 = cfg.get("f_pf0", 8)
    if PFM & 2:
        a("buffer_load_dword a%d, v%d, %s, s%d offen" % (A_PD, V_P2, s4(R_WS), t0))
    def touch(n):
        lab = a.newlabel("F_pf")
        a("s_cmp_lg_u32 s%d, %d" % (sCLS, n & 7))
        a("s_cbranch_scc1 %s" % lab)
        if PFM & 1:
            a("s_mov_b32 s%d, %d" % (t0, n * 32 * 6144))
            a("s_mov_b32 s%d, %d" % (t1, n * 32 * 7168))
            a("buffer_load_dword a%d, v%d, %s, s%d offen" % (A_PD, V_P0, s4(R_WQ), t0))
            a("buffer_load_dword a%d, v%d, %s, s%d offen" % (A_PD - 1, V_P1, s4(R_W1), t1))
        if PFM & 2:
            a("s_mov_b32 s%d, %d" % (t0, n * 4096))
            a("buffer_load_dword a%d, v%d, %s, s%d offen" % (A_PD, V_P2, s4(R_WS), t0))
        a.label(lab)
    if PFM & 4:
        a("s_and_b32 s%d, s2, 1" % t0)
        a("v_lshrrev_b32 v%d, 5, v%d" % (T + 2, L))
        a("v_cmp_ne_u32 vcc, s%d, v%d" % (t0, T + 2))
        a("s_nop 1")
        a("v_cndmask_b32 v%d, v%d, v%d, vcc" % (V_P0, V_P0, T + 6))
        a("v_cndmask_b32 v%d, v%d, v%d, vcc" % (V_P1, V_P1, T + 6))
    PW = cfg.get("f_pw", 1); PW0 = cfg.get("f_pw0", 12)
    V_PW = 231
    a("v_lshlrev_b32 v%d, 7, v%d" % (V_PW, L))
    a("v_cmp_le_u32 vcc, 56, v%d" % L)
    a("s_nop 1")
    a("v_cndmask_b32 v%d, v%d, v%d, vcc" % (V_PW, V_PW, T + 6))
    def touchw(cls):
        lab = a.newlabel("F_pw")
        if cls is not None:
            a("s_cmp_lg_u32 s%d, %d" % (sCLS, cls))
            a("s_cbranch_scc1 %s" % lab)
        a("s_lshl_b32 s%d, s2, 2" % t0)
        a("s_add_u32 s%d, s%d, s%d" % (t0, t0, sW))
        a("s_mul_i32 s%d, s%d, 7168" % (t1, t0))
        a("buffer_load_dword a%d, v%d, %s, s%d offen" % (A_PD, V_PW, s4(R_W2), t1))
        a("s_lshl_b32 s%d, s%d, 11" % (t1, t0))
        a("s_mov_b64 exec, 0xffff")
        a("buffer_load_dword a%d, v%d, %s, s%d offen" % (A_PD - 1, V_PW, s4(R_WO), t1))
        a("s_mov_b64 exec, -1")
        a.label(lab)
    pfq = list(range(PF0, KS)) if PFM else []
    PFA = cfg.get("f_pfa", 30)
    a("v_lshrrev_b32 v%d, 5, v%d" % (T + 2, L))
    a("v_mul_u32_u24 v%d, %d, v%d" % (T + 2, REG, T + 2))
    a("v_and_b32 v%d, 3, v%d" % (T + 3, L))
    a("v_lshl_add_u32 v%d, v%d, 3, v%d" % (T + 2, T + 3, T + 2))
    a("v_bfe_u32 v%d, v%d, 2, 2" % (T + 3, L))
    a("v_bfe_u32 v%d, v%d, 4, 1" % (T + 4, L))
    a("v_lshl_add_u32 v%d, v%d, 6, v%d" % (V_RD, T + 3, T + 2))
    a("v_lshl_add_u32 v%d, v%d, 9, v%d" % (V_RD, T + 4, V_RD))
    a("v_lshl_add_u32 v%d, v%d, 5, v%d" % (V_RD, T + 4, V_RD))
    a("v_xor_b32 v%d, 32, v%d" % (V_RD + 1, V_RD))
    a("v_lshl_add_u32 v%d, v%d, 5, v%d" % (V_RD + 2, T + 3, T + 2))
    a("v_lshl_add_u32 v%d, v%d, 7, v%d" % (V_RD + 2, T + 4, V_RD + 2))
    for st_ in (1, 2):
        for x in range(3):
            a("v_add_u32 v%d, %d, v%d" % (V_RD + 3 * st_ + x, st_ * 2 * STAGE, V_RD + x))
    a("s_lshl_b32 s%d, s%d, 7" % (sKV, sJ))
    a("s_lshl_b32 s%d, s%d, 4" % (t0, sI))
    a("s_add_u32 s%d, s%d, s%d" % (sKV, sKV, t0))
    a("s_lshl_b32 s%d, s%d, 2" % (t0, sW))
    a("s_add_u32 s%d, s%d, s%d" % (sKV, sKV, t0))
    a("s_lshl_b32 s%d, s%d, 10" % (sKV, sKV))
    a("s_add_u32 s%d, s%d, 0x%x" % (sKV2, sKV, WS_V))
    a("s_add_u32 s%d, s%d, 0x%x" % (sKV, sKV, WS_K))
    a("s_sub_u32 s%d, s%d, 16384" % (sKP, sKV))
    a("s_sub_u32 s%d, s%d, 16384" % (sKP2, sKV2))
    a("s_cmp_eq_u32 s%d, 0" % sI)
    a("s_cselect_b32 s%d, 0x40000000, s%d" % (sKP, sKP))
    a("s_cselect_b32 s%d, 0x40000000, s%d" % (sKP2, sKP2))
    a("s_lshl_b32 s%d, s2, 2" % sFO)
    a("s_add_u32 s%d, s%d, s%d" % (sFO, sFO, sW))
    a("s_lshl_b32 s%d, s%d, 7" % (sFO, sFO))
    a("s_add_u32 s%d, s%d, 0x%x" % (sFO, sFO, WS_FL))
    a("s_add_u32 s%d, s%d, 1" % (t0, sI))
    a("s_and_b32 s%d, s%d, 3" % (t1, t0))
    a("s_lshl_b32 s%d, s%d, 3" % (t1, t1))
    a("s_lshr_b32 s%d, s%d, 2" % (t0, t0))
    a("s_or_b32 s%d, s%d, s%d" % (t1, t1, t0))
    a("s_and_b32 s%d, s2, 0xe6" % t0)
    a("s_or_b32 s%d, s%d, s%d" % (t1, t1, t0))
    a("s_lshl_b32 s%d, s%d, 2" % (t1, t1))
    a("s_add_u32 s%d, s%d, s%d" % (t1, t1, sW))
    a("s_lshl_b32 s%d, s%d, 7" % (t1, t1))
    a("s_add_u32 s%d, s%d, 0x%x" % (sFK, t1, WS_FL + 12))
    a("s_cmp_eq_u32 s%d, 7" % sI)
    a("s_cselect_b32 s%d, 0x40000000, s%d" % (sFK, sFK))
    a("v_cmp_ne_u32 vcc, 0, v%d" % L)
    a("v_mov_b32 v%d, 1" % V_ONE)
    a("v_and_b32 v%d, 31, v%d" % (V_PL, L))
    a("v_cndmask_b32 v%d, 0, v%d, vcc" % (V_FL0, T + 6))
    a("v_lshlrev_b32 v%d, 2, v%d" % (V_PL, V_PL))
    a("s_and_b32 s%d, s2, 31" % t0)
    a("s_lshl_b32 s%d, s%d, 2" % (t0, t0))
    a("s_add_u32 s%d, s%d, s%d" % (t0, t0, sW))
    a("s_lshl_b32 s%d, s%d, 7" % (t0, t0))
    a("s_lshl_b32 s%d, s%d, 2" % (t1, sN))
    a("s_add_u32 s%d, s%d, s%d" % (t0, t0, t1))
    a("s_add_u32 s%d, s%d, 0x%x" % (t0, t0, WS_FL))
    a("v_lshlrev_b32 v%d, 14, v%d" % (V_FG, L))
    a("v_add_u32 v%d, s%d, v%d" % (V_FG, t0, V_FG))
    a("v_cmp_le_u32 vcc, 8, v%d" % L)
    a("s_lshl_b32 s%d, s%d, 12" % (t0, sW))
    a("s_add_u32 s%d, s%d, %d" % (t0, t0, KVB))
    a("v_cndmask_b32 v%d, v%d, v%d, vcc" % (V_FG, V_FG, T + 6))
    a("v_add_u32 v%d, s%d, v%d" % (V_KVW, t0, V_L16))
    a("s_lshl_b32 s%d, s%d, 2" % (t0, sI))
    a("s_add_u32 s%d, s%d, s%d" % (t0, t0, sW))
    a("s_lshl_b32 s%d, s%d, 17" % (sXO, t0))
    a("s_mul_i32 s%d, s%d, 144" % (t0, t0))
    a("s_mul_i32 s%d, s%d, 36" % (t1, sQ))
    a("s_add_u32 s%d, s%d, s%d" % (t0, t0, t1))
    a("s_lshl_b32 s%d, s%d, 12" % (t0, t0))
    a("s_add_u32 s%d, s%d, 0x%x" % (t0, t0, WS_A2))
    a("s_add_u32 s%d, s%d, %d" % (sAE, t0, 28 * 4096))
    a("s_lshl_b32 s%d, s%d, 12" % (t1, sN))
    a("s_add_u32 s%d, s%d, s%d" % (sO, sAE, t1))
    a("s_mul_i32 s%d, s%d, 7" % (t1, sN))
    a("s_add_u32 s%d, s%d, s%d" % (t1, t1, sJ1))
    a("s_lshl_b32 s%d, s%d, 11" % (t1, t1))
    a("s_add_u32 s%d, s%d, s%d" % (sH, t0, t1))
    a("s_add_u32 s%d, s%d, 4096" % (sH + 1, sH))
    a("s_add_u32 s%d, s%d, 8192" % (sH + 2, sH))
    a("s_mul_i32 s%d, s%d, %d" % (sH + 3, sJ1, -4096 + 8 - 3 * 4096))
    a("s_add_u32 s%d, s%d, %d" % (sH + 3, sH + 3, 3 * 4096))
    a("s_add_u32 s%d, s%d, s%d" % (sH + 3, sH + 3, sH))
    a("s_lshl_b32 s%d, s%d, 8" % (t0, sN))
    a("s_add_u32 s%d, s%d, s%d" % (sXO, sXO, t0))
    a("s_lshl_b32 s%d, s%d, 6" % (t0, sQ))
    a("s_add_u32 s%d, s%d, s%d" % (sXO, sXO, t0))
    a("s_mov_b32 s%d, 0x%x" % (sSC, f2u(QSCALE)))
    a("v_lshrrev_b32 v%d, 4, v%d" % (T + 2, L))
    a("v_lshlrev_b32 v%d, 2, v%d" % (T + 2, T + 2))
    a("v_and_b32 v%d, 15, v%d" % (T + 3, L))
    for e in range(4):
        a("v_add_u32 v%d, %d, v%d" % (T + 4, e, T + 2))
        a("v_cmp_le_u32 s[%d:%d], v%d, v%d" % (sMK + 2 * e, sMK + 2 * e + 1, T + 4, T + 3))

    def spin(mask, skip_if_i0=False):
        l0 = a.newlabel("F_sp"); l1 = a.newlabel("F_ok")
        if skip_if_i0:
            a("s_cmp_eq_u32 s%d, 0" % sI)
            a("s_cbranch_scc1 %s" % l1)
        a("s_mov_b32 s%d, 0x8000" % sSP)
        a.label(l0)
        a("v_cmp_ne_u32 vcc, 0, v%d" % V_POLL)
        a("s_and_b32 s%d, vcc_lo, 0x%x" % (t0, mask))
        a("s_cmp_eq_u32 s%d, 0x%x" % (t0, mask))
        a("s_cbranch_scc1 %s" % l1)
        a("buffer_load_dword v%d, v%d, %s, s%d offen sc1" % (V_POLL, V_PL, s4(R_WS), sFO))
        a("s_sub_u32 s%d, s%d, 1" % (sSP, sSP))
        a("s_waitcnt vmcnt(0)")
        a("s_cbranch_scc0 %s" % l0)
        a.label(l1)
    def poll_issue(tag):
        a.vmem("buffer_load_dword v%d, v%d, %s, s%d offen sc1" % (V_POLL, V_PL, s4(R_WS), sFO), tag)

    units = [(s, t) for s in range(S1) for t in range(NT)]
    units += [(s, t) for s in range(S1, KS) for t in (2, 3, 4, 5)]
    UKV = len(units)
    units += [(s, t) for s in range(S1, KS) for t in (0, 1, 6, 7, 8, 9, 10, 11, 12)]
    NU = len(units)
    last_unit_of_stage = {}
    last_unit_of_step = {}
    for u, (s, t) in enumerate(units):
        last_unit_of_stage[s // 2] = u; last_unit_of_step[s] = u
    stt = dict(ready=-1, free=set(), waited=-1, issued=-1)
    def barrier():
        a("s_barrier")
        for g, lu in last_unit_of_stage.items():
            if lu <= stt["waited"]: stt["free"].add(g)
    def can1(op):
        if op[0] == "B": return op[1] < NS or (op[1] - NS) in stt["free"]
        return op[1] < RA or last_unit_of_step[op[1] - RA] <= stt["issued"]
    def flush1(tag):
        while any(o[:2] == tag for o in order):
            op = order.pop(0)
            assert can1(op), (op, stt)
            issue1(op)
    def bread1(u, j2):
        s, t = units[u]
        slot = slot1(s // 2); st_ = slot // 2
        off = (slot % 2) * STAGE + (s % 2) * 2 * REG + j2 * 256
        if t < 12: off += PAIRPOS[t // 2] * 1024; vr = V_RD + 3 * st_ + (t % 2)
        else: off += 6144; vr = V_RD + 3 * st_ + 2
        a.lds("ds_read_b64_tr_b16 %s, v%d offset:%d" % (r2("a", BR + (u % RB) * 4 + j2 * 2), vr, off), ("b", u))
    def need1(u):
        g = units[u][0] // 2
        if g > stt["ready"]:
            flush1(("B", g)); a.wait(vm=("B", g)); barrier(); stt["ready"] = g
    def pack(c0, c1, relu=False):
        ops = []
        for hh, c in enumerate((c0, c1)):
            if c is None: continue
            for e2 in range(2):
                ops.append("v_cvt_pk_bf16_f32 v%d, v%d, v%d" % (c0 + 2 * hh + e2, c + 2 * e2, c + 2 * e2 + 1))
            if relu:
                for e2 in range(2):
                    ops.append("v_pk_max_i16 v%d, v%d, 0" % (c0 + 2 * hh + e2, c0 + 2 * hh + e2))
        return ops
    need1(0)
    stampr("bar0")
    for u in range(DB):
        bread1(u, 0); bread1(u, 1)
    side = []
    at_unit = {}
    kvq = [(acc(mt, 2), acc(mt, 3), sKV, mt * 1024, 16384 + mt * 1024) for mt in range(MT)] + \
          [(acc(2 * b, 4 + dt), acc(2 * b + 1, 4 + dt), sKV2, (2 * b + dt) * 1024, 49152 + (2 * b + dt) * 1024) for b in range(2) for dt in range(2)]
    NREST = NU - UKV
    UFLAG = UKV + int(NREST * cfg.get("f_kvflag", 55) / 100)
    UPOLL = UKV + int(NREST * cfg.get("f_kvpoll", 80) / 100)
    UCHK = min(UPOLL + cfg.get("f_kvchk", 8), NU - 1)
    seenA = set()
    ramp = (RA - 1 - LA) / float(S1 * NT)
    for u in range(NU):
        s, t = units[u]
        un = u + DB
        if un < NU: need1(un)
        if u < UKV and s >= S1 - 4 and s < S1 + 1 and s % 2 == 0 and t == (1 if s < S1 else 3): barrier()
        if u == last_unit_of_stage[S1 // 2] + 2: barrier()
        if pfq and u % 4 == 2 and pfq[0] - 1 <= (u + PFA) / NT + LA + ramp * (u + PFA): touch(pfq.pop(0))
        if PW == 1 and u == UKV - PW0: touchw(None)
        if PW == 2 and u < S1 * NT and t == 8 and PW0 <= s < PW0 + 8: touchw((s + 4) & 7)
        if u == 16 * NT: stampr("g1half")
        if u < S1 * NT and t == 0: stampr("g1s%d" % s)
        if u == S1 * NT: stampr("g1tail")
        if u == UKV: stampr("g1kv")
        if u == UFLAG:
            stampr("g1flag0")
            a.wait(vm="KV")
            stampr("g1flag1")
            a.vmem("buffer_store_dword v%d, v%d, %s, s%d offen sc1" % (V_ONE, V_FL0, s4(R_WS), sFK), "FK")
        if u == UPOLL: poll_issue("PK")
        if u == UCHK:
            a.wait(vm="PK")
            spin(1 << 3, skip_if_i0=True)
            stampr("g1chk")
            for x, (c0, c1, so, go, lo) in enumerate(kvq):
                def f(c1=c1, so=(sKP if x < 4 else sKP2), go=go, x=x):
                    a.vmem("buffer_load_dwordx4 %s, v%d, %s, s%d offen offset:%d sc1" % (r4("v", c1), V_L16, s4(R_WS), so, go), ("KP", x))
                side.append(f)
        if s not in seenA:
            flush1(("A", s)); seenA.add(s)
            a.wait(vm=("A", s), lg=("b", u))
        else: a.wait(lg=("b", u))
        stt["waited"] = u
        bf = r4("a", BR + (u % RB) * 4)
        nxt = None
        if order and can1(order[0]):
            op = order[0]
            stp = op[1] * 2 if op[0] == "B" else op[1]
            if stp <= u / NT + LA + ramp * u or u >= S1 * NT: nxt = order.pop(0)
        for mt in range(MT):
            mz = mt if u % 2 == 0 else MT - 1 - mt
            af = r4("a", AR + (s % RA) * 16 + mz * 4)
            c = r4("v", acc(mz, t))
            src = "0" if s == 0 else c
            if t in (4, 5): a("%s %s, %s, %s, %s" % (MF, c, af, bf, src))
            else:           a("%s %s, %s, %s, %s" % (MF, c, bf, af, src))
            if mt < 2 and un < NU: bread1(un, mt)
            if mt == 2 and nxt and nxt[0] == "B": dma1(nxt[1], nxt[2], 0)
            if mt == 3 and nxt:
                if nxt[0] == "A": aload1(nxt[1], nxt[2])
                else: dma1(nxt[1], nxt[2], 1)
            for _ in range(1 if mt < 2 else 2):
                if side:
                    f = side.pop(0)
                    if f is None: pass
                    elif isinstance(f, str): a(f)
                    else: f()
        stt["issued"] = u
        if u == UKV - 1:
            assert (S1 // 2 - 1) in stt["free"], stt
            side += [None] * 6
            for (c0, c1, so, go, lo) in kvq:
                side += pack(c0, c1)
                def f(c0=c0, so=so, go=go):
                    a.vmem("buffer_store_dwordx4 %s, v%d, %s, s%d offen offset:%d sc1" % (r4("v", c0), V_L16, s4(R_WS), so, go), "KV")
                side.append(f)
            for (c0, c1, so, go, lo) in kvq:
                def f(c0=c0, lo=lo):
                    a.lds("ds_write_b128 v%d, %s offset:%d" % (V_KVW, r4("v", c0), lo), "kvw")
                side += [f, None, None]
    for f in side:
        if f is None: pass
        elif isinstance(f, str): a(f)
        else: f()
    side = []
    assert not order
    assert (S1 // 2) in stt["free"]
    stampr("g1end")

    a("s_nop 7")
    for mt in range(MT):
        for t in (0, 1):
            for e2 in range(2):
                a("v_pk_mul_f32 v[%d:%d], v[%d:%d], s[%d:%d] op_sel_hi:[1,0]" % ((acc(mt, t) + 2 * e2, acc(mt, t) + 2 * e2 + 1) * 2 + (sSC & ~1, (sSC & ~1) + 1))) if False else None
            for e in range(4): a("v_mul_f32 v%d, s%d, v%d" % (acc(mt, t) + e, sSC, acc(mt, t) + e))
        for x in pack(acc(mt, 0), acc(mt, 1)): a(x)
    for p in range(3):
        for mt in range(MT):
            for x in pack(acc(mt, 6 + 2 * p), acc(mt, 7 + 2 * p), relu=True): a(x)
    for mt in range(MT):
        for x in pack(acc(mt, 12), None, relu=True): a(x)
    for x, (c0, c1, so, go, lo) in enumerate(kvq):
        a.wait(vm=("KP", x))
        a.lds("ds_write_b128 v%d, %s offset:%d" % (V_KVW, r4("v", c1), lo - 16384), "kvw")
    V2_DMA = 209; V_XO = 211; V2_RD = 232
    VB = 212
    TT = acc(0, 1)
    a("v_lshrrev_b32 v%d, 4, v%d" % (TT, L))
    a("v_lshlrev_b32 v%d, 11, v%d" % (V2_DMA, TT))
    a("v_lshlrev_b32 v%d, 1, v%d" % (TT, TT))
    a("v_and_b32 v%d, 15, v%d" % (TT + 1, L))
    a("v_xor_b32 v%d, v%d, v%d" % (TT, TT, TT + 1))
    a("v_lshl_add_u32 v%d, v%d, 4, v%d" % (V2_DMA, TT, V2_DMA))
    a("v_xor_b32 v%d, 128, v%d" % (V2_DMA + 1, V2_DMA))
    a("v_add_u32 v%d, 8192, v%d" % (V2_DMA + 1, V2_DMA + 1))
    sB2 = sBQ; sBO = sBV
    a("s_lshl_b32 s%d, s%d, 14" % (t0, sW))
    a("s_lshl_b32 s%d, s%d, 8" % (t1, sN))
    a("s_add_u32 s%d, s%d, s%d" % (t0, t0, t1))
    a("s_lshl_b32 s%d, s%d, 19" % (sBO, sQ))
    a("s_add_u32 s%d, s%d, s%d" % (sBO, sBO, t0))
    a("s_mul_i32 s%d, s%d, %d" % (sB2, sQ, 896 * 2048))
    a("s_add_u32 s%d, s%d, s%d" % (sB2, sB2, t0))
    a("s_add_u32 s%d, s%d, %d" % (sBE, sB2, 896 * 2048))
    a("s_mul_i32 s%d, s%d, 7" % (t1, sN))
    a("s_add_u32 s%d, s%d, s%d" % (t1, t1, sJ1))
    a("s_lshl_b32 s%d, s%d, 15" % (t1, t1))
    a("s_add_u32 s%d, s%d, s%d" % (sB2, sB2, t1))
    a("s_lshl_b32 s%d, s%d, 11" % (sLB, sW))
    a("s_add_u32 s%d, s%d, %d" % (sA, sH, 3 * 4096))
    a("s_cmp_ge_u32 s%d, s%d" % (sA, sAE))
    a("s_cselect_b32 s%d, %d, 0" % (t0, 28 * 4096))
    a("s_sub_u32 s%d, s%d, s%d" % (sA, sA, t0))
    a.wait(lg="kvw")
    a("s_barrier")
    stampr("attbeg")

    KF = 0; VF = 80
    for kt in range(20): a.lds("ds_read_b128 %s, v%d offset:%d" % (r4("a", KF + 4 * kt), V_KVW, kt * 1024), ("k", kt))
    free = [acc(mt, t) for t in (2, 3, 4, 5, 7, 9, 11) for mt in range(MT)] + [acc(mt, 1) for mt in (1, 2, 3)]
    free += [232, 236, 240]
    VB3 = 244; VONES = 248; VM = 252
    VNEG = 231
    bias = [VB, VB + 4, VB + 8, VB3]
    a("v_mov_b32 v%d, 0x%x" % (VNEG, f2u(-1e30)))
    for gq in range(4):
        a("s_lshl_b32 s%d, s%d, 2" % (t0, sI))
        a("s_add_u32 s%d, s%d, s%d" % (t0, t0, sW))
        a("s_cmp_lt_u32 s%d, %d" % (t0, 4 - gq))
        a("s_cselect_b32 s%d, 0x%x, 0" % (t0, f2u(-1e30)))
        for e in range(4): a("v_mov_b32 v%d, s%d" % (bias[gq] + e, t0))
    for e in range(4): a("v_mov_b32 v%d, 0x3f803f80" % (VONES + e))

    KS2 = 36; NSL = 20
    def dma2(p, k, part):
        if part == 0:
            a("s_add_u32 m0, s%d, %d" % (sLB, (p % NSL) * 8192 + k * 1024))
        else:
            if p < 28:
                a.vmem("buffer_load_dwordx4 v%d, %s, s%d offen lds" % (V2_DMA + k, s4(R_W2), sB2), ("B2", p))
                if k == 1 and p < 27:
                    a("s_add_u32 s%d, s%d, 65536" % (sB2, sB2))
                    a("s_cmp_ge_u32 s%d, s%d" % (sB2, sBE))
                    a("s_cselect_b32 s%d, %d, 0" % (t2, 896 * 2048))
                    a("s_sub_u32 s%d, s%d, s%d" % (sB2, sB2, t2))
            else:
                a.vmem("buffer_load_dwordx4 v%d, %s, s%d offen lds" % (V2_DMA + k, s4(R_WO), sBO), ("B2", p))
                if k == 1: a("s_add_u32 s%d, s%d, 65536" % (sBO, sBO))
    def dma2_full(p, k):
        dma2(p, k, 0); a("s_nop 0"); dma2(p, k, 1)
    mem = []
    hst = []
    for p in range(3):
        for mt in range(MT):
            def f(p=p, mt=mt):
                a.vmem("buffer_store_dwordx4 %s, v%d, %s, s%d offen offset:%d sc1" % (r4("v", acc(mt, 6 + 2 * p)), V_L16, s4(R_WS), sH + p, mt * 1024), "H")
            hst.append(f)
    for mt in range(MT):
        def f(mt=mt):
            a.vmem("buffer_store_dwordx2 %s, v%d, %s, s%d offen offset:%d sc1" % (r2("v", acc(mt, 12)), V_L16, s4(R_WS), sH + 3, mt * 1024), "H")
        hst.append(f)
    pre = [(p, k) for p in range(NSL) for k in range(2)]

    S_ = {}; P_ = {}; O_ = {}
    def s_mfma(qa, kt):
        q = free.pop(0); S_[(qa, kt)] = q
        a.wait(lg=("k", kt))
        c = r4("v", bias[kt // 4]) if kt < 16 else "0"
        a("%s %s, %s, %s, %s" % (MF, r4("v", q), r4("a", KF + 4 * kt), r4("v", acc(qa, 0)), c))
    def pv_list(qa):
        b0 = qa // 2
        out = []
        for b in range(b0, b0 + 9):
            for z in range(3):
                def f(b=b, z=z):
                    if b == b0: O_[(qa, z)] = free.pop(0)
                    o = r4("v", O_[(qa, z)])
                    if z < 2:
                        a.wait(lg=("v", 2 * b + z)); A = r4("a", VF + (2 * b + z) * 4)
                    else: A = r4("v", VONES)
                    a("%s %s, %s, %s, %s" % (MF, o, A, r4("v", P_[(qa, b)]), "0" if b == b0 else o))
                    if z == 2: free.append(P_[(qa, b)])
                out.append(f)
        return out
    def fin_list(qa):
        o0, o1, sm = O_[(qa, 0)], O_[(qa, 1)], O_[(qa, 2)]
        ops = ["v_rcp_f32 v%d, v%d" % (sm, sm), "s_nop 0"]
        for o in (o0, o1):
            for e in range(4): ops.append("v_mul_f32 v%d, v%d, v%d" % (o + e, o + e, sm))
        ops += pack(o0, o1)
        def f():
            a.vmem("buffer_store_dwordx4 %s, v%d, %s, s%d offen offset:%d sc1" % (r4("v", o0), V_L16, s4(R_WS), sO, qa * 1024), "O")
            free.extend([o1, sm]); late_free.append(o0)
        ops.append(f)
        return ops
    late_free = []
    def soft_list(qa):
        k0, k1 = qa, qa + 16
        ops = []
        f_, l_ = S_[(qa, k0)], S_[(qa, k1)]
        for e in range(4):
            ops.append((1, "v_cndmask_b32 v%d, v%d, v%d, s[%d:%d]" % (f_ + e, f_ + e, l_ + e, sMK + 2 * e, sMK + 2 * e + 1)))
        quads = [S_[(qa, kt)] for kt in range(k0 + 1, k1)] + [f_]
        m0, m1 = VM, VM + 1
        ops.append((1, "v_max_f32 v%d, v%d, v%d" % (m0, quads[0], quads[0] + 1)))
        ops.append((1, "v_max_f32 v%d, v%d, v%d" % (m1, quads[0] + 2, quads[0] + 3)))
        for q in quads[1:]:
            ops.append((1, "v_max3_f32 v%d, v%d, v%d, v%d" % (m0, m0, q, q + 1)))
            ops.append((1, "v_max3_f32 v%d, v%d, v%d, v%d" % (m1, m1, q + 2, q + 3)))
        ops.append((1, "v_max_f32 v%d, v%d, v%d" % (m0, m0, m1)))
        for op in ("v_permlane16_swap_b32", "v_permlane32_swap_b32"):
            ops.append((1, "v_mov_b32 v%d, v%d" % (m1, m0)))
            ops.append((2, "s_nop 1"))
            ops.append((1, "%s v%d, v%d" % (op, m0, m1)))
            ops.append((2, "s_nop 1"))
            ops.append((1, "v_max_f32 v%d, v%d, v%d" % (m0, m0, m1)))
        def subexp(q):
            r = []
            for e2 in range(2):
                r.append((1, "v_pk_add_f32 v[%d:%d], v[%d:%d], v[%d:%d] op_sel_hi:[1,0] neg_lo:[0,1] neg_hi:[0,1]" % (q + 2 * e2, q + 2 * e2 + 1, q + 2 * e2, q + 2 * e2 + 1, m0, m0 + 1)))
            for e in range(4): r.append((2, "v_exp_f32 v%d, v%d" % (q + e, q + e)))
            return r
        ops += subexp(f_)
        ops += subexp(S_[(qa, k0 + 1)])
        for e in range(4):
            ops.append((1, "v_cndmask_b32 v%d, 0, v%d, s[%d:%d]" % (l_ + e, f_ + e, sMK + 2 * e, sMK + 2 * e + 1)))
        for e in range(4):
            ops.append((1, "v_cndmask_b32 v%d, v%d, 0, s[%d:%d]" % (f_ + e, f_ + e, sMK + 2 * e, sMK + 2 * e + 1)))
        done = {k0, k0 + 1, k1}
        b0 = qa // 2
        pend_pack = None
        for b in range(b0, b0 + 9):
            for kt in (2 * b, 2 * b + 1):
                if k0 <= kt <= k1 and kt not in done:
                    ops += subexp(S_[(qa, kt)]); done.add(kt)
            if pend_pack: ops += pend_pack
            lo, hi = S_.get((qa, 2 * b)), S_.get((qa, 2 * b + 1))
            pk = []
            if lo is None:
                d = hi
                pk.append((1, "v_cvt_pk_bf16_f32 v%d, v%d, v%d" % (d + 3, d + 2, d + 3)))
                pk.append((1, "v_cvt_pk_bf16_f32 v%d, v%d, v%d" % (d + 2, d, d + 1)))
                pk.append((1, "v_mov_b32 v%d, 0" % d)); pk.append((1, "v_mov_b32 v%d, 0" % (d + 1)))
            elif hi is None:
                d = lo
                pk += [(1, x) for x in pack(d, None)]
                pk.append((1, "v_mov_b32 v%d, 0" % (d + 2))); pk.append((1, "v_mov_b32 v%d, 0" % (d + 3)))
            else:
                d = lo
                pk += [(1, x) for x in pack(lo, hi)]
                pk.append((0, (lambda hi=hi: free.append(hi))))
            P_[(qa, b)] = d
            pend_pack = pk
        ops.append((1, "s_nop 0"))
        ops += pend_pack
        return ops
    def run(op):
        if isinstance(op, str): a(op)
        else: op()
    for kt in range(17):
        s_mfma(0, kt)
        if kt < 10:
            a.lds("ds_read_b128 %s, v%d offset:%d" % (r4("a", VF + 8 * kt), V_KVW, 32768 + 2 * kt * 1024), ("v", 2 * kt))
            a.lds("ds_read_b128 %s, v%d offset:%d" % (r4("a", VF + 8 * kt + 4), V_KVW, 32768 + (2 * kt + 1) * 1024), ("v", 2 * kt + 1))
        elif pre: dma2_full(*pre.pop(0))
    hst.pop(0)()
    a("s_nop 4")
    HGAP = cfg.get("f_hgap", 50); PGAP = cfg.get("f_pgap", 24)
    kvbar = False
    cost_total = 0; next_h = HGAP; next_p = PGAP // 2
    for qa in range(4):
        stampr("att%d" % qa)
        ops = soft_list(qa)
        tot = sum(c for c, _ in ops)
        pv = pv_list(qa - 1) if qa > 0 else []
        fin = None
        sm = [(qa + 1, kt) for kt in range(qa + 1, qa + 18)] if qa < 3 else []
        c = 0; since = 0
        pv_done_at = None
        for (cost, op) in ops:
            run(op); c += cost; since += cost; cost_total += cost
            if cost == 0: continue
            if isinstance(op, str) and (op.startswith("s_nop") or op.startswith("v_permlane")): continue
            if since >= 2:
                if pv and c >= 3:
                    pv.pop(0)(); since = 0
                    if not pv: pv_done_at = c
                elif sm and c >= tot * 0.45 and len(free) > 0 and since >= 4:
                    s_mfma(*sm.pop(0)); since = 0
            if qa > 0 and fin is None and pv_done_at is not None and c >= pv_done_at + 18:
                fin = fin_list(qa - 1)
                for x in fin: run(x)
            if qa == 0 and not kvbar and c >= 30:
                a.wait(lg=("v", 19)); a("s_barrier"); kvbar = True
            if hst and cost_total >= next_h:
                hst.pop(0)(); next_h += HGAP
            if pre and cost_total >= next_p and (kvbar or pre[0][0] < 12):
                dma2_full(*pre.pop(0)); next_p += PGAP
        assert not pv
        free.extend(late_free); del late_free[:]
        while sm: s_mfma(*sm.pop(0))
        if qa < 3: a("s_nop 7")
    stampr("att4")
    while hst: hst.pop(0)()
    a("s_nop 1")
    pvl = pv_list(3)
    for x, f in enumerate(pvl):
        f()
        if pre and x % 2 == 0: dma2_full(*pre.pop(0))
    while pre: dma2_full(*pre.pop(0))
    a.wait(vm="H")
    a.vmem("buffer_store_dword v%d, v%d, %s, 0 offen offset:32 sc1" % (V_ONE, V_FG, s4(R_WS)), "FH")
    a("s_nop 7")
    for x in fin_list(3): run(x)
    stampr("attend")
    poll_issue("PH")

    NT2 = 8
    DL = cfg.get("f_dl", 8); S2 = KS2 - DL
    RA2 = cfg.get("f_ra2", 14); DB2 = cfg.get("f_db2", 3); RB2 = DB2 + 2
    BR2 = RA2 * 16
    assert BR2 + RB2 * 4 <= 256
    own = set(acc(mt, 6 + 2 * p) for p in range(3) for mt in range(MT))
    busy = own | set(late_free)
    q2 = [q for q in range(0, 208, 4) if q not in busy] + list(late_free)
    acc2 = {}
    for t in range(NT2):
        for mt in range(MT): acc2[(mt, t)] = q2.pop(0)
    VX = [q2.pop(0) for _ in range(4)]
    TT = 212
    R_X = R_WQ; R_OUT = R_W1
    srd(a, R_X, P_X, S * D * 2)
    srd(a, R_OUT, P_OUT, S * D * 2)
    a("v_and_b32 v%d, 15, v%d" % (TT, L))
    a("v_lshlrev_b32 v%d, 11, v%d" % (V_XO, TT))
    a("v_bfe_u32 v%d, v%d, 4, 1" % (TT, L))
    a("v_lshl_add_u32 v%d, v%d, 5, v%d" % (V_XO, TT, V_XO))
    a("v_lshrrev_b32 v%d, 5, v%d" % (TT, L))
    a("v_lshl_add_u32 v%d, v%d, 4, v%d" % (V_XO, TT, V_XO))
    a("v_lshrrev_b32 v%d, 2, v%d" % (TT, L))
    a("v_and_b32 v%d, 7, v%d" % (TT + 2, TT))
    a("v_lshlrev_b32 v%d, 8, v%d" % (TT, TT))
    a("v_and_b32 v%d, 3, v%d" % (TT + 1, L))
    a("v_lshl_add_u32 v%d, v%d, 3, v%d" % (TT, TT + 1, TT))
    a("v_lshl_add_u32 v%d, v%d, 5, v%d" % (V2_RD, TT + 2, TT))
    a("s_lshl_b32 s%d, s%d, 6" % (t0, sQ))
    a("s_xor_b32 s%d, s%d, 192" % (t0, t0))
    a("v_xor_b32 v%d, s%d, v%d" % (V2_RD, t0, V2_RD))
    for t in range(1, 8): a("v_xor_b32 v%d, %d, v%d" % (V2_RD + t, t * 32, V2_RD))
    for st_ in (1, 2):
        for t in range(8): a("v_add_u32 v%d, 0x%x, v%d" % (V2_RD + 8 * st_ + t, st_ * 0x10000, V2_RD + t))
    sSX = [sKV, sKV2, sKP]; sSF = [sKP2, sFK, sH]; sRX = sH + 1
    for lam in range(3):
        a("s_xor_b32 s%d, s2, %d" % (t0, (lam ^ 3) << 1))
        a("s_lshl_b32 s%d, s%d, 2" % (t0, t0))
        a("s_add_u32 s%d, s%d, s%d" % (t0, t0, sW))
        a("s_mul_i32 s%d, s%d, 12288" % (sSX[lam], t0))
        a("s_add_u32 s%d, s%d, 0x%x" % (sSX[lam], sSX[lam], WS_XC + lam * 4096))
        a("s_lshl_b32 s%d, s%d, 7" % (sSF[lam], t0))
        a("s_add_u32 s%d, s%d, 0x%x" % (sSF[lam], sSF[lam], WS_FL + lam * 4))
    a("s_lshl_b32 s%d, s2, 2" % t0)
    a("s_add_u32 s%d, s%d, s%d" % (t0, t0, sW))
    a("s_mul_i32 s%d, s%d, 12288" % (sRX, t0))
    a("s_add_u32 s%d, s%d, 0x%x" % (sRX, sRX, WS_XC))

    def aload2(p, mt):
        a.vmem("buffer_load_dwordx4 %s, v%d, %s, s%d offen offset:%d sc1" % (r4("a", ((p - 3) % RA2) * 16 + mt * 4), V_L16, s4(R_WS), sA, mt * 1024), ("A2", p))
        if mt == MT - 1:
            if p == 27: a("s_mov_b32 s%d, s%d" % (sA, sAE))
            else:
                a("s_add_u32 s%d, s%d, 4096" % (sA, sA))
                if p < 27:
                    a("s_cmp_ge_u32 s%d, s%d" % (sA, sAE))
                    a("s_cselect_b32 s%d, %d, 0" % (t3, 28 * 4096))
                    a("s_sub_u32 s%d, s%d, s%d" % (sA, sA, t3))
    units = [(p, t) for p in range(S2) for t in range(NT2)]
    for lam in range(4):
        units += [(p, t) for p in range(S2, KS2) for t in (2 * lam, 2 * lam + 1)]
    NU = len(units)
    last_unit = {}
    for u, (p, t) in enumerate(units): last_unit[p] = u
    stt = dict(ready=-1, free=set(), waited=-1, issued=-1, hok=False, ook=False)
    ordA = [("A2", p, mt) for p in range(3, KS2) for mt in range(MT)]
    ordB = [("B2", p, k) for p in range(NSL, KS2) for k in range(2)]
    def barrier2():
        a("s_barrier")
        for p, lu in last_unit.items():
            if lu <= stt["waited"]: stt["free"].add(p)
    def can2(op):
        if op[0] == "B2": return (op[1] - NSL) in stt["free"]
        if not stt["hok"] or (op[1] >= 28 and not stt["ook"]): return False
        return op[1] - 3 < RA2 or last_unit[op[1] - RA2] <= stt["issued"]
    def issue2(op):
        if op[0] == "A2": aload2(op[1], op[2])
        else: dma2_full(op[1], op[2])
    def flush2(q, tag):
        while any(o[:2] == tag for o in q):
            op = q.pop(0); assert can2(op), (op, stt); issue2(op)
    def bread2(u, j2):
        p, t = units[u]
        sl = p % NSL
        a.lds("ds_read_b64_tr_b16 %s, v%d offset:%d" % (r2("a", BR2 + (u % RB2) * 4 + j2 * 2), V2_RD + 8 * (sl // 8) + t, (sl % 8) * 8192 + j2 * 4096), ("b2", u))
    def need2(u):
        p = units[u][0]
        if p > stt["ready"]:
            flush2(ordB, ("B2", p))
            top = p
            grp = cfg.get("f_bgrp", 4)
            issuedB = [x for x in range(p, min(p + grp, KS2)) if not any(o[1] == x for o in ordB)]
            top = max(issuedB)
            if p == 0: top = NSL - 1
            a.wait(vm=("B2", top)); barrier2(); stt["ready"] = top
    need2(0)
    for u in range(DB2):
        bread2(u, 0); bread2(u, 1)
    a.wait(vm="PH")
    a.vmem("buffer_store_dword v%d, v%d, %s, 0 offen offset:64 sc1" % (V_ONE, V_FG, s4(R_WS)), "FO")
    stampr("g2beg")
    UH = cfg.get("f_uh", 0)
    UOP = cfg.get("f_uop", 80); UOC = UOP + 12
    seenA = {0, 1, 2}
    xdone = False
    rq = sorted(own)
    for u in range(NU):
        p, t = units[u]
        un = u + DB2
        if u == UH:
            spin(0xff00); stt["hok"] = True
            stampr("g2h")
        if u < S2 * NT2 and t == 1: stampr("g2p%d" % p)
        if u == S2 * NT2: stampr("g2tail")
        if u == UOP: poll_issue("PO")
        if u == UOC:
            a.wait(vm="PO"); spin(0xff0000); stt["ook"] = True
        if un < NU: need2(un)
        if u < S2 * NT2 and t == 2 and p % 4 == 0 and p > 0 and p - 4 + NSL < KS2: barrier2()
        if p not in seenA:
            flush2(ordA, ("A2", p)); seenA.add(p)
            a.wait(vm=("A2", p), lg=("b2", u))
        else: a.wait(lg=("b2", u))
        stt["waited"] = u
        bf = r4("a", BR2 + (u % RB2) * 4)
        nxt = None
        cand = [q for q in (ordA, ordB) if q and can2(q[0])]
        if cand:
            cand.sort(key=lambda q: q[0][1] - (4 if q[0][0] == "B2" else 0))
            nxt = cand[0].pop(0)
        if not ordA and not ordB and not xdone and nxt is None:
            xdone = True
            for mt in range(MT):
                def f(mt=mt):
                    a.vmem("buffer_load_dwordx4 %s, v%d, %s, s%d offen" % (r4("v", VX[mt]), V_XO, s4(R_X), sXO), "X")
                    a("s_add_u32 s%d, s%d, %d" % (sXO, sXO, 32768 if mt < 3 else -3 * 32768))
                side.append(f)
        for mt in range(MT):
            mz = mt if u % 2 == 0 else MT - 1 - mt
            af = r4("v", acc(mz, 6 + 2 * p)) if p < 3 else r4("a", ((p - 3) % RA2) * 16 + mz * 4)
            c = r4("v", acc2[(mz, t)])
            a("%s %s, %s, %s, %s" % (MF, c, bf, af, "0" if p == 0 else c))
            if mt < 2 and un < NU: bread2(un, mt)
            if mt == 2 and nxt and nxt[0] == "B2": dma2(nxt[1], nxt[2], 0)
            if mt == 3 and nxt:
                if nxt[0] == "A2": aload2(nxt[1], nxt[2])
                else: dma2(nxt[1], nxt[2], 1)
            for _ in range(1 if mt < 2 else 2):
                if side:
                    f = side.pop(0)
                    if f is None: pass
                    elif isinstance(f, str): a(f)
                    else: f()
        stt["issued"] = u
        if u >= S2 * NT2 and (u - S2 * NT2) % (2 * DL) == 2 * DL - 1:
            lam = (u - S2 * NT2) // (2 * DL)
            if lam < 3:
                side += [None] * 6
                for mt in range(MT):
                    side += pack(acc2[(mt, 2 * lam)], acc2[(mt, 2 * lam + 1)])
                    def f(mt=mt, lam=lam):
                        a.vmem("buffer_store_dwordx4 %s, v%d, %s, s%d offen offset:%d sc1" % (r4("v", acc2[(mt, 2 * lam)]), V_L16, s4(R_WS), sSX[lam], mt * 1024), ("S", lam))
                    side.append(f)
                if lam == 2:
                    def f():
                        a.wait(vm=("S", 0))
                        a.vmem("buffer_store_dword v%d, v%d, %s, s%d offen sc1" % (V_ONE, V_FL0, s4(R_WS), sSF[0]), ("F", 0))
                    side.append(f)
    for f in side:
        if f is None: pass
        elif isinstance(f, str): a(f)
        else: f()
    assert not ordA and not ordB and xdone
    stampr("g2end")
    for lam in (1, 2):
        a.wait(vm=("S", lam))
        a.vmem("buffer_store_dword v%d, v%d, %s, s%d offen sc1" % (V_ONE, V_FL0, s4(R_WS), sSF[lam]), ("F", lam))
        if lam == 1: poll_issue("PX")
    stampr("x1")
    a.wait(vm="PX")
    for lam in range(3):
        spin(1 << lam)
        stampr("x%d" % (2 + lam))
        for mt in range(MT):
            a("buffer_load_dwordx4 %s, v%d, %s, s%d offen offset:%d sc1" % (r4("v", rq[4 * lam + mt]), V_L16, s4(R_WS), sRX, mt * 1024))
        if lam < 2: a("s_add_u32 s%d, s%d, 4096" % (sRX, sRX))
    for lam in range(3):
        for mt in range(MT):
            a("s_waitcnt vmcnt(%d)" % (11 - 4 * lam - mt + (mt if lam == 2 else 0)))
            for hh in range(2):
                for e2 in range(2):
                    pp = rq[4 * lam + mt] + 2 * hh + e2
                    c = acc2[(mt, 6 + hh)] + 2 * e2
                    a("v_lshlrev_b32 v%d, 16, v%d" % (TT, pp))
                    a("v_and_b32 v%d, 0xffff0000, v%d" % (TT + 1, pp))
                    a("v_pk_add_f32 v[%d:%d], v[%d:%d], v[%d:%d]" % (c, c + 1, c, c + 1, TT, TT + 1))
            if lam == 2:
                c0, c1 = acc2[(mt, 6)], acc2[(mt, 7)]
                a("s_nop 1")
                for e in range(4): a("v_permlane16_swap_b32 v%d, v%d" % (c0 + e, c1 + e))
                a("s_nop 1")
                xr = VX[mt]
                for hh, c in enumerate((c0, c1)):
                    for e2 in range(2):
                        xx = xr + 2 * hh + e2
                        a("v_lshlrev_b32 v%d, 16, v%d" % (TT, xx))
                        a("v_and_b32 v%d, 0xffff0000, v%d" % (TT + 1, xx))
                        a("v_pk_add_f32 v[%d:%d], v[%d:%d], v[%d:%d]" % (TT, TT + 1, TT, TT + 1, c + 2 * e2, c + 2 * e2 + 1))
                        a("v_cvt_pk_bf16_f32 v%d, v%d, v%d" % (xx, TT, TT + 1))
                a("buffer_store_dwordx4 %s, v%d, %s, s%d offen" % (r4("v", xr), V_XO, s4(R_OUT), sXO))
                if mt < 3: a("s_add_u32 s%d, s%d, 32768" % (sXO, sXO))
    stampr("x5")
    if ST:
        a("s_waitcnt vmcnt(0)")
        stampr("end")
        a("s_waitcnt lgkmcnt(0)")
        for i in range(8): a("v_mov_b32 v%d, s%d" % (i, STB + 2 * i))
        a("s_lshl_b32 s%d, s2, 2" % t0)
        a("s_add_u32 s%d, s%d, s%d" % (t0, t0, sW))
        a("s_lshl_b32 s%d, s%d, 5" % (t0, t0))
        a("v_mov_b32 v8, 0")
        a("s_nop 4")
        a("buffer_store_dwordx4 v[0:3], v8, %s, s%d offen" % (s4(R_WS), t0))
        a("buffer_store_dwordx4 v[4:7], v8, %s, s%d offen offset:16" % (s4(R_WS), t0))
    a.label("F_end")
    a("s_endpgm")
    kernel_desc(a, name, 256, sgpr=102, accum=256, agpr=256)
    return "; @launch kernel=%s grid=(256,1,1) block=(256,1,1) lds=163840" % name

gen.gen_f = gen_f

if __name__ == "__main__":
    cfg = dict(g1_mt=4)
    out = sys.argv[1]
    kernels = sys.argv[2].split(",")
    for kv in sys.argv[3:]:
        k, v = kv.split("="); cfg[k] = int(v, 0)
    open(out, "w").write(gen.build(cfg, kernels))
```

```python
import sys, math
from asmlib import *

NAME = "parallel_sum__sliding_block__dense_activation_relu__prompt"
S, D, DFF, H = 2048, 1024, 3584, 32
WS_XN = 0x0100000
WS_Q  = 0x0500000
WS_K  = 0x0900000
WS_V  = 0x0D00000
WS_A2 = 0x1100000
A2_BYTES = 128 * 144 * 1024
WS_XC = WS_A2 + A2_BYTES
XC_BYTES = 256 * 4 * 3 * 4096
WS_FL = WS_XC + XC_BYTES
FL_BYTES = 256 * 4 * 128
WS_END = WS_FL + FL_BYTES
QSCALE = (32 ** -0.5) * math.log2(math.e)

import struct
def f2u(f): return struct.unpack("<I", struct.pack("<f", f))[0]

class Prog(Asm):
    def __init__(self):
        super().__init__()
        self.reset()
    def reset(self):
        self.vm = []; self.vm_done = 0
        self.lg = []; self.lg_done = 0
    def vmem(self, text, tag=None):
        self(text); self.vm.append(tag)
    def lds(self, text, tag=None):
        self(text); self.lg.append(tag)
    def _need(self, q, done, tag, cap):
        idx = max(i for i, t in enumerate(q) if t == tag)
        if idx < done: return None, done
        n = len(q) - idx - 1
        n = min(n, cap)
        return n, len(q) - n
    def wait(self, vm=None, lg=None):
        parts = []
        if vm is not None:
            n, self.vm_done = self._need(self.vm, self.vm_done, vm, 63)
            if n is not None: parts.append("vmcnt(%d)" % n)
        if lg is not None:
            n, self.lg_done = self._need(self.lg, self.lg_done, lg, 15)
            if n is not None: parts.append("lgkmcnt(%d)" % n)
        if parts:
            self("s_waitcnt " + " ".join(parts)); return True
        return False
    def throttle(self, n):
        if len(self.vm) - self.vm_done > n:
            self("s_waitcnt vmcnt(%d)" % n); self.vm_done = len(self.vm) - n
            return True
        return False
    def wait_all(self, vm=True, lg=True):
        parts = []
        if vm: parts.append("vmcnt(0)"); self.vm_done = len(self.vm)
        if lg: parts.append("lgkmcnt(0)"); self.lg_done = len(self.lg)
        self("s_waitcnt " + " ".join(parts))

def r4(p, b): return "%s[%d:%d]" % (p, b, b + 3)
def r2(p, b): return "%s[%d:%d]" % (p, b, b + 1)

def srd_off(a, d, base, off, nbytes):
    a("s_add_u32 s%d, s%d, 0x%x" % (d, base, off))
    a("s_addc_u32 s%d, s%d, 0" % (d + 1, base + 1))
    a("s_and_b32 s%d, s%d, 0xffff" % (d + 1, d + 1))
    a("s_mov_b32 s%d, 0x%x" % (d + 2, nbytes))
    a("s_mov_b32 s%d, 0x00020000" % (d + 3))

def stamp(a, cfg, idx, sreg):
    if cfg.get("stamp"):
        a("s_memtime s[%d:%d]" % (sreg, sreg + 1))

def gen_ln(a, cfg):
    MT = cfg["g1_mt"]
    name = "ln_kernel"
    kernel_begin(a, name)
    a.reset()
    for r in (60, 62, 64, 66): stamp(a, cfg, 0, r)
    if cfg.get("stamp"): a("s_memrealtime s[70:71]")
    a("s_cmp_ge_u32 s2, 256")
    a("s_cbranch_scc1 LN_end")
    a("s_load_dwordx2 s[4:5], s[0:1], 0")
    a("s_load_dwordx2 s[6:7], s[0:1], 64")
    a("s_load_dwordx2 s[20:21], s[0:1], 8")
    a("s_load_dwordx2 s[22:23], s[0:1], 32")
    a("v_and_b32 v1, 63, v0")
    a("v_lshrrev_b32 v2, 6, v0")
    a("v_and_b32 v3, 7, v1")
    a("v_lshrrev_b32 v4, 3, v1")
    a("s_lshl_b32 s3, s2, 14")
    a("v_lshlrev_b32 v5, 11, v3")
    a("v_lshl_add_u32 v5, v2, 9, v5")
    a("v_lshl_add_u32 v5, v4, 4, v5")
    a("s_waitcnt lgkmcnt(0)")
    srd(a, 8, 4, S * D * 2)
    srd_off(a, 12, 6, WS_XN, S * D * 2)
    for i in range(4):
        a("buffer_load_dwordx4 %s, v5, s[8:11], s3 offen offset:%d" % (r4("v", 8 + 4 * i), i * 128))
    srd_off(a, 36, 6, WS_FL, FL_BYTES)
    a("s_lshl_b32 s16, s2, 9")
    a("v_lshlrev_b32 v70, 2, v0")
    a("v_lshrrev_b32 v71, 7, v0")
    a("v_lshl_add_u32 v70, v71, 30, v70")
    a("v_mov_b32 v71, 0")
    a("buffer_store_dword v71, v70, s[36:39], s16 offen")
    CPF = cfg.get("ln_cpf", 1)
    if CPF:
        a("s_getpc_b64 s[40:41]")
        a.label("LN_pc")
        a("s_mov_b32 s42, CODE_END - LN_pc")
        a("s_and_b32 s41, s41, 0xffff")
        a("s_mov_b32 s43, 0x00020000")
        a("s_lshr_b32 s16, s2, 3")
        a("s_lshl_b32 s16, s16, 12")
        a("v_lshlrev_b32 v70, 7, v0")
        a("v_lshrrev_b32 v71, 5, v0")
        a("v_lshl_add_u32 v70, v71, 24, v70")
        a("buffer_load_dword v76, v70, s[40:43], s16 offen")
    LPF = cfg.get("ln_pf", 2)
    if LPF:
        srd(a, 24, 20, D * 3 * D * 2)
        srd(a, 28, 22, D * DFF * 2)
        a("s_lshr_b32 s16, s2, 3")
        a("s_mul_i32 s16, s16, %d" % (4 * LPF))
        a("s_bfe_u32 s17, s2, 0x20001")
        a("s_lshl_b32 s18, s17, 9")
        a("s_mul_i32 s19, s17, 1792")
        a("v_lshrrev_b32 v70, 4, v1")
        a("v_cmp_le_u32 s[32:33], %d, v70" % LPF)
        a("v_mad_u32_u24 v70, v2, %d, v70" % LPF)
        a("v_add_u32 v70, s16, v70")
        a("v_and_b32 v71, 15, v1")
        a("v_cmp_le_u32 vcc, 12, v71")
        a("s_or_b64 s[34:35], vcc, s[32:33]")
        a("v_cmp_le_u32 vcc, 14, v71")
        a("s_or_b64 s[32:33], vcc, s[32:33]")
        a("v_mul_u32_u24 v72, 7168, v70")
        a("v_lshl_add_u32 v72, v71, 7, v72")
        a("v_mul_u32_u24 v70, 6144, v70")
        a("v_lshrrev_b32 v73, 2, v71")
        a("v_lshl_add_u32 v70, v73, 11, v70")
        a("v_and_b32 v73, 3, v71")
        a("v_lshl_add_u32 v70, v73, 7, v70")
        a("v_bfrev_b32 v73, 1")
        a("v_cndmask_b32 v70, v70, v73, s[34:35]")
        a("v_cndmask_b32 v72, v72, v73, s[32:33]")
        a("buffer_load_dword v74, v70, s[24:27], s18 offen")
        a("buffer_load_dword v75, v72, s[28:31], s19 offen")
    LW2 = cfg.get("ln_w2", 0)
    if LW2:
        a("s_load_dwordx2 s[44:45], s[0:1], 40")
        a("s_load_dwordx2 s[48:49], s[0:1], 16")
        a("v_lshlrev_b32 v77, 7, v0")
        a("v_cmp_le_u32 vcc, 224, v0")
        a("v_bfrev_b32 v73, 1")
        a("s_mul_i32 s52, s2, %d" % (224 * 128))
        a("v_cndmask_b32 v78, v77, v73, vcc")
        a("v_cmp_le_u32 vcc, 64, v0")
        a("s_lshl_b32 s53, s2, 13")
        a("s_waitcnt lgkmcnt(0)")
        a("v_cndmask_b32 v77, v77, v73, vcc")
        srd(a, 44, 44, DFF * D * 2)
        srd(a, 48, 48, D * D * 2)
        a("buffer_load_dword v79, v78, s[44:47], s52 offen")
        a("buffer_load_dword v79, v77, s[48:51], s53 offen")
    lmt = int(math.log2(MT))
    a("s_lshr_b32 s16, s2, 1")
    a("s_lshr_b32 s17, s16, %d" % lmt)
    a("s_lshl_b32 s17, s17, %d" % (15 + lmt))
    a("s_and_b32 s18, s16, %d" % (MT - 1))
    a("s_lshl_b32 s18, s18, 10")
    a("s_add_u32 s17, s17, s18")
    a("s_and_b32 s18, s2, 1")
    a("s_lshl_b32 s18, s18, 7")
    a("s_add_u32 s17, s17, s18")
    a("v_lshrrev_b32 v6, 2, v4")
    a("v_lshl_add_u32 v6, v2, 3, v6")
    a("v_lshlrev_b32 v6, %d, v6" % (10 + lmt))
    a("v_and_b32 v7, 3, v4")
    a("v_lshl_add_u32 v6, v7, 8, v6")
    a("v_lshl_add_u32 v6, v3, 4, v6")
    a("v_lshl_add_u32 v7, v2, 3, v3")
    a("v_lshlrev_b32 v7, 3, v7")
    a("v_lshlrev_b32 v60, 3, v3")
    a("s_waitcnt vmcnt(%d)" % (1 + (2 if LPF else 0) + (1 if CPF else 0) + (2 if LW2 else 0)))
    for i in range(16):
        a("v_lshlrev_b32 v%d, 16, v%d" % (24 + 2 * i, 8 + i))
        a("v_and_b32 v%d, 0xffff0000, v%d" % (25 + 2 * i, 8 + i))
    a("v_add_f32 v56, v24, v25")
    a("v_add_f32 v57, v26, v27")
    for i in range(4, 32, 2):
        a("v_add_f32 v56, v56, v%d" % (24 + i))
        a("v_add_f32 v57, v57, v%d" % (25 + i))
    a("v_add_f32 v56, v56, v57")
    def xlane_sum(r, t):
        a("s_nop 1")
        a("v_add_f32_dpp v%d, v%d, v%d row_ror:8 row_mask:0xf bank_mask:0xf" % (r, r, r))
        a("v_mov_b32 v%d, v%d" % (t, r))
        a("s_nop 1")
        a("v_permlane16_swap_b32 v%d, v%d" % (r, t))
        a("s_nop 1")
        a("v_add_f32 v%d, v%d, v%d" % (r, r, t))
        a("v_mov_b32 v%d, v%d" % (t, r))
        a("s_nop 1")
        a("v_permlane32_swap_b32 v%d, v%d" % (r, t))
        a("s_nop 1")
        a("v_add_f32 v%d, v%d, v%d" % (r, r, t))
    xlane_sum(56, 57)
    a("v_mul_f32 v56, 0x%x, v56" % f2u(1.0 / 256))
    a("v_mov_b32 v57, 0")
    a("v_mov_b32 v58, 0")
    for i in range(0, 32, 2):
        a("v_sub_f32 v59, v%d, v56" % (24 + i))
        a("v_sub_f32 v61, v%d, v56" % (25 + i))
        a("v_fmac_f32 v57, v59, v59")
        a("v_fmac_f32 v58, v61, v61")
    a("v_add_f32 v57, v57, v58")
    xlane_sum(57, 58)
    a("ds_write_b64 v7, v[56:57]")
    a("s_waitcnt lgkmcnt(0)")
    a("s_barrier")
    a("ds_read_b64 v[62:63], v60")
    a("ds_read_b64 v[64:65], v60 offset:64")
    a("ds_read_b64 v[66:67], v60 offset:128")
    a("ds_read_b64 v[68:69], v60 offset:192")
    a("s_waitcnt lgkmcnt(0)")
    a("v_add_f32 v56, v62, v64")
    a("v_add_f32 v57, v66, v68")
    a("v_add_f32 v56, v56, v57")
    a("v_mul_f32 v56, 0.25, v56") if False else a("v_mul_f32 v56, 0x3e800000, v56")
    a("v_add_f32 v57, v63, v65")
    a("v_add_f32 v58, v67, v69")
    a("v_add_f32 v57, v57, v58")
    a("v_mov_b32 v58, 0")
    for r in (62, 64, 66, 68):
        a("v_sub_f32 v59, v%d, v56" % r)
        a("v_fmac_f32 v58, v59, v59")
    a("v_mov_b32 v59, 0x43800000")
    a("v_fmac_f32 v57, v58, v59")
    a("v_mul_f32 v57, 0x%x, v57" % f2u(1.0 / 1024))
    a("v_cvt_pk_bf16_f32 v58, v56, v57")
    a("v_lshlrev_b32 v56, 16, v58")
    a("v_and_b32 v57, 0xffff0000, v58")
    a("v_add_f32 v57, 0x%x, v57" % f2u(1e-5))
    a("v_cvt_pk_bf16_f32 v57, v57, v57")
    a("v_and_b32 v57, 0xffff0000, v57")
    a("v_sqrt_f32 v57, v57")
    a("s_nop 0")
    a("v_cvt_pk_bf16_f32 v57, v57, v57")
    a("v_and_b32 v57, 0xffff0000, v57")
    a("v_rcp_f32 v57, v57")
    for i in range(0, 32, 2):
        a("v_sub_f32 v%d, v%d, v56" % (24 + i, 24 + i))
        a("v_sub_f32 v%d, v%d, v56" % (25 + i, 25 + i))
        a("v_cvt_pk_bf16_f32 v58, v%d, v%d" % (24 + i, 25 + i))
        a("v_lshlrev_b32 v59, 16, v58")
        a("v_and_b32 v58, 0xffff0000, v58")
        a("v_mul_f32 v59, v59, v57")
        a("v_mul_f32 v58, v58, v57")
        a("v_cvt_pk_bf16_f32 v%d, v59, v58" % (8 + i // 2))
    for i in range(4):
        a("buffer_store_dwordx4 %s, v6, s[12:15], s17 offen" % r4("v", 8 + 4 * i))
        if i < 3: a("s_add_u32 s17, s17, %d" % (2 * MT * 1024))
    if cfg.get("stamp"):
        srd_off(a, 12, 6, 0, WS_END)
        a("v_readfirstlane_b32 s24, v2")
    stamp_out(a, cfg, 4, 60, 24, 12, 0x70000, 4)
    a.label("LN_end")
    a("s_endpgm")
    kernel_desc(a, name, 80, sgpr=80)
    return "; @launch kernel=%s grid=(256,1,1) block=(256,1,1) lds=256" % name

def gen_g1(a, cfg):
    name = "g1_kernel"
    NW, MT, NT = 4, 4, 13
    assert cfg["g1_mt"] == MT
    NS = cfg.get("g1_stages", 5)
    LA = cfg.get("g1_la", 6)
    RA = LA + 1
    DB = cfg.get("g1_db", 3)
    RB = DB + 2
    REG = 7168; STAGE = 4 * REG
    KS = 32
    ACC = 0
    def acc(mt, t): return ACC + (t * MT + mt) * 4
    V_L16 = 208; V_QKV = 209; V_W1 = 210; V_LEFT = 211
    V_RD = 212
    V_T = 224
    A_PD = 255
    AR = 0; BR = RA * 16
    assert BR + RB * 4 <= 256
    kernel_begin(a, name)
    a.reset()
    stamp(a, cfg, 0, 60)
    if cfg.get("stamp"): a("s_memrealtime s[70:71]")
    a("s_cmp_ge_u32 s2, 256")
    a("s_cbranch_scc1 G1_end")
    a("s_load_dwordx2 s[4:5], s[0:1], 8")
    a("s_load_dwordx2 s[6:7], s[0:1], 32")
    a("s_load_dwordx2 s[8:9], s[0:1], 64")
    a("s_load_dwordx2 s[52:53], s[0:1], 40")
    a("s_load_dwordx2 s[54:55], s[0:1], 16")
    T = V_T
    a("v_and_b32 v%d, 63, v0" % T)
    a("v_lshrrev_b32 v%d, 6, v0" % (T + 1))
    a("v_lshlrev_b32 v%d, 4, v%d" % (V_L16, T))
    a("v_readfirstlane_b32 s24, v%d" % (T + 1))
    a("s_and_b32 s25, s2, 1")
    a("s_lshl_b32 s25, s25, 2")
    a("s_bfe_u32 s26, s2, 0x20003")
    a("s_add_u32 s25, s25, s26")
    a("s_bfe_u32 s26, s2, 0x20001")
    a("s_lshl_b32 s26, s26, 3")
    a("s_lshr_b32 s27, s2, 5")
    a("s_add_u32 s26, s26, s27")
    a("s_and_b32 s27, s26, 1")
    a("v_lshrrev_b32 v%d, 2, v%d" % (T + 2, T))
    a("v_lshl_add_u32 v%d, v%d, 4, v%d" % (T + 2, T + 1, T + 2))
    a("v_lshrrev_b32 v%d, 4, v%d" % (T + 3, T))
    a("v_and_b32 v%d, 2, v%d" % (T + 3, T + 3))
    a("v_and_b32 v%d, 3, v%d" % (T + 4, T))
    a("v_xor_b32 v%d, v%d, v%d" % (T + 3, T + 3, T + 4))
    a("v_lshlrev_b32 v%d, 4, v%d" % (T + 3, T + 3))
    a("v_mul_u32_u24 v%d, 6144, v%d" % (V_QKV, T + 2))
    a("v_add_u32 v%d, v%d, v%d" % (V_QKV, V_QKV, T + 3))
    a("v_mul_u32_u24 v%d, 7168, v%d" % (V_W1, T + 2))
    a("v_add_u32 v%d, v%d, v%d" % (V_W1, V_W1, T + 3))
    a("v_bfe_u32 v%d, v%d, 3, 1" % (T + 2, T))
    a("v_lshlrev_b32 v%d, 3, v%d" % (T + 2, T + 2))
    a("v_bfe_u32 v%d, v%d, 4, 1" % (T + 3, T))
    a("v_lshl_add_u32 v%d, v%d, 2, v%d" % (T + 2, T + 3, T + 2))
    a("v_bfe_u32 v%d, v%d, 1, 2" % (T + 3, T))
    a("v_add_u32 v%d, v%d, v%d" % (T + 2, T + 2, T + 3))
    a("v_lshl_add_u32 v%d, v%d, 4, v%d" % (T + 2, T + 1, T + 2))
    a("v_mul_u32_u24 v%d, 7168, v%d" % (V_LEFT, T + 2))
    a("v_and_b32 v%d, 1, v%d" % (T + 3, T))
    a("v_lshl_add_u32 v%d, v%d, 4, v%d" % (V_LEFT, T + 3, V_LEFT))
    a("v_lshrrev_b32 v%d, 5, v%d" % (T + 3, T))
    a("v_lshl_add_u32 v%d, v%d, 30, v%d" % (V_LEFT, T + 3, V_LEFT))
    a("s_lshl_b32 s30, s26, 6")
    a("s_add_u32 s31, s30, 4096")
    a("s_mul_i32 s33, s26, 224")
    a("s_lshl_b32 s28, s27, 5")
    a("s_add_u32 s32, s33, s28")
    a("s_xor_b32 s28, s27, 1")
    a("s_mul_i32 s28, s28, 192")
    a("s_add_u32 s33, s33, s28")
    a("s_mul_i32 s34, s24, %d" % REG)
    a("s_lshl_b32 s35, s25, 2")
    a("s_add_u32 s35, s35, s24")
    a("s_lshl_b32 s35, s35, 17")
    a("s_waitcnt lgkmcnt(0)")
    srd(a, 12, 4, D * 3 * D * 2)
    srd(a, 16, 6, D * DFF * 2)
    srd_off(a, 20, 8, WS_XN, S * D * 2)
    PF = cfg.get("g1_pf", 1)
    ST0 = cfg.get("g1_pfst", 4)
    V_P0, V_P1, V_P2 = 221, 222, 223
    if PF:
        srd(a, 44, 52, DFF * D * 2)
        srd(a, 48, 54, D * D * 2)
        a("s_bfe_u32 s56, s2, 0x30003")
        a("s_lshr_b32 s57, s2, 6")
        a("s_lshl_b32 s57, s57, 3")
        a("s_and_b32 s58, s2, 7")
        a("s_add_u32 s57, s57, s58")
        a("s_lshl_b32 s57, s57, 2")
        a("s_add_u32 s57, s57, s24")
        a("v_lshlrev_b32 v%d, 7, v%d" % (T + 5, T))
        a("v_bfrev_b32 v%d, 1" % (T + 6))
        a("s_mul_i32 s58, s57, 3072")
        a("v_add_u32 v%d, s58, v%d" % (V_P0, T + 5))
        a("v_cmp_le_u32 vcc, 24, v%d" % T)
        a("s_mul_i32 s58, s57, 3584")
        a("v_add_u32 v%d, s58, v%d" % (V_P1, T + 5))
        a("v_cndmask_b32 v%d, v%d, v%d, vcc" % (V_P0, V_P0, T + 6))
        a("v_cmp_le_u32 vcc, 28, v%d" % T)
        a("s_lshl_b32 s58, s57, 13")
        a("v_add_u32 v%d, s58, v%d" % (V_P2, T + 5))
        a("v_cndmask_b32 v%d, v%d, v%d, vcc" % (V_P1, V_P1, T + 6))
    NSLOT1 = 16 - ST0
    def touch(n):
        lab = a.newlabel("G1_pf")
        a("s_cmp_lg_u32 s56, %d" % (n & 7))
        a("s_cbranch_scc1 %s" % lab)
        if n < NSLOT1:
            a("s_mov_b32 s58, %d" % ((ST0 + n) * 64 * 6144))
            a("s_mov_b32 s59, %d" % ((ST0 + n) * 64 * 7168))
            a("buffer_load_dword a%d, v%d, s[12:15], s58 offen" % (A_PD, V_P0))
            a("buffer_load_dword a%d, v%d, s[16:19], s59 offen" % (A_PD - 1, V_P1))
        else:
            m = n - NSLOT1
            a("s_mov_b32 s58, %d" % ((m if m < 7 else m - 7) << 20))
            a("buffer_load_dword a%d, v%d, s[%d:%d], s58 offen" % ((A_PD, V_P2) + ((44, 47) if m < 7 else (48, 51))))
        a.label(lab)

    def dma_ops(g):
        slot = g % NS
        ops = []
        def one(p, vreg, srdb, soff, imm):
            ops.append((["s_add_u32 m0, s34, %d" % (slot * STAGE + p * 1024 - imm + (1 << 32 if slot * STAGE + p * 1024 - imm < 0 else 0))],
                        "buffer_load_dwordx4 v%d, s[%d:%d], s%d offen offset:%d lds" % (vreg, srdb, srdb + 3, soff, imm)))
        one(0, V_QKV, 12, 30, 0)
        one(2, V_QKV, 12, 30, 2048)
        one(1, V_QKV, 12, 31, 0)
        one(3, V_W1, 16, 32, 0)
        one(4, V_W1, 16, 32, 64)
        one(5, V_W1, 16, 32, 128)
        one(6, V_LEFT, 16, 33, 0)
        post = ["s_add_u32 s30, s30, %d" % (64 * 6144), "s_add_u32 s31, s31, %d" % (64 * 6144),
                "s_add_u32 s32, s32, %d" % (64 * 7168), "s_add_u32 s33, s33, %d" % (64 * 7168)]
        return ops, post
    PAIRPOS = [0, 2, 1, 3, 4, 5]
    def a_load(s, mt):
        a.vmem("buffer_load_dwordx4 %s, v%d, s[20:23], s35 offen offset:%d" % (r4("a", AR + (s % RA) * 16 + mt * 4), V_L16, mt * 1024), ("A", s))
        if mt == MT - 1: a("s_add_u32 s35, s35, 4096")
    def emit_dma(g, k):
        ops, post = dma_ops(g)
        pre, txt = ops[k]
        for x in pre: a(x)
        a("s_nop 0")
        a.vmem(txt, ("B", g))
        if k == 6:
            for x in post: a(x)
    pend = []
    nA = 0
    for g in range(NS - 1):
        for k in range(7): pend.append(("B", g, k))
        for _ in range(2):
            if nA < LA:
                for mt in range(MT): pend.append(("A", nA, mt))
                nA += 1
    while nA < LA:
        for mt in range(MT): pend.append(("A", nA, mt))
        nA += 1
    PRO = cfg.get("g1_pro", 15)
    for _ in range(PRO):
        op = pend.pop(0)
        if op[0] == "A": a_load(op[1], op[2])
        else: emit_dma(op[1], op[2])
    a("v_lshrrev_b32 v%d, 5, v%d" % (T + 2, T))
    a("v_mul_u32_u24 v%d, %d, v%d" % (T + 2, REG, T + 2))
    a("v_and_b32 v%d, 3, v%d" % (T + 3, T))
    a("v_lshl_add_u32 v%d, v%d, 3, v%d" % (T + 2, T + 3, T + 2))
    a("v_bfe_u32 v%d, v%d, 2, 2" % (T + 3, T))
    a("v_bfe_u32 v%d, v%d, 4, 1" % (T + 4, T))
    a("v_lshl_add_u32 v%d, v%d, 6, v%d" % (V_RD, T + 3, T + 2))
    a("v_lshl_add_u32 v%d, v%d, 9, v%d" % (V_RD, T + 4, V_RD))
    a("v_lshl_add_u32 v%d, v%d, 5, v%d" % (V_RD, T + 4, V_RD))
    a("v_xor_b32 v%d, 32, v%d" % (V_RD + 1, V_RD))
    a("v_lshl_add_u32 v%d, v%d, 5, v%d" % (V_RD + 2, T + 3, T + 2))
    a("v_lshl_add_u32 v%d, v%d, 7, v%d" % (V_RD + 2, T + 4, V_RD + 2))
    for st in (1, 2):
        for x in range(3):
            a("v_add_u32 v%d, %d, v%d" % (V_RD + 3 * st + x, st * 2 * STAGE, V_RD + x))
    stamp(a, cfg, 1, 62)

    def b_read(u, j2):
        s, t = divmod(u, NT)
        g = s // 2; slot = g % NS
        st = slot // 2
        off = (slot % 2) * STAGE + (s % 2) * 2 * REG + j2 * 256
        if t < 12:
            off += PAIRPOS[t // 2] * 1024; vr = V_RD + 3 * st + (t % 2)
        else:
            off += 6144; vr = V_RD + 3 * st + 2
        a.lds("ds_read_b64_tr_b16 %s, v%d offset:%d" % (r2("a", BR + (u % RB) * 4 + j2 * 2), vr, off), ("b", u))
    def barrier_for(g):
        a.wait(vm=("B", g))
        a("s_barrier")
    NU = KS * NT
    barrier_for(0)
    stamp(a, cfg, 2, 64)
    for u in range(DB):
        b_read(u, 0); b_read(u, 1)
    for u in range(NU):
        s, t = divmod(u, NT)
        if t == 0 and s + LA < KS:
            for mt in range(MT): pend.append(("A", s + LA, mt))
        un = u + DB
        if un < NU and un % (2 * NT) == 0:
            g = un // (2 * NT)
            barrier_for(g)
            if g + NS - 2 < KS // 2:
                for k in range(7): pend.append(("B", g + NS - 2, k))
        if PF and t == 5 and s < NSLOT1 + 9: touch(s)
        a.wait(vm=("A", s) if t == 0 else None, lg=("b", u))
        bf = r4("a", BR + (u % RB) * 4)
        nxt = pend.pop(0) if (pend and (u % 2 == 0 or len(pend) > 6)) else None
        for mt in range(MT):
            mz = mt if t % 2 == 0 else MT - 1 - mt
            af = r4("a", AR + (s % RA) * 16 + mz * 4)
            c = r4("v", acc(mz, t))
            src = "0" if s == 0 else c
            if t in (4, 5): a("v_mfma_f32_16x16x32_bf16 %s, %s, %s, %s" % (c, af, bf, src))
            else:           a("v_mfma_f32_16x16x32_bf16 %s, %s, %s, %s" % (c, bf, af, src))
            if mt < 2 and un < NU: b_read(un, mt)
            if mt == 2 and nxt and nxt[0] == "B":
                ops, post = dma_ops(nxt[1])
                for x in ops[nxt[2]][0]: a(x)
            if mt == 3 and nxt:
                if nxt[0] == "A": a_load(nxt[1], nxt[2])
                else:
                    ops, post = dma_ops(nxt[1])
                    a.vmem(ops[nxt[2]][1], ("B", nxt[1]))
                    if nxt[2] == 6:
                        for x in post: a(x)
    assert not pend
    stamp(a, cfg, 3, 66)
    srd_off(a, 12, 8, 0, WS_END)
    a("s_lshl_b32 s36, s26, 7")
    a("s_lshl_b32 s37, s25, 4")
    a("s_add_u32 s36, s36, s37")
    a("s_lshl_b32 s37, s24, 2")
    a("s_add_u32 s36, s36, s37")
    a("s_lshl_b32 s36, s36, 10")
    a("s_add_u32 s37, s36, 0x%x" % WS_K)
    a("s_add_u32 s38, s36, 0x%x" % WS_V)
    a("s_add_u32 s36, s36, 0x%x" % WS_Q)
    a("s_lshl_b32 s39, s25, 2")
    a("s_add_u32 s39, s39, s24")
    a("s_mul_i32 s39, s39, %d" % (144 * 4096))
    a("s_add_u32 s39, s39, 0x%x" % WS_A2)
    a("s_mul_i32 s40, s26, 7")
    a("s_add_u32 s41, s40, s27")
    a("s_lshl_b32 s41, s41, 11")
    a("s_add_u32 s41, s41, s39")
    a("s_lshr_b32 s40, s26, 3")
    a("s_lshl_b32 s40, s40, 15")
    a("s_add_u32 s41, s41, s40")
    a("s_add_u32 s42, s41, 4096")
    a("s_add_u32 s43, s41, 8192")
    a("s_mul_i32 s44, s27, %d" % (-4096 + 8 - 3 * 4096))
    a("s_add_u32 s44, s44, %d" % (3 * 4096))
    a("s_add_u32 s44, s44, s41")
    a("s_mov_b32 s47, 0x%x" % f2u(QSCALE))
    a("s_nop 7")
    tmp = [V_T + 4 * i for i in range(8)]
    ti = [0]
    def pack_store(src0, src1, soff, imm, relu=False, scale=False):
        tr = tmp[ti[0] % 8]; ti[0] += 1
        for hh, sr in enumerate((src0, src1)):
            if sr is None: continue
            if scale:
                for e in range(4): a("v_mul_f32 v%d, s47, v%d" % (sr + e, sr + e))
            a("v_cvt_pk_bf16_f32 v%d, v%d, v%d" % (tr + 2 * hh, sr, sr + 1))
            a("v_cvt_pk_bf16_f32 v%d, v%d, v%d" % (tr + 2 * hh + 1, sr + 2, sr + 3))
            if relu:
                a("v_pk_max_i16 v%d, v%d, 0" % (tr + 2 * hh, tr + 2 * hh))
                a("v_pk_max_i16 v%d, v%d, 0" % (tr + 2 * hh + 1, tr + 2 * hh + 1))
        if src1 is None:
            a.vmem("buffer_store_dwordx2 %s, v%d, s[12:15], s%d offen offset:%d" % (r2("v", tr), V_L16, soff, imm))
        else:
            a.vmem("buffer_store_dwordx4 %s, v%d, s[12:15], s%d offen offset:%d" % (r4("v", tr), V_L16, soff, imm))
    for mt in range(MT): pack_store(acc(mt, 0), acc(mt, 1), 36, mt * 1024, scale=True)
    for mt in range(MT): pack_store(acc(mt, 2), acc(mt, 3), 37, mt * 1024)
    for b in range(2):
        for dt in range(2): pack_store(acc(2 * b, 4 + dt), acc(2 * b + 1, 4 + dt), 38, (b * 2 + dt) * 1024)
    for p in range(3):
        for mt in range(MT):
            pack_store(acc(mt, 6 + 2 * p), acc(mt, 7 + 2 * p), 41 + p, mt * 1024, relu=True)
    for mt in range(MT):
        pack_store(acc(mt, 12), None, 44, mt * 1024, relu=True)
    if cfg.get("stamp"):
        a("s_waitcnt vmcnt(0)")
        a("s_memtime s[68:69]")
        a("s_memrealtime s[72:73]")
        a("s_waitcnt lgkmcnt(0)")
        for i in range(4): a("s_sub_u32 s%d, s%d, s60" % (62 + 2 * i, 62 + 2 * i))
        for i in range(4): a("v_mov_b32 v%d, s%d" % (i, 62 + 2 * i))
        a("v_mov_b32 v4, s70")
        a("v_mov_b32 v5, s72")
        a("s_lshl_b32 s50, s2, 2")
        a("s_add_u32 s50, s50, s24")
        a("s_lshl_b32 s50, s50, 5")
        a("v_mov_b32 v8, 0")
        a("s_nop 4")
        a("buffer_store_dwordx4 v[0:3], v8, s[12:15], s50 offen")
        a("buffer_store_dwordx4 v[4:7], v8, s[12:15], s50 offen offset:16")
    a.label("G1_end")
    a("s_endpgm")
    kernel_desc(a, name, 256, sgpr=80, accum=256, agpr=256)
    return "; @launch kernel=%s grid=(256,1,1) block=(256,1,1) lds=%d" % (name, NS * STAGE)


def stamp_out(a, cfg, nst, s0, swave, srdb, wsoff, nw):
    if not cfg.get("stamp"): return
    a("s_waitcnt vmcnt(0)")
    a("s_memtime s[68:69]")
    a("s_memrealtime s[72:73]")
    a("s_waitcnt lgkmcnt(0)")
    for i in range(4): a("s_sub_u32 s%d, s%d, s60" % (62 + 2 * i, 62 + 2 * i))
    for i in range(4): a("v_mov_b32 v%d, s%d" % (i, 62 + 2 * i))
    a("v_mov_b32 v4, s70")
    a("v_mov_b32 v5, s72")
    a("s_mul_i32 s50, s2, %d" % nw)
    a("s_add_u32 s50, s50, s%d" % swave)
    a("s_lshl_b32 s50, s50, 5")
    a("s_add_u32 s50, s50, 0x%x" % wsoff)
    a("v_mov_b32 v8, 0")
    a("s_nop 4")
    a("buffer_store_dwordx4 v[0:3], v8, s[%d:%d], s50 offen" % (srdb, srdb + 3))
    a("buffer_store_dwordx4 v[4:7], v8, s[%d:%d], s50 offen offset:16" % (srdb, srdb + 3))

def gen_at(a, cfg):
    name = "at_kernel"
    kernel_begin(a, name)
    a.reset()
    stamp(a, cfg, 0, 60)
    if cfg.get("stamp"): a("s_memrealtime s[70:71]")
    a("s_cmp_ge_u32 s2, 256")
    a("s_cbranch_scc1 AT_end")
    a("s_load_dwordx2 s[8:9], s[0:1], 64")
    def sreg(qa, kt): return (qa * 18 + kt) * 4
    VQ = 144; VO = 152; VS = 168; VONE = 176
    V_L16 = 180; T = 181; VM = 182; VNEG = 183
    a("v_and_b32 v%d, 63, v0" % T)
    a("v_lshrrev_b32 v%d, 6, v0" % VM)
    a("v_lshlrev_b32 v%d, 4, v%d" % (V_L16, T))
    a("v_readfirstlane_b32 s24, v%d" % VM)
    a("s_and_b32 s25, s2, 1")
    a("s_lshl_b32 s25, s25, 2")
    a("s_bfe_u32 s26, s2, 0x20003")
    a("s_add_u32 s25, s25, s26")
    a("s_bfe_u32 s26, s2, 0x20001")
    a("s_lshl_b32 s26, s26, 3")
    a("s_lshr_b32 s27, s2, 5")
    a("s_add_u32 s26, s26, s27")
    a("s_lshl_b32 s27, s26, 17")
    a("s_lshl_b32 s28, s25, 14")
    a("s_lshl_b32 s29, s24, 12")
    a("s_add_u32 s28, s28, s29")
    a("s_sub_u32 s28, s28, 16384")
    a("v_add_u32 v%d, s28, v%d" % (VM, V_L16))
    a("s_lshl_b32 s30, s25, 14")
    a("s_lshl_b32 s31, s24, 11")
    a("s_add_u32 s30, s30, s31")
    a("s_waitcnt lgkmcnt(0)")
    a("s_add_u32 s4, s8, s27")
    a("s_addc_u32 s5, s9, 0")
    srd_off(a, 12, 4, WS_K, 131072)
    srd_off(a, 16, 4, WS_V, 131072)
    srd_off(a, 20, 4, WS_Q, 131072)
    a("s_mov_b32 m0, s29")
    a("s_nop 0")
    for i in range(4): a("buffer_load_dwordx4 v%d, s[12:15], 0 offen offset:%d lds" % (VM, i * 1024))
    for qa in range(2): a("buffer_load_dwordx4 %s, v%d, s[20:23], s30 offen offset:%d" % (r4("v", VQ + 4 * qa), V_L16, qa * 1024))
    a("s_add_u32 m0, s29, 32768")
    a("s_nop 0")
    for i in range(4): a("buffer_load_dwordx4 v%d, s[16:19], 0 offen offset:%d lds" % (VM, i * 1024))
    a("v_lshrrev_b32 v0, 4, v%d" % T)
    a("v_lshlrev_b32 v0, 2, v0")
    a("v_and_b32 v1, 15, v%d" % T)
    for e in range(4):
        a("v_add_u32 v2, %d, v0" % e)
        a("v_cmp_le_u32 s[%d:%d], v2, v1" % (40 + 2 * e, 41 + 2 * e))
    a("v_mov_b32 v%d, 0x%x" % (VNEG, f2u(-1e30)))
    for e in range(4): a("v_mov_b32 v%d, 0x3f803f80" % (VONE + e))
    a("v_add_u32 v%d, s31, v%d" % (T, V_L16))
    a("s_sub_u32 s32, 8, s24")
    a("s_cmp_eq_u32 s25, 0")
    a("s_cselect_b32 s32, s32, 0")
    a("s_cbranch_scc0 AT_nofill")
    for r in range(144): a("v_mov_b32 v%d, v%d" % (r, VNEG))
    a.label("AT_nofill")
    a("s_lshl_b32 s33, s25, 2")
    a("s_lshr_b32 s34, s24, 1")
    a("s_add_u32 s33, s33, s34")
    a("s_mul_i32 s33, s33, 144")
    a("s_lshr_b32 s34, s26, 3")
    a("s_mul_i32 s34, s34, 28")
    a("s_add_u32 s33, s33, s34")
    a("s_add_u32 s33, s33, s26")
    a("s_add_u32 s33, s33, 28")
    a("s_lshl_b32 s33, s33, 12")
    a("s_and_b32 s34, s24, 1")
    a("s_lshl_b32 s34, s34, 11")
    a("s_add_u32 s33, s33, s34")
    a("s_add_u32 s33, s33, 0x%x" % WS_A2)
    a("s_waitcnt vmcnt(4)")
    a("s_barrier")
    stamp(a, cfg, 1, 62)
    for kt in range(18): a("ds_read_b128 %s, v%d offset:%d" % (r4("a", 4 * kt), T, kt * 1024))
    srd_off(a, 12, 8, 0, WS_END)
    a("s_waitcnt lgkmcnt(0)")
    for b in range(9):
        if b < 8:
            a("s_cmp_gt_u32 s32, %d" % b)
            a("s_cbranch_scc1 AT_skip%d" % b)
        for kt in (2 * b, 2 * b + 1):
            for qa in range(2):
                if (qa, kt) in ((0, 17), (1, 0)): continue
                a("v_mfma_f32_16x16x32_bf16 %s, %s, %s, 0" % (r4("v", sreg(qa, kt)), r4("a", 4 * kt), r4("v", VQ + 4 * qa)))
        if b < 8: a.label("AT_skip%d" % b)
    a("s_waitcnt vmcnt(0)")
    a("s_barrier")
    for f in range(18): a("ds_read_b128 %s, v%d offset:%d" % (r4("a", 4 * f), T, 32768 + f * 1024))
    stamp(a, cfg, 2, 64)
    for qa in range(2):
        k0 = qa; k1 = 16 + qa
        for e in range(4):
            a("v_cndmask_b32 v%d, v%d, v%d, s[%d:%d]" % (sreg(qa, k0) + e, sreg(qa, k0) + e, VNEG, 40 + 2 * e, 41 + 2 * e))
            a("v_cndmask_b32 v%d, v%d, v%d, s[%d:%d]" % (sreg(qa, k1) + e, VNEG, sreg(qa, k1) + e, 40 + 2 * e, 41 + 2 * e))
        regs = [sreg(qa, kt) + e for kt in range(k0, k1 + 1) for e in range(4)]
        m0, m1 = VO, VO + 1
        a("v_max_f32 v%d, v%d, v%d" % (m0, regs[0], regs[1]))
        a("v_max_f32 v%d, v%d, v%d" % (m1, regs[2], regs[3]))
        for x in range(4, 68, 4):
            a("v_max3_f32 v%d, v%d, v%d, v%d" % (m0, m0, regs[x], regs[x + 1]))
            a("v_max3_f32 v%d, v%d, v%d, v%d" % (m1, m1, regs[x + 2], regs[x + 3]))
        a("v_max_f32 v%d, v%d, v%d" % (m0, m0, m1))
        for op in ("v_permlane16_swap_b32", "v_permlane32_swap_b32"):
            a("v_mov_b32 v%d, v%d" % (m1, m0))
            a("s_nop 1")
            a("%s v%d, v%d" % (op, m0, m1))
            a("s_nop 1")
            a("v_max_f32 v%d, v%d, v%d" % (m0, m0, m1))
        for x in regs: a("v_sub_f32 v%d, v%d, v%d" % (x, x, m0))
        for x in regs: a("v_exp_f32 v%d, v%d" % (x, x))
        a("s_nop 0")
        for b in range(9):
            d = sreg(qa, 2 * b)
            for hh in range(2):
                kt = 2 * b + hh
                if (qa, kt) in ((0, 17), (1, 0)):
                    a("v_mov_b32 v%d, 0" % (d + 2 * hh)); a("v_mov_b32 v%d, 0" % (d + 2 * hh + 1))
                else:
                    sr = sreg(qa, kt)
                    a("v_cvt_pk_bf16_f32 v%d, v%d, v%d" % (d + 2 * hh, sr, sr + 1))
                    a("v_cvt_pk_bf16_f32 v%d, v%d, v%d" % (d + 2 * hh + 1, sr + 2, sr + 3))
    a("s_waitcnt lgkmcnt(0)")
    a("s_nop 1")
    for b in range(9):
        for qa in range(2):
            p = r4("v", sreg(qa, 2 * b))
            for dt in range(2):
                o = r4("v", VO + (qa * 2 + dt) * 4)
                a("v_mfma_f32_16x16x32_bf16 %s, %s, %s, %s" % (o, r4("a", (2 * b + dt) * 4), p, "0" if b == 0 else o))
            o = r4("v", VS + qa * 4)
            a("v_mfma_f32_16x16x32_bf16 %s, %s, %s, %s" % (o, r4("v", VONE), p, "0" if b == 0 else o))
    a("s_nop 7")
    stamp(a, cfg, 3, 66)
    for qa in range(2):
        a("v_rcp_f32 v%d, v%d" % (VS + qa * 4, VS + qa * 4))
    a("s_nop 0")
    for qa in range(2):
        for x in range(8): a("v_mul_f32 v%d, v%d, v%d" % (VO + qa * 8 + x, VO + qa * 8 + x, VS + qa * 4))
        for x in range(4): a("v_cvt_pk_bf16_f32 v%d, v%d, v%d" % (qa * 4 + x, VO + qa * 8 + 2 * x, VO + qa * 8 + 2 * x + 1))
        a("buffer_store_dwordx4 %s, v%d, s[12:15], s33 offen offset:%d" % (r4("v", qa * 4), V_L16, qa * 1024))
    stamp_out(a, cfg, 4, 60, 24, 12, 0x10000, 8)
    a.label("AT_end")
    a("s_endpgm")
    kernel_desc(a, name, 184, sgpr=80, accum=184, agpr=72)
    return "; @launch kernel=%s grid=(256,1,1) block=(512,1,1) lds=65536" % name

def gen_g2(a, cfg):
    name = "g2_kernel"
    MT, NT = 4, 8
    KS = 36; NG = 18
    DL = cfg.get("g2_dl", 6)
    NS = cfg.get("g2_stages", 7)
    RA = cfg.get("g2_ra", 10)
    DB = cfg.get("g2_db", 3); RB = DB + 2
    STAGE = 16384
    S1 = KS - DL
    def acc(mt, t): return (t * MT + mt) * 4
    VX = 128
    VP = 144
    V_L16 = 192; V_DMA = 193; V_XO = 195; V_FL = 196; V_ONE = 197
    V_RD = 200
    VPK = 216
    T = 232
    AR = 0; BR = RA * 16
    assert BR + RB * 4 <= 256 and NS <= 8
    kernel_begin(a, name)
    a.reset()
    stamp(a, cfg, 0, 60)
    if cfg.get("stamp"): a("s_memrealtime s[70:71]")
    a("s_cmp_ge_u32 s2, 256")
    a("s_cbranch_scc1 G2_end")
    a("s_load_dwordx2 s[4:5], s[0:1], 40")
    a("s_load_dwordx2 s[6:7], s[0:1], 16")
    a("s_load_dwordx2 s[8:9], s[0:1], 64")
    a("s_load_dwordx2 s[10:11], s[0:1], 0")
    a("s_load_dwordx2 s[36:37], s[0:1], 48")
    a("v_and_b32 v%d, 63, v0" % T)
    a("v_lshrrev_b32 v%d, 6, v0" % (T + 1))
    a("v_lshlrev_b32 v%d, 4, v%d" % (V_L16, T))
    a("v_readfirstlane_b32 s24, v%d" % (T + 1))
    a("s_and_b32 s25, s2, 1")
    a("s_lshl_b32 s25, s25, 2")
    a("s_bfe_u32 s26, s2, 0x20003")
    a("s_add_u32 s25, s25, s26")
    a("s_bfe_u32 s26, s2, 0x20001")
    a("s_lshr_b32 s27, s2, 5")
    a("v_lshrrev_b32 v%d, 4, v%d" % (T + 2, T))
    a("v_lshlrev_b32 v%d, 11, v%d" % (V_DMA, T + 2))
    a("v_lshlrev_b32 v%d, 1, v%d" % (T + 2, T + 2))
    a("v_and_b32 v%d, 15, v%d" % (T + 3, T))
    a("v_xor_b32 v%d, v%d, v%d" % (T + 2, T + 2, T + 3))
    a("v_lshl_add_u32 v%d, v%d, 4, v%d" % (V_DMA, T + 2, V_DMA))
    a("v_xor_b32 v%d, 128, v%d" % (V_DMA + 1, V_DMA))
    a("s_lshl_b32 s31, s24, 15")
    a("s_lshl_b32 s32, s27, 8")
    a("s_add_u32 s31, s31, s32")
    a("s_mul_i32 s30, s26, %d" % (896 * 2048))
    a("s_add_u32 s30, s30, s31")
    a("s_lshl_b32 s38, s26, 19")
    a("s_add_u32 s38, s38, s31")
    a("s_lshl_b32 s34, s24, 12")
    a("s_lshl_b32 s33, s25, 2")
    a("s_add_u32 s33, s33, s24")
    a("s_mul_i32 s35, s33, 144")
    a("s_mul_i32 s39, s26, 36")
    a("s_add_u32 s35, s35, s39")
    a("s_lshl_b32 s35, s35, 12")
    a("s_lshl_b32 s39, s33, 17")
    a("s_add_u32 s39, s39, s32")
    a("s_lshl_b32 s33, s26, 6")
    a("s_add_u32 s39, s39, s33")
    a("s_waitcnt lgkmcnt(0)")
    srd(a, 12, 4, DFF * D * 2)
    srd(a, 16, 6, D * D * 2)
    srd_off(a, 20, 8, WS_A2, A2_BYTES)
    def a_load(s, mt):
        FK = cfg.get("g2_fake", 0)
        if FK & 4 and s >= RA:
            a.vmem("s_nop 0", ("A", s)); return
        a.vmem("buffer_load_dwordx4 %s, v%d, s[20:23], s35 offen offset:%d%s" % (r4("a", AR + (s % RA) * 16 + mt * 4), V_L16, mt * 1024, " sc1" if FK & 1 else ""), ("A", s))
        if mt == MT - 1: a("s_add_u32 s35, s35, %d" % (0 if FK & 1 and s >= 3 else 4096))
    def dma_pre(g, k): a("s_add_u32 m0, s34, %d" % ((g % NS) * STAGE + k * 1024))
    def dma(g, k):
        FK = cfg.get("g2_fake", 0)
        if FK & 8 and g >= NS:
            a.vmem("s_nop 0", ("B", g)); return
        sb = 12 if g < 14 else 16
        a.vmem("buffer_load_dwordx4 v%d, s[%d:%d], s30 offen%s lds" % (V_DMA + (k & 1), sb, sb + 3, " sc1" if FK & 2 else ""), ("B", g))
        if k == 3 and g == 13: a("s_mov_b32 s30, s38")
        elif FK & 2 and k == 3: a("s_add_u32 s30, s30, %d" % (-3 * 8192))
        else: a("s_add_u32 s30, s30, %d" % (8192 if k < 3 else 8192 + 48 * 2048))
    order = []
    for g in range(NG):
        for k in range(4): order.append(("B", g, k))
        for s in (2 * g, 2 * g + 1):
            for mt in range(MT): order.append(("A", s, mt))
    st = dict(bar=-1, step=-1)
    def can(op):
        if op[0] == "B": return op[1] < NS - 1 or op[1] - NS + 2 <= st["bar"]
        return op[1] - RA <= st["step"]
    PRO = cfg.get("g2_pro", 12)
    for _ in range(PRO):
        op = order.pop(0)
        if op[0] == "A": a_load(op[1], op[2])
        else:
            dma_pre(op[1], op[2]); a("s_nop 0"); dma(op[1], op[2])
    srd(a, 40, 10, S * D * 2)
    srd(a, 44, 36, S * D * 2)
    srd_off(a, 48, 8, WS_XC, XC_BYTES + FL_BYTES)
    a("v_and_b32 v%d, 15, v%d" % (T + 2, T))
    a("v_lshlrev_b32 v%d, 11, v%d" % (V_XO, T + 2))
    a("v_bfe_u32 v%d, v%d, 4, 1" % (T + 2, T))
    a("v_lshl_add_u32 v%d, v%d, 5, v%d" % (V_XO, T + 2, V_XO))
    a("v_lshrrev_b32 v%d, 5, v%d" % (T + 2, T))
    a("v_lshl_add_u32 v%d, v%d, 4, v%d" % (V_XO, T + 2, V_XO))
    a("v_lshrrev_b32 v%d, 2, v%d" % (T + 2, T))
    a("v_and_b32 v%d, 7, v%d" % (T + 4, T + 2))
    a("v_lshlrev_b32 v%d, 8, v%d" % (T + 2, T + 2))
    a("v_and_b32 v%d, 3, v%d" % (T + 3, T))
    a("v_lshl_add_u32 v%d, v%d, 3, v%d" % (T + 2, T + 3, T + 2))
    a("v_lshl_add_u32 v%d, v%d, 5, v%d" % (V_RD, T + 4, T + 2))
    a("s_xor_b32 s33, s33, 192")
    a("v_xor_b32 v%d, s33, v%d" % (V_RD, V_RD))
    for t in range(1, 8): a("v_xor_b32 v%d, %d, v%d" % (V_RD + t, t * 32, V_RD))
    for t in range(8): a("v_add_u32 v%d, 0x10000, v%d" % (V_RD + 8 + t, V_RD + t))
    for lam in range(3):
        a("s_xor_b32 s52, s2, %d" % ((lam ^ 3) << 1))
        a("s_lshl_b32 s52, s52, 2")
        a("s_add_u32 s52, s52, s24")
        a("s_mul_i32 s%d, s52, 12288" % (53 + lam))
        if lam: a("s_add_u32 s%d, s%d, %d" % (53 + lam, 53 + lam, lam * 4096))
        a("s_lshl_b32 s%d, s52, 7" % (56 + lam))
        a("s_add_u32 s%d, s%d, %d" % (56 + lam, 56 + lam, XC_BYTES + lam * 4))
    a("s_lshl_b32 s52, s2, 2")
    a("s_add_u32 s52, s52, s24")
    a("s_lshl_b32 s59, s52, 7")
    a("s_add_u32 s59, s59, %d" % XC_BYTES)
    a("s_mul_i32 s52, s52, 12288")
    a("v_cmp_ne_u32 vcc, 0, v%d" % T)
    a("v_bfrev_b32 v%d, 1" % (T + 2))
    a("v_mov_b32 v%d, 1" % V_ONE)
    a("v_cndmask_b32 v%d, 0, v%d, vcc" % (V_FL, T + 2))
    PF = cfg.get("g2_pf", 0)
    V_P = 198
    if PF:
        a("s_bfe_u32 s74, s2, 0x30003")
        a("s_lshr_b32 s75, s2, 6")
        a("s_lshl_b32 s75, s75, 2")
        a("s_add_u32 s75, s75, s24")
        a("s_and_b32 s76, s2, 1")
        a("s_lshl_b32 s76, s76, 4")
        a("s_add_u32 s76, s76, s75")
        a("s_mul_i32 s76, s76, 144")
        a("s_mul_i32 s77, s26, 36")
        a("s_add_u32 s76, s76, s77")
        a("s_lshl_b32 s76, s76, 12")
        a("s_lshl_b32 s75, s75, 12")
        a("s_mul_i32 s77, s26, %d" % (896 * 2048))
        a("s_add_u32 s77, s77, s75")
        a("s_lshl_b32 s78, s26, 19")
        a("s_add_u32 s78, s78, s75")
        a("v_lshlrev_b32 v%d, 7, v%d" % (V_P, T))
        a("v_lshrrev_b32 v%d, 5, v%d" % (T + 2, T))
        a("v_lshl_add_u32 v%d, v%d, 30, v%d" % (V_P, T + 2, V_P))
    def touch(cls, s):
        lab = a.newlabel("G2_pf")
        a("s_cmp_lg_u32 s74, %d" % cls)
        a("s_cbranch_scc1 %s" % lab)
        a("s_add_u32 s79, s76, %d" % (s * 4096))
        a("buffer_load_dword v%d, v%d, s[20:23], s79 offen" % (V_P + 1, V_P))
        if s < 28:
            a("s_add_u32 s79, s77, %d" % (s * 65536))
            a("buffer_load_dword v%d, v%d, s[12:15], s79 offen" % (V_P + 1, V_P))
        else:
            a("s_add_u32 s79, s78, %d" % ((s - 28) * 65536))
            a("buffer_load_dword v%d, v%d, s[16:19], s79 offen" % (V_P + 1, V_P))
        a.label(lab)
    pfq = list(range(cfg.get("g2_pf0", 2), KS))
    pfn = [0]
    PFU = cfg.get("g2_pfu", 6)
    if PF:
        for _ in range(PF):
            touch(pfn[0] & 7, pfq.pop(0)); pfn[0] += 1
    stamp(a, cfg, 1, 62)
    units = [(s, t) for s in range(S1) for t in range(NT)]
    for lam in range(4):
        units += [(s, t) for s in range(S1, KS) for t in (2 * lam, 2 * lam + 1)]
    NU = len(units)
    def b_read(u, j2):
        s, t = units[u]
        slot = (s // 2) % NS
        off = (slot % 4) * STAGE + (s % 2) * 8192 + j2 * 4096
        a.lds("ds_read_b64_tr_b16 %s, v%d offset:%d" % (r2("a", BR + (u % RB) * 4 + j2 * 2), V_RD + 8 * (slot // 4) + t, off), ("b", u))
    def flush_until(tag):
        while any(o[:2] == tag for o in order):
            op = order.pop(0)
            assert can(op), (op, st)
            if op[0] == "A": a_load(op[1], op[2])
            else:
                dma_pre(op[1], op[2]); a("s_nop 0"); dma(op[1], op[2])
    def need_stage(u):
        g = units[u][0] // 2
        if g > st["bar"]:
            flush_until(("B", g))
            a.wait(vm=("B", g)); a("s_barrier"); st["bar"] = g
    need_stage(0)
    stamp(a, cfg, 2, 64)
    for u in range(DB):
        b_read(u, 0); b_read(u, 1)
    side = []
    seenA = set()
    xload_done = False
    for u in range(NU):
        s, t = units[u]
        un = u + DB
        if un < NU: need_stage(un)
        if s not in seenA:
            flush_until(("A", s)); seenA.add(s)
            a.wait(vm=("A", s), lg=("b", u))
        else:
            a.wait(lg=("b", u))
        if PF and pfq and u % PFU == PFU - 1:
            touch(pfn[0] & 7, pfq.pop(0)); pfn[0] += 1
        bf = r4("a", BR + (u % RB) * 4)
        LAU = cfg.get("g2_lau", 100)
        def soon(op):
            stp = op[1] * 2 if op[0] == "B" else op[1]
            return stp <= u / PFU + LAU
        nxt = order.pop(0) if (order and can(order[0]) and soon(order[0])) else None
        if not order and not xload_done and nxt is None:
            xload_done = True
            for mt in range(MT):
                def f(mt=mt):
                    a.vmem("buffer_load_dwordx4 %s, v%d, s[40:43], s39 offen" % (r4("v", VX + 4 * mt), V_XO), "X")
                    a("s_add_u32 s39, s39, %d" % (32768 if mt < 3 else -3 * 32768))
                side.append(f)
        for mt in range(MT):
            mz = mt if u % 2 == 0 else MT - 1 - mt
            af = r4("a", AR + (s % RA) * 16 + mz * 4)
            c = r4("v", acc(mz, t))
            a("v_mfma_f32_16x16x32_bf16 %s, %s, %s, %s" % (c, bf, af, "0" if s == 0 else c))
            if mt < 2 and un < NU: b_read(un, mt)
            if mt == 2 and nxt and nxt[0] == "B": dma_pre(nxt[1], nxt[2])
            if mt == 3 and nxt:
                if nxt[0] == "A": a_load(nxt[1], nxt[2])
                else: dma(nxt[1], nxt[2])
            k = 1 if mt < 2 else 2
            for _ in range(k):
                if side:
                    f = side.pop(0)
                    if f: f()
        if u < S1 * NT and t == NT - 1: st["step"] = s
        if u >= S1 * NT and (u - S1 * NT) % (2 * DL) == 2 * DL - 1:
            lam = (u - S1 * NT) // (2 * DL)
            if lam < 3:
                side += [None] * 6
                for mt in range(MT):
                    for hh in range(2):
                        for e2 in range(2):
                            def f(mt=mt, hh=hh, e2=e2, lam=lam):
                                c = acc(mt, 2 * lam + hh) + 2 * e2
                                a("v_cvt_pk_bf16_f32 v%d, v%d, v%d" % (VPK + 4 * mt + 2 * hh + e2, c, c + 1))
                            side.append(f)
                    def f(mt=mt, lam=lam):
                        a.vmem("buffer_store_dwordx4 %s, v%d, s[48:51], s%d offen offset:%d sc1" % (r4("v", VPK + 4 * mt), V_L16, 53 + lam, mt * 1024), ("S", lam))
                    side.append(f)
    for f in side:
        if f: f()
    assert not order and xload_done
    stamp(a, cfg, 3, 66)
    for lam in range(3):
        a.wait(vm=("S", lam))
        a.vmem("buffer_store_dword v%d, v%d, s[48:51], s%d offen sc1" % (V_ONE, V_FL, 56 + lam), ("F", lam))
    a("v_mov_b32 v%d, 0" % (T + 1))
    a("s_mov_b32 s54, 0x40000")
    a.label("G2_poll")
    a("s_sub_u32 s54, s54, 1")
    a("s_cbranch_scc1 G2_go")
    a("buffer_load_dwordx3 v[%d:%d], v%d, s[48:51], s59 offen sc1" % (T + 4, T + 6, T + 1))
    a("s_waitcnt vmcnt(0)")
    a("v_and_b32 v%d, v%d, v%d" % (T + 4, T + 4, T + 5))
    a("v_and_b32 v%d, v%d, v%d" % (T + 4, T + 4, T + 6))
    a("s_nop 0")
    a("v_readfirstlane_b32 s53, v%d" % (T + 4))
    a("s_cmp_eq_u32 s53, 1")
    a("s_cbranch_scc0 G2_poll")
    a.label("G2_go")
    a.reset()
    if cfg.get("stamp"): a("s_memtime s[62:63]")
    for lam in range(3):
        for mt in range(MT):
            a.vmem("buffer_load_dwordx4 %s, v%d, s[48:51], s52 offen offset:%d sc1" % (r4("v", VP + 16 * lam + 4 * mt), V_L16, mt * 1024), ("R", lam, mt))
        if lam < 2: a("s_add_u32 s52, s52, 4096")
    for lam in range(3):
        for mt in range(MT):
            a.wait(vm=("R", lam, mt))
            for hh in range(2):
                for e2 in range(2):
                    p = VP + 16 * lam + 4 * mt + 2 * hh + e2
                    c = acc(mt, 6 + hh) + 2 * e2
                    a("v_lshlrev_b32 v%d, 16, v%d" % (T, p))
                    a("v_and_b32 v%d, 0xffff0000, v%d" % (T + 1, p))
                    a("v_add_f32 v%d, v%d, v%d" % (c, c, T))
                    a("v_add_f32 v%d, v%d, v%d" % (c + 1, c + 1, T + 1))
            if lam == 2:
                c0, c1 = acc(mt, 6), acc(mt, 7)
                a("s_nop 1")
                for e in range(4): a("v_permlane16_swap_b32 v%d, v%d" % (c0 + e, c1 + e))
                a("s_nop 1")
                xr = VX + 4 * mt
                for hh, c in enumerate((c0, c1)):
                    for e2 in range(2):
                        xx = xr + 2 * hh + e2
                        a("v_lshlrev_b32 v%d, 16, v%d" % (T, xx))
                        a("v_and_b32 v%d, 0xffff0000, v%d" % (T + 1, xx))
                        a("v_add_f32 v%d, v%d, v%d" % (T, T, c + 2 * e2))
                        a("v_add_f32 v%d, v%d, v%d" % (T + 1, T + 1, c + 2 * e2 + 1))
                        a("v_cvt_pk_bf16_f32 v%d, v%d, v%d" % (xx, T, T + 1))
                a.vmem("buffer_store_dwordx4 %s, v%d, s[44:47], s39 offen" % (r4("v", xr), V_XO), "O")
                if mt < 3: a("s_add_u32 s39, s39, 32768")
    if cfg.get("stamp"): srd_off(a, 12, 8, 0, WS_END)
    stamp_out(a, cfg, 4, 60, 24, 12, 0x30000, 4)
    a.label("G2_end")
    a("s_endpgm")
    kernel_desc(a, name, 240, sgpr=96, accum=240, agpr=BR + RB * 4)
    return "; @launch kernel=%s grid=(256,1,1) block=(256,1,1) lds=%d" % (name, NS * STAGE)

def gen_pf(a, cfg):
    name = "pf_kernel"
    kernel_begin(a, name)
    a.reset()
    stamp(a, cfg, 0, 60)
    if cfg.get("stamp"): a("s_memrealtime s[70:71]")
    a("s_cmp_ge_u32 s2, 256")
    a("s_cbranch_scc1 PF_end")
    a("s_load_dwordx4 s[4:7], s[0:1], 8")
    a("s_load_dwordx4 s[8:11], s[0:1], 32")
    a("s_load_dwordx2 s[36:37], s[0:1], 64")
    a("v_lshrrev_b32 v2, 6, v0")
    a("s_nop 0")
    a("v_readfirstlane_b32 s34, v2")
    mode = cfg.get("pf_mode", 0)
    gran = cfg.get("pf_gran", 128)
    if mode == 0: gran = 16
    if mode == 2:
        a("s_lshr_b32 s3, s2, 3")
        a("s_lshl_b32 s3, s3, 9")
        nthr = 32 * 512
    else:
        a("s_lshl_b32 s3, s2, 9")
        nthr = 256 * 512
    a("v_add_u32 v1, s3, v0")
    a("s_mov_b32 s31, %d" % gran)
    a("v_mul_lo_u32 v1, s31, v1")
    if nthr * gran >= (1 << 32):
        a("v_add_u32 v3, s3, v0")
        a("v_min_u32 v3, 200, v3")
        a("v_mul_lo_u32 v1, s31, v3")
    a("s_waitcnt lgkmcnt(0)")
    sizes = [D * 3 * D * 2, D * D * 2, D * DFF * 2, D * DFF * 2]
    order = [0, 2, 3, 1]
    mask = cfg.get("pf_mask", 15)
    n = 0
    for b in order:
        if not (mask >> b) & 1: continue
        srd(a, 12 + 4 * b, 4 + 2 * b, sizes[b])
        step = nthr * gran
        for off in range(0, sizes[b], step):
            a("s_mov_b32 s30, 0x%x" % off)
            if mode == 0: a("buffer_load_dwordx4 %s, v1, s[%d:%d], s30 offen" % (r4("v", 8 + 4 * n), 12 + 4 * b, 15 + 4 * b))
            else: a("buffer_load_dword v%d, v1, s[%d:%d], s30 offen" % (8 + n, 12 + 4 * b, 15 + 4 * b))
            n += 1
    stamp(a, cfg, 1, 62); stamp(a, cfg, 2, 64); stamp(a, cfg, 3, 66)
    a("s_waitcnt vmcnt(0)")
    if cfg.get("stamp"): srd_off(a, 12, 36, 0, WS_END)
    stamp_out(a, cfg, 4, 60, 34, 12, 0x50000, 8)
    a.label("PF_end")
    a("s_endpgm")
    kernel_desc(a, name, 72, sgpr=80)
    return "; @launch kernel=%s grid=(256,1,1) block=(512,1,1) lds=0" % name

def gen_em(a, cfg):
    kernel_begin(a, "em_kernel")
    a("s_endpgm")
    kernel_desc(a, "em_kernel", 8, sgpr=16)
    return "; @launch kernel=em_kernel grid=(256,1,1) block=(256,1,1) lds=0"

def gen_amp(a, cfg):
    kernel_begin(a, "amp_kernel")
    a("s_cmp_ge_u32 s2, 1")
    a("s_cbranch_scc1 AMP_end")
    a("s_load_dwordx2 s[8:9], s[0:1], 64")
    a("s_waitcnt lgkmcnt(0)")
    a("s_load_dword s10, s[8:9], 0x%x" % cfg["amp_a"])
    a("s_load_dword s11, s[8:9], 0x%x" % cfg["amp_b"])
    a("s_memrealtime s[12:13]")
    a("s_waitcnt lgkmcnt(0)")
    if cfg.get("amp_abs"): a("s_mov_b32 s10, 0")
    a("s_sub_u32 s10, s11, s10")
    a("s_mul_i32 s10, s10, %d" % cfg.get("amp_k", 10))
    a("s_lshr_b32 s10, s10, %d" % cfg.get("amp_sh", 0))
    a("s_min_u32 s10, s10, 100000")
    a.label("AMP_l")
    a("s_memrealtime s[14:15]")
    a("s_waitcnt lgkmcnt(0)")
    a("s_sub_u32 s14, s14, s12")
    a("s_cmp_lt_u32 s14, s10")
    a("s_cbranch_scc1 AMP_l")
    a.label("AMP_end")
    a("s_endpgm")
    kernel_desc(a, "amp_kernel", 8, sgpr=24)
    return "; @launch kernel=amp_kernel grid=(1,1,1) block=(64,1,1) lds=0"

def build(cfg, kernels):
    a = Prog()
    heads = []
    for k in kernels:
        heads.append(globals()["gen_" + k](a, cfg))
    a.raw(".text")
    a.label("CODE_END")
    for _ in range(cfg.get("nempty", 0)): heads.append(heads[-1])
    hdr = "\n".join(heads) + "\n" + '.amdgcn_target "amdgcn-amd-amdhsa--gfx950"\n'
    return hdr + a.text()

if __name__ == "__main__":
    cfg = dict(g1_mt=4)
    out = sys.argv[1]
    kernels = sys.argv[2].split(",")
    for kv in sys.argv[3:]:
        k, v = kv.split("="); cfg[k] = int(v, 0)
    open(out, "w").write(build(cfg, kernels))
```

```python
import sys, math
from asmlib import *
import gen
from gen import *

class SA:
    def __init__(self, start, end):
        self.n = start; self.end = end; self.m = {}
    def new(self, name, cnt=1, align=1):
        self.n = (self.n + align - 1) // align * align
        r = self.n; self.n += cnt
        assert self.n <= self.end, "out of sgprs"
        self.m[name] = r
        return r

def s4(b): return "s[%d:%d]" % (b, b + 3)
MF = "v_mfma_f32_16x16x32_bf16"

def kind_of(op):
    if op is None: return None
    if isinstance(op, tuple): return op[0]
    t = op.lstrip()
    if t.startswith("s_"): return "s"
    if t.startswith("v_"): return "v"
    raise ValueError(op)

class Gaps:
    def __init__(self, a):
        self.a = a
        self.sal = []
        self.side = []
    def run(self, op):
        if isinstance(op, tuple): op[1]()
        else: self.a(op)
    def gap(self, first=None, fixed=None, mem=None):
        used0 = False
        room = 2
        if first is not None: used0 = bool(first())
        if not used0:
            if self.sal:
                x = self.sal.pop(0); self.a(x); used0 = True
                room -= x.count("\n")
            elif self.side and kind_of(self.side[0]) == "s":
                self.run(self.side.pop(0)); used0 = True
        if mem is not None:
            mem(); return
        if fixed is not None:
            fixed(); room -= 1
        if self.side and self.side[0] is None:
            self.side.pop(0)
            skip = True
        else: skip = False
        while room > 0:
            if self.sal and self.sal[0].count("\n") < room:
                x = self.sal.pop(0); self.a(x); room -= 1 + x.count("\n"); continue
            if skip or not self.side or self.side[0] is None: break
            k = kind_of(self.side[0])
            if k in ("m", "x"):
                if room == 2:
                    self.run(self.side.pop(0))
                break
            self.run(self.side.pop(0)); room -= 1
    def drain_sal(self):
        while self.sal: self.a(self.sal.pop(0))
    def drain(self):
        self.drain_sal()
        for op in self.side:
            if op is not None: self.run(op)
        self.side = []

def gen_f(a, cfg):
    name = "f_kernel"
    ST = cfg.get("stamp")
    MT = 4
    sa = SA(3, 84)
    P_WQ = sa.new("pwq", 2, 2); P_W1 = sa.new("pw1", 2, 2); P_WS = sa.new("pws", 2, 2); P_X = sa.new("px", 2, 2)
    P_W2 = sa.new("pw2", 2, 2); P_WO = sa.new("pwo", 2, 2); P_OUT = sa.new("pout", 2, 2)
    R_WQ = sa.new("rwq", 4, 4); R_W1 = sa.new("rw1", 4, 4); R_W2 = sa.new("rw2", 4, 4); R_WO = sa.new("rwo", 4, 4)
    R_WS = sa.new("rws", 4, 4)
    sW = sa.new("w"); sI = sa.new("i"); sJ = sa.new("j"); sJ1 = sa.new("j1"); sQ = sa.new("q"); sN = sa.new("n")
    sBQ = sa.new("bq"); sBV = sa.new("bv"); sBW = sa.new("bw"); sBL = sa.new("bl"); sLB = sa.new("lb"); sA = sa.new("a")
    sCLS = sa.new("cls"); t0 = sa.new("t0"); t1 = sa.new("t1"); t2 = sa.new("t2"); t3 = sa.new("t3")
    sMK = sa.new("mask", 8, 2)
    sKV = sa.new("kv"); sKV2 = sa.new("kv2"); sKP = sa.new("kp"); sKP2 = sa.new("kp2"); sFK = sa.new("fk"); sFO = sa.new("fo")
    sH = sa.new("h", 4); sSC = sa.new("sc", 2, 2); sO = sSC + 1; sA0 = sa.new("a0"); sB0 = sa.new("b0"); sAE = sa.new("aend"); sBE = sa.new("bend")
    sXO = sa.new("xo"); sSP = sa.new("spin")
    sDL = sMK
    STB = 84
    SETS = {1: ["start", "bar0", "g1end", "attbeg", "attend", "g2beg", "g2end", "end"],
            2: ["start", "g1half", "g1tail", "g1kv", "g1flag0", "g1flag1", "g1chk", "g1end"],
            3: ["start", "attbeg", "att0", "att1", "att2", "att3", "att4", "attend"],
            4: ["start", "att4", "g2h", "g2beg", "g2p4", "g2p12", "g2tail", "g2end"],
            5: ["start", "g2end", "x1", "x2", "x3", "x4", "x5", "end"],
            7: ["g2beg", "g2p3", "g2p6", "g2p10", "g2p14", "g2p18", "g2p22", "g2end"],
            8: ["g2p22", "g2tail", "g2l1", "g2l2", "g2l3", "g2end", "x3", "end"],
            6: ["start", "bar0", "g1s2", "g1s4", "g1s8", "g1half", "g1s20", "g1tail"]}
    def stampr(nm):
        if ST and nm in SETS[ST]:
            i = SETS[ST].index(nm)
            a("%s s[%d:%d]" % ("s_memtime" if cfg.get("clk") else "s_memrealtime", STB + 2 * i, STB + 2 * i + 1))

    NT = 13; KS = 32
    NS = 5; REG = 7168; STAGE = 4 * REG
    D1 = cfg.get("f_d1", 8)
    RA = cfg.get("f_ra1", 11)
    LA = cfg.get("f_la1", 4)
    DB = cfg.get("f_db1", 3); RB = DB + 2
    S1 = KS - D1
    def slot1(g): return (15 - g) % 5
    KVB = 96 * 1024
    def acc(mt, t): return (t * MT + mt) * 4
    V_L16 = 208; V_QKV = 209; V_W1 = 210; V_LEFT = 211
    V_RD = 212
    V_P0, V_P1, V_P2 = 221, 222, 223
    V_LANE = 224; V_FL0 = 225; V_ONE = 226; V_POLL = 227; V_KVW = 228; V_FG = 229; V_PL = 230
    T = 232
    A_PD = 255
    AR = 0; BR = RA * 16
    assert BR + RB * 4 <= 254

    kernel_begin(a, name)
    a.reset()
    stampr("start")
    a("s_cmp_ge_u32 s2, 256")
    a("s_cbranch_scc1 F_end")
    a("s_load_dwordx2 s[%d:%d], s[0:1], 8" % (P_WQ, P_WQ + 1))
    a("s_load_dwordx2 s[%d:%d], s[0:1], 32" % (P_W1, P_W1 + 1))
    a("s_load_dwordx2 s[%d:%d], s[0:1], 64" % (P_WS, P_WS + 1))
    a("s_load_dwordx2 s[%d:%d], s[0:1], 0" % (P_X, P_X + 1))
    a("s_load_dwordx2 s[%d:%d], s[0:1], 40" % (P_W2, P_W2 + 1))
    a("s_load_dwordx2 s[%d:%d], s[0:1], 16" % (P_WO, P_WO + 1))
    a("s_load_dwordx2 s[%d:%d], s[0:1], 48" % (P_OUT, P_OUT + 1))
    L = V_LANE
    a("v_and_b32 v%d, 63, v0" % L)
    a("v_lshrrev_b32 v%d, 6, v0" % (T + 1))
    a("v_lshlrev_b32 v%d, 4, v%d" % (V_L16, L))
    a("v_readfirstlane_b32 s%d, v%d" % (sW, T + 1))
    a("s_and_b32 s%d, s2, 1" % sI)
    a("s_lshl_b32 s%d, s%d, 2" % (sI, sI))
    a("s_bfe_u32 s%d, s2, 0x20003" % t0)
    a("s_add_u32 s%d, s%d, s%d" % (sI, sI, t0))
    a("s_bfe_u32 s%d, s2, 0x20001" % sQ)
    a("s_lshr_b32 s%d, s2, 5" % sN)
    a("s_lshl_b32 s%d, s%d, 3" % (sJ, sQ))
    a("s_add_u32 s%d, s%d, s%d" % (sJ, sJ, sN))
    a("s_and_b32 s%d, s%d, 1" % (sJ1, sN))
    a("v_lshrrev_b32 v%d, 2, v%d" % (T + 2, L))
    a("v_lshl_add_u32 v%d, v%d, 4, v%d" % (T + 2, T + 1, T + 2))
    a("v_lshrrev_b32 v%d, 4, v%d" % (T + 3, L))
    a("v_and_b32 v%d, 2, v%d" % (T + 3, T + 3))
    a("v_and_b32 v%d, 3, v%d" % (T + 4, L))
    a("v_xor_b32 v%d, v%d, v%d" % (T + 3, T + 3, T + 4))
    a("v_lshlrev_b32 v%d, 4, v%d" % (T + 3, T + 3))
    a("v_mul_u32_u24 v%d, 6144, v%d" % (V_QKV, T + 2))
    a("v_add_u32 v%d, v%d, v%d" % (V_QKV, V_QKV, T + 3))
    a("v_mul_u32_u24 v%d, 7168, v%d" % (V_W1, T + 2))
    a("v_add_u32 v%d, v%d, v%d" % (V_W1, V_W1, T + 3))
    a("v_bfe_u32 v%d, v%d, 3, 1" % (T + 2, L))
    a("v_lshlrev_b32 v%d, 3, v%d" % (T + 2, T + 2))
    a("v_bfe_u32 v%d, v%d, 4, 1" % (T + 3, L))
    a("v_lshl_add_u32 v%d, v%d, 2, v%d" % (T + 2, T + 3, T + 2))
    a("v_bfe_u32 v%d, v%d, 1, 2" % (T + 3, L))
    a("v_add_u32 v%d, v%d, v%d" % (T + 2, T + 2, T + 3))
    a("v_lshl_add_u32 v%d, v%d, 4, v%d" % (T + 2, T + 1, T + 2))
    a("v_mul_u32_u24 v%d, 7168, v%d" % (V_LEFT, T + 2))
    a("v_and_b32 v%d, 1, v%d" % (T + 3, L))
    a("v_lshl_add_u32 v%d, v%d, 4, v%d" % (V_LEFT, T + 3, V_LEFT))
    a("v_lshrrev_b32 v%d, 5, v%d" % (T + 3, L))
    a("v_lshl_add_u32 v%d, v%d, 30, v%d" % (V_LEFT, T + 3, V_LEFT))
    a("s_lshl_b32 s%d, s%d, 6" % (sBQ, sJ))
    a("s_add_u32 s%d, s%d, 4096" % (sBV, sBQ))
    a("s_mul_i32 s%d, s%d, 224" % (sBL, sJ))
    a("s_lshl_b32 s%d, s%d, 5" % (t0, sJ1))
    a("s_add_u32 s%d, s%d, s%d" % (sBW, sBL, t0))
    a("s_xor_b32 s%d, s%d, 1" % (t0, sJ1))
    a("s_mul_i32 s%d, s%d, 192" % (t0, t0))
    a("s_add_u32 s%d, s%d, s%d" % (sBL, sBL, t0))
    a("s_mul_i32 s%d, s%d, %d" % (sLB, sW, REG))
    a("s_lshl_b32 s%d, s%d, 2" % (sA, sI))
    a("s_add_u32 s%d, s%d, s%d" % (sA, sA, sW))
    a("s_lshl_b32 s%d, s%d, 17" % (sA, sA))
    a("s_add_u32 s%d, s%d, 0x%x" % (sA, sA, WS_XN))
    ROT = cfg.get("f_rot", 1)
    a("s_add_u32 s%d, s%d, s%d" % (t1, sI, sN))
    a("s_and_b32 s%d, s%d, %d" % (t1, t1, 3 if ROT else 0))
    for k in range(3):
        a("s_cmp_eq_u32 s%d, %d" % (t1, 3 - k))
        a("s_cselect_b32 s%d, -3, 1" % (sDL + k))
    a("s_cmp_eq_u32 s%d, 0" % t1)
    a("s_cselect_b32 s%d, 1, 5" % (sDL + 3))
    a("s_mul_i32 s%d, s%d, %d" % (t0, t1, 64 * 6144))
    a("s_add_u32 s%d, s%d, s%d" % (sBQ, sBQ, t0))
    a("s_add_u32 s%d, s%d, s%d" % (sBV, sBV, t0))
    a("s_mul_i32 s%d, s%d, %d" % (t0, t1, 64 * 7168))
    a("s_add_u32 s%d, s%d, s%d" % (sBW, sBW, t0))
    a("s_add_u32 s%d, s%d, s%d" % (sBL, sBL, t0))
    a("s_lshl_b32 s%d, s%d, 13" % (t0, t1))
    a("s_add_u32 s%d, s%d, s%d" % (sA, sA, t0))
    for k in range(4):
        a("s_lshl_b32 s%d, s%d, 13" % (sDL + 4 + k, sDL + k))
        a("s_sub_u32 s%d, s%d, 4096" % (sDL + 4 + k, sDL + 4 + k))
    a("s_waitcnt lgkmcnt(0)")
    srd(a, R_WQ, P_WQ, D * 3 * D * 2)
    srd(a, R_W1, P_W1, D * DFF * 2)
    srd(a, R_WS, P_WS, WS_END)

    G = Gaps(a)
    PAIRPOS = [0, 2, 1, 3, 4, 5]
    def dma1(g, k, part):
        p, vreg, sb, so, imm = [(0, V_QKV, R_WQ, sBQ, 0), (2, V_QKV, R_WQ, sBQ, 2048), (1, V_QKV, R_WQ, sBV, 0),
                                (3, V_W1, R_W1, sBW, 0), (4, V_W1, R_W1, sBW, 64), (5, V_W1, R_W1, sBW, 128), (6, V_LEFT, R_W1, sBL, 0)][k]
        if part == 0:
            a("s_add_u32 m0, s%d, %d" % (sLB, slot1(g) * STAGE + p * 1024 - imm))
        else:
            a.vmem("buffer_load_dwordx4 v%d, %s, s%d offen offset:%d lds" % (vreg, s4(sb), so, imm), ("B", g))
            if k == 0: G.sal.append("s_mul_i32 s%d, s%d, %d" % (t2, sDL + (g & 3), 64 * 6144))
            if k == 1: G.sal.append("s_add_u32 s%d, s%d, s%d" % (sBQ, sBQ, t2))
            if k == 2: G.sal.append("s_add_u32 s%d, s%d, s%d" % (sBV, sBV, t2))
            if k == 3: G.sal.append("s_mul_i32 s%d, s%d, %d" % (t2, sDL + (g & 3), 64 * 7168))
            if k == 5: G.sal.append("s_add_u32 s%d, s%d, s%d" % (sBW, sBW, t2))
            if k == 6: G.sal.append("s_add_u32 s%d, s%d, s%d" % (sBL, sBL, t2))
    def aload1(s, mt):
        a.vmem("buffer_load_dwordx4 %s, v%d, %s, s%d offen offset:%d" % (r4("a", AR + (s % RA) * 16 + mt * 4), V_L16, s4(R_WS), sA, mt * 1024), ("A", s))
        if mt == MT - 1:
            if s % 2 == 0: G.sal.append("s_add_u32 s%d, s%d, 4096" % (sA, sA))
            else: G.sal.append("s_add_u32 s%d, s%d, s%d" % (sA, sA, sDL + 4 + ((s // 2) & 3)))
    order = []
    for g in range(16):
        for k in range(7): order.append(("B", g, k))
        for s in (2 * g, 2 * g + 1):
            for mt in range(MT): order.append(("A", s, mt))
    def issue1(op):
        G.drain_sal()
        if op[0] == "A": aload1(op[1], op[2])
        else:
            dma1(op[1], op[2], 0); a("s_nop 0"); dma1(op[1], op[2], 1)
        G.drain_sal()
    for _ in range(cfg.get("f_pro1", 15)): issue1(order.pop(0))

    srd(a, R_W2, P_W2, DFF * D * 2)
    srd(a, R_WO, P_WO, D * D * 2)
    a("s_bfe_u32 s%d, s2, 0x30003" % sCLS)
    a("s_lshr_b32 s%d, s2, 6" % t1)
    a("s_lshl_b32 s%d, s%d, 2" % (t1, t1))
    a("s_add_u32 s%d, s%d, s%d" % (t1, t1, sW))
    a("v_bfrev_b32 v%d, 1" % (T + 6))
    a("v_lshrrev_b32 v%d, 5, v%d" % (T + 2, L))
    a("s_lshl_b32 s%d, s%d, 1" % (t0, t1))
    a("v_add_u32 v%d, s%d, v%d" % (T + 2, t0, T + 2))
    a("v_and_b32 v%d, 31, v%d" % (T + 3, L))
    a("v_mul_u32_u24 v%d, 7168, v%d" % (V_P1, T + 2))
    a("v_lshl_add_u32 v%d, v%d, 7, v%d" % (V_P1, T + 3, V_P1))
    a("s_mul_i32 s%d, s%d, 1792" % (t0, sQ))
    a("v_add_u32 v%d, s%d, v%d" % (V_P1, t0, V_P1))
    a("v_mul_u32_u24 v%d, 6144, v%d" % (V_P0, T + 2))
    a("v_lshrrev_b32 v%d, 2, v%d" % (T + 4, T + 3))
    a("v_lshl_add_u32 v%d, v%d, 11, v%d" % (V_P0, T + 4, V_P0))
    a("v_and_b32 v%d, 3, v%d" % (T + 4, T + 3))
    a("v_lshl_add_u32 v%d, v%d, 7, v%d" % (V_P0, T + 4, V_P0))
    a("s_lshl_b32 s%d, s%d, 9" % (t0, sQ))
    a("v_add_u32 v%d, s%d, v%d" % (V_P0, t0, V_P0))
    a("v_cmp_le_u32 vcc, 12, v%d" % (T + 3))
    a("s_and_b32 s%d, s2, 1" % t0)
    a("s_lshl_b32 s%d, s%d, 4" % (t0, t0))
    a("v_cndmask_b32 v%d, v%d, v%d, vcc" % (V_P0, V_P0, T + 6))
    a("v_cmp_le_u32 vcc, 14, v%d" % (T + 3))
    a("s_add_u32 s%d, s%d, s%d" % (t0, t0, t1))
    a("s_lshl_b32 s%d, s%d, 17" % (t0, t0))
    a("v_cndmask_b32 v%d, v%d, v%d, vcc" % (V_P1, V_P1, T + 6))
    a("s_add_u32 s%d, s%d, 0x%x" % (t0, t0, WS_XN))
    a("v_lshlrev_b32 v%d, 7, v%d" % (V_P2, L))
    a("v_add_u32 v%d, s%d, v%d" % (V_P2, t0, V_P2))
    a("v_cmp_le_u32 vcc, 32, v%d" % L)
    a("s_lshl_b32 s%d, s%d, 12" % (t0, sCLS))
    a("s_nop 0")
    a("v_cndmask_b32 v%d, v%d, v%d, vcc" % (V_P2, V_P2, T + 6))
    PFM = cfg.get("f_pf", 3)
    PF0 = cfg.get("f_pf0", 8)
    if PFM & 2:
        a("buffer_load_dword a%d, v%d, %s, s%d offen" % (A_PD, V_P2, s4(R_WS), t0))
    def touch(n):
        lab = a.newlabel("F_pf")
        a("s_cmp_lg_u32 s%d, %d" % (sCLS, n & 7))
        a("s_cbranch_scc1 %s" % lab)
        if PFM & 1:
            a("s_mov_b32 s%d, %d" % (t0, n * 32 * 6144))
            a("s_mov_b32 s%d, %d" % (t1, n * 32 * 7168))
            a("buffer_load_dword a%d, v%d, %s, s%d offen" % (A_PD, V_P0, s4(R_WQ), t0))
            a("buffer_load_dword a%d, v%d, %s, s%d offen" % (A_PD - 1, V_P1, s4(R_W1), t1))
        if PFM & 2:
            a("s_mov_b32 s%d, %d" % (t0, n * 4096))
            a("buffer_load_dword a%d, v%d, %s, s%d offen" % (A_PD, V_P2, s4(R_WS), t0))
        a.label(lab)
    if PFM & 4:
        a("s_and_b32 s%d, s2, 1" % t0)
        a("v_lshrrev_b32 v%d, 5, v%d" % (T + 2, L))
        a("v_cmp_ne_u32 vcc, s%d, v%d" % (t0, T + 2))
        a("s_nop 1")
        a("v_cndmask_b32 v%d, v%d, v%d, vcc" % (V_P0, V_P0, T + 6))
        a("v_cndmask_b32 v%d, v%d, v%d, vcc" % (V_P1, V_P1, T + 6))
    PW = cfg.get("f_pw", 1); PW0 = cfg.get("f_pw0", 12)
    V_PW = 231
    a("v_lshlrev_b32 v%d, 7, v%d" % (V_PW, L))
    a("v_cmp_le_u32 vcc, 56, v%d" % L)
    a("s_nop 1")
    a("v_cndmask_b32 v%d, v%d, v%d, vcc" % (V_PW, V_PW, T + 6))
    def touchw(cls):
        lab = a.newlabel("F_pw")
        if cls is not None:
            a("s_cmp_lg_u32 s%d, %d" % (sCLS, cls))
            a("s_cbranch_scc1 %s" % lab)
        a("s_lshl_b32 s%d, s2, 2" % t0)
        a("s_add_u32 s%d, s%d, s%d" % (t0, t0, sW))
        a("s_mul_i32 s%d, s%d, 7168" % (t1, t0))
        a("buffer_load_dword a%d, v%d, %s, s%d offen" % (A_PD, V_PW, s4(R_W2), t1))
        a("s_lshl_b32 s%d, s%d, 11" % (t1, t0))
        a("s_mov_b64 exec, 0xffff")
        a("buffer_load_dword a%d, v%d, %s, s%d offen" % (A_PD - 1, V_PW, s4(R_WO), t1))
        a("s_mov_b64 exec, -1")
        a.label(lab)
    def touchx(k):
        a("s_lshr_b32 s%d, s2, 3" % t0)
        a("s_lshl_b32 s%d, s%d, 2" % (t0, t0))
        a("s_add_u32 s%d, s%d, s%d" % (t0, t0, sW))
        a("s_lshl_b32 s%d, s%d, 7" % (t1, sQ))
        a("s_add_u32 s%d, s%d, s%d" % (t0, t0, t1))
        if k < 2:
            a("s_mul_i32 s%d, s%d, 14336" % (t1, t0))
            if k: a("s_add_u32 s%d, s%d, 7168" % (t1, t1))
            a("buffer_load_dword a%d, v%d, %s, s%d offen" % (A_PD - k, V_PW, s4(R_W2), t1))
        else:
            a("s_lshl_b32 s%d, s%d, 12" % (t1, t0))
            a("s_mov_b32 exec_hi, 0")
            a("buffer_load_dword a%d, v%d, %s, s%d offen" % (A_PD, V_PW, s4(R_WO), t1))
            a("s_mov_b32 exec_hi, -1")
    pfq = list(range(PF0, KS)) if PFM else []
    PFA = cfg.get("f_pfa", 30)
    a("v_lshrrev_b32 v%d, 5, v%d" % (T + 2, L))
    a("v_mul_u32_u24 v%d, %d, v%d" % (T + 2, REG, T + 2))
    a("v_and_b32 v%d, 3, v%d" % (T + 3, L))
    a("v_lshl_add_u32 v%d, v%d, 3, v%d" % (T + 2, T + 3, T + 2))
    a("v_bfe_u32 v%d, v%d, 2, 2" % (T + 3, L))
    a("v_bfe_u32 v%d, v%d, 4, 1" % (T + 4, L))
    a("v_lshl_add_u32 v%d, v%d, 6, v%d" % (V_RD, T + 3, T + 2))
    a("v_lshl_add_u32 v%d, v%d, 9, v%d" % (V_RD, T + 4, V_RD))
    a("v_lshl_add_u32 v%d, v%d, 5, v%d" % (V_RD, T + 4, V_RD))
    a("v_xor_b32 v%d, 32, v%d" % (V_RD + 1, V_RD))
    a("v_lshl_add_u32 v%d, v%d, 5, v%d" % (V_RD + 2, T + 3, T + 2))
    a("v_lshl_add_u32 v%d, v%d, 7, v%d" % (V_RD + 2, T + 4, V_RD + 2))
    for st_ in (1, 2):
        for x in range(3):
            a("v_add_u32 v%d, %d, v%d" % (V_RD + 3 * st_ + x, st_ * 2 * STAGE, V_RD + x))
    a("s_lshl_b32 s%d, s%d, 7" % (sKV, sJ))
    a("s_lshl_b32 s%d, s%d, 4" % (t0, sI))
    a("s_add_u32 s%d, s%d, s%d" % (sKV, sKV, t0))
    a("s_lshl_b32 s%d, s%d, 2" % (t0, sW))
    a("s_add_u32 s%d, s%d, s%d" % (sKV, sKV, t0))
    a("s_lshl_b32 s%d, s%d, 10" % (sKV, sKV))
    a("s_add_u32 s%d, s%d, 0x%x" % (sKV2, sKV, WS_V))
    a("s_add_u32 s%d, s%d, 0x%x" % (sKV, sKV, WS_K))
    a("s_sub_u32 s%d, s%d, 16384" % (sKP, sKV))
    a("s_sub_u32 s%d, s%d, 16384" % (sKP2, sKV2))
    a("s_cmp_eq_u32 s%d, 0" % sI)
    a("s_cselect_b32 s%d, 0x40000000, s%d" % (sKP, sKP))
    a("s_cselect_b32 s%d, 0x40000000, s%d" % (sKP2, sKP2))
    a("s_lshl_b32 s%d, s2, 2" % sFO)
    a("s_add_u32 s%d, s%d, s%d" % (sFO, sFO, sW))
    a("s_lshl_b32 s%d, s%d, 7" % (sFO, sFO))
    a("s_add_u32 s%d, s%d, 0x%x" % (sFO, sFO, WS_FL))
    a("s_add_u32 s%d, s%d, 1" % (t0, sI))
    a("s_and_b32 s%d, s%d, 3" % (t1, t0))
    a("s_lshl_b32 s%d, s%d, 3" % (t1, t1))
    a("s_lshr_b32 s%d, s%d, 2" % (t0, t0))
    a("s_or_b32 s%d, s%d, s%d" % (t1, t1, t0))
    a("s_and_b32 s%d, s2, 0xe6" % t0)
    a("s_or_b32 s%d, s%d, s%d" % (t1, t1, t0))
    a("s_lshl_b32 s%d, s%d, 2" % (t1, t1))
    a("s_add_u32 s%d, s%d, s%d" % (t1, t1, sW))
    a("s_lshl_b32 s%d, s%d, 7" % (t1, t1))
    a("s_add_u32 s%d, s%d, 0x%x" % (sFK, t1, WS_FL + 12))
    a("s_cmp_eq_u32 s%d, 7" % sI)
    a("s_cselect_b32 s%d, 0x40000000, s%d" % (sFK, sFK))
    a("v_cmp_ne_u32 vcc, 0, v%d" % L)
    a("v_mov_b32 v%d, 1" % V_ONE)
    a("v_and_b32 v%d, 31, v%d" % (V_PL, L))
    a("v_cndmask_b32 v%d, 0, v%d, vcc" % (V_FL0, T + 6))
    a("v_lshlrev_b32 v%d, 2, v%d" % (V_PL, V_PL))
    a("s_and_b32 s%d, s2, 31" % t0)
    a("s_lshl_b32 s%d, s%d, 2" % (t0, t0))
    a("s_add_u32 s%d, s%d, s%d" % (t0, t0, sW))
    a("s_lshl_b32 s%d, s%d, 7" % (t0, t0))
    a("s_lshl_b32 s%d, s%d, 2" % (t1, sN))
    a("s_add_u32 s%d, s%d, s%d" % (t0, t0, t1))
    a("s_add_u32 s%d, s%d, 0x%x" % (t0, t0, WS_FL))
    a("v_lshlrev_b32 v%d, 14, v%d" % (V_FG, L))
    a("v_add_u32 v%d, s%d, v%d" % (V_FG, t0, V_FG))
    a("v_cmp_le_u32 vcc, 8, v%d" % L)
    a("s_lshl_b32 s%d, s%d, 12" % (t0, sW))
    a("s_add_u32 s%d, s%d, %d" % (t0, t0, KVB))
    a("v_cndmask_b32 v%d, v%d, v%d, vcc" % (V_FG, V_FG, T + 6))
    a("v_add_u32 v%d, s%d, v%d" % (V_KVW, t0, V_L16))
    a("s_lshl_b32 s%d, s%d, 2" % (t0, sI))
    a("s_add_u32 s%d, s%d, s%d" % (t0, t0, sW))
    a("s_lshl_b32 s%d, s%d, 17" % (sXO, t0))
    a("s_mul_i32 s%d, s%d, 144" % (t0, t0))
    a("s_mul_i32 s%d, s%d, 36" % (t1, sQ))
    a("s_add_u32 s%d, s%d, s%d" % (t0, t0, t1))
    a("s_lshl_b32 s%d, s%d, 12" % (t0, t0))
    a("s_add_u32 s%d, s%d, 0x%x" % (t0, t0, WS_A2))
    a("s_add_u32 s%d, s%d, %d" % (sAE, t0, 28 * 4096))
    a("s_lshl_b32 s%d, s%d, 12" % (t1, sN))
    a("s_add_u32 s%d, s%d, s%d" % (sO, sAE, t1))
    a("s_mul_i32 s%d, s%d, 7" % (t1, sN))
    a("s_add_u32 s%d, s%d, s%d" % (t1, t1, sJ1))
    a("s_lshl_b32 s%d, s%d, 11" % (t1, t1))
    a("s_add_u32 s%d, s%d, s%d" % (sH, t0, t1))
    a("s_add_u32 s%d, s%d, 4096" % (sH + 1, sH))
    a("s_add_u32 s%d, s%d, 8192" % (sH + 2, sH))
    a("s_mul_i32 s%d, s%d, %d" % (sH + 3, sJ1, -4096 + 8 - 3 * 4096))
    a("s_add_u32 s%d, s%d, %d" % (sH + 3, sH + 3, 3 * 4096))
    a("s_add_u32 s%d, s%d, s%d" % (sH + 3, sH + 3, sH))
    a("s_lshl_b32 s%d, s%d, 8" % (t0, sN))
    a("s_add_u32 s%d, s%d, s%d" % (sXO, sXO, t0))
    a("s_lshl_b32 s%d, s%d, 6" % (t0, sQ))
    a("s_add_u32 s%d, s%d, s%d" % (sXO, sXO, t0))
    a("s_mov_b32 s%d, 0x%x" % (sSC, f2u(QSCALE)))
    def spin(mask, skip_if_i0=False):
        l0 = a.newlabel("F_sp"); l1 = a.newlabel("F_ok")
        if skip_if_i0:
            a("s_cmp_eq_u32 s%d, 0" % sI)
            a("s_cbranch_scc1 %s" % l1)
        a("s_mov_b32 s%d, 0x8000" % sSP)
        a.label(l0)
        a("v_cmp_ne_u32 vcc, 0, v%d" % V_POLL)
        a("s_and_b32 s%d, vcc_lo, 0x%x" % (t0, mask))
        a("s_cmp_eq_u32 s%d, 0x%x" % (t0, mask))
        a("s_cbranch_scc1 %s" % l1)
        a("buffer_load_dword v%d, v%d, %s, s%d offen sc1" % (V_POLL, V_PL, s4(R_WS), sFO))
        a("s_sub_u32 s%d, s%d, 1" % (sSP, sSP))
        a("s_waitcnt vmcnt(0)")
        a("s_cbranch_scc0 %s" % l0)
        a.label(l1)
    def poll_issue(tag):
        a.vmem("buffer_load_dword v%d, v%d, %s, s%d offen sc1" % (V_POLL, V_PL, s4(R_WS), sFO), tag)

    units = [(s, t) for s in range(S1) for t in range(NT)]
    units += [(s, t) for s in range(S1, KS) for t in (2, 3, 4, 5)]
    UKV = len(units)
    units += [(s, t) for s in range(S1, KS) for t in (6, 7, 8, 9)]
    UH01 = len(units)
    units += [(s, t) for s in range(S1, KS) for t in (10, 11, 12, 0, 1)]
    NU = len(units)
    last_unit_of_stage = {}
    last_unit_of_step = {}
    for u, (s, t) in enumerate(units):
        last_unit_of_stage[s // 2] = u; last_unit_of_step[s] = u
    stt = dict(ready=-1, free=set(), waited=-1, issued=-1)
    def barrier():
        a("s_barrier")
        for g, lu in last_unit_of_stage.items():
            if lu <= stt["waited"]: stt["free"].add(g)
    def can1(op):
        if op[0] == "B": return op[1] < NS or (op[1] - NS) in stt["free"]
        return op[1] < RA or last_unit_of_step[op[1] - RA] <= stt["issued"]
    def flush1(tag):
        while any(o[:2] == tag for o in order):
            op = order.pop(0)
            assert can1(op), (op, stt)
            if cfg.get("verbose"): print("late flush", op, file=sys.stderr)
            issue1(op)
    def bread1(u, j2):
        s, t = units[u]
        slot = slot1(s // 2); st_ = slot // 2
        off = (slot % 2) * STAGE + (s % 2) * 2 * REG + j2 * 256
        if t < 12: off += PAIRPOS[t // 2] * 1024; vr = V_RD + 3 * st_ + (t % 2)
        else: off += 6144; vr = V_RD + 3 * st_ + 2
        a.lds("ds_read_b64_tr_b16 %s, v%d offset:%d" % (r2("a", BR + (u % RB) * 4 + j2 * 2), vr, off), ("b", u))
    def need1(u):
        g = units[u][0] // 2
        if g > stt["ready"]:
            flush1(("B", g)); a.wait(vm=("B", g)); barrier(); stt["ready"] = g
    def pack(c0, c1, relu=False):
        ops = []
        for hh, c in enumerate((c0, c1)):
            if c is None: continue
            for e2 in range(2):
                ops.append("v_cvt_pk_bf16_f32 v%d, v%d, v%d" % (c0 + 2 * hh + e2, c + 2 * e2, c + 2 * e2 + 1))
            if relu:
                for e2 in range(2):
                    ops.append("v_pk_max_i16 v%d, v%d, 0" % (c0 + 2 * hh + e2, c0 + 2 * hh + e2))
        return ops
    HF = ["sc1", "", "nt", "sc0"][cfg.get("f_hf", 0)]
    def hstore(p, mt):
        if p < 3: a.vmem("buffer_store_dwordx4 %s, v%d, %s, s%d offen offset:%d %s" % (r4("v", acc(mt, 6 + 2 * p)), V_L16, s4(R_WS), sH + p, mt * 1024, HF), "H")
        else: a.vmem("buffer_store_dwordx2 %s, v%d, %s, s%d offen offset:%d %s" % (r2("v", acc(mt, 12)), V_L16, s4(R_WS), sH + 3, mt * 1024, HF), "H")
    need1(0)
    stampr("bar0")
    for u in range(DB):
        bread1(u, 0); bread1(u, 1)
    kvq = [(acc(mt, 2), acc(mt, 3), sKV, mt * 1024, 16384 + mt * 1024) for mt in range(MT)] + \
          [(acc(2 * b, 4 + dt), acc(2 * b + 1, 4 + dt), sKV2, (2 * b + dt) * 1024, 49152 + (2 * b + dt) * 1024) for b in range(2) for dt in range(2)]
    NREST = NU - UKV
    UFLAG = UKV + cfg.get("f_uf", 28)
    UPOLL = UFLAG + cfg.get("f_up", 14)
    UCHK = min(UPOLL + cfg.get("f_uc", 8), NU - 1)
    UPW = UCHK + cfg.get("f_uw", 14)
    V2_DMA = 209; V_XO = 211; V2_RD = 232; V2_B = 231
    bias = [232, 236, 240, 244]; VONES = 248; VM = 252
    sB2 = sBQ; sBO = sBV
    class Rec:
        def __init__(self): self.l = []
        def __call__(self, x): self.l.append(x)
    su = Rec(); TT = VM
    su("v_lshrrev_b32 v%d, 4, v%d" % (TT, L))
    su("v_lshlrev_b32 v%d, 11, v%d" % (V2_DMA, TT))
    su("v_lshlrev_b32 v%d, 1, v%d" % (TT, TT))
    su("v_and_b32 v%d, 15, v%d" % (TT + 1, L))
    su("v_xor_b32 v%d, v%d, v%d" % (TT, TT, TT + 1))
    su("v_lshl_add_u32 v%d, v%d, 4, v%d" % (V2_DMA, TT, V2_DMA))
    su("v_xor_b32 v%d, 128, v%d" % (V2_DMA + 1, V2_DMA))
    su("v_add_u32 v%d, %d, v%d" % (V2_DMA + 1, 8192 - 1024, V2_DMA + 1))
    su("v_lshrrev_b32 v%d, 4, v%d" % (TT, L))
    su("v_lshlrev_b32 v%d, 2, v%d" % (TT, TT))
    for e in range(4):
        su("v_add_u32 v%d, %d, v%d" % (TT + 2, e, TT))
        su("v_cmp_le_u32 s[%d:%d], v%d, v%d" % (sMK + 2 * e, sMK + 2 * e + 1, TT + 2, TT + 1))
    su("s_lshl_b32 s%d, s%d, 14" % (t2, sW))
    su("s_lshl_b32 s%d, s%d, 8" % (t1, sN))
    su("s_add_u32 s%d, s%d, s%d" % (t2, t2, t1))
    su("s_lshl_b32 s%d, s%d, 19" % (sBO, sQ))
    su("s_add_u32 s%d, s%d, s%d" % (sBO, sBO, t2))
    su("s_mul_i32 s%d, s%d, %d" % (sB0, sQ, 896 * 2048))
    su("s_add_u32 s%d, s%d, s%d" % (sB0, sB0, t2))
    su("s_add_u32 s%d, s%d, %d" % (sBE, sB0, 896 * 2048))
    su("s_mul_i32 s%d, s%d, 7" % (t1, sN))
    su("s_add_u32 s%d, s%d, s%d" % (t1, t1, sJ1))
    su("s_lshl_b32 s%d, s%d, 15" % (t1, t1))
    su("s_add_u32 s%d, s%d, s%d" % (sB2, sB0, t1))
    su("s_lshl_b32 s%d, s%d, 11" % (sLB, sW))
    LIN = cfg.get("f_lin", 1)
    if LIN:
        su("s_sub_u32 s%d, s%d, %d" % (sA, sAE, 28 * 4096))
        su("s_mov_b32 s%d, s%d" % (sAE, sH))
        su("s_add_u32 s%d, s%d, %d" % (sA0, sH, 3 * 4096))
        su("s_mov_b32 s%d, s%d" % (sBW, sB0))
        su("s_mov_b32 s%d, s%d" % (sBE, sB2))
        su("s_add_u32 s%d, s%d, %d" % (sB0, sB2, 3 * 65536))
    else:
        su("s_add_u32 s%d, s%d, %d" % (sA, sH, 3 * 4096))
        su("s_sub_u32 s%d, s%d, %d" % (sA0, sAE, 28 * 4096))
    su("s_cmp_eq_u32 s%d, s%d\ns_cselect_b32 s%d, s%d, s%d" % (sA, sAE, sA, sA0, sA))
    su("s_lshl_b32 s%d, s%d, 2" % (t1, sI))
    su("s_add_u32 s%d, s%d, s%d" % (t1, t1, sW))
    for gq in range(4):
        su("s_cmp_lt_u32 s%d, %d\ns_cselect_b32 s%d, 0x%x, 0" % (t1, 4 - gq, t2, f2u(-1e30)))
        for e in range(4): su("v_mov_b32 v%d, s%d" % (bias[gq] + e, t2))
    for e in range(4): su("v_mov_b32 v%d, 0x3f803f80" % (VONES + e))
    su("v_lshrrev_b32 v%d, 2, v%d" % (TT, L))
    su("v_and_b32 v%d, 7, v%d" % (TT + 2, TT))
    su("v_lshlrev_b32 v%d, 8, v%d" % (TT, TT))
    su("v_and_b32 v%d, 3, v%d" % (TT + 1, L))
    su("v_lshl_add_u32 v%d, v%d, 3, v%d" % (TT, TT + 1, TT))
    su("v_lshl_add_u32 v%d, v%d, 5, v%d" % (V2_B, TT + 2, TT))
    su("s_lshl_b32 s%d, s%d, 6" % (t1, sQ))
    su("s_xor_b32 s%d, s%d, 192" % (t1, t1))
    su("v_xor_b32 v%d, s%d, v%d" % (V2_B, t1, V2_B))
    V_T128 = V_XO
    su("v_lshlrev_b32 v%d, 7, v%d" % (V_T128, L))
    def selftouch(so, half):
        if half: a("s_mov_b32 exec_hi, 0")
        a.vmem("buffer_load_dword a%d, v%d, %s, s%d offen sc1" % (A_PD, V_T128, s4(R_WS), so), "T")
        if half: a("s_mov_b32 exec_hi, -1")
    def kpw(x):
        c0, c1, so, go, lo = kvq[x]
        a.wait(vm=("KP", x))
        a.lds("ds_write_b128 v%d, %s offset:%d" % (V_KVW, r4("v", c1), lo - 16384), "kvw")
    def codepf():
        lab = a.newlabel("F_pc")
        a("s_getpc_b64 s[%d:%d]" % (R_WQ, R_WQ + 1))
        a.label(lab)
        a("s_and_b32 s%d, s%d, 0xffff" % (R_WQ + 1, R_WQ + 1))
        a("s_mov_b32 s%d, CODE_END - %s" % (R_WQ + 2, lab))
        a("s_lshr_b32 s%d, s2, 3" % t0)
        a("s_lshl_b32 s%d, s%d, 2" % (t0, t0))
        a("s_add_u32 s%d, s%d, s%d" % (t0, t0, sW))
        a("s_lshl_b32 s%d, s%d, 9" % (t0, t0))
        a("s_mov_b64 exec, 15")
        a.vmem("buffer_load_dword a%d, v%d, %s, s%d offen" % (A_PD, V_PW, s4(R_WQ), t0), "T")
        a("s_mov_b64 exec, -1")
    seenA = set()
    ramp = (RA - 1 - LA) / float(S1 * NT)
    WM = cfg.get("f_wm", 200) / 100.0
    W0 = cfg.get("f_w0", 60) / 100.0
    UEND = S1 * NT + cfg.get("f_uend", 0)
    wts = [0.0] + [W0] * 3 + [WM if g % 4 == 0 else 1.0 for g in range(4, 16)]
    tau = [0.0]
    for g in range(16): tau.append(tau[-1] + wts[g])
    tau = [x * UEND / tau[-1] for x in tau]
    def due(op):
        g = op[1] if op[0] == "B" else op[1] // 2
        idx = op[2] if op[0] == "B" else 7 + (op[1] % 2) * 4 + op[2]
        return tau[g] + (tau[g + 1] - tau[g]) * idx / 15.0
    THR1 = cfg.get("f_thr1", 63)
    side = G.side
    def prewait1(u):
        s, t = units[u]
        if s not in seenA:
            flush1(("A", s)); seenA.add(s)
            r = a.wait(vm=("A", s), lg=("b", u))
        else: r = a.wait(lg=("b", u))
        stt["waited"] = u
        return r
    prewait1(0)
    for u in range(NU):
        s, t = units[u]
        un = u + DB
        if un < NU: need1(un)
        if u < UKV and s >= S1 - 4 and s < S1 + 1 and s % 2 == 0 and t == (1 if s < S1 else 3): barrier()
        if S1 // 2 <= 12 and u == last_unit_of_stage[12] + 2: barrier()
        if pfq and u % 4 == 2 and pfq[0] - 1 <= (u + PFA) / NT + LA + ramp * (u + PFA): touch(pfq.pop(0))
        if PW & 4:
            for k in range(3):
                if u == S1 * NT + cfg.get("f_px0", 4) + k * cfg.get("f_pxd", 16): touchx(k)
        if PW == 1 and u == UKV - PW0: touchw(None)
        if PW & 3 == 2 and u < S1 * NT and t == 8 and PW0 <= s < PW0 + 8: touchw((s + 4) & 7)
        if u == 16 * NT: stampr("g1half")
        if u < S1 * NT and t == 0: stampr("g1s%d" % s)
        if u == S1 * NT: stampr("g1tail")
        if u == UKV:
            stampr("g1kv")
            if cfg.get("f_cpf", 1): codepf()
        if u == UFLAG:
            stampr("g1flag0")
            a.wait(vm="KV")
            stampr("g1flag1")
            a.vmem("buffer_store_dword v%d, v%d, %s, s%d offen sc1" % (V_ONE, V_FL0, s4(R_WS), sFK), "FK")
        if u == UPOLL: poll_issue("PK")
        if u == UCHK:
            a.wait(vm="PK")
            spin(1 << 3, skip_if_i0=True)
            stampr("g1chk")
            for x, (c0, c1, so, go, lo) in enumerate(kvq):
                def f(c1=c1, so=(sKP if x < 4 else sKP2), go=go, x=x):
                    a.vmem("buffer_load_dwordx4 %s, v%d, %s, s%d offen offset:%d sc1" % (r4("v", c1), V_L16, s4(R_WS), so, go), ("KP", x))
                side.insert(x, ("m", f))
        bf = r4("a", BR + (u % RB) * 4)
        nxt = None
        if order and can1(order[0]) and len(G.sal) <= 1 and due(order[0]) <= u: nxt = order.pop(0)
        for mt in range(MT):
            mz = mt if u % 2 == 0 else MT - 1 - mt
            af = r4("a", AR + (s % RA) * 16 + mz * 4)
            c = r4("v", acc(mz, t))
            src = "0" if s == 0 else c
            if t in (4, 5): a("%s %s, %s, %s, %s" % (MF, c, af, bf, src))
            else:           a("%s %s, %s, %s, %s" % (MF, c, bf, af, src))
            rd = (lambda mt=mt: bread1(un, mt)) if (mt < 2 and un < NU) else None
            if mt == 0: G.gap(fixed=rd)
            elif mt == 1:
                if nxt and nxt[0] == "B": G.gap(first=lambda: (dma1(nxt[1], nxt[2], 0), True)[1], fixed=rd)
                else: G.gap(fixed=rd)
            elif mt == 2:
                if nxt:
                    assert not G.sal
                    G.gap(first=(lambda: a.throttle(THR1)), mem=((lambda: aload1(nxt[1], nxt[2])) if nxt[0] == "A" else (lambda: dma1(nxt[1], nxt[2], 1))))
                else: G.gap()
            else:
                stt["issued"] = u
                G.gap(first=(lambda: prewait1(u + 1)) if u + 1 < NU else None)
        if u == UKV - 1:
            assert 11 in stt["free"], stt
            side += [None] * 5
            for (c0, c1, so, go, lo) in kvq:
                side += pack(c0, c1)
                def f(c0=c0, so=so, go=go):
                    a.vmem("buffer_store_dwordx4 %s, v%d, %s, s%d offen offset:%d sc1" % (r4("v", c0), V_L16, s4(R_WS), so, go), "KV")
                side.append(("m", f))
            for (c0, c1, so, go, lo) in kvq:
                def f(c0=c0, lo=lo):
                    a.lds("ds_write_b128 v%d, %s offset:%d" % (V_KVW, r4("v", c0), lo), "kvw")
                side += [("x", f), None]
            assert not order
            side += su.l
        if u == UPW:
            assert 12 in stt["free"]
            side[:0] = [y for x in range(8) for y in (("x", lambda x=x: kpw(x)), None)]
        if u == UH01 - 1:
            side += [None] * 5
            for p in range(2):
                for mt in range(MT):
                    side += pack(acc(mt, 6 + 2 * p), acc(mt, 7 + 2 * p), relu=True)
                    side.append(("m", lambda p=p, mt=mt: hstore(p, mt)))
                    side += [None] * cfg.get("f_hsp", 4)
    if cfg.get("verbose"): print("G1 side left", len([x for x in side if x is not None]), file=sys.stderr)
    G.drain()
    assert not order
    assert 12 in stt["free"]
    stampr("g1end")

    if UPW >= NU:
        for x in range(8): kpw(x)
    a.wait(lg="kvw")
    a("s_barrier")
    stampr("attbeg")
    KF = 0; VF = 80
    va = []
    for mt in range(MT): va += pack(acc(mt, 10), acc(mt, 11), relu=True)
    for kt in range(20):
        a.lds("ds_read_b128 %s, v%d offset:%d" % (r4("a", KF + 4 * kt), V_KVW, kt * 1024), ("k", kt))
        a(va.pop(0))
    for mt in range(MT):
        for t in (0, 1):
            for e2 in range(2):
                c = acc(mt, t) + 2 * e2
                a("v_pk_mul_f32 v[%d:%d], v[%d:%d], s[%d:%d] op_sel_hi:[1,0]" % (c, c + 1, c, c + 1, sSC, sSC + 1))
        if mt == 0:
            for x in pack(acc(mt, 0), acc(mt, 1)): a(x)
    STCH = cfg.get("f_st", 7)
    a.vm = [("H01" if t == "H" else t) for t in a.vm]
    stq = [(cfg.get("f_st0", 200), sH), (cfg.get("f_st1", 380), sH + 1)] if STCH & 1 else []
    hstore(2, 0)
    for mt in range(1, MT): va += pack(acc(mt, 0), acc(mt, 1))
    for mt in range(MT): va += pack(acc(mt, 12), None, relu=True)
    free = [acc(mt, t) for t in (2, 3, 4, 5, 7, 9) for mt in range(MT)] + [212, 216, 220] + [acc(mt, t) for t in (11, 1) for mt in range(MT)]

    KS2 = 36; NSL = 20
    RA2 = cfg.get("f_ra2", 14); DB2 = cfg.get("f_db2", 3); RB2 = DB2 + 2
    BR2 = RA2 * 16
    assert BR2 + RB2 * 4 <= 256
    def aslot(p): return ((p - 3 + 10) % RA2) * 16
    def dma2_ops(p):
        sb, so = (R_W2, sB2) if p < 28 else (R_WO, sBO)
        ops = [(0, lambda: a("s_add_u32 m0, s%d, %d" % (sLB, (p % NSL) * 8192))),
               (1, lambda: a.vmem("buffer_load_dwordx4 v%d, %s, s%d offen lds" % (V2_DMA, s4(sb), so), ("B2", p))),
               (1, lambda: a.vmem("buffer_load_dwordx4 v%d, %s, s%d offen offset:1024 lds" % (V2_DMA + 1, s4(sb), so), ("B2", p)))]
        if LIN and p == 2:
            ops.append((0, lambda: a("s_mov_b32 s%d, s%d" % (sB2, sBW))))
        elif p != 27 and p != 35:
            ops.append((0, lambda: a("s_add_u32 s%d, s%d, 65536" % (so, so))))
        if p < 27 and not (LIN and p < 2):
            ops.append((0, lambda: a("s_cmp_eq_u32 s%d, s%d\ns_cselect_b32 s%d, s%d, s%d" % (sB2, sBE, sB2, sB0, sB2))))
        return ops
    def aload2(p, mt):
        a.vmem("buffer_load_dwordx4 %s, v%d, %s, s%d offen offset:%d %s" % (r4("a", aslot(p) + mt * 4), V_L16, s4(R_WS), sA, mt * 1024, ["sc1", "sc1 nt", ""][cfg.get("f_af", 0)]), ("A2", p))
        if mt == MT - 1:
            if p == 27 and not LIN: G.sal.append("s_mov_b32 s%d, s%d" % (sA, sAE))
            else:
                G.sal.append("s_add_u32 s%d, s%d, 4096" % (sA, sA))
                if p <= 27: G.sal.append("s_cmp_eq_u32 s%d, s%d\ns_cselect_b32 s%d, s%d, s%d" % (sA, sAE, sA, sA0, sA))
    hst = [(2, 1), (2, 2), (2, 3)] + [(3, mt) for mt in range(MT)]
    NPRE = cfg.get("f_npre", NSL)
    assert NPRE >= 3
    pre = []
    for p in range(NPRE): pre += [(p,) + op for op in dma2_ops(p)]

    S_ = {}; P_ = {}; O_ = {}
    def s_mfma(qa, kt):
        q = free.pop(0); S_[(qa, kt)] = q
        a.wait(lg=("k", kt))
        c = r4("v", bias[kt // 4]) if kt < 16 else "0"
        a("%s %s, %s, %s, %s" % (MF, r4("v", q), r4("a", KF + 4 * kt), r4("v", acc(qa, 0)), c))
    def pv_list(qa):
        b0 = qa // 2
        out = []
        for b in range(b0, b0 + 9):
            for z in range(3):
                def f(b=b, z=z):
                    if b == b0: O_[(qa, z)] = free.pop(0)
                    o = r4("v", O_[(qa, z)])
                    if z < 2:
                        a.wait(lg=("v", 2 * b + z)); A = r4("a", VF + (2 * b + z) * 4)
                    else: A = r4("v", VONES)
                    a("%s %s, %s, %s, %s" % (MF, o, A, r4("v", P_[(qa, b)]), "0" if b == b0 else o))
                    if z == 2: free.append(P_[(qa, b)])
                out.append(f)
        return out
    def fin_list(qa):
        o0, o1, sm = O_[(qa, 0)], O_[(qa, 1)], O_[(qa, 2)]
        ops = ["v_rcp_f32 v%d, v%d" % (sm, sm), "s_nop 0"]
        for o in (o0, o1):
            for e in range(4): ops.append("v_mul_f32 v%d, v%d, v%d" % (o + e, o + e, sm))
        ops += pack(o0, o1)
        def f():
            a.vmem("buffer_store_dwordx4 %s, v%d, %s, s%d offen offset:%d %s" % (r4("v", o0), V_L16, s4(R_WS), sO, qa * 1024, HF), "O")
            free.extend([o1, sm]); late_free.append(o0)
        ops.append(f)
        return ops
    late_free = []
    pready = set()
    def soft_list(qa):
        k0, k1 = qa, qa + 16
        ops = []
        f_, l_ = S_[(qa, k0)], S_[(qa, k1)]
        for e in range(4):
            ops.append((1, "v_cndmask_b32 v%d, v%d, v%d, s[%d:%d]" % (f_ + e, f_ + e, l_ + e, sMK + 2 * e, sMK + 2 * e + 1)))
        quads = [S_[(qa, kt)] for kt in range(k0 + 1, k1)] + [f_]
        m0, m1 = VM, VM + 1
        ops.append((1, "v_max_f32 v%d, v%d, v%d" % (m0, quads[0], quads[0] + 1)))
        ops.append((1, "v_max_f32 v%d, v%d, v%d" % (m1, quads[0] + 2, quads[0] + 3)))
        ops.insert(2, (0, "SLOT")); ops.insert(5, (0, "SLOT")); ops.append((0, "SLOT"))
        for q in quads[1:]:
            ops.append((1, "v_max3_f32 v%d, v%d, v%d, v%d" % (m0, m0, q, q + 1)))
            ops.append((1, "v_max3_f32 v%d, v%d, v%d, v%d" % (m1, m1, q + 2, q + 3)))
            ops.append((0, "SLOT"))
        ops.append((1, "v_max_f32 v%d, v%d, v%d" % (m0, m0, m1)))
        for op in ("v_permlane16_swap_b32", "v_permlane32_swap_b32"):
            ops.append((1, "v_mov_b32 v%d, v%d" % (m1, m0)))
            ops.append((2, "s_nop 1"))
            ops.append((1, "%s v%d, v%d" % (op, m0, m1)))
            ops.append((2, "s_nop 1"))
            ops.append((1, "v_max_f32 v%d, v%d, v%d" % (m0, m0, m1)))
        def subexp(q):
            r = []
            for e2 in range(2):
                r.append((1, "v_pk_add_f32 v[%d:%d], v[%d:%d], v[%d:%d] op_sel_hi:[1,0] neg_lo:[0,1] neg_hi:[0,1]" % (q + 2 * e2, q + 2 * e2 + 1, q + 2 * e2, q + 2 * e2 + 1, m0, m0 + 1)))
            for e in range(4):
                if e < 2: r.append((0, "SLOT"))
                r.append((2, "v_exp_f32 v%d, v%d" % (q + e, q + e)))
            r.append((0, "MEM"))
            return r
        ops += subexp(f_)
        ops += subexp(S_[(qa, k0 + 1)])
        for e in range(4):
            ops.append((1, "v_cndmask_b32 v%d, 0, v%d, s[%d:%d]" % (l_ + e, f_ + e, sMK + 2 * e, sMK + 2 * e + 1)))
        for e in range(4):
            ops.append((1, "v_cndmask_b32 v%d, v%d, 0, s[%d:%d]" % (f_ + e, f_ + e, sMK + 2 * e, sMK + 2 * e + 1)))
        done = {k0, k0 + 1, k1}
        b0 = qa // 2
        pend_pack = None
        for b in range(b0, b0 + 9):
            for kt in (2 * b, 2 * b + 1):
                if k0 <= kt <= k1 and kt not in done:
                    ops += subexp(S_[(qa, kt)]); done.add(kt)
            if pend_pack: ops += pend_pack
            lo, hi = S_.get((qa, 2 * b)), S_.get((qa, 2 * b + 1))
            pk = []
            if lo is None:
                d = hi
                pk.append((1, "v_cvt_pk_bf16_f32 v%d, v%d, v%d" % (d + 3, d + 2, d + 3)))
                pk.append((1, "v_cvt_pk_bf16_f32 v%d, v%d, v%d" % (d + 2, d, d + 1)))
                pk.append((1, "v_mov_b32 v%d, 0" % d)); pk.append((1, "v_mov_b32 v%d, 0" % (d + 1)))
            elif hi is None:
                d = lo
                pk += [(1, x) for x in pack(d, None)]
                pk.append((1, "v_mov_b32 v%d, 0" % (d + 2))); pk.append((1, "v_mov_b32 v%d, 0" % (d + 3)))
            else:
                d = lo
                pk += [(1, x) for x in pack(lo, hi)]
                pk.append((0, (lambda hi=hi: free.append(hi))))
            P_[(qa, b)] = d
            pk.append((0, (lambda b=b: pready.add((qa, b)))))
            pend_pack = pk
        ops.append((1, "s_nop 0"))
        ops += pend_pack
        return ops
    def run(op):
        if isinstance(op, str): a(op)
        else: op()
    vr = list(range(20))
    def vread():
        f = vr.pop(0)
        a.lds("ds_read_b128 %s, v%d offset:%d" % (r4("a", VF + 4 * f), V_KVW, 32768 + f * 1024), ("v", f))
    for kt in range(17):
        s_mfma(0, kt)
        vread(); a(va.pop(0))
    while vr:
        vread(); a(va.pop(0))
    hstore(*hst.pop(0))
    while va: a(va.pop(0))
    HGAP = cfg.get("f_hgap", 40); PGAP = cfg.get("f_pgap", 16)
    HFL = cfg.get("f_hfl", 480)
    HPO = cfg.get("f_hpo", 800)
    HCK = cfg.get("f_hck", 880)
    hok = False
    ordA = [("A2", p, mt) for p in range(3, KS2) for mt in range(MT)]
    napre = cfg.get("f_apre", 16)
    pv3 = pv_list(3); pv3b = [1 + x // 3 for x in range(27)]
    kvbar = False; hflag = False; hpoll = False
    cost_total = 0; next_h = HGAP; next_p = 0
    for qa in range(4):
        stampr("att%d" % qa)
        ops = soft_list(qa)
        tot = sum(c for c, _ in ops)
        pv = pv_list(qa - 1) if qa > 0 else []
        fin = None
        sm = [(qa + 1, kt) for kt in range(qa + 1, qa + 18)] if qa < 3 else []
        c = 0
        pv_done_at = None
        for (cost, op) in ops:
            if op == "SLOT":
                did = False
                if pv:
                    pv.pop(0)(); did = True
                    if not pv: pv_done_at = c
                elif sm and len(free) > 0 and c >= tot * 0.2:
                    s_mfma(*sm.pop(0)); did = True
                elif qa == 3 and pv3 and (3, pv3b[0]) in pready:
                    pv3.pop(0)(); pv3b.pop(0); did = True
                if did and G.sal:
                    a(G.sal.pop(0)); continue
                if did and pre and pre[0][1] == 0 and (kvbar or pre[0][0] < 12): pre.pop(0)[2]()
                continue
            if op == "MEM":
                if qa > 0 and fin is None and pv_done_at is not None and c >= pv_done_at + 18:
                    fin = fin_list(qa - 1)
                    for x in fin: run(x)
                elif hst and cost_total >= next_h:
                    hstore(*hst.pop(0)); next_h = cost_total + HGAP
                elif stq and cost_total >= stq[0][0]:
                    a.wait(vm="H01"); selftouch(stq.pop(0)[1], True)
                elif not hst and not hflag and cost_total >= HFL:
                    a.wait(vm="H")
                    a.vmem("buffer_store_dword v%d, v%d, %s, 0 offen offset:32 sc1" % (V_ONE, V_FG, s4(R_WS)), "FH")
                    hflag = True
                    if STCH & 2: selftouch(sH + 2, True)
                elif hflag and not hpoll and cost_total >= HPO:
                    poll_issue("PH"); hpoll = True
                elif hpoll and not hok and cost_total >= HCK:
                    a.wait(vm="PH"); spin(0xff00); hok = True
                    stampr("g2h")
                elif hok and napre > 0:
                    G.drain_sal()
                    op_ = ordA.pop(0); aload2(op_[1], op_[2]); napre -= 1
                elif pre and pre[0][1] == 1 and cost_total >= next_p:
                    pre.pop(0)[2](); next_p = cost_total + PGAP
                continue
            run(op); c += cost; cost_total += cost
            if qa == 0 and not kvbar and c >= 30:
                a.wait(lg=("v", 19)); a("s_barrier"); kvbar = True
        assert not pv and (qa == 0 or fin)
        free.extend(late_free); del late_free[:]
        if sm and cfg.get("verbose"): print("late S mfmas", qa, len(sm), file=sys.stderr)
        late = bool(sm)
        while sm: s_mfma(*sm.pop(0))
        if late: a("s_nop 7")
    if cfg.get("verbose"): print("attention cost", cost_total, "pre left", len(pre), file=sys.stderr)
    stampr("att4")
    assert not hst and hflag and hpoll
    if not hok: napre = 0
    while pre:
        pre.pop(0)[2](); a("s_nop 0")
    G.drain_sal()
    a("v_mov_b32 v%d, v%d" % (V2_RD, V2_B))
    a("v_xor_b32 v%d, 32, v%d" % (V2_RD + 1, V2_B))
    xr = ["v_xor_b32 v%d, %d, v%d" % (V2_RD + t, t * 32, V2_B) for t in range(2, 8)]
    if cfg.get("verbose"): print("pv3 left", len(pv3), "apre left", napre, file=sys.stderr)
    for f in pv3:
        f()
        if napre > 0:
            op_ = ordA.pop(0); aload2(op_[1], op_[2]); napre -= 1; G.drain_sal()
        else:
            for _ in range(2):
                if xr: a(xr.pop(0))
    while xr: a(xr.pop(0))
    stampr("attend")

    NT2 = 8
    DL = cfg.get("f_dl", 12); S2 = KS2 - DL
    assert RA2 >= DL
    own = set(acc(mt, 6 + 2 * p) for p in range(3) for mt in range(MT))
    busy = own | set(O_[(3, z)] for z in range(3)) | {208}
    q2 = [q for q in range(0, 224, 4) if q not in busy]
    acc2 = {}
    for t in range(NT2):
        for mt in range(MT): acc2[(mt, t)] = q2.pop(0)
    VX = [q2.pop(0) for _ in range(4)]
    TT = q2.pop(0); V_XI = TT + 2
    R_X = R_WQ; R_OUT = R_W1
    rec = Rec()
    rec.l += [None] * 5 + [x if isinstance(x, str) else ("m", x) for x in fin_list(3)]
    for st_ in (1, 2):
        for t in range(8): rec("v_add_u32 v%d, 0x%x, v%d" % (V2_RD + 8 * st_ + t, st_ * 0x10000, V2_RD + t))
    srd(rec, R_X, P_X, S * D * 2)
    srd(rec, R_OUT, P_OUT, S * D * 2)
    rec2 = Rec()
    rec2("v_and_b32 v%d, 15, v%d" % (TT, L))
    rec2("v_lshlrev_b32 v%d, 11, v%d" % (V_XO, TT))
    rec2("v_lshrrev_b32 v%d, 4, v%d" % (TT, L))
    rec2("v_lshl_add_u32 v%d, v%d, 3, v%d" % (V_XI, TT, V_XO))
    rec2("v_bfe_u32 v%d, v%d, 4, 1" % (TT, L))
    rec2("v_lshl_add_u32 v%d, v%d, 5, v%d" % (V_XO, TT, V_XO))
    rec2("v_lshrrev_b32 v%d, 5, v%d" % (TT, L))
    rec2("v_lshl_add_u32 v%d, v%d, 4, v%d" % (V_XO, TT, V_XO))
    sSX = [sKV, sKV2, sKP]; sSF = [sKP2, sFK, sH]; sRX = sH + 1
    for lam in range(3):
        rec("s_xor_b32 s%d, s2, %d" % (t1, (lam ^ 3) << 1))
        rec("s_lshl_b32 s%d, s%d, 2" % (t1, t1))
        rec("s_add_u32 s%d, s%d, s%d" % (t1, t1, sW))
        rec("s_mul_i32 s%d, s%d, 12288" % (sSX[lam], t1))
        rec("s_add_u32 s%d, s%d, 0x%x" % (sSX[lam], sSX[lam], WS_XC + lam * 4096))
        rec("s_lshl_b32 s%d, s%d, 7" % (sSF[lam], t1))
        rec("s_add_u32 s%d, s%d, 0x%x" % (sSF[lam], sSF[lam], WS_FL + lam * 4))
    rec("s_lshl_b32 s%d, s2, 2" % t1)
    rec("s_add_u32 s%d, s%d, s%d" % (t1, t1, sW))
    rec("s_mul_i32 s%d, s%d, 12288" % (sRX, t1))
    rec("s_add_u32 s%d, s%d, 0x%x" % (sRX, sRX, WS_XC))
    side = G.side
    side += rec.l

    units = [(p, t) for p in range(S2) for t in range(NT2)]
    for lam in range(4):
        units += [(p, t) for p in range(S2, KS2) for t in (2 * lam, 2 * lam + 1)]
    NU = len(units)
    UT = S2 * NT2; PL = 2 * DL
    last_unit = {}
    for u, (p, t) in enumerate(units): last_unit[p] = u
    stt = dict(ready=-1, free=set(), waited=-1, issued=-1, ook=False, hok=hok)
    ordB = [("B2", p) for p in range(NPRE, KS2)]
    def barrier2():
        a("s_barrier")
        for p, lu in last_unit.items():
            if lu <= stt["waited"]: stt["free"].add(p)
    def can2(op):
        if op[0] == "B2": return op[1] < NSL or (op[1] - NSL) in stt["free"]
        if not stt["hok"] or (op[1] >= 28 and not stt["ook"]): return False
        return op[1] - 3 < RA2 or last_unit[op[1] - RA2] <= stt["issued"]
    def issue2(op):
        if cfg.get("verbose"): print("late flush2", op, file=sys.stderr)
        G.drain_sal()
        if op[0] == "A2": aload2(op[1], op[2])
        else:
            for x in dma2_ops(op[1]): x[1](); a("s_nop 0")
        G.drain_sal()
    def flush2(q, tag):
        while any(o[:2] == tag for o in q):
            op = q.pop(0); assert can2(op), (op, stt); issue2(op)
    def bread2(u, j2):
        p, t = units[u]
        sl = p % NSL
        a.lds("ds_read_b64_tr_b16 %s, v%d offset:%d" % (r2("a", BR2 + (u % RB2) * 4 + j2 * 2), V2_RD + 8 * (sl // 8) + t, (sl % 8) * 8192 + j2 * 4096), ("b2", u))
    def need2(u):
        p = units[u][0]
        if p > stt["ready"]:
            flush2(ordB, ("B2", p))
            grp = cfg.get("f_bgrp", 4)
            top = max(x for x in range(p, min(p + grp, KS2)) if not any(o[1] == x for o in ordB))
            if p == 0: top = NPRE - 1
            a.wait(vm=("B2", top)); barrier2(); stt["ready"] = top
    need2(0)
    for u in range(DB2):
        bread2(u, 0); bread2(u, 1)
    stampr("g2beg")
    UOF = cfg.get("f_uof", 26)
    UOP = cfg.get("f_uop", 80); UOC = UOP + 12
    seenA = {0, 1, 2}
    xdone = False
    rq = sorted(own)
    def flag(lam):
        a.wait(vm=("S", lam))
        a.vmem("buffer_store_dword v%d, v%d, %s, s%d offen sc1" % (V_ONE, V_FL0, s4(R_WS), sSF[lam]), ("F", lam))
    def recv(lam, mt):
        a.vmem("buffer_load_dwordx4 %s, v%d, %s, s%d offen offset:%d sc1" % (r4("v", rq[4 * lam + mt]), V_L16, s4(R_WS), sRX, mt * 1024), ("R", lam, mt))
        if mt == 3 and lam < 2: a("s_add_u32 s%d, s%d, 4096" % (sRX, sRX))
    PS = lambda mt, hh: acc2[(mt, hh)]
    def addpk(dst, src, first=False):
        ops = []
        for hh in range(2):
            for e2 in range(2):
                pp = src + 2 * hh + e2; c = dst[hh] + 2 * e2
                if first:
                    ops += ["v_lshlrev_b32 v%d, 16, v%d" % (c, pp), "v_and_b32 v%d, 0xffff0000, v%d" % (c + 1, pp)]
                else:
                    ops += ["v_lshlrev_b32 v%d, 16, v%d" % (TT, pp), "v_and_b32 v%d, 0xffff0000, v%d" % (TT + 1, pp),
                            "v_pk_add_f32 v[%d:%d], v[%d:%d], v[%d:%d]" % (c, c + 1, c, c + 1, TT, TT + 1)]
        return ops
    FD = cfg.get("f_fd", PL - 2)
    ev = {}
    def at(u, f): ev.setdefault(u, []).append(f)
    at(UT + PL + FD, lambda: flag(0))
    at(UT + 2 * PL + FD, lambda: flag(1))
    UP0 = UT + 3 * PL + cfg.get("f_p0", -8)
    at(UP0, lambda: poll_issue("P0"))
    def chk0():
        a.wait(vm="P0"); spin(1)
        for mt in range(MT): side.append(("m", lambda mt=mt: recv(0, mt)))
    at(UP0 + cfg.get("f_c0", 14), chk0)
    def presum():
        side.append(("s", lambda: a.wait(vm="X")))
        for mt in range(MT): side.extend(addpk([PS(mt, 0), PS(mt, 1)], VX[mt], first=True))
    at(UT + 2 * PL + PL // 2, presum)
    first_unit = {}
    for u, (p, t) in enumerate(units): first_unit.setdefault(p, u)
    NOPS = len(ordA) + 2 * len(ordB)
    UE2 = UT + cfg.get("f_ue2", 0)
    MARG = cfg.get("f_marg", 20)
    THR2 = cfg.get("f_thr2", 63)
    def prewait2(u):
        p, t = units[u]
        if p not in seenA:
            flush2(ordA, ("A2", p)); seenA.add(p)
            r = a.wait(vm=("A2", p), lg=("b2", u))
        else: r = a.wait(lg=("b2", u))
        stt["waited"] = u
        return r
    def b2sal(p):
        so = sB2 if p < 28 else sBO
        if p != 27 and p != 35: G.sal.append("s_add_u32 s%d, s%d, 65536" % (so, so))
        if p < 27: G.sal.append("s_cmp_eq_u32 s%d, s%d\ns_cselect_b32 s%d, s%d, s%d" % (sB2, sBE, sB2, sB0, sB2))
    prewait2(0)
    half = None
    for u in range(NU):
        p, t = units[u]
        un = u + DB2
        if u == UOF:
            a.wait(vm="O")
            a.vmem("buffer_store_dword v%d, v%d, %s, 0 offen offset:64 sc1" % (V_ONE, V_FG, s4(R_WS)), "FO")
            if STCH & 4: selftouch(sO, True)
            side.extend(rec2.l)
        if u == cfg.get("f_uh", 4) and not stt["hok"]:
            a.wait(vm="PH"); spin(0xff00); stt["hok"] = True
            stampr("g2h")
        if u < UT and t == 1: stampr("g2p%d" % p)
        if u == UT: stampr("g2tail")
        if u > UT and (u - UT) % PL == 0: stampr("g2l%d" % ((u - UT) // PL))
        if u == UOP: poll_issue("PO")
        if u == UOC:
            a.wait(vm="PO"); spin(0xff0000); stt["ook"] = True
        for f in ev.get(u, []): f()
        if un < NU and units[un][0] > stt["ready"]:
            if half is not None:
                dma2_ops(half)[2][1](); b2sal(half); half = None
            need2(un)
        if u < UT and t == 2 and p % 4 == 0 and p > 0 and p - 4 + NSL < KS2: barrier2()
        bf = r4("a", BR2 + (u % RB2) * 4)
        pre_ = None; mem_ = None
        if half is not None:
            def mem_(h=half): dma2_ops(h)[2][1](); b2sal(h)
            half = None
        elif len(G.sal) <= 1:
            cand = [q for q in (ordA, ordB) if q and can2(q[0])]
            if cand:
                cand.sort(key=lambda q: q[0][1] - (cfg.get("f_bprio", 6) if q[0][0] == "B2" else 0))
                done_ = NOPS - len(ordA) - 2 * len(ordB)
                if done_ * UE2 <= u * NOPS or first_unit[cand[0][0][1]] - u <= MARG + (16 if cand[0][0][0] == "B2" else 0):
                    nxt = cand[0].pop(0)
                    if nxt[0] == "B2":
                        ops_ = dma2_ops(nxt[1])
                        pre_ = lambda o=ops_: (o[0][1](), True)[1]
                        mem_ = ops_[1][1]; half = nxt[1]
                    else:
                        mem_ = lambda n_=nxt: aload2(n_[1], n_[2])
        if not ordA and not ordB and half is None and not xdone and mem_ is None:
            xdone = True
            for mt in range(MT):
                for hh in range(2):
                    def f(mt=mt, hh=hh):
                        a.vmem("buffer_load_dwordx2 %s, v%d, %s, s%d offen offset:%d" % (r2("v", VX[mt] + 2 * hh), V_XI, s4(R_X), sXO, hh * 32), "X")
                    side += [("m", f), None]
                side.append("s_add_u32 s%d, s%d, %d" % (sXO, sXO, 32768 if mt < 3 else -3 * 32768))
        for mt in range(MT):
            mz = mt if u % 2 == 0 else MT - 1 - mt
            af = r4("v", acc(mz, 6 + 2 * p)) if p < 3 else r4("a", aslot(p) + mz * 4)
            c = r4("v", acc2[(mz, t)])
            a("%s %s, %s, %s, %s" % (MF, c, bf, af, "0" if p == 0 else c))
            rd = (lambda mt=mt: bread2(un, mt)) if (mt < 2 and un < NU) else None
            if mt == 0: G.gap(fixed=rd)
            elif mt == 1: G.gap(first=pre_, fixed=rd)
            elif mt == 2:
                if mem_:
                    assert not G.sal
                    G.gap(first=(lambda: a.throttle(THR2)), mem=mem_)
                else: G.gap()
            else:
                stt["issued"] = u
                G.gap(first=(lambda: prewait2(u + 1)) if u + 1 < NU else None)
        if u >= UT and (u - UT) % PL == PL - 1:
            lam = (u - UT) // PL
            if lam < 3:
                new_ = [None] * 5
                for mt in range(MT):
                    new_ += pack(acc2[(mt, 2 * lam)], acc2[(mt, 2 * lam + 1)])
                    def f(mt=mt, lam=lam):
                        a.vmem("buffer_store_dwordx4 %s, v%d, %s, s%d offen offset:%d sc1" % (r4("v", acc2[(mt, 2 * lam)]), V_L16, s4(R_WS), sSX[lam], mt * 1024), ("S", lam))
                    new_.append(("m", f))
                side[:0] = new_
    if cfg.get("verbose"): print("G2 side left", len([x for x in side if x is not None]), file=sys.stderr)
    G.drain()
    assert not ordA and not ordB and xdone
    stampr("g2end")
    flag(2)
    poll_issue("P1")
    stampr("x1")
    for mt in range(MT):
        a.wait(vm=("R", 0, mt))
        for x in addpk([PS(mt, 0), PS(mt, 1)], rq[mt]): a(x)
    a.wait(vm="P1"); spin(2)
    stampr("x2")
    for mt in range(MT): recv(1, mt)
    poll_issue("P2")
    for mt in range(MT):
        for hh in range(2):
            for e2 in range(2):
                c = PS(mt, hh) + 2 * e2; o_ = acc2[(mt, 6 + hh)] + 2 * e2
                a("v_pk_add_f32 v[%d:%d], v[%d:%d], v[%d:%d]" % (c, c + 1, c, c + 1, o_, o_ + 1))
    a.wait(vm="P2"); spin(4)
    stampr("x3")
    for mt in range(MT): recv(2, mt)
    for mt in range(MT):
        for x in addpk([PS(mt, 0), PS(mt, 1)], rq[4 + mt]): a(x)
    stampr("x4")
    for mt in range(MT):
        a.wait(vm=("R", 2, mt))
        for x in addpk([PS(mt, 0), PS(mt, 1)], rq[8 + mt]): a(x)
        c0 = PS(mt, 0)
        if cfg.get("eps"):
            for hh in range(2):
                for e in range(4): a("v_mul_f32 v%d, 0x%x, v%d" % (PS(mt, hh) + e, f2u(1.0 + cfg["eps"] / 10000.0), PS(mt, hh) + e))
        for x in pack(c0, PS(mt, 1)): a(x)
        a("s_nop 1")
        a("v_permlane16_swap_b32 v%d, v%d" % (c0, c0 + 2))
        a("v_permlane16_swap_b32 v%d, v%d" % (c0 + 1, c0 + 3))
        a.vmem("buffer_store_dwordx4 %s, v%d, %s, s%d offen %s" % (r4("v", c0), V_XO, s4(R_OUT), sXO, ["", "sc1", "nt"][cfg.get("f_of", 0)]), "OUT")
        if mt < 3: a("s_add_u32 s%d, s%d, 32768" % (sXO, sXO))
    stampr("x5")
    if ST:
        a("s_waitcnt vmcnt(0)")
        stampr("end")
        a("s_waitcnt lgkmcnt(0)")
        for i in range(8): a("v_mov_b32 v%d, s%d" % (i, STB + 2 * i))
        a("s_lshl_b32 s%d, s2, 2" % t0)
        a("s_add_u32 s%d, s%d, s%d" % (t0, t0, sW))
        a("s_lshl_b32 s%d, s%d, 5" % (t0, t0))
        a("v_mov_b32 v8, 0")
        a("s_nop 4")
        a("buffer_store_dwordx4 v[0:3], v8, %s, s%d offen" % (s4(R_WS), t0))
        a("buffer_store_dwordx4 v[4:7], v8, %s, s%d offen offset:16" % (s4(R_WS), t0))
    a.label("F_end")
    a("s_endpgm")
    kernel_desc(a, name, 256, sgpr=102, accum=256, agpr=256)
    return "; @launch kernel=%s grid=(256,1,1) block=(256,1,1) lds=163840" % name

gen.gen_f = gen_f

if __name__ == "__main__":
    cfg = dict(g1_mt=4)
    out = sys.argv[1]
    kernels = sys.argv[2].split(",")
    for kv in sys.argv[3:]:
        k, v = kv.split("="); cfg[k] = int(v, 0)
    open(out, "w").write(gen.build(cfg, kernels))
```

```python
import sys, math
from asmlib import *

NAME = "parallel_sum__sliding_block__dense_activation_relu__prompt"
S, D, DFF, H = 2048, 1024, 3584, 32
WS_XN = 0x0100000
WS_Q  = 0x0500000
WS_K  = 0x0900000
WS_V  = 0x0D00000
WS_A2 = 0x1100000
A2_BYTES = 128 * 144 * 1024
WS_XC = WS_A2 + A2_BYTES
XC_BYTES = 256 * 4 * 3 * 4096
WS_FL = WS_XC + XC_BYTES
FL_BYTES = 256 * 4 * 128
WS_LF = WS_FL + FL_BYTES
WS_END = WS_LF + 8 * 4096
QSCALE = (32 ** -0.5) * math.log2(math.e)

import struct
def f2u(f): return struct.unpack("<I", struct.pack("<f", f))[0]

class Prog(Asm):
    def __init__(self):
        super().__init__()
        self.reset()
    def reset(self):
        self.vm = []; self.vm_done = 0
        self.lg = []; self.lg_done = 0
    def vmem(self, text, tag=None):
        self(text); self.vm.append(tag)
    def lds(self, text, tag=None):
        self(text); self.lg.append(tag)
    def _need(self, q, done, tag, cap):
        idx = max(i for i, t in enumerate(q) if t == tag)
        if idx < done: return None, done
        n = len(q) - idx - 1
        n = min(n, cap)
        return n, len(q) - n
    def wait(self, vm=None, lg=None):
        parts = []
        if vm is not None:
            n, self.vm_done = self._need(self.vm, self.vm_done, vm, 63)
            if n is not None: parts.append("vmcnt(%d)" % n)
        if lg is not None:
            n, self.lg_done = self._need(self.lg, self.lg_done, lg, 15)
            if n is not None: parts.append("lgkmcnt(%d)" % n)
        if parts:
            self("s_waitcnt " + " ".join(parts)); return True
        return False
    def throttle(self, n):
        if len(self.vm) - self.vm_done > n:
            self("s_waitcnt vmcnt(%d)" % n); self.vm_done = len(self.vm) - n
            return True
        return False
    def wait_all(self, vm=True, lg=True):
        parts = []
        if vm: parts.append("vmcnt(0)"); self.vm_done = len(self.vm)
        if lg: parts.append("lgkmcnt(0)"); self.lg_done = len(self.lg)
        self("s_waitcnt " + " ".join(parts))

def r4(p, b): return "%s[%d:%d]" % (p, b, b + 3)
def r2(p, b): return "%s[%d:%d]" % (p, b, b + 1)

def srd_off(a, d, base, off, nbytes):
    a("s_add_u32 s%d, s%d, 0x%x" % (d, base, off))
    a("s_addc_u32 s%d, s%d, 0" % (d + 1, base + 1))
    a("s_and_b32 s%d, s%d, 0xffff" % (d + 1, d + 1))
    a("s_mov_b32 s%d, 0x%x" % (d + 2, nbytes))
    a("s_mov_b32 s%d, 0x00020000" % (d + 3))

def stamp(a, cfg, idx, sreg):
    if cfg.get("stamp"):
        a("s_memtime s[%d:%d]" % (sreg, sreg + 1))

def ln_math(a):
    for i in range(16):
        a("v_lshlrev_b32 v%d, 16, v%d" % (24 + 2 * i, 8 + i))
        a("v_and_b32 v%d, 0xffff0000, v%d" % (25 + 2 * i, 8 + i))
    a("v_add_f32 v56, v24, v25")
    a("v_add_f32 v57, v26, v27")
    for i in range(4, 32, 2):
        a("v_add_f32 v56, v56, v%d" % (24 + i))
        a("v_add_f32 v57, v57, v%d" % (25 + i))
    a("v_add_f32 v56, v56, v57")
    def xlane_sum(r, t):
        a("s_nop 1")
        a("v_add_f32_dpp v%d, v%d, v%d row_ror:8 row_mask:0xf bank_mask:0xf" % (r, r, r))
        a("v_mov_b32 v%d, v%d" % (t, r))
        a("s_nop 1")
        a("v_permlane16_swap_b32 v%d, v%d" % (r, t))
        a("s_nop 1")
        a("v_add_f32 v%d, v%d, v%d" % (r, r, t))
        a("v_mov_b32 v%d, v%d" % (t, r))
        a("s_nop 1")
        a("v_permlane32_swap_b32 v%d, v%d" % (r, t))
        a("s_nop 1")
        a("v_add_f32 v%d, v%d, v%d" % (r, r, t))
    xlane_sum(56, 57)
    a("v_mul_f32 v56, 0x%x, v56" % f2u(1.0 / 256))
    a("v_mov_b32 v57, 0")
    a("v_mov_b32 v58, 0")
    for i in range(0, 32, 2):
        a("v_sub_f32 v59, v%d, v56" % (24 + i))
        a("v_sub_f32 v61, v%d, v56" % (25 + i))
        a("v_fmac_f32 v57, v59, v59")
        a("v_fmac_f32 v58, v61, v61")
    a("v_add_f32 v57, v57, v58")
    xlane_sum(57, 58)
    a("ds_write_b64 v7, v[56:57]")
    a("s_waitcnt lgkmcnt(0)")
    a("s_barrier")
    a("ds_read_b64 v[62:63], v60")
    a("ds_read_b64 v[64:65], v60 offset:64")
    a("ds_read_b64 v[66:67], v60 offset:128")
    a("ds_read_b64 v[68:69], v60 offset:192")
    a("s_waitcnt lgkmcnt(0)")
    a("v_add_f32 v56, v62, v64")
    a("v_add_f32 v57, v66, v68")
    a("v_add_f32 v56, v56, v57")
    a("v_mul_f32 v56, 0.25, v56") if False else a("v_mul_f32 v56, 0x3e800000, v56")
    a("v_add_f32 v57, v63, v65")
    a("v_add_f32 v58, v67, v69")
    a("v_add_f32 v57, v57, v58")
    a("v_mov_b32 v58, 0")
    for r in (62, 64, 66, 68):
        a("v_sub_f32 v59, v%d, v56" % r)
        a("v_fmac_f32 v58, v59, v59")
    a("v_mov_b32 v59, 0x43800000")
    a("v_fmac_f32 v57, v58, v59")
    a("v_mul_f32 v57, 0x%x, v57" % f2u(1.0 / 1024))
    a("v_cvt_pk_bf16_f32 v58, v56, v57")
    a("v_lshlrev_b32 v56, 16, v58")
    a("v_and_b32 v57, 0xffff0000, v58")
    a("v_add_f32 v57, 0x%x, v57" % f2u(1e-5))
    a("v_cvt_pk_bf16_f32 v57, v57, v57")
    a("v_and_b32 v57, 0xffff0000, v57")
    a("v_sqrt_f32 v57, v57")
    a("s_nop 0")
    a("v_cvt_pk_bf16_f32 v57, v57, v57")
    a("v_and_b32 v57, 0xffff0000, v57")
    a("v_rcp_f32 v57, v57")
    for i in range(0, 32, 2):
        a("v_sub_f32 v%d, v%d, v56" % (24 + i, 24 + i))
        a("v_sub_f32 v%d, v%d, v56" % (25 + i, 25 + i))
        a("v_cvt_pk_bf16_f32 v58, v%d, v%d" % (24 + i, 25 + i))
        a("v_lshlrev_b32 v59, 16, v58")
        a("v_and_b32 v58, 0xffff0000, v58")
        a("v_mul_f32 v59, v59, v57")
        a("v_mul_f32 v58, v58, v57")
        a("v_cvt_pk_bf16_f32 v%d, v59, v58" % (8 + i // 2))

def gen_ln(a, cfg):
    MT = cfg["g1_mt"]
    name = "ln_kernel"
    kernel_begin(a, name)
    a.reset()
    for r in (60, 62, 64, 66): stamp(a, cfg, 0, r)
    if cfg.get("stamp"): a("s_memrealtime s[70:71]")
    a("s_cmp_ge_u32 s2, 256")
    a("s_cbranch_scc1 LN_end")
    a("s_load_dwordx2 s[4:5], s[0:1], 0")
    a("s_load_dwordx2 s[6:7], s[0:1], 64")
    a("s_load_dwordx2 s[20:21], s[0:1], 8")
    a("s_load_dwordx2 s[22:23], s[0:1], 32")
    a("v_and_b32 v1, 63, v0")
    a("v_lshrrev_b32 v2, 6, v0")
    a("v_and_b32 v3, 7, v1")
    a("v_lshrrev_b32 v4, 3, v1")
    a("s_lshl_b32 s3, s2, 14")
    a("v_lshlrev_b32 v5, 11, v3")
    a("v_lshl_add_u32 v5, v2, 9, v5")
    a("v_lshl_add_u32 v5, v4, 4, v5")
    a("s_waitcnt lgkmcnt(0)")
    srd(a, 8, 4, S * D * 2)
    srd_off(a, 12, 6, WS_XN, S * D * 2)
    for i in range(4):
        a("buffer_load_dwordx4 %s, v5, s[8:11], s3 offen offset:%d" % (r4("v", 8 + 4 * i), i * 128))
    srd_off(a, 36, 6, WS_FL, FL_BYTES)
    a("s_lshl_b32 s16, s2, 9")
    a("v_lshlrev_b32 v70, 2, v0")
    a("v_lshrrev_b32 v71, 7, v0")
    a("v_lshl_add_u32 v70, v71, 30, v70")
    a("v_mov_b32 v71, 0")
    a("buffer_store_dword v71, v70, s[36:39], s16 offen")
    CPF = cfg.get("ln_cpf", 1)
    if CPF:
        a("s_getpc_b64 s[40:41]")
        a.label("LN_pc")
        a("s_mov_b32 s42, CODE_END - LN_pc")
        a("s_and_b32 s41, s41, 0xffff")
        a("s_mov_b32 s43, 0x00020000")
        a("s_lshr_b32 s16, s2, 3")
        a("s_lshl_b32 s16, s16, 12")
        a("v_lshlrev_b32 v70, 7, v0")
        a("v_lshrrev_b32 v71, 5, v0")
        a("v_lshl_add_u32 v70, v71, 24, v70")
        a("buffer_load_dword v76, v70, s[40:43], s16 offen")
    LPF = cfg.get("ln_pf", 2)
    if LPF:
        srd(a, 24, 20, D * 3 * D * 2)
        srd(a, 28, 22, D * DFF * 2)
        a("s_lshr_b32 s16, s2, 3")
        a("s_mul_i32 s16, s16, %d" % (4 * LPF))
        a("s_bfe_u32 s17, s2, 0x20001")
        a("s_lshl_b32 s18, s17, 9")
        a("s_mul_i32 s19, s17, 1792")
        a("v_lshrrev_b32 v70, 4, v1")
        a("v_cmp_le_u32 s[32:33], %d, v70" % LPF)
        a("v_mad_u32_u24 v70, v2, %d, v70" % LPF)
        a("v_add_u32 v70, s16, v70")
        a("v_and_b32 v71, 15, v1")
        a("v_cmp_le_u32 vcc, 12, v71")
        a("s_or_b64 s[34:35], vcc, s[32:33]")
        a("v_cmp_le_u32 vcc, 14, v71")
        a("s_or_b64 s[32:33], vcc, s[32:33]")
        a("v_mul_u32_u24 v72, 7168, v70")
        a("v_lshl_add_u32 v72, v71, 7, v72")
        a("v_mul_u32_u24 v70, 6144, v70")
        a("v_lshrrev_b32 v73, 2, v71")
        a("v_lshl_add_u32 v70, v73, 11, v70")
        a("v_and_b32 v73, 3, v71")
        a("v_lshl_add_u32 v70, v73, 7, v70")
        a("v_bfrev_b32 v73, 1")
        a("v_cndmask_b32 v70, v70, v73, s[34:35]")
        a("v_cndmask_b32 v72, v72, v73, s[32:33]")
        a("buffer_load_dword v74, v70, s[24:27], s18 offen")
        a("buffer_load_dword v75, v72, s[28:31], s19 offen")
    LW2 = cfg.get("ln_w2", 0)
    if LW2:
        a("s_load_dwordx2 s[44:45], s[0:1], 40")
        a("s_load_dwordx2 s[48:49], s[0:1], 16")
        a("v_lshlrev_b32 v77, 7, v0")
        a("v_cmp_le_u32 vcc, 224, v0")
        a("v_bfrev_b32 v73, 1")
        a("s_mul_i32 s52, s2, %d" % (224 * 128))
        a("v_cndmask_b32 v78, v77, v73, vcc")
        a("v_cmp_le_u32 vcc, 64, v0")
        a("s_lshl_b32 s53, s2, 13")
        a("s_waitcnt lgkmcnt(0)")
        a("v_cndmask_b32 v77, v77, v73, vcc")
        srd(a, 44, 44, DFF * D * 2)
        srd(a, 48, 48, D * D * 2)
        a("buffer_load_dword v79, v78, s[44:47], s52 offen")
        a("buffer_load_dword v79, v77, s[48:51], s53 offen")
    lmt = int(math.log2(MT))
    a("s_lshr_b32 s16, s2, 1")
    a("s_lshr_b32 s17, s16, %d" % lmt)
    a("s_lshl_b32 s17, s17, %d" % (15 + lmt))
    a("s_and_b32 s18, s16, %d" % (MT - 1))
    a("s_lshl_b32 s18, s18, 10")
    a("s_add_u32 s17, s17, s18")
    a("s_and_b32 s18, s2, 1")
    a("s_lshl_b32 s18, s18, 7")
    a("s_add_u32 s17, s17, s18")
    a("v_lshrrev_b32 v6, 2, v4")
    a("v_lshl_add_u32 v6, v2, 3, v6")
    a("v_lshlrev_b32 v6, %d, v6" % (10 + lmt))
    a("v_and_b32 v7, 3, v4")
    a("v_lshl_add_u32 v6, v7, 8, v6")
    a("v_lshl_add_u32 v6, v3, 4, v6")
    a("v_lshl_add_u32 v7, v2, 3, v3")
    a("v_lshlrev_b32 v7, 3, v7")
    a("v_lshlrev_b32 v60, 3, v3")
    a("s_waitcnt vmcnt(%d)" % (1 + (2 if LPF else 0) + (1 if CPF else 0) + (2 if LW2 else 0)))
    ln_math(a)
    for i in range(4):
        a("buffer_store_dwordx4 %s, v6, s[12:15], s17 offen" % r4("v", 8 + 4 * i))
        if i < 3: a("s_add_u32 s17, s17, %d" % (2 * MT * 1024))
    if cfg.get("stamp"):
        srd_off(a, 12, 6, 0, WS_END)
        a("v_readfirstlane_b32 s24, v2")
    stamp_out(a, cfg, 4, 60, 24, 12, 0x70000, 4)
    a.label("LN_end")
    a("s_endpgm")
    kernel_desc(a, name, 80, sgpr=80)
    return "; @launch kernel=%s grid=(256,1,1) block=(256,1,1) lds=256" % name

def gen_g1(a, cfg):
    name = "g1_kernel"
    NW, MT, NT = 4, 4, 13
    assert cfg["g1_mt"] == MT
    NS = cfg.get("g1_stages", 5)
    LA = cfg.get("g1_la", 6)
    RA = LA + 1
    DB = cfg.get("g1_db", 3)
    RB = DB + 2
    REG = 7168; STAGE = 4 * REG
    KS = 32
    ACC = 0
    def acc(mt, t): return ACC + (t * MT + mt) * 4
    V_L16 = 208; V_QKV = 209; V_W1 = 210; V_LEFT = 211
    V_RD = 212
    V_T = 224
    A_PD = 255
    AR = 0; BR = RA * 16
    assert BR + RB * 4 <= 256
    kernel_begin(a, name)
    a.reset()
    stamp(a, cfg, 0, 60)
    if cfg.get("stamp"): a("s_memrealtime s[70:71]")
    a("s_cmp_ge_u32 s2, 256")
    a("s_cbranch_scc1 G1_end")
    a("s_load_dwordx2 s[4:5], s[0:1], 8")
    a("s_load_dwordx2 s[6:7], s[0:1], 32")
    a("s_load_dwordx2 s[8:9], s[0:1], 64")
    a("s_load_dwordx2 s[52:53], s[0:1], 40")
    a("s_load_dwordx2 s[54:55], s[0:1], 16")
    T = V_T
    a("v_and_b32 v%d, 63, v0" % T)
    a("v_lshrrev_b32 v%d, 6, v0" % (T + 1))
    a("v_lshlrev_b32 v%d, 4, v%d" % (V_L16, T))
    a("v_readfirstlane_b32 s24, v%d" % (T + 1))
    a("s_and_b32 s25, s2, 1")
    a("s_lshl_b32 s25, s25, 2")
    a("s_bfe_u32 s26, s2, 0x20003")
    a("s_add_u32 s25, s25, s26")
    a("s_bfe_u32 s26, s2, 0x20001")
    a("s_lshl_b32 s26, s26, 3")
    a("s_lshr_b32 s27, s2, 5")
    a("s_add_u32 s26, s26, s27")
    a("s_and_b32 s27, s26, 1")
    a("v_lshrrev_b32 v%d, 2, v%d" % (T + 2, T))
    a("v_lshl_add_u32 v%d, v%d, 4, v%d" % (T + 2, T + 1, T + 2))
    a("v_lshrrev_b32 v%d, 4, v%d" % (T + 3, T))
    a("v_and_b32 v%d, 2, v%d" % (T + 3, T + 3))
    a("v_and_b32 v%d, 3, v%d" % (T + 4, T))
    a("v_xor_b32 v%d, v%d, v%d" % (T + 3, T + 3, T + 4))
    a("v_lshlrev_b32 v%d, 4, v%d" % (T + 3, T + 3))
    a("v_mul_u32_u24 v%d, 6144, v%d" % (V_QKV, T + 2))
    a("v_add_u32 v%d, v%d, v%d" % (V_QKV, V_QKV, T + 3))
    a("v_mul_u32_u24 v%d, 7168, v%d" % (V_W1, T + 2))
    a("v_add_u32 v%d, v%d, v%d" % (V_W1, V_W1, T + 3))
    a("v_bfe_u32 v%d, v%d, 3, 1" % (T + 2, T))
    a("v_lshlrev_b32 v%d, 3, v%d" % (T + 2, T + 2))
    a("v_bfe_u32 v%d, v%d, 4, 1" % (T + 3, T))
    a("v_lshl_add_u32 v%d, v%d, 2, v%d" % (T + 2, T + 3, T + 2))
    a("v_bfe_u32 v%d, v%d, 1, 2" % (T + 3, T))
    a("v_add_u32 v%d, v%d, v%d" % (T + 2, T + 2, T + 3))
    a("v_lshl_add_u32 v%d, v%d, 4, v%d" % (T + 2, T + 1, T + 2))
    a("v_mul_u32_u24 v%d, 7168, v%d" % (V_LEFT, T + 2))
    a("v_and_b32 v%d, 1, v%d" % (T + 3, T))
    a("v_lshl_add_u32 v%d, v%d, 4, v%d" % (V_LEFT, T + 3, V_LEFT))
    a("v_lshrrev_b32 v%d, 5, v%d" % (T + 3, T))
    a("v_lshl_add_u32 v%d, v%d, 30, v%d" % (V_LEFT, T + 3, V_LEFT))
    a("s_lshl_b32 s30, s26, 6")
    a("s_add_u32 s31, s30, 4096")
    a("s_mul_i32 s33, s26, 224")
    a("s_lshl_b32 s28, s27, 5")
    a("s_add_u32 s32, s33, s28")
    a("s_xor_b32 s28, s27, 1")
    a("s_mul_i32 s28, s28, 192")
    a("s_add_u32 s33, s33, s28")
    a("s_mul_i32 s34, s24, %d" % REG)
    a("s_lshl_b32 s35, s25, 2")
    a("s_add_u32 s35, s35, s24")
    a("s_lshl_b32 s35, s35, 17")
    a("s_waitcnt lgkmcnt(0)")
    srd(a, 12, 4, D * 3 * D * 2)
    srd(a, 16, 6, D * DFF * 2)
    srd_off(a, 20, 8, WS_XN, S * D * 2)
    PF = cfg.get("g1_pf", 1)
    ST0 = cfg.get("g1_pfst", 4)
    V_P0, V_P1, V_P2 = 221, 222, 223
    if PF:
        srd(a, 44, 52, DFF * D * 2)
        srd(a, 48, 54, D * D * 2)
        a("s_bfe_u32 s56, s2, 0x30003")
        a("s_lshr_b32 s57, s2, 6")
        a("s_lshl_b32 s57, s57, 3")
        a("s_and_b32 s58, s2, 7")
        a("s_add_u32 s57, s57, s58")
        a("s_lshl_b32 s57, s57, 2")
        a("s_add_u32 s57, s57, s24")
        a("v_lshlrev_b32 v%d, 7, v%d" % (T + 5, T))
        a("v_bfrev_b32 v%d, 1" % (T + 6))
        a("s_mul_i32 s58, s57, 3072")
        a("v_add_u32 v%d, s58, v%d" % (V_P0, T + 5))
        a("v_cmp_le_u32 vcc, 24, v%d" % T)
        a("s_mul_i32 s58, s57, 3584")
        a("v_add_u32 v%d, s58, v%d" % (V_P1, T + 5))
        a("v_cndmask_b32 v%d, v%d, v%d, vcc" % (V_P0, V_P0, T + 6))
        a("v_cmp_le_u32 vcc, 28, v%d" % T)
        a("s_lshl_b32 s58, s57, 13")
        a("v_add_u32 v%d, s58, v%d" % (V_P2, T + 5))
        a("v_cndmask_b32 v%d, v%d, v%d, vcc" % (V_P1, V_P1, T + 6))
    NSLOT1 = 16 - ST0
    def touch(n):
        lab = a.newlabel("G1_pf")
        a("s_cmp_lg_u32 s56, %d" % (n & 7))
        a("s_cbranch_scc1 %s" % lab)
        if n < NSLOT1:
            a("s_mov_b32 s58, %d" % ((ST0 + n) * 64 * 6144))
            a("s_mov_b32 s59, %d" % ((ST0 + n) * 64 * 7168))
            a("buffer_load_dword a%d, v%d, s[12:15], s58 offen" % (A_PD, V_P0))
            a("buffer_load_dword a%d, v%d, s[16:19], s59 offen" % (A_PD - 1, V_P1))
        else:
            m = n - NSLOT1
            a("s_mov_b32 s58, %d" % ((m if m < 7 else m - 7) << 20))
            a("buffer_load_dword a%d, v%d, s[%d:%d], s58 offen" % ((A_PD, V_P2) + ((44, 47) if m < 7 else (48, 51))))
        a.label(lab)

    def dma_ops(g):
        slot = g % NS
        ops = []
        def one(p, vreg, srdb, soff, imm):
            ops.append((["s_add_u32 m0, s34, %d" % (slot * STAGE + p * 1024 - imm + (1 << 32 if slot * STAGE + p * 1024 - imm < 0 else 0))],
                        "buffer_load_dwordx4 v%d, s[%d:%d], s%d offen offset:%d lds" % (vreg, srdb, srdb + 3, soff, imm)))
        one(0, V_QKV, 12, 30, 0)
        one(2, V_QKV, 12, 30, 2048)
        one(1, V_QKV, 12, 31, 0)
        one(3, V_W1, 16, 32, 0)
        one(4, V_W1, 16, 32, 64)
        one(5, V_W1, 16, 32, 128)
        one(6, V_LEFT, 16, 33, 0)
        post = ["s_add_u32 s30, s30, %d" % (64 * 6144), "s_add_u32 s31, s31, %d" % (64 * 6144),
                "s_add_u32 s32, s32, %d" % (64 * 7168), "s_add_u32 s33, s33, %d" % (64 * 7168)]
        return ops, post
    PAIRPOS = [0, 2, 1, 3, 4, 5]
    def a_load(s, mt):
        a.vmem("buffer_load_dwordx4 %s, v%d, s[20:23], s35 offen offset:%d" % (r4("a", AR + (s % RA) * 16 + mt * 4), V_L16, mt * 1024), ("A", s))
        if mt == MT - 1: a("s_add_u32 s35, s35, 4096")
    def emit_dma(g, k):
        ops, post = dma_ops(g)
        pre, txt = ops[k]
        for x in pre: a(x)
        a("s_nop 0")
        a.vmem(txt, ("B", g))
        if k == 6:
            for x in post: a(x)
    pend = []
    nA = 0
    for g in range(NS - 1):
        for k in range(7): pend.append(("B", g, k))
        for _ in range(2):
            if nA < LA:
                for mt in range(MT): pend.append(("A", nA, mt))
                nA += 1
    while nA < LA:
        for mt in range(MT): pend.append(("A", nA, mt))
        nA += 1
    PRO = cfg.get("g1_pro", 15)
    for _ in range(PRO):
        op = pend.pop(0)
        if op[0] == "A": a_load(op[1], op[2])
        else: emit_dma(op[1], op[2])
    a("v_lshrrev_b32 v%d, 5, v%d" % (T + 2, T))
    a("v_mul_u32_u24 v%d, %d, v%d" % (T + 2, REG, T + 2))
    a("v_and_b32 v%d, 3, v%d" % (T + 3, T))
    a("v_lshl_add_u32 v%d, v%d, 3, v%d" % (T + 2, T + 3, T + 2))
    a("v_bfe_u32 v%d, v%d, 2, 2" % (T + 3, T))
    a("v_bfe_u32 v%d, v%d, 4, 1" % (T + 4, T))
    a("v_lshl_add_u32 v%d, v%d, 6, v%d" % (V_RD, T + 3, T + 2))
    a("v_lshl_add_u32 v%d, v%d, 9, v%d" % (V_RD, T + 4, V_RD))
    a("v_lshl_add_u32 v%d, v%d, 5, v%d" % (V_RD, T + 4, V_RD))
    a("v_xor_b32 v%d, 32, v%d" % (V_RD + 1, V_RD))
    a("v_lshl_add_u32 v%d, v%d, 5, v%d" % (V_RD + 2, T + 3, T + 2))
    a("v_lshl_add_u32 v%d, v%d, 7, v%d" % (V_RD + 2, T + 4, V_RD + 2))
    for st in (1, 2):
        for x in range(3):
            a("v_add_u32 v%d, %d, v%d" % (V_RD + 3 * st + x, st * 2 * STAGE, V_RD + x))
    stamp(a, cfg, 1, 62)

    def b_read(u, j2):
        s, t = divmod(u, NT)
        g = s // 2; slot = g % NS
        st = slot // 2
        off = (slot % 2) * STAGE + (s % 2) * 2 * REG + j2 * 256
        if t < 12:
            off += PAIRPOS[t // 2] * 1024; vr = V_RD + 3 * st + (t % 2)
        else:
            off += 6144; vr = V_RD + 3 * st + 2
        a.lds("ds_read_b64_tr_b16 %s, v%d offset:%d" % (r2("a", BR + (u % RB) * 4 + j2 * 2), vr, off), ("b", u))
    def barrier_for(g):
        a.wait(vm=("B", g))
        a("s_barrier")
    NU = KS * NT
    barrier_for(0)
    stamp(a, cfg, 2, 64)
    for u in range(DB):
        b_read(u, 0); b_read(u, 1)
    for u in range(NU):
        s, t = divmod(u, NT)
        if t == 0 and s + LA < KS:
            for mt in range(MT): pend.append(("A", s + LA, mt))
        un = u + DB
        if un < NU and un % (2 * NT) == 0:
            g = un // (2 * NT)
            barrier_for(g)
            if g + NS - 2 < KS // 2:
                for k in range(7): pend.append(("B", g + NS - 2, k))
        if PF and t == 5 and s < NSLOT1 + 9: touch(s)
        a.wait(vm=("A", s) if t == 0 else None, lg=("b", u))
        bf = r4("a", BR + (u % RB) * 4)
        nxt = pend.pop(0) if (pend and (u % 2 == 0 or len(pend) > 6)) else None
        for mt in range(MT):
            mz = mt if t % 2 == 0 else MT - 1 - mt
            af = r4("a", AR + (s % RA) * 16 + mz * 4)
            c = r4("v", acc(mz, t))
            src = "0" if s == 0 else c
            if t in (4, 5): a("v_mfma_f32_16x16x32_bf16 %s, %s, %s, %s" % (c, af, bf, src))
            else:           a("v_mfma_f32_16x16x32_bf16 %s, %s, %s, %s" % (c, bf, af, src))
            if mt < 2 and un < NU: b_read(un, mt)
            if mt == 2 and nxt and nxt[0] == "B":
                ops, post = dma_ops(nxt[1])
                for x in ops[nxt[2]][0]: a(x)
            if mt == 3 and nxt:
                if nxt[0] == "A": a_load(nxt[1], nxt[2])
                else:
                    ops, post = dma_ops(nxt[1])
                    a.vmem(ops[nxt[2]][1], ("B", nxt[1]))
                    if nxt[2] == 6:
                        for x in post: a(x)
    assert not pend
    stamp(a, cfg, 3, 66)
    srd_off(a, 12, 8, 0, WS_END)
    a("s_lshl_b32 s36, s26, 7")
    a("s_lshl_b32 s37, s25, 4")
    a("s_add_u32 s36, s36, s37")
    a("s_lshl_b32 s37, s24, 2")
    a("s_add_u32 s36, s36, s37")
    a("s_lshl_b32 s36, s36, 10")
    a("s_add_u32 s37, s36, 0x%x" % WS_K)
    a("s_add_u32 s38, s36, 0x%x" % WS_V)
    a("s_add_u32 s36, s36, 0x%x" % WS_Q)
    a("s_lshl_b32 s39, s25, 2")
    a("s_add_u32 s39, s39, s24")
    a("s_mul_i32 s39, s39, %d" % (144 * 4096))
    a("s_add_u32 s39, s39, 0x%x" % WS_A2)
    a("s_mul_i32 s40, s26, 7")
    a("s_add_u32 s41, s40, s27")
    a("s_lshl_b32 s41, s41, 11")
    a("s_add_u32 s41, s41, s39")
    a("s_lshr_b32 s40, s26, 3")
    a("s_lshl_b32 s40, s40, 15")
    a("s_add_u32 s41, s41, s40")
    a("s_add_u32 s42, s41, 4096")
    a("s_add_u32 s43, s41, 8192")
    a("s_mul_i32 s44, s27, %d" % (-4096 + 8 - 3 * 4096))
    a("s_add_u32 s44, s44, %d" % (3 * 4096))
    a("s_add_u32 s44, s44, s41")
    a("s_mov_b32 s47, 0x%x" % f2u(QSCALE))
    a("s_nop 7")
    tmp = [V_T + 4 * i for i in range(8)]
    ti = [0]
    def pack_store(src0, src1, soff, imm, relu=False, scale=False):
        tr = tmp[ti[0] % 8]; ti[0] += 1
        for hh, sr in enumerate((src0, src1)):
            if sr is None: continue
            if scale:
                for e in range(4): a("v_mul_f32 v%d, s47, v%d" % (sr + e, sr + e))
            a("v_cvt_pk_bf16_f32 v%d, v%d, v%d" % (tr + 2 * hh, sr, sr + 1))
            a("v_cvt_pk_bf16_f32 v%d, v%d, v%d" % (tr + 2 * hh + 1, sr + 2, sr + 3))
            if relu:
                a("v_pk_max_i16 v%d, v%d, 0" % (tr + 2 * hh, tr + 2 * hh))
                a("v_pk_max_i16 v%d, v%d, 0" % (tr + 2 * hh + 1, tr + 2 * hh + 1))
        if src1 is None:
            a.vmem("buffer_store_dwordx2 %s, v%d, s[12:15], s%d offen offset:%d" % (r2("v", tr), V_L16, soff, imm))
        else:
            a.vmem("buffer_store_dwordx4 %s, v%d, s[12:15], s%d offen offset:%d" % (r4("v", tr), V_L16, soff, imm))
    for mt in range(MT): pack_store(acc(mt, 0), acc(mt, 1), 36, mt * 1024, scale=True)
    for mt in range(MT): pack_store(acc(mt, 2), acc(mt, 3), 37, mt * 1024)
    for b in range(2):
        for dt in range(2): pack_store(acc(2 * b, 4 + dt), acc(2 * b + 1, 4 + dt), 38, (b * 2 + dt) * 1024)
    for p in range(3):
        for mt in range(MT):
            pack_store(acc(mt, 6 + 2 * p), acc(mt, 7 + 2 * p), 41 + p, mt * 1024, relu=True)
    for mt in range(MT):
        pack_store(acc(mt, 12), None, 44, mt * 1024, relu=True)
    if cfg.get("stamp"):
        a("s_waitcnt vmcnt(0)")
        a("s_memtime s[68:69]")
        a("s_memrealtime s[72:73]")
        a("s_waitcnt lgkmcnt(0)")
        for i in range(4): a("s_sub_u32 s%d, s%d, s60" % (62 + 2 * i, 62 + 2 * i))
        for i in range(4): a("v_mov_b32 v%d, s%d" % (i, 62 + 2 * i))
        a("v_mov_b32 v4, s70")
        a("v_mov_b32 v5, s72")
        a("s_lshl_b32 s50, s2, 2")
        a("s_add_u32 s50, s50, s24")
        a("s_lshl_b32 s50, s50, 5")
        a("v_mov_b32 v8, 0")
        a("s_nop 4")
        a("buffer_store_dwordx4 v[0:3], v8, s[12:15], s50 offen")
        a("buffer_store_dwordx4 v[4:7], v8, s[12:15], s50 offen offset:16")
    a.label("G1_end")
    a("s_endpgm")
    kernel_desc(a, name, 256, sgpr=80, accum=256, agpr=256)
    return "; @launch kernel=%s grid=(256,1,1) block=(256,1,1) lds=%d" % (name, NS * STAGE)


def stamp_out(a, cfg, nst, s0, swave, srdb, wsoff, nw):
    if not cfg.get("stamp"): return
    a("s_waitcnt vmcnt(0)")
    a("s_memtime s[68:69]")
    a("s_memrealtime s[72:73]")
    a("s_waitcnt lgkmcnt(0)")
    for i in range(4): a("s_sub_u32 s%d, s%d, s60" % (62 + 2 * i, 62 + 2 * i))
    for i in range(4): a("v_mov_b32 v%d, s%d" % (i, 62 + 2 * i))
    a("v_mov_b32 v4, s70")
    a("v_mov_b32 v5, s72")
    a("s_mul_i32 s50, s2, %d" % nw)
    a("s_add_u32 s50, s50, s%d" % swave)
    a("s_lshl_b32 s50, s50, 5")
    a("s_add_u32 s50, s50, 0x%x" % wsoff)
    a("v_mov_b32 v8, 0")
    a("s_nop 4")
    a("buffer_store_dwordx4 v[0:3], v8, s[%d:%d], s50 offen" % (srdb, srdb + 3))
    a("buffer_store_dwordx4 v[4:7], v8, s[%d:%d], s50 offen offset:16" % (srdb, srdb + 3))

def gen_at(a, cfg):
    name = "at_kernel"
    kernel_begin(a, name)
    a.reset()
    stamp(a, cfg, 0, 60)
    if cfg.get("stamp"): a("s_memrealtime s[70:71]")
    a("s_cmp_ge_u32 s2, 256")
    a("s_cbranch_scc1 AT_end")
    a("s_load_dwordx2 s[8:9], s[0:1], 64")
    def sreg(qa, kt): return (qa * 18 + kt) * 4
    VQ = 144; VO = 152; VS = 168; VONE = 176
    V_L16 = 180; T = 181; VM = 182; VNEG = 183
    a("v_and_b32 v%d, 63, v0" % T)
    a("v_lshrrev_b32 v%d, 6, v0" % VM)
    a("v_lshlrev_b32 v%d, 4, v%d" % (V_L16, T))
    a("v_readfirstlane_b32 s24, v%d" % VM)
    a("s_and_b32 s25, s2, 1")
    a("s_lshl_b32 s25, s25, 2")
    a("s_bfe_u32 s26, s2, 0x20003")
    a("s_add_u32 s25, s25, s26")
    a("s_bfe_u32 s26, s2, 0x20001")
    a("s_lshl_b32 s26, s26, 3")
    a("s_lshr_b32 s27, s2, 5")
    a("s_add_u32 s26, s26, s27")
    a("s_lshl_b32 s27, s26, 17")
    a("s_lshl_b32 s28, s25, 14")
    a("s_lshl_b32 s29, s24, 12")
    a("s_add_u32 s28, s28, s29")
    a("s_sub_u32 s28, s28, 16384")
    a("v_add_u32 v%d, s28, v%d" % (VM, V_L16))
    a("s_lshl_b32 s30, s25, 14")
    a("s_lshl_b32 s31, s24, 11")
    a("s_add_u32 s30, s30, s31")
    a("s_waitcnt lgkmcnt(0)")
    a("s_add_u32 s4, s8, s27")
    a("s_addc_u32 s5, s9, 0")
    srd_off(a, 12, 4, WS_K, 131072)
    srd_off(a, 16, 4, WS_V, 131072)
    srd_off(a, 20, 4, WS_Q, 131072)
    a("s_mov_b32 m0, s29")
    a("s_nop 0")
    for i in range(4): a("buffer_load_dwordx4 v%d, s[12:15], 0 offen offset:%d lds" % (VM, i * 1024))
    for qa in range(2): a("buffer_load_dwordx4 %s, v%d, s[20:23], s30 offen offset:%d" % (r4("v", VQ + 4 * qa), V_L16, qa * 1024))
    a("s_add_u32 m0, s29, 32768")
    a("s_nop 0")
    for i in range(4): a("buffer_load_dwordx4 v%d, s[16:19], 0 offen offset:%d lds" % (VM, i * 1024))
    a("v_lshrrev_b32 v0, 4, v%d" % T)
    a("v_lshlrev_b32 v0, 2, v0")
    a("v_and_b32 v1, 15, v%d" % T)
    for e in range(4):
        a("v_add_u32 v2, %d, v0" % e)
        a("v_cmp_le_u32 s[%d:%d], v2, v1" % (40 + 2 * e, 41 + 2 * e))
    a("v_mov_b32 v%d, 0x%x" % (VNEG, f2u(-1e30)))
    for e in range(4): a("v_mov_b32 v%d, 0x3f803f80" % (VONE + e))
    a("v_add_u32 v%d, s31, v%d" % (T, V_L16))
    a("s_sub_u32 s32, 8, s24")
    a("s_cmp_eq_u32 s25, 0")
    a("s_cselect_b32 s32, s32, 0")
    a("s_cbranch_scc0 AT_nofill")
    for r in range(144): a("v_mov_b32 v%d, v%d" % (r, VNEG))
    a.label("AT_nofill")
    a("s_lshl_b32 s33, s25, 2")
    a("s_lshr_b32 s34, s24, 1")
    a("s_add_u32 s33, s33, s34")
    a("s_mul_i32 s33, s33, 144")
    a("s_lshr_b32 s34, s26, 3")
    a("s_mul_i32 s34, s34, 28")
    a("s_add_u32 s33, s33, s34")
    a("s_add_u32 s33, s33, s26")
    a("s_add_u32 s33, s33, 28")
    a("s_lshl_b32 s33, s33, 12")
    a("s_and_b32 s34, s24, 1")
    a("s_lshl_b32 s34, s34, 11")
    a("s_add_u32 s33, s33, s34")
    a("s_add_u32 s33, s33, 0x%x" % WS_A2)
    a("s_waitcnt vmcnt(4)")
    a("s_barrier")
    stamp(a, cfg, 1, 62)
    for kt in range(18): a("ds_read_b128 %s, v%d offset:%d" % (r4("a", 4 * kt), T, kt * 1024))
    srd_off(a, 12, 8, 0, WS_END)
    a("s_waitcnt lgkmcnt(0)")
    for b in range(9):
        if b < 8:
            a("s_cmp_gt_u32 s32, %d" % b)
            a("s_cbranch_scc1 AT_skip%d" % b)
        for kt in (2 * b, 2 * b + 1):
            for qa in range(2):
                if (qa, kt) in ((0, 17), (1, 0)): continue
                a("v_mfma_f32_16x16x32_bf16 %s, %s, %s, 0" % (r4("v", sreg(qa, kt)), r4("a", 4 * kt), r4("v", VQ + 4 * qa)))
        if b < 8: a.label("AT_skip%d" % b)
    a("s_waitcnt vmcnt(0)")
    a("s_barrier")
    for f in range(18): a("ds_read_b128 %s, v%d offset:%d" % (r4("a", 4 * f), T, 32768 + f * 1024))
    stamp(a, cfg, 2, 64)
    for qa in range(2):
        k0 = qa; k1 = 16 + qa
        for e in range(4):
            a("v_cndmask_b32 v%d, v%d, v%d, s[%d:%d]" % (sreg(qa, k0) + e, sreg(qa, k0) + e, VNEG, 40 + 2 * e, 41 + 2 * e))
            a("v_cndmask_b32 v%d, v%d, v%d, s[%d:%d]" % (sreg(qa, k1) + e, VNEG, sreg(qa, k1) + e, 40 + 2 * e, 41 + 2 * e))
        regs = [sreg(qa, kt) + e for kt in range(k0, k1 + 1) for e in range(4)]
        m0, m1 = VO, VO + 1
        a("v_max_f32 v%d, v%d, v%d" % (m0, regs[0], regs[1]))
        a("v_max_f32 v%d, v%d, v%d" % (m1, regs[2], regs[3]))
        for x in range(4, 68, 4):
            a("v_max3_f32 v%d, v%d, v%d, v%d" % (m0, m0, regs[x], regs[x + 1]))
            a("v_max3_f32 v%d, v%d, v%d, v%d" % (m1, m1, regs[x + 2], regs[x + 3]))
        a("v_max_f32 v%d, v%d, v%d" % (m0, m0, m1))
        for op in ("v_permlane16_swap_b32", "v_permlane32_swap_b32"):
            a("v_mov_b32 v%d, v%d" % (m1, m0))
            a("s_nop 1")
            a("%s v%d, v%d" % (op, m0, m1))
            a("s_nop 1")
            a("v_max_f32 v%d, v%d, v%d" % (m0, m0, m1))
        for x in regs: a("v_sub_f32 v%d, v%d, v%d" % (x, x, m0))
        for x in regs: a("v_exp_f32 v%d, v%d" % (x, x))
        a("s_nop 0")
        for b in range(9):
            d = sreg(qa, 2 * b)
            for hh in range(2):
                kt = 2 * b + hh
                if (qa, kt) in ((0, 17), (1, 0)):
                    a("v_mov_b32 v%d, 0" % (d + 2 * hh)); a("v_mov_b32 v%d, 0" % (d + 2 * hh + 1))
                else:
                    sr = sreg(qa, kt)
                    a("v_cvt_pk_bf16_f32 v%d, v%d, v%d" % (d + 2 * hh, sr, sr + 1))
                    a("v_cvt_pk_bf16_f32 v%d, v%d, v%d" % (d + 2 * hh + 1, sr + 2, sr + 3))
    a("s_waitcnt lgkmcnt(0)")
    a("s_nop 1")
    for b in range(9):
        for qa in range(2):
            p = r4("v", sreg(qa, 2 * b))
            for dt in range(2):
                o = r4("v", VO + (qa * 2 + dt) * 4)
                a("v_mfma_f32_16x16x32_bf16 %s, %s, %s, %s" % (o, r4("a", (2 * b + dt) * 4), p, "0" if b == 0 else o))
            o = r4("v", VS + qa * 4)
            a("v_mfma_f32_16x16x32_bf16 %s, %s, %s, %s" % (o, r4("v", VONE), p, "0" if b == 0 else o))
    a("s_nop 7")
    stamp(a, cfg, 3, 66)
    for qa in range(2):
        a("v_rcp_f32 v%d, v%d" % (VS + qa * 4, VS + qa * 4))
    a("s_nop 0")
    for qa in range(2):
        for x in range(8): a("v_mul_f32 v%d, v%d, v%d" % (VO + qa * 8 + x, VO + qa * 8 + x, VS + qa * 4))
        for x in range(4): a("v_cvt_pk_bf16_f32 v%d, v%d, v%d" % (qa * 4 + x, VO + qa * 8 + 2 * x, VO + qa * 8 + 2 * x + 1))
        a("buffer_store_dwordx4 %s, v%d, s[12:15], s33 offen offset:%d" % (r4("v", qa * 4), V_L16, qa * 1024))
    stamp_out(a, cfg, 4, 60, 24, 12, 0x10000, 8)
    a.label("AT_end")
    a("s_endpgm")
    kernel_desc(a, name, 184, sgpr=80, accum=184, agpr=72)
    return "; @launch kernel=%s grid=(256,1,1) block=(512,1,1) lds=65536" % name

def gen_g2(a, cfg):
    name = "g2_kernel"
    MT, NT = 4, 8
    KS = 36; NG = 18
    DL = cfg.get("g2_dl", 6)
    NS = cfg.get("g2_stages", 7)
    RA = cfg.get("g2_ra", 10)
    DB = cfg.get("g2_db", 3); RB = DB + 2
    STAGE = 16384
    S1 = KS - DL
    def acc(mt, t): return (t * MT + mt) * 4
    VX = 128
    VP = 144
    V_L16 = 192; V_DMA = 193; V_XO = 195; V_FL = 196; V_ONE = 197
    V_RD = 200
    VPK = 216
    T = 232
    AR = 0; BR = RA * 16
    assert BR + RB * 4 <= 256 and NS <= 8
    kernel_begin(a, name)
    a.reset()
    stamp(a, cfg, 0, 60)
    if cfg.get("stamp"): a("s_memrealtime s[70:71]")
    a("s_cmp_ge_u32 s2, 256")
    a("s_cbranch_scc1 G2_end")
    a("s_load_dwordx2 s[4:5], s[0:1], 40")
    a("s_load_dwordx2 s[6:7], s[0:1], 16")
    a("s_load_dwordx2 s[8:9], s[0:1], 64")
    a("s_load_dwordx2 s[10:11], s[0:1], 0")
    a("s_load_dwordx2 s[36:37], s[0:1], 48")
    a("v_and_b32 v%d, 63, v0" % T)
    a("v_lshrrev_b32 v%d, 6, v0" % (T + 1))
    a("v_lshlrev_b32 v%d, 4, v%d" % (V_L16, T))
    a("v_readfirstlane_b32 s24, v%d" % (T + 1))
    a("s_and_b32 s25, s2, 1")
    a("s_lshl_b32 s25, s25, 2")
    a("s_bfe_u32 s26, s2, 0x20003")
    a("s_add_u32 s25, s25, s26")
    a("s_bfe_u32 s26, s2, 0x20001")
    a("s_lshr_b32 s27, s2, 5")
    a("v_lshrrev_b32 v%d, 4, v%d" % (T + 2, T))
    a("v_lshlrev_b32 v%d, 11, v%d" % (V_DMA, T + 2))
    a("v_lshlrev_b32 v%d, 1, v%d" % (T + 2, T + 2))
    a("v_and_b32 v%d, 15, v%d" % (T + 3, T))
    a("v_xor_b32 v%d, v%d, v%d" % (T + 2, T + 2, T + 3))
    a("v_lshl_add_u32 v%d, v%d, 4, v%d" % (V_DMA, T + 2, V_DMA))
    a("v_xor_b32 v%d, 128, v%d" % (V_DMA + 1, V_DMA))
    a("s_lshl_b32 s31, s24, 15")
    a("s_lshl_b32 s32, s27, 8")
    a("s_add_u32 s31, s31, s32")
    a("s_mul_i32 s30, s26, %d" % (896 * 2048))
    a("s_add_u32 s30, s30, s31")
    a("s_lshl_b32 s38, s26, 19")
    a("s_add_u32 s38, s38, s31")
    a("s_lshl_b32 s34, s24, 12")
    a("s_lshl_b32 s33, s25, 2")
    a("s_add_u32 s33, s33, s24")
    a("s_mul_i32 s35, s33, 144")
    a("s_mul_i32 s39, s26, 36")
    a("s_add_u32 s35, s35, s39")
    a("s_lshl_b32 s35, s35, 12")
    a("s_lshl_b32 s39, s33, 17")
    a("s_add_u32 s39, s39, s32")
    a("s_lshl_b32 s33, s26, 6")
    a("s_add_u32 s39, s39, s33")
    a("s_waitcnt lgkmcnt(0)")
    srd(a, 12, 4, DFF * D * 2)
    srd(a, 16, 6, D * D * 2)
    srd_off(a, 20, 8, WS_A2, A2_BYTES)
    def a_load(s, mt):
        FK = cfg.get("g2_fake", 0)
        if FK & 4 and s >= RA:
            a.vmem("s_nop 0", ("A", s)); return
        a.vmem("buffer_load_dwordx4 %s, v%d, s[20:23], s35 offen offset:%d%s" % (r4("a", AR + (s % RA) * 16 + mt * 4), V_L16, mt * 1024, " sc1" if FK & 1 else ""), ("A", s))
        if mt == MT - 1: a("s_add_u32 s35, s35, %d" % (0 if FK & 1 and s >= 3 else 4096))
    def dma_pre(g, k): a("s_add_u32 m0, s34, %d" % ((g % NS) * STAGE + k * 1024))
    def dma(g, k):
        FK = cfg.get("g2_fake", 0)
        if FK & 8 and g >= NS:
            a.vmem("s_nop 0", ("B", g)); return
        sb = 12 if g < 14 else 16
        a.vmem("buffer_load_dwordx4 v%d, s[%d:%d], s30 offen%s lds" % (V_DMA + (k & 1), sb, sb + 3, " sc1" if FK & 2 else ""), ("B", g))
        if k == 3 and g == 13: a("s_mov_b32 s30, s38")
        elif FK & 2 and k == 3: a("s_add_u32 s30, s30, %d" % (-3 * 8192))
        else: a("s_add_u32 s30, s30, %d" % (8192 if k < 3 else 8192 + 48 * 2048))
    order = []
    for g in range(NG):
        for k in range(4): order.append(("B", g, k))
        for s in (2 * g, 2 * g + 1):
            for mt in range(MT): order.append(("A", s, mt))
    st = dict(bar=-1, step=-1)
    def can(op):
        if op[0] == "B": return op[1] < NS - 1 or op[1] - NS + 2 <= st["bar"]
        return op[1] - RA <= st["step"]
    PRO = cfg.get("g2_pro", 12)
    for _ in range(PRO):
        op = order.pop(0)
        if op[0] == "A": a_load(op[1], op[2])
        else:
            dma_pre(op[1], op[2]); a("s_nop 0"); dma(op[1], op[2])
    srd(a, 40, 10, S * D * 2)
    srd(a, 44, 36, S * D * 2)
    srd_off(a, 48, 8, WS_XC, XC_BYTES + FL_BYTES)
    a("v_and_b32 v%d, 15, v%d" % (T + 2, T))
    a("v_lshlrev_b32 v%d, 11, v%d" % (V_XO, T + 2))
    a("v_bfe_u32 v%d, v%d, 4, 1" % (T + 2, T))
    a("v_lshl_add_u32 v%d, v%d, 5, v%d" % (V_XO, T + 2, V_XO))
    a("v_lshrrev_b32 v%d, 5, v%d" % (T + 2, T))
    a("v_lshl_add_u32 v%d, v%d, 4, v%d" % (V_XO, T + 2, V_XO))
    a("v_lshrrev_b32 v%d, 2, v%d" % (T + 2, T))
    a("v_and_b32 v%d, 7, v%d" % (T + 4, T + 2))
    a("v_lshlrev_b32 v%d, 8, v%d" % (T + 2, T + 2))
    a("v_and_b32 v%d, 3, v%d" % (T + 3, T))
    a("v_lshl_add_u32 v%d, v%d, 3, v%d" % (T + 2, T + 3, T + 2))
    a("v_lshl_add_u32 v%d, v%d, 5, v%d" % (V_RD, T + 4, T + 2))
    a("s_xor_b32 s33, s33, 192")
    a("v_xor_b32 v%d, s33, v%d" % (V_RD, V_RD))
    for t in range(1, 8): a("v_xor_b32 v%d, %d, v%d" % (V_RD + t, t * 32, V_RD))
    for t in range(8): a("v_add_u32 v%d, 0x10000, v%d" % (V_RD + 8 + t, V_RD + t))
    for lam in range(3):
        a("s_xor_b32 s52, s2, %d" % ((lam ^ 3) << 1))
        a("s_lshl_b32 s52, s52, 2")
        a("s_add_u32 s52, s52, s24")
        a("s_mul_i32 s%d, s52, 12288" % (53 + lam))
        if lam: a("s_add_u32 s%d, s%d, %d" % (53 + lam, 53 + lam, lam * 4096))
        a("s_lshl_b32 s%d, s52, 7" % (56 + lam))
        a("s_add_u32 s%d, s%d, %d" % (56 + lam, 56 + lam, XC_BYTES + lam * 4))
    a("s_lshl_b32 s52, s2, 2")
    a("s_add_u32 s52, s52, s24")
    a("s_lshl_b32 s59, s52, 7")
    a("s_add_u32 s59, s59, %d" % XC_BYTES)
    a("s_mul_i32 s52, s52, 12288")
    a("v_cmp_ne_u32 vcc, 0, v%d" % T)
    a("v_bfrev_b32 v%d, 1" % (T + 2))
    a("v_mov_b32 v%d, 1" % V_ONE)
    a("v_cndmask_b32 v%d, 0, v%d, vcc" % (V_FL, T + 2))
    PF = cfg.get("g2_pf", 0)
    V_P = 198
    if PF:
        a("s_bfe_u32 s74, s2, 0x30003")
        a("s_lshr_b32 s75, s2, 6")
        a("s_lshl_b32 s75, s75, 2")
        a("s_add_u32 s75, s75, s24")
        a("s_and_b32 s76, s2, 1")
        a("s_lshl_b32 s76, s76, 4")
        a("s_add_u32 s76, s76, s75")
        a("s_mul_i32 s76, s76, 144")
        a("s_mul_i32 s77, s26, 36")
        a("s_add_u32 s76, s76, s77")
        a("s_lshl_b32 s76, s76, 12")
        a("s_lshl_b32 s75, s75, 12")
        a("s_mul_i32 s77, s26, %d" % (896 * 2048))
        a("s_add_u32 s77, s77, s75")
        a("s_lshl_b32 s78, s26, 19")
        a("s_add_u32 s78, s78, s75")
        a("v_lshlrev_b32 v%d, 7, v%d" % (V_P, T))
        a("v_lshrrev_b32 v%d, 5, v%d" % (T + 2, T))
        a("v_lshl_add_u32 v%d, v%d, 30, v%d" % (V_P, T + 2, V_P))
    def touch(cls, s):
        lab = a.newlabel("G2_pf")
        a("s_cmp_lg_u32 s74, %d" % cls)
        a("s_cbranch_scc1 %s" % lab)
        a("s_add_u32 s79, s76, %d" % (s * 4096))
        a("buffer_load_dword v%d, v%d, s[20:23], s79 offen" % (V_P + 1, V_P))
        if s < 28:
            a("s_add_u32 s79, s77, %d" % (s * 65536))
            a("buffer_load_dword v%d, v%d, s[12:15], s79 offen" % (V_P + 1, V_P))
        else:
            a("s_add_u32 s79, s78, %d" % ((s - 28) * 65536))
            a("buffer_load_dword v%d, v%d, s[16:19], s79 offen" % (V_P + 1, V_P))
        a.label(lab)
    pfq = list(range(cfg.get("g2_pf0", 2), KS))
    pfn = [0]
    PFU = cfg.get("g2_pfu", 6)
    if PF:
        for _ in range(PF):
            touch(pfn[0] & 7, pfq.pop(0)); pfn[0] += 1
    stamp(a, cfg, 1, 62)
    units = [(s, t) for s in range(S1) for t in range(NT)]
    for lam in range(4):
        units += [(s, t) for s in range(S1, KS) for t in (2 * lam, 2 * lam + 1)]
    NU = len(units)
    def b_read(u, j2):
        s, t = units[u]
        slot = (s // 2) % NS
        off = (slot % 4) * STAGE + (s % 2) * 8192 + j2 * 4096
        a.lds("ds_read_b64_tr_b16 %s, v%d offset:%d" % (r2("a", BR + (u % RB) * 4 + j2 * 2), V_RD + 8 * (slot // 4) + t, off), ("b", u))
    def flush_until(tag):
        while any(o[:2] == tag for o in order):
            op = order.pop(0)
            assert can(op), (op, st)
            if op[0] == "A": a_load(op[1], op[2])
            else:
                dma_pre(op[1], op[2]); a("s_nop 0"); dma(op[1], op[2])
    def need_stage(u):
        g = units[u][0] // 2
        if g > st["bar"]:
            flush_until(("B", g))
            a.wait(vm=("B", g)); a("s_barrier"); st["bar"] = g
    need_stage(0)
    stamp(a, cfg, 2, 64)
    for u in range(DB):
        b_read(u, 0); b_read(u, 1)
    side = []
    seenA = set()
    xload_done = False
    for u in range(NU):
        s, t = units[u]
        un = u + DB
        if un < NU: need_stage(un)
        if s not in seenA:
            flush_until(("A", s)); seenA.add(s)
            a.wait(vm=("A", s), lg=("b", u))
        else:
            a.wait(lg=("b", u))
        if PF and pfq and u % PFU == PFU - 1:
            touch(pfn[0] & 7, pfq.pop(0)); pfn[0] += 1
        bf = r4("a", BR + (u % RB) * 4)
        LAU = cfg.get("g2_lau", 100)
        def soon(op):
            stp = op[1] * 2 if op[0] == "B" else op[1]
            return stp <= u / PFU + LAU
        nxt = order.pop(0) if (order and can(order[0]) and soon(order[0])) else None
        if not order and not xload_done and nxt is None:
            xload_done = True
            for mt in range(MT):
                def f(mt=mt):
                    a.vmem("buffer_load_dwordx4 %s, v%d, s[40:43], s39 offen" % (r4("v", VX + 4 * mt), V_XO), "X")
                    a("s_add_u32 s39, s39, %d" % (32768 if mt < 3 else -3 * 32768))
                side.append(f)
        for mt in range(MT):
            mz = mt if u % 2 == 0 else MT - 1 - mt
            af = r4("a", AR + (s % RA) * 16 + mz * 4)
            c = r4("v", acc(mz, t))
            a("v_mfma_f32_16x16x32_bf16 %s, %s, %s, %s" % (c, bf, af, "0" if s == 0 else c))
            if mt < 2 and un < NU: b_read(un, mt)
            if mt == 2 and nxt and nxt[0] == "B": dma_pre(nxt[1], nxt[2])
            if mt == 3 and nxt:
                if nxt[0] == "A": a_load(nxt[1], nxt[2])
                else: dma(nxt[1], nxt[2])
            k = 1 if mt < 2 else 2
            for _ in range(k):
                if side:
                    f = side.pop(0)
                    if f: f()
        if u < S1 * NT and t == NT - 1: st["step"] = s
        if u >= S1 * NT and (u - S1 * NT) % (2 * DL) == 2 * DL - 1:
            lam = (u - S1 * NT) // (2 * DL)
            if lam < 3:
                side += [None] * 6
                for mt in range(MT):
                    for hh in range(2):
                        for e2 in range(2):
                            def f(mt=mt, hh=hh, e2=e2, lam=lam):
                                c = acc(mt, 2 * lam + hh) + 2 * e2
                                a("v_cvt_pk_bf16_f32 v%d, v%d, v%d" % (VPK + 4 * mt + 2 * hh + e2, c, c + 1))
                            side.append(f)
                    def f(mt=mt, lam=lam):
                        a.vmem("buffer_store_dwordx4 %s, v%d, s[48:51], s%d offen offset:%d sc1" % (r4("v", VPK + 4 * mt), V_L16, 53 + lam, mt * 1024), ("S", lam))
                    side.append(f)
    for f in side:
        if f: f()
    assert not order and xload_done
    stamp(a, cfg, 3, 66)
    for lam in range(3):
        a.wait(vm=("S", lam))
        a.vmem("buffer_store_dword v%d, v%d, s[48:51], s%d offen sc1" % (V_ONE, V_FL, 56 + lam), ("F", lam))
    a("v_mov_b32 v%d, 0" % (T + 1))
    a("s_mov_b32 s54, 0x40000")
    a.label("G2_poll")
    a("s_sub_u32 s54, s54, 1")
    a("s_cbranch_scc1 G2_go")
    a("buffer_load_dwordx3 v[%d:%d], v%d, s[48:51], s59 offen sc1" % (T + 4, T + 6, T + 1))
    a("s_waitcnt vmcnt(0)")
    a("v_and_b32 v%d, v%d, v%d" % (T + 4, T + 4, T + 5))
    a("v_and_b32 v%d, v%d, v%d" % (T + 4, T + 4, T + 6))
    a("s_nop 0")
    a("v_readfirstlane_b32 s53, v%d" % (T + 4))
    a("s_cmp_eq_u32 s53, 1")
    a("s_cbranch_scc0 G2_poll")
    a.label("G2_go")
    a.reset()
    if cfg.get("stamp"): a("s_memtime s[62:63]")
    for lam in range(3):
        for mt in range(MT):
            a.vmem("buffer_load_dwordx4 %s, v%d, s[48:51], s52 offen offset:%d sc1" % (r4("v", VP + 16 * lam + 4 * mt), V_L16, mt * 1024), ("R", lam, mt))
        if lam < 2: a("s_add_u32 s52, s52, 4096")
    for lam in range(3):
        for mt in range(MT):
            a.wait(vm=("R", lam, mt))
            for hh in range(2):
                for e2 in range(2):
                    p = VP + 16 * lam + 4 * mt + 2 * hh + e2
                    c = acc(mt, 6 + hh) + 2 * e2
                    a("v_lshlrev_b32 v%d, 16, v%d" % (T, p))
                    a("v_and_b32 v%d, 0xffff0000, v%d" % (T + 1, p))
                    a("v_add_f32 v%d, v%d, v%d" % (c, c, T))
                    a("v_add_f32 v%d, v%d, v%d" % (c + 1, c + 1, T + 1))
            if lam == 2:
                c0, c1 = acc(mt, 6), acc(mt, 7)
                a("s_nop 1")
                for e in range(4): a("v_permlane16_swap_b32 v%d, v%d" % (c0 + e, c1 + e))
                a("s_nop 1")
                xr = VX + 4 * mt
                for hh, c in enumerate((c0, c1)):
                    for e2 in range(2):
                        xx = xr + 2 * hh + e2
                        a("v_lshlrev_b32 v%d, 16, v%d" % (T, xx))
                        a("v_and_b32 v%d, 0xffff0000, v%d" % (T + 1, xx))
                        a("v_add_f32 v%d, v%d, v%d" % (T, T, c + 2 * e2))
                        a("v_add_f32 v%d, v%d, v%d" % (T + 1, T + 1, c + 2 * e2 + 1))
                        a("v_cvt_pk_bf16_f32 v%d, v%d, v%d" % (xx, T, T + 1))
                a.vmem("buffer_store_dwordx4 %s, v%d, s[44:47], s39 offen" % (r4("v", xr), V_XO), "O")
                if mt < 3: a("s_add_u32 s39, s39, 32768")
    if cfg.get("stamp"): srd_off(a, 12, 8, 0, WS_END)
    stamp_out(a, cfg, 4, 60, 24, 12, 0x30000, 4)
    a.label("G2_end")
    a("s_endpgm")
    kernel_desc(a, name, 240, sgpr=96, accum=240, agpr=BR + RB * 4)
    return "; @launch kernel=%s grid=(256,1,1) block=(256,1,1) lds=%d" % (name, NS * STAGE)

def gen_pf(a, cfg):
    name = "pf_kernel"
    kernel_begin(a, name)
    a.reset()
    stamp(a, cfg, 0, 60)
    if cfg.get("stamp"): a("s_memrealtime s[70:71]")
    a("s_cmp_ge_u32 s2, 256")
    a("s_cbranch_scc1 PF_end")
    a("s_load_dwordx4 s[4:7], s[0:1], 8")
    a("s_load_dwordx4 s[8:11], s[0:1], 32")
    a("s_load_dwordx2 s[36:37], s[0:1], 64")
    a("v_lshrrev_b32 v2, 6, v0")
    a("s_nop 0")
    a("v_readfirstlane_b32 s34, v2")
    mode = cfg.get("pf_mode", 0)
    gran = cfg.get("pf_gran", 128)
    if mode == 0: gran = 16
    if mode == 2:
        a("s_lshr_b32 s3, s2, 3")
        a("s_lshl_b32 s3, s3, 9")
        nthr = 32 * 512
    else:
        a("s_lshl_b32 s3, s2, 9")
        nthr = 256 * 512
    a("v_add_u32 v1, s3, v0")
    a("s_mov_b32 s31, %d" % gran)
    a("v_mul_lo_u32 v1, s31, v1")
    if nthr * gran >= (1 << 32):
        a("v_add_u32 v3, s3, v0")
        a("v_min_u32 v3, 200, v3")
        a("v_mul_lo_u32 v1, s31, v3")
    a("s_waitcnt lgkmcnt(0)")
    sizes = [D * 3 * D * 2, D * D * 2, D * DFF * 2, D * DFF * 2]
    order = [0, 2, 3, 1]
    mask = cfg.get("pf_mask", 15)
    n = 0
    for b in order:
        if not (mask >> b) & 1: continue
        srd(a, 12 + 4 * b, 4 + 2 * b, sizes[b])
        step = nthr * gran
        for off in range(0, sizes[b], step):
            a("s_mov_b32 s30, 0x%x" % off)
            if mode == 0: a("buffer_load_dwordx4 %s, v1, s[%d:%d], s30 offen" % (r4("v", 8 + 4 * n), 12 + 4 * b, 15 + 4 * b))
            else: a("buffer_load_dword v%d, v1, s[%d:%d], s30 offen" % (8 + n, 12 + 4 * b, 15 + 4 * b))
            n += 1
    stamp(a, cfg, 1, 62); stamp(a, cfg, 2, 64); stamp(a, cfg, 3, 66)
    a("s_waitcnt vmcnt(0)")
    if cfg.get("stamp"): srd_off(a, 12, 36, 0, WS_END)
    stamp_out(a, cfg, 4, 60, 34, 12, 0x50000, 8)
    a.label("PF_end")
    a("s_endpgm")
    kernel_desc(a, name, 72, sgpr=80)
    return "; @launch kernel=%s grid=(256,1,1) block=(512,1,1) lds=0" % name

def gen_em(a, cfg):
    kernel_begin(a, "em_kernel")
    a("s_endpgm")
    kernel_desc(a, "em_kernel", 8, sgpr=16)
    return "; @launch kernel=em_kernel grid=(256,1,1) block=(256,1,1) lds=0"

def gen_amp(a, cfg):
    kernel_begin(a, "amp_kernel")
    a("s_cmp_ge_u32 s2, 1")
    a("s_cbranch_scc1 AMP_end")
    a("s_load_dwordx2 s[8:9], s[0:1], 64")
    a("s_waitcnt lgkmcnt(0)")
    a("s_load_dword s10, s[8:9], 0x%x" % cfg["amp_a"])
    a("s_load_dword s11, s[8:9], 0x%x" % cfg["amp_b"])
    a("s_memrealtime s[12:13]")
    a("s_waitcnt lgkmcnt(0)")
    if cfg.get("amp_abs"): a("s_mov_b32 s10, 0")
    a("s_sub_u32 s10, s11, s10")
    a("s_mul_i32 s10, s10, %d" % cfg.get("amp_k", 10))
    a("s_lshr_b32 s10, s10, %d" % cfg.get("amp_sh", 0))
    a("s_min_u32 s10, s10, 100000")
    a.label("AMP_l")
    a("s_memrealtime s[14:15]")
    a("s_waitcnt lgkmcnt(0)")
    a("s_sub_u32 s14, s14, s12")
    a("s_cmp_lt_u32 s14, s10")
    a("s_cbranch_scc1 AMP_l")
    a.label("AMP_end")
    a("s_endpgm")
    kernel_desc(a, "amp_kernel", 8, sgpr=24)
    return "; @launch kernel=amp_kernel grid=(1,1,1) block=(64,1,1) lds=0"

def build(cfg, kernels):
    a = Prog()
    heads = []
    for k in kernels:
        heads.append(globals()["gen_" + k](a, cfg))
    a.raw(".text")
    a.label("CODE_END")
    for _ in range(cfg.get("nempty", 0)): heads.append(heads[-1])
    if cfg.get("single"):
        assert len(heads) == 1
        heads = [heads[0].replace("kernel=%s_kernel " % NAME, "")]
    hdr = "\n".join(heads) + "\n" + '.amdgcn_target "amdgcn-amd-amdhsa--gfx950"\n'
    return hdr + a.text()

if __name__ == "__main__":
    cfg = dict(g1_mt=4)
    out = sys.argv[1]
    kernels = sys.argv[2].split(",")
    for kv in sys.argv[3:]:
        k, v = kv.split("="); cfg[k] = int(v, 0)
    open(out, "w").write(build(cfg, kernels))
```

```python
import sys, math
from asmlib import *
import gen
from gen import *

class SA:
    def __init__(self, start, end):
        self.n = start; self.end = end; self.m = {}
    def new(self, name, cnt=1, align=1):
        self.n = (self.n + align - 1) // align * align
        r = self.n; self.n += cnt
        assert self.n <= self.end, "out of sgprs"
        self.m[name] = r
        return r

def s4(b): return "s[%d:%d]" % (b, b + 3)
MF = "v_mfma_f32_16x16x32_bf16"

def kind_of(op):
    if op is None: return None
    if isinstance(op, tuple): return op[0]
    t = op.lstrip()
    if t.startswith("s_"): return "s"
    if t.startswith("v_"): return "v"
    raise ValueError(op)

class Gaps:
    def __init__(self, a):
        self.a = a
        self.sal = []
        self.side = []
    def run(self, op):
        if isinstance(op, tuple): op[1]()
        else: self.a(op)
    def gap(self, first=None, fixed=None, mem=None):
        used0 = False
        room = 2
        if first is not None: used0 = bool(first())
        if not used0:
            if self.sal:
                x = self.sal.pop(0); self.a(x); used0 = True
                room -= x.count("\n")
            elif self.side and kind_of(self.side[0]) == "s":
                self.run(self.side.pop(0)); used0 = True
        if mem is not None:
            mem(); return
        if fixed is not None:
            fixed(); room -= 1
        if self.side and self.side[0] is None:
            self.side.pop(0)
            skip = True
        else: skip = False
        while room > 0:
            if self.sal and self.sal[0].count("\n") < room:
                x = self.sal.pop(0); self.a(x); room -= 1 + x.count("\n"); continue
            if skip or not self.side or self.side[0] is None: break
            k = kind_of(self.side[0])
            if k in ("m", "x"):
                if room == 2:
                    self.run(self.side.pop(0))
                break
            self.run(self.side.pop(0)); room -= 1
    def drain_sal(self):
        while self.sal: self.a(self.sal.pop(0))
    def drain(self):
        self.drain_sal()
        for op in self.side:
            if op is not None: self.run(op)
        self.side = []

def gen_f(a, cfg):
    name = NAME + "_kernel" if cfg.get("single") else "f_kernel"
    FLN = cfg.get("f_ln", 0)
    ST = cfg.get("stamp")
    MT = 4
    sa = SA(3, 84)
    P_WQ = sa.new("pwq", 2, 2); P_W1 = sa.new("pw1", 2, 2); P_WS = sa.new("pws", 2, 2); P_X = sa.new("px", 2, 2)
    P_W2 = sa.new("pw2", 2, 2); P_WO = sa.new("pwo", 2, 2); P_OUT = sa.new("pout", 2, 2)
    R_WQ = sa.new("rwq", 4, 4); R_W1 = sa.new("rw1", 4, 4); R_W2 = sa.new("rw2", 4, 4); R_WO = sa.new("rwo", 4, 4)
    R_WS = sa.new("rws", 4, 4)
    sW = sa.new("w"); sI = sa.new("i"); sJ = sa.new("j"); sJ1 = sa.new("j1"); sQ = sa.new("q"); sN = sa.new("n")
    sBQ = sa.new("bq"); sBV = sa.new("bv"); sBW = sa.new("bw"); sBL = sa.new("bl"); sLB = sa.new("lb"); sA = sa.new("a")
    sCLS = sa.new("cls"); t0 = sa.new("t0"); t1 = sa.new("t1"); t2 = sa.new("t2"); t3 = sa.new("t3")
    sMK = sa.new("mask", 8, 2)
    sKV = sa.new("kv"); sKV2 = sa.new("kv2"); sKP = sa.new("kp"); sKP2 = sa.new("kp2"); sFK = sa.new("fk"); sFO = sa.new("fo")
    sH = sa.new("h", 4); sSC = sa.new("sc", 2, 2); sO = sSC + 1; sA0 = sa.new("a0"); sB0 = sa.new("b0"); sAE = sa.new("aend"); sBE = sa.new("bend")
    sXO = sa.new("xo"); sSP = sa.new("spin")
    sDL = sMK
    STB = 84
    SETS = {1: ["start", "bar0", "g1end", "attbeg", "attend", "g2beg", "g2end", "end"],
            2: ["start", "g1half", "g1tail", "g1kv", "g1flag0", "g1flag1", "g1chk", "g1end"],
            3: ["start", "attbeg", "att0", "att1", "att2", "att3", "att4", "attend"],
            4: ["start", "att4", "g2h", "g2beg", "g2p4", "g2p12", "g2tail", "g2end"],
            5: ["start", "g2end", "x1", "x2", "x3", "x4", "x5", "end"],
            7: ["g2beg", "g2p3", "g2p6", "g2p10", "g2p14", "g2p18", "g2p22", "g2end"],
            8: ["g2p22", "g2tail", "g2l1", "g2l2", "g2l3", "g2end", "x3", "end"],
            9: ["start", "lnx", "lns", "lnd", "lnp", "g1s1", "g1s4", "g1s8"],
            6: ["start", "bar0", "g1s2", "g1s4", "g1s8", "g1half", "g1s20", "g1tail"]}
    def stampr(nm):
        if ST and nm in SETS[ST]:
            i = SETS[ST].index(nm)
            a("%s s[%d:%d]" % ("s_memtime" if cfg.get("clk") else "s_memrealtime", STB + 2 * i, STB + 2 * i + 1))

    NT = 13; KS = 32
    NS = 5; REG = 7168; STAGE = 4 * REG
    D1 = cfg.get("f_d1", 8)
    RA = cfg.get("f_ra1", 11)
    LA = cfg.get("f_la1", 4)
    DB = cfg.get("f_db1", 3); RB = DB + 2
    S1 = KS - D1
    def slot1(g): return (15 - g) % 5
    KVB = 96 * 1024
    def acc(mt, t): return (t * MT + mt) * 4
    V_L16 = 208; V_QKV = 209; V_W1 = 210; V_LEFT = 211
    V_RD = 212
    V_P0, V_P1, V_P2 = 221, 222, 223
    V_LANE = 224; V_FL0 = 225; V_ONE = 226; V_POLL = 227; V_KVW = 228; V_FG = 229; V_PL = 230
    T = 232
    A_PD = 255
    AR = 0; BR = RA * 16
    assert BR + RB * 4 <= 254

    kernel_begin(a, name)
    a.reset()
    stampr("start")
    a("s_cmp_ge_u32 s2, 256")
    a("s_cbranch_scc1 F_end")
    a("s_load_dwordx2 s[%d:%d], s[0:1], 8" % (P_WQ, P_WQ + 1))
    a("s_load_dwordx2 s[%d:%d], s[0:1], 32" % (P_W1, P_W1 + 1))
    a("s_load_dwordx2 s[%d:%d], s[0:1], 64" % (P_WS, P_WS + 1))
    a("s_load_dwordx2 s[%d:%d], s[0:1], 0" % (P_X, P_X + 1))
    a("s_load_dwordx2 s[%d:%d], s[0:1], 40" % (P_W2, P_W2 + 1))
    a("s_load_dwordx2 s[%d:%d], s[0:1], 16" % (P_WO, P_WO + 1))
    a("s_load_dwordx2 s[%d:%d], s[0:1], 48" % (P_OUT, P_OUT + 1))
    P_DBG = sKV & ~1 if False else None
    if FLN: a("s_load_dwordx2 s[100:101], s[0:1], 56")
    L = V_LANE
    a("v_and_b32 v%d, 63, v0" % L)
    a("v_lshrrev_b32 v%d, 6, v0" % (T + 1))
    a("v_lshlrev_b32 v%d, 4, v%d" % (V_L16, L))
    a("v_readfirstlane_b32 s%d, v%d" % (sW, T + 1))
    a("s_and_b32 s%d, s2, 1" % sI)
    a("s_lshl_b32 s%d, s%d, 2" % (sI, sI))
    a("s_bfe_u32 s%d, s2, 0x20003" % t0)
    a("s_add_u32 s%d, s%d, s%d" % (sI, sI, t0))
    a("s_bfe_u32 s%d, s2, 0x20001" % sQ)
    a("s_lshr_b32 s%d, s2, 5" % sN)
    a("s_lshl_b32 s%d, s%d, 3" % (sJ, sQ))
    a("s_add_u32 s%d, s%d, s%d" % (sJ, sJ, sN))
    a("s_and_b32 s%d, s%d, 1" % (sJ1, sN))
    if FLN:
        a("v_and_b32 v3, 7, v%d" % L)
        a("v_lshrrev_b32 v4, 3, v%d" % L)
        a("v_lshlrev_b32 v5, 11, v3")
        a("v_lshl_add_u32 v5, v%d, 9, v5" % (T + 1))
        a("v_lshl_add_u32 v5, v4, 4, v5")
        a("s_lshl_b32 s%d, s%d, 5" % (t3, sI))
        a("s_add_u32 s%d, s%d, s%d" % (t3, t3, sJ))
        a("s_lshl_b32 s%d, s%d, 14" % (t0, t3))
        a("s_waitcnt lgkmcnt(0)")
        srd(a, R_W2, P_X, S * D * 2)
        for i in range(4):
            a.vmem("buffer_load_dwordx4 %s, v5, %s, s%d offen offset:%d" % (r4("v", 8 + 4 * i), s4(R_W2), t0, i * 128), "LX")
    a("v_lshrrev_b32 v%d, 2, v%d" % (T + 2, L))
    a("v_lshl_add_u32 v%d, v%d, 4, v%d" % (T + 2, T + 1, T + 2))
    a("v_lshrrev_b32 v%d, 4, v%d" % (T + 3, L))
    a("v_and_b32 v%d, 2, v%d" % (T + 3, T + 3))
    a("v_and_b32 v%d, 3, v%d" % (T + 4, L))
    a("v_xor_b32 v%d, v%d, v%d" % (T + 3, T + 3, T + 4))
    a("v_lshlrev_b32 v%d, 4, v%d" % (T + 3, T + 3))
    a("v_mul_u32_u24 v%d, 6144, v%d" % (V_QKV, T + 2))
    a("v_add_u32 v%d, v%d, v%d" % (V_QKV, V_QKV, T + 3))
    a("v_mul_u32_u24 v%d, 7168, v%d" % (V_W1, T + 2))
    a("v_add_u32 v%d, v%d, v%d" % (V_W1, V_W1, T + 3))
    a("v_bfe_u32 v%d, v%d, 3, 1" % (T + 2, L))
    a("v_lshlrev_b32 v%d, 3, v%d" % (T + 2, T + 2))
    a("v_bfe_u32 v%d, v%d, 4, 1" % (T + 3, L))
    a("v_lshl_add_u32 v%d, v%d, 2, v%d" % (T + 2, T + 3, T + 2))
    a("v_bfe_u32 v%d, v%d, 1, 2" % (T + 3, L))
    a("v_add_u32 v%d, v%d, v%d" % (T + 2, T + 2, T + 3))
    a("v_lshl_add_u32 v%d, v%d, 4, v%d" % (T + 2, T + 1, T + 2))
    a("v_mul_u32_u24 v%d, 7168, v%d" % (V_LEFT, T + 2))
    a("v_and_b32 v%d, 1, v%d" % (T + 3, L))
    a("v_lshl_add_u32 v%d, v%d, 4, v%d" % (V_LEFT, T + 3, V_LEFT))
    a("v_lshrrev_b32 v%d, 5, v%d" % (T + 3, L))
    a("v_lshl_add_u32 v%d, v%d, 30, v%d" % (V_LEFT, T + 3, V_LEFT))
    a("s_lshl_b32 s%d, s%d, 6" % (sBQ, sJ))
    a("s_add_u32 s%d, s%d, 4096" % (sBV, sBQ))
    a("s_mul_i32 s%d, s%d, 224" % (sBL, sJ))
    a("s_lshl_b32 s%d, s%d, 5" % (t0, sJ1))
    a("s_add_u32 s%d, s%d, s%d" % (sBW, sBL, t0))
    a("s_xor_b32 s%d, s%d, 1" % (t0, sJ1))
    a("s_mul_i32 s%d, s%d, 192" % (t0, t0))
    a("s_add_u32 s%d, s%d, s%d" % (sBL, sBL, t0))
    a("s_mul_i32 s%d, s%d, %d" % (sLB, sW, REG))
    a("s_lshl_b32 s%d, s%d, 2" % (sA, sI))
    a("s_add_u32 s%d, s%d, s%d" % (sA, sA, sW))
    a("s_lshl_b32 s%d, s%d, 17" % (sA, sA))
    a("s_add_u32 s%d, s%d, 0x%x" % (sA, sA, WS_XN))
    ROT = cfg.get("f_rot", 1)
    a("s_add_u32 s%d, s%d, s%d" % (t1, sI, sN))
    a("s_and_b32 s%d, s%d, %d" % (t1, t1, 3 if ROT else 0))
    for k in range(3):
        a("s_cmp_eq_u32 s%d, %d" % (t1, 3 - k))
        a("s_cselect_b32 s%d, -3, 1" % (sDL + k))
    a("s_cmp_eq_u32 s%d, 0" % t1)
    a("s_cselect_b32 s%d, 1, 5" % (sDL + 3))
    a("s_mul_i32 s%d, s%d, %d" % (t0, t1, 64 * 6144))
    a("s_add_u32 s%d, s%d, s%d" % (sBQ, sBQ, t0))
    a("s_add_u32 s%d, s%d, s%d" % (sBV, sBV, t0))
    a("s_mul_i32 s%d, s%d, %d" % (t0, t1, 64 * 7168))
    a("s_add_u32 s%d, s%d, s%d" % (sBW, sBW, t0))
    a("s_add_u32 s%d, s%d, s%d" % (sBL, sBL, t0))
    a("s_lshl_b32 s%d, s%d, 13" % (t0, t1))
    a("s_add_u32 s%d, s%d, s%d" % (sA, sA, t0))
    for k in range(4):
        a("s_lshl_b32 s%d, s%d, 13" % (sDL + 4 + k, sDL + k))
        a("s_sub_u32 s%d, s%d, 4096" % (sDL + 4 + k, sDL + 4 + k))
    a("s_waitcnt lgkmcnt(0)")
    srd(a, R_WQ, P_WQ, D * 3 * D * 2)
    srd(a, R_W1, P_W1, D * DFF * 2)
    srd(a, R_WS, P_WS, WS_END)

    G = Gaps(a)
    PAIRPOS = [0, 2, 1, 3, 4, 5]
    def dma1(g, k, part):
        p, vreg, sb, so, imm = [(0, V_QKV, R_WQ, sBQ, 0), (2, V_QKV, R_WQ, sBQ, 2048), (1, V_QKV, R_WQ, sBV, 0),
                                (3, V_W1, R_W1, sBW, 0), (4, V_W1, R_W1, sBW, 64), (5, V_W1, R_W1, sBW, 128), (6, V_LEFT, R_W1, sBL, 0)][k]
        if part == 0:
            a("s_add_u32 m0, s%d, %d" % (sLB, slot1(g) * STAGE + p * 1024 - imm))
        else:
            a.vmem("buffer_load_dwordx4 v%d, %s, s%d offen offset:%d lds" % (vreg, s4(sb), so, imm), ("B", g))
            if k == 0: G.sal.append("s_mul_i32 s%d, s%d, %d" % (t2, sDL + (g & 3), 64 * 6144))
            if k == 1: G.sal.append("s_add_u32 s%d, s%d, s%d" % (sBQ, sBQ, t2))
            if k == 2: G.sal.append("s_add_u32 s%d, s%d, s%d" % (sBV, sBV, t2))
            if k == 3: G.sal.append("s_mul_i32 s%d, s%d, %d" % (t2, sDL + (g & 3), 64 * 7168))
            if k == 5: G.sal.append("s_add_u32 s%d, s%d, s%d" % (sBW, sBW, t2))
            if k == 6: G.sal.append("s_add_u32 s%d, s%d, s%d" % (sBL, sBL, t2))
    def aload1(s, mt):
        a.vmem("buffer_load_dwordx4 %s, v%d, %s, s%d offen offset:%d%s" % (r4("a", AR + (s % RA) * 16 + mt * 4), V_L16, s4(R_WS), sA, mt * 1024, " sc1" if FLN else ""), ("A", s))
        if mt == MT - 1:
            if s % 2 == 0: G.sal.append("s_add_u32 s%d, s%d, 4096" % (sA, sA))
            else: G.sal.append("s_add_u32 s%d, s%d, s%d" % (sA, sA, sDL + 4 + ((s // 2) & 3)))
    order = []
    for g in range(16):
        for k in range(7): order.append(("B", g, k))
        for s in (2 * g, 2 * g + 1):
            for mt in range(MT): order.append(("A", s, mt))
    def issue1(op):
        G.drain_sal()
        if op[0] == "A": aload1(op[1], op[2])
        else:
            dma1(op[1], op[2], 0); a("s_nop 0"); dma1(op[1], op[2], 1)
        G.drain_sal()
    if FLN:
        nb = cfg.get("f_lnb", 2)
        bops = [o for o in order if o[0] == "B" and o[1] < nb]
        for o in bops:
            order.remove(o); issue1(o)
        lab = a.newlabel("F_pc")
        a("s_getpc_b64 s[%d:%d]" % (R_WO, R_WO + 1))
        a.label(lab)
        a("s_and_b32 s%d, s%d, 0xffff" % (R_WO + 1, R_WO + 1))
        a("s_mov_b32 s%d, CODE_END - %s" % (R_WO + 2, lab))
        a("s_mov_b32 s%d, 0x00020000" % (R_WO + 3))
        a("s_lshr_b32 s%d, s2, 3" % t0)
        a("s_lshl_b32 s%d, s%d, 11" % (t0, t0))
        a("v_lshlrev_b32 v70, 7, v0")
        a("v_lshrrev_b32 v71, 4, v0")
        a("v_lshl_add_u32 v70, v71, 24, v70")
        a.vmem("buffer_load_dword v76, v70, %s, s%d offen" % (s4(R_WO), t0), "T")
        a("s_lshl_b32 s%d, s2, 9" % t0)
        a("s_add_u32 s%d, s%d, 0x%x" % (t0, t0, WS_FL))
        a("v_lshlrev_b32 v70, 2, v0")
        a("v_lshrrev_b32 v71, 7, v0")
        a("v_lshl_add_u32 v70, v71, 30, v70")
        a("v_mov_b32 v71, 0")
        a.vmem("buffer_store_dword v71, v70, %s, s%d offen sc1" % (s4(R_WS), t0), "Z")
        a("s_lshr_b32 s%d, s%d, 3" % (t0, t3))
        a("s_lshl_b32 s%d, s%d, 17" % (t0, t0))
        a("s_bfe_u32 s%d, s%d, 0x20001" % (t1, t3))
        a("s_lshl_b32 s%d, s%d, 10" % (t1, t1))
        a("s_add_u32 s%d, s%d, s%d" % (t0, t0, t1))
        a("s_and_b32 s%d, s%d, 1" % (t1, t3))
        a("s_lshl_b32 s%d, s%d, 7" % (t1, t1))
        a("s_add_u32 s%d, s%d, s%d" % (t0, t0, t1))
        a("s_add_u32 s%d, s%d, 0x%x" % (t3, t0, WS_XN))
        a("v_lshrrev_b32 v6, 2, v4")
        a("v_lshl_add_u32 v6, v%d, 3, v6" % (T + 1))
        a("v_lshlrev_b32 v6, 12, v6")
        a("v_and_b32 v7, 3, v4")
        a("v_lshl_add_u32 v6, v7, 8, v6")
        a("v_lshl_add_u32 v6, v3, 4, v6")
        a("v_lshl_add_u32 v7, v%d, 3, v3" % (T + 1))
        a("v_lshlrev_b32 v7, 3, v7")
        a("v_add_u32 v7, %d, v7" % (5 * STAGE))
        a("v_lshlrev_b32 v60, 3, v3")
        a("v_add_u32 v60, %d, v60" % (5 * STAGE))
        a.wait(vm="LX")
        stampr("lnx")
        ln_math(a)
        for i in range(4):
            a.vmem("buffer_store_dwordx4 %s, v6, %s, s%d offen sc1" % (r4("v", 8 + 4 * i), s4(R_WS), t3), "XS")
            if i < 3: a("s_add_u32 s%d, s%d, %d" % (t3, t3, 8192))
        stampr("lns")
    else:
        for _ in range(cfg.get("f_pro1", 15)): issue1(order.pop(0))

    srd(a, R_W2, P_W2, DFF * D * 2)
    srd(a, R_WO, P_WO, D * D * 2)
    a("s_bfe_u32 s%d, s2, 0x30003" % sCLS)
    a("s_lshr_b32 s%d, s2, 6" % t1)
    a("s_lshl_b32 s%d, s%d, 2" % (t1, t1))
    a("s_add_u32 s%d, s%d, s%d" % (t1, t1, sW))
    a("v_bfrev_b32 v%d, 1" % (T + 6))
    a("v_lshrrev_b32 v%d, 5, v%d" % (T + 2, L))
    a("s_lshl_b32 s%d, s%d, 1" % (t0, t1))
    a("v_add_u32 v%d, s%d, v%d" % (T + 2, t0, T + 2))
    a("v_and_b32 v%d, 31, v%d" % (T + 3, L))
    a("v_mul_u32_u24 v%d, 7168, v%d" % (V_P1, T + 2))
    a("v_lshl_add_u32 v%d, v%d, 7, v%d" % (V_P1, T + 3, V_P1))
    a("s_mul_i32 s%d, s%d, 1792" % (t0, sQ))
    a("v_add_u32 v%d, s%d, v%d" % (V_P1, t0, V_P1))
    a("v_mul_u32_u24 v%d, 6144, v%d" % (V_P0, T + 2))
    a("v_lshrrev_b32 v%d, 2, v%d" % (T + 4, T + 3))
    a("v_lshl_add_u32 v%d, v%d, 11, v%d" % (V_P0, T + 4, V_P0))
    a("v_and_b32 v%d, 3, v%d" % (T + 4, T + 3))
    a("v_lshl_add_u32 v%d, v%d, 7, v%d" % (V_P0, T + 4, V_P0))
    a("s_lshl_b32 s%d, s%d, 9" % (t0, sQ))
    a("v_add_u32 v%d, s%d, v%d" % (V_P0, t0, V_P0))
    a("v_cmp_le_u32 vcc, 12, v%d" % (T + 3))
    a("s_and_b32 s%d, s2, 1" % t0)
    a("s_lshl_b32 s%d, s%d, 4" % (t0, t0))
    a("v_cndmask_b32 v%d, v%d, v%d, vcc" % (V_P0, V_P0, T + 6))
    a("v_cmp_le_u32 vcc, 14, v%d" % (T + 3))
    a("s_add_u32 s%d, s%d, s%d" % (t0, t0, t1))
    a("s_lshl_b32 s%d, s%d, 17" % (t0, t0))
    a("v_cndmask_b32 v%d, v%d, v%d, vcc" % (V_P1, V_P1, T + 6))
    a("s_add_u32 s%d, s%d, 0x%x" % (t0, t0, WS_XN))
    a("v_lshlrev_b32 v%d, 7, v%d" % (V_P2, L))
    a("v_add_u32 v%d, s%d, v%d" % (V_P2, t0, V_P2))
    a("v_cmp_le_u32 vcc, 32, v%d" % L)
    a("s_lshl_b32 s%d, s%d, 12" % (t0, sCLS))
    a("s_nop 0")
    a("v_cndmask_b32 v%d, v%d, v%d, vcc" % (V_P2, V_P2, T + 6))
    PFM = cfg.get("f_pf", 3)
    PF0 = cfg.get("f_pf0", 8)
    if PFM & 2:
        a("buffer_load_dword a%d, v%d, %s, s%d offen" % (A_PD, V_P2, s4(R_WS), t0))
    def touch(n):
        lab = a.newlabel("F_pf")
        a("s_cmp_lg_u32 s%d, %d" % (sCLS, n & 7))
        a("s_cbranch_scc1 %s" % lab)
        if PFM & 1:
            a("s_mov_b32 s%d, %d" % (t0, n * 32 * 6144))
            a("s_mov_b32 s%d, %d" % (t1, n * 32 * 7168))
            a("buffer_load_dword a%d, v%d, %s, s%d offen" % (A_PD, V_P0, s4(R_WQ), t0))
            a("buffer_load_dword a%d, v%d, %s, s%d offen" % (A_PD - 1, V_P1, s4(R_W1), t1))
        if PFM & 2:
            a("s_mov_b32 s%d, %d" % (t0, n * 4096))
            a("buffer_load_dword a%d, v%d, %s, s%d offen" % (A_PD, V_P2, s4(R_WS), t0))
        a.label(lab)
    if PFM & 4:
        a("s_and_b32 s%d, s2, 1" % t0)
        a("v_lshrrev_b32 v%d, 5, v%d" % (T + 2, L))
        a("v_cmp_ne_u32 vcc, s%d, v%d" % (t0, T + 2))
        a("s_nop 1")
        a("v_cndmask_b32 v%d, v%d, v%d, vcc" % (V_P0, V_P0, T + 6))
        a("v_cndmask_b32 v%d, v%d, v%d, vcc" % (V_P1, V_P1, T + 6))
    PW = cfg.get("f_pw", 1); PW0 = cfg.get("f_pw0", 12)
    V_PW = 231
    a("v_lshlrev_b32 v%d, 7, v%d" % (V_PW, L))
    a("v_cmp_le_u32 vcc, 56, v%d" % L)
    a("s_nop 1")
    a("v_cndmask_b32 v%d, v%d, v%d, vcc" % (V_PW, V_PW, T + 6))
    def touchw(cls):
        lab = a.newlabel("F_pw")
        if cls is not None:
            a("s_cmp_lg_u32 s%d, %d" % (sCLS, cls))
            a("s_cbranch_scc1 %s" % lab)
        a("s_lshl_b32 s%d, s2, 2" % t0)
        a("s_add_u32 s%d, s%d, s%d" % (t0, t0, sW))
        a("s_mul_i32 s%d, s%d, 7168" % (t1, t0))
        a("buffer_load_dword a%d, v%d, %s, s%d offen" % (A_PD, V_PW, s4(R_W2), t1))
        a("s_lshl_b32 s%d, s%d, 11" % (t1, t0))
        a("s_mov_b64 exec, 0xffff")
        a("buffer_load_dword a%d, v%d, %s, s%d offen" % (A_PD - 1, V_PW, s4(R_WO), t1))
        a("s_mov_b64 exec, -1")
        a.label(lab)
    def touchx(k):
        a("s_lshr_b32 s%d, s2, 3" % t0)
        a("s_lshl_b32 s%d, s%d, 2" % (t0, t0))
        a("s_add_u32 s%d, s%d, s%d" % (t0, t0, sW))
        a("s_lshl_b32 s%d, s%d, 7" % (t1, sQ))
        a("s_add_u32 s%d, s%d, s%d" % (t0, t0, t1))
        if k < 2:
            a("s_mul_i32 s%d, s%d, 14336" % (t1, t0))
            if k: a("s_add_u32 s%d, s%d, 7168" % (t1, t1))
            a("buffer_load_dword a%d, v%d, %s, s%d offen" % (A_PD - k, V_PW, s4(R_W2), t1))
        else:
            a("s_lshl_b32 s%d, s%d, 12" % (t1, t0))
            a("s_mov_b32 exec_hi, 0")
            a("buffer_load_dword a%d, v%d, %s, s%d offen" % (A_PD, V_PW, s4(R_WO), t1))
            a("s_mov_b32 exec_hi, -1")
    pfq = list(range(PF0, KS)) if PFM else []
    PFA = cfg.get("f_pfa", 30)
    a("v_lshrrev_b32 v%d, 5, v%d" % (T + 2, L))
    a("v_mul_u32_u24 v%d, %d, v%d" % (T + 2, REG, T + 2))
    a("v_and_b32 v%d, 3, v%d" % (T + 3, L))
    a("v_lshl_add_u32 v%d, v%d, 3, v%d" % (T + 2, T + 3, T + 2))
    a("v_bfe_u32 v%d, v%d, 2, 2" % (T + 3, L))
    a("v_bfe_u32 v%d, v%d, 4, 1" % (T + 4, L))
    a("v_lshl_add_u32 v%d, v%d, 6, v%d" % (V_RD, T + 3, T + 2))
    a("v_lshl_add_u32 v%d, v%d, 9, v%d" % (V_RD, T + 4, V_RD))
    a("v_lshl_add_u32 v%d, v%d, 5, v%d" % (V_RD, T + 4, V_RD))
    a("v_xor_b32 v%d, 32, v%d" % (V_RD + 1, V_RD))
    a("v_lshl_add_u32 v%d, v%d, 5, v%d" % (V_RD + 2, T + 3, T + 2))
    a("v_lshl_add_u32 v%d, v%d, 7, v%d" % (V_RD + 2, T + 4, V_RD + 2))
    for st_ in (1, 2):
        for x in range(3):
            a("v_add_u32 v%d, %d, v%d" % (V_RD + 3 * st_ + x, st_ * 2 * STAGE, V_RD + x))
    a("s_lshl_b32 s%d, s%d, 7" % (sKV, sJ))
    a("s_lshl_b32 s%d, s%d, 4" % (t0, sI))
    a("s_add_u32 s%d, s%d, s%d" % (sKV, sKV, t0))
    a("s_lshl_b32 s%d, s%d, 2" % (t0, sW))
    a("s_add_u32 s%d, s%d, s%d" % (sKV, sKV, t0))
    a("s_lshl_b32 s%d, s%d, 10" % (sKV, sKV))
    a("s_add_u32 s%d, s%d, 0x%x" % (sKV2, sKV, WS_V))
    a("s_add_u32 s%d, s%d, 0x%x" % (sKV, sKV, WS_K))
    a("s_sub_u32 s%d, s%d, 16384" % (sKP, sKV))
    a("s_sub_u32 s%d, s%d, 16384" % (sKP2, sKV2))
    a("s_cmp_eq_u32 s%d, 0" % sI)
    a("s_cselect_b32 s%d, 0x40000000, s%d" % (sKP, sKP))
    a("s_cselect_b32 s%d, 0x40000000, s%d" % (sKP2, sKP2))
    a("s_lshl_b32 s%d, s2, 2" % sFO)
    a("s_add_u32 s%d, s%d, s%d" % (sFO, sFO, sW))
    a("s_lshl_b32 s%d, s%d, 7" % (sFO, sFO))
    a("s_add_u32 s%d, s%d, 0x%x" % (sFO, sFO, WS_FL))
    a("s_add_u32 s%d, s%d, 1" % (t0, sI))
    a("s_and_b32 s%d, s%d, 3" % (t1, t0))
    a("s_lshl_b32 s%d, s%d, 3" % (t1, t1))
    a("s_lshr_b32 s%d, s%d, 2" % (t0, t0))
    a("s_or_b32 s%d, s%d, s%d" % (t1, t1, t0))
    a("s_and_b32 s%d, s2, 0xe6" % t0)
    a("s_or_b32 s%d, s%d, s%d" % (t1, t1, t0))
    a("s_lshl_b32 s%d, s%d, 2" % (t1, t1))
    a("s_add_u32 s%d, s%d, s%d" % (t1, t1, sW))
    a("s_lshl_b32 s%d, s%d, 7" % (t1, t1))
    a("s_add_u32 s%d, s%d, 0x%x" % (sFK, t1, WS_FL + 12))
    a("s_cmp_eq_u32 s%d, 7" % sI)
    a("s_cselect_b32 s%d, 0x40000000, s%d" % (sFK, sFK))
    a("v_cmp_ne_u32 vcc, 0, v%d" % L)
    a("v_mov_b32 v%d, 1" % V_ONE)
    a("v_and_b32 v%d, 31, v%d" % (V_PL, L))
    a("v_cndmask_b32 v%d, 0, v%d, vcc" % (V_FL0, T + 6))
    a("v_lshlrev_b32 v%d, 2, v%d" % (V_PL, V_PL))
    a("s_and_b32 s%d, s2, 31" % t0)
    a("s_lshl_b32 s%d, s%d, 2" % (t0, t0))
    a("s_add_u32 s%d, s%d, s%d" % (t0, t0, sW))
    a("s_lshl_b32 s%d, s%d, 7" % (t0, t0))
    a("s_lshl_b32 s%d, s%d, 2" % (t1, sN))
    a("s_add_u32 s%d, s%d, s%d" % (t0, t0, t1))
    a("s_add_u32 s%d, s%d, 0x%x" % (t0, t0, WS_FL))
    a("v_lshlrev_b32 v%d, 14, v%d" % (V_FG, L))
    a("v_add_u32 v%d, s%d, v%d" % (V_FG, t0, V_FG))
    a("v_cmp_le_u32 vcc, 8, v%d" % L)
    a("s_lshl_b32 s%d, s%d, 12" % (t0, sW))
    a("s_add_u32 s%d, s%d, %d" % (t0, t0, KVB))
    a("v_cndmask_b32 v%d, v%d, v%d, vcc" % (V_FG, V_FG, T + 6))
    a("v_add_u32 v%d, s%d, v%d" % (V_KVW, t0, V_L16))
    a("s_lshl_b32 s%d, s%d, 2" % (t0, sI))
    a("s_add_u32 s%d, s%d, s%d" % (t0, t0, sW))
    a("s_lshl_b32 s%d, s%d, 17" % (sXO, t0))
    a("s_mul_i32 s%d, s%d, 144" % (t0, t0))
    a("s_mul_i32 s%d, s%d, 36" % (t1, sQ))
    a("s_add_u32 s%d, s%d, s%d" % (t0, t0, t1))
    a("s_lshl_b32 s%d, s%d, 12" % (t0, t0))
    a("s_add_u32 s%d, s%d, 0x%x" % (t0, t0, WS_A2))
    a("s_add_u32 s%d, s%d, %d" % (sAE, t0, 28 * 4096))
    a("s_lshl_b32 s%d, s%d, 12" % (t1, sN))
    a("s_add_u32 s%d, s%d, s%d" % (sO, sAE, t1))
    a("s_mul_i32 s%d, s%d, 7" % (t1, sN))
    a("s_add_u32 s%d, s%d, s%d" % (t1, t1, sJ1))
    a("s_lshl_b32 s%d, s%d, 11" % (t1, t1))
    a("s_add_u32 s%d, s%d, s%d" % (sH, t0, t1))
    a("s_add_u32 s%d, s%d, 4096" % (sH + 1, sH))
    a("s_add_u32 s%d, s%d, 8192" % (sH + 2, sH))
    a("s_mul_i32 s%d, s%d, %d" % (sH + 3, sJ1, -4096 + 8 - 3 * 4096))
    a("s_add_u32 s%d, s%d, %d" % (sH + 3, sH + 3, 3 * 4096))
    a("s_add_u32 s%d, s%d, s%d" % (sH + 3, sH + 3, sH))
    a("s_lshl_b32 s%d, s%d, 8" % (t0, sN))
    a("s_add_u32 s%d, s%d, s%d" % (sXO, sXO, t0))
    a("s_lshl_b32 s%d, s%d, 6" % (t0, sQ))
    a("s_add_u32 s%d, s%d, s%d" % (sXO, sXO, t0))
    a("s_mov_b32 s%d, 0x%x" % (sSC, f2u(QSCALE)))
    def spin(mask, skip_if_i0=False):
        l0 = a.newlabel("F_sp"); l1 = a.newlabel("F_ok")
        if skip_if_i0:
            a("s_cmp_eq_u32 s%d, 0" % sI)
            a("s_cbranch_scc1 %s" % l1)
        a("s_mov_b32 s%d, 0x8000" % sSP)
        a.label(l0)
        a("v_cmp_ne_u32 vcc, 0, v%d" % V_POLL)
        a("s_and_b32 s%d, vcc_lo, 0x%x" % (t0, mask))
        a("s_cmp_eq_u32 s%d, 0x%x" % (t0, mask))
        a("s_cbranch_scc1 %s" % l1)
        a("buffer_load_dword v%d, v%d, %s, s%d offen sc1" % (V_POLL, V_PL, s4(R_WS), sFO))
        a("s_sub_u32 s%d, s%d, 1" % (sSP, sSP))
        a("s_waitcnt vmcnt(0)")
        a("s_cbranch_scc0 %s" % l0)
        a.label(l1)
    def poll_issue(tag):
        a.vmem("buffer_load_dword v%d, v%d, %s, s%d offen sc1" % (V_POLL, V_PL, s4(R_WS), sFO), tag)

    if FLN:
        a.wait(vm="XS")
        stampr("lnd")
        a("s_barrier")
        lab = a.newlabel("F_ln"); l2 = a.newlabel("F_lp")
        a("s_cmp_lg_u32 s%d, 0" % sW)
        a("s_cbranch_scc1 %s" % lab)
        a("s_lshl_b32 s%d, s%d, 5" % (t0, sI))
        a("v_mov_b32 v1, s%d" % t0)
        a("s_mov_b64 exec, 1")
        a("global_atomic_add v1, v%d, s[100:101] sc1" % V_ONE)
        a("s_mov_b32 s%d, 0x8000" % sSP)
        a.label(l2)
        a("global_load_dword v2, v1, s[100:101] sc1")
        a("s_waitcnt vmcnt(0)")
        a("v_readfirstlane_b32 s%d, v2" % t0)
        a("s_sub_u32 s%d, s%d, 1" % (sSP, sSP))
        a("s_cselect_b32 s%d, 32, s%d" % (t0, t0))
        a("s_cmp_lt_u32 s%d, 32" % t0)
        a("s_cbranch_scc1 %s" % l2)
        a("s_mov_b64 exec, -1")
        a.label(lab)
        a("s_barrier")
        stampr("lnp")
        for _ in range(8): issue1(order.pop(0))
    units = [(s, t) for s in range(S1) for t in range(NT)]
    units += [(s, t) for s in range(S1, KS) for t in (2, 3, 4, 5)]
    UKV = len(units)
    units += [(s, t) for s in range(S1, KS) for t in (6, 7, 8, 9)]
    UH01 = len(units)
    units += [(s, t) for s in range(S1, KS) for t in (10, 11, 12, 0, 1)]
    NU = len(units)
    last_unit_of_stage = {}
    last_unit_of_step = {}
    for u, (s, t) in enumerate(units):
        last_unit_of_stage[s // 2] = u; last_unit_of_step[s] = u
    stt = dict(ready=-1, free=set(), waited=-1, issued=-1)
    def barrier():
        a("s_barrier")
        for g, lu in last_unit_of_stage.items():
            if lu <= stt["waited"]: stt["free"].add(g)
    def can1(op):
        if op[0] == "B": return op[1] < NS or (op[1] - NS) in stt["free"]
        return op[1] < RA or last_unit_of_step[op[1] - RA] <= stt["issued"]
    def flush1(tag):
        while any(o[:2] == tag for o in order):
            op = order.pop(0)
            assert can1(op), (op, stt)
            if cfg.get("verbose"): print("late flush", op, file=sys.stderr)
            issue1(op)
    def bread1(u, j2):
        s, t = units[u]
        slot = slot1(s // 2); st_ = slot // 2
        off = (slot % 2) * STAGE + (s % 2) * 2 * REG + j2 * 256
        if t < 12: off += PAIRPOS[t // 2] * 1024; vr = V_RD + 3 * st_ + (t % 2)
        else: off += 6144; vr = V_RD + 3 * st_ + 2
        a.lds("ds_read_b64_tr_b16 %s, v%d offset:%d" % (r2("a", BR + (u % RB) * 4 + j2 * 2), vr, off), ("b", u))
    def need1(u):
        g = units[u][0] // 2
        if g > stt["ready"]:
            flush1(("B", g)); a.wait(vm=("B", g)); barrier(); stt["ready"] = g
    def pack(c0, c1, relu=False):
        ops = []
        for hh, c in enumerate((c0, c1)):
            if c is None: continue
            for e2 in range(2):
                ops.append("v_cvt_pk_bf16_f32 v%d, v%d, v%d" % (c0 + 2 * hh + e2, c + 2 * e2, c + 2 * e2 + 1))
            if relu:
                for e2 in range(2):
                    ops.append("v_pk_max_i16 v%d, v%d, 0" % (c0 + 2 * hh + e2, c0 + 2 * hh + e2))
        return ops
    HF = ["sc1", "", "nt", "sc0"][cfg.get("f_hf", 0)]
    def hstore(p, mt):
        if p < 3: a.vmem("buffer_store_dwordx4 %s, v%d, %s, s%d offen offset:%d %s" % (r4("v", acc(mt, 6 + 2 * p)), V_L16, s4(R_WS), sH + p, mt * 1024, HF), "H")
        else: a.vmem("buffer_store_dwordx2 %s, v%d, %s, s%d offen offset:%d %s" % (r2("v", acc(mt, 12)), V_L16, s4(R_WS), sH + 3, mt * 1024, HF), "H")
    need1(0)
    stampr("bar0")
    for u in range(DB):
        bread1(u, 0); bread1(u, 1)
    kvq = [(acc(mt, 2), acc(mt, 3), sKV, mt * 1024, 16384 + mt * 1024) for mt in range(MT)] + \
          [(acc(2 * b, 4 + dt), acc(2 * b + 1, 4 + dt), sKV2, (2 * b + dt) * 1024, 49152 + (2 * b + dt) * 1024) for b in range(2) for dt in range(2)]
    NREST = NU - UKV
    UFLAG = UKV + cfg.get("f_uf", 28)
    UPOLL = UFLAG + cfg.get("f_up", 14)
    UCHK = min(UPOLL + cfg.get("f_uc", 8), NU - 1)
    UPW = UCHK + cfg.get("f_uw", 14)
    V2_DMA = 209; V_XO = 211; V2_RD = 232; V2_B = 231
    bias = [232, 236, 240, 244]; VONES = 248; VM = 252
    sB2 = sBQ; sBO = sBV
    class Rec:
        def __init__(self): self.l = []
        def __call__(self, x): self.l.append(x)
    su = Rec(); TT = VM
    su("v_lshrrev_b32 v%d, 4, v%d" % (TT, L))
    su("v_lshlrev_b32 v%d, 11, v%d" % (V2_DMA, TT))
    su("v_lshlrev_b32 v%d, 1, v%d" % (TT, TT))
    su("v_and_b32 v%d, 15, v%d" % (TT + 1, L))
    su("v_xor_b32 v%d, v%d, v%d" % (TT, TT, TT + 1))
    su("v_lshl_add_u32 v%d, v%d, 4, v%d" % (V2_DMA, TT, V2_DMA))
    su("v_xor_b32 v%d, 128, v%d" % (V2_DMA + 1, V2_DMA))
    su("v_add_u32 v%d, %d, v%d" % (V2_DMA + 1, 8192 - 1024, V2_DMA + 1))
    su("v_lshrrev_b32 v%d, 4, v%d" % (TT, L))
    su("v_lshlrev_b32 v%d, 2, v%d" % (TT, TT))
    for e in range(4):
        su("v_add_u32 v%d, %d, v%d" % (TT + 2, e, TT))
        su("v_cmp_le_u32 s[%d:%d], v%d, v%d" % (sMK + 2 * e, sMK + 2 * e + 1, TT + 2, TT + 1))
    su("s_lshl_b32 s%d, s%d, 14" % (t2, sW))
    su("s_lshl_b32 s%d, s%d, 8" % (t1, sN))
    su("s_add_u32 s%d, s%d, s%d" % (t2, t2, t1))
    su("s_lshl_b32 s%d, s%d, 19" % (sBO, sQ))
    su("s_add_u32 s%d, s%d, s%d" % (sBO, sBO, t2))
    su("s_mul_i32 s%d, s%d, %d" % (sB0, sQ, 896 * 2048))
    su("s_add_u32 s%d, s%d, s%d" % (sB0, sB0, t2))
    su("s_add_u32 s%d, s%d, %d" % (sBE, sB0, 896 * 2048))
    su("s_mul_i32 s%d, s%d, 7" % (t1, sN))
    su("s_add_u32 s%d, s%d, s%d" % (t1, t1, sJ1))
    su("s_lshl_b32 s%d, s%d, 15" % (t1, t1))
    su("s_add_u32 s%d, s%d, s%d" % (sB2, sB0, t1))
    su("s_lshl_b32 s%d, s%d, 11" % (sLB, sW))
    LIN = cfg.get("f_lin", 1)
    if LIN:
        su("s_sub_u32 s%d, s%d, %d" % (sA, sAE, 28 * 4096))
        su("s_mov_b32 s%d, s%d" % (sAE, sH))
        su("s_add_u32 s%d, s%d, %d" % (sA0, sH, 3 * 4096))
        su("s_mov_b32 s%d, s%d" % (sBW, sB0))
        su("s_mov_b32 s%d, s%d" % (sBE, sB2))
        su("s_add_u32 s%d, s%d, %d" % (sB0, sB2, 3 * 65536))
    else:
        su("s_add_u32 s%d, s%d, %d" % (sA, sH, 3 * 4096))
        su("s_sub_u32 s%d, s%d, %d" % (sA0, sAE, 28 * 4096))
    su("s_cmp_eq_u32 s%d, s%d\ns_cselect_b32 s%d, s%d, s%d" % (sA, sAE, sA, sA0, sA))
    su("s_lshl_b32 s%d, s%d, 2" % (t1, sI))
    su("s_add_u32 s%d, s%d, s%d" % (t1, t1, sW))
    for gq in range(4):
        su("s_cmp_lt_u32 s%d, %d\ns_cselect_b32 s%d, 0x%x, 0" % (t1, 4 - gq, t2, f2u(-1e30)))
        for e in range(4): su("v_mov_b32 v%d, s%d" % (bias[gq] + e, t2))
    for e in range(4): su("v_mov_b32 v%d, 0x3f803f80" % (VONES + e))
    su("v_lshrrev_b32 v%d, 2, v%d" % (TT, L))
    su("v_and_b32 v%d, 7, v%d" % (TT + 2, TT))
    su("v_lshlrev_b32 v%d, 8, v%d" % (TT, TT))
    su("v_and_b32 v%d, 3, v%d" % (TT + 1, L))
    su("v_lshl_add_u32 v%d, v%d, 3, v%d" % (TT, TT + 1, TT))
    su("v_lshl_add_u32 v%d, v%d, 5, v%d" % (V2_B, TT + 2, TT))
    su("s_lshl_b32 s%d, s%d, 6" % (t1, sQ))
    su("s_xor_b32 s%d, s%d, 192" % (t1, t1))
    su("v_xor_b32 v%d, s%d, v%d" % (V2_B, t1, V2_B))
    V_T128 = V_XO
    su("v_lshlrev_b32 v%d, 7, v%d" % (V_T128, L))
    def selftouch(so, half):
        if half: a("s_mov_b32 exec_hi, 0")
        a.vmem("buffer_load_dword a%d, v%d, %s, s%d offen sc1" % (A_PD, V_T128, s4(R_WS), so), "T")
        if half: a("s_mov_b32 exec_hi, -1")
    def kpw(x):
        c0, c1, so, go, lo = kvq[x]
        a.wait(vm=("KP", x))
        a.lds("ds_write_b128 v%d, %s offset:%d" % (V_KVW, r4("v", c1), lo - 16384), "kvw")
    def codepf():
        lab = a.newlabel("F_pc")
        a("s_getpc_b64 s[%d:%d]" % (R_WQ, R_WQ + 1))
        a.label(lab)
        a("s_and_b32 s%d, s%d, 0xffff" % (R_WQ + 1, R_WQ + 1))
        a("s_mov_b32 s%d, CODE_END - %s" % (R_WQ + 2, lab))
        a("s_lshr_b32 s%d, s2, 3" % t0)
        a("s_lshl_b32 s%d, s%d, 2" % (t0, t0))
        a("s_add_u32 s%d, s%d, s%d" % (t0, t0, sW))
        a("s_lshl_b32 s%d, s%d, 9" % (t0, t0))
        a("s_mov_b64 exec, 15")
        a.vmem("buffer_load_dword a%d, v%d, %s, s%d offen" % (A_PD, V_PW, s4(R_WQ), t0), "T")
        a("s_mov_b64 exec, -1")
    seenA = set()
    ramp = (RA - 1 - LA) / float(S1 * NT)
    WM = cfg.get("f_wm", 200) / 100.0
    W0 = cfg.get("f_w0", 60) / 100.0
    UEND = S1 * NT + cfg.get("f_uend", 0)
    wts = [0.0] + [W0] * 3 + [WM if g % 4 == 0 else 1.0 for g in range(4, 16)]
    tau = [0.0]
    for g in range(16): tau.append(tau[-1] + wts[g])
    tau = [x * UEND / tau[-1] for x in tau]
    def due(op):
        g = op[1] if op[0] == "B" else op[1] // 2
        idx = op[2] if op[0] == "B" else 7 + (op[1] % 2) * 4 + op[2]
        return tau[g] + (tau[g + 1] - tau[g]) * idx / 15.0
    THR1 = cfg.get("f_thr1", 63)
    side = G.side
    def prewait1(u):
        s, t = units[u]
        if s not in seenA:
            flush1(("A", s)); seenA.add(s)
            r = a.wait(vm=("A", s), lg=("b", u))
        else: r = a.wait(lg=("b", u))
        stt["waited"] = u
        return r
    prewait1(0)
    for u in range(NU):
        s, t = units[u]
        un = u + DB
        if un < NU: need1(un)
        if u < UKV and s >= S1 - 4 and s < S1 + 1 and s % 2 == 0 and t == (1 if s < S1 else 3): barrier()
        if S1 // 2 <= 12 and u == last_unit_of_stage[12] + 2: barrier()
        if pfq and u % 4 == 2 and pfq[0] - 1 <= (u + PFA) / NT + LA + ramp * (u + PFA): touch(pfq.pop(0))
        if PW & 4:
            for k in range(3):
                if u == S1 * NT + cfg.get("f_px0", 4) + k * cfg.get("f_pxd", 16): touchx(k)
        if PW == 1 and u == UKV - PW0: touchw(None)
        if PW & 3 == 2 and u < S1 * NT and t == 8 and PW0 <= s < PW0 + 8: touchw((s + 4) & 7)
        if u == 16 * NT: stampr("g1half")
        if u < S1 * NT and t == 0: stampr("g1s%d" % s)
        if u == S1 * NT: stampr("g1tail")
        if u == UKV:
            stampr("g1kv")
            if cfg.get("f_cpf", 1): codepf()
        if u == UFLAG:
            stampr("g1flag0")
            a.wait(vm="KV")
            stampr("g1flag1")
            a.vmem("buffer_store_dword v%d, v%d, %s, s%d offen sc1" % (V_ONE, V_FL0, s4(R_WS), sFK), "FK")
        if u == UPOLL: poll_issue("PK")
        if u == UCHK:
            a.wait(vm="PK")
            spin(1 << 3, skip_if_i0=True)
            stampr("g1chk")
            for x, (c0, c1, so, go, lo) in enumerate(kvq):
                def f(c1=c1, so=(sKP if x < 4 else sKP2), go=go, x=x):
                    a.vmem("buffer_load_dwordx4 %s, v%d, %s, s%d offen offset:%d sc1" % (r4("v", c1), V_L16, s4(R_WS), so, go), ("KP", x))
                side.insert(x, ("m", f))
        bf = r4("a", BR + (u % RB) * 4)
        nxt = None
        if order and can1(order[0]) and len(G.sal) <= 1 and due(order[0]) <= u: nxt = order.pop(0)
        for mt in range(MT):
            mz = mt if u % 2 == 0 else MT - 1 - mt
            af = r4("a", AR + (s % RA) * 16 + mz * 4)
            c = r4("v", acc(mz, t))
            src = "0" if s == 0 else c
            if t in (4, 5): a("%s %s, %s, %s, %s" % (MF, c, af, bf, src))
            else:           a("%s %s, %s, %s, %s" % (MF, c, bf, af, src))
            rd = (lambda mt=mt: bread1(un, mt)) if (mt < 2 and un < NU) else None
            if mt == 0: G.gap(fixed=rd)
            elif mt == 1:
                if nxt and nxt[0] == "B": G.gap(first=lambda: (dma1(nxt[1], nxt[2], 0), True)[1], fixed=rd)
                else: G.gap(fixed=rd)
            elif mt == 2:
                if nxt:
                    assert not G.sal
                    G.gap(first=(lambda: a.throttle(THR1)), mem=((lambda: aload1(nxt[1], nxt[2])) if nxt[0] == "A" else (lambda: dma1(nxt[1], nxt[2], 1))))
                else: G.gap()
            else:
                stt["issued"] = u
                G.gap(first=(lambda: prewait1(u + 1)) if u + 1 < NU else None)
        if u == UKV - 1:
            assert 11 in stt["free"], stt
            side += [None] * 5
            for (c0, c1, so, go, lo) in kvq:
                side += pack(c0, c1)
                def f(c0=c0, so=so, go=go):
                    a.vmem("buffer_store_dwordx4 %s, v%d, %s, s%d offen offset:%d sc1" % (r4("v", c0), V_L16, s4(R_WS), so, go), "KV")
                side.append(("m", f))
            for (c0, c1, so, go, lo) in kvq:
                def f(c0=c0, lo=lo):
                    a.lds("ds_write_b128 v%d, %s offset:%d" % (V_KVW, r4("v", c0), lo), "kvw")
                side += [("x", f), None]
            assert not order
            side += su.l
        if u == UPW:
            assert 12 in stt["free"]
            side[:0] = [y for x in range(8) for y in (("x", lambda x=x: kpw(x)), None)]
        if u == UH01 - 1:
            side += [None] * 5
            for p in range(2):
                for mt in range(MT):
                    side += pack(acc(mt, 6 + 2 * p), acc(mt, 7 + 2 * p), relu=True)
                    side.append(("m", lambda p=p, mt=mt: hstore(p, mt)))
                    side += [None] * cfg.get("f_hsp", 4)
    if cfg.get("verbose"): print("G1 side left", len([x for x in side if x is not None]), file=sys.stderr)
    G.drain()
    assert not order
    assert 12 in stt["free"]
    stampr("g1end")

    if UPW >= NU:
        for x in range(8): kpw(x)
    a.wait(lg="kvw")
    a("s_barrier")
    stampr("attbeg")
    KF = 0; VF = 80
    va = []
    for mt in range(MT): va += pack(acc(mt, 10), acc(mt, 11), relu=True)
    for kt in range(20):
        a.lds("ds_read_b128 %s, v%d offset:%d" % (r4("a", KF + 4 * kt), V_KVW, kt * 1024), ("k", kt))
        a(va.pop(0))
    for mt in range(MT):
        for t in (0, 1):
            for e2 in range(2):
                c = acc(mt, t) + 2 * e2
                a("v_pk_mul_f32 v[%d:%d], v[%d:%d], s[%d:%d] op_sel_hi:[1,0]" % (c, c + 1, c, c + 1, sSC, sSC + 1))
        if mt == 0:
            for x in pack(acc(mt, 0), acc(mt, 1)): a(x)
    STCH = cfg.get("f_st", 7)
    a.vm = [("H01" if t == "H" else t) for t in a.vm]
    stq = [(cfg.get("f_st0", 200), sH), (cfg.get("f_st1", 380), sH + 1)] if STCH & 1 else []
    hstore(2, 0)
    for mt in range(1, MT): va += pack(acc(mt, 0), acc(mt, 1))
    for mt in range(MT): va += pack(acc(mt, 12), None, relu=True)
    free = [acc(mt, t) for t in (2, 3, 4, 5, 7, 9) for mt in range(MT)] + [212, 216, 220] + [acc(mt, t) for t in (11, 1) for mt in range(MT)]

    KS2 = 36; NSL = 20
    RA2 = cfg.get("f_ra2", 14); DB2 = cfg.get("f_db2", 3); RB2 = DB2 + 2
    BR2 = RA2 * 16
    assert BR2 + RB2 * 4 <= 256
    def aslot(p): return ((p - 3 + 10) % RA2) * 16
    def dma2_ops(p):
        sb, so = (R_W2, sB2) if p < 28 else (R_WO, sBO)
        ops = [(0, lambda: a("s_add_u32 m0, s%d, %d" % (sLB, (p % NSL) * 8192))),
               (1, lambda: a.vmem("buffer_load_dwordx4 v%d, %s, s%d offen lds" % (V2_DMA, s4(sb), so), ("B2", p))),
               (1, lambda: a.vmem("buffer_load_dwordx4 v%d, %s, s%d offen offset:1024 lds" % (V2_DMA + 1, s4(sb), so), ("B2", p)))]
        if LIN and p == 2:
            ops.append((0, lambda: a("s_mov_b32 s%d, s%d" % (sB2, sBW))))
        elif p != 27 and p != 35:
            ops.append((0, lambda: a("s_add_u32 s%d, s%d, 65536" % (so, so))))
        if p < 27 and not (LIN and p < 2):
            ops.append((0, lambda: a("s_cmp_eq_u32 s%d, s%d\ns_cselect_b32 s%d, s%d, s%d" % (sB2, sBE, sB2, sB0, sB2))))
        return ops
    def aload2(p, mt):
        a.vmem("buffer_load_dwordx4 %s, v%d, %s, s%d offen offset:%d %s" % (r4("a", aslot(p) + mt * 4), V_L16, s4(R_WS), sA, mt * 1024, ["sc1", "sc1 nt", ""][cfg.get("f_af", 0)]), ("A2", p))
        if mt == MT - 1:
            if p == 27 and not LIN: G.sal.append("s_mov_b32 s%d, s%d" % (sA, sAE))
            else:
                G.sal.append("s_add_u32 s%d, s%d, 4096" % (sA, sA))
                if p <= 27: G.sal.append("s_cmp_eq_u32 s%d, s%d\ns_cselect_b32 s%d, s%d, s%d" % (sA, sAE, sA, sA0, sA))
    hst = [(2, 1), (2, 2), (2, 3)] + [(3, mt) for mt in range(MT)]
    NPRE = cfg.get("f_npre", NSL)
    assert NPRE >= 3
    pre = []
    for p in range(NPRE): pre += [(p,) + op for op in dma2_ops(p)]

    S_ = {}; P_ = {}; O_ = {}
    def s_mfma(qa, kt):
        q = free.pop(0); S_[(qa, kt)] = q
        a.wait(lg=("k", kt))
        c = r4("v", bias[kt // 4]) if kt < 16 else "0"
        a("%s %s, %s, %s, %s" % (MF, r4("v", q), r4("a", KF + 4 * kt), r4("v", acc(qa, 0)), c))
    def pv_list(qa):
        b0 = qa // 2
        out = []
        for b in range(b0, b0 + 9):
            for z in range(3):
                def f(b=b, z=z):
                    if b == b0: O_[(qa, z)] = free.pop(0)
                    o = r4("v", O_[(qa, z)])
                    if z < 2:
                        a.wait(lg=("v", 2 * b + z)); A = r4("a", VF + (2 * b + z) * 4)
                    else: A = r4("v", VONES)
                    a("%s %s, %s, %s, %s" % (MF, o, A, r4("v", P_[(qa, b)]), "0" if b == b0 else o))
                    if z == 2: free.append(P_[(qa, b)])
                out.append(f)
        return out
    def fin_list(qa):
        o0, o1, sm = O_[(qa, 0)], O_[(qa, 1)], O_[(qa, 2)]
        ops = ["v_rcp_f32 v%d, v%d" % (sm, sm), "s_nop 0"]
        for o in (o0, o1):
            for e in range(4): ops.append("v_mul_f32 v%d, v%d, v%d" % (o + e, o + e, sm))
        ops += pack(o0, o1)
        def f():
            a.vmem("buffer_store_dwordx4 %s, v%d, %s, s%d offen offset:%d %s" % (r4("v", o0), V_L16, s4(R_WS), sO, qa * 1024, HF), "O")
            free.extend([o1, sm]); late_free.append(o0)
        ops.append(f)
        return ops
    late_free = []
    pready = set()
    def soft_list(qa):
        k0, k1 = qa, qa + 16
        ops = []
        f_, l_ = S_[(qa, k0)], S_[(qa, k1)]
        for e in range(4):
            ops.append((1, "v_cndmask_b32 v%d, v%d, v%d, s[%d:%d]" % (f_ + e, f_ + e, l_ + e, sMK + 2 * e, sMK + 2 * e + 1)))
        quads = [S_[(qa, kt)] for kt in range(k0 + 1, k1)] + [f_]
        m0, m1 = VM, VM + 1
        ops.append((1, "v_max_f32 v%d, v%d, v%d" % (m0, quads[0], quads[0] + 1)))
        ops.append((1, "v_max_f32 v%d, v%d, v%d" % (m1, quads[0] + 2, quads[0] + 3)))
        ops.insert(2, (0, "SLOT")); ops.insert(5, (0, "SLOT")); ops.append((0, "SLOT"))
        for q in quads[1:]:
            ops.append((1, "v_max3_f32 v%d, v%d, v%d, v%d" % (m0, m0, q, q + 1)))
            ops.append((1, "v_max3_f32 v%d, v%d, v%d, v%d" % (m1, m1, q + 2, q + 3)))
            ops.append((0, "SLOT"))
        ops.append((1, "v_max_f32 v%d, v%d, v%d" % (m0, m0, m1)))
        for op in ("v_permlane16_swap_b32", "v_permlane32_swap_b32"):
            ops.append((1, "v_mov_b32 v%d, v%d" % (m1, m0)))
            ops.append((2, "s_nop 1"))
            ops.append((1, "%s v%d, v%d" % (op, m0, m1)))
            ops.append((2, "s_nop 1"))
            ops.append((1, "v_max_f32 v%d, v%d, v%d" % (m0, m0, m1)))
        def subexp(q):
            r = []
            for e2 in range(2):
                r.append((1, "v_pk_add_f32 v[%d:%d], v[%d:%d], v[%d:%d] op_sel_hi:[1,0] neg_lo:[0,1] neg_hi:[0,1]" % (q + 2 * e2, q + 2 * e2 + 1, q + 2 * e2, q + 2 * e2 + 1, m0, m0 + 1)))
            for e in range(4):
                if e < 2: r.append((0, "SLOT"))
                r.append((2, "v_exp_f32 v%d, v%d" % (q + e, q + e)))
            r.append((0, "MEM"))
            return r
        ops += subexp(f_)
        ops += subexp(S_[(qa, k0 + 1)])
        for e in range(4):
            ops.append((1, "v_cndmask_b32 v%d, 0, v%d, s[%d:%d]" % (l_ + e, f_ + e, sMK + 2 * e, sMK + 2 * e + 1)))
        for e in range(4):
            ops.append((1, "v_cndmask_b32 v%d, v%d, 0, s[%d:%d]" % (f_ + e, f_ + e, sMK + 2 * e, sMK + 2 * e + 1)))
        done = {k0, k0 + 1, k1}
        b0 = qa // 2
        pend_pack = None
        for b in range(b0, b0 + 9):
            for kt in (2 * b, 2 * b + 1):
                if k0 <= kt <= k1 and kt not in done:
                    ops += subexp(S_[(qa, kt)]); done.add(kt)
            if pend_pack: ops += pend_pack
            lo, hi = S_.get((qa, 2 * b)), S_.get((qa, 2 * b + 1))
            pk = []
            if lo is None:
                d = hi
                pk.append((1, "v_cvt_pk_bf16_f32 v%d, v%d, v%d" % (d + 3, d + 2, d + 3)))
                pk.append((1, "v_cvt_pk_bf16_f32 v%d, v%d, v%d" % (d + 2, d, d + 1)))
                pk.append((1, "v_mov_b32 v%d, 0" % d)); pk.append((1, "v_mov_b32 v%d, 0" % (d + 1)))
            elif hi is None:
                d = lo
                pk += [(1, x) for x in pack(d, None)]
                pk.append((1, "v_mov_b32 v%d, 0" % (d + 2))); pk.append((1, "v_mov_b32 v%d, 0" % (d + 3)))
            else:
                d = lo
                pk += [(1, x) for x in pack(lo, hi)]
                pk.append((0, (lambda hi=hi: free.append(hi))))
            P_[(qa, b)] = d
            pk.append((0, (lambda b=b: pready.add((qa, b)))))
            pend_pack = pk
        ops.append((1, "s_nop 0"))
        ops += pend_pack
        return ops
    def run(op):
        if isinstance(op, str): a(op)
        else: op()
    vr = list(range(20))
    def vread():
        f = vr.pop(0)
        a.lds("ds_read_b128 %s, v%d offset:%d" % (r4("a", VF + 4 * f), V_KVW, 32768 + f * 1024), ("v", f))
    for kt in range(17):
        s_mfma(0, kt)
        vread(); a(va.pop(0))
    while vr:
        vread(); a(va.pop(0))
    hstore(*hst.pop(0))
    while va: a(va.pop(0))
    HGAP = cfg.get("f_hgap", 40); PGAP = cfg.get("f_pgap", 16)
    HFL = cfg.get("f_hfl", 480)
    HPO = cfg.get("f_hpo", 800)
    HCK = cfg.get("f_hck", 880)
    hok = False
    ordA = [("A2", p, mt) for p in range(3, KS2) for mt in range(MT)]
    napre = cfg.get("f_apre", 16)
    pv3 = pv_list(3); pv3b = [1 + x // 3 for x in range(27)]
    kvbar = False; hflag = False; hpoll = False
    cost_total = 0; next_h = HGAP; next_p = 0
    for qa in range(4):
        stampr("att%d" % qa)
        ops = soft_list(qa)
        tot = sum(c for c, _ in ops)
        pv = pv_list(qa - 1) if qa > 0 else []
        fin = None
        sm = [(qa + 1, kt) for kt in range(qa + 1, qa + 18)] if qa < 3 else []
        c = 0
        pv_done_at = None
        for (cost, op) in ops:
            if op == "SLOT":
                did = False
                if pv:
                    pv.pop(0)(); did = True
                    if not pv: pv_done_at = c
                elif sm and len(free) > 0 and c >= tot * 0.2:
                    s_mfma(*sm.pop(0)); did = True
                elif qa == 3 and pv3 and (3, pv3b[0]) in pready:
                    pv3.pop(0)(); pv3b.pop(0); did = True
                if did and G.sal:
                    a(G.sal.pop(0)); continue
                if did and pre and pre[0][1] == 0 and (kvbar or pre[0][0] < 12): pre.pop(0)[2]()
                continue
            if op == "MEM":
                if qa > 0 and fin is None and pv_done_at is not None and c >= pv_done_at + 18:
                    fin = fin_list(qa - 1)
                    for x in fin: run(x)
                elif hst and cost_total >= next_h:
                    hstore(*hst.pop(0)); next_h = cost_total + HGAP
                elif stq and cost_total >= stq[0][0]:
                    a.wait(vm="H01"); selftouch(stq.pop(0)[1], True)
                elif not hst and not hflag and cost_total >= HFL:
                    a.wait(vm="H")
                    a.vmem("buffer_store_dword v%d, v%d, %s, 0 offen offset:32 sc1" % (V_ONE, V_FG, s4(R_WS)), "FH")
                    hflag = True
                    if STCH & 2: selftouch(sH + 2, True)
                elif hflag and not hpoll and cost_total >= HPO:
                    poll_issue("PH"); hpoll = True
                elif hpoll and not hok and cost_total >= HCK:
                    a.wait(vm="PH"); spin(0xff00); hok = True
                    stampr("g2h")
                elif hok and napre > 0:
                    G.drain_sal()
                    op_ = ordA.pop(0); aload2(op_[1], op_[2]); napre -= 1
                elif pre and pre[0][1] == 1 and cost_total >= next_p:
                    pre.pop(0)[2](); next_p = cost_total + PGAP
                continue
            run(op); c += cost; cost_total += cost
            if qa == 0 and not kvbar and c >= 30:
                a.wait(lg=("v", 19)); a("s_barrier"); kvbar = True
        assert not pv and (qa == 0 or fin)
        free.extend(late_free); del late_free[:]
        if sm and cfg.get("verbose"): print("late S mfmas", qa, len(sm), file=sys.stderr)
        late = bool(sm)
        while sm: s_mfma(*sm.pop(0))
        if late: a("s_nop 7")
    if cfg.get("verbose"): print("attention cost", cost_total, "pre left", len(pre), file=sys.stderr)
    stampr("att4")
    assert not hst and hflag and hpoll
    if not hok: napre = 0
    while pre:
        pre.pop(0)[2](); a("s_nop 0")
    G.drain_sal()
    a("v_mov_b32 v%d, v%d" % (V2_RD, V2_B))
    a("v_xor_b32 v%d, 32, v%d" % (V2_RD + 1, V2_B))
    xr = ["v_xor_b32 v%d, %d, v%d" % (V2_RD + t, t * 32, V2_B) for t in range(2, 8)]
    if cfg.get("verbose"): print("pv3 left", len(pv3), "apre left", napre, file=sys.stderr)
    for f in pv3:
        f()
        if napre > 0:
            op_ = ordA.pop(0); aload2(op_[1], op_[2]); napre -= 1; G.drain_sal()
        else:
            for _ in range(2):
                if xr: a(xr.pop(0))
    while xr: a(xr.pop(0))
    stampr("attend")

    NT2 = 8
    DL = cfg.get("f_dl", 12); S2 = KS2 - DL
    assert RA2 >= DL
    own = set(acc(mt, 6 + 2 * p) for p in range(3) for mt in range(MT))
    busy = own | set(O_[(3, z)] for z in range(3)) | {208}
    q2 = [q for q in range(0, 224, 4) if q not in busy]
    acc2 = {}
    for t in range(NT2):
        for mt in range(MT): acc2[(mt, t)] = q2.pop(0)
    VX = [q2.pop(0) for _ in range(4)]
    TT = q2.pop(0); V_XI = TT + 2
    R_X = R_WQ; R_OUT = R_W1
    rec = Rec()
    rec.l += [None] * 5 + [x if isinstance(x, str) else ("m", x) for x in fin_list(3)]
    for st_ in (1, 2):
        for t in range(8): rec("v_add_u32 v%d, 0x%x, v%d" % (V2_RD + 8 * st_ + t, st_ * 0x10000, V2_RD + t))
    srd(rec, R_X, P_X, S * D * 2)
    srd(rec, R_OUT, P_OUT, S * D * 2)
    rec2 = Rec()
    rec2("v_and_b32 v%d, 15, v%d" % (TT, L))
    rec2("v_lshlrev_b32 v%d, 11, v%d" % (V_XO, TT))
    rec2("v_lshrrev_b32 v%d, 4, v%d" % (TT, L))
    rec2("v_lshl_add_u32 v%d, v%d, 3, v%d" % (V_XI, TT, V_XO))
    rec2("v_bfe_u32 v%d, v%d, 4, 1" % (TT, L))
    rec2("v_lshl_add_u32 v%d, v%d, 5, v%d" % (V_XO, TT, V_XO))
    rec2("v_lshrrev_b32 v%d, 5, v%d" % (TT, L))
    rec2("v_lshl_add_u32 v%d, v%d, 4, v%d" % (V_XO, TT, V_XO))
    sSX = [sKV, sKV2, sKP]; sSF = [sKP2, sFK, sH]; sRX = sH + 1
    for lam in range(3):
        rec("s_xor_b32 s%d, s2, %d" % (t1, (lam ^ 3) << 1))
        rec("s_lshl_b32 s%d, s%d, 2" % (t1, t1))
        rec("s_add_u32 s%d, s%d, s%d" % (t1, t1, sW))
        rec("s_mul_i32 s%d, s%d, 12288" % (sSX[lam], t1))
        rec("s_add_u32 s%d, s%d, 0x%x" % (sSX[lam], sSX[lam], WS_XC + lam * 4096))
        rec("s_lshl_b32 s%d, s%d, 7" % (sSF[lam], t1))
        rec("s_add_u32 s%d, s%d, 0x%x" % (sSF[lam], sSF[lam], WS_FL + lam * 4))
    rec("s_lshl_b32 s%d, s2, 2" % t1)
    rec("s_add_u32 s%d, s%d, s%d" % (t1, t1, sW))
    rec("s_mul_i32 s%d, s%d, 12288" % (sRX, t1))
    rec("s_add_u32 s%d, s%d, 0x%x" % (sRX, sRX, WS_XC))
    side = G.side
    side += rec.l

    units = [(p, t) for p in range(S2) for t in range(NT2)]
    for lam in range(4):
        units += [(p, t) for p in range(S2, KS2) for t in (2 * lam, 2 * lam + 1)]
    NU = len(units)
    UT = S2 * NT2; PL = 2 * DL
    last_unit = {}
    for u, (p, t) in enumerate(units): last_unit[p] = u
    stt = dict(ready=-1, free=set(), waited=-1, issued=-1, ook=False, hok=hok)
    ordB = [("B2", p) for p in range(NPRE, KS2)]
    def barrier2():
        a("s_barrier")
        for p, lu in last_unit.items():
            if lu <= stt["waited"]: stt["free"].add(p)
    def can2(op):
        if op[0] == "B2": return op[1] < NSL or (op[1] - NSL) in stt["free"]
        if not stt["hok"] or (op[1] >= 28 and not stt["ook"]): return False
        return op[1] - 3 < RA2 or last_unit[op[1] - RA2] <= stt["issued"]
    def issue2(op):
        if cfg.get("verbose"): print("late flush2", op, file=sys.stderr)
        G.drain_sal()
        if op[0] == "A2": aload2(op[1], op[2])
        else:
            for x in dma2_ops(op[1]): x[1](); a("s_nop 0")
        G.drain_sal()
    def flush2(q, tag):
        while any(o[:2] == tag for o in q):
            op = q.pop(0); assert can2(op), (op, stt); issue2(op)
    def bread2(u, j2):
        p, t = units[u]
        sl = p % NSL
        a.lds("ds_read_b64_tr_b16 %s, v%d offset:%d" % (r2("a", BR2 + (u % RB2) * 4 + j2 * 2), V2_RD + 8 * (sl // 8) + t, (sl % 8) * 8192 + j2 * 4096), ("b2", u))
    def need2(u):
        p = units[u][0]
        if p > stt["ready"]:
            flush2(ordB, ("B2", p))
            grp = cfg.get("f_bgrp", 4)
            top = max(x for x in range(p, min(p + grp, KS2)) if not any(o[1] == x for o in ordB))
            if p == 0: top = NPRE - 1
            a.wait(vm=("B2", top)); barrier2(); stt["ready"] = top
    need2(0)
    for u in range(DB2):
        bread2(u, 0); bread2(u, 1)
    stampr("g2beg")
    UOF = cfg.get("f_uof", 26)
    UOP = cfg.get("f_uop", 80); UOC = UOP + 12
    seenA = {0, 1, 2}
    xdone = False
    rq = sorted(own)
    def flag(lam):
        a.wait(vm=("S", lam))
        a.vmem("buffer_store_dword v%d, v%d, %s, s%d offen sc1" % (V_ONE, V_FL0, s4(R_WS), sSF[lam]), ("F", lam))
    def recv(lam, mt):
        a.vmem("buffer_load_dwordx4 %s, v%d, %s, s%d offen offset:%d sc1" % (r4("v", rq[4 * lam + mt]), V_L16, s4(R_WS), sRX, mt * 1024), ("R", lam, mt))
        if mt == 3 and lam < 2: a("s_add_u32 s%d, s%d, 4096" % (sRX, sRX))
    PS = lambda mt, hh: acc2[(mt, hh)]
    def addpk(dst, src, first=False):
        ops = []
        for hh in range(2):
            for e2 in range(2):
                pp = src + 2 * hh + e2; c = dst[hh] + 2 * e2
                if first:
                    ops += ["v_lshlrev_b32 v%d, 16, v%d" % (c, pp), "v_and_b32 v%d, 0xffff0000, v%d" % (c + 1, pp)]
                else:
                    ops += ["v_lshlrev_b32 v%d, 16, v%d" % (TT, pp), "v_and_b32 v%d, 0xffff0000, v%d" % (TT + 1, pp),
                            "v_pk_add_f32 v[%d:%d], v[%d:%d], v[%d:%d]" % (c, c + 1, c, c + 1, TT, TT + 1)]
        return ops
    FD = cfg.get("f_fd", PL - 2)
    ev = {}
    def at(u, f): ev.setdefault(u, []).append(f)
    at(UT + PL + FD, lambda: flag(0))
    at(UT + 2 * PL + FD, lambda: flag(1))
    UP0 = UT + 3 * PL + cfg.get("f_p0", -8)
    at(UP0, lambda: poll_issue("P0"))
    def chk0():
        a.wait(vm="P0"); spin(1)
        for mt in range(MT): side.append(("m", lambda mt=mt: recv(0, mt)))
    at(UP0 + cfg.get("f_c0", 14), chk0)
    def presum():
        side.append(("s", lambda: a.wait(vm="X")))
        for mt in range(MT): side.extend(addpk([PS(mt, 0), PS(mt, 1)], VX[mt], first=True))
    at(UT + 2 * PL + PL // 2, presum)
    first_unit = {}
    for u, (p, t) in enumerate(units): first_unit.setdefault(p, u)
    NOPS = len(ordA) + 2 * len(ordB)
    UE2 = UT + cfg.get("f_ue2", 0)
    MARG = cfg.get("f_marg", 20)
    THR2 = cfg.get("f_thr2", 63)
    def prewait2(u):
        p, t = units[u]
        if p not in seenA:
            flush2(ordA, ("A2", p)); seenA.add(p)
            r = a.wait(vm=("A2", p), lg=("b2", u))
        else: r = a.wait(lg=("b2", u))
        stt["waited"] = u
        return r
    def b2sal(p):
        so = sB2 if p < 28 else sBO
        if p != 27 and p != 35: G.sal.append("s_add_u32 s%d, s%d, 65536" % (so, so))
        if p < 27: G.sal.append("s_cmp_eq_u32 s%d, s%d\ns_cselect_b32 s%d, s%d, s%d" % (sB2, sBE, sB2, sB0, sB2))
    prewait2(0)
    half = None
    for u in range(NU):
        p, t = units[u]
        un = u + DB2
        if u == UOF:
            a.wait(vm="O")
            a.vmem("buffer_store_dword v%d, v%d, %s, 0 offen offset:64 sc1" % (V_ONE, V_FG, s4(R_WS)), "FO")
            if STCH & 4: selftouch(sO, True)
            side.extend(rec2.l)
        if u == cfg.get("f_uh", 4) and not stt["hok"]:
            a.wait(vm="PH"); spin(0xff00); stt["hok"] = True
            stampr("g2h")
        if u < UT and t == 1: stampr("g2p%d" % p)
        if u == UT: stampr("g2tail")
        if u > UT and (u - UT) % PL == 0: stampr("g2l%d" % ((u - UT) // PL))
        if u == UOP: poll_issue("PO")
        if u == UOC:
            a.wait(vm="PO"); spin(0xff0000); stt["ook"] = True
        for f in ev.get(u, []): f()
        if un < NU and units[un][0] > stt["ready"]:
            if half is not None:
                dma2_ops(half)[2][1](); b2sal(half); half = None
            need2(un)
        if u < UT and t == 2 and p % 4 == 0 and p > 0 and p - 4 + NSL < KS2: barrier2()
        bf = r4("a", BR2 + (u % RB2) * 4)
        pre_ = None; mem_ = None
        if half is not None:
            def mem_(h=half): dma2_ops(h)[2][1](); b2sal(h)
            half = None
        elif len(G.sal) <= 1:
            cand = [q for q in (ordA, ordB) if q and can2(q[0])]
            if cand:
                cand.sort(key=lambda q: q[0][1] - (cfg.get("f_bprio", 6) if q[0][0] == "B2" else 0))
                done_ = NOPS - len(ordA) - 2 * len(ordB)
                if done_ * UE2 <= u * NOPS or first_unit[cand[0][0][1]] - u <= MARG + (16 if cand[0][0][0] == "B2" else 0):
                    nxt = cand[0].pop(0)
                    if nxt[0] == "B2":
                        ops_ = dma2_ops(nxt[1])
                        pre_ = lambda o=ops_: (o[0][1](), True)[1]
                        mem_ = ops_[1][1]; half = nxt[1]
                    else:
                        mem_ = lambda n_=nxt: aload2(n_[1], n_[2])
        if not ordA and not ordB and half is None and not xdone and mem_ is None:
            xdone = True
            for mt in range(MT):
                for hh in range(2):
                    def f(mt=mt, hh=hh):
                        a.vmem("buffer_load_dwordx2 %s, v%d, %s, s%d offen offset:%d" % (r2("v", VX[mt] + 2 * hh), V_XI, s4(R_X), sXO, hh * 32), "X")
                    side += [("m", f), None]
                side.append("s_add_u32 s%d, s%d, %d" % (sXO, sXO, 32768 if mt < 3 else -3 * 32768))
        for mt in range(MT):
            mz = mt if u % 2 == 0 else MT - 1 - mt
            af = r4("v", acc(mz, 6 + 2 * p)) if p < 3 else r4("a", aslot(p) + mz * 4)
            c = r4("v", acc2[(mz, t)])
            a("%s %s, %s, %s, %s" % (MF, c, bf, af, "0" if p == 0 else c))
            rd = (lambda mt=mt: bread2(un, mt)) if (mt < 2 and un < NU) else None
            if mt == 0: G.gap(fixed=rd)
            elif mt == 1: G.gap(first=pre_, fixed=rd)
            elif mt == 2:
                if mem_:
                    assert not G.sal
                    G.gap(first=(lambda: a.throttle(THR2)), mem=mem_)
                else: G.gap()
            else:
                stt["issued"] = u
                G.gap(first=(lambda: prewait2(u + 1)) if u + 1 < NU else None)
        if u >= UT and (u - UT) % PL == PL - 1:
            lam = (u - UT) // PL
            if lam < 3:
                new_ = [None] * 5
                for mt in range(MT):
                    new_ += pack(acc2[(mt, 2 * lam)], acc2[(mt, 2 * lam + 1)])
                    def f(mt=mt, lam=lam):
                        a.vmem("buffer_store_dwordx4 %s, v%d, %s, s%d offen offset:%d sc1" % (r4("v", acc2[(mt, 2 * lam)]), V_L16, s4(R_WS), sSX[lam], mt * 1024), ("S", lam))
                    new_.append(("m", f))
                side[:0] = new_
    if cfg.get("verbose"): print("G2 side left", len([x for x in side if x is not None]), file=sys.stderr)
    G.drain()
    assert not ordA and not ordB and xdone
    stampr("g2end")
    flag(2)
    poll_issue("P1")
    stampr("x1")
    for mt in range(MT):
        a.wait(vm=("R", 0, mt))
        for x in addpk([PS(mt, 0), PS(mt, 1)], rq[mt]): a(x)
    a.wait(vm="P1"); spin(2)
    stampr("x2")
    for mt in range(MT): recv(1, mt)
    poll_issue("P2")
    for mt in range(MT):
        for hh in range(2):
            for e2 in range(2):
                c = PS(mt, hh) + 2 * e2; o_ = acc2[(mt, 6 + hh)] + 2 * e2
                a("v_pk_add_f32 v[%d:%d], v[%d:%d], v[%d:%d]" % (c, c + 1, c, c + 1, o_, o_ + 1))
    a.wait(vm="P2"); spin(4)
    stampr("x3")
    for mt in range(MT): recv(2, mt)
    for mt in range(MT):
        for x in addpk([PS(mt, 0), PS(mt, 1)], rq[4 + mt]): a(x)
    stampr("x4")
    for mt in range(MT):
        a.wait(vm=("R", 2, mt))
        for x in addpk([PS(mt, 0), PS(mt, 1)], rq[8 + mt]): a(x)
        c0 = PS(mt, 0)
        if cfg.get("eps"):
            for hh in range(2):
                for e in range(4): a("v_mul_f32 v%d, 0x%x, v%d" % (PS(mt, hh) + e, f2u(1.0 + cfg["eps"] / 10000.0), PS(mt, hh) + e))
        for x in pack(c0, PS(mt, 1)): a(x)
        a("s_nop 1")
        a("v_permlane16_swap_b32 v%d, v%d" % (c0, c0 + 2))
        a("v_permlane16_swap_b32 v%d, v%d" % (c0 + 1, c0 + 3))
        a.vmem("buffer_store_dwordx4 %s, v%d, %s, s%d offen %s" % (r4("v", c0), V_XO, s4(R_OUT), sXO, ["", "sc1", "nt"][cfg.get("f_of", 0)]), "OUT")
        if mt < 3: a("s_add_u32 s%d, s%d, 32768" % (sXO, sXO))
    stampr("x5")
    if ST:
        a("s_waitcnt vmcnt(0)")
        stampr("end")
        a("s_waitcnt lgkmcnt(0)")
        for i in range(8): a("v_mov_b32 v%d, s%d" % (i, STB + 2 * i))
        a("s_lshl_b32 s%d, s2, 2" % t0)
        a("s_add_u32 s%d, s%d, s%d" % (t0, t0, sW))
        a("s_lshl_b32 s%d, s%d, 5" % (t0, t0))
        a("v_mov_b32 v8, 0")
        a("s_nop 4")
        a("buffer_store_dwordx4 v[0:3], v8, %s, s%d offen" % (s4(R_WS), t0))
        a("buffer_store_dwordx4 v[4:7], v8, %s, s%d offen offset:16" % (s4(R_WS), t0))
    a.label("F_end")
    a("s_endpgm")
    kernel_desc(a, name, 256, sgpr=102, accum=256, agpr=256)
    return "; @launch kernel=%s grid=(256,1,1) block=(256,1,1) lds=163840" % name

gen.gen_f = gen_f

if __name__ == "__main__":
    cfg = dict(g1_mt=4)
    out = sys.argv[1]
    kernels = sys.argv[2].split(",")
    for kv in sys.argv[3:]:
        k, v = kv.split("="); cfg[k] = int(v, 0)
    open(out, "w").write(gen.build(cfg, kernels))
```

```python
import sys, math
from asmlib import *
import gen
from gen import *

class SA:
    def __init__(self, start, end):
        self.n = start; self.end = end; self.m = {}
    def new(self, name, cnt=1, align=1):
        self.n = (self.n + align - 1) // align * align
        r = self.n; self.n += cnt
        assert self.n <= self.end, "out of sgprs"
        self.m[name] = r
        return r

def s4(b): return "s[%d:%d]" % (b, b + 3)
MF = "v_mfma_f32_16x16x32_bf16"

def kind_of(op):
    if op is None: return None
    if isinstance(op, tuple): return op[0]
    t = op.lstrip()
    if t.startswith("s_"): return "s"
    if t.startswith("v_"): return "v"
    raise ValueError(op)

class Gaps:
    def __init__(self, a):
        self.a = a
        self.sal = []
        self.side = []
    def run(self, op):
        if isinstance(op, tuple): op[1]()
        else: self.a(op)
    def gap(self, first=None, fixed=None, mem=None):
        used0 = False
        room = 2
        if first is not None: used0 = bool(first())
        if not used0:
            if self.sal:
                x = self.sal.pop(0); self.a(x); used0 = True
                room -= x.count("\n")
            elif self.side and kind_of(self.side[0]) == "s":
                self.run(self.side.pop(0)); used0 = True
        if mem is not None:
            mem(); return
        if fixed is not None:
            fixed(); room -= 1
        if self.side and self.side[0] is None:
            self.side.pop(0)
            skip = True
        else: skip = False
        while room > 0:
            if self.sal and self.sal[0].count("\n") < room:
                x = self.sal.pop(0); self.a(x); room -= 1 + x.count("\n"); continue
            if skip or not self.side or self.side[0] is None: break
            k = kind_of(self.side[0])
            if k in ("m", "x"):
                if room == 2:
                    self.run(self.side.pop(0))
                break
            self.run(self.side.pop(0)); room -= 1
    def drain_sal(self):
        while self.sal: self.a(self.sal.pop(0))
    def drain(self):
        self.drain_sal()
        for op in self.side:
            if op is not None: self.run(op)
        self.side = []

def ln_ops(exact=1):
    o = []
    a = o.append
    pk = lambda op, d, x, y, mod="": a("%s v[%d:%d], v[%d:%d], v[%d:%d]%s" % (op, d, d + 1, x, x + 1, y, y + 1, mod))
    for i in range(16):
        a("v_lshlrev_b32 v%d, 16, v%d" % (24 + 2 * i, 8 + i))
        a("v_and_b32 v%d, 0xffff0000, v%d" % (25 + 2 * i, 8 + i))
        if i == 1: pk("v_pk_add_f32", 56, 24, 26)
        elif i == 3: pk("v_pk_add_f32", 58, 28, 30)
        elif i > 3: pk("v_pk_add_f32", 56 + 2 * (i & 1), 56 + 2 * (i & 1), 24 + 2 * i)
    pk("v_pk_add_f32", 56, 56, 58)
    a("v_add_f32 v56, v56, v57")
    def xlane_sum(r, t):
        a("s_nop 1")
        a("v_add_f32_dpp v%d, v%d, v%d row_ror:8 row_mask:0xf bank_mask:0xf" % (r, r, r))
        for op in ("v_permlane16_swap_b32", "v_permlane32_swap_b32"):
            a("v_mov_b32 v%d, v%d" % (t, r))
            a("s_nop 1")
            a("%s v%d, v%d" % (op, r, t))
            a("v_add_f32 v%d, v%d, v%d" % (r, r, t))
    xlane_sum(56, 57)
    a("v_mul_f32 v56, 0x%x, v56" % f2u(1.0 / 256))
    neg = " op_sel_hi:[1,0] neg_lo:[0,1] neg_hi:[0,1]"
    for i in range(16):
        t = 62 + 2 * (i & 1); ac = 66 + 2 * (i & 1)
        pk("v_pk_add_f32", t, 24 + 2 * i, 56, neg)
        if i < 2: pk("v_pk_mul_f32", ac, t, t)
        else: a("v_pk_fma_f32 v[%d:%d], v[%d:%d], v[%d:%d], v[%d:%d]" % (ac, ac + 1, t, t + 1, t, t + 1, ac, ac + 1))
    pk("v_pk_add_f32", 66, 66, 68)
    a("v_add_f32 v57, v66, v67")
    xlane_sum(57, 58)
    a("ds_write_b64 v7, v[56:57]")
    a("s_waitcnt lgkmcnt(0)")
    a("s_barrier")
    for k in range(4): a("ds_read_b64 v[%d:%d], v60 offset:%d" % (62 + 2 * k, 63 + 2 * k, 64 * k))
    a("s_waitcnt lgkmcnt(0)")
    pk("v_pk_add_f32", 56, 62, 64)
    pk("v_pk_add_f32", 58, 66, 68)
    pk("v_pk_add_f32", 56, 56, 58)
    a("v_mul_f32 v56, 0x3e800000, v56")
    a("v_sub_f32 v59, v62, v56")
    a("v_mul_f32 v58, v59, v59")
    for r in (64, 66, 68):
        a("v_sub_f32 v59, v%d, v56" % r)
        a("v_fmac_f32 v58, v59, v59")
    a("v_fmac_f32 v57, 0x43800000, v58")
    a("v_mul_f32 v57, 0x%x, v57" % f2u(1.0 / 1024))
    a("v_cvt_pk_bf16_f32 v58, v56, v57")
    a("v_lshlrev_b32 v56, 16, v58")
    a("v_and_b32 v57, 0xffff0000, v58")
    a("v_add_f32 v57, 0x%x, v57" % f2u(1e-5))
    a("v_cvt_pk_bf16_f32 v57, v57, v57")
    a("v_and_b32 v57, 0xffff0000, v57")
    a("v_sqrt_f32 v57, v57")
    a("s_nop 0")
    a("v_cvt_pk_bf16_f32 v57, v57, v57")
    a("v_and_b32 v57, 0xffff0000, v57")
    a("v_rcp_f32 v58, v57")
    for i in range(16):
        pk("v_pk_add_f32", 24 + 2 * i, 24 + 2 * i, 56, neg)
        if i > 0:
            j = i - 1
            if exact:
                a("v_cvt_pk_bf16_f32 v%d, v%d, v%d" % (25 + 2 * j, 24 + 2 * j, 25 + 2 * j))
                a("v_lshlrev_b32 v%d, 16, v%d" % (24 + 2 * j, 25 + 2 * j))
                a("v_and_b32 v%d, 0xffff0000, v%d" % (25 + 2 * j, 25 + 2 * j))
            pk("v_pk_mul_f32", 24 + 2 * j, 24 + 2 * j, 58, " op_sel_hi:[1,0]")
            a("v_cvt_pk_bf16_f32 v%d, v%d, v%d" % (8 + j, 24 + 2 * j, 25 + 2 * j))
            if j % 4 == 3: a("STORE%d" % (j // 4))
    if exact:
        a("v_cvt_pk_bf16_f32 v55, v54, v55")
        a("v_lshlrev_b32 v54, 16, v55")
        a("v_and_b32 v55, 0xffff0000, v55")
    pk("v_pk_mul_f32", 54, 54, 58, " op_sel_hi:[1,0]")
    a("v_cvt_pk_bf16_f32 v23, v54, v55")
    a("STORE3")
    return o

def gen_f(a, cfg):
    name = NAME + "_kernel" if cfg.get("single") else "f_kernel"
    FLN = cfg.get("f_ln", 0)
    SPIN = cfg.get("spin", 0x40000)
    ST = cfg.get("stamp")
    MT = 4
    sa = SA(3, 84)
    P_WQ = sa.new("pwq", 2, 2); P_W1 = sa.new("pw1", 2, 2); P_WS = sa.new("pws", 2, 2); P_X = sa.new("px", 2, 2)
    P_W2 = sa.new("pw2", 2, 2); P_WO = sa.new("pwo", 2, 2); P_OUT = sa.new("pout", 2, 2)
    R_WQ = sa.new("rwq", 4, 4); R_W1 = sa.new("rw1", 4, 4); R_W2 = sa.new("rw2", 4, 4); R_WO = sa.new("rwo", 4, 4)
    R_WS = sa.new("rws", 4, 4)
    sW = sa.new("w"); sI = sa.new("i"); sJ = sa.new("j"); sJ1 = sa.new("j1"); sQ = sa.new("q"); sN = sa.new("n")
    sBQ = sa.new("bq"); sBV = sa.new("bv"); sBW = sa.new("bw"); sBL = sa.new("bl"); sLB = sa.new("lb"); sA = sa.new("a")
    sCLS = sa.new("cls"); t0 = sa.new("t0"); t1 = sa.new("t1"); t2 = sa.new("t2"); t3 = sa.new("t3")
    sMK = sa.new("mask", 8, 2)
    sKV = sa.new("kv"); sKV2 = sa.new("kv2"); sKP = sa.new("kp"); sKP2 = sa.new("kp2"); sFK = sa.new("fk"); sFO = sa.new("fo")
    sH = sa.new("h", 4); sSC = sa.new("sc", 2, 2); sO = sSC + 1; sA0 = sa.new("a0"); sB0 = sa.new("b0"); sAE = sa.new("aend"); sBE = sa.new("bend")
    sXO = sa.new("xo"); sSP = sa.new("spin")
    sDL = sMK
    STB = 84
    SETS = {1: ["start", "bar0", "g1end", "attbeg", "attend", "g2beg", "g2end", "end"],
            2: ["start", "g1half", "g1tail", "g1kv", "g1flag0", "g1flag1", "g1chk", "g1end"],
            3: ["start", "attbeg", "att0", "att1", "att2", "att3", "att4", "attend"],
            4: ["start", "att4", "g2h", "g2beg", "g2p4", "g2p12", "g2tail", "g2end"],
            5: ["start", "g2end", "x1", "x2", "x3", "x4", "x5", "end"],
            7: ["g2beg", "g2p3", "g2p6", "g2p10", "g2p14", "g2p18", "g2p22", "g2end"],
            8: ["g2p22", "g2tail", "g2l1", "g2l2", "g2l3", "g2end", "x3", "end"],
            9: ["start", "lnx", "lns", "lnd", "lnp", "g1s1", "g1s4", "g1s8"],
            6: ["start", "bar0", "g1s2", "g1s4", "g1s8", "g1half", "g1s20", "g1tail"]}
    def stampr(nm):
        if ST and nm in SETS[ST]:
            i = SETS[ST].index(nm)
            a("%s s[%d:%d]" % ("s_memtime" if cfg.get("clk") else "s_memrealtime", STB + 2 * i, STB + 2 * i + 1))

    NT = 13; KS = 32
    NS = 5; REG = 7168; STAGE = 4 * REG
    D1 = cfg.get("f_d1", 8)
    RA = cfg.get("f_ra1", 11)
    LA = cfg.get("f_la1", 4)
    DB = cfg.get("f_db1", 3); RB = DB + 2
    S1 = KS - D1
    def slot1(g): return (15 - g) % 5
    KVB = 96 * 1024
    def acc(mt, t): return (t * MT + mt) * 4
    V_L16 = 208; V_QKV = 209; V_W1 = 210; V_LEFT = 211
    V_RD = 212
    V_P0, V_P1, V_P2 = 221, 222, 223
    V_LANE = 224; V_FL0 = 225; V_ONE = 226; V_POLL = 227; V_KVW = 228; V_FG = 229; V_PL = 230
    T = 232
    A_PD = 255
    AR = 0; BR = RA * 16
    assert BR + RB * 4 <= 254

    kernel_begin(a, name)
    a.reset()
    stampr("start")
    a("s_cmp_ge_u32 s2, 256")
    a("s_cbranch_scc1 F_end")
    a("s_load_dwordx2 s[%d:%d], s[0:1], 8" % (P_WQ, P_WQ + 1))
    a("s_load_dwordx2 s[%d:%d], s[0:1], 32" % (P_W1, P_W1 + 1))
    a("s_load_dwordx2 s[%d:%d], s[0:1], 64" % (P_WS, P_WS + 1))
    a("s_load_dwordx2 s[%d:%d], s[0:1], 0" % (P_X, P_X + 1))
    a("s_load_dwordx2 s[%d:%d], s[0:1], 40" % (P_W2, P_W2 + 1))
    a("s_load_dwordx2 s[%d:%d], s[0:1], 16" % (P_WO, P_WO + 1))
    a("s_load_dwordx2 s[%d:%d], s[0:1], 48" % (P_OUT, P_OUT + 1))
    if FLN:
        lab = a.newlabel("F_pc")
        a("s_getpc_b64 s[%d:%d]" % (R_WO, R_WO + 1))
        a.label(lab)
        a("s_and_b32 s%d, s%d, 0xffff" % (R_WO + 1, R_WO + 1))
        a("s_mov_b32 s%d, CODE_END - %s" % (R_WO + 2, lab))
        a("s_mov_b32 s%d, 0x00020000" % (R_WO + 3))
        a("s_lshr_b32 s%d, s2, 3" % t0)
        a("s_lshl_b32 s%d, s%d, 7" % (t0, t0))
        a("v_lshlrev_b32 v70, 12, v0")
        a.vmem("buffer_load_dword v76, v70, %s, s%d offen" % (s4(R_WO), t0), "T")
    if FLN: a("s_load_dwordx2 s[100:101], s[0:1], 56")
    L = V_LANE
    a("v_and_b32 v%d, 63, v0" % L)
    a("v_lshrrev_b32 v%d, 6, v0" % (T + 1))
    a("v_lshlrev_b32 v%d, 4, v%d" % (V_L16, L))
    a("v_readfirstlane_b32 s%d, v%d" % (sW, T + 1))
    a("s_and_b32 s%d, s2, 1" % sI)
    a("s_lshl_b32 s%d, s%d, 2" % (sI, sI))
    a("s_bfe_u32 s%d, s2, 0x20003" % t0)
    a("s_add_u32 s%d, s%d, s%d" % (sI, sI, t0))
    a("s_bfe_u32 s%d, s2, 0x20001" % sQ)
    a("s_lshr_b32 s%d, s2, 5" % sN)
    a("s_lshl_b32 s%d, s%d, 3" % (sJ, sQ))
    a("s_add_u32 s%d, s%d, s%d" % (sJ, sJ, sN))
    a("s_and_b32 s%d, s%d, 1" % (sJ1, sN))
    if FLN:
        a("v_and_b32 v3, 7, v%d" % L)
        a("v_lshrrev_b32 v4, 3, v%d" % L)
        a("v_lshlrev_b32 v5, 11, v3")
        a("v_lshl_add_u32 v5, v%d, 9, v5" % (T + 1))
        a("v_lshl_add_u32 v5, v4, 4, v5")
        a("s_lshl_b32 s%d, s%d, 5" % (t3, sI))
        a("s_add_u32 s%d, s%d, s%d" % (t3, t3, sJ))
        a("s_lshl_b32 s%d, s%d, 14" % (t0, t3))
        a("s_waitcnt lgkmcnt(0)")
        srd(a, R_W2, P_X, S * D * 2)
        for i in range(4):
            a.vmem("buffer_load_dwordx4 %s, v5, %s, s%d offen offset:%d" % (r4("v", 8 + 4 * i), s4(R_W2), t0, i * 128), "LX")
        srd(a, R_WS, P_WS, WS_END)
        a("s_lshl_b32 s%d, s%d, 8" % (sSP, sI))
        a("s_add_u32 s%d, s%d, 0x%x" % (sXO, sSP, WS_LF))
        a("v_and_b32 v80, 31, v%d" % L)
        a("v_lshlrev_b32 v80, 2, v80")
        a("v_add_u32 v80, s%d, v80" % sXO)
        a.vmem("buffer_load_dword v81, v80, %s, 0 offen sc1" % s4(R_WS), "SN")
    a("v_lshrrev_b32 v%d, 2, v%d" % (T + 2, L))
    a("v_lshl_add_u32 v%d, v%d, 4, v%d" % (T + 2, T + 1, T + 2))
    a("v_lshrrev_b32 v%d, 4, v%d" % (T + 3, L))
    a("v_and_b32 v%d, 2, v%d" % (T + 3, T + 3))
    a("v_and_b32 v%d, 3, v%d" % (T + 4, L))
    a("v_xor_b32 v%d, v%d, v%d" % (T + 3, T + 3, T + 4))
    a("v_lshlrev_b32 v%d, 4, v%d" % (T + 3, T + 3))
    a("v_mul_u32_u24 v%d, 6144, v%d" % (V_QKV, T + 2))
    a("v_add_u32 v%d, v%d, v%d" % (V_QKV, V_QKV, T + 3))
    a("v_mul_u32_u24 v%d, 7168, v%d" % (V_W1, T + 2))
    a("v_add_u32 v%d, v%d, v%d" % (V_W1, V_W1, T + 3))
    a("v_bfe_u32 v%d, v%d, 3, 1" % (T + 2, L))
    a("v_lshlrev_b32 v%d, 3, v%d" % (T + 2, T + 2))
    a("v_bfe_u32 v%d, v%d, 4, 1" % (T + 3, L))
    a("v_lshl_add_u32 v%d, v%d, 2, v%d" % (T + 2, T + 3, T + 2))
    a("v_bfe_u32 v%d, v%d, 1, 2" % (T + 3, L))
    a("v_add_u32 v%d, v%d, v%d" % (T + 2, T + 2, T + 3))
    a("v_lshl_add_u32 v%d, v%d, 4, v%d" % (T + 2, T + 1, T + 2))
    a("v_mul_u32_u24 v%d, 7168, v%d" % (V_LEFT, T + 2))
    a("v_and_b32 v%d, 1, v%d" % (T + 3, L))
    a("v_lshl_add_u32 v%d, v%d, 4, v%d" % (V_LEFT, T + 3, V_LEFT))
    a("v_lshrrev_b32 v%d, 5, v%d" % (T + 3, L))
    a("v_lshl_add_u32 v%d, v%d, 30, v%d" % (V_LEFT, T + 3, V_LEFT))
    a("s_lshl_b32 s%d, s%d, 6" % (sBQ, sJ))
    a("s_add_u32 s%d, s%d, 4096" % (sBV, sBQ))
    a("s_mul_i32 s%d, s%d, 224" % (sBL, sJ))
    a("s_lshl_b32 s%d, s%d, 5" % (t0, sJ1))
    a("s_add_u32 s%d, s%d, s%d" % (sBW, sBL, t0))
    a("s_xor_b32 s%d, s%d, 1" % (t0, sJ1))
    a("s_mul_i32 s%d, s%d, 192" % (t0, t0))
    a("s_add_u32 s%d, s%d, s%d" % (sBL, sBL, t0))
    a("s_mul_i32 s%d, s%d, %d" % (sLB, sW, REG))
    a("s_lshl_b32 s%d, s%d, 2" % (sA, sI))
    a("s_add_u32 s%d, s%d, s%d" % (sA, sA, sW))
    a("s_lshl_b32 s%d, s%d, 17" % (sA, sA))
    a("s_add_u32 s%d, s%d, 0x%x" % (sA, sA, WS_XN))
    ROT = cfg.get("f_rot", 1)
    a("s_add_u32 s%d, s%d, s%d" % (t1, sI, sN))
    a("s_and_b32 s%d, s%d, %d" % (t1, t1, 3 if ROT else 0))
    for k in range(3):
        a("s_cmp_eq_u32 s%d, %d" % (t1, 3 - k))
        a("s_cselect_b32 s%d, -3, 1" % (sDL + k))
    a("s_cmp_eq_u32 s%d, 0" % t1)
    a("s_cselect_b32 s%d, 1, 5" % (sDL + 3))
    a("s_mul_i32 s%d, s%d, %d" % (t0, t1, 64 * 6144))
    a("s_add_u32 s%d, s%d, s%d" % (sBQ, sBQ, t0))
    a("s_add_u32 s%d, s%d, s%d" % (sBV, sBV, t0))
    a("s_mul_i32 s%d, s%d, %d" % (t0, t1, 64 * 7168))
    a("s_add_u32 s%d, s%d, s%d" % (sBW, sBW, t0))
    a("s_add_u32 s%d, s%d, s%d" % (sBL, sBL, t0))
    a("s_lshl_b32 s%d, s%d, 13" % (t0, t1))
    a("s_add_u32 s%d, s%d, s%d" % (sA, sA, t0))
    for k in range(4):
        a("s_lshl_b32 s%d, s%d, 13" % (sDL + 4 + k, sDL + k))
        a("s_sub_u32 s%d, s%d, 4096" % (sDL + 4 + k, sDL + 4 + k))
    a("s_waitcnt lgkmcnt(0)")
    srd(a, R_WQ, P_WQ, D * 3 * D * 2)
    srd(a, R_W1, P_W1, D * DFF * 2)
    srd(a, R_WS, P_WS, WS_END)

    G = Gaps(a)
    PAIRPOS = [0, 2, 1, 3, 4, 5]
    def dma1(g, k, part):
        p, vreg, sb, so, imm = [(0, V_QKV, R_WQ, sBQ, 0), (2, V_QKV, R_WQ, sBQ, 2048), (1, V_QKV, R_WQ, sBV, 0),
                                (3, V_W1, R_W1, sBW, 0), (4, V_W1, R_W1, sBW, 64), (5, V_W1, R_W1, sBW, 128), (6, V_LEFT, R_W1, sBL, 0)][k]
        if part == 0:
            a("s_add_u32 m0, s%d, %d" % (sLB, slot1(g) * STAGE + p * 1024 - imm))
        else:
            a.vmem("buffer_load_dwordx4 v%d, %s, s%d offen offset:%d lds" % (vreg, s4(sb), so, imm), ("B", g))
            if k == 0: G.sal.append("s_mul_i32 s%d, s%d, %d" % (t2, sDL + (g & 3), 64 * 6144))
            if k == 1: G.sal.append("s_add_u32 s%d, s%d, s%d" % (sBQ, sBQ, t2))
            if k == 2: G.sal.append("s_add_u32 s%d, s%d, s%d" % (sBV, sBV, t2))
            if k == 3: G.sal.append("s_mul_i32 s%d, s%d, %d" % (t2, sDL + (g & 3), 64 * 7168))
            if k == 5: G.sal.append("s_add_u32 s%d, s%d, s%d" % (sBW, sBW, t2))
            if k == 6: G.sal.append("s_add_u32 s%d, s%d, s%d" % (sBL, sBL, t2))
    def aload1(s, mt):
        a.vmem("buffer_load_dwordx4 %s, v%d, %s, s%d offen offset:%d%s" % (r4("a", AR + (s % RA) * 16 + mt * 4), V_L16, s4(R_WS), sA, mt * 1024, " sc1" if FLN else ""), ("A", s))
        if mt == MT - 1:
            if s % 2 == 0: G.sal.append("s_add_u32 s%d, s%d, 4096" % (sA, sA))
            else: G.sal.append("s_add_u32 s%d, s%d, s%d" % (sA, sA, sDL + 4 + ((s // 2) & 3)))
    order = []
    for g in range(16):
        for k in range(7): order.append(("B", g, k))
        for s in (2 * g, 2 * g + 1):
            for mt in range(MT): order.append(("A", s, mt))
    def issue1(op):
        G.drain_sal()
        if op[0] == "A": aload1(op[1], op[2])
        else:
            dma1(op[1], op[2], 0); a("s_nop 0"); dma1(op[1], op[2], 1)
        G.drain_sal()
    if FLN:
        nb = cfg.get("f_lnb", 1)
        bops = [o for o in order if o[0] == "B" and o[1] < nb]
        for o in bops: order.remove(o)
        for _ in range(cfg.get("f_lnb0", 2)): issue1(bops.pop(0))
        a("s_lshl_b32 s%d, s2, 9" % t0)
        a("s_add_u32 s%d, s%d, 0x%x" % (t0, t0, WS_FL))
        a("v_lshlrev_b32 v70, 2, v0")
        a("v_lshrrev_b32 v71, 7, v0")
        a("v_lshl_add_u32 v70, v71, 30, v70")
        a("v_mov_b32 v71, 0")
        a.vmem("buffer_store_dword v71, v70, %s, s%d offen sc1" % (s4(R_WS), t0), "Z")
        a("s_lshr_b32 s%d, s%d, 3" % (t0, t3))
        a("s_lshl_b32 s%d, s%d, 17" % (t0, t0))
        a("s_bfe_u32 s%d, s%d, 0x20001" % (t1, t3))
        a("s_lshl_b32 s%d, s%d, 10" % (t1, t1))
        a("s_add_u32 s%d, s%d, s%d" % (t0, t0, t1))
        a("s_and_b32 s%d, s%d, 1" % (t1, t3))
        a("s_lshl_b32 s%d, s%d, 7" % (t1, t1))
        a("s_add_u32 s%d, s%d, s%d" % (t0, t0, t1))
        a("s_add_u32 s%d, s%d, 0x%x" % (t3, t0, WS_XN))
        a("v_lshrrev_b32 v6, 2, v4")
        a("v_lshl_add_u32 v6, v%d, 3, v6" % (T + 1))
        a("v_lshlrev_b32 v6, 12, v6")
        a("v_and_b32 v7, 3, v4")
        a("v_lshl_add_u32 v6, v7, 8, v6")
        a("v_lshl_add_u32 v6, v3, 4, v6")
        a("v_lshl_add_u32 v7, v%d, 3, v3" % (T + 1))
        a("v_lshlrev_b32 v7, 3, v7")
        a("v_add_u32 v7, %d, v7" % (5 * STAGE))
        a("v_lshlrev_b32 v60, 3, v3")
        a("v_add_u32 v60, %d, v60" % (5 * STAGE))
        a.wait(vm="LX")
        stampr("lnx")
        lo_ = ln_ops(cfg.get("f_lnex", 1))
        gap_ = cfg.get("f_lngap", 20)
        for k, x in enumerate(lo_):
            if x.startswith("STORE"):
                i = int(x[5:])
                a.vmem("buffer_store_dwordx4 %s, v6, %s, s%d offen sc1" % (r4("v", 8 + 4 * i), s4(R_WS), t3), "XS")
                if i < 3: a("s_add_u32 s%d, s%d, %d" % (t3, t3, 8192))
            else: a(x)
            if k % gap_ == gap_ - 1 and bops and k < cfg.get("f_lnk", 110): issue1(bops.pop(0))
        stampr("lns")
    else:
        for _ in range(cfg.get("f_pro1", 15)): issue1(order.pop(0))

    srd(a, R_W2, P_W2, DFF * D * 2)
    srd(a, R_WO, P_WO, D * D * 2)
    a("s_bfe_u32 s%d, s2, 0x30003" % sCLS)
    a("s_lshr_b32 s%d, s2, 6" % t1)
    a("s_lshl_b32 s%d, s%d, 2" % (t1, t1))
    a("s_add_u32 s%d, s%d, s%d" % (t1, t1, sW))
    a("v_bfrev_b32 v%d, 1" % (T + 6))
    a("v_lshrrev_b32 v%d, 5, v%d" % (T + 2, L))
    a("s_lshl_b32 s%d, s%d, 1" % (t0, t1))
    a("v_add_u32 v%d, s%d, v%d" % (T + 2, t0, T + 2))
    a("v_and_b32 v%d, 31, v%d" % (T + 3, L))
    a("v_mul_u32_u24 v%d, 7168, v%d" % (V_P1, T + 2))
    a("v_lshl_add_u32 v%d, v%d, 7, v%d" % (V_P1, T + 3, V_P1))
    a("s_mul_i32 s%d, s%d, 1792" % (t0, sQ))
    a("v_add_u32 v%d, s%d, v%d" % (V_P1, t0, V_P1))
    a("v_mul_u32_u24 v%d, 6144, v%d" % (V_P0, T + 2))
    a("v_lshrrev_b32 v%d, 2, v%d" % (T + 4, T + 3))
    a("v_lshl_add_u32 v%d, v%d, 11, v%d" % (V_P0, T + 4, V_P0))
    a("v_and_b32 v%d, 3, v%d" % (T + 4, T + 3))
    a("v_lshl_add_u32 v%d, v%d, 7, v%d" % (V_P0, T + 4, V_P0))
    a("s_lshl_b32 s%d, s%d, 9" % (t0, sQ))
    a("v_add_u32 v%d, s%d, v%d" % (V_P0, t0, V_P0))
    a("v_cmp_le_u32 vcc, 12, v%d" % (T + 3))
    a("s_and_b32 s%d, s2, 1" % t0)
    a("s_lshl_b32 s%d, s%d, 4" % (t0, t0))
    a("v_cndmask_b32 v%d, v%d, v%d, vcc" % (V_P0, V_P0, T + 6))
    a("v_cmp_le_u32 vcc, 14, v%d" % (T + 3))
    a("s_add_u32 s%d, s%d, s%d" % (t0, t0, t1))
    a("s_lshl_b32 s%d, s%d, 17" % (t0, t0))
    a("v_cndmask_b32 v%d, v%d, v%d, vcc" % (V_P1, V_P1, T + 6))
    a("s_add_u32 s%d, s%d, 0x%x" % (t0, t0, WS_XN))
    a("v_lshlrev_b32 v%d, 7, v%d" % (V_P2, L))
    a("v_add_u32 v%d, s%d, v%d" % (V_P2, t0, V_P2))
    a("v_cmp_le_u32 vcc, 32, v%d" % L)
    a("s_lshl_b32 s%d, s%d, 12" % (t0, sCLS))
    a("s_nop 0")
    a("v_cndmask_b32 v%d, v%d, v%d, vcc" % (V_P2, V_P2, T + 6))
    PFM = cfg.get("f_pf", 0)
    PF0 = cfg.get("f_pf0", 8)
    if PFM & 2:
        a("buffer_load_dword a%d, v%d, %s, s%d offen" % (A_PD, V_P2, s4(R_WS), t0))
    def touch(n):
        lab = a.newlabel("F_pf")
        a("s_cmp_lg_u32 s%d, %d" % (sCLS, n & 7))
        a("s_cbranch_scc1 %s" % lab)
        if PFM & 1:
            a("s_mov_b32 s%d, %d" % (t0, n * 32 * 6144))
            a("s_mov_b32 s%d, %d" % (t1, n * 32 * 7168))
            a("buffer_load_dword a%d, v%d, %s, s%d offen" % (A_PD, V_P0, s4(R_WQ), t0))
            a("buffer_load_dword a%d, v%d, %s, s%d offen" % (A_PD - 1, V_P1, s4(R_W1), t1))
        if PFM & 2:
            a("s_mov_b32 s%d, %d" % (t0, n * 4096))
            a("buffer_load_dword a%d, v%d, %s, s%d offen" % (A_PD, V_P2, s4(R_WS), t0))
        a.label(lab)
    if PFM & 4:
        a("s_and_b32 s%d, s2, 1" % t0)
        a("v_lshrrev_b32 v%d, 5, v%d" % (T + 2, L))
        a("v_cmp_ne_u32 vcc, s%d, v%d" % (t0, T + 2))
        a("s_nop 1")
        a("v_cndmask_b32 v%d, v%d, v%d, vcc" % (V_P0, V_P0, T + 6))
        a("v_cndmask_b32 v%d, v%d, v%d, vcc" % (V_P1, V_P1, T + 6))
    PW = cfg.get("f_pw", 2); PW0 = cfg.get("f_pw0", 12)
    V_PW = 231
    a("v_lshlrev_b32 v%d, 7, v%d" % (V_PW, L))
    a("v_cmp_le_u32 vcc, 56, v%d" % L)
    a("s_nop 1")
    a("v_cndmask_b32 v%d, v%d, v%d, vcc" % (V_PW, V_PW, T + 6))
    def touchw(cls):
        lab = a.newlabel("F_pw")
        if cls is not None:
            a("s_cmp_lg_u32 s%d, %d" % (sCLS, cls))
            a("s_cbranch_scc1 %s" % lab)
        a("s_lshl_b32 s%d, s2, 2" % t0)
        a("s_add_u32 s%d, s%d, s%d" % (t0, t0, sW))
        a("s_mul_i32 s%d, s%d, 7168" % (t1, t0))
        a("buffer_load_dword a%d, v%d, %s, s%d offen" % (A_PD, V_PW, s4(R_W2), t1))
        a("s_lshl_b32 s%d, s%d, 11" % (t1, t0))
        a("s_mov_b64 exec, 0xffff")
        a("buffer_load_dword a%d, v%d, %s, s%d offen" % (A_PD - 1, V_PW, s4(R_WO), t1))
        a("s_mov_b64 exec, -1")
        a.label(lab)
    def touchx(k):
        a("s_lshr_b32 s%d, s2, 3" % t0)
        a("s_lshl_b32 s%d, s%d, 2" % (t0, t0))
        a("s_add_u32 s%d, s%d, s%d" % (t0, t0, sW))
        a("s_lshl_b32 s%d, s%d, 7" % (t1, sQ))
        a("s_add_u32 s%d, s%d, s%d" % (t0, t0, t1))
        if k < 2:
            a("s_mul_i32 s%d, s%d, 14336" % (t1, t0))
            if k: a("s_add_u32 s%d, s%d, 7168" % (t1, t1))
            a("buffer_load_dword a%d, v%d, %s, s%d offen" % (A_PD - k, V_PW, s4(R_W2), t1))
        else:
            a("s_lshl_b32 s%d, s%d, 12" % (t1, t0))
            a("s_mov_b32 exec_hi, 0")
            a("buffer_load_dword a%d, v%d, %s, s%d offen" % (A_PD, V_PW, s4(R_WO), t1))
            a("s_mov_b32 exec_hi, -1")
    pfq = list(range(PF0, KS)) if PFM else []
    PFA = cfg.get("f_pfa", 30)
    a("v_lshrrev_b32 v%d, 5, v%d" % (T + 2, L))
    a("v_mul_u32_u24 v%d, %d, v%d" % (T + 2, REG, T + 2))
    a("v_and_b32 v%d, 3, v%d" % (T + 3, L))
    a("v_lshl_add_u32 v%d, v%d, 3, v%d" % (T + 2, T + 3, T + 2))
    a("v_bfe_u32 v%d, v%d, 2, 2" % (T + 3, L))
    a("v_bfe_u32 v%d, v%d, 4, 1" % (T + 4, L))
    a("v_lshl_add_u32 v%d, v%d, 6, v%d" % (V_RD, T + 3, T + 2))
    a("v_lshl_add_u32 v%d, v%d, 9, v%d" % (V_RD, T + 4, V_RD))
    a("v_lshl_add_u32 v%d, v%d, 5, v%d" % (V_RD, T + 4, V_RD))
    a("v_xor_b32 v%d, 32, v%d" % (V_RD + 1, V_RD))
    a("v_lshl_add_u32 v%d, v%d, 5, v%d" % (V_RD + 2, T + 3, T + 2))
    a("v_lshl_add_u32 v%d, v%d, 7, v%d" % (V_RD + 2, T + 4, V_RD + 2))
    for st_ in (1, 2):
        for x in range(3):
            a("v_add_u32 v%d, %d, v%d" % (V_RD + 3 * st_ + x, st_ * 2 * STAGE, V_RD + x))
    a("s_lshl_b32 s%d, s%d, 7" % (sKV, sJ))
    a("s_lshl_b32 s%d, s%d, 4" % (t0, sI))
    a("s_add_u32 s%d, s%d, s%d" % (sKV, sKV, t0))
    a("s_lshl_b32 s%d, s%d, 2" % (t0, sW))
    a("s_add_u32 s%d, s%d, s%d" % (sKV, sKV, t0))
    a("s_lshl_b32 s%d, s%d, 10" % (sKV, sKV))
    a("s_add_u32 s%d, s%d, 0x%x" % (sKV2, sKV, WS_V))
    a("s_add_u32 s%d, s%d, 0x%x" % (sKV, sKV, WS_K))
    a("s_sub_u32 s%d, s%d, 16384" % (sKP, sKV))
    a("s_sub_u32 s%d, s%d, 16384" % (sKP2, sKV2))
    a("s_cmp_eq_u32 s%d, 0" % sI)
    a("s_cselect_b32 s%d, 0x40000000, s%d" % (sKP, sKP))
    a("s_cselect_b32 s%d, 0x40000000, s%d" % (sKP2, sKP2))
    a("s_lshl_b32 s%d, s2, 2" % sFO)
    a("s_add_u32 s%d, s%d, s%d" % (sFO, sFO, sW))
    a("s_lshl_b32 s%d, s%d, 7" % (sFO, sFO))
    a("s_add_u32 s%d, s%d, 0x%x" % (sFO, sFO, WS_FL))
    a("s_add_u32 s%d, s%d, 1" % (t0, sI))
    a("s_and_b32 s%d, s%d, 3" % (t1, t0))
    a("s_lshl_b32 s%d, s%d, 3" % (t1, t1))
    a("s_lshr_b32 s%d, s%d, 2" % (t0, t0))
    a("s_or_b32 s%d, s%d, s%d" % (t1, t1, t0))
    a("s_and_b32 s%d, s2, 0xe6" % t0)
    a("s_or_b32 s%d, s%d, s%d" % (t1, t1, t0))
    a("s_lshl_b32 s%d, s%d, 2" % (t1, t1))
    a("s_add_u32 s%d, s%d, s%d" % (t1, t1, sW))
    a("s_lshl_b32 s%d, s%d, 7" % (t1, t1))
    a("s_add_u32 s%d, s%d, 0x%x" % (sFK, t1, WS_FL + 12))
    a("s_cmp_eq_u32 s%d, 7" % sI)
    a("s_cselect_b32 s%d, 0x40000000, s%d" % (sFK, sFK))
    a("v_cmp_ne_u32 vcc, 0, v%d" % L)
    a("v_mov_b32 v%d, 1" % V_ONE)
    a("v_and_b32 v%d, 31, v%d" % (V_PL, L))
    a("v_cndmask_b32 v%d, 0, v%d, vcc" % (V_FL0, T + 6))
    a("v_lshlrev_b32 v%d, 2, v%d" % (V_PL, V_PL))
    a("s_and_b32 s%d, s2, 31" % t0)
    a("s_lshl_b32 s%d, s%d, 2" % (t0, t0))
    a("s_add_u32 s%d, s%d, s%d" % (t0, t0, sW))
    a("s_lshl_b32 s%d, s%d, 7" % (t0, t0))
    a("s_lshl_b32 s%d, s%d, 2" % (t1, sN))
    a("s_add_u32 s%d, s%d, s%d" % (t0, t0, t1))
    a("s_add_u32 s%d, s%d, 0x%x" % (t0, t0, WS_FL))
    a("v_lshlrev_b32 v%d, 14, v%d" % (V_FG, L))
    a("v_add_u32 v%d, s%d, v%d" % (V_FG, t0, V_FG))
    a("v_cmp_le_u32 vcc, 8, v%d" % L)
    a("s_lshl_b32 s%d, s%d, 12" % (t0, sW))
    a("s_add_u32 s%d, s%d, %d" % (t0, t0, KVB))
    a("v_cndmask_b32 v%d, v%d, v%d, vcc" % (V_FG, V_FG, T + 6))
    a("v_add_u32 v%d, s%d, v%d" % (V_KVW, t0, V_L16))
    a("s_lshl_b32 s%d, s%d, 2" % (t0, sI))
    a("s_add_u32 s%d, s%d, s%d" % (t0, t0, sW))
    a("s_lshl_b32 s%d, s%d, 17" % (sXO, t0))
    a("s_mul_i32 s%d, s%d, 144" % (t0, t0))
    a("s_mul_i32 s%d, s%d, 36" % (t1, sQ))
    a("s_add_u32 s%d, s%d, s%d" % (t0, t0, t1))
    a("s_lshl_b32 s%d, s%d, 12" % (t0, t0))
    a("s_add_u32 s%d, s%d, 0x%x" % (t0, t0, WS_A2))
    a("s_add_u32 s%d, s%d, %d" % (sAE, t0, 28 * 4096))
    a("s_lshl_b32 s%d, s%d, 12" % (t1, sN))
    a("s_add_u32 s%d, s%d, s%d" % (sO, sAE, t1))
    a("s_mul_i32 s%d, s%d, 7" % (t1, sN))
    a("s_add_u32 s%d, s%d, s%d" % (t1, t1, sJ1))
    a("s_lshl_b32 s%d, s%d, 11" % (t1, t1))
    a("s_add_u32 s%d, s%d, s%d" % (sH, t0, t1))
    a("s_add_u32 s%d, s%d, 4096" % (sH + 1, sH))
    a("s_add_u32 s%d, s%d, 8192" % (sH + 2, sH))
    a("s_mul_i32 s%d, s%d, %d" % (sH + 3, sJ1, -4096 + 8 - 3 * 4096))
    a("s_add_u32 s%d, s%d, %d" % (sH + 3, sH + 3, 3 * 4096))
    a("s_add_u32 s%d, s%d, s%d" % (sH + 3, sH + 3, sH))
    a("s_lshl_b32 s%d, s%d, 8" % (t0, sN))
    a("s_add_u32 s%d, s%d, s%d" % (sXO, sXO, t0))
    a("s_lshl_b32 s%d, s%d, 6" % (t0, sQ))
    a("s_add_u32 s%d, s%d, s%d" % (sXO, sXO, t0))
    a("s_mov_b32 s%d, 0x%x" % (sSC, f2u(QSCALE)))
    def spin(mask, skip_if_i0=False):
        l0 = a.newlabel("F_sp"); l1 = a.newlabel("F_ok")
        if skip_if_i0:
            a("s_cmp_eq_u32 s%d, 0" % sI)
            a("s_cbranch_scc1 %s" % l1)
        a("s_mov_b32 s%d, 0x%x" % (sSP, SPIN))
        a.label(l0)
        a("v_cmp_ne_u32 vcc, 0, v%d" % V_POLL)
        a("s_and_b32 s%d, vcc_lo, 0x%x" % (t0, mask))
        a("s_cmp_eq_u32 s%d, 0x%x" % (t0, mask))
        a("s_cbranch_scc1 %s" % l1)
        a("buffer_load_dword v%d, v%d, %s, s%d offen sc1" % (V_POLL, V_PL, s4(R_WS), sFO))
        a("s_sub_u32 s%d, s%d, 1" % (sSP, sSP))
        a("s_waitcnt vmcnt(0)")
        a("s_cbranch_scc0 %s" % l0)
        a.label(l1)
    def poll_issue(tag):
        a.vmem("buffer_load_dword v%d, v%d, %s, s%d offen sc1" % (V_POLL, V_PL, s4(R_WS), sFO), tag)

    if FLN:
        a.wait(vm="XS")
        stampr("lnd")
        a("s_barrier")
        lab = a.newlabel("F_ln"); l2 = a.newlabel("F_lp"); l3 = a.newlabel("F_lq")
        a("s_cmp_lg_u32 s%d, 0" % sW)
        a("s_cbranch_scc1 %s" % lab)
        a("v_add_u32 v82, 1, v81")
        a("s_lshl_b64 exec, 1, s%d" % sJ)
        a("buffer_store_dword v82, v80, %s, 0 offen sc1" % s4(R_WS))
        a("s_lshl_b32 s%d, s%d, 5" % (t0, sI))
        a("s_mov_b64 exec, -1")
        a("v_mov_b32 v1, s%d" % t0)
        a("s_mov_b32 s%d, 0x%x" % (sSP, SPIN))
        a.label(l2)
        a("buffer_load_dword v82, v80, %s, 0 offen sc1" % s4(R_WS))
        a("s_waitcnt vmcnt(0)")
        a("v_cmp_ne_u32 vcc, v81, v82")
        a("s_cmp_eq_u32 vcc_lo, -1")
        a("s_cbranch_scc1 %s" % l3)
        a("s_sub_u32 s%d, s%d, 1" % (sSP, sSP))
        a("s_cbranch_scc1 %s" % l3)
        a("s_and_b32 s%d, s%d, 7" % (t0, sSP))
        a("s_cbranch_scc1 %s" % l2)
        a("global_load_dword v2, v1, s[100:101] sc1")
        a("s_waitcnt vmcnt(0)")
        a("v_readfirstlane_b32 s%d, v2" % t0)
        a("s_cmp_lt_u32 s%d, 32" % t0)
        a("s_cbranch_scc1 %s" % l2)
        a.label(l3)
        a.label(lab)
        l4 = a.newlabel("F_la")
        a("s_cmp_lg_u32 s%d, 1" % sW)
        a("s_cbranch_scc1 %s" % l4)
        a("s_lshl_b32 s%d, s%d, 5" % (t0, sI))
        a("v_mov_b32 v1, s%d" % t0)
        a("s_mov_b64 exec, 1")
        a("global_atomic_add v1, v%d, s[100:101] sc1" % V_ONE)
        a("s_mov_b64 exec, -1")
        a.label(l4)
        a("s_barrier")
        stampr("lnp")
        for _ in range(8): issue1(order.pop(0))
        order[:0] = bops
    units = [(s, t) for s in range(S1) for t in range(NT)]
    units += [(s, t) for s in range(S1, KS) for t in (2, 3, 4, 5)]
    UKV = len(units)
    units += [(s, t) for s in range(S1, KS) for t in (6, 7, 8, 9)]
    UH01 = len(units)
    units += [(s, t) for s in range(S1, KS) for t in (10, 11, 12, 0, 1)]
    NU = len(units)
    last_unit_of_stage = {}
    last_unit_of_step = {}
    for u, (s, t) in enumerate(units):
        last_unit_of_stage[s // 2] = u; last_unit_of_step[s] = u
    stt = dict(ready=-1, free=set(), waited=-1, issued=-1)
    def barrier():
        a("s_barrier")
        for g, lu in last_unit_of_stage.items():
            if lu <= stt["waited"]: stt["free"].add(g)
    def can1(op):
        if op[0] == "B": return op[1] < NS or (op[1] - NS) in stt["free"]
        return op[1] < RA or last_unit_of_step[op[1] - RA] <= stt["issued"]
    def flush1(tag):
        while any(o[:2] == tag for o in order):
            op = order.pop(0)
            assert can1(op), (op, stt)
            if cfg.get("verbose"): print("late flush", op, file=sys.stderr)
            issue1(op)
    def bread1(u, j2):
        s, t = units[u]
        slot = slot1(s // 2); st_ = slot // 2
        off = (slot % 2) * STAGE + (s % 2) * 2 * REG + j2 * 256
        if t < 12: off += PAIRPOS[t // 2] * 1024; vr = V_RD + 3 * st_ + (t % 2)
        else: off += 6144; vr = V_RD + 3 * st_ + 2
        a.lds("ds_read_b64_tr_b16 %s, v%d offset:%d" % (r2("a", BR + (u % RB) * 4 + j2 * 2), vr, off), ("b", u))
    def need1(u):
        g = units[u][0] // 2
        if g > stt["ready"]:
            flush1(("B", g)); a.wait(vm=("B", g)); barrier(); stt["ready"] = g
    def pack(c0, c1, relu=False):
        ops = []
        for hh, c in enumerate((c0, c1)):
            if c is None: continue
            for e2 in range(2):
                ops.append("v_cvt_pk_bf16_f32 v%d, v%d, v%d" % (c0 + 2 * hh + e2, c + 2 * e2, c + 2 * e2 + 1))
            if relu:
                for e2 in range(2):
                    ops.append("v_pk_max_i16 v%d, v%d, 0" % (c0 + 2 * hh + e2, c0 + 2 * hh + e2))
        return ops
    HF = ["sc1", "", "nt", "sc0"][cfg.get("f_hf", 0)]
    def hstore(p, mt):
        if p < 3: a.vmem("buffer_store_dwordx4 %s, v%d, %s, s%d offen offset:%d %s" % (r4("v", acc(mt, 6 + 2 * p)), V_L16, s4(R_WS), sH + p, mt * 1024, HF), "H")
        else: a.vmem("buffer_store_dwordx2 %s, v%d, %s, s%d offen offset:%d %s" % (r2("v", acc(mt, 12)), V_L16, s4(R_WS), sH + 3, mt * 1024, HF), "H")
    need1(0)
    stampr("bar0")
    for u in range(DB):
        bread1(u, 0); bread1(u, 1)
    kvq = [(acc(mt, 2), acc(mt, 3), sKV, mt * 1024, 16384 + mt * 1024) for mt in range(MT)] + \
          [(acc(2 * b, 4 + dt), acc(2 * b + 1, 4 + dt), sKV2, (2 * b + dt) * 1024, 49152 + (2 * b + dt) * 1024) for b in range(2) for dt in range(2)]
    NREST = NU - UKV
    UFLAG = UKV + cfg.get("f_uf", 28)
    UPOLL = UFLAG + cfg.get("f_up", 14)
    UCHK = min(UPOLL + cfg.get("f_uc", 8), NU - 1)
    UPW = UCHK + cfg.get("f_uw", 14)
    V2_DMA = 209; V_XO = 211; V2_RD = 232; V2_B = 231
    bias = [232, 236, 240, 244]; VONES = 248; VM = 252
    sB2 = sBQ; sBO = sBV
    class Rec:
        def __init__(self): self.l = []
        def __call__(self, x): self.l.append(x)
    su = Rec(); TT = VM
    su("v_lshrrev_b32 v%d, 4, v%d" % (TT, L))
    su("v_lshlrev_b32 v%d, 11, v%d" % (V2_DMA, TT))
    su("v_lshlrev_b32 v%d, 1, v%d" % (TT, TT))
    su("v_and_b32 v%d, 15, v%d" % (TT + 1, L))
    su("v_xor_b32 v%d, v%d, v%d" % (TT, TT, TT + 1))
    su("v_lshl_add_u32 v%d, v%d, 4, v%d" % (V2_DMA, TT, V2_DMA))
    su("v_xor_b32 v%d, 128, v%d" % (V2_DMA + 1, V2_DMA))
    su("v_add_u32 v%d, %d, v%d" % (V2_DMA + 1, 8192 - 1024, V2_DMA + 1))
    su("v_lshrrev_b32 v%d, 4, v%d" % (TT, L))
    su("v_lshlrev_b32 v%d, 2, v%d" % (TT, TT))
    for e in range(4):
        su("v_add_u32 v%d, %d, v%d" % (TT + 2, e, TT))
        su("v_cmp_le_u32 s[%d:%d], v%d, v%d" % (sMK + 2 * e, sMK + 2 * e + 1, TT + 2, TT + 1))
    su("s_lshl_b32 s%d, s%d, 14" % (t2, sW))
    su("s_lshl_b32 s%d, s%d, 8" % (t1, sN))
    su("s_add_u32 s%d, s%d, s%d" % (t2, t2, t1))
    su("s_lshl_b32 s%d, s%d, 19" % (sBO, sQ))
    su("s_add_u32 s%d, s%d, s%d" % (sBO, sBO, t2))
    su("s_mul_i32 s%d, s%d, %d" % (sB0, sQ, 896 * 2048))
    su("s_add_u32 s%d, s%d, s%d" % (sB0, sB0, t2))
    su("s_add_u32 s%d, s%d, %d" % (sBE, sB0, 896 * 2048))
    su("s_mul_i32 s%d, s%d, 7" % (t1, sN))
    su("s_add_u32 s%d, s%d, s%d" % (t1, t1, sJ1))
    su("s_lshl_b32 s%d, s%d, 15" % (t1, t1))
    su("s_add_u32 s%d, s%d, s%d" % (sB2, sB0, t1))
    su("s_lshl_b32 s%d, s%d, 11" % (sLB, sW))
    LIN = cfg.get("f_lin", 1)
    if LIN:
        su("s_sub_u32 s%d, s%d, %d" % (sA, sAE, 28 * 4096))
        su("s_mov_b32 s%d, s%d" % (sAE, sH))
        su("s_add_u32 s%d, s%d, %d" % (sA0, sH, 3 * 4096))
        su("s_mov_b32 s%d, s%d" % (sBW, sB0))
        su("s_mov_b32 s%d, s%d" % (sBE, sB2))
        su("s_add_u32 s%d, s%d, %d" % (sB0, sB2, 3 * 65536))
    else:
        su("s_add_u32 s%d, s%d, %d" % (sA, sH, 3 * 4096))
        su("s_sub_u32 s%d, s%d, %d" % (sA0, sAE, 28 * 4096))
    su("s_cmp_eq_u32 s%d, s%d\ns_cselect_b32 s%d, s%d, s%d" % (sA, sAE, sA, sA0, sA))
    su("s_lshl_b32 s%d, s%d, 2" % (t1, sI))
    su("s_add_u32 s%d, s%d, s%d" % (t1, t1, sW))
    for gq in range(4):
        su("s_cmp_lt_u32 s%d, %d\ns_cselect_b32 s%d, 0x%x, 0" % (t1, 4 - gq, t2, f2u(-1e30)))
        for e in range(4): su("v_mov_b32 v%d, s%d" % (bias[gq] + e, t2))
    for e in range(4): su("v_mov_b32 v%d, 0x3f803f80" % (VONES + e))
    su("v_lshrrev_b32 v%d, 2, v%d" % (TT, L))
    su("v_and_b32 v%d, 7, v%d" % (TT + 2, TT))
    su("v_lshlrev_b32 v%d, 8, v%d" % (TT, TT))
    su("v_and_b32 v%d, 3, v%d" % (TT + 1, L))
    su("v_lshl_add_u32 v%d, v%d, 3, v%d" % (TT, TT + 1, TT))
    su("v_lshl_add_u32 v%d, v%d, 5, v%d" % (V2_B, TT + 2, TT))
    su("s_lshl_b32 s%d, s%d, 6" % (t1, sQ))
    su("s_xor_b32 s%d, s%d, 192" % (t1, t1))
    su("v_xor_b32 v%d, s%d, v%d" % (V2_B, t1, V2_B))
    V_T128 = V_XO
    su("v_lshlrev_b32 v%d, 7, v%d" % (V_T128, L))
    def selftouch(so, half):
        if half: a("s_mov_b32 exec_hi, 0")
        a.vmem("buffer_load_dword a%d, v%d, %s, s%d offen sc1" % (A_PD, V_T128, s4(R_WS), so), "T")
        if half: a("s_mov_b32 exec_hi, -1")
    def kpw(x):
        c0, c1, so, go, lo = kvq[x]
        a.wait(vm=("KP", x))
        a.lds("ds_write_b128 v%d, %s offset:%d" % (V_KVW, r4("v", c1), lo - 16384), "kvw")
    def codepf():
        lab = a.newlabel("F_pc")
        a("s_getpc_b64 s[%d:%d]" % (R_WQ, R_WQ + 1))
        a.label(lab)
        a("s_and_b32 s%d, s%d, 0xffff" % (R_WQ + 1, R_WQ + 1))
        a("s_mov_b32 s%d, CODE_END - %s" % (R_WQ + 2, lab))
        a("s_lshr_b32 s%d, s2, 3" % t0)
        a("s_lshl_b32 s%d, s%d, 2" % (t0, t0))
        a("s_add_u32 s%d, s%d, s%d" % (t0, t0, sW))
        a("s_lshl_b32 s%d, s%d, 9" % (t0, t0))
        a("s_mov_b64 exec, 15")
        a.vmem("buffer_load_dword a%d, v%d, %s, s%d offen" % (A_PD, V_PW, s4(R_WQ), t0), "T")
        a("s_mov_b64 exec, -1")
    seenA = set()
    ramp = (RA - 1 - LA) / float(S1 * NT)
    WM = cfg.get("f_wm", 200) / 100.0
    W0 = cfg.get("f_w0", 100) / 100.0
    UEND = S1 * NT + cfg.get("f_uend", 8)
    wts = [0.0] + [W0] * 3 + [WM if g % 4 == 0 else 1.0 for g in range(4, 16)]
    tau = [0.0]
    for g in range(16): tau.append(tau[-1] + wts[g])
    tau = [x * UEND / tau[-1] for x in tau]
    def due(op):
        g = op[1] if op[0] == "B" else op[1] // 2
        idx = op[2] if op[0] == "B" else 7 + (op[1] % 2) * 4 + op[2]
        return tau[g] + (tau[g + 1] - tau[g]) * idx / 15.0
    THR1 = cfg.get("f_thr1", 63)
    side = G.side
    def prewait1(u):
        s, t = units[u]
        if s not in seenA:
            flush1(("A", s)); seenA.add(s)
            r = a.wait(vm=("A", s), lg=("b", u))
        else: r = a.wait(lg=("b", u))
        stt["waited"] = u
        return r
    prewait1(0)
    for u in range(NU):
        s, t = units[u]
        un = u + DB
        if un < NU: need1(un)
        if u < UKV and s >= S1 - 4 and s < S1 + 1 and s % 2 == 0 and t == (1 if s < S1 else 3): barrier()
        if S1 // 2 <= 12 and u == last_unit_of_stage[12] + 2: barrier()
        if pfq and u % 4 == 2 and pfq[0] - 1 <= (u + PFA) / NT + LA + ramp * (u + PFA): touch(pfq.pop(0))
        if PW & 4:
            for k in range(3):
                if u == S1 * NT + cfg.get("f_px0", 4) + k * cfg.get("f_pxd", 16): touchx(k)
        if PW == 1 and u == UKV - PW0: touchw(None)
        if PW & 3 == 2 and u < S1 * NT and t == 8 and PW0 <= s < PW0 + 8: touchw((s + 4) & 7)
        if u == 16 * NT: stampr("g1half")
        if u < S1 * NT and t == 0: stampr("g1s%d" % s)
        if u == S1 * NT: stampr("g1tail")
        if u == UKV:
            stampr("g1kv")
            if cfg.get("f_cpf", 1): codepf()
        if FLN and u == 20 * NT + 3:
            a("v_and_b32 v%d, 7, v%d" % (V_P0, L))
            a("v_lshlrev_b32 v%d, 5, v%d" % (V_P0, V_P0))
            a.vmem("global_load_dword v%d, v%d, s[100:101] sc1" % (V_POLL, V_P0), "CN")
        if FLN and u == 22 * NT + 3:
            a.wait(vm="CN")
            l0 = a.newlabel("F_cn"); l1 = a.newlabel("F_ok")
            a("s_mov_b32 s%d, 0x%x" % (sSP, SPIN))
            a.label(l0)
            a("v_cmp_eq_u32 vcc, 32, v%d" % V_POLL)
            a("s_cmp_eq_u32 vcc_lo, -1")
            a("s_cbranch_scc1 %s" % l1)
            a("global_load_dword v%d, v%d, s[100:101] sc1" % (V_POLL, V_P0))
            a("s_sub_u32 s%d, s%d, 1" % (sSP, sSP))
            a("s_waitcnt vmcnt(0)")
            a("s_cbranch_scc0 %s" % l0)
            a.label(l1)
        if u == UFLAG:
            stampr("g1flag0")
            assert a.vm.count("KV") == 8
            a.wait(vm="KV")
            stampr("g1flag1")
            a.vmem("buffer_store_dword v%d, v%d, %s, s%d offen sc1" % (V_ONE, V_FL0, s4(R_WS), sFK), "FK")
        if u == UPOLL: poll_issue("PK")
        if u == UCHK:
            a.wait(vm="PK")
            spin(1 << 3, skip_if_i0=True)
            stampr("g1chk")
            for x, (c0, c1, so, go, lo) in enumerate(kvq):
                def f(c1=c1, so=(sKP if x < 4 else sKP2), go=go, x=x):
                    a.vmem("buffer_load_dwordx4 %s, v%d, %s, s%d offen offset:%d sc1" % (r4("v", c1), V_L16, s4(R_WS), so, go), ("KP", x))
                side.insert(x, ("m", f))
        bf = r4("a", BR + (u % RB) * 4)
        nxt = None
        if order and can1(order[0]) and len(G.sal) <= 1 and due(order[0]) <= u: nxt = order.pop(0)
        for mt in range(MT):
            mz = mt if u % 2 == 0 else MT - 1 - mt
            af = r4("a", AR + (s % RA) * 16 + mz * 4)
            c = r4("v", acc(mz, t))
            src = "0" if s == 0 else c
            if t in (4, 5): a("%s %s, %s, %s, %s" % (MF, c, af, bf, src))
            else:           a("%s %s, %s, %s, %s" % (MF, c, bf, af, src))
            rd = (lambda mt=mt: bread1(un, mt)) if (mt < 2 and un < NU) else None
            if mt == 0: G.gap(fixed=rd)
            elif mt == 1:
                if nxt and nxt[0] == "B": G.gap(first=lambda: (dma1(nxt[1], nxt[2], 0), True)[1], fixed=rd)
                else: G.gap(fixed=rd)
            elif mt == 2:
                if nxt:
                    assert not G.sal
                    G.gap(first=(lambda: a.throttle(THR1)), mem=((lambda: aload1(nxt[1], nxt[2])) if nxt[0] == "A" else (lambda: dma1(nxt[1], nxt[2], 1))))
                else: G.gap()
            else:
                stt["issued"] = u
                G.gap(first=(lambda: prewait1(u + 1)) if u + 1 < NU else None)
        if u == UKV - 1:
            assert 11 in stt["free"], stt
            side += [None] * 5
            for (c0, c1, so, go, lo) in kvq:
                side += pack(c0, c1)
                def f(c0=c0, so=so, go=go):
                    a.vmem("buffer_store_dwordx4 %s, v%d, %s, s%d offen offset:%d sc1" % (r4("v", c0), V_L16, s4(R_WS), so, go), "KV")
                side.append(("m", f))
            for (c0, c1, so, go, lo) in kvq:
                def f(c0=c0, lo=lo):
                    a.lds("ds_write_b128 v%d, %s offset:%d" % (V_KVW, r4("v", c0), lo), "kvw")
                side += [("x", f), None]
            assert not order
            side += su.l
        if u == UPW:
            assert 12 in stt["free"]
            side[:0] = [y for x in range(8) for y in (("x", lambda x=x: kpw(x)), None)]
        if u == UH01 - 1:
            side += [None] * 5
            for p in range(2):
                for mt in range(MT):
                    side += pack(acc(mt, 6 + 2 * p), acc(mt, 7 + 2 * p), relu=True)
                    side.append(("m", lambda p=p, mt=mt: hstore(p, mt)))
                    side += [None] * cfg.get("f_hsp", 8)
    if cfg.get("verbose"): print("G1 side left", len([x for x in side if x is not None]), file=sys.stderr)
    G.drain()
    assert not order
    assert 12 in stt["free"]
    stampr("g1end")

    if UPW >= NU:
        for x in range(8): kpw(x)
    a.wait(lg="kvw")
    a("s_barrier")
    stampr("attbeg")
    KF = 0; VF = 80
    va = []
    for mt in range(MT): va += pack(acc(mt, 10), acc(mt, 11), relu=True)
    for kt in range(20):
        a.lds("ds_read_b128 %s, v%d offset:%d" % (r4("a", KF + 4 * kt), V_KVW, kt * 1024), ("k", kt))
        a(va.pop(0))
    for mt in range(MT):
        for t in (0, 1):
            for e2 in range(2):
                c = acc(mt, t) + 2 * e2
                a("v_pk_mul_f32 v[%d:%d], v[%d:%d], s[%d:%d] op_sel_hi:[1,0]" % (c, c + 1, c, c + 1, sSC, sSC + 1))
        if mt == 0:
            for x in pack(acc(mt, 0), acc(mt, 1)): a(x)
    STCH = cfg.get("f_st", 0)
    a.vm = [("H01" if t == "H" else t) for t in a.vm]
    stq = [(cfg.get("f_st0", 200), sH), (cfg.get("f_st1", 380), sH + 1)] if STCH & 1 else []
    hstore(2, 0)
    for mt in range(1, MT): va += pack(acc(mt, 0), acc(mt, 1))
    for mt in range(MT): va += pack(acc(mt, 12), None, relu=True)
    free = [acc(mt, t) for t in (2, 3, 4, 5, 7, 9) for mt in range(MT)] + [212, 216, 220] + [acc(mt, t) for t in (11, 1) for mt in range(MT)]

    KS2 = 36; NSL = 20
    RA2 = cfg.get("f_ra2", 14); DB2 = cfg.get("f_db2", 3); RB2 = DB2 + 2
    BR2 = RA2 * 16
    assert BR2 + RB2 * 4 <= 256
    def aslot(p): return ((p - 3 + 10) % RA2) * 16
    def dma2_ops(p):
        sb, so = (R_W2, sB2) if p < 28 else (R_WO, sBO)
        ops = [(0, lambda: a("s_add_u32 m0, s%d, %d" % (sLB, (p % NSL) * 8192))),
               (1, lambda: a.vmem("buffer_load_dwordx4 v%d, %s, s%d offen lds" % (V2_DMA, s4(sb), so), ("B2", p))),
               (1, lambda: a.vmem("buffer_load_dwordx4 v%d, %s, s%d offen offset:1024 lds" % (V2_DMA + 1, s4(sb), so), ("B2", p)))]
        if LIN and p == 2:
            ops.append((0, lambda: a("s_mov_b32 s%d, s%d" % (sB2, sBW))))
        elif p != 27 and p != 35:
            ops.append((0, lambda: a("s_add_u32 s%d, s%d, 65536" % (so, so))))
        if p < 27 and not (LIN and p < 2):
            ops.append((0, lambda: a("s_cmp_eq_u32 s%d, s%d\ns_cselect_b32 s%d, s%d, s%d" % (sB2, sBE, sB2, sB0, sB2))))
        return ops
    def aload2(p, mt):
        a.vmem("buffer_load_dwordx4 %s, v%d, %s, s%d offen offset:%d %s" % (r4("a", aslot(p) + mt * 4), V_L16, s4(R_WS), sA, mt * 1024, ["sc1", "sc1 nt", ""][cfg.get("f_af", 0)]), ("A2", p))
        if mt == MT - 1:
            if p == 27 and not LIN: G.sal.append("s_mov_b32 s%d, s%d" % (sA, sAE))
            else:
                G.sal.append("s_add_u32 s%d, s%d, 4096" % (sA, sA))
                if p <= 27: G.sal.append("s_cmp_eq_u32 s%d, s%d\ns_cselect_b32 s%d, s%d, s%d" % (sA, sAE, sA, sA0, sA))
    hst = [(2, 1), (2, 2), (2, 3)] + [(3, mt) for mt in range(MT)]
    NPRE = cfg.get("f_npre", 6)
    assert NPRE >= 3
    pre = []
    for p in range(NPRE): pre += [(p,) + op for op in dma2_ops(p)]

    S_ = {}; P_ = {}; O_ = {}
    def s_mfma(qa, kt):
        q = free.pop(0); S_[(qa, kt)] = q
        a.wait(lg=("k", kt))
        c = r4("v", bias[kt // 4]) if kt < 16 else "0"
        a("%s %s, %s, %s, %s" % (MF, r4("v", q), r4("a", KF + 4 * kt), r4("v", acc(qa, 0)), c))
    def pv_list(qa):
        b0 = qa // 2
        out = []
        for b in range(b0, b0 + 9):
            for z in range(3):
                def f(b=b, z=z):
                    if b == b0: O_[(qa, z)] = free.pop(0)
                    o = r4("v", O_[(qa, z)])
                    if z < 2:
                        a.wait(lg=("v", 2 * b + z)); A = r4("a", VF + (2 * b + z) * 4)
                    else: A = r4("v", VONES)
                    a("%s %s, %s, %s, %s" % (MF, o, A, r4("v", P_[(qa, b)]), "0" if b == b0 else o))
                    if z == 2: free.append(P_[(qa, b)])
                out.append(f)
        return out
    def fin_list(qa):
        o0, o1, sm = O_[(qa, 0)], O_[(qa, 1)], O_[(qa, 2)]
        ops = ["v_rcp_f32 v%d, v%d" % (sm, sm), "s_nop 0"]
        for o in (o0, o1):
            for e in range(4): ops.append("v_mul_f32 v%d, v%d, v%d" % (o + e, o + e, sm))
        ops += pack(o0, o1)
        def f():
            a.vmem("buffer_store_dwordx4 %s, v%d, %s, s%d offen offset:%d %s" % (r4("v", o0), V_L16, s4(R_WS), sO, qa * 1024, HF), "O")
            free.extend([o1, sm]); late_free.append(o0)
        ops.append(f)
        return ops
    late_free = []
    pready = set()
    def soft_list(qa):
        k0, k1 = qa, qa + 16
        ops = []
        f_, l_ = S_[(qa, k0)], S_[(qa, k1)]
        for e in range(4):
            ops.append((1, "v_cndmask_b32 v%d, v%d, v%d, s[%d:%d]" % (f_ + e, f_ + e, l_ + e, sMK + 2 * e, sMK + 2 * e + 1)))
        quads = [S_[(qa, kt)] for kt in range(k0 + 1, k1)] + [f_]
        m0, m1 = VM, VM + 1
        ops.append((1, "v_max_f32 v%d, v%d, v%d" % (m0, quads[0], quads[0] + 1)))
        ops.append((1, "v_max_f32 v%d, v%d, v%d" % (m1, quads[0] + 2, quads[0] + 3)))
        ops.insert(2, (0, "SLOT")); ops.insert(5, (0, "SLOT")); ops.append((0, "SLOT"))
        for q in quads[1:]:
            ops.append((1, "v_max3_f32 v%d, v%d, v%d, v%d" % (m0, m0, q, q + 1)))
            ops.append((1, "v_max3_f32 v%d, v%d, v%d, v%d" % (m1, m1, q + 2, q + 3)))
            ops.append((0, "SLOT"))
        ops.append((1, "v_max_f32 v%d, v%d, v%d" % (m0, m0, m1)))
        for op in ("v_permlane16_swap_b32", "v_permlane32_swap_b32"):
            ops.append((1, "v_mov_b32 v%d, v%d" % (m1, m0)))
            ops.append((2, "s_nop 1"))
            ops.append((1, "%s v%d, v%d" % (op, m0, m1)))
            ops.append((2, "s_nop 1"))
            ops.append((1, "v_max_f32 v%d, v%d, v%d" % (m0, m0, m1)))
        def subexp(q):
            r = []
            for e2 in range(2):
                r.append((1, "v_pk_add_f32 v[%d:%d], v[%d:%d], v[%d:%d] op_sel_hi:[1,0] neg_lo:[0,1] neg_hi:[0,1]" % (q + 2 * e2, q + 2 * e2 + 1, q + 2 * e2, q + 2 * e2 + 1, m0, m0 + 1)))
            for e in range(4):
                if e < 2: r.append((0, "SLOT"))
                r.append((2, "v_exp_f32 v%d, v%d" % (q + e, q + e)))
            r.append((0, "MEM"))
            return r
        ops += subexp(f_)
        ops += subexp(S_[(qa, k0 + 1)])
        for e in range(4):
            ops.append((1, "v_cndmask_b32 v%d, 0, v%d, s[%d:%d]" % (l_ + e, f_ + e, sMK + 2 * e, sMK + 2 * e + 1)))
        for e in range(4):
            ops.append((1, "v_cndmask_b32 v%d, v%d, 0, s[%d:%d]" % (f_ + e, f_ + e, sMK + 2 * e, sMK + 2 * e + 1)))
        done = {k0, k0 + 1, k1}
        b0 = qa // 2
        pend_pack = None
        for b in range(b0, b0 + 9):
            for kt in (2 * b, 2 * b + 1):
                if k0 <= kt <= k1 and kt not in done:
                    ops += subexp(S_[(qa, kt)]); done.add(kt)
            if pend_pack: ops += pend_pack
            lo, hi = S_.get((qa, 2 * b)), S_.get((qa, 2 * b + 1))
            pk = []
            if lo is None:
                d = hi
                pk.append((1, "v_cvt_pk_bf16_f32 v%d, v%d, v%d" % (d + 3, d + 2, d + 3)))
                pk.append((1, "v_cvt_pk_bf16_f32 v%d, v%d, v%d" % (d + 2, d, d + 1)))
                pk.append((1, "v_mov_b32 v%d, 0" % d)); pk.append((1, "v_mov_b32 v%d, 0" % (d + 1)))
            elif hi is None:
                d = lo
                pk += [(1, x) for x in pack(d, None)]
                pk.append((1, "v_mov_b32 v%d, 0" % (d + 2))); pk.append((1, "v_mov_b32 v%d, 0" % (d + 3)))
            else:
                d = lo
                pk += [(1, x) for x in pack(lo, hi)]
                pk.append((0, (lambda hi=hi: free.append(hi))))
            P_[(qa, b)] = d
            pk.append((0, (lambda b=b: pready.add((qa, b)))))
            pend_pack = pk
        ops.append((1, "s_nop 0"))
        ops += pend_pack
        return ops
    def run(op):
        if isinstance(op, str): a(op)
        else: op()
    vr = list(range(20))
    def vread():
        f = vr.pop(0)
        a.lds("ds_read_b128 %s, v%d offset:%d" % (r4("a", VF + 4 * f), V_KVW, 32768 + f * 1024), ("v", f))
    for kt in range(17):
        s_mfma(0, kt)
        vread(); a(va.pop(0))
    while vr:
        vread(); a(va.pop(0))
    hstore(*hst.pop(0))
    while va: a(va.pop(0))
    HGAP = cfg.get("f_hgap", 30); PGAP = cfg.get("f_pgap", 40)
    HFL = cfg.get("f_hfl", 520)
    HPO = cfg.get("f_hpo", 960)
    HCK = cfg.get("f_hck", 2000)
    hok = False
    ordA = [("A2", p, mt) for p in range(3, KS2) for mt in range(MT)]
    napre = cfg.get("f_apre", 16)
    pv3 = pv_list(3); pv3b = [1 + x // 3 for x in range(27)]
    kvbar = False; hflag = False; hpoll = False
    cost_total = 0; next_h = HGAP; next_p = 0
    for qa in range(4):
        stampr("att%d" % qa)
        ops = soft_list(qa)
        tot = sum(c for c, _ in ops)
        pv = pv_list(qa - 1) if qa > 0 else []
        fin = None
        sm = [(qa + 1, kt) for kt in range(qa + 1, qa + 18)] if qa < 3 else []
        c = 0
        pv_done_at = None
        for (cost, op) in ops:
            if op == "SLOT":
                did = False
                if pv:
                    pv.pop(0)(); did = True
                    if not pv: pv_done_at = c
                elif sm and len(free) > 0 and c >= tot * 0.2:
                    s_mfma(*sm.pop(0)); did = True
                elif qa == 3 and pv3 and (3, pv3b[0]) in pready:
                    pv3.pop(0)(); pv3b.pop(0); did = True
                if did and G.sal:
                    a(G.sal.pop(0)); continue
                if did and pre and pre[0][1] == 0 and (kvbar or pre[0][0] < 12): pre.pop(0)[2]()
                continue
            if op == "MEM":
                if qa > 0 and fin is None and pv_done_at is not None and c >= pv_done_at + 18:
                    fin = fin_list(qa - 1)
                    for x in fin: run(x)
                elif hst and cost_total >= next_h:
                    hstore(*hst.pop(0)); next_h = cost_total + HGAP
                elif stq and cost_total >= stq[0][0]:
                    a.wait(vm="H01"); selftouch(stq.pop(0)[1], True)
                elif not hst and not hflag and cost_total >= HFL:
                    a.wait(vm="H")
                    a.vmem("buffer_store_dword v%d, v%d, %s, 0 offen offset:32 sc1" % (V_ONE, V_FG, s4(R_WS)), "FH")
                    hflag = True
                    if STCH & 2: selftouch(sH + 2, True)
                elif hflag and not hpoll and cost_total >= HPO:
                    poll_issue("PH"); hpoll = True
                elif hpoll and not hok and cost_total >= HCK:
                    a.wait(vm="PH"); spin(0xff00); hok = True
                    stampr("g2h")
                elif hok and napre > 0:
                    G.drain_sal()
                    op_ = ordA.pop(0); aload2(op_[1], op_[2]); napre -= 1
                elif pre and pre[0][1] == 1 and cost_total >= next_p:
                    pre.pop(0)[2](); next_p = cost_total + PGAP
                continue
            run(op); c += cost; cost_total += cost
            if qa == 0 and not kvbar and c >= 30:
                a.wait(lg=("v", 19)); a("s_barrier"); kvbar = True
        assert not pv and (qa == 0 or fin)
        free.extend(late_free); del late_free[:]
        if sm and cfg.get("verbose"): print("late S mfmas", qa, len(sm), file=sys.stderr)
        late = bool(sm)
        while sm: s_mfma(*sm.pop(0))
        if late: a("s_nop 7")
    if cfg.get("verbose"): print("attention cost", cost_total, "pre left", len(pre), file=sys.stderr)
    stampr("att4")
    assert not hst and hflag and hpoll
    if not hok: napre = 0
    while pre:
        pre.pop(0)[2](); a("s_nop 0")
    G.drain_sal()
    a("v_mov_b32 v%d, v%d" % (V2_RD, V2_B))
    a("v_xor_b32 v%d, 32, v%d" % (V2_RD + 1, V2_B))
    xr = ["v_xor_b32 v%d, %d, v%d" % (V2_RD + t, t * 32, V2_B) for t in range(2, 8)]
    if cfg.get("verbose"): print("pv3 left", len(pv3), "apre left", napre, file=sys.stderr)
    for f in pv3:
        f()
        if napre > 0:
            op_ = ordA.pop(0); aload2(op_[1], op_[2]); napre -= 1; G.drain_sal()
        else:
            for _ in range(2):
                if xr: a(xr.pop(0))
    while xr: a(xr.pop(0))
    stampr("attend")

    NT2 = 8
    DL = cfg.get("f_dl", 8); S2 = KS2 - DL
    assert RA2 >= DL
    own = set(acc(mt, 6 + 2 * p) for p in range(3) for mt in range(MT))
    busy = own | set(O_[(3, z)] for z in range(3)) | {208}
    q2 = [q for q in range(0, 224, 4) if q not in busy]
    acc2 = {}
    for t in range(NT2):
        for mt in range(MT): acc2[(mt, t)] = q2.pop(0)
    VX = [q2.pop(0) for _ in range(4)]
    TT = q2.pop(0); V_XI = TT + 2
    R_X = R_WQ; R_OUT = R_W1
    rec = Rec()
    rec.l += [None] * 5 + [x if isinstance(x, str) else ("m", x) for x in fin_list(3)]
    for st_ in (1, 2):
        for t in range(8): rec("v_add_u32 v%d, 0x%x, v%d" % (V2_RD + 8 * st_ + t, st_ * 0x10000, V2_RD + t))
    srd(rec, R_X, P_X, S * D * 2)
    srd(rec, R_OUT, P_OUT, S * D * 2)
    rec2 = Rec()
    rec2("v_and_b32 v%d, 15, v%d" % (TT, L))
    rec2("v_lshlrev_b32 v%d, 11, v%d" % (V_XO, TT))
    rec2("v_lshrrev_b32 v%d, 4, v%d" % (TT, L))
    rec2("v_lshl_add_u32 v%d, v%d, 3, v%d" % (V_XI, TT, V_XO))
    rec2("v_bfe_u32 v%d, v%d, 4, 1" % (TT, L))
    rec2("v_lshl_add_u32 v%d, v%d, 5, v%d" % (V_XO, TT, V_XO))
    rec2("v_lshrrev_b32 v%d, 5, v%d" % (TT, L))
    rec2("v_lshl_add_u32 v%d, v%d, 4, v%d" % (V_XO, TT, V_XO))
    sSX = [sKV, sKV2, sKP]; sSF = [sKP2, sFK, sH]; sRX = sH + 1
    for lam in range(3):
        rec("s_xor_b32 s%d, s2, %d" % (t1, (lam ^ 3) << 1))
        rec("s_lshl_b32 s%d, s%d, 2" % (t1, t1))
        rec("s_add_u32 s%d, s%d, s%d" % (t1, t1, sW))
        rec("s_mul_i32 s%d, s%d, 12288" % (sSX[lam], t1))
        rec("s_add_u32 s%d, s%d, 0x%x" % (sSX[lam], sSX[lam], WS_XC + lam * 4096))
        rec("s_lshl_b32 s%d, s%d, 7" % (sSF[lam], t1))
        rec("s_add_u32 s%d, s%d, 0x%x" % (sSF[lam], sSF[lam], WS_FL + lam * 4))
    rec("s_lshl_b32 s%d, s2, 2" % t1)
    rec("s_add_u32 s%d, s%d, s%d" % (t1, t1, sW))
    rec("s_mul_i32 s%d, s%d, 12288" % (sRX, t1))
    rec("s_add_u32 s%d, s%d, 0x%x" % (sRX, sRX, WS_XC))
    side = G.side
    side += rec.l

    units = [(p, t) for p in range(S2) for t in range(NT2)]
    for lam in range(4):
        units += [(p, t) for p in range(S2, KS2) for t in (2 * lam, 2 * lam + 1)]
    NU = len(units)
    UT = S2 * NT2; PL = 2 * DL
    last_unit = {}
    for u, (p, t) in enumerate(units): last_unit[p] = u
    stt = dict(ready=-1, free=set(), waited=-1, issued=-1, ook=False, hok=hok)
    ordB = [("B2", p) for p in range(NPRE, KS2)]
    def barrier2():
        a("s_barrier")
        for p, lu in last_unit.items():
            if lu <= stt["waited"]: stt["free"].add(p)
    def can2(op):
        if op[0] == "B2": return op[1] < NSL or (op[1] - NSL) in stt["free"]
        if not stt["hok"] or (op[1] >= 28 and not stt["ook"]): return False
        return op[1] - 3 < RA2 or last_unit[op[1] - RA2] <= stt["issued"]
    def issue2(op):
        if cfg.get("verbose"): print("late flush2", op, file=sys.stderr)
        G.drain_sal()
        if op[0] == "A2": aload2(op[1], op[2])
        else:
            for x in dma2_ops(op[1]): x[1](); a("s_nop 0")
        G.drain_sal()
    def flush2(q, tag):
        while any(o[:2] == tag for o in q):
            op = q.pop(0); assert can2(op), (op, stt); issue2(op)
    def bread2(u, j2):
        p, t = units[u]
        sl = p % NSL
        a.lds("ds_read_b64_tr_b16 %s, v%d offset:%d" % (r2("a", BR2 + (u % RB2) * 4 + j2 * 2), V2_RD + 8 * (sl // 8) + t, (sl % 8) * 8192 + j2 * 4096), ("b2", u))
    def need2(u):
        p = units[u][0]
        if p > stt["ready"]:
            flush2(ordB, ("B2", p))
            grp = cfg.get("f_bgrp", 4)
            top = max(x for x in range(p, min(p + grp, KS2)) if not any(o[1] == x for o in ordB))
            if p == 0: top = NPRE - 1
            a.wait(vm=("B2", top)); barrier2(); stt["ready"] = top
    need2(0)
    for u in range(DB2):
        bread2(u, 0); bread2(u, 1)
    stampr("g2beg")
    UOF = cfg.get("f_uof", 26)
    UOP = cfg.get("f_uop", 80); UOC = UOP + 12
    seenA = {0, 1, 2}
    xdone = False
    rq = sorted(own)
    def flag(lam):
        a.wait(vm=("S", lam))
        a.vmem("buffer_store_dword v%d, v%d, %s, s%d offen sc1" % (V_ONE, V_FL0, s4(R_WS), sSF[lam]), ("F", lam))
    def recv(lam, mt):
        a.vmem("buffer_load_dwordx4 %s, v%d, %s, s%d offen offset:%d sc1" % (r4("v", rq[4 * lam + mt]), V_L16, s4(R_WS), sRX, mt * 1024), ("R", lam, mt))
        if mt == 3 and lam < 2: a("s_add_u32 s%d, s%d, 4096" % (sRX, sRX))
    PS = lambda mt, hh: acc2[(mt, hh)]
    def addpk(dst, src, first=False):
        ops = []
        for hh in range(2):
            for e2 in range(2):
                pp = src + 2 * hh + e2; c = dst[hh] + 2 * e2
                if first:
                    ops += ["v_lshlrev_b32 v%d, 16, v%d" % (c, pp), "v_and_b32 v%d, 0xffff0000, v%d" % (c + 1, pp)]
                else:
                    ops += ["v_lshlrev_b32 v%d, 16, v%d" % (TT, pp), "v_and_b32 v%d, 0xffff0000, v%d" % (TT + 1, pp),
                            "v_pk_add_f32 v[%d:%d], v[%d:%d], v[%d:%d]" % (c, c + 1, c, c + 1, TT, TT + 1)]
        return ops
    FD = cfg.get("f_fd", 22)
    ev = {}
    def at(u, f): ev.setdefault(u, []).append(f)
    at(UT + PL + FD, lambda: flag(0))
    at(UT + 2 * PL + FD, lambda: flag(1))
    UP0 = UT + 3 * PL + cfg.get("f_p0", 4)
    at(UP0, lambda: poll_issue("P0"))
    def chk0():
        a.wait(vm="P0"); spin(1)
        for mt in range(MT): side.append(("m", lambda mt=mt: recv(0, mt)))
    at(UP0 + cfg.get("f_c0", 8), chk0)
    def presum():
        side.append(("s", lambda: a.wait(vm="X")))
        for mt in range(MT): side.extend(addpk([PS(mt, 0), PS(mt, 1)], VX[mt], first=True))
    at(UT + 2 * PL + PL // 2, presum)
    first_unit = {}
    for u, (p, t) in enumerate(units): first_unit.setdefault(p, u)
    NOPS = len(ordA) + 2 * len(ordB)
    UE2 = UT + cfg.get("f_ue2", 0)
    MARG = cfg.get("f_marg", 20)
    THR2 = cfg.get("f_thr2", 63)
    def prewait2(u):
        p, t = units[u]
        if p not in seenA:
            flush2(ordA, ("A2", p)); seenA.add(p)
            r = a.wait(vm=("A2", p), lg=("b2", u))
        else: r = a.wait(lg=("b2", u))
        stt["waited"] = u
        return r
    def b2sal(p):
        so = sB2 if p < 28 else sBO
        if p != 27 and p != 35: G.sal.append("s_add_u32 s%d, s%d, 65536" % (so, so))
        if p < 27: G.sal.append("s_cmp_eq_u32 s%d, s%d\ns_cselect_b32 s%d, s%d, s%d" % (sB2, sBE, sB2, sB0, sB2))
    prewait2(0)
    half = None
    for u in range(NU):
        p, t = units[u]
        un = u + DB2
        if u == UOF:
            a.wait(vm="O")
            a.vmem("buffer_store_dword v%d, v%d, %s, 0 offen offset:64 sc1" % (V_ONE, V_FG, s4(R_WS)), "FO")
            if STCH & 4: selftouch(sO, True)
            side.extend(rec2.l)
        if u == cfg.get("f_uh", 4) and not stt["hok"]:
            a.wait(vm="PH"); spin(0xff00); stt["hok"] = True
            stampr("g2h")
        if u < UT and t == 1: stampr("g2p%d" % p)
        if u == UT: stampr("g2tail")
        if u > UT and (u - UT) % PL == 0: stampr("g2l%d" % ((u - UT) // PL))
        if u == UOP: poll_issue("PO")
        if u == UOC:
            a.wait(vm="PO"); spin(0xff0000); stt["ook"] = True
        for f in ev.get(u, []): f()
        if un < NU and units[un][0] > stt["ready"]:
            if half is not None:
                dma2_ops(half)[2][1](); b2sal(half); half = None
            need2(un)
        if u < UT and t == 2 and p % 4 == 0 and p > 0 and p - 4 + NSL < KS2: barrier2()
        bf = r4("a", BR2 + (u % RB2) * 4)
        pre_ = None; mem_ = None
        if half is not None:
            def mem_(h=half): dma2_ops(h)[2][1](); b2sal(h)
            half = None
        elif len(G.sal) <= 1:
            cand = [q for q in (ordA, ordB) if q and can2(q[0])]
            if cand:
                cand.sort(key=lambda q: q[0][1] - (cfg.get("f_bprio", 6) if q[0][0] == "B2" else 0))
                done_ = NOPS - len(ordA) - 2 * len(ordB)
                if done_ * UE2 <= u * NOPS or first_unit[cand[0][0][1]] - u <= MARG + (16 if cand[0][0][0] == "B2" else 0):
                    nxt = cand[0].pop(0)
                    if nxt[0] == "B2":
                        ops_ = dma2_ops(nxt[1])
                        pre_ = lambda o=ops_: (o[0][1](), True)[1]
                        mem_ = ops_[1][1]; half = nxt[1]
                    else:
                        mem_ = lambda n_=nxt: aload2(n_[1], n_[2])
        if not ordA and not ordB and half is None and not xdone and mem_ is None:
            xdone = True
            for mt in range(MT):
                for hh in range(2):
                    def f(mt=mt, hh=hh):
                        a.vmem("buffer_load_dwordx2 %s, v%d, %s, s%d offen offset:%d" % (r2("v", VX[mt] + 2 * hh), V_XI, s4(R_X), sXO, hh * 32), "X")
                    side += [("m", f), None]
                side.append("s_add_u32 s%d, s%d, %d" % (sXO, sXO, 32768 if mt < 3 else -3 * 32768))
        for mt in range(MT):
            mz = mt if u % 2 == 0 else MT - 1 - mt
            af = r4("v", acc(mz, 6 + 2 * p)) if p < 3 else r4("a", aslot(p) + mz * 4)
            c = r4("v", acc2[(mz, t)])
            a("%s %s, %s, %s, %s" % (MF, c, bf, af, "0" if p == 0 else c))
            rd = (lambda mt=mt: bread2(un, mt)) if (mt < 2 and un < NU) else None
            if mt == 0: G.gap(fixed=rd)
            elif mt == 1: G.gap(first=pre_, fixed=rd)
            elif mt == 2:
                if mem_:
                    assert not G.sal
                    G.gap(first=(lambda: a.throttle(THR2)), mem=mem_)
                else: G.gap()
            else:
                stt["issued"] = u
                G.gap(first=(lambda: prewait2(u + 1)) if u + 1 < NU else None)
        if u >= UT and (u - UT) % PL == PL - 1:
            lam = (u - UT) // PL
            if lam < 3:
                new_ = [None] * 5
                for mt in range(MT):
                    new_ += pack(acc2[(mt, 2 * lam)], acc2[(mt, 2 * lam + 1)])
                    def f(mt=mt, lam=lam):
                        a.vmem("buffer_store_dwordx4 %s, v%d, %s, s%d offen offset:%d sc1" % (r4("v", acc2[(mt, 2 * lam)]), V_L16, s4(R_WS), sSX[lam], mt * 1024), ("S", lam))
                    new_.append(("m", f))
                side[:0] = new_
    if cfg.get("verbose"): print("G2 side left", len([x for x in side if x is not None]), file=sys.stderr)
    G.drain()
    assert not ordA and not ordB and xdone
    stampr("g2end")
    flag(2)
    poll_issue("P1")
    stampr("x1")
    for mt in range(MT):
        a.wait(vm=("R", 0, mt))
        for x in addpk([PS(mt, 0), PS(mt, 1)], rq[mt]): a(x)
    a.wait(vm="P1"); spin(2)
    stampr("x2")
    for mt in range(MT): recv(1, mt)
    poll_issue("P2")
    for mt in range(MT):
        for hh in range(2):
            for e2 in range(2):
                c = PS(mt, hh) + 2 * e2; o_ = acc2[(mt, 6 + hh)] + 2 * e2
                a("v_pk_add_f32 v[%d:%d], v[%d:%d], v[%d:%d]" % (c, c + 1, c, c + 1, o_, o_ + 1))
    a.wait(vm="P2"); spin(4)
    stampr("x3")
    for mt in range(MT): recv(2, mt)
    for mt in range(MT):
        for x in addpk([PS(mt, 0), PS(mt, 1)], rq[4 + mt]): a(x)
    stampr("x4")
    for mt in range(MT):
        a.wait(vm=("R", 2, mt))
        for x in addpk([PS(mt, 0), PS(mt, 1)], rq[8 + mt]): a(x)
        c0 = PS(mt, 0)
        if cfg.get("eps"):
            for hh in range(2):
                for e in range(4): a("v_mul_f32 v%d, 0x%x, v%d" % (PS(mt, hh) + e, f2u(1.0 + cfg["eps"] / 10000.0), PS(mt, hh) + e))
        for x in pack(c0, PS(mt, 1)): a(x)
        a("s_nop 1")
        a("v_permlane16_swap_b32 v%d, v%d" % (c0, c0 + 2))
        a("v_permlane16_swap_b32 v%d, v%d" % (c0 + 1, c0 + 3))
        a.vmem("buffer_store_dwordx4 %s, v%d, %s, s%d offen %s" % (r4("v", c0), V_XO, s4(R_OUT), sXO, ["", "sc1", "nt"][cfg.get("f_of", 2)]), "OUT")
        if mt < 3: a("s_add_u32 s%d, s%d, 32768" % (sXO, sXO))
    stampr("x5")
    if ST:
        a("s_waitcnt vmcnt(0)")
        stampr("end")
        a("s_waitcnt lgkmcnt(0)")
        for i in range(8): a("v_mov_b32 v%d, s%d" % (i, STB + 2 * i))
        a("s_lshl_b32 s%d, s2, 2" % t0)
        a("s_add_u32 s%d, s%d, s%d" % (t0, t0, sW))
        a("s_lshl_b32 s%d, s%d, 5" % (t0, t0))
        a("v_mov_b32 v8, 0")
        a("s_nop 4")
        a("buffer_store_dwordx4 v[0:3], v8, %s, s%d offen" % (s4(R_WS), t0))
        a("buffer_store_dwordx4 v[4:7], v8, %s, s%d offen offset:16" % (s4(R_WS), t0))
    a.label("F_end")
    a("s_endpgm")
    kernel_desc(a, name, 256, sgpr=102, accum=256, agpr=256)
    return "; @launch kernel=%s grid=(256,1,1) block=(256,1,1) lds=163840" % name

gen.gen_f = gen_f

if __name__ == "__main__":
    cfg = dict(g1_mt=4)
    out = sys.argv[1]
    kernels = sys.argv[2].split(",")
    for kv in sys.argv[3:]:
        k, v = kv.split("="); cfg[k] = int(v, 0)
    open(out, "w").write(gen.build(cfg, kernels))
```

```python
import sys, math
from asmlib import *
import gen
from gen import *

class SA:
    def __init__(self, start, end):
        self.n = start; self.end = end; self.m = {}
    def new(self, name, cnt=1, align=1):
        self.n = (self.n + align - 1) // align * align
        r = self.n; self.n += cnt
        assert self.n <= self.end, "out of sgprs"
        self.m[name] = r
        return r

def s4(b): return "s[%d:%d]" % (b, b + 3)
MF = "v_mfma_f32_16x16x32_bf16"

def kind_of(op):
    if op is None: return None
    if isinstance(op, tuple): return op[0]
    t = op.lstrip()
    if t.startswith("s_"): return "s"
    if t.startswith("v_"): return "v"
    raise ValueError(op)

class Gaps:
    def __init__(self, a):
        self.a = a
        self.sal = []
        self.side = []
    def run(self, op):
        if isinstance(op, tuple): op[1]()
        else: self.a(op)
    def gap(self, first=None, fixed=None, mem=None):
        used0 = False
        room = 2
        if first is not None: used0 = bool(first())
        if not used0:
            if self.sal:
                x = self.sal.pop(0); self.a(x); used0 = True
                room -= x.count("\n")
            elif self.side and kind_of(self.side[0]) == "s":
                self.run(self.side.pop(0)); used0 = True
        if mem is not None:
            mem(); return
        if fixed is not None:
            fixed(); room -= 1
        if self.side and self.side[0] is None:
            self.side.pop(0)
            skip = True
        else: skip = False
        while room > 0:
            if self.sal and self.sal[0].count("\n") < room:
                x = self.sal.pop(0); self.a(x); room -= 1 + x.count("\n"); continue
            if skip or not self.side or self.side[0] is None: break
            k = kind_of(self.side[0])
            if k in ("m", "x"):
                if room == 2:
                    self.run(self.side.pop(0))
                break
            self.run(self.side.pop(0)); room -= 1
    def drain_sal(self):
        while self.sal: self.a(self.sal.pop(0))
    def drain(self):
        self.drain_sal()
        for op in self.side:
            if op is not None: self.run(op)
        self.side = []

def ln_ops(exact=1):
    o = []
    a = o.append
    pk = lambda op, d, x, y, mod="": a("%s v[%d:%d], v[%d:%d], v[%d:%d]%s" % (op, d, d + 1, x, x + 1, y, y + 1, mod))
    for i in range(16):
        a("v_lshlrev_b32 v%d, 16, v%d" % (24 + 2 * i, 8 + i))
        a("v_and_b32 v%d, 0xffff0000, v%d" % (25 + 2 * i, 8 + i))
        if i == 1: pk("v_pk_add_f32", 56, 24, 26)
        elif i == 3: pk("v_pk_add_f32", 58, 28, 30)
        elif i > 3: pk("v_pk_add_f32", 56 + 2 * (i & 1), 56 + 2 * (i & 1), 24 + 2 * i)
    pk("v_pk_add_f32", 56, 56, 58)
    a("v_add_f32 v56, v56, v57")
    def xlane_sum(r, t):
        a("s_nop 1")
        a("v_add_f32_dpp v%d, v%d, v%d row_ror:8 row_mask:0xf bank_mask:0xf" % (r, r, r))
        for op in ("v_permlane16_swap_b32", "v_permlane32_swap_b32"):
            a("v_mov_b32 v%d, v%d" % (t, r))
            a("s_nop 1")
            a("%s v%d, v%d" % (op, r, t))
            a("v_add_f32 v%d, v%d, v%d" % (r, r, t))
    xlane_sum(56, 57)
    a("v_mul_f32 v56, 0x%x, v56" % f2u(1.0 / 256))
    neg = " op_sel_hi:[1,0] neg_lo:[0,1] neg_hi:[0,1]"
    for i in range(16):
        t = 62 + 2 * (i & 1); ac = 66 + 2 * (i & 1)
        pk("v_pk_add_f32", t, 24 + 2 * i, 56, neg)
        if i < 2: pk("v_pk_mul_f32", ac, t, t)
        else: a("v_pk_fma_f32 v[%d:%d], v[%d:%d], v[%d:%d], v[%d:%d]" % (ac, ac + 1, t, t + 1, t, t + 1, ac, ac + 1))
    pk("v_pk_add_f32", 66, 66, 68)
    a("v_add_f32 v57, v66, v67")
    xlane_sum(57, 58)
    a("ds_write_b64 v7, v[56:57]")
    a("s_waitcnt lgkmcnt(0)")
    a("s_barrier")
    for k in range(4): a("ds_read_b64 v[%d:%d], v60 offset:%d" % (62 + 2 * k, 63 + 2 * k, 64 * k))
    a("s_waitcnt lgkmcnt(0)")
    pk("v_pk_add_f32", 56, 62, 64)
    pk("v_pk_add_f32", 58, 66, 68)
    pk("v_pk_add_f32", 56, 56, 58)
    a("v_mul_f32 v56, 0x3e800000, v56")
    a("v_sub_f32 v59, v62, v56")
    a("v_mul_f32 v58, v59, v59")
    for r in (64, 66, 68):
        a("v_sub_f32 v59, v%d, v56" % r)
        a("v_fmac_f32 v58, v59, v59")
    a("v_fmac_f32 v57, 0x43800000, v58")
    a("v_mul_f32 v57, 0x%x, v57" % f2u(1.0 / 1024))
    a("v_cvt_pk_bf16_f32 v58, v56, v57")
    a("v_lshlrev_b32 v56, 16, v58")
    a("v_and_b32 v57, 0xffff0000, v58")
    a("v_add_f32 v57, 0x%x, v57" % f2u(1e-5))
    a("v_cvt_pk_bf16_f32 v57, v57, v57")
    a("v_and_b32 v57, 0xffff0000, v57")
    a("v_sqrt_f32 v57, v57")
    a("s_nop 0")
    a("v_cvt_pk_bf16_f32 v57, v57, v57")
    a("v_and_b32 v57, 0xffff0000, v57")
    a("v_rcp_f32 v58, v57")
    for i in range(16):
        pk("v_pk_add_f32", 24 + 2 * i, 24 + 2 * i, 56, neg)
        if i > 0:
            j = i - 1
            if exact:
                a("v_cvt_pk_bf16_f32 v%d, v%d, v%d" % (25 + 2 * j, 24 + 2 * j, 25 + 2 * j))
                a("v_lshlrev_b32 v%d, 16, v%d" % (24 + 2 * j, 25 + 2 * j))
                a("v_and_b32 v%d, 0xffff0000, v%d" % (25 + 2 * j, 25 + 2 * j))
            pk("v_pk_mul_f32", 24 + 2 * j, 24 + 2 * j, 58, " op_sel_hi:[1,0]")
            a("v_cvt_pk_bf16_f32 v%d, v%d, v%d" % (8 + j, 24 + 2 * j, 25 + 2 * j))
            if j % 4 == 3: a("STORE%d" % (j // 4))
    if exact:
        a("v_cvt_pk_bf16_f32 v55, v54, v55")
        a("v_lshlrev_b32 v54, 16, v55")
        a("v_and_b32 v55, 0xffff0000, v55")
    pk("v_pk_mul_f32", 54, 54, 58, " op_sel_hi:[1,0]")
    a("v_cvt_pk_bf16_f32 v23, v54, v55")
    a("STORE3")
    return o

def gen_f(a, cfg):
    name = NAME + "_kernel" if cfg.get("single") else "f_kernel"
    FLN = cfg.get("f_ln", 0)
    SPIN = cfg.get("spin", 0x40000)
    ST = cfg.get("stamp")
    MT = 4
    sa = SA(3, 84)
    P_WQ = sa.new("pwq", 2, 2); P_W1 = sa.new("pw1", 2, 2); P_WS = sa.new("pws", 2, 2); P_X = sa.new("px", 2, 2)
    P_W2 = sa.new("pw2", 2, 2); P_WO = sa.new("pwo", 2, 2); P_OUT = sa.new("pout", 2, 2)
    R_WQ = sa.new("rwq", 4, 4); R_W1 = sa.new("rw1", 4, 4); R_W2 = sa.new("rw2", 4, 4); R_WO = sa.new("rwo", 4, 4)
    R_WS = sa.new("rws", 4, 4)
    sW = sa.new("w"); sI = sa.new("i"); sJ = sa.new("j"); sJ1 = sa.new("j1"); sQ = sa.new("q"); sN = sa.new("n")
    sBQ = sa.new("bq"); sBV = sa.new("bv"); sBW = sa.new("bw"); sBL = sa.new("bl"); sLB = sa.new("lb"); sA = sa.new("a")
    sCLS = sa.new("cls"); t0 = sa.new("t0"); t1 = sa.new("t1"); t2 = sa.new("t2"); t3 = sa.new("t3")
    sMK = sa.new("mask", 8, 2)
    sKV = sa.new("kv"); sKV2 = sa.new("kv2"); sKP = sa.new("kp"); sKP2 = sa.new("kp2"); sFK = sa.new("fk"); sFO = sa.new("fo")
    sH = sa.new("h", 4); sSC = sa.new("sc", 2, 2); sO = sSC + 1; sA0 = sa.new("a0"); sB0 = sa.new("b0"); sAE = sa.new("aend"); sBE = sa.new("bend")
    sXO = sa.new("xo"); sSP = sa.new("spin")
    sDL = sMK
    STB = 84
    SETS = {1: ["start", "bar0", "g1end", "attbeg", "attend", "g2beg", "g2end", "end"],
            2: ["start", "g1half", "g1tail", "g1kv", "g1flag0", "g1flag1", "g1chk", "g1end"],
            3: ["start", "attbeg", "att0", "att1", "att2", "att3", "att4", "attend"],
            4: ["start", "att4", "g2h", "g2beg", "g2p4", "g2p12", "g2tail", "g2end"],
            5: ["start", "g2end", "x1", "x2", "x3", "x4", "x5", "end"],
            7: ["g2beg", "g2p3", "g2p6", "g2p10", "g2p14", "g2p18", "g2p22", "g2end"],
            8: ["g2p22", "g2tail", "g2l1", "g2l2", "g2l3", "g2end", "x3", "end"],
            9: ["start", "lnx", "lns", "lnd", "lnp", "g1s1", "g1s4", "g1s8"],
            6: ["start", "bar0", "g1s2", "g1s4", "g1s8", "g1half", "g1s20", "g1tail"]}
    def stampr(nm):
        if ST and nm in SETS[ST]:
            i = SETS[ST].index(nm)
            a("%s s[%d:%d]" % ("s_memtime" if cfg.get("clk") else "s_memrealtime", STB + 2 * i, STB + 2 * i + 1))

    NT = 13; KS = 32
    NS = 5; REG = 7168; STAGE = 4 * REG
    D1 = cfg.get("f_d1", 8)
    RA = cfg.get("f_ra1", 11)
    LA = cfg.get("f_la1", 4)
    DB = cfg.get("f_db1", 3); RB = DB + 2
    S1 = KS - D1
    def slot1(g): return (15 - g) % 5
    KVB = 96 * 1024
    def acc(mt, t): return (t * MT + mt) * 4
    V_L16 = 208; V_QKV = 209; V_W1 = 210; V_LEFT = 211
    V_RD = 212
    V_P0, V_P1, V_P2 = 221, 222, 223
    V_LANE = 224; V_FL0 = 225; V_ONE = 226; V_POLL = 227; V_KVW = 228; V_FG = 229; V_PL = 230
    T = 232
    A_PD = 255
    AR = 0; BR = RA * 16
    assert BR + RB * 4 <= 254

    kernel_begin(a, name)
    a.reset()
    stampr("start")
    a("s_cmp_ge_u32 s2, 256")
    a("s_cbranch_scc1 F_end")
    if cfg.get("idx"): a("s_xor_b32 s2, s2, %d" % cfg["idx"])
    a("s_load_dwordx2 s[%d:%d], s[0:1], 8" % (P_WQ, P_WQ + 1))
    a("s_load_dwordx2 s[%d:%d], s[0:1], 32" % (P_W1, P_W1 + 1))
    a("s_load_dwordx2 s[%d:%d], s[0:1], 64" % (P_WS, P_WS + 1))
    a("s_load_dwordx2 s[%d:%d], s[0:1], 0" % (P_X, P_X + 1))
    a("s_load_dwordx2 s[%d:%d], s[0:1], 40" % (P_W2, P_W2 + 1))
    a("s_load_dwordx2 s[%d:%d], s[0:1], 16" % (P_WO, P_WO + 1))
    a("s_load_dwordx2 s[%d:%d], s[0:1], 48" % (P_OUT, P_OUT + 1))
    if FLN:
        lab = a.newlabel("F_pc")
        a("s_getpc_b64 s[%d:%d]" % (R_WO, R_WO + 1))
        a.label(lab)
        a("s_and_b32 s%d, s%d, 0xffff" % (R_WO + 1, R_WO + 1))
        a("s_mov_b32 s%d, CODE_END - %s" % (R_WO + 2, lab))
        a("s_mov_b32 s%d, 0x00020000" % (R_WO + 3))
        a("s_lshr_b32 s%d, s2, 3" % t0)
        a("s_lshl_b32 s%d, s%d, 7" % (t0, t0))
        a("v_lshlrev_b32 v70, 12, v0")
        a.vmem("buffer_load_dword v76, v70, %s, s%d offen" % (s4(R_WO), t0), "T")
    if FLN: a("s_load_dwordx2 s[100:101], s[0:1], 56")
    L = V_LANE
    a("v_and_b32 v%d, 63, v0" % L)
    a("v_lshrrev_b32 v%d, 6, v0" % (T + 1))
    a("v_lshlrev_b32 v%d, 4, v%d" % (V_L16, L))
    a("v_readfirstlane_b32 s%d, v%d" % (sW, T + 1))
    a("s_and_b32 s%d, s2, 1" % sI)
    a("s_lshl_b32 s%d, s%d, 2" % (sI, sI))
    a("s_bfe_u32 s%d, s2, 0x20003" % t0)
    a("s_add_u32 s%d, s%d, s%d" % (sI, sI, t0))
    a("s_bfe_u32 s%d, s2, 0x20001" % sQ)
    a("s_lshr_b32 s%d, s2, 5" % sN)
    a("s_lshl_b32 s%d, s%d, 3" % (sJ, sQ))
    a("s_add_u32 s%d, s%d, s%d" % (sJ, sJ, sN))
    a("s_and_b32 s%d, s%d, 1" % (sJ1, sN))
    if FLN:
        a("v_and_b32 v3, 7, v%d" % L)
        a("v_lshrrev_b32 v4, 3, v%d" % L)
        a("v_lshlrev_b32 v5, 11, v3")
        a("v_lshl_add_u32 v5, v%d, 9, v5" % (T + 1))
        a("v_lshl_add_u32 v5, v4, 4, v5")
        a("s_lshl_b32 s%d, s%d, 5" % (t3, sI))
        a("s_add_u32 s%d, s%d, s%d" % (t3, t3, sJ))
        a("s_lshl_b32 s%d, s%d, 14" % (t0, t3))
        a("s_waitcnt lgkmcnt(0)")
        srd(a, R_W2, P_X, S * D * 2)
        for i in range(4):
            a.vmem("buffer_load_dwordx4 %s, v5, %s, s%d offen offset:%d" % (r4("v", 8 + 4 * i), s4(R_W2), t0, i * 128), "LX")
        srd(a, R_WS, P_WS, WS_END)
        a("s_lshl_b32 s%d, s%d, 8" % (sSP, sI))
        a("s_add_u32 s%d, s%d, 0x%x" % (sXO, sSP, WS_LF))
        a("v_and_b32 v80, 31, v%d" % L)
        a("v_lshlrev_b32 v80, 2, v80")
        a("v_add_u32 v80, s%d, v80" % sXO)
        a.vmem("buffer_load_dword v81, v80, %s, 0 offen sc1" % s4(R_WS), "SN")
    a("v_lshrrev_b32 v%d, 2, v%d" % (T + 2, L))
    a("v_lshl_add_u32 v%d, v%d, 4, v%d" % (T + 2, T + 1, T + 2))
    a("v_lshrrev_b32 v%d, 4, v%d" % (T + 3, L))
    a("v_and_b32 v%d, 2, v%d" % (T + 3, T + 3))
    a("v_and_b32 v%d, 3, v%d" % (T + 4, L))
    a("v_xor_b32 v%d, v%d, v%d" % (T + 3, T + 3, T + 4))
    a("v_lshlrev_b32 v%d, 4, v%d" % (T + 3, T + 3))
    a("v_mul_u32_u24 v%d, 6144, v%d" % (V_QKV, T + 2))
    a("v_add_u32 v%d, v%d, v%d" % (V_QKV, V_QKV, T + 3))
    a("v_mul_u32_u24 v%d, 7168, v%d" % (V_W1, T + 2))
    a("v_add_u32 v%d, v%d, v%d" % (V_W1, V_W1, T + 3))
    a("v_bfe_u32 v%d, v%d, 3, 1" % (T + 2, L))
    a("v_lshlrev_b32 v%d, 3, v%d" % (T + 2, T + 2))
    a("v_bfe_u32 v%d, v%d, 4, 1" % (T + 3, L))
    a("v_lshl_add_u32 v%d, v%d, 2, v%d" % (T + 2, T + 3, T + 2))
    a("v_bfe_u32 v%d, v%d, 1, 2" % (T + 3, L))
    a("v_add_u32 v%d, v%d, v%d" % (T + 2, T + 2, T + 3))
    a("v_lshl_add_u32 v%d, v%d, 4, v%d" % (T + 2, T + 1, T + 2))
    a("v_mul_u32_u24 v%d, 7168, v%d" % (V_LEFT, T + 2))
    a("v_and_b32 v%d, 1, v%d" % (T + 3, L))
    a("v_lshl_add_u32 v%d, v%d, 4, v%d" % (V_LEFT, T + 3, V_LEFT))
    a("v_lshrrev_b32 v%d, 5, v%d" % (T + 3, L))
    a("v_lshl_add_u32 v%d, v%d, 30, v%d" % (V_LEFT, T + 3, V_LEFT))
    a("s_lshl_b32 s%d, s%d, 6" % (sBQ, sJ))
    a("s_add_u32 s%d, s%d, 4096" % (sBV, sBQ))
    a("s_mul_i32 s%d, s%d, 224" % (sBL, sJ))
    a("s_lshl_b32 s%d, s%d, 5" % (t0, sJ1))
    a("s_add_u32 s%d, s%d, s%d" % (sBW, sBL, t0))
    a("s_xor_b32 s%d, s%d, 1" % (t0, sJ1))
    a("s_mul_i32 s%d, s%d, 192" % (t0, t0))
    a("s_add_u32 s%d, s%d, s%d" % (sBL, sBL, t0))
    a("s_mul_i32 s%d, s%d, %d" % (sLB, sW, REG))
    a("s_lshl_b32 s%d, s%d, 2" % (sA, sI))
    a("s_add_u32 s%d, s%d, s%d" % (sA, sA, sW))
    a("s_lshl_b32 s%d, s%d, 17" % (sA, sA))
    a("s_add_u32 s%d, s%d, 0x%x" % (sA, sA, WS_XN))
    ROT = cfg.get("f_rot", 1)
    a("s_add_u32 s%d, s%d, s%d" % (t1, sI, sN))
    a("s_and_b32 s%d, s%d, %d" % (t1, t1, 3 if ROT else 0))
    for k in range(3):
        a("s_cmp_eq_u32 s%d, %d" % (t1, 3 - k))
        a("s_cselect_b32 s%d, -3, 1" % (sDL + k))
    a("s_cmp_eq_u32 s%d, 0" % t1)
    a("s_cselect_b32 s%d, 1, 5" % (sDL + 3))
    a("s_mul_i32 s%d, s%d, %d" % (t0, t1, 64 * 6144))
    a("s_add_u32 s%d, s%d, s%d" % (sBQ, sBQ, t0))
    a("s_add_u32 s%d, s%d, s%d" % (sBV, sBV, t0))
    a("s_mul_i32 s%d, s%d, %d" % (t0, t1, 64 * 7168))
    a("s_add_u32 s%d, s%d, s%d" % (sBW, sBW, t0))
    a("s_add_u32 s%d, s%d, s%d" % (sBL, sBL, t0))
    a("s_lshl_b32 s%d, s%d, 13" % (t0, t1))
    a("s_add_u32 s%d, s%d, s%d" % (sA, sA, t0))
    for k in range(4):
        a("s_lshl_b32 s%d, s%d, 13" % (sDL + 4 + k, sDL + k))
        a("s_sub_u32 s%d, s%d, 4096" % (sDL + 4 + k, sDL + 4 + k))
    a("s_waitcnt lgkmcnt(0)")
    srd(a, R_WQ, P_WQ, D * 3 * D * 2)
    srd(a, R_W1, P_W1, D * DFF * 2)
    srd(a, R_WS, P_WS, WS_END)

    G = Gaps(a)
    PAIRPOS = [0, 2, 1, 3, 4, 5]
    def dma1(g, k, part):
        p, vreg, sb, so, imm = [(0, V_QKV, R_WQ, sBQ, 0), (2, V_QKV, R_WQ, sBQ, 2048), (1, V_QKV, R_WQ, sBV, 0),
                                (3, V_W1, R_W1, sBW, 0), (4, V_W1, R_W1, sBW, 64), (5, V_W1, R_W1, sBW, 128), (6, V_LEFT, R_W1, sBL, 0)][k]
        if part == 0:
            a("s_add_u32 m0, s%d, %d" % (sLB, slot1(g) * STAGE + p * 1024 - imm))
        else:
            a.vmem("buffer_load_dwordx4 v%d, %s, s%d offen offset:%d lds" % (vreg, s4(sb), so, imm), ("B", g))
            if k == 0: G.sal.append("s_mul_i32 s%d, s%d, %d" % (t2, sDL + (g & 3), 64 * 6144))
            if k == 1: G.sal.append("s_add_u32 s%d, s%d, s%d" % (sBQ, sBQ, t2))
            if k == 2: G.sal.append("s_add_u32 s%d, s%d, s%d" % (sBV, sBV, t2))
            if k == 3: G.sal.append("s_mul_i32 s%d, s%d, %d" % (t2, sDL + (g & 3), 64 * 7168))
            if k == 5: G.sal.append("s_add_u32 s%d, s%d, s%d" % (sBW, sBW, t2))
            if k == 6: G.sal.append("s_add_u32 s%d, s%d, s%d" % (sBL, sBL, t2))
    def aload1(s, mt):
        a.vmem("buffer_load_dwordx4 %s, v%d, %s, s%d offen offset:%d%s" % (r4("a", AR + (s % RA) * 16 + mt * 4), V_L16, s4(R_WS), sA, mt * 1024, " sc1" if FLN else ""), ("A", s))
        if mt == MT - 1:
            if s % 2 == 0: G.sal.append("s_add_u32 s%d, s%d, 4096" % (sA, sA))
            else: G.sal.append("s_add_u32 s%d, s%d, s%d" % (sA, sA, sDL + 4 + ((s // 2) & 3)))
    order = []
    for g in range(16):
        for k in range(7): order.append(("B", g, k))
        for s in (2 * g, 2 * g + 1):
            for mt in range(MT): order.append(("A", s, mt))
    def issue1(op):
        G.drain_sal()
        if op[0] == "A": aload1(op[1], op[2])
        else:
            dma1(op[1], op[2], 0); a("s_nop 0"); dma1(op[1], op[2], 1)
        G.drain_sal()
    if FLN:
        nb = cfg.get("f_lnb", 1)
        bops = [o for o in order if o[0] == "B" and o[1] < nb]
        for o in bops: order.remove(o)
        for _ in range(cfg.get("f_lnb0", 2)): issue1(bops.pop(0))
        a("s_lshl_b32 s%d, s2, 9" % t0)
        a("s_add_u32 s%d, s%d, 0x%x" % (t0, t0, WS_FL))
        a("v_lshlrev_b32 v70, 2, v0")
        a("v_lshrrev_b32 v71, 7, v0")
        a("v_lshl_add_u32 v70, v71, 30, v70")
        a("v_mov_b32 v71, 0")
        a.vmem("buffer_store_dword v71, v70, %s, s%d offen sc1" % (s4(R_WS), t0), "Z")
        a("s_lshr_b32 s%d, s%d, 3" % (t0, t3))
        a("s_lshl_b32 s%d, s%d, 17" % (t0, t0))
        a("s_bfe_u32 s%d, s%d, 0x20001" % (t1, t3))
        a("s_lshl_b32 s%d, s%d, 10" % (t1, t1))
        a("s_add_u32 s%d, s%d, s%d" % (t0, t0, t1))
        a("s_and_b32 s%d, s%d, 1" % (t1, t3))
        a("s_lshl_b32 s%d, s%d, 7" % (t1, t1))
        a("s_add_u32 s%d, s%d, s%d" % (t0, t0, t1))
        a("s_add_u32 s%d, s%d, 0x%x" % (t3, t0, WS_XN))
        a("v_lshrrev_b32 v6, 2, v4")
        a("v_lshl_add_u32 v6, v%d, 3, v6" % (T + 1))
        a("v_lshlrev_b32 v6, 12, v6")
        a("v_and_b32 v7, 3, v4")
        a("v_lshl_add_u32 v6, v7, 8, v6")
        a("v_lshl_add_u32 v6, v3, 4, v6")
        a("v_lshl_add_u32 v7, v%d, 3, v3" % (T + 1))
        a("v_lshlrev_b32 v7, 3, v7")
        a("v_add_u32 v7, %d, v7" % (5 * STAGE))
        a("v_lshlrev_b32 v60, 3, v3")
        a("v_add_u32 v60, %d, v60" % (5 * STAGE))
        a.wait(vm="LX")
        stampr("lnx")
        lo_ = ln_ops(cfg.get("f_lnex", 1))
        gap_ = cfg.get("f_lngap", 20)
        for k, x in enumerate(lo_):
            if x.startswith("STORE"):
                i = int(x[5:])
                a.vmem("buffer_store_dwordx4 %s, v6, %s, s%d offen sc1" % (r4("v", 8 + 4 * i), s4(R_WS), t3), "XS")
                if i < 3: a("s_add_u32 s%d, s%d, %d" % (t3, t3, 8192))
            else: a(x)
            if k % gap_ == gap_ - 1 and bops and k < cfg.get("f_lnk", 110): issue1(bops.pop(0))
        stampr("lns")
    else:
        for _ in range(cfg.get("f_pro1", 15)): issue1(order.pop(0))

    srd(a, R_W2, P_W2, DFF * D * 2)
    srd(a, R_WO, P_WO, D * D * 2)
    a("s_bfe_u32 s%d, s2, 0x30003" % sCLS)
    a("s_lshr_b32 s%d, s2, 6" % t1)
    a("s_lshl_b32 s%d, s%d, 2" % (t1, t1))
    a("s_add_u32 s%d, s%d, s%d" % (t1, t1, sW))
    a("v_bfrev_b32 v%d, 1" % (T + 6))
    a("v_lshrrev_b32 v%d, 5, v%d" % (T + 2, L))
    a("s_lshl_b32 s%d, s%d, 1" % (t0, t1))
    a("v_add_u32 v%d, s%d, v%d" % (T + 2, t0, T + 2))
    a("v_and_b32 v%d, 31, v%d" % (T + 3, L))
    a("v_mul_u32_u24 v%d, 7168, v%d" % (V_P1, T + 2))
    a("v_lshl_add_u32 v%d, v%d, 7, v%d" % (V_P1, T + 3, V_P1))
    a("s_mul_i32 s%d, s%d, 1792" % (t0, sQ))
    a("v_add_u32 v%d, s%d, v%d" % (V_P1, t0, V_P1))
    a("v_mul_u32_u24 v%d, 6144, v%d" % (V_P0, T + 2))
    a("v_lshrrev_b32 v%d, 2, v%d" % (T + 4, T + 3))
    a("v_lshl_add_u32 v%d, v%d, 11, v%d" % (V_P0, T + 4, V_P0))
    a("v_and_b32 v%d, 3, v%d" % (T + 4, T + 3))
    a("v_lshl_add_u32 v%d, v%d, 7, v%d" % (V_P0, T + 4, V_P0))
    a("s_lshl_b32 s%d, s%d, 9" % (t0, sQ))
    a("v_add_u32 v%d, s%d, v%d" % (V_P0, t0, V_P0))
    a("v_cmp_le_u32 vcc, 12, v%d" % (T + 3))
    a("s_and_b32 s%d, s2, 1" % t0)
    a("s_lshl_b32 s%d, s%d, 4" % (t0, t0))
    a("v_cndmask_b32 v%d, v%d, v%d, vcc" % (V_P0, V_P0, T + 6))
    a("v_cmp_le_u32 vcc, 14, v%d" % (T + 3))
    a("s_add_u32 s%d, s%d, s%d" % (t0, t0, t1))
    a("s_lshl_b32 s%d, s%d, 17" % (t0, t0))
    a("v_cndmask_b32 v%d, v%d, v%d, vcc" % (V_P1, V_P1, T + 6))
    a("s_add_u32 s%d, s%d, 0x%x" % (t0, t0, WS_XN))
    a("v_lshlrev_b32 v%d, 7, v%d" % (V_P2, L))
    a("v_add_u32 v%d, s%d, v%d" % (V_P2, t0, V_P2))
    a("v_cmp_le_u32 vcc, 32, v%d" % L)
    a("s_lshl_b32 s%d, s%d, 12" % (t0, sCLS))
    a("s_nop 0")
    a("v_cndmask_b32 v%d, v%d, v%d, vcc" % (V_P2, V_P2, T + 6))
    PFM = cfg.get("f_pf", 0)
    PF0 = cfg.get("f_pf0", 8)
    if PFM & 2:
        a("buffer_load_dword a%d, v%d, %s, s%d offen" % (A_PD, V_P2, s4(R_WS), t0))
    def touch(n):
        lab = a.newlabel("F_pf")
        a("s_cmp_lg_u32 s%d, %d" % (sCLS, n & 7))
        a("s_cbranch_scc1 %s" % lab)
        if PFM & 1:
            a("s_mov_b32 s%d, %d" % (t0, n * 32 * 6144))
            a("s_mov_b32 s%d, %d" % (t1, n * 32 * 7168))
            a("buffer_load_dword a%d, v%d, %s, s%d offen" % (A_PD, V_P0, s4(R_WQ), t0))
            a("buffer_load_dword a%d, v%d, %s, s%d offen" % (A_PD - 1, V_P1, s4(R_W1), t1))
        if PFM & 2:
            a("s_mov_b32 s%d, %d" % (t0, n * 4096))
            a("buffer_load_dword a%d, v%d, %s, s%d offen" % (A_PD, V_P2, s4(R_WS), t0))
        a.label(lab)
    if PFM & 4:
        a("s_and_b32 s%d, s2, 1" % t0)
        a("v_lshrrev_b32 v%d, 5, v%d" % (T + 2, L))
        a("v_cmp_ne_u32 vcc, s%d, v%d" % (t0, T + 2))
        a("s_nop 1")
        a("v_cndmask_b32 v%d, v%d, v%d, vcc" % (V_P0, V_P0, T + 6))
        a("v_cndmask_b32 v%d, v%d, v%d, vcc" % (V_P1, V_P1, T + 6))
    PW = cfg.get("f_pw", 2); PW0 = cfg.get("f_pw0", 12)
    V_PW = 231
    a("v_lshlrev_b32 v%d, 7, v%d" % (V_PW, L))
    a("v_cmp_le_u32 vcc, 56, v%d" % L)
    a("s_nop 1")
    a("v_cndmask_b32 v%d, v%d, v%d, vcc" % (V_PW, V_PW, T + 6))
    def touchw(cls):
        lab = a.newlabel("F_pw")
        if cls is not None:
            a("s_cmp_lg_u32 s%d, %d" % (sCLS, cls))
            a("s_cbranch_scc1 %s" % lab)
        a("s_lshl_b32 s%d, s2, 2" % t0)
        a("s_add_u32 s%d, s%d, s%d" % (t0, t0, sW))
        a("s_mul_i32 s%d, s%d, 7168" % (t1, t0))
        a("buffer_load_dword a%d, v%d, %s, s%d offen" % (A_PD, V_PW, s4(R_W2), t1))
        a("s_lshl_b32 s%d, s%d, 11" % (t1, t0))
        a("s_mov_b64 exec, 0xffff")
        a("buffer_load_dword a%d, v%d, %s, s%d offen" % (A_PD - 1, V_PW, s4(R_WO), t1))
        a("s_mov_b64 exec, -1")
        a.label(lab)
    def touchx(k):
        a("s_lshr_b32 s%d, s2, 3" % t0)
        a("s_lshl_b32 s%d, s%d, 2" % (t0, t0))
        a("s_add_u32 s%d, s%d, s%d" % (t0, t0, sW))
        a("s_lshl_b32 s%d, s%d, 7" % (t1, sQ))
        a("s_add_u32 s%d, s%d, s%d" % (t0, t0, t1))
        if k < 2:
            a("s_mul_i32 s%d, s%d, 14336" % (t1, t0))
            if k: a("s_add_u32 s%d, s%d, 7168" % (t1, t1))
            a("buffer_load_dword a%d, v%d, %s, s%d offen" % (A_PD - k, V_PW, s4(R_W2), t1))
        else:
            a("s_lshl_b32 s%d, s%d, 12" % (t1, t0))
            a("s_mov_b32 exec_hi, 0")
            a("buffer_load_dword a%d, v%d, %s, s%d offen" % (A_PD, V_PW, s4(R_WO), t1))
            a("s_mov_b32 exec_hi, -1")
    pfq = list(range(PF0, KS)) if PFM else []
    PFA = cfg.get("f_pfa", 30)
    a("v_lshrrev_b32 v%d, 5, v%d" % (T + 2, L))
    a("v_mul_u32_u24 v%d, %d, v%d" % (T + 2, REG, T + 2))
    a("v_and_b32 v%d, 3, v%d" % (T + 3, L))
    a("v_lshl_add_u32 v%d, v%d, 3, v%d" % (T + 2, T + 3, T + 2))
    a("v_bfe_u32 v%d, v%d, 2, 2" % (T + 3, L))
    a("v_bfe_u32 v%d, v%d, 4, 1" % (T + 4, L))
    a("v_lshl_add_u32 v%d, v%d, 6, v%d" % (V_RD, T + 3, T + 2))
    a("v_lshl_add_u32 v%d, v%d, 9, v%d" % (V_RD, T + 4, V_RD))
    a("v_lshl_add_u32 v%d, v%d, 5, v%d" % (V_RD, T + 4, V_RD))
    a("v_xor_b32 v%d, 32, v%d" % (V_RD + 1, V_RD))
    a("v_lshl_add_u32 v%d, v%d, 5, v%d" % (V_RD + 2, T + 3, T + 2))
    a("v_lshl_add_u32 v%d, v%d, 7, v%d" % (V_RD + 2, T + 4, V_RD + 2))
    for st_ in (1, 2):
        for x in range(3):
            a("v_add_u32 v%d, %d, v%d" % (V_RD + 3 * st_ + x, st_ * 2 * STAGE, V_RD + x))
    a("s_lshl_b32 s%d, s%d, 7" % (sKV, sJ))
    a("s_lshl_b32 s%d, s%d, 4" % (t0, sI))
    a("s_add_u32 s%d, s%d, s%d" % (sKV, sKV, t0))
    a("s_lshl_b32 s%d, s%d, 2" % (t0, sW))
    a("s_add_u32 s%d, s%d, s%d" % (sKV, sKV, t0))
    a("s_lshl_b32 s%d, s%d, 10" % (sKV, sKV))
    a("s_add_u32 s%d, s%d, 0x%x" % (sKV2, sKV, WS_V))
    a("s_add_u32 s%d, s%d, 0x%x" % (sKV, sKV, WS_K))
    a("s_sub_u32 s%d, s%d, 16384" % (sKP, sKV))
    a("s_sub_u32 s%d, s%d, 16384" % (sKP2, sKV2))
    a("s_cmp_eq_u32 s%d, 0" % sI)
    a("s_cselect_b32 s%d, 0x40000000, s%d" % (sKP, sKP))
    a("s_cselect_b32 s%d, 0x40000000, s%d" % (sKP2, sKP2))
    a("s_lshl_b32 s%d, s2, 2" % sFO)
    a("s_add_u32 s%d, s%d, s%d" % (sFO, sFO, sW))
    a("s_lshl_b32 s%d, s%d, 7" % (sFO, sFO))
    a("s_add_u32 s%d, s%d, 0x%x" % (sFO, sFO, WS_FL))
    a("s_add_u32 s%d, s%d, 1" % (t0, sI))
    a("s_and_b32 s%d, s%d, 3" % (t1, t0))
    a("s_lshl_b32 s%d, s%d, 3" % (t1, t1))
    a("s_lshr_b32 s%d, s%d, 2" % (t0, t0))
    a("s_or_b32 s%d, s%d, s%d" % (t1, t1, t0))
    a("s_and_b32 s%d, s2, 0xe6" % t0)
    a("s_or_b32 s%d, s%d, s%d" % (t1, t1, t0))
    a("s_lshl_b32 s%d, s%d, 2" % (t1, t1))
    a("s_add_u32 s%d, s%d, s%d" % (t1, t1, sW))
    a("s_lshl_b32 s%d, s%d, 7" % (t1, t1))
    a("s_add_u32 s%d, s%d, 0x%x" % (sFK, t1, WS_FL + 12))
    a("s_cmp_eq_u32 s%d, 7" % sI)
    a("s_cselect_b32 s%d, 0x40000000, s%d" % (sFK, sFK))
    a("v_cmp_ne_u32 vcc, 0, v%d" % L)
    a("v_mov_b32 v%d, 1" % V_ONE)
    a("v_and_b32 v%d, 31, v%d" % (V_PL, L))
    a("v_cndmask_b32 v%d, 0, v%d, vcc" % (V_FL0, T + 6))
    a("v_lshlrev_b32 v%d, 2, v%d" % (V_PL, V_PL))
    a("s_and_b32 s%d, s2, 31" % t0)
    a("s_lshl_b32 s%d, s%d, 2" % (t0, t0))
    a("s_add_u32 s%d, s%d, s%d" % (t0, t0, sW))
    a("s_lshl_b32 s%d, s%d, 7" % (t0, t0))
    a("s_lshl_b32 s%d, s%d, 2" % (t1, sN))
    a("s_add_u32 s%d, s%d, s%d" % (t0, t0, t1))
    a("s_add_u32 s%d, s%d, 0x%x" % (t0, t0, WS_FL))
    a("v_lshlrev_b32 v%d, 14, v%d" % (V_FG, L))
    a("v_add_u32 v%d, s%d, v%d" % (V_FG, t0, V_FG))
    a("v_cmp_le_u32 vcc, 8, v%d" % L)
    a("s_lshl_b32 s%d, s%d, 12" % (t0, sW))
    a("s_add_u32 s%d, s%d, %d" % (t0, t0, KVB))
    a("v_cndmask_b32 v%d, v%d, v%d, vcc" % (V_FG, V_FG, T + 6))
    a("v_add_u32 v%d, s%d, v%d" % (V_KVW, t0, V_L16))
    a("s_lshl_b32 s%d, s%d, 2" % (t0, sI))
    a("s_add_u32 s%d, s%d, s%d" % (t0, t0, sW))
    a("s_lshl_b32 s%d, s%d, 17" % (sXO, t0))
    a("s_mul_i32 s%d, s%d, 144" % (t0, t0))
    a("s_mul_i32 s%d, s%d, 36" % (t1, sQ))
    a("s_add_u32 s%d, s%d, s%d" % (t0, t0, t1))
    a("s_lshl_b32 s%d, s%d, 12" % (t0, t0))
    a("s_add_u32 s%d, s%d, 0x%x" % (t0, t0, WS_A2))
    a("s_add_u32 s%d, s%d, %d" % (sAE, t0, 28 * 4096))
    a("s_lshl_b32 s%d, s%d, 12" % (t1, sN))
    a("s_add_u32 s%d, s%d, s%d" % (sO, sAE, t1))
    a("s_mul_i32 s%d, s%d, 7" % (t1, sN))
    a("s_add_u32 s%d, s%d, s%d" % (t1, t1, sJ1))
    a("s_lshl_b32 s%d, s%d, 11" % (t1, t1))
    a("s_add_u32 s%d, s%d, s%d" % (sH, t0, t1))
    a("s_add_u32 s%d, s%d, 4096" % (sH + 1, sH))
    a("s_add_u32 s%d, s%d, 8192" % (sH + 2, sH))
    a("s_mul_i32 s%d, s%d, %d" % (sH + 3, sJ1, -4096 + 8 - 3 * 4096))
    a("s_add_u32 s%d, s%d, %d" % (sH + 3, sH + 3, 3 * 4096))
    a("s_add_u32 s%d, s%d, s%d" % (sH + 3, sH + 3, sH))
    a("s_lshl_b32 s%d, s%d, 8" % (t0, sN))
    a("s_add_u32 s%d, s%d, s%d" % (sXO, sXO, t0))
    a("s_lshl_b32 s%d, s%d, 6" % (t0, sQ))
    a("s_add_u32 s%d, s%d, s%d" % (sXO, sXO, t0))
    a("s_mov_b32 s%d, 0x%x" % (sSC, f2u(QSCALE)))
    def spin(mask, skip_if_i0=False):
        l0 = a.newlabel("F_sp"); l1 = a.newlabel("F_ok")
        if skip_if_i0:
            a("s_cmp_eq_u32 s%d, 0" % sI)
            a("s_cbranch_scc1 %s" % l1)
        a("s_mov_b32 s%d, 0x%x" % (sSP, SPIN))
        a.label(l0)
        a("v_cmp_ne_u32 vcc, 0, v%d" % V_POLL)
        a("s_and_b32 s%d, vcc_lo, 0x%x" % (t0, mask))
        a("s_cmp_eq_u32 s%d, 0x%x" % (t0, mask))
        a("s_cbranch_scc1 %s" % l1)
        a("buffer_load_dword v%d, v%d, %s, s%d offen sc1" % (V_POLL, V_PL, s4(R_WS), sFO))
        a("s_sub_u32 s%d, s%d, 1" % (sSP, sSP))
        a("s_waitcnt vmcnt(0)")
        a("s_cbranch_scc0 %s" % l0)
        a.label(l1)
    def poll_issue(tag):
        a.vmem("buffer_load_dword v%d, v%d, %s, s%d offen sc1" % (V_POLL, V_PL, s4(R_WS), sFO), tag)

    if FLN:
        while bops: issue1(bops.pop(0))
        if PW & 8: touchw(None)
        nb2 = cfg.get("f_lnb2", 3)
        b2 = [o for o in order if o[0] == "B" and o[1] < nb + nb2]
        for o in b2: order.remove(o)
        if cfg.get("f_lnb2e", 0):
            while b2: issue1(b2.pop(0))
        if PW & 8: a.vm += ["T", "T"]
        a.wait(vm="XS")
        stampr("lnd")
        a("s_barrier")
        lab = a.newlabel("F_ln"); l2 = a.newlabel("F_lp"); l3 = a.newlabel("F_lq"); l4 = a.newlabel("F_la")
        a("s_lshl_b32 s%d, s%d, 5" % (t0, sI))
        a("v_mov_b32 v1, s%d" % t0)
        a("s_cmp_lg_u32 s%d, 0" % sW)
        a("s_cbranch_scc1 %s" % lab)
        a("v_add_u32 v82, 1, v81")
        a("s_lshl_b64 exec, 1, s%d" % sJ)
        a("buffer_store_dword v82, v80, %s, 0 offen sc1" % s4(R_WS))
        a("s_mov_b64 exec, -1")
        a.label(lab)
        while b2: issue1(b2.pop(0))
        if PW & 16: touchw(None)
        a("s_cmp_lg_u32 s%d, 1" % sW)
        a("s_cbranch_scc1 %s" % l4)
        a("s_mov_b64 exec, 1")
        a("global_atomic_add v1, v%d, s[100:101] sc1" % V_ONE)
        a("s_mov_b64 exec, -1")
        a.label(l4)
        PALL = cfg.get("f_pall", 0)
        if not PALL:
            a("s_cmp_lg_u32 s%d, 0" % sW)
            a("s_cbranch_scc1 %s" % l3)
        else:
            a("s_lshl_b32 s%d, s%d, 3" % (t1, sW))
            a("s_lshl_b32 s%d, 0xff, s%d" % (t1, t1))
        a("s_mov_b32 s%d, 0x%x" % (sSP, SPIN))
        a.label(l2)
        a("buffer_load_dword v82, v80, %s, 0 offen sc1" % s4(R_WS))
        a("s_waitcnt vmcnt(0)")
        a("v_cmp_ne_u32 vcc, v81, v82")
        if PALL:
            a("s_and_b32 s%d, vcc_lo, s%d" % (t0, t1))
            a("s_cmp_eq_u32 s%d, s%d" % (t0, t1))
        else: a("s_cmp_eq_u32 vcc_lo, -1")
        a("s_cbranch_scc1 %s" % l3)
        a("s_sub_u32 s%d, s%d, 1" % (sSP, sSP))
        a("s_cbranch_scc1 %s" % l3)
        a("s_and_b32 s%d, s%d, 7" % (t0, sSP))
        a("s_cbranch_scc1 %s" % l2)
        a("global_load_dword v2, v1, s[100:101] sc1")
        a("s_waitcnt vmcnt(0)")
        a("v_readfirstlane_b32 s%d, v2" % t0)
        a("s_cmp_lt_u32 s%d, 32" % t0)
        a("s_cbranch_scc1 %s" % l2)
        a.label(l3)
        if not PALL: a("s_barrier")
        stampr("lnp")
        for _ in range(8): issue1(order.pop(0))
        order[:0] = bops
    units = [(s, t) for s in range(S1) for t in range(NT)]
    units += [(s, t) for s in range(S1, KS) for t in (2, 3, 4, 5)]
    UKV = len(units)
    units += [(s, t) for s in range(S1, KS) for t in (6, 7, 8, 9)]
    UH01 = len(units)
    units += [(s, t) for s in range(S1, KS) for t in (10, 11, 12, 0, 1)]
    NU = len(units)
    last_unit_of_stage = {}
    last_unit_of_step = {}
    for u, (s, t) in enumerate(units):
        last_unit_of_stage[s // 2] = u; last_unit_of_step[s] = u
    stt = dict(ready=-1, free=set(), waited=-1, issued=-1)
    def barrier():
        a("s_barrier")
        for g, lu in last_unit_of_stage.items():
            if lu <= stt["waited"]: stt["free"].add(g)
    def can1(op):
        if op[0] == "B": return op[1] < NS or (op[1] - NS) in stt["free"]
        return op[1] < RA or last_unit_of_step[op[1] - RA] <= stt["issued"]
    def flush1(tag):
        while any(o[:2] == tag for o in order):
            op = order.pop(0)
            assert can1(op), (op, stt)
            if cfg.get("verbose"): print("late flush", op, file=sys.stderr)
            issue1(op)
    def bread1(u, j2):
        s, t = units[u]
        slot = slot1(s // 2); st_ = slot // 2
        off = (slot % 2) * STAGE + (s % 2) * 2 * REG + j2 * 256
        if t < 12: off += PAIRPOS[t // 2] * 1024; vr = V_RD + 3 * st_ + (t % 2)
        else: off += 6144; vr = V_RD + 3 * st_ + 2
        a.lds("ds_read_b64_tr_b16 %s, v%d offset:%d" % (r2("a", BR + (u % RB) * 4 + j2 * 2), vr, off), ("b", u))
    def need1(u):
        g = units[u][0] // 2
        if g > stt["ready"]:
            flush1(("B", g)); a.wait(vm=("B", g)); barrier(); stt["ready"] = g
    def pack(c0, c1, relu=False):
        ops = []
        for hh, c in enumerate((c0, c1)):
            if c is None: continue
            for e2 in range(2):
                ops.append("v_cvt_pk_bf16_f32 v%d, v%d, v%d" % (c0 + 2 * hh + e2, c + 2 * e2, c + 2 * e2 + 1))
            if relu:
                for e2 in range(2):
                    ops.append("v_pk_max_i16 v%d, v%d, 0" % (c0 + 2 * hh + e2, c0 + 2 * hh + e2))
        return ops
    HF = ["sc1", "", "nt", "sc0"][cfg.get("f_hf", 0)]
    def hstore(p, mt):
        if p < 3: a.vmem("buffer_store_dwordx4 %s, v%d, %s, s%d offen offset:%d %s" % (r4("v", acc(mt, 6 + 2 * p)), V_L16, s4(R_WS), sH + p, mt * 1024, HF), "H")
        else: a.vmem("buffer_store_dwordx2 %s, v%d, %s, s%d offen offset:%d %s" % (r2("v", acc(mt, 12)), V_L16, s4(R_WS), sH + 3, mt * 1024, HF), "H")
    need1(0)
    stampr("bar0")
    for u in range(DB):
        bread1(u, 0); bread1(u, 1)
    kvq = [(acc(mt, 2), acc(mt, 3), sKV, mt * 1024, 16384 + mt * 1024) for mt in range(MT)] + \
          [(acc(2 * b, 4 + dt), acc(2 * b + 1, 4 + dt), sKV2, (2 * b + dt) * 1024, 49152 + (2 * b + dt) * 1024) for b in range(2) for dt in range(2)]
    NREST = NU - UKV
    UFLAG = UKV + cfg.get("f_uf", 28)
    UPOLL = UFLAG + cfg.get("f_up", 14)
    UCHK = min(UPOLL + cfg.get("f_uc", 8), NU - 1)
    UPW = UCHK + cfg.get("f_uw", 14)
    V2_DMA = 209; V_XO = 211; V2_RD = 232; V2_B = 231
    bias = [232, 236, 240, 244]; VONES = 248; VM = 252
    sB2 = sBQ; sBO = sBV
    class Rec:
        def __init__(self): self.l = []
        def __call__(self, x): self.l.append(x)
    su = Rec(); TT = VM
    su("v_lshrrev_b32 v%d, 4, v%d" % (TT, L))
    su("v_lshlrev_b32 v%d, 11, v%d" % (V2_DMA, TT))
    su("v_lshlrev_b32 v%d, 1, v%d" % (TT, TT))
    su("v_and_b32 v%d, 15, v%d" % (TT + 1, L))
    su("v_xor_b32 v%d, v%d, v%d" % (TT, TT, TT + 1))
    su("v_lshl_add_u32 v%d, v%d, 4, v%d" % (V2_DMA, TT, V2_DMA))
    su("v_xor_b32 v%d, 128, v%d" % (V2_DMA + 1, V2_DMA))
    su("v_add_u32 v%d, %d, v%d" % (V2_DMA + 1, 8192 - 1024, V2_DMA + 1))
    su("v_lshrrev_b32 v%d, 4, v%d" % (TT, L))
    su("v_lshlrev_b32 v%d, 2, v%d" % (TT, TT))
    for e in range(4):
        su("v_add_u32 v%d, %d, v%d" % (TT + 2, e, TT))
        su("v_cmp_le_u32 s[%d:%d], v%d, v%d" % (sMK + 2 * e, sMK + 2 * e + 1, TT + 2, TT + 1))
    su("s_lshl_b32 s%d, s%d, 14" % (t2, sW))
    su("s_lshl_b32 s%d, s%d, 8" % (t1, sN))
    su("s_add_u32 s%d, s%d, s%d" % (t2, t2, t1))
    su("s_lshl_b32 s%d, s%d, 19" % (sBO, sQ))
    su("s_add_u32 s%d, s%d, s%d" % (sBO, sBO, t2))
    su("s_mul_i32 s%d, s%d, %d" % (sB0, sQ, 896 * 2048))
    su("s_add_u32 s%d, s%d, s%d" % (sB0, sB0, t2))
    su("s_add_u32 s%d, s%d, %d" % (sBE, sB0, 896 * 2048))
    su("s_mul_i32 s%d, s%d, 7" % (t1, sN))
    su("s_add_u32 s%d, s%d, s%d" % (t1, t1, sJ1))
    su("s_lshl_b32 s%d, s%d, 15" % (t1, t1))
    su("s_add_u32 s%d, s%d, s%d" % (sB2, sB0, t1))
    su("s_lshl_b32 s%d, s%d, 11" % (sLB, sW))
    LIN = cfg.get("f_lin", 1)
    if LIN:
        su("s_sub_u32 s%d, s%d, %d" % (sA, sAE, 28 * 4096))
        su("s_mov_b32 s%d, s%d" % (sAE, sH))
        su("s_add_u32 s%d, s%d, %d" % (sA0, sH, 3 * 4096))
        su("s_mov_b32 s%d, s%d" % (sBW, sB0))
        su("s_mov_b32 s%d, s%d" % (sBE, sB2))
        su("s_add_u32 s%d, s%d, %d" % (sB0, sB2, 3 * 65536))
    else:
        su("s_add_u32 s%d, s%d, %d" % (sA, sH, 3 * 4096))
        su("s_sub_u32 s%d, s%d, %d" % (sA0, sAE, 28 * 4096))
    su("s_cmp_eq_u32 s%d, s%d\ns_cselect_b32 s%d, s%d, s%d" % (sA, sAE, sA, sA0, sA))
    su("s_lshl_b32 s%d, s%d, 2" % (t1, sI))
    su("s_add_u32 s%d, s%d, s%d" % (t1, t1, sW))
    for gq in range(4):
        su("s_cmp_lt_u32 s%d, %d\ns_cselect_b32 s%d, 0x%x, 0" % (t1, 4 - gq, t2, f2u(-1e30)))
        for e in range(4): su("v_mov_b32 v%d, s%d" % (bias[gq] + e, t2))
    for e in range(4): su("v_mov_b32 v%d, 0x3f803f80" % (VONES + e))
    su("v_lshrrev_b32 v%d, 2, v%d" % (TT, L))
    su("v_and_b32 v%d, 7, v%d" % (TT + 2, TT))
    su("v_lshlrev_b32 v%d, 8, v%d" % (TT, TT))
    su("v_and_b32 v%d, 3, v%d" % (TT + 1, L))
    su("v_lshl_add_u32 v%d, v%d, 3, v%d" % (TT, TT + 1, TT))
    su("v_lshl_add_u32 v%d, v%d, 5, v%d" % (V2_B, TT + 2, TT))
    su("s_lshl_b32 s%d, s%d, 6" % (t1, sQ))
    su("s_xor_b32 s%d, s%d, 192" % (t1, t1))
    su("v_xor_b32 v%d, s%d, v%d" % (V2_B, t1, V2_B))
    V_T128 = V_XO
    su("v_lshlrev_b32 v%d, 7, v%d" % (V_T128, L))
    def selftouch(so, half):
        if half: a("s_mov_b32 exec_hi, 0")
        a.vmem("buffer_load_dword a%d, v%d, %s, s%d offen sc1" % (A_PD, V_T128, s4(R_WS), so), "T")
        if half: a("s_mov_b32 exec_hi, -1")
    def kpw(x):
        c0, c1, so, go, lo = kvq[x]
        a.wait(vm=("KP", x))
        a.lds("ds_write_b128 v%d, %s offset:%d" % (V_KVW, r4("v", c1), lo - 16384), "kvw")
    def codepf():
        lab = a.newlabel("F_pc")
        a("s_getpc_b64 s[%d:%d]" % (R_WQ, R_WQ + 1))
        a.label(lab)
        a("s_and_b32 s%d, s%d, 0xffff" % (R_WQ + 1, R_WQ + 1))
        a("s_mov_b32 s%d, CODE_END - %s" % (R_WQ + 2, lab))
        a("s_lshr_b32 s%d, s2, 3" % t0)
        a("s_lshl_b32 s%d, s%d, 2" % (t0, t0))
        a("s_add_u32 s%d, s%d, s%d" % (t0, t0, sW))
        a("s_lshl_b32 s%d, s%d, 9" % (t0, t0))
        a("s_mov_b64 exec, 15")
        a.vmem("buffer_load_dword a%d, v%d, %s, s%d offen" % (A_PD, V_PW, s4(R_WQ), t0), "T")
        a("s_mov_b64 exec, -1")
    seenA = set()
    ramp = (RA - 1 - LA) / float(S1 * NT)
    WM = cfg.get("f_wm", 200) / 100.0
    W0 = cfg.get("f_w0", 100) / 100.0
    UEND = S1 * NT + cfg.get("f_uend", 8)
    wts = [0.0] + [W0 * sum(1 for o in order if (o[1] if o[0] == "B" else o[1] // 2) == g) / 15.0 for g in (1, 2, 3)] + [WM if g % 4 == 0 else 1.0 for g in range(4, 16)]
    noB = set(g for g in range(16) if not any(o[0] == "B" and o[1] == g for o in order))
    tau = [0.0]
    for g in range(16): tau.append(tau[-1] + wts[g])
    tau = [x * UEND / tau[-1] for x in tau]
    def due(op):
        g = op[1] if op[0] == "B" else op[1] // 2
        idx = op[2] if op[0] == "B" else 7 + (op[1] % 2) * 4 + op[2]
        if cfg.get("f_wb", 0) and op[0] == "B" and op[2] > 3: idx = 3
        if g in noB: return tau[g] + (tau[g + 1] - tau[g]) * (idx - 7) / 8.0
        return tau[g] + (tau[g + 1] - tau[g]) * idx / 15.0
    DF = cfg.get("f_df", 0); PZ0 = cfg.get("f_pz0", 4)
    THR1 = cfg.get("f_thr1", 63)
    side = G.side
    def prewait1(u):
        s, t = units[u]
        if s not in seenA:
            flush1(("A", s)); seenA.add(s)
            r = a.wait(vm=("A", s), lg=("b", u))
        else: r = a.wait(lg=("b", u))
        stt["waited"] = u
        return r
    prewait1(0)
    for u in range(NU):
        s, t = units[u]
        un = u + DB
        if un < NU: need1(un)
        if u < UKV and s >= S1 - 4 and s < S1 + 1 and s % 2 == 0 and t == (1 if s < S1 else 3): barrier()
        if S1 // 2 <= 12 and u == last_unit_of_stage[12] + 2: barrier()
        if pfq and u % 4 == 2 and pfq[0] - 1 <= (u + PFA) / NT + LA + ramp * (u + PFA): touch(pfq.pop(0))
        if PW & 4:
            for k in range(3):
                if u == S1 * NT + cfg.get("f_px0", 4) + k * cfg.get("f_pxd", 16): touchx(k)
        if PW == 1 and u == UKV - PW0: touchw(None)
        if PW & 3 == 2 and u < S1 * NT and t == 8 and PW0 <= s < PW0 + 8: touchw((s + 4) & 7)
        if u == 16 * NT: stampr("g1half")
        if u < S1 * NT and t == 0: stampr("g1s%d" % s)
        if u == S1 * NT: stampr("g1tail")
        if u == UKV:
            stampr("g1kv")
            if cfg.get("f_cpf", 1): codepf()
        if DF and u == 3 * NT:
            side += ["v_mov_b32 v%d, -1" % (T + e) for e in range(4)]
            side += ["s_lshl_b32 s%d, s2, 2" % t3, "s_add_u32 s%d, s%d, s%d" % (t3, t3, sW), "s_mul_i32 s%d, s%d, 12288" % (t3, t3),
                     "s_add_u32 s%d, s%d, 0x%x" % (t3, t3, WS_XC),
                     "v_xor_b32 v%d, 3, v%d" % (T + 4, L), "v_lshlrev_b32 v%d, 1, v%d" % (T + 4, T + 4), "v_xor_b32 v%d, s2, v%d" % (T + 4, T + 4),
                     "v_lshlrev_b32 v%d, 9, v%d" % (T + 4, T + 4), "v_lshl_add_u32 v%d, v%d, 2, v%d" % (T + 4, L, T + 4)]
        if DF and u < S1 * NT and t == 4 and PZ0 <= s < PZ0 + 12:
            k_ = s - PZ0
            side.append(("m", lambda k_=k_: a.vmem("buffer_store_dwordx4 %s, v%d, %s, s%d offen offset:%d sc1" % (r4("v", T), V_L16, s4(R_WS), t3, (k_ % 4) * 1024), "PZ")))
            if k_ % 4 == 3: side.append("s_add_u32 s%d, s%d, 4096" % (t3, t3))
        if DF and u == (PZ0 + 14) * NT + 5:
            assert a.vm.count("PZ") == 12
            a.wait(vm="PZ")
            a("s_lshl_b32 s%d, s%d, 7" % (t3, sW))
            a("s_add_u32 s%d, s%d, 0x%x" % (t3, t3, WS_FL))
            a("s_mov_b64 exec, 7")
            a.vmem("buffer_store_dword v%d, v%d, %s, s%d offen sc1" % (V_ONE, T + 4, s4(R_WS), t3), "RF")
            a("s_mov_b64 exec, -1")
        if FLN and u == 20 * NT + 3:
            a("v_and_b32 v%d, 7, v%d" % (V_P0, L))
            a("v_lshlrev_b32 v%d, 5, v%d" % (V_P0, V_P0))
            a.vmem("global_load_dword v%d, v%d, s[100:101] sc1" % (V_POLL, V_P0), "CN")
        if FLN and u == 22 * NT + 3:
            a.wait(vm="CN")
            l0 = a.newlabel("F_cn"); l1 = a.newlabel("F_ok")
            a("s_mov_b32 s%d, 0x%x" % (sSP, SPIN))
            a.label(l0)
            a("v_cmp_le_u32 vcc, 32, v%d" % V_POLL)
            a("s_cmp_eq_u32 vcc_lo, -1")
            a("s_cbranch_scc1 %s" % l1)
            a("global_load_dword v%d, v%d, s[100:101] sc1" % (V_POLL, V_P0))
            a("s_sub_u32 s%d, s%d, 1" % (sSP, sSP))
            a("s_waitcnt vmcnt(0)")
            a("s_cbranch_scc0 %s" % l0)
            a.label(l1)
        if u == UFLAG:
            stampr("g1flag0")
            assert a.vm.count("KV") == 8
            a.wait(vm="KV")
            stampr("g1flag1")
            a.vmem("buffer_store_dword v%d, v%d, %s, s%d offen sc1" % (V_ONE, V_FL0, s4(R_WS), sFK), "FK")
        if u == UPOLL: poll_issue("PK")
        if u == UCHK:
            a.wait(vm="PK")
            spin(1 << 3, skip_if_i0=True)
            stampr("g1chk")
            for x, (c0, c1, so, go, lo) in enumerate(kvq):
                def f(c1=c1, so=(sKP if x < 4 else sKP2), go=go, x=x):
                    a.vmem("buffer_load_dwordx4 %s, v%d, %s, s%d offen offset:%d sc1" % (r4("v", c1), V_L16, s4(R_WS), so, go), ("KP", x))
                side.insert(x, ("m", f))
        bf = r4("a", BR + (u % RB) * 4)
        nxt = None
        if order and can1(order[0]) and len(G.sal) <= 1 and due(order[0]) <= u: nxt = order.pop(0)
        for mt in range(MT):
            mz = mt if u % 2 == 0 else MT - 1 - mt
            af = r4("a", AR + (s % RA) * 16 + mz * 4)
            c = r4("v", acc(mz, t))
            src = "0" if s == 0 else c
            if t in (4, 5): a("%s %s, %s, %s, %s" % (MF, c, af, bf, src))
            else:           a("%s %s, %s, %s, %s" % (MF, c, bf, af, src))
            rd = (lambda mt=mt: bread1(un, mt)) if (mt < 2 and un < NU) else None
            if mt == 0: G.gap(fixed=rd)
            elif mt == 1:
                if nxt and nxt[0] == "B": G.gap(first=lambda: (dma1(nxt[1], nxt[2], 0), True)[1], fixed=rd)
                else: G.gap(fixed=rd)
            elif mt == 2:
                if nxt:
                    assert not G.sal
                    G.gap(first=(lambda: a.throttle(THR1)), mem=((lambda: aload1(nxt[1], nxt[2])) if nxt[0] == "A" else (lambda: dma1(nxt[1], nxt[2], 1))))
                else: G.gap()
            else:
                stt["issued"] = u
                G.gap(first=(lambda: prewait1(u + 1)) if u + 1 < NU else None)
        if u == UKV - 1:
            assert 11 in stt["free"], stt
            side += [None] * 5
            for (c0, c1, so, go, lo) in kvq:
                side += pack(c0, c1)
                def f(c0=c0, so=so, go=go):
                    a.vmem("buffer_store_dwordx4 %s, v%d, %s, s%d offen offset:%d sc1" % (r4("v", c0), V_L16, s4(R_WS), so, go), "KV")
                side.append(("m", f))
            for (c0, c1, so, go, lo) in kvq:
                def f(c0=c0, lo=lo):
                    a.lds("ds_write_b128 v%d, %s offset:%d" % (V_KVW, r4("v", c0), lo), "kvw")
                side += [("x", f), None]
            assert not order
            side += su.l
        if u == UPW:
            assert 12 in stt["free"]
            side[:0] = [y for x in range(8) for y in (("x", lambda x=x: kpw(x)), None)]
        if u == UH01 - 1:
            side += [None] * 5
            for p in range(2):
                for mt in range(MT):
                    side += pack(acc(mt, 6 + 2 * p), acc(mt, 7 + 2 * p), relu=True)
                    side.append(("m", lambda p=p, mt=mt: hstore(p, mt)))
                    side += [None] * cfg.get("f_hsp", 8)
    if cfg.get("verbose"): print("G1 side left", len([x for x in side if x is not None]), file=sys.stderr)
    G.drain()
    assert not order
    assert 12 in stt["free"]
    stampr("g1end")

    if UPW >= NU:
        for x in range(8): kpw(x)
    a.wait(lg="kvw")
    a("s_barrier")
    stampr("attbeg")
    KF = 0; VF = 80
    va = []
    for mt in range(MT): va += pack(acc(mt, 10), acc(mt, 11), relu=True)
    for kt in range(20):
        a.lds("ds_read_b128 %s, v%d offset:%d" % (r4("a", KF + 4 * kt), V_KVW, kt * 1024), ("k", kt))
        a(va.pop(0))
    for mt in range(MT):
        for t in (0, 1):
            for e2 in range(2):
                c = acc(mt, t) + 2 * e2
                a("v_pk_mul_f32 v[%d:%d], v[%d:%d], s[%d:%d] op_sel_hi:[1,0]" % (c, c + 1, c, c + 1, sSC, sSC + 1))
        if mt == 0:
            for x in pack(acc(mt, 0), acc(mt, 1)): a(x)
    STCH = cfg.get("f_st", 0)
    a.vm = [("H01" if t == "H" else t) for t in a.vm]
    stq = [(cfg.get("f_st0", 200), sH), (cfg.get("f_st1", 380), sH + 1)] if STCH & 1 else []
    hstore(2, 0)
    for mt in range(1, MT): va += pack(acc(mt, 0), acc(mt, 1))
    for mt in range(MT): va += pack(acc(mt, 12), None, relu=True)
    free = [acc(mt, t) for t in (2, 3, 4, 5, 7, 9) for mt in range(MT)] + [212, 216, 220] + [acc(mt, t) for t in (11, 1) for mt in range(MT)]

    KS2 = 36; NSL = 20
    RA2 = cfg.get("f_ra2", 14); DB2 = cfg.get("f_db2", 3); RB2 = DB2 + 2
    BR2 = RA2 * 16
    assert BR2 + RB2 * 4 <= 256
    def aslot(p): return ((p - 3 + 10) % RA2) * 16
    def dma2_ops(p):
        sb, so = (R_W2, sB2) if p < 28 else (R_WO, sBO)
        ops = [(0, lambda: a("s_add_u32 m0, s%d, %d" % (sLB, (p % NSL) * 8192))),
               (1, lambda: a.vmem("buffer_load_dwordx4 v%d, %s, s%d offen lds" % (V2_DMA, s4(sb), so), ("B2", p))),
               (1, lambda: a.vmem("buffer_load_dwordx4 v%d, %s, s%d offen offset:1024 lds" % (V2_DMA + 1, s4(sb), so), ("B2", p)))]
        if LIN and p == 2:
            ops.append((0, lambda: a("s_mov_b32 s%d, s%d" % (sB2, sBW))))
        elif p != 27 and p != 35:
            ops.append((0, lambda: a("s_add_u32 s%d, s%d, 65536" % (so, so))))
        if p < 27 and not (LIN and p < 2):
            ops.append((0, lambda: a("s_cmp_eq_u32 s%d, s%d\ns_cselect_b32 s%d, s%d, s%d" % (sB2, sBE, sB2, sB0, sB2))))
        return ops
    def aload2(p, mt):
        a.vmem("buffer_load_dwordx4 %s, v%d, %s, s%d offen offset:%d %s" % (r4("a", aslot(p) + mt * 4), V_L16, s4(R_WS), sA, mt * 1024, ["sc1", "sc1 nt", ""][cfg.get("f_af", 0)]), ("A2", p))
        if mt == MT - 1:
            if p == 27 and not LIN: G.sal.append("s_mov_b32 s%d, s%d" % (sA, sAE))
            else:
                G.sal.append("s_add_u32 s%d, s%d, 4096" % (sA, sA))
                if p <= 27: G.sal.append("s_cmp_eq_u32 s%d, s%d\ns_cselect_b32 s%d, s%d, s%d" % (sA, sAE, sA, sA0, sA))
    hst = [(2, 1), (2, 2), (2, 3)] + [(3, mt) for mt in range(MT)]
    NPRE = cfg.get("f_npre", 6)
    assert NPRE >= 3
    pre = []
    for p in range(NPRE): pre += [(p,) + op for op in dma2_ops(p)]

    S_ = {}; P_ = {}; O_ = {}
    def s_mfma(qa, kt):
        q = free.pop(0); S_[(qa, kt)] = q
        a.wait(lg=("k", kt))
        c = r4("v", bias[kt // 4]) if kt < 16 else "0"
        a("%s %s, %s, %s, %s" % (MF, r4("v", q), r4("a", KF + 4 * kt), r4("v", acc(qa, 0)), c))
    def pv_list(qa):
        b0 = qa // 2
        out = []
        for b in range(b0, b0 + 9):
            for z in range(3):
                def f(b=b, z=z):
                    if b == b0: O_[(qa, z)] = free.pop(0)
                    o = r4("v", O_[(qa, z)])
                    if z < 2:
                        a.wait(lg=("v", 2 * b + z)); A = r4("a", VF + (2 * b + z) * 4)
                    else: A = r4("v", VONES)
                    a("%s %s, %s, %s, %s" % (MF, o, A, r4("v", P_[(qa, b)]), "0" if b == b0 else o))
                    if z == 2: free.append(P_[(qa, b)])
                out.append(f)
        return out
    def fin_list(qa):
        o0, o1, sm = O_[(qa, 0)], O_[(qa, 1)], O_[(qa, 2)]
        ops = ["v_rcp_f32 v%d, v%d" % (sm, sm), "s_nop 0"]
        for o in (o0, o1):
            for e in range(4): ops.append("v_mul_f32 v%d, v%d, v%d" % (o + e, o + e, sm))
        ops += pack(o0, o1)
        def f():
            a.vmem("buffer_store_dwordx4 %s, v%d, %s, s%d offen offset:%d %s" % (r4("v", o0), V_L16, s4(R_WS), sO, qa * 1024, HF), "O")
            free.extend([o1, sm]); late_free.append(o0)
        ops.append(f)
        return ops
    late_free = []
    pready = set()
    def soft_list(qa):
        k0, k1 = qa, qa + 16
        ops = []
        f_, l_ = S_[(qa, k0)], S_[(qa, k1)]
        for e in range(4):
            ops.append((1, "v_cndmask_b32 v%d, v%d, v%d, s[%d:%d]" % (f_ + e, f_ + e, l_ + e, sMK + 2 * e, sMK + 2 * e + 1)))
        quads = [S_[(qa, kt)] for kt in range(k0 + 1, k1)] + [f_]
        m0, m1 = VM, VM + 1
        ops.append((1, "v_max_f32 v%d, v%d, v%d" % (m0, quads[0], quads[0] + 1)))
        ops.append((1, "v_max_f32 v%d, v%d, v%d" % (m1, quads[0] + 2, quads[0] + 3)))
        ops.insert(2, (0, "SLOT")); ops.insert(5, (0, "SLOT")); ops.append((0, "SLOT"))
        for q in quads[1:]:
            ops.append((1, "v_max3_f32 v%d, v%d, v%d, v%d" % (m0, m0, q, q + 1)))
            ops.append((1, "v_max3_f32 v%d, v%d, v%d, v%d" % (m1, m1, q + 2, q + 3)))
            ops.append((0, "SLOT"))
        ops.append((1, "v_max_f32 v%d, v%d, v%d" % (m0, m0, m1)))
        for op in ("v_permlane16_swap_b32", "v_permlane32_swap_b32"):
            ops.append((1, "v_mov_b32 v%d, v%d" % (m1, m0)))
            ops.append((2, "s_nop 1"))
            ops.append((1, "%s v%d, v%d" % (op, m0, m1)))
            ops.append((2, "s_nop 1"))
            ops.append((1, "v_max_f32 v%d, v%d, v%d" % (m0, m0, m1)))
        def subexp(q):
            r = []
            for e2 in range(2):
                r.append((1, "v_pk_add_f32 v[%d:%d], v[%d:%d], v[%d:%d] op_sel_hi:[1,0] neg_lo:[0,1] neg_hi:[0,1]" % (q + 2 * e2, q + 2 * e2 + 1, q + 2 * e2, q + 2 * e2 + 1, m0, m0 + 1)))
            for e in range(4):
                if e < 2: r.append((0, "SLOT"))
                r.append((2, "v_exp_f32 v%d, v%d" % (q + e, q + e)))
            r.append((0, "MEM"))
            return r
        ops += subexp(f_)
        ops += subexp(S_[(qa, k0 + 1)])
        for e in range(4):
            ops.append((1, "v_cndmask_b32 v%d, 0, v%d, s[%d:%d]" % (l_ + e, f_ + e, sMK + 2 * e, sMK + 2 * e + 1)))
        for e in range(4):
            ops.append((1, "v_cndmask_b32 v%d, v%d, 0, s[%d:%d]" % (f_ + e, f_ + e, sMK + 2 * e, sMK + 2 * e + 1)))
        done = {k0, k0 + 1, k1}
        b0 = qa // 2
        pend_pack = None
        for b in range(b0, b0 + 9):
            for kt in (2 * b, 2 * b + 1):
                if k0 <= kt <= k1 and kt not in done:
                    ops += subexp(S_[(qa, kt)]); done.add(kt)
            if pend_pack: ops += pend_pack
            lo, hi = S_.get((qa, 2 * b)), S_.get((qa, 2 * b + 1))
            pk = []
            if lo is None:
                d = hi
                pk.append((1, "v_cvt_pk_bf16_f32 v%d, v%d, v%d" % (d + 3, d + 2, d + 3)))
                pk.append((1, "v_cvt_pk_bf16_f32 v%d, v%d, v%d" % (d + 2, d, d + 1)))
                pk.append((1, "v_mov_b32 v%d, 0" % d)); pk.append((1, "v_mov_b32 v%d, 0" % (d + 1)))
            elif hi is None:
                d = lo
                pk += [(1, x) for x in pack(d, None)]
                pk.append((1, "v_mov_b32 v%d, 0" % (d + 2))); pk.append((1, "v_mov_b32 v%d, 0" % (d + 3)))
            else:
                d = lo
                pk += [(1, x) for x in pack(lo, hi)]
                pk.append((0, (lambda hi=hi: free.append(hi))))
            P_[(qa, b)] = d
            pk.append((0, (lambda b=b: pready.add((qa, b)))))
            pend_pack = pk
        ops.append((1, "s_nop 0"))
        ops += pend_pack
        return ops
    def run(op):
        if isinstance(op, str): a(op)
        else: op()
    vr = list(range(20))
    def vread():
        f = vr.pop(0)
        a.lds("ds_read_b128 %s, v%d offset:%d" % (r4("a", VF + 4 * f), V_KVW, 32768 + f * 1024), ("v", f))
    for kt in range(17):
        s_mfma(0, kt)
        vread(); a(va.pop(0))
    while vr:
        vread(); a(va.pop(0))
    hstore(*hst.pop(0))
    while va: a(va.pop(0))
    HGAP = cfg.get("f_hgap", 30); PGAP = cfg.get("f_pgap", 40)
    HFL = cfg.get("f_hfl", 520)
    HPO = cfg.get("f_hpo", 960)
    HCK = cfg.get("f_hck", 2000)
    hok = False
    ordA = [("A2", p, mt) for p in range(3, KS2) for mt in range(MT)]
    napre = cfg.get("f_apre", 16)
    pv3 = pv_list(3); pv3b = [1 + x // 3 for x in range(27)]
    tq = [(cfg.get("f_tb0", 200) + k * cfg.get("f_tbd", 150), k) for k in range(cfg.get("f_tbn", 0))]
    kvbar = False; hflag = False; hpoll = False
    cost_total = 0; next_h = HGAP; next_p = 0
    for qa in range(4):
        stampr("att%d" % qa)
        ops = soft_list(qa)
        tot = sum(c for c, _ in ops)
        pv = pv_list(qa - 1) if qa > 0 else []
        fin = None
        sm = [(qa + 1, kt) for kt in range(qa + 1, qa + 18)] if qa < 3 else []
        c = 0
        pv_done_at = None
        for (cost, op) in ops:
            if op == "SLOT":
                did = False
                if pv:
                    pv.pop(0)(); did = True
                    if not pv: pv_done_at = c
                elif sm and len(free) > 0 and c >= tot * 0.2:
                    s_mfma(*sm.pop(0)); did = True
                elif qa == 3 and pv3 and (3, pv3b[0]) in pready:
                    pv3.pop(0)(); pv3b.pop(0); did = True
                if did and G.sal:
                    a(G.sal.pop(0)); continue
                if did and pre and pre[0][1] == 0 and (kvbar or pre[0][0] < 12): pre.pop(0)[2]()
                continue
            if op == "MEM":
                if qa > 0 and fin is None and pv_done_at is not None and c >= pv_done_at + 18:
                    fin = fin_list(qa - 1)
                    for x in fin: run(x)
                elif hst and cost_total >= next_h:
                    hstore(*hst.pop(0)); next_h = cost_total + HGAP
                elif stq and cost_total >= stq[0][0]:
                    a.wait(vm="H01"); selftouch(stq.pop(0)[1], True)
                elif not hst and tq and cost_total >= tq[0][0]:
                    k_ = tq.pop(0)[1]
                    a("s_lshr_b32 s%d, s2, 3" % t0)
                    a("s_lshl_b32 s%d, s%d, 2" % (t0, t0))
                    a("s_add_u32 s%d, s%d, s%d" % (t0, t0, sW))
                    if k_ < 4:
                        a("s_mul_i32 s%d, s%d, 3584" % (t0, t0))
                        a("s_mul_i32 s%d, s%d, %d" % (t1, sQ, 896 * 2048))
                        a("s_add_u32 s%d, s%d, s%d" % (t0, t0, t1))
                        if k_: a("s_add_u32 s%d, s%d, %d" % (t0, t0, k_ * 224 * 2048))
                        a("s_mov_b64 exec, 0xfffffff")
                        a.vmem("buffer_load_dword a%d, v%d, %s, s%d offen" % (A_PD, V_T128, s4(R_W2), t0), "T")
                    else:
                        a("s_lshl_b32 s%d, s%d, 12" % (t0, t0))
                        a("s_lshl_b32 s%d, s%d, 19" % (t1, sQ))
                        a("s_add_u32 s%d, s%d, s%d" % (t0, t0, t1))
                        a("s_mov_b32 exec_hi, 0")
                        a.vmem("buffer_load_dword a%d, v%d, %s, s%d offen" % (A_PD, V_T128, s4(R_WO), t0), "T")
                    a("s_mov_b64 exec, -1")
                elif not hst and not hflag and cost_total >= HFL:
                    a.wait(vm="H")
                    a.vmem("buffer_store_dword v%d, v%d, %s, 0 offen offset:32 sc1" % (V_ONE, V_FG, s4(R_WS)), "FH")
                    hflag = True
                    if STCH & 2: selftouch(sH + 2, True)
                elif hflag and not hpoll and cost_total >= HPO:
                    poll_issue("PH"); hpoll = True
                elif hpoll and not hok and cost_total >= HCK:
                    a.wait(vm="PH"); spin(0xff00); hok = True
                    stampr("g2h")
                elif hok and napre > 0:
                    G.drain_sal()
                    op_ = ordA.pop(0); aload2(op_[1], op_[2]); napre -= 1
                elif pre and pre[0][1] == 1 and cost_total >= next_p:
                    pre.pop(0)[2](); next_p = cost_total + PGAP
                continue
            run(op); c += cost; cost_total += cost
            if qa == 0 and not kvbar and c >= 30:
                a.wait(lg=("v", 19)); a("s_barrier"); kvbar = True
        assert not pv and (qa == 0 or fin)
        free.extend(late_free); del late_free[:]
        if sm and cfg.get("verbose"): print("late S mfmas", qa, len(sm), file=sys.stderr)
        late = bool(sm)
        while sm: s_mfma(*sm.pop(0))
        if late: a("s_nop 7")
    if cfg.get("verbose"): print("attention cost", cost_total, "pre left", len(pre), file=sys.stderr)
    stampr("att4")
    assert not hst and hflag and hpoll
    if not hok: napre = 0
    while pre:
        pre.pop(0)[2](); a("s_nop 0")
    G.drain_sal()
    a("v_mov_b32 v%d, v%d" % (V2_RD, V2_B))
    a("v_xor_b32 v%d, 32, v%d" % (V2_RD + 1, V2_B))
    xr = ["v_xor_b32 v%d, %d, v%d" % (V2_RD + t, t * 32, V2_B) for t in range(2, 8)]
    if cfg.get("verbose"): print("pv3 left", len(pv3), "apre left", napre, file=sys.stderr)
    for f in pv3:
        f()
        if napre > 0:
            op_ = ordA.pop(0); aload2(op_[1], op_[2]); napre -= 1; G.drain_sal()
        else:
            for _ in range(2):
                if xr: a(xr.pop(0))
    while xr: a(xr.pop(0))
    stampr("attend")

    NT2 = 8
    DL = cfg.get("f_dl", 8); S2 = KS2 - DL
    assert RA2 >= DL
    own = set(acc(mt, 6 + 2 * p) for p in range(3) for mt in range(MT))
    busy = own | set(O_[(3, z)] for z in range(3)) | {208}
    q2 = [q for q in range(0, 224, 4) if q not in busy]
    acc2 = {}
    for t in range(NT2):
        for mt in range(MT): acc2[(mt, t)] = q2.pop(0)
    VX = [q2.pop(0) for _ in range(4)]
    TT = q2.pop(0); V_XI = TT + 2
    R_X = R_WQ; R_OUT = R_W1
    rec = Rec()
    rec.l += [None] * 5 + [x if isinstance(x, str) else ("m", x) for x in fin_list(3)]
    for st_ in (1, 2):
        for t in range(8): rec("v_add_u32 v%d, 0x%x, v%d" % (V2_RD + 8 * st_ + t, st_ * 0x10000, V2_RD + t))
    srd(rec, R_X, P_X, S * D * 2)
    srd(rec, R_OUT, P_OUT, S * D * 2)
    rec2 = Rec()
    rec2("v_and_b32 v%d, 15, v%d" % (TT, L))
    rec2("v_lshlrev_b32 v%d, 11, v%d" % (V_XO, TT))
    rec2("v_lshrrev_b32 v%d, 4, v%d" % (TT, L))
    rec2("v_lshl_add_u32 v%d, v%d, 3, v%d" % (V_XI, TT, V_XO))
    rec2("v_bfe_u32 v%d, v%d, 4, 1" % (TT, L))
    rec2("v_lshl_add_u32 v%d, v%d, 5, v%d" % (V_XO, TT, V_XO))
    rec2("v_lshrrev_b32 v%d, 5, v%d" % (TT, L))
    rec2("v_lshl_add_u32 v%d, v%d, 4, v%d" % (V_XO, TT, V_XO))
    sSX = [sKV, sKV2, sKP]; sSF = [sKP2, sFK, sH]; sRX = sH + 1
    for lam in range(3):
        rec("s_xor_b32 s%d, s2, %d" % (t1, (lam ^ 3) << 1))
        rec("s_lshl_b32 s%d, s%d, 2" % (t1, t1))
        rec("s_add_u32 s%d, s%d, s%d" % (t1, t1, sW))
        rec("s_mul_i32 s%d, s%d, 12288" % (sSX[lam], t1))
        rec("s_add_u32 s%d, s%d, 0x%x" % (sSX[lam], sSX[lam], WS_XC + lam * 4096))
        rec("s_lshl_b32 s%d, s%d, 7" % (sSF[lam], t1))
        rec("s_add_u32 s%d, s%d, 0x%x" % (sSF[lam], sSF[lam], WS_FL + lam * 4))
    rec("s_lshl_b32 s%d, s2, 2" % t1)
    rec("s_add_u32 s%d, s%d, s%d" % (t1, t1, sW))
    rec("s_mul_i32 s%d, s%d, 12288" % (sRX, t1))
    rec("s_add_u32 s%d, s%d, 0x%x" % (sRX, sRX, WS_XC))
    if DF:
        for lam in range(3): rec("s_add_u32 s%d, s%d, %d" % (sSF[lam], sRX, lam * 4096))
    side = G.side
    side += rec.l

    units = [(p, t) for p in range(S2) for t in range(NT2)]
    for lam in range(4):
        units += [(p, t) for p in range(S2, KS2) for t in (2 * lam, 2 * lam + 1)]
    NU = len(units)
    UT = S2 * NT2; PL = 2 * DL
    last_unit = {}
    for u, (p, t) in enumerate(units): last_unit[p] = u
    stt = dict(ready=-1, free=set(), waited=-1, issued=-1, ook=False, hok=hok)
    ordB = [("B2", p) for p in range(NPRE, KS2)]
    def barrier2():
        a("s_barrier")
        for p, lu in last_unit.items():
            if lu <= stt["waited"]: stt["free"].add(p)
    def can2(op):
        if op[0] == "B2": return op[1] < NSL or (op[1] - NSL) in stt["free"]
        if not stt["hok"] or (op[1] >= 28 and not stt["ook"]): return False
        return op[1] - 3 < RA2 or last_unit[op[1] - RA2] <= stt["issued"]
    def issue2(op):
        if cfg.get("verbose"): print("late flush2", op, file=sys.stderr)
        G.drain_sal()
        if op[0] == "A2": aload2(op[1], op[2])
        else:
            for x in dma2_ops(op[1]): x[1](); a("s_nop 0")
        G.drain_sal()
    def flush2(q, tag):
        while any(o[:2] == tag for o in q):
            op = q.pop(0); assert can2(op), (op, stt); issue2(op)
    def bread2(u, j2):
        p, t = units[u]
        sl = p % NSL
        a.lds("ds_read_b64_tr_b16 %s, v%d offset:%d" % (r2("a", BR2 + (u % RB2) * 4 + j2 * 2), V2_RD + 8 * (sl // 8) + t, (sl % 8) * 8192 + j2 * 4096), ("b2", u))
    def need2(u):
        p = units[u][0]
        if p > stt["ready"]:
            flush2(ordB, ("B2", p))
            grp = cfg.get("f_bgrp", 4)
            top = max(x for x in range(p, min(p + grp, KS2)) if not any(o[1] == x for o in ordB))
            if p == 0: top = NPRE - 1
            a.wait(vm=("B2", top)); barrier2(); stt["ready"] = top
    need2(0)
    for u in range(DB2):
        bread2(u, 0); bread2(u, 1)
    stampr("g2beg")
    UOF = cfg.get("f_uof", 26)
    UOP = cfg.get("f_uop", 80); UOC = UOP + 12
    seenA = {0, 1, 2}
    xdone = False
    rq = sorted(own)
    def flag(lam):
        a.wait(vm=("S", lam))
        a.vmem("buffer_store_dword v%d, v%d, %s, s%d offen sc1" % (V_ONE, V_FL0, s4(R_WS), sSF[lam]), ("F", lam))
    def recv(lam, mt):
        a.vmem("buffer_load_dwordx4 %s, v%d, %s, s%d offen offset:%d sc1" % (r4("v", rq[4 * lam + mt]), V_L16, s4(R_WS), sRX, mt * 1024), ("R", lam, mt))
        if mt == 3 and lam < 2: a("s_add_u32 s%d, s%d, 4096" % (sRX, sRX))
    PS = lambda mt, hh: acc2[(mt, hh)]
    def addpk(dst, src, first=False):
        ops = []
        for hh in range(2):
            for e2 in range(2):
                pp = src + 2 * hh + e2; c = dst[hh] + 2 * e2
                if first:
                    ops += ["v_lshlrev_b32 v%d, 16, v%d" % (c, pp), "v_and_b32 v%d, 0xffff0000, v%d" % (c + 1, pp)]
                else:
                    ops += ["v_lshlrev_b32 v%d, 16, v%d" % (TT, pp), "v_and_b32 v%d, 0xffff0000, v%d" % (TT + 1, pp),
                            "v_pk_add_f32 v[%d:%d], v[%d:%d], v[%d:%d]" % (c, c + 1, c, c + 1, TT, TT + 1)]
        return ops
    FD = cfg.get("f_fd", 22)
    ev = {}
    def at(u, f): ev.setdefault(u, []).append(f)
    def rtxt(lam, mt): return "buffer_load_dwordx4 %s, v%d, %s, s%d offen offset:%d sc1" % (r4("v", rq[4 * lam + mt]), V_L16, s4(R_WS), sSF[lam], mt * 1024)
    def rmax(lam):
        rg = [rq[4 * lam + mt] + e for mt in range(MT) for e in range(4)]
        o = ["v_max3_u32 v%d, v%d, v%d, v%d" % (V_POLL, rg[0], rg[1], rg[2])]
        for k in range(3, 15, 2): o.append("v_max3_u32 v%d, v%d, v%d, v%d" % (V_POLL, V_POLL, rg[k], rg[k + 1]))
        o.append("v_max_u32 v%d, v%d, v%d" % (V_POLL, V_POLL, rg[15]))
        return o
    def rcheck(lam):
        l0 = a.newlabel("F_rt"); l1 = a.newlabel("F_ok")
        a("s_mov_b32 s%d, 0x%x" % (sSP, SPIN))
        a.label(l0)
        a("v_cmp_eq_u32 vcc, -1, v%d" % V_POLL)
        a("s_cmp_eq_u64 vcc, 0")
        a("s_cbranch_scc1 %s" % l1)
        for mt in range(MT): a(rtxt(lam, mt))
        a("s_waitcnt vmcnt(0)")
        for x in rmax(lam): a(x)
        a("s_sub_u32 s%d, s%d, 1" % (sSP, sSP))
        a("s_cbranch_scc0 %s" % l0)
        a.label(l1)
    def addplain(dst, src):
        ops = []
        for hh in range(2):
            for e2 in range(2):
                pp = src + 2 * hh + e2; c = dst[hh] + 2 * e2
                ops += ["v_lshlrev_b32 v%d, 16, v%d" % (TT, pp), "v_and_b32 v%d, 0xffff0000, v%d" % (TT + 1, pp),
                        "v_add_f32 v%d, v%d, v%d" % (c, c, TT), "v_add_f32 v%d, v%d, v%d" % (c + 1, c + 1, TT + 1)]
        return ops
    if DF:
        R0U = UT + 3 * PL + cfg.get("f_r0", -6); R1U = UT + 4 * PL + cfg.get("f_r1", -5)
        at(R0U, lambda: side.extend(("m", lambda mt=mt: a.vmem(rtxt(0, mt), ("R", 0))) for mt in range(MT)))
        at(R1U, lambda: side.__setitem__(slice(0, 0), [("m", lambda mt=mt: a.vmem(rtxt(1, mt), ("R", 1))) for mt in range(MT)]))
    else:
        at(UT + PL + FD, lambda: flag(0))
        at(UT + 2 * PL + FD, lambda: flag(1))
    UP0 = UT + 3 * PL + cfg.get("f_p0", 4)
    if not DF: at(UP0, lambda: poll_issue("P0"))
    def chk0():
        a.wait(vm="P0"); spin(1)
        for mt in range(MT): side.append(("m", lambda mt=mt: recv(0, mt)))
    if not DF: at(UP0 + cfg.get("f_c0", 8), chk0)
    def presum():
        side.append(("s", lambda: a.wait(vm="X")))
        for mt in range(MT): side.extend(addpk([PS(mt, 0), PS(mt, 1)], VX[mt], first=True))
    at(UT + 2 * PL + PL // 2, presum)
    first_unit = {}
    for u, (p, t) in enumerate(units): first_unit.setdefault(p, u)
    NOPS = len(ordA) + 2 * len(ordB)
    UE2 = UT + cfg.get("f_ue2", 0)
    MARG = cfg.get("f_marg", 20)
    THR2 = cfg.get("f_thr2", 63)
    def prewait2(u):
        p, t = units[u]
        if p not in seenA:
            flush2(ordA, ("A2", p)); seenA.add(p)
            r = a.wait(vm=("A2", p), lg=("b2", u))
        else: r = a.wait(lg=("b2", u))
        stt["waited"] = u
        return r
    def b2sal(p):
        so = sB2 if p < 28 else sBO
        if p != 27 and p != 35: G.sal.append("s_add_u32 s%d, s%d, 65536" % (so, so))
        if p < 27: G.sal.append("s_cmp_eq_u32 s%d, s%d\ns_cselect_b32 s%d, s%d, s%d" % (sB2, sBE, sB2, sB0, sB2))
    prewait2(0)
    half = None
    for u in range(NU):
        p, t = units[u]
        un = u + DB2
        if u == UOF:
            a.wait(vm="O")
            a.vmem("buffer_store_dword v%d, v%d, %s, 0 offen offset:64 sc1" % (V_ONE, V_FG, s4(R_WS)), "FO")
            if STCH & 4: selftouch(sO, True)
            side.extend(rec2.l)
        if u == cfg.get("f_uh", 4) and not stt["hok"]:
            a.wait(vm="PH"); spin(0xff00); stt["hok"] = True
            stampr("g2h")
        if u < UT and t == 1: stampr("g2p%d" % p)
        if u == UT: stampr("g2tail")
        if u > UT and (u - UT) % PL == 0: stampr("g2l%d" % ((u - UT) // PL))
        if u == UOP: poll_issue("PO")
        if u == UOC:
            a.wait(vm="PO"); spin(0xff0000 | (7 if DF else 0)); stt["ook"] = True
        for f in ev.get(u, []): f()
        if un < NU and units[un][0] > stt["ready"]:
            if half is not None:
                dma2_ops(half)[2][1](); b2sal(half); half = None
            need2(un)
        if u < UT and t == 2 and p % 4 == 0 and p > 0 and p - 4 + NSL < KS2: barrier2()
        bf = r4("a", BR2 + (u % RB2) * 4)
        pre_ = None; mem_ = None
        if half is not None:
            def mem_(h=half): dma2_ops(h)[2][1](); b2sal(h)
            half = None
        elif len(G.sal) <= 1:
            cand = [q for q in (ordA, ordB) if q and can2(q[0])]
            if cand:
                cand.sort(key=lambda q: q[0][1] - (cfg.get("f_bprio", 6) if q[0][0] == "B2" else 0))
                done_ = NOPS - len(ordA) - 2 * len(ordB)
                if done_ * UE2 <= u * NOPS or first_unit[cand[0][0][1]] - u <= MARG + (16 if cand[0][0][0] == "B2" else 0):
                    nxt = cand[0].pop(0)
                    if nxt[0] == "B2":
                        ops_ = dma2_ops(nxt[1])
                        pre_ = lambda o=ops_: (o[0][1](), True)[1]
                        mem_ = ops_[1][1]; half = nxt[1]
                    else:
                        mem_ = lambda n_=nxt: aload2(n_[1], n_[2])
        if not ordA and not ordB and half is None and not xdone and mem_ is None:
            xdone = True
            for mt in range(MT):
                for hh in range(2):
                    def f(mt=mt, hh=hh):
                        a.vmem("buffer_load_dwordx2 %s, v%d, %s, s%d offen offset:%d" % (r2("v", VX[mt] + 2 * hh), V_XI, s4(R_X), sXO, hh * 32), "X")
                    side += [("m", f), None]
                side.append("s_add_u32 s%d, s%d, %d" % (sXO, sXO, 32768 if mt < 3 else -3 * 32768))
        for mt in range(MT):
            mz = mt if u % 2 == 0 else MT - 1 - mt
            af = r4("v", acc(mz, 6 + 2 * p)) if p < 3 else r4("a", aslot(p) + mz * 4)
            c = r4("v", acc2[(mz, t)])
            a("%s %s, %s, %s, %s" % (MF, c, bf, af, "0" if p == 0 else c))
            rd = (lambda mt=mt: bread2(un, mt)) if (mt < 2 and un < NU) else None
            if mt == 0: G.gap(fixed=rd)
            elif mt == 1: G.gap(first=pre_, fixed=rd)
            elif mt == 2:
                if mem_:
                    assert not G.sal
                    G.gap(first=(lambda: a.throttle(THR2)), mem=mem_)
                else: G.gap()
            else:
                stt["issued"] = u
                G.gap(first=(lambda: prewait2(u + 1)) if u + 1 < NU else None)
        if u >= UT and (u - UT) % PL == PL - 1:
            lam = (u - UT) // PL
            if lam < 3:
                new_ = [None] * 5
                for mt in range(MT):
                    new_ += pack(acc2[(mt, 2 * lam)], acc2[(mt, 2 * lam + 1)])
                    if DF: new_ += ["v_min_u32 v%d, -2, v%d" % (acc2[(mt, 2 * lam)] + e, acc2[(mt, 2 * lam)] + e) for e in range(4)]
                    def f(mt=mt, lam=lam):
                        a.vmem("buffer_store_dwordx4 %s, v%d, %s, s%d offen offset:%d sc1" % (r4("v", acc2[(mt, 2 * lam)]), V_L16, s4(R_WS), sSX[lam], mt * 1024), ("S", lam))
                    new_.append(("m", f))
                side[:0] = new_
    if cfg.get("verbose"): print("G2 side left", len([x for x in side if x is not None]), file=sys.stderr)
    G.drain()
    assert not ordA and not ordB and xdone
    stampr("g2end")
    def ownadd():
        for mt in range(MT):
            for hh in range(2):
                for e2 in range(2):
                    c = PS(mt, hh) + 2 * e2; o_ = acc2[(mt, 6 + hh)] + 2 * e2
                    a("v_pk_add_f32 v[%d:%d], v[%d:%d], v[%d:%d]" % (c, c + 1, c, c + 1, o_, o_ + 1))
    if DF:
        R2D = cfg.get("f_r2d", 1)
        def rd2():
            for mt in range(MT): a.vmem(rtxt(2, mt), ("R", 2, mt))
        assert a.vm.count(("R", 0)) == 4 and a.vm.count(("R", 1)) == 4
        if R2D == 0: rd2()
        a.wait(vm=("R", 0))
        for x in rmax(0): a(x)
        rcheck(0)
        for mt in range(MT):
            for x in addpk([PS(mt, 0), PS(mt, 1)], rq[mt]): a(x)
        stampr("x1")
        if R2D == 1: rd2()
        ownadd()
        a.wait(vm=("R", 1))
        for x in rmax(1): a(x)
        rcheck(1)
        stampr("x2")
        if R2D == 2: rd2()
        for mt in range(MT):
            for x in addpk([PS(mt, 0), PS(mt, 1)], rq[4 + mt]): a(x)
        stampr("x3")
        a.wait(vm=("R", 2, 3))
        for x in rmax(2): a(x)
        rcheck(2)
        stampr("x4")
    else:
        flag(2)
        poll_issue("P1")
        stampr("x1")
        for mt in range(MT):
            a.wait(vm=("R", 0, mt))
            for x in addpk([PS(mt, 0), PS(mt, 1)], rq[mt]): a(x)
        a.wait(vm="P1"); spin(2)
        stampr("x2")
        for mt in range(MT): recv(1, mt)
        poll_issue("P2")
        for mt in range(MT):
            for hh in range(2):
                for e2 in range(2):
                    c = PS(mt, hh) + 2 * e2; o_ = acc2[(mt, 6 + hh)] + 2 * e2
                    a("v_pk_add_f32 v[%d:%d], v[%d:%d], v[%d:%d]" % (c, c + 1, c, c + 1, o_, o_ + 1))
        a.wait(vm="P2"); spin(4)
        stampr("x3")
        for mt in range(MT): recv(2, mt)
        for mt in range(MT):
            for x in addpk([PS(mt, 0), PS(mt, 1)], rq[4 + mt]): a(x)
        stampr("x4")
    for mt in range(MT):
        a.wait(vm=("R", 2, mt))
        for x in addpk([PS(mt, 0), PS(mt, 1)], rq[8 + mt]): a(x)
        c0 = PS(mt, 0)
        if cfg.get("eps"):
            for hh in range(2):
                for e in range(4): a("v_mul_f32 v%d, 0x%x, v%d" % (PS(mt, hh) + e, f2u(1.0 + cfg["eps"] / 10000.0), PS(mt, hh) + e))
        for x in pack(c0, PS(mt, 1)): a(x)
        a("s_nop 1")
        a("v_permlane16_swap_b32 v%d, v%d" % (c0, c0 + 2))
        a("v_permlane16_swap_b32 v%d, v%d" % (c0 + 1, c0 + 3))
        a.vmem("buffer_store_dwordx4 %s, v%d, %s, s%d offen %s" % (r4("v", c0), V_XO, s4(R_OUT), sXO, ["", "sc1", "nt"][cfg.get("f_of", 2)]), "OUT")
        if mt < 3: a("s_add_u32 s%d, s%d, 32768" % (sXO, sXO))
    stampr("x5")
    if ST:
        a("s_waitcnt vmcnt(0)")
        stampr("end")
        a("s_waitcnt lgkmcnt(0)")
        for i in range(8): a("v_mov_b32 v%d, s%d" % (i, STB + 2 * i))
        a("s_lshl_b32 s%d, s2, 2" % t0)
        a("s_add_u32 s%d, s%d, s%d" % (t0, t0, sW))
        a("s_lshl_b32 s%d, s%d, 5" % (t0, t0))
        a("v_mov_b32 v8, 0")
        a("s_nop 4")
        a("buffer_store_dwordx4 v[0:3], v8, %s, s%d offen" % (s4(R_WS), t0))
        a("buffer_store_dwordx4 v[4:7], v8, %s, s%d offen offset:16" % (s4(R_WS), t0))
    a.label("F_end")
    a("s_endpgm")
    kernel_desc(a, name, 256, sgpr=102, accum=256, agpr=256)
    return "; @launch kernel=%s grid=(256,1,1) block=(256,1,1) lds=163840" % name

gen.gen_f = gen_f

if __name__ == "__main__":
    cfg = dict(g1_mt=4)
    out = sys.argv[1]
    kernels = sys.argv[2].split(",")
    for kv in sys.argv[3:]:
        k, v = kv.split("="); cfg[k] = int(v, 0)
    open(out, "w").write(gen.build(cfg, kernels))
```

```python
import sys, math
from asmlib import *
import gen
from gen import *

class SA:
    def __init__(self, start, end):
        self.n = start; self.end = end; self.m = {}
    def new(self, name, cnt=1, align=1):
        self.n = (self.n + align - 1) // align * align
        r = self.n; self.n += cnt
        assert self.n <= self.end, "out of sgprs"
        self.m[name] = r
        return r

def s4(b): return "s[%d:%d]" % (b, b + 3)
MF = "v_mfma_f32_16x16x32_bf16"

def kind_of(op):
    if op is None: return None
    if isinstance(op, tuple): return op[0]
    t = op.lstrip()
    if t.startswith("s_"): return "s"
    if t.startswith("v_"): return "v"
    raise ValueError(op)

class Gaps:
    def __init__(self, a):
        self.a = a
        self.sal = []
        self.side = []
    def run(self, op):
        if isinstance(op, tuple): op[1]()
        else: self.a(op)
    def gap(self, first=None, fixed=None, mem=None):
        used0 = False
        room = 2
        if first is not None: used0 = bool(first())
        if not used0:
            if self.sal:
                x = self.sal.pop(0); self.a(x); used0 = True
                room -= x.count("\n")
            elif self.side and kind_of(self.side[0]) == "s":
                self.run(self.side.pop(0)); used0 = True
        if mem is not None:
            mem(); return
        if fixed is not None:
            fixed(); room -= 1
        if self.side and self.side[0] is None:
            self.side.pop(0)
            skip = True
        else: skip = False
        while room > 0:
            if self.sal and self.sal[0].count("\n") < room:
                x = self.sal.pop(0); self.a(x); room -= 1 + x.count("\n"); continue
            if skip or not self.side or self.side[0] is None: break
            k = kind_of(self.side[0])
            if k in ("m", "x"):
                if room == 2:
                    self.run(self.side.pop(0))
                break
            self.run(self.side.pop(0)); room -= 1
    def drain_sal(self):
        while self.sal: self.a(self.sal.pop(0))
    def drain(self):
        self.drain_sal()
        for op in self.side:
            if op is not None: self.run(op)
        self.side = []

def ln_ops(exact=1):
    o = []
    a = o.append
    pk = lambda op, d, x, y, mod="": a("%s v[%d:%d], v[%d:%d], v[%d:%d]%s" % (op, d, d + 1, x, x + 1, y, y + 1, mod))
    for i in range(16):
        a("v_lshlrev_b32 v%d, 16, v%d" % (24 + 2 * i, 8 + i))
        a("v_and_b32 v%d, 0xffff0000, v%d" % (25 + 2 * i, 8 + i))
        if i == 1: pk("v_pk_add_f32", 56, 24, 26)
        elif i == 3: pk("v_pk_add_f32", 58, 28, 30)
        elif i > 3: pk("v_pk_add_f32", 56 + 2 * (i & 1), 56 + 2 * (i & 1), 24 + 2 * i)
    pk("v_pk_add_f32", 56, 56, 58)
    a("v_add_f32 v56, v56, v57")
    def xlane_sum(r, t):
        a("s_nop 1")
        a("v_add_f32_dpp v%d, v%d, v%d row_ror:8 row_mask:0xf bank_mask:0xf" % (r, r, r))
        for op in ("v_permlane16_swap_b32", "v_permlane32_swap_b32"):
            a("v_mov_b32 v%d, v%d" % (t, r))
            a("s_nop 1")
            a("%s v%d, v%d" % (op, r, t))
            a("v_add_f32 v%d, v%d, v%d" % (r, r, t))
    xlane_sum(56, 57)
    a("v_mul_f32 v56, 0x%x, v56" % f2u(1.0 / 256))
    neg = " op_sel_hi:[1,0] neg_lo:[0,1] neg_hi:[0,1]"
    for i in range(16):
        t = 62 + 2 * (i & 1); ac = 66 + 2 * (i & 1)
        pk("v_pk_add_f32", t, 24 + 2 * i, 56, neg)
        if i < 2: pk("v_pk_mul_f32", ac, t, t)
        else: a("v_pk_fma_f32 v[%d:%d], v[%d:%d], v[%d:%d], v[%d:%d]" % (ac, ac + 1, t, t + 1, t, t + 1, ac, ac + 1))
    pk("v_pk_add_f32", 66, 66, 68)
    a("v_add_f32 v57, v66, v67")
    xlane_sum(57, 58)
    a("ds_write_b64 v7, v[56:57]")
    a("s_waitcnt lgkmcnt(0)")
    a("s_barrier")
    for k in range(4): a("ds_read_b64 v[%d:%d], v60 offset:%d" % (62 + 2 * k, 63 + 2 * k, 64 * k))
    a("s_waitcnt lgkmcnt(0)")
    pk("v_pk_add_f32", 56, 62, 64)
    pk("v_pk_add_f32", 58, 66, 68)
    pk("v_pk_add_f32", 56, 56, 58)
    a("v_mul_f32 v56, 0x3e800000, v56")
    a("v_sub_f32 v59, v62, v56")
    a("v_mul_f32 v58, v59, v59")
    for r in (64, 66, 68):
        a("v_sub_f32 v59, v%d, v56" % r)
        a("v_fmac_f32 v58, v59, v59")
    a("v_fmac_f32 v57, 0x43800000, v58")
    a("v_mul_f32 v57, 0x%x, v57" % f2u(1.0 / 1024))
    a("v_cvt_pk_bf16_f32 v58, v56, v57")
    a("v_lshlrev_b32 v56, 16, v58")
    a("v_and_b32 v57, 0xffff0000, v58")
    a("v_add_f32 v57, 0x%x, v57" % f2u(1e-5))
    a("v_cvt_pk_bf16_f32 v57, v57, v57")
    a("v_and_b32 v57, 0xffff0000, v57")
    a("v_sqrt_f32 v57, v57")
    a("s_nop 0")
    a("v_cvt_pk_bf16_f32 v57, v57, v57")
    a("v_and_b32 v57, 0xffff0000, v57")
    a("v_rcp_f32 v58, v57")
    for i in range(16):
        pk("v_pk_add_f32", 24 + 2 * i, 24 + 2 * i, 56, neg)
        if i > 0:
            j = i - 1
            if exact:
                a("v_cvt_pk_bf16_f32 v%d, v%d, v%d" % (25 + 2 * j, 24 + 2 * j, 25 + 2 * j))
                a("v_lshlrev_b32 v%d, 16, v%d" % (24 + 2 * j, 25 + 2 * j))
                a("v_and_b32 v%d, 0xffff0000, v%d" % (25 + 2 * j, 25 + 2 * j))
            pk("v_pk_mul_f32", 24 + 2 * j, 24 + 2 * j, 58, " op_sel_hi:[1,0]")
            a("v_cvt_pk_bf16_f32 v%d, v%d, v%d" % (8 + j, 24 + 2 * j, 25 + 2 * j))
            if j % 4 == 3: a("STORE%d" % (j // 4))
    if exact:
        a("v_cvt_pk_bf16_f32 v55, v54, v55")
        a("v_lshlrev_b32 v54, 16, v55")
        a("v_and_b32 v55, 0xffff0000, v55")
    pk("v_pk_mul_f32", 54, 54, 58, " op_sel_hi:[1,0]")
    a("v_cvt_pk_bf16_f32 v23, v54, v55")
    a("STORE3")
    return o

def gen_f(a, cfg):
    name = NAME + "_kernel" if cfg.get("single") else "f_kernel"
    FLN = cfg.get("f_ln", 0)
    SPIN = cfg.get("spin", 0x40000)
    ST = cfg.get("stamp")
    MT = 4
    sa = SA(3, 84)
    P_WQ = sa.new("pwq", 2, 2); P_W1 = sa.new("pw1", 2, 2); P_WS = sa.new("pws", 2, 2); P_X = sa.new("px", 2, 2)
    P_W2 = sa.new("pw2", 2, 2); P_WO = sa.new("pwo", 2, 2); P_OUT = sa.new("pout", 2, 2)
    R_WQ = sa.new("rwq", 4, 4); R_W1 = sa.new("rw1", 4, 4); R_W2 = sa.new("rw2", 4, 4); R_WO = sa.new("rwo", 4, 4)
    R_WS = sa.new("rws", 4, 4)
    sW = sa.new("w"); sI = sa.new("i"); sJ = sa.new("j"); sJ1 = sa.new("j1"); sQ = sa.new("q"); sN = sa.new("n")
    sBQ = sa.new("bq"); sBV = sa.new("bv"); sBW = sa.new("bw"); sBL = sa.new("bl"); sLB = sa.new("lb"); sA = sa.new("a")
    sCLS = sa.new("cls"); t0 = sa.new("t0"); t1 = sa.new("t1"); t2 = sa.new("t2"); t3 = sa.new("t3")
    sMK = sa.new("mask", 8, 2)
    sKV = sa.new("kv"); sKV2 = sa.new("kv2"); sKP = sa.new("kp"); sKP2 = sa.new("kp2"); sFK = sa.new("fk"); sFO = sa.new("fo")
    sH = sa.new("h", 4); sSC = sa.new("sc", 2, 2); sO = sSC + 1; sA0 = sa.new("a0"); sB0 = sa.new("b0"); sAE = sa.new("aend"); sBE = sa.new("bend")
    sXO = sa.new("xo"); sSP = sa.new("spin")
    sDL = sMK
    STB = 84
    SETS = {1: ["start", "bar0", "g1end", "attbeg", "attend", "g2beg", "g2end", "end"],
            2: ["start", "g1half", "g1tail", "g1kv", "g1flag1", "g1chk", "g1kb", "g1end"],
            3: ["start", "attbeg", "att0", "att1", "att2", "att3", "att4", "attend"],
            4: ["start", "att4", "g2h", "g2beg", "g2p4", "g2p12", "g2tail", "g2end"],
            5: ["start", "g2end", "x1", "x2", "x3", "x4", "x5", "end"],
            7: ["g2beg", "g2p3", "g2p6", "g2p10", "g2p14", "g2p18", "g2p22", "g2end"],
            8: ["g2p22", "g2tail", "g2l1", "g2l2", "g2l3", "g2end", "x3", "end"],
            9: ["start", "lnx", "lns", "lnd", "lnp", "g1s1", "g1s4", "g1s8"],
            6: ["start", "bar0", "g1s2", "g1s4", "g1s8", "g1half", "g1s20", "g1tail"]}
    def stampr(nm):
        if ST and nm in SETS[ST]:
            i = SETS[ST].index(nm)
            a("%s s[%d:%d]" % ("s_memtime" if cfg.get("clk") else "s_memrealtime", STB + 2 * i, STB + 2 * i + 1))

    NT = 13; KS = 32
    NS = 5; REG = 7168; STAGE = 4 * REG
    D1 = cfg.get("f_d1", 8)
    RA = cfg.get("f_ra1", 12)
    LA = cfg.get("f_la1", 4)
    C1 = cfg.get("f_c1", 2)
    C1K = cfg.get("f_c1k", 2); C1T = cfg.get("f_c1t", 4); C1S = cfg.get("f_c1s", 0)
    CM1 = max(C1, C1K, C1T)
    DB = cfg.get("f_db1", CM1 + 2); RB = DB + max(CM1, 2)
    assert DB >= CM1
    S1 = KS - D1
    def slot1(g): return (15 - g) % 5
    KVB = 96 * 1024
    def acc(mt, t): return (t * MT + mt) * 4
    V_L16 = 208; V_QKV = 209; V_W1 = 210; V_LEFT = 211
    V_RD = 212
    V_P0, V_P1, V_P2 = 221, 222, 223
    V_LANE = 224; V_FL0 = 225; V_ONE = 226; V_POLL = 227; V_KVW = 228; V_FG = 229; V_PL = 230
    T = 232
    A_PD = 255
    AR = 0; BR = RA * 16
    assert BR + RB * 4 <= 254

    kernel_begin(a, name)
    a.reset()
    stampr("start")
    a("s_cmp_ge_u32 s2, 256")
    a("s_cbranch_scc1 F_end")
    if cfg.get("idx"): a("s_xor_b32 s2, s2, %d" % cfg["idx"])
    a("s_load_dwordx2 s[%d:%d], s[0:1], 8" % (P_WQ, P_WQ + 1))
    a("s_load_dwordx2 s[%d:%d], s[0:1], 32" % (P_W1, P_W1 + 1))
    a("s_load_dwordx2 s[%d:%d], s[0:1], 64" % (P_WS, P_WS + 1))
    a("s_load_dwordx2 s[%d:%d], s[0:1], 0" % (P_X, P_X + 1))
    a("s_load_dwordx2 s[%d:%d], s[0:1], 40" % (P_W2, P_W2 + 1))
    a("s_load_dwordx2 s[%d:%d], s[0:1], 16" % (P_WO, P_WO + 1))
    a("s_load_dwordx2 s[%d:%d], s[0:1], 48" % (P_OUT, P_OUT + 1))
    if FLN:
        lab = a.newlabel("F_pc")
        a("s_getpc_b64 s[%d:%d]" % (R_WO, R_WO + 1))
        a.label(lab)
        a("s_and_b32 s%d, s%d, 0xffff" % (R_WO + 1, R_WO + 1))
        a("s_mov_b32 s%d, CODE_END - %s" % (R_WO + 2, lab))
        a("s_mov_b32 s%d, 0x00020000" % (R_WO + 3))
        a("s_lshr_b32 s%d, s2, 3" % t0)
        a("s_lshl_b32 s%d, s%d, 7" % (t0, t0))
        a("v_lshlrev_b32 v70, 12, v0")
        a.vmem("buffer_load_dword v76, v70, %s, s%d offen" % (s4(R_WO), t0), "T")
    if FLN: a("s_load_dwordx2 s[100:101], s[0:1], 56")
    L = V_LANE
    a("v_and_b32 v%d, 63, v0" % L)
    a("v_lshrrev_b32 v%d, 6, v0" % (T + 1))
    a("v_lshlrev_b32 v%d, 4, v%d" % (V_L16, L))
    a("v_readfirstlane_b32 s%d, v%d" % (sW, T + 1))
    a("s_and_b32 s%d, s2, 1" % sI)
    a("s_lshl_b32 s%d, s%d, 2" % (sI, sI))
    a("s_bfe_u32 s%d, s2, 0x20003" % t0)
    a("s_add_u32 s%d, s%d, s%d" % (sI, sI, t0))
    a("s_bfe_u32 s%d, s2, 0x20001" % sQ)
    a("s_lshr_b32 s%d, s2, 5" % sN)
    a("s_lshl_b32 s%d, s%d, 3" % (sJ, sQ))
    a("s_add_u32 s%d, s%d, s%d" % (sJ, sJ, sN))
    a("s_and_b32 s%d, s%d, 1" % (sJ1, sN))
    if FLN:
        a("v_and_b32 v3, 7, v%d" % L)
        a("v_lshrrev_b32 v4, 3, v%d" % L)
        a("v_lshlrev_b32 v5, 11, v3")
        a("v_lshl_add_u32 v5, v%d, 9, v5" % (T + 1))
        a("v_lshl_add_u32 v5, v4, 4, v5")
        a("s_lshl_b32 s%d, s%d, 5" % (t3, sI))
        a("s_add_u32 s%d, s%d, s%d" % (t3, t3, sJ))
        a("s_lshl_b32 s%d, s%d, 14" % (t0, t3))
        a("s_waitcnt lgkmcnt(0)")
        srd(a, R_W2, P_X, S * D * 2)
        for i in range(4):
            a.vmem("buffer_load_dwordx4 %s, v5, %s, s%d offen offset:%d" % (r4("v", 8 + 4 * i), s4(R_W2), t0, i * 128), "LX")
        srd(a, R_WS, P_WS, WS_END)
        a("s_lshl_b32 s%d, s%d, 12" % (sSP, sI))
        a("s_add_u32 s%d, s%d, 0x%x" % (sXO, sSP, WS_LF))
        a("v_and_b32 v80, 31, v%d" % L)
        a("v_lshlrev_b32 v80, %d, v80" % cfg.get("f_lfs", 2))
        a("v_add_u32 v80, s%d, v80" % sXO)
        a.vmem("buffer_load_dword v81, v80, %s, 0 offen sc1" % s4(R_WS), "SN")
    a("v_lshrrev_b32 v%d, 2, v%d" % (T + 2, L))
    a("v_lshl_add_u32 v%d, v%d, 4, v%d" % (T + 2, T + 1, T + 2))
    a("v_lshrrev_b32 v%d, 4, v%d" % (T + 3, L))
    a("v_and_b32 v%d, 2, v%d" % (T + 3, T + 3))
    a("v_and_b32 v%d, 3, v%d" % (T + 4, L))
    a("v_xor_b32 v%d, v%d, v%d" % (T + 3, T + 3, T + 4))
    a("v_lshlrev_b32 v%d, 4, v%d" % (T + 3, T + 3))
    a("v_mul_u32_u24 v%d, 6144, v%d" % (V_QKV, T + 2))
    a("v_add_u32 v%d, v%d, v%d" % (V_QKV, V_QKV, T + 3))
    a("v_mul_u32_u24 v%d, 7168, v%d" % (V_W1, T + 2))
    a("v_add_u32 v%d, v%d, v%d" % (V_W1, V_W1, T + 3))
    a("v_bfe_u32 v%d, v%d, 3, 1" % (T + 2, L))
    a("v_lshlrev_b32 v%d, 3, v%d" % (T + 2, T + 2))
    a("v_bfe_u32 v%d, v%d, 4, 1" % (T + 3, L))
    a("v_lshl_add_u32 v%d, v%d, 2, v%d" % (T + 2, T + 3, T + 2))
    a("v_bfe_u32 v%d, v%d, 1, 2" % (T + 3, L))
    a("v_add_u32 v%d, v%d, v%d" % (T + 2, T + 2, T + 3))
    a("v_lshl_add_u32 v%d, v%d, 4, v%d" % (T + 2, T + 1, T + 2))
    a("v_mul_u32_u24 v%d, 7168, v%d" % (V_LEFT, T + 2))
    a("v_and_b32 v%d, 1, v%d" % (T + 3, L))
    a("v_lshl_add_u32 v%d, v%d, 4, v%d" % (V_LEFT, T + 3, V_LEFT))
    a("v_lshrrev_b32 v%d, 5, v%d" % (T + 3, L))
    a("v_lshl_add_u32 v%d, v%d, 30, v%d" % (V_LEFT, T + 3, V_LEFT))
    a("s_lshl_b32 s%d, s%d, 6" % (sBQ, sJ))
    a("s_add_u32 s%d, s%d, 4096" % (sBV, sBQ))
    a("s_mul_i32 s%d, s%d, 224" % (sBL, sJ))
    a("s_lshl_b32 s%d, s%d, 5" % (t0, sJ1))
    a("s_add_u32 s%d, s%d, s%d" % (sBW, sBL, t0))
    a("s_xor_b32 s%d, s%d, 1" % (t0, sJ1))
    a("s_mul_i32 s%d, s%d, 192" % (t0, t0))
    a("s_add_u32 s%d, s%d, s%d" % (sBL, sBL, t0))
    a("s_mul_i32 s%d, s%d, %d" % (sLB, sW, REG))
    a("s_lshl_b32 s%d, s%d, 2" % (sA, sI))
    a("s_add_u32 s%d, s%d, s%d" % (sA, sA, sW))
    a("s_lshl_b32 s%d, s%d, 17" % (sA, sA))
    a("s_add_u32 s%d, s%d, 0x%x" % (sA, sA, WS_XN))
    ROT = cfg.get("f_rot", 1)
    a("s_add_u32 s%d, s%d, s%d" % (t1, sI, sN))
    a("s_and_b32 s%d, s%d, %d" % (t1, t1, 3 if ROT else 0))
    for k in range(3):
        a("s_cmp_eq_u32 s%d, %d" % (t1, 3 - k))
        a("s_cselect_b32 s%d, -3, 1" % (sDL + k))
    a("s_cmp_eq_u32 s%d, 0" % t1)
    a("s_cselect_b32 s%d, 1, 5" % (sDL + 3))
    a("s_mul_i32 s%d, s%d, %d" % (t0, t1, 64 * 6144))
    a("s_add_u32 s%d, s%d, s%d" % (sBQ, sBQ, t0))
    a("s_add_u32 s%d, s%d, s%d" % (sBV, sBV, t0))
    a("s_mul_i32 s%d, s%d, %d" % (t0, t1, 64 * 7168))
    a("s_add_u32 s%d, s%d, s%d" % (sBW, sBW, t0))
    a("s_add_u32 s%d, s%d, s%d" % (sBL, sBL, t0))
    a("s_lshl_b32 s%d, s%d, 13" % (t0, t1))
    a("s_add_u32 s%d, s%d, s%d" % (sA, sA, t0))
    for k in range(4):
        a("s_lshl_b32 s%d, s%d, 13" % (sDL + 4 + k, sDL + k))
        a("s_sub_u32 s%d, s%d, 4096" % (sDL + 4 + k, sDL + 4 + k))
    a("s_waitcnt lgkmcnt(0)")
    srd(a, R_WQ, P_WQ, D * 3 * D * 2)
    srd(a, R_W1, P_W1, D * DFF * 2)
    srd(a, R_WS, P_WS, WS_END)

    G = Gaps(a)
    PAIRPOS = [0, 2, 1, 3, 4, 5]
    def dma1(g, k, part):
        p, vreg, sb, so, imm = [(0, V_QKV, R_WQ, sBQ, 0), (2, V_QKV, R_WQ, sBQ, 2048), (1, V_QKV, R_WQ, sBV, 0),
                                (3, V_W1, R_W1, sBW, 0), (4, V_W1, R_W1, sBW, 64), (5, V_W1, R_W1, sBW, 128), (6, V_LEFT, R_W1, sBL, 0)][k]
        if part == 0:
            a("s_add_u32 m0, s%d, %d" % (sLB, slot1(g) * STAGE + p * 1024 - imm))
        else:
            a.vmem("buffer_load_dwordx4 v%d, %s, s%d offen offset:%d lds" % (vreg, s4(sb), so, imm), ("B", g))
            if k == 0: G.sal.append("s_mul_i32 s%d, s%d, %d" % (t2, sDL + (g & 3), 64 * 6144))
            if k == 1: G.sal.append("s_add_u32 s%d, s%d, s%d" % (sBQ, sBQ, t2))
            if k == 2: G.sal.append("s_add_u32 s%d, s%d, s%d" % (sBV, sBV, t2))
            if k == 3: G.sal.append("s_mul_i32 s%d, s%d, %d" % (t2, sDL + (g & 3), 64 * 7168))
            if k == 5: G.sal.append("s_add_u32 s%d, s%d, s%d" % (sBW, sBW, t2))
            if k == 6: G.sal.append("s_add_u32 s%d, s%d, s%d" % (sBL, sBL, t2))
    def aload1(s, mt):
        a.vmem("buffer_load_dwordx4 %s, v%d, %s, s%d offen offset:%d%s" % (r4("a", AR + (s % RA) * 16 + mt * 4), V_L16, s4(R_WS), sA, mt * 1024, " sc1" if FLN else ""), ("A", s))
        if mt == MT - 1:
            if s % 2 == 0: G.sal.append("s_add_u32 s%d, s%d, 4096" % (sA, sA))
            else: G.sal.append("s_add_u32 s%d, s%d, s%d" % (sA, sA, sDL + 4 + ((s // 2) & 3)))
    order = []
    for g in range(16):
        for k in range(7): order.append(("B", g, k))
        for s in (2 * g, 2 * g + 1):
            for mt in range(MT): order.append(("A", s, mt))
    def issue1(op):
        G.drain_sal()
        if op[0] == "A": aload1(op[1], op[2])
        else:
            dma1(op[1], op[2], 0); a("s_nop 0"); dma1(op[1], op[2], 1)
        G.drain_sal()
    if FLN:
        nb = cfg.get("f_lnb", 1)
        bops = [o for o in order if o[0] == "B" and o[1] < nb]
        for o in bops: order.remove(o)
        for _ in range(cfg.get("f_lnb0", 2)): issue1(bops.pop(0))
        a("s_lshl_b32 s%d, s2, 9" % t0)
        a("s_add_u32 s%d, s%d, 0x%x" % (t0, t0, WS_FL))
        a("v_lshlrev_b32 v70, 2, v0")
        a("v_lshrrev_b32 v71, 7, v0")
        a("v_lshl_add_u32 v70, v71, 30, v70")
        a("v_mov_b32 v71, 0")
        a.vmem("buffer_store_dword v71, v70, %s, s%d offen sc1" % (s4(R_WS), t0), "Z")
        a("s_lshr_b32 s%d, s%d, 3" % (t0, t3))
        a("s_lshl_b32 s%d, s%d, 17" % (t0, t0))
        a("s_bfe_u32 s%d, s%d, 0x20001" % (t1, t3))
        a("s_lshl_b32 s%d, s%d, 10" % (t1, t1))
        a("s_add_u32 s%d, s%d, s%d" % (t0, t0, t1))
        a("s_and_b32 s%d, s%d, 1" % (t1, t3))
        a("s_lshl_b32 s%d, s%d, 7" % (t1, t1))
        a("s_add_u32 s%d, s%d, s%d" % (t0, t0, t1))
        a("s_add_u32 s%d, s%d, 0x%x" % (t3, t0, WS_XN))
        a("v_lshrrev_b32 v6, 2, v4")
        a("v_lshl_add_u32 v6, v%d, 3, v6" % (T + 1))
        a("v_lshlrev_b32 v6, 12, v6")
        a("v_and_b32 v7, 3, v4")
        a("v_lshl_add_u32 v6, v7, 8, v6")
        a("v_lshl_add_u32 v6, v3, 4, v6")
        a("v_lshl_add_u32 v7, v%d, 3, v3" % (T + 1))
        a("v_lshlrev_b32 v7, 3, v7")
        a("v_add_u32 v7, %d, v7" % (5 * STAGE))
        a("v_lshlrev_b32 v60, 3, v3")
        a("v_add_u32 v60, %d, v60" % (5 * STAGE))
        a.wait(vm="LX")
        stampr("lnx")
        lo_ = ln_ops(cfg.get("f_lnex", 1))
        gap_ = cfg.get("f_lngap", 20)
        for k, x in enumerate(lo_):
            if x.startswith("STORE"):
                i = int(x[5:])
                a.vmem("buffer_store_dwordx4 %s, v6, %s, s%d offen sc1" % (r4("v", 8 + 4 * i), s4(R_WS), t3), "XS")
                if i < 3: a("s_add_u32 s%d, s%d, %d" % (t3, t3, 8192))
            else: a(x)
            if k % gap_ == gap_ - 1 and bops and k < cfg.get("f_lnk", 110): issue1(bops.pop(0))
        stampr("lns")
    else:
        for _ in range(cfg.get("f_pro1", 15)): issue1(order.pop(0))

    srd(a, R_W2, P_W2, DFF * D * 2)
    srd(a, R_WO, P_WO, D * D * 2)
    a("s_bfe_u32 s%d, s2, 0x30003" % sCLS)
    a("s_lshr_b32 s%d, s2, 6" % t1)
    a("s_lshl_b32 s%d, s%d, 2" % (t1, t1))
    a("s_add_u32 s%d, s%d, s%d" % (t1, t1, sW))
    a("v_bfrev_b32 v%d, 1" % (T + 6))
    a("v_lshrrev_b32 v%d, 5, v%d" % (T + 2, L))
    a("s_lshl_b32 s%d, s%d, 1" % (t0, t1))
    a("v_add_u32 v%d, s%d, v%d" % (T + 2, t0, T + 2))
    a("v_and_b32 v%d, 31, v%d" % (T + 3, L))
    a("v_mul_u32_u24 v%d, 7168, v%d" % (V_P1, T + 2))
    a("v_lshl_add_u32 v%d, v%d, 7, v%d" % (V_P1, T + 3, V_P1))
    a("s_mul_i32 s%d, s%d, 1792" % (t0, sQ))
    a("v_add_u32 v%d, s%d, v%d" % (V_P1, t0, V_P1))
    a("v_mul_u32_u24 v%d, 6144, v%d" % (V_P0, T + 2))
    a("v_lshrrev_b32 v%d, 2, v%d" % (T + 4, T + 3))
    a("v_lshl_add_u32 v%d, v%d, 11, v%d" % (V_P0, T + 4, V_P0))
    a("v_and_b32 v%d, 3, v%d" % (T + 4, T + 3))
    a("v_lshl_add_u32 v%d, v%d, 7, v%d" % (V_P0, T + 4, V_P0))
    a("s_lshl_b32 s%d, s%d, 9" % (t0, sQ))
    a("v_add_u32 v%d, s%d, v%d" % (V_P0, t0, V_P0))
    a("v_cmp_le_u32 vcc, 12, v%d" % (T + 3))
    a("s_and_b32 s%d, s2, 1" % t0)
    a("s_lshl_b32 s%d, s%d, 4" % (t0, t0))
    a("v_cndmask_b32 v%d, v%d, v%d, vcc" % (V_P0, V_P0, T + 6))
    a("v_cmp_le_u32 vcc, 14, v%d" % (T + 3))
    a("s_add_u32 s%d, s%d, s%d" % (t0, t0, t1))
    a("s_lshl_b32 s%d, s%d, 17" % (t0, t0))
    a("v_cndmask_b32 v%d, v%d, v%d, vcc" % (V_P1, V_P1, T + 6))
    a("s_add_u32 s%d, s%d, 0x%x" % (t0, t0, WS_XN))
    a("v_lshlrev_b32 v%d, 7, v%d" % (V_P2, L))
    a("v_add_u32 v%d, s%d, v%d" % (V_P2, t0, V_P2))
    a("v_cmp_le_u32 vcc, 32, v%d" % L)
    a("s_lshl_b32 s%d, s%d, 12" % (t0, sCLS))
    a("s_nop 0")
    a("v_cndmask_b32 v%d, v%d, v%d, vcc" % (V_P2, V_P2, T + 6))
    PFM = cfg.get("f_pf", 0)
    PF0 = cfg.get("f_pf0", 8)
    if PFM & 2:
        a("buffer_load_dword a%d, v%d, %s, s%d offen" % (A_PD, V_P2, s4(R_WS), t0))
    def touch(n):
        lab = a.newlabel("F_pf")
        a("s_cmp_lg_u32 s%d, %d" % (sCLS, n & 7))
        a("s_cbranch_scc1 %s" % lab)
        if PFM & 1:
            a("s_mov_b32 s%d, %d" % (t0, n * 32 * 6144))
            a("s_mov_b32 s%d, %d" % (t1, n * 32 * 7168))
            a("buffer_load_dword a%d, v%d, %s, s%d offen" % (A_PD, V_P0, s4(R_WQ), t0))
            a("buffer_load_dword a%d, v%d, %s, s%d offen" % (A_PD - 1, V_P1, s4(R_W1), t1))
        if PFM & 2:
            a("s_mov_b32 s%d, %d" % (t0, n * 4096))
            a("buffer_load_dword a%d, v%d, %s, s%d offen" % (A_PD, V_P2, s4(R_WS), t0))
        a.label(lab)
    if PFM & 4:
        a("s_and_b32 s%d, s2, 1" % t0)
        a("v_lshrrev_b32 v%d, 5, v%d" % (T + 2, L))
        a("v_cmp_ne_u32 vcc, s%d, v%d" % (t0, T + 2))
        a("s_nop 1")
        a("v_cndmask_b32 v%d, v%d, v%d, vcc" % (V_P0, V_P0, T + 6))
        a("v_cndmask_b32 v%d, v%d, v%d, vcc" % (V_P1, V_P1, T + 6))
    PW = cfg.get("f_pw", 2); PW0 = cfg.get("f_pw0", 12)
    V_PW = 231
    a("v_lshlrev_b32 v%d, 7, v%d" % (V_PW, L))
    a("v_cmp_le_u32 vcc, 56, v%d" % L)
    a("s_nop 1")
    a("v_cndmask_b32 v%d, v%d, v%d, vcc" % (V_PW, V_PW, T + 6))
    def touchw(cls):
        lab = a.newlabel("F_pw")
        if cls is not None:
            a("s_cmp_lg_u32 s%d, %d" % (sCLS, cls))
            a("s_cbranch_scc1 %s" % lab)
        a("s_lshl_b32 s%d, s2, 2" % t0)
        a("s_add_u32 s%d, s%d, s%d" % (t0, t0, sW))
        a("s_mul_i32 s%d, s%d, 7168" % (t1, t0))
        a("buffer_load_dword a%d, v%d, %s, s%d offen" % (A_PD, V_PW, s4(R_W2), t1))
        a("s_lshl_b32 s%d, s%d, 11" % (t1, t0))
        a("s_mov_b64 exec, 0xffff")
        a("buffer_load_dword a%d, v%d, %s, s%d offen" % (A_PD - 1, V_PW, s4(R_WO), t1))
        a("s_mov_b64 exec, -1")
        a.label(lab)
    def touchp(k):
        a("s_lshl_b32 s%d, s2, 2" % t0)
        a("s_add_u32 s%d, s%d, s%d" % (t0, t0, sW))
        if k < 2:
            a("s_mul_i32 s%d, s%d, 7168" % (t1, t0))
            a("s_mov_b64 exec, 0xfffffff")
            a.vmem("buffer_load_dword a%d, v%d, %s, s%d offen offset:%d" % (A_PD, V_PW, s4(R_W2), t1, k * 3584), "T")
        else:
            a("s_lshl_b32 s%d, s%d, 11" % (t1, t0))
            a("s_mov_b64 exec, 0xffff")
            a.vmem("buffer_load_dword a%d, v%d, %s, s%d offen" % (A_PD, V_PW, s4(R_WO), t1), "T")
        a("s_mov_b64 exec, -1")
    def touchx(k):
        a("s_lshr_b32 s%d, s2, 3" % t0)
        a("s_lshl_b32 s%d, s%d, 2" % (t0, t0))
        a("s_add_u32 s%d, s%d, s%d" % (t0, t0, sW))
        a("s_lshl_b32 s%d, s%d, 7" % (t1, sQ))
        a("s_add_u32 s%d, s%d, s%d" % (t0, t0, t1))
        if k < 2:
            a("s_mul_i32 s%d, s%d, 14336" % (t1, t0))
            if k: a("s_add_u32 s%d, s%d, 7168" % (t1, t1))
            a("buffer_load_dword a%d, v%d, %s, s%d offen" % (A_PD - k, V_PW, s4(R_W2), t1))
        else:
            a("s_lshl_b32 s%d, s%d, 12" % (t1, t0))
            a("s_mov_b32 exec_hi, 0")
            a("buffer_load_dword a%d, v%d, %s, s%d offen" % (A_PD, V_PW, s4(R_WO), t1))
            a("s_mov_b32 exec_hi, -1")
    pfq = list(range(PF0, KS)) if PFM else []
    PFA = cfg.get("f_pfa", 30)
    a("v_lshrrev_b32 v%d, 5, v%d" % (T + 2, L))
    a("v_mul_u32_u24 v%d, %d, v%d" % (T + 2, REG, T + 2))
    a("v_and_b32 v%d, 3, v%d" % (T + 3, L))
    a("v_lshl_add_u32 v%d, v%d, 3, v%d" % (T + 2, T + 3, T + 2))
    a("v_bfe_u32 v%d, v%d, 2, 2" % (T + 3, L))
    a("v_bfe_u32 v%d, v%d, 4, 1" % (T + 4, L))
    a("v_lshl_add_u32 v%d, v%d, 6, v%d" % (V_RD, T + 3, T + 2))
    a("v_lshl_add_u32 v%d, v%d, 9, v%d" % (V_RD, T + 4, V_RD))
    a("v_lshl_add_u32 v%d, v%d, 5, v%d" % (V_RD, T + 4, V_RD))
    a("v_xor_b32 v%d, 32, v%d" % (V_RD + 1, V_RD))
    a("v_lshl_add_u32 v%d, v%d, 5, v%d" % (V_RD + 2, T + 3, T + 2))
    a("v_lshl_add_u32 v%d, v%d, 7, v%d" % (V_RD + 2, T + 4, V_RD + 2))
    for st_ in (1, 2):
        for x in range(3):
            a("v_add_u32 v%d, %d, v%d" % (V_RD + 3 * st_ + x, st_ * 2 * STAGE, V_RD + x))
    a("s_lshl_b32 s%d, s%d, 7" % (sKV, sJ))
    a("s_lshl_b32 s%d, s%d, 4" % (t0, sI))
    a("s_add_u32 s%d, s%d, s%d" % (sKV, sKV, t0))
    a("s_lshl_b32 s%d, s%d, 2" % (t0, sW))
    a("s_add_u32 s%d, s%d, s%d" % (sKV, sKV, t0))
    a("s_lshl_b32 s%d, s%d, 10" % (sKV, sKV))
    a("s_add_u32 s%d, s%d, 0x%x" % (sKV2, sKV, WS_V))
    a("s_add_u32 s%d, s%d, 0x%x" % (sKV, sKV, WS_K))
    a("s_sub_u32 s%d, s%d, 16384" % (sKP, sKV))
    a("s_sub_u32 s%d, s%d, 16384" % (sKP2, sKV2))
    a("s_cmp_eq_u32 s%d, 0" % sI)
    a("s_cselect_b32 s%d, 0x40000000, s%d" % (sKP, sKP))
    a("s_cselect_b32 s%d, 0x40000000, s%d" % (sKP2, sKP2))
    a("s_lshl_b32 s%d, s2, 2" % sFO)
    a("s_add_u32 s%d, s%d, s%d" % (sFO, sFO, sW))
    a("s_lshl_b32 s%d, s%d, 7" % (sFO, sFO))
    a("s_add_u32 s%d, s%d, 0x%x" % (sFO, sFO, WS_FL))
    a("s_add_u32 s%d, s%d, 1" % (t0, sI))
    a("s_and_b32 s%d, s%d, 3" % (t1, t0))
    a("s_lshl_b32 s%d, s%d, 3" % (t1, t1))
    a("s_lshr_b32 s%d, s%d, 2" % (t0, t0))
    a("s_or_b32 s%d, s%d, s%d" % (t1, t1, t0))
    a("s_and_b32 s%d, s2, 0xe6" % t0)
    a("s_or_b32 s%d, s%d, s%d" % (t1, t1, t0))
    a("s_lshl_b32 s%d, s%d, 2" % (t1, t1))
    a("s_add_u32 s%d, s%d, s%d" % (t1, t1, sW))
    a("s_lshl_b32 s%d, s%d, 7" % (t1, t1))
    a("s_add_u32 s%d, s%d, 0x%x" % (sFK, t1, WS_FL + 12))
    a("s_cmp_eq_u32 s%d, 7" % sI)
    a("s_cselect_b32 s%d, 0x40000000, s%d" % (sFK, sFK))
    a("v_cmp_ne_u32 vcc, 0, v%d" % L)
    a("v_mov_b32 v%d, 1" % V_ONE)
    a("v_and_b32 v%d, 31, v%d" % (V_PL, L))
    a("v_cndmask_b32 v%d, 0, v%d, vcc" % (V_FL0, T + 6))
    a("v_lshlrev_b32 v%d, 2, v%d" % (V_PL, V_PL))
    a("s_and_b32 s%d, s2, 31" % t0)
    a("s_lshl_b32 s%d, s%d, 2" % (t0, t0))
    a("s_add_u32 s%d, s%d, s%d" % (t0, t0, sW))
    a("s_lshl_b32 s%d, s%d, 7" % (t0, t0))
    a("s_lshl_b32 s%d, s%d, 2" % (t1, sN))
    a("s_add_u32 s%d, s%d, s%d" % (t0, t0, t1))
    a("s_add_u32 s%d, s%d, 0x%x" % (t0, t0, WS_FL))
    a("v_lshlrev_b32 v%d, 14, v%d" % (V_FG, L))
    a("v_add_u32 v%d, s%d, v%d" % (V_FG, t0, V_FG))
    a("v_cmp_le_u32 vcc, 8, v%d" % L)
    a("s_lshl_b32 s%d, s%d, 12" % (t0, sW))
    a("s_add_u32 s%d, s%d, %d" % (t0, t0, KVB))
    a("v_cndmask_b32 v%d, v%d, v%d, vcc" % (V_FG, V_FG, T + 6))
    a("v_add_u32 v%d, s%d, v%d" % (V_KVW, t0, V_L16))
    a("s_lshl_b32 s%d, s%d, 2" % (t0, sI))
    a("s_add_u32 s%d, s%d, s%d" % (t0, t0, sW))
    a("s_lshl_b32 s%d, s%d, 17" % (sXO, t0))
    a("s_mul_i32 s%d, s%d, 144" % (t0, t0))
    a("s_mul_i32 s%d, s%d, 36" % (t1, sQ))
    a("s_add_u32 s%d, s%d, s%d" % (t0, t0, t1))
    a("s_lshl_b32 s%d, s%d, 12" % (t0, t0))
    a("s_add_u32 s%d, s%d, 0x%x" % (t0, t0, WS_A2))
    a("s_add_u32 s%d, s%d, %d" % (sAE, t0, 28 * 4096))
    a("s_lshl_b32 s%d, s%d, 12" % (t1, sN))
    a("s_add_u32 s%d, s%d, s%d" % (sO, sAE, t1))
    a("s_mul_i32 s%d, s%d, 7" % (t1, sN))
    a("s_add_u32 s%d, s%d, s%d" % (t1, t1, sJ1))
    a("s_lshl_b32 s%d, s%d, 11" % (t1, t1))
    a("s_add_u32 s%d, s%d, s%d" % (sH, t0, t1))
    a("s_add_u32 s%d, s%d, 4096" % (sH + 1, sH))
    a("s_add_u32 s%d, s%d, 8192" % (sH + 2, sH))
    a("s_mul_i32 s%d, s%d, %d" % (sH + 3, sJ1, -4096 + 8 - 3 * 4096))
    a("s_add_u32 s%d, s%d, %d" % (sH + 3, sH + 3, 3 * 4096))
    a("s_add_u32 s%d, s%d, s%d" % (sH + 3, sH + 3, sH))
    a("s_lshl_b32 s%d, s%d, 8" % (t0, sN))
    a("s_add_u32 s%d, s%d, s%d" % (sXO, sXO, t0))
    a("s_lshl_b32 s%d, s%d, 6" % (t0, sQ))
    a("s_add_u32 s%d, s%d, s%d" % (sXO, sXO, t0))
    a("s_mov_b32 s%d, 0x%x" % (sSC, f2u(QSCALE)))
    def spin(mask, skip_if_i0=False):
        l0 = a.newlabel("F_sp"); l1 = a.newlabel("F_ok")
        if skip_if_i0:
            a("s_cmp_eq_u32 s%d, 0" % sI)
            a("s_cbranch_scc1 %s" % l1)
        a("s_mov_b32 s%d, 0x%x" % (sSP, SPIN))
        a.label(l0)
        a("v_cmp_ne_u32 vcc, 0, v%d" % V_POLL)
        a("s_and_b32 s%d, vcc_lo, 0x%x" % (t0, mask))
        a("s_cmp_eq_u32 s%d, 0x%x" % (t0, mask))
        a("s_cbranch_scc1 %s" % l1)
        a("buffer_load_dword v%d, v%d, %s, s%d offen sc1" % (V_POLL, V_PL, s4(R_WS), sFO))
        a("s_sub_u32 s%d, s%d, 1" % (sSP, sSP))
        a("s_waitcnt vmcnt(0)")
        a("s_cbranch_scc0 %s" % l0)
        a.label(l1)
    def poll_issue(tag):
        a.vmem("buffer_load_dword v%d, v%d, %s, s%d offen sc1" % (V_POLL, V_PL, s4(R_WS), sFO), tag)

    if FLN:
        while bops: issue1(bops.pop(0))
        if PW & 8: touchw(None)
        nb2 = cfg.get("f_lnb2", 3)
        b2 = [o for o in order if o[0] == "B" and o[1] < nb + nb2]
        for o in b2: order.remove(o)
        if cfg.get("f_lnb2e", 0):
            while b2: issue1(b2.pop(0))
        if PW & 8: a.vm += ["T", "T"]
        a.wait(vm="XS")
        stampr("lnd")
        a("s_barrier")
        lab = a.newlabel("F_ln"); l2 = a.newlabel("F_lp"); l3 = a.newlabel("F_lq"); l4 = a.newlabel("F_la")
        a("s_lshl_b32 s%d, s%d, 5" % (t0, sI))
        a("v_mov_b32 v1, s%d" % t0)
        a("s_cmp_lg_u32 s%d, 0" % sW)
        a("s_cbranch_scc1 %s" % lab)
        a("v_add_u32 v82, 1, v81")
        a("s_lshl_b64 exec, 1, s%d" % sJ)
        a("buffer_store_dword v82, v80, %s, 0 offen sc1" % s4(R_WS))
        a("s_mov_b64 exec, -1")
        a.label(lab)
        while b2: issue1(b2.pop(0))
        if PW & 16: touchw(None)
        a("s_cmp_lg_u32 s%d, 1" % sW)
        a("s_cbranch_scc1 %s" % l4)
        a("s_mov_b64 exec, 1")
        a("global_atomic_add v1, v%d, s[100:101] sc1" % V_ONE)
        a("s_mov_b64 exec, -1")
        a.label(l4)
        PALL = cfg.get("f_pall", 0)
        if not PALL:
            a("s_cmp_lg_u32 s%d, 0" % sW)
            a("s_cbranch_scc1 %s" % l3)
        else:
            a("s_lshl_b32 s%d, s%d, 3" % (t1, sW))
            a("s_lshl_b32 s%d, 0xff, s%d" % (t1, t1))
        a("s_mov_b32 s%d, 0x%x" % (sSP, SPIN))
        a.label(l2)
        a("buffer_load_dword v82, v80, %s, 0 offen sc1" % s4(R_WS))
        a("s_waitcnt vmcnt(0)")
        a("v_cmp_ne_u32 vcc, v81, v82")
        if PALL:
            a("s_and_b32 s%d, vcc_lo, s%d" % (t0, t1))
            a("s_cmp_eq_u32 s%d, s%d" % (t0, t1))
        else: a("s_cmp_eq_u32 vcc_lo, -1")
        a("s_cbranch_scc1 %s" % l3)
        a("s_sub_u32 s%d, s%d, 1" % (sSP, sSP))
        a("s_cbranch_scc1 %s" % l3)
        a("s_and_b32 s%d, s%d, 7" % (t0, sSP))
        a("s_cbranch_scc1 %s" % l2)
        a("global_load_dword v2, v1, s[100:101] sc1")
        a("s_waitcnt vmcnt(0)")
        a("v_readfirstlane_b32 s%d, v2" % t0)
        a("s_cmp_lt_u32 s%d, 32" % t0)
        a("s_cbranch_scc1 %s" % l2)
        a.label(l3)
        if not PALL: a("s_barrier")
        stampr("lnp")
        for _ in range(8): issue1(order.pop(0))
        order[:0] = bops
    gi = []
    def grp(units, s0, s1, tiles, C):
        s = s0
        while s < s1:
            c = min(C, s1 - s)
            for t in tiles:
                g0 = len(units); gn = gi[-1][2] + 1 if gi else 0
                for k in range(c):
                    units.append((s + k, t)); gi.append((g0, c, gn))
            s += c
    units = []
    grp(units, 0, C1S, range(NT), 2)
    grp(units, C1S, S1, range(NT), C1)
    grp(units, S1, KS, (2, 3, 4, 5), C1K)
    UKV = len(units)
    grp(units, S1, KS, (6, 7, 8, 9), C1T)
    UH01 = len(units)
    grp(units, S1, KS, (10, 11, 12, 0, 1), C1T)
    NU = len(units)
    last_unit_of_stage = {}
    last_unit_of_step = {}
    for u, (s, t) in enumerate(units):
        last_unit_of_stage[s // 2] = u; last_unit_of_step[s] = u
    stt = dict(ready=-1, free=set(), waited=-1, issued=-1)
    def barrier():
        a("s_barrier")
        for g, lu in last_unit_of_stage.items():
            if lu <= stt["waited"]: stt["free"].add(g)
    def can1(op):
        if op[0] == "B": return op[1] < NS or (op[1] - NS) in stt["free"]
        return op[1] < RA or last_unit_of_step[op[1] - RA] <= stt["issued"]
    def flush1(tag):
        while any(o[:2] == tag for o in order):
            op = order.pop(0)
            assert can1(op), (op, stt)
            if cfg.get("verbose"): print("late flush", op, file=sys.stderr)
            issue1(op)
    def bread1(u, j2):
        s, t = units[u]
        slot = slot1(s // 2); st_ = slot // 2
        off = (slot % 2) * STAGE + (s % 2) * 2 * REG + j2 * 256
        if t < 12: off += PAIRPOS[t // 2] * 1024; vr = V_RD + 3 * st_ + (t % 2)
        else: off += 6144; vr = V_RD + 3 * st_ + 2
        a.lds("ds_read_b64_tr_b16 %s, v%d offset:%d" % (r2("a", BR + (u % RB) * 4 + j2 * 2), vr, off), ("b", u))
    def need1(u):
        g = units[u][0] // 2
        if g > stt["ready"]:
            flush1(("B", g)); a.wait(vm=("B", g)); barrier(); stt["ready"] = g
    def pack(c0, c1, relu=False):
        ops = []
        for hh, c in enumerate((c0, c1)):
            if c is None: continue
            for e2 in range(2):
                ops.append("v_cvt_pk_bf16_f32 v%d, v%d, v%d" % (c0 + 2 * hh + e2, c + 2 * e2, c + 2 * e2 + 1))
            if relu:
                for e2 in range(2):
                    ops.append("v_pk_max_i16 v%d, v%d, 0" % (c0 + 2 * hh + e2, c0 + 2 * hh + e2))
        return ops
    HF = ["sc1", "", "nt", "sc0"][cfg.get("f_hf", 0)]
    def hstore(p, mt):
        if p < 3: a.vmem("buffer_store_dwordx4 %s, v%d, %s, s%d offen offset:%d %s" % (r4("v", acc(mt, 6 + 2 * p)), V_L16, s4(R_WS), sH + p, mt * 1024, HF), "H")
        else: a.vmem("buffer_store_dwordx2 %s, v%d, %s, s%d offen offset:%d %s" % (r2("v", acc(mt, 12)), V_L16, s4(R_WS), sH + 3, mt * 1024, HF), "H")
    need1(0)
    stampr("bar0")
    for u in range(DB):
        need1(u)
        bread1(u, 0); bread1(u, 1)
    kvq = [(acc(mt, 2), acc(mt, 3), sKV, mt * 1024, 16384 + mt * 1024) for mt in range(MT)] + \
          [(acc(2 * b, 4 + dt), acc(2 * b + 1, 4 + dt), sKV2, (2 * b + dt) * 1024, 49152 + (2 * b + dt) * 1024) for b in range(2) for dt in range(2)]
    NREST = NU - UKV
    UFLAG = UKV + cfg.get("f_uf", 28)
    UPOLL = UFLAG + cfg.get("f_up", 14)
    UCHK = min(UPOLL + cfg.get("f_uc", 8), NU - 1)
    UPW = UCHK + cfg.get("f_uw", 14)
    V2_DMA = 209; V_XO = 211; V2_RD = 232; V2_B = 231
    bias = [232, 236, 240, 244]; VONES = 248; VM = 252
    sB2 = sBQ; sBO = sBV
    class Rec:
        def __init__(self): self.l = []
        def __call__(self, x): self.l.append(x)
    su = Rec(); TT = VM
    su("v_lshrrev_b32 v%d, 4, v%d" % (TT, L))
    su("v_lshlrev_b32 v%d, 11, v%d" % (V2_DMA, TT))
    su("v_lshlrev_b32 v%d, 1, v%d" % (TT, TT))
    su("v_and_b32 v%d, 15, v%d" % (TT + 1, L))
    su("v_xor_b32 v%d, v%d, v%d" % (TT, TT, TT + 1))
    su("v_lshl_add_u32 v%d, v%d, 4, v%d" % (V2_DMA, TT, V2_DMA))
    su("v_xor_b32 v%d, 128, v%d" % (V2_DMA + 1, V2_DMA))
    su("v_add_u32 v%d, %d, v%d" % (V2_DMA + 1, 8192 - 1024, V2_DMA + 1))
    su("v_lshrrev_b32 v%d, 4, v%d" % (TT, L))
    su("v_lshlrev_b32 v%d, 2, v%d" % (TT, TT))
    for e in range(4):
        su("v_add_u32 v%d, %d, v%d" % (TT + 2, e, TT))
        su("v_cmp_le_u32 s[%d:%d], v%d, v%d" % (sMK + 2 * e, sMK + 2 * e + 1, TT + 2, TT + 1))
    su("s_lshl_b32 s%d, s%d, 14" % (t2, sW))
    su("s_lshl_b32 s%d, s%d, 8" % (t1, sN))
    su("s_add_u32 s%d, s%d, s%d" % (t2, t2, t1))
    su("s_lshl_b32 s%d, s%d, 19" % (sBO, sQ))
    su("s_add_u32 s%d, s%d, s%d" % (sBO, sBO, t2))
    su("s_mul_i32 s%d, s%d, %d" % (sB0, sQ, 896 * 2048))
    su("s_add_u32 s%d, s%d, s%d" % (sB0, sB0, t2))
    su("s_add_u32 s%d, s%d, %d" % (sBE, sB0, 896 * 2048))
    su("s_mul_i32 s%d, s%d, 7" % (t1, sN))
    su("s_add_u32 s%d, s%d, s%d" % (t1, t1, sJ1))
    su("s_lshl_b32 s%d, s%d, 15" % (t1, t1))
    su("s_add_u32 s%d, s%d, s%d" % (sB2, sB0, t1))
    su("s_lshl_b32 s%d, s%d, 11" % (sLB, sW))
    LIN = cfg.get("f_lin", 1)
    if LIN:
        su("s_sub_u32 s%d, s%d, %d" % (sA, sAE, 28 * 4096))
        su("s_mov_b32 s%d, s%d" % (sAE, sH))
        su("s_add_u32 s%d, s%d, %d" % (sA0, sH, 3 * 4096))
        su("s_mov_b32 s%d, s%d" % (sBW, sB0))
        su("s_mov_b32 s%d, s%d" % (sBE, sB2))
        su("s_add_u32 s%d, s%d, %d" % (sB0, sB2, 3 * 65536))
    else:
        su("s_add_u32 s%d, s%d, %d" % (sA, sH, 3 * 4096))
        su("s_sub_u32 s%d, s%d, %d" % (sA0, sAE, 28 * 4096))
    su("s_cmp_eq_u32 s%d, s%d\ns_cselect_b32 s%d, s%d, s%d" % (sA, sAE, sA, sA0, sA))
    su("s_lshl_b32 s%d, s%d, 2" % (t1, sI))
    su("s_add_u32 s%d, s%d, s%d" % (t1, t1, sW))
    for gq in range(4):
        su("s_cmp_lt_u32 s%d, %d\ns_cselect_b32 s%d, 0x%x, 0" % (t1, 4 - gq, t2, f2u(-1e30)))
        for e in range(4): su("v_mov_b32 v%d, s%d" % (bias[gq] + e, t2))
    for e in range(4): su("v_mov_b32 v%d, 0x3f803f80" % (VONES + e))
    su("v_lshrrev_b32 v%d, 2, v%d" % (TT, L))
    su("v_and_b32 v%d, 7, v%d" % (TT + 2, TT))
    su("v_lshlrev_b32 v%d, 8, v%d" % (TT, TT))
    su("v_and_b32 v%d, 3, v%d" % (TT + 1, L))
    su("v_lshl_add_u32 v%d, v%d, 3, v%d" % (TT, TT + 1, TT))
    su("v_lshl_add_u32 v%d, v%d, 5, v%d" % (V2_B, TT + 2, TT))
    su("s_lshl_b32 s%d, s%d, 6" % (t1, sQ))
    su("s_xor_b32 s%d, s%d, 192" % (t1, t1))
    su("v_xor_b32 v%d, s%d, v%d" % (V2_B, t1, V2_B))
    su("v_mov_b32 v%d, 0xffff" % TT)
    su("v_mov_b32 v%d, 0xffff0000" % (TT + 1))
    su("v_cndmask_b32 v%d, 0, v%d, s[%d:%d]" % (VM + 2, TT, sMK, sMK + 1))
    su("v_cndmask_b32 v%d, 0, v%d, s[%d:%d]" % (VM + 3, TT, sMK + 4, sMK + 5))
    su("v_cndmask_b32 v%d, 0, v%d, s[%d:%d]" % (TT, TT + 1, sMK + 2, sMK + 3))
    su("v_cndmask_b32 v%d, 0, v%d, s[%d:%d]" % (TT + 1, TT + 1, sMK + 6, sMK + 7))
    su("v_or_b32 v%d, v%d, v%d" % (VM + 2, VM + 2, TT))
    su("v_or_b32 v%d, v%d, v%d" % (VM + 3, VM + 3, TT + 1))
    SPF = cfg.get("f_spf", 0)
    if SPF:
        su("s_lshr_b32 s%d, s2, 3" % t1)
        su("s_lshl_b32 s%d, s%d, 1" % (t1, t1))
        su("s_and_b32 s%d, s2, 1" % t2)
        su("s_add_u32 s%d, s%d, s%d" % (t1, t1, t2))
        su("s_lshl_b32 s%d, s%d, 2" % (t1, t1))
        su("s_add_u32 s%d, s%d, s%d" % (t1, t1, sW))
        su("s_lshl_b32 s%d, s%d, 7" % (t1, t1))
        su("s_mul_i32 s%d, s%d, %d" % (t2, sQ, 14336 * 128))
        su("s_add_u32 s%d, s%d, s%d" % (t2, t2, t1))
        su("s_add_u32 s%d, s%d, s%d\ns_addc_u32 s%d, s%d, 0" % (P_W2, P_W2, t2, P_W2 + 1, P_W2 + 1))
        su("s_add_u32 s%d, s%d, %d\ns_addc_u32 s%d, s%d, 0" % (P_WQ, P_W2, 28 * 32768, P_WQ + 1, P_W2 + 1))
        su("s_lshl_b32 s%d, s%d, 19" % (t2, sQ))
        su("s_add_u32 s%d, s%d, s%d" % (t2, t2, t1))
        su("s_add_u32 s%d, s%d, s%d\ns_addc_u32 s%d, s%d, 0" % (P_WO, P_WO, t2, P_WO + 1, P_WO + 1))
    V_T128 = V_XO
    TCN = cfg.get("f_tc", 0)
    su("v_lshlrev_b32 v%d, %d, v%d" % (V_T128, 15 if TCN else 7, L))
    if TCN:
        su("s_lshr_b32 s%d, s2, 3" % t1)
        su("s_lshl_b32 s%d, s%d, 1" % (t1, t1))
        su("s_and_b32 s%d, s2, 1" % t2)
        su("s_add_u32 s%d, s%d, s%d" % (t1, t1, t2))
        su("s_lshl_b32 s%d, s%d, 2" % (t1, t1))
        su("s_add_u32 s%d, s%d, s%d" % (t1, t1, sW))
        su("s_lshl_b32 s%d, s%d, 7" % (t1, t1))
        su("s_mul_i32 s%d, s%d, %d" % (sCLS, sQ, 14336 * 128))
        su("s_add_u32 s%d, s%d, s%d" % (sCLS, sCLS, t1))
        su("s_lshl_b32 s%d, s%d, 19" % (t3, sQ))
        su("s_add_u32 s%d, s%d, s%d" % (t3, t3, t1))
    def selftouch(so, half):
        if half: a("s_mov_b32 exec_hi, 0")
        a.vmem("buffer_load_dword a%d, v%d, %s, s%d offen sc1" % (A_PD, V_T128, s4(R_WS), so), "T")
        if half: a("s_mov_b32 exec_hi, -1")
    HK = cfg.get("f_hk", 0)
    if HK:
        assert RA == 12 and D1 == 8 and BR + RB * 4 <= 232 and UPW < NU
        kreg = lambda kt: 128 + 4 * kt if kt < 16 else 232 + 4 * (kt - 16)
        VF = 0
    else:
        kreg = lambda kt: 4 * kt
        VF = 80
    def kread(kt): a.lds("ds_read_b128 %s, v%d offset:%d" % (r4("a", kreg(kt)), V_KVW, kt * 1024), ("k", kt))
    def kpw(x):
        c0, c1, so, go, lo = kvq[x]
        a.wait(vm=("KP", x))
        a.lds("ds_write_b128 v%d, %s offset:%d" % (V_KVW, r4("v", c1), lo - 16384), "kvw")
    def codepf():
        lab = a.newlabel("F_pc")
        a("s_getpc_b64 s[%d:%d]" % (R_WQ, R_WQ + 1))
        a.label(lab)
        a("s_and_b32 s%d, s%d, 0xffff" % (R_WQ + 1, R_WQ + 1))
        a("s_mov_b32 s%d, CODE_END - %s" % (R_WQ + 2, lab))
        a("s_lshr_b32 s%d, s2, 3" % t0)
        a("s_lshl_b32 s%d, s%d, 2" % (t0, t0))
        a("s_add_u32 s%d, s%d, s%d" % (t0, t0, sW))
        a("s_lshl_b32 s%d, s%d, 9" % (t0, t0))
        a("s_mov_b64 exec, 15")
        a.vmem("buffer_load_dword a%d, v%d, %s, s%d offen" % (A_PD, V_PW, s4(R_WQ), t0), "T")
        a("s_mov_b64 exec, -1")
    seenA = set()
    ramp = (RA - 1 - LA) / float(S1 * NT)
    WM = cfg.get("f_wm", 200) / 100.0
    W0 = cfg.get("f_w0", 100) / 100.0
    UEND = S1 * NT + cfg.get("f_uend", 8)
    wts = [0.0] + [W0 * sum(1 for o in order if (o[1] if o[0] == "B" else o[1] // 2) == g) / 15.0 for g in (1, 2, 3)] + [WM if g % 4 == 0 else 1.0 for g in range(4, 16)]
    noB = set(g for g in range(16) if not any(o[0] == "B" and o[1] == g for o in order))
    tau = [0.0]
    for g in range(16): tau.append(tau[-1] + wts[g])
    tau = [x * UEND / tau[-1] for x in tau]
    def due(op):
        g = op[1] if op[0] == "B" else op[1] // 2
        idx = op[2] if op[0] == "B" else 7 + (op[1] % 2) * 4 + op[2]
        if cfg.get("f_wb", 0) and op[0] == "B" and op[2] > 3: idx = 3
        if g in noB: return tau[g] + (tau[g + 1] - tau[g]) * (idx - 7) / 8.0
        return tau[g] + (tau[g + 1] - tau[g]) * idx / 15.0
    DF = cfg.get("f_df", 0); PZ0 = cfg.get("f_pz0", 4)
    THR1 = cfg.get("f_thr1", 63)
    side = G.side
    def prewait1(u):
        u += gi[u][1] - 1
        s, t = units[u]
        if s not in seenA:
            flush1(("A", s)); seenA.add(s)
            r = a.wait(vm=("A", s), lg=("b", u))
        else: r = a.wait(lg=("b", u))
        stt["waited"] = u
        return r
    prewait1(0)
    for u in range(NU):
        u0, C_, gn = gi[u]; kk = u - u0
        s, t = divmod(u, NT) if u < S1 * NT else units[u]
        un = u + DB
        if un < NU: need1(un)
        if u in ((S1 - 4) * NT + 2, (S1 - 2) * NT + 2, S1 * NT + 2): barrier()
        if S1 // 2 <= 12 and u == last_unit_of_stage[12] + 2: barrier()
        if pfq and u % 4 == 2 and pfq[0] - 1 <= (u + PFA) / NT + LA + ramp * (u + PFA): touch(pfq.pop(0))
        if PW & 4:
            for k in range(3):
                if u == S1 * NT + cfg.get("f_px0", 4) + k * cfg.get("f_pxd", 16): touchx(k)
        if PW == 1 and u == UKV - PW0: touchw(None)
        if PW & 3 == 2 and u < S1 * NT and t == 8 and PW0 <= s < PW0 + 8: touchw((s + 4) & 7)
        if u == 16 * NT: stampr("g1half")
        if u < S1 * NT and t == 0: stampr("g1s%d" % s)
        if u == S1 * NT: stampr("g1tail")
        if u == UKV:
            stampr("g1kv")
            if cfg.get("f_cpf", 1): codepf()
        if DF and u == 3 * NT:
            side += ["v_mov_b32 v%d, -1" % (T + e) for e in range(4)]
            side += ["s_lshl_b32 s%d, s2, 2" % t3, "s_add_u32 s%d, s%d, s%d" % (t3, t3, sW), "s_mul_i32 s%d, s%d, 12288" % (t3, t3),
                     "s_add_u32 s%d, s%d, 0x%x" % (t3, t3, WS_XC),
                     "v_xor_b32 v%d, 3, v%d" % (T + 4, L), "v_lshlrev_b32 v%d, 1, v%d" % (T + 4, T + 4), "v_xor_b32 v%d, s2, v%d" % (T + 4, T + 4),
                     "v_lshlrev_b32 v%d, 9, v%d" % (T + 4, T + 4), "v_lshl_add_u32 v%d, v%d, 2, v%d" % (T + 4, L, T + 4)]
        if DF and u < S1 * NT and t == 4 and PZ0 <= s < PZ0 + 12:
            k_ = s - PZ0
            side.append(("m", lambda k_=k_: a.vmem("buffer_store_dwordx4 %s, v%d, %s, s%d offen offset:%d sc1" % (r4("v", T), V_L16, s4(R_WS), t3, (k_ % 4) * 1024), "PZ")))
            if k_ % 4 == 3: side.append("s_add_u32 s%d, s%d, 4096" % (t3, t3))
        if DF and u == (PZ0 + 14) * NT + 5:
            assert a.vm.count("PZ") == 12
            a.wait(vm="PZ")
            a("s_lshl_b32 s%d, s%d, 7" % (t3, sW))
            a("s_add_u32 s%d, s%d, 0x%x" % (t3, t3, WS_FL))
            a("s_mov_b64 exec, 7")
            a.vmem("buffer_store_dword v%d, v%d, %s, s%d offen sc1" % (V_ONE, T + 4, s4(R_WS), t3), "RF")
            a("s_mov_b64 exec, -1")
        if FLN and u == 20 * NT + 3:
            a("v_and_b32 v%d, 7, v%d" % (V_P0, L))
            a("v_lshlrev_b32 v%d, 5, v%d" % (V_P0, V_P0))
            a.vmem("global_load_dword v%d, v%d, s[100:101] sc1" % (V_POLL, V_P0), "CN")
        if FLN and u == 22 * NT + 3:
            a.wait(vm="CN")
            l0 = a.newlabel("F_cn"); l1 = a.newlabel("F_ok")
            a("s_mov_b32 s%d, 0x%x" % (sSP, SPIN))
            a.label(l0)
            a("v_cmp_le_u32 vcc, 32, v%d" % V_POLL)
            a("s_cmp_eq_u32 vcc_lo, -1")
            a("s_cbranch_scc1 %s" % l1)
            a("global_load_dword v%d, v%d, s[100:101] sc1" % (V_POLL, V_P0))
            a("s_sub_u32 s%d, s%d, 1" % (sSP, sSP))
            a("s_waitcnt vmcnt(0)")
            a("s_cbranch_scc0 %s" % l0)
            a.label(l1)
        if u == UFLAG:
            stampr("g1flag0")
            assert a.vm.count("KV") == 8
            a.wait(vm="KV")
            stampr("g1flag1")
            a.vmem("buffer_store_dword v%d, v%d, %s, s%d offen sc1" % (V_ONE, V_FL0, s4(R_WS), sFK), "FK")
        if u == UPOLL: poll_issue("PK")
        if u == UCHK:
            a.wait(vm="PK")
            spin(1 << 3, skip_if_i0=True)
            stampr("g1chk")
            if HK:
                def kd(so, k, chk):
                    if chk: assert 12 in stt["free"]
                    a.vmem("buffer_load_dwordx4 v%d, %s, s%d offen offset:%d sc1 lds" % (V_L16, s4(R_WS), so, k * 1024), "KD")
                new_ = ["s_lshl_b32 s%d, s%d, 12\ns_add_u32 m0, s%d, %d" % (t0, sW, t0, KVB + 32768), None]
                new_ += [("m", lambda k=k: kd(sKP2, k, False)) for k in range(4)]
                new_ += ["s_sub_u32 m0, m0, 32768", None]
                new_ += [("m", lambda k=k: kd(sKP, k, True)) for k in range(4)]
                side[:0] = new_
            else:
              for x, (c0, c1, so, go, lo) in enumerate(kvq):
                def f(c1=c1, so=(sKP if x < 4 else sKP2), go=go, x=x):
                    a.vmem("buffer_load_dwordx4 %s, v%d, %s, s%d offen offset:%d sc1" % (r4("v", c1), V_L16, s4(R_WS), so, go), ("KP", x))
                side.insert(x, ("m", f))
        if HK and u == UPW:
            assert a.vm.count("KD") == 8 and a.lg.count("kvw") == 8
            a.wait(vm="KD", lg="kvw"); barrier()
            stampr("g1kb")
            side[:0] = [("v", lambda kt=kt: kread(kt)) for kt in range(20)]
        nxt = None
        if order and can1(order[0]) and len(G.sal) <= 1 and due(order[0]) <= u: nxt = order.pop(0)
        if PW & 32 and nxt:
            tk = cfg.get("f_tk", 0)
            key = ("B", nxt[1], tk) if tk < 7 else ("A", nxt[1], (tk - 7) % 4)
            g_ = nxt[1] if nxt[0] == "B" else nxt[1] // 2
            if nxt == key and g_ in (4, 8, 12) and (nxt[0] == "B" or nxt[1] % 2 == (tk - 7) // 4): touchp(g_ // 4 - 1)
        for mt in range(MT):
            m_, k_ = divmod(kk * MT + mt, C_)
            mz = m_ if gn % 2 == 0 else MT - 1 - m_
            s_, t_ = units[u0 + k_]
            bf = r4("a", BR + ((u0 + k_) % RB) * 4)
            af = r4("a", AR + (s_ % RA) * 16 + mz * 4)
            c = r4("v", acc(mz, t_))
            src = "0" if s_ == 0 else c
            if t_ in (4, 5): a("%s %s, %s, %s, %s" % (MF, c, af, bf, src))
            else:            a("%s %s, %s, %s, %s" % (MF, c, bf, af, src))
            rd = (lambda mt=mt: bread1(un, mt)) if (mt < 2 and un < NU) else None
            if mt == 0: G.gap(fixed=rd)
            elif mt == 1:
                if nxt and nxt[0] == "B": G.gap(first=lambda: (dma1(nxt[1], nxt[2], 0), True)[1], fixed=rd)
                else: G.gap(fixed=rd)
            elif mt == 2:
                if nxt:
                    assert not G.sal
                    G.gap(first=(lambda: a.throttle(THR1)), mem=((lambda: aload1(nxt[1], nxt[2])) if nxt[0] == "A" else (lambda: dma1(nxt[1], nxt[2], 1))))
                else: G.gap()
            else:
                if kk == C_ - 1:
                    stt["issued"] = u
                    G.gap(first=(lambda: prewait1(u + 1)) if u + 1 < NU else None)
                else: G.gap()
        if u == UKV - 1:
            assert 11 in stt["free"], stt
            side += [None] * 5
            for (c0, c1, so, go, lo) in kvq:
                side += pack(c0, c1)
                def f(c0=c0, so=so, go=go):
                    a.vmem("buffer_store_dwordx4 %s, v%d, %s, s%d offen offset:%d sc1" % (r4("v", c0), V_L16, s4(R_WS), so, go), "KV")
                side.append(("m", f))
            for (c0, c1, so, go, lo) in kvq:
                def f(c0=c0, lo=lo):
                    a.lds("ds_write_b128 v%d, %s offset:%d" % (V_KVW, r4("v", c0), lo), "kvw")
                side += [("x", f), None]
            assert not order
            side += su.l
        if u == UPW and not HK:
            assert 12 in stt["free"]
            side[:0] = [y for x in range(8) for y in (("x", lambda x=x: kpw(x)), None)]
        if u == UH01 - 1:
            side += [None] * 5
            for p in range(2):
                for mt in range(MT):
                    side += pack(acc(mt, 6 + 2 * p), acc(mt, 7 + 2 * p), relu=True)
                    if p * 4 + mt < cfg.get("f_hearly", 8):
                        side.append(("m", lambda p=p, mt=mt: hstore(p, mt)))
                        side += [None] * cfg.get("f_hsp", 8)
        if u == UCHK:
            assert UCHK >= UH01
            for x in range(cfg.get("f_hearly", 8), 8):
                side += [("m", lambda x=x: hstore(x // 4, x % 4))] + [None] * cfg.get("f_hsp2", 6)
    if cfg.get("verbose"): print("G1 side left", len([x for x in side if x is not None]), file=sys.stderr)
    G.drain()
    assert not order
    assert 12 in stt["free"]
    stampr("g1end")

    va = []
    for mt in range(MT): va += pack(acc(mt, 10), acc(mt, 11), relu=True)
    if HK:
        stampr("attbeg")
        for _ in range(8): a(va.pop(0))
    else:
        if UPW >= NU:
            for x in range(8): kpw(x)
        a.wait(lg="kvw")
        a("s_barrier")
        stampr("attbeg")
        for kt in range(20):
            kread(kt)
            a(va.pop(0))
    for mt in range(MT):
        for t in (0, 1):
            for e2 in range(2):
                c = acc(mt, t) + 2 * e2
                a("v_pk_mul_f32 v[%d:%d], v[%d:%d], s[%d:%d] op_sel_hi:[1,0]" % (c, c + 1, c, c + 1, sSC, sSC + 1))
        if mt == 0:
            for x in pack(acc(mt, 0), acc(mt, 1)): a(x)
    STCH = cfg.get("f_st", 0)
    a.vm = [("H01" if t == "H" else t) for t in a.vm]
    stq = [(cfg.get("f_st0", 200), sH), (cfg.get("f_st1", 380), sH + 1)] if STCH & 1 else []
    hstore(2, 0)
    for mt in range(1, MT): va += pack(acc(mt, 0), acc(mt, 1))
    for mt in range(MT): va += pack(acc(mt, 12), None, relu=True)
    free = [acc(mt, t) for t in (2, 3, 4, 5, 7, 9) for mt in range(MT)] + [212, 216, 220] + [acc(mt, t) for t in (11, 1) for mt in range(MT)]

    KS2 = 36; NSL = 20
    C2 = cfg.get("f_c2", 2)
    C2T = cfg.get("f_c2t", 4); C2S = cfg.get("f_c2s", 5)
    CM2 = max(C2, C2T, 3)
    RA2 = cfg.get("f_ra2", 13); DB2 = cfg.get("f_db2", CM2 + 2); RB2 = DB2 + CM2
    assert DB2 >= CM2
    BR2 = RA2 * 16
    assert BR2 + RB2 * 4 <= 256
    def aslot(p): return ((p - 3 + 10) % RA2) * 16
    def dma2_ops(p):
        sb, so = (R_W2, sB2) if p < 28 else (R_WO, sBO)
        ops = [(0, lambda: a("s_add_u32 m0, s%d, %d" % (sLB, (p % NSL) * 8192))),
               (1, lambda: a.vmem("buffer_load_dwordx4 v%d, %s, s%d offen lds" % (V2_DMA, s4(sb), so), ("B2", p))),
               (1, lambda: a.vmem("buffer_load_dwordx4 v%d, %s, s%d offen offset:1024 lds" % (V2_DMA + 1, s4(sb), so), ("B2", p)))]
        if LIN and p == 2:
            ops.append((0, lambda: a("s_mov_b32 s%d, s%d" % (sB2, sBW))))
        elif p != 27 and p != 35:
            ops.append((0, lambda: a("s_add_u32 s%d, s%d, 65536" % (so, so))))
        if p < 27 and not (LIN and p < 2):
            ops.append((0, lambda: a("s_cmp_eq_u32 s%d, s%d\ns_cselect_b32 s%d, s%d, s%d" % (sB2, sBE, sB2, sB0, sB2))))
        return ops
    def aload2(p, mt):
        a.vmem("buffer_load_dwordx4 %s, v%d, %s, s%d offen offset:%d %s" % (r4("a", aslot(p) + mt * 4), V_L16, s4(R_WS), sA, mt * 1024, ["sc1", "sc1 nt", ""][cfg.get("f_af", 0)]), ("A2", p))
        if mt == MT - 1:
            if p == 27 and not LIN: G.sal.append("s_mov_b32 s%d, s%d" % (sA, sAE))
            else:
                G.sal.append("s_add_u32 s%d, s%d, 4096" % (sA, sA))
                if p <= 27: G.sal.append("s_cmp_eq_u32 s%d, s%d\ns_cselect_b32 s%d, s%d, s%d" % (sA, sAE, sA, sA0, sA))
    hst = [(2, 1), (2, 2), (2, 3)] + [(3, mt) for mt in range(MT)]
    NPRE = cfg.get("f_npre", 6)
    assert NPRE >= 3
    pre = []
    for p in range(NPRE): pre += [(p,) + op for op in dma2_ops(p)]

    S_ = {}; P_ = {}; O_ = {}
    def s_mfma(qa, kt):
        q = free.pop(0); S_[(qa, kt)] = q
        a.wait(lg=("k", kt))
        c = r4("v", bias[kt // 4]) if kt < 16 else "0"
        a("%s %s, %s, %s, %s" % (MF, r4("v", q), r4("a", kreg(kt)), r4("v", acc(qa, 0)), c))
    def pv_list(qa):
        b0 = qa // 2
        out = []
        for b in range(b0, b0 + 9):
            for z in range(3):
                def f(b=b, z=z):
                    if b == b0: O_[(qa, z)] = free.pop(0)
                    o = r4("v", O_[(qa, z)])
                    if z < 2:
                        a.wait(lg=("v", 2 * b + z)); A = r4("a", VF + (2 * b + z) * 4)
                    else: A = r4("v", VONES)
                    a("%s %s, %s, %s, %s" % (MF, o, A, r4("v", P_[(qa, b)]), "0" if b == b0 else o))
                    if z == 2: free.append(P_[(qa, b)])
                out.append(f)
        return out
    def fin_list(qa):
        o0, o1, sm = O_[(qa, 0)], O_[(qa, 1)], O_[(qa, 2)]
        ops = ["v_rcp_f32 v%d, v%d" % (sm, sm), "s_nop 0"]
        for o in (o0, o1):
            for e in range(4): ops.append("v_mul_f32 v%d, v%d, v%d" % (o + e, o + e, sm))
        ops += pack(o0, o1)
        def f():
            a.vmem("buffer_store_dwordx4 %s, v%d, %s, s%d offen offset:%d %s" % (r4("v", o0), V_L16, s4(R_WS), sO, qa * 1024, HF), "O")
            free.extend([o1, sm]); late_free.append(o0)
        ops.append(f)
        return ops
    late_free = []
    pready = set()
    def soft_list(qa):
        k0, k1 = qa, qa + 16
        ops = []
        f_, l_ = S_[(qa, k0)], S_[(qa, k1)]
        odd = qa & 1
        g_, z_ = (l_, f_) if odd else (f_, l_)
        o_ = 2 * odd
        for e in range(4):
            ops.append((1, "v_cndmask_b32 v%d, v%d, v%d, s[%d:%d]" % (g_ + e, f_ + e, l_ + e, sMK + 2 * e, sMK + 2 * e + 1)))
        quads = [S_[(qa, kt)] for kt in range(k0 + 1, k1)] + [g_]
        vals = [q + e for q in quads for e in range(4)]
        m0, m1 = VM, VM + 1
        ops.append((1, "v_max3_f32 v%d, v%d, v%d, v%d" % (m0, vals[0], vals[1], vals[2])))
        ops.append((1, "v_max3_f32 v%d, v%d, v%d, v%d" % (m1, vals[3], vals[4], vals[5])))
        ops.insert(2, (0, "SLOT")); ops.insert(5, (0, "SLOT")); ops.append((0, "SLOT"))
        for x in range(6, 62, 4):
            ops.append((1, "v_max3_f32 v%d, v%d, v%d, v%d" % (m0, m0, vals[x], vals[x + 1])))
            ops.append((1, "v_max3_f32 v%d, v%d, v%d, v%d" % (m1, m1, vals[x + 2], vals[x + 3])))
            ops.append((0, "SLOT"))
        ops.append((1, "v_max3_f32 v%d, v%d, v%d, v%d" % (m0, m0, vals[62], vals[63])))
        ops.append((1, "v_max_f32 v%d, v%d, v%d" % (m0, m0, m1)))
        ops.append((1, "v_mov_b32 v%d, v%d" % (m1, m0)))
        ops.append((0, "SLOT2"))
        ops.append((1, "v_permlane16_swap_b32 v%d, v%d" % (m0, m1)))
        ops.append((1, "v_max_f32 v%d, v%d, v%d" % (m0, m0, m1)))
        ops.append((1, "v_mov_b32 v%d, v%d" % (m1, m0)))
        ops.append((1, "v_mov_b32 v%d, 0" % (z_ + 2 - o_)))
        ops.append((1, "v_mov_b32 v%d, 0" % (z_ + 3 - o_)))
        ops.append((1, "v_permlane32_swap_b32 v%d, v%d" % (m0, m1)))
        ops.append((1, "v_max_f32 v%d, v%d, v%d" % (m0, m0, m1)))
        def subexp(q):
            r = []
            for e2 in range(2):
                r.append((1, "v_pk_add_f32 v[%d:%d], v[%d:%d], v[%d:%d] op_sel_hi:[1,0] neg_lo:[0,1] neg_hi:[0,1]" % (q + 2 * e2, q + 2 * e2 + 1, q + 2 * e2, q + 2 * e2 + 1, m0, m0 + 1)))
            for e in range(4):
                if e < 2: r.append((0, "SLOT"))
                r.append((2, "v_exp_f32 v%d, v%d" % (q + e, q + e)))
            r.append((0, "MEM"))
            return r
        ops += subexp(g_)
        ops += subexp(S_[(qa, k0 + 1)])
        cv = ["v_cvt_pk_bf16_f32 v%d, v%d, v%d" % (g_ + o_ + x, g_ + 2 * x, g_ + 2 * x + 1) for x in range(2)]
        if odd: cv.reverse()
        ops += [(1, x) for x in cv]
        for x in range(2):
            if odd: ops.append((1, "v_bfi_b32 v%d, v%d, 0, v%d" % (z_ + o_ + x, VM + 2 + x, g_ + o_ + x)))
            else:   ops.append((1, "v_and_b32 v%d, v%d, v%d" % (z_ + o_ + x, VM + 2 + x, g_ + o_ + x)))
        for x in range(2): ops.append((1, "v_xor_b32 v%d, v%d, v%d" % (g_ + o_ + x, g_ + o_ + x, z_ + o_ + x)))
        done = {k0, k0 + 1, k1}
        b0 = qa // 2
        pend_pack = None
        for b in range(b0, b0 + 9):
            for kt in (2 * b, 2 * b + 1):
                if k0 <= kt <= k1 and kt not in done:
                    ops += subexp(S_[(qa, kt)]); done.add(kt)
            if pend_pack: ops += pend_pack
            lo, hi = S_.get((qa, 2 * b)), S_.get((qa, 2 * b + 1))
            pk = []
            if lo is None or hi is None: d = z_
            elif g_ in (lo, hi):
                d = g_; ot = hi if lo == g_ else lo
                pk += [(1, "v_cvt_pk_bf16_f32 v%d, v%d, v%d" % (d + 2 - o_ + x, ot + 2 * x, ot + 2 * x + 1)) for x in range(2)]
                pk.append((0, (lambda ot=ot: free.append(ot))))
            else:
                d = lo
                pk += [(1, x) for x in pack(lo, hi)]
                pk.append((0, (lambda hi=hi: free.append(hi))))
            P_[(qa, b)] = d
            pk.append((0, (lambda b=b: pready.add((qa, b)))))
            pend_pack = pk
        ops += pend_pack
        return ops
    def run(op):
        if isinstance(op, str): a(op)
        else: op()
    vr = list(range(20))
    def vread():
        f = vr.pop(0)
        a.lds("ds_read_b128 %s, v%d offset:%d" % (r4("a", VF + 4 * f), V_KVW, 32768 + f * 1024), ("v", f))
    for kt in range(17):
        s_mfma(0, kt)
        vread(); a(va.pop(0))
    while vr:
        vread(); a(va.pop(0))
    hstore(*hst.pop(0))
    while va: a(va.pop(0))
    HGAP = cfg.get("f_hgap", 30); PGAP = cfg.get("f_pgap", 40)
    HFL = cfg.get("f_hfl", 500)
    HPO = cfg.get("f_hpo", 900)
    HCK = cfg.get("f_hck", 2000)
    hok = False
    ordA = [("A2", p, mt) for p in range(3, KS2) for mt in range(MT)]
    napre = cfg.get("f_apre", 16)
    pv3 = pv_list(3); pv3b = [1 + x // 3 for x in range(27)]
    tq = [(cfg.get("f_tb0", 200) + k * cfg.get("f_tbd", 150), k) for k in range(cfg.get("f_tbn", 0))]
    tcq = []
    if TCN:
        k0 = cfg.get("f_tck", 6); nr = cfg.get("f_tcr", 2)
        ed = [k0 + (56 - k0) * x // nr for x in range(nr + 1)]
        rr = [(ed[x], ed[x + 1]) for x in range(nr)] + [(56, 72)]
        tcq = [(cfg.get("f_tc0", 540) + x * cfg.get("f_tcd", 130), lo_, hi_) for x, (lo_, hi_) in enumerate(rr)]
    sq = []
    if SPF:
        for k in range(cfg.get("f_spf0", 6), 56): sq.append("s_load_dword s%d, s[%d:%d], 0x%x" % (t3, (P_W2 if k < 28 else P_WQ), (P_W2 if k < 28 else P_WQ) + 1, (k % 28) * 32768))
        for k in range(16): sq.append("s_load_dword s%d, s[%d:%d], 0x%x" % (t3, P_WO, P_WO + 1, k * 32768))
    next_s = 0; SGAP = cfg.get("f_sgap", 8)
    kvbar = False; hflag = False; hpoll = False
    cost_total = 0; next_h = HGAP; next_p = 0
    for qa in range(4):
        stampr("att%d" % qa)
        ops = soft_list(qa)
        tot = sum(c for c, _ in ops)
        pv = pv_list(qa - 1) if qa > 0 else []
        fin = None
        sm = [(qa + 1, kt) for kt in range(qa + 1, qa + 18)] if qa < 3 else []
        c = 0
        pv_done_at = None
        for (cost, op) in ops:
            if op == "SLOT2":
                if pv:
                    pv.pop(0)(); a("s_nop 0")
                    if not pv: pv_done_at = c
                else: a("s_nop 1")
                continue
            if op == "SLOT":
                did = False
                if pv:
                    pv.pop(0)(); did = True
                    if not pv: pv_done_at = c
                elif sm and len(free) > 0 and c >= tot * 0.2:
                    s_mfma(*sm.pop(0)); did = True
                elif qa == 3 and pv3 and (3, pv3b[0]) in pready:
                    pv3.pop(0)(); pv3b.pop(0); did = True
                if did and G.sal:
                    a(G.sal.pop(0)); continue
                if did and pre and pre[0][1] == 0 and (kvbar or (pre[0][0] < 12 and not HK)): pre.pop(0)[2]()
                elif sq and kvbar and cost_total >= next_s and (did or cost_total >= next_s + SGAP):
                    a(sq.pop(0)); next_s = cost_total + SGAP
                    if not sq and cfg.get("verbose"): print("scalar prefetch done at", cost_total, file=sys.stderr)
                continue
            if op == "MEM":
                if qa > 0 and fin is None and pv_done_at is not None and c >= pv_done_at + 18:
                    fin = fin_list(qa - 1)
                    for x in fin: run(x)
                elif hst and cost_total >= next_h:
                    hstore(*hst.pop(0)); next_h = cost_total + HGAP
                elif stq and cost_total >= stq[0][0]:
                    a.wait(vm="H01"); selftouch(stq.pop(0)[1], True)
                elif tcq and cost_total >= tcq[0][0]:
                    _, lo_, hi_ = tcq.pop(0)
                    if lo_ < 56:
                        m_ = ((1 << hi_) - 1) ^ ((1 << lo_) - 1)
                        a("s_mov_b32 exec_lo, 0x%x" % (m_ & 0xffffffff))
                        a("s_mov_b32 exec_hi, 0x%x" % (m_ >> 32))
                        a.vmem("buffer_load_dword a%d, v%d, %s, s%d offen" % (A_PD, V_T128, s4(R_W2), sCLS), "T")
                    else:
                        a("s_mov_b64 exec, 0xffff")
                        a.vmem("buffer_load_dword a%d, v%d, %s, s%d offen" % (A_PD, V_T128, s4(R_WO), t3), "T")
                    a("s_mov_b64 exec, -1")
                elif not hst and tq and cost_total >= tq[0][0]:
                    k_ = tq.pop(0)[1]
                    a("s_lshr_b32 s%d, s2, 3" % t0)
                    a("s_lshl_b32 s%d, s%d, 2" % (t0, t0))
                    a("s_add_u32 s%d, s%d, s%d" % (t0, t0, sW))
                    if k_ < 4:
                        a("s_mul_i32 s%d, s%d, 3584" % (t0, t0))
                        a("s_mul_i32 s%d, s%d, %d" % (t1, sQ, 896 * 2048))
                        a("s_add_u32 s%d, s%d, s%d" % (t0, t0, t1))
                        if k_: a("s_add_u32 s%d, s%d, %d" % (t0, t0, k_ * 224 * 2048))
                        a("s_mov_b64 exec, 0xfffffff")
                        a.vmem("buffer_load_dword a%d, v%d, %s, s%d offen" % (A_PD, V_T128, s4(R_W2), t0), "T")
                    else:
                        a("s_lshl_b32 s%d, s%d, 12" % (t0, t0))
                        a("s_lshl_b32 s%d, s%d, 19" % (t1, sQ))
                        a("s_add_u32 s%d, s%d, s%d" % (t0, t0, t1))
                        a("s_mov_b32 exec_hi, 0")
                        a.vmem("buffer_load_dword a%d, v%d, %s, s%d offen" % (A_PD, V_T128, s4(R_WO), t0), "T")
                    a("s_mov_b64 exec, -1")
                elif not hst and not hflag and cost_total >= HFL:
                    a.wait(vm="H")
                    a.vmem("buffer_store_dword v%d, v%d, %s, 0 offen offset:32 sc1" % (V_ONE, V_FG, s4(R_WS)), "FH")
                    hflag = True
                    if STCH & 2: selftouch(sH + 2, True)
                elif hflag and not hpoll and cost_total >= HPO:
                    poll_issue("PH"); hpoll = True
                elif hpoll and not hok and cost_total >= HCK:
                    a.wait(vm="PH"); spin(0xff00); hok = True
                    stampr("g2h")
                elif hok and napre > 0:
                    G.drain_sal()
                    op_ = ordA.pop(0); aload2(op_[1], op_[2]); napre -= 1
                elif pre and pre[0][1] == 1 and cost_total >= next_p:
                    pre.pop(0)[2](); next_p = cost_total + PGAP
                    if cfg.get("f_p2", 0) and pre and pre[0][1] == 1: pre.pop(0)[2]()
                continue
            run(op); c += cost; cost_total += cost
            if qa == 0 and not kvbar and c >= 30:
                a.wait(lg=("v", 19)); a("s_barrier"); kvbar = True
        assert not pv and (qa == 0 or fin)
        free.extend(late_free); del late_free[:]
        if sm and cfg.get("verbose"): print("late S mfmas", qa, len(sm), file=sys.stderr)
        late = bool(sm)
        while sm: s_mfma(*sm.pop(0))
        if late: a("s_nop 7")
    if cfg.get("verbose"): print("attention cost", cost_total, "pre left", len(pre), file=sys.stderr)
    stampr("att4")
    assert not hst and hflag and hpoll and not sq and not tcq
    if not hok: napre = 0
    while pre:
        pre.pop(0)[2](); a("s_nop 0")
    G.drain_sal()
    assert napre <= 4 * (RA2 - 10) and not (HK and hok)
    a("v_mov_b32 v%d, v%d" % (V2_RD, V2_B))
    a("v_xor_b32 v%d, 32, v%d" % (V2_RD + 1, V2_B))
    xr = ["v_xor_b32 v%d, %d, v%d" % (V2_RD + t, t * 32, V2_B) for t in range(2, 8)]
    if cfg.get("verbose"): print("pv3 left", len(pv3), "apre left", napre, file=sys.stderr)
    for f in pv3:
        f()
        if napre > 0:
            op_ = ordA.pop(0); aload2(op_[1], op_[2]); napre -= 1; G.drain_sal()
        else:
            for _ in range(2):
                if xr: a(xr.pop(0))
    while xr: a(xr.pop(0))
    stampr("attend")

    NT2 = 8
    DL = cfg.get("f_dl", 8); S2 = KS2 - DL
    assert RA2 >= DL
    own = set(acc(mt, 6 + 2 * p) for p in range(3) for mt in range(MT))
    busy = own | set(O_[(3, z)] for z in range(3)) | {208}
    q2 = [q for q in range(0, 224, 4) if q not in busy]
    acc2 = {}
    for t in range(NT2):
        for mt in range(MT): acc2[(mt, t)] = q2.pop(0)
    VX = [q2.pop(0) for _ in range(4)]
    TT = q2.pop(0); V_XI = TT + 2
    R_X = R_WQ; R_OUT = R_W1
    rec = Rec()
    rec.l += [None] * 5 + [x if isinstance(x, str) else ("m", x) for x in fin_list(3)]
    for st_ in (1, 2):
        for t in range(8): rec("v_add_u32 v%d, 0x%x, v%d" % (V2_RD + 8 * st_ + t, st_ * 0x10000, V2_RD + t))
    srd(rec, R_X, P_X, S * D * 2)
    srd(rec, R_OUT, P_OUT, S * D * 2)
    rec2 = Rec()
    rec2("v_and_b32 v%d, 15, v%d" % (TT, L))
    rec2("v_lshlrev_b32 v%d, 11, v%d" % (V_XO, TT))
    rec2("v_lshrrev_b32 v%d, 4, v%d" % (TT, L))
    rec2("v_lshl_add_u32 v%d, v%d, 3, v%d" % (V_XI, TT, V_XO))
    rec2("v_bfe_u32 v%d, v%d, 4, 1" % (TT, L))
    rec2("v_lshl_add_u32 v%d, v%d, 5, v%d" % (V_XO, TT, V_XO))
    rec2("v_lshrrev_b32 v%d, 5, v%d" % (TT, L))
    rec2("v_lshl_add_u32 v%d, v%d, 4, v%d" % (V_XO, TT, V_XO))
    sSX = [sKV, sKV2, sKP]; sSF = [sKP2, sFK, sH]; sRX = sH + 1
    for lam in range(3):
        rec("s_xor_b32 s%d, s2, %d" % (t1, (lam ^ 3) << 1))
        rec("s_lshl_b32 s%d, s%d, 2" % (t1, t1))
        rec("s_add_u32 s%d, s%d, s%d" % (t1, t1, sW))
        rec("s_mul_i32 s%d, s%d, 12288" % (sSX[lam], t1))
        rec("s_add_u32 s%d, s%d, 0x%x" % (sSX[lam], sSX[lam], WS_XC + lam * 4096))
        rec("s_lshl_b32 s%d, s%d, 7" % (sSF[lam], t1))
        rec("s_add_u32 s%d, s%d, 0x%x" % (sSF[lam], sSF[lam], WS_FL + lam * 4))
    rec("s_lshl_b32 s%d, s2, 2" % t1)
    rec("s_add_u32 s%d, s%d, s%d" % (t1, t1, sW))
    rec("s_mul_i32 s%d, s%d, 12288" % (sRX, t1))
    rec("s_add_u32 s%d, s%d, 0x%x" % (sRX, sRX, WS_XC))
    if DF:
        for lam in range(3): rec("s_add_u32 s%d, s%d, %d" % (sSF[lam], sRX, lam * 4096))
    side = G.side
    side += rec.l

    units = []; del gi[:]
    grp(units, 0, 3, range(NT2), 3)
    grp(units, 3, C2S, range(NT2), 2)
    grp(units, C2S, S2, range(NT2), C2)
    for lam in range(4): grp(units, S2, KS2, (2 * lam, 2 * lam + 1), C2T if lam else min(C2T, cfg.get("f_c2t0", 4)))
    NU = len(units)
    UT = S2 * NT2; PL = 2 * DL
    last_unit = {}
    for u, (p, t) in enumerate(units): last_unit[p] = u
    stt = dict(ready=-1, free=set(), waited=-1, issued=-1, ook=False, hok=hok)
    ordB = [("B2", p) for p in range(NPRE, KS2)]
    def barrier2():
        a("s_barrier")
        for p, lu in last_unit.items():
            if lu <= stt["waited"]: stt["free"].add(p)
    def can2(op):
        if op[0] == "B2": return op[1] < NSL or (op[1] - NSL) in stt["free"]
        if not stt["hok"] or (op[1] >= 28 and not stt["ook"]): return False
        return op[1] - 3 < RA2 or last_unit[op[1] - RA2] <= stt["issued"]
    def issue2(op):
        if cfg.get("verbose"): print("late flush2", op, file=sys.stderr)
        G.drain_sal()
        if op[0] == "A2": aload2(op[1], op[2])
        else:
            for x in dma2_ops(op[1]): x[1](); a("s_nop 0")
        G.drain_sal()
    def flush2(q, tag):
        while any(o[:2] == tag for o in q):
            op = q.pop(0); assert can2(op), (op, stt); issue2(op)
    def bread2(u, j2):
        p, t = units[u]
        sl = p % NSL
        a.lds("ds_read_b64_tr_b16 %s, v%d offset:%d" % (r2("a", BR2 + (u % RB2) * 4 + j2 * 2), V2_RD + 8 * (sl // 8) + t, (sl % 8) * 8192 + j2 * 4096), ("b2", u))
    def need2(u):
        p = units[u][0]
        if p > stt["ready"]:
            flush2(ordB, ("B2", p))
            grp = cfg.get("f_bgrp", 4)
            top = max(x for x in range(p, min(p + grp, KS2)) if not any(o[1] == x for o in ordB))
            if p == 0: top = min(NPRE - 1, cfg.get("f_top0", 5))
            elif p < NPRE: top = NPRE - 1
            a.wait(vm=("B2", top)); barrier2(); stt["ready"] = top
    need2(0)
    for u in range(DB2):
        bread2(u, 0); bread2(u, 1)
    stampr("g2beg")
    UOF = cfg.get("f_uof", 26)
    UOP = cfg.get("f_uop", 80); UOC = UOP + 12
    seenA = {0, 1, 2}
    xdone = False
    rq = sorted(own)
    def flag(lam):
        a.wait(vm=("S", lam))
        a.vmem("buffer_store_dword v%d, v%d, %s, s%d offen sc1" % (V_ONE, V_FL0, s4(R_WS), sSF[lam]), ("F", lam))
    def recv(lam, mt):
        a.vmem("buffer_load_dwordx4 %s, v%d, %s, s%d offen offset:%d sc1" % (r4("v", rq[4 * lam + mt]), V_L16, s4(R_WS), sRX, mt * 1024), ("R", lam, mt))
        if mt == 3 and lam < 2: a("s_add_u32 s%d, s%d, 4096" % (sRX, sRX))
    PS = lambda mt, hh: acc2[(mt, hh)]
    def addpk(dst, src, first=False):
        ops = []
        for hh in range(2):
            for e2 in range(2):
                pp = src + 2 * hh + e2; c = dst[hh] + 2 * e2
                if first:
                    ops += ["v_lshlrev_b32 v%d, 16, v%d" % (c, pp), "v_and_b32 v%d, 0xffff0000, v%d" % (c + 1, pp)]
                else:
                    ops += ["v_lshlrev_b32 v%d, 16, v%d" % (TT, pp), "v_and_b32 v%d, 0xffff0000, v%d" % (TT + 1, pp),
                            "v_pk_add_f32 v[%d:%d], v[%d:%d], v[%d:%d]" % (c, c + 1, c, c + 1, TT, TT + 1)]
        return ops
    FD = cfg.get("f_fd", 40)
    ev = {}
    def at(u, f): ev.setdefault(u, []).append(f)
    def rtxt(lam, mt): return "buffer_load_dwordx4 %s, v%d, %s, s%d offen offset:%d sc1" % (r4("v", rq[4 * lam + mt]), V_L16, s4(R_WS), sSF[lam], mt * 1024)
    def rmax(lam):
        rg = [rq[4 * lam + mt] + e for mt in range(MT) for e in range(4)]
        o = ["v_max3_u32 v%d, v%d, v%d, v%d" % (V_POLL, rg[0], rg[1], rg[2])]
        for k in range(3, 15, 2): o.append("v_max3_u32 v%d, v%d, v%d, v%d" % (V_POLL, V_POLL, rg[k], rg[k + 1]))
        o.append("v_max_u32 v%d, v%d, v%d" % (V_POLL, V_POLL, rg[15]))
        return o
    def rcheck(lam):
        l0 = a.newlabel("F_rt"); l1 = a.newlabel("F_ok")
        a("s_mov_b32 s%d, 0x%x" % (sSP, SPIN))
        a.label(l0)
        a("v_cmp_eq_u32 vcc, -1, v%d" % V_POLL)
        a("s_cmp_eq_u64 vcc, 0")
        a("s_cbranch_scc1 %s" % l1)
        for mt in range(MT): a(rtxt(lam, mt))
        a("s_waitcnt vmcnt(0)")
        for x in rmax(lam): a(x)
        a("s_sub_u32 s%d, s%d, 1" % (sSP, sSP))
        a("s_cbranch_scc0 %s" % l0)
        a.label(l1)
    def addplain(dst, src):
        ops = []
        for hh in range(2):
            for e2 in range(2):
                pp = src + 2 * hh + e2; c = dst[hh] + 2 * e2
                ops += ["v_lshlrev_b32 v%d, 16, v%d" % (TT, pp), "v_and_b32 v%d, 0xffff0000, v%d" % (TT + 1, pp),
                        "v_add_f32 v%d, v%d, v%d" % (c, c, TT), "v_add_f32 v%d, v%d, v%d" % (c + 1, c + 1, TT + 1)]
        return ops
    if DF:
        R0U = UT + 3 * PL + cfg.get("f_r0", -6); R1U = UT + 4 * PL + cfg.get("f_r1", -5)
        at(R0U, lambda: side.extend(("m", lambda mt=mt: a.vmem(rtxt(0, mt), ("R", 0))) for mt in range(MT)))
        at(R1U, lambda: side.__setitem__(slice(0, 0), [("m", lambda mt=mt: a.vmem(rtxt(1, mt), ("R", 1))) for mt in range(MT)]))
    else:
        at(UT + PL + FD, lambda: flag(0))
        at(UT + 2 * PL + FD, lambda: flag(1))
    UP0 = UT + 3 * PL + cfg.get("f_p0", 4)
    F2 = cfg.get("f_fin2", 1)
    if not DF and not F2: at(UP0, lambda: poll_issue("P0"))
    def chk0():
        a.wait(vm="P0"); spin(1)
        for mt in range(MT): side.append(("m", lambda mt=mt: recv(0, mt)))
    if not DF and not F2: at(UP0 + cfg.get("f_c0", 8), chk0)
    def presum():
        side.append(("s", lambda: a.wait(vm="X")))
        for mt in range(MT): side.extend(addpk([PS(mt, 0), PS(mt, 1)], VX[mt], first=True))
    at(UT + 2 * PL + PL // 2, presum)
    first_unit = {}
    for u, (p, t) in enumerate(units): first_unit.setdefault(p, u)
    NOPS = len(ordA) + 2 * len(ordB)
    UE2 = UT + cfg.get("f_ue2", 0)
    MARG = cfg.get("f_marg", 20)
    THR2 = cfg.get("f_thr2", 63)
    def prewait2(u):
        u += gi[u][1] - 1
        p, t = units[u]
        if p not in seenA:
            flush2(ordA, ("A2", p)); seenA.add(p)
            r = a.wait(vm=("A2", p), lg=("b2", u))
        else: r = a.wait(lg=("b2", u))
        stt["waited"] = u
        return r
    def b2sal(p):
        so = sB2 if p < 28 else sBO
        if p != 27 and p != 35: G.sal.append("s_add_u32 s%d, s%d, 65536" % (so, so))
        if p < 27: G.sal.append("s_cmp_eq_u32 s%d, s%d\ns_cselect_b32 s%d, s%d, s%d" % (sB2, sBE, sB2, sB0, sB2))
    prewait2(0)
    half = None
    for u in range(NU):
        u0, C_, gn = gi[u]; kk = u - u0
        p, t = divmod(u, NT2) if u < UT else units[u]
        un = u + DB2
        if u == UOF:
            a.wait(vm="O")
            a.vmem("buffer_store_dword v%d, v%d, %s, 0 offen offset:64 sc1" % (V_ONE, V_FG, s4(R_WS)), "FO")
            if STCH & 4: selftouch(sO, True)
            side.extend(rec2.l)
        if u == cfg.get("f_uh", 0) and not stt["hok"]:
            a.wait(vm="PH"); spin(0xff00); stt["hok"] = True
            stampr("g2h")
        if u < UT and t == 1: stampr("g2p%d" % p)
        if u == UT: stampr("g2tail")
        if u > UT and (u - UT) % PL == 0: stampr("g2l%d" % ((u - UT) // PL))
        if u == UOP: poll_issue("PO")
        if u == UOC:
            a.wait(vm="PO"); spin(0xff0000 | (7 if DF else 0)); stt["ook"] = True
        for f in ev.get(u, []): f()
        if un < NU and units[un][0] > stt["ready"]:
            if half is not None:
                dma2_ops(half)[2][1](); b2sal(half); half = None
            need2(un)
        if u < UT and t == 2 and p % 4 == 0 and p > 0 and p - 4 + NSL < KS2: barrier2()
        pre_ = None; mem_ = None
        if half is not None:
            def mem_(h=half): dma2_ops(h)[2][1](); b2sal(h)
            half = None
        elif len(G.sal) <= 1:
            cand = [q for q in (ordA, ordB) if q and can2(q[0])]
            if cand:
                cand.sort(key=lambda q: q[0][1] - (cfg.get("f_bprio", 6) if q[0][0] == "B2" else 0))
                done_ = NOPS - len(ordA) - 2 * len(ordB)
                if done_ * UE2 <= u * NOPS or first_unit[cand[0][0][1]] - u <= MARG + (16 if cand[0][0][0] == "B2" else 0):
                    nxt = cand[0].pop(0)
                    if nxt[0] == "B2":
                        ops_ = dma2_ops(nxt[1])
                        pre_ = lambda o=ops_: (o[0][1](), True)[1]
                        mem_ = ops_[1][1]; half = nxt[1]
                    else:
                        mem_ = lambda n_=nxt: aload2(n_[1], n_[2])
        if not ordA and not ordB and half is None and not xdone and mem_ is None:
            xdone = True
            for mt in range(MT):
                for hh in range(2):
                    def f(mt=mt, hh=hh):
                        a.vmem("buffer_load_dwordx2 %s, v%d, %s, s%d offen offset:%d" % (r2("v", VX[mt] + 2 * hh), V_XI, s4(R_X), sXO, hh * 32), "X")
                    side += [("m", f), None]
                side.append("s_add_u32 s%d, s%d, %d" % (sXO, sXO, 32768 if mt < 3 else -3 * 32768))
        for mt in range(MT):
            m_, k_ = divmod(kk * MT + mt, C_)
            mz = m_ if gn % 2 == 0 else MT - 1 - m_
            p_, t_ = units[u0 + k_]
            bf = r4("a", BR2 + ((u0 + k_) % RB2) * 4)
            af = r4("v", acc(mz, 6 + 2 * p_)) if p_ < 3 else r4("a", aslot(p_) + mz * 4)
            c = r4("v", acc2[(mz, t_)])
            a("%s %s, %s, %s, %s" % (MF, c, bf, af, "0" if p_ == 0 else c))
            rd = (lambda mt=mt: bread2(un, mt)) if (mt < 2 and un < NU) else None
            if mt == 0: G.gap(fixed=rd)
            elif mt == 1: G.gap(first=pre_, fixed=rd)
            elif mt == 2:
                if mem_:
                    assert not G.sal
                    G.gap(first=(lambda: a.throttle(THR2)), mem=mem_)
                else: G.gap()
            else:
                if kk == C_ - 1:
                    stt["issued"] = u
                    G.gap(first=(lambda: prewait2(u + 1)) if u + 1 < NU else None)
                else: G.gap()
        if u >= UT and (u - UT) % PL == PL - 1:
            lam = (u - UT) // PL
            if lam < 3:
                new_ = [None] * 5
                for mt in range(MT):
                    new_ += pack(acc2[(mt, 2 * lam)], acc2[(mt, 2 * lam + 1)])
                    if DF: new_ += ["v_min_u32 v%d, -2, v%d" % (acc2[(mt, 2 * lam)] + e, acc2[(mt, 2 * lam)] + e) for e in range(4)]
                    def f(mt=mt, lam=lam):
                        a.vmem("buffer_store_dwordx4 %s, v%d, %s, s%d offen offset:%d sc1" % (r4("v", acc2[(mt, 2 * lam)]), V_L16, s4(R_WS), sSX[lam], mt * 1024), ("S", lam))
                    new_.append(("m", f))
                side[:0] = new_
    if cfg.get("verbose"): print("G2 side left", len([x for x in side if x is not None]), file=sys.stderr)
    G.drain()
    assert not ordA and not ordB and xdone
    stampr("g2end")
    def ownadd():
        for mt in range(MT):
            for hh in range(2):
                for e2 in range(2):
                    c = PS(mt, hh) + 2 * e2; o_ = acc2[(mt, 6 + hh)] + 2 * e2
                    a("v_pk_add_f32 v[%d:%d], v[%d:%d], v[%d:%d]" % (c, c + 1, c, c + 1, o_, o_ + 1))
    if DF:
        R2D = cfg.get("f_r2d", 1)
        def rd2():
            for mt in range(MT): a.vmem(rtxt(2, mt), ("R", 2, mt))
        assert a.vm.count(("R", 0)) == 4 and a.vm.count(("R", 1)) == 4
        if R2D == 0: rd2()
        a.wait(vm=("R", 0))
        for x in rmax(0): a(x)
        rcheck(0)
        for mt in range(MT):
            for x in addpk([PS(mt, 0), PS(mt, 1)], rq[mt]): a(x)
        stampr("x1")
        if R2D == 1: rd2()
        ownadd()
        a.wait(vm=("R", 1))
        for x in rmax(1): a(x)
        rcheck(1)
        stampr("x2")
        if R2D == 2: rd2()
        for mt in range(MT):
            for x in addpk([PS(mt, 0), PS(mt, 1)], rq[4 + mt]): a(x)
        stampr("x3")
        a.wait(vm=("R", 2, 3))
        for x in rmax(2): a(x)
        rcheck(2)
        stampr("x4")
    elif F2:
        for lam in range(2):
            if ("F", lam) not in a.vm: flag(lam)
        a("s_nop 4")
        ownadd()
        flag(2)
        poll_issue("P1")
        stampr("x1")
        a.wait(vm="P1"); spin(1)
        for mt in range(MT): recv(0, mt)
        spin(2)
        stampr("x2")
        for mt in range(MT): recv(1, mt)
        poll_issue("P2")
        for mt in range(MT):
            a.wait(vm=("R", 0, mt))
            for x in addpk([PS(mt, 0), PS(mt, 1)], rq[mt]): a(x)
        a.wait(vm="P2"); spin(4)
        stampr("x3")
        for mt in range(MT): recv(2, mt)
        for mt in range(MT):
            for x in addpk([PS(mt, 0), PS(mt, 1)], rq[4 + mt]): a(x)
        stampr("x4")
    else:
        flag(2)
        poll_issue("P1")
        stampr("x1")
        for mt in range(MT):
            a.wait(vm=("R", 0, mt))
            for x in addpk([PS(mt, 0), PS(mt, 1)], rq[mt]): a(x)
        a.wait(vm="P1"); spin(2)
        stampr("x2")
        for mt in range(MT): recv(1, mt)
        poll_issue("P2")
        for mt in range(MT):
            for hh in range(2):
                for e2 in range(2):
                    c = PS(mt, hh) + 2 * e2; o_ = acc2[(mt, 6 + hh)] + 2 * e2
                    a("v_pk_add_f32 v[%d:%d], v[%d:%d], v[%d:%d]" % (c, c + 1, c, c + 1, o_, o_ + 1))
        a.wait(vm="P2"); spin(4)
        stampr("x3")
        for mt in range(MT): recv(2, mt)
        for mt in range(MT):
            for x in addpk([PS(mt, 0), PS(mt, 1)], rq[4 + mt]): a(x)
        stampr("x4")
    for mt in range(MT):
        a.wait(vm=("R", 2, mt))
        for x in addpk([PS(mt, 0), PS(mt, 1)], rq[8 + mt]): a(x)
        c0 = PS(mt, 0)
        if cfg.get("eps"):
            for hh in range(2):
                for e in range(4): a("v_mul_f32 v%d, 0x%x, v%d" % (PS(mt, hh) + e, f2u(1.0 + cfg["eps"] / 10000.0), PS(mt, hh) + e))
        for x in pack(c0, PS(mt, 1)): a(x)
        a("s_nop 1")
        a("v_permlane16_swap_b32 v%d, v%d" % (c0, c0 + 2))
        a("v_permlane16_swap_b32 v%d, v%d" % (c0 + 1, c0 + 3))
        a.vmem("buffer_store_dwordx4 %s, v%d, %s, s%d offen %s" % (r4("v", c0), V_XO, s4(R_OUT), sXO, ["", "sc1", "nt"][cfg.get("f_of", 2)]), "OUT")
        if mt < 3: a("s_add_u32 s%d, s%d, 32768" % (sXO, sXO))
    stampr("x5")
    if ST:
        a("s_waitcnt vmcnt(0)")
        stampr("end")
        a("s_waitcnt lgkmcnt(0)")
        for i in range(8): a("v_mov_b32 v%d, s%d" % (i, STB + 2 * i))
        a("s_lshl_b32 s%d, s2, 2" % t0)
        a("s_add_u32 s%d, s%d, s%d" % (t0, t0, sW))
        a("s_lshl_b32 s%d, s%d, 5" % (t0, t0))
        a("v_mov_b32 v8, 0")
        a("s_nop 4")
        a("buffer_store_dwordx4 v[0:3], v8, %s, s%d offen" % (s4(R_WS), t0))
        a("buffer_store_dwordx4 v[4:7], v8, %s, s%d offen offset:16" % (s4(R_WS), t0))
    a.label("F_end")
    a("s_endpgm")
    kernel_desc(a, name, 256, sgpr=102, accum=256, agpr=256)
    return "; @launch kernel=%s grid=(256,1,1) block=(256,1,1) lds=163840" % name

gen.gen_f = gen_f

if __name__ == "__main__":
    cfg = dict(g1_mt=4)
    out = sys.argv[1]
    kernels = sys.argv[2].split(",")
    for kv in sys.argv[3:]:
        k, v = kv.split("="); cfg[k] = int(v, 0)
    open(out, "w").write(gen.build(cfg, kernels))
```

```python
import sys, math
from asmlib import *
import gen
from gen import *

class SA:
    def __init__(self, start, end):
        self.n = start; self.end = end; self.m = {}
    def new(self, name, cnt=1, align=1):
        self.n = (self.n + align - 1) // align * align
        r = self.n; self.n += cnt
        assert self.n <= self.end, "out of sgprs"
        self.m[name] = r
        return r

def s4(b): return "s[%d:%d]" % (b, b + 3)
MF = "v_mfma_f32_16x16x32_bf16"

def kind_of(op):
    if op is None: return None
    if isinstance(op, tuple): return op[0]
    t = op.lstrip()
    if t.startswith("s_"): return "s"
    if t.startswith("v_"): return "v"
    raise ValueError(op)

class Gaps:
    def __init__(self, a):
        self.a = a
        self.sal = []
        self.side = []
    def run(self, op):
        if isinstance(op, tuple): op[1]()
        else: self.a(op)
    def gap(self, first=None, fixed=None, mem=None):
        used0 = False
        room = 2
        if first is not None: used0 = bool(first())
        if not used0:
            if self.sal:
                x = self.sal.pop(0); self.a(x); used0 = True
                room -= x.count("\n")
            elif self.side and kind_of(self.side[0]) == "s":
                self.run(self.side.pop(0)); used0 = True
        if mem is not None:
            mem(); return
        if fixed is not None:
            fixed(); room -= 1
        if self.side and self.side[0] is None:
            self.side.pop(0)
            skip = True
        else: skip = False
        while room > 0:
            if self.sal and self.sal[0].count("\n") < room:
                x = self.sal.pop(0); self.a(x); room -= 1 + x.count("\n"); continue
            if skip or not self.side or self.side[0] is None: break
            k = kind_of(self.side[0])
            if k in ("m", "x"):
                if room == 2:
                    self.run(self.side.pop(0))
                break
            self.run(self.side.pop(0)); room -= 1
    def drain_sal(self):
        while self.sal: self.a(self.sal.pop(0))
    def drain(self):
        self.drain_sal()
        for op in self.side:
            if op is not None: self.run(op)
        self.side = []

def ln_ops(exact=1):
    o = []
    a = o.append
    pk = lambda op, d, x, y, mod="": a("%s v[%d:%d], v[%d:%d], v[%d:%d]%s" % (op, d, d + 1, x, x + 1, y, y + 1, mod))
    for i in range(16):
        if i % 4 == 0: a("WAIT%d" % (i // 4))
        a("v_lshlrev_b32 v%d, 16, v%d" % (24 + 2 * i, 8 + i))
        a("v_and_b32 v%d, 0xffff0000, v%d" % (25 + 2 * i, 8 + i))
        if i == 1: pk("v_pk_add_f32", 56, 24, 26)
        elif i == 3: pk("v_pk_add_f32", 58, 28, 30)
        elif i > 3: pk("v_pk_add_f32", 56 + 2 * (i & 1), 56 + 2 * (i & 1), 24 + 2 * i)
    pk("v_pk_add_f32", 56, 56, 58)
    a("v_add_f32 v56, v56, v57")
    def xlane_sum(r, t):
        a("s_nop 1")
        a("v_add_f32_dpp v%d, v%d, v%d row_ror:8 row_mask:0xf bank_mask:0xf" % (r, r, r))
        for op in ("v_permlane16_swap_b32", "v_permlane32_swap_b32"):
            a("v_mov_b32 v%d, v%d" % (t, r))
            a("s_nop 1")
            a("%s v%d, v%d" % (op, r, t))
            a("v_add_f32 v%d, v%d, v%d" % (r, r, t))
    xlane_sum(56, 57)
    a("v_mul_f32 v56, 0x%x, v56" % f2u(1.0 / 256))
    neg = " op_sel_hi:[1,0] neg_lo:[0,1] neg_hi:[0,1]"
    for i in range(16):
        t = 62 + 2 * (i & 1); ac = 66 + 2 * (i & 1)
        pk("v_pk_add_f32", t, 24 + 2 * i, 56, neg)
        if i < 2: pk("v_pk_mul_f32", ac, t, t)
        else: a("v_pk_fma_f32 v[%d:%d], v[%d:%d], v[%d:%d], v[%d:%d]" % (ac, ac + 1, t, t + 1, t, t + 1, ac, ac + 1))
    pk("v_pk_add_f32", 66, 66, 68)
    a("v_add_f32 v57, v66, v67")
    xlane_sum(57, 58)
    a("ds_write_b64 v7, v[56:57]")
    a("s_waitcnt lgkmcnt(0)")
    a("s_barrier")
    for k in range(4): a("ds_read_b64 v[%d:%d], v60 offset:%d" % (62 + 2 * k, 63 + 2 * k, 64 * k))
    a("s_waitcnt lgkmcnt(0)")
    pk("v_pk_add_f32", 56, 62, 64)
    pk("v_pk_add_f32", 58, 66, 68)
    pk("v_pk_add_f32", 56, 56, 58)
    a("v_mul_f32 v56, 0x3e800000, v56")
    a("v_sub_f32 v59, v62, v56")
    a("v_mul_f32 v58, v59, v59")
    for r in (64, 66, 68):
        a("v_sub_f32 v59, v%d, v56" % r)
        a("v_fmac_f32 v58, v59, v59")
    a("v_fmac_f32 v57, 0x43800000, v58")
    a("v_mul_f32 v57, 0x%x, v57" % f2u(1.0 / 1024))
    a("v_cvt_pk_bf16_f32 v58, v56, v57")
    a("v_lshlrev_b32 v56, 16, v58")
    a("v_and_b32 v57, 0xffff0000, v58")
    a("v_add_f32 v57, 0x%x, v57" % f2u(1e-5))
    a("v_cvt_pk_bf16_f32 v57, v57, v57")
    a("v_and_b32 v57, 0xffff0000, v57")
    a("v_sqrt_f32 v57, v57")
    a("s_nop 0")
    a("v_cvt_pk_bf16_f32 v57, v57, v57")
    a("v_and_b32 v57, 0xffff0000, v57")
    a("v_rcp_f32 v58, v57")
    for i in range(16):
        pk("v_pk_add_f32", 24 + 2 * i, 24 + 2 * i, 56, neg)
        if i > 0:
            j = i - 1
            if exact:
                a("v_cvt_pk_bf16_f32 v%d, v%d, v%d" % (25 + 2 * j, 24 + 2 * j, 25 + 2 * j))
                a("v_lshlrev_b32 v%d, 16, v%d" % (24 + 2 * j, 25 + 2 * j))
                a("v_and_b32 v%d, 0xffff0000, v%d" % (25 + 2 * j, 25 + 2 * j))
            pk("v_pk_mul_f32", 24 + 2 * j, 24 + 2 * j, 58, " op_sel_hi:[1,0]")
            a("v_cvt_pk_bf16_f32 v%d, v%d, v%d" % (8 + j, 24 + 2 * j, 25 + 2 * j))
            if j % 4 == 3: a("STORE%d" % (j // 4))
    if exact:
        a("v_cvt_pk_bf16_f32 v55, v54, v55")
        a("v_lshlrev_b32 v54, 16, v55")
        a("v_and_b32 v55, 0xffff0000, v55")
    pk("v_pk_mul_f32", 54, 54, 58, " op_sel_hi:[1,0]")
    a("v_cvt_pk_bf16_f32 v23, v54, v55")
    a("STORE3")
    return o

def gen_f(a, cfg):
    name = NAME + "_kernel" if cfg.get("single") else "f_kernel"
    FLN = cfg.get("f_ln", 0)
    SPIN = cfg.get("spin", 0x40000)
    ST = cfg.get("stamp")
    MT = 4
    sa = SA(3, 84)
    P_WQ = sa.new("pwq", 2, 2); P_W1 = sa.new("pw1", 2, 2); P_WS = sa.new("pws", 2, 2); P_X = sa.new("px", 2, 2)
    P_W2 = sa.new("pw2", 2, 2); P_WO = sa.new("pwo", 2, 2); P_OUT = sa.new("pout", 2, 2)
    R_WQ = sa.new("rwq", 4, 4); R_W1 = sa.new("rw1", 4, 4); R_W2 = sa.new("rw2", 4, 4); R_WO = sa.new("rwo", 4, 4)
    R_WS = sa.new("rws", 4, 4)
    sW = sa.new("w"); sI = sa.new("i"); sJ = sa.new("j"); sJ1 = sa.new("j1"); sQ = sa.new("q"); sN = sa.new("n")
    sBQ = sa.new("bq"); sBV = sa.new("bv"); sBW = sa.new("bw"); sBL = sa.new("bl"); sLB = sa.new("lb"); sA = sa.new("a")
    sCLS = sa.new("cls"); t0 = sa.new("t0"); t1 = sa.new("t1"); t2 = sa.new("t2"); t3 = sa.new("t3")
    sMK = sa.new("mask", 8, 2)
    sKV = sa.new("kv"); sKV2 = sa.new("kv2"); sKP = sa.new("kp"); sKP2 = sa.new("kp2"); sFK = sa.new("fk"); sFO = sa.new("fo")
    sH = sa.new("h", 4); sSC = sa.new("sc", 2, 2); sO = sSC + 1; sA0 = sa.new("a0"); sB0 = sa.new("b0"); sAE = sa.new("aend"); sBE = sa.new("bend")
    sXO = sa.new("xo"); sSP = sa.new("spin")
    sDL = sMK
    STB = 84
    SETS = {1: ["start", "bar0", "g1end", "attbeg", "attend", "g2beg", "g2end", "end"],
            2: ["start", "g1half", "g1tail", "g1kv", "g1flag1", "g1chk", "g1kb", "g1end"],
            3: ["start", "attbeg", "att0", "att1", "att2", "att3", "att4", "attend"],
            4: ["start", "att4", "g2h", "g2beg", "g2p4", "g2p12", "g2tail", "g2end"],
            5: ["start", "g2end", "x1", "x2", "x3", "x4", "x5", "end"],
            7: ["g2beg", "g2p3", "g2p6", "g2p10", "g2p14", "g2p18", "g2p22", "g2end"],
            8: ["g2p22", "g2tail", "g2l1", "g2l2", "g2l3", "g2end", "x3", "end"],
            9: ["start", "lnx", "lns", "lnd", "lnp", "g1s1", "g1s4", "g1s8"],
            10: ["start", "k0", "k1", "k2", "k3", "k4", "lnx", "lns"],
            6: ["start", "bar0", "g1s2", "g1s4", "g1s8", "g1half", "g1s20", "g1tail"]}
    jn = [0]
    def stampr(nm):
        J = cfg.get("jit", 0)
        if J and nm != "start":
            jn[0] += 1
            lab = a.newlabel("F_j")
            a("s_lshl_b32 s84, s2, 2")
            if J & 1: a("s_add_u32 s84, s84, s%d" % sW)
            a("s_add_u32 s84, s84, %d" % (jn[0] * 7919 + J * 31))
            a("s_mul_i32 s84, s84, 0x9e3779b1")
            a("s_lshr_b32 s84, s84, 28")
            a("s_cmp_lg_u32 s84, 0")
            a("s_cbranch_scc1 %s" % lab)
            for _ in range(cfg.get("jitn", 2)): a("s_sleep 127")
            a.label(lab)
        if ST and nm in SETS[ST]:
            i = SETS[ST].index(nm)
            a("%s s[%d:%d]" % ("s_memtime" if cfg.get("clk") else "s_memrealtime", STB + 2 * i, STB + 2 * i + 1))

    NT = 13; KS = 32
    NS = 5; REG = 7168; STAGE = 4 * REG
    D1 = cfg.get("f_d1", 8)
    RA = cfg.get("f_ra1", 12)
    LA = cfg.get("f_la1", 4)
    C1 = cfg.get("f_c1", 2)
    C1K = cfg.get("f_c1k", 2); C1T = cfg.get("f_c1t", 4); C1S = cfg.get("f_c1s", 0)
    CM1 = max(C1, C1K, C1T)
    DB = cfg.get("f_db1", CM1 + 2); RB = DB + max(CM1, 2)
    assert DB >= CM1
    S1 = KS - D1
    def slot1(g): return (15 - g) % 5
    KVB = 96 * 1024
    def acc(mt, t): return (t * MT + mt) * 4
    V_L16 = 208; V_QKV = 209; V_W1 = 210; V_LEFT = 211
    V_RD = 212
    V_P0, V_P1, V_P2 = 221, 222, 223
    V_LANE = 224; V_FL0 = 225; V_ONE = 226; V_POLL = 227; V_KVW = 228; V_FG = 229; V_PL = 230
    T = 232
    A_PD = 255
    AR = 0; BR = RA * 16
    assert BR + RB * 4 <= 254

    kernel_begin(a, name)
    a.reset()
    stampr("start")
    a("s_cmp_ge_u32 s2, 256")
    a("s_cbranch_scc1 F_end")
    if cfg.get("idx"): a("s_xor_b32 s2, s2, %d" % cfg["idx"])
    if cfg.get("jit"):
        a("s_mul_i32 s84, s2, 0x9e3779b1")
        a("s_lshr_b32 s84, s84, 28")
        a("s_cmp_lg_u32 s84, %d" % (cfg["jit"] & 15))
        a("s_cbranch_scc1 F_j0")
        for _ in range(4): a("s_sleep 127")
        a.label("F_j0")
    a("s_load_dwordx2 s[%d:%d], s[0:1], 8" % (P_WQ, P_WQ + 1))
    a("s_load_dwordx2 s[%d:%d], s[0:1], 32" % (P_W1, P_W1 + 1))
    a("s_load_dwordx2 s[%d:%d], s[0:1], 64" % (P_WS, P_WS + 1))
    a("s_load_dwordx2 s[%d:%d], s[0:1], 0" % (P_X, P_X + 1))
    a("s_load_dwordx2 s[%d:%d], s[0:1], 40" % (P_W2, P_W2 + 1))
    a("s_load_dwordx2 s[%d:%d], s[0:1], 16" % (P_WO, P_WO + 1))
    a("s_load_dwordx2 s[%d:%d], s[0:1], 48" % (P_OUT, P_OUT + 1))
    if FLN:
        lab = a.newlabel("F_pc")
        a("s_getpc_b64 s[%d:%d]" % (R_WO, R_WO + 1))
        a.label(lab)
        a("s_and_b32 s%d, s%d, 0xffff" % (R_WO + 1, R_WO + 1))
        a("s_mov_b32 s%d, CODE_END - %s" % (R_WO + 2, lab))
        a("s_mov_b32 s%d, 0x00020000" % (R_WO + 3))
        a("s_lshr_b32 s%d, s2, 3" % t0)
        a("s_lshl_b32 s%d, s%d, 7" % (t0, t0))
        a("v_lshlrev_b32 v70, 12, v0")
        a.vmem("buffer_load_dword v76, v70, %s, s%d offen" % (s4(R_WO), t0), "T")
    if FLN: a("s_load_dwordx2 s[100:101], s[0:1], 56")
    L = V_LANE
    a("v_and_b32 v%d, 63, v0" % L)
    a("v_lshrrev_b32 v%d, 6, v0" % (T + 1))
    a("v_lshlrev_b32 v%d, 4, v%d" % (V_L16, L))
    a("v_readfirstlane_b32 s%d, v%d" % (sW, T + 1))
    a("s_and_b32 s%d, s2, 1" % sI)
    a("s_lshl_b32 s%d, s%d, 2" % (sI, sI))
    a("s_bfe_u32 s%d, s2, 0x20003" % t0)
    a("s_add_u32 s%d, s%d, s%d" % (sI, sI, t0))
    a("s_bfe_u32 s%d, s2, 0x20001" % sQ)
    a("s_lshr_b32 s%d, s2, 5" % sN)
    a("s_lshl_b32 s%d, s%d, 3" % (sJ, sQ))
    a("s_add_u32 s%d, s%d, s%d" % (sJ, sJ, sN))
    a("s_and_b32 s%d, s%d, 1" % (sJ1, sN))
    if FLN:
        a("v_and_b32 v3, 7, v%d" % L)
        a("v_lshrrev_b32 v4, 3, v%d" % L)
        LXD = cfg.get("f_lxd", 1)
        if LXD:
            a("v_xor_b32 v83, v3, v4")
            a("v_lshlrev_b32 v5, 11, v4")
            a("v_lshl_add_u32 v5, v%d, 9, v5" % (T + 1))
            a("v_lshl_add_u32 v5, v83, 4, v5")
            a("s_lshl_b32 s%d, s%d, 12" % (t1, sW))
            a("s_add_u32 s%d, s%d, %d" % (t1, t1, 144 * 1024))
            a("s_mov_b32 m0, s%d" % t1)
        else:
            a("v_lshlrev_b32 v5, 11, v3")
            a("v_lshl_add_u32 v5, v%d, 9, v5" % (T + 1))
            a("v_lshl_add_u32 v5, v4, 4, v5")
        a("s_lshl_b32 s%d, s%d, 5" % (t3, sI))
        a("s_add_u32 s%d, s%d, s%d" % (t3, t3, sJ))
        a("s_lshl_b32 s%d, s%d, 14" % (t0, t3))
        stampr("k0")
        a("s_waitcnt lgkmcnt(0)")
        stampr("k1")
        srd(a, R_W2, P_X, S * D * 2)
        for i in range(4):
            if LXD:
                a.vmem("buffer_load_dwordx4 v5, %s, s%d offen offset:%d lds" % (s4(R_W2), t0, i * 128), ("LX", i))
                if i < 3:
                    a("s_add_u32 m0, m0, %d" % (1024 - 128))
                    a("s_nop 0")
            else: a.vmem("buffer_load_dwordx4 %s, v5, %s, s%d offen offset:%d" % (r4("v", 8 + 4 * i), s4(R_W2), t0, i * 128), ("LX", i))
        if LXD:
            a("v_lshlrev_b32 v83, 4, v83")
            a("v_lshl_add_u32 v83, v3, 7, v83")
            a("v_add_u32 v83, s%d, v83" % t1)
        stampr("k2")
        srd(a, R_WS, P_WS, WS_END)
        a("s_lshl_b32 s%d, s%d, 12" % (sSP, sI))
        a("s_add_u32 s%d, s%d, 0x%x" % (sXO, sSP, WS_LF))
        a("v_and_b32 v80, 31, v%d" % L)
        a("v_lshlrev_b32 v80, %d, v80" % cfg.get("f_lfs", 2))
        a("v_add_u32 v80, s%d, v80" % sXO)
        a.vmem("buffer_load_dword v81, v80, %s, 0 offen sc1" % s4(R_WS), "SN")
    a("v_lshrrev_b32 v%d, 2, v%d" % (T + 2, L))
    a("v_lshl_add_u32 v%d, v%d, 4, v%d" % (T + 2, T + 1, T + 2))
    a("v_lshrrev_b32 v%d, 4, v%d" % (T + 3, L))
    a("v_and_b32 v%d, 2, v%d" % (T + 3, T + 3))
    a("v_and_b32 v%d, 3, v%d" % (T + 4, L))
    a("v_xor_b32 v%d, v%d, v%d" % (T + 3, T + 3, T + 4))
    a("v_lshlrev_b32 v%d, 4, v%d" % (T + 3, T + 3))
    a("v_mul_u32_u24 v%d, 6144, v%d" % (V_QKV, T + 2))
    a("v_add_u32 v%d, v%d, v%d" % (V_QKV, V_QKV, T + 3))
    a("v_mul_u32_u24 v%d, 7168, v%d" % (V_W1, T + 2))
    a("v_add_u32 v%d, v%d, v%d" % (V_W1, V_W1, T + 3))
    a("v_bfe_u32 v%d, v%d, 3, 1" % (T + 2, L))
    a("v_lshlrev_b32 v%d, 3, v%d" % (T + 2, T + 2))
    a("v_bfe_u32 v%d, v%d, 4, 1" % (T + 3, L))
    a("v_lshl_add_u32 v%d, v%d, 2, v%d" % (T + 2, T + 3, T + 2))
    a("v_bfe_u32 v%d, v%d, 1, 2" % (T + 3, L))
    a("v_add_u32 v%d, v%d, v%d" % (T + 2, T + 2, T + 3))
    a("v_lshl_add_u32 v%d, v%d, 4, v%d" % (T + 2, T + 1, T + 2))
    a("v_mul_u32_u24 v%d, 7168, v%d" % (V_LEFT, T + 2))
    a("v_and_b32 v%d, 1, v%d" % (T + 3, L))
    a("v_lshl_add_u32 v%d, v%d, 4, v%d" % (V_LEFT, T + 3, V_LEFT))
    a("v_lshrrev_b32 v%d, 5, v%d" % (T + 3, L))
    a("v_lshl_add_u32 v%d, v%d, 30, v%d" % (V_LEFT, T + 3, V_LEFT))
    a("s_lshl_b32 s%d, s%d, 6" % (sBQ, sJ))
    a("s_add_u32 s%d, s%d, 4096" % (sBV, sBQ))
    a("s_mul_i32 s%d, s%d, 224" % (sBL, sJ))
    a("s_lshl_b32 s%d, s%d, 5" % (t0, sJ1))
    a("s_add_u32 s%d, s%d, s%d" % (sBW, sBL, t0))
    a("s_xor_b32 s%d, s%d, 1" % (t0, sJ1))
    a("s_mul_i32 s%d, s%d, 192" % (t0, t0))
    a("s_add_u32 s%d, s%d, s%d" % (sBL, sBL, t0))
    a("s_mul_i32 s%d, s%d, %d" % (sLB, sW, REG))
    a("s_lshl_b32 s%d, s%d, 2" % (sA, sI))
    a("s_add_u32 s%d, s%d, s%d" % (sA, sA, sW))
    a("s_lshl_b32 s%d, s%d, 17" % (sA, sA))
    a("s_add_u32 s%d, s%d, 0x%x" % (sA, sA, WS_XN))
    ROT = cfg.get("f_rot", 1)
    a("s_add_u32 s%d, s%d, s%d" % (t1, sI, sN))
    a("s_and_b32 s%d, s%d, %d" % (t1, t1, 3 if ROT else 0))
    for k in range(3):
        a("s_cmp_eq_u32 s%d, %d" % (t1, 3 - k))
        a("s_cselect_b32 s%d, -3, 1" % (sDL + k))
    a("s_cmp_eq_u32 s%d, 0" % t1)
    a("s_cselect_b32 s%d, 1, 5" % (sDL + 3))
    a("s_mul_i32 s%d, s%d, %d" % (t0, t1, 64 * 6144))
    a("s_add_u32 s%d, s%d, s%d" % (sBQ, sBQ, t0))
    a("s_add_u32 s%d, s%d, s%d" % (sBV, sBV, t0))
    a("s_mul_i32 s%d, s%d, %d" % (t0, t1, 64 * 7168))
    a("s_add_u32 s%d, s%d, s%d" % (sBW, sBW, t0))
    a("s_add_u32 s%d, s%d, s%d" % (sBL, sBL, t0))
    a("s_lshl_b32 s%d, s%d, 13" % (t0, t1))
    a("s_add_u32 s%d, s%d, s%d" % (sA, sA, t0))
    for k in range(4):
        a("s_lshl_b32 s%d, s%d, 13" % (sDL + 4 + k, sDL + k))
        a("s_sub_u32 s%d, s%d, 4096" % (sDL + 4 + k, sDL + 4 + k))
    a("s_waitcnt lgkmcnt(0)")
    srd(a, R_WQ, P_WQ, D * 3 * D * 2)
    srd(a, R_W1, P_W1, D * DFF * 2)
    srd(a, R_WS, P_WS, WS_END)

    G = Gaps(a)
    PAIRPOS = [0, 2, 1, 3, 4, 5]
    def dma1(g, k, part):
        p, vreg, sb, so, imm = [(0, V_QKV, R_WQ, sBQ, 0), (2, V_QKV, R_WQ, sBQ, 2048), (1, V_QKV, R_WQ, sBV, 0),
                                (3, V_W1, R_W1, sBW, 0), (4, V_W1, R_W1, sBW, 64), (5, V_W1, R_W1, sBW, 128), (6, V_LEFT, R_W1, sBL, 0)][k]
        if part == 0:
            a("s_add_u32 m0, s%d, %d" % (sLB, slot1(g) * STAGE + p * 1024 - imm))
        else:
            a.vmem("buffer_load_dwordx4 v%d, %s, s%d offen offset:%d lds" % (vreg, s4(sb), so, imm), ("B", g))
            if k == 0: G.sal.append("s_mul_i32 s%d, s%d, %d" % (t2, sDL + (g & 3), 64 * 6144))
            if k == 1: G.sal.append("s_add_u32 s%d, s%d, s%d" % (sBQ, sBQ, t2))
            if k == 2: G.sal.append("s_add_u32 s%d, s%d, s%d" % (sBV, sBV, t2))
            if k == 3: G.sal.append("s_mul_i32 s%d, s%d, %d" % (t2, sDL + (g & 3), 64 * 7168))
            if k == 5: G.sal.append("s_add_u32 s%d, s%d, s%d" % (sBW, sBW, t2))
            if k == 6: G.sal.append("s_add_u32 s%d, s%d, s%d" % (sBL, sBL, t2))
    def aload1(s, mt):
        a.vmem("buffer_load_dwordx4 %s, v%d, %s, s%d offen offset:%d%s" % (r4("a", AR + (s % RA) * 16 + mt * 4), V_L16, s4(R_WS), sA, mt * 1024, " sc1" if FLN else ""), ("A", s))
        if mt == MT - 1:
            if s % 2 == 0: G.sal.append("s_add_u32 s%d, s%d, 4096" % (sA, sA))
            else: G.sal.append("s_add_u32 s%d, s%d, s%d" % (sA, sA, sDL + 4 + ((s // 2) & 3)))
    order = []
    for g in range(16):
        for k in range(7): order.append(("B", g, k))
        for s in (2 * g, 2 * g + 1):
            for mt in range(MT): order.append(("A", s, mt))
    def issue1(op):
        G.drain_sal()
        if op[0] == "A": aload1(op[1], op[2])
        else:
            dma1(op[1], op[2], 0); a("s_nop 0"); dma1(op[1], op[2], 1)
        G.drain_sal()
    if FLN:
        nb = cfg.get("f_lnb", 1)
        bops = [o for o in order if o[0] == "B" and o[1] < nb]
        for o in bops: order.remove(o)
        BO = cfg.get("f_bo", 0)
        late_b = []
        if BO == 1: late_b = bops[:3]; bops = bops[3:]
        if BO == 2: late_b = bops[3:]; bops = bops[:3]
        TB0 = cfg.get("f_tb", 0)
        def touchb():
            a("s_lshr_b32 s%d, s2, 3" % t1)
            a("s_lshl_b32 s%d, s%d, 2" % (t1, t1))
            a("s_add_u32 s%d, s%d, s%d" % (t1, t1, sW))
            a("v_lshrrev_b32 v84, 4, v%d" % L)
            a("v_and_b32 v85, 15, v%d" % L)
            a("v_mul_u32_u24 v86, 7168, v84")
            a("v_lshl_add_u32 v86, v85, 7, v86")
            a("v_mul_u32_u24 v84, 6144, v84")
            a("v_lshrrev_b32 v87, 2, v85")
            a("v_lshl_add_u32 v84, v87, 11, v84")
            a("v_and_b32 v87, 3, v85")
            a("v_lshl_add_u32 v84, v87, 7, v84")
            a("s_mul_i32 s%d, s%d, %d" % (t0, t1, 2 * 6144))
            a("s_lshl_b32 s%d, s%d, 9" % (t2, sQ))
            a("s_add_u32 s%d, s%d, s%d" % (sKV, t0, t2))
            a("s_mul_i32 s%d, s%d, %d" % (t0, t1, 2 * 7168))
            a("s_mul_i32 s%d, s%d, 1792" % (t2, sQ))
            a("s_add_u32 s%d, s%d, s%d" % (sKV2, t0, t2))
        def touchb2():
            a("s_mov_b64 exec, 0x0fff0fff")
            a.vmem("buffer_load_dword a%d, v84, %s, s%d offen" % (A_PD, s4(R_WQ), sKV), "T")
            a("s_mov_b64 exec, 0x3fff3fff")
            a.vmem("buffer_load_dword a%d, v86, %s, s%d offen" % (A_PD, s4(R_W1), sKV2), "T")
            a("s_mov_b64 exec, -1")
        if TB0: touchb()
        if TB0 == 1: touchb2()
        for _ in range(cfg.get("f_lnb0", 2)): issue1(bops.pop(0))
        a("s_lshl_b32 s%d, s2, 9" % t0)
        a("s_add_u32 s%d, s%d, 0x%x" % (t0, t0, WS_FL))
        a("v_lshlrev_b32 v70, 2, v0")
        a("v_lshrrev_b32 v71, 7, v0")
        a("v_lshl_add_u32 v70, v71, 30, v70")
        a("v_mov_b32 v71, 0")
        a.vmem("buffer_store_dword v71, v70, %s, s%d offen sc1" % (s4(R_WS), t0), "Z")
        a("s_lshr_b32 s%d, s%d, 3" % (t0, t3))
        a("s_lshl_b32 s%d, s%d, 17" % (t0, t0))
        a("s_bfe_u32 s%d, s%d, 0x20001" % (t1, t3))
        a("s_lshl_b32 s%d, s%d, 10" % (t1, t1))
        a("s_add_u32 s%d, s%d, s%d" % (t0, t0, t1))
        a("s_and_b32 s%d, s%d, 1" % (t1, t3))
        a("s_lshl_b32 s%d, s%d, 7" % (t1, t1))
        a("s_add_u32 s%d, s%d, s%d" % (t0, t0, t1))
        a("s_add_u32 s%d, s%d, 0x%x" % (t3, t0, WS_XN))
        a("v_lshrrev_b32 v6, 2, v4")
        a("v_lshl_add_u32 v6, v%d, 3, v6" % (T + 1))
        a("v_lshlrev_b32 v6, 12, v6")
        a("v_and_b32 v7, 3, v4")
        a("v_lshl_add_u32 v6, v7, 8, v6")
        a("v_lshl_add_u32 v6, v3, 4, v6")
        a("v_lshl_add_u32 v7, v%d, 3, v3" % (T + 1))
        a("v_lshlrev_b32 v7, 3, v7")
        a("v_add_u32 v7, %d, v7" % (5 * STAGE))
        a("v_lshlrev_b32 v60, 3, v3")
        a("v_add_u32 v60, %d, v60" % (5 * STAGE))
        stampr("k3")
        if LXD:
            for i in range(4):
                a.wait(vm=("LX", i))
                if i == 0: stampr("k4")
                a("ds_read_b128 %s, v83 offset:%d" % (r4("v", 8 + 4 * i), i * 1024))
            a("s_waitcnt lgkmcnt(0)")
        elif not cfg.get("f_lxp", 1): a.wait(vm=("LX", 3))
        stampr("lnx")
        if TB0 == 2: touchb2()
        lo_ = ln_ops(cfg.get("f_lnex", 1))
        gap_ = cfg.get("f_lngap", 20)
        for k, x in enumerate(lo_):
            if x.startswith("WAIT"): a.wait(vm=("LX", int(x[4:])))
            elif x.startswith("STORE"):
                i = int(x[5:])
                a.vmem("buffer_store_dwordx4 %s, v6, %s, s%d offen sc1" % (r4("v", 8 + 4 * i), s4(R_WS), t3), "XS")
                if i < 3: a("s_add_u32 s%d, s%d, %d" % (t3, t3, 8192))
            else: a(x)
            if k % gap_ == gap_ - 1 and bops and k < cfg.get("f_lnk", 110): issue1(bops.pop(0))
        bops += late_b
        if cfg.get("f_bnow", 1):
            while bops: issue1(bops.pop(0))
        stampr("lns")
    else:
        for _ in range(cfg.get("f_pro1", 15)): issue1(order.pop(0))

    srd(a, R_W2, P_W2, DFF * D * 2)
    srd(a, R_WO, P_WO, D * D * 2)
    a("s_bfe_u32 s%d, s2, 0x30003" % sCLS)
    a("s_lshr_b32 s%d, s2, 6" % t1)
    a("s_lshl_b32 s%d, s%d, 2" % (t1, t1))
    a("s_add_u32 s%d, s%d, s%d" % (t1, t1, sW))
    a("v_bfrev_b32 v%d, 1" % (T + 6))
    a("v_lshrrev_b32 v%d, 5, v%d" % (T + 2, L))
    a("s_lshl_b32 s%d, s%d, 1" % (t0, t1))
    a("v_add_u32 v%d, s%d, v%d" % (T + 2, t0, T + 2))
    a("v_and_b32 v%d, 31, v%d" % (T + 3, L))
    a("v_mul_u32_u24 v%d, 7168, v%d" % (V_P1, T + 2))
    a("v_lshl_add_u32 v%d, v%d, 7, v%d" % (V_P1, T + 3, V_P1))
    a("s_mul_i32 s%d, s%d, 1792" % (t0, sQ))
    a("v_add_u32 v%d, s%d, v%d" % (V_P1, t0, V_P1))
    a("v_mul_u32_u24 v%d, 6144, v%d" % (V_P0, T + 2))
    a("v_lshrrev_b32 v%d, 2, v%d" % (T + 4, T + 3))
    a("v_lshl_add_u32 v%d, v%d, 11, v%d" % (V_P0, T + 4, V_P0))
    a("v_and_b32 v%d, 3, v%d" % (T + 4, T + 3))
    a("v_lshl_add_u32 v%d, v%d, 7, v%d" % (V_P0, T + 4, V_P0))
    a("s_lshl_b32 s%d, s%d, 9" % (t0, sQ))
    a("v_add_u32 v%d, s%d, v%d" % (V_P0, t0, V_P0))
    a("v_cmp_le_u32 vcc, 12, v%d" % (T + 3))
    a("s_and_b32 s%d, s2, 1" % t0)
    a("s_lshl_b32 s%d, s%d, 4" % (t0, t0))
    a("v_cndmask_b32 v%d, v%d, v%d, vcc" % (V_P0, V_P0, T + 6))
    a("v_cmp_le_u32 vcc, 14, v%d" % (T + 3))
    a("s_add_u32 s%d, s%d, s%d" % (t0, t0, t1))
    a("s_lshl_b32 s%d, s%d, 17" % (t0, t0))
    a("v_cndmask_b32 v%d, v%d, v%d, vcc" % (V_P1, V_P1, T + 6))
    a("s_add_u32 s%d, s%d, 0x%x" % (t0, t0, WS_XN))
    a("v_lshlrev_b32 v%d, 7, v%d" % (V_P2, L))
    a("v_add_u32 v%d, s%d, v%d" % (V_P2, t0, V_P2))
    a("v_cmp_le_u32 vcc, 32, v%d" % L)
    a("s_lshl_b32 s%d, s%d, 12" % (t0, sCLS))
    a("s_nop 0")
    a("v_cndmask_b32 v%d, v%d, v%d, vcc" % (V_P2, V_P2, T + 6))
    PFM = cfg.get("f_pf", 0)
    PF0 = cfg.get("f_pf0", 8)
    if PFM & 2:
        a("buffer_load_dword a%d, v%d, %s, s%d offen" % (A_PD, V_P2, s4(R_WS), t0))
    def touch(n):
        lab = a.newlabel("F_pf")
        a("s_cmp_lg_u32 s%d, %d" % (sCLS, n & 7))
        a("s_cbranch_scc1 %s" % lab)
        if PFM & 1:
            a("s_mov_b32 s%d, %d" % (t0, n * 32 * 6144))
            a("s_mov_b32 s%d, %d" % (t1, n * 32 * 7168))
            a("buffer_load_dword a%d, v%d, %s, s%d offen" % (A_PD, V_P0, s4(R_WQ), t0))
            a("buffer_load_dword a%d, v%d, %s, s%d offen" % (A_PD - 1, V_P1, s4(R_W1), t1))
        if PFM & 2:
            a("s_mov_b32 s%d, %d" % (t0, n * 4096))
            a("buffer_load_dword a%d, v%d, %s, s%d offen" % (A_PD, V_P2, s4(R_WS), t0))
        a.label(lab)
    if PFM & 4:
        a("s_and_b32 s%d, s2, 1" % t0)
        a("v_lshrrev_b32 v%d, 5, v%d" % (T + 2, L))
        a("v_cmp_ne_u32 vcc, s%d, v%d" % (t0, T + 2))
        a("s_nop 1")
        a("v_cndmask_b32 v%d, v%d, v%d, vcc" % (V_P0, V_P0, T + 6))
        a("v_cndmask_b32 v%d, v%d, v%d, vcc" % (V_P1, V_P1, T + 6))
    PW = cfg.get("f_pw", 2); PW0 = cfg.get("f_pw0", 12)
    V_PW = 231
    a("v_lshlrev_b32 v%d, 7, v%d" % (V_PW, L))
    a("v_cmp_le_u32 vcc, 56, v%d" % L)
    a("s_nop 1")
    a("v_cndmask_b32 v%d, v%d, v%d, vcc" % (V_PW, V_PW, T + 6))
    def touchw(cls):
        lab = a.newlabel("F_pw")
        if cls is not None:
            a("s_cmp_lg_u32 s%d, %d" % (sCLS, cls))
            a("s_cbranch_scc1 %s" % lab)
        a("s_lshl_b32 s%d, s2, 2" % t0)
        a("s_add_u32 s%d, s%d, s%d" % (t0, t0, sW))
        a("s_mul_i32 s%d, s%d, 7168" % (t1, t0))
        a("buffer_load_dword a%d, v%d, %s, s%d offen" % (A_PD, V_PW, s4(R_W2), t1))
        a("s_lshl_b32 s%d, s%d, 11" % (t1, t0))
        a("s_mov_b64 exec, 0xffff")
        a("buffer_load_dword a%d, v%d, %s, s%d offen" % (A_PD - 1, V_PW, s4(R_WO), t1))
        a("s_mov_b64 exec, -1")
        a.label(lab)
    def touchp(k):
        a("s_lshl_b32 s%d, s2, 2" % t0)
        a("s_add_u32 s%d, s%d, s%d" % (t0, t0, sW))
        if k < 2:
            a("s_mul_i32 s%d, s%d, 7168" % (t1, t0))
            a("s_mov_b64 exec, 0xfffffff")
            a.vmem("buffer_load_dword a%d, v%d, %s, s%d offen offset:%d" % (A_PD, V_PW, s4(R_W2), t1, k * 3584), "T")
        else:
            a("s_lshl_b32 s%d, s%d, 11" % (t1, t0))
            a("s_mov_b64 exec, 0xffff")
            a.vmem("buffer_load_dword a%d, v%d, %s, s%d offen" % (A_PD, V_PW, s4(R_WO), t1), "T")
        a("s_mov_b64 exec, -1")
    def touchx(k):
        a("s_lshr_b32 s%d, s2, 3" % t0)
        a("s_lshl_b32 s%d, s%d, 2" % (t0, t0))
        a("s_add_u32 s%d, s%d, s%d" % (t0, t0, sW))
        a("s_lshl_b32 s%d, s%d, 7" % (t1, sQ))
        a("s_add_u32 s%d, s%d, s%d" % (t0, t0, t1))
        if k < 2:
            a("s_mul_i32 s%d, s%d, 14336" % (t1, t0))
            if k: a("s_add_u32 s%d, s%d, 7168" % (t1, t1))
            a("buffer_load_dword a%d, v%d, %s, s%d offen" % (A_PD - k, V_PW, s4(R_W2), t1))
        else:
            a("s_lshl_b32 s%d, s%d, 12" % (t1, t0))
            a("s_mov_b32 exec_hi, 0")
            a("buffer_load_dword a%d, v%d, %s, s%d offen" % (A_PD, V_PW, s4(R_WO), t1))
            a("s_mov_b32 exec_hi, -1")
    pfq = list(range(PF0, KS)) if PFM else []
    PFA = cfg.get("f_pfa", 30)
    a("v_lshrrev_b32 v%d, 5, v%d" % (T + 2, L))
    a("v_mul_u32_u24 v%d, %d, v%d" % (T + 2, REG, T + 2))
    a("v_and_b32 v%d, 3, v%d" % (T + 3, L))
    a("v_lshl_add_u32 v%d, v%d, 3, v%d" % (T + 2, T + 3, T + 2))
    a("v_bfe_u32 v%d, v%d, 2, 2" % (T + 3, L))
    a("v_bfe_u32 v%d, v%d, 4, 1" % (T + 4, L))
    a("v_lshl_add_u32 v%d, v%d, 6, v%d" % (V_RD, T + 3, T + 2))
    a("v_lshl_add_u32 v%d, v%d, 9, v%d" % (V_RD, T + 4, V_RD))
    a("v_lshl_add_u32 v%d, v%d, 5, v%d" % (V_RD, T + 4, V_RD))
    a("v_xor_b32 v%d, 32, v%d" % (V_RD + 1, V_RD))
    a("v_lshl_add_u32 v%d, v%d, 5, v%d" % (V_RD + 2, T + 3, T + 2))
    a("v_lshl_add_u32 v%d, v%d, 7, v%d" % (V_RD + 2, T + 4, V_RD + 2))
    for st_ in (1, 2):
        for x in range(3):
            a("v_add_u32 v%d, %d, v%d" % (V_RD + 3 * st_ + x, st_ * 2 * STAGE, V_RD + x))
    a("s_lshl_b32 s%d, s%d, 7" % (sKV, sJ))
    a("s_lshl_b32 s%d, s%d, 4" % (t0, sI))
    a("s_add_u32 s%d, s%d, s%d" % (sKV, sKV, t0))
    a("s_lshl_b32 s%d, s%d, 2" % (t0, sW))
    a("s_add_u32 s%d, s%d, s%d" % (sKV, sKV, t0))
    a("s_lshl_b32 s%d, s%d, 10" % (sKV, sKV))
    a("s_add_u32 s%d, s%d, 0x%x" % (sKV2, sKV, WS_V))
    a("s_add_u32 s%d, s%d, 0x%x" % (sKV, sKV, WS_K))
    a("s_sub_u32 s%d, s%d, 16384" % (sKP, sKV))
    a("s_sub_u32 s%d, s%d, 16384" % (sKP2, sKV2))
    a("s_cmp_eq_u32 s%d, 0" % sI)
    a("s_cselect_b32 s%d, 0x40000000, s%d" % (sKP, sKP))
    a("s_cselect_b32 s%d, 0x40000000, s%d" % (sKP2, sKP2))
    a("s_lshl_b32 s%d, s2, 2" % sFO)
    a("s_add_u32 s%d, s%d, s%d" % (sFO, sFO, sW))
    a("s_lshl_b32 s%d, s%d, 7" % (sFO, sFO))
    a("s_add_u32 s%d, s%d, 0x%x" % (sFO, sFO, WS_FL))
    a("s_add_u32 s%d, s%d, 1" % (t0, sI))
    a("s_and_b32 s%d, s%d, 3" % (t1, t0))
    a("s_lshl_b32 s%d, s%d, 3" % (t1, t1))
    a("s_lshr_b32 s%d, s%d, 2" % (t0, t0))
    a("s_or_b32 s%d, s%d, s%d" % (t1, t1, t0))
    a("s_and_b32 s%d, s2, 0xe6" % t0)
    a("s_or_b32 s%d, s%d, s%d" % (t1, t1, t0))
    a("s_lshl_b32 s%d, s%d, 2" % (t1, t1))
    a("s_add_u32 s%d, s%d, s%d" % (t1, t1, sW))
    a("s_lshl_b32 s%d, s%d, 7" % (t1, t1))
    a("s_add_u32 s%d, s%d, 0x%x" % (sFK, t1, WS_FL + 12))
    a("s_cmp_eq_u32 s%d, 7" % sI)
    a("s_cselect_b32 s%d, 0x40000000, s%d" % (sFK, sFK))
    a("v_cmp_ne_u32 vcc, 0, v%d" % L)
    a("v_mov_b32 v%d, 1" % V_ONE)
    a("v_and_b32 v%d, 31, v%d" % (V_PL, L))
    a("v_cndmask_b32 v%d, 0, v%d, vcc" % (V_FL0, T + 6))
    a("v_lshlrev_b32 v%d, 2, v%d" % (V_PL, V_PL))
    a("s_and_b32 s%d, s2, 31" % t0)
    a("s_lshl_b32 s%d, s%d, 2" % (t0, t0))
    a("s_add_u32 s%d, s%d, s%d" % (t0, t0, sW))
    a("s_lshl_b32 s%d, s%d, 7" % (t0, t0))
    a("s_lshl_b32 s%d, s%d, 2" % (t1, sN))
    a("s_add_u32 s%d, s%d, s%d" % (t0, t0, t1))
    a("s_add_u32 s%d, s%d, 0x%x" % (t0, t0, WS_FL))
    a("v_lshlrev_b32 v%d, 14, v%d" % (V_FG, L))
    a("v_add_u32 v%d, s%d, v%d" % (V_FG, t0, V_FG))
    a("v_cmp_le_u32 vcc, 8, v%d" % L)
    a("s_lshl_b32 s%d, s%d, 12" % (t0, sW))
    a("s_add_u32 s%d, s%d, %d" % (t0, t0, KVB))
    a("v_cndmask_b32 v%d, v%d, v%d, vcc" % (V_FG, V_FG, T + 6))
    a("v_add_u32 v%d, s%d, v%d" % (V_KVW, t0, V_L16))
    a("s_lshl_b32 s%d, s%d, 2" % (t0, sI))
    a("s_add_u32 s%d, s%d, s%d" % (t0, t0, sW))
    a("s_lshl_b32 s%d, s%d, 17" % (sXO, t0))
    a("s_mul_i32 s%d, s%d, 144" % (t0, t0))
    a("s_mul_i32 s%d, s%d, 36" % (t1, sQ))
    a("s_add_u32 s%d, s%d, s%d" % (t0, t0, t1))
    a("s_lshl_b32 s%d, s%d, 12" % (t0, t0))
    a("s_add_u32 s%d, s%d, 0x%x" % (t0, t0, WS_A2))
    a("s_add_u32 s%d, s%d, %d" % (sAE, t0, 28 * 4096))
    a("s_lshl_b32 s%d, s%d, 12" % (t1, sN))
    a("s_add_u32 s%d, s%d, s%d" % (sO, sAE, t1))
    a("s_mul_i32 s%d, s%d, 7" % (t1, sN))
    a("s_add_u32 s%d, s%d, s%d" % (t1, t1, sJ1))
    a("s_lshl_b32 s%d, s%d, 11" % (t1, t1))
    a("s_add_u32 s%d, s%d, s%d" % (sH, t0, t1))
    a("s_add_u32 s%d, s%d, 4096" % (sH + 1, sH))
    a("s_add_u32 s%d, s%d, 8192" % (sH + 2, sH))
    a("s_mul_i32 s%d, s%d, %d" % (sH + 3, sJ1, -4096 + 8 - 3 * 4096))
    a("s_add_u32 s%d, s%d, %d" % (sH + 3, sH + 3, 3 * 4096))
    a("s_add_u32 s%d, s%d, s%d" % (sH + 3, sH + 3, sH))
    a("s_lshl_b32 s%d, s%d, 8" % (t0, sN))
    a("s_add_u32 s%d, s%d, s%d" % (sXO, sXO, t0))
    a("s_lshl_b32 s%d, s%d, 6" % (t0, sQ))
    a("s_add_u32 s%d, s%d, s%d" % (sXO, sXO, t0))
    a("s_mov_b32 s%d, 0x%x" % (sSC, f2u(QSCALE)))
    def spin(mask, skip_if_i0=False):
        l0 = a.newlabel("F_sp"); l1 = a.newlabel("F_ok")
        if skip_if_i0:
            a("s_cmp_eq_u32 s%d, 0" % sI)
            a("s_cbranch_scc1 %s" % l1)
        a("s_mov_b32 s%d, 0x%x" % (sSP, SPIN))
        a.label(l0)
        a("v_cmp_ne_u32 vcc, 0, v%d" % V_POLL)
        a("s_and_b32 s%d, vcc_lo, 0x%x" % (t0, mask))
        a("s_cmp_eq_u32 s%d, 0x%x" % (t0, mask))
        a("s_cbranch_scc1 %s" % l1)
        a("buffer_load_dword v%d, v%d, %s, s%d offen sc1" % (V_POLL, V_PL, s4(R_WS), sFO))
        a("s_sub_u32 s%d, s%d, 1" % (sSP, sSP))
        a("s_waitcnt vmcnt(0)")
        a("s_cbranch_scc0 %s" % l0)
        a.label(l1)
    def poll_issue(tag):
        a.vmem("buffer_load_dword v%d, v%d, %s, s%d offen sc1" % (V_POLL, V_PL, s4(R_WS), sFO), tag)

    if FLN:
        while bops: issue1(bops.pop(0))
        if PW & 8: touchw(None)
        nb2 = cfg.get("f_lnb2", 3)
        b2 = [o for o in order if o[0] == "B" and o[1] < nb + nb2]
        for o in b2: order.remove(o)
        if BO == 1: b2 = [o for o in b2 if o[2] >= 3] + [o for o in b2 if o[2] < 3]
        if BO == 2: b2 = [o for o in b2 if o[2] < 3] + [o for o in b2 if o[2] >= 3]
        for _ in range(cfg.get("f_lnb2e", 0)): issue1(b2.pop(0))
        if PW & 8: a.vm += ["T", "T"]
        a.wait(vm="XS")
        stampr("lnd")
        a("s_barrier")
        lab = a.newlabel("F_ln"); l2 = a.newlabel("F_lp"); l3 = a.newlabel("F_lq"); l4 = a.newlabel("F_la")
        a("s_lshl_b32 s%d, s%d, 5" % (t0, sI))
        a("v_mov_b32 v1, s%d" % t0)
        a("s_cmp_lg_u32 s%d, 0" % sW)
        a("s_cbranch_scc1 %s" % lab)
        a("v_add_u32 v82, 1, v81")
        a("s_lshl_b64 exec, 1, s%d" % sJ)
        a("buffer_store_dword v82, v80, %s, 0 offen sc1" % s4(R_WS))
        a("s_mov_b64 exec, -1")
        a.label(lab)
        while b2: issue1(b2.pop(0))
        if PW & 16: touchw(None)
        a("s_cmp_lg_u32 s%d, 1" % sW)
        a("s_cbranch_scc1 %s" % l4)
        a("s_mov_b64 exec, 1")
        a("global_atomic_add v1, v%d, s[100:101] sc1" % V_ONE)
        a("s_mov_b64 exec, -1")
        a.label(l4)
        PALL = cfg.get("f_pall", 0)
        if not PALL:
            a("s_cmp_lg_u32 s%d, 0" % sW)
            a("s_cbranch_scc1 %s" % l3)
        else:
            a("s_lshl_b32 s%d, s%d, 3" % (t1, sW))
            a("s_lshl_b32 s%d, 0xff, s%d" % (t1, t1))
        a("s_mov_b32 s%d, 0x%x" % (sSP, SPIN))
        a.label(l2)
        a("buffer_load_dword v82, v80, %s, 0 offen sc1" % s4(R_WS))
        a("s_waitcnt vmcnt(0)")
        a("v_cmp_ne_u32 vcc, v81, v82")
        if PALL:
            a("s_and_b32 s%d, vcc_lo, s%d" % (t0, t1))
            a("s_cmp_eq_u32 s%d, s%d" % (t0, t1))
        else: a("s_cmp_eq_u32 vcc_lo, -1")
        a("s_cbranch_scc1 %s" % l3)
        a("s_sub_u32 s%d, s%d, 1" % (sSP, sSP))
        a("s_cbranch_scc1 %s" % l3)
        a("s_and_b32 s%d, s%d, 7" % (t0, sSP))
        a("s_cbranch_scc1 %s" % l2)
        a("global_load_dword v2, v1, s[100:101] sc1")
        a("s_waitcnt vmcnt(0)")
        a("v_readfirstlane_b32 s%d, v2" % t0)
        a("s_cmp_lt_u32 s%d, 32" % t0)
        a("s_cbranch_scc1 %s" % l2)
        a.label(l3)
        if not PALL: a("s_barrier")
        stampr("lnp")
        for _ in range(8): issue1(order.pop(0))
        order[:0] = bops
    gi = []
    def grp(units, s0, s1, tiles, C):
        s = s0
        while s < s1:
            c = min(C, s1 - s)
            for t in tiles:
                g0 = len(units); gn = gi[-1][2] + 1 if gi else 0
                for k in range(c):
                    units.append((s + k, t)); gi.append((g0, c, gn))
            s += c
    units = []
    grp(units, 0, C1S, range(NT), 2)
    grp(units, C1S, S1, range(NT), C1)
    grp(units, S1, KS, (2, 3, 4, 5), C1K)
    UKV = len(units)
    grp(units, S1, KS, (6, 7, 8, 9), C1T)
    UH01 = len(units)
    grp(units, S1, KS, (10, 11, 12, 0, 1), C1T)
    NU = len(units)
    last_unit_of_stage = {}
    last_unit_of_step = {}
    for u, (s, t) in enumerate(units):
        last_unit_of_stage[s // 2] = u; last_unit_of_step[s] = u
    stt = dict(ready=-1, free=set(), waited=-1, issued=-1)
    def barrier():
        a("s_barrier")
        for g, lu in last_unit_of_stage.items():
            if lu <= stt["waited"]: stt["free"].add(g)
    def can1(op):
        if op[0] == "B": return op[1] < NS or (op[1] - NS) in stt["free"]
        return op[1] < RA or last_unit_of_step[op[1] - RA] <= stt["issued"]
    def flush1(tag):
        while any(o[:2] == tag for o in order):
            op = order.pop(0)
            assert can1(op), (op, stt)
            if cfg.get("verbose"): print("late flush", op, file=sys.stderr)
            issue1(op)
    def bread1(u, j2):
        s, t = units[u]
        slot = slot1(s // 2); st_ = slot // 2
        off = (slot % 2) * STAGE + (s % 2) * 2 * REG + j2 * 256
        if t < 12: off += PAIRPOS[t // 2] * 1024; vr = V_RD + 3 * st_ + (t % 2)
        else: off += 6144; vr = V_RD + 3 * st_ + 2
        a.lds("ds_read_b64_tr_b16 %s, v%d offset:%d" % (r2("a", BR + (u % RB) * 4 + j2 * 2), vr, off), ("b", u))
    def need1(u):
        g = units[u][0] // 2
        if g > stt["ready"]:
            flush1(("B", g)); a.wait(vm=("B", g)); barrier(); stt["ready"] = g
    def pack(c0, c1, relu=False):
        ops = []
        for hh, c in enumerate((c0, c1)):
            if c is None: continue
            for e2 in range(2):
                ops.append("v_cvt_pk_bf16_f32 v%d, v%d, v%d" % (c0 + 2 * hh + e2, c + 2 * e2, c + 2 * e2 + 1))
            if relu:
                for e2 in range(2):
                    ops.append("v_pk_max_i16 v%d, v%d, 0" % (c0 + 2 * hh + e2, c0 + 2 * hh + e2))
        return ops
    HF = ["sc1", "", "nt", "sc0"][cfg.get("f_hf", 0)]
    def hstore(p, mt):
        if p < 3: a.vmem("buffer_store_dwordx4 %s, v%d, %s, s%d offen offset:%d %s" % (r4("v", acc(mt, 6 + 2 * p)), V_L16, s4(R_WS), sH + p, mt * 1024, HF), "H")
        else: a.vmem("buffer_store_dwordx2 %s, v%d, %s, s%d offen offset:%d %s" % (r2("v", acc(mt, 12)), V_L16, s4(R_WS), sH + 3, mt * 1024, HF), "H")
    need1(0)
    stampr("bar0")
    for u in range(DB):
        need1(u)
        bread1(u, 0); bread1(u, 1)
    kvq = [(acc(mt, 2), acc(mt, 3), sKV, mt * 1024, 16384 + mt * 1024) for mt in range(MT)] + \
          [(acc(2 * b, 4 + dt), acc(2 * b + 1, 4 + dt), sKV2, (2 * b + dt) * 1024, 49152 + (2 * b + dt) * 1024) for b in range(2) for dt in range(2)]
    NREST = NU - UKV
    UFLAG = UKV + cfg.get("f_uf", 28)
    UPOLL = UFLAG + cfg.get("f_up", 14)
    UCHK = min(UPOLL + cfg.get("f_uc", 8), NU - 1)
    UPW = UCHK + cfg.get("f_uw", 14)
    V2_DMA = 209; V_XO = 211; V2_RD = 232; V2_B = 231
    bias = [232, 236, 240, 244]; VONES = 248; VM = 252
    sB2 = sBQ; sBO = sBV
    class Rec:
        def __init__(self): self.l = []
        def __call__(self, x): self.l.append(x)
    su = Rec(); TT = VM
    HO = cfg.get("f_ho", 0)
    su("v_lshrrev_b32 v%d, 4, v%d" % (TT, L))
    su("v_lshlrev_b32 v%d, 11, v%d" % (V2_DMA, TT))
    su("v_lshlrev_b32 v%d, 1, v%d" % (TT, TT))
    su("v_and_b32 v%d, 15, v%d" % (TT + 1, L))
    su("v_xor_b32 v%d, v%d, v%d" % (TT, TT, TT + 1))
    su("v_lshl_add_u32 v%d, v%d, 4, v%d" % (V2_DMA, TT, V2_DMA))
    su("s_and_b32 s%d, s%d, 1" % (t1, sW))
    su("s_lshl_b32 s%d, s%d, 7" % (t1, t1))
    su("v_xor_b32 v%d, s%d, v%d" % (V2_DMA, t1, V2_DMA))
    su("v_add_u32 v%d, %d, v%d" % (V2_DMA + 1, 32768 - 1024, V2_DMA))
    su("v_lshrrev_b32 v%d, 4, v%d" % (TT, L))
    su("v_lshlrev_b32 v%d, 2, v%d" % (TT, TT))
    for e in range(4):
        su("v_add_u32 v%d, %d, v%d" % (TT + 2, e, TT))
        su("v_cmp_le_u32 s[%d:%d], v%d, v%d" % (sMK + 2 * e, sMK + 2 * e + 1, TT + 2, TT + 1))
    su("s_lshl_b32 s%d, s%d, 13" % (t2, sW))
    su("s_lshl_b32 s%d, s%d, 8" % (t1, sN))
    su("s_add_u32 s%d, s%d, s%d" % (t2, t2, t1))
    su("s_lshl_b32 s%d, s%d, 19" % (sBO, sQ))
    su("s_add_u32 s%d, s%d, s%d" % (sBO, sBO, t2))
    su("s_mul_i32 s%d, s%d, %d" % (sB0, sQ, 896 * 2048))
    su("s_add_u32 s%d, s%d, s%d" % (sB0, sB0, t2))
    su("s_add_u32 s%d, s%d, %d" % (sBE, sB0, 896 * 2048))
    su("s_mul_i32 s%d, s%d, 7" % (t1, sN))
    su("s_add_u32 s%d, s%d, s%d" % (t1, t1, sJ1))
    su("s_lshl_b32 s%d, s%d, 15" % (t1, t1))
    su("s_add_u32 s%d, s%d, s%d" % (sB2, sB0, t1))
    LIN = cfg.get("f_lin", 1)
    if LIN:
        su("s_sub_u32 s%d, s%d, %d" % (sA, sAE, 28 * 4096))
        su("s_mov_b32 s%d, s%d" % (sAE, sH))
        su("s_add_u32 s%d, s%d, %d" % (sA0, sH, 3 * 4096))
        su("s_mov_b32 s%d, s%d" % (sBW, sB0))
        su("s_mov_b32 s%d, s%d" % (sBE, sB2))
        su("s_add_u32 s%d, s%d, %d" % (sB0, sB2, 3 * 65536))
    else:
        su("s_add_u32 s%d, s%d, %d" % (sA, sH, 3 * 4096))
        su("s_sub_u32 s%d, s%d, %d" % (sA0, sAE, 28 * 4096))
    su("s_cmp_eq_u32 s%d, s%d\ns_cselect_b32 s%d, s%d, s%d" % (sA, sAE, sA, sA0, sA))
    su0 = su.l; su = Rec()
    KS2 = 36
    LOC = [(0, 1), (1, 1), (2, 1), (0, 3), (1, 3), (2, 3), (0, 5), (1, 5), (2, 5), (3, 1), (3, 3), (3, 5), (4, 1), (4, 3), (4, 5)]
    NSL = len(LOC)
    def dma2_txt(p):
        sb, so = (R_W2, sB2) if p < 28 else (R_WO, sBO)
        sl, pos = LOC[p % NSL]
        ops = [(0, "s_add_u32 m0, s%d, %d" % (sLB, sl * STAGE + pos * 1024)),
               (1, "buffer_load_dwordx4 v%d, %s, s%d offen lds" % (V2_DMA, s4(sb), so)),
               (1, "buffer_load_dwordx4 v%d, %s, s%d offen offset:1024 lds" % (V2_DMA + 1, s4(sb), so))]
        if p == 2: ops.append((0, "s_mov_b32 s%d, s%d" % (sB2, sBW)))
        elif p != 27 and p != 35: ops.append((0, "s_add_u32 s%d, s%d, 65536" % (so, so)))
        if 2 <= p < 27: ops.append((0, "s_cmp_eq_u32 s%d, s%d\ns_cselect_b32 s%d, s%d, s%d" % (sB2, sBE, sB2, sB0, sB2)))
        return ops
    def dma2_ops(p):
        return [(k, (lambda x=x: a.vmem(x, ("B2", p))) if k else (lambda x=x: a(x))) for k, x in dma2_txt(p)]
    def hole_ops(ps):
        o = []
        for p in ps:
            for k, x in dma2_txt(p):
                if k: o += [("m", lambda x=x, p=p: a.vmem(x, ("B2", p)))] + [None] * cfg.get("f_hosp", 3)
                else: o += [x] + ([None] if "m0" in x else [])
        return o
    su("s_lshl_b32 s%d, s%d, 2" % (t1, sI))
    su("s_add_u32 s%d, s%d, s%d" % (t1, t1, sW))
    for gq in range(4):
        su("s_cmp_lt_u32 s%d, %d\ns_cselect_b32 s%d, 0x%x, 0" % (t1, 4 - gq, t2, f2u(-1e30)))
        for e in range(4): su("v_mov_b32 v%d, s%d" % (bias[gq] + e, t2))
    for e in range(4): su("v_mov_b32 v%d, 0x3f803f80" % (VONES + e))
    su("v_lshrrev_b32 v%d, 2, v%d" % (TT, L))
    su("v_and_b32 v%d, 7, v%d" % (TT + 2, TT))
    su("v_and_b32 v%d, 3, v%d" % (TT, TT))
    su("v_lshlrev_b32 v%d, 8, v%d" % (TT, TT))
    su("v_lshrrev_b32 v%d, 4, v%d" % (TT + 1, L))
    su("v_mul_u32_u24 v%d, %d, v%d" % (TT + 1, REG, TT + 1))
    su("v_add_u32 v%d, v%d, v%d" % (TT, TT, TT + 1))
    su("v_and_b32 v%d, 3, v%d" % (TT + 1, L))
    su("v_lshl_add_u32 v%d, v%d, 3, v%d" % (TT, TT + 1, TT))
    su("v_lshl_add_u32 v%d, v%d, 5, v%d" % (V2_B, TT + 2, TT))
    su("s_lshl_b32 s%d, s%d, 6" % (t1, sQ))
    su("s_xor_b32 s%d, s%d, 192" % (t1, t1))
    su("v_xor_b32 v%d, s%d, v%d" % (V2_B, t1, V2_B))
    su("v_mov_b32 v%d, 0xffff" % TT)
    su("v_mov_b32 v%d, 0xffff0000" % (TT + 1))
    su("v_cndmask_b32 v%d, 0, v%d, s[%d:%d]" % (VM + 2, TT, sMK, sMK + 1))
    su("v_cndmask_b32 v%d, 0, v%d, s[%d:%d]" % (VM + 3, TT, sMK + 4, sMK + 5))
    su("v_cndmask_b32 v%d, 0, v%d, s[%d:%d]" % (TT, TT + 1, sMK + 2, sMK + 3))
    su("v_cndmask_b32 v%d, 0, v%d, s[%d:%d]" % (TT + 1, TT + 1, sMK + 6, sMK + 7))
    su("v_or_b32 v%d, v%d, v%d" % (VM + 2, VM + 2, TT))
    su("v_or_b32 v%d, v%d, v%d" % (VM + 3, VM + 3, TT + 1))
    SPF = cfg.get("f_spf", 0)
    if SPF:
        su("s_lshr_b32 s%d, s2, 3" % t1)
        su("s_lshl_b32 s%d, s%d, 1" % (t1, t1))
        su("s_and_b32 s%d, s2, 1" % t2)
        su("s_add_u32 s%d, s%d, s%d" % (t1, t1, t2))
        su("s_lshl_b32 s%d, s%d, 2" % (t1, t1))
        su("s_add_u32 s%d, s%d, s%d" % (t1, t1, sW))
        su("s_lshl_b32 s%d, s%d, 7" % (t1, t1))
        su("s_mul_i32 s%d, s%d, %d" % (t2, sQ, 14336 * 128))
        su("s_add_u32 s%d, s%d, s%d" % (t2, t2, t1))
        su("s_add_u32 s%d, s%d, s%d\ns_addc_u32 s%d, s%d, 0" % (P_W2, P_W2, t2, P_W2 + 1, P_W2 + 1))
        su("s_add_u32 s%d, s%d, %d\ns_addc_u32 s%d, s%d, 0" % (P_WQ, P_W2, 28 * 32768, P_WQ + 1, P_W2 + 1))
        su("s_lshl_b32 s%d, s%d, 19" % (t2, sQ))
        su("s_add_u32 s%d, s%d, s%d" % (t2, t2, t1))
        su("s_add_u32 s%d, s%d, s%d\ns_addc_u32 s%d, s%d, 0" % (P_WO, P_WO, t2, P_WO + 1, P_WO + 1))
    V_T128 = V_XO
    TCN = cfg.get("f_tc", 0)
    su("v_lshlrev_b32 v%d, %d, v%d" % (V_T128, 15 if TCN else 7, L))
    if TCN:
        su("s_lshr_b32 s%d, s2, 3" % t1)
        su("s_lshl_b32 s%d, s%d, 1" % (t1, t1))
        su("s_and_b32 s%d, s2, 1" % t2)
        su("s_add_u32 s%d, s%d, s%d" % (t1, t1, t2))
        su("s_lshl_b32 s%d, s%d, 2" % (t1, t1))
        su("s_add_u32 s%d, s%d, s%d" % (t1, t1, sW))
        su("s_lshl_b32 s%d, s%d, 7" % (t1, t1))
        su("s_mul_i32 s%d, s%d, %d" % (sCLS, sQ, 14336 * 128))
        su("s_add_u32 s%d, s%d, s%d" % (sCLS, sCLS, t1))
        su("s_lshl_b32 s%d, s%d, 19" % (t3, sQ))
        su("s_add_u32 s%d, s%d, s%d" % (t3, t3, t1))
    def selftouch(so, half):
        if half: a("s_mov_b32 exec_hi, 0")
        a.vmem("buffer_load_dword a%d, v%d, %s, s%d offen sc1" % (A_PD, V_T128, s4(R_WS), so), "T")
        if half: a("s_mov_b32 exec_hi, -1")
    HK = cfg.get("f_hk", 0)
    if HK:
        assert RA == 12 and D1 == 8 and BR + RB * 4 <= 232 and UPW < NU
        kreg = lambda kt: 128 + 4 * kt if kt < 16 else 232 + 4 * (kt - 16)
        VF = 0
    else:
        kreg = lambda kt: 4 * kt
        VF = 80
    def kread(kt): a.lds("ds_read_b128 %s, v%d offset:%d" % (r4("a", kreg(kt)), V_KVW, kt * 1024), ("k", kt))
    def kpw(x):
        c0, c1, so, go, lo = kvq[x]
        a.wait(vm=("KP", x))
        a.lds("ds_write_b128 v%d, %s offset:%d" % (V_KVW, r4("v", c1), lo - 16384), "kvw")
    def codepf(vreg=None):
        if vreg is None: vreg = V_PW
        lab = a.newlabel("F_pc")
        a("s_getpc_b64 s[%d:%d]" % (R_WQ, R_WQ + 1))
        a.label(lab)
        a("s_and_b32 s%d, s%d, 0xffff" % (R_WQ + 1, R_WQ + 1))
        a("s_mov_b32 s%d, CODE_END - %s" % (R_WQ + 2, lab))
        a("s_lshr_b32 s%d, s2, 3" % t0)
        a("s_lshl_b32 s%d, s%d, 2" % (t0, t0))
        a("s_add_u32 s%d, s%d, s%d" % (t0, t0, sW))
        a("s_lshl_b32 s%d, s%d, 9" % (t0, t0))
        a("s_mov_b64 exec, 15")
        a.vmem("buffer_load_dword a%d, v%d, %s, s%d offen" % (A_PD, vreg, s4(R_WQ), t0), "T")
        a("s_mov_b64 exec, -1")
    seenA = set()
    ramp = (RA - 1 - LA) / float(S1 * NT)
    WM = cfg.get("f_wm", 200) / 100.0
    W0 = cfg.get("f_w0", 100) / 100.0
    UEND = S1 * NT + cfg.get("f_uend", 8)
    wts = [0.0] + [W0 * sum(1 for o in order if (o[1] if o[0] == "B" else o[1] // 2) == g) / 15.0 for g in (1, 2, 3)] + [WM if g % 4 == 0 else 1.0 for g in range(4, 16)]
    ipos = {}
    if cfg.get("f_lw", 0) == 2:
        no = []
        for g in range(16):
            bl = [o for o in order if o[0] == "B" and o[1] == g]; al = [o for o in order if o[0] == "A" and o[1] // 2 == g]
            if len(bl) == 7: mix = [bl[0], al[0], al[1], bl[1], al[2], al[3], bl[2], al[4], bl[3], bl[4], bl[5], bl[6], al[5], al[6], al[7]]
            else: mix = bl + al
            for k, o in enumerate(mix): ipos[o] = k
            no += mix
        order[:] = no
    noB = set(g for g in range(16) if not any(o[0] == "B" and o[1] == g for o in order))
    tau = [0.0]
    for g in range(16): tau.append(tau[-1] + wts[g])
    tau = [x * UEND / tau[-1] for x in tau]
    def due(op):
        g = op[1] if op[0] == "B" else op[1] // 2
        idx = op[2] if op[0] == "B" else 7 + (op[1] % 2) * 4 + op[2]
        if cfg.get("f_wb", 0) and op[0] == "B" and op[2] > 3: idx = 3
        if g in noB: return tau[g] + (tau[g + 1] - tau[g]) * (idx - 7) / 8.0
        if cfg.get("f_lw", 0) == 1:
            lw = [64, 64, 64, 56, 36, 44, 24] + [32] * 8
            return tau[g] + (tau[g + 1] - tau[g]) * sum(lw[:idx]) / float(sum(lw))
        if cfg.get("f_lw", 0) == 2: return tau[g] + (tau[g + 1] - tau[g]) * ipos[op] / 15.0
        return tau[g] + (tau[g + 1] - tau[g]) * idx / 15.0
    DF = cfg.get("f_df", 0); PZ0 = cfg.get("f_pz0", 4)
    THR1 = cfg.get("f_thr1", 63)
    side = G.side
    def prewait1(u):
        u += gi[u][1] - 1
        s, t = units[u]
        if s not in seenA:
            flush1(("A", s)); seenA.add(s)
            r = a.wait(vm=("A", s), lg=("b", u))
        else: r = a.wait(lg=("b", u))
        stt["waited"] = u
        return r
    prewait1(0)
    for u in range(NU):
        u0, C_, gn = gi[u]; kk = u - u0
        s, t = divmod(u, NT) if u < S1 * NT else units[u]
        un = u + DB
        if un < NU: need1(un)
        if u in ((S1 - 4) * NT + 2, (S1 - 2) * NT + 2, S1 * NT + 2): barrier()
        elif cfg.get("f_xb", 0) and u < S1 * NT and u % (2 * NT) == 0 and u > 0: barrier()
        if S1 // 2 <= 12 and u == last_unit_of_stage[12] + 2: barrier()
        if pfq and u % 4 == 2 and pfq[0] - 1 <= (u + PFA) / NT + LA + ramp * (u + PFA): touch(pfq.pop(0))
        if PW & 4:
            for k in range(3):
                if u == S1 * NT + cfg.get("f_px0", 4) + k * cfg.get("f_pxd", 16): touchx(k)
        if PW == 1 and u == UKV - PW0: touchw(None)
        if PW & 3 == 2 and u < S1 * NT and t == 8 and PW0 <= s < PW0 + 8: touchw((s + 4) & 7)
        if u == 16 * NT: stampr("g1half")
        if u < S1 * NT and t == 0: stampr("g1s%d" % s)
        if u == S1 * NT: stampr("g1tail")
        if u == UKV:
            stampr("g1kv")
            if cfg.get("f_cpf", 1): codepf()
        if DF and u == 3 * NT:
            side += ["v_mov_b32 v%d, -1" % (T + e) for e in range(4)]
            side += ["s_lshl_b32 s%d, s2, 2" % t3, "s_add_u32 s%d, s%d, s%d" % (t3, t3, sW), "s_mul_i32 s%d, s%d, 12288" % (t3, t3),
                     "s_add_u32 s%d, s%d, 0x%x" % (t3, t3, WS_XC),
                     "v_xor_b32 v%d, 3, v%d" % (T + 4, L), "v_lshlrev_b32 v%d, 1, v%d" % (T + 4, T + 4), "v_xor_b32 v%d, s2, v%d" % (T + 4, T + 4),
                     "v_lshlrev_b32 v%d, 9, v%d" % (T + 4, T + 4), "v_lshl_add_u32 v%d, v%d, 2, v%d" % (T + 4, L, T + 4)]
        if DF and u < S1 * NT and t == 4 and PZ0 <= s < PZ0 + 12:
            k_ = s - PZ0
            side.append(("m", lambda k_=k_: a.vmem("buffer_store_dwordx4 %s, v%d, %s, s%d offen offset:%d sc1" % (r4("v", T), V_L16, s4(R_WS), t3, (k_ % 4) * 1024), "PZ")))
            if k_ % 4 == 3: side.append("s_add_u32 s%d, s%d, 4096" % (t3, t3))
        if DF and u == (PZ0 + 14) * NT + 5:
            assert a.vm.count("PZ") == 12
            a.wait(vm="PZ")
            a("s_lshl_b32 s%d, s%d, 7" % (t3, sW))
            a("s_add_u32 s%d, s%d, 0x%x" % (t3, t3, WS_FL))
            a("s_mov_b64 exec, 7")
            a.vmem("buffer_store_dword v%d, v%d, %s, s%d offen sc1" % (V_ONE, T + 4, s4(R_WS), t3), "RF")
            a("s_mov_b64 exec, -1")
        if FLN and u == 20 * NT + 3:
            a("v_and_b32 v%d, 7, v%d" % (V_P0, L))
            a("v_lshlrev_b32 v%d, 5, v%d" % (V_P0, V_P0))
            a.vmem("global_load_dword v%d, v%d, s[100:101] sc1" % (V_POLL, V_P0), "CN")
        if FLN and u == 22 * NT + 3:
            a.wait(vm="CN")
            l0 = a.newlabel("F_cn"); l1 = a.newlabel("F_ok")
            a("s_mov_b32 s%d, 0x%x" % (sSP, SPIN))
            a.label(l0)
            a("v_cmp_le_u32 vcc, 32, v%d" % V_POLL)
            a("s_cmp_eq_u32 vcc_lo, -1")
            a("s_cbranch_scc1 %s" % l1)
            a("global_load_dword v%d, v%d, s[100:101] sc1" % (V_POLL, V_P0))
            a("s_sub_u32 s%d, s%d, 1" % (sSP, sSP))
            a("s_waitcnt vmcnt(0)")
            a("s_cbranch_scc0 %s" % l0)
            a.label(l1)
        if u == UFLAG:
            stampr("g1flag0")
            assert a.vm.count("KV") == 8
            a.wait(vm="KV")
            stampr("g1flag1")
            a.vmem("buffer_store_dword v%d, v%d, %s, s%d offen sc1" % (V_ONE, V_FL0, s4(R_WS), sFK), "FK")
        if u == UPOLL: poll_issue("PK")
        if u == UCHK:
            a.wait(vm="PK")
            spin(1 << 3, skip_if_i0=True)
            stampr("g1chk")
            if HK:
                def kd(so, k, chk):
                    if chk: assert 12 in stt["free"]
                    a.vmem("buffer_load_dwordx4 v%d, %s, s%d offen offset:%d sc1 lds" % (V_L16, s4(R_WS), so, k * 1024), "KD")
                new_ = ["s_lshl_b32 s%d, s%d, 12\ns_add_u32 m0, s%d, %d" % (t0, sW, t0, KVB + 32768), None]
                new_ += [("m", lambda k=k: kd(sKP2, k, False)) for k in range(4)]
                new_ += ["s_sub_u32 m0, m0, 32768", None]
                new_ += [("m", lambda k=k: kd(sKP, k, True)) for k in range(4)]
                side[:0] = new_
            else:
              for x, (c0, c1, so, go, lo) in enumerate(kvq):
                def f(c1=c1, so=(sKP if x < 4 else sKP2), go=go, x=x):
                    a.vmem("buffer_load_dwordx4 %s, v%d, %s, s%d offen offset:%d sc1" % (r4("v", c1), V_L16, s4(R_WS), so, go), ("KP", x))
                side.insert(x, ("m", f))
        if HK and u == UPW:
            assert a.vm.count("KD") == 8 and a.lg.count("kvw") == 8
            a.wait(vm="KD", lg="kvw"); barrier()
            stampr("g1kb")
            side[:0] = [("v", lambda kt=kt: kread(kt)) for kt in range(20)]
        nxt = None
        if order and can1(order[0]) and len(G.sal) <= 1 and due(order[0]) <= u: nxt = order.pop(0)
        if nxt and cfg.get("verbose", 0) > 1: print("issue", u, nxt, "due %.0f" % due(nxt), file=sys.stderr)
        if PW & 32 and nxt:
            tk = cfg.get("f_tk", 0)
            key = ("B", nxt[1], tk) if tk < 7 else ("A", nxt[1], (tk - 7) % 4)
            g_ = nxt[1] if nxt[0] == "B" else nxt[1] // 2
            if nxt == key and g_ in (4, 8, 12) and (nxt[0] == "B" or nxt[1] % 2 == (tk - 7) // 4): touchp(g_ // 4 - 1)
        for mt in range(MT):
            m_, k_ = divmod(kk * MT + mt, C_)
            mz = m_ if gn % 2 == 0 else MT - 1 - m_
            s_, t_ = units[u0 + k_]
            bf = r4("a", BR + ((u0 + k_) % RB) * 4)
            af = r4("a", AR + (s_ % RA) * 16 + mz * 4)
            c = r4("v", acc(mz, t_))
            src = "0" if s_ == 0 else c
            if t_ in (4, 5): a("%s %s, %s, %s, %s" % (MF, c, af, bf, src))
            else:            a("%s %s, %s, %s, %s" % (MF, c, bf, af, src))
            rd = (lambda mt=mt: bread1(un, mt)) if (mt < 2 and un < NU) else None
            if mt == 0: G.gap(fixed=rd)
            elif mt == 1:
                if nxt and nxt[0] == "B": G.gap(first=lambda: (dma1(nxt[1], nxt[2], 0), True)[1], fixed=rd)
                else: G.gap(fixed=rd)
            elif mt == 2:
                if nxt:
                    assert not G.sal
                    G.gap(first=(lambda: a.throttle(THR1)), mem=((lambda: aload1(nxt[1], nxt[2])) if nxt[0] == "A" else (lambda: dma1(nxt[1], nxt[2], 1))))
                else: G.gap()
            else:
                if kk == C_ - 1:
                    stt["issued"] = u
                    G.gap(first=(lambda: prewait1(u + 1)) if u + 1 < NU else None)
                else: G.gap()
        if u == UKV - 1:
            assert 11 in stt["free"], stt
            side += [None] * 5
            for (c0, c1, so, go, lo) in kvq:
                side += pack(c0, c1)
                def f(c0=c0, so=so, go=go):
                    a.vmem("buffer_store_dwordx4 %s, v%d, %s, s%d offen offset:%d sc1" % (r4("v", c0), V_L16, s4(R_WS), so, go), "KV")
                side.append(("m", f))
            for (c0, c1, so, go, lo) in kvq:
                def f(c0=c0, lo=lo):
                    a.lds("ds_write_b128 v%d, %s offset:%d" % (V_KVW, r4("v", c0), lo), "kvw")
                side += [("x", f), None]
            assert not order and stt.get("su0")
            side += su.l
        if u >= S1 * NT and not order and not G.sal and not stt.get("su0"):
            side += su0; stt["su0"] = True
        if HO and u == UKV + cfg.get("f_ho1", 30):
            barrier(); side[:0] = hole_ops(range(0, min(3, HO)))
        if HO > 3 and u == UKV + cfg.get("f_ho2", 56):
            assert u > UH01 and a.vm.count(("B2", 2)) == 2 and not any(isinstance(x, str) and ("s%d, s%d" % (sB2, sBE)) in x for x in side)
            barrier(); side[:0] = hole_ops(range(3, HO))
        if u == UPW and not HK:
            assert 12 in stt["free"]
            side[:0] = [y for x in range(8) for y in (("x", lambda x=x: kpw(x)), None)]
        if u == UH01 - 1:
            side += [None] * 5
            for p in range(2):
                for mt in range(MT):
                    side += pack(acc(mt, 6 + 2 * p), acc(mt, 7 + 2 * p), relu=True)
                    if p * 4 + mt < cfg.get("f_hearly", 8):
                        side.append(("m", lambda p=p, mt=mt: hstore(p, mt)))
                        side += [None] * cfg.get("f_hsp", 8)
        if u == UCHK:
            assert UCHK >= UH01
            for x in range(cfg.get("f_hearly", 8), 8):
                side += [("m", lambda x=x: hstore(x // 4, x % 4))] + [None] * cfg.get("f_hsp2", 6)
    if cfg.get("verbose"): print("G1 side left", len([x for x in side if x is not None]), file=sys.stderr)
    G.drain()
    assert not order
    assert 12 in stt["free"]
    stampr("g1end")

    va = []
    for mt in range(MT): va += pack(acc(mt, 10), acc(mt, 11), relu=True)
    if HK:
        stampr("attbeg")
        for _ in range(8): a(va.pop(0))
    else:
        if UPW >= NU:
            for x in range(8): kpw(x)
        a.wait(lg="kvw")
        a("s_barrier")
        stampr("attbeg")
        for kt in range(20):
            kread(kt)
            a(va.pop(0))
    for mt in range(MT):
        for t in (0, 1):
            for e2 in range(2):
                c = acc(mt, t) + 2 * e2
                a("v_pk_mul_f32 v[%d:%d], v[%d:%d], s[%d:%d] op_sel_hi:[1,0]" % (c, c + 1, c, c + 1, sSC, sSC + 1))
        if mt == 0:
            for x in pack(acc(mt, 0), acc(mt, 1)): a(x)
    STCH = cfg.get("f_st", 0)
    a.vm = [("H01" if t == "H" else t) for t in a.vm]
    stq = [(cfg.get("f_st0", 200), sH), (cfg.get("f_st1", 380), sH + 1)] if STCH & 1 else []
    hstore(2, 0)
    for mt in range(1, MT): va += pack(acc(mt, 0), acc(mt, 1))
    for mt in range(MT): va += pack(acc(mt, 12), None, relu=True)
    free = [acc(mt, t) for t in (2, 3, 4, 5, 7, 9) for mt in range(MT)] + [212, 216, 220] + [acc(mt, t) for t in (11, 1) for mt in range(MT)]

    C2 = cfg.get("f_c2", 2)
    C2T = cfg.get("f_c2t", 4); C2S = cfg.get("f_c2s", 5)
    CM2 = max(C2, C2T, 3)
    RA2 = cfg.get("f_ra2", 13); DB2 = cfg.get("f_db2", CM2 + 2); RB2 = DB2 + CM2
    assert DB2 >= CM2
    BR2 = RA2 * 16
    assert BR2 + RB2 * 4 <= 256
    def aslot(p): return ((p - 3 + 10) % RA2) * 16
    def aload2(p, mt):
        a.vmem("buffer_load_dwordx4 %s, v%d, %s, s%d offen offset:%d %s" % (r4("a", aslot(p) + mt * 4), V_L16, s4(R_WS), sA, mt * 1024, ["sc1", "sc1 nt", ""][cfg.get("f_af", 0)]), ("A2", p))
        if mt == MT - 1:
            if p == 27 and not LIN: G.sal.append("s_mov_b32 s%d, s%d" % (sA, sAE))
            else:
                G.sal.append("s_add_u32 s%d, s%d, 4096" % (sA, sA))
                if p <= 27: G.sal.append("s_cmp_eq_u32 s%d, s%d\ns_cselect_b32 s%d, s%d, s%d" % (sA, sAE, sA, sA0, sA))
    hst = [(2, 1), (2, 2), (2, 3)] + [(3, mt) for mt in range(MT)]
    NPRE = cfg.get("f_npre", 10)
    assert NPRE >= 3
    pre = []
    assert HO <= NPRE <= NSL
    for p in range(HO, NPRE): pre += [(p,) + op for op in dma2_ops(p)]

    S_ = {}; P_ = {}; O_ = {}
    def s_mfma(qa, kt):
        q = free.pop(0); S_[(qa, kt)] = q
        a.wait(lg=("k", kt))
        c = r4("v", bias[kt // 4]) if kt < 16 else "0"
        a("%s %s, %s, %s, %s" % (MF, r4("v", q), r4("a", kreg(kt)), r4("v", acc(qa, 0)), c))
    def pv_list(qa):
        b0 = qa // 2
        out = []
        for b in range(b0, b0 + 9):
            for z in range(3):
                def f(b=b, z=z):
                    if b == b0: O_[(qa, z)] = free.pop(0)
                    o = r4("v", O_[(qa, z)])
                    if z < 2:
                        a.wait(lg=("v", 2 * b + z)); A = r4("a", VF + (2 * b + z) * 4)
                    else: A = r4("v", VONES)
                    a("%s %s, %s, %s, %s" % (MF, o, A, r4("v", P_[(qa, b)]), "0" if b == b0 else o))
                    if z == 2: free.append(P_[(qa, b)])
                out.append(f)
        return out
    def fin_list(qa):
        o0, o1, sm = O_[(qa, 0)], O_[(qa, 1)], O_[(qa, 2)]
        ops = ["v_rcp_f32 v%d, v%d" % (sm, sm), "s_nop 0"]
        for o in (o0, o1):
            for e in range(4): ops.append("v_mul_f32 v%d, v%d, v%d" % (o + e, o + e, sm))
        ops += pack(o0, o1)
        def f():
            a.vmem("buffer_store_dwordx4 %s, v%d, %s, s%d offen offset:%d %s" % (r4("v", o0), V_L16, s4(R_WS), sO, qa * 1024, HF), "O")
            free.extend([o1, sm]); late_free.append(o0)
        ops.append(f)
        return ops
    late_free = []
    pready = set()
    def soft_list(qa):
        k0, k1 = qa, qa + 16
        ops = []
        f_, l_ = S_[(qa, k0)], S_[(qa, k1)]
        odd = qa & 1
        g_, z_ = (l_, f_) if odd else (f_, l_)
        o_ = 2 * odd
        for e in range(4):
            ops.append((1, "v_cndmask_b32 v%d, v%d, v%d, s[%d:%d]" % (g_ + e, f_ + e, l_ + e, sMK + 2 * e, sMK + 2 * e + 1)))
        quads = [S_[(qa, kt)] for kt in range(k0 + 1, k1)] + [g_]
        vals = [q + e for q in quads for e in range(4)]
        m0, m1 = VM, VM + 1
        ops.append((1, "v_max3_f32 v%d, v%d, v%d, v%d" % (m0, vals[0], vals[1], vals[2])))
        ops.append((1, "v_max3_f32 v%d, v%d, v%d, v%d" % (m1, vals[3], vals[4], vals[5])))
        ops.insert(2, (0, "SLOT")); ops.insert(5, (0, "SLOT")); ops.append((0, "SLOT"))
        for x in range(6, 62, 4):
            ops.append((1, "v_max3_f32 v%d, v%d, v%d, v%d" % (m0, m0, vals[x], vals[x + 1])))
            ops.append((1, "v_max3_f32 v%d, v%d, v%d, v%d" % (m1, m1, vals[x + 2], vals[x + 3])))
            ops.append((0, "SLOT"))
        ops.append((1, "v_max3_f32 v%d, v%d, v%d, v%d" % (m0, m0, vals[62], vals[63])))
        ops.append((1, "v_max_f32 v%d, v%d, v%d" % (m0, m0, m1)))
        ops.append((1, "v_mov_b32 v%d, v%d" % (m1, m0)))
        ops.append((0, "SLOT2"))
        ops.append((1, "v_permlane16_swap_b32 v%d, v%d" % (m0, m1)))
        ops.append((1, "v_max_f32 v%d, v%d, v%d" % (m0, m0, m1)))
        ops.append((1, "v_mov_b32 v%d, v%d" % (m1, m0)))
        ops.append((1, "v_mov_b32 v%d, 0" % (z_ + 2 - o_)))
        ops.append((1, "v_mov_b32 v%d, 0" % (z_ + 3 - o_)))
        ops.append((1, "v_permlane32_swap_b32 v%d, v%d" % (m0, m1)))
        ops.append((1, "v_max_f32 v%d, v%d, v%d" % (m0, m0, m1)))
        def subexp(q):
            r = []
            for e2 in range(2):
                r.append((1, "v_pk_add_f32 v[%d:%d], v[%d:%d], v[%d:%d] op_sel_hi:[1,0] neg_lo:[0,1] neg_hi:[0,1]" % (q + 2 * e2, q + 2 * e2 + 1, q + 2 * e2, q + 2 * e2 + 1, m0, m0 + 1)))
            for e in range(4):
                if e < 2: r.append((0, "SLOT"))
                r.append((2, "v_exp_f32 v%d, v%d" % (q + e, q + e)))
            r.append((0, "MEM"))
            return r
        ops += subexp(g_)
        ops += subexp(S_[(qa, k0 + 1)])
        cv = ["v_cvt_pk_bf16_f32 v%d, v%d, v%d" % (g_ + o_ + x, g_ + 2 * x, g_ + 2 * x + 1) for x in range(2)]
        if odd: cv.reverse()
        ops += [(1, x) for x in cv]
        for x in range(2):
            if odd: ops.append((1, "v_bfi_b32 v%d, v%d, 0, v%d" % (z_ + o_ + x, VM + 2 + x, g_ + o_ + x)))
            else:   ops.append((1, "v_and_b32 v%d, v%d, v%d" % (z_ + o_ + x, VM + 2 + x, g_ + o_ + x)))
        for x in range(2): ops.append((1, "v_xor_b32 v%d, v%d, v%d" % (g_ + o_ + x, g_ + o_ + x, z_ + o_ + x)))
        done = {k0, k0 + 1, k1}
        b0 = qa // 2
        pend_pack = None
        for b in range(b0, b0 + 9):
            for kt in (2 * b, 2 * b + 1):
                if k0 <= kt <= k1 and kt not in done:
                    ops += subexp(S_[(qa, kt)]); done.add(kt)
            if pend_pack: ops += pend_pack
            lo, hi = S_.get((qa, 2 * b)), S_.get((qa, 2 * b + 1))
            pk = []
            if lo is None or hi is None: d = z_
            elif g_ in (lo, hi):
                d = g_; ot = hi if lo == g_ else lo
                pk += [(1, "v_cvt_pk_bf16_f32 v%d, v%d, v%d" % (d + 2 - o_ + x, ot + 2 * x, ot + 2 * x + 1)) for x in range(2)]
                pk.append((0, (lambda ot=ot: free.append(ot))))
            else:
                d = lo
                pk += [(1, x) for x in pack(lo, hi)]
                pk.append((0, (lambda hi=hi: free.append(hi))))
            P_[(qa, b)] = d
            pk.append((0, (lambda b=b: pready.add((qa, b)))))
            pend_pack = pk
        ops += pend_pack
        return ops
    def run(op):
        if isinstance(op, str): a(op)
        else: op()
    vr = list(range(20))
    def vread():
        f = vr.pop(0)
        a.lds("ds_read_b128 %s, v%d offset:%d" % (r4("a", VF + 4 * f), V_KVW, 32768 + f * 1024), ("v", f))
    for kt in range(17):
        s_mfma(0, kt)
        vread(); a(va.pop(0))
    while vr:
        vread(); a(va.pop(0))
    hstore(*hst.pop(0))
    while va: a(va.pop(0))
    HGAP = cfg.get("f_hgap", 30); PGAP = cfg.get("f_pgap", 28)
    HFL = cfg.get("f_hfl", 500)
    HPO = cfg.get("f_hpo", 900)
    HCK = cfg.get("f_hck", 2000)
    hok = False
    ordA = [("A2", p, mt) for p in range(3, KS2) for mt in range(MT)]
    napre = cfg.get("f_apre", 16)
    pv3 = pv_list(3); pv3b = [1 + x // 3 for x in range(27)]
    tq = [(cfg.get("f_tb0", 200) + k * cfg.get("f_tbd", 150), k) for k in range(cfg.get("f_tbn", 0))]
    tcq = []
    if TCN:
        k0 = cfg.get("f_tck", 6); nr = cfg.get("f_tcr", 2)
        ed = [k0 + (56 - k0) * x // nr for x in range(nr + 1)]
        rr = [(ed[x], ed[x + 1]) for x in range(nr)] + [(56, 72)]
        tcq = [(cfg.get("f_tc0", 540) + x * cfg.get("f_tcd", 130), lo_, hi_) for x, (lo_, hi_) in enumerate(rr)]
    sq = []
    if SPF:
        for k in range(cfg.get("f_spf0", 6), 56): sq.append("s_load_dword s%d, s[%d:%d], 0x%x" % (t3, (P_W2 if k < 28 else P_WQ), (P_W2 if k < 28 else P_WQ) + 1, (k % 28) * 32768))
        for k in range(16): sq.append("s_load_dword s%d, s[%d:%d], 0x%x" % (t3, P_WO, P_WO + 1, k * 32768))
    next_s = 0; SGAP = cfg.get("f_sgap", 8)
    kvbar = False; hflag = False; hpoll = False
    cost_total = 0; next_h = HGAP; next_p = 0
    for qa in range(4):
        stampr("att%d" % qa)
        ops = soft_list(qa)
        tot = sum(c for c, _ in ops)
        pv = pv_list(qa - 1) if qa > 0 else []
        fin = None
        sm = [(qa + 1, kt) for kt in range(qa + 1, qa + 18)] if qa < 3 else []
        c = 0
        pv_done_at = None
        for (cost, op) in ops:
            if op == "SLOT2":
                if pv:
                    pv.pop(0)(); a("s_nop 0")
                    if not pv: pv_done_at = c
                else: a("s_nop 1")
                continue
            if op == "SLOT":
                did = False
                if pv:
                    pv.pop(0)(); did = True
                    if not pv: pv_done_at = c
                elif sm and len(free) > 0 and c >= tot * 0.2:
                    s_mfma(*sm.pop(0)); did = True
                elif qa == 3 and pv3 and (3, pv3b[0]) in pready:
                    pv3.pop(0)(); pv3b.pop(0); did = True
                if did and G.sal:
                    a(G.sal.pop(0)); continue
                if did and pre and pre[0][1] == 0 and (kvbar or (pre[0][0] < 9 and not HK)): pre.pop(0)[2]()
                elif sq and kvbar and cost_total >= next_s and (did or cost_total >= next_s + SGAP):
                    a(sq.pop(0)); next_s = cost_total + SGAP
                    if not sq and cfg.get("verbose"): print("scalar prefetch done at", cost_total, file=sys.stderr)
                continue
            if op == "MEM":
                if qa > 0 and fin is None and pv_done_at is not None and c >= pv_done_at + 18:
                    fin = fin_list(qa - 1)
                    for x in fin: run(x)
                elif hst and cost_total >= next_h:
                    hstore(*hst.pop(0)); next_h = cost_total + HGAP
                elif stq and cost_total >= stq[0][0]:
                    a.wait(vm="H01"); selftouch(stq.pop(0)[1], True)
                elif tcq and cost_total >= tcq[0][0]:
                    _, lo_, hi_ = tcq.pop(0)
                    if lo_ < 56:
                        m_ = ((1 << hi_) - 1) ^ ((1 << lo_) - 1)
                        a("s_mov_b32 exec_lo, 0x%x" % (m_ & 0xffffffff))
                        a("s_mov_b32 exec_hi, 0x%x" % (m_ >> 32))
                        a.vmem("buffer_load_dword a%d, v%d, %s, s%d offen" % (A_PD, V_T128, s4(R_W2), sCLS), "T")
                    else:
                        a("s_mov_b64 exec, 0xffff")
                        a.vmem("buffer_load_dword a%d, v%d, %s, s%d offen" % (A_PD, V_T128, s4(R_WO), t3), "T")
                    a("s_mov_b64 exec, -1")
                elif not hst and tq and cost_total >= tq[0][0]:
                    k_ = tq.pop(0)[1]
                    a("s_lshr_b32 s%d, s2, 3" % t0)
                    a("s_lshl_b32 s%d, s%d, 2" % (t0, t0))
                    a("s_add_u32 s%d, s%d, s%d" % (t0, t0, sW))
                    if k_ < 4:
                        a("s_mul_i32 s%d, s%d, 3584" % (t0, t0))
                        a("s_mul_i32 s%d, s%d, %d" % (t1, sQ, 896 * 2048))
                        a("s_add_u32 s%d, s%d, s%d" % (t0, t0, t1))
                        if k_: a("s_add_u32 s%d, s%d, %d" % (t0, t0, k_ * 224 * 2048))
                        a("s_mov_b64 exec, 0xfffffff")
                        a.vmem("buffer_load_dword a%d, v%d, %s, s%d offen" % (A_PD, V_T128, s4(R_W2), t0), "T")
                    else:
                        a("s_lshl_b32 s%d, s%d, 12" % (t0, t0))
                        a("s_lshl_b32 s%d, s%d, 19" % (t1, sQ))
                        a("s_add_u32 s%d, s%d, s%d" % (t0, t0, t1))
                        a("s_mov_b32 exec_hi, 0")
                        a.vmem("buffer_load_dword a%d, v%d, %s, s%d offen" % (A_PD, V_T128, s4(R_WO), t0), "T")
                    a("s_mov_b64 exec, -1")
                elif not hst and not hflag and cost_total >= HFL:
                    a.wait(vm="H")
                    a.vmem("buffer_store_dword v%d, v%d, %s, 0 offen offset:32 sc1" % (V_ONE, V_FG, s4(R_WS)), "FH")
                    hflag = True
                    if STCH & 2: selftouch(sH + 2, True)
                elif hflag and not hpoll and cost_total >= HPO:
                    if cfg.get("f_cpf2", 1): codepf(V_T128)
                    poll_issue("PH"); hpoll = True
                elif hpoll and not hok and cost_total >= HCK:
                    a.wait(vm="PH"); spin(0xff00); hok = True
                    stampr("g2h")
                elif hok and napre > 0:
                    G.drain_sal()
                    op_ = ordA.pop(0); aload2(op_[1], op_[2]); napre -= 1
                elif pre and pre[0][1] == 1 and cost_total >= next_p:
                    pre.pop(0)[2](); next_p = cost_total + PGAP
                    if cfg.get("f_p2", 0) and pre and pre[0][1] == 1: pre.pop(0)[2]()
                continue
            run(op); c += cost; cost_total += cost
            if qa == 0 and not kvbar and c >= 30:
                a.wait(lg=("v", 19)); a("s_barrier"); kvbar = True
        assert not pv and (qa == 0 or fin)
        free.extend(late_free); del late_free[:]
        if sm and cfg.get("verbose"): print("late S mfmas", qa, len(sm), file=sys.stderr)
        late = bool(sm)
        while sm: s_mfma(*sm.pop(0))
        if late: a("s_nop 7")
    if cfg.get("verbose"): print("attention cost", cost_total, "pre left", len(pre), file=sys.stderr)
    stampr("att4")
    assert not hst and hflag and hpoll and not sq and not tcq
    if not hok: napre = 0
    while pre:
        pre.pop(0)[2](); a("s_nop 0")
    G.drain_sal()
    assert napre <= 4 * (RA2 - 10) and not (HK and hok)
    a("v_mov_b32 v%d, v%d" % (V2_RD, V2_B))
    a("v_xor_b32 v%d, 32, v%d" % (V2_RD + 1, V2_B))
    xr = ["v_xor_b32 v%d, %d, v%d" % (V2_RD + t, t * 32, V2_B) for t in range(2, 8)]
    xr += ["v_add_u32 v%d, %d, v%d" % (V2_RD + 8 + t, 2 * STAGE, V2_RD + t) for t in range(8)]
    if cfg.get("verbose"): print("pv3 left", len(pv3), "apre left", napre, file=sys.stderr)
    for f in pv3:
        f()
        if napre > 0:
            op_ = ordA.pop(0); aload2(op_[1], op_[2]); napre -= 1; G.drain_sal()
        else:
            for _ in range(2):
                if xr: a(xr.pop(0))
    while xr: a(xr.pop(0))
    stampr("attend")

    NT2 = 8
    DL = cfg.get("f_dl", 8); S2 = KS2 - DL
    assert RA2 >= DL
    own = set(acc(mt, 6 + 2 * p) for p in range(3) for mt in range(MT))
    busy = own | set(O_[(3, z)] for z in range(3)) | {208}
    q2 = [q for q in range(0, 224, 4) if q not in busy]
    acc2 = {}
    for t in range(NT2):
        for mt in range(MT): acc2[(mt, t)] = q2.pop(0)
    VX = [q2.pop(0) for _ in range(4)]
    TT = q2.pop(0); V_XI = TT + 2
    R_X = R_WQ; R_OUT = R_W1
    rec = Rec()
    rec.l += [None] * 5 + [x if isinstance(x, str) else ("m", x) for x in fin_list(3)]
    for t in range(8): rec("v_add_u32 v%d, %d, v%d" % (V2_RD + 16 + t, 4 * STAGE, V2_RD + t))
    srd(rec, R_X, P_X, S * D * 2)
    srd(rec, R_OUT, P_OUT, S * D * 2)
    rec2 = Rec()
    rec2("v_and_b32 v%d, 15, v%d" % (TT, L))
    rec2("v_lshlrev_b32 v%d, 11, v%d" % (V_XO, TT))
    rec2("v_lshrrev_b32 v%d, 4, v%d" % (TT, L))
    rec2("v_lshl_add_u32 v%d, v%d, 3, v%d" % (V_XI, TT, V_XO))
    rec2("v_bfe_u32 v%d, v%d, 4, 1" % (TT, L))
    rec2("v_lshl_add_u32 v%d, v%d, 5, v%d" % (V_XO, TT, V_XO))
    rec2("v_lshrrev_b32 v%d, 5, v%d" % (TT, L))
    rec2("v_lshl_add_u32 v%d, v%d, 4, v%d" % (V_XO, TT, V_XO))
    CO = cfg.get("f_co", 1)
    if CO:
        V_OW = V_KVW; V_OR = V2_B
        rec2("s_mul_i32 s%d, s%d, 5120" % (t1, sW))
        rec2("s_add_u32 s%d, s%d, %d" % (t1, t1, 5 * STAGE))
        rec2("v_and_b32 v%d, 15, v%d" % (TT, L))
        rec2("v_mul_u32_u24 v%d, 80, v%d" % (V_OW, TT))
        rec2("v_lshrrev_b32 v%d, 4, v%d" % (TT, L))
        rec2("v_lshl_add_u32 v%d, v%d, 3, v%d" % (V_OW, TT, V_OW))
        rec2("v_add_u32 v%d, s%d, v%d" % (V_OW, t1, V_OW))
        rec2("v_lshrrev_b32 v%d, 2, v%d" % (TT, L))
        rec2("v_mul_u32_u24 v%d, 80, v%d" % (V_OR, TT))
        rec2("v_lshlrev_b32 v%d, 11, v%d" % (V_XO, TT))
        rec2("v_and_b32 v%d, 3, v%d" % (TT, L))
        rec2("v_lshl_add_u32 v%d, v%d, 4, v%d" % (V_OR, TT, V_OR))
        rec2("v_add_u32 v%d, s%d, v%d" % (V_OR, t1, V_OR))
        rec2("v_lshl_add_u32 v%d, v%d, 4, v%d" % (V_XO, TT, V_XO))
    XD = cfg.get("f_xd", 1) and CO
    if XD:
        assert "f_ux" not in cfg
        rec2("v_and_b32 v%d, 15, v%d" % (TT, L))
        rec2("v_lshlrev_b32 v%d, 6, v%d" % (V_XI, TT))
        rec2("v_lshrrev_b32 v%d, 4, v%d" % (TT, L))
        rec2("v_lshl_add_u32 v%d, v%d, 3, v%d" % (V_XI, TT, V_XI))
        rec2("v_add_u32 v%d, s%d, v%d" % (V_XI, t1, V_XI))
    sSX = [sKV, sKV2, sKP]; sSF = [sKP2, sFK, sH]; sRX = sH + 1
    for lam in range(3):
        rec("s_xor_b32 s%d, s2, %d" % (t1, (lam ^ 3) << 1))
        rec("s_lshl_b32 s%d, s%d, 2" % (t1, t1))
        rec("s_add_u32 s%d, s%d, s%d" % (t1, t1, sW))
        rec("s_mul_i32 s%d, s%d, 12288" % (sSX[lam], t1))
        rec("s_add_u32 s%d, s%d, 0x%x" % (sSX[lam], sSX[lam], WS_XC + lam * 4096))
        rec("s_lshl_b32 s%d, s%d, 7" % (sSF[lam], t1))
        rec("s_add_u32 s%d, s%d, 0x%x" % (sSF[lam], sSF[lam], WS_FL + lam * 4))
    rec("s_lshl_b32 s%d, s2, 2" % t1)
    rec("s_add_u32 s%d, s%d, s%d" % (t1, t1, sW))
    rec("s_mul_i32 s%d, s%d, 12288" % (sRX, t1))
    rec("s_add_u32 s%d, s%d, 0x%x" % (sRX, sRX, WS_XC))
    if DF:
        for lam in range(3): rec("s_add_u32 s%d, s%d, %d" % (sSF[lam], sRX, lam * 4096))
    side = G.side
    side += rec.l

    units = []; del gi[:]
    grp(units, 0, 3, range(NT2), 3)
    grp(units, 3, C2S, range(NT2), 2)
    grp(units, C2S, S2, range(NT2), C2)
    for lam in range(4): grp(units, S2, KS2, (2 * lam, 2 * lam + 1), C2T if lam else min(C2T, cfg.get("f_c2t0", 4)))
    NU = len(units)
    UT = S2 * NT2; PL = 2 * DL
    last_unit = {}
    for u, (p, t) in enumerate(units): last_unit[p] = u
    stt = dict(ready=-1, free=set(), waited=-1, issued=-1, ook=False, hok=hok)
    ordB = [("B2", p) for p in range(NPRE, KS2)]
    def barrier2():
        a("s_barrier")
        for p, lu in last_unit.items():
            if lu <= stt["waited"]: stt["free"].add(p)
    def can2(op):
        if op[0] == "B2": return op[1] < NSL or (op[1] - NSL) in stt["free"]
        if not stt["hok"] or (op[1] >= 28 and not stt["ook"]): return False
        return op[1] - 3 < RA2 or last_unit[op[1] - RA2] <= stt["issued"]
    def issue2(op):
        if cfg.get("verbose"): print("late flush2", op, file=sys.stderr)
        G.drain_sal()
        if op[0] == "A2": aload2(op[1], op[2])
        else:
            for x in dma2_ops(op[1]): x[1](); a("s_nop 0")
        G.drain_sal()
    def flush2(q, tag):
        while any(o[:2] == tag for o in q):
            op = q.pop(0); assert can2(op), (op, stt); issue2(op)
    def bread2(u, j2):
        p, t = units[u]
        sl, pos = LOC[p % NSL]
        a.lds("ds_read_b64_tr_b16 %s, v%d offset:%d" % (r2("a", BR2 + (u % RB2) * 4 + j2 * 2), V2_RD + 8 * (sl // 2) + t, (sl % 2) * STAGE + (pos + j2) * 1024), ("b2", u))
    def need2(u):
        p = units[u][0]
        if p > stt["ready"]:
            flush2(ordB, ("B2", p))
            grp = cfg.get("f_bgrp", 4)
            top = max(x for x in range(p, min(p + grp, KS2)) if not any(o[1] == x for o in ordB))
            if p == 0: top = min(NPRE - 1, cfg.get("f_top0", 5))
            elif p < NPRE: top = NPRE - 1
            a.wait(vm=("B2", top)); barrier2(); stt["ready"] = top
    need2(0)
    for u in range(DB2):
        bread2(u, 0); bread2(u, 1)
    stampr("g2beg")
    UOF = cfg.get("f_uof", 26)
    UOP = cfg.get("f_uop", 80); UOC = UOP + 12
    seenA = {0, 1, 2}
    xdone = False
    rq = sorted(own)
    def flag(lam):
        a.wait(vm=("S", lam))
        a.vmem("buffer_store_dword v%d, v%d, %s, s%d offen sc1" % (V_ONE, V_FL0, s4(R_WS), sSF[lam]), ("F", lam))
    def recv(lam, mt):
        a.vmem("buffer_load_dwordx4 %s, v%d, %s, s%d offen offset:%d sc1" % (r4("v", rq[4 * lam + mt]), V_L16, s4(R_WS), sRX, mt * 1024), ("R", lam, mt))
        if mt == 3 and lam < 2: a("s_add_u32 s%d, s%d, 4096" % (sRX, sRX))
    PS = lambda mt, hh: acc2[(mt, hh)]
    def addpk(dst, src, first=False):
        ops = []
        for hh in range(2):
            for e2 in range(2):
                pp = src + 2 * hh + e2; c = dst[hh] + 2 * e2
                if first:
                    ops += ["v_lshlrev_b32 v%d, 16, v%d" % (c, pp), "v_and_b32 v%d, 0xffff0000, v%d" % (c + 1, pp)]
                else:
                    ops += ["v_lshlrev_b32 v%d, 16, v%d" % (TT, pp), "v_and_b32 v%d, 0xffff0000, v%d" % (TT + 1, pp),
                            "v_pk_add_f32 v[%d:%d], v[%d:%d], v[%d:%d]" % (c, c + 1, c, c + 1, TT, TT + 1)]
        return ops
    FD = cfg.get("f_fd", 26)
    ev = {}
    def at(u, f): ev.setdefault(u, []).append(f)
    def rtxt(lam, mt): return "buffer_load_dwordx4 %s, v%d, %s, s%d offen offset:%d sc1" % (r4("v", rq[4 * lam + mt]), V_L16, s4(R_WS), sSF[lam], mt * 1024)
    def rmax(lam):
        rg = [rq[4 * lam + mt] + e for mt in range(MT) for e in range(4)]
        o = ["v_max3_u32 v%d, v%d, v%d, v%d" % (V_POLL, rg[0], rg[1], rg[2])]
        for k in range(3, 15, 2): o.append("v_max3_u32 v%d, v%d, v%d, v%d" % (V_POLL, V_POLL, rg[k], rg[k + 1]))
        o.append("v_max_u32 v%d, v%d, v%d" % (V_POLL, V_POLL, rg[15]))
        return o
    def rcheck(lam):
        l0 = a.newlabel("F_rt"); l1 = a.newlabel("F_ok")
        a("s_mov_b32 s%d, 0x%x" % (sSP, SPIN))
        a.label(l0)
        a("v_cmp_eq_u32 vcc, -1, v%d" % V_POLL)
        a("s_cmp_eq_u64 vcc, 0")
        a("s_cbranch_scc1 %s" % l1)
        for mt in range(MT): a(rtxt(lam, mt))
        a("s_waitcnt vmcnt(0)")
        for x in rmax(lam): a(x)
        a("s_sub_u32 s%d, s%d, 1" % (sSP, sSP))
        a("s_cbranch_scc0 %s" % l0)
        a.label(l1)
    def addplain(dst, src):
        ops = []
        for hh in range(2):
            for e2 in range(2):
                pp = src + 2 * hh + e2; c = dst[hh] + 2 * e2
                ops += ["v_lshlrev_b32 v%d, 16, v%d" % (TT, pp), "v_and_b32 v%d, 0xffff0000, v%d" % (TT + 1, pp),
                        "v_add_f32 v%d, v%d, v%d" % (c, c, TT), "v_add_f32 v%d, v%d, v%d" % (c + 1, c + 1, TT + 1)]
        return ops
    if DF:
        R0U = UT + 3 * PL + cfg.get("f_r0", -6); R1U = UT + 4 * PL + cfg.get("f_r1", -5)
        at(R0U, lambda: side.extend(("m", lambda mt=mt: a.vmem(rtxt(0, mt), ("R", 0))) for mt in range(MT)))
        at(R1U, lambda: side.__setitem__(slice(0, 0), [("m", lambda mt=mt: a.vmem(rtxt(1, mt), ("R", 1))) for mt in range(MT)]))
    else:
        at(UT + PL + FD, lambda: flag(0))
        at(UT + 2 * PL + FD, lambda: flag(1))
    UP0 = UT + 3 * PL + cfg.get("f_p0", 4)
    F2 = cfg.get("f_fin2", 1)
    if not DF and not F2: at(UP0, lambda: poll_issue("P0"))
    def chk0():
        a.wait(vm="P0"); spin(1)
        for mt in range(MT): side.append(("m", lambda mt=mt: recv(0, mt)))
    if not DF and not F2: at(UP0 + cfg.get("f_c0", 8), chk0)
    def presum():
        side.append(("s", lambda: a.wait(vm="X")))
        if XD:
            for mt in range(MT):
                for hh in range(2):
                    side.append(("v", lambda mt=mt, hh=hh: a.lds("ds_read_b64 %s, v%d offset:%d" % (r2("v", VX[mt] + 2 * hh), V_XI, mt * 1024 + hh * 32), "xr")))
            side.extend([None] * 4 + [("s", lambda: a.wait(lg="xr"))])
        for mt in range(MT): side.extend(addpk([PS(mt, 0), PS(mt, 1)], VX[mt], first=True))
    at(UT + 2 * PL + PL // 2, presum)
    first_unit = {}
    for u, (p, t) in enumerate(units): first_unit.setdefault(p, u)
    NOPS = len(ordA) + 2 * len(ordB)
    UE2 = UT + cfg.get("f_ue2", 0)
    MARG = cfg.get("f_marg", 20)
    THR2 = cfg.get("f_thr2", 63)
    def prewait2(u):
        u += gi[u][1] - 1
        p, t = units[u]
        if p not in seenA:
            flush2(ordA, ("A2", p)); seenA.add(p)
            r = a.wait(vm=("A2", p), lg=("b2", u))
        else: r = a.wait(lg=("b2", u))
        stt["waited"] = u
        return r
    def b2sal(p):
        so = sB2 if p < 28 else sBO
        if p != 27 and p != 35: G.sal.append("s_add_u32 s%d, s%d, 65536" % (so, so))
        if p < 27: G.sal.append("s_cmp_eq_u32 s%d, s%d\ns_cselect_b32 s%d, s%d, s%d" % (sB2, sBE, sB2, sB0, sB2))
    prewait2(0)
    half = None
    for u in range(NU):
        u0, C_, gn = gi[u]; kk = u - u0
        p, t = divmod(u, NT2) if u < UT else units[u]
        un = u + DB2
        if u == UOF:
            a.wait(vm="O")
            a.vmem("buffer_store_dword v%d, v%d, %s, 0 offen offset:64 sc1" % (V_ONE, V_FG, s4(R_WS)), "FO")
            if STCH & 4: selftouch(sO, True)
            side.extend(rec2.l)
        if u == cfg.get("f_uh", 2) and not stt["hok"]:
            a.wait(vm="PH"); spin(0xff00); stt["hok"] = True
            stampr("g2h")
        if u < UT and t == 1: stampr("g2p%d" % p)
        if u == UT: stampr("g2tail")
        if u > UT and (u - UT) % PL == 0: stampr("g2l%d" % ((u - UT) // PL))
        if u == UOP: poll_issue("PO")
        if u == UOC:
            a.wait(vm="PO"); spin(0xff0000 | (7 if DF else 0)); stt["ook"] = True
        for f in ev.get(u, []): f()
        if un < NU and units[un][0] > stt["ready"]:
            if half is not None:
                dma2_ops(half)[2][1](); b2sal(half); half = None
            need2(un)
        if u < UT and t == 2 and p % 2 == 1 and p > 1 and p - 2 + NSL < KS2: barrier2()
        pre_ = None; mem_ = None
        if half is not None:
            def mem_(h=half): dma2_ops(h)[2][1](); b2sal(h)
            half = None
        elif len(G.sal) <= 1:
            cand = [q for q in (ordA, ordB) if q and can2(q[0])]
            if cand:
                cand.sort(key=lambda q: q[0][1] - (cfg.get("f_bprio", 5) if q[0][0] == "B2" else 0))
                done_ = NOPS - len(ordA) - 2 * len(ordB)
                if done_ * UE2 <= u * NOPS or first_unit[cand[0][0][1]] - u <= MARG + (16 if cand[0][0][0] == "B2" else 0):
                    nxt = cand[0].pop(0)
                    if nxt[0] == "B2":
                        ops_ = dma2_ops(nxt[1])
                        pre_ = lambda o=ops_: (o[0][1](), True)[1]
                        mem_ = ops_[1][1]; half = nxt[1]
                    else:
                        mem_ = lambda n_=nxt: aload2(n_[1], n_[2])
        if not xdone and (u == cfg.get("f_ux", 9999) or (not ordA and not ordB and half is None and mem_ is None)):
            xdone = True
            if XD:
                side.append("s_mul_i32 s%d, s%d, 5120" % (t1, sW))
                for mt in range(MT):
                    side += ["s_add_u32 m0, s%d, %d" % (t1, 5 * STAGE + mt * 1024), None,
                             ("m", lambda: a.vmem("buffer_load_dwordx4 v%d, %s, s%d offen lds" % (V_XO, s4(R_X), sXO), "X")),
                             "s_add_u32 s%d, s%d, %d" % (sXO, sXO, 32768 if mt < 3 else -3 * 32768)]
            for mt in range(MT if not XD else 0):
                for hh in range(2):
                    def f(mt=mt, hh=hh):
                        a.vmem("buffer_load_dwordx2 %s, v%d, %s, s%d offen offset:%d" % (r2("v", VX[mt] + 2 * hh), V_XI, s4(R_X), sXO, hh * 32), "X")
                    side += [("m", f)] + [None] * (cfg.get("f_xsp", 1) if hh else 1)
                side.append("s_add_u32 s%d, s%d, %d" % (sXO, sXO, 32768 if mt < 3 else -3 * 32768))
        for mt in range(MT):
            m_, k_ = divmod(kk * MT + mt, C_)
            mz = m_ if gn % 2 == 0 else MT - 1 - m_
            p_, t_ = units[u0 + k_]
            bf = r4("a", BR2 + ((u0 + k_) % RB2) * 4)
            af = r4("v", acc(mz, 6 + 2 * p_)) if p_ < 3 else r4("a", aslot(p_) + mz * 4)
            c = r4("v", acc2[(mz, t_)])
            a("%s %s, %s, %s, %s" % (MF, c, bf, af, "0" if p_ == 0 else c))
            rd = (lambda mt=mt: bread2(un, mt)) if (mt < 2 and un < NU) else None
            if mt == 0: G.gap(fixed=rd)
            elif mt == 1: G.gap(first=pre_, fixed=rd)
            elif mt == 2:
                if mem_:
                    assert not G.sal
                    G.gap(first=(lambda: a.throttle(THR2)), mem=mem_)
                else: G.gap()
            else:
                if kk == C_ - 1:
                    stt["issued"] = u
                    G.gap(first=(lambda: prewait2(u + 1)) if u + 1 < NU else None)
                else: G.gap()
        if u >= UT and (u - UT) % PL == PL - 1:
            lam = (u - UT) // PL
            if lam < 3:
                new_ = [None] * 5
                for mt in range(MT):
                    new_ += pack(acc2[(mt, 2 * lam)], acc2[(mt, 2 * lam + 1)])
                    if DF: new_ += ["v_min_u32 v%d, -2, v%d" % (acc2[(mt, 2 * lam)] + e, acc2[(mt, 2 * lam)] + e) for e in range(4)]
                    def f(mt=mt, lam=lam):
                        a.vmem("buffer_store_dwordx4 %s, v%d, %s, s%d offen offset:%d sc1" % (r4("v", acc2[(mt, 2 * lam)]), V_L16, s4(R_WS), sSX[lam], mt * 1024), ("S", lam))
                    new_.append(("m", f))
                side[:0] = new_
    if cfg.get("verbose"): print("G2 side left", len([x for x in side if x is not None]), file=sys.stderr)
    G.drain()
    assert not ordA and not ordB and xdone
    stampr("g2end")
    def ownadd():
        for mt in range(MT):
            for hh in range(2):
                for e2 in range(2):
                    c = PS(mt, hh) + 2 * e2; o_ = acc2[(mt, 6 + hh)] + 2 * e2
                    a("v_pk_add_f32 v[%d:%d], v[%d:%d], v[%d:%d]" % (c, c + 1, c, c + 1, o_, o_ + 1))
    if DF:
        R2D = cfg.get("f_r2d", 1)
        def rd2():
            for mt in range(MT): a.vmem(rtxt(2, mt), ("R", 2, mt))
        assert a.vm.count(("R", 0)) == 4 and a.vm.count(("R", 1)) == 4
        if R2D == 0: rd2()
        a.wait(vm=("R", 0))
        for x in rmax(0): a(x)
        rcheck(0)
        for mt in range(MT):
            for x in addpk([PS(mt, 0), PS(mt, 1)], rq[mt]): a(x)
        stampr("x1")
        if R2D == 1: rd2()
        ownadd()
        a.wait(vm=("R", 1))
        for x in rmax(1): a(x)
        rcheck(1)
        stampr("x2")
        if R2D == 2: rd2()
        for mt in range(MT):
            for x in addpk([PS(mt, 0), PS(mt, 1)], rq[4 + mt]): a(x)
        stampr("x3")
        a.wait(vm=("R", 2, 3))
        for x in rmax(2): a(x)
        rcheck(2)
        stampr("x4")
    elif F2:
        for lam in range(2):
            if ("F", lam) not in a.vm: flag(lam)
        a("s_nop 7")
        ownadd()
        flag(2)
        poll_issue("P1")
        stampr("x1")
        a.wait(vm="P1"); spin(1)
        for mt in range(MT): recv(0, mt)
        spin(2)
        stampr("x2")
        for mt in range(MT): recv(1, mt)
        poll_issue("P2")
        for mt in range(MT):
            a.wait(vm=("R", 0, mt))
            for x in addpk([PS(mt, 0), PS(mt, 1)], rq[mt]): a(x)
        a.wait(vm="P2"); spin(4)
        stampr("x3")
        for mt in range(MT): recv(2, mt)
        for mt in range(MT):
            for x in addpk([PS(mt, 0), PS(mt, 1)], rq[4 + mt]): a(x)
        stampr("x4")
    else:
        flag(2)
        poll_issue("P1")
        stampr("x1")
        for mt in range(MT):
            a.wait(vm=("R", 0, mt))
            for x in addpk([PS(mt, 0), PS(mt, 1)], rq[mt]): a(x)
        a.wait(vm="P1"); spin(2)
        stampr("x2")
        for mt in range(MT): recv(1, mt)
        poll_issue("P2")
        for mt in range(MT):
            for hh in range(2):
                for e2 in range(2):
                    c = PS(mt, hh) + 2 * e2; o_ = acc2[(mt, 6 + hh)] + 2 * e2
                    a("v_pk_add_f32 v[%d:%d], v[%d:%d], v[%d:%d]" % (c, c + 1, c, c + 1, o_, o_ + 1))
        a.wait(vm="P2"); spin(4)
        stampr("x3")
        for mt in range(MT): recv(2, mt)
        for mt in range(MT):
            for x in addpk([PS(mt, 0), PS(mt, 1)], rq[4 + mt]): a(x)
        stampr("x4")
    for mt in range(MT):
        a.wait(vm=("R", 2, mt))
        for x in addpk([PS(mt, 0), PS(mt, 1)], rq[8 + mt]): a(x)
        c0 = PS(mt, 0)
        if cfg.get("eps"):
            for hh in range(2):
                for e in range(4): a("v_mul_f32 v%d, 0x%x, v%d" % (PS(mt, hh) + e, f2u(1.0 + cfg["eps"] / 10000.0), PS(mt, hh) + e))
        for x in pack(c0, PS(mt, 1)): a(x)
        def ostore(m, reg):
            a.vmem("buffer_store_dwordx4 %s, v%d, %s, s%d offen %s" % (r4("v", reg), V_XO, s4(R_OUT), sXO, ["", "sc1", "nt"][cfg.get("f_of", 2)]), "OUT")
            if m < 3: a("s_add_u32 s%d, s%d, 32768" % (sXO, sXO))
        if CO:
            a.lds("ds_write_b64 v%d, %s offset:%d" % (V_OW, r2("v", c0), mt * 1280), ("ow", mt))
            a.lds("ds_write_b64 v%d, %s offset:%d" % (V_OW, r2("v", c0 + 2), mt * 1280 + 32), ("ow", mt))
            a.lds("ds_read_b128 %s, v%d offset:%d" % (r4("v", PS(mt, 1)), V_OR, mt * 1280), ("or", mt))
            if mt > 0:
                a.wait(lg=("or", mt - 1)); ostore(mt - 1, PS(mt - 1, 1))
            if mt == 3:
                a.wait(lg=("or", 3)); ostore(3, PS(3, 1))
        else:
            a("s_nop 1")
            a("v_permlane16_swap_b32 v%d, v%d" % (c0, c0 + 2))
            a("v_permlane16_swap_b32 v%d, v%d" % (c0 + 1, c0 + 3))
            ostore(mt, c0)
    stampr("x5")
    if ST:
        a("s_waitcnt vmcnt(0)")
        stampr("end")
        a("s_waitcnt lgkmcnt(0)")
        for i in range(8): a("v_mov_b32 v%d, s%d" % (i, STB + 2 * i))
        a("s_lshl_b32 s%d, s2, 2" % t0)
        a("s_add_u32 s%d, s%d, s%d" % (t0, t0, sW))
        a("s_lshl_b32 s%d, s%d, 5" % (t0, t0))
        a("v_mov_b32 v8, 0")
        a("s_nop 4")
        a("buffer_store_dwordx4 v[0:3], v8, %s, s%d offen" % (s4(R_WS), t0))
        a("buffer_store_dwordx4 v[4:7], v8, %s, s%d offen offset:16" % (s4(R_WS), t0))
    a.label("F_end")
    a("s_endpgm")
    kernel_desc(a, name, 256, sgpr=102, accum=256, agpr=256)
    return "; @launch kernel=%s grid=(256,1,1) block=(256,1,1) lds=163840" % name

gen.gen_f = gen_f

if __name__ == "__main__":
    cfg = dict(g1_mt=4)
    out = sys.argv[1]
    kernels = sys.argv[2].split(",")
    for kv in sys.argv[3:]:
        k, v = kv.split("="); cfg[k] = int(v, 0)
    open(out, "w").write(gen.build(cfg, kernels))
```

```python
import sys, math
from asmlib import *
import gen
from gen import *

class SA:
    def __init__(self, start, end):
        self.n = start; self.end = end; self.m = {}
    def new(self, name, cnt=1, align=1):
        self.n = (self.n + align - 1) // align * align
        r = self.n; self.n += cnt
        assert self.n <= self.end, "out of sgprs"
        self.m[name] = r
        return r

def s4(b): return "s[%d:%d]" % (b, b + 3)
MF = "v_mfma_f32_16x16x32_bf16"

def kind_of(op):
    if op is None: return None
    if isinstance(op, tuple): return op[0]
    t = op.lstrip()
    if t.startswith("s_"): return "s"
    if t.startswith("v_"): return "v"
    raise ValueError(op)

class Gaps:
    def __init__(self, a):
        self.a = a
        self.sal = []
        self.side = []
    def run(self, op):
        if isinstance(op, tuple): op[1]()
        else: self.a(op)
    def gap(self, first=None, fixed=None, mem=None):
        used0 = False
        room = 2
        if first is not None: used0 = bool(first())
        if not used0:
            if self.sal:
                x = self.sal.pop(0); self.a(x); used0 = True
                room -= x.count("\n")
            elif self.side and kind_of(self.side[0]) == "s":
                self.run(self.side.pop(0)); used0 = True
        if mem is not None:
            mem(); return
        if fixed is not None:
            fixed(); room -= 1
        if self.side and self.side[0] is None:
            self.side.pop(0)
            skip = True
        else: skip = False
        while room > 0:
            if self.sal and self.sal[0].count("\n") < room:
                x = self.sal.pop(0); self.a(x); room -= 1 + x.count("\n"); continue
            if skip or not self.side or self.side[0] is None: break
            k = kind_of(self.side[0])
            if k in ("m", "x"):
                if room == 2:
                    self.run(self.side.pop(0))
                break
            self.run(self.side.pop(0)); room -= 1
    def drain_sal(self):
        while self.sal: self.a(self.sal.pop(0))
    def drain(self):
        self.drain_sal()
        for op in self.side:
            if op is not None: self.run(op)
        self.side = []

def ln_ops(exact=1):
    o = []
    a = o.append
    pk = lambda op, d, x, y, mod="": a("%s v[%d:%d], v[%d:%d], v[%d:%d]%s" % (op, d, d + 1, x, x + 1, y, y + 1, mod))
    for i in range(16):
        if i % 4 == 0: a("WAIT%d" % (i // 4))
        a("v_lshlrev_b32 v%d, 16, v%d" % (24 + 2 * i, 8 + i))
        a("v_and_b32 v%d, 0xffff0000, v%d" % (25 + 2 * i, 8 + i))
        if i == 1: pk("v_pk_add_f32", 56, 24, 26)
        elif i == 3: pk("v_pk_add_f32", 58, 28, 30)
        elif i > 3: pk("v_pk_add_f32", 56 + 2 * (i & 1), 56 + 2 * (i & 1), 24 + 2 * i)
    pk("v_pk_add_f32", 56, 56, 58)
    a("v_add_f32 v56, v56, v57")
    def xlane_sum(r, t):
        a("s_nop 1")
        a("v_add_f32_dpp v%d, v%d, v%d row_ror:8 row_mask:0xf bank_mask:0xf" % (r, r, r))
        for op in ("v_permlane16_swap_b32", "v_permlane32_swap_b32"):
            a("v_mov_b32 v%d, v%d" % (t, r))
            a("s_nop 1")
            a("%s v%d, v%d" % (op, r, t))
            a("v_add_f32 v%d, v%d, v%d" % (r, r, t))
    xlane_sum(56, 57)
    a("v_mul_f32 v56, 0x%x, v56" % f2u(1.0 / 256))
    neg = " op_sel_hi:[1,0] neg_lo:[0,1] neg_hi:[0,1]"
    for i in range(16):
        t = 62 + 2 * (i & 1); ac = 66 + 2 * (i & 1)
        pk("v_pk_add_f32", t, 24 + 2 * i, 56, neg)
        if i < 2: pk("v_pk_mul_f32", ac, t, t)
        else: a("v_pk_fma_f32 v[%d:%d], v[%d:%d], v[%d:%d], v[%d:%d]" % (ac, ac + 1, t, t + 1, t, t + 1, ac, ac + 1))
    pk("v_pk_add_f32", 66, 66, 68)
    a("v_add_f32 v57, v66, v67")
    xlane_sum(57, 58)
    a("ds_write_b64 v7, v[56:57]")
    a("s_waitcnt lgkmcnt(0)")
    a("s_barrier")
    for k in range(4): a("ds_read_b64 v[%d:%d], v60 offset:%d" % (62 + 2 * k, 63 + 2 * k, 64 * k))
    a("s_waitcnt lgkmcnt(0)")
    pk("v_pk_add_f32", 56, 62, 64)
    pk("v_pk_add_f32", 58, 66, 68)
    pk("v_pk_add_f32", 56, 56, 58)
    a("v_mul_f32 v56, 0x3e800000, v56")
    a("v_sub_f32 v59, v62, v56")
    a("v_mul_f32 v58, v59, v59")
    for r in (64, 66, 68):
        a("v_sub_f32 v59, v%d, v56" % r)
        a("v_fmac_f32 v58, v59, v59")
    a("v_fmac_f32 v57, 0x43800000, v58")
    a("v_mul_f32 v57, 0x%x, v57" % f2u(1.0 / 1024))
    a("v_cvt_pk_bf16_f32 v58, v56, v57")
    a("v_lshlrev_b32 v56, 16, v58")
    a("v_and_b32 v57, 0xffff0000, v58")
    a("v_add_f32 v57, 0x%x, v57" % f2u(1e-5))
    a("v_cvt_pk_bf16_f32 v57, v57, v57")
    a("v_and_b32 v57, 0xffff0000, v57")
    a("v_sqrt_f32 v57, v57")
    a("s_nop 0")
    a("v_cvt_pk_bf16_f32 v57, v57, v57")
    a("v_and_b32 v57, 0xffff0000, v57")
    a("v_rcp_f32 v58, v57")
    for i in range(16):
        pk("v_pk_add_f32", 24 + 2 * i, 24 + 2 * i, 56, neg)
        if i > 0:
            j = i - 1
            if exact:
                a("v_cvt_pk_bf16_f32 v%d, v%d, v%d" % (25 + 2 * j, 24 + 2 * j, 25 + 2 * j))
                a("v_lshlrev_b32 v%d, 16, v%d" % (24 + 2 * j, 25 + 2 * j))
                a("v_and_b32 v%d, 0xffff0000, v%d" % (25 + 2 * j, 25 + 2 * j))
            pk("v_pk_mul_f32", 24 + 2 * j, 24 + 2 * j, 58, " op_sel_hi:[1,0]")
            a("v_cvt_pk_bf16_f32 v%d, v%d, v%d" % (8 + j, 24 + 2 * j, 25 + 2 * j))
            if j % 4 == 3: a("STORE%d" % (j // 4))
    if exact:
        a("v_cvt_pk_bf16_f32 v55, v54, v55")
        a("v_lshlrev_b32 v54, 16, v55")
        a("v_and_b32 v55, 0xffff0000, v55")
    pk("v_pk_mul_f32", 54, 54, 58, " op_sel_hi:[1,0]")
    a("v_cvt_pk_bf16_f32 v23, v54, v55")
    a("STORE3")
    return o

def gen_f(a, cfg):
    name = NAME + "_kernel" if cfg.get("single") else "f_kernel"
    FLN = cfg.get("f_ln", 0)
    SPIN = cfg.get("spin", 0x40000)
    ST = cfg.get("stamp")
    MT = 4
    sa = SA(3, 84)
    P_WQ = sa.new("pwq", 2, 2); P_W1 = sa.new("pw1", 2, 2); P_WS = sa.new("pws", 2, 2); P_X = sa.new("px", 2, 2)
    P_W2 = sa.new("pw2", 2, 2); P_WO = sa.new("pwo", 2, 2); P_OUT = sa.new("pout", 2, 2)
    R_WQ = sa.new("rwq", 4, 4); R_W1 = sa.new("rw1", 4, 4); R_W2 = sa.new("rw2", 4, 4); R_WO = sa.new("rwo", 4, 4)
    R_WS = sa.new("rws", 4, 4)
    sW = sa.new("w"); sI = sa.new("i"); sJ = sa.new("j"); sJ1 = sa.new("j1"); sQ = sa.new("q"); sN = sa.new("n")
    sBQ = sa.new("bq"); sBV = sa.new("bv"); sBW = sa.new("bw"); sBL = sa.new("bl"); sLB = sa.new("lb"); sA = sa.new("a")
    sCLS = sa.new("cls"); t0 = sa.new("t0"); t1 = sa.new("t1"); t2 = sa.new("t2"); t3 = sa.new("t3")
    sMK = sa.new("mask", 8, 2)
    sKV = sa.new("kv"); sKV2 = sa.new("kv2"); sKP = sa.new("kp"); sKP2 = sa.new("kp2"); sFK = sa.new("fk"); sFO = sa.new("fo")
    sH = sa.new("h", 4); sSC = sa.new("sc", 2, 2); sO = sSC + 1; sA0 = sa.new("a0"); sB0 = sa.new("b0"); sAE = sa.new("aend"); sBE = sa.new("bend")
    sXO = sa.new("xo"); sSP = sa.new("spin")
    sDL = sMK
    STB = 84
    SETS = {1: ["start", "bar0", "g1end", "attbeg", "attend", "g2beg", "g2end", "end"],
            2: ["start", "g1half", "g1tail", "g1kv", "g1flag1", "g1chk", "g1kb", "g1end"],
            3: ["start", "attbeg", "att0", "att1", "att2", "att3", "att4", "attend"],
            4: ["start", "att4", "g2h", "g2beg", "g2p4", "g2p12", "g2tail", "g2end"],
            5: ["start", "g2end", "x1", "x2", "x3", "x4", "x5", "end"],
            7: ["g2beg", "g2p3", "g2p6", "g2p10", "g2p14", "g2p18", "g2p22", "g2end"],
            8: ["g2p22", "g2tail", "g2l1", "g2l2", "g2l3", "g2end", "x3", "end"],
            9: ["start", "lnx", "lns", "lnd", "lnp", "g1s1", "g1s4", "g1s8"],
            10: ["start", "k0", "k1", "k2", "k3", "k4", "lnx", "lns"],
            6: ["start", "bar0", "g1s2", "g1s4", "g1s8", "g1half", "g1s20", "g1tail"]}
    jn = [0]
    def stampr(nm):
        J = cfg.get("jit", 0)
        if J and nm != "start":
            jn[0] += 1
            lab = a.newlabel("F_j")
            a("s_lshl_b32 s84, s2, 2")
            if J & 1: a("s_add_u32 s84, s84, s%d" % sW)
            a("s_add_u32 s84, s84, %d" % (jn[0] * 7919 + J * 31))
            a("s_mul_i32 s84, s84, 0x9e3779b1")
            a("s_lshr_b32 s84, s84, 28")
            a("s_cmp_lg_u32 s84, 0")
            a("s_cbranch_scc1 %s" % lab)
            for _ in range(cfg.get("jitn", 2)): a("s_sleep 127")
            a.label(lab)
        if ST and nm in SETS[ST]:
            i = SETS[ST].index(nm)
            a("%s s[%d:%d]" % ("s_memtime" if cfg.get("clk") else "s_memrealtime", STB + 2 * i, STB + 2 * i + 1))

    NT = 13; KS = 32
    NS = 5; REG = 7168; STAGE = 4 * REG
    D1 = cfg.get("f_d1", 8)
    RA = cfg.get("f_ra1", 12)
    LA = cfg.get("f_la1", 4)
    C1 = cfg.get("f_c1", 2)
    C1K = cfg.get("f_c1k", 2); C1T = cfg.get("f_c1t", 4); C1S = cfg.get("f_c1s", 0)
    CM1 = max(C1, C1K, C1T)
    DB = cfg.get("f_db1", CM1 + 2); RB = DB + max(CM1, 2)
    assert DB >= CM1
    S1 = KS - D1
    def slot1(g): return (15 - g) % 5
    KVB = 96 * 1024
    def acc(mt, t): return (t * MT + mt) * 4
    V_L16 = 208; V_QKV = 209; V_W1 = 210; V_LEFT = 211
    V_RD = 212
    V_P0, V_P1, V_P2 = 221, 222, 223
    V_LANE = 224; V_FL0 = 225; V_ONE = 226; V_POLL = 227; V_KVW = 228; V_FG = 229; V_PL = 230
    T = 232
    A_PD = 255
    AR = 0; BR = RA * 16
    assert BR + RB * 4 <= 254

    kernel_begin(a, name)
    a.reset()
    stampr("start")
    a("s_cmp_ge_u32 s2, 256")
    a("s_cbranch_scc1 F_end")
    if cfg.get("idx"): a("s_xor_b32 s2, s2, %d" % cfg["idx"])
    if cfg.get("jit"):
        a("s_mul_i32 s84, s2, 0x9e3779b1")
        a("s_lshr_b32 s84, s84, 28")
        a("s_cmp_lg_u32 s84, %d" % (cfg["jit"] & 15))
        a("s_cbranch_scc1 F_j0")
        for _ in range(4): a("s_sleep 127")
        a.label("F_j0")
    a("s_load_dwordx2 s[%d:%d], s[0:1], 8" % (P_WQ, P_WQ + 1))
    a("s_load_dwordx2 s[%d:%d], s[0:1], 32" % (P_W1, P_W1 + 1))
    a("s_load_dwordx2 s[%d:%d], s[0:1], 64" % (P_WS, P_WS + 1))
    a("s_load_dwordx2 s[%d:%d], s[0:1], 0" % (P_X, P_X + 1))
    a("s_load_dwordx2 s[%d:%d], s[0:1], 40" % (P_W2, P_W2 + 1))
    a("s_load_dwordx2 s[%d:%d], s[0:1], 16" % (P_WO, P_WO + 1))
    a("s_load_dwordx2 s[%d:%d], s[0:1], 48" % (P_OUT, P_OUT + 1))
    if FLN:
        lab = a.newlabel("F_pc")
        a("s_getpc_b64 s[%d:%d]" % (R_WO, R_WO + 1))
        a.label(lab)
        a("s_and_b32 s%d, s%d, 0xffff" % (R_WO + 1, R_WO + 1))
        a("s_mov_b32 s%d, CODE_END - %s" % (R_WO + 2, lab))
        a("s_mov_b32 s%d, 0x00020000" % (R_WO + 3))
        a("s_lshr_b32 s%d, s2, 3" % t0)
        a("s_lshl_b32 s%d, s%d, 7" % (t0, t0))
        a("v_lshlrev_b32 v70, 12, v0")
        a.vmem("buffer_load_dword v76, v70, %s, s%d offen" % (s4(R_WO), t0), "T")
    if FLN: a("s_load_dwordx2 s[100:101], s[0:1], 56")
    L = V_LANE
    a("v_and_b32 v%d, 63, v0" % L)
    a("v_lshrrev_b32 v%d, 6, v0" % (T + 1))
    a("v_lshlrev_b32 v%d, 4, v%d" % (V_L16, L))
    a("v_readfirstlane_b32 s%d, v%d" % (sW, T + 1))
    a("s_and_b32 s%d, s2, 1" % sI)
    a("s_lshl_b32 s%d, s%d, 2" % (sI, sI))
    a("s_bfe_u32 s%d, s2, 0x20003" % t0)
    a("s_add_u32 s%d, s%d, s%d" % (sI, sI, t0))
    a("s_bfe_u32 s%d, s2, 0x20001" % sQ)
    a("s_lshr_b32 s%d, s2, 5" % sN)
    a("s_lshl_b32 s%d, s%d, 3" % (sJ, sQ))
    a("s_add_u32 s%d, s%d, s%d" % (sJ, sJ, sN))
    a("s_and_b32 s%d, s%d, 1" % (sJ1, sN))
    if FLN:
        a("v_and_b32 v3, 7, v%d" % L)
        a("v_lshrrev_b32 v4, 3, v%d" % L)
        LXD = cfg.get("f_lxd", 0)
        if LXD:
            a("v_xor_b32 v83, v3, v4")
            a("v_lshlrev_b32 v5, 11, v4")
            a("v_lshl_add_u32 v5, v%d, 9, v5" % (T + 1))
            a("v_lshl_add_u32 v5, v83, 4, v5")
            a("s_lshl_b32 s%d, s%d, 12" % (t1, sW))
            a("s_add_u32 s%d, s%d, %d" % (t1, t1, 144 * 1024))
            a("s_mov_b32 m0, s%d" % t1)
        else:
            a("v_lshlrev_b32 v5, 11, v3")
            a("v_lshl_add_u32 v5, v%d, 9, v5" % (T + 1))
            a("v_lshl_add_u32 v5, v4, 4, v5")
        a("s_lshl_b32 s%d, s%d, 5" % (t3, sI))
        a("s_add_u32 s%d, s%d, s%d" % (t3, t3, sJ))
        a("s_lshl_b32 s%d, s%d, 14" % (t0, t3))
        stampr("k0")
        a("s_waitcnt lgkmcnt(0)")
        stampr("k1")
        srd(a, R_W2, P_X, S * D * 2)
        for i in range(4):
            if LXD:
                a.vmem("buffer_load_dwordx4 v5, %s, s%d offen offset:%d lds" % (s4(R_W2), t0, i * 128), ("LX", i))
                if i < 3:
                    a("s_add_u32 m0, m0, %d" % (1024 - 128))
                    a("s_nop 0")
            else: a.vmem("buffer_load_dwordx4 %s, v5, %s, s%d offen offset:%d" % (r4("v", 8 + 4 * i), s4(R_W2), t0, i * 128), ("LX", i))
        if LXD:
            a("v_lshlrev_b32 v83, 4, v83")
            a("v_lshl_add_u32 v83, v3, 7, v83")
            a("v_add_u32 v83, s%d, v83" % t1)
        stampr("k2")
        srd(a, R_WS, P_WS, WS_END)
        a("s_lshl_b32 s%d, s%d, 12" % (sSP, sI))
        a("s_add_u32 s%d, s%d, 0x%x" % (sXO, sSP, WS_LF))
        a("v_and_b32 v80, 31, v%d" % L)
        a("v_lshlrev_b32 v80, %d, v80" % cfg.get("f_lfs", 2))
        a("v_add_u32 v80, s%d, v80" % sXO)
        a.vmem("buffer_load_dword v81, v80, %s, 0 offen sc1" % s4(R_WS), "SN")
    a("v_lshrrev_b32 v%d, 2, v%d" % (T + 2, L))
    a("v_lshl_add_u32 v%d, v%d, 4, v%d" % (T + 2, T + 1, T + 2))
    a("v_lshrrev_b32 v%d, 4, v%d" % (T + 3, L))
    a("v_and_b32 v%d, 2, v%d" % (T + 3, T + 3))
    a("v_and_b32 v%d, 3, v%d" % (T + 4, L))
    a("v_xor_b32 v%d, v%d, v%d" % (T + 3, T + 3, T + 4))
    a("v_lshlrev_b32 v%d, 4, v%d" % (T + 3, T + 3))
    a("v_mul_u32_u24 v%d, 6144, v%d" % (V_QKV, T + 2))
    a("v_add_u32 v%d, v%d, v%d" % (V_QKV, V_QKV, T + 3))
    a("v_mul_u32_u24 v%d, 7168, v%d" % (V_W1, T + 2))
    a("v_add_u32 v%d, v%d, v%d" % (V_W1, V_W1, T + 3))
    a("v_bfe_u32 v%d, v%d, 3, 1" % (T + 2, L))
    a("v_lshlrev_b32 v%d, 3, v%d" % (T + 2, T + 2))
    a("v_bfe_u32 v%d, v%d, 4, 1" % (T + 3, L))
    a("v_lshl_add_u32 v%d, v%d, 2, v%d" % (T + 2, T + 3, T + 2))
    a("v_bfe_u32 v%d, v%d, 1, 2" % (T + 3, L))
    a("v_add_u32 v%d, v%d, v%d" % (T + 2, T + 2, T + 3))
    a("v_lshl_add_u32 v%d, v%d, 4, v%d" % (T + 2, T + 1, T + 2))
    a("v_mul_u32_u24 v%d, 7168, v%d" % (V_LEFT, T + 2))
    a("v_and_b32 v%d, 1, v%d" % (T + 3, L))
    a("v_lshl_add_u32 v%d, v%d, 4, v%d" % (V_LEFT, T + 3, V_LEFT))
    a("v_lshrrev_b32 v%d, 5, v%d" % (T + 3, L))
    a("v_lshl_add_u32 v%d, v%d, 30, v%d" % (V_LEFT, T + 3, V_LEFT))
    a("s_lshl_b32 s%d, s%d, 6" % (sBQ, sJ))
    a("s_add_u32 s%d, s%d, 4096" % (sBV, sBQ))
    a("s_mul_i32 s%d, s%d, 224" % (sBL, sJ))
    a("s_lshl_b32 s%d, s%d, 5" % (t0, sJ1))
    a("s_add_u32 s%d, s%d, s%d" % (sBW, sBL, t0))
    a("s_xor_b32 s%d, s%d, 1" % (t0, sJ1))
    a("s_mul_i32 s%d, s%d, 192" % (t0, t0))
    a("s_add_u32 s%d, s%d, s%d" % (sBL, sBL, t0))
    a("s_mul_i32 s%d, s%d, %d" % (sLB, sW, REG))
    a("s_lshl_b32 s%d, s%d, 2" % (sA, sI))
    a("s_add_u32 s%d, s%d, s%d" % (sA, sA, sW))
    a("s_lshl_b32 s%d, s%d, 17" % (sA, sA))
    a("s_add_u32 s%d, s%d, 0x%x" % (sA, sA, WS_XN))
    ROT = cfg.get("f_rot", 1)
    a("s_add_u32 s%d, s%d, s%d" % (t1, sI, sN))
    a("s_and_b32 s%d, s%d, %d" % (t1, t1, 3 if ROT else 0))
    for k in range(3):
        a("s_cmp_eq_u32 s%d, %d" % (t1, 3 - k))
        a("s_cselect_b32 s%d, -3, 1" % (sDL + k))
    a("s_cmp_eq_u32 s%d, 0" % t1)
    a("s_cselect_b32 s%d, 1, 5" % (sDL + 3))
    a("s_mul_i32 s%d, s%d, %d" % (t0, t1, 64 * 6144))
    a("s_add_u32 s%d, s%d, s%d" % (sBQ, sBQ, t0))
    a("s_add_u32 s%d, s%d, s%d" % (sBV, sBV, t0))
    a("s_mul_i32 s%d, s%d, %d" % (t0, t1, 64 * 7168))
    a("s_add_u32 s%d, s%d, s%d" % (sBW, sBW, t0))
    a("s_add_u32 s%d, s%d, s%d" % (sBL, sBL, t0))
    a("s_lshl_b32 s%d, s%d, 13" % (t0, t1))
    a("s_add_u32 s%d, s%d, s%d" % (sA, sA, t0))
    for k in range(4):
        a("s_lshl_b32 s%d, s%d, 13" % (sDL + 4 + k, sDL + k))
        a("s_sub_u32 s%d, s%d, 4096" % (sDL + 4 + k, sDL + 4 + k))
    a("s_waitcnt lgkmcnt(0)")
    srd(a, R_WQ, P_WQ, D * 3 * D * 2)
    srd(a, R_W1, P_W1, D * DFF * 2)
    if not FLN: srd(a, R_WS, P_WS, WS_END)

    G = Gaps(a)
    PAIRPOS = [0, 2, 1, 3, 4, 5]
    def dma1(g, k, part):
        p, vreg, sb, so, imm = [(0, V_QKV, R_WQ, sBQ, 0), (2, V_QKV, R_WQ, sBQ, 2048), (1, V_QKV, R_WQ, sBV, 0),
                                (3, V_W1, R_W1, sBW, 0), (4, V_W1, R_W1, sBW, 64), (5, V_W1, R_W1, sBW, 128), (6, V_LEFT, R_W1, sBL, 0)][k]
        if part == 0:
            a("s_add_u32 m0, s%d, %d" % (sLB, slot1(g) * STAGE + p * 1024 - imm))
        else:
            a.vmem("buffer_load_dwordx4 v%d, %s, s%d offen offset:%d lds" % (vreg, s4(sb), so, imm), ("B", g))
            if k == 0: G.sal.append("s_mul_i32 s%d, s%d, %d" % (t2, sDL + (g & 3), 64 * 6144))
            if k == 1: G.sal.append("s_add_u32 s%d, s%d, s%d" % (sBQ, sBQ, t2))
            if k == 2: G.sal.append("s_add_u32 s%d, s%d, s%d" % (sBV, sBV, t2))
            if k == 3: G.sal.append("s_mul_i32 s%d, s%d, %d" % (t2, sDL + (g & 3), 64 * 7168))
            if k == 5: G.sal.append("s_add_u32 s%d, s%d, s%d" % (sBW, sBW, t2))
            if k == 6: G.sal.append("s_add_u32 s%d, s%d, s%d" % (sBL, sBL, t2))
    def aload1(s, mt):
        a.vmem("buffer_load_dwordx4 %s, v%d, %s, s%d offen offset:%d%s" % (r4("a", AR + (s % RA) * 16 + mt * 4), V_L16, s4(R_WS), sA, mt * 1024, " sc1" if FLN else ""), ("A", s))
        if mt == MT - 1:
            if s % 2 == 0: G.sal.append("s_add_u32 s%d, s%d, 4096" % (sA, sA))
            else: G.sal.append("s_add_u32 s%d, s%d, s%d" % (sA, sA, sDL + 4 + ((s // 2) & 3)))
    order = []
    for g in range(16):
        for k in range(7): order.append(("B", g, k))
        for s in (2 * g, 2 * g + 1):
            for mt in range(MT): order.append(("A", s, mt))
    def issue1(op):
        G.drain_sal()
        if op[0] == "A": aload1(op[1], op[2])
        else:
            dma1(op[1], op[2], 0); a("s_nop 0"); dma1(op[1], op[2], 1)
        G.drain_sal()
    if FLN:
        nb = cfg.get("f_lnb", 1)
        bops = [o for o in order if o[0] == "B" and o[1] < nb]
        for o in bops: order.remove(o)
        BO = cfg.get("f_bo", 0)
        late_b = []
        if BO == 1: late_b = bops[:3]; bops = bops[3:]
        if BO == 2: late_b = bops[3:]; bops = bops[:3]
        TB0 = cfg.get("f_tb", 0)
        def touchb():
            a("s_lshr_b32 s%d, s2, 3" % t1)
            a("s_lshl_b32 s%d, s%d, 2" % (t1, t1))
            a("s_add_u32 s%d, s%d, s%d" % (t1, t1, sW))
            a("v_lshrrev_b32 v84, 4, v%d" % L)
            a("v_and_b32 v85, 15, v%d" % L)
            a("v_mul_u32_u24 v86, 7168, v84")
            a("v_lshl_add_u32 v86, v85, 7, v86")
            a("v_mul_u32_u24 v84, 6144, v84")
            a("v_lshrrev_b32 v87, 2, v85")
            a("v_lshl_add_u32 v84, v87, 11, v84")
            a("v_and_b32 v87, 3, v85")
            a("v_lshl_add_u32 v84, v87, 7, v84")
            a("s_mul_i32 s%d, s%d, %d" % (t0, t1, 2 * 6144))
            a("s_lshl_b32 s%d, s%d, 9" % (t2, sQ))
            a("s_add_u32 s%d, s%d, s%d" % (sKV, t0, t2))
            a("s_mul_i32 s%d, s%d, %d" % (t0, t1, 2 * 7168))
            a("s_mul_i32 s%d, s%d, 1792" % (t2, sQ))
            a("s_add_u32 s%d, s%d, s%d" % (sKV2, t0, t2))
        def touchb2():
            a("s_mov_b64 exec, 0x0fff0fff")
            a.vmem("buffer_load_dword a%d, v84, %s, s%d offen" % (A_PD, s4(R_WQ), sKV), "T")
            a("s_mov_b64 exec, 0x3fff3fff")
            a.vmem("buffer_load_dword a%d, v86, %s, s%d offen" % (A_PD, s4(R_W1), sKV2), "T")
            a("s_mov_b64 exec, -1")
        if TB0: touchb()
        if TB0 == 1: touchb2()
        for _ in range(cfg.get("f_lnb0", 2)): issue1(bops.pop(0))
        a("s_lshl_b32 s%d, s2, 9" % t0)
        a("s_add_u32 s%d, s%d, 0x%x" % (t0, t0, WS_FL))
        a("v_lshlrev_b32 v70, 2, v0")
        a("v_lshrrev_b32 v71, 7, v0")
        a("v_lshl_add_u32 v70, v71, 30, v70")
        a("v_mov_b32 v71, 0")
        a.vmem("buffer_store_dword v71, v70, %s, s%d offen sc1" % (s4(R_WS), t0), "Z")
        a("s_lshr_b32 s%d, s%d, 3" % (t0, t3))
        a("s_lshl_b32 s%d, s%d, 17" % (t0, t0))
        a("s_bfe_u32 s%d, s%d, 0x20001" % (t1, t3))
        a("s_lshl_b32 s%d, s%d, 10" % (t1, t1))
        a("s_add_u32 s%d, s%d, s%d" % (t0, t0, t1))
        a("s_and_b32 s%d, s%d, 1" % (t1, t3))
        a("s_lshl_b32 s%d, s%d, 7" % (t1, t1))
        a("s_add_u32 s%d, s%d, s%d" % (t0, t0, t1))
        a("s_add_u32 s%d, s%d, 0x%x" % (t3, t0, WS_XN))
        a("v_lshrrev_b32 v6, 2, v4")
        a("v_lshl_add_u32 v6, v%d, 3, v6" % (T + 1))
        a("v_lshlrev_b32 v6, 12, v6")
        a("v_and_b32 v7, 3, v4")
        a("v_lshl_add_u32 v6, v7, 8, v6")
        a("v_lshl_add_u32 v6, v3, 4, v6")
        a("v_lshl_add_u32 v7, v%d, 3, v3" % (T + 1))
        a("v_lshlrev_b32 v7, 3, v7")
        a("v_add_u32 v7, %d, v7" % (5 * STAGE))
        a("v_lshlrev_b32 v60, 3, v3")
        a("v_add_u32 v60, %d, v60" % (5 * STAGE))
        stampr("k3")
        if LXD:
            for i in range(4):
                a.wait(vm=("LX", i))
                if i == 0: stampr("k4")
                a("ds_read_b128 %s, v83 offset:%d" % (r4("v", 8 + 4 * i), i * 1024))
            a("s_waitcnt lgkmcnt(0)")
        elif not cfg.get("f_lxp", 1): a.wait(vm=("LX", 3))
        stampr("lnx")
        if TB0 == 2: touchb2()
        lo_ = ln_ops(cfg.get("f_lnex", 1))
        gap_ = cfg.get("f_lngap", 20)
        for k, x in enumerate(lo_):
            if x.startswith("WAIT"): a.wait(vm=("LX", int(x[4:])))
            elif x.startswith("STORE"):
                i = int(x[5:])
                a.vmem("buffer_store_dwordx4 %s, v6, %s, s%d offen sc1" % (r4("v", 8 + 4 * i), s4(R_WS), t3), "XS")
                if i < 3: a("s_add_u32 s%d, s%d, %d" % (t3, t3, 8192))
            else: a(x)
            if k % gap_ == gap_ - 1 and bops and k < cfg.get("f_lnk", 110): issue1(bops.pop(0))
        bops += late_b
        if cfg.get("f_bnow", 1):
            while bops: issue1(bops.pop(0))
        stampr("lns")
    else:
        for _ in range(cfg.get("f_pro1", 15)): issue1(order.pop(0))

    srd(a, R_W2, P_W2, DFF * D * 2)
    srd(a, R_WO, P_WO, D * D * 2)
    a("s_bfe_u32 s%d, s2, 0x30003" % sCLS)
    a("v_bfrev_b32 v%d, 1" % (T + 6))
    if cfg.get("f_pf", 0):
        a("s_lshr_b32 s%d, s2, 6" % t1)
        a("s_lshl_b32 s%d, s%d, 2" % (t1, t1))
        a("s_add_u32 s%d, s%d, s%d" % (t1, t1, sW))
        a("v_bfrev_b32 v%d, 1" % (T + 6))
        a("v_lshrrev_b32 v%d, 5, v%d" % (T + 2, L))
        a("s_lshl_b32 s%d, s%d, 1" % (t0, t1))
        a("v_add_u32 v%d, s%d, v%d" % (T + 2, t0, T + 2))
        a("v_and_b32 v%d, 31, v%d" % (T + 3, L))
        a("v_mul_u32_u24 v%d, 7168, v%d" % (V_P1, T + 2))
        a("v_lshl_add_u32 v%d, v%d, 7, v%d" % (V_P1, T + 3, V_P1))
        a("s_mul_i32 s%d, s%d, 1792" % (t0, sQ))
        a("v_add_u32 v%d, s%d, v%d" % (V_P1, t0, V_P1))
        a("v_mul_u32_u24 v%d, 6144, v%d" % (V_P0, T + 2))
        a("v_lshrrev_b32 v%d, 2, v%d" % (T + 4, T + 3))
        a("v_lshl_add_u32 v%d, v%d, 11, v%d" % (V_P0, T + 4, V_P0))
        a("v_and_b32 v%d, 3, v%d" % (T + 4, T + 3))
        a("v_lshl_add_u32 v%d, v%d, 7, v%d" % (V_P0, T + 4, V_P0))
        a("s_lshl_b32 s%d, s%d, 9" % (t0, sQ))
        a("v_add_u32 v%d, s%d, v%d" % (V_P0, t0, V_P0))
        a("v_cmp_le_u32 vcc, 12, v%d" % (T + 3))
        a("s_and_b32 s%d, s2, 1" % t0)
        a("s_lshl_b32 s%d, s%d, 4" % (t0, t0))
        a("v_cndmask_b32 v%d, v%d, v%d, vcc" % (V_P0, V_P0, T + 6))
        a("v_cmp_le_u32 vcc, 14, v%d" % (T + 3))
        a("s_add_u32 s%d, s%d, s%d" % (t0, t0, t1))
        a("s_lshl_b32 s%d, s%d, 17" % (t0, t0))
        a("v_cndmask_b32 v%d, v%d, v%d, vcc" % (V_P1, V_P1, T + 6))
        a("s_add_u32 s%d, s%d, 0x%x" % (t0, t0, WS_XN))
        a("v_lshlrev_b32 v%d, 7, v%d" % (V_P2, L))
        a("v_add_u32 v%d, s%d, v%d" % (V_P2, t0, V_P2))
        a("v_cmp_le_u32 vcc, 32, v%d" % L)
        a("s_lshl_b32 s%d, s%d, 12" % (t0, sCLS))
        a("s_nop 0")
        a("v_cndmask_b32 v%d, v%d, v%d, vcc" % (V_P2, V_P2, T + 6))
    PFM = cfg.get("f_pf", 0)
    PF0 = cfg.get("f_pf0", 8)
    if PFM & 2:
        a("buffer_load_dword a%d, v%d, %s, s%d offen" % (A_PD, V_P2, s4(R_WS), t0))
    def touch(n):
        lab = a.newlabel("F_pf")
        a("s_cmp_lg_u32 s%d, %d" % (sCLS, n & 7))
        a("s_cbranch_scc1 %s" % lab)
        if PFM & 1:
            a("s_mov_b32 s%d, %d" % (t0, n * 32 * 6144))
            a("s_mov_b32 s%d, %d" % (t1, n * 32 * 7168))
            a("buffer_load_dword a%d, v%d, %s, s%d offen" % (A_PD, V_P0, s4(R_WQ), t0))
            a("buffer_load_dword a%d, v%d, %s, s%d offen" % (A_PD - 1, V_P1, s4(R_W1), t1))
        if PFM & 2:
            a("s_mov_b32 s%d, %d" % (t0, n * 4096))
            a("buffer_load_dword a%d, v%d, %s, s%d offen" % (A_PD, V_P2, s4(R_WS), t0))
        a.label(lab)
    if PFM & 4:
        a("s_and_b32 s%d, s2, 1" % t0)
        a("v_lshrrev_b32 v%d, 5, v%d" % (T + 2, L))
        a("v_cmp_ne_u32 vcc, s%d, v%d" % (t0, T + 2))
        a("s_nop 1")
        a("v_cndmask_b32 v%d, v%d, v%d, vcc" % (V_P0, V_P0, T + 6))
        a("v_cndmask_b32 v%d, v%d, v%d, vcc" % (V_P1, V_P1, T + 6))
    PW = cfg.get("f_pw", 2); PW0 = cfg.get("f_pw0", 12)
    V_PW = 231
    a("v_lshlrev_b32 v%d, 7, v%d" % (V_PW, L))
    a("v_cmp_le_u32 vcc, 56, v%d" % L)
    a("s_nop 1")
    a("v_cndmask_b32 v%d, v%d, v%d, vcc" % (V_PW, V_PW, T + 6))
    def touchw(cls):
        lab = a.newlabel("F_pw")
        if cls is not None:
            a("s_cmp_lg_u32 s%d, %d" % (sCLS, cls))
            a("s_cbranch_scc1 %s" % lab)
        a("s_lshl_b32 s%d, s2, 2" % t0)
        a("s_add_u32 s%d, s%d, s%d" % (t0, t0, sW))
        a("s_mul_i32 s%d, s%d, 7168" % (t1, t0))
        a("buffer_load_dword a%d, v%d, %s, s%d offen" % (A_PD, V_PW, s4(R_W2), t1))
        a("s_lshl_b32 s%d, s%d, 11" % (t1, t0))
        a("s_mov_b64 exec, 0xffff")
        a("buffer_load_dword a%d, v%d, %s, s%d offen" % (A_PD - 1, V_PW, s4(R_WO), t1))
        a("s_mov_b64 exec, -1")
        a.label(lab)
    def touchp(k):
        a("s_lshl_b32 s%d, s2, 2" % t0)
        a("s_add_u32 s%d, s%d, s%d" % (t0, t0, sW))
        if k < 2:
            a("s_mul_i32 s%d, s%d, 7168" % (t1, t0))
            a("s_mov_b64 exec, 0xfffffff")
            a.vmem("buffer_load_dword a%d, v%d, %s, s%d offen offset:%d" % (A_PD, V_PW, s4(R_W2), t1, k * 3584), "T")
        else:
            a("s_lshl_b32 s%d, s%d, 11" % (t1, t0))
            a("s_mov_b64 exec, 0xffff")
            a.vmem("buffer_load_dword a%d, v%d, %s, s%d offen" % (A_PD, V_PW, s4(R_WO), t1), "T")
        a("s_mov_b64 exec, -1")
    def touchx(k):
        a("s_lshr_b32 s%d, s2, 3" % t0)
        a("s_lshl_b32 s%d, s%d, 2" % (t0, t0))
        a("s_add_u32 s%d, s%d, s%d" % (t0, t0, sW))
        a("s_lshl_b32 s%d, s%d, 7" % (t1, sQ))
        a("s_add_u32 s%d, s%d, s%d" % (t0, t0, t1))
        if k < 2:
            a("s_mul_i32 s%d, s%d, 14336" % (t1, t0))
            if k: a("s_add_u32 s%d, s%d, 7168" % (t1, t1))
            a("buffer_load_dword a%d, v%d, %s, s%d offen" % (A_PD - k, V_PW, s4(R_W2), t1))
        else:
            a("s_lshl_b32 s%d, s%d, 12" % (t1, t0))
            a("s_mov_b32 exec_hi, 0")
            a("buffer_load_dword a%d, v%d, %s, s%d offen" % (A_PD, V_PW, s4(R_WO), t1))
            a("s_mov_b32 exec_hi, -1")
    pfq = list(range(PF0, KS)) if PFM else []
    PFA = cfg.get("f_pfa", 30)
    a("v_lshrrev_b32 v%d, 5, v%d" % (T + 2, L))
    a("v_mul_u32_u24 v%d, %d, v%d" % (T + 2, REG, T + 2))
    a("v_and_b32 v%d, 3, v%d" % (T + 3, L))
    a("v_lshl_add_u32 v%d, v%d, 3, v%d" % (T + 2, T + 3, T + 2))
    a("v_bfe_u32 v%d, v%d, 2, 2" % (T + 3, L))
    a("v_bfe_u32 v%d, v%d, 4, 1" % (T + 4, L))
    a("v_lshl_add_u32 v%d, v%d, 6, v%d" % (V_RD, T + 3, T + 2))
    a("v_lshl_add_u32 v%d, v%d, 9, v%d" % (V_RD, T + 4, V_RD))
    a("v_lshl_add_u32 v%d, v%d, 5, v%d" % (V_RD, T + 4, V_RD))
    a("v_xor_b32 v%d, 32, v%d" % (V_RD + 1, V_RD))
    a("v_lshl_add_u32 v%d, v%d, 5, v%d" % (V_RD + 2, T + 3, T + 2))
    a("v_lshl_add_u32 v%d, v%d, 7, v%d" % (V_RD + 2, T + 4, V_RD + 2))
    for st_ in (1, 2):
        for x in range(3):
            a("v_add_u32 v%d, %d, v%d" % (V_RD + 3 * st_ + x, st_ * 2 * STAGE, V_RD + x))
    a("s_lshl_b32 s%d, s%d, 7" % (sKV, sJ))
    a("s_lshl_b32 s%d, s%d, 4" % (t0, sI))
    a("s_add_u32 s%d, s%d, s%d" % (sKV, sKV, t0))
    a("s_lshl_b32 s%d, s%d, 2" % (t0, sW))
    a("s_add_u32 s%d, s%d, s%d" % (sKV, sKV, t0))
    a("s_lshl_b32 s%d, s%d, 10" % (sKV, sKV))
    a("s_add_u32 s%d, s%d, 0x%x" % (sKV2, sKV, WS_V))
    a("s_add_u32 s%d, s%d, 0x%x" % (sKV, sKV, WS_K))
    a("s_sub_u32 s%d, s%d, 16384" % (sKP, sKV))
    a("s_sub_u32 s%d, s%d, 16384" % (sKP2, sKV2))
    a("s_cmp_eq_u32 s%d, 0" % sI)
    a("s_cselect_b32 s%d, 0x40000000, s%d" % (sKP, sKP))
    a("s_cselect_b32 s%d, 0x40000000, s%d" % (sKP2, sKP2))
    a("s_lshl_b32 s%d, s2, 2" % sFO)
    a("s_add_u32 s%d, s%d, s%d" % (sFO, sFO, sW))
    a("s_lshl_b32 s%d, s%d, 7" % (sFO, sFO))
    a("s_add_u32 s%d, s%d, 0x%x" % (sFO, sFO, WS_FL))
    a("s_add_u32 s%d, s%d, 1" % (t0, sI))
    a("s_and_b32 s%d, s%d, 3" % (t1, t0))
    a("s_lshl_b32 s%d, s%d, 3" % (t1, t1))
    a("s_lshr_b32 s%d, s%d, 2" % (t0, t0))
    a("s_or_b32 s%d, s%d, s%d" % (t1, t1, t0))
    a("s_and_b32 s%d, s2, 0xe6" % t0)
    a("s_or_b32 s%d, s%d, s%d" % (t1, t1, t0))
    a("s_lshl_b32 s%d, s%d, 2" % (t1, t1))
    a("s_add_u32 s%d, s%d, s%d" % (t1, t1, sW))
    a("s_lshl_b32 s%d, s%d, 7" % (t1, t1))
    a("s_add_u32 s%d, s%d, 0x%x" % (sFK, t1, WS_FL + 12))
    a("s_cmp_eq_u32 s%d, 7" % sI)
    a("s_cselect_b32 s%d, 0x40000000, s%d" % (sFK, sFK))
    a("v_cmp_ne_u32 vcc, 0, v%d" % L)
    a("v_mov_b32 v%d, 1" % V_ONE)
    a("v_and_b32 v%d, 31, v%d" % (V_PL, L))
    a("v_cndmask_b32 v%d, 0, v%d, vcc" % (V_FL0, T + 6))
    a("v_lshlrev_b32 v%d, 2, v%d" % (V_PL, V_PL))
    a("s_and_b32 s%d, s2, 31" % t0)
    a("s_lshl_b32 s%d, s%d, 2" % (t0, t0))
    a("s_add_u32 s%d, s%d, s%d" % (t0, t0, sW))
    a("s_lshl_b32 s%d, s%d, 7" % (t0, t0))
    a("s_lshl_b32 s%d, s%d, 2" % (t1, sN))
    a("s_add_u32 s%d, s%d, s%d" % (t0, t0, t1))
    a("s_add_u32 s%d, s%d, 0x%x" % (t0, t0, WS_FL))
    a("v_lshlrev_b32 v%d, 14, v%d" % (V_FG, L))
    a("v_add_u32 v%d, s%d, v%d" % (V_FG, t0, V_FG))
    a("v_cmp_le_u32 vcc, 8, v%d" % L)
    a("s_lshl_b32 s%d, s%d, 12" % (t0, sW))
    a("s_add_u32 s%d, s%d, %d" % (t0, t0, KVB))
    a("v_cndmask_b32 v%d, v%d, v%d, vcc" % (V_FG, V_FG, T + 6))
    a("v_add_u32 v%d, s%d, v%d" % (V_KVW, t0, V_L16))
    a("s_lshl_b32 s%d, s%d, 2" % (t0, sI))
    a("s_add_u32 s%d, s%d, s%d" % (t0, t0, sW))
    a("s_lshl_b32 s%d, s%d, 17" % (sXO, t0))
    a("s_mul_i32 s%d, s%d, 144" % (t0, t0))
    a("s_mul_i32 s%d, s%d, 36" % (t1, sQ))
    a("s_add_u32 s%d, s%d, s%d" % (t0, t0, t1))
    a("s_lshl_b32 s%d, s%d, 12" % (t0, t0))
    a("s_add_u32 s%d, s%d, 0x%x" % (t0, t0, WS_A2))
    a("s_add_u32 s%d, s%d, %d" % (sAE, t0, 28 * 4096))
    a("s_lshl_b32 s%d, s%d, 12" % (t1, sN))
    a("s_add_u32 s%d, s%d, s%d" % (sO, sAE, t1))
    a("s_mul_i32 s%d, s%d, 7" % (t1, sN))
    a("s_add_u32 s%d, s%d, s%d" % (t1, t1, sJ1))
    a("s_lshl_b32 s%d, s%d, 11" % (t1, t1))
    a("s_add_u32 s%d, s%d, s%d" % (sH, t0, t1))
    a("s_add_u32 s%d, s%d, 4096" % (sH + 1, sH))
    a("s_add_u32 s%d, s%d, 8192" % (sH + 2, sH))
    a("s_mul_i32 s%d, s%d, %d" % (sH + 3, sJ1, -4096 + 8 - 3 * 4096))
    a("s_add_u32 s%d, s%d, %d" % (sH + 3, sH + 3, 3 * 4096))
    a("s_add_u32 s%d, s%d, s%d" % (sH + 3, sH + 3, sH))
    a("s_lshl_b32 s%d, s%d, 8" % (t0, sN))
    a("s_add_u32 s%d, s%d, s%d" % (sXO, sXO, t0))
    a("s_lshl_b32 s%d, s%d, 6" % (t0, sQ))
    a("s_add_u32 s%d, s%d, s%d" % (sXO, sXO, t0))
    a("s_mov_b32 s%d, 0x%x" % (sSC, f2u(QSCALE)))
    def spin(mask, skip_if_i0=False):
        l0 = a.newlabel("F_sp"); l1 = a.newlabel("F_ok")
        if skip_if_i0:
            a("s_cmp_eq_u32 s%d, 0" % sI)
            a("s_cbranch_scc1 %s" % l1)
        a("s_mov_b32 s%d, 0x%x" % (sSP, SPIN))
        a.label(l0)
        a("v_cmp_ne_u32 vcc, 0, v%d" % V_POLL)
        a("s_and_b32 s%d, vcc_lo, 0x%x" % (t0, mask))
        a("s_cmp_eq_u32 s%d, 0x%x" % (t0, mask))
        a("s_cbranch_scc1 %s" % l1)
        a("buffer_load_dword v%d, v%d, %s, s%d offen sc1" % (V_POLL, V_PL, s4(R_WS), sFO))
        a("s_sub_u32 s%d, s%d, 1" % (sSP, sSP))
        a("s_waitcnt vmcnt(0)")
        a("s_cbranch_scc0 %s" % l0)
        a.label(l1)
    def poll_issue(tag):
        a.vmem("buffer_load_dword v%d, v%d, %s, s%d offen sc1" % (V_POLL, V_PL, s4(R_WS), sFO), tag)

    if FLN:
        while bops: issue1(bops.pop(0))
        if PW & 8: touchw(None)
        nb2 = cfg.get("f_lnb2", 3)
        b2 = [o for o in order if o[0] == "B" and o[1] < nb + nb2]
        for o in b2: order.remove(o)
        if BO == 1: b2 = [o for o in b2 if o[2] >= 3] + [o for o in b2 if o[2] < 3]
        if BO == 2: b2 = [o for o in b2 if o[2] < 3] + [o for o in b2 if o[2] >= 3]
        for _ in range(cfg.get("f_lnb2e", 0)): issue1(b2.pop(0))
        if PW & 8: a.vm += ["T", "T"]
        a.wait(vm="XS")
        stampr("lnd")
        a("s_barrier")
        lab = a.newlabel("F_ln"); l2 = a.newlabel("F_lp"); l3 = a.newlabel("F_lq"); l4 = a.newlabel("F_la")
        a("s_lshl_b32 s%d, s%d, 5" % (t0, sI))
        a("v_mov_b32 v1, s%d" % t0)
        a("s_cmp_lg_u32 s%d, 0" % sW)
        a("s_cbranch_scc1 %s" % lab)
        a("v_add_u32 v82, 1, v81")
        a("s_lshl_b64 exec, 1, s%d" % sJ)
        a("buffer_store_dword v82, v80, %s, 0 offen sc1" % s4(R_WS))
        a("s_mov_b64 exec, -1")
        a.label(lab)
        while b2: issue1(b2.pop(0))
        if PW & 16: touchw(None)
        a("s_cmp_lg_u32 s%d, 1" % sW)
        a("s_cbranch_scc1 %s" % l4)
        a("s_mov_b64 exec, 1")
        a("global_atomic_add v1, v%d, s[100:101] sc1" % V_ONE)
        a("s_mov_b64 exec, -1")
        a.label(l4)
        PALL = cfg.get("f_pall", 0)
        if not PALL:
            a("s_cmp_lg_u32 s%d, 0" % sW)
            a("s_cbranch_scc1 %s" % l3)
        else:
            a("s_lshl_b32 s%d, s%d, 3" % (t1, sW))
            a("s_lshl_b32 s%d, 0xff, s%d" % (t1, t1))
        a("s_mov_b32 s%d, 0x%x" % (sSP, SPIN))
        a.label(l2)
        a("buffer_load_dword v82, v80, %s, 0 offen sc1" % s4(R_WS))
        a("s_waitcnt vmcnt(0)")
        a("v_cmp_ne_u32 vcc, v81, v82")
        if PALL:
            a("s_and_b32 s%d, vcc_lo, s%d" % (t0, t1))
            a("s_cmp_eq_u32 s%d, s%d" % (t0, t1))
        else: a("s_cmp_eq_u32 vcc_lo, -1")
        a("s_cbranch_scc1 %s" % l3)
        a("s_sub_u32 s%d, s%d, 1" % (sSP, sSP))
        a("s_cbranch_scc1 %s" % l3)
        a("s_and_b32 s%d, s%d, 7" % (t0, sSP))
        a("s_cbranch_scc1 %s" % l2)
        a("global_load_dword v2, v1, s[100:101] sc1")
        a("s_waitcnt vmcnt(0)")
        a("v_readfirstlane_b32 s%d, v2" % t0)
        a("s_cmp_lt_u32 s%d, 32" % t0)
        a("s_cbranch_scc1 %s" % l2)
        a.label(l3)
        if not PALL: a("s_barrier")
        stampr("lnp")
        for _ in range(8): issue1(order.pop(0))
        order[:0] = bops
    gi = []
    def grp(units, s0, s1, tiles, C):
        s = s0
        while s < s1:
            c = min(C, s1 - s)
            for t in tiles:
                g0 = len(units); gn = gi[-1][2] + 1 if gi else 0
                for k in range(c):
                    units.append((s + k, t)); gi.append((g0, c, gn))
            s += c
    units = []
    grp(units, 0, C1S, range(NT), 2)
    C1E = cfg.get("f_c1e", S1)
    grp(units, C1S, C1E, range(NT), C1)
    grp(units, C1E, S1, range(NT), 2)
    grp(units, S1, KS, (2, 3, 4, 5), C1K)
    UKV = len(units)
    grp(units, S1, KS, (6, 7, 8, 9), C1T)
    UH01 = len(units)
    grp(units, S1, KS, (10, 11, 12, 0, 1), C1T)
    NU = len(units)
    last_unit_of_stage = {}
    last_unit_of_step = {}
    for u, (s, t) in enumerate(units):
        last_unit_of_stage[s // 2] = u; last_unit_of_step[s] = u
    stt = dict(ready=-1, free=set(), waited=-1, issued=-1)
    def barrier():
        a("s_barrier")
        for g, lu in last_unit_of_stage.items():
            if lu <= stt["waited"]: stt["free"].add(g)
    def can1(op):
        if op[0] == "B": return op[1] < NS or (op[1] - NS) in stt["free"]
        return op[1] < RA or last_unit_of_step[op[1] - RA] <= stt["issued"]
    def flush1(tag):
        while any(o[:2] == tag for o in order):
            op = order.pop(0)
            assert can1(op), (op, stt)
            if cfg.get("verbose"): print("late flush", op, file=sys.stderr)
            issue1(op)
    def bread1(u, j2):
        s, t = units[u]
        slot = slot1(s // 2); st_ = slot // 2
        off = (slot % 2) * STAGE + (s % 2) * 2 * REG + j2 * 256
        if t < 12: off += PAIRPOS[t // 2] * 1024; vr = V_RD + 3 * st_ + (t % 2)
        else: off += 6144; vr = V_RD + 3 * st_ + 2
        a.lds("ds_read_b64_tr_b16 %s, v%d offset:%d" % (r2("a", BR + (u % RB) * 4 + j2 * 2), vr, off), ("b", u))
    def need1(u):
        g = units[u][0] // 2
        if g > stt["ready"]:
            flush1(("B", g)); a.wait(vm=("B", g)); barrier(); stt["ready"] = g
    def pack(c0, c1, relu=False):
        ops = []
        for hh, c in enumerate((c0, c1)):
            if c is None: continue
            for e2 in range(2):
                ops.append("v_cvt_pk_bf16_f32 v%d, v%d, v%d" % (c0 + 2 * hh + e2, c + 2 * e2, c + 2 * e2 + 1))
            if relu:
                for e2 in range(2):
                    ops.append("v_pk_max_i16 v%d, v%d, 0" % (c0 + 2 * hh + e2, c0 + 2 * hh + e2))
        return ops
    HF = ["sc1", "", "nt", "sc0"][cfg.get("f_hf", 0)]
    def hstore(p, mt):
        if p < 3: a.vmem("buffer_store_dwordx4 %s, v%d, %s, s%d offen offset:%d %s" % (r4("v", acc(mt, 6 + 2 * p)), V_L16, s4(R_WS), sH + p, mt * 1024, HF), "H")
        else: a.vmem("buffer_store_dwordx2 %s, v%d, %s, s%d offen offset:%d %s" % (r2("v", acc(mt, 12)), V_L16, s4(R_WS), sH + 3, mt * 1024, HF), "H")
    need1(0)
    stampr("bar0")
    for u in range(DB):
        need1(u)
        bread1(u, 0); bread1(u, 1)
    kvq = [(acc(mt, 2), acc(mt, 3), sKV, mt * 1024, 16384 + mt * 1024) for mt in range(MT)] + \
          [(acc(2 * b, 4 + dt), acc(2 * b + 1, 4 + dt), sKV2, (2 * b + dt) * 1024, 49152 + (2 * b + dt) * 1024) for b in range(2) for dt in range(2)]
    NREST = NU - UKV
    UFLAG = UKV + cfg.get("f_uf", 28)
    UPOLL = UFLAG + cfg.get("f_up", 14)
    UCHK = min(UPOLL + cfg.get("f_uc", 8), NU - 1)
    UPW = UCHK + cfg.get("f_uw", 14)
    V2_DMA = 209; V_XO = 211; V2_RD = 232; V2_B = 231
    bias = [232, 236, 240, 244]; VONES = 248; VM = 252
    sB2 = sBQ; sBO = sBV
    class Rec:
        def __init__(self): self.l = []
        def __call__(self, x): self.l.append(x)
    su = Rec(); TT = VM
    HO = cfg.get("f_ho", 0)
    su("v_lshrrev_b32 v%d, 4, v%d" % (TT, L))
    su("v_lshlrev_b32 v%d, 11, v%d" % (V2_DMA, TT))
    su("v_lshlrev_b32 v%d, 1, v%d" % (TT, TT))
    su("v_and_b32 v%d, 15, v%d" % (TT + 1, L))
    su("v_xor_b32 v%d, v%d, v%d" % (TT, TT, TT + 1))
    su("v_lshl_add_u32 v%d, v%d, 4, v%d" % (V2_DMA, TT, V2_DMA))
    su("s_and_b32 s%d, s%d, 1" % (t1, sW))
    su("s_lshl_b32 s%d, s%d, 7" % (t1, t1))
    su("v_xor_b32 v%d, s%d, v%d" % (V2_DMA, t1, V2_DMA))
    su("v_add_u32 v%d, %d, v%d" % (V2_DMA + 1, 32768 - 1024, V2_DMA))
    su("v_lshrrev_b32 v%d, 4, v%d" % (TT, L))
    su("v_lshlrev_b32 v%d, 2, v%d" % (TT, TT))
    for e in range(4):
        su("v_add_u32 v%d, %d, v%d" % (TT + 2, e, TT))
        su("v_cmp_le_u32 s[%d:%d], v%d, v%d" % (sMK + 2 * e, sMK + 2 * e + 1, TT + 2, TT + 1))
    su("s_lshl_b32 s%d, s%d, 13" % (t2, sW))
    su("s_lshl_b32 s%d, s%d, 8" % (t1, sN))
    su("s_add_u32 s%d, s%d, s%d" % (t2, t2, t1))
    su("s_lshl_b32 s%d, s%d, 19" % (sBO, sQ))
    su("s_add_u32 s%d, s%d, s%d" % (sBO, sBO, t2))
    su("s_mul_i32 s%d, s%d, %d" % (sB0, sQ, 896 * 2048))
    su("s_add_u32 s%d, s%d, s%d" % (sB0, sB0, t2))
    su("s_add_u32 s%d, s%d, %d" % (sBE, sB0, 896 * 2048))
    su("s_mul_i32 s%d, s%d, 7" % (t1, sN))
    su("s_add_u32 s%d, s%d, s%d" % (t1, t1, sJ1))
    su("s_lshl_b32 s%d, s%d, 15" % (t1, t1))
    su("s_add_u32 s%d, s%d, s%d" % (sB2, sB0, t1))
    LIN = cfg.get("f_lin", 1)
    if LIN:
        su("s_sub_u32 s%d, s%d, %d" % (sA, sAE, 28 * 4096))
        su("s_mov_b32 s%d, s%d" % (sAE, sH))
        su("s_add_u32 s%d, s%d, %d" % (sA0, sH, 3 * 4096))
        su("s_mov_b32 s%d, s%d" % (sBW, sB0))
        su("s_mov_b32 s%d, s%d" % (sBE, sB2))
        su("s_add_u32 s%d, s%d, %d" % (sB0, sB2, 3 * 65536))
    else:
        su("s_add_u32 s%d, s%d, %d" % (sA, sH, 3 * 4096))
        su("s_sub_u32 s%d, s%d, %d" % (sA0, sAE, 28 * 4096))
    su("s_cmp_eq_u32 s%d, s%d\ns_cselect_b32 s%d, s%d, s%d" % (sA, sAE, sA, sA0, sA))
    su0 = su.l; su = Rec()
    KS2 = 36
    LOC = [(0, 1), (1, 1), (2, 1), (0, 3), (1, 3), (2, 3), (0, 5), (1, 5), (2, 5), (3, 1), (3, 3), (3, 5), (4, 1), (4, 3), (4, 5)]
    NSL = len(LOC)
    def dma2_txt(p):
        sb, so = (R_W2, sB2) if p < 28 else (R_WO, sBO)
        sl, pos = LOC[p % NSL]
        ops = [(0, "s_add_u32 m0, s%d, %d" % (sLB, sl * STAGE + pos * 1024)),
               (1, "buffer_load_dwordx4 v%d, %s, s%d offen lds" % (V2_DMA, s4(sb), so)),
               (1, "buffer_load_dwordx4 v%d, %s, s%d offen offset:1024 lds" % (V2_DMA + 1, s4(sb), so))]
        if p == 2: ops.append((0, "s_mov_b32 s%d, s%d" % (sB2, sBW)))
        elif p != 27 and p != 35: ops.append((0, "s_add_u32 s%d, s%d, 65536" % (so, so)))
        if 2 <= p < 27: ops.append((0, "s_cmp_eq_u32 s%d, s%d\ns_cselect_b32 s%d, s%d, s%d" % (sB2, sBE, sB2, sB0, sB2)))
        return ops
    def dma2_ops(p):
        return [(k, (lambda x=x: a.vmem(x, ("B2", p))) if k else (lambda x=x: a(x))) for k, x in dma2_txt(p)]
    def hole_ops(ps):
        o = []
        for p in ps:
            for k, x in dma2_txt(p):
                if k: o += [("m", lambda x=x, p=p: a.vmem(x, ("B2", p)))] + [None] * cfg.get("f_hosp", 3)
                else: o += [x] + ([None] if "m0" in x else [])
        return o
    su("s_lshl_b32 s%d, s%d, 2" % (t1, sI))
    su("s_add_u32 s%d, s%d, s%d" % (t1, t1, sW))
    for gq in range(4):
        su("s_cmp_lt_u32 s%d, %d\ns_cselect_b32 s%d, 0x%x, 0" % (t1, 4 - gq, t2, f2u(-1e30)))
        for e in range(4): su("v_mov_b32 v%d, s%d" % (bias[gq] + e, t2))
    for e in range(4): su("v_mov_b32 v%d, 0x3f803f80" % (VONES + e))
    su("v_lshrrev_b32 v%d, 2, v%d" % (TT, L))
    su("v_and_b32 v%d, 7, v%d" % (TT + 2, TT))
    su("v_and_b32 v%d, 3, v%d" % (TT, TT))
    su("v_lshlrev_b32 v%d, 8, v%d" % (TT, TT))
    su("v_lshrrev_b32 v%d, 4, v%d" % (TT + 1, L))
    su("v_mul_u32_u24 v%d, %d, v%d" % (TT + 1, REG, TT + 1))
    su("v_add_u32 v%d, v%d, v%d" % (TT, TT, TT + 1))
    su("v_and_b32 v%d, 3, v%d" % (TT + 1, L))
    su("v_lshl_add_u32 v%d, v%d, 3, v%d" % (TT, TT + 1, TT))
    su("v_lshl_add_u32 v%d, v%d, 5, v%d" % (V2_B, TT + 2, TT))
    su("s_lshl_b32 s%d, s%d, 6" % (t1, sQ))
    su("s_xor_b32 s%d, s%d, 192" % (t1, t1))
    su("v_xor_b32 v%d, s%d, v%d" % (V2_B, t1, V2_B))
    su("v_mov_b32 v%d, 0xffff" % TT)
    su("v_mov_b32 v%d, 0xffff0000" % (TT + 1))
    su("v_cndmask_b32 v%d, 0, v%d, s[%d:%d]" % (VM + 2, TT, sMK, sMK + 1))
    su("v_cndmask_b32 v%d, 0, v%d, s[%d:%d]" % (VM + 3, TT, sMK + 4, sMK + 5))
    su("v_cndmask_b32 v%d, 0, v%d, s[%d:%d]" % (TT, TT + 1, sMK + 2, sMK + 3))
    su("v_cndmask_b32 v%d, 0, v%d, s[%d:%d]" % (TT + 1, TT + 1, sMK + 6, sMK + 7))
    su("v_or_b32 v%d, v%d, v%d" % (VM + 2, VM + 2, TT))
    su("v_or_b32 v%d, v%d, v%d" % (VM + 3, VM + 3, TT + 1))
    SPF = cfg.get("f_spf", 0)
    if SPF:
        su("s_lshr_b32 s%d, s2, 3" % t1)
        su("s_lshl_b32 s%d, s%d, 1" % (t1, t1))
        su("s_and_b32 s%d, s2, 1" % t2)
        su("s_add_u32 s%d, s%d, s%d" % (t1, t1, t2))
        su("s_lshl_b32 s%d, s%d, 2" % (t1, t1))
        su("s_add_u32 s%d, s%d, s%d" % (t1, t1, sW))
        su("s_lshl_b32 s%d, s%d, 7" % (t1, t1))
        su("s_mul_i32 s%d, s%d, %d" % (t2, sQ, 14336 * 128))
        su("s_add_u32 s%d, s%d, s%d" % (t2, t2, t1))
        su("s_add_u32 s%d, s%d, s%d\ns_addc_u32 s%d, s%d, 0" % (P_W2, P_W2, t2, P_W2 + 1, P_W2 + 1))
        su("s_add_u32 s%d, s%d, %d\ns_addc_u32 s%d, s%d, 0" % (P_WQ, P_W2, 28 * 32768, P_WQ + 1, P_W2 + 1))
        su("s_lshl_b32 s%d, s%d, 19" % (t2, sQ))
        su("s_add_u32 s%d, s%d, s%d" % (t2, t2, t1))
        su("s_add_u32 s%d, s%d, s%d\ns_addc_u32 s%d, s%d, 0" % (P_WO, P_WO, t2, P_WO + 1, P_WO + 1))
    V_T128 = V_XO
    TCN = cfg.get("f_tc", 0)
    su("v_lshlrev_b32 v%d, %d, v%d" % (V_T128, 15 if TCN else 7, L))
    if TCN:
        su("s_lshr_b32 s%d, s2, 3" % t1)
        su("s_lshl_b32 s%d, s%d, 1" % (t1, t1))
        su("s_and_b32 s%d, s2, 1" % t2)
        su("s_add_u32 s%d, s%d, s%d" % (t1, t1, t2))
        su("s_lshl_b32 s%d, s%d, 2" % (t1, t1))
        su("s_add_u32 s%d, s%d, s%d" % (t1, t1, sW))
        su("s_lshl_b32 s%d, s%d, 7" % (t1, t1))
        su("s_mul_i32 s%d, s%d, %d" % (sCLS, sQ, 14336 * 128))
        su("s_add_u32 s%d, s%d, s%d" % (sCLS, sCLS, t1))
        su("s_lshl_b32 s%d, s%d, 19" % (t3, sQ))
        su("s_add_u32 s%d, s%d, s%d" % (t3, t3, t1))
    def selftouch(so, half):
        if half: a("s_mov_b32 exec_hi, 0")
        a.vmem("buffer_load_dword a%d, v%d, %s, s%d offen sc1" % (A_PD, V_T128, s4(R_WS), so), "T")
        if half: a("s_mov_b32 exec_hi, -1")
    HK = cfg.get("f_hk", 0)
    if HK:
        assert RA == 12 and D1 == 8 and BR + RB * 4 <= 232 and UPW < NU
        kreg = lambda kt: 128 + 4 * kt if kt < 16 else 232 + 4 * (kt - 16)
        VF = 0
    else:
        kreg = lambda kt: 4 * kt
        VF = 80
    def kread(kt): a.lds("ds_read_b128 %s, v%d offset:%d" % (r4("a", kreg(kt)), V_KVW, kt * 1024), ("k", kt))
    def kpw(x):
        c0, c1, so, go, lo = kvq[x]
        a.wait(vm=("KP", x))
        a.lds("ds_write_b128 v%d, %s offset:%d" % (V_KVW, r4("v", c1), lo - 16384), "kvw")
    def codepf(vreg=None):
        if vreg is None: vreg = V_PW
        lab = a.newlabel("F_pc")
        a("s_getpc_b64 s[%d:%d]" % (R_WQ, R_WQ + 1))
        a.label(lab)
        a("s_and_b32 s%d, s%d, 0xffff" % (R_WQ + 1, R_WQ + 1))
        a("s_mov_b32 s%d, CODE_END - %s" % (R_WQ + 2, lab))
        a("s_lshr_b32 s%d, s2, 3" % t0)
        a("s_lshl_b32 s%d, s%d, 2" % (t0, t0))
        a("s_add_u32 s%d, s%d, s%d" % (t0, t0, sW))
        a("s_lshl_b32 s%d, s%d, 9" % (t0, t0))
        a("s_mov_b64 exec, 15")
        a.vmem("buffer_load_dword a%d, v%d, %s, s%d offen" % (A_PD, vreg, s4(R_WQ), t0), "T")
        a("s_mov_b64 exec, -1")
    seenA = set()
    ramp = (RA - 1 - LA) / float(S1 * NT)
    WM = cfg.get("f_wm", 200) / 100.0
    W0 = cfg.get("f_w0", 100) / 100.0
    UEND = S1 * NT + cfg.get("f_uend", 8)
    wts = [0.0] + [W0 * sum(1 for o in order if (o[1] if o[0] == "B" else o[1] // 2) == g) / 15.0 for g in (1, 2, 3)] + [WM if g % 4 == 0 else 1.0 for g in range(4, 16)]
    ipos = {}
    if cfg.get("f_lw", 0) == 2:
        no = []
        for g in range(16):
            bl = [o for o in order if o[0] == "B" and o[1] == g]; al = [o for o in order if o[0] == "A" and o[1] // 2 == g]
            if len(bl) == 7: mix = [bl[0], al[0], al[1], bl[1], al[2], al[3], bl[2], al[4], bl[3], bl[4], bl[5], bl[6], al[5], al[6], al[7]]
            else: mix = bl + al
            for k, o in enumerate(mix): ipos[o] = k
            no += mix
        order[:] = no
    noB = set(g for g in range(16) if not any(o[0] == "B" and o[1] == g for o in order))
    tau = [0.0]
    for g in range(16): tau.append(tau[-1] + wts[g])
    tau = [x * UEND / tau[-1] for x in tau]
    def due(op):
        g = op[1] if op[0] == "B" else op[1] // 2
        idx = op[2] if op[0] == "B" else 7 + (op[1] % 2) * 4 + op[2]
        if cfg.get("f_wb", 0) and op[0] == "B" and op[2] > 3: idx = 3
        if g in noB: return tau[g] + (tau[g + 1] - tau[g]) * (idx - 7) / 8.0
        if cfg.get("f_lw", 0) == 1:
            lw = [64, 64, 64, 56, 36, 44, 24] + [32] * 8
            return tau[g] + (tau[g + 1] - tau[g]) * sum(lw[:idx]) / float(sum(lw))
        if cfg.get("f_lw", 0) == 2: return tau[g] + (tau[g + 1] - tau[g]) * ipos[op] / 15.0
        return tau[g] + (tau[g + 1] - tau[g]) * idx / 15.0
    DF = cfg.get("f_df", 0); PZ0 = cfg.get("f_pz0", 4)
    THR1 = cfg.get("f_thr1", 63)
    side = G.side
    def prewait1(u):
        u += gi[u][1] - 1
        s, t = units[u]
        if s not in seenA:
            flush1(("A", s)); seenA.add(s)
            r = a.wait(vm=("A", s), lg=("b", u))
        else: r = a.wait(lg=("b", u))
        stt["waited"] = u
        return r
    prewait1(0)
    for u in range(NU):
        u0, C_, gn = gi[u]; kk = u - u0
        s, t = divmod(u, NT) if u < S1 * NT else units[u]
        un = u + DB
        if un < NU: need1(un)
        if u in ((S1 - 4) * NT + 2, (S1 - 2) * NT + 2, S1 * NT + 2): barrier()
        elif cfg.get("f_xb", 0) and u < S1 * NT and u % (2 * NT) == 0 and u > 0: barrier()
        if S1 // 2 <= 12 and u == last_unit_of_stage[12] + 2: barrier()
        if pfq and u % 4 == 2 and pfq[0] - 1 <= (u + PFA) / NT + LA + ramp * (u + PFA): touch(pfq.pop(0))
        if PW & 4:
            for k in range(3):
                if u == S1 * NT + cfg.get("f_px0", 4) + k * cfg.get("f_pxd", 16): touchx(k)
        if PW == 1 and u == UKV - PW0: touchw(None)
        if PW & 3 == 2 and u < S1 * NT and t == 8 and PW0 <= s < PW0 + 8: touchw((s + 4) & 7)
        if u == 16 * NT: stampr("g1half")
        if u < S1 * NT and t == 0: stampr("g1s%d" % s)
        if u == S1 * NT: stampr("g1tail")
        if u == UKV:
            stampr("g1kv")
            if cfg.get("f_cpf", 1): codepf()
        if DF and u == 3 * NT:
            side += ["v_mov_b32 v%d, -1" % (T + e) for e in range(4)]
            side += ["s_lshl_b32 s%d, s2, 2" % t3, "s_add_u32 s%d, s%d, s%d" % (t3, t3, sW), "s_mul_i32 s%d, s%d, 12288" % (t3, t3),
                     "s_add_u32 s%d, s%d, 0x%x" % (t3, t3, WS_XC),
                     "v_xor_b32 v%d, 3, v%d" % (T + 4, L), "v_lshlrev_b32 v%d, 1, v%d" % (T + 4, T + 4), "v_xor_b32 v%d, s2, v%d" % (T + 4, T + 4),
                     "v_lshlrev_b32 v%d, 9, v%d" % (T + 4, T + 4), "v_lshl_add_u32 v%d, v%d, 2, v%d" % (T + 4, L, T + 4)]
        if DF and u < S1 * NT and t == 4 and PZ0 <= s < PZ0 + 12:
            k_ = s - PZ0
            side.append(("m", lambda k_=k_: a.vmem("buffer_store_dwordx4 %s, v%d, %s, s%d offen offset:%d sc1" % (r4("v", T), V_L16, s4(R_WS), t3, (k_ % 4) * 1024), "PZ")))
            if k_ % 4 == 3: side.append("s_add_u32 s%d, s%d, 4096" % (t3, t3))
        if DF and u == (PZ0 + 14) * NT + 5:
            assert a.vm.count("PZ") == 12
            a.wait(vm="PZ")
            a("s_lshl_b32 s%d, s%d, 7" % (t3, sW))
            a("s_add_u32 s%d, s%d, 0x%x" % (t3, t3, WS_FL))
            a("s_mov_b64 exec, 7")
            a.vmem("buffer_store_dword v%d, v%d, %s, s%d offen sc1" % (V_ONE, T + 4, s4(R_WS), t3), "RF")
            a("s_mov_b64 exec, -1")
        if FLN and u == 20 * NT + 3:
            a("v_and_b32 v%d, 7, v%d" % (V_P0, L))
            a("v_lshlrev_b32 v%d, 5, v%d" % (V_P0, V_P0))
            a.vmem("global_load_dword v%d, v%d, s[100:101] sc1" % (V_POLL, V_P0), "CN")
        if FLN and u == 22 * NT + 3:
            a.wait(vm="CN")
            l0 = a.newlabel("F_cn"); l1 = a.newlabel("F_ok")
            a("s_mov_b32 s%d, 0x%x" % (sSP, SPIN))
            a.label(l0)
            a("v_cmp_le_u32 vcc, 32, v%d" % V_POLL)
            a("s_cmp_eq_u32 vcc_lo, -1")
            a("s_cbranch_scc1 %s" % l1)
            a("global_load_dword v%d, v%d, s[100:101] sc1" % (V_POLL, V_P0))
            a("s_sub_u32 s%d, s%d, 1" % (sSP, sSP))
            a("s_waitcnt vmcnt(0)")
            a("s_cbranch_scc0 %s" % l0)
            a.label(l1)
        if u == UFLAG:
            stampr("g1flag0")
            assert a.vm.count("KV") == 8
            a.wait(vm="KV")
            stampr("g1flag1")
            a.vmem("buffer_store_dword v%d, v%d, %s, s%d offen sc1" % (V_ONE, V_FL0, s4(R_WS), sFK), "FK")
        if u == UPOLL: poll_issue("PK")
        if u == UCHK:
            a.wait(vm="PK")
            spin(1 << 3, skip_if_i0=True)
            stampr("g1chk")
            if HK:
                def kd(so, k, chk):
                    if chk: assert 12 in stt["free"]
                    a.vmem("buffer_load_dwordx4 v%d, %s, s%d offen offset:%d sc1 lds" % (V_L16, s4(R_WS), so, k * 1024), "KD")
                new_ = ["s_lshl_b32 s%d, s%d, 12\ns_add_u32 m0, s%d, %d" % (t0, sW, t0, KVB + 32768), None]
                new_ += [("m", lambda k=k: kd(sKP2, k, False)) for k in range(4)]
                new_ += ["s_sub_u32 m0, m0, 32768", None]
                new_ += [("m", lambda k=k: kd(sKP, k, True)) for k in range(4)]
                side[:0] = new_
            else:
              for x, (c0, c1, so, go, lo) in enumerate(kvq):
                def f(c1=c1, so=(sKP if x < 4 else sKP2), go=go, x=x):
                    a.vmem("buffer_load_dwordx4 %s, v%d, %s, s%d offen offset:%d sc1" % (r4("v", c1), V_L16, s4(R_WS), so, go), ("KP", x))
                side.insert(x, ("m", f))
        if HK and u == UPW:
            assert a.vm.count("KD") == 8 and a.lg.count("kvw") == 8
            a.wait(vm="KD", lg="kvw"); barrier()
            stampr("g1kb")
            side[:0] = [("v", lambda kt=kt: kread(kt)) for kt in range(20)]
        nxt = None
        if order and can1(order[0]) and len(G.sal) <= 1 and due(order[0]) <= u: nxt = order.pop(0)
        if nxt and cfg.get("verbose", 0) > 1: print("issue", u, nxt, "due %.0f" % due(nxt), file=sys.stderr)
        if PW & 32 and nxt:
            tk = cfg.get("f_tk", 0)
            key = ("B", nxt[1], tk) if tk < 7 else ("A", nxt[1], (tk - 7) % 4)
            g_ = nxt[1] if nxt[0] == "B" else nxt[1] // 2
            if nxt == key and g_ in (4, 8, 12) and (nxt[0] == "B" or nxt[1] % 2 == (tk - 7) // 4): touchp(g_ // 4 - 1)
        for mt in range(MT):
            m_, k_ = divmod(kk * MT + mt, C_)
            if cfg.get("f_kz", 1) and m_ % 2 == 1 and units[u0][0] > 0: k_ = C_ - 1 - k_
            mz = m_ if gn % 2 == 0 else MT - 1 - m_
            s_, t_ = units[u0 + k_]
            bf = r4("a", BR + ((u0 + k_) % RB) * 4)
            af = r4("a", AR + (s_ % RA) * 16 + mz * 4)
            c = r4("v", acc(mz, t_))
            src = "0" if s_ == 0 else c
            if t_ in (4, 5): a("%s %s, %s, %s, %s" % (MF, c, af, bf, src))
            else:            a("%s %s, %s, %s, %s" % (MF, c, bf, af, src))
            rd = (lambda mt=mt: bread1(un, mt)) if (mt < 2 and un < NU) else None
            if mt == 0: G.gap(fixed=rd)
            elif mt == 1:
                if nxt and nxt[0] == "B": G.gap(first=lambda: (dma1(nxt[1], nxt[2], 0), True)[1], fixed=rd)
                else: G.gap(fixed=rd)
            elif mt == 2:
                if nxt:
                    assert not G.sal
                    G.gap(first=(lambda: a.throttle(THR1)), mem=((lambda: aload1(nxt[1], nxt[2])) if nxt[0] == "A" else (lambda: dma1(nxt[1], nxt[2], 1))))
                else: G.gap()
            else:
                if kk == C_ - 1:
                    stt["issued"] = u
                    G.gap(first=(lambda: prewait1(u + 1)) if u + 1 < NU else None)
                else: G.gap()
        if u == UKV - 1:
            assert 11 in stt["free"], stt
            side += [None] * 5
            for (c0, c1, so, go, lo) in kvq:
                side += pack(c0, c1)
                def f(c0=c0, so=so, go=go):
                    a.vmem("buffer_store_dwordx4 %s, v%d, %s, s%d offen offset:%d sc1" % (r4("v", c0), V_L16, s4(R_WS), so, go), "KV")
                side.append(("m", f))
            for (c0, c1, so, go, lo) in kvq:
                def f(c0=c0, lo=lo):
                    a.lds("ds_write_b128 v%d, %s offset:%d" % (V_KVW, r4("v", c0), lo), "kvw")
                side += [("x", f), None]
            assert not order and stt.get("su0")
            side += su.l
        if u >= S1 * NT and not order and not G.sal and not stt.get("su0"):
            side += su0; stt["su0"] = True
        if HO and u == UKV + cfg.get("f_ho1", 30):
            barrier(); side[:0] = hole_ops(range(0, min(3, HO)))
        if HO > 3 and u == UKV + cfg.get("f_ho2", 56):
            assert u > UH01 and a.vm.count(("B2", 2)) == 2 and not any(isinstance(x, str) and ("s%d, s%d" % (sB2, sBE)) in x for x in side)
            barrier(); side[:0] = hole_ops(range(3, HO))
        if u == UPW and not HK:
            assert 12 in stt["free"]
            side[:0] = [y for x in range(8) for y in (("x", lambda x=x: kpw(x)), None)]
        if u == UH01 - 1:
            side += [None] * 5
            for p in range(2):
                for mt in range(MT):
                    side += pack(acc(mt, 6 + 2 * p), acc(mt, 7 + 2 * p), relu=True)
                    if p * 4 + mt < cfg.get("f_hearly", 8):
                        side.append(("m", lambda p=p, mt=mt: hstore(p, mt)))
                        side += [None] * cfg.get("f_hsp", 8)
        if u == UCHK:
            assert UCHK >= UH01
            for x in range(cfg.get("f_hearly", 8), 8):
                side += [("m", lambda x=x: hstore(x // 4, x % 4))] + [None] * cfg.get("f_hsp2", 6)
    if cfg.get("verbose"): print("G1 side left", len([x for x in side if x is not None]), file=sys.stderr)
    G.drain()
    assert not order
    assert 12 in stt["free"]
    stampr("g1end")

    va = []
    for mt in range(MT): va += pack(acc(mt, 10), acc(mt, 11), relu=True)
    if HK:
        stampr("attbeg")
        for _ in range(8): a(va.pop(0))
    else:
        if UPW >= NU:
            for x in range(8): kpw(x)
        a.wait(lg="kvw")
        a("s_barrier")
        stampr("attbeg")
        for kt in range(20):
            kread(kt)
            a(va.pop(0))
    for mt in range(MT):
        for t in (0, 1):
            for e2 in range(2):
                c = acc(mt, t) + 2 * e2
                a("v_pk_mul_f32 v[%d:%d], v[%d:%d], s[%d:%d] op_sel_hi:[1,0]" % (c, c + 1, c, c + 1, sSC, sSC + 1))
        if mt == 0:
            for x in pack(acc(mt, 0), acc(mt, 1)): a(x)
    STCH = cfg.get("f_st", 0)
    a.vm = [("H01" if t == "H" else t) for t in a.vm]
    stq = [(cfg.get("f_st0", 200), sH), (cfg.get("f_st1", 380), sH + 1)] if STCH & 1 else []
    hstore(2, 0)
    for mt in range(1, MT): va += pack(acc(mt, 0), acc(mt, 1))
    for mt in range(MT): va += pack(acc(mt, 12), None, relu=True)
    free = [acc(mt, t) for t in (2, 3, 4, 5, 7, 9) for mt in range(MT)] + [212, 216, 220] + [acc(mt, t) for t in (11, 1) for mt in range(MT)]

    C2 = cfg.get("f_c2", 2)
    C2T = cfg.get("f_c2t", 4); C2S = cfg.get("f_c2s", 5)
    CM2 = max(C2, C2T, 3)
    RA2 = cfg.get("f_ra2", 13); DB2 = cfg.get("f_db2", CM2 + 2); RB2 = DB2 + CM2
    assert DB2 >= CM2
    BR2 = RA2 * 16
    assert BR2 + RB2 * 4 <= 256
    def aslot(p): return ((p - 3 + 10) % RA2) * 16
    def aload2(p, mt):
        a.vmem("buffer_load_dwordx4 %s, v%d, %s, s%d offen offset:%d %s" % (r4("a", aslot(p) + mt * 4), V_L16, s4(R_WS), sA, mt * 1024, ["sc1", "sc1 nt", ""][cfg.get("f_af", 0)]), ("A2", p))
        if mt == MT - 1:
            if p == 27 and not LIN: G.sal.append("s_mov_b32 s%d, s%d" % (sA, sAE))
            else:
                G.sal.append("s_add_u32 s%d, s%d, 4096" % (sA, sA))
                if p <= 27: G.sal.append("s_cmp_eq_u32 s%d, s%d\ns_cselect_b32 s%d, s%d, s%d" % (sA, sAE, sA, sA0, sA))
    hst = [(2, 1), (2, 2), (2, 3)] + [(3, mt) for mt in range(MT)]
    NPRE = cfg.get("f_npre", 10)
    assert NPRE >= 3
    pre = []
    assert HO <= NPRE <= NSL
    for p in range(HO, NPRE): pre += [(p,) + op for op in dma2_ops(p)]

    S_ = {}; P_ = {}; O_ = {}
    def s_mfma(qa, kt):
        q = free.pop(0); S_[(qa, kt)] = q
        a.wait(lg=("k", kt))
        c = r4("v", bias[kt // 4]) if kt < 16 else "0"
        a("%s %s, %s, %s, %s" % (MF, r4("v", q), r4("a", kreg(kt)), r4("v", acc(qa, 0)), c))
    def pv_list(qa):
        b0 = qa // 2
        out = []
        for b in range(b0, b0 + 9):
            for z in range(3):
                def f(b=b, z=z):
                    if b == b0: O_[(qa, z)] = free.pop(0)
                    o = r4("v", O_[(qa, z)])
                    if z < 2:
                        a.wait(lg=("v", 2 * b + z)); A = r4("a", VF + (2 * b + z) * 4)
                    else: A = r4("v", VONES)
                    a("%s %s, %s, %s, %s" % (MF, o, A, r4("v", P_[(qa, b)]), "0" if b == b0 else o))
                    if z == 2: free.append(P_[(qa, b)])
                out.append(f)
        return out
    def fin_list(qa):
        o0, o1, sm = O_[(qa, 0)], O_[(qa, 1)], O_[(qa, 2)]
        ops = ["v_rcp_f32 v%d, v%d" % (sm, sm), "s_nop 0"]
        for o in (o0, o1):
            for e in range(4): ops.append("v_mul_f32 v%d, v%d, v%d" % (o + e, o + e, sm))
        ops += pack(o0, o1)
        def f():
            a.vmem("buffer_store_dwordx4 %s, v%d, %s, s%d offen offset:%d %s" % (r4("v", o0), V_L16, s4(R_WS), sO, qa * 1024, HF), "O")
            free.extend([o1, sm]); late_free.append(o0)
        ops.append(f)
        return ops
    late_free = []
    pready = set()
    def soft_list(qa):
        k0, k1 = qa, qa + 16
        ops = []
        f_, l_ = S_[(qa, k0)], S_[(qa, k1)]
        odd = qa & 1
        g_, z_ = (l_, f_) if odd else (f_, l_)
        o_ = 2 * odd
        for e in range(4):
            ops.append((1, "v_cndmask_b32 v%d, v%d, v%d, s[%d:%d]" % (g_ + e, f_ + e, l_ + e, sMK + 2 * e, sMK + 2 * e + 1)))
        quads = [S_[(qa, kt)] for kt in range(k0 + 1, k1)] + [g_]
        vals = [q + e for q in quads for e in range(4)]
        m0, m1 = VM, VM + 1
        ops.append((1, "v_max3_f32 v%d, v%d, v%d, v%d" % (m0, vals[0], vals[1], vals[2])))
        ops.append((1, "v_max3_f32 v%d, v%d, v%d, v%d" % (m1, vals[3], vals[4], vals[5])))
        ops.insert(2, (0, "SLOT")); ops.insert(5, (0, "SLOT")); ops.append((0, "SLOT"))
        for x in range(6, 62, 4):
            ops.append((1, "v_max3_f32 v%d, v%d, v%d, v%d" % (m0, m0, vals[x], vals[x + 1])))
            ops.append((1, "v_max3_f32 v%d, v%d, v%d, v%d" % (m1, m1, vals[x + 2], vals[x + 3])))
            ops.append((0, "SLOT"))
        ops.append((1, "v_max3_f32 v%d, v%d, v%d, v%d" % (m0, m0, vals[62], vals[63])))
        ops.append((1, "v_max_f32 v%d, v%d, v%d" % (m0, m0, m1)))
        ops.append((1, "v_mov_b32 v%d, v%d" % (m1, m0)))
        ops.append((0, "SLOT2"))
        ops.append((1, "v_permlane16_swap_b32 v%d, v%d" % (m0, m1)))
        ops.append((1, "v_max_f32 v%d, v%d, v%d" % (m0, m0, m1)))
        ops.append((1, "v_mov_b32 v%d, v%d" % (m1, m0)))
        ops.append((1, "v_mov_b32 v%d, 0" % (z_ + 2 - o_)))
        ops.append((1, "v_mov_b32 v%d, 0" % (z_ + 3 - o_)))
        ops.append((1, "v_permlane32_swap_b32 v%d, v%d" % (m0, m1)))
        ops.append((1, "v_max_f32 v%d, v%d, v%d" % (m0, m0, m1)))
        def subexp(q):
            r = []
            for e2 in range(2):
                r.append((1, "v_pk_add_f32 v[%d:%d], v[%d:%d], v[%d:%d] op_sel_hi:[1,0] neg_lo:[0,1] neg_hi:[0,1]" % (q + 2 * e2, q + 2 * e2 + 1, q + 2 * e2, q + 2 * e2 + 1, m0, m0 + 1)))
            for e in range(4):
                if e < 2: r.append((0, "SLOT"))
                r.append((2, "v_exp_f32 v%d, v%d" % (q + e, q + e)))
            r.append((0, "MEM"))
            return r
        ops += subexp(g_)
        ops += subexp(S_[(qa, k0 + 1)])
        cv = ["v_cvt_pk_bf16_f32 v%d, v%d, v%d" % (g_ + o_ + x, g_ + 2 * x, g_ + 2 * x + 1) for x in range(2)]
        if odd: cv.reverse()
        ops += [(1, x) for x in cv]
        for x in range(2):
            if odd: ops.append((1, "v_bfi_b32 v%d, v%d, 0, v%d" % (z_ + o_ + x, VM + 2 + x, g_ + o_ + x)))
            else:   ops.append((1, "v_and_b32 v%d, v%d, v%d" % (z_ + o_ + x, VM + 2 + x, g_ + o_ + x)))
        for x in range(2): ops.append((1, "v_xor_b32 v%d, v%d, v%d" % (g_ + o_ + x, g_ + o_ + x, z_ + o_ + x)))
        done = {k0, k0 + 1, k1}
        b0 = qa // 2
        pend_pack = None
        for b in range(b0, b0 + 9):
            for kt in (2 * b, 2 * b + 1):
                if k0 <= kt <= k1 and kt not in done:
                    ops += subexp(S_[(qa, kt)]); done.add(kt)
            if pend_pack: ops += pend_pack
            lo, hi = S_.get((qa, 2 * b)), S_.get((qa, 2 * b + 1))
            pk = []
            if lo is None or hi is None: d = z_
            elif g_ in (lo, hi):
                d = g_; ot = hi if lo == g_ else lo
                pk += [(1, "v_cvt_pk_bf16_f32 v%d, v%d, v%d" % (d + 2 - o_ + x, ot + 2 * x, ot + 2 * x + 1)) for x in range(2)]
                pk.append((0, (lambda ot=ot: free.append(ot))))
            else:
                d = lo
                pk += [(1, x) for x in pack(lo, hi)]
                pk.append((0, (lambda hi=hi: free.append(hi))))
            P_[(qa, b)] = d
            pk.append((0, (lambda b=b: pready.add((qa, b)))))
            pend_pack = pk
        ops += pend_pack
        return ops
    def run(op):
        if isinstance(op, str): a(op)
        else: op()
    vr = list(range(20))
    def vread():
        f = vr.pop(0)
        a.lds("ds_read_b128 %s, v%d offset:%d" % (r4("a", VF + 4 * f), V_KVW, 32768 + f * 1024), ("v", f))
    for kt in range(17):
        s_mfma(0, kt)
        vread(); a(va.pop(0))
    while vr:
        vread(); a(va.pop(0))
    hstore(*hst.pop(0))
    while va: a(va.pop(0))
    HGAP = cfg.get("f_hgap", 30); PGAP = cfg.get("f_pgap", 28)
    HFL = cfg.get("f_hfl", 500)
    HPO = cfg.get("f_hpo", 900)
    HCK = cfg.get("f_hck", 2000)
    hok = False
    ordA = [("A2", p, mt) for p in range(3, KS2) for mt in range(MT)]
    napre = cfg.get("f_apre", 16)
    pv3 = pv_list(3); pv3b = [1 + x // 3 for x in range(27)]
    tq = [(cfg.get("f_tb0", 200) + k * cfg.get("f_tbd", 150), k) for k in range(cfg.get("f_tbn", 0))]
    tcq = []
    if TCN:
        k0 = cfg.get("f_tck", 6); nr = cfg.get("f_tcr", 2)
        ed = [k0 + (56 - k0) * x // nr for x in range(nr + 1)]
        rr = [(ed[x], ed[x + 1]) for x in range(nr)] + [(56, 72)]
        tcq = [(cfg.get("f_tc0", 540) + x * cfg.get("f_tcd", 130), lo_, hi_) for x, (lo_, hi_) in enumerate(rr)]
    sq = []
    if SPF:
        for k in range(cfg.get("f_spf0", 6), 56): sq.append("s_load_dword s%d, s[%d:%d], 0x%x" % (t3, (P_W2 if k < 28 else P_WQ), (P_W2 if k < 28 else P_WQ) + 1, (k % 28) * 32768))
        for k in range(16): sq.append("s_load_dword s%d, s[%d:%d], 0x%x" % (t3, P_WO, P_WO + 1, k * 32768))
    next_s = 0; SGAP = cfg.get("f_sgap", 8)
    kvbar = False; hflag = False; hpoll = False
    cost_total = 0; next_h = HGAP; next_p = 0
    for qa in range(4):
        stampr("att%d" % qa)
        ops = soft_list(qa)
        tot = sum(c for c, _ in ops)
        pv = pv_list(qa - 1) if qa > 0 else []
        fin = None
        sm = [(qa + 1, kt) for kt in range(qa + 1, qa + 18)] if qa < 3 else []
        c = 0
        pv_done_at = None
        for (cost, op) in ops:
            if op == "SLOT2":
                if pv:
                    pv.pop(0)(); a("s_nop 0")
                    if not pv: pv_done_at = c
                else: a("s_nop 1")
                continue
            if op == "SLOT":
                did = False
                if pv:
                    pv.pop(0)(); did = True
                    if not pv: pv_done_at = c
                elif sm and len(free) > 0 and c >= tot * 0.2:
                    s_mfma(*sm.pop(0)); did = True
                elif qa == 3 and pv3 and (3, pv3b[0]) in pready:
                    pv3.pop(0)(); pv3b.pop(0); did = True
                if did and G.sal:
                    a(G.sal.pop(0)); continue
                if did and pre and pre[0][1] == 0 and (kvbar or (pre[0][0] < 9 and not HK)): pre.pop(0)[2]()
                elif sq and kvbar and cost_total >= next_s and (did or cost_total >= next_s + SGAP):
                    a(sq.pop(0)); next_s = cost_total + SGAP
                    if not sq and cfg.get("verbose"): print("scalar prefetch done at", cost_total, file=sys.stderr)
                continue
            if op == "MEM":
                if qa > 0 and fin is None and pv_done_at is not None and c >= pv_done_at + 18:
                    fin = fin_list(qa - 1)
                    for x in fin: run(x)
                elif hst and cost_total >= next_h:
                    hstore(*hst.pop(0)); next_h = cost_total + HGAP
                elif stq and cost_total >= stq[0][0]:
                    a.wait(vm="H01"); selftouch(stq.pop(0)[1], True)
                elif tcq and cost_total >= tcq[0][0]:
                    _, lo_, hi_ = tcq.pop(0)
                    if lo_ < 56:
                        m_ = ((1 << hi_) - 1) ^ ((1 << lo_) - 1)
                        a("s_mov_b32 exec_lo, 0x%x" % (m_ & 0xffffffff))
                        a("s_mov_b32 exec_hi, 0x%x" % (m_ >> 32))
                        a.vmem("buffer_load_dword a%d, v%d, %s, s%d offen" % (A_PD, V_T128, s4(R_W2), sCLS), "T")
                    else:
                        a("s_mov_b64 exec, 0xffff")
                        a.vmem("buffer_load_dword a%d, v%d, %s, s%d offen" % (A_PD, V_T128, s4(R_WO), t3), "T")
                    a("s_mov_b64 exec, -1")
                elif not hst and tq and cost_total >= tq[0][0]:
                    k_ = tq.pop(0)[1]
                    a("s_lshr_b32 s%d, s2, 3" % t0)
                    a("s_lshl_b32 s%d, s%d, 2" % (t0, t0))
                    a("s_add_u32 s%d, s%d, s%d" % (t0, t0, sW))
                    if k_ < 4:
                        a("s_mul_i32 s%d, s%d, 3584" % (t0, t0))
                        a("s_mul_i32 s%d, s%d, %d" % (t1, sQ, 896 * 2048))
                        a("s_add_u32 s%d, s%d, s%d" % (t0, t0, t1))
                        if k_: a("s_add_u32 s%d, s%d, %d" % (t0, t0, k_ * 224 * 2048))
                        a("s_mov_b64 exec, 0xfffffff")
                        a.vmem("buffer_load_dword a%d, v%d, %s, s%d offen" % (A_PD, V_T128, s4(R_W2), t0), "T")
                    else:
                        a("s_lshl_b32 s%d, s%d, 12" % (t0, t0))
                        a("s_lshl_b32 s%d, s%d, 19" % (t1, sQ))
                        a("s_add_u32 s%d, s%d, s%d" % (t0, t0, t1))
                        a("s_mov_b32 exec_hi, 0")
                        a.vmem("buffer_load_dword a%d, v%d, %s, s%d offen" % (A_PD, V_T128, s4(R_WO), t0), "T")
                    a("s_mov_b64 exec, -1")
                elif not hst and not hflag and cost_total >= HFL:
                    a.wait(vm="H")
                    a.vmem("buffer_store_dword v%d, v%d, %s, 0 offen offset:32 sc1" % (V_ONE, V_FG, s4(R_WS)), "FH")
                    hflag = True
                    if STCH & 2: selftouch(sH + 2, True)
                elif hflag and not hpoll and cost_total >= HPO:
                    if cfg.get("f_cpf2", 1): codepf(V_T128)
                    poll_issue("PH"); hpoll = True
                elif hpoll and not hok and cost_total >= HCK:
                    a.wait(vm="PH"); spin(0xff00); hok = True
                    stampr("g2h")
                elif hok and napre > 0:
                    G.drain_sal()
                    op_ = ordA.pop(0); aload2(op_[1], op_[2]); napre -= 1
                elif pre and pre[0][1] == 1 and cost_total >= next_p:
                    pre.pop(0)[2](); next_p = cost_total + PGAP
                    if cfg.get("f_p2", 0) and pre and pre[0][1] == 1: pre.pop(0)[2]()
                continue
            run(op); c += cost; cost_total += cost
            if qa == 0 and not kvbar and c >= 30:
                a.wait(lg=("v", 19)); a("s_barrier"); kvbar = True
        assert not pv and (qa == 0 or fin)
        free.extend(late_free); del late_free[:]
        if sm and cfg.get("verbose"): print("late S mfmas", qa, len(sm), file=sys.stderr)
        late = bool(sm)
        while sm: s_mfma(*sm.pop(0))
        if late: a("s_nop 7")
    if cfg.get("verbose"): print("attention cost", cost_total, "pre left", len(pre), file=sys.stderr)
    stampr("att4")
    assert not hst and hflag and hpoll and not sq and not tcq
    if not hok: napre = 0
    while pre:
        pre.pop(0)[2](); a("s_nop 0")
    G.drain_sal()
    assert napre <= 4 * (RA2 - 10) and not (HK and hok)
    a("v_mov_b32 v%d, v%d" % (V2_RD, V2_B))
    a("v_xor_b32 v%d, 32, v%d" % (V2_RD + 1, V2_B))
    xr = ["v_xor_b32 v%d, %d, v%d" % (V2_RD + t, t * 32, V2_B) for t in range(2, 8)]
    xr += ["v_add_u32 v%d, %d, v%d" % (V2_RD + 8 + t, 2 * STAGE, V2_RD + t) for t in range(8)]
    if cfg.get("verbose"): print("pv3 left", len(pv3), "apre left", napre, file=sys.stderr)
    for f in pv3:
        f()
        if napre > 0:
            op_ = ordA.pop(0); aload2(op_[1], op_[2]); napre -= 1; G.drain_sal()
        else:
            for _ in range(2):
                if xr: a(xr.pop(0))
    while xr: a(xr.pop(0))
    stampr("attend")

    NT2 = 8
    DL = cfg.get("f_dl", 8); S2 = KS2 - DL
    assert RA2 >= DL
    own = set(acc(mt, 6 + 2 * p) for p in range(3) for mt in range(MT))
    busy = own | set(O_[(3, z)] for z in range(3)) | {208}
    q2 = [q for q in range(0, 224, 4) if q not in busy]
    acc2 = {}
    for t in range(NT2):
        for mt in range(MT): acc2[(mt, t)] = q2.pop(0)
    VX = [q2.pop(0) for _ in range(4)]
    TT = q2.pop(0); V_XI = TT + 2
    R_X = R_WQ; R_OUT = R_W1
    rec = Rec()
    rec.l += [None] * 5 + [x if isinstance(x, str) else ("m", x) for x in fin_list(3)]
    for t in range(8): rec("v_add_u32 v%d, %d, v%d" % (V2_RD + 16 + t, 4 * STAGE, V2_RD + t))
    srd(rec, R_X, P_X, S * D * 2)
    srd(rec, R_OUT, P_OUT, S * D * 2)
    rec2 = Rec()
    rec2("v_and_b32 v%d, 15, v%d" % (TT, L))
    rec2("v_lshlrev_b32 v%d, 11, v%d" % (V_XO, TT))
    rec2("v_lshrrev_b32 v%d, 4, v%d" % (TT, L))
    rec2("v_lshl_add_u32 v%d, v%d, 3, v%d" % (V_XI, TT, V_XO))
    rec2("v_bfe_u32 v%d, v%d, 4, 1" % (TT, L))
    rec2("v_lshl_add_u32 v%d, v%d, 5, v%d" % (V_XO, TT, V_XO))
    rec2("v_lshrrev_b32 v%d, 5, v%d" % (TT, L))
    rec2("v_lshl_add_u32 v%d, v%d, 4, v%d" % (V_XO, TT, V_XO))
    CO = cfg.get("f_co", 1)
    if CO:
        V_OW = V_KVW; V_OR = V2_B
        rec2("s_mul_i32 s%d, s%d, 5120" % (t1, sW))
        rec2("s_add_u32 s%d, s%d, %d" % (t1, t1, 5 * STAGE))
        rec2("v_and_b32 v%d, 15, v%d" % (TT, L))
        rec2("v_mul_u32_u24 v%d, 80, v%d" % (V_OW, TT))
        rec2("v_lshrrev_b32 v%d, 4, v%d" % (TT, L))
        rec2("v_lshl_add_u32 v%d, v%d, 3, v%d" % (V_OW, TT, V_OW))
        rec2("v_add_u32 v%d, s%d, v%d" % (V_OW, t1, V_OW))
        rec2("v_lshrrev_b32 v%d, 2, v%d" % (TT, L))
        rec2("v_mul_u32_u24 v%d, 80, v%d" % (V_OR, TT))
        rec2("v_lshlrev_b32 v%d, 11, v%d" % (V_XO, TT))
        rec2("v_and_b32 v%d, 3, v%d" % (TT, L))
        rec2("v_lshl_add_u32 v%d, v%d, 4, v%d" % (V_OR, TT, V_OR))
        rec2("v_add_u32 v%d, s%d, v%d" % (V_OR, t1, V_OR))
        rec2("v_lshl_add_u32 v%d, v%d, 4, v%d" % (V_XO, TT, V_XO))
    XD = cfg.get("f_xd", 1) and CO
    if XD:
        assert "f_ux" not in cfg
        rec2("v_and_b32 v%d, 15, v%d" % (TT, L))
        rec2("v_lshlrev_b32 v%d, 6, v%d" % (V_XI, TT))
        rec2("v_lshrrev_b32 v%d, 4, v%d" % (TT, L))
        rec2("v_lshl_add_u32 v%d, v%d, 3, v%d" % (V_XI, TT, V_XI))
        rec2("v_add_u32 v%d, s%d, v%d" % (V_XI, t1, V_XI))
    sSX = [sKV, sKV2, sKP]; sSF = [sKP2, sFK, sH]; sRX = sH + 1
    for lam in range(3):
        rec("s_xor_b32 s%d, s2, %d" % (t1, (lam ^ 3) << 1))
        rec("s_lshl_b32 s%d, s%d, 2" % (t1, t1))
        rec("s_add_u32 s%d, s%d, s%d" % (t1, t1, sW))
        rec("s_mul_i32 s%d, s%d, 12288" % (sSX[lam], t1))
        rec("s_add_u32 s%d, s%d, 0x%x" % (sSX[lam], sSX[lam], WS_XC + lam * 4096))
        rec("s_lshl_b32 s%d, s%d, 7" % (sSF[lam], t1))
        rec("s_add_u32 s%d, s%d, 0x%x" % (sSF[lam], sSF[lam], WS_FL + lam * 4))
    rec("s_lshl_b32 s%d, s2, 2" % t1)
    rec("s_add_u32 s%d, s%d, s%d" % (t1, t1, sW))
    rec("s_mul_i32 s%d, s%d, 12288" % (sRX, t1))
    rec("s_add_u32 s%d, s%d, 0x%x" % (sRX, sRX, WS_XC))
    if DF:
        for lam in range(3): rec("s_add_u32 s%d, s%d, %d" % (sSF[lam], sRX, lam * 4096))
    side = G.side
    side += rec.l

    units = []; del gi[:]
    grp(units, 0, 3, range(NT2), 3)
    grp(units, 3, C2S, range(NT2), 2)
    DLO = cfg.get("f_dlo", 11); S2O = KS2 - DLO
    assert DL <= DLO <= RA2
    grp(units, C2S, S2O, range(NT2), C2)
    grp(units, S2O, S2, range(6), C2)
    UT = len(units)
    for lam in range(4): grp(units, S2 if lam < 3 else S2O, KS2, (2 * lam, 2 * lam + 1), C2T if lam else min(C2T, cfg.get("f_c2t0", 4)))
    NU = len(units)
    PL = 2 * DL
    last_unit = {}
    for u, (p, t) in enumerate(units): last_unit[p] = u
    stt = dict(ready=-1, free=set(), waited=-1, issued=-1, ook=False, hok=hok)
    ordB = [("B2", p) for p in range(NPRE, KS2)]
    def barrier2():
        a("s_barrier")
        for p, lu in last_unit.items():
            if lu <= stt["waited"]: stt["free"].add(p)
    def can2(op):
        if op[0] == "B2": return op[1] < NSL or (op[1] - NSL) in stt["free"]
        if not stt["hok"] or (op[1] >= 28 and not stt["ook"]): return False
        return op[1] - 3 < RA2 or last_unit[op[1] - RA2] <= stt["issued"]
    def issue2(op):
        if cfg.get("verbose"): print("late flush2", op, file=sys.stderr)
        G.drain_sal()
        if op[0] == "A2": aload2(op[1], op[2])
        else:
            for x in dma2_ops(op[1]): x[1](); a("s_nop 0")
        G.drain_sal()
    def flush2(q, tag):
        while any(o[:2] == tag for o in q):
            op = q.pop(0); assert can2(op), (op, stt); issue2(op)
    def bread2(u, j2):
        p, t = units[u]
        sl, pos = LOC[p % NSL]
        a.lds("ds_read_b64_tr_b16 %s, v%d offset:%d" % (r2("a", BR2 + (u % RB2) * 4 + j2 * 2), V2_RD + 8 * (sl // 2) + t, (sl % 2) * STAGE + (pos + j2) * 1024), ("b2", u))
    def need2(u):
        p = units[u][0]
        if p > stt["ready"]:
            flush2(ordB, ("B2", p))
            grp = cfg.get("f_bgrp", 4)
            top = max(x for x in range(p, min(p + grp, KS2)) if not any(o[1] == x for o in ordB))
            if p == 0: top = min(NPRE - 1, cfg.get("f_top0", 5))
            elif p < NPRE: top = NPRE - 1
            a.wait(vm=("B2", top)); barrier2(); stt["ready"] = top
    need2(0)
    for u in range(DB2):
        bread2(u, 0); bread2(u, 1)
    stampr("g2beg")
    UOF = cfg.get("f_uof", 26)
    UOP = cfg.get("f_uop", 80); UOC = UOP + 12
    seenA = {0, 1, 2}
    xdone = False
    rq = sorted(own)
    def flag(lam):
        a.wait(vm=("S", lam))
        a.vmem("buffer_store_dword v%d, v%d, %s, s%d offen sc1" % (V_ONE, V_FL0, s4(R_WS), sSF[lam]), ("F", lam))
    def recv(lam, mt):
        a.vmem("buffer_load_dwordx4 %s, v%d, %s, s%d offen offset:%d sc1" % (r4("v", rq[4 * lam + mt]), V_L16, s4(R_WS), sRX, mt * 1024), ("R", lam, mt))
        if mt == 3 and lam < 2: a("s_add_u32 s%d, s%d, 4096" % (sRX, sRX))
    PS = lambda mt, hh: acc2[(mt, hh)]
    def addpk(dst, src, first=False):
        ops = []
        for hh in range(2):
            for e2 in range(2):
                pp = src + 2 * hh + e2; c = dst[hh] + 2 * e2
                if first:
                    ops += ["v_lshlrev_b32 v%d, 16, v%d" % (c, pp), "v_and_b32 v%d, 0xffff0000, v%d" % (c + 1, pp)]
                else:
                    ops += ["v_lshlrev_b32 v%d, 16, v%d" % (TT, pp), "v_and_b32 v%d, 0xffff0000, v%d" % (TT + 1, pp),
                            "v_pk_add_f32 v[%d:%d], v[%d:%d], v[%d:%d]" % (c, c + 1, c, c + 1, TT, TT + 1)]
        return ops
    FD = cfg.get("f_fd", 26)
    ev = {}
    def at(u, f): ev.setdefault(u, []).append(f)
    def rtxt(lam, mt): return "buffer_load_dwordx4 %s, v%d, %s, s%d offen offset:%d sc1" % (r4("v", rq[4 * lam + mt]), V_L16, s4(R_WS), sSF[lam], mt * 1024)
    def rmax(lam):
        rg = [rq[4 * lam + mt] + e for mt in range(MT) for e in range(4)]
        o = ["v_max3_u32 v%d, v%d, v%d, v%d" % (V_POLL, rg[0], rg[1], rg[2])]
        for k in range(3, 15, 2): o.append("v_max3_u32 v%d, v%d, v%d, v%d" % (V_POLL, V_POLL, rg[k], rg[k + 1]))
        o.append("v_max_u32 v%d, v%d, v%d" % (V_POLL, V_POLL, rg[15]))
        return o
    def rcheck(lam):
        l0 = a.newlabel("F_rt"); l1 = a.newlabel("F_ok")
        a("s_mov_b32 s%d, 0x%x" % (sSP, SPIN))
        a.label(l0)
        a("v_cmp_eq_u32 vcc, -1, v%d" % V_POLL)
        a("s_cmp_eq_u64 vcc, 0")
        a("s_cbranch_scc1 %s" % l1)
        for mt in range(MT): a(rtxt(lam, mt))
        a("s_waitcnt vmcnt(0)")
        for x in rmax(lam): a(x)
        a("s_sub_u32 s%d, s%d, 1" % (sSP, sSP))
        a("s_cbranch_scc0 %s" % l0)
        a.label(l1)
    def addplain(dst, src):
        ops = []
        for hh in range(2):
            for e2 in range(2):
                pp = src + 2 * hh + e2; c = dst[hh] + 2 * e2
                ops += ["v_lshlrev_b32 v%d, 16, v%d" % (TT, pp), "v_and_b32 v%d, 0xffff0000, v%d" % (TT + 1, pp),
                        "v_add_f32 v%d, v%d, v%d" % (c, c, TT), "v_add_f32 v%d, v%d, v%d" % (c + 1, c + 1, TT + 1)]
        return ops
    if DF:
        R0U = UT + 3 * PL + cfg.get("f_r0", -6); R1U = UT + 4 * PL + cfg.get("f_r1", -5)
        at(R0U, lambda: side.extend(("m", lambda mt=mt: a.vmem(rtxt(0, mt), ("R", 0))) for mt in range(MT)))
        at(R1U, lambda: side.__setitem__(slice(0, 0), [("m", lambda mt=mt: a.vmem(rtxt(1, mt), ("R", 1))) for mt in range(MT)]))
    else:
        at(UT + PL + FD, lambda: flag(0))
        at(UT + 2 * PL + FD, lambda: flag(1))
        if cfg.get("f_fin2", 1): at(UT + 3 * PL + FD, lambda: flag(2))
        if cfg.get("f_pe", 4): at(NU - cfg.get("f_pe", 4), lambda: poll_issue("P1"))
    UP0 = UT + 3 * PL + cfg.get("f_p0", 4)
    F2 = cfg.get("f_fin2", 1)
    if not DF and not F2: at(UP0, lambda: poll_issue("P0"))
    def chk0():
        a.wait(vm="P0"); spin(1)
        for mt in range(MT): side.append(("m", lambda mt=mt: recv(0, mt)))
    if not DF and not F2: at(UP0 + cfg.get("f_c0", 8), chk0)
    def presum():
        side.append(("s", lambda: a.wait(vm="X")))
        if XD:
            for mt in range(MT):
                for hh in range(2):
                    side.append(("v", lambda mt=mt, hh=hh: a.lds("ds_read_b64 %s, v%d offset:%d" % (r2("v", VX[mt] + 2 * hh), V_XI, mt * 1024 + hh * 32), "xr")))
            side.extend([None] * 4 + [("s", lambda: a.wait(lg="xr"))])
        for mt in range(MT): side.extend(addpk([PS(mt, 0), PS(mt, 1)], VX[mt], first=True))
    at(UT + 2 * PL + PL // 2, presum)
    first_unit = {}
    for u, (p, t) in enumerate(units): first_unit.setdefault(p, u)
    NOPS = len(ordA) + 2 * len(ordB)
    UE2 = UT + cfg.get("f_ue2", 0)
    MARG = cfg.get("f_marg", 20)
    THR2 = cfg.get("f_thr2", 63)
    def prewait2(u):
        u += gi[u][1] - 1
        p, t = units[u]
        if p not in seenA:
            flush2(ordA, ("A2", p)); seenA.add(p)
            r = a.wait(vm=("A2", p), lg=("b2", u))
        else: r = a.wait(lg=("b2", u))
        stt["waited"] = u
        return r
    def b2sal(p):
        so = sB2 if p < 28 else sBO
        if p != 27 and p != 35: G.sal.append("s_add_u32 s%d, s%d, 65536" % (so, so))
        if p < 27: G.sal.append("s_cmp_eq_u32 s%d, s%d\ns_cselect_b32 s%d, s%d, s%d" % (sB2, sBE, sB2, sB0, sB2))
    prewait2(0)
    half = None
    for u in range(NU):
        u0, C_, gn = gi[u]; kk = u - u0
        p, t = divmod(u, NT2) if u < UT else units[u]
        un = u + DB2
        if u == UOF:
            a.wait(vm="O")
            a.vmem("buffer_store_dword v%d, v%d, %s, 0 offen offset:64 sc1" % (V_ONE, V_FG, s4(R_WS)), "FO")
            if STCH & 4: selftouch(sO, True)
            side.extend(rec2.l)
        if u == cfg.get("f_uh", 2) and not stt["hok"]:
            a.wait(vm="PH"); spin(0xff00); stt["hok"] = True
            stampr("g2h")
        if u < UT and t == 1: stampr("g2p%d" % p)
        if u == UT: stampr("g2tail")
        if u > UT and (u - UT) % PL == 0: stampr("g2l%d" % ((u - UT) // PL))
        if u == UOP: poll_issue("PO")
        if u == UOC:
            a.wait(vm="PO"); spin(0xff0000 | (7 if DF else 0)); stt["ook"] = True
        for f in ev.get(u, []): f()
        if un < NU and units[un][0] > stt["ready"]:
            if half is not None:
                dma2_ops(half)[2][1](); b2sal(half); half = None
            need2(un)
        if u < UT and t == 2 and p % 2 == 1 and p > 1 and p - 2 + NSL < KS2: barrier2()
        pre_ = None; mem_ = None
        if half is not None:
            def mem_(h=half): dma2_ops(h)[2][1](); b2sal(h)
            half = None
        elif len(G.sal) <= 1:
            cand = [q for q in (ordA, ordB) if q and can2(q[0])]
            if cand:
                cand.sort(key=lambda q: q[0][1] - (cfg.get("f_bprio", 5) if q[0][0] == "B2" else 0))
                done_ = NOPS - len(ordA) - 2 * len(ordB)
                if done_ * UE2 <= u * NOPS or first_unit[cand[0][0][1]] - u <= MARG + (16 if cand[0][0][0] == "B2" else 0):
                    nxt = cand[0].pop(0)
                    if nxt[0] == "B2":
                        ops_ = dma2_ops(nxt[1])
                        pre_ = lambda o=ops_: (o[0][1](), True)[1]
                        mem_ = ops_[1][1]; half = nxt[1]
                    else:
                        mem_ = lambda n_=nxt: aload2(n_[1], n_[2])
        if not xdone and (u == cfg.get("f_ux", 9999) or (not ordA and not ordB and half is None and mem_ is None)):
            xdone = True
            if XD:
                side.append("s_mul_i32 s%d, s%d, 5120" % (t1, sW))
                for mt in range(MT):
                    side += ["s_add_u32 m0, s%d, %d" % (t1, 5 * STAGE + mt * 1024), None,
                             ("m", lambda: a.vmem("buffer_load_dwordx4 v%d, %s, s%d offen lds" % (V_XO, s4(R_X), sXO), "X")),
                             "s_add_u32 s%d, s%d, %d" % (sXO, sXO, 32768 if mt < 3 else -3 * 32768)]
            for mt in range(MT if not XD else 0):
                for hh in range(2):
                    def f(mt=mt, hh=hh):
                        a.vmem("buffer_load_dwordx2 %s, v%d, %s, s%d offen offset:%d" % (r2("v", VX[mt] + 2 * hh), V_XI, s4(R_X), sXO, hh * 32), "X")
                    side += [("m", f)] + [None] * (cfg.get("f_xsp", 1) if hh else 1)
                side.append("s_add_u32 s%d, s%d, %d" % (sXO, sXO, 32768 if mt < 3 else -3 * 32768))
        for mt in range(MT):
            m_, k_ = divmod(kk * MT + mt, C_)
            if cfg.get("f_kz", 1) and m_ % 2 == 1 and units[u0][0] > 0: k_ = C_ - 1 - k_
            mz = m_ if gn % 2 == 0 else MT - 1 - m_
            p_, t_ = units[u0 + k_]
            bf = r4("a", BR2 + ((u0 + k_) % RB2) * 4)
            af = r4("v", acc(mz, 6 + 2 * p_)) if p_ < 3 else r4("a", aslot(p_) + mz * 4)
            c = r4("v", acc2[(mz, t_)])
            a("%s %s, %s, %s, %s" % (MF, c, bf, af, "0" if p_ == 0 else c))
            rd = (lambda mt=mt: bread2(un, mt)) if (mt < 2 and un < NU) else None
            if mt == 0: G.gap(fixed=rd)
            elif mt == 1: G.gap(first=pre_, fixed=rd)
            elif mt == 2:
                if mem_:
                    assert not G.sal
                    G.gap(first=(lambda: a.throttle(THR2)), mem=mem_)
                else: G.gap()
            else:
                if kk == C_ - 1:
                    stt["issued"] = u
                    G.gap(first=(lambda: prewait2(u + 1)) if u + 1 < NU else None)
                else: G.gap()
        if u >= UT and (u - UT) % PL == PL - 1:
            lam = (u - UT) // PL
            if lam < 3:
                new_ = [None] * 5
                for mt in range(MT):
                    new_ += pack(acc2[(mt, 2 * lam)], acc2[(mt, 2 * lam + 1)])
                    if DF: new_ += ["v_min_u32 v%d, -2, v%d" % (acc2[(mt, 2 * lam)] + e, acc2[(mt, 2 * lam)] + e) for e in range(4)]
                    def f(mt=mt, lam=lam):
                        a.vmem("buffer_store_dwordx4 %s, v%d, %s, s%d offen offset:%d sc1" % (r4("v", acc2[(mt, 2 * lam)]), V_L16, s4(R_WS), sSX[lam], mt * 1024), ("S", lam))
                    new_.append(("m", f))
                side[:0] = new_
    if cfg.get("verbose"): print("G2 side left", len([x for x in side if x is not None]), file=sys.stderr)
    G.drain()
    assert not ordA and not ordB and xdone
    stampr("g2end")
    def ownadd():
        for mt in range(MT):
            for hh in range(2):
                for e2 in range(2):
                    c = PS(mt, hh) + 2 * e2; o_ = acc2[(mt, 6 + hh)] + 2 * e2
                    a("v_pk_add_f32 v[%d:%d], v[%d:%d], v[%d:%d]" % (c, c + 1, c, c + 1, o_, o_ + 1))
    if DF:
        R2D = cfg.get("f_r2d", 1)
        def rd2():
            for mt in range(MT): a.vmem(rtxt(2, mt), ("R", 2, mt))
        assert a.vm.count(("R", 0)) == 4 and a.vm.count(("R", 1)) == 4
        if R2D == 0: rd2()
        a.wait(vm=("R", 0))
        for x in rmax(0): a(x)
        rcheck(0)
        for mt in range(MT):
            for x in addpk([PS(mt, 0), PS(mt, 1)], rq[mt]): a(x)
        stampr("x1")
        if R2D == 1: rd2()
        ownadd()
        a.wait(vm=("R", 1))
        for x in rmax(1): a(x)
        rcheck(1)
        stampr("x2")
        if R2D == 2: rd2()
        for mt in range(MT):
            for x in addpk([PS(mt, 0), PS(mt, 1)], rq[4 + mt]): a(x)
        stampr("x3")
        a.wait(vm=("R", 2, 3))
        for x in rmax(2): a(x)
        rcheck(2)
        stampr("x4")
    elif F2:
        for lam in range(2):
            if ("F", lam) not in a.vm: flag(lam)
        early = "P1" in a.vm
        if not early:
            a("s_nop 7")
            ownadd()
        if ("F", 2) not in a.vm: flag(2)
        if not early: poll_issue("P1")
        stampr("x1")
        a.wait(vm="P1"); spin(1)
        for mt in range(MT): recv(0, mt)
        spin(2)
        stampr("x2")
        for mt in range(MT): recv(1, mt)
        poll_issue("P2")
        if early: ownadd()
        for mt in range(MT):
            a.wait(vm=("R", 0, mt))
            for x in addpk([PS(mt, 0), PS(mt, 1)], rq[mt]): a(x)
        a.wait(vm="P2"); spin(4)
        stampr("x3")
        for mt in range(MT): recv(2, mt)
        for mt in range(MT):
            for x in addpk([PS(mt, 0), PS(mt, 1)], rq[4 + mt]): a(x)
        stampr("x4")
    else:
        flag(2)
        poll_issue("P1")
        stampr("x1")
        for mt in range(MT):
            a.wait(vm=("R", 0, mt))
            for x in addpk([PS(mt, 0), PS(mt, 1)], rq[mt]): a(x)
        a.wait(vm="P1"); spin(2)
        stampr("x2")
        for mt in range(MT): recv(1, mt)
        poll_issue("P2")
        for mt in range(MT):
            for hh in range(2):
                for e2 in range(2):
                    c = PS(mt, hh) + 2 * e2; o_ = acc2[(mt, 6 + hh)] + 2 * e2
                    a("v_pk_add_f32 v[%d:%d], v[%d:%d], v[%d:%d]" % (c, c + 1, c, c + 1, o_, o_ + 1))
        a.wait(vm="P2"); spin(4)
        stampr("x3")
        for mt in range(MT): recv(2, mt)
        for mt in range(MT):
            for x in addpk([PS(mt, 0), PS(mt, 1)], rq[4 + mt]): a(x)
        stampr("x4")
    for mt in range(MT):
        a.wait(vm=("R", 2, mt))
        for x in addpk([PS(mt, 0), PS(mt, 1)], rq[8 + mt]): a(x)
        c0 = PS(mt, 0)
        if cfg.get("eps"):
            for hh in range(2):
                for e in range(4): a("v_mul_f32 v%d, 0x%x, v%d" % (PS(mt, hh) + e, f2u(1.0 + cfg["eps"] / 10000.0), PS(mt, hh) + e))
        for x in pack(c0, PS(mt, 1)): a(x)
        def ostore(m, reg):
            a.vmem("buffer_store_dwordx4 %s, v%d, %s, s%d offen %s" % (r4("v", reg), V_XO, s4(R_OUT), sXO, ["", "sc1", "nt"][cfg.get("f_of", 2)]), "OUT")
            if m < 3: a("s_add_u32 s%d, s%d, 32768" % (sXO, sXO))
        if CO:
            a.lds("ds_write_b64 v%d, %s offset:%d" % (V_OW, r2("v", c0), mt * 1280), ("ow", mt))
            a.lds("ds_write_b64 v%d, %s offset:%d" % (V_OW, r2("v", c0 + 2), mt * 1280 + 32), ("ow", mt))
            a.lds("ds_read_b128 %s, v%d offset:%d" % (r4("v", PS(mt, 1)), V_OR, mt * 1280), ("or", mt))
            if mt > 0:
                a.wait(lg=("or", mt - 1)); ostore(mt - 1, PS(mt - 1, 1))
            if mt == 3:
                a.wait(lg=("or", 3)); ostore(3, PS(3, 1))
        else:
            a("s_nop 1")
            a("v_permlane16_swap_b32 v%d, v%d" % (c0, c0 + 2))
            a("v_permlane16_swap_b32 v%d, v%d" % (c0 + 1, c0 + 3))
            ostore(mt, c0)
    stampr("x5")
    if ST:
        a("s_waitcnt vmcnt(0)")
        stampr("end")
        a("s_waitcnt lgkmcnt(0)")
        for i in range(8): a("v_mov_b32 v%d, s%d" % (i, STB + 2 * i))
        a("s_lshl_b32 s%d, s2, 2" % t0)
        a("s_add_u32 s%d, s%d, s%d" % (t0, t0, sW))
        a("s_lshl_b32 s%d, s%d, 5" % (t0, t0))
        a("v_mov_b32 v8, 0")
        a("s_nop 4")
        a("buffer_store_dwordx4 v[0:3], v8, %s, s%d offen" % (s4(R_WS), t0))
        a("buffer_store_dwordx4 v[4:7], v8, %s, s%d offen offset:16" % (s4(R_WS), t0))
    a.label("F_end")
    a("s_endpgm")
    kernel_desc(a, name, 256, sgpr=102, accum=256, agpr=256)
    return "; @launch kernel=%s grid=(256,1,1) block=(256,1,1) lds=163840" % name

gen.gen_f = gen_f

if __name__ == "__main__":
    cfg = dict(g1_mt=4)
    out = sys.argv[1]
    kernels = sys.argv[2].split(",")
    for kv in sys.argv[3:]:
        k, v = kv.split("="); cfg[k] = int(v, 0)
    open(out, "w").write(gen.build(cfg, kernels))
```

```python
import sys, math
from asmlib import *

NAME = "parallel_sum__sliding_block__dense_activation_relu__prompt"
S, D, DFF, H = 2048, 1024, 3584, 32
WS_XN = 0x0100000
WS_Q  = 0x0500000
WS_K  = 0x0900000
WS_V  = 0x0D00000
WS_A2 = 0x1100000
A2_BYTES = 128 * 144 * 1024
WS_XC = WS_A2 + A2_BYTES
XC_BYTES = 256 * 4 * 3 * 4096
WS_FL = WS_XC + XC_BYTES
FL_BYTES = 256 * 4 * 128
WS_LF = WS_FL + FL_BYTES
WS_END = WS_LF + 8 * 4096
QSCALE = (32 ** -0.5) * math.log2(math.e)

import struct
def f2u(f): return struct.unpack("<I", struct.pack("<f", f))[0]

class Prog(Asm):
    def __init__(self):
        super().__init__()
        self.reset()
    def reset(self):
        self.vm = []; self.vm_done = 0
        self.lg = []; self.lg_done = 0
    def vmem(self, text, tag=None):
        self(text); self.vm.append(tag)
    def lds(self, text, tag=None):
        self(text); self.lg.append(tag)
    def _need(self, q, done, tag, cap):
        idx = max(i for i, t in enumerate(q) if t == tag)
        if idx < done: return None, done
        n = len(q) - idx - 1
        n = min(n, cap)
        return n, len(q) - n
    def wait(self, vm=None, lg=None):
        parts = []
        if vm is not None:
            n, self.vm_done = self._need(self.vm, self.vm_done, vm, 63)
            if n is not None: parts.append("vmcnt(%d)" % n)
        if lg is not None:
            n, self.lg_done = self._need(self.lg, self.lg_done, lg, 15)
            if n is not None: parts.append("lgkmcnt(%d)" % n)
        if parts:
            self("s_waitcnt " + " ".join(parts)); return True
        return False
    def throttle(self, n):
        if len(self.vm) - self.vm_done > n:
            self("s_waitcnt vmcnt(%d)" % n); self.vm_done = len(self.vm) - n
            return True
        return False
    def wait_all(self, vm=True, lg=True):
        parts = []
        if vm: parts.append("vmcnt(0)"); self.vm_done = len(self.vm)
        if lg: parts.append("lgkmcnt(0)"); self.lg_done = len(self.lg)
        self("s_waitcnt " + " ".join(parts))

def r4(p, b): return "%s[%d:%d]" % (p, b, b + 3)
def r2(p, b): return "%s[%d:%d]" % (p, b, b + 1)

def srd_off(a, d, base, off, nbytes):
    a("s_add_u32 s%d, s%d, 0x%x" % (d, base, off))
    a("s_addc_u32 s%d, s%d, 0" % (d + 1, base + 1))
    a("s_and_b32 s%d, s%d, 0xffff" % (d + 1, d + 1))
    a("s_mov_b32 s%d, 0x%x" % (d + 2, nbytes))
    a("s_mov_b32 s%d, 0x00020000" % (d + 3))

def stamp(a, cfg, idx, sreg):
    if cfg.get("stamp"):
        a("s_memtime s[%d:%d]" % (sreg, sreg + 1))

def ln_math(a):
    for i in range(16):
        a("v_lshlrev_b32 v%d, 16, v%d" % (24 + 2 * i, 8 + i))
        a("v_and_b32 v%d, 0xffff0000, v%d" % (25 + 2 * i, 8 + i))
    a("v_add_f32 v56, v24, v25")
    a("v_add_f32 v57, v26, v27")
    for i in range(4, 32, 2):
        a("v_add_f32 v56, v56, v%d" % (24 + i))
        a("v_add_f32 v57, v57, v%d" % (25 + i))
    a("v_add_f32 v56, v56, v57")
    def xlane_sum(r, t):
        a("s_nop 1")
        a("v_add_f32_dpp v%d, v%d, v%d row_ror:8 row_mask:0xf bank_mask:0xf" % (r, r, r))
        a("v_mov_b32 v%d, v%d" % (t, r))
        a("s_nop 1")
        a("v_permlane16_swap_b32 v%d, v%d" % (r, t))
        a("s_nop 1")
        a("v_add_f32 v%d, v%d, v%d" % (r, r, t))
        a("v_mov_b32 v%d, v%d" % (t, r))
        a("s_nop 1")
        a("v_permlane32_swap_b32 v%d, v%d" % (r, t))
        a("s_nop 1")
        a("v_add_f32 v%d, v%d, v%d" % (r, r, t))
    xlane_sum(56, 57)
    a("v_mul_f32 v56, 0x%x, v56" % f2u(1.0 / 256))
    a("v_mov_b32 v57, 0")
    a("v_mov_b32 v58, 0")
    for i in range(0, 32, 2):
        a("v_sub_f32 v59, v%d, v56" % (24 + i))
        a("v_sub_f32 v61, v%d, v56" % (25 + i))
        a("v_fmac_f32 v57, v59, v59")
        a("v_fmac_f32 v58, v61, v61")
    a("v_add_f32 v57, v57, v58")
    xlane_sum(57, 58)
    a("ds_write_b64 v7, v[56:57]")
    a("s_waitcnt lgkmcnt(0)")
    a("s_barrier")
    a("ds_read_b64 v[62:63], v60")
    a("ds_read_b64 v[64:65], v60 offset:64")
    a("ds_read_b64 v[66:67], v60 offset:128")
    a("ds_read_b64 v[68:69], v60 offset:192")
    a("s_waitcnt lgkmcnt(0)")
    a("v_add_f32 v56, v62, v64")
    a("v_add_f32 v57, v66, v68")
    a("v_add_f32 v56, v56, v57")
    a("v_mul_f32 v56, 0.25, v56") if False else a("v_mul_f32 v56, 0x3e800000, v56")
    a("v_add_f32 v57, v63, v65")
    a("v_add_f32 v58, v67, v69")
    a("v_add_f32 v57, v57, v58")
    a("v_mov_b32 v58, 0")
    for r in (62, 64, 66, 68):
        a("v_sub_f32 v59, v%d, v56" % r)
        a("v_fmac_f32 v58, v59, v59")
    a("v_mov_b32 v59, 0x43800000")
    a("v_fmac_f32 v57, v58, v59")
    a("v_mul_f32 v57, 0x%x, v57" % f2u(1.0 / 1024))
    a("v_cvt_pk_bf16_f32 v58, v56, v57")
    a("v_lshlrev_b32 v56, 16, v58")
    a("v_and_b32 v57, 0xffff0000, v58")
    a("v_add_f32 v57, 0x%x, v57" % f2u(1e-5))
    a("v_cvt_pk_bf16_f32 v57, v57, v57")
    a("v_and_b32 v57, 0xffff0000, v57")
    a("v_sqrt_f32 v57, v57")
    a("s_nop 0")
    a("v_cvt_pk_bf16_f32 v57, v57, v57")
    a("v_and_b32 v57, 0xffff0000, v57")
    a("v_rcp_f32 v57, v57")
    for i in range(0, 32, 2):
        a("v_sub_f32 v%d, v%d, v56" % (24 + i, 24 + i))
        a("v_sub_f32 v%d, v%d, v56" % (25 + i, 25 + i))
        a("v_cvt_pk_bf16_f32 v58, v%d, v%d" % (24 + i, 25 + i))
        a("v_lshlrev_b32 v59, 16, v58")
        a("v_and_b32 v58, 0xffff0000, v58")
        a("v_mul_f32 v59, v59, v57")
        a("v_mul_f32 v58, v58, v57")
        a("v_cvt_pk_bf16_f32 v%d, v59, v58" % (8 + i // 2))

def gen_ln(a, cfg):
    MT = cfg["g1_mt"]
    name = "ln_kernel"
    kernel_begin(a, name)
    a.reset()
    for r in (60, 62, 64, 66): stamp(a, cfg, 0, r)
    if cfg.get("stamp"): a("s_memrealtime s[70:71]")
    a("s_cmp_ge_u32 s2, 256")
    a("s_cbranch_scc1 LN_end")
    a("s_load_dwordx2 s[4:5], s[0:1], 0")
    a("s_load_dwordx2 s[6:7], s[0:1], 64")
    a("s_load_dwordx2 s[20:21], s[0:1], 8")
    a("s_load_dwordx2 s[22:23], s[0:1], 32")
    a("v_and_b32 v1, 63, v0")
    a("v_lshrrev_b32 v2, 6, v0")
    a("v_and_b32 v3, 7, v1")
    a("v_lshrrev_b32 v4, 3, v1")
    a("s_lshl_b32 s3, s2, 14")
    a("v_lshlrev_b32 v5, 11, v3")
    a("v_lshl_add_u32 v5, v2, 9, v5")
    a("v_lshl_add_u32 v5, v4, 4, v5")
    a("s_waitcnt lgkmcnt(0)")
    srd(a, 8, 4, S * D * 2)
    srd_off(a, 12, 6, WS_XN, S * D * 2)
    for i in range(4):
        a("buffer_load_dwordx4 %s, v5, s[8:11], s3 offen offset:%d" % (r4("v", 8 + 4 * i), i * 128))
    srd_off(a, 36, 6, WS_FL, FL_BYTES)
    a("s_lshl_b32 s16, s2, 9")
    a("v_lshlrev_b32 v70, 2, v0")
    a("v_lshrrev_b32 v71, 7, v0")
    a("v_lshl_add_u32 v70, v71, 30, v70")
    a("v_mov_b32 v71, 0")
    a("buffer_store_dword v71, v70, s[36:39], s16 offen")
    CPF = cfg.get("ln_cpf", 1)
    if CPF:
        a("s_getpc_b64 s[40:41]")
        a.label("LN_pc")
        a("s_mov_b32 s42, CODE_END - LN_pc")
        a("s_and_b32 s41, s41, 0xffff")
        a("s_mov_b32 s43, 0x00020000")
        a("s_lshr_b32 s16, s2, 3")
        a("s_lshl_b32 s16, s16, 12")
        a("v_lshlrev_b32 v70, 7, v0")
        a("v_lshrrev_b32 v71, 5, v0")
        a("v_lshl_add_u32 v70, v71, 24, v70")
        a("buffer_load_dword v76, v70, s[40:43], s16 offen")
    LPF = cfg.get("ln_pf", 2)
    if LPF:
        srd(a, 24, 20, D * 3 * D * 2)
        srd(a, 28, 22, D * DFF * 2)
        a("s_lshr_b32 s16, s2, 3")
        a("s_mul_i32 s16, s16, %d" % (4 * LPF))
        a("s_bfe_u32 s17, s2, 0x20001")
        a("s_lshl_b32 s18, s17, 9")
        a("s_mul_i32 s19, s17, 1792")
        a("v_lshrrev_b32 v70, 4, v1")
        a("v_cmp_le_u32 s[32:33], %d, v70" % LPF)
        a("v_mad_u32_u24 v70, v2, %d, v70" % LPF)
        a("v_add_u32 v70, s16, v70")
        a("v_and_b32 v71, 15, v1")
        a("v_cmp_le_u32 vcc, 12, v71")
        a("s_or_b64 s[34:35], vcc, s[32:33]")
        a("v_cmp_le_u32 vcc, 14, v71")
        a("s_or_b64 s[32:33], vcc, s[32:33]")
        a("v_mul_u32_u24 v72, 7168, v70")
        a("v_lshl_add_u32 v72, v71, 7, v72")
        a("v_mul_u32_u24 v70, 6144, v70")
        a("v_lshrrev_b32 v73, 2, v71")
        a("v_lshl_add_u32 v70, v73, 11, v70")
        a("v_and_b32 v73, 3, v71")
        a("v_lshl_add_u32 v70, v73, 7, v70")
        a("v_bfrev_b32 v73, 1")
        a("v_cndmask_b32 v70, v70, v73, s[34:35]")
        a("v_cndmask_b32 v72, v72, v73, s[32:33]")
        a("buffer_load_dword v74, v70, s[24:27], s18 offen")
        a("buffer_load_dword v75, v72, s[28:31], s19 offen")
    LW2 = cfg.get("ln_w2", 0)
    if LW2:
        a("s_load_dwordx2 s[44:45], s[0:1], 40")
        a("s_load_dwordx2 s[48:49], s[0:1], 16")
        a("v_lshlrev_b32 v77, 7, v0")
        a("v_cmp_le_u32 vcc, 224, v0")
        a("v_bfrev_b32 v73, 1")
        a("s_mul_i32 s52, s2, %d" % (224 * 128))
        a("v_cndmask_b32 v78, v77, v73, vcc")
        a("v_cmp_le_u32 vcc, 64, v0")
        a("s_lshl_b32 s53, s2, 13")
        a("s_waitcnt lgkmcnt(0)")
        a("v_cndmask_b32 v77, v77, v73, vcc")
        srd(a, 44, 44, DFF * D * 2)
        srd(a, 48, 48, D * D * 2)
        a("buffer_load_dword v79, v78, s[44:47], s52 offen")
        a("buffer_load_dword v79, v77, s[48:51], s53 offen")
    lmt = int(math.log2(MT))
    a("s_lshr_b32 s16, s2, 1")
    a("s_lshr_b32 s17, s16, %d" % lmt)
    a("s_lshl_b32 s17, s17, %d" % (15 + lmt))
    a("s_and_b32 s18, s16, %d" % (MT - 1))
    a("s_lshl_b32 s18, s18, 10")
    a("s_add_u32 s17, s17, s18")
    a("s_and_b32 s18, s2, 1")
    a("s_lshl_b32 s18, s18, 7")
    a("s_add_u32 s17, s17, s18")
    a("v_lshrrev_b32 v6, 2, v4")
    a("v_lshl_add_u32 v6, v2, 3, v6")
    a("v_lshlrev_b32 v6, %d, v6" % (10 + lmt))
    a("v_and_b32 v7, 3, v4")
    a("v_lshl_add_u32 v6, v7, 8, v6")
    a("v_lshl_add_u32 v6, v3, 4, v6")
    a("v_lshl_add_u32 v7, v2, 3, v3")
    a("v_lshlrev_b32 v7, 3, v7")
    a("v_lshlrev_b32 v60, 3, v3")
    a("s_waitcnt vmcnt(%d)" % (1 + (2 if LPF else 0) + (1 if CPF else 0) + (2 if LW2 else 0)))
    ln_math(a)
    for i in range(4):
        a("buffer_store_dwordx4 %s, v6, s[12:15], s17 offen" % r4("v", 8 + 4 * i))
        if i < 3: a("s_add_u32 s17, s17, %d" % (2 * MT * 1024))
    if cfg.get("stamp"):
        srd_off(a, 12, 6, 0, WS_END)
        a("v_readfirstlane_b32 s24, v2")
    stamp_out(a, cfg, 4, 60, 24, 12, 0x70000, 4)
    a.label("LN_end")
    a("s_endpgm")
    kernel_desc(a, name, 80, sgpr=80)
    return "; @launch kernel=%s grid=(256,1,1) block=(256,1,1) lds=256" % name

def gen_g1(a, cfg):
    name = "g1_kernel"
    NW, MT, NT = 4, 4, 13
    assert cfg["g1_mt"] == MT
    NS = cfg.get("g1_stages", 5)
    LA = cfg.get("g1_la", 6)
    RA = LA + 1
    DB = cfg.get("g1_db", 3)
    RB = DB + 2
    REG = 7168; STAGE = 4 * REG
    KS = 32
    ACC = 0
    def acc(mt, t): return ACC + (t * MT + mt) * 4
    V_L16 = 208; V_QKV = 209; V_W1 = 210; V_LEFT = 211
    V_RD = 212
    V_T = 224
    A_PD = 255
    AR = 0; BR = RA * 16
    assert BR + RB * 4 <= 256
    kernel_begin(a, name)
    a.reset()
    stamp(a, cfg, 0, 60)
    if cfg.get("stamp"): a("s_memrealtime s[70:71]")
    a("s_cmp_ge_u32 s2, 256")
    a("s_cbranch_scc1 G1_end")
    a("s_load_dwordx2 s[4:5], s[0:1], 8")
    a("s_load_dwordx2 s[6:7], s[0:1], 32")
    a("s_load_dwordx2 s[8:9], s[0:1], 64")
    a("s_load_dwordx2 s[52:53], s[0:1], 40")
    a("s_load_dwordx2 s[54:55], s[0:1], 16")
    T = V_T
    a("v_and_b32 v%d, 63, v0" % T)
    a("v_lshrrev_b32 v%d, 6, v0" % (T + 1))
    a("v_lshlrev_b32 v%d, 4, v%d" % (V_L16, T))
    a("v_readfirstlane_b32 s24, v%d" % (T + 1))
    a("s_and_b32 s25, s2, 1")
    a("s_lshl_b32 s25, s25, 2")
    a("s_bfe_u32 s26, s2, 0x20003")
    a("s_add_u32 s25, s25, s26")
    a("s_bfe_u32 s26, s2, 0x20001")
    a("s_lshl_b32 s26, s26, 3")
    a("s_lshr_b32 s27, s2, 5")
    a("s_add_u32 s26, s26, s27")
    a("s_and_b32 s27, s26, 1")
    a("v_lshrrev_b32 v%d, 2, v%d" % (T + 2, T))
    a("v_lshl_add_u32 v%d, v%d, 4, v%d" % (T + 2, T + 1, T + 2))
    a("v_lshrrev_b32 v%d, 4, v%d" % (T + 3, T))
    a("v_and_b32 v%d, 2, v%d" % (T + 3, T + 3))
    a("v_and_b32 v%d, 3, v%d" % (T + 4, T))
    a("v_xor_b32 v%d, v%d, v%d" % (T + 3, T + 3, T + 4))
    a("v_lshlrev_b32 v%d, 4, v%d" % (T + 3, T + 3))
    a("v_mul_u32_u24 v%d, 6144, v%d" % (V_QKV, T + 2))
    a("v_add_u32 v%d, v%d, v%d" % (V_QKV, V_QKV, T + 3))
    a("v_mul_u32_u24 v%d, 7168, v%d" % (V_W1, T + 2))
    a("v_add_u32 v%d, v%d, v%d" % (V_W1, V_W1, T + 3))
    a("v_bfe_u32 v%d, v%d, 3, 1" % (T + 2, T))
    a("v_lshlrev_b32 v%d, 3, v%d" % (T + 2, T + 2))
    a("v_bfe_u32 v%d, v%d, 4, 1" % (T + 3, T))
    a("v_lshl_add_u32 v%d, v%d, 2, v%d" % (T + 2, T + 3, T + 2))
    a("v_bfe_u32 v%d, v%d, 1, 2" % (T + 3, T))
    a("v_add_u32 v%d, v%d, v%d" % (T + 2, T + 2, T + 3))
    a("v_lshl_add_u32 v%d, v%d, 4, v%d" % (T + 2, T + 1, T + 2))
    a("v_mul_u32_u24 v%d, 7168, v%d" % (V_LEFT, T + 2))
    a("v_and_b32 v%d, 1, v%d" % (T + 3, T))
    a("v_lshl_add_u32 v%d, v%d, 4, v%d" % (V_LEFT, T + 3, V_LEFT))
    a("v_lshrrev_b32 v%d, 5, v%d" % (T + 3, T))
    a("v_lshl_add_u32 v%d, v%d, 30, v%d" % (V_LEFT, T + 3, V_LEFT))
    a("s_lshl_b32 s30, s26, 6")
    a("s_add_u32 s31, s30, 4096")
    a("s_mul_i32 s33, s26, 224")
    a("s_lshl_b32 s28, s27, 5")
    a("s_add_u32 s32, s33, s28")
    a("s_xor_b32 s28, s27, 1")
    a("s_mul_i32 s28, s28, 192")
    a("s_add_u32 s33, s33, s28")
    a("s_mul_i32 s34, s24, %d" % REG)
    a("s_lshl_b32 s35, s25, 2")
    a("s_add_u32 s35, s35, s24")
    a("s_lshl_b32 s35, s35, 17")
    a("s_waitcnt lgkmcnt(0)")
    srd(a, 12, 4, D * 3 * D * 2)
    srd(a, 16, 6, D * DFF * 2)
    srd_off(a, 20, 8, WS_XN, S * D * 2)
    PF = cfg.get("g1_pf", 1)
    ST0 = cfg.get("g1_pfst", 4)
    V_P0, V_P1, V_P2 = 221, 222, 223
    if PF:
        srd(a, 44, 52, DFF * D * 2)
        srd(a, 48, 54, D * D * 2)
        a("s_bfe_u32 s56, s2, 0x30003")
        a("s_lshr_b32 s57, s2, 6")
        a("s_lshl_b32 s57, s57, 3")
        a("s_and_b32 s58, s2, 7")
        a("s_add_u32 s57, s57, s58")
        a("s_lshl_b32 s57, s57, 2")
        a("s_add_u32 s57, s57, s24")
        a("v_lshlrev_b32 v%d, 7, v%d" % (T + 5, T))
        a("v_bfrev_b32 v%d, 1" % (T + 6))
        a("s_mul_i32 s58, s57, 3072")
        a("v_add_u32 v%d, s58, v%d" % (V_P0, T + 5))
        a("v_cmp_le_u32 vcc, 24, v%d" % T)
        a("s_mul_i32 s58, s57, 3584")
        a("v_add_u32 v%d, s58, v%d" % (V_P1, T + 5))
        a("v_cndmask_b32 v%d, v%d, v%d, vcc" % (V_P0, V_P0, T + 6))
        a("v_cmp_le_u32 vcc, 28, v%d" % T)
        a("s_lshl_b32 s58, s57, 13")
        a("v_add_u32 v%d, s58, v%d" % (V_P2, T + 5))
        a("v_cndmask_b32 v%d, v%d, v%d, vcc" % (V_P1, V_P1, T + 6))
    NSLOT1 = 16 - ST0
    def touch(n):
        lab = a.newlabel("G1_pf")
        a("s_cmp_lg_u32 s56, %d" % (n & 7))
        a("s_cbranch_scc1 %s" % lab)
        if n < NSLOT1:
            a("s_mov_b32 s58, %d" % ((ST0 + n) * 64 * 6144))
            a("s_mov_b32 s59, %d" % ((ST0 + n) * 64 * 7168))
            a("buffer_load_dword a%d, v%d, s[12:15], s58 offen" % (A_PD, V_P0))
            a("buffer_load_dword a%d, v%d, s[16:19], s59 offen" % (A_PD - 1, V_P1))
        else:
            m = n - NSLOT1
            a("s_mov_b32 s58, %d" % ((m if m < 7 else m - 7) << 20))
            a("buffer_load_dword a%d, v%d, s[%d:%d], s58 offen" % ((A_PD, V_P2) + ((44, 47) if m < 7 else (48, 51))))
        a.label(lab)

    def dma_ops(g):
        slot = g % NS
        ops = []
        def one(p, vreg, srdb, soff, imm):
            ops.append((["s_add_u32 m0, s34, %d" % (slot * STAGE + p * 1024 - imm + (1 << 32 if slot * STAGE + p * 1024 - imm < 0 else 0))],
                        "buffer_load_dwordx4 v%d, s[%d:%d], s%d offen offset:%d lds" % (vreg, srdb, srdb + 3, soff, imm)))
        one(0, V_QKV, 12, 30, 0)
        one(2, V_QKV, 12, 30, 2048)
        one(1, V_QKV, 12, 31, 0)
        one(3, V_W1, 16, 32, 0)
        one(4, V_W1, 16, 32, 64)
        one(5, V_W1, 16, 32, 128)
        one(6, V_LEFT, 16, 33, 0)
        post = ["s_add_u32 s30, s30, %d" % (64 * 6144), "s_add_u32 s31, s31, %d" % (64 * 6144),
                "s_add_u32 s32, s32, %d" % (64 * 7168), "s_add_u32 s33, s33, %d" % (64 * 7168)]
        return ops, post
    PAIRPOS = [0, 2, 1, 3, 4, 5]
    def a_load(s, mt):
        a.vmem("buffer_load_dwordx4 %s, v%d, s[20:23], s35 offen offset:%d" % (r4("a", AR + (s % RA) * 16 + mt * 4), V_L16, mt * 1024), ("A", s))
        if mt == MT - 1: a("s_add_u32 s35, s35, 4096")
    def emit_dma(g, k):
        ops, post = dma_ops(g)
        pre, txt = ops[k]
        for x in pre: a(x)
        a("s_nop 0")
        a.vmem(txt, ("B", g))
        if k == 6:
            for x in post: a(x)
    pend = []
    nA = 0
    for g in range(NS - 1):
        for k in range(7): pend.append(("B", g, k))
        for _ in range(2):
            if nA < LA:
                for mt in range(MT): pend.append(("A", nA, mt))
                nA += 1
    while nA < LA:
        for mt in range(MT): pend.append(("A", nA, mt))
        nA += 1
    PRO = cfg.get("g1_pro", 15)
    for _ in range(PRO):
        op = pend.pop(0)
        if op[0] == "A": a_load(op[1], op[2])
        else: emit_dma(op[1], op[2])
    a("v_lshrrev_b32 v%d, 5, v%d" % (T + 2, T))
    a("v_mul_u32_u24 v%d, %d, v%d" % (T + 2, REG, T + 2))
    a("v_and_b32 v%d, 3, v%d" % (T + 3, T))
    a("v_lshl_add_u32 v%d, v%d, 3, v%d" % (T + 2, T + 3, T + 2))
    a("v_bfe_u32 v%d, v%d, 2, 2" % (T + 3, T))
    a("v_bfe_u32 v%d, v%d, 4, 1" % (T + 4, T))
    a("v_lshl_add_u32 v%d, v%d, 6, v%d" % (V_RD, T + 3, T + 2))
    a("v_lshl_add_u32 v%d, v%d, 9, v%d" % (V_RD, T + 4, V_RD))
    a("v_lshl_add_u32 v%d, v%d, 5, v%d" % (V_RD, T + 4, V_RD))
    a("v_xor_b32 v%d, 32, v%d" % (V_RD + 1, V_RD))
    a("v_lshl_add_u32 v%d, v%d, 5, v%d" % (V_RD + 2, T + 3, T + 2))
    a("v_lshl_add_u32 v%d, v%d, 7, v%d" % (V_RD + 2, T + 4, V_RD + 2))
    for st in (1, 2):
        for x in range(3):
            a("v_add_u32 v%d, %d, v%d" % (V_RD + 3 * st + x, st * 2 * STAGE, V_RD + x))
    stamp(a, cfg, 1, 62)

    def b_read(u, j2):
        s, t = divmod(u, NT)
        g = s // 2; slot = g % NS
        st = slot // 2
        off = (slot % 2) * STAGE + (s % 2) * 2 * REG + j2 * 256
        if t < 12:
            off += PAIRPOS[t // 2] * 1024; vr = V_RD + 3 * st + (t % 2)
        else:
            off += 6144; vr = V_RD + 3 * st + 2
        a.lds("ds_read_b64_tr_b16 %s, v%d offset:%d" % (r2("a", BR + (u % RB) * 4 + j2 * 2), vr, off), ("b", u))
    def barrier_for(g):
        a.wait(vm=("B", g))
        a("s_barrier")
    NU = KS * NT
    barrier_for(0)
    stamp(a, cfg, 2, 64)
    for u in range(DB):
        b_read(u, 0); b_read(u, 1)
    for u in range(NU):
        s, t = divmod(u, NT)
        if t == 0 and s + LA < KS:
            for mt in range(MT): pend.append(("A", s + LA, mt))
        un = u + DB
        if un < NU and un % (2 * NT) == 0:
            g = un // (2 * NT)
            barrier_for(g)
            if g + NS - 2 < KS // 2:
                for k in range(7): pend.append(("B", g + NS - 2, k))
        if PF and t == 5 and s < NSLOT1 + 9: touch(s)
        a.wait(vm=("A", s) if t == 0 else None, lg=("b", u))
        bf = r4("a", BR + (u % RB) * 4)
        nxt = pend.pop(0) if (pend and (u % 2 == 0 or len(pend) > 6)) else None
        for mt in range(MT):
            mz = mt if t % 2 == 0 else MT - 1 - mt
            af = r4("a", AR + (s % RA) * 16 + mz * 4)
            c = r4("v", acc(mz, t))
            src = "0" if s == 0 else c
            if t in (4, 5): a("v_mfma_f32_16x16x32_bf16 %s, %s, %s, %s" % (c, af, bf, src))
            else:           a("v_mfma_f32_16x16x32_bf16 %s, %s, %s, %s" % (c, bf, af, src))
            if mt < 2 and un < NU: b_read(un, mt)
            if mt == 2 and nxt and nxt[0] == "B":
                ops, post = dma_ops(nxt[1])
                for x in ops[nxt[2]][0]: a(x)
            if mt == 3 and nxt:
                if nxt[0] == "A": a_load(nxt[1], nxt[2])
                else:
                    ops, post = dma_ops(nxt[1])
                    a.vmem(ops[nxt[2]][1], ("B", nxt[1]))
                    if nxt[2] == 6:
                        for x in post: a(x)
    assert not pend
    stamp(a, cfg, 3, 66)
    srd_off(a, 12, 8, 0, WS_END)
    a("s_lshl_b32 s36, s26, 7")
    a("s_lshl_b32 s37, s25, 4")
    a("s_add_u32 s36, s36, s37")
    a("s_lshl_b32 s37, s24, 2")
    a("s_add_u32 s36, s36, s37")
    a("s_lshl_b32 s36, s36, 10")
    a("s_add_u32 s37, s36, 0x%x" % WS_K)
    a("s_add_u32 s38, s36, 0x%x" % WS_V)
    a("s_add_u32 s36, s36, 0x%x" % WS_Q)
    a("s_lshl_b32 s39, s25, 2")
    a("s_add_u32 s39, s39, s24")
    a("s_mul_i32 s39, s39, %d" % (144 * 4096))
    a("s_add_u32 s39, s39, 0x%x" % WS_A2)
    a("s_mul_i32 s40, s26, 7")
    a("s_add_u32 s41, s40, s27")
    a("s_lshl_b32 s41, s41, 11")
    a("s_add_u32 s41, s41, s39")
    a("s_lshr_b32 s40, s26, 3")
    a("s_lshl_b32 s40, s40, 15")
    a("s_add_u32 s41, s41, s40")
    a("s_add_u32 s42, s41, 4096")
    a("s_add_u32 s43, s41, 8192")
    a("s_mul_i32 s44, s27, %d" % (-4096 + 8 - 3 * 4096))
    a("s_add_u32 s44, s44, %d" % (3 * 4096))
    a("s_add_u32 s44, s44, s41")
    a("s_mov_b32 s47, 0x%x" % f2u(QSCALE))
    a("s_nop 7")
    tmp = [V_T + 4 * i for i in range(8)]
    ti = [0]
    def pack_store(src0, src1, soff, imm, relu=False, scale=False):
        tr = tmp[ti[0] % 8]; ti[0] += 1
        for hh, sr in enumerate((src0, src1)):
            if sr is None: continue
            if scale:
                for e in range(4): a("v_mul_f32 v%d, s47, v%d" % (sr + e, sr + e))
            a("v_cvt_pk_bf16_f32 v%d, v%d, v%d" % (tr + 2 * hh, sr, sr + 1))
            a("v_cvt_pk_bf16_f32 v%d, v%d, v%d" % (tr + 2 * hh + 1, sr + 2, sr + 3))
            if relu:
                a("v_pk_max_i16 v%d, v%d, 0" % (tr + 2 * hh, tr + 2 * hh))
                a("v_pk_max_i16 v%d, v%d, 0" % (tr + 2 * hh + 1, tr + 2 * hh + 1))
        if src1 is None:
            a.vmem("buffer_store_dwordx2 %s, v%d, s[12:15], s%d offen offset:%d" % (r2("v", tr), V_L16, soff, imm))
        else:
            a.vmem("buffer_store_dwordx4 %s, v%d, s[12:15], s%d offen offset:%d" % (r4("v", tr), V_L16, soff, imm))
    for mt in range(MT): pack_store(acc(mt, 0), acc(mt, 1), 36, mt * 1024, scale=True)
    for mt in range(MT): pack_store(acc(mt, 2), acc(mt, 3), 37, mt * 1024)
    for b in range(2):
        for dt in range(2): pack_store(acc(2 * b, 4 + dt), acc(2 * b + 1, 4 + dt), 38, (b * 2 + dt) * 1024)
    for p in range(3):
        for mt in range(MT):
            pack_store(acc(mt, 6 + 2 * p), acc(mt, 7 + 2 * p), 41 + p, mt * 1024, relu=True)
    for mt in range(MT):
        pack_store(acc(mt, 12), None, 44, mt * 1024, relu=True)
    if cfg.get("stamp"):
        a("s_waitcnt vmcnt(0)")
        a("s_memtime s[68:69]")
        a("s_memrealtime s[72:73]")
        a("s_waitcnt lgkmcnt(0)")
        for i in range(4): a("s_sub_u32 s%d, s%d, s60" % (62 + 2 * i, 62 + 2 * i))
        for i in range(4): a("v_mov_b32 v%d, s%d" % (i, 62 + 2 * i))
        a("v_mov_b32 v4, s70")
        a("v_mov_b32 v5, s72")
        a("s_lshl_b32 s50, s2, 2")
        a("s_add_u32 s50, s50, s24")
        a("s_lshl_b32 s50, s50, 5")
        a("v_mov_b32 v8, 0")
        a("s_nop 4")
        a("buffer_store_dwordx4 v[0:3], v8, s[12:15], s50 offen")
        a("buffer_store_dwordx4 v[4:7], v8, s[12:15], s50 offen offset:16")
    a.label("G1_end")
    a("s_endpgm")
    kernel_desc(a, name, 256, sgpr=80, accum=256, agpr=256)
    return "; @launch kernel=%s grid=(256,1,1) block=(256,1,1) lds=%d" % (name, NS * STAGE)


def stamp_out(a, cfg, nst, s0, swave, srdb, wsoff, nw):
    if not cfg.get("stamp"): return
    a("s_waitcnt vmcnt(0)")
    a("s_memtime s[68:69]")
    a("s_memrealtime s[72:73]")
    a("s_waitcnt lgkmcnt(0)")
    for i in range(4): a("s_sub_u32 s%d, s%d, s60" % (62 + 2 * i, 62 + 2 * i))
    for i in range(4): a("v_mov_b32 v%d, s%d" % (i, 62 + 2 * i))
    a("v_mov_b32 v4, s70")
    a("v_mov_b32 v5, s72")
    a("s_mul_i32 s50, s2, %d" % nw)
    a("s_add_u32 s50, s50, s%d" % swave)
    a("s_lshl_b32 s50, s50, 5")
    a("s_add_u32 s50, s50, 0x%x" % wsoff)
    a("v_mov_b32 v8, 0")
    a("s_nop 4")
    a("buffer_store_dwordx4 v[0:3], v8, s[%d:%d], s50 offen" % (srdb, srdb + 3))
    a("buffer_store_dwordx4 v[4:7], v8, s[%d:%d], s50 offen offset:16" % (srdb, srdb + 3))

def gen_at(a, cfg):
    name = "at_kernel"
    kernel_begin(a, name)
    a.reset()
    stamp(a, cfg, 0, 60)
    if cfg.get("stamp"): a("s_memrealtime s[70:71]")
    a("s_cmp_ge_u32 s2, 256")
    a("s_cbranch_scc1 AT_end")
    a("s_load_dwordx2 s[8:9], s[0:1], 64")
    def sreg(qa, kt): return (qa * 18 + kt) * 4
    VQ = 144; VO = 152; VS = 168; VONE = 176
    V_L16 = 180; T = 181; VM = 182; VNEG = 183
    a("v_and_b32 v%d, 63, v0" % T)
    a("v_lshrrev_b32 v%d, 6, v0" % VM)
    a("v_lshlrev_b32 v%d, 4, v%d" % (V_L16, T))
    a("v_readfirstlane_b32 s24, v%d" % VM)
    a("s_and_b32 s25, s2, 1")
    a("s_lshl_b32 s25, s25, 2")
    a("s_bfe_u32 s26, s2, 0x20003")
    a("s_add_u32 s25, s25, s26")
    a("s_bfe_u32 s26, s2, 0x20001")
    a("s_lshl_b32 s26, s26, 3")
    a("s_lshr_b32 s27, s2, 5")
    a("s_add_u32 s26, s26, s27")
    a("s_lshl_b32 s27, s26, 17")
    a("s_lshl_b32 s28, s25, 14")
    a("s_lshl_b32 s29, s24, 12")
    a("s_add_u32 s28, s28, s29")
    a("s_sub_u32 s28, s28, 16384")
    a("v_add_u32 v%d, s28, v%d" % (VM, V_L16))
    a("s_lshl_b32 s30, s25, 14")
    a("s_lshl_b32 s31, s24, 11")
    a("s_add_u32 s30, s30, s31")
    a("s_waitcnt lgkmcnt(0)")
    a("s_add_u32 s4, s8, s27")
    a("s_addc_u32 s5, s9, 0")
    srd_off(a, 12, 4, WS_K, 131072)
    srd_off(a, 16, 4, WS_V, 131072)
    srd_off(a, 20, 4, WS_Q, 131072)
    a("s_mov_b32 m0, s29")
    a("s_nop 0")
    for i in range(4): a("buffer_load_dwordx4 v%d, s[12:15], 0 offen offset:%d lds" % (VM, i * 1024))
    for qa in range(2): a("buffer_load_dwordx4 %s, v%d, s[20:23], s30 offen offset:%d" % (r4("v", VQ + 4 * qa), V_L16, qa * 1024))
    a("s_add_u32 m0, s29, 32768")
    a("s_nop 0")
    for i in range(4): a("buffer_load_dwordx4 v%d, s[16:19], 0 offen offset:%d lds" % (VM, i * 1024))
    a("v_lshrrev_b32 v0, 4, v%d" % T)
    a("v_lshlrev_b32 v0, 2, v0")
    a("v_and_b32 v1, 15, v%d" % T)
    for e in range(4):
        a("v_add_u32 v2, %d, v0" % e)
        a("v_cmp_le_u32 s[%d:%d], v2, v1" % (40 + 2 * e, 41 + 2 * e))
    a("v_mov_b32 v%d, 0x%x" % (VNEG, f2u(-1e30)))
    for e in range(4): a("v_mov_b32 v%d, 0x3f803f80" % (VONE + e))
    a("v_add_u32 v%d, s31, v%d" % (T, V_L16))
    a("s_sub_u32 s32, 8, s24")
    a("s_cmp_eq_u32 s25, 0")
    a("s_cselect_b32 s32, s32, 0")
    a("s_cbranch_scc0 AT_nofill")
    for r in range(144): a("v_mov_b32 v%d, v%d" % (r, VNEG))
    a.label("AT_nofill")
    a("s_lshl_b32 s33, s25, 2")
    a("s_lshr_b32 s34, s24, 1")
    a("s_add_u32 s33, s33, s34")
    a("s_mul_i32 s33, s33, 144")
    a("s_lshr_b32 s34, s26, 3")
    a("s_mul_i32 s34, s34, 28")
    a("s_add_u32 s33, s33, s34")
    a("s_add_u32 s33, s33, s26")
    a("s_add_u32 s33, s33, 28")
    a("s_lshl_b32 s33, s33, 12")
    a("s_and_b32 s34, s24, 1")
    a("s_lshl_b32 s34, s34, 11")
    a("s_add_u32 s33, s33, s34")
    a("s_add_u32 s33, s33, 0x%x" % WS_A2)
    a("s_waitcnt vmcnt(4)")
    a("s_barrier")
    stamp(a, cfg, 1, 62)
    for kt in range(18): a("ds_read_b128 %s, v%d offset:%d" % (r4("a", 4 * kt), T, kt * 1024))
    srd_off(a, 12, 8, 0, WS_END)
    a("s_waitcnt lgkmcnt(0)")
    for b in range(9):
        if b < 8:
            a("s_cmp_gt_u32 s32, %d" % b)
            a("s_cbranch_scc1 AT_skip%d" % b)
        for kt in (2 * b, 2 * b + 1):
            for qa in range(2):
                if (qa, kt) in ((0, 17), (1, 0)): continue
                a("v_mfma_f32_16x16x32_bf16 %s, %s, %s, 0" % (r4("v", sreg(qa, kt)), r4("a", 4 * kt), r4("v", VQ + 4 * qa)))
        if b < 8: a.label("AT_skip%d" % b)
    a("s_waitcnt vmcnt(0)")
    a("s_barrier")
    for f in range(18): a("ds_read_b128 %s, v%d offset:%d" % (r4("a", 4 * f), T, 32768 + f * 1024))
    stamp(a, cfg, 2, 64)
    for qa in range(2):
        k0 = qa; k1 = 16 + qa
        for e in range(4):
            a("v_cndmask_b32 v%d, v%d, v%d, s[%d:%d]" % (sreg(qa, k0) + e, sreg(qa, k0) + e, VNEG, 40 + 2 * e, 41 + 2 * e))
            a("v_cndmask_b32 v%d, v%d, v%d, s[%d:%d]" % (sreg(qa, k1) + e, VNEG, sreg(qa, k1) + e, 40 + 2 * e, 41 + 2 * e))
        regs = [sreg(qa, kt) + e for kt in range(k0, k1 + 1) for e in range(4)]
        m0, m1 = VO, VO + 1
        a("v_max_f32 v%d, v%d, v%d" % (m0, regs[0], regs[1]))
        a("v_max_f32 v%d, v%d, v%d" % (m1, regs[2], regs[3]))
        for x in range(4, 68, 4):
            a("v_max3_f32 v%d, v%d, v%d, v%d" % (m0, m0, regs[x], regs[x + 1]))
            a("v_max3_f32 v%d, v%d, v%d, v%d" % (m1, m1, regs[x + 2], regs[x + 3]))
        a("v_max_f32 v%d, v%d, v%d" % (m0, m0, m1))
        for op in ("v_permlane16_swap_b32", "v_permlane32_swap_b32"):
            a("v_mov_b32 v%d, v%d" % (m1, m0))
            a("s_nop 1")
            a("%s v%d, v%d" % (op, m0, m1))
            a("s_nop 1")
            a("v_max_f32 v%d, v%d, v%d" % (m0, m0, m1))
        for x in regs: a("v_sub_f32 v%d, v%d, v%d" % (x, x, m0))
        for x in regs: a("v_exp_f32 v%d, v%d" % (x, x))
        a("s_nop 0")
        for b in range(9):
            d = sreg(qa, 2 * b)
            for hh in range(2):
                kt = 2 * b + hh
                if (qa, kt) in ((0, 17), (1, 0)):
                    a("v_mov_b32 v%d, 0" % (d + 2 * hh)); a("v_mov_b32 v%d, 0" % (d + 2 * hh + 1))
                else:
                    sr = sreg(qa, kt)
                    a("v_cvt_pk_bf16_f32 v%d, v%d, v%d" % (d + 2 * hh, sr, sr + 1))
                    a("v_cvt_pk_bf16_f32 v%d, v%d, v%d" % (d + 2 * hh + 1, sr + 2, sr + 3))
    a("s_waitcnt lgkmcnt(0)")
    a("s_nop 1")
    for b in range(9):
        for qa in range(2):
            p = r4("v", sreg(qa, 2 * b))
            for dt in range(2):
                o = r4("v", VO + (qa * 2 + dt) * 4)
                a("v_mfma_f32_16x16x32_bf16 %s, %s, %s, %s" % (o, r4("a", (2 * b + dt) * 4), p, "0" if b == 0 else o))
            o = r4("v", VS + qa * 4)
            a("v_mfma_f32_16x16x32_bf16 %s, %s, %s, %s" % (o, r4("v", VONE), p, "0" if b == 0 else o))
    a("s_nop 7")
    stamp(a, cfg, 3, 66)
    for qa in range(2):
        a("v_rcp_f32 v%d, v%d" % (VS + qa * 4, VS + qa * 4))
    a("s_nop 0")
    for qa in range(2):
        for x in range(8): a("v_mul_f32 v%d, v%d, v%d" % (VO + qa * 8 + x, VO + qa * 8 + x, VS + qa * 4))
        for x in range(4): a("v_cvt_pk_bf16_f32 v%d, v%d, v%d" % (qa * 4 + x, VO + qa * 8 + 2 * x, VO + qa * 8 + 2 * x + 1))
        a("buffer_store_dwordx4 %s, v%d, s[12:15], s33 offen offset:%d" % (r4("v", qa * 4), V_L16, qa * 1024))
    stamp_out(a, cfg, 4, 60, 24, 12, 0x10000, 8)
    a.label("AT_end")
    a("s_endpgm")
    kernel_desc(a, name, 184, sgpr=80, accum=184, agpr=72)
    return "; @launch kernel=%s grid=(256,1,1) block=(512,1,1) lds=65536" % name

def gen_g2(a, cfg):
    name = "g2_kernel"
    MT, NT = 4, 8
    KS = 36; NG = 18
    DL = cfg.get("g2_dl", 6)
    NS = cfg.get("g2_stages", 7)
    RA = cfg.get("g2_ra", 10)
    DB = cfg.get("g2_db", 3); RB = DB + 2
    STAGE = 16384
    S1 = KS - DL
    def acc(mt, t): return (t * MT + mt) * 4
    VX = 128
    VP = 144
    V_L16 = 192; V_DMA = 193; V_XO = 195; V_FL = 196; V_ONE = 197
    V_RD = 200
    VPK = 216
    T = 232
    AR = 0; BR = RA * 16
    assert BR + RB * 4 <= 256 and NS <= 8
    kernel_begin(a, name)
    a.reset()
    stamp(a, cfg, 0, 60)
    if cfg.get("stamp"): a("s_memrealtime s[70:71]")
    a("s_cmp_ge_u32 s2, 256")
    a("s_cbranch_scc1 G2_end")
    a("s_load_dwordx2 s[4:5], s[0:1], 40")
    a("s_load_dwordx2 s[6:7], s[0:1], 16")
    a("s_load_dwordx2 s[8:9], s[0:1], 64")
    a("s_load_dwordx2 s[10:11], s[0:1], 0")
    a("s_load_dwordx2 s[36:37], s[0:1], 48")
    a("v_and_b32 v%d, 63, v0" % T)
    a("v_lshrrev_b32 v%d, 6, v0" % (T + 1))
    a("v_lshlrev_b32 v%d, 4, v%d" % (V_L16, T))
    a("v_readfirstlane_b32 s24, v%d" % (T + 1))
    a("s_and_b32 s25, s2, 1")
    a("s_lshl_b32 s25, s25, 2")
    a("s_bfe_u32 s26, s2, 0x20003")
    a("s_add_u32 s25, s25, s26")
    a("s_bfe_u32 s26, s2, 0x20001")
    a("s_lshr_b32 s27, s2, 5")
    a("v_lshrrev_b32 v%d, 4, v%d" % (T + 2, T))
    a("v_lshlrev_b32 v%d, 11, v%d" % (V_DMA, T + 2))
    a("v_lshlrev_b32 v%d, 1, v%d" % (T + 2, T + 2))
    a("v_and_b32 v%d, 15, v%d" % (T + 3, T))
    a("v_xor_b32 v%d, v%d, v%d" % (T + 2, T + 2, T + 3))
    a("v_lshl_add_u32 v%d, v%d, 4, v%d" % (V_DMA, T + 2, V_DMA))
    a("v_xor_b32 v%d, 128, v%d" % (V_DMA + 1, V_DMA))
    a("s_lshl_b32 s31, s24, 15")
    a("s_lshl_b32 s32, s27, 8")
    a("s_add_u32 s31, s31, s32")
    a("s_mul_i32 s30, s26, %d" % (896 * 2048))
    a("s_add_u32 s30, s30, s31")
    a("s_lshl_b32 s38, s26, 19")
    a("s_add_u32 s38, s38, s31")
    a("s_lshl_b32 s34, s24, 12")
    a("s_lshl_b32 s33, s25, 2")
    a("s_add_u32 s33, s33, s24")
    a("s_mul_i32 s35, s33, 144")
    a("s_mul_i32 s39, s26, 36")
    a("s_add_u32 s35, s35, s39")
    a("s_lshl_b32 s35, s35, 12")
    a("s_lshl_b32 s39, s33, 17")
    a("s_add_u32 s39, s39, s32")
    a("s_lshl_b32 s33, s26, 6")
    a("s_add_u32 s39, s39, s33")
    a("s_waitcnt lgkmcnt(0)")
    srd(a, 12, 4, DFF * D * 2)
    srd(a, 16, 6, D * D * 2)
    srd_off(a, 20, 8, WS_A2, A2_BYTES)
    def a_load(s, mt):
        FK = cfg.get("g2_fake", 0)
        if FK & 4 and s >= RA:
            a.vmem("s_nop 0", ("A", s)); return
        a.vmem("buffer_load_dwordx4 %s, v%d, s[20:23], s35 offen offset:%d%s" % (r4("a", AR + (s % RA) * 16 + mt * 4), V_L16, mt * 1024, " sc1" if FK & 1 else ""), ("A", s))
        if mt == MT - 1: a("s_add_u32 s35, s35, %d" % (0 if FK & 1 and s >= 3 else 4096))
    def dma_pre(g, k): a("s_add_u32 m0, s34, %d" % ((g % NS) * STAGE + k * 1024))
    def dma(g, k):
        FK = cfg.get("g2_fake", 0)
        if FK & 8 and g >= NS:
            a.vmem("s_nop 0", ("B", g)); return
        sb = 12 if g < 14 else 16
        a.vmem("buffer_load_dwordx4 v%d, s[%d:%d], s30 offen%s lds" % (V_DMA + (k & 1), sb, sb + 3, " sc1" if FK & 2 else ""), ("B", g))
        if k == 3 and g == 13: a("s_mov_b32 s30, s38")
        elif FK & 2 and k == 3: a("s_add_u32 s30, s30, %d" % (-3 * 8192))
        else: a("s_add_u32 s30, s30, %d" % (8192 if k < 3 else 8192 + 48 * 2048))
    order = []
    for g in range(NG):
        for k in range(4): order.append(("B", g, k))
        for s in (2 * g, 2 * g + 1):
            for mt in range(MT): order.append(("A", s, mt))
    st = dict(bar=-1, step=-1)
    def can(op):
        if op[0] == "B": return op[1] < NS - 1 or op[1] - NS + 2 <= st["bar"]
        return op[1] - RA <= st["step"]
    PRO = cfg.get("g2_pro", 12)
    for _ in range(PRO):
        op = order.pop(0)
        if op[0] == "A": a_load(op[1], op[2])
        else:
            dma_pre(op[1], op[2]); a("s_nop 0"); dma(op[1], op[2])
    srd(a, 40, 10, S * D * 2)
    srd(a, 44, 36, S * D * 2)
    srd_off(a, 48, 8, WS_XC, XC_BYTES + FL_BYTES)
    a("v_and_b32 v%d, 15, v%d" % (T + 2, T))
    a("v_lshlrev_b32 v%d, 11, v%d" % (V_XO, T + 2))
    a("v_bfe_u32 v%d, v%d, 4, 1" % (T + 2, T))
    a("v_lshl_add_u32 v%d, v%d, 5, v%d" % (V_XO, T + 2, V_XO))
    a("v_lshrrev_b32 v%d, 5, v%d" % (T + 2, T))
    a("v_lshl_add_u32 v%d, v%d, 4, v%d" % (V_XO, T + 2, V_XO))
    a("v_lshrrev_b32 v%d, 2, v%d" % (T + 2, T))
    a("v_and_b32 v%d, 7, v%d" % (T + 4, T + 2))
    a("v_lshlrev_b32 v%d, 8, v%d" % (T + 2, T + 2))
    a("v_and_b32 v%d, 3, v%d" % (T + 3, T))
    a("v_lshl_add_u32 v%d, v%d, 3, v%d" % (T + 2, T + 3, T + 2))
    a("v_lshl_add_u32 v%d, v%d, 5, v%d" % (V_RD, T + 4, T + 2))
    a("s_xor_b32 s33, s33, 192")
    a("v_xor_b32 v%d, s33, v%d" % (V_RD, V_RD))
    for t in range(1, 8): a("v_xor_b32 v%d, %d, v%d" % (V_RD + t, t * 32, V_RD))
    for t in range(8): a("v_add_u32 v%d, 0x10000, v%d" % (V_RD + 8 + t, V_RD + t))
    for lam in range(3):
        a("s_xor_b32 s52, s2, %d" % ((lam ^ 3) << 1))
        a("s_lshl_b32 s52, s52, 2")
        a("s_add_u32 s52, s52, s24")
        a("s_mul_i32 s%d, s52, 12288" % (53 + lam))
        if lam: a("s_add_u32 s%d, s%d, %d" % (53 + lam, 53 + lam, lam * 4096))
        a("s_lshl_b32 s%d, s52, 7" % (56 + lam))
        a("s_add_u32 s%d, s%d, %d" % (56 + lam, 56 + lam, XC_BYTES + lam * 4))
    a("s_lshl_b32 s52, s2, 2")
    a("s_add_u32 s52, s52, s24")
    a("s_lshl_b32 s59, s52, 7")
    a("s_add_u32 s59, s59, %d" % XC_BYTES)
    a("s_mul_i32 s52, s52, 12288")
    a("v_cmp_ne_u32 vcc, 0, v%d" % T)
    a("v_bfrev_b32 v%d, 1" % (T + 2))
    a("v_mov_b32 v%d, 1" % V_ONE)
    a("v_cndmask_b32 v%d, 0, v%d, vcc" % (V_FL, T + 2))
    PF = cfg.get("g2_pf", 0)
    V_P = 198
    if PF:
        a("s_bfe_u32 s74, s2, 0x30003")
        a("s_lshr_b32 s75, s2, 6")
        a("s_lshl_b32 s75, s75, 2")
        a("s_add_u32 s75, s75, s24")
        a("s_and_b32 s76, s2, 1")
        a("s_lshl_b32 s76, s76, 4")
        a("s_add_u32 s76, s76, s75")
        a("s_mul_i32 s76, s76, 144")
        a("s_mul_i32 s77, s26, 36")
        a("s_add_u32 s76, s76, s77")
        a("s_lshl_b32 s76, s76, 12")
        a("s_lshl_b32 s75, s75, 12")
        a("s_mul_i32 s77, s26, %d" % (896 * 2048))
        a("s_add_u32 s77, s77, s75")
        a("s_lshl_b32 s78, s26, 19")
        a("s_add_u32 s78, s78, s75")
        a("v_lshlrev_b32 v%d, 7, v%d" % (V_P, T))
        a("v_lshrrev_b32 v%d, 5, v%d" % (T + 2, T))
        a("v_lshl_add_u32 v%d, v%d, 30, v%d" % (V_P, T + 2, V_P))
    def touch(cls, s):
        lab = a.newlabel("G2_pf")
        a("s_cmp_lg_u32 s74, %d" % cls)
        a("s_cbranch_scc1 %s" % lab)
        a("s_add_u32 s79, s76, %d" % (s * 4096))
        a("buffer_load_dword v%d, v%d, s[20:23], s79 offen" % (V_P + 1, V_P))
        if s < 28:
            a("s_add_u32 s79, s77, %d" % (s * 65536))
            a("buffer_load_dword v%d, v%d, s[12:15], s79 offen" % (V_P + 1, V_P))
        else:
            a("s_add_u32 s79, s78, %d" % ((s - 28) * 65536))
            a("buffer_load_dword v%d, v%d, s[16:19], s79 offen" % (V_P + 1, V_P))
        a.label(lab)
    pfq = list(range(cfg.get("g2_pf0", 2), KS))
    pfn = [0]
    PFU = cfg.get("g2_pfu", 6)
    if PF:
        for _ in range(PF):
            touch(pfn[0] & 7, pfq.pop(0)); pfn[0] += 1
    stamp(a, cfg, 1, 62)
    units = [(s, t) for s in range(S1) for t in range(NT)]
    for lam in range(4):
        units += [(s, t) for s in range(S1, KS) for t in (2 * lam, 2 * lam + 1)]
    NU = len(units)
    def b_read(u, j2):
        s, t = units[u]
        slot = (s // 2) % NS
        off = (slot % 4) * STAGE + (s % 2) * 8192 + j2 * 4096
        a.lds("ds_read_b64_tr_b16 %s, v%d offset:%d" % (r2("a", BR + (u % RB) * 4 + j2 * 2), V_RD + 8 * (slot // 4) + t, off), ("b", u))
    def flush_until(tag):
        while any(o[:2] == tag for o in order):
            op = order.pop(0)
            assert can(op), (op, st)
            if op[0] == "A": a_load(op[1], op[2])
            else:
                dma_pre(op[1], op[2]); a("s_nop 0"); dma(op[1], op[2])
    def need_stage(u):
        g = units[u][0] // 2
        if g > st["bar"]:
            flush_until(("B", g))
            a.wait(vm=("B", g)); a("s_barrier"); st["bar"] = g
    need_stage(0)
    stamp(a, cfg, 2, 64)
    for u in range(DB):
        b_read(u, 0); b_read(u, 1)
    side = []
    seenA = set()
    xload_done = False
    for u in range(NU):
        s, t = units[u]
        un = u + DB
        if un < NU: need_stage(un)
        if s not in seenA:
            flush_until(("A", s)); seenA.add(s)
            a.wait(vm=("A", s), lg=("b", u))
        else:
            a.wait(lg=("b", u))
        if PF and pfq and u % PFU == PFU - 1:
            touch(pfn[0] & 7, pfq.pop(0)); pfn[0] += 1
        bf = r4("a", BR + (u % RB) * 4)
        LAU = cfg.get("g2_lau", 100)
        def soon(op):
            stp = op[1] * 2 if op[0] == "B" else op[1]
            return stp <= u / PFU + LAU
        nxt = order.pop(0) if (order and can(order[0]) and soon(order[0])) else None
        if not order and not xload_done and nxt is None:
            xload_done = True
            for mt in range(MT):
                def f(mt=mt):
                    a.vmem("buffer_load_dwordx4 %s, v%d, s[40:43], s39 offen" % (r4("v", VX + 4 * mt), V_XO), "X")
                    a("s_add_u32 s39, s39, %d" % (32768 if mt < 3 else -3 * 32768))
                side.append(f)
        for mt in range(MT):
            mz = mt if u % 2 == 0 else MT - 1 - mt
            af = r4("a", AR + (s % RA) * 16 + mz * 4)
            c = r4("v", acc(mz, t))
            a("v_mfma_f32_16x16x32_bf16 %s, %s, %s, %s" % (c, bf, af, "0" if s == 0 else c))
            if mt < 2 and un < NU: b_read(un, mt)
            if mt == 2 and nxt and nxt[0] == "B": dma_pre(nxt[1], nxt[2])
            if mt == 3 and nxt:
                if nxt[0] == "A": a_load(nxt[1], nxt[2])
                else: dma(nxt[1], nxt[2])
            k = 1 if mt < 2 else 2
            for _ in range(k):
                if side:
                    f = side.pop(0)
                    if f: f()
        if u < S1 * NT and t == NT - 1: st["step"] = s
        if u >= S1 * NT and (u - S1 * NT) % (2 * DL) == 2 * DL - 1:
            lam = (u - S1 * NT) // (2 * DL)
            if lam < 3:
                side += [None] * 6
                for mt in range(MT):
                    for hh in range(2):
                        for e2 in range(2):
                            def f(mt=mt, hh=hh, e2=e2, lam=lam):
                                c = acc(mt, 2 * lam + hh) + 2 * e2
                                a("v_cvt_pk_bf16_f32 v%d, v%d, v%d" % (VPK + 4 * mt + 2 * hh + e2, c, c + 1))
                            side.append(f)
                    def f(mt=mt, lam=lam):
                        a.vmem("buffer_store_dwordx4 %s, v%d, s[48:51], s%d offen offset:%d sc1" % (r4("v", VPK + 4 * mt), V_L16, 53 + lam, mt * 1024), ("S", lam))
                    side.append(f)
    for f in side:
        if f: f()
    assert not order and xload_done
    stamp(a, cfg, 3, 66)
    for lam in range(3):
        a.wait(vm=("S", lam))
        a.vmem("buffer_store_dword v%d, v%d, s[48:51], s%d offen sc1" % (V_ONE, V_FL, 56 + lam), ("F", lam))
    a("v_mov_b32 v%d, 0" % (T + 1))
    a("s_mov_b32 s54, 0x40000")
    a.label("G2_poll")
    a("s_sub_u32 s54, s54, 1")
    a("s_cbranch_scc1 G2_go")
    a("buffer_load_dwordx3 v[%d:%d], v%d, s[48:51], s59 offen sc1" % (T + 4, T + 6, T + 1))
    a("s_waitcnt vmcnt(0)")
    a("v_and_b32 v%d, v%d, v%d" % (T + 4, T + 4, T + 5))
    a("v_and_b32 v%d, v%d, v%d" % (T + 4, T + 4, T + 6))
    a("s_nop 0")
    a("v_readfirstlane_b32 s53, v%d" % (T + 4))
    a("s_cmp_eq_u32 s53, 1")
    a("s_cbranch_scc0 G2_poll")
    a.label("G2_go")
    a.reset()
    if cfg.get("stamp"): a("s_memtime s[62:63]")
    for lam in range(3):
        for mt in range(MT):
            a.vmem("buffer_load_dwordx4 %s, v%d, s[48:51], s52 offen offset:%d sc1" % (r4("v", VP + 16 * lam + 4 * mt), V_L16, mt * 1024), ("R", lam, mt))
        if lam < 2: a("s_add_u32 s52, s52, 4096")
    for lam in range(3):
        for mt in range(MT):
            a.wait(vm=("R", lam, mt))
            for hh in range(2):
                for e2 in range(2):
                    p = VP + 16 * lam + 4 * mt + 2 * hh + e2
                    c = acc(mt, 6 + hh) + 2 * e2
                    a("v_lshlrev_b32 v%d, 16, v%d" % (T, p))
                    a("v_and_b32 v%d, 0xffff0000, v%d" % (T + 1, p))
                    a("v_add_f32 v%d, v%d, v%d" % (c, c, T))
                    a("v_add_f32 v%d, v%d, v%d" % (c + 1, c + 1, T + 1))
            if lam == 2:
                c0, c1 = acc(mt, 6), acc(mt, 7)
                a("s_nop 1")
                for e in range(4): a("v_permlane16_swap_b32 v%d, v%d" % (c0 + e, c1 + e))
                a("s_nop 1")
                xr = VX + 4 * mt
                for hh, c in enumerate((c0, c1)):
                    for e2 in range(2):
                        xx = xr + 2 * hh + e2
                        a("v_lshlrev_b32 v%d, 16, v%d" % (T, xx))
                        a("v_and_b32 v%d, 0xffff0000, v%d" % (T + 1, xx))
                        a("v_add_f32 v%d, v%d, v%d" % (T, T, c + 2 * e2))
                        a("v_add_f32 v%d, v%d, v%d" % (T + 1, T + 1, c + 2 * e2 + 1))
                        a("v_cvt_pk_bf16_f32 v%d, v%d, v%d" % (xx, T, T + 1))
                a.vmem("buffer_store_dwordx4 %s, v%d, s[44:47], s39 offen" % (r4("v", xr), V_XO), "O")
                if mt < 3: a("s_add_u32 s39, s39, 32768")
    if cfg.get("stamp"): srd_off(a, 12, 8, 0, WS_END)
    stamp_out(a, cfg, 4, 60, 24, 12, 0x30000, 4)
    a.label("G2_end")
    a("s_endpgm")
    kernel_desc(a, name, 240, sgpr=96, accum=240, agpr=BR + RB * 4)
    return "; @launch kernel=%s grid=(256,1,1) block=(256,1,1) lds=%d" % (name, NS * STAGE)

def gen_pf(a, cfg):
    name = "pf_kernel"
    kernel_begin(a, name)
    a.reset()
    stamp(a, cfg, 0, 60)
    if cfg.get("stamp"): a("s_memrealtime s[70:71]")
    a("s_cmp_ge_u32 s2, 256")
    a("s_cbranch_scc1 PF_end")
    a("s_load_dwordx4 s[4:7], s[0:1], 8")
    a("s_load_dwordx4 s[8:11], s[0:1], 32")
    a("s_load_dwordx2 s[36:37], s[0:1], 64")
    a("v_lshrrev_b32 v2, 6, v0")
    a("s_nop 0")
    a("v_readfirstlane_b32 s34, v2")
    mode = cfg.get("pf_mode", 0)
    gran = cfg.get("pf_gran", 128)
    if mode == 0: gran = 16
    if mode == 2:
        a("s_lshr_b32 s3, s2, 3")
        a("s_lshl_b32 s3, s3, 9")
        nthr = 32 * 512
    else:
        a("s_lshl_b32 s3, s2, 9")
        nthr = 256 * 512
    a("v_add_u32 v1, s3, v0")
    a("s_mov_b32 s31, %d" % gran)
    a("v_mul_lo_u32 v1, s31, v1")
    if nthr * gran >= (1 << 32):
        a("v_add_u32 v3, s3, v0")
        a("v_min_u32 v3, 200, v3")
        a("v_mul_lo_u32 v1, s31, v3")
    a("s_waitcnt lgkmcnt(0)")
    sizes = [D * 3 * D * 2, D * D * 2, D * DFF * 2, D * DFF * 2]
    order = [0, 2, 3, 1]
    mask = cfg.get("pf_mask", 15)
    n = 0
    for b in order:
        if not (mask >> b) & 1: continue
        srd(a, 12 + 4 * b, 4 + 2 * b, sizes[b])
        step = nthr * gran
        for off in range(0, sizes[b], step):
            a("s_mov_b32 s30, 0x%x" % off)
            if mode == 0: a("buffer_load_dwordx4 %s, v1, s[%d:%d], s30 offen" % (r4("v", 8 + 4 * n), 12 + 4 * b, 15 + 4 * b))
            else: a("buffer_load_dword v%d, v1, s[%d:%d], s30 offen" % (8 + n, 12 + 4 * b, 15 + 4 * b))
            n += 1
    stamp(a, cfg, 1, 62); stamp(a, cfg, 2, 64); stamp(a, cfg, 3, 66)
    a("s_waitcnt vmcnt(0)")
    if cfg.get("stamp"): srd_off(a, 12, 36, 0, WS_END)
    stamp_out(a, cfg, 4, 60, 34, 12, 0x50000, 8)
    a.label("PF_end")
    a("s_endpgm")
    kernel_desc(a, name, 72, sgpr=80)
    return "; @launch kernel=%s grid=(256,1,1) block=(512,1,1) lds=0" % name

def gen_em(a, cfg):
    kernel_begin(a, "em_kernel")
    a("s_endpgm")
    kernel_desc(a, "em_kernel", 8, sgpr=16)
    return "; @launch kernel=em_kernel grid=(256,1,1) block=(256,1,1) lds=0"

def gen_amp(a, cfg):
    kernel_begin(a, "amp_kernel")
    a("s_cmp_ge_u32 s2, 1")
    a("s_cbranch_scc1 AMP_end")
    a("s_load_dwordx2 s[8:9], s[0:1], 64")
    a("s_waitcnt lgkmcnt(0)")
    a("s_load_dword s10, s[8:9], 0x%x" % cfg["amp_a"])
    a("s_load_dword s11, s[8:9], 0x%x" % cfg["amp_b"])
    a("s_memrealtime s[12:13]")
    a("s_waitcnt lgkmcnt(0)")
    if cfg.get("amp_abs"): a("s_mov_b32 s10, 0")
    a("s_sub_u32 s10, s11, s10")
    a("s_mul_i32 s10, s10, %d" % cfg.get("amp_k", 10))
    a("s_lshr_b32 s10, s10, %d" % cfg.get("amp_sh", 0))
    a("s_min_u32 s10, s10, 100000")
    a.label("AMP_l")
    a("s_memrealtime s[14:15]")
    a("s_waitcnt lgkmcnt(0)")
    a("s_sub_u32 s14, s14, s12")
    a("s_cmp_lt_u32 s14, s10")
    a("s_cbranch_scc1 AMP_l")
    a.label("AMP_end")
    a("s_endpgm")
    kernel_desc(a, "amp_kernel", 8, sgpr=24)
    return "; @launch kernel=amp_kernel grid=(1,1,1) block=(64,1,1) lds=0"

def gen_amq(a, cfg):
    kernel_begin(a, "amq_kernel")
    a("s_cmp_ge_u32 s2, 1")
    a("s_cbranch_scc1 AMQ_end")
    a("s_load_dwordx2 s[8:9], s[0:1], 64")
    a("v_lshlrev_b32 v1, 7, v0")
    a("s_waitcnt lgkmcnt(0)")
    for k in range(4):
        a("global_load_dword v%d, v1, s[8:9] offset:%d" % (2 + k, cfg["amp_a"]))
        a("global_load_dword v%d, v1, s[8:9] offset:%d" % (6 + k, cfg["amp_b"]))
        a("v_add_u32 v1, 8192, v1")
    a("s_waitcnt vmcnt(0)")
    mb = "v_min_u32" if cfg.get("amp_minb") else "v_max_u32"
    for k in range(1, 4):
        a("v_min_u32 v2, v2, v%d" % (2 + k)); a("%s v6, v6, v%d" % (mb, 6 + k))
    a("s_nop 1")
    a("v_readlane_b32 s10, v2, 0"); a("v_readlane_b32 s11, v6, 0")
    for l in range(1, 64):
        a("v_readlane_b32 s16, v2, %d" % l); a("v_readlane_b32 s17, v6, %d" % l)
        a("s_min_u32 s10, s10, s16"); a("%s s11, s11, s17" % mb.replace("v_", "s_"))
    a("s_memrealtime s[12:13]")
    a("s_waitcnt lgkmcnt(0)")
    if cfg.get("amp_now"): a("s_mov_b32 s10, s11\ns_mov_b32 s11, s12")
    a("s_sub_u32 s10, s11, s10")
    a("s_mul_i32 s10, s10, %d" % cfg.get("amp_k", 10))
    a("s_min_u32 s10, s10, 100000")
    a.label("AMQ_l")
    a("s_memrealtime s[14:15]")
    a("s_waitcnt lgkmcnt(0)")
    a("s_sub_u32 s14, s14, s12")
    a("s_cmp_lt_u32 s14, s10")
    a("s_cbranch_scc1 AMQ_l")
    a.label("AMQ_end")
    a("s_endpgm")
    kernel_desc(a, "amq_kernel", 16, sgpr=24)
    return "; @launch kernel=amq_kernel grid=(1,1,1) block=(64,1,1) lds=0"

def build(cfg, kernels):
    a = Prog()
    heads = []
    for k in kernels:
        heads.append(globals()["gen_" + k](a, cfg))
    a.raw(".text")
    a.label("CODE_END")
    for _ in range(cfg.get("nempty", 0)): heads.append(heads[-1])
    if cfg.get("single"):
        assert len(heads) == 1
        heads = [heads[0].replace("kernel=%s_kernel " % NAME, "")]
    hdr = "\n".join(heads) + "\n" + '.amdgcn_target "amdgcn-amd-amdhsa--gfx950"\n'
    return hdr + a.text()

if __name__ == "__main__":
    cfg = dict(g1_mt=4)
    out = sys.argv[1]
    kernels = sys.argv[2].split(",")
    for kv in sys.argv[3:]:
        k, v = kv.split("="); cfg[k] = int(v, 0)
    open(out, "w").write(build(cfg, kernels))
```

```python
import sys, math
from asmlib import *
import gen
from gen import *

class SA:
    def __init__(self, start, end):
        self.n = start; self.end = end; self.m = {}
    def new(self, name, cnt=1, align=1):
        self.n = (self.n + align - 1) // align * align
        r = self.n; self.n += cnt
        assert self.n <= self.end, "out of sgprs"
        self.m[name] = r
        return r

def s4(b): return "s[%d:%d]" % (b, b + 3)
MF = "v_mfma_f32_16x16x32_bf16"

def kind_of(op):
    if op is None: return None
    if isinstance(op, tuple): return op[0]
    t = op.lstrip()
    if t.startswith("s_"): return "s"
    if t.startswith("v_"): return "v"
    raise ValueError(op)

class Gaps:
    def __init__(self, a):
        self.a = a
        self.sal = []
        self.side = []
    def run(self, op):
        if isinstance(op, tuple): op[1]()
        else: self.a(op)
    def gap(self, first=None, fixed=None, mem=None):
        used0 = False
        room = 2
        if first is not None: used0 = bool(first())
        if not used0:
            if self.sal:
                x = self.sal.pop(0); self.a(x); used0 = True
                room -= x.count("\n")
            elif self.side and kind_of(self.side[0]) == "s":
                self.run(self.side.pop(0)); used0 = True
        if mem is not None:
            mem(); return
        if fixed is not None:
            fixed(); room -= 1
        if self.side and self.side[0] is None:
            self.side.pop(0)
            skip = True
        else: skip = False
        while room > 0:
            if self.sal and self.sal[0].count("\n") < room:
                x = self.sal.pop(0); self.a(x); room -= 1 + x.count("\n"); continue
            if skip or not self.side or self.side[0] is None: break
            k = kind_of(self.side[0])
            if k in ("m", "x"):
                if room == 2:
                    self.run(self.side.pop(0))
                break
            self.run(self.side.pop(0)); room -= 1
    def drain_sal(self):
        while self.sal: self.a(self.sal.pop(0))
    def drain(self):
        self.drain_sal()
        for op in self.side:
            if op is not None: self.run(op)
        self.side = []

def ln_ops(exact=1):
    o = []
    a = o.append
    pk = lambda op, d, x, y, mod="": a("%s v[%d:%d], v[%d:%d], v[%d:%d]%s" % (op, d, d + 1, x, x + 1, y, y + 1, mod))
    for i in range(16):
        if i % 4 == 0: a("WAIT%d" % (i // 4))
        a("v_lshlrev_b32 v%d, 16, v%d" % (24 + 2 * i, 8 + i))
        a("v_and_b32 v%d, 0xffff0000, v%d" % (25 + 2 * i, 8 + i))
        if i == 1: pk("v_pk_add_f32", 56, 24, 26)
        elif i == 3: pk("v_pk_add_f32", 58, 28, 30)
        elif i > 3: pk("v_pk_add_f32", 56 + 2 * (i & 1), 56 + 2 * (i & 1), 24 + 2 * i)
    pk("v_pk_add_f32", 56, 56, 58)
    a("v_add_f32 v56, v56, v57")
    def xlane_sum(r, t):
        a("s_nop 1")
        a("v_add_f32_dpp v%d, v%d, v%d row_ror:8 row_mask:0xf bank_mask:0xf" % (r, r, r))
        for op in ("v_permlane16_swap_b32", "v_permlane32_swap_b32"):
            a("v_mov_b32 v%d, v%d" % (t, r))
            a("s_nop 1")
            a("%s v%d, v%d" % (op, r, t))
            a("v_add_f32 v%d, v%d, v%d" % (r, r, t))
    xlane_sum(56, 57)
    a("v_mul_f32 v56, 0x%x, v56" % f2u(1.0 / 256))
    neg = " op_sel_hi:[1,0] neg_lo:[0,1] neg_hi:[0,1]"
    for i in range(16):
        t = 62 + 2 * (i & 1); ac = 66 + 2 * (i & 1)
        pk("v_pk_add_f32", t, 24 + 2 * i, 56, neg)
        if i < 2: pk("v_pk_mul_f32", ac, t, t)
        else: a("v_pk_fma_f32 v[%d:%d], v[%d:%d], v[%d:%d], v[%d:%d]" % (ac, ac + 1, t, t + 1, t, t + 1, ac, ac + 1))
    pk("v_pk_add_f32", 66, 66, 68)
    a("v_add_f32 v57, v66, v67")
    xlane_sum(57, 58)
    a("ds_write_b64 v7, v[56:57]")
    a("s_waitcnt lgkmcnt(0)")
    a("s_barrier")
    for k in range(4): a("ds_read_b64 v[%d:%d], v60 offset:%d" % (62 + 2 * k, 63 + 2 * k, 64 * k))
    a("s_waitcnt lgkmcnt(0)")
    pk("v_pk_add_f32", 56, 62, 64)
    pk("v_pk_add_f32", 58, 66, 68)
    pk("v_pk_add_f32", 56, 56, 58)
    a("v_mul_f32 v56, 0x3e800000, v56")
    a("v_sub_f32 v59, v62, v56")
    a("v_mul_f32 v58, v59, v59")
    for r in (64, 66, 68):
        a("v_sub_f32 v59, v%d, v56" % r)
        a("v_fmac_f32 v58, v59, v59")
    a("v_fmac_f32 v57, 0x43800000, v58")
    a("v_mul_f32 v57, 0x%x, v57" % f2u(1.0 / 1024))
    a("v_cvt_pk_bf16_f32 v58, v56, v57")
    a("v_lshlrev_b32 v56, 16, v58")
    a("v_and_b32 v57, 0xffff0000, v58")
    a("v_add_f32 v57, 0x%x, v57" % f2u(1e-5))
    a("v_cvt_pk_bf16_f32 v57, v57, v57")
    a("v_and_b32 v57, 0xffff0000, v57")
    a("v_sqrt_f32 v57, v57")
    a("s_nop 0")
    a("v_cvt_pk_bf16_f32 v57, v57, v57")
    a("v_and_b32 v57, 0xffff0000, v57")
    a("v_rcp_f32 v58, v57")
    for i in range(16):
        pk("v_pk_add_f32", 24 + 2 * i, 24 + 2 * i, 56, neg)
        if i > 0:
            j = i - 1
            if exact:
                a("v_cvt_pk_bf16_f32 v%d, v%d, v%d" % (25 + 2 * j, 24 + 2 * j, 25 + 2 * j))
                a("v_lshlrev_b32 v%d, 16, v%d" % (24 + 2 * j, 25 + 2 * j))
                a("v_and_b32 v%d, 0xffff0000, v%d" % (25 + 2 * j, 25 + 2 * j))
            pk("v_pk_mul_f32", 24 + 2 * j, 24 + 2 * j, 58, " op_sel_hi:[1,0]")
            a("v_cvt_pk_bf16_f32 v%d, v%d, v%d" % (8 + j, 24 + 2 * j, 25 + 2 * j))
            if j % 4 == 3: a("STORE%d" % (j // 4))
    if exact:
        a("v_cvt_pk_bf16_f32 v55, v54, v55")
        a("v_lshlrev_b32 v54, 16, v55")
        a("v_and_b32 v55, 0xffff0000, v55")
    pk("v_pk_mul_f32", 54, 54, 58, " op_sel_hi:[1,0]")
    a("v_cvt_pk_bf16_f32 v23, v54, v55")
    a("STORE3")
    return o

def gen_f(a, cfg):
    name = NAME + "_kernel" if cfg.get("single") else "f_kernel"
    FLN = cfg.get("f_ln", 0)
    SPIN = cfg.get("spin", 0x40000)
    ST = cfg.get("stamp")
    MT = 4
    sa = SA(3, 84)
    P_WQ = sa.new("pwq", 2, 2); P_W1 = sa.new("pw1", 2, 2); P_WS = sa.new("pws", 2, 2); P_X = sa.new("px", 2, 2)
    P_W2 = sa.new("pw2", 2, 2); P_WO = sa.new("pwo", 2, 2); P_OUT = sa.new("pout", 2, 2)
    R_WQ = sa.new("rwq", 4, 4); R_W1 = sa.new("rw1", 4, 4); R_W2 = sa.new("rw2", 4, 4); R_WO = sa.new("rwo", 4, 4)
    R_WS = sa.new("rws", 4, 4)
    sW = sa.new("w"); sI = sa.new("i"); sJ = sa.new("j"); sJ1 = sa.new("j1"); sQ = sa.new("q"); sN = sa.new("n")
    sBQ = sa.new("bq"); sBV = sa.new("bv"); sBW = sa.new("bw"); sBL = sa.new("bl"); sLB = sa.new("lb"); sA = sa.new("a")
    sCLS = sa.new("cls"); t0 = sa.new("t0"); t1 = sa.new("t1"); t2 = sa.new("t2"); t3 = sa.new("t3")
    sMK = sa.new("mask", 8, 2)
    sKV = sa.new("kv"); sKV2 = sa.new("kv2"); sKP = sa.new("kp"); sKP2 = sa.new("kp2"); sFK = sa.new("fk"); sFO = sa.new("fo")
    sH = sa.new("h", 4); sSC = sa.new("sc", 2, 2); sO = sSC + 1; sA0 = sa.new("a0"); sB0 = sa.new("b0"); sAE = sa.new("aend"); sBE = sa.new("bend")
    sXO = sa.new("xo"); sSP = sa.new("spin")
    sDL = sMK
    STB = 84
    SETS = {1: ["start", "bar0", "g1end", "attbeg", "attend", "g2beg", "g2end", "end"],
            2: ["start", "g1half", "g1tail", "g1kv", "g1flag1", "g1chk", "g1kb", "g1end"],
            3: ["start", "attbeg", "att0", "att1", "att2", "att3", "att4", "attend"],
            4: ["start", "att4", "g2h", "g2beg", "g2p4", "g2p12", "g2tail", "g2end"],
            5: ["start", "g2end", "x1", "x2", "x3", "x4", "x5", "end"],
            7: ["g2beg", "g2p3", "g2p6", "g2p10", "g2p14", "g2p18", "g2p22", "g2end"],
            8: ["g2p22", "g2tail", "g2l1", "g2l2", "g2l3", "g2end", "x3", "end"],
            9: ["start", "lnx", "lns", "lnd", "lnp", "g1s1", "g1s4", "g1s8"],
            10: ["start", "k0", "k1", "k2", "k3", "k4", "lnx", "lns"],
            6: ["start", "bar0", "g1s2", "g1s4", "g1s8", "g1half", "g1s20", "g1tail"]}
    jn = [0]
    def stampr(nm):
        J = cfg.get("jit", 0)
        if J and nm != "start":
            jn[0] += 1
            lab = a.newlabel("F_j")
            a("s_lshl_b32 s84, s2, 2")
            if J & 1: a("s_add_u32 s84, s84, s%d" % sW)
            a("s_add_u32 s84, s84, %d" % (jn[0] * 7919 + J * 31))
            a("s_mul_i32 s84, s84, 0x9e3779b1")
            a("s_lshr_b32 s84, s84, 28")
            a("s_cmp_lg_u32 s84, 0")
            a("s_cbranch_scc1 %s" % lab)
            for _ in range(cfg.get("jitn", 2)): a("s_sleep 127")
            a.label(lab)
        if ST and nm in SETS[ST]:
            i = SETS[ST].index(nm)
            a("%s s[%d:%d]" % ("s_memtime" if cfg.get("clk") else "s_memrealtime", STB + 2 * i, STB + 2 * i + 1))

    NT = 13; KS = 32
    NS = 5; REG = 7168; STAGE = 4 * REG
    D1 = cfg.get("f_d1", 8)
    RA = cfg.get("f_ra1", 12)
    LA = cfg.get("f_la1", 4)
    C1 = cfg.get("f_c1", 2)
    C1K = cfg.get("f_c1k", 2); C1T = cfg.get("f_c1t", 4); C1S = cfg.get("f_c1s", 0)
    CM1 = max(C1, C1K, C1T)
    DB = cfg.get("f_db1", CM1 + 2); RB = DB + max(CM1, 2)
    assert DB >= CM1
    S1 = KS - D1
    def slot1(g): return (15 - g) % 5
    KVB = 96 * 1024
    def acc(mt, t): return (t * MT + mt) * 4
    V_L16 = 208; V_QKV = 209; V_W1 = 210; V_LEFT = 211
    V_RD = 212
    V_P0, V_P1, V_P2 = 221, 222, 223
    V_LANE = 224; V_FL0 = 225; V_ONE = 226; V_POLL = 227; V_KVW = 228; V_FG = 229; V_PL = 230
    T = 232
    A_PD = 255
    AR = 0; BR = RA * 16
    assert BR + RB * 4 <= 254

    kernel_begin(a, name)
    a.reset()
    stampr("start")
    a("s_cmp_ge_u32 s2, 256")
    a("s_cbranch_scc1 F_end")
    if cfg.get("idx"): a("s_xor_b32 s2, s2, %d" % cfg["idx"])
    if cfg.get("jit"):
        a("s_mul_i32 s84, s2, 0x9e3779b1")
        a("s_lshr_b32 s84, s84, 28")
        a("s_cmp_lg_u32 s84, %d" % (cfg["jit"] & 15))
        a("s_cbranch_scc1 F_j0")
        for _ in range(4): a("s_sleep 127")
        a.label("F_j0")
    a("s_load_dwordx2 s[%d:%d], s[0:1], 8" % (P_WQ, P_WQ + 1))
    a("s_load_dwordx2 s[%d:%d], s[0:1], 32" % (P_W1, P_W1 + 1))
    a("s_load_dwordx2 s[%d:%d], s[0:1], 64" % (P_WS, P_WS + 1))
    a("s_load_dwordx2 s[%d:%d], s[0:1], 0" % (P_X, P_X + 1))
    a("s_load_dwordx2 s[%d:%d], s[0:1], 40" % (P_W2, P_W2 + 1))
    a("s_load_dwordx2 s[%d:%d], s[0:1], 16" % (P_WO, P_WO + 1))
    a("s_load_dwordx2 s[%d:%d], s[0:1], 48" % (P_OUT, P_OUT + 1))
    if FLN:
        lab = a.newlabel("F_pc")
        a("s_getpc_b64 s[%d:%d]" % (R_WO, R_WO + 1))
        a.label(lab)
        a("s_and_b32 s%d, s%d, 0xffff" % (R_WO + 1, R_WO + 1))
        a("s_mov_b32 s%d, CODE_END - %s" % (R_WO + 2, lab))
        a("s_mov_b32 s%d, 0x00020000" % (R_WO + 3))
        a("s_lshr_b32 s%d, s2, 3" % t0)
        a("s_lshl_b32 s%d, s%d, 7" % (t0, t0))
        a("v_lshlrev_b32 v70, 12, v0")
        a.vmem("buffer_load_dword v76, v70, %s, s%d offen" % (s4(R_WO), t0), "T")
    if FLN: a("s_load_dwordx2 s[100:101], s[0:1], 56")
    L = V_LANE
    a("v_and_b32 v%d, 63, v0" % L)
    a("v_lshrrev_b32 v%d, 6, v0" % (T + 1))
    a("v_lshlrev_b32 v%d, 4, v%d" % (V_L16, L))
    a("v_readfirstlane_b32 s%d, v%d" % (sW, T + 1))
    a("s_and_b32 s%d, s2, 1" % sI)
    a("s_lshl_b32 s%d, s%d, 2" % (sI, sI))
    a("s_bfe_u32 s%d, s2, 0x20003" % t0)
    a("s_add_u32 s%d, s%d, s%d" % (sI, sI, t0))
    a("s_bfe_u32 s%d, s2, 0x20001" % sQ)
    a("s_lshr_b32 s%d, s2, 5" % sN)
    a("s_lshl_b32 s%d, s%d, 3" % (sJ, sQ))
    a("s_add_u32 s%d, s%d, s%d" % (sJ, sJ, sN))
    a("s_and_b32 s%d, s%d, 1" % (sJ1, sN))
    if FLN:
        a("v_and_b32 v3, 7, v%d" % L)
        a("v_lshrrev_b32 v4, 3, v%d" % L)
        LXD = cfg.get("f_lxd", 0)
        if LXD:
            a("v_xor_b32 v83, v3, v4")
            a("v_lshlrev_b32 v5, 11, v4")
            a("v_lshl_add_u32 v5, v%d, 9, v5" % (T + 1))
            a("v_lshl_add_u32 v5, v83, 4, v5")
            a("s_lshl_b32 s%d, s%d, 12" % (t1, sW))
            a("s_add_u32 s%d, s%d, %d" % (t1, t1, 144 * 1024))
            a("s_mov_b32 m0, s%d" % t1)
        else:
            a("v_lshlrev_b32 v5, 11, v3")
            a("v_lshl_add_u32 v5, v%d, 9, v5" % (T + 1))
            a("v_lshl_add_u32 v5, v4, 4, v5")
        a("s_lshl_b32 s%d, s%d, 5" % (t3, sI))
        a("s_add_u32 s%d, s%d, s%d" % (t3, t3, sJ))
        a("s_lshl_b32 s%d, s%d, 14" % (t0, t3))
        stampr("k0")
        a("s_waitcnt lgkmcnt(0)")
        stampr("k1")
        srd(a, R_W2, P_X, S * D * 2)
        for i in range(4):
            if LXD:
                a.vmem("buffer_load_dwordx4 v5, %s, s%d offen offset:%d lds" % (s4(R_W2), t0, i * 128), ("LX", i))
                if i < 3:
                    a("s_add_u32 m0, m0, %d" % (1024 - 128))
                    a("s_nop 0")
            else: a.vmem("buffer_load_dwordx4 %s, v5, %s, s%d offen offset:%d" % (r4("v", 8 + 4 * i), s4(R_W2), t0, i * 128), ("LX", i))
        if LXD:
            a("v_lshlrev_b32 v83, 4, v83")
            a("v_lshl_add_u32 v83, v3, 7, v83")
            a("v_add_u32 v83, s%d, v83" % t1)
        stampr("k2")
        srd(a, R_WS, P_WS, WS_END)
        a("s_lshl_b32 s%d, s%d, 12" % (sSP, sI))
        a("s_add_u32 s%d, s%d, 0x%x" % (sXO, sSP, WS_LF))
        a("v_and_b32 v80, 31, v%d" % L)
        a("v_lshlrev_b32 v80, %d, v80" % cfg.get("f_lfs", 2))
        a("v_add_u32 v80, s%d, v80" % sXO)
        a.vmem("buffer_load_dword v81, v80, %s, 0 offen sc1" % s4(R_WS), "SN")
    a("v_lshrrev_b32 v%d, 2, v%d" % (T + 2, L))
    a("v_lshl_add_u32 v%d, v%d, 4, v%d" % (T + 2, T + 1, T + 2))
    a("v_lshrrev_b32 v%d, 4, v%d" % (T + 3, L))
    a("v_and_b32 v%d, 2, v%d" % (T + 3, T + 3))
    a("v_and_b32 v%d, 3, v%d" % (T + 4, L))
    a("v_xor_b32 v%d, v%d, v%d" % (T + 3, T + 3, T + 4))
    a("v_lshlrev_b32 v%d, 4, v%d" % (T + 3, T + 3))
    a("v_mul_u32_u24 v%d, 6144, v%d" % (V_QKV, T + 2))
    a("v_add_u32 v%d, v%d, v%d" % (V_QKV, V_QKV, T + 3))
    a("v_mul_u32_u24 v%d, 7168, v%d" % (V_W1, T + 2))
    a("v_add_u32 v%d, v%d, v%d" % (V_W1, V_W1, T + 3))
    a("v_bfe_u32 v%d, v%d, 3, 1" % (T + 2, L))
    a("v_lshlrev_b32 v%d, 3, v%d" % (T + 2, T + 2))
    a("v_bfe_u32 v%d, v%d, 4, 1" % (T + 3, L))
    a("v_lshl_add_u32 v%d, v%d, 2, v%d" % (T + 2, T + 3, T + 2))
    a("v_bfe_u32 v%d, v%d, 1, 2" % (T + 3, L))
    a("v_add_u32 v%d, v%d, v%d" % (T + 2, T + 2, T + 3))
    a("v_lshl_add_u32 v%d, v%d, 4, v%d" % (T + 2, T + 1, T + 2))
    a("v_mul_u32_u24 v%d, 7168, v%d" % (V_LEFT, T + 2))
    a("v_and_b32 v%d, 1, v%d" % (T + 3, L))
    a("v_lshl_add_u32 v%d, v%d, 4, v%d" % (V_LEFT, T + 3, V_LEFT))
    a("v_lshrrev_b32 v%d, 5, v%d" % (T + 3, L))
    a("v_lshl_add_u32 v%d, v%d, 30, v%d" % (V_LEFT, T + 3, V_LEFT))
    a("s_lshl_b32 s%d, s%d, 6" % (sBQ, sJ))
    a("s_add_u32 s%d, s%d, 4096" % (sBV, sBQ))
    a("s_mul_i32 s%d, s%d, 224" % (sBL, sJ))
    a("s_lshl_b32 s%d, s%d, 5" % (t0, sJ1))
    a("s_add_u32 s%d, s%d, s%d" % (sBW, sBL, t0))
    a("s_xor_b32 s%d, s%d, 1" % (t0, sJ1))
    a("s_mul_i32 s%d, s%d, 192" % (t0, t0))
    a("s_add_u32 s%d, s%d, s%d" % (sBL, sBL, t0))
    a("s_mul_i32 s%d, s%d, %d" % (sLB, sW, REG))
    a("s_lshl_b32 s%d, s%d, 2" % (sA, sI))
    a("s_add_u32 s%d, s%d, s%d" % (sA, sA, sW))
    a("s_lshl_b32 s%d, s%d, 17" % (sA, sA))
    a("s_add_u32 s%d, s%d, 0x%x" % (sA, sA, WS_XN))
    ROT = cfg.get("f_rot", 1)
    a("s_add_u32 s%d, s%d, s%d" % (t1, sI, sN))
    a("s_and_b32 s%d, s%d, %d" % (t1, t1, 3 if ROT else 0))
    for k in range(3):
        a("s_cmp_eq_u32 s%d, %d" % (t1, 3 - k))
        a("s_cselect_b32 s%d, -3, 1" % (sDL + k))
    a("s_cmp_eq_u32 s%d, 0" % t1)
    a("s_cselect_b32 s%d, 1, 5" % (sDL + 3))
    a("s_mul_i32 s%d, s%d, %d" % (t0, t1, 64 * 6144))
    a("s_add_u32 s%d, s%d, s%d" % (sBQ, sBQ, t0))
    a("s_add_u32 s%d, s%d, s%d" % (sBV, sBV, t0))
    a("s_mul_i32 s%d, s%d, %d" % (t0, t1, 64 * 7168))
    a("s_add_u32 s%d, s%d, s%d" % (sBW, sBW, t0))
    a("s_add_u32 s%d, s%d, s%d" % (sBL, sBL, t0))
    a("s_lshl_b32 s%d, s%d, 13" % (t0, t1))
    a("s_add_u32 s%d, s%d, s%d" % (sA, sA, t0))
    for k in range(4):
        a("s_lshl_b32 s%d, s%d, 13" % (sDL + 4 + k, sDL + k))
        a("s_sub_u32 s%d, s%d, 4096" % (sDL + 4 + k, sDL + 4 + k))
    a("s_waitcnt lgkmcnt(0)")
    srd(a, R_WQ, P_WQ, D * 3 * D * 2)
    srd(a, R_W1, P_W1, D * DFF * 2)
    if not FLN: srd(a, R_WS, P_WS, WS_END)

    G = Gaps(a)
    PAIRPOS = [0, 2, 1, 3, 4, 5]
    def dma1(g, k, part):
        p, vreg, sb, so, imm = [(0, V_QKV, R_WQ, sBQ, 0), (2, V_QKV, R_WQ, sBQ, 2048), (1, V_QKV, R_WQ, sBV, 0),
                                (3, V_W1, R_W1, sBW, 0), (4, V_W1, R_W1, sBW, 64), (5, V_W1, R_W1, sBW, 128), (6, V_LEFT, R_W1, sBL, 0)][k]
        if part == 0:
            a("s_add_u32 m0, s%d, %d" % (sLB, slot1(g) * STAGE + p * 1024 - imm))
        else:
            a.vmem("buffer_load_dwordx4 v%d, %s, s%d offen offset:%d lds" % (vreg, s4(sb), so, imm), ("B", g))
            if k == 0: G.sal.append("s_mul_i32 s%d, s%d, %d" % (t2, sDL + (g & 3), 64 * 6144))
            if k == 1: G.sal.append("s_add_u32 s%d, s%d, s%d" % (sBQ, sBQ, t2))
            if k == 2: G.sal.append("s_add_u32 s%d, s%d, s%d" % (sBV, sBV, t2))
            if k == 3: G.sal.append("s_mul_i32 s%d, s%d, %d" % (t2, sDL + (g & 3), 64 * 7168))
            if k == 5: G.sal.append("s_add_u32 s%d, s%d, s%d" % (sBW, sBW, t2))
            if k == 6: G.sal.append("s_add_u32 s%d, s%d, s%d" % (sBL, sBL, t2))
    def aload1(s, mt):
        a.vmem("buffer_load_dwordx4 %s, v%d, %s, s%d offen offset:%d%s" % (r4("a", AR + (s % RA) * 16 + mt * 4), V_L16, s4(R_WS), sA, mt * 1024, " sc1" if FLN else ""), ("A", s))
        if mt == MT - 1:
            if s % 2 == 0: G.sal.append("s_add_u32 s%d, s%d, 4096" % (sA, sA))
            else: G.sal.append("s_add_u32 s%d, s%d, s%d" % (sA, sA, sDL + 4 + ((s // 2) & 3)))
    order = []
    for g in range(16):
        for k in range(7): order.append(("B", g, k))
        for s in (2 * g, 2 * g + 1):
            for mt in range(MT): order.append(("A", s, mt))
    def issue1(op):
        G.drain_sal()
        if op[0] == "A": aload1(op[1], op[2])
        else:
            dma1(op[1], op[2], 0); a("s_nop 0"); dma1(op[1], op[2], 1)
        G.drain_sal()
    if FLN:
        nb = cfg.get("f_lnb", 1)
        bops = [o for o in order if o[0] == "B" and o[1] < nb]
        for o in bops: order.remove(o)
        BO = cfg.get("f_bo", 0)
        late_b = []
        if BO == 1: late_b = bops[:3]; bops = bops[3:]
        if BO == 2: late_b = bops[3:]; bops = bops[:3]
        TB0 = cfg.get("f_tb", 0)
        def touchb():
            a("s_lshr_b32 s%d, s2, 3" % t1)
            a("s_lshl_b32 s%d, s%d, 2" % (t1, t1))
            a("s_add_u32 s%d, s%d, s%d" % (t1, t1, sW))
            a("v_lshrrev_b32 v84, 4, v%d" % L)
            a("v_and_b32 v85, 15, v%d" % L)
            a("v_mul_u32_u24 v86, 7168, v84")
            a("v_lshl_add_u32 v86, v85, 7, v86")
            a("v_mul_u32_u24 v84, 6144, v84")
            a("v_lshrrev_b32 v87, 2, v85")
            a("v_lshl_add_u32 v84, v87, 11, v84")
            a("v_and_b32 v87, 3, v85")
            a("v_lshl_add_u32 v84, v87, 7, v84")
            a("s_mul_i32 s%d, s%d, %d" % (t0, t1, 2 * 6144))
            a("s_lshl_b32 s%d, s%d, 9" % (t2, sQ))
            a("s_add_u32 s%d, s%d, s%d" % (sKV, t0, t2))
            a("s_mul_i32 s%d, s%d, %d" % (t0, t1, 2 * 7168))
            a("s_mul_i32 s%d, s%d, 1792" % (t2, sQ))
            a("s_add_u32 s%d, s%d, s%d" % (sKV2, t0, t2))
        def touchb2():
            a("s_mov_b64 exec, 0x0fff0fff")
            a.vmem("buffer_load_dword a%d, v84, %s, s%d offen" % (A_PD, s4(R_WQ), sKV), "T")
            a("s_mov_b64 exec, 0x3fff3fff")
            a.vmem("buffer_load_dword a%d, v86, %s, s%d offen" % (A_PD, s4(R_W1), sKV2), "T")
            a("s_mov_b64 exec, -1")
        if TB0: touchb()
        if TB0 == 1: touchb2()
        for _ in range(cfg.get("f_lnb0", 2)): issue1(bops.pop(0))
        a("s_lshl_b32 s%d, s2, 9" % t0)
        a("s_add_u32 s%d, s%d, 0x%x" % (t0, t0, WS_FL))
        a("v_lshlrev_b32 v70, 2, v0")
        a("v_lshrrev_b32 v71, 7, v0")
        a("v_lshl_add_u32 v70, v71, 30, v70")
        a("v_mov_b32 v71, 0")
        a.vmem("buffer_store_dword v71, v70, %s, s%d offen sc1" % (s4(R_WS), t0), "Z")
        a("s_lshr_b32 s%d, s%d, 3" % (t0, t3))
        a("s_lshl_b32 s%d, s%d, 17" % (t0, t0))
        a("s_bfe_u32 s%d, s%d, 0x20001" % (t1, t3))
        a("s_lshl_b32 s%d, s%d, 10" % (t1, t1))
        a("s_add_u32 s%d, s%d, s%d" % (t0, t0, t1))
        a("s_and_b32 s%d, s%d, 1" % (t1, t3))
        a("s_lshl_b32 s%d, s%d, 7" % (t1, t1))
        a("s_add_u32 s%d, s%d, s%d" % (t0, t0, t1))
        a("s_add_u32 s%d, s%d, 0x%x" % (t3, t0, WS_XN))
        a("v_lshrrev_b32 v6, 2, v4")
        a("v_lshl_add_u32 v6, v%d, 3, v6" % (T + 1))
        a("v_lshlrev_b32 v6, 12, v6")
        a("v_and_b32 v7, 3, v4")
        a("v_lshl_add_u32 v6, v7, 8, v6")
        a("v_lshl_add_u32 v6, v3, 4, v6")
        a("v_lshl_add_u32 v7, v%d, 3, v3" % (T + 1))
        a("v_lshlrev_b32 v7, 3, v7")
        a("v_add_u32 v7, %d, v7" % (5 * STAGE))
        a("v_lshlrev_b32 v60, 3, v3")
        a("v_add_u32 v60, %d, v60" % (5 * STAGE))
        stampr("k3")
        if LXD:
            for i in range(4):
                a.wait(vm=("LX", i))
                if i == 0: stampr("k4")
                a("ds_read_b128 %s, v83 offset:%d" % (r4("v", 8 + 4 * i), i * 1024))
            a("s_waitcnt lgkmcnt(0)")
        elif not cfg.get("f_lxp", 1): a.wait(vm=("LX", 3))
        stampr("lnx")
        if TB0 == 2: touchb2()
        lo_ = ln_ops(cfg.get("f_lnex", 1))
        gap_ = cfg.get("f_lngap", 20)
        for k, x in enumerate(lo_):
            if x.startswith("WAIT"): a.wait(vm=("LX", int(x[4:])))
            elif x.startswith("STORE"):
                i = int(x[5:])
                a.vmem("buffer_store_dwordx4 %s, v6, %s, s%d offen sc1" % (r4("v", 8 + 4 * i), s4(R_WS), t3), "XS")
                if i < 3: a("s_add_u32 s%d, s%d, %d" % (t3, t3, 8192))
            else: a(x)
            if k % gap_ == gap_ - 1 and bops and k < cfg.get("f_lnk", 110): issue1(bops.pop(0))
        bops += late_b
        if cfg.get("f_bnow", 1):
            while bops: issue1(bops.pop(0))
        stampr("lns")
    else:
        for _ in range(cfg.get("f_pro1", 15)): issue1(order.pop(0))

    srd(a, R_W2, P_W2, DFF * D * 2)
    srd(a, R_WO, P_WO, D * D * 2)
    a("s_bfe_u32 s%d, s2, 0x30003" % sCLS)
    a("v_bfrev_b32 v%d, 1" % (T + 6))
    if cfg.get("f_pf", 0):
        a("s_lshr_b32 s%d, s2, 6" % t1)
        a("s_lshl_b32 s%d, s%d, 2" % (t1, t1))
        a("s_add_u32 s%d, s%d, s%d" % (t1, t1, sW))
        a("v_bfrev_b32 v%d, 1" % (T + 6))
        a("v_lshrrev_b32 v%d, 5, v%d" % (T + 2, L))
        a("s_lshl_b32 s%d, s%d, 1" % (t0, t1))
        a("v_add_u32 v%d, s%d, v%d" % (T + 2, t0, T + 2))
        a("v_and_b32 v%d, 31, v%d" % (T + 3, L))
        a("v_mul_u32_u24 v%d, 7168, v%d" % (V_P1, T + 2))
        a("v_lshl_add_u32 v%d, v%d, 7, v%d" % (V_P1, T + 3, V_P1))
        a("s_mul_i32 s%d, s%d, 1792" % (t0, sQ))
        a("v_add_u32 v%d, s%d, v%d" % (V_P1, t0, V_P1))
        a("v_mul_u32_u24 v%d, 6144, v%d" % (V_P0, T + 2))
        a("v_lshrrev_b32 v%d, 2, v%d" % (T + 4, T + 3))
        a("v_lshl_add_u32 v%d, v%d, 11, v%d" % (V_P0, T + 4, V_P0))
        a("v_and_b32 v%d, 3, v%d" % (T + 4, T + 3))
        a("v_lshl_add_u32 v%d, v%d, 7, v%d" % (V_P0, T + 4, V_P0))
        a("s_lshl_b32 s%d, s%d, 9" % (t0, sQ))
        a("v_add_u32 v%d, s%d, v%d" % (V_P0, t0, V_P0))
        a("v_cmp_le_u32 vcc, 12, v%d" % (T + 3))
        a("s_and_b32 s%d, s2, 1" % t0)
        a("s_lshl_b32 s%d, s%d, 4" % (t0, t0))
        a("v_cndmask_b32 v%d, v%d, v%d, vcc" % (V_P0, V_P0, T + 6))
        a("v_cmp_le_u32 vcc, 14, v%d" % (T + 3))
        a("s_add_u32 s%d, s%d, s%d" % (t0, t0, t1))
        a("s_lshl_b32 s%d, s%d, 17" % (t0, t0))
        a("v_cndmask_b32 v%d, v%d, v%d, vcc" % (V_P1, V_P1, T + 6))
        a("s_add_u32 s%d, s%d, 0x%x" % (t0, t0, WS_XN))
        a("v_lshlrev_b32 v%d, 7, v%d" % (V_P2, L))
        a("v_add_u32 v%d, s%d, v%d" % (V_P2, t0, V_P2))
        a("v_cmp_le_u32 vcc, 32, v%d" % L)
        a("s_lshl_b32 s%d, s%d, 12" % (t0, sCLS))
        a("s_nop 0")
        a("v_cndmask_b32 v%d, v%d, v%d, vcc" % (V_P2, V_P2, T + 6))
    PFM = cfg.get("f_pf", 0)
    PF0 = cfg.get("f_pf0", 8)
    if PFM & 2:
        a("buffer_load_dword a%d, v%d, %s, s%d offen" % (A_PD, V_P2, s4(R_WS), t0))
    def touch(n):
        lab = a.newlabel("F_pf")
        a("s_cmp_lg_u32 s%d, %d" % (sCLS, n & 7))
        a("s_cbranch_scc1 %s" % lab)
        if PFM & 1:
            a("s_mov_b32 s%d, %d" % (t0, n * 32 * 6144))
            a("s_mov_b32 s%d, %d" % (t1, n * 32 * 7168))
            a("buffer_load_dword a%d, v%d, %s, s%d offen" % (A_PD, V_P0, s4(R_WQ), t0))
            a("buffer_load_dword a%d, v%d, %s, s%d offen" % (A_PD - 1, V_P1, s4(R_W1), t1))
        if PFM & 2:
            a("s_mov_b32 s%d, %d" % (t0, n * 4096))
            a("buffer_load_dword a%d, v%d, %s, s%d offen" % (A_PD, V_P2, s4(R_WS), t0))
        a.label(lab)
    if PFM & 4:
        a("s_and_b32 s%d, s2, 1" % t0)
        a("v_lshrrev_b32 v%d, 5, v%d" % (T + 2, L))
        a("v_cmp_ne_u32 vcc, s%d, v%d" % (t0, T + 2))
        a("s_nop 1")
        a("v_cndmask_b32 v%d, v%d, v%d, vcc" % (V_P0, V_P0, T + 6))
        a("v_cndmask_b32 v%d, v%d, v%d, vcc" % (V_P1, V_P1, T + 6))
    PW = cfg.get("f_pw", 2); PW0 = cfg.get("f_pw0", 12)
    V_PW = 231
    a("v_lshlrev_b32 v%d, 7, v%d" % (V_PW, L))
    a("v_cmp_le_u32 vcc, 56, v%d" % L)
    a("s_nop 1")
    a("v_cndmask_b32 v%d, v%d, v%d, vcc" % (V_PW, V_PW, T + 6))
    ASY = cfg.get("f_asy", 0)
    if ASY:
        if cfg.get("f_xcc", 1):
            a("s_getreg_b32 s%d, hwreg(HW_REG_XCC_ID)" % t0)
            a("s_and_b32 s%d, s%d, 1" % (t0, t0))
        else: a("s_and_b32 s%d, s2, 1" % t0)
        if ASY == 2: a("s_xor_b32 s%d, s%d, 1" % (t0, t0))
        a("s_lshl_b32 s%d, s%d, 4" % (t0, t0))
        a("s_or_b32 s%d, s%d, s%d" % (sCLS, sCLS, t0))
    def touchw(cls, flip=0):
        lab = a.newlabel("F_pw")
        if cls is not None:
            a("s_cmp_lg_u32 s%d, %d" % (sCLS, cls))
            a("s_cbranch_scc1 %s" % lab)
        if flip:
            a("s_xor_b32 s%d, s2, 1" % t0)
            a("s_lshl_b32 s%d, s%d, 2" % (t0, t0))
        else: a("s_lshl_b32 s%d, s2, 2" % t0)
        a("s_add_u32 s%d, s%d, s%d" % (t0, t0, sW))
        a("s_mul_i32 s%d, s%d, 7168" % (t1, t0))
        a("buffer_load_dword a%d, v%d, %s, s%d offen" % (A_PD, V_PW, s4(R_W2), t1))
        a("s_lshl_b32 s%d, s%d, 11" % (t1, t0))
        a("s_mov_b64 exec, 0xffff")
        a("buffer_load_dword a%d, v%d, %s, s%d offen" % (A_PD - 1, V_PW, s4(R_WO), t1))
        a("s_mov_b64 exec, -1")
        a.label(lab)
    def touchp(k):
        a("s_lshl_b32 s%d, s2, 2" % t0)
        a("s_add_u32 s%d, s%d, s%d" % (t0, t0, sW))
        if k < 2:
            a("s_mul_i32 s%d, s%d, 7168" % (t1, t0))
            a("s_mov_b64 exec, 0xfffffff")
            a.vmem("buffer_load_dword a%d, v%d, %s, s%d offen offset:%d" % (A_PD, V_PW, s4(R_W2), t1, k * 3584), "T")
        else:
            a("s_lshl_b32 s%d, s%d, 11" % (t1, t0))
            a("s_mov_b64 exec, 0xffff")
            a.vmem("buffer_load_dword a%d, v%d, %s, s%d offen" % (A_PD, V_PW, s4(R_WO), t1), "T")
        a("s_mov_b64 exec, -1")
    def touchx(k):
        a("s_lshr_b32 s%d, s2, 3" % t0)
        a("s_lshl_b32 s%d, s%d, 2" % (t0, t0))
        a("s_add_u32 s%d, s%d, s%d" % (t0, t0, sW))
        a("s_lshl_b32 s%d, s%d, 7" % (t1, sQ))
        a("s_add_u32 s%d, s%d, s%d" % (t0, t0, t1))
        if k < 2:
            a("s_mul_i32 s%d, s%d, 14336" % (t1, t0))
            if k: a("s_add_u32 s%d, s%d, 7168" % (t1, t1))
            a("buffer_load_dword a%d, v%d, %s, s%d offen" % (A_PD - k, V_PW, s4(R_W2), t1))
        else:
            a("s_lshl_b32 s%d, s%d, 12" % (t1, t0))
            a("s_mov_b32 exec_hi, 0")
            a("buffer_load_dword a%d, v%d, %s, s%d offen" % (A_PD, V_PW, s4(R_WO), t1))
            a("s_mov_b32 exec_hi, -1")
    pfq = list(range(PF0, KS)) if PFM else []
    PFA = cfg.get("f_pfa", 30)
    a("v_lshrrev_b32 v%d, 5, v%d" % (T + 2, L))
    a("v_mul_u32_u24 v%d, %d, v%d" % (T + 2, REG, T + 2))
    a("v_and_b32 v%d, 3, v%d" % (T + 3, L))
    a("v_lshl_add_u32 v%d, v%d, 3, v%d" % (T + 2, T + 3, T + 2))
    a("v_bfe_u32 v%d, v%d, 2, 2" % (T + 3, L))
    a("v_bfe_u32 v%d, v%d, 4, 1" % (T + 4, L))
    a("v_lshl_add_u32 v%d, v%d, 6, v%d" % (V_RD, T + 3, T + 2))
    a("v_lshl_add_u32 v%d, v%d, 9, v%d" % (V_RD, T + 4, V_RD))
    a("v_lshl_add_u32 v%d, v%d, 5, v%d" % (V_RD, T + 4, V_RD))
    a("v_xor_b32 v%d, 32, v%d" % (V_RD + 1, V_RD))
    a("v_lshl_add_u32 v%d, v%d, 5, v%d" % (V_RD + 2, T + 3, T + 2))
    a("v_lshl_add_u32 v%d, v%d, 7, v%d" % (V_RD + 2, T + 4, V_RD + 2))
    for st_ in (1, 2):
        for x in range(3):
            a("v_add_u32 v%d, %d, v%d" % (V_RD + 3 * st_ + x, st_ * 2 * STAGE, V_RD + x))
    a("s_lshl_b32 s%d, s%d, 7" % (sKV, sJ))
    a("s_lshl_b32 s%d, s%d, 4" % (t0, sI))
    a("s_add_u32 s%d, s%d, s%d" % (sKV, sKV, t0))
    a("s_lshl_b32 s%d, s%d, 2" % (t0, sW))
    a("s_add_u32 s%d, s%d, s%d" % (sKV, sKV, t0))
    a("s_lshl_b32 s%d, s%d, 10" % (sKV, sKV))
    a("s_add_u32 s%d, s%d, 0x%x" % (sKV2, sKV, WS_V))
    a("s_add_u32 s%d, s%d, 0x%x" % (sKV, sKV, WS_K))
    a("s_sub_u32 s%d, s%d, 16384" % (sKP, sKV))
    a("s_sub_u32 s%d, s%d, 16384" % (sKP2, sKV2))
    a("s_cmp_eq_u32 s%d, 0" % sI)
    a("s_cselect_b32 s%d, 0x40000000, s%d" % (sKP, sKP))
    a("s_cselect_b32 s%d, 0x40000000, s%d" % (sKP2, sKP2))
    a("s_lshl_b32 s%d, s2, 2" % sFO)
    a("s_add_u32 s%d, s%d, s%d" % (sFO, sFO, sW))
    a("s_lshl_b32 s%d, s%d, 7" % (sFO, sFO))
    a("s_add_u32 s%d, s%d, 0x%x" % (sFO, sFO, WS_FL))
    a("s_add_u32 s%d, s%d, 1" % (t0, sI))
    a("s_and_b32 s%d, s%d, 3" % (t1, t0))
    a("s_lshl_b32 s%d, s%d, 3" % (t1, t1))
    a("s_lshr_b32 s%d, s%d, 2" % (t0, t0))
    a("s_or_b32 s%d, s%d, s%d" % (t1, t1, t0))
    a("s_and_b32 s%d, s2, 0xe6" % t0)
    a("s_or_b32 s%d, s%d, s%d" % (t1, t1, t0))
    a("s_lshl_b32 s%d, s%d, 2" % (t1, t1))
    a("s_add_u32 s%d, s%d, s%d" % (t1, t1, sW))
    a("s_lshl_b32 s%d, s%d, 7" % (t1, t1))
    a("s_add_u32 s%d, s%d, 0x%x" % (sFK, t1, WS_FL + 12))
    a("s_cmp_eq_u32 s%d, 7" % sI)
    a("s_cselect_b32 s%d, 0x40000000, s%d" % (sFK, sFK))
    a("v_cmp_ne_u32 vcc, 0, v%d" % L)
    a("v_mov_b32 v%d, 1" % V_ONE)
    a("v_and_b32 v%d, 31, v%d" % (V_PL, L))
    a("v_cndmask_b32 v%d, 0, v%d, vcc" % (V_FL0, T + 6))
    a("v_lshlrev_b32 v%d, 2, v%d" % (V_PL, V_PL))
    a("s_and_b32 s%d, s2, 31" % t0)
    a("s_lshl_b32 s%d, s%d, 2" % (t0, t0))
    a("s_add_u32 s%d, s%d, s%d" % (t0, t0, sW))
    a("s_lshl_b32 s%d, s%d, 7" % (t0, t0))
    a("s_lshl_b32 s%d, s%d, 2" % (t1, sN))
    a("s_add_u32 s%d, s%d, s%d" % (t0, t0, t1))
    a("s_add_u32 s%d, s%d, 0x%x" % (t0, t0, WS_FL))
    a("v_lshlrev_b32 v%d, 14, v%d" % (V_FG, L))
    a("v_add_u32 v%d, s%d, v%d" % (V_FG, t0, V_FG))
    a("v_cmp_le_u32 vcc, 8, v%d" % L)
    a("s_lshl_b32 s%d, s%d, 12" % (t0, sW))
    a("s_add_u32 s%d, s%d, %d" % (t0, t0, KVB))
    a("v_cndmask_b32 v%d, v%d, v%d, vcc" % (V_FG, V_FG, T + 6))
    a("v_add_u32 v%d, s%d, v%d" % (V_KVW, t0, V_L16))
    a("s_lshl_b32 s%d, s%d, 2" % (t0, sI))
    a("s_add_u32 s%d, s%d, s%d" % (t0, t0, sW))
    a("s_lshl_b32 s%d, s%d, 17" % (sXO, t0))
    a("s_mul_i32 s%d, s%d, 144" % (t0, t0))
    a("s_mul_i32 s%d, s%d, 36" % (t1, sQ))
    a("s_add_u32 s%d, s%d, s%d" % (t0, t0, t1))
    a("s_lshl_b32 s%d, s%d, 12" % (t0, t0))
    a("s_add_u32 s%d, s%d, 0x%x" % (t0, t0, WS_A2))
    a("s_add_u32 s%d, s%d, %d" % (sAE, t0, 28 * 4096))
    a("s_lshl_b32 s%d, s%d, 12" % (t1, sN))
    a("s_add_u32 s%d, s%d, s%d" % (sO, sAE, t1))
    a("s_mul_i32 s%d, s%d, 7" % (t1, sN))
    a("s_add_u32 s%d, s%d, s%d" % (t1, t1, sJ1))
    a("s_lshl_b32 s%d, s%d, 11" % (t1, t1))
    a("s_add_u32 s%d, s%d, s%d" % (sH, t0, t1))
    a("s_add_u32 s%d, s%d, 4096" % (sH + 1, sH))
    a("s_add_u32 s%d, s%d, 8192" % (sH + 2, sH))
    a("s_mul_i32 s%d, s%d, %d" % (sH + 3, sJ1, -4096 + 8 - 3 * 4096))
    a("s_add_u32 s%d, s%d, %d" % (sH + 3, sH + 3, 3 * 4096))
    a("s_add_u32 s%d, s%d, s%d" % (sH + 3, sH + 3, sH))
    a("s_lshl_b32 s%d, s%d, 8" % (t0, sN))
    a("s_add_u32 s%d, s%d, s%d" % (sXO, sXO, t0))
    a("s_lshl_b32 s%d, s%d, 6" % (t0, sQ))
    a("s_add_u32 s%d, s%d, s%d" % (sXO, sXO, t0))
    a("s_mov_b32 s%d, 0x%x" % (sSC, f2u(QSCALE)))
    def spin(mask, skip_if_i0=False):
        l0 = a.newlabel("F_sp"); l1 = a.newlabel("F_ok")
        if skip_if_i0:
            a("s_cmp_eq_u32 s%d, 0" % sI)
            a("s_cbranch_scc1 %s" % l1)
        a("s_mov_b32 s%d, 0x%x" % (sSP, SPIN))
        a.label(l0)
        a("v_cmp_ne_u32 vcc, 0, v%d" % V_POLL)
        a("s_and_b32 s%d, vcc_lo, 0x%x" % (t0, mask))
        a("s_cmp_eq_u32 s%d, 0x%x" % (t0, mask))
        a("s_cbranch_scc1 %s" % l1)
        a("buffer_load_dword v%d, v%d, %s, s%d offen sc1" % (V_POLL, V_PL, s4(R_WS), sFO))
        a("s_sub_u32 s%d, s%d, 1" % (sSP, sSP))
        a("s_waitcnt vmcnt(0)")
        a("s_cbranch_scc0 %s" % l0)
        a.label(l1)
    def poll_issue(tag):
        a.vmem("buffer_load_dword v%d, v%d, %s, s%d offen sc1" % (V_POLL, V_PL, s4(R_WS), sFO), tag)

    if FLN:
        while bops: issue1(bops.pop(0))
        if PW & 8: touchw(None)
        nb2 = cfg.get("f_lnb2", 3)
        b2 = [o for o in order if o[0] == "B" and o[1] < nb + nb2]
        for o in b2: order.remove(o)
        if BO == 1: b2 = [o for o in b2 if o[2] >= 3] + [o for o in b2 if o[2] < 3]
        if BO == 2: b2 = [o for o in b2 if o[2] < 3] + [o for o in b2 if o[2] >= 3]
        for _ in range(cfg.get("f_lnb2e", 0)): issue1(b2.pop(0))
        if PW & 8: a.vm += ["T", "T"]
        a.wait(vm="XS")
        stampr("lnd")
        a("s_barrier")
        lab = a.newlabel("F_ln"); l2 = a.newlabel("F_lp"); l3 = a.newlabel("F_lq"); l4 = a.newlabel("F_la")
        a("s_lshl_b32 s%d, s%d, 5" % (t0, sI))
        a("v_mov_b32 v1, s%d" % t0)
        a("s_cmp_lg_u32 s%d, 0" % sW)
        a("s_cbranch_scc1 %s" % lab)
        a("v_add_u32 v82, 1, v81")
        a("s_lshl_b64 exec, 1, s%d" % sJ)
        a("buffer_store_dword v82, v80, %s, 0 offen sc1" % s4(R_WS))
        a("s_mov_b64 exec, -1")
        a.label(lab)
        while b2: issue1(b2.pop(0))
        if PW & 16: touchw(None)
        a("s_cmp_lg_u32 s%d, 1" % sW)
        a("s_cbranch_scc1 %s" % l4)
        a("s_mov_b64 exec, 1")
        a("global_atomic_add v1, v%d, s[100:101] sc1" % V_ONE)
        a("s_mov_b64 exec, -1")
        a.label(l4)
        PALL = cfg.get("f_pall", 0)
        if not PALL:
            a("s_cmp_lg_u32 s%d, 0" % sW)
            a("s_cbranch_scc1 %s" % l3)
        else:
            a("s_lshl_b32 s%d, s%d, 3" % (t1, sW))
            a("s_lshl_b32 s%d, 0xff, s%d" % (t1, t1))
        a("s_mov_b32 s%d, 0x%x" % (sSP, SPIN))
        a.label(l2)
        a("buffer_load_dword v82, v80, %s, 0 offen sc1" % s4(R_WS))
        a("s_waitcnt vmcnt(0)")
        a("v_cmp_ne_u32 vcc, v81, v82")
        if PALL:
            a("s_and_b32 s%d, vcc_lo, s%d" % (t0, t1))
            a("s_cmp_eq_u32 s%d, s%d" % (t0, t1))
        else: a("s_cmp_eq_u32 vcc_lo, -1")
        a("s_cbranch_scc1 %s" % l3)
        a("s_sub_u32 s%d, s%d, 1" % (sSP, sSP))
        a("s_cbranch_scc1 %s" % l3)
        a("s_and_b32 s%d, s%d, 7" % (t0, sSP))
        a("s_cbranch_scc1 %s" % l2)
        a("global_load_dword v2, v1, s[100:101] sc1")
        a("s_waitcnt vmcnt(0)")
        a("v_readfirstlane_b32 s%d, v2" % t0)
        a("s_cmp_lt_u32 s%d, 32" % t0)
        a("s_cbranch_scc1 %s" % l2)
        a.label(l3)
        if not PALL: a("s_barrier")
        stampr("lnp")
        for _ in range(8): issue1(order.pop(0))
        order[:0] = bops
    gi = []
    def grp(units, s0, s1, tiles, C):
        s = s0
        while s < s1:
            c = min(C, s1 - s)
            for t in tiles:
                g0 = len(units); gn = gi[-1][2] + 1 if gi else 0
                for k in range(c):
                    units.append((s + k, t)); gi.append((g0, c, gn))
            s += c
    units = []
    grp(units, 0, C1S, range(NT), 2)
    C1E = cfg.get("f_c1e", S1)
    grp(units, C1S, C1E, range(NT), C1)
    grp(units, C1E, S1, range(NT), 2)
    grp(units, S1, KS, (2, 3, 4, 5), C1K)
    UKV = len(units)
    grp(units, S1, KS, (6, 7, 8, 9), C1T)
    UH01 = len(units)
    grp(units, S1, KS, (10, 11, 12, 0, 1), C1T)
    NU = len(units)
    last_unit_of_stage = {}
    last_unit_of_step = {}
    for u, (s, t) in enumerate(units):
        last_unit_of_stage[s // 2] = u; last_unit_of_step[s] = u
    stt = dict(ready=-1, free=set(), waited=-1, issued=-1)
    def barrier():
        a("s_barrier")
        for g, lu in last_unit_of_stage.items():
            if lu <= stt["waited"]: stt["free"].add(g)
    def can1(op):
        if op[0] == "B": return op[1] < NS or (op[1] - NS) in stt["free"]
        return op[1] < RA or last_unit_of_step[op[1] - RA] <= stt["issued"]
    def flush1(tag):
        while any(o[:2] == tag for o in order):
            op = order.pop(0)
            assert can1(op), (op, stt)
            if cfg.get("verbose"): print("late flush", op, file=sys.stderr)
            issue1(op)
    def bread1(u, j2):
        s, t = units[u]
        slot = slot1(s // 2); st_ = slot // 2
        off = (slot % 2) * STAGE + (s % 2) * 2 * REG + j2 * 256
        if t < 12: off += PAIRPOS[t // 2] * 1024; vr = V_RD + 3 * st_ + (t % 2)
        else: off += 6144; vr = V_RD + 3 * st_ + 2
        a.lds("ds_read_b64_tr_b16 %s, v%d offset:%d" % (r2("a", BR + (u % RB) * 4 + j2 * 2), vr, off), ("b", u))
    def need1(u):
        g = units[u][0] // 2
        if g > stt["ready"]:
            flush1(("B", g)); a.wait(vm=("B", g)); barrier(); stt["ready"] = g
    def pack(c0, c1, relu=False):
        ops = []
        for hh, c in enumerate((c0, c1)):
            if c is None: continue
            for e2 in range(2):
                ops.append("v_cvt_pk_bf16_f32 v%d, v%d, v%d" % (c0 + 2 * hh + e2, c + 2 * e2, c + 2 * e2 + 1))
            if relu:
                for e2 in range(2):
                    ops.append("v_pk_max_i16 v%d, v%d, 0" % (c0 + 2 * hh + e2, c0 + 2 * hh + e2))
        return ops
    HF = ["sc1", "", "nt", "sc0"][cfg.get("f_hf", 0)]
    def hstore(p, mt):
        if p < 3: a.vmem("buffer_store_dwordx4 %s, v%d, %s, s%d offen offset:%d %s" % (r4("v", acc(mt, 6 + 2 * p)), V_L16, s4(R_WS), sH + p, mt * 1024, HF), "H")
        else: a.vmem("buffer_store_dwordx2 %s, v%d, %s, s%d offen offset:%d %s" % (r2("v", acc(mt, 12)), V_L16, s4(R_WS), sH + 3, mt * 1024, HF), "H")
    need1(0)
    stampr("bar0")
    for u in range(DB):
        need1(u)
        bread1(u, 0); bread1(u, 1)
    kvq = [(acc(mt, 2), acc(mt, 3), sKV, mt * 1024, 16384 + mt * 1024) for mt in range(MT)] + \
          [(acc(2 * b, 4 + dt), acc(2 * b + 1, 4 + dt), sKV2, (2 * b + dt) * 1024, 49152 + (2 * b + dt) * 1024) for b in range(2) for dt in range(2)]
    NREST = NU - UKV
    UFLAG = UKV + cfg.get("f_uf", 28)
    UPOLL = UFLAG + cfg.get("f_up", 14)
    UCHK = min(UPOLL + cfg.get("f_uc", 8), NU - 1)
    UPW = UCHK + cfg.get("f_uw", 14)
    V2_DMA = 209; V_XO = 211; V2_RD = 232; V2_B = 231
    bias = [232, 236, 240, 244]; VONES = 248; VM = 252
    sB2 = sBQ; sBO = sBV
    class Rec:
        def __init__(self): self.l = []
        def __call__(self, x): self.l.append(x)
    su = Rec(); TT = VM
    HO = cfg.get("f_ho", 0)
    su("v_lshrrev_b32 v%d, 4, v%d" % (TT, L))
    su("v_lshlrev_b32 v%d, 11, v%d" % (V2_DMA, TT))
    su("v_lshlrev_b32 v%d, 1, v%d" % (TT, TT))
    su("v_and_b32 v%d, 15, v%d" % (TT + 1, L))
    su("v_xor_b32 v%d, v%d, v%d" % (TT, TT, TT + 1))
    su("v_lshl_add_u32 v%d, v%d, 4, v%d" % (V2_DMA, TT, V2_DMA))
    su("s_and_b32 s%d, s%d, 1" % (t1, sW))
    su("s_lshl_b32 s%d, s%d, 7" % (t1, t1))
    su("v_xor_b32 v%d, s%d, v%d" % (V2_DMA, t1, V2_DMA))
    su("v_add_u32 v%d, %d, v%d" % (V2_DMA + 1, 32768 - 1024, V2_DMA))
    su("v_lshrrev_b32 v%d, 4, v%d" % (TT, L))
    su("v_lshlrev_b32 v%d, 2, v%d" % (TT, TT))
    for e in range(4):
        su("v_add_u32 v%d, %d, v%d" % (TT + 2, e, TT))
        su("v_cmp_le_u32 s[%d:%d], v%d, v%d" % (sMK + 2 * e, sMK + 2 * e + 1, TT + 2, TT + 1))
    su("s_lshl_b32 s%d, s%d, 13" % (t2, sW))
    su("s_lshl_b32 s%d, s%d, 8" % (t1, sN))
    su("s_add_u32 s%d, s%d, s%d" % (t2, t2, t1))
    su("s_lshl_b32 s%d, s%d, 19" % (sBO, sQ))
    su("s_add_u32 s%d, s%d, s%d" % (sBO, sBO, t2))
    su("s_mul_i32 s%d, s%d, %d" % (sB0, sQ, 896 * 2048))
    su("s_add_u32 s%d, s%d, s%d" % (sB0, sB0, t2))
    su("s_add_u32 s%d, s%d, %d" % (sBE, sB0, 896 * 2048))
    su("s_mul_i32 s%d, s%d, 7" % (t1, sN))
    su("s_add_u32 s%d, s%d, s%d" % (t1, t1, sJ1))
    su("s_lshl_b32 s%d, s%d, 15" % (t1, t1))
    su("s_add_u32 s%d, s%d, s%d" % (sB2, sB0, t1))
    LIN = cfg.get("f_lin", 1)
    if LIN:
        su("s_sub_u32 s%d, s%d, %d" % (sA, sAE, 28 * 4096))
        su("s_mov_b32 s%d, s%d" % (sAE, sH))
        su("s_add_u32 s%d, s%d, %d" % (sA0, sH, 3 * 4096))
        su("s_mov_b32 s%d, s%d" % (sBW, sB0))
        su("s_mov_b32 s%d, s%d" % (sBE, sB2))
        su("s_add_u32 s%d, s%d, %d" % (sB0, sB2, 3 * 65536))
    else:
        su("s_add_u32 s%d, s%d, %d" % (sA, sH, 3 * 4096))
        su("s_sub_u32 s%d, s%d, %d" % (sA0, sAE, 28 * 4096))
    su("s_cmp_eq_u32 s%d, s%d\ns_cselect_b32 s%d, s%d, s%d" % (sA, sAE, sA, sA0, sA))
    su0 = su.l; su = Rec()
    KS2 = 36
    LOC = [(0, 1), (1, 1), (2, 1), (0, 3), (1, 3), (2, 3), (0, 5), (1, 5), (2, 5), (3, 1), (3, 3), (3, 5), (4, 1), (4, 3), (4, 5)]
    NSL = len(LOC)
    def dma2_txt(p):
        sb, so = (R_W2, sB2) if p < 28 else (R_WO, sBO)
        sl, pos = LOC[p % NSL]
        ops = [(0, "s_add_u32 m0, s%d, %d" % (sLB, sl * STAGE + pos * 1024)),
               (1, "buffer_load_dwordx4 v%d, %s, s%d offen lds" % (V2_DMA, s4(sb), so)),
               (1, "buffer_load_dwordx4 v%d, %s, s%d offen offset:1024 lds" % (V2_DMA + 1, s4(sb), so))]
        if p == 2: ops.append((0, "s_mov_b32 s%d, s%d" % (sB2, sBW)))
        elif p != 27 and p != 35: ops.append((0, "s_add_u32 s%d, s%d, 65536" % (so, so)))
        if 2 <= p < 27: ops.append((0, "s_cmp_eq_u32 s%d, s%d\ns_cselect_b32 s%d, s%d, s%d" % (sB2, sBE, sB2, sB0, sB2)))
        return ops
    def dma2_ops(p):
        return [(k, (lambda x=x: a.vmem(x, ("B2", p))) if k else (lambda x=x: a(x))) for k, x in dma2_txt(p)]
    def hole_ops(ps):
        o = []
        for p in ps:
            for k, x in dma2_txt(p):
                if k: o += [("m", lambda x=x, p=p: a.vmem(x, ("B2", p)))] + [None] * cfg.get("f_hosp", 3)
                else: o += [x] + ([None] if "m0" in x else [])
        return o
    su("s_lshl_b32 s%d, s%d, 2" % (t1, sI))
    su("s_add_u32 s%d, s%d, s%d" % (t1, t1, sW))
    for gq in range(4):
        su("s_cmp_lt_u32 s%d, %d\ns_cselect_b32 s%d, 0x%x, 0" % (t1, 4 - gq, t2, f2u(-1e30)))
        for e in range(4): su("v_mov_b32 v%d, s%d" % (bias[gq] + e, t2))
    for e in range(4): su("v_mov_b32 v%d, 0x3f803f80" % (VONES + e))
    su("v_lshrrev_b32 v%d, 2, v%d" % (TT, L))
    su("v_and_b32 v%d, 7, v%d" % (TT + 2, TT))
    su("v_and_b32 v%d, 3, v%d" % (TT, TT))
    su("v_lshlrev_b32 v%d, 8, v%d" % (TT, TT))
    su("v_lshrrev_b32 v%d, 4, v%d" % (TT + 1, L))
    su("v_mul_u32_u24 v%d, %d, v%d" % (TT + 1, REG, TT + 1))
    su("v_add_u32 v%d, v%d, v%d" % (TT, TT, TT + 1))
    su("v_and_b32 v%d, 3, v%d" % (TT + 1, L))
    su("v_lshl_add_u32 v%d, v%d, 3, v%d" % (TT, TT + 1, TT))
    su("v_lshl_add_u32 v%d, v%d, 5, v%d" % (V2_B, TT + 2, TT))
    su("s_lshl_b32 s%d, s%d, 6" % (t1, sQ))
    su("s_xor_b32 s%d, s%d, 192" % (t1, t1))
    su("v_xor_b32 v%d, s%d, v%d" % (V2_B, t1, V2_B))
    su("v_mov_b32 v%d, 0xffff" % TT)
    su("v_mov_b32 v%d, 0xffff0000" % (TT + 1))
    su("v_cndmask_b32 v%d, 0, v%d, s[%d:%d]" % (VM + 2, TT, sMK, sMK + 1))
    su("v_cndmask_b32 v%d, 0, v%d, s[%d:%d]" % (VM + 3, TT, sMK + 4, sMK + 5))
    su("v_cndmask_b32 v%d, 0, v%d, s[%d:%d]" % (TT, TT + 1, sMK + 2, sMK + 3))
    su("v_cndmask_b32 v%d, 0, v%d, s[%d:%d]" % (TT + 1, TT + 1, sMK + 6, sMK + 7))
    su("v_or_b32 v%d, v%d, v%d" % (VM + 2, VM + 2, TT))
    su("v_or_b32 v%d, v%d, v%d" % (VM + 3, VM + 3, TT + 1))
    SPF = cfg.get("f_spf", 0)
    if SPF:
        su("s_lshr_b32 s%d, s2, 3" % t1)
        su("s_lshl_b32 s%d, s%d, 1" % (t1, t1))
        su("s_and_b32 s%d, s2, 1" % t2)
        su("s_add_u32 s%d, s%d, s%d" % (t1, t1, t2))
        su("s_lshl_b32 s%d, s%d, 2" % (t1, t1))
        su("s_add_u32 s%d, s%d, s%d" % (t1, t1, sW))
        su("s_lshl_b32 s%d, s%d, 7" % (t1, t1))
        su("s_mul_i32 s%d, s%d, %d" % (t2, sQ, 14336 * 128))
        su("s_add_u32 s%d, s%d, s%d" % (t2, t2, t1))
        su("s_add_u32 s%d, s%d, s%d\ns_addc_u32 s%d, s%d, 0" % (P_W2, P_W2, t2, P_W2 + 1, P_W2 + 1))
        su("s_add_u32 s%d, s%d, %d\ns_addc_u32 s%d, s%d, 0" % (P_WQ, P_W2, 28 * 32768, P_WQ + 1, P_W2 + 1))
        su("s_lshl_b32 s%d, s%d, 19" % (t2, sQ))
        su("s_add_u32 s%d, s%d, s%d" % (t2, t2, t1))
        su("s_add_u32 s%d, s%d, s%d\ns_addc_u32 s%d, s%d, 0" % (P_WO, P_WO, t2, P_WO + 1, P_WO + 1))
    V_T128 = V_XO
    TCN = cfg.get("f_tc", 0)
    su("v_lshlrev_b32 v%d, %d, v%d" % (V_T128, 15 if TCN else 7, L))
    if TCN:
        su("s_lshr_b32 s%d, s2, 3" % t1)
        su("s_lshl_b32 s%d, s%d, 1" % (t1, t1))
        su("s_and_b32 s%d, s2, 1" % t2)
        su("s_add_u32 s%d, s%d, s%d" % (t1, t1, t2))
        su("s_lshl_b32 s%d, s%d, 2" % (t1, t1))
        su("s_add_u32 s%d, s%d, s%d" % (t1, t1, sW))
        su("s_lshl_b32 s%d, s%d, 7" % (t1, t1))
        su("s_mul_i32 s%d, s%d, %d" % (sCLS, sQ, 14336 * 128))
        su("s_add_u32 s%d, s%d, s%d" % (sCLS, sCLS, t1))
        su("s_lshl_b32 s%d, s%d, 19" % (t3, sQ))
        su("s_add_u32 s%d, s%d, s%d" % (t3, t3, t1))
    def selftouch(so, half):
        if half: a("s_mov_b32 exec_hi, 0")
        a.vmem("buffer_load_dword a%d, v%d, %s, s%d offen sc1" % (A_PD, V_T128, s4(R_WS), so), "T")
        if half: a("s_mov_b32 exec_hi, -1")
    HK = cfg.get("f_hk", 0)
    if HK:
        assert RA == 12 and D1 == 8 and BR + RB * 4 <= 232 and UPW < NU
        kreg = lambda kt: 128 + 4 * kt if kt < 16 else 232 + 4 * (kt - 16)
        VF = 0
    else:
        kreg = lambda kt: 4 * kt
        VF = 80
    def kread(kt): a.lds("ds_read_b128 %s, v%d offset:%d" % (r4("a", kreg(kt)), V_KVW, kt * 1024), ("k", kt))
    def kpw(x):
        c0, c1, so, go, lo = kvq[x]
        a.wait(vm=("KP", x))
        a.lds("ds_write_b128 v%d, %s offset:%d" % (V_KVW, r4("v", c1), lo - 16384), "kvw")
    def codepf(vreg=None):
        if vreg is None: vreg = V_PW
        lab = a.newlabel("F_pc")
        a("s_getpc_b64 s[%d:%d]" % (R_WQ, R_WQ + 1))
        a.label(lab)
        a("s_and_b32 s%d, s%d, 0xffff" % (R_WQ + 1, R_WQ + 1))
        a("s_mov_b32 s%d, CODE_END - %s" % (R_WQ + 2, lab))
        a("s_lshr_b32 s%d, s2, 3" % t0)
        a("s_lshl_b32 s%d, s%d, 2" % (t0, t0))
        a("s_add_u32 s%d, s%d, s%d" % (t0, t0, sW))
        a("s_lshl_b32 s%d, s%d, 9" % (t0, t0))
        a("s_mov_b64 exec, 15")
        a.vmem("buffer_load_dword a%d, v%d, %s, s%d offen" % (A_PD, vreg, s4(R_WQ), t0), "T")
        a("s_mov_b64 exec, -1")
    seenA = set()
    ramp = (RA - 1 - LA) / float(S1 * NT)
    WM = cfg.get("f_wm", 200) / 100.0
    W0 = cfg.get("f_w0", 100) / 100.0
    UEND = S1 * NT + cfg.get("f_uend", 8)
    wts = [0.0] + [W0 * sum(1 for o in order if (o[1] if o[0] == "B" else o[1] // 2) == g) / 15.0 for g in (1, 2, 3)] + [WM if g % 4 == 0 else 1.0 for g in range(4, 16)]
    ipos = {}
    if cfg.get("f_lw", 0) == 2:
        no = []
        for g in range(16):
            bl = [o for o in order if o[0] == "B" and o[1] == g]; al = [o for o in order if o[0] == "A" and o[1] // 2 == g]
            if len(bl) == 7: mix = [bl[0], al[0], al[1], bl[1], al[2], al[3], bl[2], al[4], bl[3], bl[4], bl[5], bl[6], al[5], al[6], al[7]]
            else: mix = bl + al
            for k, o in enumerate(mix): ipos[o] = k
            no += mix
        order[:] = no
    noB = set(g for g in range(16) if not any(o[0] == "B" and o[1] == g for o in order))
    tau = [0.0]
    for g in range(16): tau.append(tau[-1] + wts[g])
    tau = [x * UEND / tau[-1] for x in tau]
    def due(op):
        g = op[1] if op[0] == "B" else op[1] // 2
        idx = op[2] if op[0] == "B" else 7 + (op[1] % 2) * 4 + op[2]
        if cfg.get("f_wb", 0) and op[0] == "B" and op[2] > 3: idx = 3
        if g in noB: return tau[g] + (tau[g + 1] - tau[g]) * (idx - 7) / 8.0
        if cfg.get("f_lw", 0) == 1:
            lw = [64, 64, 64, 56, 36, 44, 24] + [32] * 8
            return tau[g] + (tau[g + 1] - tau[g]) * sum(lw[:idx]) / float(sum(lw))
        if cfg.get("f_lw", 0) == 2: return tau[g] + (tau[g + 1] - tau[g]) * ipos[op] / 15.0
        return tau[g] + (tau[g + 1] - tau[g]) * idx / 15.0
    DF = cfg.get("f_df", 0); PZ0 = cfg.get("f_pz0", 4)
    THR1 = cfg.get("f_thr1", 63)
    side = G.side
    def prewait1(u):
        u += gi[u][1] - 1
        s, t = units[u]
        if s not in seenA:
            flush1(("A", s)); seenA.add(s)
            r = a.wait(vm=("A", s), lg=("b", u))
        else: r = a.wait(lg=("b", u))
        stt["waited"] = u
        return r
    prewait1(0)
    for u in range(NU):
        u0, C_, gn = gi[u]; kk = u - u0
        s, t = divmod(u, NT) if u < S1 * NT else units[u]
        un = u + DB
        if un < NU: need1(un)
        if u in ((S1 - 4) * NT + 2, (S1 - 2) * NT + 2, S1 * NT + 2): barrier()
        elif cfg.get("f_xb", 0) and u < S1 * NT and u % (2 * NT) == 0 and u > 0: barrier()
        if S1 // 2 <= 12 and u == last_unit_of_stage[12] + 2: barrier()
        if pfq and u % 4 == 2 and pfq[0] - 1 <= (u + PFA) / NT + LA + ramp * (u + PFA): touch(pfq.pop(0))
        if PW & 4:
            for k in range(3):
                if u == S1 * NT + cfg.get("f_px0", 4) + k * cfg.get("f_pxd", 16): touchx(k)
        if PW == 1 and u == UKV - PW0: touchw(None)
        if PW & 3 == 2 and u < S1 * NT and t == 8 and PW0 <= s < PW0 + 8: touchw((s + 4) & 7)
        PW1 = cfg.get("f_pw1", 4)
        if ASY and PW & 3 == 2 and u < S1 * NT and t == 8 and PW1 <= s < PW1 + 8: touchw((s + 4 + PW0 - PW1) & 7, 1)
        if u == 16 * NT: stampr("g1half")
        if u < S1 * NT and t == 0: stampr("g1s%d" % s)
        if u == S1 * NT: stampr("g1tail")
        if u == UKV:
            stampr("g1kv")
            if cfg.get("f_cpf", 1): codepf()
        if DF and u == 3 * NT:
            side += ["v_mov_b32 v%d, -1" % (T + e) for e in range(4)]
            side += ["s_lshl_b32 s%d, s2, 2" % t3, "s_add_u32 s%d, s%d, s%d" % (t3, t3, sW), "s_mul_i32 s%d, s%d, 12288" % (t3, t3),
                     "s_add_u32 s%d, s%d, 0x%x" % (t3, t3, WS_XC),
                     "v_xor_b32 v%d, 3, v%d" % (T + 4, L), "v_lshlrev_b32 v%d, 1, v%d" % (T + 4, T + 4), "v_xor_b32 v%d, s2, v%d" % (T + 4, T + 4),
                     "v_lshlrev_b32 v%d, 9, v%d" % (T + 4, T + 4), "v_lshl_add_u32 v%d, v%d, 2, v%d" % (T + 4, L, T + 4)]
        if DF and u < S1 * NT and t == 4 and PZ0 <= s < PZ0 + 12:
            k_ = s - PZ0
            side.append(("m", lambda k_=k_: a.vmem("buffer_store_dwordx4 %s, v%d, %s, s%d offen offset:%d sc1" % (r4("v", T), V_L16, s4(R_WS), t3, (k_ % 4) * 1024), "PZ")))
            if k_ % 4 == 3: side.append("s_add_u32 s%d, s%d, 4096" % (t3, t3))
        if DF and u == (PZ0 + 14) * NT + 5:
            assert a.vm.count("PZ") == 12
            a.wait(vm="PZ")
            a("s_lshl_b32 s%d, s%d, 7" % (t3, sW))
            a("s_add_u32 s%d, s%d, 0x%x" % (t3, t3, WS_FL))
            a("s_mov_b64 exec, 7")
            a.vmem("buffer_store_dword v%d, v%d, %s, s%d offen sc1" % (V_ONE, T + 4, s4(R_WS), t3), "RF")
            a("s_mov_b64 exec, -1")
        if FLN and u == 20 * NT + 3:
            a("v_and_b32 v%d, 7, v%d" % (V_P0, L))
            a("v_lshlrev_b32 v%d, 5, v%d" % (V_P0, V_P0))
            a.vmem("global_load_dword v%d, v%d, s[100:101] sc1" % (V_POLL, V_P0), "CN")
        if FLN and u == 22 * NT + 3:
            a.wait(vm="CN")
            l0 = a.newlabel("F_cn"); l1 = a.newlabel("F_ok")
            a("s_mov_b32 s%d, 0x%x" % (sSP, SPIN))
            a.label(l0)
            a("v_cmp_le_u32 vcc, 32, v%d" % V_POLL)
            a("s_cmp_eq_u32 vcc_lo, -1")
            a("s_cbranch_scc1 %s" % l1)
            a("global_load_dword v%d, v%d, s[100:101] sc1" % (V_POLL, V_P0))
            a("s_sub_u32 s%d, s%d, 1" % (sSP, sSP))
            a("s_waitcnt vmcnt(0)")
            a("s_cbranch_scc0 %s" % l0)
            a.label(l1)
        if u == UFLAG:
            stampr("g1flag0")
            assert a.vm.count("KV") == 8
            a.wait(vm="KV")
            stampr("g1flag1")
            a.vmem("buffer_store_dword v%d, v%d, %s, s%d offen sc1" % (V_ONE, V_FL0, s4(R_WS), sFK), "FK")
        if u == UPOLL: poll_issue("PK")
        if u == UCHK:
            a.wait(vm="PK")
            spin(1 << 3, skip_if_i0=True)
            stampr("g1chk")
            if HK:
                def kd(so, k, chk):
                    if chk: assert 12 in stt["free"]
                    a.vmem("buffer_load_dwordx4 v%d, %s, s%d offen offset:%d sc1 lds" % (V_L16, s4(R_WS), so, k * 1024), "KD")
                new_ = ["s_lshl_b32 s%d, s%d, 12\ns_add_u32 m0, s%d, %d" % (t0, sW, t0, KVB + 32768), None]
                new_ += [("m", lambda k=k: kd(sKP2, k, False)) for k in range(4)]
                new_ += ["s_sub_u32 m0, m0, 32768", None]
                new_ += [("m", lambda k=k: kd(sKP, k, True)) for k in range(4)]
                side[:0] = new_
            else:
              for x, (c0, c1, so, go, lo) in enumerate(kvq):
                def f(c1=c1, so=(sKP if x < 4 else sKP2), go=go, x=x):
                    a.vmem("buffer_load_dwordx4 %s, v%d, %s, s%d offen offset:%d sc1" % (r4("v", c1), V_L16, s4(R_WS), so, go), ("KP", x))
                side.insert(x, ("m", f))
        if HK and u == UPW:
            assert a.vm.count("KD") == 8 and a.lg.count("kvw") == 8
            a.wait(vm="KD", lg="kvw"); barrier()
            stampr("g1kb")
            side[:0] = [("v", lambda kt=kt: kread(kt)) for kt in range(20)]
        nxt = None
        if order and can1(order[0]) and len(G.sal) <= 1 and due(order[0]) <= u: nxt = order.pop(0)
        if nxt and cfg.get("verbose", 0) > 1: print("issue", u, nxt, "due %.0f" % due(nxt), file=sys.stderr)
        if PW & 32 and nxt:
            tk = cfg.get("f_tk", 0)
            key = ("B", nxt[1], tk) if tk < 7 else ("A", nxt[1], (tk - 7) % 4)
            g_ = nxt[1] if nxt[0] == "B" else nxt[1] // 2
            if nxt == key and g_ in (4, 8, 12) and (nxt[0] == "B" or nxt[1] % 2 == (tk - 7) // 4): touchp(g_ // 4 - 1)
        for mt in range(MT):
            m_, k_ = divmod(kk * MT + mt, C_)
            if cfg.get("f_kz", 1) and m_ % 2 == 1 and units[u0][0] > 0: k_ = C_ - 1 - k_
            mz = m_ if gn % 2 == 0 else MT - 1 - m_
            s_, t_ = units[u0 + k_]
            bf = r4("a", BR + ((u0 + k_) % RB) * 4)
            af = r4("a", AR + (s_ % RA) * 16 + mz * 4)
            c = r4("v", acc(mz, t_))
            src = "0" if s_ == 0 else c
            if t_ in (4, 5): a("%s %s, %s, %s, %s" % (MF, c, af, bf, src))
            else:            a("%s %s, %s, %s, %s" % (MF, c, bf, af, src))
            rd = (lambda mt=mt: bread1(un, mt)) if (mt < 2 and un < NU) else None
            if mt == 0: G.gap(fixed=rd)
            elif mt == 1:
                if nxt and nxt[0] == "B": G.gap(first=lambda: (dma1(nxt[1], nxt[2], 0), True)[1], fixed=rd)
                else: G.gap(fixed=rd)
            elif mt == 2:
                if nxt:
                    assert not G.sal
                    G.gap(first=(lambda: a.throttle(THR1)), mem=((lambda: aload1(nxt[1], nxt[2])) if nxt[0] == "A" else (lambda: dma1(nxt[1], nxt[2], 1))))
                else: G.gap()
            else:
                if kk == C_ - 1:
                    stt["issued"] = u
                    G.gap(first=(lambda: prewait1(u + 1)) if u + 1 < NU else None)
                else: G.gap()
        if u == UKV - 1:
            assert 11 in stt["free"], stt
            side += [None] * 5
            for (c0, c1, so, go, lo) in kvq:
                side += pack(c0, c1)
                def f(c0=c0, so=so, go=go):
                    a.vmem("buffer_store_dwordx4 %s, v%d, %s, s%d offen offset:%d sc1" % (r4("v", c0), V_L16, s4(R_WS), so, go), "KV")
                side.append(("m", f))
            for (c0, c1, so, go, lo) in kvq:
                def f(c0=c0, lo=lo):
                    a.lds("ds_write_b128 v%d, %s offset:%d" % (V_KVW, r4("v", c0), lo), "kvw")
                side += [("x", f), None]
            assert not order and stt.get("su0")
            side += su.l
        if u >= S1 * NT and not order and not G.sal and not stt.get("su0"):
            side += su0; stt["su0"] = True
        if HO and u == UKV + cfg.get("f_ho1", 30):
            barrier(); side[:0] = hole_ops(range(0, min(3, HO)))
        if HO > 3 and u == UKV + cfg.get("f_ho2", 56):
            assert u > UH01 and a.vm.count(("B2", 2)) == 2 and not any(isinstance(x, str) and ("s%d, s%d" % (sB2, sBE)) in x for x in side)
            barrier(); side[:0] = hole_ops(range(3, HO))
        if u == UPW and not HK:
            assert 12 in stt["free"]
            side[:0] = [y for x in range(8) for y in (("x", lambda x=x: kpw(x)), None)]
        if u == UH01 - 1:
            side += [None] * 5
            for p in range(2):
                for mt in range(MT):
                    side += pack(acc(mt, 6 + 2 * p), acc(mt, 7 + 2 * p), relu=True)
                    if p * 4 + mt < cfg.get("f_hearly", 8):
                        side.append(("m", lambda p=p, mt=mt: hstore(p, mt)))
                        side += [None] * cfg.get("f_hsp", 8)
        if u == UCHK:
            assert UCHK >= UH01
            for x in range(cfg.get("f_hearly", 8), 8):
                side += [("m", lambda x=x: hstore(x // 4, x % 4))] + [None] * cfg.get("f_hsp2", 6)
    if cfg.get("verbose"): print("G1 side left", len([x for x in side if x is not None]), file=sys.stderr)
    G.drain()
    assert not order
    assert 12 in stt["free"]
    stampr("g1end")

    va = []
    for mt in range(MT): va += pack(acc(mt, 10), acc(mt, 11), relu=True)
    if HK:
        stampr("attbeg")
        for _ in range(8): a(va.pop(0))
    else:
        if UPW >= NU:
            for x in range(8): kpw(x)
        a.wait(lg="kvw")
        a("s_barrier")
        stampr("attbeg")
        for kt in range(20):
            kread(kt)
            a(va.pop(0))
    for mt in range(MT):
        for t in (0, 1):
            for e2 in range(2):
                c = acc(mt, t) + 2 * e2
                a("v_pk_mul_f32 v[%d:%d], v[%d:%d], s[%d:%d] op_sel_hi:[1,0]" % (c, c + 1, c, c + 1, sSC, sSC + 1))
        if mt == 0:
            for x in pack(acc(mt, 0), acc(mt, 1)): a(x)
    STCH = cfg.get("f_st", 0)
    a.vm = [("H01" if t == "H" else t) for t in a.vm]
    stq = [(cfg.get("f_st0", 200), sH), (cfg.get("f_st1", 380), sH + 1)] if STCH & 1 else []
    hstore(2, 0)
    for mt in range(1, MT): va += pack(acc(mt, 0), acc(mt, 1))
    for mt in range(MT): va += pack(acc(mt, 12), None, relu=True)
    free = [acc(mt, t) for t in (2, 3, 4, 5, 7, 9) for mt in range(MT)] + [212, 216, 220] + [acc(mt, t) for t in (11, 1) for mt in range(MT)]

    C2 = cfg.get("f_c2", 2)
    C2T = cfg.get("f_c2t", 4); C2S = cfg.get("f_c2s", 5)
    CM2 = max(C2, C2T, 3)
    RA2 = cfg.get("f_ra2", 13); DB2 = cfg.get("f_db2", CM2 + 2); RB2 = DB2 + CM2
    assert DB2 >= CM2
    BR2 = RA2 * 16
    assert BR2 + RB2 * 4 <= 256
    def aslot(p): return ((p - 3 + 10) % RA2) * 16
    def aload2(p, mt):
        a.vmem("buffer_load_dwordx4 %s, v%d, %s, s%d offen offset:%d %s" % (r4("a", aslot(p) + mt * 4), V_L16, s4(R_WS), sA, mt * 1024, ["sc1", "sc1 nt", ""][cfg.get("f_af", 0)]), ("A2", p))
        if mt == MT - 1:
            if p == 27 and not LIN: G.sal.append("s_mov_b32 s%d, s%d" % (sA, sAE))
            else:
                G.sal.append("s_add_u32 s%d, s%d, 4096" % (sA, sA))
                if p <= 27: G.sal.append("s_cmp_eq_u32 s%d, s%d\ns_cselect_b32 s%d, s%d, s%d" % (sA, sAE, sA, sA0, sA))
    hst = [(2, 1), (2, 2), (2, 3)] + [(3, mt) for mt in range(MT)]
    NPRE = cfg.get("f_npre", 10)
    assert NPRE >= 3
    pre = []
    assert HO <= NPRE <= NSL
    for p in range(HO, NPRE): pre += [(p,) + op for op in dma2_ops(p)]

    S_ = {}; P_ = {}; O_ = {}
    def s_mfma(qa, kt):
        q = free.pop(0); S_[(qa, kt)] = q
        a.wait(lg=("k", kt))
        c = r4("v", bias[kt // 4]) if kt < 16 else "0"
        a("%s %s, %s, %s, %s" % (MF, r4("v", q), r4("a", kreg(kt)), r4("v", acc(qa, 0)), c))
    def pv_list(qa):
        b0 = qa // 2
        out = []
        for b in range(b0, b0 + 9):
            for z in range(3):
                def f(b=b, z=z):
                    if b == b0: O_[(qa, z)] = free.pop(0)
                    o = r4("v", O_[(qa, z)])
                    if z < 2:
                        a.wait(lg=("v", 2 * b + z)); A = r4("a", VF + (2 * b + z) * 4)
                    else: A = r4("v", VONES)
                    a("%s %s, %s, %s, %s" % (MF, o, A, r4("v", P_[(qa, b)]), "0" if b == b0 else o))
                    if z == 2: free.append(P_[(qa, b)])
                out.append(f)
        return out
    def fin_list(qa):
        o0, o1, sm = O_[(qa, 0)], O_[(qa, 1)], O_[(qa, 2)]
        ops = ["v_rcp_f32 v%d, v%d" % (sm, sm), "s_nop 0"]
        for o in (o0, o1):
            for e in range(4): ops.append("v_mul_f32 v%d, v%d, v%d" % (o + e, o + e, sm))
        ops += pack(o0, o1)
        def f():
            a.vmem("buffer_store_dwordx4 %s, v%d, %s, s%d offen offset:%d %s" % (r4("v", o0), V_L16, s4(R_WS), sO, qa * 1024, HF), "O")
            free.extend([o1, sm]); late_free.append(o0)
        ops.append(f)
        return ops
    late_free = []
    pready = set()
    def soft_list(qa):
        k0, k1 = qa, qa + 16
        ops = []
        f_, l_ = S_[(qa, k0)], S_[(qa, k1)]
        odd = qa & 1
        g_, z_ = (l_, f_) if odd else (f_, l_)
        o_ = 2 * odd
        for e in range(4):
            ops.append((1, "v_cndmask_b32 v%d, v%d, v%d, s[%d:%d]" % (g_ + e, f_ + e, l_ + e, sMK + 2 * e, sMK + 2 * e + 1)))
        quads = [S_[(qa, kt)] for kt in range(k0 + 1, k1)] + [g_]
        vals = [q + e for q in quads for e in range(4)]
        m0, m1 = VM, VM + 1
        ops.append((1, "v_max3_f32 v%d, v%d, v%d, v%d" % (m0, vals[0], vals[1], vals[2])))
        ops.append((1, "v_max3_f32 v%d, v%d, v%d, v%d" % (m1, vals[3], vals[4], vals[5])))
        ops.insert(2, (0, "SLOT")); ops.insert(5, (0, "SLOT")); ops.append((0, "SLOT"))
        for x in range(6, 62, 4):
            ops.append((1, "v_max3_f32 v%d, v%d, v%d, v%d" % (m0, m0, vals[x], vals[x + 1])))
            ops.append((1, "v_max3_f32 v%d, v%d, v%d, v%d" % (m1, m1, vals[x + 2], vals[x + 3])))
            ops.append((0, "SLOT"))
        ops.append((1, "v_max3_f32 v%d, v%d, v%d, v%d" % (m0, m0, vals[62], vals[63])))
        ops.append((1, "v_max_f32 v%d, v%d, v%d" % (m0, m0, m1)))
        ops.append((1, "v_mov_b32 v%d, v%d" % (m1, m0)))
        ops.append((0, "SLOT2"))
        ops.append((1, "v_permlane16_swap_b32 v%d, v%d" % (m0, m1)))
        ops.append((1, "v_max_f32 v%d, v%d, v%d" % (m0, m0, m1)))
        ops.append((1, "v_mov_b32 v%d, v%d" % (m1, m0)))
        ops.append((1, "v_mov_b32 v%d, 0" % (z_ + 2 - o_)))
        ops.append((1, "v_mov_b32 v%d, 0" % (z_ + 3 - o_)))
        ops.append((1, "v_permlane32_swap_b32 v%d, v%d" % (m0, m1)))
        ops.append((1, "v_max_f32 v%d, v%d, v%d" % (m0, m0, m1)))
        def subexp(q):
            r = []
            for e2 in range(2):
                r.append((1, "v_pk_add_f32 v[%d:%d], v[%d:%d], v[%d:%d] op_sel_hi:[1,0] neg_lo:[0,1] neg_hi:[0,1]" % (q + 2 * e2, q + 2 * e2 + 1, q + 2 * e2, q + 2 * e2 + 1, m0, m0 + 1)))
            for e in range(4):
                if e < 2: r.append((0, "SLOT"))
                r.append((2, "v_exp_f32 v%d, v%d" % (q + e, q + e)))
            r.append((0, "MEM"))
            return r
        ops += subexp(g_)
        ops += subexp(S_[(qa, k0 + 1)])
        cv = ["v_cvt_pk_bf16_f32 v%d, v%d, v%d" % (g_ + o_ + x, g_ + 2 * x, g_ + 2 * x + 1) for x in range(2)]
        if odd: cv.reverse()
        ops += [(1, x) for x in cv]
        for x in range(2):
            if odd: ops.append((1, "v_bfi_b32 v%d, v%d, 0, v%d" % (z_ + o_ + x, VM + 2 + x, g_ + o_ + x)))
            else:   ops.append((1, "v_and_b32 v%d, v%d, v%d" % (z_ + o_ + x, VM + 2 + x, g_ + o_ + x)))
        for x in range(2): ops.append((1, "v_xor_b32 v%d, v%d, v%d" % (g_ + o_ + x, g_ + o_ + x, z_ + o_ + x)))
        done = {k0, k0 + 1, k1}
        b0 = qa // 2
        pend_pack = None
        for b in range(b0, b0 + 9):
            for kt in (2 * b, 2 * b + 1):
                if k0 <= kt <= k1 and kt not in done:
                    ops += subexp(S_[(qa, kt)]); done.add(kt)
            if pend_pack: ops += pend_pack
            lo, hi = S_.get((qa, 2 * b)), S_.get((qa, 2 * b + 1))
            pk = []
            if lo is None or hi is None: d = z_
            elif g_ in (lo, hi):
                d = g_; ot = hi if lo == g_ else lo
                pk += [(1, "v_cvt_pk_bf16_f32 v%d, v%d, v%d" % (d + 2 - o_ + x, ot + 2 * x, ot + 2 * x + 1)) for x in range(2)]
                pk.append((0, (lambda ot=ot: free.append(ot))))
            else:
                d = lo
                pk += [(1, x) for x in pack(lo, hi)]
                pk.append((0, (lambda hi=hi: free.append(hi))))
            P_[(qa, b)] = d
            pk.append((0, (lambda b=b: pready.add((qa, b)))))
            pend_pack = pk
        ops += pend_pack
        return ops
    def run(op):
        if isinstance(op, str): a(op)
        else: op()
    vr = list(range(20))
    def vread():
        f = vr.pop(0)
        a.lds("ds_read_b128 %s, v%d offset:%d" % (r4("a", VF + 4 * f), V_KVW, 32768 + f * 1024), ("v", f))
    for kt in range(17):
        s_mfma(0, kt)
        vread(); a(va.pop(0))
    while vr:
        vread(); a(va.pop(0))
    hstore(*hst.pop(0))
    while va: a(va.pop(0))
    HGAP = cfg.get("f_hgap", 30); PGAP = cfg.get("f_pgap", 28)
    HFL = cfg.get("f_hfl", 500)
    HPO = cfg.get("f_hpo", 900)
    HCK = cfg.get("f_hck", 2000)
    hok = False
    ordA = [("A2", p, mt) for p in range(3, KS2) for mt in range(MT)]
    napre = cfg.get("f_apre", 16)
    pv3 = pv_list(3); pv3b = [1 + x // 3 for x in range(27)]
    tq = [(cfg.get("f_tb0", 200) + k * cfg.get("f_tbd", 150), k) for k in range(cfg.get("f_tbn", 0))]
    tcq = []
    if TCN:
        k0 = cfg.get("f_tck", 6); nr = cfg.get("f_tcr", 2)
        ed = [k0 + (56 - k0) * x // nr for x in range(nr + 1)]
        rr = [(ed[x], ed[x + 1]) for x in range(nr)] + [(56, 72)]
        tcq = [(cfg.get("f_tc0", 540) + x * cfg.get("f_tcd", 130), lo_, hi_) for x, (lo_, hi_) in enumerate(rr)]
    sq = []
    if SPF:
        for k in range(cfg.get("f_spf0", 6), 56): sq.append("s_load_dword s%d, s[%d:%d], 0x%x" % (t3, (P_W2 if k < 28 else P_WQ), (P_W2 if k < 28 else P_WQ) + 1, (k % 28) * 32768))
        for k in range(16): sq.append("s_load_dword s%d, s[%d:%d], 0x%x" % (t3, P_WO, P_WO + 1, k * 32768))
    next_s = 0; SGAP = cfg.get("f_sgap", 8)
    kvbar = False; hflag = False; hpoll = False
    cost_total = 0; next_h = HGAP; next_p = 0
    for qa in range(4):
        stampr("att%d" % qa)
        ops = soft_list(qa)
        tot = sum(c for c, _ in ops)
        pv = pv_list(qa - 1) if qa > 0 else []
        fin = None
        sm = [(qa + 1, kt) for kt in range(qa + 1, qa + 18)] if qa < 3 else []
        c = 0
        pv_done_at = None
        for (cost, op) in ops:
            if op == "SLOT2":
                if pv:
                    pv.pop(0)(); a("s_nop 0")
                    if not pv: pv_done_at = c
                else: a("s_nop 1")
                continue
            if op == "SLOT":
                did = False
                if pv:
                    pv.pop(0)(); did = True
                    if not pv: pv_done_at = c
                elif sm and len(free) > 0 and c >= tot * 0.2:
                    s_mfma(*sm.pop(0)); did = True
                elif qa == 3 and pv3 and (3, pv3b[0]) in pready:
                    pv3.pop(0)(); pv3b.pop(0); did = True
                if did and G.sal:
                    a(G.sal.pop(0)); continue
                if did and pre and pre[0][1] == 0 and (kvbar or (pre[0][0] < 9 and not HK)): pre.pop(0)[2]()
                elif sq and kvbar and cost_total >= next_s and (did or cost_total >= next_s + SGAP):
                    a(sq.pop(0)); next_s = cost_total + SGAP
                    if not sq and cfg.get("verbose"): print("scalar prefetch done at", cost_total, file=sys.stderr)
                continue
            if op == "MEM":
                if qa > 0 and fin is None and pv_done_at is not None and c >= pv_done_at + 18:
                    fin = fin_list(qa - 1)
                    for x in fin: run(x)
                elif hst and cost_total >= next_h:
                    hstore(*hst.pop(0)); next_h = cost_total + HGAP
                elif stq and cost_total >= stq[0][0]:
                    a.wait(vm="H01"); selftouch(stq.pop(0)[1], True)
                elif tcq and cost_total >= tcq[0][0]:
                    _, lo_, hi_ = tcq.pop(0)
                    if lo_ < 56:
                        m_ = ((1 << hi_) - 1) ^ ((1 << lo_) - 1)
                        a("s_mov_b32 exec_lo, 0x%x" % (m_ & 0xffffffff))
                        a("s_mov_b32 exec_hi, 0x%x" % (m_ >> 32))
                        a.vmem("buffer_load_dword a%d, v%d, %s, s%d offen" % (A_PD, V_T128, s4(R_W2), sCLS), "T")
                    else:
                        a("s_mov_b64 exec, 0xffff")
                        a.vmem("buffer_load_dword a%d, v%d, %s, s%d offen" % (A_PD, V_T128, s4(R_WO), t3), "T")
                    a("s_mov_b64 exec, -1")
                elif not hst and tq and cost_total >= tq[0][0]:
                    k_ = tq.pop(0)[1]
                    a("s_lshr_b32 s%d, s2, 3" % t0)
                    a("s_lshl_b32 s%d, s%d, 2" % (t0, t0))
                    a("s_add_u32 s%d, s%d, s%d" % (t0, t0, sW))
                    if k_ < 4:
                        a("s_mul_i32 s%d, s%d, 3584" % (t0, t0))
                        a("s_mul_i32 s%d, s%d, %d" % (t1, sQ, 896 * 2048))
                        a("s_add_u32 s%d, s%d, s%d" % (t0, t0, t1))
                        if k_: a("s_add_u32 s%d, s%d, %d" % (t0, t0, k_ * 224 * 2048))
                        a("s_mov_b64 exec, 0xfffffff")
                        a.vmem("buffer_load_dword a%d, v%d, %s, s%d offen" % (A_PD, V_T128, s4(R_W2), t0), "T")
                    else:
                        a("s_lshl_b32 s%d, s%d, 12" % (t0, t0))
                        a("s_lshl_b32 s%d, s%d, 19" % (t1, sQ))
                        a("s_add_u32 s%d, s%d, s%d" % (t0, t0, t1))
                        a("s_mov_b32 exec_hi, 0")
                        a.vmem("buffer_load_dword a%d, v%d, %s, s%d offen" % (A_PD, V_T128, s4(R_WO), t0), "T")
                    a("s_mov_b64 exec, -1")
                elif not hst and not hflag and cost_total >= HFL:
                    a.wait(vm="H")
                    a.vmem("buffer_store_dword v%d, v%d, %s, 0 offen offset:32 sc1" % (V_ONE, V_FG, s4(R_WS)), "FH")
                    hflag = True
                    if STCH & 2: selftouch(sH + 2, True)
                elif hflag and not hpoll and cost_total >= HPO:
                    if cfg.get("f_cpf2", 1): codepf(V_T128)
                    poll_issue("PH"); hpoll = True
                elif hpoll and not hok and cost_total >= HCK:
                    a.wait(vm="PH"); spin(0xff00); hok = True
                    stampr("g2h")
                elif hok and napre > 0:
                    G.drain_sal()
                    op_ = ordA.pop(0); aload2(op_[1], op_[2]); napre -= 1
                elif pre and pre[0][1] == 1 and cost_total >= next_p:
                    pre.pop(0)[2](); next_p = cost_total + PGAP
                    if cfg.get("f_p2", 0) and pre and pre[0][1] == 1: pre.pop(0)[2]()
                continue
            run(op); c += cost; cost_total += cost
            if qa == 0 and not kvbar and c >= 30:
                a.wait(lg=("v", 19)); a("s_barrier"); kvbar = True
        assert not pv and (qa == 0 or fin)
        free.extend(late_free); del late_free[:]
        if sm and cfg.get("verbose"): print("late S mfmas", qa, len(sm), file=sys.stderr)
        late = bool(sm)
        while sm: s_mfma(*sm.pop(0))
        if late: a("s_nop 7")
    if cfg.get("verbose"): print("attention cost", cost_total, "pre left", len(pre), file=sys.stderr)
    stampr("att4")
    assert not hst and hflag and hpoll and not sq and not tcq
    if not hok: napre = 0
    while pre:
        pre.pop(0)[2](); a("s_nop 0")
    G.drain_sal()
    assert napre <= 4 * (RA2 - 10) and not (HK and hok)
    a("v_mov_b32 v%d, v%d" % (V2_RD, V2_B))
    a("v_xor_b32 v%d, 32, v%d" % (V2_RD + 1, V2_B))
    xr = ["v_xor_b32 v%d, %d, v%d" % (V2_RD + t, t * 32, V2_B) for t in range(2, 8)]
    xr += ["v_add_u32 v%d, %d, v%d" % (V2_RD + 8 + t, 2 * STAGE, V2_RD + t) for t in range(8)]
    if cfg.get("verbose"): print("pv3 left", len(pv3), "apre left", napre, file=sys.stderr)
    for f in pv3:
        f()
        if napre > 0:
            op_ = ordA.pop(0); aload2(op_[1], op_[2]); napre -= 1; G.drain_sal()
        else:
            for _ in range(2):
                if xr: a(xr.pop(0))
    while xr: a(xr.pop(0))
    stampr("attend")

    NT2 = 8
    DL = cfg.get("f_dl", 8); S2 = KS2 - DL
    assert RA2 >= DL
    own = set(acc(mt, 6 + 2 * p) for p in range(3) for mt in range(MT))
    busy = own | set(O_[(3, z)] for z in range(3)) | {208}
    q2 = [q for q in range(0, 224, 4) if q not in busy]
    acc2 = {}
    for t in range(NT2):
        for mt in range(MT): acc2[(mt, t)] = q2.pop(0)
    VX = [q2.pop(0) for _ in range(4)]
    TT = q2.pop(0); V_XI = TT + 2
    R_X = R_WQ; R_OUT = R_W1
    rec = Rec()
    rec.l += [None] * 5 + [x if isinstance(x, str) else ("m", x) for x in fin_list(3)]
    for t in range(8): rec("v_add_u32 v%d, %d, v%d" % (V2_RD + 16 + t, 4 * STAGE, V2_RD + t))
    srd(rec, R_X, P_X, S * D * 2)
    srd(rec, R_OUT, P_OUT, S * D * 2)
    rec2 = Rec()
    rec2("v_and_b32 v%d, 15, v%d" % (TT, L))
    rec2("v_lshlrev_b32 v%d, 11, v%d" % (V_XO, TT))
    rec2("v_lshrrev_b32 v%d, 4, v%d" % (TT, L))
    rec2("v_lshl_add_u32 v%d, v%d, 3, v%d" % (V_XI, TT, V_XO))
    rec2("v_bfe_u32 v%d, v%d, 4, 1" % (TT, L))
    rec2("v_lshl_add_u32 v%d, v%d, 5, v%d" % (V_XO, TT, V_XO))
    rec2("v_lshrrev_b32 v%d, 5, v%d" % (TT, L))
    rec2("v_lshl_add_u32 v%d, v%d, 4, v%d" % (V_XO, TT, V_XO))
    CO = cfg.get("f_co", 1)
    if CO:
        V_OW = V_KVW; V_OR = V2_B
        rec2("s_mul_i32 s%d, s%d, 5120" % (t1, sW))
        rec2("s_add_u32 s%d, s%d, %d" % (t1, t1, 5 * STAGE))
        rec2("v_and_b32 v%d, 15, v%d" % (TT, L))
        rec2("v_mul_u32_u24 v%d, 80, v%d" % (V_OW, TT))
        rec2("v_lshrrev_b32 v%d, 4, v%d" % (TT, L))
        rec2("v_lshl_add_u32 v%d, v%d, 3, v%d" % (V_OW, TT, V_OW))
        rec2("v_add_u32 v%d, s%d, v%d" % (V_OW, t1, V_OW))
        rec2("v_lshrrev_b32 v%d, 2, v%d" % (TT, L))
        rec2("v_mul_u32_u24 v%d, 80, v%d" % (V_OR, TT))
        rec2("v_lshlrev_b32 v%d, 11, v%d" % (V_XO, TT))
        rec2("v_and_b32 v%d, 3, v%d" % (TT, L))
        rec2("v_lshl_add_u32 v%d, v%d, 4, v%d" % (V_OR, TT, V_OR))
        rec2("v_add_u32 v%d, s%d, v%d" % (V_OR, t1, V_OR))
        rec2("v_lshl_add_u32 v%d, v%d, 4, v%d" % (V_XO, TT, V_XO))
    XD = cfg.get("f_xd", 1) and CO
    if XD:
        assert "f_ux" not in cfg
        rec2("v_and_b32 v%d, 15, v%d" % (TT, L))
        rec2("v_lshlrev_b32 v%d, 6, v%d" % (V_XI, TT))
        rec2("v_lshrrev_b32 v%d, 4, v%d" % (TT, L))
        rec2("v_lshl_add_u32 v%d, v%d, 3, v%d" % (V_XI, TT, V_XI))
        rec2("v_add_u32 v%d, s%d, v%d" % (V_XI, t1, V_XI))
    sSX = [sKV, sKV2, sKP]; sSF = [sKP2, sFK, sH]; sRX = sH + 1
    for lam in range(3):
        rec("s_xor_b32 s%d, s2, %d" % (t1, (lam ^ 3) << 1))
        rec("s_lshl_b32 s%d, s%d, 2" % (t1, t1))
        rec("s_add_u32 s%d, s%d, s%d" % (t1, t1, sW))
        rec("s_mul_i32 s%d, s%d, 12288" % (sSX[lam], t1))
        rec("s_add_u32 s%d, s%d, 0x%x" % (sSX[lam], sSX[lam], WS_XC + lam * 4096))
        rec("s_lshl_b32 s%d, s%d, 7" % (sSF[lam], t1))
        rec("s_add_u32 s%d, s%d, 0x%x" % (sSF[lam], sSF[lam], WS_FL + lam * 4))
    rec("s_lshl_b32 s%d, s2, 2" % t1)
    rec("s_add_u32 s%d, s%d, s%d" % (t1, t1, sW))
    rec("s_mul_i32 s%d, s%d, 12288" % (sRX, t1))
    rec("s_add_u32 s%d, s%d, 0x%x" % (sRX, sRX, WS_XC))
    if DF:
        for lam in range(3): rec("s_add_u32 s%d, s%d, %d" % (sSF[lam], sRX, lam * 4096))
    side = G.side
    side += rec.l

    units = []; del gi[:]
    grp(units, 0, 3, range(NT2), 3)
    grp(units, 3, C2S, range(NT2), 2)
    DLO = cfg.get("f_dlo", 11); S2O = KS2 - DLO
    assert DL <= DLO <= RA2
    grp(units, C2S, S2O, range(NT2), C2)
    grp(units, S2O, S2, range(6), C2)
    UT = len(units)
    for lam in range(4): grp(units, S2 if lam < 3 else S2O, KS2, (2 * lam, 2 * lam + 1), C2T if lam else min(C2T, cfg.get("f_c2t0", 4)))
    NU = len(units)
    PL = 2 * DL
    last_unit = {}
    for u, (p, t) in enumerate(units): last_unit[p] = u
    stt = dict(ready=-1, free=set(), waited=-1, issued=-1, ook=False, hok=hok)
    ordB = [("B2", p) for p in range(NPRE, KS2)]
    def barrier2():
        a("s_barrier")
        for p, lu in last_unit.items():
            if lu <= stt["waited"]: stt["free"].add(p)
    def can2(op):
        if op[0] == "B2": return op[1] < NSL or (op[1] - NSL) in stt["free"]
        if not stt["hok"] or (op[1] >= 28 and not stt["ook"]): return False
        return op[1] - 3 < RA2 or last_unit[op[1] - RA2] <= stt["issued"]
    def issue2(op):
        if cfg.get("verbose"): print("late flush2", op, file=sys.stderr)
        G.drain_sal()
        if op[0] == "A2": aload2(op[1], op[2])
        else:
            for x in dma2_ops(op[1]): x[1](); a("s_nop 0")
        G.drain_sal()
    def flush2(q, tag):
        while any(o[:2] == tag for o in q):
            op = q.pop(0); assert can2(op), (op, stt); issue2(op)
    def bread2(u, j2):
        p, t = units[u]
        sl, pos = LOC[p % NSL]
        a.lds("ds_read_b64_tr_b16 %s, v%d offset:%d" % (r2("a", BR2 + (u % RB2) * 4 + j2 * 2), V2_RD + 8 * (sl // 2) + t, (sl % 2) * STAGE + (pos + j2) * 1024), ("b2", u))
    def need2(u):
        p = units[u][0]
        if p > stt["ready"]:
            flush2(ordB, ("B2", p))
            grp = cfg.get("f_bgrp", 4)
            top = max(x for x in range(p, min(p + grp, KS2)) if not any(o[1] == x for o in ordB))
            if p == 0: top = min(NPRE - 1, cfg.get("f_top0", 5))
            elif p < NPRE: top = NPRE - 1
            a.wait(vm=("B2", top)); barrier2(); stt["ready"] = top
    need2(0)
    for u in range(DB2):
        bread2(u, 0); bread2(u, 1)
    stampr("g2beg")
    UOF = cfg.get("f_uof", 26)
    UOP = cfg.get("f_uop", 80); UOC = UOP + 12
    seenA = {0, 1, 2}
    xdone = False
    rq = sorted(own)
    def flag(lam):
        a.wait(vm=("S", lam))
        a.vmem("buffer_store_dword v%d, v%d, %s, s%d offen sc1" % (V_ONE, V_FL0, s4(R_WS), sSF[lam]), ("F", lam))
    def recv(lam, mt):
        a.vmem("buffer_load_dwordx4 %s, v%d, %s, s%d offen offset:%d sc1" % (r4("v", rq[4 * lam + mt]), V_L16, s4(R_WS), sRX, mt * 1024), ("R", lam, mt))
        if mt == 3 and lam < 2: a("s_add_u32 s%d, s%d, 4096" % (sRX, sRX))
    PS = lambda mt, hh: acc2[(mt, hh)]
    def addpk(dst, src, first=False):
        ops = []
        for hh in range(2):
            for e2 in range(2):
                pp = src + 2 * hh + e2; c = dst[hh] + 2 * e2
                if first:
                    ops += ["v_lshlrev_b32 v%d, 16, v%d" % (c, pp), "v_and_b32 v%d, 0xffff0000, v%d" % (c + 1, pp)]
                else:
                    ops += ["v_lshlrev_b32 v%d, 16, v%d" % (TT, pp), "v_and_b32 v%d, 0xffff0000, v%d" % (TT + 1, pp),
                            "v_pk_add_f32 v[%d:%d], v[%d:%d], v[%d:%d]" % (c, c + 1, c, c + 1, TT, TT + 1)]
        return ops
    FD = cfg.get("f_fd", 26)
    ev = {}
    def at(u, f): ev.setdefault(u, []).append(f)
    def rtxt(lam, mt): return "buffer_load_dwordx4 %s, v%d, %s, s%d offen offset:%d sc1" % (r4("v", rq[4 * lam + mt]), V_L16, s4(R_WS), sSF[lam], mt * 1024)
    def rmax(lam):
        rg = [rq[4 * lam + mt] + e for mt in range(MT) for e in range(4)]
        o = ["v_max3_u32 v%d, v%d, v%d, v%d" % (V_POLL, rg[0], rg[1], rg[2])]
        for k in range(3, 15, 2): o.append("v_max3_u32 v%d, v%d, v%d, v%d" % (V_POLL, V_POLL, rg[k], rg[k + 1]))
        o.append("v_max_u32 v%d, v%d, v%d" % (V_POLL, V_POLL, rg[15]))
        return o
    def rcheck(lam):
        l0 = a.newlabel("F_rt"); l1 = a.newlabel("F_ok")
        a("s_mov_b32 s%d, 0x%x" % (sSP, SPIN))
        a.label(l0)
        a("v_cmp_eq_u32 vcc, -1, v%d" % V_POLL)
        a("s_cmp_eq_u64 vcc, 0")
        a("s_cbranch_scc1 %s" % l1)
        for mt in range(MT): a(rtxt(lam, mt))
        a("s_waitcnt vmcnt(0)")
        for x in rmax(lam): a(x)
        a("s_sub_u32 s%d, s%d, 1" % (sSP, sSP))
        a("s_cbranch_scc0 %s" % l0)
        a.label(l1)
    def addplain(dst, src):
        ops = []
        for hh in range(2):
            for e2 in range(2):
                pp = src + 2 * hh + e2; c = dst[hh] + 2 * e2
                ops += ["v_lshlrev_b32 v%d, 16, v%d" % (TT, pp), "v_and_b32 v%d, 0xffff0000, v%d" % (TT + 1, pp),
                        "v_add_f32 v%d, v%d, v%d" % (c, c, TT), "v_add_f32 v%d, v%d, v%d" % (c + 1, c + 1, TT + 1)]
        return ops
    if DF:
        R0U = UT + 3 * PL + cfg.get("f_r0", -6); R1U = UT + 4 * PL + cfg.get("f_r1", -5)
        at(R0U, lambda: side.extend(("m", lambda mt=mt: a.vmem(rtxt(0, mt), ("R", 0))) for mt in range(MT)))
        at(R1U, lambda: side.__setitem__(slice(0, 0), [("m", lambda mt=mt: a.vmem(rtxt(1, mt), ("R", 1))) for mt in range(MT)]))
    else:
        at(UT + PL + FD, lambda: flag(0))
        at(UT + 2 * PL + FD, lambda: flag(1))
        if cfg.get("f_fin2", 1): at(UT + 3 * PL + FD, lambda: flag(2))
        if cfg.get("f_pe", 4): at(NU - cfg.get("f_pe", 4), lambda: poll_issue("P1"))
    UP0 = UT + 3 * PL + cfg.get("f_p0", 4)
    F2 = cfg.get("f_fin2", 1)
    if not DF and not F2: at(UP0, lambda: poll_issue("P0"))
    def chk0():
        a.wait(vm="P0"); spin(1)
        for mt in range(MT): side.append(("m", lambda mt=mt: recv(0, mt)))
    if not DF and not F2: at(UP0 + cfg.get("f_c0", 8), chk0)
    def presum():
        side.append(("s", lambda: a.wait(vm="X")))
        if XD:
            for mt in range(MT):
                for hh in range(2):
                    side.append(("v", lambda mt=mt, hh=hh: a.lds("ds_read_b64 %s, v%d offset:%d" % (r2("v", VX[mt] + 2 * hh), V_XI, mt * 1024 + hh * 32), "xr")))
            side.extend([None] * 4 + [("s", lambda: a.wait(lg="xr"))])
        for mt in range(MT): side.extend(addpk([PS(mt, 0), PS(mt, 1)], VX[mt], first=True))
    at(UT + 2 * PL + PL // 2, presum)
    first_unit = {}
    for u, (p, t) in enumerate(units): first_unit.setdefault(p, u)
    NOPS = len(ordA) + 2 * len(ordB)
    UE2 = UT + cfg.get("f_ue2", 0)
    MARG = cfg.get("f_marg", 20)
    THR2 = cfg.get("f_thr2", 63)
    def prewait2(u):
        u += gi[u][1] - 1
        p, t = units[u]
        if p not in seenA:
            flush2(ordA, ("A2", p)); seenA.add(p)
            r = a.wait(vm=("A2", p), lg=("b2", u))
        else: r = a.wait(lg=("b2", u))
        stt["waited"] = u
        return r
    def b2sal(p):
        so = sB2 if p < 28 else sBO
        if p != 27 and p != 35: G.sal.append("s_add_u32 s%d, s%d, 65536" % (so, so))
        if p < 27: G.sal.append("s_cmp_eq_u32 s%d, s%d\ns_cselect_b32 s%d, s%d, s%d" % (sB2, sBE, sB2, sB0, sB2))
    prewait2(0)
    half = None
    for u in range(NU):
        u0, C_, gn = gi[u]; kk = u - u0
        p, t = divmod(u, NT2) if u < UT else units[u]
        un = u + DB2
        if u == UOF:
            a.wait(vm="O")
            a.vmem("buffer_store_dword v%d, v%d, %s, 0 offen offset:64 sc1" % (V_ONE, V_FG, s4(R_WS)), "FO")
            if STCH & 4: selftouch(sO, True)
            side.extend(rec2.l)
        if u == cfg.get("f_uh", 2) and not stt["hok"]:
            a.wait(vm="PH"); spin(0xff00); stt["hok"] = True
            stampr("g2h")
        if u < UT and t == 1: stampr("g2p%d" % p)
        if u == UT: stampr("g2tail")
        if u > UT and (u - UT) % PL == 0: stampr("g2l%d" % ((u - UT) // PL))
        if u == UOP: poll_issue("PO")
        if u == UOC:
            a.wait(vm="PO"); spin(0xff0000 | (7 if DF else 0)); stt["ook"] = True
        for f in ev.get(u, []): f()
        if un < NU and units[un][0] > stt["ready"]:
            if half is not None:
                dma2_ops(half)[2][1](); b2sal(half); half = None
            need2(un)
        if u < UT and t == 2 and p % 2 == 1 and p > 1 and p - 2 + NSL < KS2: barrier2()
        pre_ = None; mem_ = None
        if half is not None:
            def mem_(h=half): dma2_ops(h)[2][1](); b2sal(h)
            half = None
        elif len(G.sal) <= 1:
            cand = [q for q in (ordA, ordB) if q and can2(q[0])]
            if cand:
                cand.sort(key=lambda q: q[0][1] - (cfg.get("f_bprio", 5) if q[0][0] == "B2" else 0))
                done_ = NOPS - len(ordA) - 2 * len(ordB)
                if done_ * UE2 <= u * NOPS or first_unit[cand[0][0][1]] - u <= MARG + (16 if cand[0][0][0] == "B2" else 0):
                    nxt = cand[0].pop(0)
                    if nxt[0] == "B2":
                        ops_ = dma2_ops(nxt[1])
                        pre_ = lambda o=ops_: (o[0][1](), True)[1]
                        mem_ = ops_[1][1]; half = nxt[1]
                    else:
                        mem_ = lambda n_=nxt: aload2(n_[1], n_[2])
        if not xdone and (u == cfg.get("f_ux", 9999) or (not ordA and not ordB and half is None and mem_ is None)):
            xdone = True
            if XD:
                side.append("s_mul_i32 s%d, s%d, 5120" % (t1, sW))
                for mt in range(MT):
                    side += ["s_add_u32 m0, s%d, %d" % (t1, 5 * STAGE + mt * 1024), None,
                             ("m", lambda: a.vmem("buffer_load_dwordx4 v%d, %s, s%d offen lds" % (V_XO, s4(R_X), sXO), "X")),
                             "s_add_u32 s%d, s%d, %d" % (sXO, sXO, 32768 if mt < 3 else -3 * 32768)]
            for mt in range(MT if not XD else 0):
                for hh in range(2):
                    def f(mt=mt, hh=hh):
                        a.vmem("buffer_load_dwordx2 %s, v%d, %s, s%d offen offset:%d" % (r2("v", VX[mt] + 2 * hh), V_XI, s4(R_X), sXO, hh * 32), "X")
                    side += [("m", f)] + [None] * (cfg.get("f_xsp", 1) if hh else 1)
                side.append("s_add_u32 s%d, s%d, %d" % (sXO, sXO, 32768 if mt < 3 else -3 * 32768))
        for mt in range(MT):
            m_, k_ = divmod(kk * MT + mt, C_)
            if cfg.get("f_kz", 1) and m_ % 2 == 1 and units[u0][0] > 0: k_ = C_ - 1 - k_
            mz = m_ if gn % 2 == 0 else MT - 1 - m_
            p_, t_ = units[u0 + k_]
            bf = r4("a", BR2 + ((u0 + k_) % RB2) * 4)
            af = r4("v", acc(mz, 6 + 2 * p_)) if p_ < 3 else r4("a", aslot(p_) + mz * 4)
            c = r4("v", acc2[(mz, t_)])
            a("%s %s, %s, %s, %s" % (MF, c, bf, af, "0" if p_ == 0 else c))
            rd = (lambda mt=mt: bread2(un, mt)) if (mt < 2 and un < NU) else None
            if mt == 0: G.gap(fixed=rd)
            elif mt == 1: G.gap(first=pre_, fixed=rd)
            elif mt == 2:
                if mem_:
                    assert not G.sal
                    G.gap(first=(lambda: a.throttle(THR2)), mem=mem_)
                else: G.gap()
            else:
                if kk == C_ - 1:
                    stt["issued"] = u
                    G.gap(first=(lambda: prewait2(u + 1)) if u + 1 < NU else None)
                else: G.gap()
        if u >= UT and (u - UT) % PL == PL - 1:
            lam = (u - UT) // PL
            if lam < 3:
                new_ = [None] * 5
                for mt in range(MT):
                    new_ += pack(acc2[(mt, 2 * lam)], acc2[(mt, 2 * lam + 1)])
                    if DF: new_ += ["v_min_u32 v%d, -2, v%d" % (acc2[(mt, 2 * lam)] + e, acc2[(mt, 2 * lam)] + e) for e in range(4)]
                    def f(mt=mt, lam=lam):
                        a.vmem("buffer_store_dwordx4 %s, v%d, %s, s%d offen offset:%d sc1" % (r4("v", acc2[(mt, 2 * lam)]), V_L16, s4(R_WS), sSX[lam], mt * 1024), ("S", lam))
                    new_.append(("m", f))
                side[:0] = new_
    if cfg.get("verbose"): print("G2 side left", len([x for x in side if x is not None]), file=sys.stderr)
    G.drain()
    assert not ordA and not ordB and xdone
    stampr("g2end")
    def ownadd():
        for mt in range(MT):
            for hh in range(2):
                for e2 in range(2):
                    c = PS(mt, hh) + 2 * e2; o_ = acc2[(mt, 6 + hh)] + 2 * e2
                    a("v_pk_add_f32 v[%d:%d], v[%d:%d], v[%d:%d]" % (c, c + 1, c, c + 1, o_, o_ + 1))
    if DF:
        R2D = cfg.get("f_r2d", 1)
        def rd2():
            for mt in range(MT): a.vmem(rtxt(2, mt), ("R", 2, mt))
        assert a.vm.count(("R", 0)) == 4 and a.vm.count(("R", 1)) == 4
        if R2D == 0: rd2()
        a.wait(vm=("R", 0))
        for x in rmax(0): a(x)
        rcheck(0)
        for mt in range(MT):
            for x in addpk([PS(mt, 0), PS(mt, 1)], rq[mt]): a(x)
        stampr("x1")
        if R2D == 1: rd2()
        ownadd()
        a.wait(vm=("R", 1))
        for x in rmax(1): a(x)
        rcheck(1)
        stampr("x2")
        if R2D == 2: rd2()
        for mt in range(MT):
            for x in addpk([PS(mt, 0), PS(mt, 1)], rq[4 + mt]): a(x)
        stampr("x3")
        a.wait(vm=("R", 2, 3))
        for x in rmax(2): a(x)
        rcheck(2)
        stampr("x4")
    elif F2:
        for lam in range(2):
            if ("F", lam) not in a.vm: flag(lam)
        early = "P1" in a.vm
        if not early:
            a("s_nop 7")
            ownadd()
        if ("F", 2) not in a.vm: flag(2)
        if not early: poll_issue("P1")
        stampr("x1")
        a.wait(vm="P1"); spin(1)
        for mt in range(MT): recv(0, mt)
        spin(2)
        stampr("x2")
        for mt in range(MT): recv(1, mt)
        poll_issue("P2")
        if early: ownadd()
        for mt in range(MT):
            a.wait(vm=("R", 0, mt))
            for x in addpk([PS(mt, 0), PS(mt, 1)], rq[mt]): a(x)
        a.wait(vm="P2"); spin(4)
        stampr("x3")
        for mt in range(MT): recv(2, mt)
        for mt in range(MT):
            for x in addpk([PS(mt, 0), PS(mt, 1)], rq[4 + mt]): a(x)
        stampr("x4")
    else:
        flag(2)
        poll_issue("P1")
        stampr("x1")
        for mt in range(MT):
            a.wait(vm=("R", 0, mt))
            for x in addpk([PS(mt, 0), PS(mt, 1)], rq[mt]): a(x)
        a.wait(vm="P1"); spin(2)
        stampr("x2")
        for mt in range(MT): recv(1, mt)
        poll_issue("P2")
        for mt in range(MT):
            for hh in range(2):
                for e2 in range(2):
                    c = PS(mt, hh) + 2 * e2; o_ = acc2[(mt, 6 + hh)] + 2 * e2
                    a("v_pk_add_f32 v[%d:%d], v[%d:%d], v[%d:%d]" % (c, c + 1, c, c + 1, o_, o_ + 1))
        a.wait(vm="P2"); spin(4)
        stampr("x3")
        for mt in range(MT): recv(2, mt)
        for mt in range(MT):
            for x in addpk([PS(mt, 0), PS(mt, 1)], rq[4 + mt]): a(x)
        stampr("x4")
    for mt in range(MT):
        a.wait(vm=("R", 2, mt))
        for x in addpk([PS(mt, 0), PS(mt, 1)], rq[8 + mt]): a(x)
        c0 = PS(mt, 0)
        if cfg.get("eps"):
            for hh in range(2):
                for e in range(4): a("v_mul_f32 v%d, 0x%x, v%d" % (PS(mt, hh) + e, f2u(1.0 + cfg["eps"] / 10000.0), PS(mt, hh) + e))
        for x in pack(c0, PS(mt, 1)): a(x)
        def ostore(m, reg):
            a.vmem("buffer_store_dwordx4 %s, v%d, %s, s%d offen %s" % (r4("v", reg), V_XO, s4(R_OUT), sXO, ["", "sc1", "nt"][cfg.get("f_of", 2)]), "OUT")
            if m < 3: a("s_add_u32 s%d, s%d, 32768" % (sXO, sXO))
        if CO:
            a.lds("ds_write_b64 v%d, %s offset:%d" % (V_OW, r2("v", c0), mt * 1280), ("ow", mt))
            a.lds("ds_write_b64 v%d, %s offset:%d" % (V_OW, r2("v", c0 + 2), mt * 1280 + 32), ("ow", mt))
            a.lds("ds_read_b128 %s, v%d offset:%d" % (r4("v", PS(mt, 1)), V_OR, mt * 1280), ("or", mt))
            if mt > 0:
                a.wait(lg=("or", mt - 1)); ostore(mt - 1, PS(mt - 1, 1))
            if mt == 3:
                a.wait(lg=("or", 3)); ostore(3, PS(3, 1))
        else:
            a("s_nop 1")
            a("v_permlane16_swap_b32 v%d, v%d" % (c0, c0 + 2))
            a("v_permlane16_swap_b32 v%d, v%d" % (c0 + 1, c0 + 3))
            ostore(mt, c0)
    stampr("x5")
    if ST:
        a("s_waitcnt vmcnt(0)")
        stampr("end")
        a("s_waitcnt lgkmcnt(0)")
        for i in range(8): a("v_mov_b32 v%d, s%d" % (i, STB + 2 * i))
        a("s_lshl_b32 s%d, s2, 2" % t0)
        a("s_add_u32 s%d, s%d, s%d" % (t0, t0, sW))
        a("s_lshl_b32 s%d, s%d, 5" % (t0, t0))
        a("v_mov_b32 v8, 0")
        a("s_nop 4")
        a("buffer_store_dwordx4 v[0:3], v8, %s, s%d offen" % (s4(R_WS), t0))
        a("buffer_store_dwordx4 v[4:7], v8, %s, s%d offen offset:16" % (s4(R_WS), t0))
    a.label("F_end")
    a("s_endpgm")
    kernel_desc(a, name, 256, sgpr=102, accum=256, agpr=256)
    return "; @launch kernel=%s grid=(256,1,1) block=(256,1,1) lds=163840" % name

gen.gen_f = gen_f

if __name__ == "__main__":
    cfg = dict(g1_mt=4)
    out = sys.argv[1]
    kernels = sys.argv[2].split(",")
    for kv in sys.argv[3:]:
        k, v = kv.split("="); cfg[k] = int(v, 0)
    open(out, "w").write(gen.build(cfg, kernels))
```

```python
import sys, math
from asmlib import *
import gen
from gen import *

class SA:
    def __init__(self, start, end):
        self.n = start; self.end = end; self.m = {}
    def new(self, name, cnt=1, align=1):
        self.n = (self.n + align - 1) // align * align
        r = self.n; self.n += cnt
        assert self.n <= self.end, "out of sgprs"
        self.m[name] = r
        return r

def s4(b): return "s[%d:%d]" % (b, b + 3)
MF = "v_mfma_f32_16x16x32_bf16"

def kind_of(op):
    if op is None: return None
    if isinstance(op, tuple): return op[0]
    t = op.lstrip()
    if t.startswith("s_"): return "s"
    if t.startswith("v_"): return "v"
    raise ValueError(op)

class Gaps:
    def __init__(self, a):
        self.a = a
        self.sal = []
        self.side = []
    def run(self, op):
        if isinstance(op, tuple): op[1]()
        else: self.a(op)
    def gap(self, first=None, fixed=None, mem=None):
        used0 = False
        room = 2
        if first is not None: used0 = bool(first())
        if not used0:
            if self.sal:
                x = self.sal.pop(0); self.a(x); used0 = True
                room -= x.count("\n")
            elif self.side and kind_of(self.side[0]) == "s":
                self.run(self.side.pop(0)); used0 = True
        if mem is not None:
            mem(); return
        if fixed is not None:
            fixed(); room -= 1
        if self.side and self.side[0] is None:
            self.side.pop(0)
            skip = True
        else: skip = False
        while room > 0:
            if self.sal and self.sal[0].count("\n") < room:
                x = self.sal.pop(0); self.a(x); room -= 1 + x.count("\n"); continue
            if skip or not self.side or self.side[0] is None: break
            k = kind_of(self.side[0])
            if k in ("m", "x"):
                if room == 2:
                    self.run(self.side.pop(0))
                break
            self.run(self.side.pop(0)); room -= 1
    def drain_sal(self):
        while self.sal: self.a(self.sal.pop(0))
    def drain(self):
        self.drain_sal()
        for op in self.side:
            if op is not None: self.run(op)
        self.side = []

def ln_ops(exact=1):
    o = []
    a = o.append
    pk = lambda op, d, x, y, mod="": a("%s v[%d:%d], v[%d:%d], v[%d:%d]%s" % (op, d, d + 1, x, x + 1, y, y + 1, mod))
    for i in range(16):
        if i % 4 == 0: a("WAIT%d" % (i // 4))
        a("v_lshlrev_b32 v%d, 16, v%d" % (24 + 2 * i, 8 + i))
        a("v_and_b32 v%d, 0xffff0000, v%d" % (25 + 2 * i, 8 + i))
        if i == 1: pk("v_pk_add_f32", 56, 24, 26)
        elif i == 3: pk("v_pk_add_f32", 58, 28, 30)
        elif i > 3: pk("v_pk_add_f32", 56 + 2 * (i & 1), 56 + 2 * (i & 1), 24 + 2 * i)
    pk("v_pk_add_f32", 56, 56, 58)
    a("v_add_f32 v56, v56, v57")
    def xlane_sum(r, t):
        a("s_nop 1")
        a("v_add_f32_dpp v%d, v%d, v%d row_ror:8 row_mask:0xf bank_mask:0xf" % (r, r, r))
        for op in ("v_permlane16_swap_b32", "v_permlane32_swap_b32"):
            a("v_mov_b32 v%d, v%d" % (t, r))
            a("s_nop 1")
            a("%s v%d, v%d" % (op, r, t))
            a("v_add_f32 v%d, v%d, v%d" % (r, r, t))
    xlane_sum(56, 57)
    a("v_mul_f32 v56, 0x%x, v56" % f2u(1.0 / 256))
    neg = " op_sel_hi:[1,0] neg_lo:[0,1] neg_hi:[0,1]"
    for i in range(16):
        t = 62 + 2 * (i & 1); ac = 66 + 2 * (i & 1)
        pk("v_pk_add_f32", t, 24 + 2 * i, 56, neg)
        if i < 2: pk("v_pk_mul_f32", ac, t, t)
        else: a("v_pk_fma_f32 v[%d:%d], v[%d:%d], v[%d:%d], v[%d:%d]" % (ac, ac + 1, t, t + 1, t, t + 1, ac, ac + 1))
    pk("v_pk_add_f32", 66, 66, 68)
    a("v_add_f32 v57, v66, v67")
    xlane_sum(57, 58)
    a("ds_write_b64 v7, v[56:57]")
    a("s_waitcnt lgkmcnt(0)")
    a("s_barrier")
    for k in range(4): a("ds_read_b64 v[%d:%d], v60 offset:%d" % (62 + 2 * k, 63 + 2 * k, 64 * k))
    a("s_waitcnt lgkmcnt(0)")
    pk("v_pk_add_f32", 56, 62, 64)
    pk("v_pk_add_f32", 58, 66, 68)
    pk("v_pk_add_f32", 56, 56, 58)
    a("v_mul_f32 v56, 0x3e800000, v56")
    a("v_sub_f32 v59, v62, v56")
    a("v_mul_f32 v58, v59, v59")
    for r in (64, 66, 68):
        a("v_sub_f32 v59, v%d, v56" % r)
        a("v_fmac_f32 v58, v59, v59")
    a("v_fmac_f32 v57, 0x43800000, v58")
    a("v_mul_f32 v57, 0x%x, v57" % f2u(1.0 / 1024))
    a("v_cvt_pk_bf16_f32 v58, v56, v57")
    a("v_lshlrev_b32 v56, 16, v58")
    a("v_and_b32 v57, 0xffff0000, v58")
    a("v_add_f32 v57, 0x%x, v57" % f2u(1e-5))
    a("v_cvt_pk_bf16_f32 v57, v57, v57")
    a("v_and_b32 v57, 0xffff0000, v57")
    a("v_sqrt_f32 v57, v57")
    a("s_nop 0")
    a("v_cvt_pk_bf16_f32 v57, v57, v57")
    a("v_and_b32 v57, 0xffff0000, v57")
    a("v_rcp_f32 v58, v57")
    for i in range(16):
        pk("v_pk_add_f32", 24 + 2 * i, 24 + 2 * i, 56, neg)
        if i > 0:
            j = i - 1
            if exact:
                a("v_cvt_pk_bf16_f32 v%d, v%d, v%d" % (25 + 2 * j, 24 + 2 * j, 25 + 2 * j))
                a("v_lshlrev_b32 v%d, 16, v%d" % (24 + 2 * j, 25 + 2 * j))
                a("v_and_b32 v%d, 0xffff0000, v%d" % (25 + 2 * j, 25 + 2 * j))
            pk("v_pk_mul_f32", 24 + 2 * j, 24 + 2 * j, 58, " op_sel_hi:[1,0]")
            a("v_cvt_pk_bf16_f32 v%d, v%d, v%d" % (8 + j, 24 + 2 * j, 25 + 2 * j))
            if j % 4 == 3: a("STORE%d" % (j // 4))
    if exact:
        a("v_cvt_pk_bf16_f32 v55, v54, v55")
        a("v_lshlrev_b32 v54, 16, v55")
        a("v_and_b32 v55, 0xffff0000, v55")
    pk("v_pk_mul_f32", 54, 54, 58, " op_sel_hi:[1,0]")
    a("v_cvt_pk_bf16_f32 v23, v54, v55")
    a("STORE3")
    return o

def gen_f(a, cfg):
    name = NAME + "_kernel" if cfg.get("single") else "f_kernel"
    FLN = cfg.get("f_ln", 0)
    SPIN = cfg.get("spin", 0x40000)
    ST = cfg.get("stamp")
    MT = 4
    sa = SA(3, 84)
    P_WQ = sa.new("pwq", 2, 2); P_W1 = sa.new("pw1", 2, 2); P_WS = sa.new("pws", 2, 2); P_X = sa.new("px", 2, 2)
    P_W2 = sa.new("pw2", 2, 2); P_WO = sa.new("pwo", 2, 2); P_OUT = sa.new("pout", 2, 2)
    R_WQ = sa.new("rwq", 4, 4); R_W1 = sa.new("rw1", 4, 4); R_W2 = sa.new("rw2", 4, 4); R_WO = sa.new("rwo", 4, 4)
    R_WS = sa.new("rws", 4, 4)
    sW = sa.new("w"); sI = sa.new("i"); sJ = sa.new("j"); sJ1 = sa.new("j1"); sQ = sa.new("q"); sN = sa.new("n")
    sBQ = sa.new("bq"); sBV = sa.new("bv"); sBW = sa.new("bw"); sBL = sa.new("bl"); sLB = sa.new("lb"); sA = sa.new("a")
    sCLS = sa.new("cls"); t0 = sa.new("t0"); t1 = sa.new("t1"); t2 = sa.new("t2"); t3 = sa.new("t3")
    sMK = sa.new("mask", 8, 2)
    sKV = sa.new("kv"); sKV2 = sa.new("kv2"); sKP = sa.new("kp"); sKP2 = sa.new("kp2"); sFK = sa.new("fk"); sFO = sa.new("fo")
    sH = sa.new("h", 4); sSC = sa.new("sc", 2, 2); sO = sSC + 1; sA0 = sa.new("a0"); sB0 = sa.new("b0"); sAE = sa.new("aend"); sBE = sa.new("bend")
    sXO = sa.new("xo"); sSP = sa.new("spin")
    sDL = sMK
    STB = 84
    SETS = {1: ["start", "bar0", "g1end", "attbeg", "attend", "g2beg", "g2end", "end"],
            2: ["start", "g1half", "g1tail", "g1kv", "g1flag1", "g1chk", "g1kb", "g1end"],
            3: ["start", "attbeg", "att0", "att1", "att2", "att3", "att4", "attend"],
            4: ["start", "att4", "g2h", "g2beg", "g2p4", "g2p12", "g2tail", "g2end"],
            5: ["start", "g2end", "x1", "x2", "x3", "x4", "x5", "end"],
            7: ["g2beg", "g2p3", "g2p6", "g2p10", "g2p14", "g2p18", "g2p22", "g2end"],
            8: ["g2p22", "g2tail", "g2l1", "g2l2", "g2l3", "g2end", "x3", "end"],
            9: ["start", "lnx", "lns", "lnd", "lnp", "g1s1", "g1s4", "g1s8"],
            10: ["start", "k0", "k1", "k2", "k3", "k4", "lnx", "lns"],
            6: ["start", "bar0", "g1s2", "g1s4", "g1s8", "g1half", "g1s20", "g1tail"]}
    jn = [0]
    def stampr(nm):
        J = cfg.get("jit", 0)
        if J and nm != "start":
            jn[0] += 1
            lab = a.newlabel("F_j")
            a("s_lshl_b32 s84, s2, 2")
            if J & 1: a("s_add_u32 s84, s84, s%d" % sW)
            a("s_add_u32 s84, s84, %d" % (jn[0] * 7919 + J * 31))
            a("s_mul_i32 s84, s84, 0x9e3779b1")
            a("s_lshr_b32 s84, s84, 28")
            a("s_cmp_lg_u32 s84, 0")
            a("s_cbranch_scc1 %s" % lab)
            for _ in range(cfg.get("jitn", 2)): a("s_sleep 127")
            a.label(lab)
        if ST and nm in SETS[ST]:
            i = SETS[ST].index(nm)
            a("%s s[%d:%d]" % ("s_memtime" if cfg.get("clk") else "s_memrealtime", STB + 2 * i, STB + 2 * i + 1))

    NT = 13; KS = 32
    NS = 5; REG = 7168; STAGE = 4 * REG
    D1 = cfg.get("f_d1", 8)
    RA = cfg.get("f_ra1", 12)
    LA = cfg.get("f_la1", 4)
    C1 = cfg.get("f_c1", 2)
    C1K = cfg.get("f_c1k", 2); C1T = cfg.get("f_c1t", 4); C1S = cfg.get("f_c1s", 0)
    CM1 = max(C1, C1K, C1T)
    DB = cfg.get("f_db1", CM1 + 2); RB = DB + max(CM1, 2)
    assert DB >= CM1
    S1 = KS - D1
    def slot1(g): return (15 - g) % 5
    KVB = 96 * 1024
    def acc(mt, t): return (t * MT + mt) * 4
    V_L16 = 208; V_QKV = 209; V_W1 = 210; V_LEFT = 211
    V_RD = 212
    V_P0, V_P1, V_P2 = 221, 222, 223
    V_LANE = 224; V_FL0 = 225; V_ONE = 226; V_POLL = 227; V_KVW = 228; V_FG = 229; V_PL = 230
    T = 232
    A_PD = 255
    AR = 0; BR = RA * 16
    assert BR + RB * 4 <= 254

    kernel_begin(a, name)
    a.reset()
    stampr("start")
    a("s_cmp_ge_u32 s2, 256")
    a("s_cbranch_scc1 F_end")
    if cfg.get("idx"): a("s_xor_b32 s2, s2, %d" % cfg["idx"])
    if cfg.get("jit"):
        a("s_mul_i32 s84, s2, 0x9e3779b1")
        a("s_lshr_b32 s84, s84, 28")
        a("s_cmp_lg_u32 s84, %d" % (cfg["jit"] & 15))
        a("s_cbranch_scc1 F_j0")
        for _ in range(4): a("s_sleep 127")
        a.label("F_j0")
    a("s_load_dwordx2 s[%d:%d], s[0:1], 8" % (P_WQ, P_WQ + 1))
    a("s_load_dwordx2 s[%d:%d], s[0:1], 32" % (P_W1, P_W1 + 1))
    a("s_load_dwordx2 s[%d:%d], s[0:1], 64" % (P_WS, P_WS + 1))
    a("s_load_dwordx2 s[%d:%d], s[0:1], 0" % (P_X, P_X + 1))
    a("s_load_dwordx2 s[%d:%d], s[0:1], 40" % (P_W2, P_W2 + 1))
    a("s_load_dwordx2 s[%d:%d], s[0:1], 16" % (P_WO, P_WO + 1))
    a("s_load_dwordx2 s[%d:%d], s[0:1], 48" % (P_OUT, P_OUT + 1))
    if FLN:
        lab = a.newlabel("F_pc")
        a("s_getpc_b64 s[%d:%d]" % (R_WO, R_WO + 1))
        a.label(lab)
        a("s_and_b32 s%d, s%d, 0xffff" % (R_WO + 1, R_WO + 1))
        a("s_mov_b32 s%d, CODE_END - %s" % (R_WO + 2, lab))
        a("s_mov_b32 s%d, 0x00020000" % (R_WO + 3))
        a("s_lshr_b32 s%d, s2, 3" % t0)
        a("s_lshl_b32 s%d, s%d, 7" % (t0, t0))
        a("v_lshlrev_b32 v70, 12, v0")
        a.vmem("buffer_load_dword v76, v70, %s, s%d offen" % (s4(R_WO), t0), "T")
    if FLN: a("s_load_dwordx2 s[100:101], s[0:1], 56")
    L = V_LANE
    a("v_and_b32 v%d, 63, v0" % L)
    a("v_lshrrev_b32 v%d, 6, v0" % (T + 1))
    a("v_lshlrev_b32 v%d, 4, v%d" % (V_L16, L))
    a("v_readfirstlane_b32 s%d, v%d" % (sW, T + 1))
    a("s_and_b32 s%d, s2, 1" % sI)
    a("s_lshl_b32 s%d, s%d, 2" % (sI, sI))
    a("s_bfe_u32 s%d, s2, 0x20003" % t0)
    a("s_add_u32 s%d, s%d, s%d" % (sI, sI, t0))
    a("s_bfe_u32 s%d, s2, 0x20001" % sQ)
    a("s_lshr_b32 s%d, s2, 5" % sN)
    a("s_lshl_b32 s%d, s%d, 3" % (sJ, sQ))
    a("s_add_u32 s%d, s%d, s%d" % (sJ, sJ, sN))
    a("s_and_b32 s%d, s%d, 1" % (sJ1, sN))
    if FLN:
        a("v_and_b32 v3, 7, v%d" % L)
        a("v_lshrrev_b32 v4, 3, v%d" % L)
        LXD = cfg.get("f_lxd", 0)
        if LXD:
            a("v_xor_b32 v83, v3, v4")
            a("v_lshlrev_b32 v5, 11, v4")
            a("v_lshl_add_u32 v5, v%d, 9, v5" % (T + 1))
            a("v_lshl_add_u32 v5, v83, 4, v5")
            a("s_lshl_b32 s%d, s%d, 12" % (t1, sW))
            a("s_add_u32 s%d, s%d, %d" % (t1, t1, 144 * 1024))
            a("s_mov_b32 m0, s%d" % t1)
        else:
            a("v_lshlrev_b32 v5, 11, v3")
            a("v_lshl_add_u32 v5, v%d, 9, v5" % (T + 1))
            a("v_lshl_add_u32 v5, v4, 4, v5")
        a("s_lshl_b32 s%d, s%d, 5" % (t3, sI))
        a("s_add_u32 s%d, s%d, s%d" % (t3, t3, sJ))
        a("s_lshl_b32 s%d, s%d, 14" % (t0, t3))
        stampr("k0")
        a("s_waitcnt lgkmcnt(0)")
        stampr("k1")
        srd(a, R_W2, P_X, S * D * 2)
        for i in range(4):
            if LXD:
                a.vmem("buffer_load_dwordx4 v5, %s, s%d offen offset:%d lds" % (s4(R_W2), t0, i * 128), ("LX", i))
                if i < 3:
                    a("s_add_u32 m0, m0, %d" % (1024 - 128))
                    a("s_nop 0")
            else: a.vmem("buffer_load_dwordx4 %s, v5, %s, s%d offen offset:%d" % (r4("v", 8 + 4 * i), s4(R_W2), t0, i * 128), ("LX", i))
        if LXD:
            a("v_lshlrev_b32 v83, 4, v83")
            a("v_lshl_add_u32 v83, v3, 7, v83")
            a("v_add_u32 v83, s%d, v83" % t1)
        stampr("k2")
        srd(a, R_WS, P_WS, WS_END)
        a("s_lshl_b32 s%d, s%d, 12" % (sSP, sI))
        a("s_add_u32 s%d, s%d, 0x%x" % (sXO, sSP, WS_LF))
        a("v_and_b32 v80, 31, v%d" % L)
        a("v_lshlrev_b32 v80, %d, v80" % cfg.get("f_lfs", 2))
        a("v_add_u32 v80, s%d, v80" % sXO)
        a.vmem("buffer_load_dword v81, v80, %s, 0 offen sc1" % s4(R_WS), "SN")
    VQ3 = [V_QKV, 240, 241]; VW3 = [V_W1, 242, 243]
    a("v_lshrrev_b32 v%d, 2, v%d" % (T + 2, L))
    a("v_and_b32 v%d, 3, v%d" % (T + 4, L))
    a("v_lshlrev_b32 v%d, 4, v%d" % (T + 4, T + 4))
    a("v_mul_u32_u24 v%d, %d, v%d" % (T + 5, 16 * 6144, T + 1))
    a("v_lshl_add_u32 v%d, v%d, 11, v%d" % (T + 5, T + 2, T + 5))
    a("v_add_u32 v%d, v%d, v%d" % (VQ3[0], T + 5, T + 4))
    a("v_and_b32 v%d, 32, v%d" % (T + 3, L))
    a("v_xor_b32 v%d, v%d, v%d" % (VQ3[1], VQ3[0], T + 3))
    a("v_add_u32 v%d, 32768, v%d" % (VQ3[1], VQ3[1]))
    a("v_xor_b32 v%d, 32, v%d" % (VQ3[2], VQ3[0]))
    a("v_add_u32 v%d, 65536, v%d" % (VQ3[2], VQ3[2]))
    a("v_mul_u32_u24 v%d, %d, v%d" % (T + 5, 16 * 7168, T + 1))
    a("v_add_u32 v%d, v%d, v%d" % (T + 5, T + 5, T + 4))
    for m in range(3):
        if m: a("v_add_u32 v%d, 16, v%d" % (T + 2, T + 2))
        a("v_mul_u32_u24 v%d, 43, v%d" % (T + 4, T + 2))
        a("v_lshrrev_b32 v%d, 7, v%d" % (T + 4, T + 4))
        a("v_mul_u32_u24 v%d, %d, v%d" % (T + 4, 7168 - 192, T + 4))
        a("v_lshl_add_u32 v%d, v%d, 6, v%d" % (T + 4, T + 2, T + 4))
        a("v_add_u32 v%d, v%d, v%d" % (VW3[m], T + 4, T + 5))
        if m == 1: a("v_xor_b32 v%d, v%d, v%d" % (VW3[m], VW3[m], T + 3))
        if m == 2: a("v_xor_b32 v%d, 32, v%d" % (VW3[m], VW3[m]))
    a("v_bfe_u32 v%d, v%d, 3, 1" % (T + 2, L))
    a("v_lshlrev_b32 v%d, 3, v%d" % (T + 2, T + 2))
    a("v_bfe_u32 v%d, v%d, 4, 1" % (T + 3, L))
    a("v_lshl_add_u32 v%d, v%d, 2, v%d" % (T + 2, T + 3, T + 2))
    a("v_bfe_u32 v%d, v%d, 1, 2" % (T + 3, L))
    a("v_add_u32 v%d, v%d, v%d" % (T + 2, T + 2, T + 3))
    a("v_lshl_add_u32 v%d, v%d, 4, v%d" % (T + 2, T + 1, T + 2))
    a("v_mul_u32_u24 v%d, 7168, v%d" % (V_LEFT, T + 2))
    a("v_and_b32 v%d, 1, v%d" % (T + 3, L))
    a("v_lshl_add_u32 v%d, v%d, 4, v%d" % (V_LEFT, T + 3, V_LEFT))
    a("v_lshrrev_b32 v%d, 5, v%d" % (T + 3, L))
    a("v_lshl_add_u32 v%d, v%d, 30, v%d" % (V_LEFT, T + 3, V_LEFT))
    a("s_lshl_b32 s%d, s%d, 6" % (sBQ, sJ))
    a("s_mul_i32 s%d, s%d, 224" % (sBL, sJ))
    a("s_lshl_b32 s%d, s%d, 5" % (t0, sJ1))
    a("s_add_u32 s%d, s%d, s%d" % (sBW, sBL, t0))
    a("s_xor_b32 s%d, s%d, 1" % (t0, sJ1))
    a("s_mul_i32 s%d, s%d, 192" % (t0, t0))
    a("s_add_u32 s%d, s%d, s%d" % (sBL, sBL, t0))
    a("s_mul_i32 s%d, s%d, %d" % (sLB, sW, REG))
    a("s_lshl_b32 s%d, s%d, 2" % (sA, sI))
    a("s_add_u32 s%d, s%d, s%d" % (sA, sA, sW))
    a("s_lshl_b32 s%d, s%d, 17" % (sA, sA))
    a("s_add_u32 s%d, s%d, 0x%x" % (sA, sA, WS_XN))
    ROT = cfg.get("f_rot", 1)
    a("s_add_u32 s%d, s%d, s%d" % (t1, sI, sN))
    a("s_and_b32 s%d, s%d, %d" % (t1, t1, 3 if ROT else 0))
    for k in range(3):
        a("s_cmp_eq_u32 s%d, %d" % (t1, 3 - k))
        a("s_cselect_b32 s%d, -3, 1" % (sDL + k))
    a("s_cmp_eq_u32 s%d, 0" % t1)
    a("s_cselect_b32 s%d, 1, 5" % (sDL + 3))
    a("s_mul_i32 s%d, s%d, %d" % (t0, t1, 64 * 6144))
    a("s_add_u32 s%d, s%d, s%d" % (sBQ, sBQ, t0))
    a("s_mul_i32 s%d, s%d, %d" % (t0, t1, 64 * 7168))
    a("s_add_u32 s%d, s%d, s%d" % (sBW, sBW, t0))
    a("s_add_u32 s%d, s%d, s%d" % (sBL, sBL, t0))
    a("s_lshl_b32 s%d, s%d, 13" % (t0, t1))
    a("s_add_u32 s%d, s%d, s%d" % (sA, sA, t0))
    for k in range(4):
        a("s_lshl_b32 s%d, s%d, 13" % (sDL + 4 + k, sDL + k))
        a("s_sub_u32 s%d, s%d, 4096" % (sDL + 4 + k, sDL + 4 + k))
    a("s_waitcnt lgkmcnt(0)")
    srd(a, R_WQ, P_WQ, D * 3 * D * 2)
    srd(a, R_W1, P_W1, D * DFF * 2)
    if not FLN: srd(a, R_WS, P_WS, WS_END)

    G = Gaps(a)
    PAIRPOS = [0, 2, 1, 3, 4, 5]
    def dma1(g, k, part):
        p, vreg, sb, so, imm = [(0, VQ3[0], R_WQ, sBQ, 0), (1, VQ3[1], R_WQ, sBQ, 0), (2, VQ3[2], R_WQ, sBQ, 0),
                                (3, VW3[0], R_W1, sBW, 0), (4, VW3[1], R_W1, sBW, 0), (5, VW3[2], R_W1, sBW, 0), (6, V_LEFT, R_W1, sBL, 0)][k]
        if part == 0:
            a("s_add_u32 m0, s%d, %d" % (sLB, slot1(g) * STAGE + p * 1024 - imm))
        else:
            a.vmem("buffer_load_dwordx4 v%d, %s, s%d offen offset:%d lds" % (vreg, s4(sb), so, imm), ("B", g))
            if k == 0: G.sal.append("s_mul_i32 s%d, s%d, %d" % (t2, sDL + (g & 3), 64 * 6144))
            if k == 2: G.sal.append("s_add_u32 s%d, s%d, s%d" % (sBQ, sBQ, t2))
            if k == 3: G.sal.append("s_mul_i32 s%d, s%d, %d" % (t2, sDL + (g & 3), 64 * 7168))
            if k == 5: G.sal.append("s_add_u32 s%d, s%d, s%d" % (sBW, sBW, t2))
            if k == 6: G.sal.append("s_add_u32 s%d, s%d, s%d" % (sBL, sBL, t2))
    def aload1(s, mt):
        a.vmem("buffer_load_dwordx4 %s, v%d, %s, s%d offen offset:%d%s" % (r4("a", AR + (s % RA) * 16 + mt * 4), V_L16, s4(R_WS), sA, mt * 1024, " sc1" if FLN else ""), ("A", s))
        if mt == MT - 1:
            if s % 2 == 0: G.sal.append("s_add_u32 s%d, s%d, 4096" % (sA, sA))
            else: G.sal.append("s_add_u32 s%d, s%d, s%d" % (sA, sA, sDL + 4 + ((s // 2) & 3)))
    order = []
    for g in range(16):
        for k in range(7): order.append(("B", g, k))
        for s in (2 * g, 2 * g + 1):
            for mt in range(MT): order.append(("A", s, mt))
    def issue1(op):
        G.drain_sal()
        if op[0] == "A": aload1(op[1], op[2])
        else:
            dma1(op[1], op[2], 0); a("s_nop 0"); dma1(op[1], op[2], 1)
        G.drain_sal()
    if FLN:
        nb = cfg.get("f_lnb", 1)
        bops = [o for o in order if o[0] == "B" and o[1] < nb]
        for o in bops: order.remove(o)
        BO = cfg.get("f_bo", 0)
        late_b = []
        if BO == 1: late_b = bops[:3]; bops = bops[3:]
        if BO == 2: late_b = bops[3:]; bops = bops[:3]
        TB0 = cfg.get("f_tb", 0)
        def touchb():
            a("s_lshr_b32 s%d, s2, 3" % t1)
            a("s_lshl_b32 s%d, s%d, 2" % (t1, t1))
            a("s_add_u32 s%d, s%d, s%d" % (t1, t1, sW))
            a("v_lshrrev_b32 v84, 4, v%d" % L)
            a("v_and_b32 v85, 15, v%d" % L)
            a("v_mul_u32_u24 v86, 7168, v84")
            a("v_lshl_add_u32 v86, v85, 7, v86")
            a("v_mul_u32_u24 v84, 6144, v84")
            a("v_lshrrev_b32 v87, 2, v85")
            a("v_lshl_add_u32 v84, v87, 11, v84")
            a("v_and_b32 v87, 3, v85")
            a("v_lshl_add_u32 v84, v87, 7, v84")
            a("s_mul_i32 s%d, s%d, %d" % (t0, t1, 2 * 6144))
            a("s_lshl_b32 s%d, s%d, 9" % (t2, sQ))
            a("s_add_u32 s%d, s%d, s%d" % (sKV, t0, t2))
            a("s_mul_i32 s%d, s%d, %d" % (t0, t1, 2 * 7168))
            a("s_mul_i32 s%d, s%d, 1792" % (t2, sQ))
            a("s_add_u32 s%d, s%d, s%d" % (sKV2, t0, t2))
        def touchb2():
            a("s_mov_b64 exec, 0x0fff0fff")
            a.vmem("buffer_load_dword a%d, v84, %s, s%d offen" % (A_PD, s4(R_WQ), sKV), "T")
            a("s_mov_b64 exec, 0x3fff3fff")
            a.vmem("buffer_load_dword a%d, v86, %s, s%d offen" % (A_PD, s4(R_W1), sKV2), "T")
            a("s_mov_b64 exec, -1")
        HT = cfg.get("f_ht", 0)
        def hottouch(b):
            a("s_mov_b32 s%d, %d" % (t0, b * 256 * 6144))
            a.vmem("buffer_load_dword a%d, v%d, %s, s%d offen" % (A_PD, V_P1, s4(R_WQ), t0), "T")
        if HT:
            a("s_lshr_b32 s%d, s2, 3" % t1)
            a("s_lshl_b32 s%d, s%d, 2" % (t1, t1))
            a("s_add_u32 s%d, s%d, s%d" % (t1, t1, sW))
            a("s_mul_i32 s%d, s%d, %d" % (t1, t1, 2 * 6144))
            a("s_mul_i32 s%d, s%d, 0x40000200" % (t0, sQ))
            a("s_and_b32 s%d, s%d, 0x7fffffff" % (t0, t0))
            a("s_add_u32 s%d, s%d, s%d" % (t1, t1, t0))
            a("s_add_u32 s%d, s%d, 384" % (t1, t1))
            a("v_lshlrev_b32 v%d, 11, v%d" % (V_P1, L))
            a("v_add_u32 v84, 58, v%d" % L)
            a("v_lshrrev_b32 v84, 6, v84")
            a("v_lshl_add_u32 v%d, v84, 30, v%d" % (V_P1, V_P1))
            a("v_add_u32 v%d, s%d, v%d" % (V_P1, t1, V_P1))
            if HT & 1: hottouch(0)
        if TB0: touchb()
        if TB0 == 1: touchb2()
        for _ in range(cfg.get("f_lnb0", 2)): issue1(bops.pop(0))
        a("s_lshl_b32 s%d, s2, 9" % t0)
        a("s_add_u32 s%d, s%d, 0x%x" % (t0, t0, WS_FL))
        a("v_lshlrev_b32 v70, 2, v0")
        a("v_lshrrev_b32 v71, 7, v0")
        a("v_lshl_add_u32 v70, v71, 30, v70")
        a("v_mov_b32 v71, 0")
        a.vmem("buffer_store_dword v71, v70, %s, s%d offen sc1" % (s4(R_WS), t0), "Z")
        a("s_lshr_b32 s%d, s%d, 3" % (t0, t3))
        a("s_lshl_b32 s%d, s%d, 17" % (t0, t0))
        a("s_bfe_u32 s%d, s%d, 0x20001" % (t1, t3))
        a("s_lshl_b32 s%d, s%d, 10" % (t1, t1))
        a("s_add_u32 s%d, s%d, s%d" % (t0, t0, t1))
        a("s_and_b32 s%d, s%d, 1" % (t1, t3))
        a("s_lshl_b32 s%d, s%d, 7" % (t1, t1))
        a("s_add_u32 s%d, s%d, s%d" % (t0, t0, t1))
        a("s_add_u32 s%d, s%d, 0x%x" % (t3, t0, WS_XN))
        a("v_lshrrev_b32 v6, 2, v4")
        a("v_lshl_add_u32 v6, v%d, 3, v6" % (T + 1))
        a("v_lshlrev_b32 v6, 12, v6")
        a("v_and_b32 v7, 3, v4")
        a("v_lshl_add_u32 v6, v7, 8, v6")
        a("v_lshl_add_u32 v6, v3, 4, v6")
        a("v_lshl_add_u32 v7, v%d, 3, v3" % (T + 1))
        a("v_lshlrev_b32 v7, 3, v7")
        a("v_add_u32 v7, %d, v7" % (5 * STAGE))
        a("v_lshlrev_b32 v60, 3, v3")
        a("v_add_u32 v60, %d, v60" % (5 * STAGE))
        stampr("k3")
        if LXD:
            for i in range(4):
                a.wait(vm=("LX", i))
                if i == 0: stampr("k4")
                a("ds_read_b128 %s, v83 offset:%d" % (r4("v", 8 + 4 * i), i * 1024))
            a("s_waitcnt lgkmcnt(0)")
        elif not cfg.get("f_lxp", 1): a.wait(vm=("LX", 3))
        stampr("lnx")
        if TB0 == 2: touchb2()
        lo_ = ln_ops(cfg.get("f_lnex", 1))
        gap_ = cfg.get("f_lngap", 20)
        for k, x in enumerate(lo_):
            if x.startswith("WAIT"): a.wait(vm=("LX", int(x[4:])))
            elif x.startswith("STORE"):
                i = int(x[5:])
                a.vmem("buffer_store_dwordx4 %s, v6, %s, s%d offen sc1" % (r4("v", 8 + 4 * i), s4(R_WS), t3), "XS")
                if i < 3: a("s_add_u32 s%d, s%d, %d" % (t3, t3, 8192))
            else: a(x)
            if k % gap_ == gap_ - 1 and bops and k < cfg.get("f_lnk", 110): issue1(bops.pop(0))
        bops += late_b
        if cfg.get("f_bnow", 1):
            while bops: issue1(bops.pop(0))
        stampr("lns")
    else:
        for _ in range(cfg.get("f_pro1", 15)): issue1(order.pop(0))

    srd(a, R_W2, P_W2, DFF * D * 2)
    srd(a, R_WO, P_WO, D * D * 2)
    a("s_bfe_u32 s%d, s2, 0x30003" % sCLS)
    a("v_bfrev_b32 v%d, 1" % (T + 6))
    if cfg.get("f_pf", 0):
        a("s_lshr_b32 s%d, s2, 6" % t1)
        a("s_lshl_b32 s%d, s%d, 2" % (t1, t1))
        a("s_add_u32 s%d, s%d, s%d" % (t1, t1, sW))
        a("v_bfrev_b32 v%d, 1" % (T + 6))
        a("v_lshrrev_b32 v%d, 5, v%d" % (T + 2, L))
        a("s_lshl_b32 s%d, s%d, 1" % (t0, t1))
        a("v_add_u32 v%d, s%d, v%d" % (T + 2, t0, T + 2))
        a("v_and_b32 v%d, 31, v%d" % (T + 3, L))
        a("v_mul_u32_u24 v%d, 7168, v%d" % (V_P1, T + 2))
        a("v_lshl_add_u32 v%d, v%d, 7, v%d" % (V_P1, T + 3, V_P1))
        a("s_mul_i32 s%d, s%d, 1792" % (t0, sQ))
        a("v_add_u32 v%d, s%d, v%d" % (V_P1, t0, V_P1))
        a("v_mul_u32_u24 v%d, 6144, v%d" % (V_P0, T + 2))
        a("v_lshrrev_b32 v%d, 2, v%d" % (T + 4, T + 3))
        a("v_lshl_add_u32 v%d, v%d, 11, v%d" % (V_P0, T + 4, V_P0))
        a("v_and_b32 v%d, 3, v%d" % (T + 4, T + 3))
        a("v_lshl_add_u32 v%d, v%d, 7, v%d" % (V_P0, T + 4, V_P0))
        a("s_lshl_b32 s%d, s%d, 9" % (t0, sQ))
        a("v_add_u32 v%d, s%d, v%d" % (V_P0, t0, V_P0))
        a("v_cmp_le_u32 vcc, 12, v%d" % (T + 3))
        a("s_and_b32 s%d, s2, 1" % t0)
        a("s_lshl_b32 s%d, s%d, 4" % (t0, t0))
        a("v_cndmask_b32 v%d, v%d, v%d, vcc" % (V_P0, V_P0, T + 6))
        a("v_cmp_le_u32 vcc, 14, v%d" % (T + 3))
        a("s_add_u32 s%d, s%d, s%d" % (t0, t0, t1))
        a("s_lshl_b32 s%d, s%d, 17" % (t0, t0))
        a("v_cndmask_b32 v%d, v%d, v%d, vcc" % (V_P1, V_P1, T + 6))
        a("s_add_u32 s%d, s%d, 0x%x" % (t0, t0, WS_XN))
        a("v_lshlrev_b32 v%d, 7, v%d" % (V_P2, L))
        a("v_add_u32 v%d, s%d, v%d" % (V_P2, t0, V_P2))
        a("v_cmp_le_u32 vcc, 32, v%d" % L)
        a("s_lshl_b32 s%d, s%d, 12" % (t0, sCLS))
        a("s_nop 0")
        a("v_cndmask_b32 v%d, v%d, v%d, vcc" % (V_P2, V_P2, T + 6))
    PFM = cfg.get("f_pf", 0)
    PF0 = cfg.get("f_pf0", 8)
    if PFM & 2:
        a("buffer_load_dword a%d, v%d, %s, s%d offen" % (A_PD, V_P2, s4(R_WS), t0))
    def touch(n):
        lab = a.newlabel("F_pf")
        a("s_cmp_lg_u32 s%d, %d" % (sCLS, n & 7))
        a("s_cbranch_scc1 %s" % lab)
        if PFM & 1:
            a("s_mov_b32 s%d, %d" % (t0, n * 32 * 6144))
            a("s_mov_b32 s%d, %d" % (t1, n * 32 * 7168))
            a("buffer_load_dword a%d, v%d, %s, s%d offen" % (A_PD, V_P0, s4(R_WQ), t0))
            a("buffer_load_dword a%d, v%d, %s, s%d offen" % (A_PD - 1, V_P1, s4(R_W1), t1))
        if PFM & 2:
            a("s_mov_b32 s%d, %d" % (t0, n * 4096))
            a("buffer_load_dword a%d, v%d, %s, s%d offen" % (A_PD, V_P2, s4(R_WS), t0))
        a.label(lab)
    if PFM & 4:
        a("s_and_b32 s%d, s2, 1" % t0)
        a("v_lshrrev_b32 v%d, 5, v%d" % (T + 2, L))
        a("v_cmp_ne_u32 vcc, s%d, v%d" % (t0, T + 2))
        a("s_nop 1")
        a("v_cndmask_b32 v%d, v%d, v%d, vcc" % (V_P0, V_P0, T + 6))
        a("v_cndmask_b32 v%d, v%d, v%d, vcc" % (V_P1, V_P1, T + 6))
    PW = cfg.get("f_pw", 2); PW0 = cfg.get("f_pw0", 12)
    V_PW = 231
    a("v_lshlrev_b32 v%d, 7, v%d" % (V_PW, L))
    a("v_cmp_le_u32 vcc, 56, v%d" % L)
    a("s_nop 1")
    a("v_cndmask_b32 v%d, v%d, v%d, vcc" % (V_PW, V_PW, T + 6))
    ASY = cfg.get("f_asy", 1)
    if ASY:
        if cfg.get("f_xcc", 0):
            a("s_getreg_b32 s%d, hwreg(HW_REG_XCC_ID)" % t0)
            a("s_and_b32 s%d, s%d, 1" % (t0, t0))
        else: a("s_and_b32 s%d, s2, 1" % t0)
        if ASY == 2: a("s_xor_b32 s%d, s%d, 1" % (t0, t0))
        a("s_lshl_b32 s%d, s%d, 4" % (t0, t0))
        a("s_or_b32 s%d, s%d, s%d" % (sCLS, sCLS, t0))
    HOT = cfg.get("f_hot", 0); LO = cfg.get("f_lo", 64)
    if HOT:
        a("s_bfe_u32 s%d, s2, 0x30003" % sCLS)
        a("s_and_b32 s%d, s%d, 14" % (t0, sJ))
        a("s_cmp_eq_u32 s%d, 6" % t0)
        a("s_cselect_b32 s%d, 16, s%d" % (sCLS, sCLS))
        if LO == 0:
            a("s_bitcmp1_b32 s2, 0")
            a("s_cselect_b32 s%d, 16, s%d" % (sCLS, sCLS))
        a("v_lshlrev_b32 v%d, 7, v%d" % (V_PW, L))
    def toucht(cls):
        lab = a.newlabel("F_pw"); l2 = a.newlabel("F_po")
        def ex(n):
            m_ = (1 << n) - 1
            a("s_mov_b32 exec_lo, 0x%x" % (m_ & 0xffffffff)); a("s_mov_b32 exec_hi, 0x%x" % (m_ >> 32))
        a("s_cmp_lg_u32 s%d, %d" % (sCLS, cls))
        a("s_cbranch_scc1 %s" % lab)
        a("s_add_u32 s%d, s%d, 8" % (t0, sJ))
        a("s_lshr_b32 s%d, s%d, 4" % (t0, t0))
        a("s_lshl_b32 s%d, s%d, 1" % (t0, t0))
        a("s_sub_u32 s%d, s%d, s%d" % (t0, sJ, t0))
        a("s_lshl_b32 s%d, s%d, 2" % (t0, t0))
        a("s_and_b32 s%d, s%d, 3" % (t1, sI))
        a("s_add_u32 s%d, s%d, s%d" % (t0, t0, t1))
        a("s_lshl_b32 s%d, s%d, 2" % (t0, t0))
        a("s_add_u32 s%d, s%d, s%d" % (t0, t0, sW))
        a("s_lshl_b32 s%d, s%d, 14" % (t1, t0))
        a("s_bitcmp1_b32 s2, 0")
        a("s_cbranch_scc1 %s" % l2)
        a("buffer_load_dword a%d, v%d, %s, s%d offen" % (A_PD, V_PW, s4(R_W2), t1))
        if LO < 64:
            a("s_add_u32 s%d, s%d, 8192" % (t1, t1))
            ex(64 - LO)
            a("buffer_load_dword a%d, v%d, %s, s%d offen" % (A_PD, V_PW, s4(R_W2), t1))
        a("s_mul_i32 s%d, s%d, %d" % (t1, t0, 37 * 128))
        ex(37)
        a("buffer_load_dword a%d, v%d, %s, s%d offen" % (A_PD - 1, V_PW, s4(R_WO), t1))
        a("s_mov_b64 exec, -1")
        a("s_branch %s" % lab)
        a.label(l2)
        if LO:
            a("s_add_u32 s%d, s%d, %d" % (t1, t1, (128 - LO) * 128))
            ex(LO)
            a("buffer_load_dword a%d, v%d, %s, s%d offen" % (A_PD, V_PW, s4(R_W2), t1))
            a("s_mov_b64 exec, -1")
        a.label(lab)
    def touchw(cls, flip=0):
        lab = a.newlabel("F_pw")
        if cls is not None:
            a("s_cmp_lg_u32 s%d, %d" % (sCLS, cls))
            a("s_cbranch_scc1 %s" % lab)
        if flip:
            a("s_xor_b32 s%d, s2, 1" % t0)
            a("s_lshl_b32 s%d, s%d, 2" % (t0, t0))
        else: a("s_lshl_b32 s%d, s2, 2" % t0)
        a("s_add_u32 s%d, s%d, s%d" % (t0, t0, sW))
        a("s_mul_i32 s%d, s%d, 7168" % (t1, t0))
        a("buffer_load_dword a%d, v%d, %s, s%d offen" % (A_PD, V_PW, s4(R_W2), t1))
        a("s_lshl_b32 s%d, s%d, 11" % (t1, t0))
        a("s_mov_b64 exec, 0xffff")
        a("buffer_load_dword a%d, v%d, %s, s%d offen" % (A_PD - 1, V_PW, s4(R_WO), t1))
        a("s_mov_b64 exec, -1")
        a.label(lab)
    def touchp(k):
        a("s_lshl_b32 s%d, s2, 2" % t0)
        a("s_add_u32 s%d, s%d, s%d" % (t0, t0, sW))
        if k < 2:
            a("s_mul_i32 s%d, s%d, 7168" % (t1, t0))
            a("s_mov_b64 exec, 0xfffffff")
            a.vmem("buffer_load_dword a%d, v%d, %s, s%d offen offset:%d" % (A_PD, V_PW, s4(R_W2), t1, k * 3584), "T")
        else:
            a("s_lshl_b32 s%d, s%d, 11" % (t1, t0))
            a("s_mov_b64 exec, 0xffff")
            a.vmem("buffer_load_dword a%d, v%d, %s, s%d offen" % (A_PD, V_PW, s4(R_WO), t1), "T")
        a("s_mov_b64 exec, -1")
    def touchx(k):
        a("s_lshr_b32 s%d, s2, 3" % t0)
        a("s_lshl_b32 s%d, s%d, 2" % (t0, t0))
        a("s_add_u32 s%d, s%d, s%d" % (t0, t0, sW))
        a("s_lshl_b32 s%d, s%d, 7" % (t1, sQ))
        a("s_add_u32 s%d, s%d, s%d" % (t0, t0, t1))
        if k < 2:
            a("s_mul_i32 s%d, s%d, 14336" % (t1, t0))
            if k: a("s_add_u32 s%d, s%d, 7168" % (t1, t1))
            a("buffer_load_dword a%d, v%d, %s, s%d offen" % (A_PD - k, V_PW, s4(R_W2), t1))
        else:
            a("s_lshl_b32 s%d, s%d, 12" % (t1, t0))
            a("s_mov_b32 exec_hi, 0")
            a("buffer_load_dword a%d, v%d, %s, s%d offen" % (A_PD, V_PW, s4(R_WO), t1))
            a("s_mov_b32 exec_hi, -1")
    pfq = list(range(PF0, KS)) if PFM else []
    PFA = cfg.get("f_pfa", 30)
    a("v_lshrrev_b32 v%d, 5, v%d" % (T + 2, L))
    a("v_mul_u32_u24 v%d, %d, v%d" % (T + 2, REG, T + 2))
    a("v_and_b32 v%d, 3, v%d" % (T + 3, L))
    a("v_lshl_add_u32 v%d, v%d, 3, v%d" % (T + 2, T + 3, T + 2))
    a("v_bfe_u32 v%d, v%d, 2, 2" % (T + 3, L))
    a("v_bfe_u32 v%d, v%d, 4, 1" % (T + 4, L))
    a("v_mul_u32_u24 v%d, 192, v%d" % (V_RD, T + 3))
    a("v_add_u32 v%d, v%d, v%d" % (V_RD, V_RD, T + 2))
    a("v_mul_u32_u24 v%d, %d, v%d" % (T + 5, 8 * 192 + 32, T + 4))
    a("v_add_u32 v%d, v%d, v%d" % (V_RD, V_RD, T + 5))
    a("v_xor_b32 v%d, 32, v%d" % (V_RD + 1, V_RD))
    a("v_lshl_add_u32 v%d, v%d, 5, v%d" % (V_RD + 2, T + 3, T + 2))
    a("v_lshl_add_u32 v%d, v%d, 7, v%d" % (V_RD + 2, T + 4, V_RD + 2))
    for st_ in (1, 2):
        for x in range(3):
            a("v_add_u32 v%d, %d, v%d" % (V_RD + 3 * st_ + x, st_ * 2 * STAGE, V_RD + x))
    a("s_lshl_b32 s%d, s%d, 7" % (sKV, sJ))
    a("s_lshl_b32 s%d, s%d, 4" % (t0, sI))
    a("s_add_u32 s%d, s%d, s%d" % (sKV, sKV, t0))
    a("s_lshl_b32 s%d, s%d, 2" % (t0, sW))
    a("s_add_u32 s%d, s%d, s%d" % (sKV, sKV, t0))
    a("s_lshl_b32 s%d, s%d, 10" % (sKV, sKV))
    a("s_add_u32 s%d, s%d, 0x%x" % (sKV2, sKV, WS_V))
    a("s_add_u32 s%d, s%d, 0x%x" % (sKV, sKV, WS_K))
    a("s_sub_u32 s%d, s%d, 16384" % (sKP, sKV))
    a("s_sub_u32 s%d, s%d, 16384" % (sKP2, sKV2))
    a("s_cmp_eq_u32 s%d, 0" % sI)
    a("s_cselect_b32 s%d, 0x40000000, s%d" % (sKP, sKP))
    a("s_cselect_b32 s%d, 0x40000000, s%d" % (sKP2, sKP2))
    a("s_lshl_b32 s%d, s2, 2" % sFO)
    a("s_add_u32 s%d, s%d, s%d" % (sFO, sFO, sW))
    a("s_lshl_b32 s%d, s%d, 7" % (sFO, sFO))
    a("s_add_u32 s%d, s%d, 0x%x" % (sFO, sFO, WS_FL))
    a("s_add_u32 s%d, s%d, 1" % (t0, sI))
    a("s_and_b32 s%d, s%d, 3" % (t1, t0))
    a("s_lshl_b32 s%d, s%d, 3" % (t1, t1))
    a("s_lshr_b32 s%d, s%d, 2" % (t0, t0))
    a("s_or_b32 s%d, s%d, s%d" % (t1, t1, t0))
    a("s_and_b32 s%d, s2, 0xe6" % t0)
    a("s_or_b32 s%d, s%d, s%d" % (t1, t1, t0))
    a("s_lshl_b32 s%d, s%d, 2" % (t1, t1))
    a("s_add_u32 s%d, s%d, s%d" % (t1, t1, sW))
    a("s_lshl_b32 s%d, s%d, 7" % (t1, t1))
    a("s_add_u32 s%d, s%d, 0x%x" % (sFK, t1, WS_FL + 12))
    a("s_cmp_eq_u32 s%d, 7" % sI)
    a("s_cselect_b32 s%d, 0x40000000, s%d" % (sFK, sFK))
    a("v_cmp_ne_u32 vcc, 0, v%d" % L)
    a("v_mov_b32 v%d, 1" % V_ONE)
    a("v_and_b32 v%d, 31, v%d" % (V_PL, L))
    a("v_cndmask_b32 v%d, 0, v%d, vcc" % (V_FL0, T + 6))
    a("v_lshlrev_b32 v%d, 2, v%d" % (V_PL, V_PL))
    a("s_and_b32 s%d, s2, 31" % t0)
    a("s_lshl_b32 s%d, s%d, 2" % (t0, t0))
    a("s_add_u32 s%d, s%d, s%d" % (t0, t0, sW))
    a("s_lshl_b32 s%d, s%d, 7" % (t0, t0))
    a("s_lshl_b32 s%d, s%d, 2" % (t1, sN))
    a("s_add_u32 s%d, s%d, s%d" % (t0, t0, t1))
    a("s_add_u32 s%d, s%d, 0x%x" % (t0, t0, WS_FL))
    a("v_lshlrev_b32 v%d, 14, v%d" % (V_FG, L))
    a("v_add_u32 v%d, s%d, v%d" % (V_FG, t0, V_FG))
    a("v_cmp_le_u32 vcc, 8, v%d" % L)
    a("s_lshl_b32 s%d, s%d, 12" % (t0, sW))
    a("s_add_u32 s%d, s%d, %d" % (t0, t0, KVB))
    a("v_cndmask_b32 v%d, v%d, v%d, vcc" % (V_FG, V_FG, T + 6))
    a("v_add_u32 v%d, s%d, v%d" % (V_KVW, t0, V_L16))
    a("s_lshl_b32 s%d, s%d, 2" % (t0, sI))
    a("s_add_u32 s%d, s%d, s%d" % (t0, t0, sW))
    a("s_lshl_b32 s%d, s%d, 17" % (sXO, t0))
    a("s_mul_i32 s%d, s%d, 144" % (t0, t0))
    a("s_mul_i32 s%d, s%d, 36" % (t1, sQ))
    a("s_add_u32 s%d, s%d, s%d" % (t0, t0, t1))
    a("s_lshl_b32 s%d, s%d, 12" % (t0, t0))
    a("s_add_u32 s%d, s%d, 0x%x" % (t0, t0, WS_A2))
    a("s_add_u32 s%d, s%d, %d" % (sAE, t0, 28 * 4096))
    a("s_lshl_b32 s%d, s%d, 12" % (t1, sN))
    a("s_add_u32 s%d, s%d, s%d" % (sO, sAE, t1))
    a("s_mul_i32 s%d, s%d, 7" % (t1, sN))
    a("s_add_u32 s%d, s%d, s%d" % (t1, t1, sJ1))
    a("s_lshl_b32 s%d, s%d, 11" % (t1, t1))
    a("s_add_u32 s%d, s%d, s%d" % (sH, t0, t1))
    a("s_add_u32 s%d, s%d, 4096" % (sH + 1, sH))
    a("s_add_u32 s%d, s%d, 8192" % (sH + 2, sH))
    a("s_mul_i32 s%d, s%d, %d" % (sH + 3, sJ1, -4096 + 8 - 3 * 4096))
    a("s_add_u32 s%d, s%d, %d" % (sH + 3, sH + 3, 3 * 4096))
    a("s_add_u32 s%d, s%d, s%d" % (sH + 3, sH + 3, sH))
    a("s_lshl_b32 s%d, s%d, 8" % (t0, sN))
    a("s_add_u32 s%d, s%d, s%d" % (sXO, sXO, t0))
    a("s_lshl_b32 s%d, s%d, 6" % (t0, sQ))
    a("s_add_u32 s%d, s%d, s%d" % (sXO, sXO, t0))
    a("s_mov_b32 s%d, 0x%x" % (sSC, f2u(QSCALE)))
    def spin(mask, skip_if_i0=False):
        l0 = a.newlabel("F_sp"); l1 = a.newlabel("F_ok")
        if skip_if_i0:
            a("s_cmp_eq_u32 s%d, 0" % sI)
            a("s_cbranch_scc1 %s" % l1)
        a("s_mov_b32 s%d, 0x%x" % (sSP, SPIN))
        a.label(l0)
        a("v_cmp_ne_u32 vcc, 0, v%d" % V_POLL)
        a("s_and_b32 s%d, vcc_lo, 0x%x" % (t0, mask))
        a("s_cmp_eq_u32 s%d, 0x%x" % (t0, mask))
        a("s_cbranch_scc1 %s" % l1)
        a("buffer_load_dword v%d, v%d, %s, s%d offen sc1" % (V_POLL, V_PL, s4(R_WS), sFO))
        a("s_sub_u32 s%d, s%d, 1" % (sSP, sSP))
        a("s_waitcnt vmcnt(0)")
        a("s_cbranch_scc0 %s" % l0)
        a.label(l1)
    def poll_issue(tag):
        a.vmem("buffer_load_dword v%d, v%d, %s, s%d offen sc1" % (V_POLL, V_PL, s4(R_WS), sFO), tag)

    if FLN:
        while bops: issue1(bops.pop(0))
        if PW & 8: touchw(None)
        nb2 = cfg.get("f_lnb2", 3)
        b2 = [o for o in order if o[0] == "B" and o[1] < nb + nb2]
        for o in b2: order.remove(o)
        if BO == 1: b2 = [o for o in b2 if o[2] >= 3] + [o for o in b2 if o[2] < 3]
        if BO == 2: b2 = [o for o in b2 if o[2] < 3] + [o for o in b2 if o[2] >= 3]
        for _ in range(cfg.get("f_lnb2e", 0)): issue1(b2.pop(0))
        if PW & 8: a.vm += ["T", "T"]
        a.wait(vm="XS")
        stampr("lnd")
        a("s_barrier")
        lab = a.newlabel("F_ln"); l2 = a.newlabel("F_lp"); l3 = a.newlabel("F_lq"); l4 = a.newlabel("F_la")
        a("s_lshl_b32 s%d, s%d, 5" % (t0, sI))
        a("v_mov_b32 v1, s%d" % t0)
        a("s_cmp_lg_u32 s%d, 0" % sW)
        a("s_cbranch_scc1 %s" % lab)
        a("v_add_u32 v82, 1, v81")
        a("s_lshl_b64 exec, 1, s%d" % sJ)
        a("buffer_store_dword v82, v80, %s, 0 offen sc1" % s4(R_WS))
        a("s_mov_b64 exec, -1")
        a.label(lab)
        while b2: issue1(b2.pop(0))
        if PW & 16: touchw(None)
        a("s_cmp_lg_u32 s%d, 1" % sW)
        a("s_cbranch_scc1 %s" % l4)
        a("s_mov_b64 exec, 1")
        a("global_atomic_add v1, v%d, s[100:101] sc1" % V_ONE)
        a("s_mov_b64 exec, -1")
        a.label(l4)
        PALL = cfg.get("f_pall", 0)
        if not PALL:
            a("s_cmp_lg_u32 s%d, 0" % sW)
            a("s_cbranch_scc1 %s" % l3)
        else:
            a("s_lshl_b32 s%d, s%d, 3" % (t1, sW))
            a("s_lshl_b32 s%d, 0xff, s%d" % (t1, t1))
        a("s_mov_b32 s%d, 0x%x" % (sSP, SPIN))
        a.label(l2)
        a("buffer_load_dword v82, v80, %s, 0 offen sc1" % s4(R_WS))
        a("s_waitcnt vmcnt(0)")
        a("v_cmp_ne_u32 vcc, v81, v82")
        if PALL:
            a("s_and_b32 s%d, vcc_lo, s%d" % (t0, t1))
            a("s_cmp_eq_u32 s%d, s%d" % (t0, t1))
        else: a("s_cmp_eq_u32 vcc_lo, -1")
        a("s_cbranch_scc1 %s" % l3)
        a("s_sub_u32 s%d, s%d, 1" % (sSP, sSP))
        a("s_cbranch_scc1 %s" % l3)
        a("s_and_b32 s%d, s%d, 7" % (t0, sSP))
        a("s_cbranch_scc1 %s" % l2)
        a("global_load_dword v2, v1, s[100:101] sc1")
        a("s_waitcnt vmcnt(0)")
        a("v_readfirstlane_b32 s%d, v2" % t0)
        a("s_cmp_lt_u32 s%d, 32" % t0)
        a("s_cbranch_scc1 %s" % l2)
        a.label(l3)
        if not PALL: a("s_barrier")
        stampr("lnp")
        for _ in range(8): issue1(order.pop(0))
        order[:0] = bops
    gi = []
    def grp(units, s0, s1, tiles, C):
        s = s0
        while s < s1:
            c = min(C, s1 - s)
            for t in tiles:
                g0 = len(units); gn = gi[-1][2] + 1 if gi else 0
                for k in range(c):
                    units.append((s + k, t)); gi.append((g0, c, gn))
            s += c
    units = []
    grp(units, 0, C1S, range(NT), 2)
    C1E = cfg.get("f_c1e", S1)
    grp(units, C1S, C1E, range(NT), C1)
    grp(units, C1E, S1, range(NT), 2)
    grp(units, S1, KS, (2, 3, 4, 5), C1K)
    UKV = len(units)
    grp(units, S1, KS, (6, 7, 8, 9), C1T)
    UH01 = len(units)
    grp(units, S1, KS, (10, 11, 12, 0, 1), C1T)
    NU = len(units)
    last_unit_of_stage = {}
    last_unit_of_step = {}
    for u, (s, t) in enumerate(units):
        last_unit_of_stage[s // 2] = u; last_unit_of_step[s] = u
    stt = dict(ready=-1, free=set(), waited=-1, issued=-1)
    def barrier():
        a("s_barrier")
        for g, lu in last_unit_of_stage.items():
            if lu <= stt["waited"]: stt["free"].add(g)
    def can1(op):
        if op[0] == "B": return op[1] < NS or (op[1] - NS) in stt["free"]
        return op[1] < RA or last_unit_of_step[op[1] - RA] <= stt["issued"]
    def flush1(tag):
        while any(o[:2] == tag for o in order):
            op = order.pop(0)
            assert can1(op), (op, stt)
            if cfg.get("verbose"): print("late flush", op, file=sys.stderr)
            issue1(op)
    def bread1(u, j2):
        s, t = units[u]
        slot = slot1(s // 2); st_ = slot // 2
        off = (slot % 2) * STAGE + (s % 2) * 2 * REG
        if t < 12: off += j2 * 768 + (t // 6) * 3072 + ((t // 2) % 3) * 64; vr = V_RD + 3 * st_ + (t % 2)
        else: off += 6144 + j2 * 256; vr = V_RD + 3 * st_ + 2
        a.lds("ds_read_b64_tr_b16 %s, v%d offset:%d" % (r2("a", BR + (u % RB) * 4 + j2 * 2), vr, off), ("b", u))
    def need1(u):
        g = units[u][0] // 2
        if g > stt["ready"]:
            flush1(("B", g)); a.wait(vm=("B", g)); barrier(); stt["ready"] = g
    def pack(c0, c1, relu=False):
        ops = []
        for hh, c in enumerate((c0, c1)):
            if c is None: continue
            for e2 in range(2):
                ops.append("v_cvt_pk_bf16_f32 v%d, v%d, v%d" % (c0 + 2 * hh + e2, c + 2 * e2, c + 2 * e2 + 1))
            if relu:
                for e2 in range(2):
                    ops.append("v_pk_max_i16 v%d, v%d, 0" % (c0 + 2 * hh + e2, c0 + 2 * hh + e2))
        return ops
    HF = ["sc1", "", "nt", "sc0"][cfg.get("f_hf", 0)]
    def hstore(p, mt):
        if p < 3: a.vmem("buffer_store_dwordx4 %s, v%d, %s, s%d offen offset:%d %s" % (r4("v", acc(mt, 6 + 2 * p)), V_L16, s4(R_WS), sH + p, mt * 1024, HF), "H")
        else: a.vmem("buffer_store_dwordx2 %s, v%d, %s, s%d offen offset:%d %s" % (r2("v", acc(mt, 12)), V_L16, s4(R_WS), sH + 3, mt * 1024, HF), "H")
    need1(0)
    stampr("bar0")
    for u in range(DB):
        need1(u)
        bread1(u, 0); bread1(u, 1)
    kvq = [(acc(mt, 2), acc(mt, 3), sKV, mt * 1024, 16384 + mt * 1024) for mt in range(MT)] + \
          [(acc(2 * b, 4 + dt), acc(2 * b + 1, 4 + dt), sKV2, (2 * b + dt) * 1024, 49152 + (2 * b + dt) * 1024) for b in range(2) for dt in range(2)]
    NREST = NU - UKV
    UFLAG = UKV + cfg.get("f_uf", 28)
    UPOLL = UFLAG + cfg.get("f_up", 14)
    UCHK = min(UPOLL + cfg.get("f_uc", 8), NU - 1)
    UPW = UCHK + cfg.get("f_uw", 14)
    V2_DMA = 209; V_XO = 211; V2_RD = 232; V2_B = 231
    bias = [232, 236, 240, 244]; VONES = 248; VM = 252
    sB2 = sBQ; sBO = sBV
    class Rec:
        def __init__(self): self.l = []
        def __call__(self, x): self.l.append(x)
    su = Rec(); TT = VM
    HO = 0
    su("v_lshrrev_b32 v%d, 4, v%d" % (TT, L))
    su("v_lshlrev_b32 v%d, 11, v%d" % (V2_DMA, TT))
    su("v_lshlrev_b32 v%d, 1, v%d" % (TT, TT))
    su("v_and_b32 v%d, 15, v%d" % (TT + 1, L))
    su("v_xor_b32 v%d, v%d, v%d" % (TT, TT, TT + 1))
    su("v_lshl_add_u32 v%d, v%d, 4, v%d" % (V2_DMA, TT, V2_DMA))
    su("s_and_b32 s%d, s%d, 1" % (t1, sW))
    su("s_lshl_b32 s%d, s%d, 7" % (t1, t1))
    su("v_xor_b32 v%d, s%d, v%d" % (V2_DMA, t1, V2_DMA))
    su("v_add_u32 v%d, %d, v%d" % (V2_DMA + 1, 32768 - 1024, V2_DMA))
    su("v_lshrrev_b32 v%d, 4, v%d" % (TT, L))
    su("v_lshlrev_b32 v%d, 2, v%d" % (TT, TT))
    for e in range(4):
        su("v_add_u32 v%d, %d, v%d" % (TT + 2, e, TT))
        su("v_cmp_le_u32 s[%d:%d], v%d, v%d" % (sMK + 2 * e, sMK + 2 * e + 1, TT + 2, TT + 1))
    su("s_lshl_b32 s%d, s%d, 13" % (t2, sW))
    su("s_lshl_b32 s%d, s%d, 8" % (t1, sN))
    su("s_add_u32 s%d, s%d, s%d" % (t2, t2, t1))
    su("s_lshl_b32 s%d, s%d, 19" % (sBO, sQ))
    su("s_add_u32 s%d, s%d, s%d" % (sBO, sBO, t2))
    su("s_mul_i32 s%d, s%d, %d" % (sB0, sQ, 896 * 2048))
    su("s_add_u32 s%d, s%d, s%d" % (sB0, sB0, t2))
    su("s_add_u32 s%d, s%d, %d" % (sBE, sB0, 896 * 2048))
    su("s_mul_i32 s%d, s%d, 7" % (t1, sN))
    su("s_add_u32 s%d, s%d, s%d" % (t1, t1, sJ1))
    su("s_lshl_b32 s%d, s%d, 15" % (t1, t1))
    su("s_add_u32 s%d, s%d, s%d" % (sB2, sB0, t1))
    LIN = cfg.get("f_lin", 1)
    if LIN:
        su("s_sub_u32 s%d, s%d, %d" % (sA, sAE, 28 * 4096))
        su("s_mov_b32 s%d, s%d" % (sAE, sH))
        su("s_add_u32 s%d, s%d, %d" % (sA0, sH, 3 * 4096))
        su("s_mov_b32 s%d, s%d" % (sBW, sB0))
        su("s_mov_b32 s%d, s%d" % (sBE, sB2))
        su("s_add_u32 s%d, s%d, %d" % (sB0, sB2, 3 * 65536))
    else:
        su("s_add_u32 s%d, s%d, %d" % (sA, sH, 3 * 4096))
        su("s_sub_u32 s%d, s%d, %d" % (sA0, sAE, 28 * 4096))
    su("s_cmp_eq_u32 s%d, s%d\ns_cselect_b32 s%d, s%d, s%d" % (sA, sAE, sA, sA0, sA))
    su0 = su.l; su = Rec()
    KS2 = 36
    LOC = [(0, 1), (1, 1), (2, 1), (0, 3), (1, 3), (2, 3), (0, 5), (1, 5), (2, 5), (3, 1), (3, 3), (3, 5), (4, 1), (4, 3), (4, 5)]
    NSL = len(LOC)
    def dma2_txt(p):
        sb, so = (R_W2, sB2) if p < 28 else (R_WO, sBO)
        sl, pos = LOC[p % NSL]
        ops = [(0, "s_add_u32 m0, s%d, %d" % (sLB, sl * STAGE + pos * 1024)),
               (1, "buffer_load_dwordx4 v%d, %s, s%d offen lds" % (V2_DMA, s4(sb), so)),
               (1, "buffer_load_dwordx4 v%d, %s, s%d offen offset:1024 lds" % (V2_DMA + 1, s4(sb), so))]
        if p == 2: ops.append((0, "s_mov_b32 s%d, s%d" % (sB2, sBW)))
        elif p != 27 and p != 35: ops.append((0, "s_add_u32 s%d, s%d, 65536" % (so, so)))
        if 2 <= p < 27: ops.append((0, "s_cmp_eq_u32 s%d, s%d\ns_cselect_b32 s%d, s%d, s%d" % (sB2, sBE, sB2, sB0, sB2)))
        return ops
    def dma2_ops(p):
        return [(k, (lambda x=x: a.vmem(x, ("B2", p))) if k else (lambda x=x: a(x))) for k, x in dma2_txt(p)]
    def hole_ops(ps):
        o = []
        for p in ps:
            for k, x in dma2_txt(p):
                if k: o += [("m", lambda x=x, p=p: a.vmem(x, ("B2", p)))] + [None] * cfg.get("f_hosp", 3)
                else: o += [x] + ([None] if "m0" in x else [])
        return o
    su("s_lshl_b32 s%d, s%d, 2" % (t1, sI))
    su("s_add_u32 s%d, s%d, s%d" % (t1, t1, sW))
    for gq in range(4):
        su("s_cmp_lt_u32 s%d, %d\ns_cselect_b32 s%d, 0x%x, 0" % (t1, 4 - gq, t2, f2u(-1e30)))
        for e in range(4): su("v_mov_b32 v%d, s%d" % (bias[gq] + e, t2))
    for e in range(4): su("v_mov_b32 v%d, 0x3f803f80" % (VONES + e))
    su("v_lshrrev_b32 v%d, 2, v%d" % (TT, L))
    su("v_and_b32 v%d, 7, v%d" % (TT + 2, TT))
    su("v_and_b32 v%d, 3, v%d" % (TT, TT))
    su("v_lshlrev_b32 v%d, 8, v%d" % (TT, TT))
    su("v_lshrrev_b32 v%d, 4, v%d" % (TT + 1, L))
    su("v_mul_u32_u24 v%d, %d, v%d" % (TT + 1, REG, TT + 1))
    su("v_add_u32 v%d, v%d, v%d" % (TT, TT, TT + 1))
    su("v_and_b32 v%d, 3, v%d" % (TT + 1, L))
    su("v_lshl_add_u32 v%d, v%d, 3, v%d" % (TT, TT + 1, TT))
    su("v_lshl_add_u32 v%d, v%d, 5, v%d" % (V2_B, TT + 2, TT))
    su("s_lshl_b32 s%d, s%d, 6" % (t1, sQ))
    su("s_xor_b32 s%d, s%d, 192" % (t1, t1))
    su("v_xor_b32 v%d, s%d, v%d" % (V2_B, t1, V2_B))
    su("v_mov_b32 v%d, 0xffff" % TT)
    su("v_mov_b32 v%d, 0xffff0000" % (TT + 1))
    su("v_cndmask_b32 v%d, 0, v%d, s[%d:%d]" % (VM + 2, TT, sMK, sMK + 1))
    su("v_cndmask_b32 v%d, 0, v%d, s[%d:%d]" % (VM + 3, TT, sMK + 4, sMK + 5))
    su("v_cndmask_b32 v%d, 0, v%d, s[%d:%d]" % (TT, TT + 1, sMK + 2, sMK + 3))
    su("v_cndmask_b32 v%d, 0, v%d, s[%d:%d]" % (TT + 1, TT + 1, sMK + 6, sMK + 7))
    su("v_or_b32 v%d, v%d, v%d" % (VM + 2, VM + 2, TT))
    su("v_or_b32 v%d, v%d, v%d" % (VM + 3, VM + 3, TT + 1))
    SPF = cfg.get("f_spf", 0)
    if SPF:
        su("s_lshr_b32 s%d, s2, 3" % t1)
        su("s_lshl_b32 s%d, s%d, 1" % (t1, t1))
        su("s_and_b32 s%d, s2, 1" % t2)
        su("s_add_u32 s%d, s%d, s%d" % (t1, t1, t2))
        su("s_lshl_b32 s%d, s%d, 2" % (t1, t1))
        su("s_add_u32 s%d, s%d, s%d" % (t1, t1, sW))
        su("s_lshl_b32 s%d, s%d, 7" % (t1, t1))
        su("s_mul_i32 s%d, s%d, %d" % (t2, sQ, 14336 * 128))
        su("s_add_u32 s%d, s%d, s%d" % (t2, t2, t1))
        su("s_add_u32 s%d, s%d, s%d\ns_addc_u32 s%d, s%d, 0" % (P_W2, P_W2, t2, P_W2 + 1, P_W2 + 1))
        su("s_add_u32 s%d, s%d, %d\ns_addc_u32 s%d, s%d, 0" % (P_WQ, P_W2, 28 * 32768, P_WQ + 1, P_W2 + 1))
        su("s_lshl_b32 s%d, s%d, 19" % (t2, sQ))
        su("s_add_u32 s%d, s%d, s%d" % (t2, t2, t1))
        su("s_add_u32 s%d, s%d, s%d\ns_addc_u32 s%d, s%d, 0" % (P_WO, P_WO, t2, P_WO + 1, P_WO + 1))
    V_T128 = V_XO
    TCN = cfg.get("f_tc", 0)
    su("v_lshlrev_b32 v%d, %d, v%d" % (V_T128, 15 if TCN else 7, L))
    if TCN:
        su("s_lshr_b32 s%d, s2, 3" % t1)
        su("s_lshl_b32 s%d, s%d, 1" % (t1, t1))
        su("s_and_b32 s%d, s2, 1" % t2)
        su("s_add_u32 s%d, s%d, s%d" % (t1, t1, t2))
        su("s_lshl_b32 s%d, s%d, 2" % (t1, t1))
        su("s_add_u32 s%d, s%d, s%d" % (t1, t1, sW))
        su("s_lshl_b32 s%d, s%d, 7" % (t1, t1))
        su("s_mul_i32 s%d, s%d, %d" % (sCLS, sQ, 14336 * 128))
        su("s_add_u32 s%d, s%d, s%d" % (sCLS, sCLS, t1))
        su("s_lshl_b32 s%d, s%d, 19" % (t3, sQ))
        su("s_add_u32 s%d, s%d, s%d" % (t3, t3, t1))
    def selftouch(so, half):
        if half: a("s_mov_b32 exec_hi, 0")
        a.vmem("buffer_load_dword a%d, v%d, %s, s%d offen sc1" % (A_PD, V_T128, s4(R_WS), so), "T")
        if half: a("s_mov_b32 exec_hi, -1")
    HK = cfg.get("f_hk", 0)
    if HK:
        assert RA == 12 and D1 == 8 and BR + RB * 4 <= 232 and UPW < NU
        kreg = lambda kt: 128 + 4 * kt if kt < 16 else 232 + 4 * (kt - 16)
        VF = 0
    else:
        kreg = lambda kt: 4 * kt
        VF = 80
    def kread(kt): a.lds("ds_read_b128 %s, v%d offset:%d" % (r4("a", kreg(kt)), V_KVW, kt * 1024), ("k", kt))
    def kpw(x):
        c0, c1, so, go, lo = kvq[x]
        a.wait(vm=("KP", x))
        a.lds("ds_write_b128 v%d, %s offset:%d" % (V_KVW, r4("v", c1), lo - 16384), "kvw")
    def codepf(vreg=None):
        if vreg is None: vreg = V_PW
        lab = a.newlabel("F_pc")
        a("s_getpc_b64 s[%d:%d]" % (R_WQ, R_WQ + 1))
        a.label(lab)
        a("s_and_b32 s%d, s%d, 0xffff" % (R_WQ + 1, R_WQ + 1))
        a("s_mov_b32 s%d, CODE_END - %s" % (R_WQ + 2, lab))
        a("s_lshr_b32 s%d, s2, 3" % t0)
        a("s_lshl_b32 s%d, s%d, 2" % (t0, t0))
        a("s_add_u32 s%d, s%d, s%d" % (t0, t0, sW))
        a("s_lshl_b32 s%d, s%d, 9" % (t0, t0))
        a("s_mov_b64 exec, 15")
        a.vmem("buffer_load_dword a%d, v%d, %s, s%d offen" % (A_PD, vreg, s4(R_WQ), t0), "T")
        a("s_mov_b64 exec, -1")
    seenA = set()
    ramp = (RA - 1 - LA) / float(S1 * NT)
    WM = cfg.get("f_wm", 200) / 100.0
    W0 = cfg.get("f_w0", 100) / 100.0
    UEND = S1 * NT + cfg.get("f_uend", 8)
    wts = [0.0] + [W0 * sum(1 for o in order if (o[1] if o[0] == "B" else o[1] // 2) == g) / 15.0 for g in (1, 2, 3)] + [WM if g % 4 == 0 else 1.0 for g in range(4, 16)]
    ipos = {}
    if cfg.get("f_lw", 0) == 2:
        no = []
        for g in range(16):
            bl = [o for o in order if o[0] == "B" and o[1] == g]; al = [o for o in order if o[0] == "A" and o[1] // 2 == g]
            if len(bl) == 7: mix = [bl[0], al[0], al[1], bl[1], al[2], al[3], bl[2], al[4], bl[3], bl[4], bl[5], bl[6], al[5], al[6], al[7]]
            else: mix = bl + al
            for k, o in enumerate(mix): ipos[o] = k
            no += mix
        order[:] = no
    noB = set(g for g in range(16) if not any(o[0] == "B" and o[1] == g for o in order))
    tau = [0.0]
    for g in range(16): tau.append(tau[-1] + wts[g])
    tau = [x * UEND / tau[-1] for x in tau]
    def due(op):
        g = op[1] if op[0] == "B" else op[1] // 2
        idx = op[2] if op[0] == "B" else 7 + (op[1] % 2) * 4 + op[2]
        if cfg.get("f_wb", 0) and op[0] == "B" and op[2] > 3: idx = 3
        if g in noB: return tau[g] + (tau[g + 1] - tau[g]) * (idx - 7) / 8.0
        if cfg.get("f_lw", 0) == 1:
            lw = [64, 64, 64, 56, 36, 44, 24] + [32] * 8
            return tau[g] + (tau[g + 1] - tau[g]) * sum(lw[:idx]) / float(sum(lw))
        if cfg.get("f_lw", 0) == 2: return tau[g] + (tau[g + 1] - tau[g]) * ipos[op] / 15.0
        return tau[g] + (tau[g + 1] - tau[g]) * idx / 15.0
    DF = cfg.get("f_df", 0); PZ0 = cfg.get("f_pz0", 4)
    THR1 = cfg.get("f_thr1", 63)
    side = G.side
    def prewait1(u):
        u += gi[u][1] - 1
        s, t = units[u]
        if s not in seenA:
            flush1(("A", s)); seenA.add(s)
            r = a.wait(vm=("A", s), lg=("b", u))
        else: r = a.wait(lg=("b", u))
        stt["waited"] = u
        return r
    prewait1(0)
    for u in range(NU):
        u0, C_, gn = gi[u]; kk = u - u0
        s, t = divmod(u, NT) if u < S1 * NT else units[u]
        un = u + DB
        if un < NU: need1(un)
        if u in ((S1 - 4) * NT + 2, (S1 - 2) * NT + 2, S1 * NT + 2): barrier()
        elif cfg.get("f_xb", 0) and u < S1 * NT and u % (2 * NT) == 0 and u > 0: barrier()
        if S1 // 2 <= 12 and u == last_unit_of_stage[12] + 2: barrier()
        if pfq and u % 4 == 2 and pfq[0] - 1 <= (u + PFA) / NT + LA + ramp * (u + PFA): touch(pfq.pop(0))
        if PW & 4:
            for k in range(3):
                if u == S1 * NT + cfg.get("f_px0", 4) + k * cfg.get("f_pxd", 16): touchx(k)
        if PW == 1 and u == UKV - PW0: touchw(None)
        if PW & 3 == 2 and u < S1 * NT and t == 8 and PW0 <= s < PW0 + 8: (toucht if HOT else touchw)((s + 4) & 7)
        PW1 = cfg.get("f_pw1", 4)
        if ASY and not HOT and PW & 3 == 2 and u < S1 * NT and t == 8 and PW1 <= s < PW1 + 8: touchw((s + 4 + PW0 - PW1) & 7, 1)
        if u == 16 * NT: stampr("g1half")
        if u < S1 * NT and t == 0: stampr("g1s%d" % s)
        if u == S1 * NT: stampr("g1tail")
        if u == UKV:
            stampr("g1kv")
            if cfg.get("f_cpf", 1): codepf()
        if DF and u == 3 * NT:
            side += ["v_mov_b32 v%d, -1" % (T + e) for e in range(4)]
            side += ["s_lshl_b32 s%d, s2, 2" % t3, "s_add_u32 s%d, s%d, s%d" % (t3, t3, sW), "s_mul_i32 s%d, s%d, 12288" % (t3, t3),
                     "s_add_u32 s%d, s%d, 0x%x" % (t3, t3, WS_XC),
                     "v_xor_b32 v%d, 3, v%d" % (T + 4, L), "v_lshlrev_b32 v%d, 1, v%d" % (T + 4, T + 4), "v_xor_b32 v%d, s2, v%d" % (T + 4, T + 4),
                     "v_lshlrev_b32 v%d, 9, v%d" % (T + 4, T + 4), "v_lshl_add_u32 v%d, v%d, 2, v%d" % (T + 4, L, T + 4)]
        if DF and u < S1 * NT and t == 4 and PZ0 <= s < PZ0 + 12:
            k_ = s - PZ0
            side.append(("m", lambda k_=k_: a.vmem("buffer_store_dwordx4 %s, v%d, %s, s%d offen offset:%d sc1" % (r4("v", T), V_L16, s4(R_WS), t3, (k_ % 4) * 1024), "PZ")))
            if k_ % 4 == 3: side.append("s_add_u32 s%d, s%d, 4096" % (t3, t3))
        if DF and u == (PZ0 + 14) * NT + 5:
            assert a.vm.count("PZ") == 12
            a.wait(vm="PZ")
            a("s_lshl_b32 s%d, s%d, 7" % (t3, sW))
            a("s_add_u32 s%d, s%d, 0x%x" % (t3, t3, WS_FL))
            a("s_mov_b64 exec, 7")
            a.vmem("buffer_store_dword v%d, v%d, %s, s%d offen sc1" % (V_ONE, T + 4, s4(R_WS), t3), "RF")
            a("s_mov_b64 exec, -1")
        if FLN and u == 20 * NT + 3:
            a("v_and_b32 v%d, 7, v%d" % (V_P0, L))
            a("v_lshlrev_b32 v%d, 5, v%d" % (V_P0, V_P0))
            a.vmem("global_load_dword v%d, v%d, s[100:101] sc1" % (V_POLL, V_P0), "CN")
        if FLN and u == 22 * NT + 3:
            a.wait(vm="CN")
            l0 = a.newlabel("F_cn"); l1 = a.newlabel("F_ok")
            a("s_mov_b32 s%d, 0x%x" % (sSP, SPIN))
            a.label(l0)
            a("v_cmp_le_u32 vcc, 32, v%d" % V_POLL)
            a("s_cmp_eq_u32 vcc_lo, -1")
            a("s_cbranch_scc1 %s" % l1)
            a("global_load_dword v%d, v%d, s[100:101] sc1" % (V_POLL, V_P0))
            a("s_sub_u32 s%d, s%d, 1" % (sSP, sSP))
            a("s_waitcnt vmcnt(0)")
            a("s_cbranch_scc0 %s" % l0)
            a.label(l1)
        if u == UFLAG:
            stampr("g1flag0")
            assert a.vm.count("KV") == 8
            a.wait(vm="KV")
            stampr("g1flag1")
            a.vmem("buffer_store_dword v%d, v%d, %s, s%d offen sc1" % (V_ONE, V_FL0, s4(R_WS), sFK), "FK")
        if u == UPOLL: poll_issue("PK")
        if u == UCHK:
            a.wait(vm="PK")
            spin(1 << 3, skip_if_i0=True)
            stampr("g1chk")
            if HK:
                def kd(so, k, chk):
                    if chk: assert 12 in stt["free"]
                    a.vmem("buffer_load_dwordx4 v%d, %s, s%d offen offset:%d sc1 lds" % (V_L16, s4(R_WS), so, k * 1024), "KD")
                new_ = ["s_lshl_b32 s%d, s%d, 12\ns_add_u32 m0, s%d, %d" % (t0, sW, t0, KVB + 32768), None]
                new_ += [("m", lambda k=k: kd(sKP2, k, False)) for k in range(4)]
                new_ += ["s_sub_u32 m0, m0, 32768", None]
                new_ += [("m", lambda k=k: kd(sKP, k, True)) for k in range(4)]
                side[:0] = new_
            else:
              for x, (c0, c1, so, go, lo) in enumerate(kvq):
                def f(c1=c1, so=(sKP if x < 4 else sKP2), go=go, x=x):
                    a.vmem("buffer_load_dwordx4 %s, v%d, %s, s%d offen offset:%d sc1" % (r4("v", c1), V_L16, s4(R_WS), so, go), ("KP", x))
                side.insert(x, ("m", f))
        if HK and u == UPW:
            assert a.vm.count("KD") == 8 and a.lg.count("kvw") == 8
            a.wait(vm="KD", lg="kvw"); barrier()
            stampr("g1kb")
            side[:0] = [("v", lambda kt=kt: kread(kt)) for kt in range(20)]
        nxt = None
        if order and can1(order[0]) and len(G.sal) <= 1 and due(order[0]) <= u: nxt = order.pop(0)
        if nxt and cfg.get("verbose", 0) > 1: print("issue", u, nxt, "due %.0f" % due(nxt), file=sys.stderr)
        if FLN and HT & 2:
            for b in (1, 2, 3):
                if u == max(0, int(tau[4 * b]) - cfg.get("f_hta", 0)): hottouch(b)
        if PW & 32 and nxt:
            tk = cfg.get("f_tk", 0)
            key = ("B", nxt[1], tk) if tk < 7 else ("A", nxt[1], (tk - 7) % 4)
            g_ = nxt[1] if nxt[0] == "B" else nxt[1] // 2
            if nxt == key and g_ in (4, 8, 12) and (nxt[0] == "B" or nxt[1] % 2 == (tk - 7) // 4): touchp(g_ // 4 - 1)
        for mt in range(MT):
            m_, k_ = divmod(kk * MT + mt, C_)
            if cfg.get("f_kz", 1) and m_ % 2 == 1 and units[u0][0] > 0: k_ = C_ - 1 - k_
            mz = m_ if gn % 2 == 0 else MT - 1 - m_
            s_, t_ = units[u0 + k_]
            bf = r4("a", BR + ((u0 + k_) % RB) * 4)
            af = r4("a", AR + (s_ % RA) * 16 + mz * 4)
            c = r4("v", acc(mz, t_))
            src = "0" if s_ == 0 else c
            if t_ in (4, 5): a("%s %s, %s, %s, %s" % (MF, c, af, bf, src))
            else:            a("%s %s, %s, %s, %s" % (MF, c, bf, af, src))
            rd = (lambda mt=mt: bread1(un, mt)) if (mt < 2 and un < NU) else None
            if mt == 0: G.gap(fixed=rd)
            elif mt == 1:
                if nxt and nxt[0] == "B": G.gap(first=lambda: (dma1(nxt[1], nxt[2], 0), True)[1], fixed=rd)
                else: G.gap(fixed=rd)
            elif mt == 2:
                if nxt:
                    assert not G.sal
                    G.gap(first=(lambda: a.throttle(THR1)), mem=((lambda: aload1(nxt[1], nxt[2])) if nxt[0] == "A" else (lambda: dma1(nxt[1], nxt[2], 1))))
                else: G.gap()
            else:
                if kk == C_ - 1:
                    stt["issued"] = u
                    G.gap(first=(lambda: prewait1(u + 1)) if u + 1 < NU else None)
                else: G.gap()
        if u == UKV - 1:
            assert 11 in stt["free"], stt
            side += [None] * 5
            for (c0, c1, so, go, lo) in kvq:
                side += pack(c0, c1)
                def f(c0=c0, so=so, go=go):
                    a.vmem("buffer_store_dwordx4 %s, v%d, %s, s%d offen offset:%d sc1" % (r4("v", c0), V_L16, s4(R_WS), so, go), "KV")
                side.append(("m", f))
            for (c0, c1, so, go, lo) in kvq:
                def f(c0=c0, lo=lo):
                    a.lds("ds_write_b128 v%d, %s offset:%d" % (V_KVW, r4("v", c0), lo), "kvw")
                side += [("x", f), None]
            assert not order and stt.get("su0")
            side += su.l
        if u >= S1 * NT and not order and not G.sal and not stt.get("su0"):
            side += su0; stt["su0"] = True
        if HO and u == UKV + cfg.get("f_ho1", 30):
            barrier(); side[:0] = hole_ops(range(0, min(3, HO)))
        if HO > 3 and u == UKV + cfg.get("f_ho2", 56):
            assert u > UH01 and a.vm.count(("B2", 2)) == 2 and not any(isinstance(x, str) and ("s%d, s%d" % (sB2, sBE)) in x for x in side)
            barrier(); side[:0] = hole_ops(range(3, HO))
        if u == UPW and not HK:
            assert 12 in stt["free"]
            side[:0] = [y for x in range(8) for y in (("x", lambda x=x: kpw(x)), None)]
        if u == UH01 - 1:
            side += [None] * 5
            for p in range(2):
                for mt in range(MT):
                    side += pack(acc(mt, 6 + 2 * p), acc(mt, 7 + 2 * p), relu=True)
                    if p * 4 + mt < cfg.get("f_hearly", 8):
                        side.append(("m", lambda p=p, mt=mt: hstore(p, mt)))
                        side += [None] * cfg.get("f_hsp", 8)
        if u == UCHK:
            assert UCHK >= UH01
            for x in range(cfg.get("f_hearly", 8), 8):
                side += [("m", lambda x=x: hstore(x // 4, x % 4))] + [None] * cfg.get("f_hsp2", 6)
    if cfg.get("verbose"): print("G1 side left", len([x for x in side if x is not None]), file=sys.stderr)
    G.drain()
    assert not order
    assert 12 in stt["free"]
    stampr("g1end")

    va = []
    for mt in range(MT): va += pack(acc(mt, 10), acc(mt, 11), relu=True)
    if HK:
        stampr("attbeg")
        for _ in range(8): a(va.pop(0))
    else:
        if UPW >= NU:
            for x in range(8): kpw(x)
        a.wait(lg="kvw")
        a("s_barrier")
        stampr("attbeg")
        for kt in range(20):
            kread(kt)
            a(va.pop(0))
    for mt in range(MT):
        for t in (0, 1):
            for e2 in range(2):
                c = acc(mt, t) + 2 * e2
                a("v_pk_mul_f32 v[%d:%d], v[%d:%d], s[%d:%d] op_sel_hi:[1,0]" % (c, c + 1, c, c + 1, sSC, sSC + 1))
        if mt == 0:
            for x in pack(acc(mt, 0), acc(mt, 1)): a(x)
    STCH = cfg.get("f_st", 0)
    a.vm = [("H01" if t == "H" else t) for t in a.vm]
    stq = [(cfg.get("f_st0", 200), sH), (cfg.get("f_st1", 380), sH + 1)] if STCH & 1 else []
    hstore(2, 0)
    for mt in range(1, MT): va += pack(acc(mt, 0), acc(mt, 1))
    for mt in range(MT): va += pack(acc(mt, 12), None, relu=True)
    free = [acc(mt, t) for t in (2, 3, 4, 5, 7, 9) for mt in range(MT)] + [212, 216, 220] + [acc(mt, t) for t in (11, 1) for mt in range(MT)]

    C2 = cfg.get("f_c2", 2)
    C2T = cfg.get("f_c2t", 4); C2S = cfg.get("f_c2s", 5)
    CM2 = max(C2, C2T, 3)
    RA2 = cfg.get("f_ra2", 13); DB2 = cfg.get("f_db2", CM2 + 2); RB2 = DB2 + CM2
    assert DB2 >= CM2
    BR2 = RA2 * 16
    assert BR2 + RB2 * 4 <= 256
    def aslot(p): return ((p - 3 + 10) % RA2) * 16
    def aload2(p, mt):
        a.vmem("buffer_load_dwordx4 %s, v%d, %s, s%d offen offset:%d %s" % (r4("a", aslot(p) + mt * 4), V_L16, s4(R_WS), sA, mt * 1024, ["sc1", "sc1 nt", ""][cfg.get("f_af", 0)]), ("A2", p))
        if mt == MT - 1:
            if p == 27 and not LIN: G.sal.append("s_mov_b32 s%d, s%d" % (sA, sAE))
            else:
                G.sal.append("s_add_u32 s%d, s%d, 4096" % (sA, sA))
                if p <= 27: G.sal.append("s_cmp_eq_u32 s%d, s%d\ns_cselect_b32 s%d, s%d, s%d" % (sA, sAE, sA, sA0, sA))
    hst = [(2, 1), (2, 2), (2, 3)] + [(3, mt) for mt in range(MT)]
    NPRE = cfg.get("f_npre", 10)
    assert NPRE >= 3
    pre = []
    assert HO <= NPRE <= NSL
    for p in range(HO, NPRE): pre += [(p,) + op for op in dma2_ops(p)]

    S_ = {}; P_ = {}; O_ = {}
    def s_mfma(qa, kt):
        q = free.pop(0); S_[(qa, kt)] = q
        a.wait(lg=("k", kt))
        c = r4("v", bias[kt // 4]) if kt < 16 else "0"
        a("%s %s, %s, %s, %s" % (MF, r4("v", q), r4("a", kreg(kt)), r4("v", acc(qa, 0)), c))
    def pv_list(qa):
        b0 = qa // 2
        out = []
        for b in range(b0, b0 + 9):
            for z in range(3):
                def f(b=b, z=z):
                    if b == b0: O_[(qa, z)] = free.pop(0)
                    o = r4("v", O_[(qa, z)])
                    if z < 2:
                        a.wait(lg=("v", 2 * b + z)); A = r4("a", VF + (2 * b + z) * 4)
                    else: A = r4("v", VONES)
                    a("%s %s, %s, %s, %s" % (MF, o, A, r4("v", P_[(qa, b)]), "0" if b == b0 else o))
                    if z == 2: free.append(P_[(qa, b)])
                out.append(f)
        return out
    def fin_list(qa):
        o0, o1, sm = O_[(qa, 0)], O_[(qa, 1)], O_[(qa, 2)]
        ops = ["v_rcp_f32 v%d, v%d" % (sm, sm), "s_nop 0"]
        for o in (o0, o1):
            for e in range(4): ops.append("v_mul_f32 v%d, v%d, v%d" % (o + e, o + e, sm))
        ops += pack(o0, o1)
        def f():
            a.vmem("buffer_store_dwordx4 %s, v%d, %s, s%d offen offset:%d %s" % (r4("v", o0), V_L16, s4(R_WS), sO, qa * 1024, HF), "O")
            free.extend([o1, sm]); late_free.append(o0)
        ops.append(f)
        return ops
    late_free = []
    pready = set()
    def soft_list(qa):
        k0, k1 = qa, qa + 16
        ops = []
        f_, l_ = S_[(qa, k0)], S_[(qa, k1)]
        odd = qa & 1
        g_, z_ = (l_, f_) if odd else (f_, l_)
        o_ = 2 * odd
        for e in range(4):
            ops.append((1, "v_cndmask_b32 v%d, v%d, v%d, s[%d:%d]" % (g_ + e, f_ + e, l_ + e, sMK + 2 * e, sMK + 2 * e + 1)))
        quads = [S_[(qa, kt)] for kt in range(k0 + 1, k1)] + [g_]
        vals = [q + e for q in quads for e in range(4)]
        m0, m1 = VM, VM + 1
        ops.append((1, "v_max3_f32 v%d, v%d, v%d, v%d" % (m0, vals[0], vals[1], vals[2])))
        ops.append((1, "v_max3_f32 v%d, v%d, v%d, v%d" % (m1, vals[3], vals[4], vals[5])))
        ops.insert(2, (0, "SLOT")); ops.insert(5, (0, "SLOT")); ops.append((0, "SLOT"))
        for x in range(6, 62, 4):
            ops.append((1, "v_max3_f32 v%d, v%d, v%d, v%d" % (m0, m0, vals[x], vals[x + 1])))
            ops.append((1, "v_max3_f32 v%d, v%d, v%d, v%d" % (m1, m1, vals[x + 2], vals[x + 3])))
            ops.append((0, "SLOT"))
        ops.append((1, "v_max3_f32 v%d, v%d, v%d, v%d" % (m0, m0, vals[62], vals[63])))
        ops.append((1, "v_max_f32 v%d, v%d, v%d" % (m0, m0, m1)))
        ops.append((1, "v_mov_b32 v%d, v%d" % (m1, m0)))
        ops.append((0, "SLOT2"))
        ops.append((1, "v_permlane16_swap_b32 v%d, v%d" % (m0, m1)))
        ops.append((1, "v_max_f32 v%d, v%d, v%d" % (m0, m0, m1)))
        ops.append((1, "v_mov_b32 v%d, v%d" % (m1, m0)))
        ops.append((1, "v_mov_b32 v%d, 0" % (z_ + 2 - o_)))
        ops.append((1, "v_mov_b32 v%d, 0" % (z_ + 3 - o_)))
        ops.append((1, "v_permlane32_swap_b32 v%d, v%d" % (m0, m1)))
        ops.append((1, "v_max_f32 v%d, v%d, v%d" % (m0, m0, m1)))
        def subexp(q):
            r = []
            for e2 in range(2):
                r.append((1, "v_pk_add_f32 v[%d:%d], v[%d:%d], v[%d:%d] op_sel_hi:[1,0] neg_lo:[0,1] neg_hi:[0,1]" % (q + 2 * e2, q + 2 * e2 + 1, q + 2 * e2, q + 2 * e2 + 1, m0, m0 + 1)))
            for e in range(4):
                if e < 2: r.append((0, "SLOT"))
                r.append((2, "v_exp_f32 v%d, v%d" % (q + e, q + e)))
            r.append((0, "MEM"))
            return r
        ops += subexp(g_)
        ops += subexp(S_[(qa, k0 + 1)])
        cv = ["v_cvt_pk_bf16_f32 v%d, v%d, v%d" % (g_ + o_ + x, g_ + 2 * x, g_ + 2 * x + 1) for x in range(2)]
        if odd: cv.reverse()
        ops += [(1, x) for x in cv]
        for x in range(2):
            if odd: ops.append((1, "v_bfi_b32 v%d, v%d, 0, v%d" % (z_ + o_ + x, VM + 2 + x, g_ + o_ + x)))
            else:   ops.append((1, "v_and_b32 v%d, v%d, v%d" % (z_ + o_ + x, VM + 2 + x, g_ + o_ + x)))
        for x in range(2): ops.append((1, "v_xor_b32 v%d, v%d, v%d" % (g_ + o_ + x, g_ + o_ + x, z_ + o_ + x)))
        done = {k0, k0 + 1, k1}
        b0 = qa // 2
        pend_pack = None
        for b in range(b0, b0 + 9):
            for kt in (2 * b, 2 * b + 1):
                if k0 <= kt <= k1 and kt not in done:
                    ops += subexp(S_[(qa, kt)]); done.add(kt)
            if pend_pack: ops += pend_pack
            lo, hi = S_.get((qa, 2 * b)), S_.get((qa, 2 * b + 1))
            pk = []
            if lo is None or hi is None: d = z_
            elif g_ in (lo, hi):
                d = g_; ot = hi if lo == g_ else lo
                pk += [(1, "v_cvt_pk_bf16_f32 v%d, v%d, v%d" % (d + 2 - o_ + x, ot + 2 * x, ot + 2 * x + 1)) for x in range(2)]
                pk.append((0, (lambda ot=ot: free.append(ot))))
            else:
                d = lo
                pk += [(1, x) for x in pack(lo, hi)]
                pk.append((0, (lambda hi=hi: free.append(hi))))
            P_[(qa, b)] = d
            pk.append((0, (lambda b=b: pready.add((qa, b)))))
            pend_pack = pk
        ops += pend_pack
        return ops
    def run(op):
        if isinstance(op, str): a(op)
        else: op()
    vr = list(range(20))
    def vread():
        f = vr.pop(0)
        a.lds("ds_read_b128 %s, v%d offset:%d" % (r4("a", VF + 4 * f), V_KVW, 32768 + f * 1024), ("v", f))
    for kt in range(17):
        s_mfma(0, kt)
        vread(); a(va.pop(0))
    while vr:
        vread(); a(va.pop(0))
    hstore(*hst.pop(0))
    while va: a(va.pop(0))
    HGAP = cfg.get("f_hgap", 30); PGAP = cfg.get("f_pgap", 28)
    HFL = cfg.get("f_hfl", 500)
    HPO = cfg.get("f_hpo", 900)
    HCK = cfg.get("f_hck", 2000)
    hok = False
    ordA = [("A2", p, mt) for p in range(3, KS2) for mt in range(MT)]
    napre = cfg.get("f_apre", 16)
    pv3 = pv_list(3); pv3b = [1 + x // 3 for x in range(27)]
    tq = [(cfg.get("f_tb0", 200) + k * cfg.get("f_tbd", 150), k) for k in range(cfg.get("f_tbn", 0))]
    tcq = []
    if TCN:
        k0 = cfg.get("f_tck", 6); nr = cfg.get("f_tcr", 2)
        ed = [k0 + (56 - k0) * x // nr for x in range(nr + 1)]
        rr = [(ed[x], ed[x + 1]) for x in range(nr)] + [(56, 72)]
        tcq = [(cfg.get("f_tc0", 540) + x * cfg.get("f_tcd", 130), lo_, hi_) for x, (lo_, hi_) in enumerate(rr)]
    sq = []
    if SPF:
        for k in range(cfg.get("f_spf0", 6), 56): sq.append("s_load_dword s%d, s[%d:%d], 0x%x" % (t3, (P_W2 if k < 28 else P_WQ), (P_W2 if k < 28 else P_WQ) + 1, (k % 28) * 32768))
        for k in range(16): sq.append("s_load_dword s%d, s[%d:%d], 0x%x" % (t3, P_WO, P_WO + 1, k * 32768))
    next_s = 0; SGAP = cfg.get("f_sgap", 8)
    kvbar = False; hflag = False; hpoll = False
    cost_total = 0; next_h = HGAP; next_p = 0
    for qa in range(4):
        stampr("att%d" % qa)
        ops = soft_list(qa)
        tot = sum(c for c, _ in ops)
        pv = pv_list(qa - 1) if qa > 0 else []
        fin = None
        sm = [(qa + 1, kt) for kt in range(qa + 1, qa + 18)] if qa < 3 else []
        c = 0
        pv_done_at = None
        for (cost, op) in ops:
            if op == "SLOT2":
                if pv:
                    pv.pop(0)(); a("s_nop 0")
                    if not pv: pv_done_at = c
                else: a("s_nop 1")
                continue
            if op == "SLOT":
                did = False
                if pv:
                    pv.pop(0)(); did = True
                    if not pv: pv_done_at = c
                elif sm and len(free) > 0 and c >= tot * 0.2:
                    s_mfma(*sm.pop(0)); did = True
                elif qa == 3 and pv3 and (3, pv3b[0]) in pready:
                    pv3.pop(0)(); pv3b.pop(0); did = True
                if did and G.sal:
                    a(G.sal.pop(0)); continue
                if did and pre and pre[0][1] == 0 and (kvbar or (pre[0][0] < 9 and not HK)): pre.pop(0)[2]()
                elif sq and kvbar and cost_total >= next_s and (did or cost_total >= next_s + SGAP):
                    a(sq.pop(0)); next_s = cost_total + SGAP
                    if not sq and cfg.get("verbose"): print("scalar prefetch done at", cost_total, file=sys.stderr)
                continue
            if op == "MEM":
                if qa > 0 and fin is None and pv_done_at is not None and c >= pv_done_at + 18:
                    fin = fin_list(qa - 1)
                    for x in fin: run(x)
                elif hst and cost_total >= next_h:
                    hstore(*hst.pop(0)); next_h = cost_total + HGAP
                elif stq and cost_total >= stq[0][0]:
                    a.wait(vm="H01"); selftouch(stq.pop(0)[1], True)
                elif tcq and cost_total >= tcq[0][0]:
                    _, lo_, hi_ = tcq.pop(0)
                    if lo_ < 56:
                        m_ = ((1 << hi_) - 1) ^ ((1 << lo_) - 1)
                        a("s_mov_b32 exec_lo, 0x%x" % (m_ & 0xffffffff))
                        a("s_mov_b32 exec_hi, 0x%x" % (m_ >> 32))
                        a.vmem("buffer_load_dword a%d, v%d, %s, s%d offen" % (A_PD, V_T128, s4(R_W2), sCLS), "T")
                    else:
                        a("s_mov_b64 exec, 0xffff")
                        a.vmem("buffer_load_dword a%d, v%d, %s, s%d offen" % (A_PD, V_T128, s4(R_WO), t3), "T")
                    a("s_mov_b64 exec, -1")
                elif not hst and tq and cost_total >= tq[0][0]:
                    k_ = tq.pop(0)[1]
                    a("s_lshr_b32 s%d, s2, 3" % t0)
                    a("s_lshl_b32 s%d, s%d, 2" % (t0, t0))
                    a("s_add_u32 s%d, s%d, s%d" % (t0, t0, sW))
                    if k_ < 4:
                        a("s_mul_i32 s%d, s%d, 3584" % (t0, t0))
                        a("s_mul_i32 s%d, s%d, %d" % (t1, sQ, 896 * 2048))
                        a("s_add_u32 s%d, s%d, s%d" % (t0, t0, t1))
                        if k_: a("s_add_u32 s%d, s%d, %d" % (t0, t0, k_ * 224 * 2048))
                        a("s_mov_b64 exec, 0xfffffff")
                        a.vmem("buffer_load_dword a%d, v%d, %s, s%d offen" % (A_PD, V_T128, s4(R_W2), t0), "T")
                    else:
                        a("s_lshl_b32 s%d, s%d, 12" % (t0, t0))
                        a("s_lshl_b32 s%d, s%d, 19" % (t1, sQ))
                        a("s_add_u32 s%d, s%d, s%d" % (t0, t0, t1))
                        a("s_mov_b32 exec_hi, 0")
                        a.vmem("buffer_load_dword a%d, v%d, %s, s%d offen" % (A_PD, V_T128, s4(R_WO), t0), "T")
                    a("s_mov_b64 exec, -1")
                elif not hst and not hflag and cost_total >= HFL:
                    a.wait(vm="H")
                    a.vmem("buffer_store_dword v%d, v%d, %s, 0 offen offset:32 sc1" % (V_ONE, V_FG, s4(R_WS)), "FH")
                    hflag = True
                    if STCH & 2: selftouch(sH + 2, True)
                elif hflag and not hpoll and cost_total >= HPO:
                    if cfg.get("f_cpf2", 1): codepf(V_T128)
                    poll_issue("PH"); hpoll = True
                elif hpoll and not hok and cost_total >= HCK:
                    a.wait(vm="PH"); spin(0xff00); hok = True
                    stampr("g2h")
                elif hok and napre > 0:
                    G.drain_sal()
                    op_ = ordA.pop(0); aload2(op_[1], op_[2]); napre -= 1
                elif pre and pre[0][1] == 1 and cost_total >= next_p:
                    pre.pop(0)[2](); next_p = cost_total + PGAP
                    if cfg.get("f_p2", 0) and pre and pre[0][1] == 1: pre.pop(0)[2]()
                continue
            run(op); c += cost; cost_total += cost
            if qa == 0 and not kvbar and c >= 30:
                a.wait(lg=("v", 19)); a("s_barrier"); kvbar = True
        assert not pv and (qa == 0 or fin)
        free.extend(late_free); del late_free[:]
        if sm and cfg.get("verbose"): print("late S mfmas", qa, len(sm), file=sys.stderr)
        late = bool(sm)
        while sm: s_mfma(*sm.pop(0))
        if late: a("s_nop 7")
    if cfg.get("verbose"): print("attention cost", cost_total, "pre left", len(pre), file=sys.stderr)
    stampr("att4")
    assert not hst and hflag and hpoll and not sq and not tcq
    if not hok: napre = 0
    while pre:
        pre.pop(0)[2](); a("s_nop 0")
    G.drain_sal()
    assert napre <= 4 * (RA2 - 10) and not (HK and hok)
    a("v_mov_b32 v%d, v%d" % (V2_RD, V2_B))
    a("v_xor_b32 v%d, 32, v%d" % (V2_RD + 1, V2_B))
    xr = ["v_xor_b32 v%d, %d, v%d" % (V2_RD + t, t * 32, V2_B) for t in range(2, 8)]
    xr += ["v_add_u32 v%d, %d, v%d" % (V2_RD + 8 + t, 2 * STAGE, V2_RD + t) for t in range(8)]
    if cfg.get("verbose"): print("pv3 left", len(pv3), "apre left", napre, file=sys.stderr)
    for f in pv3:
        f()
        if napre > 0:
            op_ = ordA.pop(0); aload2(op_[1], op_[2]); napre -= 1; G.drain_sal()
        else:
            for _ in range(2):
                if xr: a(xr.pop(0))
    while xr: a(xr.pop(0))
    stampr("attend")

    NT2 = 8
    DL = cfg.get("f_dl", 8); S2 = KS2 - DL
    assert RA2 >= DL
    own = set(acc(mt, 6 + 2 * p) for p in range(3) for mt in range(MT))
    busy = own | set(O_[(3, z)] for z in range(3)) | {208}
    q2 = [q for q in range(0, 224, 4) if q not in busy]
    acc2 = {}
    for t in range(NT2):
        for mt in range(MT): acc2[(mt, t)] = q2.pop(0)
    VX = [q2.pop(0) for _ in range(4)]
    TT = q2.pop(0); V_XI = TT + 2
    R_X = R_WQ; R_OUT = R_W1
    rec = Rec()
    rec.l += [None] * 5 + [x if isinstance(x, str) else ("m", x) for x in fin_list(3)]
    for t in range(8): rec("v_add_u32 v%d, %d, v%d" % (V2_RD + 16 + t, 4 * STAGE, V2_RD + t))
    srd(rec, R_X, P_X, S * D * 2)
    srd(rec, R_OUT, P_OUT, S * D * 2)
    rec2 = Rec()
    rec2("v_and_b32 v%d, 15, v%d" % (TT, L))
    rec2("v_lshlrev_b32 v%d, 11, v%d" % (V_XO, TT))
    rec2("v_lshrrev_b32 v%d, 4, v%d" % (TT, L))
    rec2("v_lshl_add_u32 v%d, v%d, 3, v%d" % (V_XI, TT, V_XO))
    rec2("v_bfe_u32 v%d, v%d, 4, 1" % (TT, L))
    rec2("v_lshl_add_u32 v%d, v%d, 5, v%d" % (V_XO, TT, V_XO))
    rec2("v_lshrrev_b32 v%d, 5, v%d" % (TT, L))
    rec2("v_lshl_add_u32 v%d, v%d, 4, v%d" % (V_XO, TT, V_XO))
    CO = cfg.get("f_co", 1)
    if CO:
        V_OW = V_KVW; V_OR = V2_B
        rec2("s_mul_i32 s%d, s%d, 5120" % (t1, sW))
        rec2("s_add_u32 s%d, s%d, %d" % (t1, t1, 5 * STAGE))
        rec2("v_and_b32 v%d, 15, v%d" % (TT, L))
        rec2("v_mul_u32_u24 v%d, 80, v%d" % (V_OW, TT))
        rec2("v_lshrrev_b32 v%d, 4, v%d" % (TT, L))
        rec2("v_lshl_add_u32 v%d, v%d, 3, v%d" % (V_OW, TT, V_OW))
        rec2("v_add_u32 v%d, s%d, v%d" % (V_OW, t1, V_OW))
        rec2("v_lshrrev_b32 v%d, 2, v%d" % (TT, L))
        rec2("v_mul_u32_u24 v%d, 80, v%d" % (V_OR, TT))
        rec2("v_lshlrev_b32 v%d, 11, v%d" % (V_XO, TT))
        rec2("v_and_b32 v%d, 3, v%d" % (TT, L))
        rec2("v_lshl_add_u32 v%d, v%d, 4, v%d" % (V_OR, TT, V_OR))
        rec2("v_add_u32 v%d, s%d, v%d" % (V_OR, t1, V_OR))
        rec2("v_lshl_add_u32 v%d, v%d, 4, v%d" % (V_XO, TT, V_XO))
    XD = cfg.get("f_xd", 1) and CO
    if XD:
        assert "f_ux" not in cfg
        rec2("v_and_b32 v%d, 15, v%d" % (TT, L))
        rec2("v_lshlrev_b32 v%d, 6, v%d" % (V_XI, TT))
        rec2("v_lshrrev_b32 v%d, 4, v%d" % (TT, L))
        rec2("v_lshl_add_u32 v%d, v%d, 3, v%d" % (V_XI, TT, V_XI))
        rec2("v_add_u32 v%d, s%d, v%d" % (V_XI, t1, V_XI))
    sSX = [sKV, sKV2, sKP]; sSF = [sKP2, sFK, sH]; sRX = sH + 1
    for lam in range(3):
        rec("s_xor_b32 s%d, s2, %d" % (t1, (lam ^ 3) << 1))
        rec("s_lshl_b32 s%d, s%d, 2" % (t1, t1))
        rec("s_add_u32 s%d, s%d, s%d" % (t1, t1, sW))
        rec("s_mul_i32 s%d, s%d, 12288" % (sSX[lam], t1))
        rec("s_add_u32 s%d, s%d, 0x%x" % (sSX[lam], sSX[lam], WS_XC + lam * 4096))
        rec("s_lshl_b32 s%d, s%d, 7" % (sSF[lam], t1))
        rec("s_add_u32 s%d, s%d, 0x%x" % (sSF[lam], sSF[lam], WS_FL + lam * 4))
    rec("s_lshl_b32 s%d, s2, 2" % t1)
    rec("s_add_u32 s%d, s%d, s%d" % (t1, t1, sW))
    rec("s_mul_i32 s%d, s%d, 12288" % (sRX, t1))
    rec("s_add_u32 s%d, s%d, 0x%x" % (sRX, sRX, WS_XC))
    if DF:
        for lam in range(3): rec("s_add_u32 s%d, s%d, %d" % (sSF[lam], sRX, lam * 4096))
    side = G.side
    side += rec.l

    units = []; del gi[:]
    grp(units, 0, 3, range(NT2), 3)
    grp(units, 3, C2S, range(NT2), 2)
    DLO = cfg.get("f_dlo", 11); S2O = KS2 - DLO
    assert DL <= DLO <= RA2
    grp(units, C2S, S2O, range(NT2), C2)
    grp(units, S2O, S2, range(6), C2)
    UT = len(units)
    for lam in range(4): grp(units, S2 if lam < 3 else S2O, KS2, (2 * lam, 2 * lam + 1), C2T if lam else min(C2T, cfg.get("f_c2t0", 4)))
    NU = len(units)
    PL = 2 * DL
    last_unit = {}
    for u, (p, t) in enumerate(units): last_unit[p] = u
    stt = dict(ready=-1, free=set(), waited=-1, issued=-1, ook=False, hok=hok)
    ordB = [("B2", p) for p in range(NPRE, KS2)]
    def barrier2():
        a("s_barrier")
        for p, lu in last_unit.items():
            if lu <= stt["waited"]: stt["free"].add(p)
    def can2(op):
        if op[0] == "B2": return op[1] < NSL or (op[1] - NSL) in stt["free"]
        if not stt["hok"] or (op[1] >= 28 and not stt["ook"]): return False
        return op[1] - 3 < RA2 or last_unit[op[1] - RA2] <= stt["issued"]
    def issue2(op):
        if cfg.get("verbose"): print("late flush2", op, file=sys.stderr)
        G.drain_sal()
        if op[0] == "A2": aload2(op[1], op[2])
        else:
            for x in dma2_ops(op[1]): x[1](); a("s_nop 0")
        G.drain_sal()
    def flush2(q, tag):
        while any(o[:2] == tag for o in q):
            op = q.pop(0); assert can2(op), (op, stt); issue2(op)
    def bread2(u, j2):
        p, t = units[u]
        sl, pos = LOC[p % NSL]
        a.lds("ds_read_b64_tr_b16 %s, v%d offset:%d" % (r2("a", BR2 + (u % RB2) * 4 + j2 * 2), V2_RD + 8 * (sl // 2) + t, (sl % 2) * STAGE + (pos + j2) * 1024), ("b2", u))
    def need2(u):
        p = units[u][0]
        if p > stt["ready"]:
            flush2(ordB, ("B2", p))
            grp = cfg.get("f_bgrp", 4)
            top = max(x for x in range(p, min(p + grp, KS2)) if not any(o[1] == x for o in ordB))
            if p == 0: top = min(NPRE - 1, cfg.get("f_top0", 5))
            elif p < NPRE: top = NPRE - 1
            a.wait(vm=("B2", top)); barrier2(); stt["ready"] = top
    need2(0)
    for u in range(DB2):
        bread2(u, 0); bread2(u, 1)
    stampr("g2beg")
    UOF = cfg.get("f_uof", 26)
    UOP = cfg.get("f_uop", 80); UOC = UOP + 12
    seenA = {0, 1, 2}
    xdone = False
    rq = sorted(own)
    def flag(lam):
        a.wait(vm=("S", lam))
        a.vmem("buffer_store_dword v%d, v%d, %s, s%d offen sc1" % (V_ONE, V_FL0, s4(R_WS), sSF[lam]), ("F", lam))
    def recv(lam, mt):
        a.vmem("buffer_load_dwordx4 %s, v%d, %s, s%d offen offset:%d sc1" % (r4("v", rq[4 * lam + mt]), V_L16, s4(R_WS), sRX, mt * 1024), ("R", lam, mt))
        if mt == 3 and lam < 2: a("s_add_u32 s%d, s%d, 4096" % (sRX, sRX))
    PS = lambda mt, hh: acc2[(mt, hh)]
    def addpk(dst, src, first=False):
        ops = []
        for hh in range(2):
            for e2 in range(2):
                pp = src + 2 * hh + e2; c = dst[hh] + 2 * e2
                if first:
                    ops += ["v_lshlrev_b32 v%d, 16, v%d" % (c, pp), "v_and_b32 v%d, 0xffff0000, v%d" % (c + 1, pp)]
                else:
                    ops += ["v_lshlrev_b32 v%d, 16, v%d" % (TT, pp), "v_and_b32 v%d, 0xffff0000, v%d" % (TT + 1, pp),
                            "v_pk_add_f32 v[%d:%d], v[%d:%d], v[%d:%d]" % (c, c + 1, c, c + 1, TT, TT + 1)]
        return ops
    FD = cfg.get("f_fd", 26)
    ev = {}
    def at(u, f): ev.setdefault(u, []).append(f)
    def rtxt(lam, mt): return "buffer_load_dwordx4 %s, v%d, %s, s%d offen offset:%d sc1" % (r4("v", rq[4 * lam + mt]), V_L16, s4(R_WS), sSF[lam], mt * 1024)
    def rmax(lam):
        rg = [rq[4 * lam + mt] + e for mt in range(MT) for e in range(4)]
        o = ["v_max3_u32 v%d, v%d, v%d, v%d" % (V_POLL, rg[0], rg[1], rg[2])]
        for k in range(3, 15, 2): o.append("v_max3_u32 v%d, v%d, v%d, v%d" % (V_POLL, V_POLL, rg[k], rg[k + 1]))
        o.append("v_max_u32 v%d, v%d, v%d" % (V_POLL, V_POLL, rg[15]))
        return o
    def rcheck(lam):
        l0 = a.newlabel("F_rt"); l1 = a.newlabel("F_ok")
        a("s_mov_b32 s%d, 0x%x" % (sSP, SPIN))
        a.label(l0)
        a("v_cmp_eq_u32 vcc, -1, v%d" % V_POLL)
        a("s_cmp_eq_u64 vcc, 0")
        a("s_cbranch_scc1 %s" % l1)
        for mt in range(MT): a(rtxt(lam, mt))
        a("s_waitcnt vmcnt(0)")
        for x in rmax(lam): a(x)
        a("s_sub_u32 s%d, s%d, 1" % (sSP, sSP))
        a("s_cbranch_scc0 %s" % l0)
        a.label(l1)
    def addplain(dst, src):
        ops = []
        for hh in range(2):
            for e2 in range(2):
                pp = src + 2 * hh + e2; c = dst[hh] + 2 * e2
                ops += ["v_lshlrev_b32 v%d, 16, v%d" % (TT, pp), "v_and_b32 v%d, 0xffff0000, v%d" % (TT + 1, pp),
                        "v_add_f32 v%d, v%d, v%d" % (c, c, TT), "v_add_f32 v%d, v%d, v%d" % (c + 1, c + 1, TT + 1)]
        return ops
    if DF:
        R0U = UT + 3 * PL + cfg.get("f_r0", -6); R1U = UT + 4 * PL + cfg.get("f_r1", -5)
        at(R0U, lambda: side.extend(("m", lambda mt=mt: a.vmem(rtxt(0, mt), ("R", 0))) for mt in range(MT)))
        at(R1U, lambda: side.__setitem__(slice(0, 0), [("m", lambda mt=mt: a.vmem(rtxt(1, mt), ("R", 1))) for mt in range(MT)]))
    else:
        at(UT + PL + FD, lambda: flag(0))
        at(UT + 2 * PL + FD, lambda: flag(1))
        if cfg.get("f_fin2", 1): at(UT + 3 * PL + FD, lambda: flag(2))
        if cfg.get("f_pe", 4): at(NU - cfg.get("f_pe", 4), lambda: poll_issue("P1"))
    UP0 = UT + 3 * PL + cfg.get("f_p0", 4)
    F2 = cfg.get("f_fin2", 1)
    if not DF and not F2: at(UP0, lambda: poll_issue("P0"))
    def chk0():
        a.wait(vm="P0"); spin(1)
        for mt in range(MT): side.append(("m", lambda mt=mt: recv(0, mt)))
    if not DF and not F2: at(UP0 + cfg.get("f_c0", 8), chk0)
    def presum():
        side.append(("s", lambda: a.wait(vm="X")))
        if XD:
            for mt in range(MT):
                for hh in range(2):
                    side.append(("v", lambda mt=mt, hh=hh: a.lds("ds_read_b64 %s, v%d offset:%d" % (r2("v", VX[mt] + 2 * hh), V_XI, mt * 1024 + hh * 32), "xr")))
            side.extend([None] * 4 + [("s", lambda: a.wait(lg="xr"))])
        for mt in range(MT): side.extend(addpk([PS(mt, 0), PS(mt, 1)], VX[mt], first=True))
    at(UT + 2 * PL + PL // 2, presum)
    first_unit = {}
    for u, (p, t) in enumerate(units): first_unit.setdefault(p, u)
    NOPS = len(ordA) + 2 * len(ordB)
    UE2 = UT + cfg.get("f_ue2", 0)
    MARG = cfg.get("f_marg", 20)
    THR2 = cfg.get("f_thr2", 63)
    def prewait2(u):
        u += gi[u][1] - 1
        p, t = units[u]
        if p not in seenA:
            flush2(ordA, ("A2", p)); seenA.add(p)
            r = a.wait(vm=("A2", p), lg=("b2", u))
        else: r = a.wait(lg=("b2", u))
        stt["waited"] = u
        return r
    def b2sal(p):
        so = sB2 if p < 28 else sBO
        if p != 27 and p != 35: G.sal.append("s_add_u32 s%d, s%d, 65536" % (so, so))
        if p < 27: G.sal.append("s_cmp_eq_u32 s%d, s%d\ns_cselect_b32 s%d, s%d, s%d" % (sB2, sBE, sB2, sB0, sB2))
    prewait2(0)
    half = None
    for u in range(NU):
        u0, C_, gn = gi[u]; kk = u - u0
        p, t = divmod(u, NT2) if u < UT else units[u]
        un = u + DB2
        if u == UOF:
            a.wait(vm="O")
            a.vmem("buffer_store_dword v%d, v%d, %s, 0 offen offset:64 sc1" % (V_ONE, V_FG, s4(R_WS)), "FO")
            if STCH & 4: selftouch(sO, True)
            side.extend(rec2.l)
        if u == cfg.get("f_uh", 2) and not stt["hok"]:
            a.wait(vm="PH"); spin(0xff00); stt["hok"] = True
            stampr("g2h")
        if u < UT and t == 1: stampr("g2p%d" % p)
        if u == UT: stampr("g2tail")
        if u > UT and (u - UT) % PL == 0: stampr("g2l%d" % ((u - UT) // PL))
        if u == UOP: poll_issue("PO")
        if u == UOC:
            a.wait(vm="PO"); spin(0xff0000 | (7 if DF else 0)); stt["ook"] = True
        for f in ev.get(u, []): f()
        if un < NU and units[un][0] > stt["ready"]:
            if half is not None:
                dma2_ops(half)[2][1](); b2sal(half); half = None
            need2(un)
        if u < UT and t == 2 and p % 2 == 1 and p > 1 and p - 2 + NSL < KS2: barrier2()
        pre_ = None; mem_ = None
        if half is not None:
            def mem_(h=half): dma2_ops(h)[2][1](); b2sal(h)
            half = None
        elif len(G.sal) <= 1:
            cand = [q for q in (ordA, ordB) if q and can2(q[0])]
            if cand:
                cand.sort(key=lambda q: q[0][1] - (cfg.get("f_bprio", 5) if q[0][0] == "B2" else 0))
                done_ = NOPS - len(ordA) - 2 * len(ordB)
                if done_ * UE2 <= u * NOPS or first_unit[cand[0][0][1]] - u <= MARG + (16 if cand[0][0][0] == "B2" else 0):
                    nxt = cand[0].pop(0)
                    if nxt[0] == "B2":
                        ops_ = dma2_ops(nxt[1])
                        pre_ = lambda o=ops_: (o[0][1](), True)[1]
                        mem_ = ops_[1][1]; half = nxt[1]
                    else:
                        mem_ = lambda n_=nxt: aload2(n_[1], n_[2])
        if not xdone and (u == cfg.get("f_ux", 9999) or (not ordA and not ordB and half is None and mem_ is None)):
            xdone = True
            if XD:
                side.append("s_mul_i32 s%d, s%d, 5120" % (t1, sW))
                for mt in range(MT):
                    side += ["s_add_u32 m0, s%d, %d" % (t1, 5 * STAGE + mt * 1024), None,
                             ("m", lambda: a.vmem("buffer_load_dwordx4 v%d, %s, s%d offen lds" % (V_XO, s4(R_X), sXO), "X")),
                             "s_add_u32 s%d, s%d, %d" % (sXO, sXO, 32768 if mt < 3 else -3 * 32768)]
            for mt in range(MT if not XD else 0):
                for hh in range(2):
                    def f(mt=mt, hh=hh):
                        a.vmem("buffer_load_dwordx2 %s, v%d, %s, s%d offen offset:%d" % (r2("v", VX[mt] + 2 * hh), V_XI, s4(R_X), sXO, hh * 32), "X")
                    side += [("m", f)] + [None] * (cfg.get("f_xsp", 1) if hh else 1)
                side.append("s_add_u32 s%d, s%d, %d" % (sXO, sXO, 32768 if mt < 3 else -3 * 32768))
        for mt in range(MT):
            m_, k_ = divmod(kk * MT + mt, C_)
            if cfg.get("f_kz", 1) and m_ % 2 == 1 and units[u0][0] > 0: k_ = C_ - 1 - k_
            mz = m_ if gn % 2 == 0 else MT - 1 - m_
            p_, t_ = units[u0 + k_]
            bf = r4("a", BR2 + ((u0 + k_) % RB2) * 4)
            af = r4("v", acc(mz, 6 + 2 * p_)) if p_ < 3 else r4("a", aslot(p_) + mz * 4)
            c = r4("v", acc2[(mz, t_)])
            a("%s %s, %s, %s, %s" % (MF, c, bf, af, "0" if p_ == 0 else c))
            rd = (lambda mt=mt: bread2(un, mt)) if (mt < 2 and un < NU) else None
            if mt == 0: G.gap(fixed=rd)
            elif mt == 1: G.gap(first=pre_, fixed=rd)
            elif mt == 2:
                if mem_:
                    assert not G.sal
                    G.gap(first=(lambda: a.throttle(THR2)), mem=mem_)
                else: G.gap()
            else:
                if kk == C_ - 1:
                    stt["issued"] = u
                    G.gap(first=(lambda: prewait2(u + 1)) if u + 1 < NU else None)
                else: G.gap()
        if u >= UT and (u - UT) % PL == PL - 1:
            lam = (u - UT) // PL
            if lam < 3:
                new_ = [None] * 5
                for mt in range(MT):
                    new_ += pack(acc2[(mt, 2 * lam)], acc2[(mt, 2 * lam + 1)])
                    if DF: new_ += ["v_min_u32 v%d, -2, v%d" % (acc2[(mt, 2 * lam)] + e, acc2[(mt, 2 * lam)] + e) for e in range(4)]
                    def f(mt=mt, lam=lam):
                        a.vmem("buffer_store_dwordx4 %s, v%d, %s, s%d offen offset:%d sc1" % (r4("v", acc2[(mt, 2 * lam)]), V_L16, s4(R_WS), sSX[lam], mt * 1024), ("S", lam))
                    new_.append(("m", f))
                side[:0] = new_
    if cfg.get("verbose"): print("G2 side left", len([x for x in side if x is not None]), file=sys.stderr)
    G.drain()
    assert not ordA and not ordB and xdone
    stampr("g2end")
    def ownadd():
        for mt in range(MT):
            for hh in range(2):
                for e2 in range(2):
                    c = PS(mt, hh) + 2 * e2; o_ = acc2[(mt, 6 + hh)] + 2 * e2
                    a("v_pk_add_f32 v[%d:%d], v[%d:%d], v[%d:%d]" % (c, c + 1, c, c + 1, o_, o_ + 1))
    if DF:
        R2D = cfg.get("f_r2d", 1)
        def rd2():
            for mt in range(MT): a.vmem(rtxt(2, mt), ("R", 2, mt))
        assert a.vm.count(("R", 0)) == 4 and a.vm.count(("R", 1)) == 4
        if R2D == 0: rd2()
        a.wait(vm=("R", 0))
        for x in rmax(0): a(x)
        rcheck(0)
        for mt in range(MT):
            for x in addpk([PS(mt, 0), PS(mt, 1)], rq[mt]): a(x)
        stampr("x1")
        if R2D == 1: rd2()
        ownadd()
        a.wait(vm=("R", 1))
        for x in rmax(1): a(x)
        rcheck(1)
        stampr("x2")
        if R2D == 2: rd2()
        for mt in range(MT):
            for x in addpk([PS(mt, 0), PS(mt, 1)], rq[4 + mt]): a(x)
        stampr("x3")
        a.wait(vm=("R", 2, 3))
        for x in rmax(2): a(x)
        rcheck(2)
        stampr("x4")
    elif F2:
        for lam in range(2):
            if ("F", lam) not in a.vm: flag(lam)
        early = "P1" in a.vm
        if not early:
            a("s_nop 7")
            ownadd()
        if ("F", 2) not in a.vm: flag(2)
        if not early: poll_issue("P1")
        stampr("x1")
        a.wait(vm="P1"); spin(1)
        for mt in range(MT): recv(0, mt)
        spin(2)
        stampr("x2")
        for mt in range(MT): recv(1, mt)
        poll_issue("P2")
        if early: ownadd()
        for mt in range(MT):
            a.wait(vm=("R", 0, mt))
            for x in addpk([PS(mt, 0), PS(mt, 1)], rq[mt]): a(x)
        a.wait(vm="P2"); spin(4)
        stampr("x3")
        for mt in range(MT): recv(2, mt)
        for mt in range(MT):
            for x in addpk([PS(mt, 0), PS(mt, 1)], rq[4 + mt]): a(x)
        stampr("x4")
    else:
        flag(2)
        poll_issue("P1")
        stampr("x1")
        for mt in range(MT):
            a.wait(vm=("R", 0, mt))
            for x in addpk([PS(mt, 0), PS(mt, 1)], rq[mt]): a(x)
        a.wait(vm="P1"); spin(2)
        stampr("x2")
        for mt in range(MT): recv(1, mt)
        poll_issue("P2")
        for mt in range(MT):
            for hh in range(2):
                for e2 in range(2):
                    c = PS(mt, hh) + 2 * e2; o_ = acc2[(mt, 6 + hh)] + 2 * e2
                    a("v_pk_add_f32 v[%d:%d], v[%d:%d], v[%d:%d]" % (c, c + 1, c, c + 1, o_, o_ + 1))
        a.wait(vm="P2"); spin(4)
        stampr("x3")
        for mt in range(MT): recv(2, mt)
        for mt in range(MT):
            for x in addpk([PS(mt, 0), PS(mt, 1)], rq[4 + mt]): a(x)
        stampr("x4")
    for mt in range(MT):
        a.wait(vm=("R", 2, mt))
        for x in addpk([PS(mt, 0), PS(mt, 1)], rq[8 + mt]): a(x)
        c0 = PS(mt, 0)
        if cfg.get("eps"):
            for hh in range(2):
                for e in range(4): a("v_mul_f32 v%d, 0x%x, v%d" % (PS(mt, hh) + e, f2u(1.0 + cfg["eps"] / 10000.0), PS(mt, hh) + e))
        for x in pack(c0, PS(mt, 1)): a(x)
        def ostore(m, reg):
            a.vmem("buffer_store_dwordx4 %s, v%d, %s, s%d offen %s" % (r4("v", reg), V_XO, s4(R_OUT), sXO, ["", "sc1", "nt"][cfg.get("f_of", 2)]), "OUT")
            if m < 3: a("s_add_u32 s%d, s%d, 32768" % (sXO, sXO))
        if CO:
            a.lds("ds_write_b64 v%d, %s offset:%d" % (V_OW, r2("v", c0), mt * 1280), ("ow", mt))
            a.lds("ds_write_b64 v%d, %s offset:%d" % (V_OW, r2("v", c0 + 2), mt * 1280 + 32), ("ow", mt))
            a.lds("ds_read_b128 %s, v%d offset:%d" % (r4("v", PS(mt, 1)), V_OR, mt * 1280), ("or", mt))
            if mt > 0:
                a.wait(lg=("or", mt - 1)); ostore(mt - 1, PS(mt - 1, 1))
            if mt == 3:
                a.wait(lg=("or", 3)); ostore(3, PS(3, 1))
        else:
            a("s_nop 1")
            a("v_permlane16_swap_b32 v%d, v%d" % (c0, c0 + 2))
            a("v_permlane16_swap_b32 v%d, v%d" % (c0 + 1, c0 + 3))
            ostore(mt, c0)
    stampr("x5")
    if ST:
        a("s_waitcnt vmcnt(0)")
        stampr("end")
        a("s_waitcnt lgkmcnt(0)")
        for i in range(8): a("v_mov_b32 v%d, s%d" % (i, STB + 2 * i))
        a("s_lshl_b32 s%d, s2, 2" % t0)
        a("s_add_u32 s%d, s%d, s%d" % (t0, t0, sW))
        a("s_lshl_b32 s%d, s%d, 5" % (t0, t0))
        a("v_mov_b32 v8, 0")
        a("s_nop 4")
        a("buffer_store_dwordx4 v[0:3], v8, %s, s%d offen" % (s4(R_WS), t0))
        a("buffer_store_dwordx4 v[4:7], v8, %s, s%d offen offset:16" % (s4(R_WS), t0))
    a.label("F_end")
    a("s_endpgm")
    kernel_desc(a, name, 256, sgpr=102, accum=256, agpr=256)
    return "; @launch kernel=%s grid=(256,1,1) block=(256,1,1) lds=163840" % name

gen.gen_f = gen_f

if __name__ == "__main__":
    cfg = dict(g1_mt=4)
    out = sys.argv[1]
    kernels = sys.argv[2].split(",")
    for kv in sys.argv[3:]:
        k, v = kv.split("="); cfg[k] = int(v, 0)
    open(out, "w").write(gen.build(cfg, kernels))
```

```python
import sys, math
from asmlib import *
import gen
from gen import *

class SA:
    def __init__(self, start, end):
        self.n = start; self.end = end; self.m = {}
    def new(self, name, cnt=1, align=1):
        self.n = (self.n + align - 1) // align * align
        r = self.n; self.n += cnt
        assert self.n <= self.end, "out of sgprs"
        self.m[name] = r
        return r

def s4(b): return "s[%d:%d]" % (b, b + 3)
MF = "v_mfma_f32_16x16x32_bf16"

def kind_of(op):
    if op is None: return None
    if isinstance(op, tuple): return op[0]
    t = op.lstrip()
    if t.startswith("s_"): return "s"
    if t.startswith("v_"): return "v"
    raise ValueError(op)

class Gaps:
    def __init__(self, a):
        self.a = a
        self.sal = []
        self.side = []
    def run(self, op):
        if isinstance(op, tuple): op[1]()
        else: self.a(op)
    def gap(self, first=None, fixed=None, mem=None):
        used0 = False
        room = 2
        if first is not None: used0 = bool(first())
        if not used0:
            if self.sal:
                x = self.sal.pop(0); self.a(x); used0 = True
                room -= x.count("\n")
            elif self.side and kind_of(self.side[0]) == "s":
                self.run(self.side.pop(0)); used0 = True
        if mem is not None:
            mem(); return
        if fixed is not None:
            fixed(); room -= 1
        if self.side and self.side[0] is None:
            self.side.pop(0)
            skip = True
        else: skip = False
        while room > 0:
            if self.sal and self.sal[0].count("\n") < room:
                x = self.sal.pop(0); self.a(x); room -= 1 + x.count("\n"); continue
            if skip or not self.side or self.side[0] is None: break
            k = kind_of(self.side[0])
            if k in ("m", "x"):
                if room == 2:
                    self.run(self.side.pop(0))
                break
            self.run(self.side.pop(0)); room -= 1
    def drain_sal(self):
        while self.sal: self.a(self.sal.pop(0))
    def drain(self):
        self.drain_sal()
        for op in self.side:
            if op is not None: self.run(op)
        self.side = []

def ln_ops(exact=1):
    o = []
    a = o.append
    pk = lambda op, d, x, y, mod="": a("%s v[%d:%d], v[%d:%d], v[%d:%d]%s" % (op, d, d + 1, x, x + 1, y, y + 1, mod))
    for i in range(16):
        if i % 4 == 0: a("WAIT%d" % (i // 4))
        a("v_lshlrev_b32 v%d, 16, v%d" % (24 + 2 * i, 8 + i))
        a("v_and_b32 v%d, 0xffff0000, v%d" % (25 + 2 * i, 8 + i))
        if i == 1: pk("v_pk_add_f32", 56, 24, 26)
        elif i == 3: pk("v_pk_add_f32", 58, 28, 30)
        elif i > 3: pk("v_pk_add_f32", 56 + 2 * (i & 1), 56 + 2 * (i & 1), 24 + 2 * i)
    pk("v_pk_add_f32", 56, 56, 58)
    a("v_add_f32 v56, v56, v57")
    def xlane_sum(r, t):
        a("s_nop 1")
        a("v_add_f32_dpp v%d, v%d, v%d row_ror:8 row_mask:0xf bank_mask:0xf" % (r, r, r))
        for op in ("v_permlane16_swap_b32", "v_permlane32_swap_b32"):
            a("v_mov_b32 v%d, v%d" % (t, r))
            a("s_nop 1")
            a("%s v%d, v%d" % (op, r, t))
            a("v_add_f32 v%d, v%d, v%d" % (r, r, t))
    xlane_sum(56, 57)
    a("v_mul_f32 v56, 0x%x, v56" % f2u(1.0 / 256))
    neg = " op_sel_hi:[1,0] neg_lo:[0,1] neg_hi:[0,1]"
    for i in range(16):
        t = 62 + 2 * (i & 1); ac = 66 + 2 * (i & 1)
        pk("v_pk_add_f32", t, 24 + 2 * i, 56, neg)
        if i < 2: pk("v_pk_mul_f32", ac, t, t)
        else: a("v_pk_fma_f32 v[%d:%d], v[%d:%d], v[%d:%d], v[%d:%d]" % (ac, ac + 1, t, t + 1, t, t + 1, ac, ac + 1))
    pk("v_pk_add_f32", 66, 66, 68)
    a("v_add_f32 v57, v66, v67")
    xlane_sum(57, 58)
    a("ds_write_b64 v7, v[56:57]")
    a("s_waitcnt lgkmcnt(0)")
    a("s_barrier")
    for k in range(4): a("ds_read_b64 v[%d:%d], v60 offset:%d" % (62 + 2 * k, 63 + 2 * k, 64 * k))
    a("s_waitcnt lgkmcnt(0)")
    pk("v_pk_add_f32", 56, 62, 64)
    pk("v_pk_add_f32", 58, 66, 68)
    pk("v_pk_add_f32", 56, 56, 58)
    a("v_mul_f32 v56, 0x3e800000, v56")
    a("v_sub_f32 v59, v62, v56")
    a("v_mul_f32 v58, v59, v59")
    for r in (64, 66, 68):
        a("v_sub_f32 v59, v%d, v56" % r)
        a("v_fmac_f32 v58, v59, v59")
    a("v_fmac_f32 v57, 0x43800000, v58")
    a("v_mul_f32 v57, 0x%x, v57" % f2u(1.0 / 1024))
    a("v_cvt_pk_bf16_f32 v58, v56, v57")
    a("v_lshlrev_b32 v56, 16, v58")
    a("v_and_b32 v57, 0xffff0000, v58")
    a("v_add_f32 v57, 0x%x, v57" % f2u(1e-5))
    a("v_cvt_pk_bf16_f32 v57, v57, v57")
    a("v_and_b32 v57, 0xffff0000, v57")
    a("v_sqrt_f32 v57, v57")
    a("s_nop 0")
    a("v_cvt_pk_bf16_f32 v57, v57, v57")
    a("v_and_b32 v57, 0xffff0000, v57")
    a("v_rcp_f32 v58, v57")
    for i in range(16):
        pk("v_pk_add_f32", 24 + 2 * i, 24 + 2 * i, 56, neg)
        if i > 0:
            j = i - 1
            if exact:
                a("v_cvt_pk_bf16_f32 v%d, v%d, v%d" % (25 + 2 * j, 24 + 2 * j, 25 + 2 * j))
                a("v_lshlrev_b32 v%d, 16, v%d" % (24 + 2 * j, 25 + 2 * j))
                a("v_and_b32 v%d, 0xffff0000, v%d" % (25 + 2 * j, 25 + 2 * j))
            pk("v_pk_mul_f32", 24 + 2 * j, 24 + 2 * j, 58, " op_sel_hi:[1,0]")
            a("v_cvt_pk_bf16_f32 v%d, v%d, v%d" % (8 + j, 24 + 2 * j, 25 + 2 * j))
            if j % 4 == 3: a("STORE%d" % (j // 4))
    if exact:
        a("v_cvt_pk_bf16_f32 v55, v54, v55")
        a("v_lshlrev_b32 v54, 16, v55")
        a("v_and_b32 v55, 0xffff0000, v55")
    pk("v_pk_mul_f32", 54, 54, 58, " op_sel_hi:[1,0]")
    a("v_cvt_pk_bf16_f32 v23, v54, v55")
    a("STORE3")
    return o

def gen_f(a, cfg):
    name = NAME + "_kernel" if cfg.get("single") else "f_kernel"
    FLN = cfg.get("f_ln", 0)
    SPIN = cfg.get("spin", 0x40000)
    ST = cfg.get("stamp")
    MT = 4
    sa = SA(3, 84)
    P_WQ = sa.new("pwq", 2, 2); P_W1 = sa.new("pw1", 2, 2); P_WS = sa.new("pws", 2, 2); P_X = sa.new("px", 2, 2)
    P_W2 = sa.new("pw2", 2, 2); P_WO = sa.new("pwo", 2, 2); P_OUT = sa.new("pout", 2, 2)
    R_WQ = sa.new("rwq", 4, 4); R_W1 = sa.new("rw1", 4, 4); R_W2 = sa.new("rw2", 4, 4); R_WO = sa.new("rwo", 4, 4)
    R_WS = sa.new("rws", 4, 4)
    sW = sa.new("w"); sI = sa.new("i"); sJ = sa.new("j"); sJ1 = sa.new("j1"); sQ = sa.new("q"); sN = sa.new("n")
    sBQ = sa.new("bq"); sBV = sa.new("bv"); sBW = sa.new("bw"); sBL = sa.new("bl"); sLB = sa.new("lb"); sA = sa.new("a")
    sCLS = sa.new("cls"); t0 = sa.new("t0"); t1 = sa.new("t1"); t2 = sa.new("t2"); t3 = sa.new("t3")
    sMK = sa.new("mask", 8, 2)
    sKV = sa.new("kv"); sKV2 = sa.new("kv2"); sKP = sa.new("kp"); sKP2 = sa.new("kp2"); sFK = sa.new("fk"); sFO = sa.new("fo")
    sH = sa.new("h", 4); sSC = sa.new("sc", 2, 2); sO = sSC + 1; sA0 = sa.new("a0"); sB0 = sa.new("b0"); sAE = sa.new("aend"); sBE = sa.new("bend")
    sXO = sa.new("xo"); sSP = sa.new("spin")
    sDL = sMK
    STB = 84
    SETS = {1: ["start", "bar0", "g1end", "attbeg", "attend", "g2beg", "g2end", "end"],
            2: ["start", "g1half", "g1tail", "g1kv", "g1flag1", "g1chk", "g1kb", "g1end"],
            3: ["start", "attbeg", "att0", "att1", "att2", "att3", "att4", "attend"],
            4: ["start", "att4", "g2h", "g2beg", "g2p4", "g2p12", "g2tail", "g2end"],
            5: ["start", "g2end", "x1", "x2", "x3", "x4", "x5", "end"],
            7: ["g2beg", "g2p3", "g2p6", "g2p10", "g2p14", "g2p18", "g2p22", "g2end"],
            8: ["g2p22", "g2tail", "g2l1", "g2l2", "g2l3", "g2end", "x3", "end"],
            9: ["start", "lnx", "lns", "lnd", "lnp", "g1s1", "g1s4", "g1s8"],
            10: ["start", "k0", "k1", "k2", "k3", "k4", "lnx", "lns"],
            6: ["start", "bar0", "g1s2", "g1s4", "g1s8", "g1half", "g1s20", "g1tail"]}
    jn = [0]
    def stampr(nm):
        J = cfg.get("jit", 0)
        if J and nm != "start":
            jn[0] += 1
            lab = a.newlabel("F_j")
            a("s_lshl_b32 s84, s2, 2")
            if J & 1: a("s_add_u32 s84, s84, s%d" % sW)
            a("s_add_u32 s84, s84, %d" % (jn[0] * 7919 + J * 31))
            a("s_mul_i32 s84, s84, 0x9e3779b1")
            a("s_lshr_b32 s84, s84, 28")
            a("s_cmp_lg_u32 s84, 0")
            a("s_cbranch_scc1 %s" % lab)
            for _ in range(cfg.get("jitn", 2)): a("s_sleep 127")
            a.label(lab)
        if ST and nm in SETS[ST]:
            i = SETS[ST].index(nm)
            a("%s s[%d:%d]" % ("s_memtime" if cfg.get("clk") else "s_memrealtime", STB + 2 * i, STB + 2 * i + 1))

    NT = 13; KS = 32
    NS = 5; REG = 7168; STAGE = 4 * REG
    D1 = cfg.get("f_d1", 8)
    RA = cfg.get("f_ra1", 12)
    LA = cfg.get("f_la1", 4)
    C1 = cfg.get("f_c1", 2)
    C1K = cfg.get("f_c1k", 2); C1T = cfg.get("f_c1t", 4); C1S = cfg.get("f_c1s", 0)
    CM1 = max(C1, C1K, C1T)
    DB = cfg.get("f_db1", CM1 + 2); RB = DB + max(CM1, 2)
    assert DB >= CM1
    S1 = KS - D1
    def slot1(g): return (15 - g) % 5
    KVB = 96 * 1024
    def acc(mt, t): return (t * MT + mt) * 4
    V_L16 = 208; V_QKV = 209; V_W1 = 210; V_LEFT = 211
    V_RD = 212
    V_P0, V_P1, V_P2 = 221, 222, 223
    V_LANE = 224; V_FL0 = 225; V_ONE = 226; V_POLL = 227; V_KVW = 228; V_FG = 229; V_PL = 230
    T = 232
    A_PD = 255
    AR = 0; BR = RA * 16
    assert BR + RB * 4 <= 254

    kernel_begin(a, name)
    a.reset()
    stampr("start")
    a("s_cmp_ge_u32 s2, 256")
    a("s_cbranch_scc1 F_end")
    if cfg.get("idx"): a("s_xor_b32 s2, s2, %d" % cfg["idx"])
    SWP = cfg.get("f_swp", 0)
    if SWP:
        a("s_lshr_b32 s%d, s2, 1" % t0)
        a("s_xor_b32 s%d, s%d, s2" % (t0, t0))
        a("s_and_b32 s%d, s%d, 1" % (t0, t0))
        a("s_mul_i32 s%d, s%d, 3" % (t0, t0))
        a("s_xor_b32 s2, s2, s%d" % t0)
    if cfg.get("jit"):
        a("s_mul_i32 s84, s2, 0x9e3779b1")
        a("s_lshr_b32 s84, s84, 28")
        a("s_cmp_lg_u32 s84, %d" % (cfg["jit"] & 15))
        a("s_cbranch_scc1 F_j0")
        for _ in range(4): a("s_sleep 127")
        a.label("F_j0")
    a("s_load_dwordx2 s[%d:%d], s[0:1], 8" % (P_WQ, P_WQ + 1))
    a("s_load_dwordx2 s[%d:%d], s[0:1], 32" % (P_W1, P_W1 + 1))
    a("s_load_dwordx2 s[%d:%d], s[0:1], 64" % (P_WS, P_WS + 1))
    a("s_load_dwordx2 s[%d:%d], s[0:1], 0" % (P_X, P_X + 1))
    a("s_load_dwordx2 s[%d:%d], s[0:1], 40" % (P_W2, P_W2 + 1))
    a("s_load_dwordx2 s[%d:%d], s[0:1], 16" % (P_WO, P_WO + 1))
    a("s_load_dwordx2 s[%d:%d], s[0:1], 48" % (P_OUT, P_OUT + 1))
    if FLN:
        lab = a.newlabel("F_pc")
        a("s_getpc_b64 s[%d:%d]" % (R_WO, R_WO + 1))
        a.label(lab)
        a("s_and_b32 s%d, s%d, 0xffff" % (R_WO + 1, R_WO + 1))
        a("s_mov_b32 s%d, CODE_END - %s" % (R_WO + 2, lab))
        a("s_mov_b32 s%d, 0x00020000" % (R_WO + 3))
        a("s_lshr_b32 s%d, s2, 3" % t0)
        a("s_lshl_b32 s%d, s%d, 7" % (t0, t0))
        a("v_lshlrev_b32 v70, 12, v0")
        a.vmem("buffer_load_dword v76, v70, %s, s%d offen" % (s4(R_WO), t0), "T")
    if FLN: a("s_load_dwordx2 s[100:101], s[0:1], 56")
    L = V_LANE
    a("v_and_b32 v%d, 63, v0" % L)
    a("v_lshrrev_b32 v%d, 6, v0" % (T + 1))
    a("v_lshlrev_b32 v%d, 4, v%d" % (V_L16, L))
    a("v_readfirstlane_b32 s%d, v%d" % (sW, T + 1))
    a("s_and_b32 s%d, s2, 1" % sI)
    a("s_lshl_b32 s%d, s%d, 2" % (sI, sI))
    a("s_bfe_u32 s%d, s2, 0x20003" % t0)
    a("s_add_u32 s%d, s%d, s%d" % (sI, sI, t0))
    a("s_bfe_u32 s%d, s2, 0x20001" % sQ)
    a("s_lshr_b32 s%d, s2, 5" % sN)
    a("s_lshl_b32 s%d, s%d, 3" % (sJ, sQ))
    a("s_add_u32 s%d, s%d, s%d" % (sJ, sJ, sN))
    a("s_and_b32 s%d, s%d, 1" % (sJ1, sN))
    if FLN:
        a("v_and_b32 v3, 7, v%d" % L)
        a("v_lshrrev_b32 v4, 3, v%d" % L)
        LXD = cfg.get("f_lxd", 0)
        if LXD:
            a("v_xor_b32 v83, v3, v4")
            a("v_lshlrev_b32 v5, 11, v4")
            a("v_lshl_add_u32 v5, v%d, 9, v5" % (T + 1))
            a("v_lshl_add_u32 v5, v83, 4, v5")
            a("s_lshl_b32 s%d, s%d, 12" % (t1, sW))
            a("s_add_u32 s%d, s%d, %d" % (t1, t1, 144 * 1024))
            a("s_mov_b32 m0, s%d" % t1)
        else:
            a("v_lshlrev_b32 v5, 11, v3")
            a("v_lshl_add_u32 v5, v%d, 9, v5" % (T + 1))
            a("v_lshl_add_u32 v5, v4, 4, v5")
        a("s_lshl_b32 s%d, s%d, 5" % (t3, sI))
        a("s_add_u32 s%d, s%d, s%d" % (t3, t3, sJ))
        a("s_lshl_b32 s%d, s%d, 14" % (sFK, t3))
        assert not LXD or not cfg.get("f_early", 0)
    def xloads():
        stampr("k0")
        a("s_waitcnt lgkmcnt(0)")
        stampr("k1")
        srd(a, R_W2, P_X, S * D * 2)
        for i in range(4):
            if LXD:
                a.vmem("buffer_load_dwordx4 v5, %s, s%d offen offset:%d lds" % (s4(R_W2), sFK, i * 128), ("LX", i))
                if i < 3:
                    a("s_add_u32 m0, m0, %d" % (1024 - 128))
                    a("s_nop 0")
            else: a.vmem("buffer_load_dwordx4 %s, v5, %s, s%d offen offset:%d" % (r4("v", 8 + 4 * i), s4(R_W2), sFK, i * 128), ("LX", i))
        if LXD:
            a("v_lshlrev_b32 v83, 4, v83")
            a("v_lshl_add_u32 v83, v3, 7, v83")
            a("v_add_u32 v83, s%d, v83" % t1)
        stampr("k2")
        srd(a, R_WS, P_WS, WS_END)
        a("s_lshl_b32 s%d, s%d, 12" % (sSP, sI))
        a("s_add_u32 s%d, s%d, 0x%x" % (sXO, sSP, WS_LF))
        a("v_and_b32 v80, 31, v%d" % L)
        a("v_lshlrev_b32 v80, %d, v80" % cfg.get("f_lfs", 2))
        a("v_add_u32 v80, s%d, v80" % sXO)
        a.vmem("buffer_load_dword v81, v80, %s, 0 offen sc1" % s4(R_WS), "SN")
    if FLN and not cfg.get("f_early", 0): xloads()
    VQ3 = [V_QKV, 240, 241]; VW3 = [V_W1, 242, 243]
    a("v_lshrrev_b32 v%d, 2, v%d" % (T + 2, L))
    a("v_and_b32 v%d, 3, v%d" % (T + 4, L))
    a("v_lshlrev_b32 v%d, 4, v%d" % (T + 4, T + 4))
    a("v_mul_u32_u24 v%d, %d, v%d" % (T + 5, 16 * 6144, T + 1))
    a("v_lshl_add_u32 v%d, v%d, 11, v%d" % (T + 5, T + 2, T + 5))
    a("v_add_u32 v%d, v%d, v%d" % (VQ3[0], T + 5, T + 4))
    a("v_and_b32 v%d, 32, v%d" % (T + 3, L))
    a("v_xor_b32 v%d, v%d, v%d" % (VQ3[1], VQ3[0], T + 3))
    a("v_add_u32 v%d, 32768, v%d" % (VQ3[1], VQ3[1]))
    a("v_xor_b32 v%d, 32, v%d" % (VQ3[2], VQ3[0]))
    a("v_add_u32 v%d, 65536, v%d" % (VQ3[2], VQ3[2]))
    a("v_mul_u32_u24 v%d, %d, v%d" % (T + 5, 16 * 7168, T + 1))
    a("v_add_u32 v%d, v%d, v%d" % (T + 5, T + 5, T + 4))
    for m in range(3):
        if m: a("v_add_u32 v%d, 16, v%d" % (T + 2, T + 2))
        a("v_mul_u32_u24 v%d, 43, v%d" % (T + 4, T + 2))
        a("v_lshrrev_b32 v%d, 7, v%d" % (T + 4, T + 4))
        a("v_mul_u32_u24 v%d, %d, v%d" % (T + 4, 7168 - 192, T + 4))
        a("v_lshl_add_u32 v%d, v%d, 6, v%d" % (T + 4, T + 2, T + 4))
        a("v_add_u32 v%d, v%d, v%d" % (VW3[m], T + 4, T + 5))
        if m == 1: a("v_xor_b32 v%d, v%d, v%d" % (VW3[m], VW3[m], T + 3))
        if m == 2: a("v_xor_b32 v%d, 32, v%d" % (VW3[m], VW3[m]))
    a("v_bfe_u32 v%d, v%d, 3, 1" % (T + 2, L))
    a("v_lshlrev_b32 v%d, 3, v%d" % (T + 2, T + 2))
    a("v_bfe_u32 v%d, v%d, 4, 1" % (T + 3, L))
    a("v_lshl_add_u32 v%d, v%d, 2, v%d" % (T + 2, T + 3, T + 2))
    a("v_bfe_u32 v%d, v%d, 1, 2" % (T + 3, L))
    a("v_add_u32 v%d, v%d, v%d" % (T + 2, T + 2, T + 3))
    a("v_lshl_add_u32 v%d, v%d, 4, v%d" % (T + 2, T + 1, T + 2))
    a("v_mul_u32_u24 v%d, 7168, v%d" % (V_LEFT, T + 2))
    a("v_and_b32 v%d, 1, v%d" % (T + 3, L))
    a("v_lshl_add_u32 v%d, v%d, 4, v%d" % (V_LEFT, T + 3, V_LEFT))
    a("v_lshrrev_b32 v%d, 5, v%d" % (T + 3, L))
    a("v_lshl_add_u32 v%d, v%d, 30, v%d" % (V_LEFT, T + 3, V_LEFT))
    a("s_lshl_b32 s%d, s%d, 6" % (sBQ, sJ))
    a("s_mul_i32 s%d, s%d, 224" % (sBL, sJ))
    a("s_lshl_b32 s%d, s%d, 5" % (t0, sJ1))
    a("s_add_u32 s%d, s%d, s%d" % (sBW, sBL, t0))
    a("s_xor_b32 s%d, s%d, 1" % (t0, sJ1))
    a("s_mul_i32 s%d, s%d, 192" % (t0, t0))
    a("s_add_u32 s%d, s%d, s%d" % (sBL, sBL, t0))
    a("s_mul_i32 s%d, s%d, %d" % (sLB, sW, REG))
    a("s_lshl_b32 s%d, s%d, 2" % (sA, sI))
    a("s_add_u32 s%d, s%d, s%d" % (sA, sA, sW))
    a("s_lshl_b32 s%d, s%d, 17" % (sA, sA))
    a("s_add_u32 s%d, s%d, 0x%x" % (sA, sA, WS_XN))
    ROT = cfg.get("f_rot", 1)
    a("s_add_u32 s%d, s%d, s%d" % (t1, sI, sN))
    a("s_and_b32 s%d, s%d, %d" % (t1, t1, 3 if ROT else 0))
    for k in range(3):
        a("s_cmp_eq_u32 s%d, %d" % (t1, 3 - k))
        a("s_cselect_b32 s%d, -3, 1" % (sDL + k))
    a("s_cmp_eq_u32 s%d, 0" % t1)
    a("s_cselect_b32 s%d, 1, 5" % (sDL + 3))
    a("s_mul_i32 s%d, s%d, %d" % (t0, t1, 64 * 6144))
    a("s_add_u32 s%d, s%d, s%d" % (sBQ, sBQ, t0))
    a("s_mul_i32 s%d, s%d, %d" % (t0, t1, 64 * 7168))
    a("s_add_u32 s%d, s%d, s%d" % (sBW, sBW, t0))
    a("s_add_u32 s%d, s%d, s%d" % (sBL, sBL, t0))
    a("s_lshl_b32 s%d, s%d, 13" % (t0, t1))
    a("s_add_u32 s%d, s%d, s%d" % (sA, sA, t0))
    for k in range(4):
        a("s_lshl_b32 s%d, s%d, 13" % (sDL + 4 + k, sDL + k))
        a("s_sub_u32 s%d, s%d, 4096" % (sDL + 4 + k, sDL + 4 + k))
    if FLN and cfg.get("f_early", 0): xloads()
    elif not FLN: a("s_waitcnt lgkmcnt(0)")
    srd(a, R_WQ, P_WQ, D * 3 * D * 2)
    srd(a, R_W1, P_W1, D * DFF * 2)
    if not FLN: srd(a, R_WS, P_WS, WS_END)

    G = Gaps(a)
    PAIRPOS = [0, 2, 1, 3, 4, 5]
    def dma1(g, k, part):
        p, vreg, sb, so, imm = [(0, VQ3[0], R_WQ, sBQ, 0), (1, VQ3[1], R_WQ, sBQ, 0), (2, VQ3[2], R_WQ, sBQ, 0),
                                (3, VW3[0], R_W1, sBW, 0), (4, VW3[1], R_W1, sBW, 0), (5, VW3[2], R_W1, sBW, 0), (6, V_LEFT, R_W1, sBL, 0)][k]
        if part == 0:
            a("s_add_u32 m0, s%d, %d" % (sLB, slot1(g) * STAGE + p * 1024 - imm))
        else:
            a.vmem("buffer_load_dwordx4 v%d, %s, s%d offen offset:%d lds" % (vreg, s4(sb), so, imm), ("B", g))
            if k == 0: G.sal.append("s_mul_i32 s%d, s%d, %d" % (t2, sDL + (g & 3), 64 * 6144))
            if k == 2: G.sal.append("s_add_u32 s%d, s%d, s%d" % (sBQ, sBQ, t2))
            if k == 3: G.sal.append("s_mul_i32 s%d, s%d, %d" % (t2, sDL + (g & 3), 64 * 7168))
            if k == 5: G.sal.append("s_add_u32 s%d, s%d, s%d" % (sBW, sBW, t2))
            if k == 6: G.sal.append("s_add_u32 s%d, s%d, s%d" % (sBL, sBL, t2))
    def aload1(s, mt):
        a.vmem("buffer_load_dwordx4 %s, v%d, %s, s%d offen offset:%d%s" % (r4("a", AR + (s % RA) * 16 + mt * 4), V_L16, s4(R_WS), sA, mt * 1024, " sc1" if FLN else ""), ("A", s))
        if mt == MT - 1:
            if s % 2 == 0: G.sal.append("s_add_u32 s%d, s%d, 4096" % (sA, sA))
            else: G.sal.append("s_add_u32 s%d, s%d, s%d" % (sA, sA, sDL + 4 + ((s // 2) & 3)))
    order = []
    for g in range(16):
        for k in range(7): order.append(("B", g, k))
        for s in (2 * g, 2 * g + 1):
            for mt in range(MT): order.append(("A", s, mt))
    def issue1(op):
        G.drain_sal()
        if op[0] == "A": aload1(op[1], op[2])
        else:
            dma1(op[1], op[2], 0); a("s_nop 0"); dma1(op[1], op[2], 1)
        G.drain_sal()
    if FLN:
        nb = cfg.get("f_lnb", 1)
        bops = [o for o in order if o[0] == "B" and o[1] < nb]
        for o in bops: order.remove(o)
        BO = cfg.get("f_bo", 0)
        late_b = []
        if BO == 1: late_b = bops[:3]; bops = bops[3:]
        if BO == 2: late_b = bops[3:]; bops = bops[:3]
        TB0 = cfg.get("f_tb", 0)
        def touchb():
            a("s_lshr_b32 s%d, s2, 3" % t1)
            a("s_lshl_b32 s%d, s%d, 2" % (t1, t1))
            a("s_add_u32 s%d, s%d, s%d" % (t1, t1, sW))
            a("v_lshrrev_b32 v84, 4, v%d" % L)
            a("v_and_b32 v85, 15, v%d" % L)
            a("v_mul_u32_u24 v86, 7168, v84")
            a("v_lshl_add_u32 v86, v85, 7, v86")
            a("v_mul_u32_u24 v84, 6144, v84")
            a("v_lshrrev_b32 v87, 2, v85")
            a("v_lshl_add_u32 v84, v87, 11, v84")
            a("v_and_b32 v87, 3, v85")
            a("v_lshl_add_u32 v84, v87, 7, v84")
            a("s_mul_i32 s%d, s%d, %d" % (t0, t1, 2 * 6144))
            a("s_lshl_b32 s%d, s%d, 9" % (t2, sQ))
            a("s_add_u32 s%d, s%d, s%d" % (sKV, t0, t2))
            a("s_mul_i32 s%d, s%d, %d" % (t0, t1, 2 * 7168))
            a("s_mul_i32 s%d, s%d, 1792" % (t2, sQ))
            a("s_add_u32 s%d, s%d, s%d" % (sKV2, t0, t2))
        def touchb2():
            a("s_mov_b64 exec, 0x0fff0fff")
            a.vmem("buffer_load_dword a%d, v84, %s, s%d offen" % (A_PD, s4(R_WQ), sKV), "T")
            a("s_mov_b64 exec, 0x3fff3fff")
            a.vmem("buffer_load_dword a%d, v86, %s, s%d offen" % (A_PD, s4(R_W1), sKV2), "T")
            a("s_mov_b64 exec, -1")
        HT = cfg.get("f_ht", 0)
        def hottouch(b):
            a("s_mov_b32 s%d, %d" % (t0, b * 256 * 6144))
            a.vmem("buffer_load_dword a%d, v%d, %s, s%d offen" % (A_PD, V_P1, s4(R_WQ), t0), "T")
        if HT:
            a("s_lshr_b32 s%d, s2, 3" % t1)
            a("s_lshl_b32 s%d, s%d, 2" % (t1, t1))
            a("s_add_u32 s%d, s%d, s%d" % (t1, t1, sW))
            a("s_mul_i32 s%d, s%d, %d" % (t1, t1, 2 * 6144))
            a("s_mul_i32 s%d, s%d, 0x40000200" % (t0, sQ))
            a("s_and_b32 s%d, s%d, 0x7fffffff" % (t0, t0))
            a("s_add_u32 s%d, s%d, s%d" % (t1, t1, t0))
            a("s_add_u32 s%d, s%d, 384" % (t1, t1))
            a("v_lshlrev_b32 v%d, 11, v%d" % (V_P1, L))
            a("v_add_u32 v84, 58, v%d" % L)
            a("v_lshrrev_b32 v84, 6, v84")
            a("v_lshl_add_u32 v%d, v84, 30, v%d" % (V_P1, V_P1))
            a("v_add_u32 v%d, s%d, v%d" % (V_P1, t1, V_P1))
            if HT & 1: hottouch(0)
        if TB0: touchb()
        if TB0 == 1: touchb2()
        for _ in range(cfg.get("f_lnb0", 2)): issue1(bops.pop(0))
        a("s_lshl_b32 s%d, s2, 9" % t0)
        a("s_add_u32 s%d, s%d, 0x%x" % (t0, t0, WS_FL))
        a("v_lshlrev_b32 v70, 2, v0")
        a("v_lshrrev_b32 v71, 7, v0")
        a("v_lshl_add_u32 v70, v71, 30, v70")
        a("v_mov_b32 v71, 0")
        a.vmem("buffer_store_dword v71, v70, %s, s%d offen sc1" % (s4(R_WS), t0), "Z")
        a("s_lshr_b32 s%d, s%d, 3" % (t0, t3))
        a("s_lshl_b32 s%d, s%d, 17" % (t0, t0))
        a("s_bfe_u32 s%d, s%d, 0x20001" % (t1, t3))
        a("s_lshl_b32 s%d, s%d, 10" % (t1, t1))
        a("s_add_u32 s%d, s%d, s%d" % (t0, t0, t1))
        a("s_and_b32 s%d, s%d, 1" % (t1, t3))
        a("s_lshl_b32 s%d, s%d, 7" % (t1, t1))
        a("s_add_u32 s%d, s%d, s%d" % (t0, t0, t1))
        a("s_add_u32 s%d, s%d, 0x%x" % (t3, t0, WS_XN))
        a("v_lshrrev_b32 v6, 2, v4")
        a("v_lshl_add_u32 v6, v%d, 3, v6" % (T + 1))
        a("v_lshlrev_b32 v6, 12, v6")
        a("v_and_b32 v7, 3, v4")
        a("v_lshl_add_u32 v6, v7, 8, v6")
        a("v_lshl_add_u32 v6, v3, 4, v6")
        a("v_lshl_add_u32 v7, v%d, 3, v3" % (T + 1))
        a("v_lshlrev_b32 v7, 3, v7")
        a("v_add_u32 v7, %d, v7" % (5 * STAGE))
        a("v_lshlrev_b32 v60, 3, v3")
        a("v_add_u32 v60, %d, v60" % (5 * STAGE))
        stampr("k3")
        if LXD:
            for i in range(4):
                a.wait(vm=("LX", i))
                if i == 0: stampr("k4")
                a("ds_read_b128 %s, v83 offset:%d" % (r4("v", 8 + 4 * i), i * 1024))
            a("s_waitcnt lgkmcnt(0)")
        elif not cfg.get("f_lxp", 1): a.wait(vm=("LX", 3))
        stampr("lnx")
        if TB0 == 2: touchb2()
        lo_ = ln_ops(cfg.get("f_lnex", 1))
        gap_ = cfg.get("f_lngap", 20)
        for k, x in enumerate(lo_):
            if x.startswith("WAIT"): a.wait(vm=("LX", int(x[4:])))
            elif x.startswith("STORE"):
                i = int(x[5:])
                a.vmem("buffer_store_dwordx4 %s, v6, %s, s%d offen sc1" % (r4("v", 8 + 4 * i), s4(R_WS), t3), "XS")
                if i < 3: a("s_add_u32 s%d, s%d, %d" % (t3, t3, 8192))
            else: a(x)
            if k % gap_ == gap_ - 1 and bops and k < cfg.get("f_lnk", 110): issue1(bops.pop(0))
        bops += late_b
        if cfg.get("f_bnow", 1):
            while bops: issue1(bops.pop(0))
        stampr("lns")
    else:
        for _ in range(cfg.get("f_pro1", 15)): issue1(order.pop(0))

    srd(a, R_W2, P_W2, DFF * D * 2)
    srd(a, R_WO, P_WO, D * D * 2)
    a("s_bfe_u32 s%d, s2, 0x30003" % sCLS)
    a("v_bfrev_b32 v%d, 1" % (T + 6))
    if cfg.get("f_pf", 0):
        a("s_lshr_b32 s%d, s2, 6" % t1)
        a("s_lshl_b32 s%d, s%d, 2" % (t1, t1))
        a("s_add_u32 s%d, s%d, s%d" % (t1, t1, sW))
        a("v_bfrev_b32 v%d, 1" % (T + 6))
        a("v_lshrrev_b32 v%d, 5, v%d" % (T + 2, L))
        a("s_lshl_b32 s%d, s%d, 1" % (t0, t1))
        a("v_add_u32 v%d, s%d, v%d" % (T + 2, t0, T + 2))
        a("v_and_b32 v%d, 31, v%d" % (T + 3, L))
        a("v_mul_u32_u24 v%d, 7168, v%d" % (V_P1, T + 2))
        a("v_lshl_add_u32 v%d, v%d, 7, v%d" % (V_P1, T + 3, V_P1))
        a("s_mul_i32 s%d, s%d, 1792" % (t0, sQ))
        a("v_add_u32 v%d, s%d, v%d" % (V_P1, t0, V_P1))
        a("v_mul_u32_u24 v%d, 6144, v%d" % (V_P0, T + 2))
        a("v_lshrrev_b32 v%d, 2, v%d" % (T + 4, T + 3))
        a("v_lshl_add_u32 v%d, v%d, 11, v%d" % (V_P0, T + 4, V_P0))
        a("v_and_b32 v%d, 3, v%d" % (T + 4, T + 3))
        a("v_lshl_add_u32 v%d, v%d, 7, v%d" % (V_P0, T + 4, V_P0))
        a("s_lshl_b32 s%d, s%d, 9" % (t0, sQ))
        a("v_add_u32 v%d, s%d, v%d" % (V_P0, t0, V_P0))
        a("v_cmp_le_u32 vcc, 12, v%d" % (T + 3))
        a("s_and_b32 s%d, s2, 1" % t0)
        a("s_lshl_b32 s%d, s%d, 4" % (t0, t0))
        a("v_cndmask_b32 v%d, v%d, v%d, vcc" % (V_P0, V_P0, T + 6))
        a("v_cmp_le_u32 vcc, 14, v%d" % (T + 3))
        a("s_add_u32 s%d, s%d, s%d" % (t0, t0, t1))
        a("s_lshl_b32 s%d, s%d, 17" % (t0, t0))
        a("v_cndmask_b32 v%d, v%d, v%d, vcc" % (V_P1, V_P1, T + 6))
        a("s_add_u32 s%d, s%d, 0x%x" % (t0, t0, WS_XN))
        a("v_lshlrev_b32 v%d, 7, v%d" % (V_P2, L))
        a("v_add_u32 v%d, s%d, v%d" % (V_P2, t0, V_P2))
        a("v_cmp_le_u32 vcc, 32, v%d" % L)
        a("s_lshl_b32 s%d, s%d, 12" % (t0, sCLS))
        a("s_nop 0")
        a("v_cndmask_b32 v%d, v%d, v%d, vcc" % (V_P2, V_P2, T + 6))
    PFM = cfg.get("f_pf", 0)
    PF0 = cfg.get("f_pf0", 8)
    if PFM & 2:
        a("buffer_load_dword a%d, v%d, %s, s%d offen" % (A_PD, V_P2, s4(R_WS), t0))
    def touch(n):
        lab = a.newlabel("F_pf")
        a("s_cmp_lg_u32 s%d, %d" % (sCLS, n & 7))
        a("s_cbranch_scc1 %s" % lab)
        if PFM & 1:
            a("s_mov_b32 s%d, %d" % (t0, n * 32 * 6144))
            a("s_mov_b32 s%d, %d" % (t1, n * 32 * 7168))
            a("buffer_load_dword a%d, v%d, %s, s%d offen" % (A_PD, V_P0, s4(R_WQ), t0))
            a("buffer_load_dword a%d, v%d, %s, s%d offen" % (A_PD - 1, V_P1, s4(R_W1), t1))
        if PFM & 2:
            a("s_mov_b32 s%d, %d" % (t0, n * 4096))
            a("buffer_load_dword a%d, v%d, %s, s%d offen" % (A_PD, V_P2, s4(R_WS), t0))
        a.label(lab)
    if PFM & 4:
        a("s_and_b32 s%d, s2, 1" % t0)
        a("v_lshrrev_b32 v%d, 5, v%d" % (T + 2, L))
        a("v_cmp_ne_u32 vcc, s%d, v%d" % (t0, T + 2))
        a("s_nop 1")
        a("v_cndmask_b32 v%d, v%d, v%d, vcc" % (V_P0, V_P0, T + 6))
        a("v_cndmask_b32 v%d, v%d, v%d, vcc" % (V_P1, V_P1, T + 6))
    PW = cfg.get("f_pw", 2); PW0 = cfg.get("f_pw0", 12)
    V_PW = 231
    a("v_lshlrev_b32 v%d, 7, v%d" % (V_PW, L))
    a("v_cmp_le_u32 vcc, 56, v%d" % L)
    a("s_nop 1")
    a("v_cndmask_b32 v%d, v%d, v%d, vcc" % (V_PW, V_PW, T + 6))
    ASY = cfg.get("f_asy", 1)
    if ASY:
        if cfg.get("f_xcc", 0):
            a("s_getreg_b32 s%d, hwreg(HW_REG_XCC_ID)" % t0)
            a("s_and_b32 s%d, s%d, 1" % (t0, t0))
        else: a("s_bfe_u32 s%d, s2, 0x%x" % (t0, 0x10001 if SWP else 0x10000))
        if ASY == 2: a("s_xor_b32 s%d, s%d, 1" % (t0, t0))
        a("s_lshl_b32 s%d, s%d, 4" % (t0, t0))
        a("s_or_b32 s%d, s%d, s%d" % (sCLS, sCLS, t0))
    HOT = cfg.get("f_hot", 0); LO = cfg.get("f_lo", 64)
    if HOT:
        a("s_bfe_u32 s%d, s2, 0x30003" % sCLS)
        a("s_and_b32 s%d, s%d, 14" % (t0, sJ))
        a("s_cmp_eq_u32 s%d, 6" % t0)
        a("s_cselect_b32 s%d, 16, s%d" % (sCLS, sCLS))
        if LO == 0:
            a("s_bitcmp1_b32 s2, 0")
            a("s_cselect_b32 s%d, 16, s%d" % (sCLS, sCLS))
        a("v_lshlrev_b32 v%d, 7, v%d" % (V_PW, L))
    def toucht(cls):
        lab = a.newlabel("F_pw"); l2 = a.newlabel("F_po")
        def ex(n):
            m_ = (1 << n) - 1
            a("s_mov_b32 exec_lo, 0x%x" % (m_ & 0xffffffff)); a("s_mov_b32 exec_hi, 0x%x" % (m_ >> 32))
        a("s_cmp_lg_u32 s%d, %d" % (sCLS, cls))
        a("s_cbranch_scc1 %s" % lab)
        a("s_add_u32 s%d, s%d, 8" % (t0, sJ))
        a("s_lshr_b32 s%d, s%d, 4" % (t0, t0))
        a("s_lshl_b32 s%d, s%d, 1" % (t0, t0))
        a("s_sub_u32 s%d, s%d, s%d" % (t0, sJ, t0))
        a("s_lshl_b32 s%d, s%d, 2" % (t0, t0))
        a("s_and_b32 s%d, s%d, 3" % (t1, sI))
        a("s_add_u32 s%d, s%d, s%d" % (t0, t0, t1))
        a("s_lshl_b32 s%d, s%d, 2" % (t0, t0))
        a("s_add_u32 s%d, s%d, s%d" % (t0, t0, sW))
        a("s_lshl_b32 s%d, s%d, 14" % (t1, t0))
        a("s_bitcmp1_b32 s2, 0")
        a("s_cbranch_scc1 %s" % l2)
        a("buffer_load_dword a%d, v%d, %s, s%d offen" % (A_PD, V_PW, s4(R_W2), t1))
        if LO < 64:
            a("s_add_u32 s%d, s%d, 8192" % (t1, t1))
            ex(64 - LO)
            a("buffer_load_dword a%d, v%d, %s, s%d offen" % (A_PD, V_PW, s4(R_W2), t1))
        a("s_mul_i32 s%d, s%d, %d" % (t1, t0, 37 * 128))
        ex(37)
        a("buffer_load_dword a%d, v%d, %s, s%d offen" % (A_PD - 1, V_PW, s4(R_WO), t1))
        a("s_mov_b64 exec, -1")
        a("s_branch %s" % lab)
        a.label(l2)
        if LO:
            a("s_add_u32 s%d, s%d, %d" % (t1, t1, (128 - LO) * 128))
            ex(LO)
            a("buffer_load_dword a%d, v%d, %s, s%d offen" % (A_PD, V_PW, s4(R_W2), t1))
            a("s_mov_b64 exec, -1")
        a.label(lab)
    def touchw(cls, flip=0):
        lab = a.newlabel("F_pw")
        if cls is not None:
            a("s_cmp_lg_u32 s%d, %d" % (sCLS, cls))
            a("s_cbranch_scc1 %s" % lab)
        if flip:
            a("s_xor_b32 s%d, s2, %d" % (t0, 2 if SWP else 1))
            a("s_lshl_b32 s%d, s%d, 2" % (t0, t0))
        else: a("s_lshl_b32 s%d, s2, 2" % t0)
        a("s_add_u32 s%d, s%d, s%d" % (t0, t0, sW))
        a("s_mul_i32 s%d, s%d, 7168" % (t1, t0))
        a("buffer_load_dword a%d, v%d, %s, s%d offen" % (A_PD, V_PW, s4(R_W2), t1))
        a("s_lshl_b32 s%d, s%d, 11" % (t1, t0))
        a("s_mov_b64 exec, 0xffff")
        a("buffer_load_dword a%d, v%d, %s, s%d offen" % (A_PD - 1, V_PW, s4(R_WO), t1))
        a("s_mov_b64 exec, -1")
        a.label(lab)
    def touchp(k):
        a("s_lshl_b32 s%d, s2, 2" % t0)
        a("s_add_u32 s%d, s%d, s%d" % (t0, t0, sW))
        if k < 2:
            a("s_mul_i32 s%d, s%d, 7168" % (t1, t0))
            a("s_mov_b64 exec, 0xfffffff")
            a.vmem("buffer_load_dword a%d, v%d, %s, s%d offen offset:%d" % (A_PD, V_PW, s4(R_W2), t1, k * 3584), "T")
        else:
            a("s_lshl_b32 s%d, s%d, 11" % (t1, t0))
            a("s_mov_b64 exec, 0xffff")
            a.vmem("buffer_load_dword a%d, v%d, %s, s%d offen" % (A_PD, V_PW, s4(R_WO), t1), "T")
        a("s_mov_b64 exec, -1")
    def touchx(k):
        a("s_lshr_b32 s%d, s2, 3" % t0)
        a("s_lshl_b32 s%d, s%d, 2" % (t0, t0))
        a("s_add_u32 s%d, s%d, s%d" % (t0, t0, sW))
        a("s_lshl_b32 s%d, s%d, 7" % (t1, sQ))
        a("s_add_u32 s%d, s%d, s%d" % (t0, t0, t1))
        if k < 2:
            a("s_mul_i32 s%d, s%d, 14336" % (t1, t0))
            if k: a("s_add_u32 s%d, s%d, 7168" % (t1, t1))
            a("buffer_load_dword a%d, v%d, %s, s%d offen" % (A_PD - k, V_PW, s4(R_W2), t1))
        else:
            a("s_lshl_b32 s%d, s%d, 12" % (t1, t0))
            a("s_mov_b32 exec_hi, 0")
            a("buffer_load_dword a%d, v%d, %s, s%d offen" % (A_PD, V_PW, s4(R_WO), t1))
            a("s_mov_b32 exec_hi, -1")
    pfq = list(range(PF0, KS)) if PFM else []
    PFA = cfg.get("f_pfa", 30)
    a("v_lshrrev_b32 v%d, 5, v%d" % (T + 2, L))
    a("v_mul_u32_u24 v%d, %d, v%d" % (T + 2, REG, T + 2))
    a("v_and_b32 v%d, 3, v%d" % (T + 3, L))
    a("v_lshl_add_u32 v%d, v%d, 3, v%d" % (T + 2, T + 3, T + 2))
    a("v_bfe_u32 v%d, v%d, 2, 2" % (T + 3, L))
    a("v_bfe_u32 v%d, v%d, 4, 1" % (T + 4, L))
    a("v_mul_u32_u24 v%d, 192, v%d" % (V_RD, T + 3))
    a("v_add_u32 v%d, v%d, v%d" % (V_RD, V_RD, T + 2))
    a("v_mul_u32_u24 v%d, %d, v%d" % (T + 5, 8 * 192 + 32, T + 4))
    a("v_add_u32 v%d, v%d, v%d" % (V_RD, V_RD, T + 5))
    a("v_xor_b32 v%d, 32, v%d" % (V_RD + 1, V_RD))
    a("v_lshl_add_u32 v%d, v%d, 5, v%d" % (V_RD + 2, T + 3, T + 2))
    a("v_lshl_add_u32 v%d, v%d, 7, v%d" % (V_RD + 2, T + 4, V_RD + 2))
    for st_ in (1, 2):
        for x in range(3):
            a("v_add_u32 v%d, %d, v%d" % (V_RD + 3 * st_ + x, st_ * 2 * STAGE, V_RD + x))
    a("s_lshl_b32 s%d, s%d, 7" % (sKV, sJ))
    a("s_lshl_b32 s%d, s%d, 4" % (t0, sI))
    a("s_add_u32 s%d, s%d, s%d" % (sKV, sKV, t0))
    a("s_lshl_b32 s%d, s%d, 2" % (t0, sW))
    a("s_add_u32 s%d, s%d, s%d" % (sKV, sKV, t0))
    a("s_lshl_b32 s%d, s%d, 10" % (sKV, sKV))
    a("s_add_u32 s%d, s%d, 0x%x" % (sKV2, sKV, WS_V))
    a("s_add_u32 s%d, s%d, 0x%x" % (sKV, sKV, WS_K))
    a("s_sub_u32 s%d, s%d, 16384" % (sKP, sKV))
    a("s_sub_u32 s%d, s%d, 16384" % (sKP2, sKV2))
    a("s_cmp_eq_u32 s%d, 0" % sI)
    a("s_cselect_b32 s%d, 0x40000000, s%d" % (sKP, sKP))
    a("s_cselect_b32 s%d, 0x40000000, s%d" % (sKP2, sKP2))
    a("s_lshl_b32 s%d, s2, 2" % sFO)
    a("s_add_u32 s%d, s%d, s%d" % (sFO, sFO, sW))
    a("s_lshl_b32 s%d, s%d, 7" % (sFO, sFO))
    a("s_add_u32 s%d, s%d, 0x%x" % (sFO, sFO, WS_FL))
    a("s_add_u32 s%d, s%d, 1" % (t0, sI))
    a("s_and_b32 s%d, s%d, 3" % (t1, t0))
    a("s_lshl_b32 s%d, s%d, 3" % (t1, t1))
    a("s_lshr_b32 s%d, s%d, 2" % (t0, t0))
    a("s_or_b32 s%d, s%d, s%d" % (t1, t1, t0))
    a("s_and_b32 s%d, s2, 0xe6" % t0)
    a("s_or_b32 s%d, s%d, s%d" % (t1, t1, t0))
    a("s_lshl_b32 s%d, s%d, 2" % (t1, t1))
    a("s_add_u32 s%d, s%d, s%d" % (t1, t1, sW))
    a("s_lshl_b32 s%d, s%d, 7" % (t1, t1))
    a("s_add_u32 s%d, s%d, 0x%x" % (sFK, t1, WS_FL + 12))
    a("s_cmp_eq_u32 s%d, 7" % sI)
    a("s_cselect_b32 s%d, 0x40000000, s%d" % (sFK, sFK))
    if cfg.get("f_k7", 1):
        a("s_cselect_b32 s%d, 0x40000000, s%d" % (sKV, sKV))
        a("s_cselect_b32 s%d, 0x40000000, s%d" % (sKV2, sKV2))
    a("v_cmp_ne_u32 vcc, 0, v%d" % L)
    a("v_mov_b32 v%d, 1" % V_ONE)
    a("v_and_b32 v%d, 31, v%d" % (V_PL, L))
    a("v_cndmask_b32 v%d, 0, v%d, vcc" % (V_FL0, T + 6))
    a("v_lshlrev_b32 v%d, 2, v%d" % (V_PL, V_PL))
    a("s_and_b32 s%d, s2, 31" % t0)
    a("s_lshl_b32 s%d, s%d, 2" % (t0, t0))
    a("s_add_u32 s%d, s%d, s%d" % (t0, t0, sW))
    a("s_lshl_b32 s%d, s%d, 7" % (t0, t0))
    a("s_lshl_b32 s%d, s%d, 2" % (t1, sN))
    a("s_add_u32 s%d, s%d, s%d" % (t0, t0, t1))
    a("s_add_u32 s%d, s%d, 0x%x" % (t0, t0, WS_FL))
    a("v_lshlrev_b32 v%d, 14, v%d" % (V_FG, L))
    a("v_add_u32 v%d, s%d, v%d" % (V_FG, t0, V_FG))
    a("v_cmp_le_u32 vcc, 8, v%d" % L)
    a("s_lshl_b32 s%d, s%d, 12" % (t0, sW))
    a("s_add_u32 s%d, s%d, %d" % (t0, t0, KVB))
    a("v_cndmask_b32 v%d, v%d, v%d, vcc" % (V_FG, V_FG, T + 6))
    a("v_add_u32 v%d, s%d, v%d" % (V_KVW, t0, V_L16))
    a("s_lshl_b32 s%d, s%d, 2" % (t0, sI))
    a("s_add_u32 s%d, s%d, s%d" % (t0, t0, sW))
    a("s_lshl_b32 s%d, s%d, 17" % (sXO, t0))
    a("s_mul_i32 s%d, s%d, 144" % (t0, t0))
    a("s_mul_i32 s%d, s%d, 36" % (t1, sQ))
    a("s_add_u32 s%d, s%d, s%d" % (t0, t0, t1))
    a("s_lshl_b32 s%d, s%d, 12" % (t0, t0))
    a("s_add_u32 s%d, s%d, 0x%x" % (t0, t0, WS_A2))
    a("s_add_u32 s%d, s%d, %d" % (sAE, t0, 28 * 4096))
    a("s_lshl_b32 s%d, s%d, 12" % (t1, sN))
    a("s_add_u32 s%d, s%d, s%d" % (sO, sAE, t1))
    a("s_mul_i32 s%d, s%d, 7" % (t1, sN))
    a("s_add_u32 s%d, s%d, s%d" % (t1, t1, sJ1))
    a("s_lshl_b32 s%d, s%d, 11" % (t1, t1))
    a("s_add_u32 s%d, s%d, s%d" % (sH, t0, t1))
    a("s_add_u32 s%d, s%d, 4096" % (sH + 1, sH))
    a("s_add_u32 s%d, s%d, 8192" % (sH + 2, sH))
    a("s_mul_i32 s%d, s%d, %d" % (sH + 3, sJ1, -4096 + 8 - 3 * 4096))
    a("s_add_u32 s%d, s%d, %d" % (sH + 3, sH + 3, 3 * 4096))
    a("s_add_u32 s%d, s%d, s%d" % (sH + 3, sH + 3, sH))
    a("s_lshl_b32 s%d, s%d, 8" % (t0, sN))
    a("s_add_u32 s%d, s%d, s%d" % (sXO, sXO, t0))
    a("s_lshl_b32 s%d, s%d, 6" % (t0, sQ))
    a("s_add_u32 s%d, s%d, s%d" % (sXO, sXO, t0))
    a("s_mov_b32 s%d, 0x%x" % (sSC, f2u(QSCALE)))
    def spin(mask, skip_if_i0=False):
        l0 = a.newlabel("F_sp"); l1 = a.newlabel("F_ok")
        if skip_if_i0:
            a("s_cmp_eq_u32 s%d, 0" % sI)
            a("s_cbranch_scc1 %s" % l1)
        a("s_mov_b32 s%d, 0x%x" % (sSP, SPIN))
        a.label(l0)
        a("v_cmp_ne_u32 vcc, 0, v%d" % V_POLL)
        a("s_and_b32 s%d, vcc_lo, 0x%x" % (t0, mask))
        a("s_cmp_eq_u32 s%d, 0x%x" % (t0, mask))
        a("s_cbranch_scc1 %s" % l1)
        a("buffer_load_dword v%d, v%d, %s, s%d offen sc1" % (V_POLL, V_PL, s4(R_WS), sFO))
        a("s_sub_u32 s%d, s%d, 1" % (sSP, sSP))
        a("s_waitcnt vmcnt(0)")
        a("s_cbranch_scc0 %s" % l0)
        a.label(l1)
    def poll_issue(tag):
        a.vmem("buffer_load_dword v%d, v%d, %s, s%d offen sc1" % (V_POLL, V_PL, s4(R_WS), sFO), tag)

    if FLN:
        while bops: issue1(bops.pop(0))
        if PW & 8: touchw(None)
        nb2 = cfg.get("f_lnb2", 3)
        b2 = [o for o in order if o[0] == "B" and o[1] < nb + nb2]
        for o in b2: order.remove(o)
        if BO == 1: b2 = [o for o in b2 if o[2] >= 3] + [o for o in b2 if o[2] < 3]
        if BO == 2: b2 = [o for o in b2 if o[2] < 3] + [o for o in b2 if o[2] >= 3]
        for _ in range(cfg.get("f_lnb2e", 0)): issue1(b2.pop(0))
        if PW & 8: a.vm += ["T", "T"]
        a.wait(vm="XS")
        stampr("lnd")
        a("s_barrier")
        lab = a.newlabel("F_ln"); l2 = a.newlabel("F_lp"); l3 = a.newlabel("F_lq"); l4 = a.newlabel("F_la")
        a("s_lshl_b32 s%d, s%d, 5" % (t0, sI))
        a("v_mov_b32 v1, s%d" % t0)
        a("s_cmp_lg_u32 s%d, 0" % sW)
        a("s_cbranch_scc1 %s" % lab)
        a("v_add_u32 v82, 1, v81")
        a("s_lshl_b64 exec, 1, s%d" % sJ)
        a("buffer_store_dword v82, v80, %s, 0 offen sc1" % s4(R_WS))
        a("s_mov_b64 exec, -1")
        a.label(lab)
        while b2: issue1(b2.pop(0))
        if PW & 16: touchw(None)
        a("s_cmp_lg_u32 s%d, 1" % sW)
        a("s_cbranch_scc1 %s" % l4)
        a("s_mov_b64 exec, 1")
        a("global_atomic_add v1, v%d, s[100:101] sc1" % V_ONE)
        a("s_mov_b64 exec, -1")
        a.label(l4)
        PALL = cfg.get("f_pall", 0)
        if not PALL:
            a("s_cmp_lg_u32 s%d, 0" % sW)
            a("s_cbranch_scc1 %s" % l3)
        else:
            a("s_lshl_b32 s%d, s%d, 3" % (t1, sW))
            a("s_lshl_b32 s%d, 0xff, s%d" % (t1, t1))
        a("s_mov_b32 s%d, 0x%x" % (sSP, SPIN))
        a.label(l2)
        a("buffer_load_dword v82, v80, %s, 0 offen sc1" % s4(R_WS))
        a("s_waitcnt vmcnt(0)")
        a("v_cmp_ne_u32 vcc, v81, v82")
        if PALL:
            a("s_and_b32 s%d, vcc_lo, s%d" % (t0, t1))
            a("s_cmp_eq_u32 s%d, s%d" % (t0, t1))
        else: a("s_cmp_eq_u32 vcc_lo, -1")
        a("s_cbranch_scc1 %s" % l3)
        a("s_sub_u32 s%d, s%d, 1" % (sSP, sSP))
        a("s_cbranch_scc1 %s" % l3)
        a("s_and_b32 s%d, s%d, 7" % (t0, sSP))
        a("s_cbranch_scc1 %s" % l2)
        a("global_load_dword v2, v1, s[100:101] sc1")
        a("s_waitcnt vmcnt(0)")
        a("v_readfirstlane_b32 s%d, v2" % t0)
        a("s_cmp_lt_u32 s%d, 32" % t0)
        a("s_cbranch_scc1 %s" % l2)
        a.label(l3)
        if not PALL: a("s_barrier")
        stampr("lnp")
        for _ in range(8): issue1(order.pop(0))
        order[:0] = bops
    gi = []
    def grp(units, s0, s1, tiles, C):
        s = s0
        while s < s1:
            c = min(C, s1 - s)
            for t in tiles:
                g0 = len(units); gn = gi[-1][2] + 1 if gi else 0
                for k in range(c):
                    units.append((s + k, t)); gi.append((g0, c, gn))
            s += c
    units = []
    grp(units, 0, C1S, range(NT), 2)
    C1E = cfg.get("f_c1e", S1)
    grp(units, C1S, C1E, range(NT), C1)
    grp(units, C1E, S1, range(NT), 2)
    grp(units, S1, KS, (2, 3, 4, 5), C1K)
    UKV = len(units)
    grp(units, S1, KS, (6, 7, 8, 9), C1T)
    UH01 = len(units)
    grp(units, S1, KS, (10, 11, 12, 0, 1), C1T)
    NU = len(units)
    last_unit_of_stage = {}
    last_unit_of_step = {}
    for u, (s, t) in enumerate(units):
        last_unit_of_stage[s // 2] = u; last_unit_of_step[s] = u
    stt = dict(ready=-1, free=set(), waited=-1, issued=-1)
    def barrier():
        a("s_barrier")
        for g, lu in last_unit_of_stage.items():
            if lu <= stt["waited"]: stt["free"].add(g)
    def can1(op):
        if op[0] == "B": return op[1] < NS or (op[1] - NS) in stt["free"]
        return op[1] < RA or last_unit_of_step[op[1] - RA] <= stt["issued"]
    def flush1(tag):
        while any(o[:2] == tag for o in order):
            op = order.pop(0)
            assert can1(op), (op, stt)
            if cfg.get("verbose"): print("late flush", op, file=sys.stderr)
            issue1(op)
    def bread1(u, j2):
        s, t = units[u]
        slot = slot1(s // 2); st_ = slot // 2
        off = (slot % 2) * STAGE + (s % 2) * 2 * REG
        if t < 12: off += j2 * 768 + (t // 6) * 3072 + ((t // 2) % 3) * 64; vr = V_RD + 3 * st_ + (t % 2)
        else: off += 6144 + j2 * 256; vr = V_RD + 3 * st_ + 2
        a.lds("ds_read_b64_tr_b16 %s, v%d offset:%d" % (r2("a", BR + (u % RB) * 4 + j2 * 2), vr, off), ("b", u))
    def need1(u):
        g = units[u][0] // 2
        if g > stt["ready"]:
            flush1(("B", g)); a.wait(vm=("B", g)); barrier(); stt["ready"] = g
    def pack(c0, c1, relu=False):
        ops = []
        for hh, c in enumerate((c0, c1)):
            if c is None: continue
            for e2 in range(2):
                ops.append("v_cvt_pk_bf16_f32 v%d, v%d, v%d" % (c0 + 2 * hh + e2, c + 2 * e2, c + 2 * e2 + 1))
            if relu:
                for e2 in range(2):
                    ops.append("v_pk_max_i16 v%d, v%d, 0" % (c0 + 2 * hh + e2, c0 + 2 * hh + e2))
        return ops
    HF = ["sc1", "", "nt", "sc0"][cfg.get("f_hf", 0)]
    def hstore(p, mt):
        if p < 3: a.vmem("buffer_store_dwordx4 %s, v%d, %s, s%d offen offset:%d %s" % (r4("v", acc(mt, 6 + 2 * p)), V_L16, s4(R_WS), sH + p, mt * 1024, HF), "H")
        else: a.vmem("buffer_store_dwordx2 %s, v%d, %s, s%d offen offset:%d %s" % (r2("v", acc(mt, 12)), V_L16, s4(R_WS), sH + 3, mt * 1024, HF), "H")
    need1(0)
    stampr("bar0")
    for u in range(DB):
        need1(u)
        bread1(u, 0); bread1(u, 1)
    kvq = [(acc(mt, 2), acc(mt, 3), sKV, mt * 1024, 16384 + mt * 1024) for mt in range(MT)] + \
          [(acc(2 * b, 4 + dt), acc(2 * b + 1, 4 + dt), sKV2, (2 * b + dt) * 1024, 49152 + (2 * b + dt) * 1024) for b in range(2) for dt in range(2)]
    NREST = NU - UKV
    UFLAG = UKV + cfg.get("f_uf", 28)
    UPOLL = UFLAG + cfg.get("f_up", 14)
    UCHK = min(UPOLL + cfg.get("f_uc", 8), NU - 1)
    UPW = UCHK + cfg.get("f_uw", 14)
    V2_DMA = 209; V_XO = 211; V2_RD = 232; V2_B = 231
    bias = [232, 236, 240, 244]; VONES = 248; VM = 252
    sB2 = sBQ; sBO = sBV
    class Rec:
        def __init__(self): self.l = []
        def __call__(self, x): self.l.append(x)
    su = Rec(); TT = VM
    HO = 0
    su("v_lshrrev_b32 v%d, 4, v%d" % (TT, L))
    su("v_lshlrev_b32 v%d, 11, v%d" % (V2_DMA, TT))
    su("v_lshlrev_b32 v%d, 1, v%d" % (TT, TT))
    su("v_and_b32 v%d, 15, v%d" % (TT + 1, L))
    su("v_xor_b32 v%d, v%d, v%d" % (TT, TT, TT + 1))
    su("v_lshl_add_u32 v%d, v%d, 4, v%d" % (V2_DMA, TT, V2_DMA))
    su("s_and_b32 s%d, s%d, 1" % (t1, sW))
    su("s_lshl_b32 s%d, s%d, 7" % (t1, t1))
    su("v_xor_b32 v%d, s%d, v%d" % (V2_DMA, t1, V2_DMA))
    su("v_add_u32 v%d, %d, v%d" % (V2_DMA + 1, 32768 - 1024, V2_DMA))
    su("v_lshrrev_b32 v%d, 4, v%d" % (TT, L))
    su("v_lshlrev_b32 v%d, 2, v%d" % (TT, TT))
    for e in range(4):
        su("v_add_u32 v%d, %d, v%d" % (TT + 2, e, TT))
        su("v_cmp_le_u32 s[%d:%d], v%d, v%d" % (sMK + 2 * e, sMK + 2 * e + 1, TT + 2, TT + 1))
    su("s_lshl_b32 s%d, s%d, 13" % (t2, sW))
    su("s_lshl_b32 s%d, s%d, 8" % (t1, sN))
    su("s_add_u32 s%d, s%d, s%d" % (t2, t2, t1))
    su("s_lshl_b32 s%d, s%d, 19" % (sBO, sQ))
    su("s_add_u32 s%d, s%d, s%d" % (sBO, sBO, t2))
    su("s_mul_i32 s%d, s%d, %d" % (sB0, sQ, 896 * 2048))
    su("s_add_u32 s%d, s%d, s%d" % (sB0, sB0, t2))
    su("s_add_u32 s%d, s%d, %d" % (sBE, sB0, 896 * 2048))
    su("s_mul_i32 s%d, s%d, 7" % (t1, sN))
    su("s_add_u32 s%d, s%d, s%d" % (t1, t1, sJ1))
    su("s_lshl_b32 s%d, s%d, 15" % (t1, t1))
    su("s_add_u32 s%d, s%d, s%d" % (sB2, sB0, t1))
    LIN = cfg.get("f_lin", 1)
    if LIN:
        su("s_sub_u32 s%d, s%d, %d" % (sA, sAE, 28 * 4096))
        su("s_mov_b32 s%d, s%d" % (sAE, sH))
        su("s_add_u32 s%d, s%d, %d" % (sA0, sH, 3 * 4096))
        su("s_mov_b32 s%d, s%d" % (sBW, sB0))
        su("s_mov_b32 s%d, s%d" % (sBE, sB2))
        su("s_add_u32 s%d, s%d, %d" % (sB0, sB2, 3 * 65536))
    else:
        su("s_add_u32 s%d, s%d, %d" % (sA, sH, 3 * 4096))
        su("s_sub_u32 s%d, s%d, %d" % (sA0, sAE, 28 * 4096))
    su("s_cmp_eq_u32 s%d, s%d\ns_cselect_b32 s%d, s%d, s%d" % (sA, sAE, sA, sA0, sA))
    su0 = su.l; su = Rec()
    KS2 = 36
    LOC = [(0, 1), (1, 1), (2, 1), (0, 3), (1, 3), (2, 3), (0, 5), (1, 5), (2, 5), (3, 1), (3, 3), (3, 5), (4, 1), (4, 3), (4, 5)]
    NSL = len(LOC)
    def dma2_txt(p):
        sb, so = (R_W2, sB2) if p < 28 else (R_WO, sBO)
        sl, pos = LOC[p % NSL]
        ops = [(0, "s_add_u32 m0, s%d, %d" % (sLB, sl * STAGE + pos * 1024)),
               (1, "buffer_load_dwordx4 v%d, %s, s%d offen lds" % (V2_DMA, s4(sb), so)),
               (1, "buffer_load_dwordx4 v%d, %s, s%d offen offset:1024 lds" % (V2_DMA + 1, s4(sb), so))]
        if p == 2: ops.append((0, "s_mov_b32 s%d, s%d" % (sB2, sBW)))
        elif p != 27 and p != 35: ops.append((0, "s_add_u32 s%d, s%d, 65536" % (so, so)))
        if 2 <= p < 27: ops.append((0, "s_cmp_eq_u32 s%d, s%d\ns_cselect_b32 s%d, s%d, s%d" % (sB2, sBE, sB2, sB0, sB2)))
        return ops
    def dma2_ops(p):
        return [(k, (lambda x=x: a.vmem(x, ("B2", p))) if k else (lambda x=x: a(x))) for k, x in dma2_txt(p)]
    def hole_ops(ps):
        o = []
        for p in ps:
            for k, x in dma2_txt(p):
                if k: o += [("m", lambda x=x, p=p: a.vmem(x, ("B2", p)))] + [None] * cfg.get("f_hosp", 3)
                else: o += [x] + ([None] if "m0" in x else [])
        return o
    su("s_lshl_b32 s%d, s%d, 2" % (t1, sI))
    su("s_add_u32 s%d, s%d, s%d" % (t1, t1, sW))
    for gq in range(4):
        su("s_cmp_lt_u32 s%d, %d\ns_cselect_b32 s%d, 0x%x, 0" % (t1, 4 - gq, t2, f2u(-1e30)))
        for e in range(4): su("v_mov_b32 v%d, s%d" % (bias[gq] + e, t2))
    for e in range(4): su("v_mov_b32 v%d, 0x3f803f80" % (VONES + e))
    su("v_lshrrev_b32 v%d, 2, v%d" % (TT, L))
    su("v_and_b32 v%d, 7, v%d" % (TT + 2, TT))
    su("v_and_b32 v%d, 3, v%d" % (TT, TT))
    su("v_lshlrev_b32 v%d, 8, v%d" % (TT, TT))
    su("v_lshrrev_b32 v%d, 4, v%d" % (TT + 1, L))
    su("v_mul_u32_u24 v%d, %d, v%d" % (TT + 1, REG, TT + 1))
    su("v_add_u32 v%d, v%d, v%d" % (TT, TT, TT + 1))
    su("v_and_b32 v%d, 3, v%d" % (TT + 1, L))
    su("v_lshl_add_u32 v%d, v%d, 3, v%d" % (TT, TT + 1, TT))
    su("v_lshl_add_u32 v%d, v%d, 5, v%d" % (V2_B, TT + 2, TT))
    su("s_lshl_b32 s%d, s%d, 6" % (t1, sQ))
    su("s_xor_b32 s%d, s%d, 192" % (t1, t1))
    su("v_xor_b32 v%d, s%d, v%d" % (V2_B, t1, V2_B))
    su("v_mov_b32 v%d, 0xffff" % TT)
    su("v_mov_b32 v%d, 0xffff0000" % (TT + 1))
    su("v_cndmask_b32 v%d, 0, v%d, s[%d:%d]" % (VM + 2, TT, sMK, sMK + 1))
    su("v_cndmask_b32 v%d, 0, v%d, s[%d:%d]" % (VM + 3, TT, sMK + 4, sMK + 5))
    su("v_cndmask_b32 v%d, 0, v%d, s[%d:%d]" % (TT, TT + 1, sMK + 2, sMK + 3))
    su("v_cndmask_b32 v%d, 0, v%d, s[%d:%d]" % (TT + 1, TT + 1, sMK + 6, sMK + 7))
    su("v_or_b32 v%d, v%d, v%d" % (VM + 2, VM + 2, TT))
    su("v_or_b32 v%d, v%d, v%d" % (VM + 3, VM + 3, TT + 1))
    SPF = cfg.get("f_spf", 0)
    if SPF:
        su("s_lshr_b32 s%d, s2, 3" % t1)
        su("s_lshl_b32 s%d, s%d, 1" % (t1, t1))
        su("s_and_b32 s%d, s2, 1" % t2)
        su("s_add_u32 s%d, s%d, s%d" % (t1, t1, t2))
        su("s_lshl_b32 s%d, s%d, 2" % (t1, t1))
        su("s_add_u32 s%d, s%d, s%d" % (t1, t1, sW))
        su("s_lshl_b32 s%d, s%d, 7" % (t1, t1))
        su("s_mul_i32 s%d, s%d, %d" % (t2, sQ, 14336 * 128))
        su("s_add_u32 s%d, s%d, s%d" % (t2, t2, t1))
        su("s_add_u32 s%d, s%d, s%d\ns_addc_u32 s%d, s%d, 0" % (P_W2, P_W2, t2, P_W2 + 1, P_W2 + 1))
        su("s_add_u32 s%d, s%d, %d\ns_addc_u32 s%d, s%d, 0" % (P_WQ, P_W2, 28 * 32768, P_WQ + 1, P_W2 + 1))
        su("s_lshl_b32 s%d, s%d, 19" % (t2, sQ))
        su("s_add_u32 s%d, s%d, s%d" % (t2, t2, t1))
        su("s_add_u32 s%d, s%d, s%d\ns_addc_u32 s%d, s%d, 0" % (P_WO, P_WO, t2, P_WO + 1, P_WO + 1))
    V_T128 = V_XO
    TCN = cfg.get("f_tc", 0)
    su("v_lshlrev_b32 v%d, %d, v%d" % (V_T128, 15 if TCN else 7, L))
    if TCN:
        su("s_lshr_b32 s%d, s2, 3" % t1)
        su("s_lshl_b32 s%d, s%d, 1" % (t1, t1))
        su("s_and_b32 s%d, s2, 1" % t2)
        su("s_add_u32 s%d, s%d, s%d" % (t1, t1, t2))
        su("s_lshl_b32 s%d, s%d, 2" % (t1, t1))
        su("s_add_u32 s%d, s%d, s%d" % (t1, t1, sW))
        su("s_lshl_b32 s%d, s%d, 7" % (t1, t1))
        su("s_mul_i32 s%d, s%d, %d" % (sCLS, sQ, 14336 * 128))
        su("s_add_u32 s%d, s%d, s%d" % (sCLS, sCLS, t1))
        su("s_lshl_b32 s%d, s%d, 19" % (t3, sQ))
        su("s_add_u32 s%d, s%d, s%d" % (t3, t3, t1))
    def selftouch(so, half):
        if half: a("s_mov_b32 exec_hi, 0")
        a.vmem("buffer_load_dword a%d, v%d, %s, s%d offen sc1" % (A_PD, V_T128, s4(R_WS), so), "T")
        if half: a("s_mov_b32 exec_hi, -1")
    HK = cfg.get("f_hk", 0)
    if HK:
        assert RA == 12 and D1 == 8 and BR + RB * 4 <= 232 and UPW < NU
        kreg = lambda kt: 128 + 4 * kt if kt < 16 else 232 + 4 * (kt - 16)
        VF = 0
    else:
        kreg = lambda kt: 4 * kt
        VF = 80
    def kread(kt): a.lds("ds_read_b128 %s, v%d offset:%d" % (r4("a", kreg(kt)), V_KVW, kt * 1024), ("k", kt))
    def kpw(x):
        c0, c1, so, go, lo = kvq[x]
        a.wait(vm=("KP", x))
        a.lds("ds_write_b128 v%d, %s offset:%d" % (V_KVW, r4("v", c1), lo - 16384), "kvw")
    def codepf(vreg=None):
        if vreg is None: vreg = V_PW
        lab = a.newlabel("F_pc")
        a("s_getpc_b64 s[%d:%d]" % (R_WQ, R_WQ + 1))
        a.label(lab)
        a("s_and_b32 s%d, s%d, 0xffff" % (R_WQ + 1, R_WQ + 1))
        a("s_mov_b32 s%d, CODE_END - %s" % (R_WQ + 2, lab))
        a("s_lshr_b32 s%d, s2, 3" % t0)
        a("s_lshl_b32 s%d, s%d, 2" % (t0, t0))
        a("s_add_u32 s%d, s%d, s%d" % (t0, t0, sW))
        a("s_lshl_b32 s%d, s%d, 9" % (t0, t0))
        a("s_mov_b64 exec, 15")
        a.vmem("buffer_load_dword a%d, v%d, %s, s%d offen" % (A_PD, vreg, s4(R_WQ), t0), "T")
        a("s_mov_b64 exec, -1")
    seenA = set()
    ramp = (RA - 1 - LA) / float(S1 * NT)
    WM = cfg.get("f_wm", 200) / 100.0
    W0 = cfg.get("f_w0", 100) / 100.0
    UEND = S1 * NT + cfg.get("f_uend", 8)
    wts = [0.0] + [W0 * sum(1 for o in order if (o[1] if o[0] == "B" else o[1] // 2) == g) / 15.0 for g in (1, 2, 3)] + [WM if g % 4 == 0 else 1.0 for g in range(4, 16)]
    ipos = {}
    if cfg.get("f_lw", 0) == 2:
        no = []
        for g in range(16):
            bl = [o for o in order if o[0] == "B" and o[1] == g]; al = [o for o in order if o[0] == "A" and o[1] // 2 == g]
            if len(bl) == 7: mix = [bl[0], al[0], al[1], bl[1], al[2], al[3], bl[2], al[4], bl[3], bl[4], bl[5], bl[6], al[5], al[6], al[7]]
            else: mix = bl + al
            for k, o in enumerate(mix): ipos[o] = k
            no += mix
        order[:] = no
    noB = set(g for g in range(16) if not any(o[0] == "B" and o[1] == g for o in order))
    tau = [0.0]
    for g in range(16): tau.append(tau[-1] + wts[g])
    tau = [x * UEND / tau[-1] for x in tau]
    def due(op):
        g = op[1] if op[0] == "B" else op[1] // 2
        idx = op[2] if op[0] == "B" else 7 + (op[1] % 2) * 4 + op[2]
        if cfg.get("f_wb", 0) and op[0] == "B" and op[2] > 3: idx = 3
        if g in noB: return tau[g] + (tau[g + 1] - tau[g]) * (idx - 7) / 8.0
        if cfg.get("f_lw", 0) == 1:
            lw = [64, 64, 64, 56, 36, 44, 24] + [32] * 8
            return tau[g] + (tau[g + 1] - tau[g]) * sum(lw[:idx]) / float(sum(lw))
        if cfg.get("f_lw", 0) == 2: return tau[g] + (tau[g + 1] - tau[g]) * ipos[op] / 15.0
        return tau[g] + (tau[g + 1] - tau[g]) * idx / 15.0
    DF = cfg.get("f_df", 0); PZ0 = cfg.get("f_pz0", 4)
    THR1 = cfg.get("f_thr1", 63)
    side = G.side
    def prewait1(u):
        u += gi[u][1] - 1
        s, t = units[u]
        if s not in seenA:
            flush1(("A", s)); seenA.add(s)
            r = a.wait(vm=("A", s), lg=("b", u))
        else: r = a.wait(lg=("b", u))
        stt["waited"] = u
        return r
    prewait1(0)
    for u in range(NU):
        u0, C_, gn = gi[u]; kk = u - u0
        s, t = divmod(u, NT) if u < S1 * NT else units[u]
        un = u + DB
        if un < NU: need1(un)
        if u in ((S1 - 4) * NT + 2, (S1 - 2) * NT + 2, S1 * NT + 2): barrier()
        elif cfg.get("f_xb", 0) and u < S1 * NT and u % (2 * NT) == 0 and u > 0: barrier()
        if S1 // 2 <= 12 and u == last_unit_of_stage[12] + 2: barrier()
        if pfq and u % 4 == 2 and pfq[0] - 1 <= (u + PFA) / NT + LA + ramp * (u + PFA): touch(pfq.pop(0))
        if PW & 4:
            for k in range(3):
                if u == S1 * NT + cfg.get("f_px0", 4) + k * cfg.get("f_pxd", 16): touchx(k)
        if PW == 1 and u == UKV - PW0: touchw(None)
        if PW & 3 == 2 and u < S1 * NT and t == 8 and PW0 <= s < PW0 + 8: (toucht if HOT else touchw)((s + 4) & 7)
        PW1 = cfg.get("f_pw1", 4)
        if ASY and not HOT and PW & 3 == 2 and u < S1 * NT and t == 8 and PW1 <= s < PW1 + 8: touchw((s + 4 + PW0 - PW1) & 7, 1)
        if u == 16 * NT: stampr("g1half")
        if u < S1 * NT and t == 0: stampr("g1s%d" % s)
        if u == S1 * NT: stampr("g1tail")
        if u == UKV:
            stampr("g1kv")
            if cfg.get("f_cpf", 1): codepf()
        if DF and u == 3 * NT:
            side += ["v_mov_b32 v%d, -1" % (T + e) for e in range(4)]
            side += ["s_lshl_b32 s%d, s2, 2" % t3, "s_add_u32 s%d, s%d, s%d" % (t3, t3, sW), "s_mul_i32 s%d, s%d, 12288" % (t3, t3),
                     "s_add_u32 s%d, s%d, 0x%x" % (t3, t3, WS_XC),
                     "v_xor_b32 v%d, 3, v%d" % (T + 4, L), "v_lshlrev_b32 v%d, 1, v%d" % (T + 4, T + 4), "v_xor_b32 v%d, s2, v%d" % (T + 4, T + 4),
                     "v_lshlrev_b32 v%d, 9, v%d" % (T + 4, T + 4), "v_lshl_add_u32 v%d, v%d, 2, v%d" % (T + 4, L, T + 4)]
        if DF and u < S1 * NT and t == 4 and PZ0 <= s < PZ0 + 12:
            k_ = s - PZ0
            side.append(("m", lambda k_=k_: a.vmem("buffer_store_dwordx4 %s, v%d, %s, s%d offen offset:%d sc1" % (r4("v", T), V_L16, s4(R_WS), t3, (k_ % 4) * 1024), "PZ")))
            if k_ % 4 == 3: side.append("s_add_u32 s%d, s%d, 4096" % (t3, t3))
        if DF and u == (PZ0 + 14) * NT + 5:
            assert a.vm.count("PZ") == 12
            a.wait(vm="PZ")
            a("s_lshl_b32 s%d, s%d, 7" % (t3, sW))
            a("s_add_u32 s%d, s%d, 0x%x" % (t3, t3, WS_FL))
            a("s_mov_b64 exec, 7")
            a.vmem("buffer_store_dword v%d, v%d, %s, s%d offen sc1" % (V_ONE, T + 4, s4(R_WS), t3), "RF")
            a("s_mov_b64 exec, -1")
        if FLN and u == 20 * NT + 3:
            a("v_and_b32 v%d, 7, v%d" % (V_P0, L))
            a("v_lshlrev_b32 v%d, 5, v%d" % (V_P0, V_P0))
            a.vmem("global_load_dword v%d, v%d, s[100:101] sc1" % (V_POLL, V_P0), "CN")
        if FLN and u == 22 * NT + 3:
            a.wait(vm="CN")
            l0 = a.newlabel("F_cn"); l1 = a.newlabel("F_ok")
            a("s_mov_b32 s%d, 0x%x" % (sSP, SPIN))
            a.label(l0)
            a("v_cmp_le_u32 vcc, 32, v%d" % V_POLL)
            a("s_cmp_eq_u32 vcc_lo, -1")
            a("s_cbranch_scc1 %s" % l1)
            a("global_load_dword v%d, v%d, s[100:101] sc1" % (V_POLL, V_P0))
            a("s_sub_u32 s%d, s%d, 1" % (sSP, sSP))
            a("s_waitcnt vmcnt(0)")
            a("s_cbranch_scc0 %s" % l0)
            a.label(l1)
        if u == UFLAG:
            stampr("g1flag0")
            assert a.vm.count("KV") == 8
            a.wait(vm="KV")
            stampr("g1flag1")
            a.vmem("buffer_store_dword v%d, v%d, %s, s%d offen sc1" % (V_ONE, V_FL0, s4(R_WS), sFK), "FK")
        if u == UPOLL: poll_issue("PK")
        if u == UCHK:
            a.wait(vm="PK")
            spin(1 << 3, skip_if_i0=True)
            stampr("g1chk")
            if HK:
                def kd(so, k, chk):
                    if chk: assert 12 in stt["free"]
                    a.vmem("buffer_load_dwordx4 v%d, %s, s%d offen offset:%d sc1 lds" % (V_L16, s4(R_WS), so, k * 1024), "KD")
                new_ = ["s_lshl_b32 s%d, s%d, 12\ns_add_u32 m0, s%d, %d" % (t0, sW, t0, KVB + 32768), None]
                new_ += [("m", lambda k=k: kd(sKP2, k, False)) for k in range(4)]
                new_ += ["s_sub_u32 m0, m0, 32768", None]
                new_ += [("m", lambda k=k: kd(sKP, k, True)) for k in range(4)]
                side[:0] = new_
            else:
              for x, (c0, c1, so, go, lo) in enumerate(kvq):
                def f(c1=c1, so=(sKP if x < 4 else sKP2), go=go, x=x):
                    a.vmem("buffer_load_dwordx4 %s, v%d, %s, s%d offen offset:%d sc1" % (r4("v", c1), V_L16, s4(R_WS), so, go), ("KP", x))
                side.insert(x, ("m", f))
        if HK and u == UPW:
            assert a.vm.count("KD") == 8 and a.lg.count("kvw") == 8
            a.wait(vm="KD", lg="kvw"); barrier()
            stampr("g1kb")
            side[:0] = [("v", lambda kt=kt: kread(kt)) for kt in range(20)]
        nxt = None
        if order and can1(order[0]) and len(G.sal) <= 1 and due(order[0]) <= u: nxt = order.pop(0)
        if nxt and cfg.get("verbose", 0) > 1: print("issue", u, nxt, "due %.0f" % due(nxt), file=sys.stderr)
        if FLN and HT & 2:
            for b in (1, 2, 3):
                if u == max(0, int(tau[4 * b]) - cfg.get("f_hta", 0)): hottouch(b)
        if PW & 32 and nxt:
            tk = cfg.get("f_tk", 0)
            key = ("B", nxt[1], tk) if tk < 7 else ("A", nxt[1], (tk - 7) % 4)
            g_ = nxt[1] if nxt[0] == "B" else nxt[1] // 2
            if nxt == key and g_ in (4, 8, 12) and (nxt[0] == "B" or nxt[1] % 2 == (tk - 7) // 4): touchp(g_ // 4 - 1)
        for mt in range(MT):
            m_, k_ = divmod(kk * MT + mt, C_)
            if cfg.get("f_kz", 1) and m_ % 2 == 1 and units[u0][0] > 0: k_ = C_ - 1 - k_
            mz = m_ if gn % 2 == 0 else MT - 1 - m_
            s_, t_ = units[u0 + k_]
            bf = r4("a", BR + ((u0 + k_) % RB) * 4)
            af = r4("a", AR + (s_ % RA) * 16 + mz * 4)
            c = r4("v", acc(mz, t_))
            src = "0" if s_ == 0 else c
            if t_ in (4, 5): a("%s %s, %s, %s, %s" % (MF, c, af, bf, src))
            else:            a("%s %s, %s, %s, %s" % (MF, c, bf, af, src))
            rd = (lambda mt=mt: bread1(un, mt)) if (mt < 2 and un < NU) else None
            if mt == 0: G.gap(fixed=rd)
            elif mt == 1:
                if nxt and nxt[0] == "B": G.gap(first=lambda: (dma1(nxt[1], nxt[2], 0), True)[1], fixed=rd)
                else: G.gap(fixed=rd)
            elif mt == 2:
                if nxt:
                    assert not G.sal
                    G.gap(first=(lambda: a.throttle(THR1)), mem=((lambda: aload1(nxt[1], nxt[2])) if nxt[0] == "A" else (lambda: dma1(nxt[1], nxt[2], 1))))
                else: G.gap()
            else:
                if kk == C_ - 1:
                    stt["issued"] = u
                    G.gap(first=(lambda: prewait1(u + 1)) if u + 1 < NU else None)
                else: G.gap()
        if u == UKV - 1:
            assert 11 in stt["free"], stt
            side += [None] * 5
            for (c0, c1, so, go, lo) in kvq:
                side += pack(c0, c1)
                def f(c0=c0, so=so, go=go):
                    a.vmem("buffer_store_dwordx4 %s, v%d, %s, s%d offen offset:%d sc1" % (r4("v", c0), V_L16, s4(R_WS), so, go), "KV")
                side.append(("m", f))
            for (c0, c1, so, go, lo) in kvq:
                def f(c0=c0, lo=lo):
                    a.lds("ds_write_b128 v%d, %s offset:%d" % (V_KVW, r4("v", c0), lo), "kvw")
                side += [("x", f), None]
            assert not order and stt.get("su0")
            side += su.l
        if u >= S1 * NT and not order and not G.sal and not stt.get("su0"):
            side += su0; stt["su0"] = True
        if HO and u == UKV + cfg.get("f_ho1", 30):
            barrier(); side[:0] = hole_ops(range(0, min(3, HO)))
        if HO > 3 and u == UKV + cfg.get("f_ho2", 56):
            assert u > UH01 and a.vm.count(("B2", 2)) == 2 and not any(isinstance(x, str) and ("s%d, s%d" % (sB2, sBE)) in x for x in side)
            barrier(); side[:0] = hole_ops(range(3, HO))
        if u == UPW and not HK:
            assert 12 in stt["free"]
            side[:0] = [y for x in range(8) for y in (("x", lambda x=x: kpw(x)), None)]
        if u == UH01 - 1:
            side += [None] * 5
            for p in range(2):
                for mt in range(MT):
                    side += pack(acc(mt, 6 + 2 * p), acc(mt, 7 + 2 * p), relu=True)
                    if p * 4 + mt < cfg.get("f_hearly", 8):
                        side.append(("m", lambda p=p, mt=mt: hstore(p, mt)))
                        side += [None] * cfg.get("f_hsp", 8)
        if u == UCHK:
            assert UCHK >= UH01
            for x in range(cfg.get("f_hearly", 8), 8):
                side += [("m", lambda x=x: hstore(x // 4, x % 4))] + [None] * cfg.get("f_hsp2", 6)
    if cfg.get("verbose"): print("G1 side left", len([x for x in side if x is not None]), file=sys.stderr)
    G.drain()
    assert not order
    assert 12 in stt["free"]
    stampr("g1end")

    va = []
    for mt in range(MT): va += pack(acc(mt, 10), acc(mt, 11), relu=True)
    if HK:
        stampr("attbeg")
        for _ in range(8): a(va.pop(0))
    else:
        if UPW >= NU:
            for x in range(8): kpw(x)
        a.wait(lg="kvw")
        a("s_barrier")
        stampr("attbeg")
        for kt in range(20):
            kread(kt)
            a(va.pop(0))
    for mt in range(MT):
        for t in (0, 1):
            for e2 in range(2):
                c = acc(mt, t) + 2 * e2
                a("v_pk_mul_f32 v[%d:%d], v[%d:%d], s[%d:%d] op_sel_hi:[1,0]" % (c, c + 1, c, c + 1, sSC, sSC + 1))
        if mt == 0:
            for x in pack(acc(mt, 0), acc(mt, 1)): a(x)
    STCH = cfg.get("f_st", 0)
    a.vm = [("H01" if t == "H" else t) for t in a.vm]
    stq = [(cfg.get("f_st0", 200), sH), (cfg.get("f_st1", 380), sH + 1)] if STCH & 1 else []
    hstore(2, 0)
    for mt in range(1, MT): va += pack(acc(mt, 0), acc(mt, 1))
    for mt in range(MT): va += pack(acc(mt, 12), None, relu=True)
    free = [acc(mt, t) for t in (2, 3, 4, 5, 7, 9) for mt in range(MT)] + [212, 216, 220] + [acc(mt, t) for t in (11, 1) for mt in range(MT)]

    C2 = cfg.get("f_c2", 2)
    C2T = cfg.get("f_c2t", 4); C2S = cfg.get("f_c2s", 5)
    CM2 = max(C2, C2T, 3)
    RA2 = cfg.get("f_ra2", 13); DB2 = cfg.get("f_db2", CM2 + 2); RB2 = DB2 + CM2
    assert DB2 >= CM2
    BR2 = RA2 * 16
    assert BR2 + RB2 * 4 <= 256
    def aslot(p): return ((p - 3 + 10) % RA2) * 16
    def aload2(p, mt):
        a.vmem("buffer_load_dwordx4 %s, v%d, %s, s%d offen offset:%d %s" % (r4("a", aslot(p) + mt * 4), V_L16, s4(R_WS), sA, mt * 1024, ["sc1", "sc1 nt", ""][cfg.get("f_af", 0)]), ("A2", p))
        if mt == MT - 1:
            if p == 27 and not LIN: G.sal.append("s_mov_b32 s%d, s%d" % (sA, sAE))
            else:
                G.sal.append("s_add_u32 s%d, s%d, 4096" % (sA, sA))
                if p <= 27: G.sal.append("s_cmp_eq_u32 s%d, s%d\ns_cselect_b32 s%d, s%d, s%d" % (sA, sAE, sA, sA0, sA))
    hst = [(2, 1), (2, 2), (2, 3)] + [(3, mt) for mt in range(MT)]
    NPRE = cfg.get("f_npre", 10)
    assert NPRE >= 3
    pre = []
    assert HO <= NPRE <= NSL
    for p in range(HO, NPRE): pre += [(p,) + op for op in dma2_ops(p)]

    S_ = {}; P_ = {}; O_ = {}
    def s_mfma(qa, kt):
        q = free.pop(0); S_[(qa, kt)] = q
        a.wait(lg=("k", kt))
        c = r4("v", bias[kt // 4]) if kt < 16 else "0"
        a("%s %s, %s, %s, %s" % (MF, r4("v", q), r4("a", kreg(kt)), r4("v", acc(qa, 0)), c))
    def pv_list(qa):
        b0 = qa // 2
        out = []
        for b in range(b0, b0 + 9):
            for z in range(3):
                def f(b=b, z=z):
                    if b == b0: O_[(qa, z)] = free.pop(0)
                    o = r4("v", O_[(qa, z)])
                    if z < 2:
                        a.wait(lg=("v", 2 * b + z)); A = r4("a", VF + (2 * b + z) * 4)
                    else: A = r4("v", VONES)
                    a("%s %s, %s, %s, %s" % (MF, o, A, r4("v", P_[(qa, b)]), "0" if b == b0 else o))
                    if z == 2: free.append(P_[(qa, b)])
                out.append(f)
        return out
    def fin_list(qa):
        o0, o1, sm = O_[(qa, 0)], O_[(qa, 1)], O_[(qa, 2)]
        ops = ["v_rcp_f32 v%d, v%d" % (sm, sm), "s_nop 0"]
        for o in (o0, o1):
            for e in range(4): ops.append("v_mul_f32 v%d, v%d, v%d" % (o + e, o + e, sm))
        ops += pack(o0, o1)
        def f():
            a.vmem("buffer_store_dwordx4 %s, v%d, %s, s%d offen offset:%d %s" % (r4("v", o0), V_L16, s4(R_WS), sO, qa * 1024, HF), "O")
            free.extend([o1, sm]); late_free.append(o0)
        ops.append(f)
        return ops
    late_free = []
    pready = set()
    def soft_list(qa):
        k0, k1 = qa, qa + 16
        ops = []
        f_, l_ = S_[(qa, k0)], S_[(qa, k1)]
        odd = qa & 1
        g_, z_ = (l_, f_) if odd else (f_, l_)
        o_ = 2 * odd
        for e in range(4):
            ops.append((1, "v_cndmask_b32 v%d, v%d, v%d, s[%d:%d]" % (g_ + e, f_ + e, l_ + e, sMK + 2 * e, sMK + 2 * e + 1)))
        quads = [S_[(qa, kt)] for kt in range(k0 + 1, k1)] + [g_]
        vals = [q + e for q in quads for e in range(4)]
        m0, m1 = VM, VM + 1
        ops.append((1, "v_max3_f32 v%d, v%d, v%d, v%d" % (m0, vals[0], vals[1], vals[2])))
        ops.append((1, "v_max3_f32 v%d, v%d, v%d, v%d" % (m1, vals[3], vals[4], vals[5])))
        ops.insert(2, (0, "SLOT")); ops.insert(5, (0, "SLOT")); ops.append((0, "SLOT"))
        for x in range(6, 62, 4):
            ops.append((1, "v_max3_f32 v%d, v%d, v%d, v%d" % (m0, m0, vals[x], vals[x + 1])))
            ops.append((1, "v_max3_f32 v%d, v%d, v%d, v%d" % (m1, m1, vals[x + 2], vals[x + 3])))
            ops.append((0, "SLOT"))
        ops.append((1, "v_max3_f32 v%d, v%d, v%d, v%d" % (m0, m0, vals[62], vals[63])))
        ops.append((1, "v_max_f32 v%d, v%d, v%d" % (m0, m0, m1)))
        ops.append((1, "v_mov_b32 v%d, v%d" % (m1, m0)))
        ops.append((0, "SLOT2"))
        ops.append((1, "v_permlane16_swap_b32 v%d, v%d" % (m0, m1)))
        ops.append((1, "v_max_f32 v%d, v%d, v%d" % (m0, m0, m1)))
        ops.append((1, "v_mov_b32 v%d, v%d" % (m1, m0)))
        ops.append((1, "v_mov_b32 v%d, 0" % (z_ + 2 - o_)))
        ops.append((1, "v_mov_b32 v%d, 0" % (z_ + 3 - o_)))
        ops.append((1, "v_permlane32_swap_b32 v%d, v%d" % (m0, m1)))
        ops.append((1, "v_max_f32 v%d, v%d, v%d" % (m0, m0, m1)))
        def subexp(q):
            r = []
            for e2 in range(2):
                r.append((1, "v_pk_add_f32 v[%d:%d], v[%d:%d], v[%d:%d] op_sel_hi:[1,0] neg_lo:[0,1] neg_hi:[0,1]" % (q + 2 * e2, q + 2 * e2 + 1, q + 2 * e2, q + 2 * e2 + 1, m0, m0 + 1)))
            for e in range(4):
                if e < 2: r.append((0, "SLOT"))
                r.append((2, "v_exp_f32 v%d, v%d" % (q + e, q + e)))
            r.append((0, "MEM"))
            return r
        ops += subexp(g_)
        ops += subexp(S_[(qa, k0 + 1)])
        cv = ["v_cvt_pk_bf16_f32 v%d, v%d, v%d" % (g_ + o_ + x, g_ + 2 * x, g_ + 2 * x + 1) for x in range(2)]
        if odd: cv.reverse()
        ops += [(1, x) for x in cv]
        for x in range(2):
            if odd: ops.append((1, "v_bfi_b32 v%d, v%d, 0, v%d" % (z_ + o_ + x, VM + 2 + x, g_ + o_ + x)))
            else:   ops.append((1, "v_and_b32 v%d, v%d, v%d" % (z_ + o_ + x, VM + 2 + x, g_ + o_ + x)))
        for x in range(2): ops.append((1, "v_xor_b32 v%d, v%d, v%d" % (g_ + o_ + x, g_ + o_ + x, z_ + o_ + x)))
        done = {k0, k0 + 1, k1}
        b0 = qa // 2
        pend_pack = None
        for b in range(b0, b0 + 9):
            for kt in (2 * b, 2 * b + 1):
                if k0 <= kt <= k1 and kt not in done:
                    ops += subexp(S_[(qa, kt)]); done.add(kt)
            if pend_pack: ops += pend_pack
            lo, hi = S_.get((qa, 2 * b)), S_.get((qa, 2 * b + 1))
            pk = []
            if lo is None or hi is None: d = z_
            elif g_ in (lo, hi):
                d = g_; ot = hi if lo == g_ else lo
                pk += [(1, "v_cvt_pk_bf16_f32 v%d, v%d, v%d" % (d + 2 - o_ + x, ot + 2 * x, ot + 2 * x + 1)) for x in range(2)]
                pk.append((0, (lambda ot=ot: free.append(ot))))
            else:
                d = lo
                pk += [(1, x) for x in pack(lo, hi)]
                pk.append((0, (lambda hi=hi: free.append(hi))))
            P_[(qa, b)] = d
            pk.append((0, (lambda b=b: pready.add((qa, b)))))
            pend_pack = pk
        ops += pend_pack
        return ops
    def run(op):
        if isinstance(op, str): a(op)
        else: op()
    vr = list(range(20))
    def vread():
        f = vr.pop(0)
        a.lds("ds_read_b128 %s, v%d offset:%d" % (r4("a", VF + 4 * f), V_KVW, 32768 + f * 1024), ("v", f))
    for kt in range(17):
        s_mfma(0, kt)
        vread(); a(va.pop(0))
    while vr:
        vread(); a(va.pop(0))
    hstore(*hst.pop(0))
    while va: a(va.pop(0))
    HGAP = cfg.get("f_hgap", 30); PGAP = cfg.get("f_pgap", 28)
    HFL = cfg.get("f_hfl", 500)
    HPO = cfg.get("f_hpo", 900)
    HCK = cfg.get("f_hck", 2000)
    hok = False
    ordA = [("A2", p, mt) for p in range(3, KS2) for mt in range(MT)]
    napre = cfg.get("f_apre", 16)
    pv3 = pv_list(3); pv3b = [1 + x // 3 for x in range(27)]
    tq = [(cfg.get("f_tb0", 200) + k * cfg.get("f_tbd", 150), k) for k in range(cfg.get("f_tbn", 0))]
    tcq = []
    if TCN:
        k0 = cfg.get("f_tck", 6); nr = cfg.get("f_tcr", 2)
        ed = [k0 + (56 - k0) * x // nr for x in range(nr + 1)]
        rr = [(ed[x], ed[x + 1]) for x in range(nr)] + [(56, 72)]
        tcq = [(cfg.get("f_tc0", 540) + x * cfg.get("f_tcd", 130), lo_, hi_) for x, (lo_, hi_) in enumerate(rr)]
    sq = []
    if SPF:
        for k in range(cfg.get("f_spf0", 6), 56): sq.append("s_load_dword s%d, s[%d:%d], 0x%x" % (t3, (P_W2 if k < 28 else P_WQ), (P_W2 if k < 28 else P_WQ) + 1, (k % 28) * 32768))
        for k in range(16): sq.append("s_load_dword s%d, s[%d:%d], 0x%x" % (t3, P_WO, P_WO + 1, k * 32768))
    next_s = 0; SGAP = cfg.get("f_sgap", 8)
    kvbar = False; hflag = False; hpoll = False
    cost_total = 0; next_h = HGAP; next_p = 0
    for qa in range(4):
        stampr("att%d" % qa)
        ops = soft_list(qa)
        tot = sum(c for c, _ in ops)
        pv = pv_list(qa - 1) if qa > 0 else []
        fin = None
        sm = [(qa + 1, kt) for kt in range(qa + 1, qa + 18)] if qa < 3 else []
        c = 0
        pv_done_at = None
        for (cost, op) in ops:
            if op == "SLOT2":
                if pv:
                    pv.pop(0)(); a("s_nop 0")
                    if not pv: pv_done_at = c
                else: a("s_nop 1")
                continue
            if op == "SLOT":
                did = False
                if pv:
                    pv.pop(0)(); did = True
                    if not pv: pv_done_at = c
                elif sm and len(free) > 0 and c >= tot * 0.2:
                    s_mfma(*sm.pop(0)); did = True
                elif qa == 3 and pv3 and (3, pv3b[0]) in pready:
                    pv3.pop(0)(); pv3b.pop(0); did = True
                if did and G.sal:
                    a(G.sal.pop(0)); continue
                if did and pre and pre[0][1] == 0 and (kvbar or (pre[0][0] < 9 and not HK)): pre.pop(0)[2]()
                elif sq and kvbar and cost_total >= next_s and (did or cost_total >= next_s + SGAP):
                    a(sq.pop(0)); next_s = cost_total + SGAP
                    if not sq and cfg.get("verbose"): print("scalar prefetch done at", cost_total, file=sys.stderr)
                continue
            if op == "MEM":
                if qa > 0 and fin is None and pv_done_at is not None and c >= pv_done_at + 18:
                    fin = fin_list(qa - 1)
                    for x in fin: run(x)
                elif hst and cost_total >= next_h:
                    hstore(*hst.pop(0)); next_h = cost_total + HGAP
                elif stq and cost_total >= stq[0][0]:
                    a.wait(vm="H01"); selftouch(stq.pop(0)[1], True)
                elif tcq and cost_total >= tcq[0][0]:
                    _, lo_, hi_ = tcq.pop(0)
                    if lo_ < 56:
                        m_ = ((1 << hi_) - 1) ^ ((1 << lo_) - 1)
                        a("s_mov_b32 exec_lo, 0x%x" % (m_ & 0xffffffff))
                        a("s_mov_b32 exec_hi, 0x%x" % (m_ >> 32))
                        a.vmem("buffer_load_dword a%d, v%d, %s, s%d offen" % (A_PD, V_T128, s4(R_W2), sCLS), "T")
                    else:
                        a("s_mov_b64 exec, 0xffff")
                        a.vmem("buffer_load_dword a%d, v%d, %s, s%d offen" % (A_PD, V_T128, s4(R_WO), t3), "T")
                    a("s_mov_b64 exec, -1")
                elif not hst and tq and cost_total >= tq[0][0]:
                    k_ = tq.pop(0)[1]
                    a("s_lshr_b32 s%d, s2, 3" % t0)
                    a("s_lshl_b32 s%d, s%d, 2" % (t0, t0))
                    a("s_add_u32 s%d, s%d, s%d" % (t0, t0, sW))
                    if k_ < 4:
                        a("s_mul_i32 s%d, s%d, 3584" % (t0, t0))
                        a("s_mul_i32 s%d, s%d, %d" % (t1, sQ, 896 * 2048))
                        a("s_add_u32 s%d, s%d, s%d" % (t0, t0, t1))
                        if k_: a("s_add_u32 s%d, s%d, %d" % (t0, t0, k_ * 224 * 2048))
                        a("s_mov_b64 exec, 0xfffffff")
                        a.vmem("buffer_load_dword a%d, v%d, %s, s%d offen" % (A_PD, V_T128, s4(R_W2), t0), "T")
                    else:
                        a("s_lshl_b32 s%d, s%d, 12" % (t0, t0))
                        a("s_lshl_b32 s%d, s%d, 19" % (t1, sQ))
                        a("s_add_u32 s%d, s%d, s%d" % (t0, t0, t1))
                        a("s_mov_b32 exec_hi, 0")
                        a.vmem("buffer_load_dword a%d, v%d, %s, s%d offen" % (A_PD, V_T128, s4(R_WO), t0), "T")
                    a("s_mov_b64 exec, -1")
                elif not hst and not hflag and cost_total >= HFL:
                    a.wait(vm="H")
                    a.vmem("buffer_store_dword v%d, v%d, %s, 0 offen offset:32 sc1" % (V_ONE, V_FG, s4(R_WS)), "FH")
                    hflag = True
                    if STCH & 2: selftouch(sH + 2, True)
                elif hflag and not hpoll and cost_total >= HPO:
                    if cfg.get("f_cpf2", 1): codepf(V_T128)
                    poll_issue("PH"); hpoll = True
                elif hpoll and not hok and cost_total >= HCK:
                    a.wait(vm="PH"); spin(0xff00); hok = True
                    stampr("g2h")
                elif hok and napre > 0:
                    G.drain_sal()
                    op_ = ordA.pop(0); aload2(op_[1], op_[2]); napre -= 1
                elif pre and pre[0][1] == 1 and cost_total >= next_p:
                    pre.pop(0)[2](); next_p = cost_total + PGAP
                    if cfg.get("f_p2", 0) and pre and pre[0][1] == 1: pre.pop(0)[2]()
                continue
            run(op); c += cost; cost_total += cost
            if qa == 0 and not kvbar and c >= 30:
                a.wait(lg=("v", 19)); a("s_barrier"); kvbar = True
        assert not pv and (qa == 0 or fin)
        free.extend(late_free); del late_free[:]
        if sm and cfg.get("verbose"): print("late S mfmas", qa, len(sm), file=sys.stderr)
        late = bool(sm)
        while sm: s_mfma(*sm.pop(0))
        if late: a("s_nop 7")
    if cfg.get("verbose"): print("attention cost", cost_total, "pre left", len(pre), file=sys.stderr)
    stampr("att4")
    assert not hst and hflag and hpoll and not sq and not tcq
    if not hok: napre = 0
    while pre:
        pre.pop(0)[2](); a("s_nop 0")
    G.drain_sal()
    assert napre <= 4 * (RA2 - 10) and not (HK and hok)
    a("v_mov_b32 v%d, v%d" % (V2_RD, V2_B))
    a("v_xor_b32 v%d, 32, v%d" % (V2_RD + 1, V2_B))
    xr = ["v_xor_b32 v%d, %d, v%d" % (V2_RD + t, t * 32, V2_B) for t in range(2, 8)]
    xr += ["v_add_u32 v%d, %d, v%d" % (V2_RD + 8 + t, 2 * STAGE, V2_RD + t) for t in range(8)]
    if cfg.get("verbose"): print("pv3 left", len(pv3), "apre left", napre, file=sys.stderr)
    for f in pv3:
        f()
        if napre > 0:
            op_ = ordA.pop(0); aload2(op_[1], op_[2]); napre -= 1; G.drain_sal()
        else:
            for _ in range(2):
                if xr: a(xr.pop(0))
    while xr: a(xr.pop(0))
    stampr("attend")

    NT2 = 8
    DL = cfg.get("f_dl", 8); S2 = KS2 - DL
    assert RA2 >= DL
    own = set(acc(mt, 6 + 2 * p) for p in range(3) for mt in range(MT))
    busy = own | set(O_[(3, z)] for z in range(3)) | {208}
    q2 = [q for q in range(0, 224, 4) if q not in busy]
    acc2 = {}
    for t in range(NT2):
        for mt in range(MT): acc2[(mt, t)] = q2.pop(0)
    VX = [q2.pop(0) for _ in range(4)]
    TT = q2.pop(0); V_XI = TT + 2
    R_X = R_WQ; R_OUT = R_W1
    rec = Rec()
    rec.l += [None] * 5 + [x if isinstance(x, str) else ("m", x) for x in fin_list(3)]
    for t in range(8): rec("v_add_u32 v%d, %d, v%d" % (V2_RD + 16 + t, 4 * STAGE, V2_RD + t))
    srd(rec, R_X, P_X, S * D * 2)
    srd(rec, R_OUT, P_OUT, S * D * 2)
    rec2 = Rec()
    rec2("v_and_b32 v%d, 15, v%d" % (TT, L))
    rec2("v_lshlrev_b32 v%d, 11, v%d" % (V_XO, TT))
    rec2("v_lshrrev_b32 v%d, 4, v%d" % (TT, L))
    rec2("v_lshl_add_u32 v%d, v%d, 3, v%d" % (V_XI, TT, V_XO))
    rec2("v_bfe_u32 v%d, v%d, 4, 1" % (TT, L))
    rec2("v_lshl_add_u32 v%d, v%d, 5, v%d" % (V_XO, TT, V_XO))
    rec2("v_lshrrev_b32 v%d, 5, v%d" % (TT, L))
    rec2("v_lshl_add_u32 v%d, v%d, 4, v%d" % (V_XO, TT, V_XO))
    CO = cfg.get("f_co", 1)
    if CO:
        V_OW = V_KVW; V_OR = V2_B
        rec2("s_mul_i32 s%d, s%d, 5120" % (t1, sW))
        rec2("s_add_u32 s%d, s%d, %d" % (t1, t1, 5 * STAGE))
        rec2("v_and_b32 v%d, 15, v%d" % (TT, L))
        rec2("v_mul_u32_u24 v%d, 80, v%d" % (V_OW, TT))
        rec2("v_lshrrev_b32 v%d, 4, v%d" % (TT, L))
        rec2("v_lshl_add_u32 v%d, v%d, 3, v%d" % (V_OW, TT, V_OW))
        rec2("v_add_u32 v%d, s%d, v%d" % (V_OW, t1, V_OW))
        rec2("v_lshrrev_b32 v%d, 2, v%d" % (TT, L))
        rec2("v_mul_u32_u24 v%d, 80, v%d" % (V_OR, TT))
        rec2("v_lshlrev_b32 v%d, 11, v%d" % (V_XO, TT))
        rec2("v_and_b32 v%d, 3, v%d" % (TT, L))
        rec2("v_lshl_add_u32 v%d, v%d, 4, v%d" % (V_OR, TT, V_OR))
        rec2("v_add_u32 v%d, s%d, v%d" % (V_OR, t1, V_OR))
        rec2("v_lshl_add_u32 v%d, v%d, 4, v%d" % (V_XO, TT, V_XO))
    XD = cfg.get("f_xd", 1) and CO
    if XD:
        assert "f_ux" not in cfg
        rec2("v_and_b32 v%d, 15, v%d" % (TT, L))
        rec2("v_lshlrev_b32 v%d, 6, v%d" % (V_XI, TT))
        rec2("v_lshrrev_b32 v%d, 4, v%d" % (TT, L))
        rec2("v_lshl_add_u32 v%d, v%d, 3, v%d" % (V_XI, TT, V_XI))
        rec2("v_add_u32 v%d, s%d, v%d" % (V_XI, t1, V_XI))
    sSX = [sKV, sKV2, sKP]; sSF = [sKP2, sFK, sH]; sRX = sH + 1
    for lam in range(3):
        rec("s_xor_b32 s%d, s2, %d" % (t1, (lam ^ 3) << 1))
        rec("s_lshl_b32 s%d, s%d, 2" % (t1, t1))
        rec("s_add_u32 s%d, s%d, s%d" % (t1, t1, sW))
        rec("s_mul_i32 s%d, s%d, 12288" % (sSX[lam], t1))
        rec("s_add_u32 s%d, s%d, 0x%x" % (sSX[lam], sSX[lam], WS_XC + lam * 4096))
        rec("s_lshl_b32 s%d, s%d, 7" % (sSF[lam], t1))
        rec("s_add_u32 s%d, s%d, 0x%x" % (sSF[lam], sSF[lam], WS_FL + lam * 4))
    rec("s_lshl_b32 s%d, s2, 2" % t1)
    rec("s_add_u32 s%d, s%d, s%d" % (t1, t1, sW))
    rec("s_mul_i32 s%d, s%d, 12288" % (sRX, t1))
    rec("s_add_u32 s%d, s%d, 0x%x" % (sRX, sRX, WS_XC))
    if DF:
        for lam in range(3): rec("s_add_u32 s%d, s%d, %d" % (sSF[lam], sRX, lam * 4096))
    side = G.side
    side += rec.l

    units = []; del gi[:]
    grp(units, 0, 3, range(NT2), 3)
    grp(units, 3, C2S, range(NT2), 2)
    DLO = cfg.get("f_dlo", 11); S2O = KS2 - DLO
    assert DL <= DLO <= RA2
    grp(units, C2S, S2O, range(NT2), C2)
    grp(units, S2O, S2, range(6), C2)
    UT = len(units)
    for lam in range(4): grp(units, S2 if lam < 3 else S2O, KS2, (2 * lam, 2 * lam + 1), C2T if lam else min(C2T, cfg.get("f_c2t0", 4)))
    NU = len(units)
    PL = 2 * DL
    last_unit = {}
    for u, (p, t) in enumerate(units): last_unit[p] = u
    stt = dict(ready=-1, free=set(), waited=-1, issued=-1, ook=False, hok=hok)
    ordB = [("B2", p) for p in range(NPRE, KS2)]
    def barrier2():
        a("s_barrier")
        for p, lu in last_unit.items():
            if lu <= stt["waited"]: stt["free"].add(p)
    def can2(op):
        if op[0] == "B2": return op[1] < NSL or (op[1] - NSL) in stt["free"]
        if not stt["hok"] or (op[1] >= 28 and not stt["ook"]): return False
        return op[1] - 3 < RA2 or last_unit[op[1] - RA2] <= stt["issued"]
    def issue2(op):
        if cfg.get("verbose"): print("late flush2", op, file=sys.stderr)
        G.drain_sal()
        if op[0] == "A2": aload2(op[1], op[2])
        else:
            for x in dma2_ops(op[1]): x[1](); a("s_nop 0")
        G.drain_sal()
    def flush2(q, tag):
        while any(o[:2] == tag for o in q):
            op = q.pop(0); assert can2(op), (op, stt); issue2(op)
    def bread2(u, j2):
        p, t = units[u]
        sl, pos = LOC[p % NSL]
        a.lds("ds_read_b64_tr_b16 %s, v%d offset:%d" % (r2("a", BR2 + (u % RB2) * 4 + j2 * 2), V2_RD + 8 * (sl // 2) + t, (sl % 2) * STAGE + (pos + j2) * 1024), ("b2", u))
    def need2(u):
        p = units[u][0]
        if p > stt["ready"]:
            flush2(ordB, ("B2", p))
            grp = cfg.get("f_bgrp", 4)
            top = max(x for x in range(p, min(p + grp, KS2)) if not any(o[1] == x for o in ordB))
            if p == 0: top = min(NPRE - 1, cfg.get("f_top0", 5))
            elif p < NPRE: top = NPRE - 1
            a.wait(vm=("B2", top)); barrier2(); stt["ready"] = top
    need2(0)
    for u in range(DB2):
        bread2(u, 0); bread2(u, 1)
    stampr("g2beg")
    UOF = cfg.get("f_uof", 26)
    UOP = cfg.get("f_uop", 80); UOC = UOP + 12
    seenA = {0, 1, 2}
    xdone = False
    rq = sorted(own)
    def flag(lam):
        a.wait(vm=("S", lam))
        a.vmem("buffer_store_dword v%d, v%d, %s, s%d offen sc1" % (V_ONE, V_FL0, s4(R_WS), sSF[lam]), ("F", lam))
    def recv(lam, mt):
        a.vmem("buffer_load_dwordx4 %s, v%d, %s, s%d offen offset:%d sc1" % (r4("v", rq[4 * lam + mt]), V_L16, s4(R_WS), sRX, mt * 1024), ("R", lam, mt))
        if mt == 3 and lam < 2: a("s_add_u32 s%d, s%d, 4096" % (sRX, sRX))
    PS = lambda mt, hh: acc2[(mt, hh)]
    def addpk(dst, src, first=False):
        ops = []
        for hh in range(2):
            for e2 in range(2):
                pp = src + 2 * hh + e2; c = dst[hh] + 2 * e2
                if first:
                    ops += ["v_lshlrev_b32 v%d, 16, v%d" % (c, pp), "v_and_b32 v%d, 0xffff0000, v%d" % (c + 1, pp)]
                else:
                    ops += ["v_lshlrev_b32 v%d, 16, v%d" % (TT, pp), "v_and_b32 v%d, 0xffff0000, v%d" % (TT + 1, pp),
                            "v_pk_add_f32 v[%d:%d], v[%d:%d], v[%d:%d]" % (c, c + 1, c, c + 1, TT, TT + 1)]
        return ops
    FD = cfg.get("f_fd", 26)
    ev = {}
    def at(u, f): ev.setdefault(u, []).append(f)
    def rtxt(lam, mt): return "buffer_load_dwordx4 %s, v%d, %s, s%d offen offset:%d sc1" % (r4("v", rq[4 * lam + mt]), V_L16, s4(R_WS), sSF[lam], mt * 1024)
    def rmax(lam):
        rg = [rq[4 * lam + mt] + e for mt in range(MT) for e in range(4)]
        o = ["v_max3_u32 v%d, v%d, v%d, v%d" % (V_POLL, rg[0], rg[1], rg[2])]
        for k in range(3, 15, 2): o.append("v_max3_u32 v%d, v%d, v%d, v%d" % (V_POLL, V_POLL, rg[k], rg[k + 1]))
        o.append("v_max_u32 v%d, v%d, v%d" % (V_POLL, V_POLL, rg[15]))
        return o
    def rcheck(lam):
        l0 = a.newlabel("F_rt"); l1 = a.newlabel("F_ok")
        a("s_mov_b32 s%d, 0x%x" % (sSP, SPIN))
        a.label(l0)
        a("v_cmp_eq_u32 vcc, -1, v%d" % V_POLL)
        a("s_cmp_eq_u64 vcc, 0")
        a("s_cbranch_scc1 %s" % l1)
        for mt in range(MT): a(rtxt(lam, mt))
        a("s_waitcnt vmcnt(0)")
        for x in rmax(lam): a(x)
        a("s_sub_u32 s%d, s%d, 1" % (sSP, sSP))
        a("s_cbranch_scc0 %s" % l0)
        a.label(l1)
    def addplain(dst, src):
        ops = []
        for hh in range(2):
            for e2 in range(2):
                pp = src + 2 * hh + e2; c = dst[hh] + 2 * e2
                ops += ["v_lshlrev_b32 v%d, 16, v%d" % (TT, pp), "v_and_b32 v%d, 0xffff0000, v%d" % (TT + 1, pp),
                        "v_add_f32 v%d, v%d, v%d" % (c, c, TT), "v_add_f32 v%d, v%d, v%d" % (c + 1, c + 1, TT + 1)]
        return ops
    if DF:
        R0U = UT + 3 * PL + cfg.get("f_r0", -6); R1U = UT + 4 * PL + cfg.get("f_r1", -5)
        at(R0U, lambda: side.extend(("m", lambda mt=mt: a.vmem(rtxt(0, mt), ("R", 0))) for mt in range(MT)))
        at(R1U, lambda: side.__setitem__(slice(0, 0), [("m", lambda mt=mt: a.vmem(rtxt(1, mt), ("R", 1))) for mt in range(MT)]))
    else:
        at(UT + PL + FD, lambda: flag(0))
        at(UT + 2 * PL + FD, lambda: flag(1))
        if cfg.get("f_fin2", 1): at(UT + 3 * PL + FD, lambda: flag(2))
        if cfg.get("f_pe", 4): at(NU - cfg.get("f_pe", 4), lambda: poll_issue("P1"))
    UP0 = UT + 3 * PL + cfg.get("f_p0", 4)
    F2 = cfg.get("f_fin2", 1)
    if not DF and not F2: at(UP0, lambda: poll_issue("P0"))
    def chk0():
        a.wait(vm="P0"); spin(1)
        for mt in range(MT): side.append(("m", lambda mt=mt: recv(0, mt)))
    if not DF and not F2: at(UP0 + cfg.get("f_c0", 8), chk0)
    def presum():
        side.append(("s", lambda: a.wait(vm="X")))
        if XD:
            for mt in range(MT):
                for hh in range(2):
                    side.append(("v", lambda mt=mt, hh=hh: a.lds("ds_read_b64 %s, v%d offset:%d" % (r2("v", VX[mt] + 2 * hh), V_XI, mt * 1024 + hh * 32), "xr")))
            side.extend([None] * 4 + [("s", lambda: a.wait(lg="xr"))])
        for mt in range(MT): side.extend(addpk([PS(mt, 0), PS(mt, 1)], VX[mt], first=True))
    at(UT + 2 * PL + PL // 2, presum)
    first_unit = {}
    for u, (p, t) in enumerate(units): first_unit.setdefault(p, u)
    NOPS = len(ordA) + 2 * len(ordB)
    UE2 = UT + cfg.get("f_ue2", 0)
    MARG = cfg.get("f_marg", 20)
    THR2 = cfg.get("f_thr2", 63)
    def prewait2(u):
        u += gi[u][1] - 1
        p, t = units[u]
        if p not in seenA:
            flush2(ordA, ("A2", p)); seenA.add(p)
            r = a.wait(vm=("A2", p), lg=("b2", u))
        else: r = a.wait(lg=("b2", u))
        stt["waited"] = u
        return r
    def b2sal(p):
        so = sB2 if p < 28 else sBO
        if p != 27 and p != 35: G.sal.append("s_add_u32 s%d, s%d, 65536" % (so, so))
        if p < 27: G.sal.append("s_cmp_eq_u32 s%d, s%d\ns_cselect_b32 s%d, s%d, s%d" % (sB2, sBE, sB2, sB0, sB2))
    prewait2(0)
    half = None
    for u in range(NU):
        u0, C_, gn = gi[u]; kk = u - u0
        p, t = divmod(u, NT2) if u < UT else units[u]
        un = u + DB2
        if u == UOF:
            a.wait(vm="O")
            a.vmem("buffer_store_dword v%d, v%d, %s, 0 offen offset:64 sc1" % (V_ONE, V_FG, s4(R_WS)), "FO")
            if STCH & 4: selftouch(sO, True)
            side.extend(rec2.l)
        if u == cfg.get("f_uh", 2) and not stt["hok"]:
            a.wait(vm="PH"); spin(0xff00); stt["hok"] = True
            stampr("g2h")
        if u < UT and t == 1: stampr("g2p%d" % p)
        if u == UT: stampr("g2tail")
        if u > UT and (u - UT) % PL == 0: stampr("g2l%d" % ((u - UT) // PL))
        if u == UOP: poll_issue("PO")
        if u == UOC:
            a.wait(vm="PO"); spin(0xff0000 | (7 if DF else 0)); stt["ook"] = True
        for f in ev.get(u, []): f()
        if un < NU and units[un][0] > stt["ready"]:
            if half is not None:
                dma2_ops(half)[2][1](); b2sal(half); half = None
            need2(un)
        if u < UT and t == 2 and p % 2 == 1 and p > 1 and p - 2 + NSL < KS2: barrier2()
        pre_ = None; mem_ = None
        if half is not None:
            def mem_(h=half): dma2_ops(h)[2][1](); b2sal(h)
            half = None
        elif len(G.sal) <= 1:
            cand = [q for q in (ordA, ordB) if q and can2(q[0])]
            if cand:
                cand.sort(key=lambda q: q[0][1] - (cfg.get("f_bprio", 5) if q[0][0] == "B2" else 0))
                done_ = NOPS - len(ordA) - 2 * len(ordB)
                if done_ * UE2 <= u * NOPS or first_unit[cand[0][0][1]] - u <= MARG + (16 if cand[0][0][0] == "B2" else 0):
                    nxt = cand[0].pop(0)
                    if nxt[0] == "B2":
                        ops_ = dma2_ops(nxt[1])
                        pre_ = lambda o=ops_: (o[0][1](), True)[1]
                        mem_ = ops_[1][1]; half = nxt[1]
                    else:
                        mem_ = lambda n_=nxt: aload2(n_[1], n_[2])
        if not xdone and (u == cfg.get("f_ux", 9999) or (not ordA and not ordB and half is None and mem_ is None)):
            xdone = True
            if XD:
                side.append("s_mul_i32 s%d, s%d, 5120" % (t1, sW))
                for mt in range(MT):
                    side += ["s_add_u32 m0, s%d, %d" % (t1, 5 * STAGE + mt * 1024), None,
                             ("m", lambda: a.vmem("buffer_load_dwordx4 v%d, %s, s%d offen lds" % (V_XO, s4(R_X), sXO), "X")),
                             "s_add_u32 s%d, s%d, %d" % (sXO, sXO, 32768 if mt < 3 else -3 * 32768)]
            for mt in range(MT if not XD else 0):
                for hh in range(2):
                    def f(mt=mt, hh=hh):
                        a.vmem("buffer_load_dwordx2 %s, v%d, %s, s%d offen offset:%d" % (r2("v", VX[mt] + 2 * hh), V_XI, s4(R_X), sXO, hh * 32), "X")
                    side += [("m", f)] + [None] * (cfg.get("f_xsp", 1) if hh else 1)
                side.append("s_add_u32 s%d, s%d, %d" % (sXO, sXO, 32768 if mt < 3 else -3 * 32768))
        for mt in range(MT):
            m_, k_ = divmod(kk * MT + mt, C_)
            if cfg.get("f_kz", 1) and m_ % 2 == 1 and units[u0][0] > 0: k_ = C_ - 1 - k_
            mz = m_ if gn % 2 == 0 else MT - 1 - m_
            p_, t_ = units[u0 + k_]
            bf = r4("a", BR2 + ((u0 + k_) % RB2) * 4)
            af = r4("v", acc(mz, 6 + 2 * p_)) if p_ < 3 else r4("a", aslot(p_) + mz * 4)
            c = r4("v", acc2[(mz, t_)])
            a("%s %s, %s, %s, %s" % (MF, c, bf, af, "0" if p_ == 0 else c))
            rd = (lambda mt=mt: bread2(un, mt)) if (mt < 2 and un < NU) else None
            if mt == 0: G.gap(fixed=rd)
            elif mt == 1: G.gap(first=pre_, fixed=rd)
            elif mt == 2:
                if mem_:
                    assert not G.sal
                    G.gap(first=(lambda: a.throttle(THR2)), mem=mem_)
                else: G.gap()
            else:
                if kk == C_ - 1:
                    stt["issued"] = u
                    G.gap(first=(lambda: prewait2(u + 1)) if u + 1 < NU else None)
                else: G.gap()
        if u >= UT and (u - UT) % PL == PL - 1:
            lam = (u - UT) // PL
            if lam < 3:
                new_ = [None] * 5
                for mt in range(MT):
                    new_ += pack(acc2[(mt, 2 * lam)], acc2[(mt, 2 * lam + 1)])
                    if DF: new_ += ["v_min_u32 v%d, -2, v%d" % (acc2[(mt, 2 * lam)] + e, acc2[(mt, 2 * lam)] + e) for e in range(4)]
                    def f(mt=mt, lam=lam):
                        a.vmem("buffer_store_dwordx4 %s, v%d, %s, s%d offen offset:%d sc1" % (r4("v", acc2[(mt, 2 * lam)]), V_L16, s4(R_WS), sSX[lam], mt * 1024), ("S", lam))
                    new_.append(("m", f))
                side[:0] = new_
    if cfg.get("verbose"): print("G2 side left", len([x for x in side if x is not None]), file=sys.stderr)
    G.drain()
    assert not ordA and not ordB and xdone
    stampr("g2end")
    def ownadd():
        for mt in range(MT):
            for hh in range(2):
                for e2 in range(2):
                    c = PS(mt, hh) + 2 * e2; o_ = acc2[(mt, 6 + hh)] + 2 * e2
                    a("v_pk_add_f32 v[%d:%d], v[%d:%d], v[%d:%d]" % (c, c + 1, c, c + 1, o_, o_ + 1))
    if DF:
        R2D = cfg.get("f_r2d", 1)
        def rd2():
            for mt in range(MT): a.vmem(rtxt(2, mt), ("R", 2, mt))
        assert a.vm.count(("R", 0)) == 4 and a.vm.count(("R", 1)) == 4
        if R2D == 0: rd2()
        a.wait(vm=("R", 0))
        for x in rmax(0): a(x)
        rcheck(0)
        for mt in range(MT):
            for x in addpk([PS(mt, 0), PS(mt, 1)], rq[mt]): a(x)
        stampr("x1")
        if R2D == 1: rd2()
        ownadd()
        a.wait(vm=("R", 1))
        for x in rmax(1): a(x)
        rcheck(1)
        stampr("x2")
        if R2D == 2: rd2()
        for mt in range(MT):
            for x in addpk([PS(mt, 0), PS(mt, 1)], rq[4 + mt]): a(x)
        stampr("x3")
        a.wait(vm=("R", 2, 3))
        for x in rmax(2): a(x)
        rcheck(2)
        stampr("x4")
    elif F2:
        for lam in range(2):
            if ("F", lam) not in a.vm: flag(lam)
        early = "P1" in a.vm
        if not early:
            a("s_nop 7")
            ownadd()
        if ("F", 2) not in a.vm: flag(2)
        if not early: poll_issue("P1")
        stampr("x1")
        a.wait(vm="P1"); spin(1)
        for mt in range(MT): recv(0, mt)
        spin(2)
        stampr("x2")
        for mt in range(MT): recv(1, mt)
        poll_issue("P2")
        if early: ownadd()
        for mt in range(MT):
            a.wait(vm=("R", 0, mt))
            for x in addpk([PS(mt, 0), PS(mt, 1)], rq[mt]): a(x)
        a.wait(vm="P2"); spin(4)
        stampr("x3")
        for mt in range(MT): recv(2, mt)
        for mt in range(MT):
            for x in addpk([PS(mt, 0), PS(mt, 1)], rq[4 + mt]): a(x)
        stampr("x4")
    else:
        flag(2)
        poll_issue("P1")
        stampr("x1")
        for mt in range(MT):
            a.wait(vm=("R", 0, mt))
            for x in addpk([PS(mt, 0), PS(mt, 1)], rq[mt]): a(x)
        a.wait(vm="P1"); spin(2)
        stampr("x2")
        for mt in range(MT): recv(1, mt)
        poll_issue("P2")
        for mt in range(MT):
            for hh in range(2):
                for e2 in range(2):
                    c = PS(mt, hh) + 2 * e2; o_ = acc2[(mt, 6 + hh)] + 2 * e2
                    a("v_pk_add_f32 v[%d:%d], v[%d:%d], v[%d:%d]" % (c, c + 1, c, c + 1, o_, o_ + 1))
        a.wait(vm="P2"); spin(4)
        stampr("x3")
        for mt in range(MT): recv(2, mt)
        for mt in range(MT):
            for x in addpk([PS(mt, 0), PS(mt, 1)], rq[4 + mt]): a(x)
        stampr("x4")
    for mt in range(MT):
        a.wait(vm=("R", 2, mt))
        for x in addpk([PS(mt, 0), PS(mt, 1)], rq[8 + mt]): a(x)
        c0 = PS(mt, 0)
        if cfg.get("eps"):
            for hh in range(2):
                for e in range(4): a("v_mul_f32 v%d, 0x%x, v%d" % (PS(mt, hh) + e, f2u(1.0 + cfg["eps"] / 10000.0), PS(mt, hh) + e))
        for x in pack(c0, PS(mt, 1)): a(x)
        def ostore(m, reg):
            a.vmem("buffer_store_dwordx4 %s, v%d, %s, s%d offen %s" % (r4("v", reg), V_XO, s4(R_OUT), sXO, ["", "sc1", "nt"][cfg.get("f_of", 2)]), "OUT")
            if m < 3: a("s_add_u32 s%d, s%d, 32768" % (sXO, sXO))
        if CO:
            a.lds("ds_write_b64 v%d, %s offset:%d" % (V_OW, r2("v", c0), mt * 1280), ("ow", mt))
            a.lds("ds_write_b64 v%d, %s offset:%d" % (V_OW, r2("v", c0 + 2), mt * 1280 + 32), ("ow", mt))
            a.lds("ds_read_b128 %s, v%d offset:%d" % (r4("v", PS(mt, 1)), V_OR, mt * 1280), ("or", mt))
            if mt > 0:
                a.wait(lg=("or", mt - 1)); ostore(mt - 1, PS(mt - 1, 1))
            if mt == 3:
                a.wait(lg=("or", 3)); ostore(3, PS(3, 1))
        else:
            a("s_nop 1")
            a("v_permlane16_swap_b32 v%d, v%d" % (c0, c0 + 2))
            a("v_permlane16_swap_b32 v%d, v%d" % (c0 + 1, c0 + 3))
            ostore(mt, c0)
    stampr("x5")
    if ST:
        a("s_waitcnt vmcnt(0)")
        stampr("end")
        a("s_waitcnt lgkmcnt(0)")
        for i in range(8): a("v_mov_b32 v%d, s%d" % (i, STB + 2 * i))
        a("s_lshl_b32 s%d, s2, 2" % t0)
        a("s_add_u32 s%d, s%d, s%d" % (t0, t0, sW))
        a("s_lshl_b32 s%d, s%d, 5" % (t0, t0))
        a("v_mov_b32 v8, 0")
        a("s_nop 4")
        a("buffer_store_dwordx4 v[0:3], v8, %s, s%d offen" % (s4(R_WS), t0))
        a("buffer_store_dwordx4 v[4:7], v8, %s, s%d offen offset:16" % (s4(R_WS), t0))
    a.label("F_end")
    a("s_endpgm")
    kernel_desc(a, name, 256, sgpr=102, accum=256, agpr=256)
    return "; @launch kernel=%s grid=(256,1,1) block=(256,1,1) lds=163840" % name

gen.gen_f = gen_f

if __name__ == "__main__":
    cfg = dict(g1_mt=4)
    out = sys.argv[1]
    kernels = sys.argv[2].split(",")
    for kv in sys.argv[3:]:
        k, v = kv.split("="); cfg[k] = int(v, 0)
    open(out, "w").write(gen.build(cfg, kernels))
```

```python
import sys, math
from asmlib import *
import gen
from gen import *

class SA:
    def __init__(self, start, end):
        self.n = start; self.end = end; self.m = {}
    def new(self, name, cnt=1, align=1):
        self.n = (self.n + align - 1) // align * align
        r = self.n; self.n += cnt
        assert self.n <= self.end, "out of sgprs"
        self.m[name] = r
        return r

def s4(b): return "s[%d:%d]" % (b, b + 3)
MF = "v_mfma_f32_16x16x32_bf16"

def kind_of(op):
    if op is None: return None
    if isinstance(op, tuple): return op[0]
    t = op.lstrip()
    if t.startswith("s_"): return "s"
    if t.startswith("v_"): return "v"
    raise ValueError(op)

class Gaps:
    def __init__(self, a):
        self.a = a
        self.sal = []
        self.side = []
    def run(self, op):
        if isinstance(op, tuple): op[1]()
        else: self.a(op)
    def gap(self, first=None, fixed=None, mem=None):
        used0 = False
        room = 2
        if first is not None: used0 = bool(first())
        if not used0:
            if self.sal:
                x = self.sal.pop(0); self.a(x); used0 = True
                room -= x.count("\n")
            elif self.side and kind_of(self.side[0]) == "s":
                self.run(self.side.pop(0)); used0 = True
        if mem is not None:
            mem(); return
        if fixed is not None:
            fixed(); room -= 1
        if self.side and self.side[0] is None:
            self.side.pop(0)
            skip = True
        else: skip = False
        while room > 0:
            if self.sal and self.sal[0].count("\n") < room:
                x = self.sal.pop(0); self.a(x); room -= 1 + x.count("\n"); continue
            if skip or not self.side or self.side[0] is None: break
            k = kind_of(self.side[0])
            if k in ("m", "x"):
                if room == 2:
                    self.run(self.side.pop(0))
                break
            self.run(self.side.pop(0)); room -= 1
    def drain_sal(self):
        while self.sal: self.a(self.sal.pop(0))
    def drain(self):
        self.drain_sal()
        for op in self.side:
            if op is not None: self.run(op)
        self.side = []

def ln_ops(exact=1):
    o = []
    a = o.append
    pk = lambda op, d, x, y, mod="": a("%s v[%d:%d], v[%d:%d], v[%d:%d]%s" % (op, d, d + 1, x, x + 1, y, y + 1, mod))
    for i in range(16):
        if i % 4 == 0: a("WAIT%d" % (i // 4))
        a("v_lshlrev_b32 v%d, 16, v%d" % (24 + 2 * i, 8 + i))
        a("v_and_b32 v%d, 0xffff0000, v%d" % (25 + 2 * i, 8 + i))
        if i == 1: pk("v_pk_add_f32", 56, 24, 26)
        elif i == 3: pk("v_pk_add_f32", 58, 28, 30)
        elif i > 3: pk("v_pk_add_f32", 56 + 2 * (i & 1), 56 + 2 * (i & 1), 24 + 2 * i)
    pk("v_pk_add_f32", 56, 56, 58)
    a("v_add_f32 v56, v56, v57")
    def xlane_sum(r, t):
        a("s_nop 1")
        a("v_add_f32_dpp v%d, v%d, v%d row_ror:8 row_mask:0xf bank_mask:0xf" % (r, r, r))
        for op in ("v_permlane16_swap_b32", "v_permlane32_swap_b32"):
            a("v_mov_b32 v%d, v%d" % (t, r))
            a("s_nop 1")
            a("%s v%d, v%d" % (op, r, t))
            a("v_add_f32 v%d, v%d, v%d" % (r, r, t))
    xlane_sum(56, 57)
    a("v_mul_f32 v56, 0x%x, v56" % f2u(1.0 / 256))
    neg = " op_sel_hi:[1,0] neg_lo:[0,1] neg_hi:[0,1]"
    for i in range(16):
        t = 62 + 2 * (i & 1); ac = 66 + 2 * (i & 1)
        pk("v_pk_add_f32", t, 24 + 2 * i, 56, neg)
        if i < 2: pk("v_pk_mul_f32", ac, t, t)
        else: a("v_pk_fma_f32 v[%d:%d], v[%d:%d], v[%d:%d], v[%d:%d]" % (ac, ac + 1, t, t + 1, t, t + 1, ac, ac + 1))
    pk("v_pk_add_f32", 66, 66, 68)
    a("v_add_f32 v57, v66, v67")
    xlane_sum(57, 58)
    a("ds_write_b64 v7, v[56:57]")
    a("s_waitcnt lgkmcnt(0)")
    a("s_barrier")
    for k in range(4): a("ds_read_b64 v[%d:%d], v60 offset:%d" % (62 + 2 * k, 63 + 2 * k, 64 * k))
    a("s_waitcnt lgkmcnt(0)")
    pk("v_pk_add_f32", 56, 62, 64)
    pk("v_pk_add_f32", 58, 66, 68)
    pk("v_pk_add_f32", 56, 56, 58)
    a("v_mul_f32 v56, 0x3e800000, v56")
    a("v_sub_f32 v59, v62, v56")
    a("v_mul_f32 v58, v59, v59")
    for r in (64, 66, 68):
        a("v_sub_f32 v59, v%d, v56" % r)
        a("v_fmac_f32 v58, v59, v59")
    a("v_fmac_f32 v57, 0x43800000, v58")
    a("v_mul_f32 v57, 0x%x, v57" % f2u(1.0 / 1024))
    a("v_cvt_pk_bf16_f32 v58, v56, v57")
    a("v_lshlrev_b32 v56, 16, v58")
    a("v_and_b32 v57, 0xffff0000, v58")
    a("v_add_f32 v57, 0x%x, v57" % f2u(1e-5))
    a("v_cvt_pk_bf16_f32 v57, v57, v57")
    a("v_and_b32 v57, 0xffff0000, v57")
    a("v_sqrt_f32 v57, v57")
    a("s_nop 0")
    a("v_cvt_pk_bf16_f32 v57, v57, v57")
    a("v_and_b32 v57, 0xffff0000, v57")
    a("v_rcp_f32 v58, v57")
    for i in range(16):
        pk("v_pk_add_f32", 24 + 2 * i, 24 + 2 * i, 56, neg)
        if i > 0:
            j = i - 1
            if exact:
                a("v_cvt_pk_bf16_f32 v%d, v%d, v%d" % (25 + 2 * j, 24 + 2 * j, 25 + 2 * j))
                a("v_lshlrev_b32 v%d, 16, v%d" % (24 + 2 * j, 25 + 2 * j))
                a("v_and_b32 v%d, 0xffff0000, v%d" % (25 + 2 * j, 25 + 2 * j))
            pk("v_pk_mul_f32", 24 + 2 * j, 24 + 2 * j, 58, " op_sel_hi:[1,0]")
            a("v_cvt_pk_bf16_f32 v%d, v%d, v%d" % (8 + j, 24 + 2 * j, 25 + 2 * j))
            if j % 4 == 3: a("STORE%d" % (j // 4))
    if exact:
        a("v_cvt_pk_bf16_f32 v55, v54, v55")
        a("v_lshlrev_b32 v54, 16, v55")
        a("v_and_b32 v55, 0xffff0000, v55")
    pk("v_pk_mul_f32", 54, 54, 58, " op_sel_hi:[1,0]")
    a("v_cvt_pk_bf16_f32 v23, v54, v55")
    a("STORE3")
    return o

def gen_f(a, cfg):
    name = NAME + "_kernel" if cfg.get("single") else "f_kernel"
    FLN = cfg.get("f_ln", 0)
    SPIN = cfg.get("spin", 0x40000)
    ST = cfg.get("stamp")
    MT = 4
    sa = SA(3, 84)
    P_WQ = sa.new("pwq", 2, 2); P_W1 = sa.new("pw1", 2, 2); P_WS = sa.new("pws", 2, 2); P_X = sa.new("px", 2, 2)
    P_W2 = sa.new("pw2", 2, 2); P_WO = sa.new("pwo", 2, 2); P_OUT = sa.new("pout", 2, 2)
    R_WQ = sa.new("rwq", 4, 4); R_W1 = sa.new("rw1", 4, 4); R_W2 = sa.new("rw2", 4, 4); R_WO = sa.new("rwo", 4, 4)
    R_WS = sa.new("rws", 4, 4)
    sW = sa.new("w"); sI = sa.new("i"); sJ = sa.new("j"); sJ1 = sa.new("j1"); sQ = sa.new("q"); sN = sa.new("n")
    sBQ = sa.new("bq"); sBV = sa.new("bv"); sBW = sa.new("bw"); sBL = sa.new("bl"); sLB = sa.new("lb"); sA = sa.new("a")
    sCLS = sa.new("cls"); t0 = sa.new("t0"); t1 = sa.new("t1"); t2 = sa.new("t2"); t3 = sa.new("t3")
    sMK = sa.new("mask", 8, 2)
    sKV = sa.new("kv"); sKV2 = sa.new("kv2"); sKP = sa.new("kp"); sKP2 = sa.new("kp2"); sFK = sa.new("fk"); sFO = sa.new("fo")
    sH = sa.new("h", 4); sSC = sa.new("sc", 2, 2); sO = sSC + 1; sA0 = sa.new("a0"); sB0 = sa.new("b0"); sAE = sa.new("aend"); sBE = sa.new("bend")
    sXO = sa.new("xo"); sSP = sa.new("spin")
    sDL = sMK
    STB = 84
    SETS = {1: ["start", "bar0", "g1end", "attbeg", "attend", "g2beg", "g2end", "end"],
            2: ["start", "g1half", "g1tail", "g1kv", "g1flag1", "g1chk", "g1kb", "g1end"],
            3: ["start", "attbeg", "att0", "att1", "att2", "att3", "att4", "attend"],
            4: ["start", "att4", "g2h", "g2beg", "g2p4", "g2p12", "g2tail", "g2end"],
            5: ["start", "g2end", "x1", "x2", "x3", "x4", "x5", "end"],
            7: ["g2beg", "g2p3", "g2p6", "g2p10", "g2p14", "g2p18", "g2p22", "g2end"],
            8: ["g2p22", "g2tail", "g2l1", "g2l2", "g2l3", "g2end", "x3", "end"],
            9: ["start", "lnx", "lns", "lnd", "lnp", "g1s1", "g1s4", "g1s8"],
            10: ["start", "k0", "k1", "k2", "k3", "k4", "lnx", "lns"],
            6: ["start", "bar0", "g1s2", "g1s4", "g1s8", "g1half", "g1s20", "g1tail"]}
    jn = [0]
    def stampr(nm):
        J = cfg.get("jit", 0)
        if J and nm != "start":
            jn[0] += 1
            lab = a.newlabel("F_j")
            a("s_lshl_b32 s84, s2, 2")
            if J & 1: a("s_add_u32 s84, s84, s%d" % sW)
            a("s_add_u32 s84, s84, %d" % (jn[0] * 7919 + J * 31))
            a("s_mul_i32 s84, s84, 0x9e3779b1")
            a("s_lshr_b32 s84, s84, 28")
            a("s_cmp_lg_u32 s84, 0")
            a("s_cbranch_scc1 %s" % lab)
            for _ in range(cfg.get("jitn", 2)): a("s_sleep 127")
            a.label(lab)
        if ST and nm in SETS[ST]:
            i = SETS[ST].index(nm)
            a("%s s[%d:%d]" % ("s_memtime" if cfg.get("clk") else "s_memrealtime", STB + 2 * i, STB + 2 * i + 1))

    NT = 13; KS = 32
    NS = 5; REG = 7168; STAGE = 4 * REG
    D1 = cfg.get("f_d1", 8)
    RA = cfg.get("f_ra1", 12)
    LA = cfg.get("f_la1", 4)
    C1 = cfg.get("f_c1", 2)
    C1K = cfg.get("f_c1k", 2); C1T = cfg.get("f_c1t", 4); C1S = cfg.get("f_c1s", 0)
    CM1 = max(C1, C1K, C1T)
    DB = cfg.get("f_db1", CM1 + 2); RB = DB + max(CM1, 2)
    assert DB >= CM1
    S1 = KS - D1
    def slot1(g): return (15 - g) % 5
    KVB = 96 * 1024
    def acc(mt, t): return (t * MT + mt) * 4
    V_L16 = 208; V_QKV = 209; V_W1 = 210; V_LEFT = 211
    V_RD = 212
    V_P0, V_P1, V_P2 = 221, 222, 223
    V_LANE = 224; V_FL0 = 225; V_ONE = 226; V_POLL = 227; V_KVW = 228; V_FG = 229; V_PL = 230
    T = 232
    A_PD = 255
    AR = 0; BR = RA * 16
    assert BR + RB * 4 <= 254

    kernel_begin(a, name)
    a.reset()
    stampr("start")
    a("s_cmp_ge_u32 s2, 256")
    a("s_cbranch_scc1 F_end")
    if cfg.get("idx"): a("s_xor_b32 s2, s2, %d" % cfg["idx"])
    SWP = cfg.get("f_swp", 0)
    if SWP:
        a("s_lshr_b32 s%d, s2, 1" % t0)
        a("s_xor_b32 s%d, s%d, s2" % (t0, t0))
        a("s_and_b32 s%d, s%d, 1" % (t0, t0))
        a("s_mul_i32 s%d, s%d, 3" % (t0, t0))
        a("s_xor_b32 s2, s2, s%d" % t0)
    if cfg.get("jit"):
        a("s_mul_i32 s84, s2, 0x9e3779b1")
        a("s_lshr_b32 s84, s84, 28")
        a("s_cmp_lg_u32 s84, %d" % (cfg["jit"] & 15))
        a("s_cbranch_scc1 F_j0")
        for _ in range(4): a("s_sleep 127")
        a.label("F_j0")
    a("s_load_dwordx2 s[%d:%d], s[0:1], 8" % (P_WQ, P_WQ + 1))
    a("s_load_dwordx2 s[%d:%d], s[0:1], 32" % (P_W1, P_W1 + 1))
    a("s_load_dwordx2 s[%d:%d], s[0:1], 64" % (P_WS, P_WS + 1))
    a("s_load_dwordx2 s[%d:%d], s[0:1], 0" % (P_X, P_X + 1))
    a("s_load_dwordx2 s[%d:%d], s[0:1], 40" % (P_W2, P_W2 + 1))
    a("s_load_dwordx2 s[%d:%d], s[0:1], 16" % (P_WO, P_WO + 1))
    a("s_load_dwordx2 s[%d:%d], s[0:1], 48" % (P_OUT, P_OUT + 1))
    if FLN:
        lab = a.newlabel("F_pc")
        a("s_getpc_b64 s[%d:%d]" % (R_WO, R_WO + 1))
        a.label(lab)
        a("s_and_b32 s%d, s%d, 0xffff" % (R_WO + 1, R_WO + 1))
        a("s_mov_b32 s%d, CODE_END - %s" % (R_WO + 2, lab))
        a("s_mov_b32 s%d, 0x00020000" % (R_WO + 3))
        a("s_lshr_b32 s%d, s2, 3" % t0)
        a("s_lshl_b32 s%d, s%d, 7" % (t0, t0))
        a("v_lshlrev_b32 v70, 12, v0")
        a.vmem("buffer_load_dword v76, v70, %s, s%d offen" % (s4(R_WO), t0), "T")
    if FLN: a("s_load_dwordx2 s[100:101], s[0:1], 56")
    L = V_LANE
    a("v_and_b32 v%d, 63, v0" % L)
    a("v_lshrrev_b32 v%d, 6, v0" % (T + 1))
    a("v_lshlrev_b32 v%d, 4, v%d" % (V_L16, L))
    a("v_readfirstlane_b32 s%d, v%d" % (sW, T + 1))
    a("s_and_b32 s%d, s2, 1" % sI)
    a("s_lshl_b32 s%d, s%d, 2" % (sI, sI))
    a("s_bfe_u32 s%d, s2, 0x20003" % t0)
    a("s_add_u32 s%d, s%d, s%d" % (sI, sI, t0))
    a("s_bfe_u32 s%d, s2, 0x20001" % sQ)
    a("s_lshr_b32 s%d, s2, 5" % sN)
    a("s_lshl_b32 s%d, s%d, 3" % (sJ, sQ))
    a("s_add_u32 s%d, s%d, s%d" % (sJ, sJ, sN))
    a("s_and_b32 s%d, s%d, 1" % (sJ1, sN))
    if FLN:
        a("v_and_b32 v3, 7, v%d" % L)
        a("v_lshrrev_b32 v4, 3, v%d" % L)
        LXD = cfg.get("f_lxd", 0)
        if LXD:
            a("v_xor_b32 v83, v3, v4")
            a("v_lshlrev_b32 v5, 11, v4")
            a("v_lshl_add_u32 v5, v%d, 9, v5" % (T + 1))
            a("v_lshl_add_u32 v5, v83, 4, v5")
            a("s_lshl_b32 s%d, s%d, 12" % (t1, sW))
            a("s_add_u32 s%d, s%d, %d" % (t1, t1, 144 * 1024))
            a("s_mov_b32 m0, s%d" % t1)
        else:
            a("v_lshlrev_b32 v5, 11, v3")
            a("v_lshl_add_u32 v5, v%d, 9, v5" % (T + 1))
            a("v_lshl_add_u32 v5, v4, 4, v5")
        a("s_lshl_b32 s%d, s%d, 5" % (t3, sI))
        a("s_add_u32 s%d, s%d, s%d" % (t3, t3, sJ))
        a("s_lshl_b32 s%d, s%d, 14" % (sFK, t3))
        assert not LXD or not cfg.get("f_early", 0)
    def xloads():
        stampr("k0")
        a("s_waitcnt lgkmcnt(0)")
        stampr("k1")
        srd(a, R_W2, P_X, S * D * 2)
        for i in range(4):
            if LXD:
                a.vmem("buffer_load_dwordx4 v5, %s, s%d offen offset:%d lds" % (s4(R_W2), sFK, i * 128), ("LX", i))
                if i < 3:
                    a("s_add_u32 m0, m0, %d" % (1024 - 128))
                    a("s_nop 0")
            else: a.vmem("buffer_load_dwordx4 %s, v5, %s, s%d offen offset:%d" % (r4("v", 8 + 4 * i), s4(R_W2), sFK, i * 128), ("LX", i))
        if LXD:
            a("v_lshlrev_b32 v83, 4, v83")
            a("v_lshl_add_u32 v83, v3, 7, v83")
            a("v_add_u32 v83, s%d, v83" % t1)
        stampr("k2")
        srd(a, R_WS, P_WS, WS_END)
        a("s_lshl_b32 s%d, s%d, 12" % (sSP, sI))
        a("s_add_u32 s%d, s%d, 0x%x" % (sXO, sSP, WS_LF))
        a("v_and_b32 v80, 31, v%d" % L)
        a("v_lshlrev_b32 v80, %d, v80" % cfg.get("f_lfs", 2))
        a("v_add_u32 v80, s%d, v80" % sXO)
        a.vmem("buffer_load_dword v81, v80, %s, 0 offen sc1" % s4(R_WS), "SN")
    if FLN and not cfg.get("f_early", 0): xloads()
    VQ3 = [V_QKV, 240, 241]; VW3 = [V_W1, 242, 243]
    a("v_lshrrev_b32 v%d, 2, v%d" % (T + 2, L))
    a("v_and_b32 v%d, 3, v%d" % (T + 4, L))
    a("v_lshlrev_b32 v%d, 4, v%d" % (T + 4, T + 4))
    a("v_mul_u32_u24 v%d, %d, v%d" % (T + 5, 16 * 6144, T + 1))
    a("v_lshl_add_u32 v%d, v%d, 11, v%d" % (T + 5, T + 2, T + 5))
    a("v_add_u32 v%d, v%d, v%d" % (VQ3[0], T + 5, T + 4))
    a("v_and_b32 v%d, 32, v%d" % (T + 3, L))
    a("v_xor_b32 v%d, v%d, v%d" % (VQ3[1], VQ3[0], T + 3))
    a("v_add_u32 v%d, 32768, v%d" % (VQ3[1], VQ3[1]))
    a("v_xor_b32 v%d, 32, v%d" % (VQ3[2], VQ3[0]))
    a("v_add_u32 v%d, 65536, v%d" % (VQ3[2], VQ3[2]))
    a("v_mul_u32_u24 v%d, %d, v%d" % (T + 5, 16 * 7168, T + 1))
    a("v_add_u32 v%d, v%d, v%d" % (T + 5, T + 5, T + 4))
    for m in range(3):
        if m: a("v_add_u32 v%d, 16, v%d" % (T + 2, T + 2))
        a("v_mul_u32_u24 v%d, 43, v%d" % (T + 4, T + 2))
        a("v_lshrrev_b32 v%d, 7, v%d" % (T + 4, T + 4))
        a("v_mul_u32_u24 v%d, %d, v%d" % (T + 4, 7168 - 192, T + 4))
        a("v_lshl_add_u32 v%d, v%d, 6, v%d" % (T + 4, T + 2, T + 4))
        a("v_add_u32 v%d, v%d, v%d" % (VW3[m], T + 4, T + 5))
        if m == 1: a("v_xor_b32 v%d, v%d, v%d" % (VW3[m], VW3[m], T + 3))
        if m == 2: a("v_xor_b32 v%d, 32, v%d" % (VW3[m], VW3[m]))
    a("v_bfe_u32 v%d, v%d, 3, 1" % (T + 2, L))
    a("v_lshlrev_b32 v%d, 3, v%d" % (T + 2, T + 2))
    a("v_bfe_u32 v%d, v%d, 4, 1" % (T + 3, L))
    a("v_lshl_add_u32 v%d, v%d, 2, v%d" % (T + 2, T + 3, T + 2))
    a("v_bfe_u32 v%d, v%d, 1, 2" % (T + 3, L))
    a("v_add_u32 v%d, v%d, v%d" % (T + 2, T + 2, T + 3))
    a("v_lshl_add_u32 v%d, v%d, 4, v%d" % (T + 2, T + 1, T + 2))
    a("v_mul_u32_u24 v%d, 7168, v%d" % (V_LEFT, T + 2))
    a("v_and_b32 v%d, 1, v%d" % (T + 3, L))
    a("v_lshl_add_u32 v%d, v%d, 4, v%d" % (V_LEFT, T + 3, V_LEFT))
    a("v_lshrrev_b32 v%d, 5, v%d" % (T + 3, L))
    a("v_lshl_add_u32 v%d, v%d, 30, v%d" % (V_LEFT, T + 3, V_LEFT))
    a("s_lshl_b32 s%d, s%d, 6" % (sBQ, sJ))
    a("s_mul_i32 s%d, s%d, 224" % (sBL, sJ))
    a("s_lshl_b32 s%d, s%d, 5" % (t0, sJ1))
    a("s_add_u32 s%d, s%d, s%d" % (sBW, sBL, t0))
    a("s_xor_b32 s%d, s%d, 1" % (t0, sJ1))
    a("s_mul_i32 s%d, s%d, 192" % (t0, t0))
    a("s_add_u32 s%d, s%d, s%d" % (sBL, sBL, t0))
    a("s_mul_i32 s%d, s%d, %d" % (sLB, sW, REG))
    a("s_lshl_b32 s%d, s%d, 2" % (sA, sI))
    a("s_add_u32 s%d, s%d, s%d" % (sA, sA, sW))
    a("s_lshl_b32 s%d, s%d, 17" % (sA, sA))
    a("s_add_u32 s%d, s%d, 0x%x" % (sA, sA, WS_XN))
    ROT = cfg.get("f_rot", 1)
    a("s_add_u32 s%d, s%d, s%d" % (t1, sI, sN))
    a("s_and_b32 s%d, s%d, %d" % (t1, t1, 3 if ROT else 0))
    for k in range(3):
        a("s_cmp_eq_u32 s%d, %d" % (t1, 3 - k))
        a("s_cselect_b32 s%d, -3, 1" % (sDL + k))
    a("s_cmp_eq_u32 s%d, 0" % t1)
    a("s_cselect_b32 s%d, 1, 5" % (sDL + 3))
    a("s_mul_i32 s%d, s%d, %d" % (t0, t1, 64 * 6144))
    a("s_add_u32 s%d, s%d, s%d" % (sBQ, sBQ, t0))
    a("s_mul_i32 s%d, s%d, %d" % (t0, t1, 64 * 7168))
    a("s_add_u32 s%d, s%d, s%d" % (sBW, sBW, t0))
    a("s_add_u32 s%d, s%d, s%d" % (sBL, sBL, t0))
    a("s_lshl_b32 s%d, s%d, 13" % (t0, t1))
    a("s_add_u32 s%d, s%d, s%d" % (sA, sA, t0))
    for k in range(4):
        a("s_lshl_b32 s%d, s%d, 13" % (sDL + 4 + k, sDL + k))
        a("s_sub_u32 s%d, s%d, 4096" % (sDL + 4 + k, sDL + 4 + k))
    if FLN and cfg.get("f_early", 0): xloads()
    elif not FLN: a("s_waitcnt lgkmcnt(0)")
    srd(a, R_WQ, P_WQ, D * 3 * D * 2)
    srd(a, R_W1, P_W1, D * DFF * 2)
    if not FLN: srd(a, R_WS, P_WS, WS_END)

    G = Gaps(a)
    PAIRPOS = [0, 2, 1, 3, 4, 5]
    def dma1(g, k, part):
        p, vreg, sb, so, imm = [(0, VQ3[0], R_WQ, sBQ, 0), (1, VQ3[1], R_WQ, sBQ, 0), (2, VQ3[2], R_WQ, sBQ, 0),
                                (3, VW3[0], R_W1, sBW, 0), (4, VW3[1], R_W1, sBW, 0), (5, VW3[2], R_W1, sBW, 0), (6, V_LEFT, R_W1, sBL, 0)][k]
        if part == 0:
            a("s_add_u32 m0, s%d, %d" % (sLB, slot1(g) * STAGE + p * 1024 - imm))
        else:
            a.vmem("buffer_load_dwordx4 v%d, %s, s%d offen offset:%d lds" % (vreg, s4(sb), so, imm), ("B", g))
            if k == 0: G.sal.append("s_mul_i32 s%d, s%d, %d" % (t2, sDL + (g & 3), 64 * 6144))
            if k == 2: G.sal.append("s_add_u32 s%d, s%d, s%d" % (sBQ, sBQ, t2))
            if k == 3: G.sal.append("s_mul_i32 s%d, s%d, %d" % (t2, sDL + (g & 3), 64 * 7168))
            if k == 5: G.sal.append("s_add_u32 s%d, s%d, s%d" % (sBW, sBW, t2))
            if k == 6: G.sal.append("s_add_u32 s%d, s%d, s%d" % (sBL, sBL, t2))
    def aload1(s, mt):
        a.vmem("buffer_load_dwordx4 %s, v%d, %s, s%d offen offset:%d%s" % (r4("a", AR + (s % RA) * 16 + mt * 4), V_L16, s4(R_WS), sA, mt * 1024, " sc1" if FLN else ""), ("A", s))
        if mt == MT - 1:
            if s % 2 == 0: G.sal.append("s_add_u32 s%d, s%d, 4096" % (sA, sA))
            else: G.sal.append("s_add_u32 s%d, s%d, s%d" % (sA, sA, sDL + 4 + ((s // 2) & 3)))
    order = []
    for g in range(16):
        for k in range(7): order.append(("B", g, k))
        for s in (2 * g, 2 * g + 1):
            for mt in range(MT): order.append(("A", s, mt))
    def issue1(op):
        G.drain_sal()
        if op[0] == "A": aload1(op[1], op[2])
        else:
            dma1(op[1], op[2], 0); a("s_nop 0"); dma1(op[1], op[2], 1)
        G.drain_sal()
    if FLN:
        nb = cfg.get("f_lnb", 1)
        bops = [o for o in order if o[0] == "B" and o[1] < nb]
        for o in bops: order.remove(o)
        BO = cfg.get("f_bo", 0)
        late_b = []
        if BO == 1: late_b = bops[:3]; bops = bops[3:]
        if BO == 2: late_b = bops[3:]; bops = bops[:3]
        TB0 = cfg.get("f_tb", 0)
        def touchb():
            a("s_lshr_b32 s%d, s2, 3" % t1)
            a("s_lshl_b32 s%d, s%d, 2" % (t1, t1))
            a("s_add_u32 s%d, s%d, s%d" % (t1, t1, sW))
            a("v_lshrrev_b32 v84, 4, v%d" % L)
            a("v_and_b32 v85, 15, v%d" % L)
            a("v_mul_u32_u24 v86, 7168, v84")
            a("v_lshl_add_u32 v86, v85, 7, v86")
            a("v_mul_u32_u24 v84, 6144, v84")
            a("v_lshrrev_b32 v87, 2, v85")
            a("v_lshl_add_u32 v84, v87, 11, v84")
            a("v_and_b32 v87, 3, v85")
            a("v_lshl_add_u32 v84, v87, 7, v84")
            a("s_mul_i32 s%d, s%d, %d" % (t0, t1, 2 * 6144))
            a("s_lshl_b32 s%d, s%d, 9" % (t2, sQ))
            a("s_add_u32 s%d, s%d, s%d" % (sKV, t0, t2))
            a("s_mul_i32 s%d, s%d, %d" % (t0, t1, 2 * 7168))
            a("s_mul_i32 s%d, s%d, 1792" % (t2, sQ))
            a("s_add_u32 s%d, s%d, s%d" % (sKV2, t0, t2))
        def touchb2():
            a("s_mov_b64 exec, 0x0fff0fff")
            a.vmem("buffer_load_dword a%d, v84, %s, s%d offen" % (A_PD, s4(R_WQ), sKV), "T")
            a("s_mov_b64 exec, 0x3fff3fff")
            a.vmem("buffer_load_dword a%d, v86, %s, s%d offen" % (A_PD, s4(R_W1), sKV2), "T")
            a("s_mov_b64 exec, -1")
        HT = cfg.get("f_ht", 0)
        def hottouch(b):
            a("s_mov_b32 s%d, %d" % (t0, b * 256 * 6144))
            a.vmem("buffer_load_dword a%d, v%d, %s, s%d offen" % (A_PD, V_P1, s4(R_WQ), t0), "T")
        if HT:
            a("s_lshr_b32 s%d, s2, 3" % t1)
            a("s_lshl_b32 s%d, s%d, 2" % (t1, t1))
            a("s_add_u32 s%d, s%d, s%d" % (t1, t1, sW))
            a("s_mul_i32 s%d, s%d, %d" % (t1, t1, 2 * 6144))
            a("s_mul_i32 s%d, s%d, 0x40000200" % (t0, sQ))
            a("s_and_b32 s%d, s%d, 0x7fffffff" % (t0, t0))
            a("s_add_u32 s%d, s%d, s%d" % (t1, t1, t0))
            a("s_add_u32 s%d, s%d, 384" % (t1, t1))
            a("v_lshlrev_b32 v%d, 11, v%d" % (V_P1, L))
            a("v_add_u32 v84, 58, v%d" % L)
            a("v_lshrrev_b32 v84, 6, v84")
            a("v_lshl_add_u32 v%d, v84, 30, v%d" % (V_P1, V_P1))
            a("v_add_u32 v%d, s%d, v%d" % (V_P1, t1, V_P1))
            if HT & 1: hottouch(0)
        if TB0: touchb()
        if TB0 == 1: touchb2()
        for _ in range(cfg.get("f_lnb0", 2)): issue1(bops.pop(0))
        a("s_lshl_b32 s%d, s2, 9" % t0)
        a("s_add_u32 s%d, s%d, 0x%x" % (t0, t0, WS_FL))
        a("v_lshlrev_b32 v70, 2, v0")
        a("v_lshrrev_b32 v71, 7, v0")
        a("v_lshl_add_u32 v70, v71, 30, v70")
        a("v_mov_b32 v71, 0")
        a.vmem("buffer_store_dword v71, v70, %s, s%d offen sc1" % (s4(R_WS), t0), "Z")
        a("s_lshr_b32 s%d, s%d, 3" % (t0, t3))
        a("s_lshl_b32 s%d, s%d, 17" % (t0, t0))
        a("s_bfe_u32 s%d, s%d, 0x20001" % (t1, t3))
        a("s_lshl_b32 s%d, s%d, 10" % (t1, t1))
        a("s_add_u32 s%d, s%d, s%d" % (t0, t0, t1))
        a("s_and_b32 s%d, s%d, 1" % (t1, t3))
        a("s_lshl_b32 s%d, s%d, 7" % (t1, t1))
        a("s_add_u32 s%d, s%d, s%d" % (t0, t0, t1))
        a("s_add_u32 s%d, s%d, 0x%x" % (t3, t0, WS_XN))
        a("v_lshrrev_b32 v6, 2, v4")
        a("v_lshl_add_u32 v6, v%d, 3, v6" % (T + 1))
        a("v_lshlrev_b32 v6, 12, v6")
        a("v_and_b32 v7, 3, v4")
        a("v_lshl_add_u32 v6, v7, 8, v6")
        a("v_lshl_add_u32 v6, v3, 4, v6")
        a("v_lshl_add_u32 v7, v%d, 3, v3" % (T + 1))
        a("v_lshlrev_b32 v7, 3, v7")
        a("v_add_u32 v7, %d, v7" % (5 * STAGE))
        a("v_lshlrev_b32 v60, 3, v3")
        a("v_add_u32 v60, %d, v60" % (5 * STAGE))
        stampr("k3")
        if LXD:
            for i in range(4):
                a.wait(vm=("LX", i))
                if i == 0: stampr("k4")
                a("ds_read_b128 %s, v83 offset:%d" % (r4("v", 8 + 4 * i), i * 1024))
            a("s_waitcnt lgkmcnt(0)")
        elif not cfg.get("f_lxp", 1): a.wait(vm=("LX", 3))
        stampr("lnx")
        if TB0 == 2: touchb2()
        lo_ = ln_ops(cfg.get("f_lnex", 1))
        gap_ = cfg.get("f_lngap", 20)
        for k, x in enumerate(lo_):
            if x.startswith("WAIT"): a.wait(vm=("LX", int(x[4:])))
            elif x.startswith("STORE"):
                i = int(x[5:])
                a.vmem("buffer_store_dwordx4 %s, v6, %s, s%d offen sc1" % (r4("v", 8 + 4 * i), s4(R_WS), t3), "XS")
                if i < 3: a("s_add_u32 s%d, s%d, %d" % (t3, t3, 8192))
            else: a(x)
            if k % gap_ == gap_ - 1 and bops and k < cfg.get("f_lnk", 110): issue1(bops.pop(0))
        bops += late_b
        if cfg.get("f_bnow", 1):
            while bops: issue1(bops.pop(0))
        stampr("lns")
    else:
        for _ in range(cfg.get("f_pro1", 15)): issue1(order.pop(0))

    srd(a, R_W2, P_W2, DFF * D * 2)
    srd(a, R_WO, P_WO, D * D * 2)
    a("s_bfe_u32 s%d, s2, 0x30003" % sCLS)
    a("v_bfrev_b32 v%d, 1" % (T + 6))
    if cfg.get("f_pf", 0):
        a("s_lshr_b32 s%d, s2, 6" % t1)
        a("s_lshl_b32 s%d, s%d, 2" % (t1, t1))
        a("s_add_u32 s%d, s%d, s%d" % (t1, t1, sW))
        a("v_bfrev_b32 v%d, 1" % (T + 6))
        a("v_lshrrev_b32 v%d, 5, v%d" % (T + 2, L))
        a("s_lshl_b32 s%d, s%d, 1" % (t0, t1))
        a("v_add_u32 v%d, s%d, v%d" % (T + 2, t0, T + 2))
        a("v_and_b32 v%d, 31, v%d" % (T + 3, L))
        a("v_mul_u32_u24 v%d, 7168, v%d" % (V_P1, T + 2))
        a("v_lshl_add_u32 v%d, v%d, 7, v%d" % (V_P1, T + 3, V_P1))
        a("s_mul_i32 s%d, s%d, 1792" % (t0, sQ))
        a("v_add_u32 v%d, s%d, v%d" % (V_P1, t0, V_P1))
        a("v_mul_u32_u24 v%d, 6144, v%d" % (V_P0, T + 2))
        a("v_lshrrev_b32 v%d, 2, v%d" % (T + 4, T + 3))
        a("v_lshl_add_u32 v%d, v%d, 11, v%d" % (V_P0, T + 4, V_P0))
        a("v_and_b32 v%d, 3, v%d" % (T + 4, T + 3))
        a("v_lshl_add_u32 v%d, v%d, 7, v%d" % (V_P0, T + 4, V_P0))
        a("s_lshl_b32 s%d, s%d, 9" % (t0, sQ))
        a("v_add_u32 v%d, s%d, v%d" % (V_P0, t0, V_P0))
        a("v_cmp_le_u32 vcc, 12, v%d" % (T + 3))
        a("s_and_b32 s%d, s2, 1" % t0)
        a("s_lshl_b32 s%d, s%d, 4" % (t0, t0))
        a("v_cndmask_b32 v%d, v%d, v%d, vcc" % (V_P0, V_P0, T + 6))
        a("v_cmp_le_u32 vcc, 14, v%d" % (T + 3))
        a("s_add_u32 s%d, s%d, s%d" % (t0, t0, t1))
        a("s_lshl_b32 s%d, s%d, 17" % (t0, t0))
        a("v_cndmask_b32 v%d, v%d, v%d, vcc" % (V_P1, V_P1, T + 6))
        a("s_add_u32 s%d, s%d, 0x%x" % (t0, t0, WS_XN))
        a("v_lshlrev_b32 v%d, 7, v%d" % (V_P2, L))
        a("v_add_u32 v%d, s%d, v%d" % (V_P2, t0, V_P2))
        a("v_cmp_le_u32 vcc, 32, v%d" % L)
        a("s_lshl_b32 s%d, s%d, 12" % (t0, sCLS))
        a("s_nop 0")
        a("v_cndmask_b32 v%d, v%d, v%d, vcc" % (V_P2, V_P2, T + 6))
    PFM = cfg.get("f_pf", 0)
    PF0 = cfg.get("f_pf0", 8)
    if PFM & 2:
        a("buffer_load_dword a%d, v%d, %s, s%d offen" % (A_PD, V_P2, s4(R_WS), t0))
    def touch(n):
        lab = a.newlabel("F_pf")
        a("s_cmp_lg_u32 s%d, %d" % (sCLS, n & 7))
        a("s_cbranch_scc1 %s" % lab)
        if PFM & 1:
            a("s_mov_b32 s%d, %d" % (t0, n * 32 * 6144))
            a("s_mov_b32 s%d, %d" % (t1, n * 32 * 7168))
            a("buffer_load_dword a%d, v%d, %s, s%d offen" % (A_PD, V_P0, s4(R_WQ), t0))
            a("buffer_load_dword a%d, v%d, %s, s%d offen" % (A_PD - 1, V_P1, s4(R_W1), t1))
        if PFM & 2:
            a("s_mov_b32 s%d, %d" % (t0, n * 4096))
            a("buffer_load_dword a%d, v%d, %s, s%d offen" % (A_PD, V_P2, s4(R_WS), t0))
        a.label(lab)
    if PFM & 4:
        a("s_and_b32 s%d, s2, 1" % t0)
        a("v_lshrrev_b32 v%d, 5, v%d" % (T + 2, L))
        a("v_cmp_ne_u32 vcc, s%d, v%d" % (t0, T + 2))
        a("s_nop 1")
        a("v_cndmask_b32 v%d, v%d, v%d, vcc" % (V_P0, V_P0, T + 6))
        a("v_cndmask_b32 v%d, v%d, v%d, vcc" % (V_P1, V_P1, T + 6))
    PW = cfg.get("f_pw", 2); PW0 = cfg.get("f_pw0", 12)
    V_PW = 231
    a("v_lshlrev_b32 v%d, 7, v%d" % (V_PW, L))
    a("v_cmp_le_u32 vcc, 56, v%d" % L)
    a("s_nop 1")
    a("v_cndmask_b32 v%d, v%d, v%d, vcc" % (V_PW, V_PW, T + 6))
    ASY = cfg.get("f_asy", 1)
    if ASY:
        if cfg.get("f_xcc", 0):
            a("s_getreg_b32 s%d, hwreg(HW_REG_XCC_ID)" % t0)
            a("s_and_b32 s%d, s%d, 1" % (t0, t0))
        else: a("s_bfe_u32 s%d, s2, 0x%x" % (t0, 0x10001 if SWP else 0x10000))
        if ASY == 2: a("s_xor_b32 s%d, s%d, 1" % (t0, t0))
        a("s_lshl_b32 s%d, s%d, 4" % (t0, t0))
        a("s_or_b32 s%d, s%d, s%d" % (sCLS, sCLS, t0))
    HOT = cfg.get("f_hot", 0); LO = cfg.get("f_lo", 64)
    if HOT:
        a("s_bfe_u32 s%d, s2, 0x30003" % sCLS)
        a("s_and_b32 s%d, s%d, 14" % (t0, sJ))
        a("s_cmp_eq_u32 s%d, 6" % t0)
        a("s_cselect_b32 s%d, 16, s%d" % (sCLS, sCLS))
        if LO == 0:
            a("s_bitcmp1_b32 s2, 0")
            a("s_cselect_b32 s%d, 16, s%d" % (sCLS, sCLS))
        a("v_lshlrev_b32 v%d, 7, v%d" % (V_PW, L))
    def toucht(cls):
        lab = a.newlabel("F_pw"); l2 = a.newlabel("F_po")
        def ex(n):
            m_ = (1 << n) - 1
            a("s_mov_b32 exec_lo, 0x%x" % (m_ & 0xffffffff)); a("s_mov_b32 exec_hi, 0x%x" % (m_ >> 32))
        a("s_cmp_lg_u32 s%d, %d" % (sCLS, cls))
        a("s_cbranch_scc1 %s" % lab)
        a("s_add_u32 s%d, s%d, 8" % (t0, sJ))
        a("s_lshr_b32 s%d, s%d, 4" % (t0, t0))
        a("s_lshl_b32 s%d, s%d, 1" % (t0, t0))
        a("s_sub_u32 s%d, s%d, s%d" % (t0, sJ, t0))
        a("s_lshl_b32 s%d, s%d, 2" % (t0, t0))
        a("s_and_b32 s%d, s%d, 3" % (t1, sI))
        a("s_add_u32 s%d, s%d, s%d" % (t0, t0, t1))
        a("s_lshl_b32 s%d, s%d, 2" % (t0, t0))
        a("s_add_u32 s%d, s%d, s%d" % (t0, t0, sW))
        a("s_lshl_b32 s%d, s%d, 14" % (t1, t0))
        a("s_bitcmp1_b32 s2, 0")
        a("s_cbranch_scc1 %s" % l2)
        a("buffer_load_dword a%d, v%d, %s, s%d offen" % (A_PD, V_PW, s4(R_W2), t1))
        if LO < 64:
            a("s_add_u32 s%d, s%d, 8192" % (t1, t1))
            ex(64 - LO)
            a("buffer_load_dword a%d, v%d, %s, s%d offen" % (A_PD, V_PW, s4(R_W2), t1))
        a("s_mul_i32 s%d, s%d, %d" % (t1, t0, 37 * 128))
        ex(37)
        a("buffer_load_dword a%d, v%d, %s, s%d offen" % (A_PD - 1, V_PW, s4(R_WO), t1))
        a("s_mov_b64 exec, -1")
        a("s_branch %s" % lab)
        a.label(l2)
        if LO:
            a("s_add_u32 s%d, s%d, %d" % (t1, t1, (128 - LO) * 128))
            ex(LO)
            a("buffer_load_dword a%d, v%d, %s, s%d offen" % (A_PD, V_PW, s4(R_W2), t1))
            a("s_mov_b64 exec, -1")
        a.label(lab)
    def touchw(cls, flip=0):
        lab = a.newlabel("F_pw")
        if cls is not None:
            a("s_cmp_lg_u32 s%d, %d" % (sCLS, cls))
            a("s_cbranch_scc1 %s" % lab)
        if flip:
            a("s_xor_b32 s%d, s2, %d" % (t0, 2 if SWP else 1))
            a("s_lshl_b32 s%d, s%d, 2" % (t0, t0))
        else: a("s_lshl_b32 s%d, s2, 2" % t0)
        a("s_add_u32 s%d, s%d, s%d" % (t0, t0, sW))
        a("s_mul_i32 s%d, s%d, 7168" % (t1, t0))
        a("buffer_load_dword a%d, v%d, %s, s%d offen" % (A_PD, V_PW, s4(R_W2), t1))
        a("s_lshl_b32 s%d, s%d, 11" % (t1, t0))
        a("s_mov_b64 exec, 0xffff")
        a("buffer_load_dword a%d, v%d, %s, s%d offen" % (A_PD - 1, V_PW, s4(R_WO), t1))
        a("s_mov_b64 exec, -1")
        a.label(lab)
    def touchp(k):
        a("s_lshl_b32 s%d, s2, 2" % t0)
        a("s_add_u32 s%d, s%d, s%d" % (t0, t0, sW))
        if k < 2:
            a("s_mul_i32 s%d, s%d, 7168" % (t1, t0))
            a("s_mov_b64 exec, 0xfffffff")
            a.vmem("buffer_load_dword a%d, v%d, %s, s%d offen offset:%d" % (A_PD, V_PW, s4(R_W2), t1, k * 3584), "T")
        else:
            a("s_lshl_b32 s%d, s%d, 11" % (t1, t0))
            a("s_mov_b64 exec, 0xffff")
            a.vmem("buffer_load_dword a%d, v%d, %s, s%d offen" % (A_PD, V_PW, s4(R_WO), t1), "T")
        a("s_mov_b64 exec, -1")
    def touchx(k):
        a("s_lshr_b32 s%d, s2, 3" % t0)
        a("s_lshl_b32 s%d, s%d, 2" % (t0, t0))
        a("s_add_u32 s%d, s%d, s%d" % (t0, t0, sW))
        a("s_lshl_b32 s%d, s%d, 7" % (t1, sQ))
        a("s_add_u32 s%d, s%d, s%d" % (t0, t0, t1))
        if k < 2:
            a("s_mul_i32 s%d, s%d, 14336" % (t1, t0))
            if k: a("s_add_u32 s%d, s%d, 7168" % (t1, t1))
            a("buffer_load_dword a%d, v%d, %s, s%d offen" % (A_PD - k, V_PW, s4(R_W2), t1))
        else:
            a("s_lshl_b32 s%d, s%d, 12" % (t1, t0))
            a("s_mov_b32 exec_hi, 0")
            a("buffer_load_dword a%d, v%d, %s, s%d offen" % (A_PD, V_PW, s4(R_WO), t1))
            a("s_mov_b32 exec_hi, -1")
    pfq = list(range(PF0, KS)) if PFM else []
    PFA = cfg.get("f_pfa", 30)
    a("v_lshrrev_b32 v%d, 5, v%d" % (T + 2, L))
    a("v_mul_u32_u24 v%d, %d, v%d" % (T + 2, REG, T + 2))
    a("v_and_b32 v%d, 3, v%d" % (T + 3, L))
    a("v_lshl_add_u32 v%d, v%d, 3, v%d" % (T + 2, T + 3, T + 2))
    a("v_bfe_u32 v%d, v%d, 2, 2" % (T + 3, L))
    a("v_bfe_u32 v%d, v%d, 4, 1" % (T + 4, L))
    a("v_mul_u32_u24 v%d, 192, v%d" % (V_RD, T + 3))
    a("v_add_u32 v%d, v%d, v%d" % (V_RD, V_RD, T + 2))
    a("v_mul_u32_u24 v%d, %d, v%d" % (T + 5, 8 * 192 + 32, T + 4))
    a("v_add_u32 v%d, v%d, v%d" % (V_RD, V_RD, T + 5))
    a("v_xor_b32 v%d, 32, v%d" % (V_RD + 1, V_RD))
    a("v_lshl_add_u32 v%d, v%d, 5, v%d" % (V_RD + 2, T + 3, T + 2))
    a("v_lshl_add_u32 v%d, v%d, 7, v%d" % (V_RD + 2, T + 4, V_RD + 2))
    for st_ in (1, 2):
        for x in range(3):
            a("v_add_u32 v%d, %d, v%d" % (V_RD + 3 * st_ + x, st_ * 2 * STAGE, V_RD + x))
    a("s_lshl_b32 s%d, s%d, 7" % (sKV, sJ))
    a("s_lshl_b32 s%d, s%d, 4" % (t0, sI))
    a("s_add_u32 s%d, s%d, s%d" % (sKV, sKV, t0))
    a("s_lshl_b32 s%d, s%d, 2" % (t0, sW))
    a("s_add_u32 s%d, s%d, s%d" % (sKV, sKV, t0))
    a("s_lshl_b32 s%d, s%d, 10" % (sKV, sKV))
    a("s_add_u32 s%d, s%d, 0x%x" % (sKV2, sKV, WS_V))
    a("s_add_u32 s%d, s%d, 0x%x" % (sKV, sKV, WS_K))
    a("s_sub_u32 s%d, s%d, 16384" % (sKP, sKV))
    a("s_sub_u32 s%d, s%d, 16384" % (sKP2, sKV2))
    a("s_cmp_eq_u32 s%d, 0" % sI)
    a("s_cselect_b32 s%d, 0x40000000, s%d" % (sKP, sKP))
    a("s_cselect_b32 s%d, 0x40000000, s%d" % (sKP2, sKP2))
    a("s_lshl_b32 s%d, s2, 2" % sFO)
    a("s_add_u32 s%d, s%d, s%d" % (sFO, sFO, sW))
    a("s_lshl_b32 s%d, s%d, 7" % (sFO, sFO))
    a("s_add_u32 s%d, s%d, 0x%x" % (sFO, sFO, WS_FL))
    a("s_add_u32 s%d, s%d, 1" % (t0, sI))
    a("s_and_b32 s%d, s%d, 3" % (t1, t0))
    a("s_lshl_b32 s%d, s%d, 3" % (t1, t1))
    a("s_lshr_b32 s%d, s%d, 2" % (t0, t0))
    a("s_or_b32 s%d, s%d, s%d" % (t1, t1, t0))
    a("s_and_b32 s%d, s2, 0xe6" % t0)
    a("s_or_b32 s%d, s%d, s%d" % (t1, t1, t0))
    a("s_lshl_b32 s%d, s%d, 2" % (t1, t1))
    a("s_add_u32 s%d, s%d, s%d" % (t1, t1, sW))
    a("s_lshl_b32 s%d, s%d, 7" % (t1, t1))
    a("s_add_u32 s%d, s%d, 0x%x" % (sFK, t1, WS_FL + 12))
    a("s_cmp_eq_u32 s%d, 7" % sI)
    a("s_cselect_b32 s%d, 0x40000000, s%d" % (sFK, sFK))
    if cfg.get("f_k7", 1):
        a("s_cselect_b32 s%d, 0x40000000, s%d" % (sKV, sKV))
        a("s_cselect_b32 s%d, 0x40000000, s%d" % (sKV2, sKV2))
    a("v_cmp_ne_u32 vcc, 0, v%d" % L)
    a("v_mov_b32 v%d, 1" % V_ONE)
    a("v_and_b32 v%d, 31, v%d" % (V_PL, L))
    a("v_cndmask_b32 v%d, 0, v%d, vcc" % (V_FL0, T + 6))
    a("v_lshlrev_b32 v%d, 2, v%d" % (V_PL, V_PL))
    a("s_and_b32 s%d, s2, 31" % t0)
    a("s_lshl_b32 s%d, s%d, 2" % (t0, t0))
    a("s_add_u32 s%d, s%d, s%d" % (t0, t0, sW))
    a("s_lshl_b32 s%d, s%d, 7" % (t0, t0))
    a("s_lshl_b32 s%d, s%d, 2" % (t1, sN))
    a("s_add_u32 s%d, s%d, s%d" % (t0, t0, t1))
    a("s_add_u32 s%d, s%d, 0x%x" % (t0, t0, WS_FL))
    a("v_lshlrev_b32 v%d, 14, v%d" % (V_FG, L))
    a("v_add_u32 v%d, s%d, v%d" % (V_FG, t0, V_FG))
    a("v_cmp_le_u32 vcc, 8, v%d" % L)
    a("s_lshl_b32 s%d, s%d, 12" % (t0, sW))
    a("s_add_u32 s%d, s%d, %d" % (t0, t0, KVB))
    a("v_cndmask_b32 v%d, v%d, v%d, vcc" % (V_FG, V_FG, T + 6))
    a("v_add_u32 v%d, s%d, v%d" % (V_KVW, t0, V_L16))
    a("s_lshl_b32 s%d, s%d, 2" % (t0, sI))
    a("s_add_u32 s%d, s%d, s%d" % (t0, t0, sW))
    a("s_lshl_b32 s%d, s%d, 17" % (sXO, t0))
    a("s_mul_i32 s%d, s%d, 144" % (t0, t0))
    a("s_mul_i32 s%d, s%d, 36" % (t1, sQ))
    a("s_add_u32 s%d, s%d, s%d" % (t0, t0, t1))
    a("s_lshl_b32 s%d, s%d, 12" % (t0, t0))
    a("s_add_u32 s%d, s%d, 0x%x" % (t0, t0, WS_A2))
    a("s_add_u32 s%d, s%d, %d" % (sAE, t0, 28 * 4096))
    a("s_lshl_b32 s%d, s%d, 12" % (t1, sN))
    a("s_add_u32 s%d, s%d, s%d" % (sO, sAE, t1))
    a("s_mul_i32 s%d, s%d, 7" % (t1, sN))
    a("s_add_u32 s%d, s%d, s%d" % (t1, t1, sJ1))
    a("s_lshl_b32 s%d, s%d, 11" % (t1, t1))
    a("s_add_u32 s%d, s%d, s%d" % (sH, t0, t1))
    a("s_add_u32 s%d, s%d, 4096" % (sH + 1, sH))
    a("s_add_u32 s%d, s%d, 8192" % (sH + 2, sH))
    a("s_mul_i32 s%d, s%d, %d" % (sH + 3, sJ1, -4096 + 8 - 3 * 4096))
    a("s_add_u32 s%d, s%d, %d" % (sH + 3, sH + 3, 3 * 4096))
    a("s_add_u32 s%d, s%d, s%d" % (sH + 3, sH + 3, sH))
    a("s_lshl_b32 s%d, s%d, 8" % (t0, sN))
    a("s_add_u32 s%d, s%d, s%d" % (sXO, sXO, t0))
    a("s_lshl_b32 s%d, s%d, 6" % (t0, sQ))
    a("s_add_u32 s%d, s%d, s%d" % (sXO, sXO, t0))
    a("s_mov_b32 s%d, 0x%x" % (sSC, f2u(QSCALE)))
    def spin(mask, skip_if_i0=False):
        l0 = a.newlabel("F_sp"); l1 = a.newlabel("F_ok")
        if skip_if_i0:
            a("s_cmp_eq_u32 s%d, 0" % sI)
            a("s_cbranch_scc1 %s" % l1)
        a("s_mov_b32 s%d, 0x%x" % (sSP, SPIN))
        a.label(l0)
        a("v_cmp_ne_u32 vcc, 0, v%d" % V_POLL)
        a("s_and_b32 s%d, vcc_lo, 0x%x" % (t0, mask))
        a("s_cmp_eq_u32 s%d, 0x%x" % (t0, mask))
        a("s_cbranch_scc1 %s" % l1)
        a("buffer_load_dword v%d, v%d, %s, s%d offen sc1" % (V_POLL, V_PL, s4(R_WS), sFO))
        a("s_sub_u32 s%d, s%d, 1" % (sSP, sSP))
        a("s_waitcnt vmcnt(0)")
        a("s_cbranch_scc0 %s" % l0)
        a.label(l1)
    def poll_issue(tag):
        a.vmem("buffer_load_dword v%d, v%d, %s, s%d offen sc1" % (V_POLL, V_PL, s4(R_WS), sFO), tag)

    if FLN:
        while bops: issue1(bops.pop(0))
        if PW & 8: touchw(None)
        nb2 = cfg.get("f_lnb2", 3)
        b2 = [o for o in order if o[0] == "B" and o[1] < nb + nb2]
        for o in b2: order.remove(o)
        if BO == 1: b2 = [o for o in b2 if o[2] >= 3] + [o for o in b2 if o[2] < 3]
        if BO == 2: b2 = [o for o in b2 if o[2] < 3] + [o for o in b2 if o[2] >= 3]
        for _ in range(cfg.get("f_lnb2e", 0)): issue1(b2.pop(0))
        if PW & 8: a.vm += ["T", "T"]
        a.wait(vm="XS")
        stampr("lnd")
        a("s_barrier")
        lab = a.newlabel("F_ln"); l2 = a.newlabel("F_lp"); l3 = a.newlabel("F_lq"); l4 = a.newlabel("F_la")
        a("s_lshl_b32 s%d, s%d, 5" % (t0, sI))
        a("v_mov_b32 v1, s%d" % t0)
        a("s_cmp_lg_u32 s%d, 0" % sW)
        a("s_cbranch_scc1 %s" % lab)
        a("v_add_u32 v82, 1, v81")
        a("s_lshl_b64 exec, 1, s%d" % sJ)
        a("buffer_store_dword v82, v80, %s, 0 offen sc1" % s4(R_WS))
        a("s_mov_b64 exec, -1")
        a.label(lab)
        while b2: issue1(b2.pop(0))
        if PW & 16: touchw(None)
        a("s_cmp_lg_u32 s%d, 1" % sW)
        a("s_cbranch_scc1 %s" % l4)
        a("s_mov_b64 exec, 1")
        a("global_atomic_add v1, v%d, s[100:101] sc1" % V_ONE)
        a("s_mov_b64 exec, -1")
        a.label(l4)
        PALL = cfg.get("f_pall", 0)
        if not PALL:
            a("s_cmp_lg_u32 s%d, 0" % sW)
            a("s_cbranch_scc1 %s" % l3)
        else:
            a("s_lshl_b32 s%d, s%d, 3" % (t1, sW))
            a("s_lshl_b32 s%d, 0xff, s%d" % (t1, t1))
        a("s_mov_b32 s%d, 0x%x" % (sSP, SPIN))
        a.label(l2)
        a("buffer_load_dword v82, v80, %s, 0 offen sc1" % s4(R_WS))
        a("s_waitcnt vmcnt(0)")
        a("v_cmp_ne_u32 vcc, v81, v82")
        if PALL:
            a("s_and_b32 s%d, vcc_lo, s%d" % (t0, t1))
            a("s_cmp_eq_u32 s%d, s%d" % (t0, t1))
        else: a("s_cmp_eq_u32 vcc_lo, -1")
        a("s_cbranch_scc1 %s" % l3)
        a("s_sub_u32 s%d, s%d, 1" % (sSP, sSP))
        a("s_cbranch_scc1 %s" % l3)
        a("s_and_b32 s%d, s%d, 7" % (t0, sSP))
        a("s_cbranch_scc1 %s" % l2)
        a("global_load_dword v2, v1, s[100:101] sc1")
        a("s_waitcnt vmcnt(0)")
        a("v_readfirstlane_b32 s%d, v2" % t0)
        a("s_cmp_lt_u32 s%d, 32" % t0)
        a("s_cbranch_scc1 %s" % l2)
        a.label(l3)
        if not PALL: a("s_barrier")
        stampr("lnp")
        for _ in range(8): issue1(order.pop(0))
        order[:0] = bops
    gi = []
    def grp(units, s0, s1, tiles, C):
        s = s0
        while s < s1:
            c = min(C, s1 - s)
            for t in tiles:
                g0 = len(units); gn = gi[-1][2] + 1 if gi else 0
                for k in range(c):
                    units.append((s + k, t)); gi.append((g0, c, gn))
            s += c
    units = []
    grp(units, 0, C1S, range(NT), 2)
    C1E = cfg.get("f_c1e", S1)
    grp(units, C1S, C1E, range(NT), C1)
    grp(units, C1E, S1, range(NT), 2)
    grp(units, S1, KS, (2, 3, 4, 5), C1K)
    UKV = len(units)
    grp(units, S1, KS, (6, 7, 8, 9), C1T)
    UH01 = len(units)
    grp(units, S1, KS, (10, 11, 12, 0, 1), C1T)
    NU = len(units)
    last_unit_of_stage = {}
    last_unit_of_step = {}
    for u, (s, t) in enumerate(units):
        last_unit_of_stage[s // 2] = u; last_unit_of_step[s] = u
    stt = dict(ready=-1, free=set(), waited=-1, issued=-1)
    def barrier():
        a("s_barrier")
        for g, lu in last_unit_of_stage.items():
            if lu <= stt["waited"]: stt["free"].add(g)
    def can1(op):
        if op[0] == "B": return op[1] < NS or (op[1] - NS) in stt["free"]
        return op[1] < RA or last_unit_of_step[op[1] - RA] <= stt["issued"]
    def flush1(tag):
        while any(o[:2] == tag for o in order):
            op = order.pop(0)
            assert can1(op), (op, stt)
            if cfg.get("verbose"): print("late flush", op, file=sys.stderr)
            issue1(op)
    def bread1(u, j2):
        s, t = units[u]
        slot = slot1(s // 2); st_ = slot // 2
        off = (slot % 2) * STAGE + (s % 2) * 2 * REG
        if t < 12: off += j2 * 768 + (t // 6) * 3072 + ((t // 2) % 3) * 64; vr = V_RD + 3 * st_ + (t % 2)
        else: off += 6144 + j2 * 256; vr = V_RD + 3 * st_ + 2
        a.lds("ds_read_b64_tr_b16 %s, v%d offset:%d" % (r2("a", BR + (u % RB) * 4 + j2 * 2), vr, off), ("b", u))
    def need1(u):
        g = units[u][0] // 2
        if g > stt["ready"]:
            flush1(("B", g)); a.wait(vm=("B", g)); barrier(); stt["ready"] = g
    def pack(c0, c1, relu=False):
        ops = []
        for hh, c in enumerate((c0, c1)):
            if c is None: continue
            for e2 in range(2):
                ops.append("v_cvt_pk_bf16_f32 v%d, v%d, v%d" % (c0 + 2 * hh + e2, c + 2 * e2, c + 2 * e2 + 1))
            if relu:
                for e2 in range(2):
                    ops.append("v_pk_max_i16 v%d, v%d, 0" % (c0 + 2 * hh + e2, c0 + 2 * hh + e2))
        return ops
    HF = ["sc1", "", "nt", "sc0"][cfg.get("f_hf", 0)]
    def hstore(p, mt):
        if p < 3: a.vmem("buffer_store_dwordx4 %s, v%d, %s, s%d offen offset:%d %s" % (r4("v", acc(mt, 6 + 2 * p)), V_L16, s4(R_WS), sH + p, mt * 1024, HF), "H")
        else: a.vmem("buffer_store_dwordx2 %s, v%d, %s, s%d offen offset:%d %s" % (r2("v", acc(mt, 12)), V_L16, s4(R_WS), sH + 3, mt * 1024, HF), "H")
    need1(0)
    stampr("bar0")
    for u in range(DB):
        need1(u)
        bread1(u, 0); bread1(u, 1)
    kvq = [(acc(mt, 2), acc(mt, 3), sKV, mt * 1024, 16384 + mt * 1024) for mt in range(MT)] + \
          [(acc(2 * b, 4 + dt), acc(2 * b + 1, 4 + dt), sKV2, (2 * b + dt) * 1024, 49152 + (2 * b + dt) * 1024) for b in range(2) for dt in range(2)]
    NREST = NU - UKV
    UFLAG = UKV + cfg.get("f_uf", 28)
    UPOLL = UFLAG + cfg.get("f_up", 14)
    UCHK = min(UPOLL + cfg.get("f_uc", 8), NU - 1)
    UPW = UCHK + cfg.get("f_uw", 14)
    V2_DMA = 209; V_XO = 211; V2_RD = 232; V2_B = 231
    bias = [232, 236, 240, 244]; VONES = 248; VM = 252
    sB2 = sBQ; sBO = sBV
    class Rec:
        def __init__(self): self.l = []
        def __call__(self, x): self.l.append(x)
    su = Rec(); TT = VM
    HO = 0
    su("v_lshrrev_b32 v%d, 4, v%d" % (TT, L))
    su("v_lshlrev_b32 v%d, 11, v%d" % (V2_DMA, TT))
    su("v_lshlrev_b32 v%d, 1, v%d" % (TT, TT))
    su("v_and_b32 v%d, 15, v%d" % (TT + 1, L))
    su("v_xor_b32 v%d, v%d, v%d" % (TT, TT, TT + 1))
    su("v_lshl_add_u32 v%d, v%d, 4, v%d" % (V2_DMA, TT, V2_DMA))
    su("s_and_b32 s%d, s%d, 1" % (t1, sW))
    su("s_lshl_b32 s%d, s%d, 7" % (t1, t1))
    su("v_xor_b32 v%d, s%d, v%d" % (V2_DMA, t1, V2_DMA))
    su("v_add_u32 v%d, %d, v%d" % (V2_DMA + 1, 32768 - 1024, V2_DMA))
    su("v_lshrrev_b32 v%d, 4, v%d" % (TT, L))
    su("v_lshlrev_b32 v%d, 2, v%d" % (TT, TT))
    for e in range(4):
        su("v_add_u32 v%d, %d, v%d" % (TT + 2, e, TT))
        su("v_cmp_le_u32 s[%d:%d], v%d, v%d" % (sMK + 2 * e, sMK + 2 * e + 1, TT + 2, TT + 1))
    su("s_lshl_b32 s%d, s%d, 13" % (t2, sW))
    su("s_lshl_b32 s%d, s%d, 8" % (t1, sN))
    su("s_add_u32 s%d, s%d, s%d" % (t2, t2, t1))
    su("s_lshl_b32 s%d, s%d, 19" % (sBO, sQ))
    su("s_add_u32 s%d, s%d, s%d" % (sBO, sBO, t2))
    su("s_mul_i32 s%d, s%d, %d" % (sB0, sQ, 896 * 2048))
    su("s_add_u32 s%d, s%d, s%d" % (sB0, sB0, t2))
    su("s_add_u32 s%d, s%d, %d" % (sBE, sB0, 896 * 2048))
    su("s_mul_i32 s%d, s%d, 7" % (t1, sN))
    su("s_add_u32 s%d, s%d, s%d" % (t1, t1, sJ1))
    su("s_lshl_b32 s%d, s%d, 15" % (t1, t1))
    su("s_add_u32 s%d, s%d, s%d" % (sB2, sB0, t1))
    LIN = cfg.get("f_lin", 1)
    if LIN:
        su("s_sub_u32 s%d, s%d, %d" % (sA, sAE, 28 * 4096))
        su("s_mov_b32 s%d, s%d" % (sAE, sH))
        su("s_add_u32 s%d, s%d, %d" % (sA0, sH, 3 * 4096))
        su("s_mov_b32 s%d, s%d" % (sBW, sB0))
        su("s_mov_b32 s%d, s%d" % (sBE, sB2))
        su("s_add_u32 s%d, s%d, %d" % (sB0, sB2, 3 * 65536))
    else:
        su("s_add_u32 s%d, s%d, %d" % (sA, sH, 3 * 4096))
        su("s_sub_u32 s%d, s%d, %d" % (sA0, sAE, 28 * 4096))
    su("s_cmp_eq_u32 s%d, s%d\ns_cselect_b32 s%d, s%d, s%d" % (sA, sAE, sA, sA0, sA))
    su0 = su.l; su = Rec()
    KS2 = 36
    LOC = [(0, 1), (1, 1), (2, 1), (0, 3), (1, 3), (2, 3), (0, 5), (1, 5), (2, 5), (3, 1), (3, 3), (3, 5), (4, 1), (4, 3), (4, 5)]
    NSL = len(LOC)
    def dma2_txt(p):
        sb, so = (R_W2, sB2) if p < 28 else (R_WO, sBO)
        sl, pos = LOC[p % NSL]
        ops = [(0, "s_add_u32 m0, s%d, %d" % (sLB, sl * STAGE + pos * 1024)),
               (1, "buffer_load_dwordx4 v%d, %s, s%d offen lds" % (V2_DMA, s4(sb), so)),
               (1, "buffer_load_dwordx4 v%d, %s, s%d offen offset:1024 lds" % (V2_DMA + 1, s4(sb), so))]
        if p == 2: ops.append((0, "s_mov_b32 s%d, s%d" % (sB2, sBW)))
        elif p != 27 and p != 35: ops.append((0, "s_add_u32 s%d, s%d, 65536" % (so, so)))
        if 2 <= p < 27: ops.append((0, "s_cmp_eq_u32 s%d, s%d\ns_cselect_b32 s%d, s%d, s%d" % (sB2, sBE, sB2, sB0, sB2)))
        return ops
    def dma2_ops(p):
        return [(k, (lambda x=x: a.vmem(x, ("B2", p))) if k else (lambda x=x: a(x))) for k, x in dma2_txt(p)]
    def hole_ops(ps):
        o = []
        for p in ps:
            for k, x in dma2_txt(p):
                if k: o += [("m", lambda x=x, p=p: a.vmem(x, ("B2", p)))] + [None] * cfg.get("f_hosp", 3)
                else: o += [x] + ([None] if "m0" in x else [])
        return o
    su("s_lshl_b32 s%d, s%d, 2" % (t1, sI))
    su("s_add_u32 s%d, s%d, s%d" % (t1, t1, sW))
    for gq in range(4):
        su("s_cmp_lt_u32 s%d, %d\ns_cselect_b32 s%d, 0x%x, 0" % (t1, 4 - gq, t2, f2u(-1e30)))
        for e in range(4): su("v_mov_b32 v%d, s%d" % (bias[gq] + e, t2))
    for e in range(4): su("v_mov_b32 v%d, 0x3f803f80" % (VONES + e))
    su("v_lshrrev_b32 v%d, 2, v%d" % (TT, L))
    su("v_and_b32 v%d, 7, v%d" % (TT + 2, TT))
    su("v_and_b32 v%d, 3, v%d" % (TT, TT))
    su("v_lshlrev_b32 v%d, 8, v%d" % (TT, TT))
    su("v_lshrrev_b32 v%d, 4, v%d" % (TT + 1, L))
    su("v_mul_u32_u24 v%d, %d, v%d" % (TT + 1, REG, TT + 1))
    su("v_add_u32 v%d, v%d, v%d" % (TT, TT, TT + 1))
    su("v_and_b32 v%d, 3, v%d" % (TT + 1, L))
    su("v_lshl_add_u32 v%d, v%d, 3, v%d" % (TT, TT + 1, TT))
    su("v_lshl_add_u32 v%d, v%d, 5, v%d" % (V2_B, TT + 2, TT))
    su("s_lshl_b32 s%d, s%d, 6" % (t1, sQ))
    su("s_xor_b32 s%d, s%d, 192" % (t1, t1))
    su("v_xor_b32 v%d, s%d, v%d" % (V2_B, t1, V2_B))
    su("v_mov_b32 v%d, 0xffff" % TT)
    su("v_mov_b32 v%d, 0xffff0000" % (TT + 1))
    su("v_cndmask_b32 v%d, 0, v%d, s[%d:%d]" % (VM + 2, TT, sMK, sMK + 1))
    su("v_cndmask_b32 v%d, 0, v%d, s[%d:%d]" % (VM + 3, TT, sMK + 4, sMK + 5))
    su("v_cndmask_b32 v%d, 0, v%d, s[%d:%d]" % (TT, TT + 1, sMK + 2, sMK + 3))
    su("v_cndmask_b32 v%d, 0, v%d, s[%d:%d]" % (TT + 1, TT + 1, sMK + 6, sMK + 7))
    su("v_or_b32 v%d, v%d, v%d" % (VM + 2, VM + 2, TT))
    su("v_or_b32 v%d, v%d, v%d" % (VM + 3, VM + 3, TT + 1))
    SPF = cfg.get("f_spf", 0)
    if SPF:
        su("s_lshr_b32 s%d, s2, 3" % t1)
        su("s_lshl_b32 s%d, s%d, 1" % (t1, t1))
        su("s_and_b32 s%d, s2, 1" % t2)
        su("s_add_u32 s%d, s%d, s%d" % (t1, t1, t2))
        su("s_lshl_b32 s%d, s%d, 2" % (t1, t1))
        su("s_add_u32 s%d, s%d, s%d" % (t1, t1, sW))
        su("s_lshl_b32 s%d, s%d, 7" % (t1, t1))
        su("s_mul_i32 s%d, s%d, %d" % (t2, sQ, 14336 * 128))
        su("s_add_u32 s%d, s%d, s%d" % (t2, t2, t1))
        su("s_add_u32 s%d, s%d, s%d\ns_addc_u32 s%d, s%d, 0" % (P_W2, P_W2, t2, P_W2 + 1, P_W2 + 1))
        su("s_add_u32 s%d, s%d, %d\ns_addc_u32 s%d, s%d, 0" % (P_WQ, P_W2, 28 * 32768, P_WQ + 1, P_W2 + 1))
        su("s_lshl_b32 s%d, s%d, 19" % (t2, sQ))
        su("s_add_u32 s%d, s%d, s%d" % (t2, t2, t1))
        su("s_add_u32 s%d, s%d, s%d\ns_addc_u32 s%d, s%d, 0" % (P_WO, P_WO, t2, P_WO + 1, P_WO + 1))
    V_T128 = V_XO
    TCN = cfg.get("f_tc", 0)
    su("v_lshlrev_b32 v%d, %d, v%d" % (V_T128, 15 if TCN else 7, L))
    if TCN:
        su("s_lshr_b32 s%d, s2, 3" % t1)
        su("s_lshl_b32 s%d, s%d, 1" % (t1, t1))
        su("s_and_b32 s%d, s2, 1" % t2)
        su("s_add_u32 s%d, s%d, s%d" % (t1, t1, t2))
        su("s_lshl_b32 s%d, s%d, 2" % (t1, t1))
        su("s_add_u32 s%d, s%d, s%d" % (t1, t1, sW))
        su("s_lshl_b32 s%d, s%d, 7" % (t1, t1))
        su("s_mul_i32 s%d, s%d, %d" % (sCLS, sQ, 14336 * 128))
        su("s_add_u32 s%d, s%d, s%d" % (sCLS, sCLS, t1))
        su("s_lshl_b32 s%d, s%d, 19" % (t3, sQ))
        su("s_add_u32 s%d, s%d, s%d" % (t3, t3, t1))
    def selftouch(so, half):
        if half: a("s_mov_b32 exec_hi, 0")
        a.vmem("buffer_load_dword a%d, v%d, %s, s%d offen sc1" % (A_PD, V_T128, s4(R_WS), so), "T")
        if half: a("s_mov_b32 exec_hi, -1")
    HK = cfg.get("f_hk", 0)
    if HK:
        assert RA == 12 and D1 == 8 and BR + RB * 4 <= 232 and UPW < NU
        kreg = lambda kt: 128 + 4 * kt if kt < 16 else 232 + 4 * (kt - 16)
        VF = 0
    else:
        kreg = lambda kt: 4 * kt
        VF = 80
    def kread(kt): a.lds("ds_read_b128 %s, v%d offset:%d" % (r4("a", kreg(kt)), V_KVW, kt * 1024), ("k", kt))
    def kpw(x):
        c0, c1, so, go, lo = kvq[x]
        a.wait(vm=("KP", x))
        a.lds("ds_write_b128 v%d, %s offset:%d" % (V_KVW, r4("v", c1), lo - 16384), "kvw")
    def codepf(vreg=None):
        if vreg is None: vreg = V_PW
        lab = a.newlabel("F_pc")
        a("s_getpc_b64 s[%d:%d]" % (R_WQ, R_WQ + 1))
        a.label(lab)
        a("s_and_b32 s%d, s%d, 0xffff" % (R_WQ + 1, R_WQ + 1))
        a("s_mov_b32 s%d, CODE_END - %s" % (R_WQ + 2, lab))
        a("s_lshr_b32 s%d, s2, 3" % t0)
        a("s_lshl_b32 s%d, s%d, 2" % (t0, t0))
        a("s_add_u32 s%d, s%d, s%d" % (t0, t0, sW))
        a("s_lshl_b32 s%d, s%d, 9" % (t0, t0))
        a("s_mov_b64 exec, 15")
        a.vmem("buffer_load_dword a%d, v%d, %s, s%d offen" % (A_PD, vreg, s4(R_WQ), t0), "T")
        a("s_mov_b64 exec, -1")
    seenA = set()
    ramp = (RA - 1 - LA) / float(S1 * NT)
    WM = cfg.get("f_wm", 200) / 100.0
    W0 = cfg.get("f_w0", 100) / 100.0
    UEND = S1 * NT + cfg.get("f_uend", 8)
    wts = [0.0] + [W0 * sum(1 for o in order if (o[1] if o[0] == "B" else o[1] // 2) == g) / 15.0 for g in (1, 2, 3)] + [WM if g % 4 == 0 else 1.0 for g in range(4, 16)]
    ipos = {}
    if cfg.get("f_lw", 0) == 2:
        no = []
        for g in range(16):
            bl = [o for o in order if o[0] == "B" and o[1] == g]; al = [o for o in order if o[0] == "A" and o[1] // 2 == g]
            if len(bl) == 7: mix = [bl[0], al[0], al[1], bl[1], al[2], al[3], bl[2], al[4], bl[3], bl[4], bl[5], bl[6], al[5], al[6], al[7]]
            else: mix = bl + al
            for k, o in enumerate(mix): ipos[o] = k
            no += mix
        order[:] = no
    noB = set(g for g in range(16) if not any(o[0] == "B" and o[1] == g for o in order))
    tau = [0.0]
    for g in range(16): tau.append(tau[-1] + wts[g])
    tau = [x * UEND / tau[-1] for x in tau]
    def due(op):
        g = op[1] if op[0] == "B" else op[1] // 2
        idx = op[2] if op[0] == "B" else 7 + (op[1] % 2) * 4 + op[2]
        if cfg.get("f_wb", 0) and op[0] == "B" and op[2] > 3: idx = 3
        if g in noB: return tau[g] + (tau[g + 1] - tau[g]) * (idx - 7) / 8.0
        if cfg.get("f_lw", 0) == 1:
            lw = [64, 64, 64, 56, 36, 44, 24] + [32] * 8
            return tau[g] + (tau[g + 1] - tau[g]) * sum(lw[:idx]) / float(sum(lw))
        if cfg.get("f_lw", 0) == 2: return tau[g] + (tau[g + 1] - tau[g]) * ipos[op] / 15.0
        return tau[g] + (tau[g + 1] - tau[g]) * idx / 15.0
    DF = cfg.get("f_df", 0); PZ0 = cfg.get("f_pz0", 4)
    THR1 = cfg.get("f_thr1", 63)
    side = G.side
    def prewait1(u):
        u += gi[u][1] - 1
        s, t = units[u]
        if s not in seenA:
            flush1(("A", s)); seenA.add(s)
            r = a.wait(vm=("A", s), lg=("b", u))
        else: r = a.wait(lg=("b", u))
        stt["waited"] = u
        return r
    prewait1(0)
    for u in range(NU):
        u0, C_, gn = gi[u]; kk = u - u0
        s, t = divmod(u, NT) if u < S1 * NT else units[u]
        un = u + DB
        if un < NU: need1(un)
        if u in ((S1 - 4) * NT + 2, (S1 - 2) * NT + 2, S1 * NT + 2): barrier()
        elif cfg.get("f_xb", 0) and u < S1 * NT and u % (2 * NT) == 0 and u > 0: barrier()
        if S1 // 2 <= 12 and u == last_unit_of_stage[12] + 2: barrier()
        if pfq and u % 4 == 2 and pfq[0] - 1 <= (u + PFA) / NT + LA + ramp * (u + PFA): touch(pfq.pop(0))
        if PW & 4:
            for k in range(3):
                if u == S1 * NT + cfg.get("f_px0", 4) + k * cfg.get("f_pxd", 16): touchx(k)
        if PW == 1 and u == UKV - PW0: touchw(None)
        if PW & 3 == 2 and u < S1 * NT and t == 8 and PW0 <= s < PW0 + 8: (toucht if HOT else touchw)((s + 4) & 7)
        PW1 = cfg.get("f_pw1", 4)
        if ASY and not HOT and PW & 3 == 2 and u < S1 * NT and t == 8 and PW1 <= s < PW1 + 8: touchw((s + 4 + PW0 - PW1) & 7, 1)
        if u == 16 * NT: stampr("g1half")
        if u < S1 * NT and t == 0: stampr("g1s%d" % s)
        if u == S1 * NT: stampr("g1tail")
        if u == UKV:
            stampr("g1kv")
            if cfg.get("f_cpf", 1): codepf()
        if DF and u == 3 * NT:
            side += ["v_mov_b32 v%d, -1" % (T + e) for e in range(4)]
            side += ["s_lshl_b32 s%d, s2, 2" % t3, "s_add_u32 s%d, s%d, s%d" % (t3, t3, sW), "s_mul_i32 s%d, s%d, 12288" % (t3, t3),
                     "s_add_u32 s%d, s%d, 0x%x" % (t3, t3, WS_XC),
                     "v_xor_b32 v%d, 3, v%d" % (T + 4, L), "v_lshlrev_b32 v%d, 1, v%d" % (T + 4, T + 4), "v_xor_b32 v%d, s2, v%d" % (T + 4, T + 4),
                     "v_lshlrev_b32 v%d, 9, v%d" % (T + 4, T + 4), "v_lshl_add_u32 v%d, v%d, 2, v%d" % (T + 4, L, T + 4)]
        if DF and u < S1 * NT and t == 4 and PZ0 <= s < PZ0 + 12:
            k_ = s - PZ0
            side.append(("m", lambda k_=k_: a.vmem("buffer_store_dwordx4 %s, v%d, %s, s%d offen offset:%d sc1" % (r4("v", T), V_L16, s4(R_WS), t3, (k_ % 4) * 1024), "PZ")))
            if k_ % 4 == 3: side.append("s_add_u32 s%d, s%d, 4096" % (t3, t3))
        if DF and u == (PZ0 + 14) * NT + 5:
            assert a.vm.count("PZ") == 12
            a.wait(vm="PZ")
            a("s_lshl_b32 s%d, s%d, 7" % (t3, sW))
            a("s_add_u32 s%d, s%d, 0x%x" % (t3, t3, WS_FL))
            a("s_mov_b64 exec, 7")
            a.vmem("buffer_store_dword v%d, v%d, %s, s%d offen sc1" % (V_ONE, T + 4, s4(R_WS), t3), "RF")
            a("s_mov_b64 exec, -1")
        if u == cfg.get("f_tlb", -1):
            sh = cfg.get("f_tlbs", 21)
            a("v_lshlrev_b32 v%d, %d, v%d" % (V_P2, sh, L))
            a.vmem("buffer_load_dword a%d, v%d, %s, 0 offen" % (A_PD, V_P2, s4(R_WS)), "T")
            a.vmem("buffer_load_dword a%d, v%d, %s, 0 offen" % (A_PD, V_P2, s4(R_W2)), "T")
            a.vmem("buffer_load_dword a%d, v%d, %s, 0 offen" % (A_PD, V_P2, s4(R_WO)), "T")
            a("s_mov_b64 exec, %d" % ((1 << ((S * D * 2) >> sh)) - 1))
            a.vmem("global_load_dword a%d, v%d, s[%d:%d]" % (A_PD, V_P2, P_OUT, P_OUT + 1), "T")
            a("s_mov_b64 exec, -1")
        if FLN and u == 20 * NT + 3:
            a("v_and_b32 v%d, 7, v%d" % (V_P0, L))
            a("v_lshlrev_b32 v%d, 5, v%d" % (V_P0, V_P0))
            a.vmem("global_load_dword v%d, v%d, s[100:101] sc1" % (V_POLL, V_P0), "CN")
        if FLN and u == 22 * NT + 3:
            a.wait(vm="CN")
            l0 = a.newlabel("F_cn"); l1 = a.newlabel("F_ok")
            a("s_mov_b32 s%d, 0x%x" % (sSP, SPIN))
            a.label(l0)
            a("v_cmp_le_u32 vcc, 32, v%d" % V_POLL)
            a("s_cmp_eq_u32 vcc_lo, -1")
            a("s_cbranch_scc1 %s" % l1)
            a("global_load_dword v%d, v%d, s[100:101] sc1" % (V_POLL, V_P0))
            a("s_sub_u32 s%d, s%d, 1" % (sSP, sSP))
            a("s_waitcnt vmcnt(0)")
            a("s_cbranch_scc0 %s" % l0)
            a.label(l1)
        if u == UFLAG:
            stampr("g1flag0")
            assert a.vm.count("KV") == 8
            a.wait(vm="KV")
            stampr("g1flag1")
            a.vmem("buffer_store_dword v%d, v%d, %s, s%d offen sc1" % (V_ONE, V_FL0, s4(R_WS), sFK), "FK")
        if u == UPOLL: poll_issue("PK")
        if u == UCHK:
            a.wait(vm="PK")
            spin(1 << 3, skip_if_i0=True)
            stampr("g1chk")
            if HK:
                def kd(so, k, chk):
                    if chk: assert 12 in stt["free"]
                    a.vmem("buffer_load_dwordx4 v%d, %s, s%d offen offset:%d sc1 lds" % (V_L16, s4(R_WS), so, k * 1024), "KD")
                new_ = ["s_lshl_b32 s%d, s%d, 12\ns_add_u32 m0, s%d, %d" % (t0, sW, t0, KVB + 32768), None]
                new_ += [("m", lambda k=k: kd(sKP2, k, False)) for k in range(4)]
                new_ += ["s_sub_u32 m0, m0, 32768", None]
                new_ += [("m", lambda k=k: kd(sKP, k, True)) for k in range(4)]
                side[:0] = new_
            else:
              for x, (c0, c1, so, go, lo) in enumerate(kvq):
                def f(c1=c1, so=(sKP if x < 4 else sKP2), go=go, x=x):
                    a.vmem("buffer_load_dwordx4 %s, v%d, %s, s%d offen offset:%d sc1" % (r4("v", c1), V_L16, s4(R_WS), so, go), ("KP", x))
                side.insert(x, ("m", f))
        if HK and u == UPW:
            assert a.vm.count("KD") == 8 and a.lg.count("kvw") == 8
            a.wait(vm="KD", lg="kvw"); barrier()
            stampr("g1kb")
            side[:0] = [("v", lambda kt=kt: kread(kt)) for kt in range(20)]
        nxt = None
        if order and can1(order[0]) and len(G.sal) <= 1 and due(order[0]) <= u: nxt = order.pop(0)
        if nxt and cfg.get("verbose", 0) > 1: print("issue", u, nxt, "due %.0f" % due(nxt), file=sys.stderr)
        if FLN and HT & 2:
            for b in (1, 2, 3):
                if u == max(0, int(tau[4 * b]) - cfg.get("f_hta", 0)): hottouch(b)
        if PW & 32 and nxt:
            tk = cfg.get("f_tk", 0)
            key = ("B", nxt[1], tk) if tk < 7 else ("A", nxt[1], (tk - 7) % 4)
            g_ = nxt[1] if nxt[0] == "B" else nxt[1] // 2
            if nxt == key and g_ in (4, 8, 12) and (nxt[0] == "B" or nxt[1] % 2 == (tk - 7) // 4): touchp(g_ // 4 - 1)
        for mt in range(MT):
            m_, k_ = divmod(kk * MT + mt, C_)
            if cfg.get("f_kz", 1) and m_ % 2 == 1 and units[u0][0] > 0: k_ = C_ - 1 - k_
            mz = m_ if gn % 2 == 0 else MT - 1 - m_
            s_, t_ = units[u0 + k_]
            bf = r4("a", BR + ((u0 + k_) % RB) * 4)
            af = r4("a", AR + (s_ % RA) * 16 + mz * 4)
            c = r4("v", acc(mz, t_))
            src = "0" if s_ == 0 else c
            if t_ in (4, 5): a("%s %s, %s, %s, %s" % (MF, c, af, bf, src))
            else:            a("%s %s, %s, %s, %s" % (MF, c, bf, af, src))
            rd = (lambda mt=mt: bread1(un, mt)) if (mt < 2 and un < NU) else None
            if mt == 0: G.gap(fixed=rd)
            elif mt == 1:
                if nxt and nxt[0] == "B": G.gap(first=lambda: (dma1(nxt[1], nxt[2], 0), True)[1], fixed=rd)
                else: G.gap(fixed=rd)
            elif mt == 2:
                if nxt:
                    assert not G.sal
                    G.gap(first=(lambda: a.throttle(THR1)), mem=((lambda: aload1(nxt[1], nxt[2])) if nxt[0] == "A" else (lambda: dma1(nxt[1], nxt[2], 1))))
                else: G.gap()
            else:
                if kk == C_ - 1:
                    stt["issued"] = u
                    G.gap(first=(lambda: prewait1(u + 1)) if u + 1 < NU else None)
                else: G.gap()
        if u == UKV - 1:
            assert 11 in stt["free"], stt
            side += [None] * 5
            for (c0, c1, so, go, lo) in kvq:
                side += pack(c0, c1)
                def f(c0=c0, so=so, go=go):
                    a.vmem("buffer_store_dwordx4 %s, v%d, %s, s%d offen offset:%d sc1" % (r4("v", c0), V_L16, s4(R_WS), so, go), "KV")
                side.append(("m", f))
            for (c0, c1, so, go, lo) in kvq:
                def f(c0=c0, lo=lo):
                    a.lds("ds_write_b128 v%d, %s offset:%d" % (V_KVW, r4("v", c0), lo), "kvw")
                side += [("x", f), None]
            assert not order and stt.get("su0")
            side += su.l
        if u >= S1 * NT and not order and not G.sal and not stt.get("su0"):
            side += su0; stt["su0"] = True
        if HO and u == UKV + cfg.get("f_ho1", 30):
            barrier(); side[:0] = hole_ops(range(0, min(3, HO)))
        if HO > 3 and u == UKV + cfg.get("f_ho2", 56):
            assert u > UH01 and a.vm.count(("B2", 2)) == 2 and not any(isinstance(x, str) and ("s%d, s%d" % (sB2, sBE)) in x for x in side)
            barrier(); side[:0] = hole_ops(range(3, HO))
        if u == UPW and not HK:
            assert 12 in stt["free"]
            side[:0] = [y for x in range(8) for y in (("x", lambda x=x: kpw(x)), None)]
        if u == UH01 - 1:
            side += [None] * 5
            for p in range(2):
                for mt in range(MT):
                    side += pack(acc(mt, 6 + 2 * p), acc(mt, 7 + 2 * p), relu=True)
                    if p * 4 + mt < cfg.get("f_hearly", 8):
                        side.append(("m", lambda p=p, mt=mt: hstore(p, mt)))
                        side += [None] * cfg.get("f_hsp", 8)
        if u == UCHK:
            assert UCHK >= UH01
            for x in range(cfg.get("f_hearly", 8), 8):
                side += [("m", lambda x=x: hstore(x // 4, x % 4))] + [None] * cfg.get("f_hsp2", 6)
    if cfg.get("verbose"): print("G1 side left", len([x for x in side if x is not None]), file=sys.stderr)
    G.drain()
    assert not order
    assert 12 in stt["free"]
    stampr("g1end")

    va = []
    for mt in range(MT): va += pack(acc(mt, 10), acc(mt, 11), relu=True)
    if HK:
        stampr("attbeg")
        for _ in range(8): a(va.pop(0))
    else:
        if UPW >= NU:
            for x in range(8): kpw(x)
        a.wait(lg="kvw")
        a("s_barrier")
        stampr("attbeg")
        for kt in range(20):
            kread(kt)
            a(va.pop(0))
    for mt in range(MT):
        for t in (0, 1):
            for e2 in range(2):
                c = acc(mt, t) + 2 * e2
                a("v_pk_mul_f32 v[%d:%d], v[%d:%d], s[%d:%d] op_sel_hi:[1,0]" % (c, c + 1, c, c + 1, sSC, sSC + 1))
        if mt == 0:
            for x in pack(acc(mt, 0), acc(mt, 1)): a(x)
    STCH = cfg.get("f_st", 0)
    a.vm = [("H01" if t == "H" else t) for t in a.vm]
    stq = [(cfg.get("f_st0", 200), sH), (cfg.get("f_st1", 380), sH + 1)] if STCH & 1 else []
    hstore(2, 0)
    for mt in range(1, MT): va += pack(acc(mt, 0), acc(mt, 1))
    for mt in range(MT): va += pack(acc(mt, 12), None, relu=True)
    free = [acc(mt, t) for t in (2, 3, 4, 5, 7, 9) for mt in range(MT)] + [212, 216, 220] + [acc(mt, t) for t in (11, 1) for mt in range(MT)]

    C2 = cfg.get("f_c2", 2)
    C2T = cfg.get("f_c2t", 4); C2S = cfg.get("f_c2s", 5)
    CM2 = max(C2, C2T, 3)
    RA2 = cfg.get("f_ra2", 13); DB2 = cfg.get("f_db2", CM2 + 2); RB2 = DB2 + CM2
    assert DB2 >= CM2
    BR2 = RA2 * 16
    assert BR2 + RB2 * 4 <= 256
    def aslot(p): return ((p - 3 + 10) % RA2) * 16
    def aload2(p, mt):
        a.vmem("buffer_load_dwordx4 %s, v%d, %s, s%d offen offset:%d %s" % (r4("a", aslot(p) + mt * 4), V_L16, s4(R_WS), sA, mt * 1024, ["sc1", "sc1 nt", ""][cfg.get("f_af", 0)]), ("A2", p))
        if mt == MT - 1:
            if p == 27 and not LIN: G.sal.append("s_mov_b32 s%d, s%d" % (sA, sAE))
            else:
                G.sal.append("s_add_u32 s%d, s%d, 4096" % (sA, sA))
                if p <= 27: G.sal.append("s_cmp_eq_u32 s%d, s%d\ns_cselect_b32 s%d, s%d, s%d" % (sA, sAE, sA, sA0, sA))
    hst = [(2, 1), (2, 2), (2, 3)] + [(3, mt) for mt in range(MT)]
    NPRE = cfg.get("f_npre", 10)
    assert NPRE >= 3
    pre = []
    assert HO <= NPRE <= NSL
    for p in range(HO, NPRE): pre += [(p,) + op for op in dma2_ops(p)]

    S_ = {}; P_ = {}; O_ = {}
    def s_mfma(qa, kt):
        q = free.pop(0); S_[(qa, kt)] = q
        a.wait(lg=("k", kt))
        c = r4("v", bias[kt // 4]) if kt < 16 else "0"
        a("%s %s, %s, %s, %s" % (MF, r4("v", q), r4("a", kreg(kt)), r4("v", acc(qa, 0)), c))
    def pv_list(qa):
        b0 = qa // 2
        out = []
        for b in range(b0, b0 + 9):
            for z in range(3):
                def f(b=b, z=z):
                    if b == b0: O_[(qa, z)] = free.pop(0)
                    o = r4("v", O_[(qa, z)])
                    if z < 2:
                        a.wait(lg=("v", 2 * b + z)); A = r4("a", VF + (2 * b + z) * 4)
                    else: A = r4("v", VONES)
                    a("%s %s, %s, %s, %s" % (MF, o, A, r4("v", P_[(qa, b)]), "0" if b == b0 else o))
                    if z == 2: free.append(P_[(qa, b)])
                out.append(f)
        return out
    def fin_list(qa):
        o0, o1, sm = O_[(qa, 0)], O_[(qa, 1)], O_[(qa, 2)]
        ops = ["v_rcp_f32 v%d, v%d" % (sm, sm), "s_nop 0"]
        for o in (o0, o1):
            for e in range(4): ops.append("v_mul_f32 v%d, v%d, v%d" % (o + e, o + e, sm))
        ops += pack(o0, o1)
        def f():
            a.vmem("buffer_store_dwordx4 %s, v%d, %s, s%d offen offset:%d %s" % (r4("v", o0), V_L16, s4(R_WS), sO, qa * 1024, HF), "O")
            free.extend([o1, sm]); late_free.append(o0)
        ops.append(f)
        return ops
    late_free = []
    pready = set()
    def soft_list(qa):
        k0, k1 = qa, qa + 16
        ops = []
        f_, l_ = S_[(qa, k0)], S_[(qa, k1)]
        odd = qa & 1
        g_, z_ = (l_, f_) if odd else (f_, l_)
        o_ = 2 * odd
        for e in range(4):
            ops.append((1, "v_cndmask_b32 v%d, v%d, v%d, s[%d:%d]" % (g_ + e, f_ + e, l_ + e, sMK + 2 * e, sMK + 2 * e + 1)))
        quads = [S_[(qa, kt)] for kt in range(k0 + 1, k1)] + [g_]
        vals = [q + e for q in quads for e in range(4)]
        m0, m1 = VM, VM + 1
        ops.append((1, "v_max3_f32 v%d, v%d, v%d, v%d" % (m0, vals[0], vals[1], vals[2])))
        ops.append((1, "v_max3_f32 v%d, v%d, v%d, v%d" % (m1, vals[3], vals[4], vals[5])))
        ops.insert(2, (0, "SLOT")); ops.insert(5, (0, "SLOT")); ops.append((0, "SLOT"))
        for x in range(6, 62, 4):
            ops.append((1, "v_max3_f32 v%d, v%d, v%d, v%d" % (m0, m0, vals[x], vals[x + 1])))
            ops.append((1, "v_max3_f32 v%d, v%d, v%d, v%d" % (m1, m1, vals[x + 2], vals[x + 3])))
            ops.append((0, "SLOT"))
        ops.append((1, "v_max3_f32 v%d, v%d, v%d, v%d" % (m0, m0, vals[62], vals[63])))
        ops.append((1, "v_max_f32 v%d, v%d, v%d" % (m0, m0, m1)))
        ops.append((1, "v_mov_b32 v%d, v%d" % (m1, m0)))
        ops.append((0, "SLOT2"))
        ops.append((1, "v_permlane16_swap_b32 v%d, v%d" % (m0, m1)))
        ops.append((1, "v_max_f32 v%d, v%d, v%d" % (m0, m0, m1)))
        ops.append((1, "v_mov_b32 v%d, v%d" % (m1, m0)))
        ops.append((1, "v_mov_b32 v%d, 0" % (z_ + 2 - o_)))
        ops.append((1, "v_mov_b32 v%d, 0" % (z_ + 3 - o_)))
        ops.append((1, "v_permlane32_swap_b32 v%d, v%d" % (m0, m1)))
        ops.append((1, "v_max_f32 v%d, v%d, v%d" % (m0, m0, m1)))
        def subexp(q):
            r = []
            for e2 in range(2):
                r.append((1, "v_pk_add_f32 v[%d:%d], v[%d:%d], v[%d:%d] op_sel_hi:[1,0] neg_lo:[0,1] neg_hi:[0,1]" % (q + 2 * e2, q + 2 * e2 + 1, q + 2 * e2, q + 2 * e2 + 1, m0, m0 + 1)))
            for e in range(4):
                if e < 2: r.append((0, "SLOT"))
                r.append((2, "v_exp_f32 v%d, v%d" % (q + e, q + e)))
            r.append((0, "MEM"))
            return r
        ops += subexp(g_)
        ops += subexp(S_[(qa, k0 + 1)])
        cv = ["v_cvt_pk_bf16_f32 v%d, v%d, v%d" % (g_ + o_ + x, g_ + 2 * x, g_ + 2 * x + 1) for x in range(2)]
        if odd: cv.reverse()
        ops += [(1, x) for x in cv]
        for x in range(2):
            if odd: ops.append((1, "v_bfi_b32 v%d, v%d, 0, v%d" % (z_ + o_ + x, VM + 2 + x, g_ + o_ + x)))
            else:   ops.append((1, "v_and_b32 v%d, v%d, v%d" % (z_ + o_ + x, VM + 2 + x, g_ + o_ + x)))
        for x in range(2): ops.append((1, "v_xor_b32 v%d, v%d, v%d" % (g_ + o_ + x, g_ + o_ + x, z_ + o_ + x)))
        done = {k0, k0 + 1, k1}
        b0 = qa // 2
        pend_pack = None
        for b in range(b0, b0 + 9):
            for kt in (2 * b, 2 * b + 1):
                if k0 <= kt <= k1 and kt not in done:
                    ops += subexp(S_[(qa, kt)]); done.add(kt)
            if pend_pack: ops += pend_pack
            lo, hi = S_.get((qa, 2 * b)), S_.get((qa, 2 * b + 1))
            pk = []
            if lo is None or hi is None: d = z_
            elif g_ in (lo, hi):
                d = g_; ot = hi if lo == g_ else lo
                pk += [(1, "v_cvt_pk_bf16_f32 v%d, v%d, v%d" % (d + 2 - o_ + x, ot + 2 * x, ot + 2 * x + 1)) for x in range(2)]
                pk.append((0, (lambda ot=ot: free.append(ot))))
            else:
                d = lo
                pk += [(1, x) for x in pack(lo, hi)]
                pk.append((0, (lambda hi=hi: free.append(hi))))
            P_[(qa, b)] = d
            pk.append((0, (lambda b=b: pready.add((qa, b)))))
            pend_pack = pk
        ops += pend_pack
        return ops
    def run(op):
        if isinstance(op, str): a(op)
        else: op()
    vr = list(range(20))
    def vread():
        f = vr.pop(0)
        a.lds("ds_read_b128 %s, v%d offset:%d" % (r4("a", VF + 4 * f), V_KVW, 32768 + f * 1024), ("v", f))
    for kt in range(17):
        s_mfma(0, kt)
        vread(); a(va.pop(0))
    while vr:
        vread(); a(va.pop(0))
    hstore(*hst.pop(0))
    while va: a(va.pop(0))
    HGAP = cfg.get("f_hgap", 30); PGAP = cfg.get("f_pgap", 28)
    HFL = cfg.get("f_hfl", 500)
    HPO = cfg.get("f_hpo", 900)
    HCK = cfg.get("f_hck", 2000)
    hok = False
    ordA = [("A2", p, mt) for p in range(3, KS2) for mt in range(MT)]
    napre = cfg.get("f_apre", 16)
    pv3 = pv_list(3); pv3b = [1 + x // 3 for x in range(27)]
    tq = [(cfg.get("f_tb0", 200) + k * cfg.get("f_tbd", 150), k) for k in range(cfg.get("f_tbn", 0))]
    tcq = []
    if TCN:
        k0 = cfg.get("f_tck", 6); nr = cfg.get("f_tcr", 2)
        ed = [k0 + (56 - k0) * x // nr for x in range(nr + 1)]
        rr = [(ed[x], ed[x + 1]) for x in range(nr)] + [(56, 72)]
        tcq = [(cfg.get("f_tc0", 540) + x * cfg.get("f_tcd", 130), lo_, hi_) for x, (lo_, hi_) in enumerate(rr)]
    sq = []
    if SPF:
        for k in range(cfg.get("f_spf0", 6), 56): sq.append("s_load_dword s%d, s[%d:%d], 0x%x" % (t3, (P_W2 if k < 28 else P_WQ), (P_W2 if k < 28 else P_WQ) + 1, (k % 28) * 32768))
        for k in range(16): sq.append("s_load_dword s%d, s[%d:%d], 0x%x" % (t3, P_WO, P_WO + 1, k * 32768))
    next_s = 0; SGAP = cfg.get("f_sgap", 8)
    kvbar = False; hflag = False; hpoll = False
    cost_total = 0; next_h = HGAP; next_p = 0
    for qa in range(4):
        stampr("att%d" % qa)
        ops = soft_list(qa)
        tot = sum(c for c, _ in ops)
        pv = pv_list(qa - 1) if qa > 0 else []
        fin = None
        sm = [(qa + 1, kt) for kt in range(qa + 1, qa + 18)] if qa < 3 else []
        c = 0
        pv_done_at = None
        for (cost, op) in ops:
            if op == "SLOT2":
                if pv:
                    pv.pop(0)(); a("s_nop 0")
                    if not pv: pv_done_at = c
                else: a("s_nop 1")
                continue
            if op == "SLOT":
                did = False
                if pv:
                    pv.pop(0)(); did = True
                    if not pv: pv_done_at = c
                elif sm and len(free) > 0 and c >= tot * 0.2:
                    s_mfma(*sm.pop(0)); did = True
                elif qa == 3 and pv3 and (3, pv3b[0]) in pready:
                    pv3.pop(0)(); pv3b.pop(0); did = True
                if did and G.sal:
                    a(G.sal.pop(0)); continue
                if did and pre and pre[0][1] == 0 and (kvbar or (pre[0][0] < 9 and not HK)): pre.pop(0)[2]()
                elif sq and kvbar and cost_total >= next_s and (did or cost_total >= next_s + SGAP):
                    a(sq.pop(0)); next_s = cost_total + SGAP
                    if not sq and cfg.get("verbose"): print("scalar prefetch done at", cost_total, file=sys.stderr)
                continue
            if op == "MEM":
                if qa > 0 and fin is None and pv_done_at is not None and c >= pv_done_at + 18:
                    fin = fin_list(qa - 1)
                    for x in fin: run(x)
                elif hst and cost_total >= next_h:
                    hstore(*hst.pop(0)); next_h = cost_total + HGAP
                elif stq and cost_total >= stq[0][0]:
                    a.wait(vm="H01"); selftouch(stq.pop(0)[1], True)
                elif tcq and cost_total >= tcq[0][0]:
                    _, lo_, hi_ = tcq.pop(0)
                    if lo_ < 56:
                        m_ = ((1 << hi_) - 1) ^ ((1 << lo_) - 1)
                        a("s_mov_b32 exec_lo, 0x%x" % (m_ & 0xffffffff))
                        a("s_mov_b32 exec_hi, 0x%x" % (m_ >> 32))
                        a.vmem("buffer_load_dword a%d, v%d, %s, s%d offen" % (A_PD, V_T128, s4(R_W2), sCLS), "T")
                    else:
                        a("s_mov_b64 exec, 0xffff")
                        a.vmem("buffer_load_dword a%d, v%d, %s, s%d offen" % (A_PD, V_T128, s4(R_WO), t3), "T")
                    a("s_mov_b64 exec, -1")
                elif not hst and tq and cost_total >= tq[0][0]:
                    k_ = tq.pop(0)[1]
                    a("s_lshr_b32 s%d, s2, 3" % t0)
                    a("s_lshl_b32 s%d, s%d, 2" % (t0, t0))
                    a("s_add_u32 s%d, s%d, s%d" % (t0, t0, sW))
                    if k_ < 4:
                        a("s_mul_i32 s%d, s%d, 3584" % (t0, t0))
                        a("s_mul_i32 s%d, s%d, %d" % (t1, sQ, 896 * 2048))
                        a("s_add_u32 s%d, s%d, s%d" % (t0, t0, t1))
                        if k_: a("s_add_u32 s%d, s%d, %d" % (t0, t0, k_ * 224 * 2048))
                        a("s_mov_b64 exec, 0xfffffff")
                        a.vmem("buffer_load_dword a%d, v%d, %s, s%d offen" % (A_PD, V_T128, s4(R_W2), t0), "T")
                    else:
                        a("s_lshl_b32 s%d, s%d, 12" % (t0, t0))
                        a("s_lshl_b32 s%d, s%d, 19" % (t1, sQ))
                        a("s_add_u32 s%d, s%d, s%d" % (t0, t0, t1))
                        a("s_mov_b32 exec_hi, 0")
                        a.vmem("buffer_load_dword a%d, v%d, %s, s%d offen" % (A_PD, V_T128, s4(R_WO), t0), "T")
                    a("s_mov_b64 exec, -1")
                elif not hst and not hflag and cost_total >= HFL:
                    a.wait(vm="H")
                    a.vmem("buffer_store_dword v%d, v%d, %s, 0 offen offset:32 sc1" % (V_ONE, V_FG, s4(R_WS)), "FH")
                    hflag = True
                    if STCH & 2: selftouch(sH + 2, True)
                elif hflag and not hpoll and cost_total >= HPO:
                    if cfg.get("f_cpf2", 1): codepf(V_T128)
                    poll_issue("PH"); hpoll = True
                elif hpoll and not hok and cost_total >= HCK:
                    a.wait(vm="PH"); spin(0xff00); hok = True
                    stampr("g2h")
                elif hok and napre > 0:
                    G.drain_sal()
                    op_ = ordA.pop(0); aload2(op_[1], op_[2]); napre -= 1
                elif pre and pre[0][1] == 1 and cost_total >= next_p:
                    pre.pop(0)[2](); next_p = cost_total + PGAP
                    if cfg.get("f_p2", 0) and pre and pre[0][1] == 1: pre.pop(0)[2]()
                continue
            run(op); c += cost; cost_total += cost
            if qa == 0 and not kvbar and c >= 30:
                a.wait(lg=("v", 19)); a("s_barrier"); kvbar = True
        assert not pv and (qa == 0 or fin)
        free.extend(late_free); del late_free[:]
        if sm and cfg.get("verbose"): print("late S mfmas", qa, len(sm), file=sys.stderr)
        late = bool(sm)
        while sm: s_mfma(*sm.pop(0))
        if late: a("s_nop 7")
    if cfg.get("verbose"): print("attention cost", cost_total, "pre left", len(pre), file=sys.stderr)
    stampr("att4")
    assert not hst and hflag and hpoll and not sq and not tcq
    if not hok: napre = 0
    while pre:
        pre.pop(0)[2](); a("s_nop 0")
    G.drain_sal()
    assert napre <= 4 * (RA2 - 10) and not (HK and hok)
    a("v_mov_b32 v%d, v%d" % (V2_RD, V2_B))
    a("v_xor_b32 v%d, 32, v%d" % (V2_RD + 1, V2_B))
    xr = ["v_xor_b32 v%d, %d, v%d" % (V2_RD + t, t * 32, V2_B) for t in range(2, 8)]
    xr += ["v_add_u32 v%d, %d, v%d" % (V2_RD + 8 + t, 2 * STAGE, V2_RD + t) for t in range(8)]
    if cfg.get("verbose"): print("pv3 left", len(pv3), "apre left", napre, file=sys.stderr)
    for f in pv3:
        f()
        if napre > 0:
            op_ = ordA.pop(0); aload2(op_[1], op_[2]); napre -= 1; G.drain_sal()
        else:
            for _ in range(2):
                if xr: a(xr.pop(0))
    while xr: a(xr.pop(0))
    stampr("attend")

    NT2 = 8
    DL = cfg.get("f_dl", 8); S2 = KS2 - DL
    assert RA2 >= DL
    own = set(acc(mt, 6 + 2 * p) for p in range(3) for mt in range(MT))
    busy = own | set(O_[(3, z)] for z in range(3)) | {208}
    q2 = [q for q in range(0, 224, 4) if q not in busy]
    acc2 = {}
    for t in range(NT2):
        for mt in range(MT): acc2[(mt, t)] = q2.pop(0)
    VX = [q2.pop(0) for _ in range(4)]
    TT = q2.pop(0); V_XI = TT + 2
    R_X = R_WQ; R_OUT = R_W1
    rec = Rec()
    rec.l += [None] * 5 + [x if isinstance(x, str) else ("m", x) for x in fin_list(3)]
    for t in range(8): rec("v_add_u32 v%d, %d, v%d" % (V2_RD + 16 + t, 4 * STAGE, V2_RD + t))
    srd(rec, R_X, P_X, S * D * 2)
    srd(rec, R_OUT, P_OUT, S * D * 2)
    rec2 = Rec()
    rec2("v_and_b32 v%d, 15, v%d" % (TT, L))
    rec2("v_lshlrev_b32 v%d, 11, v%d" % (V_XO, TT))
    rec2("v_lshrrev_b32 v%d, 4, v%d" % (TT, L))
    rec2("v_lshl_add_u32 v%d, v%d, 3, v%d" % (V_XI, TT, V_XO))
    rec2("v_bfe_u32 v%d, v%d, 4, 1" % (TT, L))
    rec2("v_lshl_add_u32 v%d, v%d, 5, v%d" % (V_XO, TT, V_XO))
    rec2("v_lshrrev_b32 v%d, 5, v%d" % (TT, L))
    rec2("v_lshl_add_u32 v%d, v%d, 4, v%d" % (V_XO, TT, V_XO))
    CO = cfg.get("f_co", 1)
    if CO:
        V_OW = V_KVW; V_OR = V2_B
        rec2("s_mul_i32 s%d, s%d, 5120" % (t1, sW))
        rec2("s_add_u32 s%d, s%d, %d" % (t1, t1, 5 * STAGE))
        rec2("v_and_b32 v%d, 15, v%d" % (TT, L))
        rec2("v_mul_u32_u24 v%d, 80, v%d" % (V_OW, TT))
        rec2("v_lshrrev_b32 v%d, 4, v%d" % (TT, L))
        rec2("v_lshl_add_u32 v%d, v%d, 3, v%d" % (V_OW, TT, V_OW))
        rec2("v_add_u32 v%d, s%d, v%d" % (V_OW, t1, V_OW))
        rec2("v_lshrrev_b32 v%d, 2, v%d" % (TT, L))
        rec2("v_mul_u32_u24 v%d, 80, v%d" % (V_OR, TT))
        rec2("v_lshlrev_b32 v%d, 11, v%d" % (V_XO, TT))
        rec2("v_and_b32 v%d, 3, v%d" % (TT, L))
        rec2("v_lshl_add_u32 v%d, v%d, 4, v%d" % (V_OR, TT, V_OR))
        rec2("v_add_u32 v%d, s%d, v%d" % (V_OR, t1, V_OR))
        rec2("v_lshl_add_u32 v%d, v%d, 4, v%d" % (V_XO, TT, V_XO))
    XD = cfg.get("f_xd", 1) and CO
    if XD:
        assert "f_ux" not in cfg
        rec2("v_and_b32 v%d, 15, v%d" % (TT, L))
        rec2("v_lshlrev_b32 v%d, 6, v%d" % (V_XI, TT))
        rec2("v_lshrrev_b32 v%d, 4, v%d" % (TT, L))
        rec2("v_lshl_add_u32 v%d, v%d, 3, v%d" % (V_XI, TT, V_XI))
        rec2("v_add_u32 v%d, s%d, v%d" % (V_XI, t1, V_XI))
    sSX = [sKV, sKV2, sKP]; sSF = [sKP2, sFK, sH]; sRX = sH + 1
    for lam in range(3):
        rec("s_xor_b32 s%d, s2, %d" % (t1, (lam ^ 3) << 1))
        rec("s_lshl_b32 s%d, s%d, 2" % (t1, t1))
        rec("s_add_u32 s%d, s%d, s%d" % (t1, t1, sW))
        rec("s_mul_i32 s%d, s%d, 12288" % (sSX[lam], t1))
        rec("s_add_u32 s%d, s%d, 0x%x" % (sSX[lam], sSX[lam], WS_XC + lam * 4096))
        rec("s_lshl_b32 s%d, s%d, 7" % (sSF[lam], t1))
        rec("s_add_u32 s%d, s%d, 0x%x" % (sSF[lam], sSF[lam], WS_FL + lam * 4))
    rec("s_lshl_b32 s%d, s2, 2" % t1)
    rec("s_add_u32 s%d, s%d, s%d" % (t1, t1, sW))
    rec("s_mul_i32 s%d, s%d, 12288" % (sRX, t1))
    rec("s_add_u32 s%d, s%d, 0x%x" % (sRX, sRX, WS_XC))
    if DF:
        for lam in range(3): rec("s_add_u32 s%d, s%d, %d" % (sSF[lam], sRX, lam * 4096))
    side = G.side
    side += rec.l

    units = []; del gi[:]
    grp(units, 0, 3, range(NT2), 3)
    grp(units, 3, C2S, range(NT2), 2)
    DLO = cfg.get("f_dlo", 11); S2O = KS2 - DLO
    assert DL <= DLO <= RA2
    grp(units, C2S, S2O, range(NT2), C2)
    grp(units, S2O, S2, range(6), C2)
    UT = len(units)
    for lam in range(4): grp(units, S2 if lam < 3 else S2O, KS2, (2 * lam, 2 * lam + 1), C2T if lam else min(C2T, cfg.get("f_c2t0", 4)))
    NU = len(units)
    PL = 2 * DL
    last_unit = {}
    for u, (p, t) in enumerate(units): last_unit[p] = u
    stt = dict(ready=-1, free=set(), waited=-1, issued=-1, ook=False, hok=hok)
    ordB = [("B2", p) for p in range(NPRE, KS2)]
    def barrier2():
        a("s_barrier")
        for p, lu in last_unit.items():
            if lu <= stt["waited"]: stt["free"].add(p)
    def can2(op):
        if op[0] == "B2": return op[1] < NSL or (op[1] - NSL) in stt["free"]
        if not stt["hok"] or (op[1] >= 28 and not stt["ook"]): return False
        return op[1] - 3 < RA2 or last_unit[op[1] - RA2] <= stt["issued"]
    def issue2(op):
        if cfg.get("verbose"): print("late flush2", op, file=sys.stderr)
        G.drain_sal()
        if op[0] == "A2": aload2(op[1], op[2])
        else:
            for x in dma2_ops(op[1]): x[1](); a("s_nop 0")
        G.drain_sal()
    def flush2(q, tag):
        while any(o[:2] == tag for o in q):
            op = q.pop(0); assert can2(op), (op, stt); issue2(op)
    def bread2(u, j2):
        p, t = units[u]
        sl, pos = LOC[p % NSL]
        a.lds("ds_read_b64_tr_b16 %s, v%d offset:%d" % (r2("a", BR2 + (u % RB2) * 4 + j2 * 2), V2_RD + 8 * (sl // 2) + t, (sl % 2) * STAGE + (pos + j2) * 1024), ("b2", u))
    def need2(u):
        p = units[u][0]
        if p > stt["ready"]:
            flush2(ordB, ("B2", p))
            grp = cfg.get("f_bgrp", 4)
            top = max(x for x in range(p, min(p + grp, KS2)) if not any(o[1] == x for o in ordB))
            if p == 0: top = min(NPRE - 1, cfg.get("f_top0", 5))
            elif p < NPRE: top = NPRE - 1
            a.wait(vm=("B2", top)); barrier2(); stt["ready"] = top
    need2(0)
    for u in range(DB2):
        bread2(u, 0); bread2(u, 1)
    stampr("g2beg")
    UOF = cfg.get("f_uof", 26)
    UOP = cfg.get("f_uop", 80); UOC = UOP + 12
    seenA = {0, 1, 2}
    xdone = False
    rq = sorted(own)
    def flag(lam):
        a.wait(vm=("S", lam))
        a.vmem("buffer_store_dword v%d, v%d, %s, s%d offen sc1" % (V_ONE, V_FL0, s4(R_WS), sSF[lam]), ("F", lam))
    def recv(lam, mt):
        a.vmem("buffer_load_dwordx4 %s, v%d, %s, s%d offen offset:%d sc1" % (r4("v", rq[4 * lam + mt]), V_L16, s4(R_WS), sRX, mt * 1024), ("R", lam, mt))
        if mt == 3 and lam < 2: a("s_add_u32 s%d, s%d, 4096" % (sRX, sRX))
    PS = lambda mt, hh: acc2[(mt, hh)]
    def addpk(dst, src, first=False):
        ops = []
        for hh in range(2):
            for e2 in range(2):
                pp = src + 2 * hh + e2; c = dst[hh] + 2 * e2
                if first:
                    ops += ["v_lshlrev_b32 v%d, 16, v%d" % (c, pp), "v_and_b32 v%d, 0xffff0000, v%d" % (c + 1, pp)]
                else:
                    ops += ["v_lshlrev_b32 v%d, 16, v%d" % (TT, pp), "v_and_b32 v%d, 0xffff0000, v%d" % (TT + 1, pp),
                            "v_pk_add_f32 v[%d:%d], v[%d:%d], v[%d:%d]" % (c, c + 1, c, c + 1, TT, TT + 1)]
        return ops
    FD = cfg.get("f_fd", 26)
    ev = {}
    def at(u, f): ev.setdefault(u, []).append(f)
    def rtxt(lam, mt): return "buffer_load_dwordx4 %s, v%d, %s, s%d offen offset:%d sc1" % (r4("v", rq[4 * lam + mt]), V_L16, s4(R_WS), sSF[lam], mt * 1024)
    def rmax(lam):
        rg = [rq[4 * lam + mt] + e for mt in range(MT) for e in range(4)]
        o = ["v_max3_u32 v%d, v%d, v%d, v%d" % (V_POLL, rg[0], rg[1], rg[2])]
        for k in range(3, 15, 2): o.append("v_max3_u32 v%d, v%d, v%d, v%d" % (V_POLL, V_POLL, rg[k], rg[k + 1]))
        o.append("v_max_u32 v%d, v%d, v%d" % (V_POLL, V_POLL, rg[15]))
        return o
    def rcheck(lam):
        l0 = a.newlabel("F_rt"); l1 = a.newlabel("F_ok")
        a("s_mov_b32 s%d, 0x%x" % (sSP, SPIN))
        a.label(l0)
        a("v_cmp_eq_u32 vcc, -1, v%d" % V_POLL)
        a("s_cmp_eq_u64 vcc, 0")
        a("s_cbranch_scc1 %s" % l1)
        for mt in range(MT): a(rtxt(lam, mt))
        a("s_waitcnt vmcnt(0)")
        for x in rmax(lam): a(x)
        a("s_sub_u32 s%d, s%d, 1" % (sSP, sSP))
        a("s_cbranch_scc0 %s" % l0)
        a.label(l1)
    def addplain(dst, src):
        ops = []
        for hh in range(2):
            for e2 in range(2):
                pp = src + 2 * hh + e2; c = dst[hh] + 2 * e2
                ops += ["v_lshlrev_b32 v%d, 16, v%d" % (TT, pp), "v_and_b32 v%d, 0xffff0000, v%d" % (TT + 1, pp),
                        "v_add_f32 v%d, v%d, v%d" % (c, c, TT), "v_add_f32 v%d, v%d, v%d" % (c + 1, c + 1, TT + 1)]
        return ops
    if DF:
        R0U = UT + 3 * PL + cfg.get("f_r0", -6); R1U = UT + 4 * PL + cfg.get("f_r1", -5)
        at(R0U, lambda: side.extend(("m", lambda mt=mt: a.vmem(rtxt(0, mt), ("R", 0))) for mt in range(MT)))
        at(R1U, lambda: side.__setitem__(slice(0, 0), [("m", lambda mt=mt: a.vmem(rtxt(1, mt), ("R", 1))) for mt in range(MT)]))
    else:
        at(UT + PL + FD, lambda: flag(0))
        at(UT + 2 * PL + FD, lambda: flag(1))
        if cfg.get("f_fin2", 1): at(UT + 3 * PL + FD, lambda: flag(2))
        if cfg.get("f_pe", 4): at(NU - cfg.get("f_pe", 4), lambda: poll_issue("P1"))
    UP0 = UT + 3 * PL + cfg.get("f_p0", 4)
    F2 = cfg.get("f_fin2", 1)
    if not DF and not F2: at(UP0, lambda: poll_issue("P0"))
    def chk0():
        a.wait(vm="P0"); spin(1)
        for mt in range(MT): side.append(("m", lambda mt=mt: recv(0, mt)))
    if not DF and not F2: at(UP0 + cfg.get("f_c0", 8), chk0)
    def presum():
        side.append(("s", lambda: a.wait(vm="X")))
        if XD:
            for mt in range(MT):
                for hh in range(2):
                    side.append(("v", lambda mt=mt, hh=hh: a.lds("ds_read_b64 %s, v%d offset:%d" % (r2("v", VX[mt] + 2 * hh), V_XI, mt * 1024 + hh * 32), "xr")))
            side.extend([None] * 4 + [("s", lambda: a.wait(lg="xr"))])
        for mt in range(MT): side.extend(addpk([PS(mt, 0), PS(mt, 1)], VX[mt], first=True))
    at(UT + 2 * PL + PL // 2, presum)
    first_unit = {}
    for u, (p, t) in enumerate(units): first_unit.setdefault(p, u)
    NOPS = len(ordA) + 2 * len(ordB)
    UE2 = UT + cfg.get("f_ue2", 0)
    MARG = cfg.get("f_marg", 20)
    THR2 = cfg.get("f_thr2", 63)
    def prewait2(u):
        u += gi[u][1] - 1
        p, t = units[u]
        if p not in seenA:
            flush2(ordA, ("A2", p)); seenA.add(p)
            r = a.wait(vm=("A2", p), lg=("b2", u))
        else: r = a.wait(lg=("b2", u))
        stt["waited"] = u
        return r
    def b2sal(p):
        so = sB2 if p < 28 else sBO
        if p != 27 and p != 35: G.sal.append("s_add_u32 s%d, s%d, 65536" % (so, so))
        if p < 27: G.sal.append("s_cmp_eq_u32 s%d, s%d\ns_cselect_b32 s%d, s%d, s%d" % (sB2, sBE, sB2, sB0, sB2))
    prewait2(0)
    half = None
    for u in range(NU):
        u0, C_, gn = gi[u]; kk = u - u0
        p, t = divmod(u, NT2) if u < UT else units[u]
        un = u + DB2
        if u == UOF:
            a.wait(vm="O")
            a.vmem("buffer_store_dword v%d, v%d, %s, 0 offen offset:64 sc1" % (V_ONE, V_FG, s4(R_WS)), "FO")
            if STCH & 4: selftouch(sO, True)
            side.extend(rec2.l)
        if u == cfg.get("f_uh", 2) and not stt["hok"]:
            a.wait(vm="PH"); spin(0xff00); stt["hok"] = True
            stampr("g2h")
        if u < UT and t == 1: stampr("g2p%d" % p)
        if u == UT: stampr("g2tail")
        if u > UT and (u - UT) % PL == 0: stampr("g2l%d" % ((u - UT) // PL))
        if u == UOP: poll_issue("PO")
        if u == UOC:
            a.wait(vm="PO"); spin(0xff0000 | (7 if DF else 0)); stt["ook"] = True
        for f in ev.get(u, []): f()
        if un < NU and units[un][0] > stt["ready"]:
            if half is not None:
                dma2_ops(half)[2][1](); b2sal(half); half = None
            need2(un)
        if u < UT and t == 2 and p % 2 == 1 and p > 1 and p - 2 + NSL < KS2: barrier2()
        pre_ = None; mem_ = None
        if half is not None:
            def mem_(h=half): dma2_ops(h)[2][1](); b2sal(h)
            half = None
        elif len(G.sal) <= 1:
            cand = [q for q in (ordA, ordB) if q and can2(q[0])]
            if cand:
                cand.sort(key=lambda q: q[0][1] - (cfg.get("f_bprio", 5) if q[0][0] == "B2" else 0))
                done_ = NOPS - len(ordA) - 2 * len(ordB)
                if done_ * UE2 <= u * NOPS or first_unit[cand[0][0][1]] - u <= MARG + (16 if cand[0][0][0] == "B2" else 0):
                    nxt = cand[0].pop(0)
                    if nxt[0] == "B2":
                        ops_ = dma2_ops(nxt[1])
                        pre_ = lambda o=ops_: (o[0][1](), True)[1]
                        mem_ = ops_[1][1]; half = nxt[1]
                    else:
                        mem_ = lambda n_=nxt: aload2(n_[1], n_[2])
        if not xdone and (u == cfg.get("f_ux", 9999) or (not ordA and not ordB and half is None and mem_ is None)):
            xdone = True
            if XD:
                side.append("s_mul_i32 s%d, s%d, 5120" % (t1, sW))
                for mt in range(MT):
                    side += ["s_add_u32 m0, s%d, %d" % (t1, 5 * STAGE + mt * 1024), None,
                             ("m", lambda: a.vmem("buffer_load_dwordx4 v%d, %s, s%d offen lds" % (V_XO, s4(R_X), sXO), "X")),
                             "s_add_u32 s%d, s%d, %d" % (sXO, sXO, 32768 if mt < 3 else -3 * 32768)]
            for mt in range(MT if not XD else 0):
                for hh in range(2):
                    def f(mt=mt, hh=hh):
                        a.vmem("buffer_load_dwordx2 %s, v%d, %s, s%d offen offset:%d" % (r2("v", VX[mt] + 2 * hh), V_XI, s4(R_X), sXO, hh * 32), "X")
                    side += [("m", f)] + [None] * (cfg.get("f_xsp", 1) if hh else 1)
                side.append("s_add_u32 s%d, s%d, %d" % (sXO, sXO, 32768 if mt < 3 else -3 * 32768))
        for mt in range(MT):
            m_, k_ = divmod(kk * MT + mt, C_)
            if cfg.get("f_kz", 1) and m_ % 2 == 1 and units[u0][0] > 0: k_ = C_ - 1 - k_
            mz = m_ if gn % 2 == 0 else MT - 1 - m_
            p_, t_ = units[u0 + k_]
            bf = r4("a", BR2 + ((u0 + k_) % RB2) * 4)
            af = r4("v", acc(mz, 6 + 2 * p_)) if p_ < 3 else r4("a", aslot(p_) + mz * 4)
            c = r4("v", acc2[(mz, t_)])
            a("%s %s, %s, %s, %s" % (MF, c, bf, af, "0" if p_ == 0 else c))
            rd = (lambda mt=mt: bread2(un, mt)) if (mt < 2 and un < NU) else None
            if mt == 0: G.gap(fixed=rd)
            elif mt == 1: G.gap(first=pre_, fixed=rd)
            elif mt == 2:
                if mem_:
                    assert not G.sal
                    G.gap(first=(lambda: a.throttle(THR2)), mem=mem_)
                else: G.gap()
            else:
                if kk == C_ - 1:
                    stt["issued"] = u
                    G.gap(first=(lambda: prewait2(u + 1)) if u + 1 < NU else None)
                else: G.gap()
        if u >= UT and (u - UT) % PL == PL - 1:
            lam = (u - UT) // PL
            if lam < 3:
                new_ = [None] * 5
                for mt in range(MT):
                    new_ += pack(acc2[(mt, 2 * lam)], acc2[(mt, 2 * lam + 1)])
                    if DF: new_ += ["v_min_u32 v%d, -2, v%d" % (acc2[(mt, 2 * lam)] + e, acc2[(mt, 2 * lam)] + e) for e in range(4)]
                    def f(mt=mt, lam=lam):
                        a.vmem("buffer_store_dwordx4 %s, v%d, %s, s%d offen offset:%d sc1" % (r4("v", acc2[(mt, 2 * lam)]), V_L16, s4(R_WS), sSX[lam], mt * 1024), ("S", lam))
                    new_.append(("m", f))
                side[:0] = new_
    if cfg.get("verbose"): print("G2 side left", len([x for x in side if x is not None]), file=sys.stderr)
    G.drain()
    assert not ordA and not ordB and xdone
    stampr("g2end")
    def ownadd():
        for mt in range(MT):
            for hh in range(2):
                for e2 in range(2):
                    c = PS(mt, hh) + 2 * e2; o_ = acc2[(mt, 6 + hh)] + 2 * e2
                    a("v_pk_add_f32 v[%d:%d], v[%d:%d], v[%d:%d]" % (c, c + 1, c, c + 1, o_, o_ + 1))
    if DF:
        R2D = cfg.get("f_r2d", 1)
        def rd2():
            for mt in range(MT): a.vmem(rtxt(2, mt), ("R", 2, mt))
        assert a.vm.count(("R", 0)) == 4 and a.vm.count(("R", 1)) == 4
        if R2D == 0: rd2()
        a.wait(vm=("R", 0))
        for x in rmax(0): a(x)
        rcheck(0)
        for mt in range(MT):
            for x in addpk([PS(mt, 0), PS(mt, 1)], rq[mt]): a(x)
        stampr("x1")
        if R2D == 1: rd2()
        ownadd()
        a.wait(vm=("R", 1))
        for x in rmax(1): a(x)
        rcheck(1)
        stampr("x2")
        if R2D == 2: rd2()
        for mt in range(MT):
            for x in addpk([PS(mt, 0), PS(mt, 1)], rq[4 + mt]): a(x)
        stampr("x3")
        a.wait(vm=("R", 2, 3))
        for x in rmax(2): a(x)
        rcheck(2)
        stampr("x4")
    elif F2:
        for lam in range(2):
            if ("F", lam) not in a.vm: flag(lam)
        early = "P1" in a.vm
        if not early:
            a("s_nop 7")
            ownadd()
        if ("F", 2) not in a.vm: flag(2)
        if not early: poll_issue("P1")
        stampr("x1")
        a.wait(vm="P1"); spin(1)
        for mt in range(MT): recv(0, mt)
        spin(2)
        stampr("x2")
        for mt in range(MT): recv(1, mt)
        poll_issue("P2")
        if early: ownadd()
        for mt in range(MT):
            a.wait(vm=("R", 0, mt))
            for x in addpk([PS(mt, 0), PS(mt, 1)], rq[mt]): a(x)
        a.wait(vm="P2"); spin(4)
        stampr("x3")
        for mt in range(MT): recv(2, mt)
        for mt in range(MT):
            for x in addpk([PS(mt, 0), PS(mt, 1)], rq[4 + mt]): a(x)
        stampr("x4")
    else:
        flag(2)
        poll_issue("P1")
        stampr("x1")
        for mt in range(MT):
            a.wait(vm=("R", 0, mt))
            for x in addpk([PS(mt, 0), PS(mt, 1)], rq[mt]): a(x)
        a.wait(vm="P1"); spin(2)
        stampr("x2")
        for mt in range(MT): recv(1, mt)
        poll_issue("P2")
        for mt in range(MT):
            for hh in range(2):
                for e2 in range(2):
                    c = PS(mt, hh) + 2 * e2; o_ = acc2[(mt, 6 + hh)] + 2 * e2
                    a("v_pk_add_f32 v[%d:%d], v[%d:%d], v[%d:%d]" % (c, c + 1, c, c + 1, o_, o_ + 1))
        a.wait(vm="P2"); spin(4)
        stampr("x3")
        for mt in range(MT): recv(2, mt)
        for mt in range(MT):
            for x in addpk([PS(mt, 0), PS(mt, 1)], rq[4 + mt]): a(x)
        stampr("x4")
    for mt in range(MT):
        a.wait(vm=("R", 2, mt))
        for x in addpk([PS(mt, 0), PS(mt, 1)], rq[8 + mt]): a(x)
        c0 = PS(mt, 0)
        if cfg.get("eps"):
            for hh in range(2):
                for e in range(4): a("v_mul_f32 v%d, 0x%x, v%d" % (PS(mt, hh) + e, f2u(1.0 + cfg["eps"] / 10000.0), PS(mt, hh) + e))
        for x in pack(c0, PS(mt, 1)): a(x)
        def ostore(m, reg):
            a.vmem("buffer_store_dwordx4 %s, v%d, %s, s%d offen %s" % (r4("v", reg), V_XO, s4(R_OUT), sXO, ["", "sc1", "nt"][cfg.get("f_of", 2)]), "OUT")
            if m < 3: a("s_add_u32 s%d, s%d, 32768" % (sXO, sXO))
        if CO:
            a.lds("ds_write_b64 v%d, %s offset:%d" % (V_OW, r2("v", c0), mt * 1280), ("ow", mt))
            a.lds("ds_write_b64 v%d, %s offset:%d" % (V_OW, r2("v", c0 + 2), mt * 1280 + 32), ("ow", mt))
            a.lds("ds_read_b128 %s, v%d offset:%d" % (r4("v", PS(mt, 1)), V_OR, mt * 1280), ("or", mt))
            if mt > 0:
                a.wait(lg=("or", mt - 1)); ostore(mt - 1, PS(mt - 1, 1))
            if mt == 3:
                a.wait(lg=("or", 3)); ostore(3, PS(3, 1))
        else:
            a("s_nop 1")
            a("v_permlane16_swap_b32 v%d, v%d" % (c0, c0 + 2))
            a("v_permlane16_swap_b32 v%d, v%d" % (c0 + 1, c0 + 3))
            ostore(mt, c0)
    stampr("x5")
    if ST:
        a("s_waitcnt vmcnt(0)")
        stampr("end")
        a("s_waitcnt lgkmcnt(0)")
        for i in range(8): a("v_mov_b32 v%d, s%d" % (i, STB + 2 * i))
        a("s_lshl_b32 s%d, s2, 2" % t0)
        a("s_add_u32 s%d, s%d, s%d" % (t0, t0, sW))
        a("s_lshl_b32 s%d, s%d, 5" % (t0, t0))
        a("v_mov_b32 v8, 0")
        a("s_nop 4")
        a("buffer_store_dwordx4 v[0:3], v8, %s, s%d offen" % (s4(R_WS), t0))
        a("buffer_store_dwordx4 v[4:7], v8, %s, s%d offen offset:16" % (s4(R_WS), t0))
    a.label("F_end")
    a("s_endpgm")
    kernel_desc(a, name, 256, sgpr=102, accum=256, agpr=256)
    return "; @launch kernel=%s grid=(256,1,1) block=(256,1,1) lds=163840" % name

gen.gen_f = gen_f

if __name__ == "__main__":
    cfg = dict(g1_mt=4)
    out = sys.argv[1]
    kernels = sys.argv[2].split(",")
    for kv in sys.argv[3:]:
        k, v = kv.split("="); cfg[k] = int(v, 0)
    open(out, "w").write(gen.build(cfg, kernels))
```

```python
import sys, math
from asmlib import *
import gen
from gen import *

class SA:
    def __init__(self, start, end):
        self.n = start; self.end = end; self.m = {}
    def new(self, name, cnt=1, align=1):
        self.n = (self.n + align - 1) // align * align
        r = self.n; self.n += cnt
        assert self.n <= self.end, "out of sgprs"
        self.m[name] = r
        return r

def s4(b): return "s[%d:%d]" % (b, b + 3)
MF = "v_mfma_f32_16x16x32_bf16"

def kind_of(op):
    if op is None: return None
    if isinstance(op, tuple): return op[0]
    t = op.lstrip()
    if t.startswith("s_"): return "s"
    if t.startswith("v_"): return "v"
    raise ValueError(op)

class Gaps:
    def __init__(self, a):
        self.a = a
        self.sal = []
        self.side = []
    def run(self, op):
        if isinstance(op, tuple): op[1]()
        else: self.a(op)
    def gap(self, first=None, fixed=None, mem=None):
        used0 = False
        room = 2
        if first is not None: used0 = bool(first())
        if not used0:
            if self.sal:
                x = self.sal.pop(0); self.a(x); used0 = True
                room -= x.count("\n")
            elif self.side and kind_of(self.side[0]) == "s":
                self.run(self.side.pop(0)); used0 = True
        if mem is not None:
            mem(); return
        if fixed is not None:
            fixed(); room -= 1
        if self.side and self.side[0] is None:
            self.side.pop(0)
            skip = True
        else: skip = False
        while room > 0:
            if self.sal and self.sal[0].count("\n") < room:
                x = self.sal.pop(0); self.a(x); room -= 1 + x.count("\n"); continue
            if skip or not self.side or self.side[0] is None: break
            k = kind_of(self.side[0])
            if k in ("m", "x"):
                if room == 2:
                    self.run(self.side.pop(0))
                break
            self.run(self.side.pop(0)); room -= 1
    def drain_sal(self):
        while self.sal: self.a(self.sal.pop(0))
    def drain(self):
        self.drain_sal()
        for op in self.side:
            if op is not None: self.run(op)
        self.side = []

def ln_ops(exact=1):
    o = []
    a = o.append
    pk = lambda op, d, x, y, mod="": a("%s v[%d:%d], v[%d:%d], v[%d:%d]%s" % (op, d, d + 1, x, x + 1, y, y + 1, mod))
    for i in range(16):
        if i % 4 == 0: a("WAIT%d" % (i // 4))
        a("v_lshlrev_b32 v%d, 16, v%d" % (24 + 2 * i, 8 + i))
        a("v_and_b32 v%d, 0xffff0000, v%d" % (25 + 2 * i, 8 + i))
        if i == 1: pk("v_pk_add_f32", 56, 24, 26)
        elif i == 3: pk("v_pk_add_f32", 58, 28, 30)
        elif i > 3: pk("v_pk_add_f32", 56 + 2 * (i & 1), 56 + 2 * (i & 1), 24 + 2 * i)
    pk("v_pk_add_f32", 56, 56, 58)
    a("v_add_f32 v56, v56, v57")
    def xlane_sum(r, t):
        a("s_nop 1")
        a("v_add_f32_dpp v%d, v%d, v%d row_ror:8 row_mask:0xf bank_mask:0xf" % (r, r, r))
        for op in ("v_permlane16_swap_b32", "v_permlane32_swap_b32"):
            a("v_mov_b32 v%d, v%d" % (t, r))
            a("s_nop 1")
            a("%s v%d, v%d" % (op, r, t))
            a("v_add_f32 v%d, v%d, v%d" % (r, r, t))
    xlane_sum(56, 57)
    a("v_mul_f32 v56, 0x%x, v56" % f2u(1.0 / 256))
    neg = " op_sel_hi:[1,0] neg_lo:[0,1] neg_hi:[0,1]"
    for i in range(16):
        t = 62 + 2 * (i & 1); ac = 66 + 2 * (i & 1)
        pk("v_pk_add_f32", t, 24 + 2 * i, 56, neg)
        if i < 2: pk("v_pk_mul_f32", ac, t, t)
        else: a("v_pk_fma_f32 v[%d:%d], v[%d:%d], v[%d:%d], v[%d:%d]" % (ac, ac + 1, t, t + 1, t, t + 1, ac, ac + 1))
    pk("v_pk_add_f32", 66, 66, 68)
    a("v_add_f32 v57, v66, v67")
    xlane_sum(57, 58)
    a("ds_write_b64 v7, v[56:57]")
    a("s_waitcnt lgkmcnt(0)")
    a("s_barrier")
    for k in range(4): a("ds_read_b64 v[%d:%d], v60 offset:%d" % (62 + 2 * k, 63 + 2 * k, 64 * k))
    a("s_waitcnt lgkmcnt(0)")
    pk("v_pk_add_f32", 56, 62, 64)
    pk("v_pk_add_f32", 58, 66, 68)
    pk("v_pk_add_f32", 56, 56, 58)
    a("v_mul_f32 v56, 0x3e800000, v56")
    a("v_sub_f32 v59, v62, v56")
    a("v_mul_f32 v58, v59, v59")
    for r in (64, 66, 68):
        a("v_sub_f32 v59, v%d, v56" % r)
        a("v_fmac_f32 v58, v59, v59")
    a("v_fmac_f32 v57, 0x43800000, v58")
    a("v_mul_f32 v57, 0x%x, v57" % f2u(1.0 / 1024))
    a("v_cvt_pk_bf16_f32 v58, v56, v57")
    a("v_lshlrev_b32 v56, 16, v58")
    a("v_and_b32 v57, 0xffff0000, v58")
    a("v_add_f32 v57, 0x%x, v57" % f2u(1e-5))
    a("v_cvt_pk_bf16_f32 v57, v57, v57")
    a("v_and_b32 v57, 0xffff0000, v57")
    a("v_sqrt_f32 v57, v57")
    a("s_nop 0")
    a("v_cvt_pk_bf16_f32 v57, v57, v57")
    a("v_and_b32 v57, 0xffff0000, v57")
    a("v_rcp_f32 v58, v57")
    for i in range(16):
        pk("v_pk_add_f32", 24 + 2 * i, 24 + 2 * i, 56, neg)
        if i > 0:
            j = i - 1
            if exact:
                a("v_cvt_pk_bf16_f32 v%d, v%d, v%d" % (25 + 2 * j, 24 + 2 * j, 25 + 2 * j))
                a("v_lshlrev_b32 v%d, 16, v%d" % (24 + 2 * j, 25 + 2 * j))
                a("v_and_b32 v%d, 0xffff0000, v%d" % (25 + 2 * j, 25 + 2 * j))
            pk("v_pk_mul_f32", 24 + 2 * j, 24 + 2 * j, 58, " op_sel_hi:[1,0]")
            a("v_cvt_pk_bf16_f32 v%d, v%d, v%d" % (8 + j, 24 + 2 * j, 25 + 2 * j))
            if j % 4 == 3: a("STORE%d" % (j // 4))
    if exact:
        a("v_cvt_pk_bf16_f32 v55, v54, v55")
        a("v_lshlrev_b32 v54, 16, v55")
        a("v_and_b32 v55, 0xffff0000, v55")
    pk("v_pk_mul_f32", 54, 54, 58, " op_sel_hi:[1,0]")
    a("v_cvt_pk_bf16_f32 v23, v54, v55")
    a("STORE3")
    return o

def gen_f(a, cfg):
    name = NAME + "_kernel" if cfg.get("single") else "f_kernel"
    FLN = cfg.get("f_ln", 0)
    SPIN = cfg.get("spin", 0x40000)
    ST = cfg.get("stamp")
    MT = 4
    sa = SA(3, 84)
    P_WQ = sa.new("pwq", 2, 2); P_W1 = sa.new("pw1", 2, 2); P_WS = sa.new("pws", 2, 2); P_X = sa.new("px", 2, 2)
    P_W2 = sa.new("pw2", 2, 2); P_WO = sa.new("pwo", 2, 2); P_OUT = sa.new("pout", 2, 2)
    R_WQ = sa.new("rwq", 4, 4); R_W1 = sa.new("rw1", 4, 4); R_W2 = sa.new("rw2", 4, 4); R_WO = sa.new("rwo", 4, 4)
    R_WS = sa.new("rws", 4, 4)
    sW = sa.new("w"); sI = sa.new("i"); sJ = sa.new("j"); sJ1 = sa.new("j1"); sQ = sa.new("q"); sN = sa.new("n")
    sBQ = sa.new("bq"); sBV = sa.new("bv"); sBW = sa.new("bw"); sBL = sa.new("bl"); sLB = sa.new("lb"); sA = sa.new("a")
    sCLS = sa.new("cls"); t0 = sa.new("t0"); t1 = sa.new("t1"); t2 = sa.new("t2"); t3 = sa.new("t3")
    sMK = sa.new("mask", 8, 2)
    sKV = sa.new("kv"); sKV2 = sa.new("kv2"); sKP = sa.new("kp"); sKP2 = sa.new("kp2"); sFK = sa.new("fk"); sFO = sa.new("fo")
    sH = sa.new("h", 4); sSC = sa.new("sc", 2, 2); sO = sSC + 1; sA0 = sa.new("a0"); sB0 = sa.new("b0"); sAE = sa.new("aend"); sBE = sa.new("bend")
    sXO = sa.new("xo"); sSP = sa.new("spin")
    sDL = sMK
    STB = 84
    SETS = {1: ["start", "bar0", "g1end", "attbeg", "attend", "g2beg", "g2end", "end"],
            2: ["start", "g1half", "g1tail", "g1kv", "g1flag1", "g1chk", "g1kb", "g1end"],
            3: ["start", "attbeg", "att0", "att1", "att2", "att3", "att4", "attend"],
            4: ["start", "att4", "g2h", "g2beg", "g2p4", "g2p12", "g2tail", "g2end"],
            5: ["start", "g2end", "x1", "x2", "x3", "x4", "x5", "end"],
            7: ["g2beg", "g2p3", "g2p6", "g2p10", "g2p14", "g2p18", "g2p22", "g2end"],
            8: ["g2p22", "g2tail", "g2l1", "g2l2", "g2l3", "g2end", "x3", "end"],
            9: ["start", "lnx", "lns", "lnd", "lnp", "g1s1", "g1s4", "g1s8"],
            10: ["start", "k0", "k1", "k2", "k3", "k4", "lnx", "lns"],
            6: ["start", "bar0", "g1s2", "g1s4", "g1s8", "g1half", "g1s20", "g1tail"]}
    jn = [0]
    def stampr(nm):
        J = cfg.get("jit", 0)
        if J and nm != "start":
            jn[0] += 1
            lab = a.newlabel("F_j")
            a("s_lshl_b32 s84, s2, 2")
            if J & 1: a("s_add_u32 s84, s84, s%d" % sW)
            a("s_add_u32 s84, s84, %d" % (jn[0] * 7919 + J * 31))
            a("s_mul_i32 s84, s84, 0x9e3779b1")
            a("s_lshr_b32 s84, s84, 28")
            a("s_cmp_lg_u32 s84, 0")
            a("s_cbranch_scc1 %s" % lab)
            for _ in range(cfg.get("jitn", 2)): a("s_sleep 127")
            a.label(lab)
        if ST and nm in SETS[ST]:
            i = SETS[ST].index(nm)
            a("%s s[%d:%d]" % ("s_memtime" if cfg.get("clk") else "s_memrealtime", STB + 2 * i, STB + 2 * i + 1))

    NT = 13; KS = 32
    NS = 5; REG = 7168; STAGE = 4 * REG
    D1 = cfg.get("f_d1", 8)
    RA = cfg.get("f_ra1", 12)
    LA = cfg.get("f_la1", 4)
    C1 = cfg.get("f_c1", 2)
    C1K = cfg.get("f_c1k", 2); C1T = cfg.get("f_c1t", 4); C1S = cfg.get("f_c1s", 0)
    CM1 = max(C1, C1K, C1T)
    DB = cfg.get("f_db1", CM1 + 2); RB = DB + max(CM1, 2)
    assert DB >= CM1
    S1 = KS - D1
    def slot1(g): return (15 - g) % 5
    KVB = 96 * 1024
    def acc(mt, t): return (t * MT + mt) * 4
    V_L16 = 208; V_QKV = 209; V_W1 = 210; V_LEFT = 211
    V_RD = 212
    V_P0, V_P1, V_P2 = 221, 222, 223
    V_LANE = 224; V_FL0 = 225; V_ONE = 226; V_POLL = 227; V_KVW = 228; V_FG = 229; V_PL = 230
    T = 232
    A_PD = 255
    AR = 0; BR = RA * 16
    assert BR + RB * 4 <= 254

    kernel_begin(a, name)
    a.reset()
    stampr("start")
    a("s_cmp_ge_u32 s2, 256")
    a("s_cbranch_scc1 F_end")
    if cfg.get("idx"): a("s_xor_b32 s2, s2, %d" % cfg["idx"])
    SWP = cfg.get("f_swp", 0)
    if SWP:
        a("s_lshr_b32 s%d, s2, 1" % t0)
        a("s_xor_b32 s%d, s%d, s2" % (t0, t0))
        a("s_and_b32 s%d, s%d, 1" % (t0, t0))
        a("s_mul_i32 s%d, s%d, 3" % (t0, t0))
        a("s_xor_b32 s2, s2, s%d" % t0)
    if cfg.get("jit"):
        a("s_mul_i32 s84, s2, 0x9e3779b1")
        a("s_lshr_b32 s84, s84, 28")
        a("s_cmp_lg_u32 s84, %d" % (cfg["jit"] & 15))
        a("s_cbranch_scc1 F_j0")
        for _ in range(4): a("s_sleep 127")
        a.label("F_j0")
    a("s_load_dwordx2 s[%d:%d], s[0:1], 8" % (P_WQ, P_WQ + 1))
    a("s_load_dwordx2 s[%d:%d], s[0:1], 32" % (P_W1, P_W1 + 1))
    a("s_load_dwordx2 s[%d:%d], s[0:1], 64" % (P_WS, P_WS + 1))
    a("s_load_dwordx2 s[%d:%d], s[0:1], 0" % (P_X, P_X + 1))
    a("s_load_dwordx2 s[%d:%d], s[0:1], 40" % (P_W2, P_W2 + 1))
    a("s_load_dwordx2 s[%d:%d], s[0:1], 16" % (P_WO, P_WO + 1))
    a("s_load_dwordx2 s[%d:%d], s[0:1], 48" % (P_OUT, P_OUT + 1))
    if FLN:
        lab = a.newlabel("F_pc")
        a("s_getpc_b64 s[%d:%d]" % (R_WO, R_WO + 1))
        a.label(lab)
        a("s_and_b32 s%d, s%d, 0xffff" % (R_WO + 1, R_WO + 1))
        a("s_mov_b32 s%d, CODE_END - %s" % (R_WO + 2, lab))
        a("s_mov_b32 s%d, 0x00020000" % (R_WO + 3))
        a("s_lshr_b32 s%d, s2, 3" % t0)
        a("s_lshl_b32 s%d, s%d, 7" % (t0, t0))
        a("v_lshlrev_b32 v70, 12, v0")
        a.vmem("buffer_load_dword v76, v70, %s, s%d offen" % (s4(R_WO), t0), "T")
    if FLN: a("s_load_dwordx2 s[100:101], s[0:1], 56")
    L = V_LANE
    a("v_and_b32 v%d, 63, v0" % L)
    a("v_lshrrev_b32 v%d, 6, v0" % (T + 1))
    a("v_lshlrev_b32 v%d, 4, v%d" % (V_L16, L))
    a("v_readfirstlane_b32 s%d, v%d" % (sW, T + 1))
    a("s_and_b32 s%d, s2, 1" % sI)
    a("s_lshl_b32 s%d, s%d, 2" % (sI, sI))
    a("s_bfe_u32 s%d, s2, 0x20003" % t0)
    a("s_add_u32 s%d, s%d, s%d" % (sI, sI, t0))
    a("s_bfe_u32 s%d, s2, 0x20001" % sQ)
    a("s_lshr_b32 s%d, s2, 5" % sN)
    a("s_lshl_b32 s%d, s%d, 3" % (sJ, sQ))
    a("s_add_u32 s%d, s%d, s%d" % (sJ, sJ, sN))
    a("s_and_b32 s%d, s%d, 1" % (sJ1, sN))
    if FLN:
        a("v_and_b32 v3, 7, v%d" % L)
        a("v_lshrrev_b32 v4, 3, v%d" % L)
        LXD = cfg.get("f_lxd", 0)
        if LXD:
            a("v_xor_b32 v83, v3, v4")
            a("v_lshlrev_b32 v5, 11, v4")
            a("v_lshl_add_u32 v5, v%d, 9, v5" % (T + 1))
            a("v_lshl_add_u32 v5, v83, 4, v5")
            a("s_lshl_b32 s%d, s%d, 12" % (t1, sW))
            a("s_add_u32 s%d, s%d, %d" % (t1, t1, 144 * 1024))
            a("s_mov_b32 m0, s%d" % t1)
        else:
            a("v_lshlrev_b32 v5, 11, v3")
            a("v_lshl_add_u32 v5, v%d, 9, v5" % (T + 1))
            a("v_lshl_add_u32 v5, v4, 4, v5")
        a("s_lshl_b32 s%d, s%d, 5" % (t3, sI))
        a("s_add_u32 s%d, s%d, s%d" % (t3, t3, sJ))
        a("s_lshl_b32 s%d, s%d, 14" % (sFK, t3))
        assert not LXD or not cfg.get("f_early", 0)
    def xloads():
        stampr("k0")
        a("s_waitcnt lgkmcnt(0)")
        stampr("k1")
        srd(a, R_W2, P_X, S * D * 2)
        for i in range(4):
            if LXD:
                a.vmem("buffer_load_dwordx4 v5, %s, s%d offen offset:%d lds" % (s4(R_W2), sFK, i * 128), ("LX", i))
                if i < 3:
                    a("s_add_u32 m0, m0, %d" % (1024 - 128))
                    a("s_nop 0")
            else: a.vmem("buffer_load_dwordx4 %s, v5, %s, s%d offen offset:%d" % (r4("v", 8 + 4 * i), s4(R_W2), sFK, i * 128), ("LX", i))
        if LXD:
            a("v_lshlrev_b32 v83, 4, v83")
            a("v_lshl_add_u32 v83, v3, 7, v83")
            a("v_add_u32 v83, s%d, v83" % t1)
        stampr("k2")
        srd(a, R_WS, P_WS, WS_END)
        a("s_lshl_b32 s%d, s%d, 12" % (sSP, sI))
        a("s_add_u32 s%d, s%d, 0x%x" % (sXO, sSP, WS_LF))
        a("v_and_b32 v80, 31, v%d" % L)
        a("v_lshlrev_b32 v80, %d, v80" % cfg.get("f_lfs", 2))
        a("v_add_u32 v80, s%d, v80" % sXO)
        a.vmem("buffer_load_dword v81, v80, %s, 0 offen sc1" % s4(R_WS), "SN")
    if FLN and not cfg.get("f_early", 0): xloads()
    VQ3 = [V_QKV, 240, 241]; VW3 = [V_W1, 242, 243]
    a("v_lshrrev_b32 v%d, 2, v%d" % (T + 2, L))
    a("v_and_b32 v%d, 3, v%d" % (T + 4, L))
    a("v_lshlrev_b32 v%d, 4, v%d" % (T + 4, T + 4))
    a("v_mul_u32_u24 v%d, %d, v%d" % (T + 5, 16 * 6144, T + 1))
    a("v_lshl_add_u32 v%d, v%d, 11, v%d" % (T + 5, T + 2, T + 5))
    a("v_add_u32 v%d, v%d, v%d" % (VQ3[0], T + 5, T + 4))
    a("v_and_b32 v%d, 32, v%d" % (T + 3, L))
    a("v_xor_b32 v%d, v%d, v%d" % (VQ3[1], VQ3[0], T + 3))
    a("v_add_u32 v%d, 32768, v%d" % (VQ3[1], VQ3[1]))
    a("v_xor_b32 v%d, 32, v%d" % (VQ3[2], VQ3[0]))
    a("v_add_u32 v%d, 65536, v%d" % (VQ3[2], VQ3[2]))
    a("v_mul_u32_u24 v%d, %d, v%d" % (T + 5, 16 * 7168, T + 1))
    a("v_add_u32 v%d, v%d, v%d" % (T + 5, T + 5, T + 4))
    for m in range(3):
        if m: a("v_add_u32 v%d, 16, v%d" % (T + 2, T + 2))
        a("v_mul_u32_u24 v%d, 43, v%d" % (T + 4, T + 2))
        a("v_lshrrev_b32 v%d, 7, v%d" % (T + 4, T + 4))
        a("v_mul_u32_u24 v%d, %d, v%d" % (T + 4, 7168 - 192, T + 4))
        a("v_lshl_add_u32 v%d, v%d, 6, v%d" % (T + 4, T + 2, T + 4))
        a("v_add_u32 v%d, v%d, v%d" % (VW3[m], T + 4, T + 5))
        if m == 1: a("v_xor_b32 v%d, v%d, v%d" % (VW3[m], VW3[m], T + 3))
        if m == 2: a("v_xor_b32 v%d, 32, v%d" % (VW3[m], VW3[m]))
    a("v_bfe_u32 v%d, v%d, 3, 1" % (T + 2, L))
    a("v_lshlrev_b32 v%d, 3, v%d" % (T + 2, T + 2))
    a("v_bfe_u32 v%d, v%d, 4, 1" % (T + 3, L))
    a("v_lshl_add_u32 v%d, v%d, 2, v%d" % (T + 2, T + 3, T + 2))
    a("v_bfe_u32 v%d, v%d, 1, 2" % (T + 3, L))
    a("v_add_u32 v%d, v%d, v%d" % (T + 2, T + 2, T + 3))
    a("v_lshl_add_u32 v%d, v%d, 4, v%d" % (T + 2, T + 1, T + 2))
    a("v_mul_u32_u24 v%d, 7168, v%d" % (V_LEFT, T + 2))
    a("v_and_b32 v%d, 1, v%d" % (T + 3, L))
    a("v_lshl_add_u32 v%d, v%d, 4, v%d" % (V_LEFT, T + 3, V_LEFT))
    a("v_lshrrev_b32 v%d, 5, v%d" % (T + 3, L))
    a("v_lshl_add_u32 v%d, v%d, 30, v%d" % (V_LEFT, T + 3, V_LEFT))
    a("s_lshl_b32 s%d, s%d, 6" % (sBQ, sJ))
    a("s_mul_i32 s%d, s%d, 224" % (sBL, sJ))
    a("s_lshl_b32 s%d, s%d, 5" % (t0, sJ1))
    a("s_add_u32 s%d, s%d, s%d" % (sBW, sBL, t0))
    a("s_xor_b32 s%d, s%d, 1" % (t0, sJ1))
    a("s_mul_i32 s%d, s%d, 192" % (t0, t0))
    a("s_add_u32 s%d, s%d, s%d" % (sBL, sBL, t0))
    a("s_mul_i32 s%d, s%d, %d" % (sLB, sW, REG))
    a("s_lshl_b32 s%d, s%d, 2" % (sA, sI))
    a("s_add_u32 s%d, s%d, s%d" % (sA, sA, sW))
    a("s_lshl_b32 s%d, s%d, 17" % (sA, sA))
    a("s_add_u32 s%d, s%d, 0x%x" % (sA, sA, WS_XN))
    ROT = cfg.get("f_rot", 1)
    a("s_add_u32 s%d, s%d, s%d" % (t1, sI, sN))
    a("s_and_b32 s%d, s%d, %d" % (t1, t1, 3 if ROT else 0))
    for k in range(3):
        a("s_cmp_eq_u32 s%d, %d" % (t1, 3 - k))
        a("s_cselect_b32 s%d, -3, 1" % (sDL + k))
    a("s_cmp_eq_u32 s%d, 0" % t1)
    a("s_cselect_b32 s%d, 1, 5" % (sDL + 3))
    a("s_mul_i32 s%d, s%d, %d" % (t0, t1, 64 * 6144))
    a("s_add_u32 s%d, s%d, s%d" % (sBQ, sBQ, t0))
    a("s_mul_i32 s%d, s%d, %d" % (t0, t1, 64 * 7168))
    a("s_add_u32 s%d, s%d, s%d" % (sBW, sBW, t0))
    a("s_add_u32 s%d, s%d, s%d" % (sBL, sBL, t0))
    a("s_lshl_b32 s%d, s%d, 13" % (t0, t1))
    a("s_add_u32 s%d, s%d, s%d" % (sA, sA, t0))
    for k in range(4):
        a("s_lshl_b32 s%d, s%d, 13" % (sDL + 4 + k, sDL + k))
        a("s_sub_u32 s%d, s%d, 4096" % (sDL + 4 + k, sDL + 4 + k))
    if FLN and cfg.get("f_early", 0): xloads()
    elif not FLN: a("s_waitcnt lgkmcnt(0)")
    srd(a, R_WQ, P_WQ, D * 3 * D * 2)
    srd(a, R_W1, P_W1, D * DFF * 2)
    if not FLN: srd(a, R_WS, P_WS, WS_END)

    G = Gaps(a)
    PAIRPOS = [0, 2, 1, 3, 4, 5]
    def dma1(g, k, part):
        p, vreg, sb, so, imm = [(0, VQ3[0], R_WQ, sBQ, 0), (1, VQ3[1], R_WQ, sBQ, 0), (2, VQ3[2], R_WQ, sBQ, 0),
                                (3, VW3[0], R_W1, sBW, 0), (4, VW3[1], R_W1, sBW, 0), (5, VW3[2], R_W1, sBW, 0), (6, V_LEFT, R_W1, sBL, 0)][k]
        if part == 0:
            a("s_add_u32 m0, s%d, %d" % (sLB, slot1(g) * STAGE + p * 1024 - imm))
        else:
            a.vmem("buffer_load_dwordx4 v%d, %s, s%d offen offset:%d lds" % (vreg, s4(sb), so, imm), ("B", g))
            if k == 0: G.sal.append("s_mul_i32 s%d, s%d, %d" % (t2, sDL + (g & 3), 64 * 6144))
            if k == 2: G.sal.append("s_add_u32 s%d, s%d, s%d" % (sBQ, sBQ, t2))
            if k == 3: G.sal.append("s_mul_i32 s%d, s%d, %d" % (t2, sDL + (g & 3), 64 * 7168))
            if k == 5: G.sal.append("s_add_u32 s%d, s%d, s%d" % (sBW, sBW, t2))
            if k == 6: G.sal.append("s_add_u32 s%d, s%d, s%d" % (sBL, sBL, t2))
    def aload1(s, mt):
        a.vmem("buffer_load_dwordx4 %s, v%d, %s, s%d offen offset:%d%s" % (r4("a", AR + (s % RA) * 16 + mt * 4), V_L16, s4(R_WS), sA, mt * 1024, " sc1" if FLN else ""), ("A", s))
        if mt == MT - 1:
            if s % 2 == 0: G.sal.append("s_add_u32 s%d, s%d, 4096" % (sA, sA))
            else: G.sal.append("s_add_u32 s%d, s%d, s%d" % (sA, sA, sDL + 4 + ((s // 2) & 3)))
    order = []
    for g in range(16):
        for k in range(7): order.append(("B", g, k))
        for s in (2 * g, 2 * g + 1):
            for mt in range(MT): order.append(("A", s, mt))
    def issue1(op):
        G.drain_sal()
        if op[0] == "A": aload1(op[1], op[2])
        else:
            dma1(op[1], op[2], 0); a("s_nop 0"); dma1(op[1], op[2], 1)
        G.drain_sal()
    if FLN:
        nb = cfg.get("f_lnb", 1)
        bops = [o for o in order if o[0] == "B" and o[1] < nb]
        for o in bops: order.remove(o)
        BO = cfg.get("f_bo", 0)
        late_b = []
        if BO == 1: late_b = bops[:3]; bops = bops[3:]
        if BO == 2: late_b = bops[3:]; bops = bops[:3]
        TB0 = cfg.get("f_tb", 0)
        def touchb():
            a("s_lshr_b32 s%d, s2, 3" % t1)
            a("s_lshl_b32 s%d, s%d, 2" % (t1, t1))
            a("s_add_u32 s%d, s%d, s%d" % (t1, t1, sW))
            a("v_lshrrev_b32 v84, 4, v%d" % L)
            a("v_and_b32 v85, 15, v%d" % L)
            a("v_mul_u32_u24 v86, 7168, v84")
            a("v_lshl_add_u32 v86, v85, 7, v86")
            a("v_mul_u32_u24 v84, 6144, v84")
            a("v_lshrrev_b32 v87, 2, v85")
            a("v_lshl_add_u32 v84, v87, 11, v84")
            a("v_and_b32 v87, 3, v85")
            a("v_lshl_add_u32 v84, v87, 7, v84")
            a("s_mul_i32 s%d, s%d, %d" % (t0, t1, 2 * 6144))
            a("s_lshl_b32 s%d, s%d, 9" % (t2, sQ))
            a("s_add_u32 s%d, s%d, s%d" % (sKV, t0, t2))
            a("s_mul_i32 s%d, s%d, %d" % (t0, t1, 2 * 7168))
            a("s_mul_i32 s%d, s%d, 1792" % (t2, sQ))
            a("s_add_u32 s%d, s%d, s%d" % (sKV2, t0, t2))
        def touchb2():
            a("s_mov_b64 exec, 0x0fff0fff")
            a.vmem("buffer_load_dword a%d, v84, %s, s%d offen" % (A_PD, s4(R_WQ), sKV), "T")
            a("s_mov_b64 exec, 0x3fff3fff")
            a.vmem("buffer_load_dword a%d, v86, %s, s%d offen" % (A_PD, s4(R_W1), sKV2), "T")
            a("s_mov_b64 exec, -1")
        HT = cfg.get("f_ht", 0)
        def hottouch(b):
            a("s_mov_b32 s%d, %d" % (t0, b * 256 * 6144))
            a.vmem("buffer_load_dword a%d, v%d, %s, s%d offen" % (A_PD, V_P1, s4(R_WQ), t0), "T")
        if HT:
            a("s_lshr_b32 s%d, s2, 3" % t1)
            a("s_lshl_b32 s%d, s%d, 2" % (t1, t1))
            a("s_add_u32 s%d, s%d, s%d" % (t1, t1, sW))
            a("s_mul_i32 s%d, s%d, %d" % (t1, t1, 2 * 6144))
            a("s_mul_i32 s%d, s%d, 0x40000200" % (t0, sQ))
            a("s_and_b32 s%d, s%d, 0x7fffffff" % (t0, t0))
            a("s_add_u32 s%d, s%d, s%d" % (t1, t1, t0))
            a("s_add_u32 s%d, s%d, 384" % (t1, t1))
            a("v_lshlrev_b32 v%d, 11, v%d" % (V_P1, L))
            a("v_add_u32 v84, 58, v%d" % L)
            a("v_lshrrev_b32 v84, 6, v84")
            a("v_lshl_add_u32 v%d, v84, 30, v%d" % (V_P1, V_P1))
            a("v_add_u32 v%d, s%d, v%d" % (V_P1, t1, V_P1))
            if HT & 1: hottouch(0)
        if TB0: touchb()
        if TB0 == 1: touchb2()
        for _ in range(cfg.get("f_lnb0", 2)): issue1(bops.pop(0))
        a("s_lshl_b32 s%d, s2, 9" % t0)
        a("s_add_u32 s%d, s%d, 0x%x" % (t0, t0, WS_FL))
        a("v_lshlrev_b32 v70, 2, v0")
        a("v_lshrrev_b32 v71, 7, v0")
        a("v_lshl_add_u32 v70, v71, 30, v70")
        a("v_mov_b32 v71, 0")
        a.vmem("buffer_store_dword v71, v70, %s, s%d offen sc1" % (s4(R_WS), t0), "Z")
        a("s_lshr_b32 s%d, s%d, 3" % (t0, t3))
        a("s_lshl_b32 s%d, s%d, 17" % (t0, t0))
        a("s_bfe_u32 s%d, s%d, 0x20001" % (t1, t3))
        a("s_lshl_b32 s%d, s%d, 10" % (t1, t1))
        a("s_add_u32 s%d, s%d, s%d" % (t0, t0, t1))
        a("s_and_b32 s%d, s%d, 1" % (t1, t3))
        a("s_lshl_b32 s%d, s%d, 7" % (t1, t1))
        a("s_add_u32 s%d, s%d, s%d" % (t0, t0, t1))
        a("s_add_u32 s%d, s%d, 0x%x" % (t3, t0, WS_XN))
        a("v_lshrrev_b32 v6, 2, v4")
        a("v_lshl_add_u32 v6, v%d, 3, v6" % (T + 1))
        a("v_lshlrev_b32 v6, 12, v6")
        a("v_and_b32 v7, 3, v4")
        a("v_lshl_add_u32 v6, v7, 8, v6")
        a("v_lshl_add_u32 v6, v3, 4, v6")
        a("v_lshl_add_u32 v7, v%d, 3, v3" % (T + 1))
        a("v_lshlrev_b32 v7, 3, v7")
        a("v_add_u32 v7, %d, v7" % (5 * STAGE))
        a("v_lshlrev_b32 v60, 3, v3")
        a("v_add_u32 v60, %d, v60" % (5 * STAGE))
        stampr("k3")
        if LXD:
            for i in range(4):
                a.wait(vm=("LX", i))
                if i == 0: stampr("k4")
                a("ds_read_b128 %s, v83 offset:%d" % (r4("v", 8 + 4 * i), i * 1024))
            a("s_waitcnt lgkmcnt(0)")
        elif not cfg.get("f_lxp", 1): a.wait(vm=("LX", 3))
        stampr("lnx")
        if TB0 == 2: touchb2()
        lo_ = ln_ops(cfg.get("f_lnex", 1))
        gap_ = cfg.get("f_lngap", 20)
        for k, x in enumerate(lo_):
            if x.startswith("WAIT"): a.wait(vm=("LX", int(x[4:])))
            elif x.startswith("STORE"):
                i = int(x[5:])
                a.vmem("buffer_store_dwordx4 %s, v6, %s, s%d offen sc1" % (r4("v", 8 + 4 * i), s4(R_WS), t3), "XS")
                if i < 3: a("s_add_u32 s%d, s%d, %d" % (t3, t3, 8192))
            else: a(x)
            if k % gap_ == gap_ - 1 and bops and k < cfg.get("f_lnk", 110): issue1(bops.pop(0))
        bops += late_b
        if cfg.get("f_bnow", 1):
            while bops: issue1(bops.pop(0))
        stampr("lns")
    else:
        for _ in range(cfg.get("f_pro1", 15)): issue1(order.pop(0))

    srd(a, R_W2, P_W2, DFF * D * 2)
    srd(a, R_WO, P_WO, D * D * 2)
    a("s_bfe_u32 s%d, s2, 0x30003" % sCLS)
    a("v_bfrev_b32 v%d, 1" % (T + 6))
    if cfg.get("f_pf", 0):
        a("s_lshr_b32 s%d, s2, 6" % t1)
        a("s_lshl_b32 s%d, s%d, 2" % (t1, t1))
        a("s_add_u32 s%d, s%d, s%d" % (t1, t1, sW))
        a("v_bfrev_b32 v%d, 1" % (T + 6))
        a("v_lshrrev_b32 v%d, 5, v%d" % (T + 2, L))
        a("s_lshl_b32 s%d, s%d, 1" % (t0, t1))
        a("v_add_u32 v%d, s%d, v%d" % (T + 2, t0, T + 2))
        a("v_and_b32 v%d, 31, v%d" % (T + 3, L))
        a("v_mul_u32_u24 v%d, 7168, v%d" % (V_P1, T + 2))
        a("v_lshl_add_u32 v%d, v%d, 7, v%d" % (V_P1, T + 3, V_P1))
        a("s_mul_i32 s%d, s%d, 1792" % (t0, sQ))
        a("v_add_u32 v%d, s%d, v%d" % (V_P1, t0, V_P1))
        a("v_mul_u32_u24 v%d, 6144, v%d" % (V_P0, T + 2))
        a("v_lshrrev_b32 v%d, 2, v%d" % (T + 4, T + 3))
        a("v_lshl_add_u32 v%d, v%d, 11, v%d" % (V_P0, T + 4, V_P0))
        a("v_and_b32 v%d, 3, v%d" % (T + 4, T + 3))
        a("v_lshl_add_u32 v%d, v%d, 7, v%d" % (V_P0, T + 4, V_P0))
        a("s_lshl_b32 s%d, s%d, 9" % (t0, sQ))
        a("v_add_u32 v%d, s%d, v%d" % (V_P0, t0, V_P0))
        a("v_cmp_le_u32 vcc, 12, v%d" % (T + 3))
        a("s_and_b32 s%d, s2, 1" % t0)
        a("s_lshl_b32 s%d, s%d, 4" % (t0, t0))
        a("v_cndmask_b32 v%d, v%d, v%d, vcc" % (V_P0, V_P0, T + 6))
        a("v_cmp_le_u32 vcc, 14, v%d" % (T + 3))
        a("s_add_u32 s%d, s%d, s%d" % (t0, t0, t1))
        a("s_lshl_b32 s%d, s%d, 17" % (t0, t0))
        a("v_cndmask_b32 v%d, v%d, v%d, vcc" % (V_P1, V_P1, T + 6))
        a("s_add_u32 s%d, s%d, 0x%x" % (t0, t0, WS_XN))
        a("v_lshlrev_b32 v%d, 7, v%d" % (V_P2, L))
        a("v_add_u32 v%d, s%d, v%d" % (V_P2, t0, V_P2))
        a("v_cmp_le_u32 vcc, 32, v%d" % L)
        a("s_lshl_b32 s%d, s%d, 12" % (t0, sCLS))
        a("s_nop 0")
        a("v_cndmask_b32 v%d, v%d, v%d, vcc" % (V_P2, V_P2, T + 6))
    PFM = cfg.get("f_pf", 0)
    PF0 = cfg.get("f_pf0", 8)
    if PFM & 2:
        a("buffer_load_dword a%d, v%d, %s, s%d offen" % (A_PD, V_P2, s4(R_WS), t0))
    def touch(n):
        lab = a.newlabel("F_pf")
        a("s_cmp_lg_u32 s%d, %d" % (sCLS, n & 7))
        a("s_cbranch_scc1 %s" % lab)
        if PFM & 1:
            a("s_mov_b32 s%d, %d" % (t0, n * 32 * 6144))
            a("s_mov_b32 s%d, %d" % (t1, n * 32 * 7168))
            a("buffer_load_dword a%d, v%d, %s, s%d offen" % (A_PD, V_P0, s4(R_WQ), t0))
            a("buffer_load_dword a%d, v%d, %s, s%d offen" % (A_PD - 1, V_P1, s4(R_W1), t1))
        if PFM & 2:
            a("s_mov_b32 s%d, %d" % (t0, n * 4096))
            a("buffer_load_dword a%d, v%d, %s, s%d offen" % (A_PD, V_P2, s4(R_WS), t0))
        a.label(lab)
    if PFM & 4:
        a("s_and_b32 s%d, s2, 1" % t0)
        a("v_lshrrev_b32 v%d, 5, v%d" % (T + 2, L))
        a("v_cmp_ne_u32 vcc, s%d, v%d" % (t0, T + 2))
        a("s_nop 1")
        a("v_cndmask_b32 v%d, v%d, v%d, vcc" % (V_P0, V_P0, T + 6))
        a("v_cndmask_b32 v%d, v%d, v%d, vcc" % (V_P1, V_P1, T + 6))
    PW = cfg.get("f_pw", 2); PW0 = cfg.get("f_pw0", 12)
    V_PW = 231
    a("v_lshlrev_b32 v%d, 7, v%d" % (V_PW, L))
    a("v_cmp_le_u32 vcc, 56, v%d" % L)
    a("s_nop 1")
    a("v_cndmask_b32 v%d, v%d, v%d, vcc" % (V_PW, V_PW, T + 6))
    ASY = cfg.get("f_asy", 1)
    if ASY:
        if cfg.get("f_xcc", 0):
            a("s_getreg_b32 s%d, hwreg(HW_REG_XCC_ID)" % t0)
            a("s_and_b32 s%d, s%d, 1" % (t0, t0))
        else: a("s_bfe_u32 s%d, s2, 0x%x" % (t0, 0x10001 if SWP else 0x10000))
        if ASY == 2: a("s_xor_b32 s%d, s%d, 1" % (t0, t0))
        a("s_lshl_b32 s%d, s%d, 4" % (t0, t0))
        a("s_or_b32 s%d, s%d, s%d" % (sCLS, sCLS, t0))
    HOT = cfg.get("f_hot", 0); LO = cfg.get("f_lo", 64)
    if HOT:
        a("s_bfe_u32 s%d, s2, 0x30003" % sCLS)
        a("s_and_b32 s%d, s%d, 14" % (t0, sJ))
        a("s_cmp_eq_u32 s%d, 6" % t0)
        a("s_cselect_b32 s%d, 16, s%d" % (sCLS, sCLS))
        if LO == 0:
            a("s_bitcmp1_b32 s2, 0")
            a("s_cselect_b32 s%d, 16, s%d" % (sCLS, sCLS))
        a("v_lshlrev_b32 v%d, 7, v%d" % (V_PW, L))
    def toucht(cls):
        lab = a.newlabel("F_pw"); l2 = a.newlabel("F_po")
        def ex(n):
            m_ = (1 << n) - 1
            a("s_mov_b32 exec_lo, 0x%x" % (m_ & 0xffffffff)); a("s_mov_b32 exec_hi, 0x%x" % (m_ >> 32))
        a("s_cmp_lg_u32 s%d, %d" % (sCLS, cls))
        a("s_cbranch_scc1 %s" % lab)
        a("s_add_u32 s%d, s%d, 8" % (t0, sJ))
        a("s_lshr_b32 s%d, s%d, 4" % (t0, t0))
        a("s_lshl_b32 s%d, s%d, 1" % (t0, t0))
        a("s_sub_u32 s%d, s%d, s%d" % (t0, sJ, t0))
        a("s_lshl_b32 s%d, s%d, 2" % (t0, t0))
        a("s_and_b32 s%d, s%d, 3" % (t1, sI))
        a("s_add_u32 s%d, s%d, s%d" % (t0, t0, t1))
        a("s_lshl_b32 s%d, s%d, 2" % (t0, t0))
        a("s_add_u32 s%d, s%d, s%d" % (t0, t0, sW))
        a("s_lshl_b32 s%d, s%d, 14" % (t1, t0))
        a("s_bitcmp1_b32 s2, 0")
        a("s_cbranch_scc1 %s" % l2)
        a("buffer_load_dword a%d, v%d, %s, s%d offen" % (A_PD, V_PW, s4(R_W2), t1))
        if LO < 64:
            a("s_add_u32 s%d, s%d, 8192" % (t1, t1))
            ex(64 - LO)
            a("buffer_load_dword a%d, v%d, %s, s%d offen" % (A_PD, V_PW, s4(R_W2), t1))
        a("s_mul_i32 s%d, s%d, %d" % (t1, t0, 37 * 128))
        ex(37)
        a("buffer_load_dword a%d, v%d, %s, s%d offen" % (A_PD - 1, V_PW, s4(R_WO), t1))
        a("s_mov_b64 exec, -1")
        a("s_branch %s" % lab)
        a.label(l2)
        if LO:
            a("s_add_u32 s%d, s%d, %d" % (t1, t1, (128 - LO) * 128))
            ex(LO)
            a("buffer_load_dword a%d, v%d, %s, s%d offen" % (A_PD, V_PW, s4(R_W2), t1))
            a("s_mov_b64 exec, -1")
        a.label(lab)
    def touchw(cls, flip=0):
        lab = a.newlabel("F_pw")
        if cls is not None:
            a("s_cmp_lg_u32 s%d, %d" % (sCLS, cls))
            a("s_cbranch_scc1 %s" % lab)
        if flip:
            a("s_xor_b32 s%d, s2, %d" % (t0, 2 if SWP else 1))
            a("s_lshl_b32 s%d, s%d, 2" % (t0, t0))
        else: a("s_lshl_b32 s%d, s2, 2" % t0)
        a("s_add_u32 s%d, s%d, s%d" % (t0, t0, sW))
        a("s_mul_i32 s%d, s%d, 7168" % (t1, t0))
        a("buffer_load_dword a%d, v%d, %s, s%d offen" % (A_PD, V_PW, s4(R_W2), t1))
        a("s_lshl_b32 s%d, s%d, 11" % (t1, t0))
        a("s_mov_b64 exec, 0xffff")
        a("buffer_load_dword a%d, v%d, %s, s%d offen" % (A_PD - 1, V_PW, s4(R_WO), t1))
        a("s_mov_b64 exec, -1")
        a.label(lab)
    def touchp(k):
        a("s_lshl_b32 s%d, s2, 2" % t0)
        a("s_add_u32 s%d, s%d, s%d" % (t0, t0, sW))
        if k < 2:
            a("s_mul_i32 s%d, s%d, 7168" % (t1, t0))
            a("s_mov_b64 exec, 0xfffffff")
            a.vmem("buffer_load_dword a%d, v%d, %s, s%d offen offset:%d" % (A_PD, V_PW, s4(R_W2), t1, k * 3584), "T")
        else:
            a("s_lshl_b32 s%d, s%d, 11" % (t1, t0))
            a("s_mov_b64 exec, 0xffff")
            a.vmem("buffer_load_dword a%d, v%d, %s, s%d offen" % (A_PD, V_PW, s4(R_WO), t1), "T")
        a("s_mov_b64 exec, -1")
    def touchx(k):
        a("s_lshr_b32 s%d, s2, 3" % t0)
        a("s_lshl_b32 s%d, s%d, 2" % (t0, t0))
        a("s_add_u32 s%d, s%d, s%d" % (t0, t0, sW))
        a("s_lshl_b32 s%d, s%d, 7" % (t1, sQ))
        a("s_add_u32 s%d, s%d, s%d" % (t0, t0, t1))
        if k < 2:
            a("s_mul_i32 s%d, s%d, 14336" % (t1, t0))
            if k: a("s_add_u32 s%d, s%d, 7168" % (t1, t1))
            a("buffer_load_dword a%d, v%d, %s, s%d offen" % (A_PD - k, V_PW, s4(R_W2), t1))
        else:
            a("s_lshl_b32 s%d, s%d, 12" % (t1, t0))
            a("s_mov_b32 exec_hi, 0")
            a("buffer_load_dword a%d, v%d, %s, s%d offen" % (A_PD, V_PW, s4(R_WO), t1))
            a("s_mov_b32 exec_hi, -1")
    pfq = list(range(PF0, KS)) if PFM else []
    PFA = cfg.get("f_pfa", 30)
    a("v_lshrrev_b32 v%d, 5, v%d" % (T + 2, L))
    a("v_mul_u32_u24 v%d, %d, v%d" % (T + 2, REG, T + 2))
    a("v_and_b32 v%d, 3, v%d" % (T + 3, L))
    a("v_lshl_add_u32 v%d, v%d, 3, v%d" % (T + 2, T + 3, T + 2))
    a("v_bfe_u32 v%d, v%d, 2, 2" % (T + 3, L))
    a("v_bfe_u32 v%d, v%d, 4, 1" % (T + 4, L))
    a("v_mul_u32_u24 v%d, 192, v%d" % (V_RD, T + 3))
    a("v_add_u32 v%d, v%d, v%d" % (V_RD, V_RD, T + 2))
    a("v_mul_u32_u24 v%d, %d, v%d" % (T + 5, 8 * 192 + 32, T + 4))
    a("v_add_u32 v%d, v%d, v%d" % (V_RD, V_RD, T + 5))
    a("v_xor_b32 v%d, 32, v%d" % (V_RD + 1, V_RD))
    a("v_lshl_add_u32 v%d, v%d, 5, v%d" % (V_RD + 2, T + 3, T + 2))
    a("v_lshl_add_u32 v%d, v%d, 7, v%d" % (V_RD + 2, T + 4, V_RD + 2))
    for st_ in (1, 2):
        for x in range(3):
            a("v_add_u32 v%d, %d, v%d" % (V_RD + 3 * st_ + x, st_ * 2 * STAGE, V_RD + x))
    a("s_lshl_b32 s%d, s%d, 7" % (sKV, sJ))
    a("s_lshl_b32 s%d, s%d, 4" % (t0, sI))
    a("s_add_u32 s%d, s%d, s%d" % (sKV, sKV, t0))
    a("s_lshl_b32 s%d, s%d, 2" % (t0, sW))
    a("s_add_u32 s%d, s%d, s%d" % (sKV, sKV, t0))
    a("s_lshl_b32 s%d, s%d, 10" % (sKV, sKV))
    a("s_add_u32 s%d, s%d, 0x%x" % (sKV2, sKV, WS_V))
    a("s_add_u32 s%d, s%d, 0x%x" % (sKV, sKV, WS_K))
    a("s_sub_u32 s%d, s%d, 16384" % (sKP, sKV))
    a("s_sub_u32 s%d, s%d, 16384" % (sKP2, sKV2))
    a("s_cmp_eq_u32 s%d, 0" % sI)
    a("s_cselect_b32 s%d, 0x40000000, s%d" % (sKP, sKP))
    a("s_cselect_b32 s%d, 0x40000000, s%d" % (sKP2, sKP2))
    a("s_lshl_b32 s%d, s2, 2" % sFO)
    a("s_add_u32 s%d, s%d, s%d" % (sFO, sFO, sW))
    a("s_lshl_b32 s%d, s%d, 7" % (sFO, sFO))
    a("s_add_u32 s%d, s%d, 0x%x" % (sFO, sFO, WS_FL))
    a("s_add_u32 s%d, s%d, 1" % (t0, sI))
    a("s_and_b32 s%d, s%d, 3" % (t1, t0))
    a("s_lshl_b32 s%d, s%d, 3" % (t1, t1))
    a("s_lshr_b32 s%d, s%d, 2" % (t0, t0))
    a("s_or_b32 s%d, s%d, s%d" % (t1, t1, t0))
    a("s_and_b32 s%d, s2, 0xe6" % t0)
    a("s_or_b32 s%d, s%d, s%d" % (t1, t1, t0))
    a("s_lshl_b32 s%d, s%d, 2" % (t1, t1))
    a("s_add_u32 s%d, s%d, s%d" % (t1, t1, sW))
    a("s_lshl_b32 s%d, s%d, 7" % (t1, t1))
    a("s_add_u32 s%d, s%d, 0x%x" % (sFK, t1, WS_FL + 12))
    a("s_cmp_eq_u32 s%d, 7" % sI)
    a("s_cselect_b32 s%d, 0x40000000, s%d" % (sFK, sFK))
    if cfg.get("f_k7", 1):
        a("s_cselect_b32 s%d, 0x40000000, s%d" % (sKV, sKV))
        a("s_cselect_b32 s%d, 0x40000000, s%d" % (sKV2, sKV2))
    a("v_cmp_ne_u32 vcc, 0, v%d" % L)
    a("v_mov_b32 v%d, 1" % V_ONE)
    a("v_and_b32 v%d, 31, v%d" % (V_PL, L))
    a("v_cndmask_b32 v%d, 0, v%d, vcc" % (V_FL0, T + 6))
    a("v_lshlrev_b32 v%d, 2, v%d" % (V_PL, V_PL))
    a("s_and_b32 s%d, s2, 31" % t0)
    a("s_lshl_b32 s%d, s%d, 2" % (t0, t0))
    a("s_add_u32 s%d, s%d, s%d" % (t0, t0, sW))
    a("s_lshl_b32 s%d, s%d, 7" % (t0, t0))
    a("s_lshl_b32 s%d, s%d, 2" % (t1, sN))
    a("s_add_u32 s%d, s%d, s%d" % (t0, t0, t1))
    a("s_add_u32 s%d, s%d, 0x%x" % (t0, t0, WS_FL))
    a("v_lshlrev_b32 v%d, 14, v%d" % (V_FG, L))
    a("v_add_u32 v%d, s%d, v%d" % (V_FG, t0, V_FG))
    a("v_cmp_le_u32 vcc, 8, v%d" % L)
    a("s_lshl_b32 s%d, s%d, 12" % (t0, sW))
    a("s_add_u32 s%d, s%d, %d" % (t0, t0, KVB))
    a("v_cndmask_b32 v%d, v%d, v%d, vcc" % (V_FG, V_FG, T + 6))
    a("v_add_u32 v%d, s%d, v%d" % (V_KVW, t0, V_L16))
    a("s_lshl_b32 s%d, s%d, 2" % (t0, sI))
    a("s_add_u32 s%d, s%d, s%d" % (t0, t0, sW))
    a("s_lshl_b32 s%d, s%d, 17" % (sXO, t0))
    a("s_mul_i32 s%d, s%d, 144" % (t0, t0))
    a("s_mul_i32 s%d, s%d, 36" % (t1, sQ))
    a("s_add_u32 s%d, s%d, s%d" % (t0, t0, t1))
    a("s_lshl_b32 s%d, s%d, 12" % (t0, t0))
    a("s_add_u32 s%d, s%d, 0x%x" % (t0, t0, WS_A2))
    a("s_add_u32 s%d, s%d, %d" % (sAE, t0, 28 * 4096))
    a("s_lshl_b32 s%d, s%d, 12" % (t1, sN))
    a("s_add_u32 s%d, s%d, s%d" % (sO, sAE, t1))
    a("s_lshr_b32 s%d, s%d, 1" % (t1, t1))
    a("s_add_u32 s%d, s%d, s%d" % (sH + 3, t0, t1))
    a("s_add_u32 s%d, s%d, %d" % (sH + 3, sH + 3, 24 * 4096))
    a("s_mul_i32 s%d, s%d, %d" % (t1, sN, 3 * 4096))
    a("s_add_u32 s%d, s%d, s%d" % (sH, t0, t1))
    a("s_add_u32 s%d, s%d, 4096" % (sH + 1, sH))
    a("s_add_u32 s%d, s%d, 8192" % (sH + 2, sH))
    a("s_lshl_b32 s%d, s%d, 8" % (t0, sN))
    a("s_add_u32 s%d, s%d, s%d" % (sXO, sXO, t0))
    a("s_lshl_b32 s%d, s%d, 6" % (t0, sQ))
    a("s_add_u32 s%d, s%d, s%d" % (sXO, sXO, t0))
    a("s_mov_b32 s%d, 0x%x" % (sSC, f2u(QSCALE)))
    def spin(mask, skip_if_i0=False):
        l0 = a.newlabel("F_sp"); l1 = a.newlabel("F_ok")
        if skip_if_i0:
            a("s_cmp_eq_u32 s%d, 0" % sI)
            a("s_cbranch_scc1 %s" % l1)
        a("s_mov_b32 s%d, 0x%x" % (sSP, SPIN))
        a.label(l0)
        a("v_cmp_ne_u32 vcc, 0, v%d" % V_POLL)
        a("s_and_b32 s%d, vcc_lo, 0x%x" % (t0, mask))
        a("s_cmp_eq_u32 s%d, 0x%x" % (t0, mask))
        a("s_cbranch_scc1 %s" % l1)
        a("buffer_load_dword v%d, v%d, %s, s%d offen sc1" % (V_POLL, V_PL, s4(R_WS), sFO))
        a("s_sub_u32 s%d, s%d, 1" % (sSP, sSP))
        a("s_waitcnt vmcnt(0)")
        a("s_cbranch_scc0 %s" % l0)
        a.label(l1)
    def poll_issue(tag):
        a.vmem("buffer_load_dword v%d, v%d, %s, s%d offen sc1" % (V_POLL, V_PL, s4(R_WS), sFO), tag)

    if FLN:
        while bops: issue1(bops.pop(0))
        if PW & 8: touchw(None)
        nb2 = cfg.get("f_lnb2", 3)
        b2 = [o for o in order if o[0] == "B" and o[1] < nb + nb2]
        for o in b2: order.remove(o)
        if BO == 1: b2 = [o for o in b2 if o[2] >= 3] + [o for o in b2 if o[2] < 3]
        if BO == 2: b2 = [o for o in b2 if o[2] < 3] + [o for o in b2 if o[2] >= 3]
        for _ in range(cfg.get("f_lnb2e", 0)): issue1(b2.pop(0))
        if PW & 8: a.vm += ["T", "T"]
        a.wait(vm="XS")
        stampr("lnd")
        a("s_barrier")
        lab = a.newlabel("F_ln"); l2 = a.newlabel("F_lp"); l3 = a.newlabel("F_lq"); l4 = a.newlabel("F_la")
        a("s_lshl_b32 s%d, s%d, 5" % (t0, sI))
        a("v_mov_b32 v1, s%d" % t0)
        a("s_cmp_lg_u32 s%d, 0" % sW)
        a("s_cbranch_scc1 %s" % lab)
        a("v_add_u32 v82, 1, v81")
        a("s_lshl_b64 exec, 1, s%d" % sJ)
        a("buffer_store_dword v82, v80, %s, 0 offen sc1" % s4(R_WS))
        a("s_mov_b64 exec, -1")
        a.label(lab)
        while b2: issue1(b2.pop(0))
        if PW & 16: touchw(None)
        a("s_cmp_lg_u32 s%d, 1" % sW)
        a("s_cbranch_scc1 %s" % l4)
        a("s_mov_b64 exec, 1")
        a("global_atomic_add v1, v%d, s[100:101] sc1" % V_ONE)
        a("s_mov_b64 exec, -1")
        a.label(l4)
        PALL = cfg.get("f_pall", 0)
        if not PALL:
            a("s_cmp_lg_u32 s%d, 0" % sW)
            a("s_cbranch_scc1 %s" % l3)
        else:
            a("s_lshl_b32 s%d, s%d, 3" % (t1, sW))
            a("s_lshl_b32 s%d, 0xff, s%d" % (t1, t1))
        a("s_mov_b32 s%d, 0x%x" % (sSP, SPIN))
        a.label(l2)
        a("buffer_load_dword v82, v80, %s, 0 offen sc1" % s4(R_WS))
        a("s_waitcnt vmcnt(0)")
        a("v_cmp_ne_u32 vcc, v81, v82")
        if PALL:
            a("s_and_b32 s%d, vcc_lo, s%d" % (t0, t1))
            a("s_cmp_eq_u32 s%d, s%d" % (t0, t1))
        else: a("s_cmp_eq_u32 vcc_lo, -1")
        a("s_cbranch_scc1 %s" % l3)
        a("s_sub_u32 s%d, s%d, 1" % (sSP, sSP))
        a("s_cbranch_scc1 %s" % l3)
        a("s_and_b32 s%d, s%d, 7" % (t0, sSP))
        a("s_cbranch_scc1 %s" % l2)
        a("global_load_dword v2, v1, s[100:101] sc1")
        a("s_waitcnt vmcnt(0)")
        a("v_readfirstlane_b32 s%d, v2" % t0)
        a("s_cmp_lt_u32 s%d, 32" % t0)
        a("s_cbranch_scc1 %s" % l2)
        a.label(l3)
        if not PALL: a("s_barrier")
        stampr("lnp")
        for _ in range(8): issue1(order.pop(0))
        order[:0] = bops
    gi = []
    def grp(units, s0, s1, tiles, C):
        s = s0
        while s < s1:
            c = min(C, s1 - s)
            for t in tiles:
                g0 = len(units); gn = gi[-1][2] + 1 if gi else 0
                for k in range(c):
                    units.append((s + k, t)); gi.append((g0, c, gn))
            s += c
    units = []
    grp(units, 0, C1S, range(NT), 2)
    C1E = cfg.get("f_c1e", S1)
    grp(units, C1S, C1E, range(NT), C1)
    grp(units, C1E, S1, range(NT), 2)
    grp(units, S1, KS, (2, 3, 4, 5), C1K)
    UKV = len(units)
    grp(units, S1, KS, (6, 7, 8, 9), C1T)
    UH01 = len(units)
    grp(units, S1, KS, (10, 11, 12, 0, 1), C1T)
    NU = len(units)
    last_unit_of_stage = {}
    last_unit_of_step = {}
    for u, (s, t) in enumerate(units):
        last_unit_of_stage[s // 2] = u; last_unit_of_step[s] = u
    stt = dict(ready=-1, free=set(), waited=-1, issued=-1)
    def barrier():
        a("s_barrier")
        for g, lu in last_unit_of_stage.items():
            if lu <= stt["waited"]: stt["free"].add(g)
    def can1(op):
        if op[0] == "B": return op[1] < NS or (op[1] - NS) in stt["free"]
        return op[1] < RA or last_unit_of_step[op[1] - RA] <= stt["issued"]
    def flush1(tag):
        while any(o[:2] == tag for o in order):
            op = order.pop(0)
            assert can1(op), (op, stt)
            if cfg.get("verbose"): print("late flush", op, file=sys.stderr)
            issue1(op)
    def bread1(u, j2):
        s, t = units[u]
        slot = slot1(s // 2); st_ = slot // 2
        off = (slot % 2) * STAGE + (s % 2) * 2 * REG
        if t < 12: off += j2 * 768 + (t // 6) * 3072 + ((t // 2) % 3) * 64; vr = V_RD + 3 * st_ + (t % 2)
        else: off += 6144 + j2 * 256; vr = V_RD + 3 * st_ + 2
        a.lds("ds_read_b64_tr_b16 %s, v%d offset:%d" % (r2("a", BR + (u % RB) * 4 + j2 * 2), vr, off), ("b", u))
    def need1(u):
        g = units[u][0] // 2
        if g > stt["ready"]:
            flush1(("B", g)); a.wait(vm=("B", g)); barrier(); stt["ready"] = g
    def pack(c0, c1, relu=False):
        ops = []
        for hh, c in enumerate((c0, c1)):
            if c is None: continue
            for e2 in range(2):
                ops.append("v_cvt_pk_bf16_f32 v%d, v%d, v%d" % (c0 + 2 * hh + e2, c + 2 * e2, c + 2 * e2 + 1))
            if relu:
                for e2 in range(2):
                    ops.append("v_pk_max_i16 v%d, v%d, 0" % (c0 + 2 * hh + e2, c0 + 2 * hh + e2))
        return ops
    HF = ["sc1", "", "nt", "sc0"][cfg.get("f_hf", 0)]
    def hstore(p, mt):
        if p < 3: a.vmem("buffer_store_dwordx4 %s, v%d, %s, s%d offen offset:%d %s" % (r4("v", acc(mt, 6 + 2 * p)), V_L16, s4(R_WS), sH + p, mt * 1024, HF), "H")
        else: a.vmem("buffer_store_dwordx2 %s, v%d, %s, s%d offen offset:%d %s" % (r2("v", acc(mt, 12)), 211, s4(R_WS), sH + 3, mt * 512, HF), "L" if cfg.get("f_ll", 1) else "H")
    need1(0)
    stampr("bar0")
    for u in range(DB):
        need1(u)
        bread1(u, 0); bread1(u, 1)
    kvq = [(acc(mt, 2), acc(mt, 3), sKV, mt * 1024, 16384 + mt * 1024) for mt in range(MT)] + \
          [(acc(2 * b, 4 + dt), acc(2 * b + 1, 4 + dt), sKV2, (2 * b + dt) * 1024, 49152 + (2 * b + dt) * 1024) for b in range(2) for dt in range(2)]
    NREST = NU - UKV
    UFLAG = UKV + cfg.get("f_uf", 28)
    UPOLL = UFLAG + cfg.get("f_up", 14)
    UCHK = min(UPOLL + cfg.get("f_uc", 8), NU - 1)
    UPW = UCHK + cfg.get("f_uw", 14)
    V2_DMA = 209; V_XO = 211; V2_RD = 232; V2_B = 231
    bias = [232, 236, 240, 244]; VONES = 248; VM = 252
    sB2 = sBQ; sBO = sBV
    class Rec:
        def __init__(self): self.l = []
        def __call__(self, x): self.l.append(x)
    su = Rec(); TT = VM
    HO = 0
    su("v_lshrrev_b32 v%d, 4, v%d" % (TT, L))
    su("v_lshlrev_b32 v%d, 11, v%d" % (V2_DMA, TT))
    su("v_lshlrev_b32 v%d, 1, v%d" % (TT, TT))
    su("v_and_b32 v%d, 15, v%d" % (TT + 1, L))
    su("v_xor_b32 v%d, v%d, v%d" % (TT, TT, TT + 1))
    su("v_lshl_add_u32 v%d, v%d, 4, v%d" % (V2_DMA, TT, V2_DMA))
    su("s_and_b32 s%d, s%d, 1" % (t1, sW))
    su("s_lshl_b32 s%d, s%d, 7" % (t1, t1))
    su("v_xor_b32 v%d, s%d, v%d" % (V2_DMA, t1, V2_DMA))
    su("v_add_u32 v%d, %d, v%d" % (V2_DMA + 1, 32768 - 1024, V2_DMA))
    su("v_lshrrev_b32 v%d, 4, v%d" % (TT, L))
    su("v_lshlrev_b32 v%d, 2, v%d" % (TT, TT))
    for e in range(4):
        su("v_add_u32 v%d, %d, v%d" % (TT + 2, e, TT))
        su("v_cmp_le_u32 s[%d:%d], v%d, v%d" % (sMK + 2 * e, sMK + 2 * e + 1, TT + 2, TT + 1))
    su("s_lshl_b32 s%d, s%d, 13" % (t2, sW))
    su("s_lshl_b32 s%d, s%d, 8" % (t1, sN))
    su("s_add_u32 s%d, s%d, s%d" % (t2, t2, t1))
    su("s_lshl_b32 s%d, s%d, 19" % (sBO, sQ))
    su("s_add_u32 s%d, s%d, s%d" % (sBO, sBO, t2))
    su("s_mul_i32 s%d, s%d, %d" % (sB0, sQ, 896 * 2048))
    su("s_add_u32 s%d, s%d, s%d" % (sB0, sB0, t2))
    su("s_mul_i32 s%d, s%d, 7" % (t1, sN))
    su("s_add_u32 s%d, s%d, s%d" % (t1, t1, sJ1))
    su("s_lshl_b32 s%d, s%d, 15" % (t1, t1))
    su("s_add_u32 s%d, s%d, s%d" % (sB2, sB0, t1))
    LIN = cfg.get("f_lin", 1)
    if LIN:
        su("s_sub_u32 s%d, s%d, %d" % (sA, sAE, 28 * 4096))
        su("s_mov_b32 s%d, s%d" % (sAE, sH))
        su("s_add_u32 s%d, s%d, %d" % (sA0, sH, 3 * 4096))
        su("s_mov_b32 s%d, s%d" % (sBW, sB0))
    else:
        su("s_add_u32 s%d, s%d, %d" % (sA, sH, 3 * 4096))
        su("s_sub_u32 s%d, s%d, %d" % (sA0, sAE, 28 * 4096))
    su("s_cmp_eq_u32 s%d, s%d\ns_cselect_b32 s%d, s%d, s%d" % (sA, sAE, sA, sA0, sA))
    su0 = su.l; su = Rec()
    KS2 = 36
    LOC = [(0, 1), (1, 1), (2, 1), (0, 3), (1, 3), (2, 3), (0, 5), (1, 5), (2, 5), (3, 1), (3, 3), (3, 5), (4, 1), (4, 3), (4, 5)]
    NSL = len(LOC)
    def dma2_txt(p):
        sb, so = (R_W2, sB2) if p < 28 else (R_WO, sBO)
        sl, pos = LOC[p % NSL]
        ops = [(0, "s_add_u32 m0, s%d, %d" % (sLB, sl * STAGE + pos * 1024)),
               (1, "buffer_load_dwordx4 v%d, %s, s%d offen lds" % (V2_DMA, s4(sb), so)),
               (1, "buffer_load_dwordx4 v%d, %s, s%d offen offset:1024 lds" % (V2_DMA + 1, s4(sb), so))]
        R_ = lambda n_: (112 * n_ + 16 * (n_ & 1)) * 2048
        if p <= 20 and p % 3 == 2:
            g_ = (p - 2) // 3
            ops.append((0, "s_cmp_le_u32 s%d, %d\ns_cselect_b32 s%d, %d, 0" % (sN, g_, sB0, R_(g_ + 1) - R_(g_))))
            ops.append((0, "s_add_u32 s%d, s%d, s%d" % (sB2, sBW, sB0)))
            if g_: ops.append((0, "s_add_u32 s%d, s%d, %d" % (sB2, sB2, R_(g_))))
        elif p == 23: ops.append((0, "s_add_u32 s%d, s%d, %d" % (sB2, sBW, 96 * 2048)))
        elif 24 <= p < 27: ops.append((0, "s_add_u32 s%d, s%d, %d" % (sB2, sB2, 224 * 2048)))
        elif p != 27 and p != 35: ops.append((0, "s_add_u32 s%d, s%d, 65536" % (so, so)))
        return ops
    def dma2_ops(p):
        return [(k, (lambda x=x: a.vmem(x, ("B2", p))) if k else (lambda x=x: a(x))) for k, x in dma2_txt(p)]
    def hole_ops(ps):
        o = []
        for p in ps:
            for k, x in dma2_txt(p):
                if k: o += [("m", lambda x=x, p=p: a.vmem(x, ("B2", p)))] + [None] * cfg.get("f_hosp", 3)
                else: o += [x] + ([None] if "m0" in x else [])
        return o
    su("s_lshl_b32 s%d, s%d, 2" % (t1, sI))
    su("s_add_u32 s%d, s%d, s%d" % (t1, t1, sW))
    for gq in range(4):
        su("s_cmp_lt_u32 s%d, %d\ns_cselect_b32 s%d, 0x%x, 0" % (t1, 4 - gq, t2, f2u(-1e30)))
        for e in range(4): su("v_mov_b32 v%d, s%d" % (bias[gq] + e, t2))
    for e in range(4): su("v_mov_b32 v%d, 0x3f803f80" % (VONES + e))
    su("v_lshrrev_b32 v%d, 2, v%d" % (TT, L))
    su("v_and_b32 v%d, 7, v%d" % (TT + 2, TT))
    su("v_and_b32 v%d, 3, v%d" % (TT, TT))
    su("v_lshlrev_b32 v%d, 8, v%d" % (TT, TT))
    su("v_lshrrev_b32 v%d, 4, v%d" % (TT + 1, L))
    su("v_mul_u32_u24 v%d, %d, v%d" % (TT + 1, REG, TT + 1))
    su("v_add_u32 v%d, v%d, v%d" % (TT, TT, TT + 1))
    su("v_and_b32 v%d, 3, v%d" % (TT + 1, L))
    su("v_lshl_add_u32 v%d, v%d, 3, v%d" % (TT, TT + 1, TT))
    su("v_lshl_add_u32 v%d, v%d, 5, v%d" % (V2_B, TT + 2, TT))
    su("s_lshl_b32 s%d, s%d, 6" % (t1, sQ))
    su("s_xor_b32 s%d, s%d, 192" % (t1, t1))
    su("v_xor_b32 v%d, s%d, v%d" % (V2_B, t1, V2_B))
    su("v_mov_b32 v%d, 0xffff" % TT)
    su("v_mov_b32 v%d, 0xffff0000" % (TT + 1))
    su("v_cndmask_b32 v%d, 0, v%d, s[%d:%d]" % (VM + 2, TT, sMK, sMK + 1))
    su("v_cndmask_b32 v%d, 0, v%d, s[%d:%d]" % (VM + 3, TT, sMK + 4, sMK + 5))
    su("v_cndmask_b32 v%d, 0, v%d, s[%d:%d]" % (TT, TT + 1, sMK + 2, sMK + 3))
    su("v_cndmask_b32 v%d, 0, v%d, s[%d:%d]" % (TT + 1, TT + 1, sMK + 6, sMK + 7))
    su("v_or_b32 v%d, v%d, v%d" % (VM + 2, VM + 2, TT))
    su("v_or_b32 v%d, v%d, v%d" % (VM + 3, VM + 3, TT + 1))
    SPF = cfg.get("f_spf", 0)
    if SPF:
        su("s_lshr_b32 s%d, s2, 3" % t1)
        su("s_lshl_b32 s%d, s%d, 1" % (t1, t1))
        su("s_and_b32 s%d, s2, 1" % t2)
        su("s_add_u32 s%d, s%d, s%d" % (t1, t1, t2))
        su("s_lshl_b32 s%d, s%d, 2" % (t1, t1))
        su("s_add_u32 s%d, s%d, s%d" % (t1, t1, sW))
        su("s_lshl_b32 s%d, s%d, 7" % (t1, t1))
        su("s_mul_i32 s%d, s%d, %d" % (t2, sQ, 14336 * 128))
        su("s_add_u32 s%d, s%d, s%d" % (t2, t2, t1))
        su("s_add_u32 s%d, s%d, s%d\ns_addc_u32 s%d, s%d, 0" % (P_W2, P_W2, t2, P_W2 + 1, P_W2 + 1))
        su("s_add_u32 s%d, s%d, %d\ns_addc_u32 s%d, s%d, 0" % (P_WQ, P_W2, 28 * 32768, P_WQ + 1, P_W2 + 1))
        su("s_lshl_b32 s%d, s%d, 19" % (t2, sQ))
        su("s_add_u32 s%d, s%d, s%d" % (t2, t2, t1))
        su("s_add_u32 s%d, s%d, s%d\ns_addc_u32 s%d, s%d, 0" % (P_WO, P_WO, t2, P_WO + 1, P_WO + 1))
    V_T128 = V_XO
    TCN = cfg.get("f_tc", 0)
    su("v_lshlrev_b32 v%d, 3, v%d" % (211, L))
    if TCN:
        su("s_lshr_b32 s%d, s2, 3" % t1)
        su("s_lshl_b32 s%d, s%d, 1" % (t1, t1))
        su("s_and_b32 s%d, s2, 1" % t2)
        su("s_add_u32 s%d, s%d, s%d" % (t1, t1, t2))
        su("s_lshl_b32 s%d, s%d, 2" % (t1, t1))
        su("s_add_u32 s%d, s%d, s%d" % (t1, t1, sW))
        su("s_lshl_b32 s%d, s%d, 7" % (t1, t1))
        su("s_mul_i32 s%d, s%d, %d" % (sCLS, sQ, 14336 * 128))
        su("s_add_u32 s%d, s%d, s%d" % (sCLS, sCLS, t1))
        su("s_lshl_b32 s%d, s%d, 19" % (t3, sQ))
        su("s_add_u32 s%d, s%d, s%d" % (t3, t3, t1))
    def selftouch(so, half):
        if half: a("s_mov_b32 exec_hi, 0")
        a.vmem("buffer_load_dword a%d, v%d, %s, s%d offen sc1" % (A_PD, V_T128, s4(R_WS), so), "T")
        if half: a("s_mov_b32 exec_hi, -1")
    HK = cfg.get("f_hk", 0)
    if HK:
        assert RA == 12 and D1 == 8 and BR + RB * 4 <= 232 and UPW < NU
        kreg = lambda kt: 128 + 4 * kt if kt < 16 else 232 + 4 * (kt - 16)
        VF = 0
    else:
        kreg = lambda kt: 4 * kt
        VF = 80
    def kread(kt): a.lds("ds_read_b128 %s, v%d offset:%d" % (r4("a", kreg(kt)), V_KVW, kt * 1024), ("k", kt))
    def kpw(x):
        c0, c1, so, go, lo = kvq[x]
        a.wait(vm=("KP", x))
        a.lds("ds_write_b128 v%d, %s offset:%d" % (V_KVW, r4("v", c1), lo - 16384), "kvw")
    def codepf(vreg=None, mask=15):
        if vreg is None: vreg = V_PW
        lab = a.newlabel("F_pc")
        a("s_getpc_b64 s[%d:%d]" % (R_WQ, R_WQ + 1))
        a.label(lab)
        a("s_and_b32 s%d, s%d, 0xffff" % (R_WQ + 1, R_WQ + 1))
        a("s_mov_b32 s%d, CODE_END - %s" % (R_WQ + 2, lab))
        a("s_lshr_b32 s%d, s2, 3" % t0)
        a("s_lshl_b32 s%d, s%d, 2" % (t0, t0))
        a("s_add_u32 s%d, s%d, s%d" % (t0, t0, sW))
        a("s_lshl_b32 s%d, s%d, 9" % (t0, t0))
        a("s_mov_b64 exec, 0x%x" % mask)
        a.vmem("buffer_load_dword a%d, v%d, %s, s%d offen" % (A_PD, vreg, s4(R_WQ), t0), "T")
        a("s_mov_b64 exec, -1")
    seenA = set()
    ramp = (RA - 1 - LA) / float(S1 * NT)
    WM = cfg.get("f_wm", 200) / 100.0
    W0 = cfg.get("f_w0", 100) / 100.0
    UEND = S1 * NT + cfg.get("f_uend", 8)
    wts = [0.0] + [W0 * sum(1 for o in order if (o[1] if o[0] == "B" else o[1] // 2) == g) / 15.0 for g in (1, 2, 3)] + [WM if g % 4 == 0 else 1.0 for g in range(4, 16)]
    ipos = {}
    if cfg.get("f_lw", 0) == 2:
        no = []
        for g in range(16):
            bl = [o for o in order if o[0] == "B" and o[1] == g]; al = [o for o in order if o[0] == "A" and o[1] // 2 == g]
            if len(bl) == 7: mix = [bl[0], al[0], al[1], bl[1], al[2], al[3], bl[2], al[4], bl[3], bl[4], bl[5], bl[6], al[5], al[6], al[7]]
            else: mix = bl + al
            for k, o in enumerate(mix): ipos[o] = k
            no += mix
        order[:] = no
    noB = set(g for g in range(16) if not any(o[0] == "B" and o[1] == g for o in order))
    tau = [0.0]
    for g in range(16): tau.append(tau[-1] + wts[g])
    tau = [x * UEND / tau[-1] for x in tau]
    def due(op):
        g = op[1] if op[0] == "B" else op[1] // 2
        idx = op[2] if op[0] == "B" else 7 + (op[1] % 2) * 4 + op[2]
        if cfg.get("f_wb", 0) and op[0] == "B" and op[2] > 3: idx = 3
        if g in noB: return tau[g] + (tau[g + 1] - tau[g]) * (idx - 7) / 8.0
        if cfg.get("f_lw", 0) == 1:
            lw = [64, 64, 64, 56, 36, 44, 24] + [32] * 8
            return tau[g] + (tau[g + 1] - tau[g]) * sum(lw[:idx]) / float(sum(lw))
        if cfg.get("f_lw", 0) == 2: return tau[g] + (tau[g + 1] - tau[g]) * ipos[op] / 15.0
        return tau[g] + (tau[g + 1] - tau[g]) * idx / 15.0
    DF = cfg.get("f_df", 0); PZ0 = cfg.get("f_pz0", 4)
    THR1 = cfg.get("f_thr1", 63)
    side = G.side
    def prewait1(u):
        u += gi[u][1] - 1
        s, t = units[u]
        if s not in seenA:
            flush1(("A", s)); seenA.add(s)
            r = a.wait(vm=("A", s), lg=("b", u))
        else: r = a.wait(lg=("b", u))
        stt["waited"] = u
        return r
    prewait1(0)
    for u in range(NU):
        u0, C_, gn = gi[u]; kk = u - u0
        s, t = divmod(u, NT) if u < S1 * NT else units[u]
        un = u + DB
        if un < NU: need1(un)
        if u in ((S1 - 4) * NT + 2, (S1 - 2) * NT + 2, S1 * NT + 2): barrier()
        elif cfg.get("f_xb", 0) and u < S1 * NT and u % (2 * NT) == 0 and u > 0: barrier()
        if S1 // 2 <= 12 and u == last_unit_of_stage[12] + 2: barrier()
        if pfq and u % 4 == 2 and pfq[0] - 1 <= (u + PFA) / NT + LA + ramp * (u + PFA): touch(pfq.pop(0))
        if PW & 4:
            for k in range(3):
                if u == S1 * NT + cfg.get("f_px0", 4) + k * cfg.get("f_pxd", 16): touchx(k)
        if PW == 1 and u == UKV - PW0: touchw(None)
        if PW & 3 == 2 and u < S1 * NT and t == 8 and PW0 <= s < PW0 + 8: (toucht if HOT else touchw)((s + 4) & 7)
        PW1 = cfg.get("f_pw1", 4)
        if ASY and not HOT and PW & 3 == 2 and u < S1 * NT and t == 8 and PW1 <= s < PW1 + 8: touchw((s + 4 + PW0 - PW1) & 7, 1)
        if u == 16 * NT: stampr("g1half")
        if u < S1 * NT and t == 0: stampr("g1s%d" % s)
        if u == S1 * NT: stampr("g1tail")
        if u == UKV:
            stampr("g1kv")
            if cfg.get("f_cpf", 1): codepf()
        if DF and u == 3 * NT:
            side += ["v_mov_b32 v%d, -1" % (T + e) for e in range(4)]
            side += ["s_lshl_b32 s%d, s2, 2" % t3, "s_add_u32 s%d, s%d, s%d" % (t3, t3, sW), "s_mul_i32 s%d, s%d, 12288" % (t3, t3),
                     "s_add_u32 s%d, s%d, 0x%x" % (t3, t3, WS_XC),
                     "v_xor_b32 v%d, 3, v%d" % (T + 4, L), "v_lshlrev_b32 v%d, 1, v%d" % (T + 4, T + 4), "v_xor_b32 v%d, s2, v%d" % (T + 4, T + 4),
                     "v_lshlrev_b32 v%d, 9, v%d" % (T + 4, T + 4), "v_lshl_add_u32 v%d, v%d, 2, v%d" % (T + 4, L, T + 4)]
        if DF and u < S1 * NT and t == 4 and PZ0 <= s < PZ0 + 12:
            k_ = s - PZ0
            side.append(("m", lambda k_=k_: a.vmem("buffer_store_dwordx4 %s, v%d, %s, s%d offen offset:%d sc1" % (r4("v", T), V_L16, s4(R_WS), t3, (k_ % 4) * 1024), "PZ")))
            if k_ % 4 == 3: side.append("s_add_u32 s%d, s%d, 4096" % (t3, t3))
        if DF and u == (PZ0 + 14) * NT + 5:
            assert a.vm.count("PZ") == 12
            a.wait(vm="PZ")
            a("s_lshl_b32 s%d, s%d, 7" % (t3, sW))
            a("s_add_u32 s%d, s%d, 0x%x" % (t3, t3, WS_FL))
            a("s_mov_b64 exec, 7")
            a.vmem("buffer_store_dword v%d, v%d, %s, s%d offen sc1" % (V_ONE, T + 4, s4(R_WS), t3), "RF")
            a("s_mov_b64 exec, -1")
        if u == cfg.get("f_tlb", -1):
            sh = cfg.get("f_tlbs", 21)
            a("v_lshlrev_b32 v%d, %d, v%d" % (V_P2, sh, L))
            a.vmem("buffer_load_dword a%d, v%d, %s, 0 offen" % (A_PD, V_P2, s4(R_WS)), "T")
            a.vmem("buffer_load_dword a%d, v%d, %s, 0 offen" % (A_PD, V_P2, s4(R_W2)), "T")
            a.vmem("buffer_load_dword a%d, v%d, %s, 0 offen" % (A_PD, V_P2, s4(R_WO)), "T")
            a("s_mov_b64 exec, %d" % ((1 << ((S * D * 2) >> sh)) - 1))
            a.vmem("global_load_dword a%d, v%d, s[%d:%d]" % (A_PD, V_P2, P_OUT, P_OUT + 1), "T")
            a("s_mov_b64 exec, -1")
        if FLN and u == 20 * NT + 3:
            a("v_and_b32 v%d, 7, v%d" % (V_P0, L))
            a("v_lshlrev_b32 v%d, 5, v%d" % (V_P0, V_P0))
            a.vmem("global_load_dword v%d, v%d, s[100:101] sc1" % (V_POLL, V_P0), "CN")
        if FLN and u == 22 * NT + 3:
            a.wait(vm="CN")
            l0 = a.newlabel("F_cn"); l1 = a.newlabel("F_ok")
            a("s_mov_b32 s%d, 0x%x" % (sSP, SPIN))
            a.label(l0)
            a("v_cmp_le_u32 vcc, 32, v%d" % V_POLL)
            a("s_cmp_eq_u32 vcc_lo, -1")
            a("s_cbranch_scc1 %s" % l1)
            a("global_load_dword v%d, v%d, s[100:101] sc1" % (V_POLL, V_P0))
            a("s_sub_u32 s%d, s%d, 1" % (sSP, sSP))
            a("s_waitcnt vmcnt(0)")
            a("s_cbranch_scc0 %s" % l0)
            a.label(l1)
        if u == UFLAG:
            stampr("g1flag0")
            assert a.vm.count("KV") == 8
            a.wait(vm="KV")
            stampr("g1flag1")
            a.vmem("buffer_store_dword v%d, v%d, %s, s%d offen sc1" % (V_ONE, V_FL0, s4(R_WS), sFK), "FK")
        if u == UPOLL: poll_issue("PK")
        if u == UCHK:
            a.wait(vm="PK")
            spin(1 << 3, skip_if_i0=True)
            stampr("g1chk")
            if HK:
                def kd(so, k, chk):
                    if chk: assert 12 in stt["free"]
                    a.vmem("buffer_load_dwordx4 v%d, %s, s%d offen offset:%d sc1 lds" % (V_L16, s4(R_WS), so, k * 1024), "KD")
                new_ = ["s_lshl_b32 s%d, s%d, 12\ns_add_u32 m0, s%d, %d" % (t0, sW, t0, KVB + 32768), None]
                new_ += [("m", lambda k=k: kd(sKP2, k, False)) for k in range(4)]
                new_ += ["s_sub_u32 m0, m0, 32768", None]
                new_ += [("m", lambda k=k: kd(sKP, k, True)) for k in range(4)]
                side[:0] = new_
            else:
              for x, (c0, c1, so, go, lo) in enumerate(kvq):
                def f(c1=c1, so=(sKP if x < 4 else sKP2), go=go, x=x):
                    a.vmem("buffer_load_dwordx4 %s, v%d, %s, s%d offen offset:%d sc1" % (r4("v", c1), V_L16, s4(R_WS), so, go), ("KP", x))
                side.insert(x, ("m", f))
        if HK and u == UPW:
            assert a.vm.count("KD") == 8 and a.lg.count("kvw") == 8
            a.wait(vm="KD", lg="kvw"); barrier()
            stampr("g1kb")
            side[:0] = [("v", lambda kt=kt: kread(kt)) for kt in range(20)]
        nxt = None
        if order and can1(order[0]) and len(G.sal) <= 1 and due(order[0]) <= u: nxt = order.pop(0)
        if nxt and cfg.get("verbose", 0) > 1: print("issue", u, nxt, "due %.0f" % due(nxt), file=sys.stderr)
        if FLN and HT & 2:
            for b in (1, 2, 3):
                if u == max(0, int(tau[4 * b]) - cfg.get("f_hta", 0)): hottouch(b)
        if PW & 32 and nxt:
            tk = cfg.get("f_tk", 0)
            key = ("B", nxt[1], tk) if tk < 7 else ("A", nxt[1], (tk - 7) % 4)
            g_ = nxt[1] if nxt[0] == "B" else nxt[1] // 2
            if nxt == key and g_ in (4, 8, 12) and (nxt[0] == "B" or nxt[1] % 2 == (tk - 7) // 4): touchp(g_ // 4 - 1)
        for mt in range(MT):
            m_, k_ = divmod(kk * MT + mt, C_)
            if cfg.get("f_kz", 1) and m_ % 2 == 1 and units[u0][0] > 0: k_ = C_ - 1 - k_
            mz = m_ if gn % 2 == 0 else MT - 1 - m_
            s_, t_ = units[u0 + k_]
            bf = r4("a", BR + ((u0 + k_) % RB) * 4)
            af = r4("a", AR + (s_ % RA) * 16 + mz * 4)
            c = r4("v", acc(mz, t_))
            src = "0" if s_ == 0 else c
            if t_ in (4, 5): a("%s %s, %s, %s, %s" % (MF, c, af, bf, src))
            else:            a("%s %s, %s, %s, %s" % (MF, c, bf, af, src))
            rd = (lambda mt=mt: bread1(un, mt)) if (mt < 2 and un < NU) else None
            if mt == 0: G.gap(fixed=rd)
            elif mt == 1:
                if nxt and nxt[0] == "B": G.gap(first=lambda: (dma1(nxt[1], nxt[2], 0), True)[1], fixed=rd)
                else: G.gap(fixed=rd)
            elif mt == 2:
                if nxt:
                    assert not G.sal
                    G.gap(first=(lambda: a.throttle(THR1)), mem=((lambda: aload1(nxt[1], nxt[2])) if nxt[0] == "A" else (lambda: dma1(nxt[1], nxt[2], 1))))
                else: G.gap()
            else:
                if kk == C_ - 1:
                    stt["issued"] = u
                    G.gap(first=(lambda: prewait1(u + 1)) if u + 1 < NU else None)
                else: G.gap()
        if u == UKV - 1:
            assert 11 in stt["free"], stt
            side += [None] * 5
            for (c0, c1, so, go, lo) in kvq:
                side += pack(c0, c1)
                def f(c0=c0, so=so, go=go):
                    a.vmem("buffer_store_dwordx4 %s, v%d, %s, s%d offen offset:%d sc1" % (r4("v", c0), V_L16, s4(R_WS), so, go), "KV")
                side.append(("m", f))
            for (c0, c1, so, go, lo) in kvq:
                def f(c0=c0, lo=lo):
                    a.lds("ds_write_b128 v%d, %s offset:%d" % (V_KVW, r4("v", c0), lo), "kvw")
                side += [("x", f), None]
            assert not order and stt.get("su0")
            side += su.l
        if u >= S1 * NT and not order and not G.sal and not stt.get("su0"):
            side += su0; stt["su0"] = True
        if HO and u == UKV + cfg.get("f_ho1", 30):
            barrier(); side[:0] = hole_ops(range(0, min(3, HO)))
        if HO > 3 and u == UKV + cfg.get("f_ho2", 56):
            assert u > UH01 and a.vm.count(("B2", 2)) == 2 and not any(isinstance(x, str) and ("s%d, s%d" % (sB2, sBE)) in x for x in side)
            barrier(); side[:0] = hole_ops(range(3, HO))
        if u == UPW and not HK:
            assert 12 in stt["free"]
            side[:0] = [y for x in range(8) for y in (("x", lambda x=x: kpw(x)), None)]
        if u == UH01 - 1:
            side += [None] * 5
            for p in range(2):
                for mt in range(MT):
                    side += pack(acc(mt, 6 + 2 * p), acc(mt, 7 + 2 * p), relu=True)
                    if p * 4 + mt < cfg.get("f_hearly", 8):
                        side.append(("m", lambda p=p, mt=mt: hstore(p, mt)))
                        side += [None] * cfg.get("f_hsp", 8)
        if u == UCHK:
            assert UCHK >= UH01
            for x in range(cfg.get("f_hearly", 8), 8):
                side += [("m", lambda x=x: hstore(x // 4, x % 4))] + [None] * cfg.get("f_hsp2", 6)
    if cfg.get("verbose"): print("G1 side left", len([x for x in side if x is not None]), file=sys.stderr)
    G.drain()
    assert not order
    assert 12 in stt["free"]
    stampr("g1end")

    va = []
    for mt in range(MT): va += pack(acc(mt, 10), acc(mt, 11), relu=True)
    if HK:
        stampr("attbeg")
        for _ in range(8): a(va.pop(0))
    else:
        if UPW >= NU:
            for x in range(8): kpw(x)
        a.wait(lg="kvw")
        a("s_barrier")
        stampr("attbeg")
        for kt in range(20):
            kread(kt)
            a(va.pop(0))
    for mt in range(MT):
        for t in (0, 1):
            for e2 in range(2):
                c = acc(mt, t) + 2 * e2
                a("v_pk_mul_f32 v[%d:%d], v[%d:%d], s[%d:%d] op_sel_hi:[1,0]" % (c, c + 1, c, c + 1, sSC, sSC + 1))
        if mt == 0:
            for x in pack(acc(mt, 0), acc(mt, 1)): a(x)
    STCH = cfg.get("f_st", 0)
    a.vm = [("H01" if t == "H" else t) for t in a.vm]
    stq = [(cfg.get("f_st0", 200), sH), (cfg.get("f_st1", 380), sH + 1)] if STCH & 1 else []
    hstore(2, 0)
    for mt in range(1, MT): va += pack(acc(mt, 0), acc(mt, 1))
    for mt in range(MT): va += pack(acc(mt, 12), None, relu=True)
    free = [acc(mt, t) for t in (2, 3, 4, 5, 7, 9) for mt in range(MT)] + [212, 216, 220] + [acc(mt, t) for t in (11, 1) for mt in range(MT)]

    C2 = cfg.get("f_c2", 2)
    C2T = cfg.get("f_c2t", 4); C2S = cfg.get("f_c2s", 5)
    CM2 = max(C2, C2T, 3)
    RA2 = cfg.get("f_ra2", 13); DB2 = cfg.get("f_db2", CM2 + 2); RB2 = DB2 + CM2
    assert DB2 >= CM2
    BR2 = RA2 * 16
    assert BR2 + RB2 * 4 <= 256
    def aslot(p): return ((p - 3 + 10) % RA2) * 16
    vl8 = [None]
    def aload2(p, mt):
        if 24 <= p < 28:
            for hh in range(2):
                a.vmem("buffer_load_dwordx2 %s, v%d, %s, s%d offen offset:%d sc1" % (r2("a", aslot(p) + mt * 4 + hh * 2), vl8[0], s4(R_WS), sA, hh * 2048 + mt * 512), ("A2", p))
            last = mt == MT - 1
        else:
            a.vmem("buffer_load_dwordx4 %s, v%d, %s, s%d offen offset:%d sc1" % (r4("a", aslot(p) + mt * 4), V_L16, s4(R_WS), sA, mt * 1024), ("A2", p))
            last = mt == MT - 1
        if last and p < 35:
            G.sal.append("s_add_u32 s%d, s%d, 4096" % (sA, sA))
            if p <= 23 and p % 3 == 2: G.sal.append("s_cmp_eq_u32 s%d, s%d\ns_cselect_b32 s%d, s%d, s%d" % (sA, sAE, sA, sA0, sA))
    LL = cfg.get("f_ll", 1)
    hst = [(2, 1), (2, 2), (2, 3)] + ([] if LL else [(3, mt) for mt in range(MT)])
    lst = [(3, mt) for mt in range(MT)] if LL else []
    NPRE = cfg.get("f_npre", 10)
    assert NPRE >= 3
    pre = []
    assert HO <= NPRE <= NSL
    for p in range(HO, NPRE): pre += [(p,) + op for op in dma2_ops(p)]

    S_ = {}; P_ = {}; O_ = {}
    def s_mfma(qa, kt):
        q = free.pop(0); S_[(qa, kt)] = q
        a.wait(lg=("k", kt))
        c = r4("v", bias[kt // 4]) if kt < 16 else "0"
        a("%s %s, %s, %s, %s" % (MF, r4("v", q), r4("a", kreg(kt)), r4("v", acc(qa, 0)), c))
    def pv_list(qa):
        b0 = qa // 2
        out = []
        for b in range(b0, b0 + 9):
            for z in range(3):
                def f(b=b, z=z):
                    if b == b0: O_[(qa, z)] = free.pop(0)
                    o = r4("v", O_[(qa, z)])
                    if z < 2:
                        a.wait(lg=("v", 2 * b + z)); A = r4("a", VF + (2 * b + z) * 4)
                    else: A = r4("v", VONES)
                    a("%s %s, %s, %s, %s" % (MF, o, A, r4("v", P_[(qa, b)]), "0" if b == b0 else o))
                    if z == 2: free.append(P_[(qa, b)])
                out.append(f)
        return out
    def fin_list(qa):
        o0, o1, sm = O_[(qa, 0)], O_[(qa, 1)], O_[(qa, 2)]
        ops = ["v_rcp_f32 v%d, v%d" % (sm, sm), "s_nop 0"]
        for o in (o0, o1):
            for e in range(4): ops.append("v_mul_f32 v%d, v%d, v%d" % (o + e, o + e, sm))
        ops += pack(o0, o1)
        def f():
            a.vmem("buffer_store_dwordx4 %s, v%d, %s, s%d offen offset:%d %s" % (r4("v", o0), V_L16, s4(R_WS), sO, qa * 1024, HF), "O")
            free.extend([o1, sm]); late_free.append(o0)
        ops.append(f)
        return ops
    late_free = []
    pready = set()
    def soft_list(qa):
        k0, k1 = qa, qa + 16
        ops = []
        f_, l_ = S_[(qa, k0)], S_[(qa, k1)]
        odd = qa & 1
        g_, z_ = (l_, f_) if odd else (f_, l_)
        o_ = 2 * odd
        for e in range(4):
            ops.append((1, "v_cndmask_b32 v%d, v%d, v%d, s[%d:%d]" % (g_ + e, f_ + e, l_ + e, sMK + 2 * e, sMK + 2 * e + 1)))
        quads = [S_[(qa, kt)] for kt in range(k0 + 1, k1)] + [g_]
        vals = [q + e for q in quads for e in range(4)]
        m0, m1 = VM, VM + 1
        ops.append((1, "v_max3_f32 v%d, v%d, v%d, v%d" % (m0, vals[0], vals[1], vals[2])))
        ops.append((1, "v_max3_f32 v%d, v%d, v%d, v%d" % (m1, vals[3], vals[4], vals[5])))
        ops.insert(2, (0, "SLOT")); ops.insert(5, (0, "SLOT")); ops.append((0, "SLOT"))
        for x in range(6, 62, 4):
            ops.append((1, "v_max3_f32 v%d, v%d, v%d, v%d" % (m0, m0, vals[x], vals[x + 1])))
            ops.append((1, "v_max3_f32 v%d, v%d, v%d, v%d" % (m1, m1, vals[x + 2], vals[x + 3])))
            ops.append((0, "SLOT"))
        ops.append((1, "v_max3_f32 v%d, v%d, v%d, v%d" % (m0, m0, vals[62], vals[63])))
        ops.append((1, "v_max_f32 v%d, v%d, v%d" % (m0, m0, m1)))
        ops.append((1, "v_mov_b32 v%d, v%d" % (m1, m0)))
        ops.append((0, "SLOT2"))
        ops.append((1, "v_permlane16_swap_b32 v%d, v%d" % (m0, m1)))
        ops.append((1, "v_max_f32 v%d, v%d, v%d" % (m0, m0, m1)))
        ops.append((1, "v_mov_b32 v%d, v%d" % (m1, m0)))
        ops.append((1, "v_mov_b32 v%d, 0" % (z_ + 2 - o_)))
        ops.append((1, "v_mov_b32 v%d, 0" % (z_ + 3 - o_)))
        ops.append((1, "v_permlane32_swap_b32 v%d, v%d" % (m0, m1)))
        ops.append((1, "v_max_f32 v%d, v%d, v%d" % (m0, m0, m1)))
        def subexp(q):
            r = []
            for e2 in range(2):
                r.append((1, "v_pk_add_f32 v[%d:%d], v[%d:%d], v[%d:%d] op_sel_hi:[1,0] neg_lo:[0,1] neg_hi:[0,1]" % (q + 2 * e2, q + 2 * e2 + 1, q + 2 * e2, q + 2 * e2 + 1, m0, m0 + 1)))
            for e in range(4):
                if e < 2: r.append((0, "SLOT"))
                r.append((2, "v_exp_f32 v%d, v%d" % (q + e, q + e)))
            r.append((0, "MEM"))
            return r
        ops += subexp(g_)
        ops += subexp(S_[(qa, k0 + 1)])
        cv = ["v_cvt_pk_bf16_f32 v%d, v%d, v%d" % (g_ + o_ + x, g_ + 2 * x, g_ + 2 * x + 1) for x in range(2)]
        if odd: cv.reverse()
        ops += [(1, x) for x in cv]
        for x in range(2):
            if odd: ops.append((1, "v_bfi_b32 v%d, v%d, 0, v%d" % (z_ + o_ + x, VM + 2 + x, g_ + o_ + x)))
            else:   ops.append((1, "v_and_b32 v%d, v%d, v%d" % (z_ + o_ + x, VM + 2 + x, g_ + o_ + x)))
        for x in range(2): ops.append((1, "v_xor_b32 v%d, v%d, v%d" % (g_ + o_ + x, g_ + o_ + x, z_ + o_ + x)))
        done = {k0, k0 + 1, k1}
        b0 = qa // 2
        pend_pack = None
        for b in range(b0, b0 + 9):
            for kt in (2 * b, 2 * b + 1):
                if k0 <= kt <= k1 and kt not in done:
                    ops += subexp(S_[(qa, kt)]); done.add(kt)
            if pend_pack: ops += pend_pack
            lo, hi = S_.get((qa, 2 * b)), S_.get((qa, 2 * b + 1))
            pk = []
            if lo is None or hi is None: d = z_
            elif g_ in (lo, hi):
                d = g_; ot = hi if lo == g_ else lo
                pk += [(1, "v_cvt_pk_bf16_f32 v%d, v%d, v%d" % (d + 2 - o_ + x, ot + 2 * x, ot + 2 * x + 1)) for x in range(2)]
                pk.append((0, (lambda ot=ot: free.append(ot))))
            else:
                d = lo
                pk += [(1, x) for x in pack(lo, hi)]
                pk.append((0, (lambda hi=hi: free.append(hi))))
            P_[(qa, b)] = d
            pk.append((0, (lambda b=b: pready.add((qa, b)))))
            pend_pack = pk
        ops += pend_pack
        return ops
    def run(op):
        if isinstance(op, str): a(op)
        else: op()
    vr = list(range(20))
    def vread():
        f = vr.pop(0)
        a.lds("ds_read_b128 %s, v%d offset:%d" % (r4("a", VF + 4 * f), V_KVW, 32768 + f * 1024), ("v", f))
    for kt in range(17):
        s_mfma(0, kt)
        vread(); a(va.pop(0))
    while vr:
        vread(); a(va.pop(0))
    hstore(*hst.pop(0))
    while va: a(va.pop(0))
    HGAP = cfg.get("f_hgap", 30); PGAP = cfg.get("f_pgap", 28)
    HFL = cfg.get("f_hfl", 500)
    HPO = cfg.get("f_hpo", 900)
    HCK = cfg.get("f_hck", 2000)
    hok = False
    ordA = [("A2", p, mt) for p in range(3, KS2) for mt in range(MT)]
    napre = cfg.get("f_apre", 16)
    pv3 = pv_list(3); pv3b = [1 + x // 3 for x in range(27)]
    tq = [(cfg.get("f_tb0", 200) + k * cfg.get("f_tbd", 150), k) for k in range(cfg.get("f_tbn", 0))]
    tcq = []
    if TCN:
        k0 = cfg.get("f_tck", 6); nr = cfg.get("f_tcr", 2)
        ed = [k0 + (56 - k0) * x // nr for x in range(nr + 1)]
        rr = [(ed[x], ed[x + 1]) for x in range(nr)] + [(56, 72)]
        tcq = [(cfg.get("f_tc0", 540) + x * cfg.get("f_tcd", 130), lo_, hi_) for x, (lo_, hi_) in enumerate(rr)]
    sq = []
    if SPF:
        for k in range(cfg.get("f_spf0", 6), 56): sq.append("s_load_dword s%d, s[%d:%d], 0x%x" % (t3, (P_W2 if k < 28 else P_WQ), (P_W2 if k < 28 else P_WQ) + 1, (k % 28) * 32768))
        for k in range(16): sq.append("s_load_dword s%d, s[%d:%d], 0x%x" % (t3, P_WO, P_WO + 1, k * 32768))
    next_s = 0; SGAP = cfg.get("f_sgap", 8)
    kvbar = False; hflag = False; hpoll = False
    cost_total = 0; next_h = HGAP; next_p = 0
    for qa in range(4):
        stampr("att%d" % qa)
        ops = soft_list(qa)
        tot = sum(c for c, _ in ops)
        pv = pv_list(qa - 1) if qa > 0 else []
        fin = None
        sm = [(qa + 1, kt) for kt in range(qa + 1, qa + 18)] if qa < 3 else []
        c = 0
        pv_done_at = None
        for (cost, op) in ops:
            if op == "SLOT2":
                if pv:
                    pv.pop(0)(); a("s_nop 0")
                    if not pv: pv_done_at = c
                else: a("s_nop 1")
                continue
            if op == "SLOT":
                did = False
                if pv:
                    pv.pop(0)(); did = True
                    if not pv: pv_done_at = c
                elif sm and len(free) > 0 and c >= tot * 0.2:
                    s_mfma(*sm.pop(0)); did = True
                elif qa == 3 and pv3 and (3, pv3b[0]) in pready:
                    pv3.pop(0)(); pv3b.pop(0); did = True
                if did and G.sal:
                    a(G.sal.pop(0)); continue
                if did and pre and pre[0][1] == 0 and (kvbar or (pre[0][0] < 9 and not HK)): pre.pop(0)[2]()
                elif sq and kvbar and cost_total >= next_s and (did or cost_total >= next_s + SGAP):
                    a(sq.pop(0)); next_s = cost_total + SGAP
                    if not sq and cfg.get("verbose"): print("scalar prefetch done at", cost_total, file=sys.stderr)
                continue
            if op == "MEM":
                if qa > 0 and fin is None and pv_done_at is not None and c >= pv_done_at + 18:
                    fin = fin_list(qa - 1)
                    for x in fin: run(x)
                elif hst and cost_total >= next_h:
                    hstore(*hst.pop(0)); next_h = cost_total + HGAP
                elif stq and cost_total >= stq[0][0]:
                    a.wait(vm="H01"); selftouch(stq.pop(0)[1], True)
                elif tcq and cost_total >= tcq[0][0]:
                    _, lo_, hi_ = tcq.pop(0)
                    if lo_ < 56:
                        m_ = ((1 << hi_) - 1) ^ ((1 << lo_) - 1)
                        a("s_mov_b32 exec_lo, 0x%x" % (m_ & 0xffffffff))
                        a("s_mov_b32 exec_hi, 0x%x" % (m_ >> 32))
                        a.vmem("buffer_load_dword a%d, v%d, %s, s%d offen" % (A_PD, V_T128, s4(R_W2), sCLS), "T")
                    else:
                        a("s_mov_b64 exec, 0xffff")
                        a.vmem("buffer_load_dword a%d, v%d, %s, s%d offen" % (A_PD, V_T128, s4(R_WO), t3), "T")
                    a("s_mov_b64 exec, -1")
                elif not hst and tq and cost_total >= tq[0][0]:
                    k_ = tq.pop(0)[1]
                    a("s_lshr_b32 s%d, s2, 3" % t0)
                    a("s_lshl_b32 s%d, s%d, 2" % (t0, t0))
                    a("s_add_u32 s%d, s%d, s%d" % (t0, t0, sW))
                    if k_ < 4:
                        a("s_mul_i32 s%d, s%d, 3584" % (t0, t0))
                        a("s_mul_i32 s%d, s%d, %d" % (t1, sQ, 896 * 2048))
                        a("s_add_u32 s%d, s%d, s%d" % (t0, t0, t1))
                        if k_: a("s_add_u32 s%d, s%d, %d" % (t0, t0, k_ * 224 * 2048))
                        a("s_mov_b64 exec, 0xfffffff")
                        a.vmem("buffer_load_dword a%d, v%d, %s, s%d offen" % (A_PD, V_T128, s4(R_W2), t0), "T")
                    else:
                        a("s_lshl_b32 s%d, s%d, 12" % (t0, t0))
                        a("s_lshl_b32 s%d, s%d, 19" % (t1, sQ))
                        a("s_add_u32 s%d, s%d, s%d" % (t0, t0, t1))
                        a("s_mov_b32 exec_hi, 0")
                        a.vmem("buffer_load_dword a%d, v%d, %s, s%d offen" % (A_PD, V_T128, s4(R_WO), t0), "T")
                    a("s_mov_b64 exec, -1")
                elif not hst and not hflag and cost_total >= HFL:
                    a.wait(vm="H")
                    a.vmem("buffer_store_dword v%d, v%d, %s, 0 offen offset:32 sc1" % (V_ONE, V_FG, s4(R_WS)), "FH")
                    hflag = True
                    if STCH & 2: selftouch(sH + 2, True)
                elif hflag and lst and cost_total >= cfg.get("f_llp", 560):
                    while lst: hstore(*lst.pop(0))
                elif hflag and not hpoll and cost_total >= HPO:
                    if cfg.get("f_cpf2", 1): codepf(V_L16, 0x01010101)
                    poll_issue("PH"); hpoll = True
                elif hpoll and not hok and cost_total >= HCK:
                    a.wait(vm="PH"); spin(0xff00); hok = True
                    stampr("g2h")
                elif hok and napre > 0:
                    G.drain_sal()
                    op_ = ordA.pop(0); aload2(op_[1], op_[2]); napre -= 1
                elif pre and pre[0][1] == 1 and cost_total >= next_p:
                    pre.pop(0)[2](); next_p = cost_total + PGAP
                    if cfg.get("f_p2", 0) and pre and pre[0][1] == 1: pre.pop(0)[2]()
                continue
            run(op); c += cost; cost_total += cost
            if qa == 0 and not kvbar and c >= 30:
                a.wait(lg=("v", 19)); a("s_barrier"); kvbar = True
        assert not pv and (qa == 0 or fin)
        free.extend(late_free); del late_free[:]
        if sm and cfg.get("verbose"): print("late S mfmas", qa, len(sm), file=sys.stderr)
        late = bool(sm)
        while sm: s_mfma(*sm.pop(0))
        if late: a("s_nop 7")
    if cfg.get("verbose"): print("attention cost", cost_total, "pre left", len(pre), file=sys.stderr)
    stampr("att4")
    assert not hst and not lst and hflag and hpoll and not sq and not tcq
    if not hok: napre = 0
    while pre:
        pre.pop(0)[2](); a("s_nop 0")
    G.drain_sal()
    assert napre <= 4 * (RA2 - 10) and not (HK and hok)
    a("v_mov_b32 v%d, v%d" % (V2_RD, V2_B))
    a("v_xor_b32 v%d, 32, v%d" % (V2_RD + 1, V2_B))
    xr = ["v_xor_b32 v%d, %d, v%d" % (V2_RD + t, t * 32, V2_B) for t in range(2, 8)]
    xr += ["v_add_u32 v%d, %d, v%d" % (V2_RD + 8 + t, 2 * STAGE, V2_RD + t) for t in range(8)]
    if cfg.get("verbose"): print("pv3 left", len(pv3), "apre left", napre, file=sys.stderr)
    for f in pv3:
        f()
        if napre > 0:
            op_ = ordA.pop(0); aload2(op_[1], op_[2]); napre -= 1; G.drain_sal()
        else:
            for _ in range(2):
                if xr: a(xr.pop(0))
    while xr: a(xr.pop(0))
    stampr("attend")

    NT2 = 8
    DL = cfg.get("f_dl", 8); S2 = KS2 - DL
    assert RA2 >= DL
    own = set(acc(mt, 6 + 2 * p) for p in range(3) for mt in range(MT))
    busy = own | set(O_[(3, z)] for z in range(3)) | {208}
    q2 = [q for q in range(0, 224, 4) if q not in busy]
    acc2 = {}
    for t in range(NT2):
        for mt in range(MT): acc2[(mt, t)] = q2.pop(0)
    VX = [q2.pop(0) for _ in range(4)]
    TT = q2.pop(0); V_XI = TT + 2
    R_X = R_WQ; R_OUT = R_W1
    rec = Rec()
    rec.l += [None] * 5 + [x if isinstance(x, str) else ("m", x) for x in fin_list(3)]
    for t in range(8): rec("v_add_u32 v%d, %d, v%d" % (V2_RD + 16 + t, 4 * STAGE, V2_RD + t))
    srd(rec, R_X, P_X, S * D * 2)
    srd(rec, R_OUT, P_OUT, S * D * 2)
    vl8[0] = TT + 3
    rec("v_lshlrev_b32 v%d, 3, v%d" % (TT + 3, L))
    rec2 = Rec()
    rec2("v_and_b32 v%d, 15, v%d" % (TT, L))
    rec2("v_lshlrev_b32 v%d, 11, v%d" % (V_XO, TT))
    rec2("v_lshrrev_b32 v%d, 4, v%d" % (TT, L))
    rec2("v_lshl_add_u32 v%d, v%d, 3, v%d" % (V_XI, TT, V_XO))
    rec2("v_bfe_u32 v%d, v%d, 4, 1" % (TT, L))
    rec2("v_lshl_add_u32 v%d, v%d, 5, v%d" % (V_XO, TT, V_XO))
    rec2("v_lshrrev_b32 v%d, 5, v%d" % (TT, L))
    rec2("v_lshl_add_u32 v%d, v%d, 4, v%d" % (V_XO, TT, V_XO))
    CO = cfg.get("f_co", 1)
    if CO:
        V_OW = V_KVW; V_OR = V2_B
        rec2("s_mul_i32 s%d, s%d, 5120" % (t1, sW))
        rec2("s_add_u32 s%d, s%d, %d" % (t1, t1, 5 * STAGE))
        rec2("v_and_b32 v%d, 15, v%d" % (TT, L))
        rec2("v_mul_u32_u24 v%d, 80, v%d" % (V_OW, TT))
        rec2("v_lshrrev_b32 v%d, 4, v%d" % (TT, L))
        rec2("v_lshl_add_u32 v%d, v%d, 3, v%d" % (V_OW, TT, V_OW))
        rec2("v_add_u32 v%d, s%d, v%d" % (V_OW, t1, V_OW))
        rec2("v_lshrrev_b32 v%d, 2, v%d" % (TT, L))
        rec2("v_mul_u32_u24 v%d, 80, v%d" % (V_OR, TT))
        rec2("v_lshlrev_b32 v%d, 11, v%d" % (V_XO, TT))
        rec2("v_and_b32 v%d, 3, v%d" % (TT, L))
        rec2("v_lshl_add_u32 v%d, v%d, 4, v%d" % (V_OR, TT, V_OR))
        rec2("v_add_u32 v%d, s%d, v%d" % (V_OR, t1, V_OR))
        rec2("v_lshl_add_u32 v%d, v%d, 4, v%d" % (V_XO, TT, V_XO))
    XD = cfg.get("f_xd", 1) and CO
    if XD:
        assert "f_ux" not in cfg
        rec2("v_and_b32 v%d, 15, v%d" % (TT, L))
        rec2("v_lshlrev_b32 v%d, 6, v%d" % (V_XI, TT))
        rec2("v_lshrrev_b32 v%d, 4, v%d" % (TT, L))
        rec2("v_lshl_add_u32 v%d, v%d, 3, v%d" % (V_XI, TT, V_XI))
        rec2("v_add_u32 v%d, s%d, v%d" % (V_XI, t1, V_XI))
    sSX = [sKV, sKV2, sKP]; sSF = [sKP2, sFK, sH]; sRX = sH + 1
    for lam in range(3):
        rec("s_xor_b32 s%d, s2, %d" % (t1, (lam ^ 3) << 1))
        rec("s_lshl_b32 s%d, s%d, 2" % (t1, t1))
        rec("s_add_u32 s%d, s%d, s%d" % (t1, t1, sW))
        rec("s_mul_i32 s%d, s%d, 12288" % (sSX[lam], t1))
        rec("s_add_u32 s%d, s%d, 0x%x" % (sSX[lam], sSX[lam], WS_XC + lam * 4096))
        rec("s_lshl_b32 s%d, s%d, 7" % (sSF[lam], t1))
        rec("s_add_u32 s%d, s%d, 0x%x" % (sSF[lam], sSF[lam], WS_FL + lam * 4))
    rec("s_lshl_b32 s%d, s2, 2" % t1)
    rec("s_add_u32 s%d, s%d, s%d" % (t1, t1, sW))
    rec("s_mul_i32 s%d, s%d, 12288" % (sRX, t1))
    rec("s_add_u32 s%d, s%d, 0x%x" % (sRX, sRX, WS_XC))
    if DF:
        for lam in range(3): rec("s_add_u32 s%d, s%d, %d" % (sSF[lam], sRX, lam * 4096))
    side = G.side
    side += rec.l

    units = []; del gi[:]
    grp(units, 0, 3, range(NT2), 3)
    grp(units, 3, C2S, range(NT2), 2)
    DLO = cfg.get("f_dlo", 11); S2O = KS2 - DLO
    assert DL <= DLO <= RA2
    grp(units, C2S, S2O, range(NT2), C2)
    grp(units, S2O, S2, range(6), C2)
    UT = len(units)
    for lam in range(4): grp(units, S2 if lam < 3 else S2O, KS2, (2 * lam, 2 * lam + 1), C2T if lam else min(C2T, cfg.get("f_c2t0", 4)))
    NU = len(units)
    PL = 2 * DL
    last_unit = {}
    for u, (p, t) in enumerate(units): last_unit[p] = u
    stt = dict(ready=-1, free=set(), waited=-1, issued=-1, ook=False, hok=hok)
    ordB = [("B2", p) for p in range(NPRE, KS2)]
    def barrier2():
        a("s_barrier")
        for p, lu in last_unit.items():
            if lu <= stt["waited"]: stt["free"].add(p)
    def can2(op):
        if op[0] == "B2": return op[1] < NSL or (op[1] - NSL) in stt["free"]
        if not stt["hok"] or (op[1] >= (24 if LL else 28) and not stt["ook"]): return False
        return op[1] - 3 < RA2 or last_unit[op[1] - RA2] <= stt["issued"]
    def issue2(op):
        if cfg.get("verbose"): print("late flush2", op, file=sys.stderr)
        G.drain_sal()
        if op[0] == "A2": aload2(op[1], op[2])
        else:
            for x in dma2_ops(op[1]): x[1](); a("s_nop 0")
        G.drain_sal()
    def flush2(q, tag):
        while any(o[:2] == tag for o in q):
            op = q.pop(0); assert can2(op), (op, stt); issue2(op)
    def bread2(u, j2):
        p, t = units[u]
        sl, pos = LOC[p % NSL]
        a.lds("ds_read_b64_tr_b16 %s, v%d offset:%d" % (r2("a", BR2 + (u % RB2) * 4 + j2 * 2), V2_RD + 8 * (sl // 2) + t, (sl % 2) * STAGE + (pos + j2) * 1024), ("b2", u))
    def need2(u):
        p = units[u][0]
        if p > stt["ready"]:
            flush2(ordB, ("B2", p))
            grp = cfg.get("f_bgrp", 4)
            top = max(x for x in range(p, min(p + grp, KS2)) if not any(o[1] == x for o in ordB))
            if p == 0: top = min(NPRE - 1, cfg.get("f_top0", 5))
            elif p < NPRE: top = NPRE - 1
            a.wait(vm=("B2", top)); barrier2(); stt["ready"] = top
    need2(0)
    for u in range(DB2):
        bread2(u, 0); bread2(u, 1)
    stampr("g2beg")
    UOF = cfg.get("f_uof", 26)
    UOP = cfg.get("f_uop", 80); UOC = UOP + 12
    seenA = {0, 1, 2}
    xdone = False
    rq = sorted(own)
    def flag(lam):
        a.wait(vm=("S", lam))
        a.vmem("buffer_store_dword v%d, v%d, %s, s%d offen sc1" % (V_ONE, V_FL0, s4(R_WS), sSF[lam]), ("F", lam))
    def recv(lam, mt):
        a.vmem("buffer_load_dwordx4 %s, v%d, %s, s%d offen offset:%d sc1" % (r4("v", rq[4 * lam + mt]), V_L16, s4(R_WS), sRX, mt * 1024), ("R", lam, mt))
        if mt == 3 and lam < 2: a("s_add_u32 s%d, s%d, 4096" % (sRX, sRX))
    PS = lambda mt, hh: acc2[(mt, hh)]
    def addpk(dst, src, first=False):
        ops = []
        for hh in range(2):
            for e2 in range(2):
                pp = src + 2 * hh + e2; c = dst[hh] + 2 * e2
                if first:
                    ops += ["v_lshlrev_b32 v%d, 16, v%d" % (c, pp), "v_and_b32 v%d, 0xffff0000, v%d" % (c + 1, pp)]
                else:
                    ops += ["v_lshlrev_b32 v%d, 16, v%d" % (TT, pp), "v_and_b32 v%d, 0xffff0000, v%d" % (TT + 1, pp),
                            "v_pk_add_f32 v[%d:%d], v[%d:%d], v[%d:%d]" % (c, c + 1, c, c + 1, TT, TT + 1)]
        return ops
    FD = cfg.get("f_fd", 26)
    ev = {}
    def at(u, f): ev.setdefault(u, []).append(f)
    def rtxt(lam, mt): return "buffer_load_dwordx4 %s, v%d, %s, s%d offen offset:%d sc1" % (r4("v", rq[4 * lam + mt]), V_L16, s4(R_WS), sSF[lam], mt * 1024)
    def rmax(lam):
        rg = [rq[4 * lam + mt] + e for mt in range(MT) for e in range(4)]
        o = ["v_max3_u32 v%d, v%d, v%d, v%d" % (V_POLL, rg[0], rg[1], rg[2])]
        for k in range(3, 15, 2): o.append("v_max3_u32 v%d, v%d, v%d, v%d" % (V_POLL, V_POLL, rg[k], rg[k + 1]))
        o.append("v_max_u32 v%d, v%d, v%d" % (V_POLL, V_POLL, rg[15]))
        return o
    def rcheck(lam):
        l0 = a.newlabel("F_rt"); l1 = a.newlabel("F_ok")
        a("s_mov_b32 s%d, 0x%x" % (sSP, SPIN))
        a.label(l0)
        a("v_cmp_eq_u32 vcc, -1, v%d" % V_POLL)
        a("s_cmp_eq_u64 vcc, 0")
        a("s_cbranch_scc1 %s" % l1)
        for mt in range(MT): a(rtxt(lam, mt))
        a("s_waitcnt vmcnt(0)")
        for x in rmax(lam): a(x)
        a("s_sub_u32 s%d, s%d, 1" % (sSP, sSP))
        a("s_cbranch_scc0 %s" % l0)
        a.label(l1)
    def addplain(dst, src):
        ops = []
        for hh in range(2):
            for e2 in range(2):
                pp = src + 2 * hh + e2; c = dst[hh] + 2 * e2
                ops += ["v_lshlrev_b32 v%d, 16, v%d" % (TT, pp), "v_and_b32 v%d, 0xffff0000, v%d" % (TT + 1, pp),
                        "v_add_f32 v%d, v%d, v%d" % (c, c, TT), "v_add_f32 v%d, v%d, v%d" % (c + 1, c + 1, TT + 1)]
        return ops
    if DF:
        R0U = UT + 3 * PL + cfg.get("f_r0", -6); R1U = UT + 4 * PL + cfg.get("f_r1", -5)
        at(R0U, lambda: side.extend(("m", lambda mt=mt: a.vmem(rtxt(0, mt), ("R", 0))) for mt in range(MT)))
        at(R1U, lambda: side.__setitem__(slice(0, 0), [("m", lambda mt=mt: a.vmem(rtxt(1, mt), ("R", 1))) for mt in range(MT)]))
    else:
        at(UT + PL + FD, lambda: flag(0))
        at(UT + 2 * PL + FD, lambda: flag(1))
        if cfg.get("f_fin2", 1): at(UT + 3 * PL + FD, lambda: flag(2))
        if cfg.get("f_pe", 4): at(NU - cfg.get("f_pe", 4), lambda: poll_issue("P1"))
    UP0 = UT + 3 * PL + cfg.get("f_p0", 4)
    F2 = cfg.get("f_fin2", 1)
    if not DF and not F2: at(UP0, lambda: poll_issue("P0"))
    def chk0():
        a.wait(vm="P0"); spin(1)
        for mt in range(MT): side.append(("m", lambda mt=mt: recv(0, mt)))
    if not DF and not F2: at(UP0 + cfg.get("f_c0", 8), chk0)
    def presum():
        side.append(("s", lambda: a.wait(vm="X")))
        if XD:
            for mt in range(MT):
                for hh in range(2):
                    side.append(("v", lambda mt=mt, hh=hh: a.lds("ds_read_b64 %s, v%d offset:%d" % (r2("v", VX[mt] + 2 * hh), V_XI, mt * 1024 + hh * 32), "xr")))
            side.extend([None] * 4 + [("s", lambda: a.wait(lg="xr"))])
        for mt in range(MT): side.extend(addpk([PS(mt, 0), PS(mt, 1)], VX[mt], first=True))
    at(UT + 2 * PL + PL // 2, presum)
    first_unit = {}
    for u, (p, t) in enumerate(units): first_unit.setdefault(p, u)
    NOPS = len(ordA) + 2 * len(ordB)
    UE2 = UT + cfg.get("f_ue2", 0)
    MARG = cfg.get("f_marg", 20)
    THR2 = cfg.get("f_thr2", 63)
    def prewait2(u):
        u += gi[u][1] - 1
        p, t = units[u]
        if p not in seenA:
            flush2(ordA, ("A2", p)); seenA.add(p)
            r = a.wait(vm=("A2", p), lg=("b2", u))
        else: r = a.wait(lg=("b2", u))
        stt["waited"] = u
        return r
    def b2sal(p): G.sal.extend(x for k, x in dma2_txt(p)[3:])
    prewait2(0)
    half = None
    for u in range(NU):
        u0, C_, gn = gi[u]; kk = u - u0
        p, t = divmod(u, NT2) if u < UT else units[u]
        un = u + DB2
        if u == UOF:
            a.wait(vm="O")
            a.vmem("buffer_store_dword v%d, v%d, %s, 0 offen offset:64 sc1" % (V_ONE, V_FG, s4(R_WS)), "FO")
            if STCH & 4: selftouch(sO, True)
            side.extend(rec2.l)
        if u == cfg.get("f_uh", 2) and not stt["hok"]:
            a.wait(vm="PH"); spin(0xff00); stt["hok"] = True
            stampr("g2h")
        if u < UT and t == 1: stampr("g2p%d" % p)
        if u == UT: stampr("g2tail")
        if u > UT and (u - UT) % PL == 0: stampr("g2l%d" % ((u - UT) // PL))
        if u == UOP: poll_issue("PO")
        if u == UOC:
            a.wait(vm="PO"); spin(0xff0000 | (7 if DF else 0)); stt["ook"] = True
        for f in ev.get(u, []): f()
        if un < NU and units[un][0] > stt["ready"]:
            if half is not None:
                dma2_ops(half)[2][1](); b2sal(half); half = None
            need2(un)
        if u < UT and t == 2 and p % 2 == 1 and p > 1 and p - 2 + NSL < KS2: barrier2()
        pre_ = None; mem_ = None
        if half is not None:
            def mem_(h=half): dma2_ops(h)[2][1](); b2sal(h)
            half = None
        elif len(G.sal) <= 1:
            cand = [q for q in (ordA, ordB) if q and can2(q[0])]
            if cand:
                cand.sort(key=lambda q: q[0][1] - (cfg.get("f_bprio", 5) if q[0][0] == "B2" else 0))
                done_ = NOPS - len(ordA) - 2 * len(ordB)
                if done_ * UE2 <= u * NOPS or first_unit[cand[0][0][1]] - u <= MARG + (16 if cand[0][0][0] == "B2" else 0):
                    nxt = cand[0].pop(0)
                    if nxt[0] == "B2":
                        ops_ = dma2_ops(nxt[1])
                        pre_ = lambda o=ops_: (o[0][1](), True)[1]
                        mem_ = ops_[1][1]; half = nxt[1]
                    else:
                        mem_ = lambda n_=nxt: aload2(n_[1], n_[2])
        if not xdone and (u == cfg.get("f_ux", 9999) or (not ordA and not ordB and half is None and mem_ is None)):
            xdone = True
            if XD:
                side.append("s_mul_i32 s%d, s%d, 5120" % (t1, sW))
                for mt in range(MT):
                    side += ["s_add_u32 m0, s%d, %d" % (t1, 5 * STAGE + mt * 1024), None,
                             ("m", lambda: a.vmem("buffer_load_dwordx4 v%d, %s, s%d offen lds" % (V_XO, s4(R_X), sXO), "X")),
                             "s_add_u32 s%d, s%d, %d" % (sXO, sXO, 32768 if mt < 3 else -3 * 32768)]
            for mt in range(MT if not XD else 0):
                for hh in range(2):
                    def f(mt=mt, hh=hh):
                        a.vmem("buffer_load_dwordx2 %s, v%d, %s, s%d offen offset:%d" % (r2("v", VX[mt] + 2 * hh), V_XI, s4(R_X), sXO, hh * 32), "X")
                    side += [("m", f)] + [None] * (cfg.get("f_xsp", 1) if hh else 1)
                side.append("s_add_u32 s%d, s%d, %d" % (sXO, sXO, 32768 if mt < 3 else -3 * 32768))
        for mt in range(MT):
            m_, k_ = divmod(kk * MT + mt, C_)
            if cfg.get("f_kz", 1) and m_ % 2 == 1 and units[u0][0] > 0: k_ = C_ - 1 - k_
            mz = m_ if gn % 2 == 0 else MT - 1 - m_
            p_, t_ = units[u0 + k_]
            bf = r4("a", BR2 + ((u0 + k_) % RB2) * 4)
            af = r4("v", acc(mz, 6 + 2 * p_)) if p_ < 3 else r4("a", aslot(p_) + mz * 4)
            c = r4("v", acc2[(mz, t_)])
            a("%s %s, %s, %s, %s" % (MF, c, bf, af, "0" if p_ == 0 else c))
            rd = (lambda mt=mt: bread2(un, mt)) if (mt < 2 and un < NU) else None
            if mt == 0: G.gap(fixed=rd)
            elif mt == 1: G.gap(first=pre_, fixed=rd)
            elif mt == 2:
                if mem_:
                    assert not G.sal
                    G.gap(first=(lambda: a.throttle(THR2)), mem=mem_)
                else: G.gap()
            else:
                if kk == C_ - 1:
                    stt["issued"] = u
                    G.gap(first=(lambda: prewait2(u + 1)) if u + 1 < NU else None)
                else: G.gap()
        if u >= UT and (u - UT) % PL == PL - 1:
            lam = (u - UT) // PL
            if lam < 3:
                new_ = [None] * 5
                for mt in range(MT):
                    new_ += pack(acc2[(mt, 2 * lam)], acc2[(mt, 2 * lam + 1)])
                    if DF: new_ += ["v_min_u32 v%d, -2, v%d" % (acc2[(mt, 2 * lam)] + e, acc2[(mt, 2 * lam)] + e) for e in range(4)]
                    def f(mt=mt, lam=lam):
                        a.vmem("buffer_store_dwordx4 %s, v%d, %s, s%d offen offset:%d sc1" % (r4("v", acc2[(mt, 2 * lam)]), V_L16, s4(R_WS), sSX[lam], mt * 1024), ("S", lam))
                    new_.append(("m", f))
                side[:0] = new_
    if cfg.get("verbose"): print("G2 side left", len([x for x in side if x is not None]), file=sys.stderr)
    G.drain()
    assert not ordA and not ordB and xdone
    stampr("g2end")
    def ownadd():
        for mt in range(MT):
            for hh in range(2):
                for e2 in range(2):
                    c = PS(mt, hh) + 2 * e2; o_ = acc2[(mt, 6 + hh)] + 2 * e2
                    a("v_pk_add_f32 v[%d:%d], v[%d:%d], v[%d:%d]" % (c, c + 1, c, c + 1, o_, o_ + 1))
    if DF:
        R2D = cfg.get("f_r2d", 1)
        def rd2():
            for mt in range(MT): a.vmem(rtxt(2, mt), ("R", 2, mt))
        assert a.vm.count(("R", 0)) == 4 and a.vm.count(("R", 1)) == 4
        if R2D == 0: rd2()
        a.wait(vm=("R", 0))
        for x in rmax(0): a(x)
        rcheck(0)
        for mt in range(MT):
            for x in addpk([PS(mt, 0), PS(mt, 1)], rq[mt]): a(x)
        stampr("x1")
        if R2D == 1: rd2()
        ownadd()
        a.wait(vm=("R", 1))
        for x in rmax(1): a(x)
        rcheck(1)
        stampr("x2")
        if R2D == 2: rd2()
        for mt in range(MT):
            for x in addpk([PS(mt, 0), PS(mt, 1)], rq[4 + mt]): a(x)
        stampr("x3")
        a.wait(vm=("R", 2, 3))
        for x in rmax(2): a(x)
        rcheck(2)
        stampr("x4")
    elif F2:
        for lam in range(2):
            if ("F", lam) not in a.vm: flag(lam)
        early = "P1" in a.vm
        if not early:
            a("s_nop 7")
            ownadd()
        if ("F", 2) not in a.vm: flag(2)
        if not early: poll_issue("P1")
        stampr("x1")
        a.wait(vm="P1"); spin(1)
        for mt in range(MT): recv(0, mt)
        spin(2)
        stampr("x2")
        for mt in range(MT): recv(1, mt)
        poll_issue("P2")
        if early: ownadd()
        for mt in range(MT):
            a.wait(vm=("R", 0, mt))
            for x in addpk([PS(mt, 0), PS(mt, 1)], rq[mt]): a(x)
        a.wait(vm="P2"); spin(4)
        stampr("x3")
        for mt in range(MT): recv(2, mt)
        for mt in range(MT):
            for x in addpk([PS(mt, 0), PS(mt, 1)], rq[4 + mt]): a(x)
        stampr("x4")
    else:
        flag(2)
        poll_issue("P1")
        stampr("x1")
        for mt in range(MT):
            a.wait(vm=("R", 0, mt))
            for x in addpk([PS(mt, 0), PS(mt, 1)], rq[mt]): a(x)
        a.wait(vm="P1"); spin(2)
        stampr("x2")
        for mt in range(MT): recv(1, mt)
        poll_issue("P2")
        for mt in range(MT):
            for hh in range(2):
                for e2 in range(2):
                    c = PS(mt, hh) + 2 * e2; o_ = acc2[(mt, 6 + hh)] + 2 * e2
                    a("v_pk_add_f32 v[%d:%d], v[%d:%d], v[%d:%d]" % (c, c + 1, c, c + 1, o_, o_ + 1))
        a.wait(vm="P2"); spin(4)
        stampr("x3")
        for mt in range(MT): recv(2, mt)
        for mt in range(MT):
            for x in addpk([PS(mt, 0), PS(mt, 1)], rq[4 + mt]): a(x)
        stampr("x4")
    for mt in range(MT):
        a.wait(vm=("R", 2, mt))
        for x in addpk([PS(mt, 0), PS(mt, 1)], rq[8 + mt]): a(x)
        c0 = PS(mt, 0)
        if cfg.get("eps"):
            for hh in range(2):
                for e in range(4): a("v_mul_f32 v%d, 0x%x, v%d" % (PS(mt, hh) + e, f2u(1.0 + cfg["eps"] / 10000.0), PS(mt, hh) + e))
        for x in pack(c0, PS(mt, 1)): a(x)
        def ostore(m, reg):
            a.vmem("buffer_store_dwordx4 %s, v%d, %s, s%d offen %s" % (r4("v", reg), V_XO, s4(R_OUT), sXO, ["", "sc1", "nt"][cfg.get("f_of", 2)]), "OUT")
            if m < 3: a("s_add_u32 s%d, s%d, 32768" % (sXO, sXO))
        if CO:
            a.lds("ds_write_b64 v%d, %s offset:%d" % (V_OW, r2("v", c0), mt * 1280), ("ow", mt))
            a.lds("ds_write_b64 v%d, %s offset:%d" % (V_OW, r2("v", c0 + 2), mt * 1280 + 32), ("ow", mt))
            a.lds("ds_read_b128 %s, v%d offset:%d" % (r4("v", PS(mt, 1)), V_OR, mt * 1280), ("or", mt))
            if mt > 0:
                a.wait(lg=("or", mt - 1)); ostore(mt - 1, PS(mt - 1, 1))
            if mt == 3:
                a.wait(lg=("or", 3)); ostore(3, PS(3, 1))
        else:
            a("s_nop 1")
            a("v_permlane16_swap_b32 v%d, v%d" % (c0, c0 + 2))
            a("v_permlane16_swap_b32 v%d, v%d" % (c0 + 1, c0 + 3))
            ostore(mt, c0)
    stampr("x5")
    if ST:
        a("s_waitcnt vmcnt(0)")
        stampr("end")
        a("s_waitcnt lgkmcnt(0)")
        for i in range(8): a("v_mov_b32 v%d, s%d" % (i, STB + 2 * i))
        a("s_lshl_b32 s%d, s2, 2" % t0)
        a("s_add_u32 s%d, s%d, s%d" % (t0, t0, sW))
        a("s_lshl_b32 s%d, s%d, 5" % (t0, t0))
        a("v_mov_b32 v8, 0")
        a("s_nop 4")
        a("buffer_store_dwordx4 v[0:3], v8, %s, s%d offen" % (s4(R_WS), t0))
        a("buffer_store_dwordx4 v[4:7], v8, %s, s%d offen offset:16" % (s4(R_WS), t0))
    a.label("F_end")
    a("s_endpgm")
    kernel_desc(a, name, 256, sgpr=102, accum=256, agpr=256)
    return "; @launch kernel=%s grid=(256,1,1) block=(256,1,1) lds=163840" % name

gen.gen_f = gen_f

if __name__ == "__main__":
    cfg = dict(g1_mt=4)
    out = sys.argv[1]
    kernels = sys.argv[2].split(",")
    for kv in sys.argv[3:]:
        k, v = kv.split("="); cfg[k] = int(v, 0)
    open(out, "w").write(gen.build(cfg, kernels))
```

```python
import sys, math
from asmlib import *

NAME = "parallel_sum__sliding_block__dense_activation_relu__prompt"
S, D, DFF, H = 2048, 1024, 3584, 32
WS_XN = 0x0100000
WS_Q  = 0x0500000
WS_K  = 0x0900000
WS_V  = 0x0D00000
WS_A2 = 0x1100000
A2_BYTES = 128 * 144 * 1024
WS_XC = WS_A2 + A2_BYTES
XC_BYTES = 256 * 4 * 3 * 4096
WS_FL = WS_XC + XC_BYTES
FL_BYTES = 256 * 4 * 128
WS_LF = WS_FL + FL_BYTES
WS_END = WS_LF + 8 * 4096
QSCALE = (32 ** -0.5) * math.log2(math.e)

import struct
def f2u(f): return struct.unpack("<I", struct.pack("<f", f))[0]

class Prog(Asm):
    def __init__(self):
        super().__init__()
        self.reset()
    def reset(self):
        self.vm = []; self.vm_done = 0
        self.lg = []; self.lg_done = 0
    def vmem(self, text, tag=None):
        self(text); self.vm.append(tag)
    def lds(self, text, tag=None):
        self(text); self.lg.append(tag)
    def _need(self, q, done, tag, cap):
        idx = max(i for i, t in enumerate(q) if t == tag)
        if idx < done: return None, done
        n = len(q) - idx - 1
        n = min(n, cap)
        return n, len(q) - n
    def wait(self, vm=None, lg=None):
        parts = []
        if vm is not None:
            n, self.vm_done = self._need(self.vm, self.vm_done, vm, 63)
            if n is not None: parts.append("vmcnt(%d)" % n)
        if lg is not None:
            n, self.lg_done = self._need(self.lg, self.lg_done, lg, 15)
            if n is not None: parts.append("lgkmcnt(%d)" % n)
        if parts:
            self("s_waitcnt " + " ".join(parts)); return True
        return False
    def throttle(self, n):
        if len(self.vm) - self.vm_done > n:
            self("s_waitcnt vmcnt(%d)" % n); self.vm_done = len(self.vm) - n
            return True
        return False
    def wait_all(self, vm=True, lg=True):
        parts = []
        if vm: parts.append("vmcnt(0)"); self.vm_done = len(self.vm)
        if lg: parts.append("lgkmcnt(0)"); self.lg_done = len(self.lg)
        self("s_waitcnt " + " ".join(parts))

def r4(p, b): return "%s[%d:%d]" % (p, b, b + 3)
def r2(p, b): return "%s[%d:%d]" % (p, b, b + 1)

def srd_off(a, d, base, off, nbytes):
    a("s_add_u32 s%d, s%d, 0x%x" % (d, base, off))
    a("s_addc_u32 s%d, s%d, 0" % (d + 1, base + 1))
    a("s_and_b32 s%d, s%d, 0xffff" % (d + 1, d + 1))
    a("s_mov_b32 s%d, 0x%x" % (d + 2, nbytes))
    a("s_mov_b32 s%d, 0x00020000" % (d + 3))

def stamp(a, cfg, idx, sreg):
    if cfg.get("stamp"):
        a("s_memtime s[%d:%d]" % (sreg, sreg + 1))

def ln_math(a):
    for i in range(16):
        a("v_lshlrev_b32 v%d, 16, v%d" % (24 + 2 * i, 8 + i))
        a("v_and_b32 v%d, 0xffff0000, v%d" % (25 + 2 * i, 8 + i))
    a("v_add_f32 v56, v24, v25")
    a("v_add_f32 v57, v26, v27")
    for i in range(4, 32, 2):
        a("v_add_f32 v56, v56, v%d" % (24 + i))
        a("v_add_f32 v57, v57, v%d" % (25 + i))
    a("v_add_f32 v56, v56, v57")
    def xlane_sum(r, t):
        a("s_nop 1")
        a("v_add_f32_dpp v%d, v%d, v%d row_ror:8 row_mask:0xf bank_mask:0xf" % (r, r, r))
        a("v_mov_b32 v%d, v%d" % (t, r))
        a("s_nop 1")
        a("v_permlane16_swap_b32 v%d, v%d" % (r, t))
        a("s_nop 1")
        a("v_add_f32 v%d, v%d, v%d" % (r, r, t))
        a("v_mov_b32 v%d, v%d" % (t, r))
        a("s_nop 1")
        a("v_permlane32_swap_b32 v%d, v%d" % (r, t))
        a("s_nop 1")
        a("v_add_f32 v%d, v%d, v%d" % (r, r, t))
    xlane_sum(56, 57)
    a("v_mul_f32 v56, 0x%x, v56" % f2u(1.0 / 256))
    a("v_mov_b32 v57, 0")
    a("v_mov_b32 v58, 0")
    for i in range(0, 32, 2):
        a("v_sub_f32 v59, v%d, v56" % (24 + i))
        a("v_sub_f32 v61, v%d, v56" % (25 + i))
        a("v_fmac_f32 v57, v59, v59")
        a("v_fmac_f32 v58, v61, v61")
    a("v_add_f32 v57, v57, v58")
    xlane_sum(57, 58)
    a("ds_write_b64 v7, v[56:57]")
    a("s_waitcnt lgkmcnt(0)")
    a("s_barrier")
    a("ds_read_b64 v[62:63], v60")
    a("ds_read_b64 v[64:65], v60 offset:64")
    a("ds_read_b64 v[66:67], v60 offset:128")
    a("ds_read_b64 v[68:69], v60 offset:192")
    a("s_waitcnt lgkmcnt(0)")
    a("v_add_f32 v56, v62, v64")
    a("v_add_f32 v57, v66, v68")
    a("v_add_f32 v56, v56, v57")
    a("v_mul_f32 v56, 0.25, v56") if False else a("v_mul_f32 v56, 0x3e800000, v56")
    a("v_add_f32 v57, v63, v65")
    a("v_add_f32 v58, v67, v69")
    a("v_add_f32 v57, v57, v58")
    a("v_mov_b32 v58, 0")
    for r in (62, 64, 66, 68):
        a("v_sub_f32 v59, v%d, v56" % r)
        a("v_fmac_f32 v58, v59, v59")
    a("v_mov_b32 v59, 0x43800000")
    a("v_fmac_f32 v57, v58, v59")
    a("v_mul_f32 v57, 0x%x, v57" % f2u(1.0 / 1024))
    a("v_cvt_pk_bf16_f32 v58, v56, v57")
    a("v_lshlrev_b32 v56, 16, v58")
    a("v_and_b32 v57, 0xffff0000, v58")
    a("v_add_f32 v57, 0x%x, v57" % f2u(1e-5))
    a("v_cvt_pk_bf16_f32 v57, v57, v57")
    a("v_and_b32 v57, 0xffff0000, v57")
    a("v_sqrt_f32 v57, v57")
    a("s_nop 0")
    a("v_cvt_pk_bf16_f32 v57, v57, v57")
    a("v_and_b32 v57, 0xffff0000, v57")
    a("v_rcp_f32 v57, v57")
    for i in range(0, 32, 2):
        a("v_sub_f32 v%d, v%d, v56" % (24 + i, 24 + i))
        a("v_sub_f32 v%d, v%d, v56" % (25 + i, 25 + i))
        a("v_cvt_pk_bf16_f32 v58, v%d, v%d" % (24 + i, 25 + i))
        a("v_lshlrev_b32 v59, 16, v58")
        a("v_and_b32 v58, 0xffff0000, v58")
        a("v_mul_f32 v59, v59, v57")
        a("v_mul_f32 v58, v58, v57")
        a("v_cvt_pk_bf16_f32 v%d, v59, v58" % (8 + i // 2))

def gen_ln(a, cfg):
    MT = cfg["g1_mt"]
    name = "ln_kernel"
    kernel_begin(a, name)
    a.reset()
    for r in (60, 62, 64, 66): stamp(a, cfg, 0, r)
    if cfg.get("stamp"): a("s_memrealtime s[70:71]")
    a("s_cmp_ge_u32 s2, 256")
    a("s_cbranch_scc1 LN_end")
    a("s_load_dwordx2 s[4:5], s[0:1], 0")
    a("s_load_dwordx2 s[6:7], s[0:1], 64")
    a("s_load_dwordx2 s[20:21], s[0:1], 8")
    a("s_load_dwordx2 s[22:23], s[0:1], 32")
    a("v_and_b32 v1, 63, v0")
    a("v_lshrrev_b32 v2, 6, v0")
    a("v_and_b32 v3, 7, v1")
    a("v_lshrrev_b32 v4, 3, v1")
    a("s_lshl_b32 s3, s2, 14")
    a("v_lshlrev_b32 v5, 11, v3")
    a("v_lshl_add_u32 v5, v2, 9, v5")
    a("v_lshl_add_u32 v5, v4, 4, v5")
    a("s_waitcnt lgkmcnt(0)")
    srd(a, 8, 4, S * D * 2)
    srd_off(a, 12, 6, WS_XN, S * D * 2)
    for i in range(4):
        a("buffer_load_dwordx4 %s, v5, s[8:11], s3 offen offset:%d" % (r4("v", 8 + 4 * i), i * 128))
    srd_off(a, 36, 6, WS_FL, FL_BYTES)
    a("s_lshl_b32 s16, s2, 9")
    a("v_lshlrev_b32 v70, 2, v0")
    a("v_lshrrev_b32 v71, 7, v0")
    a("v_lshl_add_u32 v70, v71, 30, v70")
    a("v_mov_b32 v71, 0")
    a("buffer_store_dword v71, v70, s[36:39], s16 offen")
    CPF = cfg.get("ln_cpf", 1)
    if CPF:
        a("s_getpc_b64 s[40:41]")
        a.label("LN_pc")
        a("s_mov_b32 s42, CODE_END - LN_pc")
        a("s_and_b32 s41, s41, 0xffff")
        a("s_mov_b32 s43, 0x00020000")
        a("s_lshr_b32 s16, s2, 3")
        a("s_lshl_b32 s16, s16, 12")
        a("v_lshlrev_b32 v70, 7, v0")
        a("v_lshrrev_b32 v71, 5, v0")
        a("v_lshl_add_u32 v70, v71, 24, v70")
        a("buffer_load_dword v76, v70, s[40:43], s16 offen")
    LPF = cfg.get("ln_pf", 2)
    if LPF:
        srd(a, 24, 20, D * 3 * D * 2)
        srd(a, 28, 22, D * DFF * 2)
        a("s_lshr_b32 s16, s2, 3")
        a("s_mul_i32 s16, s16, %d" % (4 * LPF))
        a("s_bfe_u32 s17, s2, 0x20001")
        a("s_lshl_b32 s18, s17, 9")
        a("s_mul_i32 s19, s17, 1792")
        a("v_lshrrev_b32 v70, 4, v1")
        a("v_cmp_le_u32 s[32:33], %d, v70" % LPF)
        a("v_mad_u32_u24 v70, v2, %d, v70" % LPF)
        a("v_add_u32 v70, s16, v70")
        a("v_and_b32 v71, 15, v1")
        a("v_cmp_le_u32 vcc, 12, v71")
        a("s_or_b64 s[34:35], vcc, s[32:33]")
        a("v_cmp_le_u32 vcc, 14, v71")
        a("s_or_b64 s[32:33], vcc, s[32:33]")
        a("v_mul_u32_u24 v72, 7168, v70")
        a("v_lshl_add_u32 v72, v71, 7, v72")
        a("v_mul_u32_u24 v70, 6144, v70")
        a("v_lshrrev_b32 v73, 2, v71")
        a("v_lshl_add_u32 v70, v73, 11, v70")
        a("v_and_b32 v73, 3, v71")
        a("v_lshl_add_u32 v70, v73, 7, v70")
        a("v_bfrev_b32 v73, 1")
        a("v_cndmask_b32 v70, v70, v73, s[34:35]")
        a("v_cndmask_b32 v72, v72, v73, s[32:33]")
        a("buffer_load_dword v74, v70, s[24:27], s18 offen")
        a("buffer_load_dword v75, v72, s[28:31], s19 offen")
    LW2 = cfg.get("ln_w2", 0)
    if LW2:
        a("s_load_dwordx2 s[44:45], s[0:1], 40")
        a("s_load_dwordx2 s[48:49], s[0:1], 16")
        a("v_lshlrev_b32 v77, 7, v0")
        a("v_cmp_le_u32 vcc, 224, v0")
        a("v_bfrev_b32 v73, 1")
        a("s_mul_i32 s52, s2, %d" % (224 * 128))
        a("v_cndmask_b32 v78, v77, v73, vcc")
        a("v_cmp_le_u32 vcc, 64, v0")
        a("s_lshl_b32 s53, s2, 13")
        a("s_waitcnt lgkmcnt(0)")
        a("v_cndmask_b32 v77, v77, v73, vcc")
        srd(a, 44, 44, DFF * D * 2)
        srd(a, 48, 48, D * D * 2)
        a("buffer_load_dword v79, v78, s[44:47], s52 offen")
        a("buffer_load_dword v79, v77, s[48:51], s53 offen")
    lmt = int(math.log2(MT))
    a("s_lshr_b32 s16, s2, 1")
    a("s_lshr_b32 s17, s16, %d" % lmt)
    a("s_lshl_b32 s17, s17, %d" % (15 + lmt))
    a("s_and_b32 s18, s16, %d" % (MT - 1))
    a("s_lshl_b32 s18, s18, 10")
    a("s_add_u32 s17, s17, s18")
    a("s_and_b32 s18, s2, 1")
    a("s_lshl_b32 s18, s18, 7")
    a("s_add_u32 s17, s17, s18")
    a("v_lshrrev_b32 v6, 2, v4")
    a("v_lshl_add_u32 v6, v2, 3, v6")
    a("v_lshlrev_b32 v6, %d, v6" % (10 + lmt))
    a("v_and_b32 v7, 3, v4")
    a("v_lshl_add_u32 v6, v7, 8, v6")
    a("v_lshl_add_u32 v6, v3, 4, v6")
    a("v_lshl_add_u32 v7, v2, 3, v3")
    a("v_lshlrev_b32 v7, 3, v7")
    a("v_lshlrev_b32 v60, 3, v3")
    a("s_waitcnt vmcnt(%d)" % (1 + (2 if LPF else 0) + (1 if CPF else 0) + (2 if LW2 else 0)))
    ln_math(a)
    for i in range(4):
        a("buffer_store_dwordx4 %s, v6, s[12:15], s17 offen" % r4("v", 8 + 4 * i))
        if i < 3: a("s_add_u32 s17, s17, %d" % (2 * MT * 1024))
    if cfg.get("stamp"):
        srd_off(a, 12, 6, 0, WS_END)
        a("v_readfirstlane_b32 s24, v2")
    stamp_out(a, cfg, 4, 60, 24, 12, 0x70000, 4)
    a.label("LN_end")
    a("s_endpgm")
    kernel_desc(a, name, 80, sgpr=80)
    return "; @launch kernel=%s grid=(256,1,1) block=(256,1,1) lds=256" % name

def gen_g1(a, cfg):
    name = "g1_kernel"
    NW, MT, NT = 4, 4, 13
    assert cfg["g1_mt"] == MT
    NS = cfg.get("g1_stages", 5)
    LA = cfg.get("g1_la", 6)
    RA = LA + 1
    DB = cfg.get("g1_db", 3)
    RB = DB + 2
    REG = 7168; STAGE = 4 * REG
    KS = 32
    ACC = 0
    def acc(mt, t): return ACC + (t * MT + mt) * 4
    V_L16 = 208; V_QKV = 209; V_W1 = 210; V_LEFT = 211
    V_RD = 212
    V_T = 224
    A_PD = 255
    AR = 0; BR = RA * 16
    assert BR + RB * 4 <= 256
    kernel_begin(a, name)
    a.reset()
    stamp(a, cfg, 0, 60)
    if cfg.get("stamp"): a("s_memrealtime s[70:71]")
    a("s_cmp_ge_u32 s2, 256")
    a("s_cbranch_scc1 G1_end")
    a("s_load_dwordx2 s[4:5], s[0:1], 8")
    a("s_load_dwordx2 s[6:7], s[0:1], 32")
    a("s_load_dwordx2 s[8:9], s[0:1], 64")
    a("s_load_dwordx2 s[52:53], s[0:1], 40")
    a("s_load_dwordx2 s[54:55], s[0:1], 16")
    T = V_T
    a("v_and_b32 v%d, 63, v0" % T)
    a("v_lshrrev_b32 v%d, 6, v0" % (T + 1))
    a("v_lshlrev_b32 v%d, 4, v%d" % (V_L16, T))
    a("v_readfirstlane_b32 s24, v%d" % (T + 1))
    a("s_and_b32 s25, s2, 1")
    a("s_lshl_b32 s25, s25, 2")
    a("s_bfe_u32 s26, s2, 0x20003")
    a("s_add_u32 s25, s25, s26")
    a("s_bfe_u32 s26, s2, 0x20001")
    a("s_lshl_b32 s26, s26, 3")
    a("s_lshr_b32 s27, s2, 5")
    a("s_add_u32 s26, s26, s27")
    a("s_and_b32 s27, s26, 1")
    a("v_lshrrev_b32 v%d, 2, v%d" % (T + 2, T))
    a("v_lshl_add_u32 v%d, v%d, 4, v%d" % (T + 2, T + 1, T + 2))
    a("v_lshrrev_b32 v%d, 4, v%d" % (T + 3, T))
    a("v_and_b32 v%d, 2, v%d" % (T + 3, T + 3))
    a("v_and_b32 v%d, 3, v%d" % (T + 4, T))
    a("v_xor_b32 v%d, v%d, v%d" % (T + 3, T + 3, T + 4))
    a("v_lshlrev_b32 v%d, 4, v%d" % (T + 3, T + 3))
    a("v_mul_u32_u24 v%d, 6144, v%d" % (V_QKV, T + 2))
    a("v_add_u32 v%d, v%d, v%d" % (V_QKV, V_QKV, T + 3))
    a("v_mul_u32_u24 v%d, 7168, v%d" % (V_W1, T + 2))
    a("v_add_u32 v%d, v%d, v%d" % (V_W1, V_W1, T + 3))
    a("v_bfe_u32 v%d, v%d, 3, 1" % (T + 2, T))
    a("v_lshlrev_b32 v%d, 3, v%d" % (T + 2, T + 2))
    a("v_bfe_u32 v%d, v%d, 4, 1" % (T + 3, T))
    a("v_lshl_add_u32 v%d, v%d, 2, v%d" % (T + 2, T + 3, T + 2))
    a("v_bfe_u32 v%d, v%d, 1, 2" % (T + 3, T))
    a("v_add_u32 v%d, v%d, v%d" % (T + 2, T + 2, T + 3))
    a("v_lshl_add_u32 v%d, v%d, 4, v%d" % (T + 2, T + 1, T + 2))
    a("v_mul_u32_u24 v%d, 7168, v%d" % (V_LEFT, T + 2))
    a("v_and_b32 v%d, 1, v%d" % (T + 3, T))
    a("v_lshl_add_u32 v%d, v%d, 4, v%d" % (V_LEFT, T + 3, V_LEFT))
    a("v_lshrrev_b32 v%d, 5, v%d" % (T + 3, T))
    a("v_lshl_add_u32 v%d, v%d, 30, v%d" % (V_LEFT, T + 3, V_LEFT))
    a("s_lshl_b32 s30, s26, 6")
    a("s_add_u32 s31, s30, 4096")
    a("s_mul_i32 s33, s26, 224")
    a("s_lshl_b32 s28, s27, 5")
    a("s_add_u32 s32, s33, s28")
    a("s_xor_b32 s28, s27, 1")
    a("s_mul_i32 s28, s28, 192")
    a("s_add_u32 s33, s33, s28")
    a("s_mul_i32 s34, s24, %d" % REG)
    a("s_lshl_b32 s35, s25, 2")
    a("s_add_u32 s35, s35, s24")
    a("s_lshl_b32 s35, s35, 17")
    a("s_waitcnt lgkmcnt(0)")
    srd(a, 12, 4, D * 3 * D * 2)
    srd(a, 16, 6, D * DFF * 2)
    srd_off(a, 20, 8, WS_XN, S * D * 2)
    PF = cfg.get("g1_pf", 1)
    ST0 = cfg.get("g1_pfst", 4)
    V_P0, V_P1, V_P2 = 221, 222, 223
    if PF:
        srd(a, 44, 52, DFF * D * 2)
        srd(a, 48, 54, D * D * 2)
        a("s_bfe_u32 s56, s2, 0x30003")
        a("s_lshr_b32 s57, s2, 6")
        a("s_lshl_b32 s57, s57, 3")
        a("s_and_b32 s58, s2, 7")
        a("s_add_u32 s57, s57, s58")
        a("s_lshl_b32 s57, s57, 2")
        a("s_add_u32 s57, s57, s24")
        a("v_lshlrev_b32 v%d, 7, v%d" % (T + 5, T))
        a("v_bfrev_b32 v%d, 1" % (T + 6))
        a("s_mul_i32 s58, s57, 3072")
        a("v_add_u32 v%d, s58, v%d" % (V_P0, T + 5))
        a("v_cmp_le_u32 vcc, 24, v%d" % T)
        a("s_mul_i32 s58, s57, 3584")
        a("v_add_u32 v%d, s58, v%d" % (V_P1, T + 5))
        a("v_cndmask_b32 v%d, v%d, v%d, vcc" % (V_P0, V_P0, T + 6))
        a("v_cmp_le_u32 vcc, 28, v%d" % T)
        a("s_lshl_b32 s58, s57, 13")
        a("v_add_u32 v%d, s58, v%d" % (V_P2, T + 5))
        a("v_cndmask_b32 v%d, v%d, v%d, vcc" % (V_P1, V_P1, T + 6))
    NSLOT1 = 16 - ST0
    def touch(n):
        lab = a.newlabel("G1_pf")
        a("s_cmp_lg_u32 s56, %d" % (n & 7))
        a("s_cbranch_scc1 %s" % lab)
        if n < NSLOT1:
            a("s_mov_b32 s58, %d" % ((ST0 + n) * 64 * 6144))
            a("s_mov_b32 s59, %d" % ((ST0 + n) * 64 * 7168))
            a("buffer_load_dword a%d, v%d, s[12:15], s58 offen" % (A_PD, V_P0))
            a("buffer_load_dword a%d, v%d, s[16:19], s59 offen" % (A_PD - 1, V_P1))
        else:
            m = n - NSLOT1
            a("s_mov_b32 s58, %d" % ((m if m < 7 else m - 7) << 20))
            a("buffer_load_dword a%d, v%d, s[%d:%d], s58 offen" % ((A_PD, V_P2) + ((44, 47) if m < 7 else (48, 51))))
        a.label(lab)

    def dma_ops(g):
        slot = g % NS
        ops = []
        def one(p, vreg, srdb, soff, imm):
            ops.append((["s_add_u32 m0, s34, %d" % (slot * STAGE + p * 1024 - imm + (1 << 32 if slot * STAGE + p * 1024 - imm < 0 else 0))],
                        "buffer_load_dwordx4 v%d, s[%d:%d], s%d offen offset:%d lds" % (vreg, srdb, srdb + 3, soff, imm)))
        one(0, V_QKV, 12, 30, 0)
        one(2, V_QKV, 12, 30, 2048)
        one(1, V_QKV, 12, 31, 0)
        one(3, V_W1, 16, 32, 0)
        one(4, V_W1, 16, 32, 64)
        one(5, V_W1, 16, 32, 128)
        one(6, V_LEFT, 16, 33, 0)
        post = ["s_add_u32 s30, s30, %d" % (64 * 6144), "s_add_u32 s31, s31, %d" % (64 * 6144),
                "s_add_u32 s32, s32, %d" % (64 * 7168), "s_add_u32 s33, s33, %d" % (64 * 7168)]
        return ops, post
    PAIRPOS = [0, 2, 1, 3, 4, 5]
    def a_load(s, mt):
        a.vmem("buffer_load_dwordx4 %s, v%d, s[20:23], s35 offen offset:%d" % (r4("a", AR + (s % RA) * 16 + mt * 4), V_L16, mt * 1024), ("A", s))
        if mt == MT - 1: a("s_add_u32 s35, s35, 4096")
    def emit_dma(g, k):
        ops, post = dma_ops(g)
        pre, txt = ops[k]
        for x in pre: a(x)
        a("s_nop 0")
        a.vmem(txt, ("B", g))
        if k == 6:
            for x in post: a(x)
    pend = []
    nA = 0
    for g in range(NS - 1):
        for k in range(7): pend.append(("B", g, k))
        for _ in range(2):
            if nA < LA:
                for mt in range(MT): pend.append(("A", nA, mt))
                nA += 1
    while nA < LA:
        for mt in range(MT): pend.append(("A", nA, mt))
        nA += 1
    PRO = cfg.get("g1_pro", 15)
    for _ in range(PRO):
        op = pend.pop(0)
        if op[0] == "A": a_load(op[1], op[2])
        else: emit_dma(op[1], op[2])
    a("v_lshrrev_b32 v%d, 5, v%d" % (T + 2, T))
    a("v_mul_u32_u24 v%d, %d, v%d" % (T + 2, REG, T + 2))
    a("v_and_b32 v%d, 3, v%d" % (T + 3, T))
    a("v_lshl_add_u32 v%d, v%d, 3, v%d" % (T + 2, T + 3, T + 2))
    a("v_bfe_u32 v%d, v%d, 2, 2" % (T + 3, T))
    a("v_bfe_u32 v%d, v%d, 4, 1" % (T + 4, T))
    a("v_lshl_add_u32 v%d, v%d, 6, v%d" % (V_RD, T + 3, T + 2))
    a("v_lshl_add_u32 v%d, v%d, 9, v%d" % (V_RD, T + 4, V_RD))
    a("v_lshl_add_u32 v%d, v%d, 5, v%d" % (V_RD, T + 4, V_RD))
    a("v_xor_b32 v%d, 32, v%d" % (V_RD + 1, V_RD))
    a("v_lshl_add_u32 v%d, v%d, 5, v%d" % (V_RD + 2, T + 3, T + 2))
    a("v_lshl_add_u32 v%d, v%d, 7, v%d" % (V_RD + 2, T + 4, V_RD + 2))
    for st in (1, 2):
        for x in range(3):
            a("v_add_u32 v%d, %d, v%d" % (V_RD + 3 * st + x, st * 2 * STAGE, V_RD + x))
    stamp(a, cfg, 1, 62)

    def b_read(u, j2):
        s, t = divmod(u, NT)
        g = s // 2; slot = g % NS
        st = slot // 2
        off = (slot % 2) * STAGE + (s % 2) * 2 * REG + j2 * 256
        if t < 12:
            off += PAIRPOS[t // 2] * 1024; vr = V_RD + 3 * st + (t % 2)
        else:
            off += 6144; vr = V_RD + 3 * st + 2
        a.lds("ds_read_b64_tr_b16 %s, v%d offset:%d" % (r2("a", BR + (u % RB) * 4 + j2 * 2), vr, off), ("b", u))
    def barrier_for(g):
        a.wait(vm=("B", g))
        a("s_barrier")
    NU = KS * NT
    barrier_for(0)
    stamp(a, cfg, 2, 64)
    for u in range(DB):
        b_read(u, 0); b_read(u, 1)
    for u in range(NU):
        s, t = divmod(u, NT)
        if t == 0 and s + LA < KS:
            for mt in range(MT): pend.append(("A", s + LA, mt))
        un = u + DB
        if un < NU and un % (2 * NT) == 0:
            g = un // (2 * NT)
            barrier_for(g)
            if g + NS - 2 < KS // 2:
                for k in range(7): pend.append(("B", g + NS - 2, k))
        if PF and t == 5 and s < NSLOT1 + 9: touch(s)
        a.wait(vm=("A", s) if t == 0 else None, lg=("b", u))
        bf = r4("a", BR + (u % RB) * 4)
        nxt = pend.pop(0) if (pend and (u % 2 == 0 or len(pend) > 6)) else None
        for mt in range(MT):
            mz = mt if t % 2 == 0 else MT - 1 - mt
            af = r4("a", AR + (s % RA) * 16 + mz * 4)
            c = r4("v", acc(mz, t))
            src = "0" if s == 0 else c
            if t in (4, 5): a("v_mfma_f32_16x16x32_bf16 %s, %s, %s, %s" % (c, af, bf, src))
            else:           a("v_mfma_f32_16x16x32_bf16 %s, %s, %s, %s" % (c, bf, af, src))
            if mt < 2 and un < NU: b_read(un, mt)
            if mt == 2 and nxt and nxt[0] == "B":
                ops, post = dma_ops(nxt[1])
                for x in ops[nxt[2]][0]: a(x)
            if mt == 3 and nxt:
                if nxt[0] == "A": a_load(nxt[1], nxt[2])
                else:
                    ops, post = dma_ops(nxt[1])
                    a.vmem(ops[nxt[2]][1], ("B", nxt[1]))
                    if nxt[2] == 6:
                        for x in post: a(x)
    assert not pend
    stamp(a, cfg, 3, 66)
    srd_off(a, 12, 8, 0, WS_END)
    a("s_lshl_b32 s36, s26, 7")
    a("s_lshl_b32 s37, s25, 4")
    a("s_add_u32 s36, s36, s37")
    a("s_lshl_b32 s37, s24, 2")
    a("s_add_u32 s36, s36, s37")
    a("s_lshl_b32 s36, s36, 10")
    a("s_add_u32 s37, s36, 0x%x" % WS_K)
    a("s_add_u32 s38, s36, 0x%x" % WS_V)
    a("s_add_u32 s36, s36, 0x%x" % WS_Q)
    a("s_lshl_b32 s39, s25, 2")
    a("s_add_u32 s39, s39, s24")
    a("s_mul_i32 s39, s39, %d" % (144 * 4096))
    a("s_add_u32 s39, s39, 0x%x" % WS_A2)
    a("s_mul_i32 s40, s26, 7")
    a("s_add_u32 s41, s40, s27")
    a("s_lshl_b32 s41, s41, 11")
    a("s_add_u32 s41, s41, s39")
    a("s_lshr_b32 s40, s26, 3")
    a("s_lshl_b32 s40, s40, 15")
    a("s_add_u32 s41, s41, s40")
    a("s_add_u32 s42, s41, 4096")
    a("s_add_u32 s43, s41, 8192")
    a("s_mul_i32 s44, s27, %d" % (-4096 + 8 - 3 * 4096))
    a("s_add_u32 s44, s44, %d" % (3 * 4096))
    a("s_add_u32 s44, s44, s41")
    a("s_mov_b32 s47, 0x%x" % f2u(QSCALE))
    a("s_nop 7")
    tmp = [V_T + 4 * i for i in range(8)]
    ti = [0]
    def pack_store(src0, src1, soff, imm, relu=False, scale=False):
        tr = tmp[ti[0] % 8]; ti[0] += 1
        for hh, sr in enumerate((src0, src1)):
            if sr is None: continue
            if scale:
                for e in range(4): a("v_mul_f32 v%d, s47, v%d" % (sr + e, sr + e))
            a("v_cvt_pk_bf16_f32 v%d, v%d, v%d" % (tr + 2 * hh, sr, sr + 1))
            a("v_cvt_pk_bf16_f32 v%d, v%d, v%d" % (tr + 2 * hh + 1, sr + 2, sr + 3))
            if relu:
                a("v_pk_max_i16 v%d, v%d, 0" % (tr + 2 * hh, tr + 2 * hh))
                a("v_pk_max_i16 v%d, v%d, 0" % (tr + 2 * hh + 1, tr + 2 * hh + 1))
        if src1 is None:
            a.vmem("buffer_store_dwordx2 %s, v%d, s[12:15], s%d offen offset:%d" % (r2("v", tr), V_L16, soff, imm))
        else:
            a.vmem("buffer_store_dwordx4 %s, v%d, s[12:15], s%d offen offset:%d" % (r4("v", tr), V_L16, soff, imm))
    for mt in range(MT): pack_store(acc(mt, 0), acc(mt, 1), 36, mt * 1024, scale=True)
    for mt in range(MT): pack_store(acc(mt, 2), acc(mt, 3), 37, mt * 1024)
    for b in range(2):
        for dt in range(2): pack_store(acc(2 * b, 4 + dt), acc(2 * b + 1, 4 + dt), 38, (b * 2 + dt) * 1024)
    for p in range(3):
        for mt in range(MT):
            pack_store(acc(mt, 6 + 2 * p), acc(mt, 7 + 2 * p), 41 + p, mt * 1024, relu=True)
    for mt in range(MT):
        pack_store(acc(mt, 12), None, 44, mt * 1024, relu=True)
    if cfg.get("stamp"):
        a("s_waitcnt vmcnt(0)")
        a("s_memtime s[68:69]")
        a("s_memrealtime s[72:73]")
        a("s_waitcnt lgkmcnt(0)")
        for i in range(4): a("s_sub_u32 s%d, s%d, s60" % (62 + 2 * i, 62 + 2 * i))
        for i in range(4): a("v_mov_b32 v%d, s%d" % (i, 62 + 2 * i))
        a("v_mov_b32 v4, s70")
        a("v_mov_b32 v5, s72")
        a("s_lshl_b32 s50, s2, 2")
        a("s_add_u32 s50, s50, s24")
        a("s_lshl_b32 s50, s50, 5")
        a("v_mov_b32 v8, 0")
        a("s_nop 4")
        a("buffer_store_dwordx4 v[0:3], v8, s[12:15], s50 offen")
        a("buffer_store_dwordx4 v[4:7], v8, s[12:15], s50 offen offset:16")
    a.label("G1_end")
    a("s_endpgm")
    kernel_desc(a, name, 256, sgpr=80, accum=256, agpr=256)
    return "; @launch kernel=%s grid=(256,1,1) block=(256,1,1) lds=%d" % (name, NS * STAGE)


def stamp_out(a, cfg, nst, s0, swave, srdb, wsoff, nw):
    if not cfg.get("stamp"): return
    a("s_waitcnt vmcnt(0)")
    a("s_memtime s[68:69]")
    a("s_memrealtime s[72:73]")
    a("s_waitcnt lgkmcnt(0)")
    for i in range(4): a("s_sub_u32 s%d, s%d, s60" % (62 + 2 * i, 62 + 2 * i))
    for i in range(4): a("v_mov_b32 v%d, s%d" % (i, 62 + 2 * i))
    a("v_mov_b32 v4, s70")
    a("v_mov_b32 v5, s72")
    a("s_mul_i32 s50, s2, %d" % nw)
    a("s_add_u32 s50, s50, s%d" % swave)
    a("s_lshl_b32 s50, s50, 5")
    a("s_add_u32 s50, s50, 0x%x" % wsoff)
    a("v_mov_b32 v8, 0")
    a("s_nop 4")
    a("buffer_store_dwordx4 v[0:3], v8, s[%d:%d], s50 offen" % (srdb, srdb + 3))
    a("buffer_store_dwordx4 v[4:7], v8, s[%d:%d], s50 offen offset:16" % (srdb, srdb + 3))

def gen_at(a, cfg):
    name = "at_kernel"
    kernel_begin(a, name)
    a.reset()
    stamp(a, cfg, 0, 60)
    if cfg.get("stamp"): a("s_memrealtime s[70:71]")
    a("s_cmp_ge_u32 s2, 256")
    a("s_cbranch_scc1 AT_end")
    a("s_load_dwordx2 s[8:9], s[0:1], 64")
    def sreg(qa, kt): return (qa * 18 + kt) * 4
    VQ = 144; VO = 152; VS = 168; VONE = 176
    V_L16 = 180; T = 181; VM = 182; VNEG = 183
    a("v_and_b32 v%d, 63, v0" % T)
    a("v_lshrrev_b32 v%d, 6, v0" % VM)
    a("v_lshlrev_b32 v%d, 4, v%d" % (V_L16, T))
    a("v_readfirstlane_b32 s24, v%d" % VM)
    a("s_and_b32 s25, s2, 1")
    a("s_lshl_b32 s25, s25, 2")
    a("s_bfe_u32 s26, s2, 0x20003")
    a("s_add_u32 s25, s25, s26")
    a("s_bfe_u32 s26, s2, 0x20001")
    a("s_lshl_b32 s26, s26, 3")
    a("s_lshr_b32 s27, s2, 5")
    a("s_add_u32 s26, s26, s27")
    a("s_lshl_b32 s27, s26, 17")
    a("s_lshl_b32 s28, s25, 14")
    a("s_lshl_b32 s29, s24, 12")
    a("s_add_u32 s28, s28, s29")
    a("s_sub_u32 s28, s28, 16384")
    a("v_add_u32 v%d, s28, v%d" % (VM, V_L16))
    a("s_lshl_b32 s30, s25, 14")
    a("s_lshl_b32 s31, s24, 11")
    a("s_add_u32 s30, s30, s31")
    a("s_waitcnt lgkmcnt(0)")
    a("s_add_u32 s4, s8, s27")
    a("s_addc_u32 s5, s9, 0")
    srd_off(a, 12, 4, WS_K, 131072)
    srd_off(a, 16, 4, WS_V, 131072)
    srd_off(a, 20, 4, WS_Q, 131072)
    a("s_mov_b32 m0, s29")
    a("s_nop 0")
    for i in range(4): a("buffer_load_dwordx4 v%d, s[12:15], 0 offen offset:%d lds" % (VM, i * 1024))
    for qa in range(2): a("buffer_load_dwordx4 %s, v%d, s[20:23], s30 offen offset:%d" % (r4("v", VQ + 4 * qa), V_L16, qa * 1024))
    a("s_add_u32 m0, s29, 32768")
    a("s_nop 0")
    for i in range(4): a("buffer_load_dwordx4 v%d, s[16:19], 0 offen offset:%d lds" % (VM, i * 1024))
    a("v_lshrrev_b32 v0, 4, v%d" % T)
    a("v_lshlrev_b32 v0, 2, v0")
    a("v_and_b32 v1, 15, v%d" % T)
    for e in range(4):
        a("v_add_u32 v2, %d, v0" % e)
        a("v_cmp_le_u32 s[%d:%d], v2, v1" % (40 + 2 * e, 41 + 2 * e))
    a("v_mov_b32 v%d, 0x%x" % (VNEG, f2u(-1e30)))
    for e in range(4): a("v_mov_b32 v%d, 0x3f803f80" % (VONE + e))
    a("v_add_u32 v%d, s31, v%d" % (T, V_L16))
    a("s_sub_u32 s32, 8, s24")
    a("s_cmp_eq_u32 s25, 0")
    a("s_cselect_b32 s32, s32, 0")
    a("s_cbranch_scc0 AT_nofill")
    for r in range(144): a("v_mov_b32 v%d, v%d" % (r, VNEG))
    a.label("AT_nofill")
    a("s_lshl_b32 s33, s25, 2")
    a("s_lshr_b32 s34, s24, 1")
    a("s_add_u32 s33, s33, s34")
    a("s_mul_i32 s33, s33, 144")
    a("s_lshr_b32 s34, s26, 3")
    a("s_mul_i32 s34, s34, 28")
    a("s_add_u32 s33, s33, s34")
    a("s_add_u32 s33, s33, s26")
    a("s_add_u32 s33, s33, 28")
    a("s_lshl_b32 s33, s33, 12")
    a("s_and_b32 s34, s24, 1")
    a("s_lshl_b32 s34, s34, 11")
    a("s_add_u32 s33, s33, s34")
    a("s_add_u32 s33, s33, 0x%x" % WS_A2)
    a("s_waitcnt vmcnt(4)")
    a("s_barrier")
    stamp(a, cfg, 1, 62)
    for kt in range(18): a("ds_read_b128 %s, v%d offset:%d" % (r4("a", 4 * kt), T, kt * 1024))
    srd_off(a, 12, 8, 0, WS_END)
    a("s_waitcnt lgkmcnt(0)")
    for b in range(9):
        if b < 8:
            a("s_cmp_gt_u32 s32, %d" % b)
            a("s_cbranch_scc1 AT_skip%d" % b)
        for kt in (2 * b, 2 * b + 1):
            for qa in range(2):
                if (qa, kt) in ((0, 17), (1, 0)): continue
                a("v_mfma_f32_16x16x32_bf16 %s, %s, %s, 0" % (r4("v", sreg(qa, kt)), r4("a", 4 * kt), r4("v", VQ + 4 * qa)))
        if b < 8: a.label("AT_skip%d" % b)
    a("s_waitcnt vmcnt(0)")
    a("s_barrier")
    for f in range(18): a("ds_read_b128 %s, v%d offset:%d" % (r4("a", 4 * f), T, 32768 + f * 1024))
    stamp(a, cfg, 2, 64)
    for qa in range(2):
        k0 = qa; k1 = 16 + qa
        for e in range(4):
            a("v_cndmask_b32 v%d, v%d, v%d, s[%d:%d]" % (sreg(qa, k0) + e, sreg(qa, k0) + e, VNEG, 40 + 2 * e, 41 + 2 * e))
            a("v_cndmask_b32 v%d, v%d, v%d, s[%d:%d]" % (sreg(qa, k1) + e, VNEG, sreg(qa, k1) + e, 40 + 2 * e, 41 + 2 * e))
        regs = [sreg(qa, kt) + e for kt in range(k0, k1 + 1) for e in range(4)]
        m0, m1 = VO, VO + 1
        a("v_max_f32 v%d, v%d, v%d" % (m0, regs[0], regs[1]))
        a("v_max_f32 v%d, v%d, v%d" % (m1, regs[2], regs[3]))
        for x in range(4, 68, 4):
            a("v_max3_f32 v%d, v%d, v%d, v%d" % (m0, m0, regs[x], regs[x + 1]))
            a("v_max3_f32 v%d, v%d, v%d, v%d" % (m1, m1, regs[x + 2], regs[x + 3]))
        a("v_max_f32 v%d, v%d, v%d" % (m0, m0, m1))
        for op in ("v_permlane16_swap_b32", "v_permlane32_swap_b32"):
            a("v_mov_b32 v%d, v%d" % (m1, m0))
            a("s_nop 1")
            a("%s v%d, v%d" % (op, m0, m1))
            a("s_nop 1")
            a("v_max_f32 v%d, v%d, v%d" % (m0, m0, m1))
        for x in regs: a("v_sub_f32 v%d, v%d, v%d" % (x, x, m0))
        for x in regs: a("v_exp_f32 v%d, v%d" % (x, x))
        a("s_nop 0")
        for b in range(9):
            d = sreg(qa, 2 * b)
            for hh in range(2):
                kt = 2 * b + hh
                if (qa, kt) in ((0, 17), (1, 0)):
                    a("v_mov_b32 v%d, 0" % (d + 2 * hh)); a("v_mov_b32 v%d, 0" % (d + 2 * hh + 1))
                else:
                    sr = sreg(qa, kt)
                    a("v_cvt_pk_bf16_f32 v%d, v%d, v%d" % (d + 2 * hh, sr, sr + 1))
                    a("v_cvt_pk_bf16_f32 v%d, v%d, v%d" % (d + 2 * hh + 1, sr + 2, sr + 3))
    a("s_waitcnt lgkmcnt(0)")
    a("s_nop 1")
    for b in range(9):
        for qa in range(2):
            p = r4("v", sreg(qa, 2 * b))
            for dt in range(2):
                o = r4("v", VO + (qa * 2 + dt) * 4)
                a("v_mfma_f32_16x16x32_bf16 %s, %s, %s, %s" % (o, r4("a", (2 * b + dt) * 4), p, "0" if b == 0 else o))
            o = r4("v", VS + qa * 4)
            a("v_mfma_f32_16x16x32_bf16 %s, %s, %s, %s" % (o, r4("v", VONE), p, "0" if b == 0 else o))
    a("s_nop 7")
    stamp(a, cfg, 3, 66)
    for qa in range(2):
        a("v_rcp_f32 v%d, v%d" % (VS + qa * 4, VS + qa * 4))
    a("s_nop 0")
    for qa in range(2):
        for x in range(8): a("v_mul_f32 v%d, v%d, v%d" % (VO + qa * 8 + x, VO + qa * 8 + x, VS + qa * 4))
        for x in range(4): a("v_cvt_pk_bf16_f32 v%d, v%d, v%d" % (qa * 4 + x, VO + qa * 8 + 2 * x, VO + qa * 8 + 2 * x + 1))
        a("buffer_store_dwordx4 %s, v%d, s[12:15], s33 offen offset:%d" % (r4("v", qa * 4), V_L16, qa * 1024))
    stamp_out(a, cfg, 4, 60, 24, 12, 0x10000, 8)
    a.label("AT_end")
    a("s_endpgm")
    kernel_desc(a, name, 184, sgpr=80, accum=184, agpr=72)
    return "; @launch kernel=%s grid=(256,1,1) block=(512,1,1) lds=65536" % name

def gen_g2(a, cfg):
    name = "g2_kernel"
    MT, NT = 4, 8
    KS = 36; NG = 18
    DL = cfg.get("g2_dl", 6)
    NS = cfg.get("g2_stages", 7)
    RA = cfg.get("g2_ra", 10)
    DB = cfg.get("g2_db", 3); RB = DB + 2
    STAGE = 16384
    S1 = KS - DL
    def acc(mt, t): return (t * MT + mt) * 4
    VX = 128
    VP = 144
    V_L16 = 192; V_DMA = 193; V_XO = 195; V_FL = 196; V_ONE = 197
    V_RD = 200
    VPK = 216
    T = 232
    AR = 0; BR = RA * 16
    assert BR + RB * 4 <= 256 and NS <= 8
    kernel_begin(a, name)
    a.reset()
    stamp(a, cfg, 0, 60)
    if cfg.get("stamp"): a("s_memrealtime s[70:71]")
    a("s_cmp_ge_u32 s2, 256")
    a("s_cbranch_scc1 G2_end")
    a("s_load_dwordx2 s[4:5], s[0:1], 40")
    a("s_load_dwordx2 s[6:7], s[0:1], 16")
    a("s_load_dwordx2 s[8:9], s[0:1], 64")
    a("s_load_dwordx2 s[10:11], s[0:1], 0")
    a("s_load_dwordx2 s[36:37], s[0:1], 48")
    a("v_and_b32 v%d, 63, v0" % T)
    a("v_lshrrev_b32 v%d, 6, v0" % (T + 1))
    a("v_lshlrev_b32 v%d, 4, v%d" % (V_L16, T))
    a("v_readfirstlane_b32 s24, v%d" % (T + 1))
    a("s_and_b32 s25, s2, 1")
    a("s_lshl_b32 s25, s25, 2")
    a("s_bfe_u32 s26, s2, 0x20003")
    a("s_add_u32 s25, s25, s26")
    a("s_bfe_u32 s26, s2, 0x20001")
    a("s_lshr_b32 s27, s2, 5")
    a("v_lshrrev_b32 v%d, 4, v%d" % (T + 2, T))
    a("v_lshlrev_b32 v%d, 11, v%d" % (V_DMA, T + 2))
    a("v_lshlrev_b32 v%d, 1, v%d" % (T + 2, T + 2))
    a("v_and_b32 v%d, 15, v%d" % (T + 3, T))
    a("v_xor_b32 v%d, v%d, v%d" % (T + 2, T + 2, T + 3))
    a("v_lshl_add_u32 v%d, v%d, 4, v%d" % (V_DMA, T + 2, V_DMA))
    a("v_xor_b32 v%d, 128, v%d" % (V_DMA + 1, V_DMA))
    a("s_lshl_b32 s31, s24, 15")
    a("s_lshl_b32 s32, s27, 8")
    a("s_add_u32 s31, s31, s32")
    a("s_mul_i32 s30, s26, %d" % (896 * 2048))
    a("s_add_u32 s30, s30, s31")
    a("s_lshl_b32 s38, s26, 19")
    a("s_add_u32 s38, s38, s31")
    a("s_lshl_b32 s34, s24, 12")
    a("s_lshl_b32 s33, s25, 2")
    a("s_add_u32 s33, s33, s24")
    a("s_mul_i32 s35, s33, 144")
    a("s_mul_i32 s39, s26, 36")
    a("s_add_u32 s35, s35, s39")
    a("s_lshl_b32 s35, s35, 12")
    a("s_lshl_b32 s39, s33, 17")
    a("s_add_u32 s39, s39, s32")
    a("s_lshl_b32 s33, s26, 6")
    a("s_add_u32 s39, s39, s33")
    a("s_waitcnt lgkmcnt(0)")
    srd(a, 12, 4, DFF * D * 2)
    srd(a, 16, 6, D * D * 2)
    srd_off(a, 20, 8, WS_A2, A2_BYTES)
    def a_load(s, mt):
        FK = cfg.get("g2_fake", 0)
        if FK & 4 and s >= RA:
            a.vmem("s_nop 0", ("A", s)); return
        a.vmem("buffer_load_dwordx4 %s, v%d, s[20:23], s35 offen offset:%d%s" % (r4("a", AR + (s % RA) * 16 + mt * 4), V_L16, mt * 1024, " sc1" if FK & 1 else ""), ("A", s))
        if mt == MT - 1: a("s_add_u32 s35, s35, %d" % (0 if FK & 1 and s >= 3 else 4096))
    def dma_pre(g, k): a("s_add_u32 m0, s34, %d" % ((g % NS) * STAGE + k * 1024))
    def dma(g, k):
        FK = cfg.get("g2_fake", 0)
        if FK & 8 and g >= NS:
            a.vmem("s_nop 0", ("B", g)); return
        sb = 12 if g < 14 else 16
        a.vmem("buffer_load_dwordx4 v%d, s[%d:%d], s30 offen%s lds" % (V_DMA + (k & 1), sb, sb + 3, " sc1" if FK & 2 else ""), ("B", g))
        if k == 3 and g == 13: a("s_mov_b32 s30, s38")
        elif FK & 2 and k == 3: a("s_add_u32 s30, s30, %d" % (-3 * 8192))
        else: a("s_add_u32 s30, s30, %d" % (8192 if k < 3 else 8192 + 48 * 2048))
    order = []
    for g in range(NG):
        for k in range(4): order.append(("B", g, k))
        for s in (2 * g, 2 * g + 1):
            for mt in range(MT): order.append(("A", s, mt))
    st = dict(bar=-1, step=-1)
    def can(op):
        if op[0] == "B": return op[1] < NS - 1 or op[1] - NS + 2 <= st["bar"]
        return op[1] - RA <= st["step"]
    PRO = cfg.get("g2_pro", 12)
    for _ in range(PRO):
        op = order.pop(0)
        if op[0] == "A": a_load(op[1], op[2])
        else:
            dma_pre(op[1], op[2]); a("s_nop 0"); dma(op[1], op[2])
    srd(a, 40, 10, S * D * 2)
    srd(a, 44, 36, S * D * 2)
    srd_off(a, 48, 8, WS_XC, XC_BYTES + FL_BYTES)
    a("v_and_b32 v%d, 15, v%d" % (T + 2, T))
    a("v_lshlrev_b32 v%d, 11, v%d" % (V_XO, T + 2))
    a("v_bfe_u32 v%d, v%d, 4, 1" % (T + 2, T))
    a("v_lshl_add_u32 v%d, v%d, 5, v%d" % (V_XO, T + 2, V_XO))
    a("v_lshrrev_b32 v%d, 5, v%d" % (T + 2, T))
    a("v_lshl_add_u32 v%d, v%d, 4, v%d" % (V_XO, T + 2, V_XO))
    a("v_lshrrev_b32 v%d, 2, v%d" % (T + 2, T))
    a("v_and_b32 v%d, 7, v%d" % (T + 4, T + 2))
    a("v_lshlrev_b32 v%d, 8, v%d" % (T + 2, T + 2))
    a("v_and_b32 v%d, 3, v%d" % (T + 3, T))
    a("v_lshl_add_u32 v%d, v%d, 3, v%d" % (T + 2, T + 3, T + 2))
    a("v_lshl_add_u32 v%d, v%d, 5, v%d" % (V_RD, T + 4, T + 2))
    a("s_xor_b32 s33, s33, 192")
    a("v_xor_b32 v%d, s33, v%d" % (V_RD, V_RD))
    for t in range(1, 8): a("v_xor_b32 v%d, %d, v%d" % (V_RD + t, t * 32, V_RD))
    for t in range(8): a("v_add_u32 v%d, 0x10000, v%d" % (V_RD + 8 + t, V_RD + t))
    for lam in range(3):
        a("s_xor_b32 s52, s2, %d" % ((lam ^ 3) << 1))
        a("s_lshl_b32 s52, s52, 2")
        a("s_add_u32 s52, s52, s24")
        a("s_mul_i32 s%d, s52, 12288" % (53 + lam))
        if lam: a("s_add_u32 s%d, s%d, %d" % (53 + lam, 53 + lam, lam * 4096))
        a("s_lshl_b32 s%d, s52, 7" % (56 + lam))
        a("s_add_u32 s%d, s%d, %d" % (56 + lam, 56 + lam, XC_BYTES + lam * 4))
    a("s_lshl_b32 s52, s2, 2")
    a("s_add_u32 s52, s52, s24")
    a("s_lshl_b32 s59, s52, 7")
    a("s_add_u32 s59, s59, %d" % XC_BYTES)
    a("s_mul_i32 s52, s52, 12288")
    a("v_cmp_ne_u32 vcc, 0, v%d" % T)
    a("v_bfrev_b32 v%d, 1" % (T + 2))
    a("v_mov_b32 v%d, 1" % V_ONE)
    a("v_cndmask_b32 v%d, 0, v%d, vcc" % (V_FL, T + 2))
    PF = cfg.get("g2_pf", 0)
    V_P = 198
    if PF:
        a("s_bfe_u32 s74, s2, 0x30003")
        a("s_lshr_b32 s75, s2, 6")
        a("s_lshl_b32 s75, s75, 2")
        a("s_add_u32 s75, s75, s24")
        a("s_and_b32 s76, s2, 1")
        a("s_lshl_b32 s76, s76, 4")
        a("s_add_u32 s76, s76, s75")
        a("s_mul_i32 s76, s76, 144")
        a("s_mul_i32 s77, s26, 36")
        a("s_add_u32 s76, s76, s77")
        a("s_lshl_b32 s76, s76, 12")
        a("s_lshl_b32 s75, s75, 12")
        a("s_mul_i32 s77, s26, %d" % (896 * 2048))
        a("s_add_u32 s77, s77, s75")
        a("s_lshl_b32 s78, s26, 19")
        a("s_add_u32 s78, s78, s75")
        a("v_lshlrev_b32 v%d, 7, v%d" % (V_P, T))
        a("v_lshrrev_b32 v%d, 5, v%d" % (T + 2, T))
        a("v_lshl_add_u32 v%d, v%d, 30, v%d" % (V_P, T + 2, V_P))
    def touch(cls, s):
        lab = a.newlabel("G2_pf")
        a("s_cmp_lg_u32 s74, %d" % cls)
        a("s_cbranch_scc1 %s" % lab)
        a("s_add_u32 s79, s76, %d" % (s * 4096))
        a("buffer_load_dword v%d, v%d, s[20:23], s79 offen" % (V_P + 1, V_P))
        if s < 28:
            a("s_add_u32 s79, s77, %d" % (s * 65536))
            a("buffer_load_dword v%d, v%d, s[12:15], s79 offen" % (V_P + 1, V_P))
        else:
            a("s_add_u32 s79, s78, %d" % ((s - 28) * 65536))
            a("buffer_load_dword v%d, v%d, s[16:19], s79 offen" % (V_P + 1, V_P))
        a.label(lab)
    pfq = list(range(cfg.get("g2_pf0", 2), KS))
    pfn = [0]
    PFU = cfg.get("g2_pfu", 6)
    if PF:
        for _ in range(PF):
            touch(pfn[0] & 7, pfq.pop(0)); pfn[0] += 1
    stamp(a, cfg, 1, 62)
    units = [(s, t) for s in range(S1) for t in range(NT)]
    for lam in range(4):
        units += [(s, t) for s in range(S1, KS) for t in (2 * lam, 2 * lam + 1)]
    NU = len(units)
    def b_read(u, j2):
        s, t = units[u]
        slot = (s // 2) % NS
        off = (slot % 4) * STAGE + (s % 2) * 8192 + j2 * 4096
        a.lds("ds_read_b64_tr_b16 %s, v%d offset:%d" % (r2("a", BR + (u % RB) * 4 + j2 * 2), V_RD + 8 * (slot // 4) + t, off), ("b", u))
    def flush_until(tag):
        while any(o[:2] == tag for o in order):
            op = order.pop(0)
            assert can(op), (op, st)
            if op[0] == "A": a_load(op[1], op[2])
            else:
                dma_pre(op[1], op[2]); a("s_nop 0"); dma(op[1], op[2])
    def need_stage(u):
        g = units[u][0] // 2
        if g > st["bar"]:
            flush_until(("B", g))
            a.wait(vm=("B", g)); a("s_barrier"); st["bar"] = g
    need_stage(0)
    stamp(a, cfg, 2, 64)
    for u in range(DB):
        b_read(u, 0); b_read(u, 1)
    side = []
    seenA = set()
    xload_done = False
    for u in range(NU):
        s, t = units[u]
        un = u + DB
        if un < NU: need_stage(un)
        if s not in seenA:
            flush_until(("A", s)); seenA.add(s)
            a.wait(vm=("A", s), lg=("b", u))
        else:
            a.wait(lg=("b", u))
        if PF and pfq and u % PFU == PFU - 1:
            touch(pfn[0] & 7, pfq.pop(0)); pfn[0] += 1
        bf = r4("a", BR + (u % RB) * 4)
        LAU = cfg.get("g2_lau", 100)
        def soon(op):
            stp = op[1] * 2 if op[0] == "B" else op[1]
            return stp <= u / PFU + LAU
        nxt = order.pop(0) if (order and can(order[0]) and soon(order[0])) else None
        if not order and not xload_done and nxt is None:
            xload_done = True
            for mt in range(MT):
                def f(mt=mt):
                    a.vmem("buffer_load_dwordx4 %s, v%d, s[40:43], s39 offen" % (r4("v", VX + 4 * mt), V_XO), "X")
                    a("s_add_u32 s39, s39, %d" % (32768 if mt < 3 else -3 * 32768))
                side.append(f)
        for mt in range(MT):
            mz = mt if u % 2 == 0 else MT - 1 - mt
            af = r4("a", AR + (s % RA) * 16 + mz * 4)
            c = r4("v", acc(mz, t))
            a("v_mfma_f32_16x16x32_bf16 %s, %s, %s, %s" % (c, bf, af, "0" if s == 0 else c))
            if mt < 2 and un < NU: b_read(un, mt)
            if mt == 2 and nxt and nxt[0] == "B": dma_pre(nxt[1], nxt[2])
            if mt == 3 and nxt:
                if nxt[0] == "A": a_load(nxt[1], nxt[2])
                else: dma(nxt[1], nxt[2])
            k = 1 if mt < 2 else 2
            for _ in range(k):
                if side:
                    f = side.pop(0)
                    if f: f()
        if u < S1 * NT and t == NT - 1: st["step"] = s
        if u >= S1 * NT and (u - S1 * NT) % (2 * DL) == 2 * DL - 1:
            lam = (u - S1 * NT) // (2 * DL)
            if lam < 3:
                side += [None] * 6
                for mt in range(MT):
                    for hh in range(2):
                        for e2 in range(2):
                            def f(mt=mt, hh=hh, e2=e2, lam=lam):
                                c = acc(mt, 2 * lam + hh) + 2 * e2
                                a("v_cvt_pk_bf16_f32 v%d, v%d, v%d" % (VPK + 4 * mt + 2 * hh + e2, c, c + 1))
                            side.append(f)
                    def f(mt=mt, lam=lam):
                        a.vmem("buffer_store_dwordx4 %s, v%d, s[48:51], s%d offen offset:%d sc1" % (r4("v", VPK + 4 * mt), V_L16, 53 + lam, mt * 1024), ("S", lam))
                    side.append(f)
    for f in side:
        if f: f()
    assert not order and xload_done
    stamp(a, cfg, 3, 66)
    for lam in range(3):
        a.wait(vm=("S", lam))
        a.vmem("buffer_store_dword v%d, v%d, s[48:51], s%d offen sc1" % (V_ONE, V_FL, 56 + lam), ("F", lam))
    a("v_mov_b32 v%d, 0" % (T + 1))
    a("s_mov_b32 s54, 0x40000")
    a.label("G2_poll")
    a("s_sub_u32 s54, s54, 1")
    a("s_cbranch_scc1 G2_go")
    a("buffer_load_dwordx3 v[%d:%d], v%d, s[48:51], s59 offen sc1" % (T + 4, T + 6, T + 1))
    a("s_waitcnt vmcnt(0)")
    a("v_and_b32 v%d, v%d, v%d" % (T + 4, T + 4, T + 5))
    a("v_and_b32 v%d, v%d, v%d" % (T + 4, T + 4, T + 6))
    a("s_nop 0")
    a("v_readfirstlane_b32 s53, v%d" % (T + 4))
    a("s_cmp_eq_u32 s53, 1")
    a("s_cbranch_scc0 G2_poll")
    a.label("G2_go")
    a.reset()
    if cfg.get("stamp"): a("s_memtime s[62:63]")
    for lam in range(3):
        for mt in range(MT):
            a.vmem("buffer_load_dwordx4 %s, v%d, s[48:51], s52 offen offset:%d sc1" % (r4("v", VP + 16 * lam + 4 * mt), V_L16, mt * 1024), ("R", lam, mt))
        if lam < 2: a("s_add_u32 s52, s52, 4096")
    for lam in range(3):
        for mt in range(MT):
            a.wait(vm=("R", lam, mt))
            for hh in range(2):
                for e2 in range(2):
                    p = VP + 16 * lam + 4 * mt + 2 * hh + e2
                    c = acc(mt, 6 + hh) + 2 * e2
                    a("v_lshlrev_b32 v%d, 16, v%d" % (T, p))
                    a("v_and_b32 v%d, 0xffff0000, v%d" % (T + 1, p))
                    a("v_add_f32 v%d, v%d, v%d" % (c, c, T))
                    a("v_add_f32 v%d, v%d, v%d" % (c + 1, c + 1, T + 1))
            if lam == 2:
                c0, c1 = acc(mt, 6), acc(mt, 7)
                a("s_nop 1")
                for e in range(4): a("v_permlane16_swap_b32 v%d, v%d" % (c0 + e, c1 + e))
                a("s_nop 1")
                xr = VX + 4 * mt
                for hh, c in enumerate((c0, c1)):
                    for e2 in range(2):
                        xx = xr + 2 * hh + e2
                        a("v_lshlrev_b32 v%d, 16, v%d" % (T, xx))
                        a("v_and_b32 v%d, 0xffff0000, v%d" % (T + 1, xx))
                        a("v_add_f32 v%d, v%d, v%d" % (T, T, c + 2 * e2))
                        a("v_add_f32 v%d, v%d, v%d" % (T + 1, T + 1, c + 2 * e2 + 1))
                        a("v_cvt_pk_bf16_f32 v%d, v%d, v%d" % (xx, T, T + 1))
                a.vmem("buffer_store_dwordx4 %s, v%d, s[44:47], s39 offen" % (r4("v", xr), V_XO), "O")
                if mt < 3: a("s_add_u32 s39, s39, 32768")
    if cfg.get("stamp"): srd_off(a, 12, 8, 0, WS_END)
    stamp_out(a, cfg, 4, 60, 24, 12, 0x30000, 4)
    a.label("G2_end")
    a("s_endpgm")
    kernel_desc(a, name, 240, sgpr=96, accum=240, agpr=BR + RB * 4)
    return "; @launch kernel=%s grid=(256,1,1) block=(256,1,1) lds=%d" % (name, NS * STAGE)

def gen_pf(a, cfg):
    name = "pf_kernel"
    kernel_begin(a, name)
    a.reset()
    stamp(a, cfg, 0, 60)
    if cfg.get("stamp"): a("s_memrealtime s[70:71]")
    a("s_cmp_ge_u32 s2, 256")
    a("s_cbranch_scc1 PF_end")
    a("s_load_dwordx4 s[4:7], s[0:1], 8")
    a("s_load_dwordx4 s[8:11], s[0:1], 32")
    a("s_load_dwordx2 s[36:37], s[0:1], 64")
    a("v_lshrrev_b32 v2, 6, v0")
    a("s_nop 0")
    a("v_readfirstlane_b32 s34, v2")
    mode = cfg.get("pf_mode", 0)
    gran = cfg.get("pf_gran", 128)
    if mode == 0: gran = 16
    if mode == 2:
        a("s_lshr_b32 s3, s2, 3")
        a("s_lshl_b32 s3, s3, 9")
        nthr = 32 * 512
    else:
        a("s_lshl_b32 s3, s2, 9")
        nthr = 256 * 512
    a("v_add_u32 v1, s3, v0")
    a("s_mov_b32 s31, %d" % gran)
    a("v_mul_lo_u32 v1, s31, v1")
    if nthr * gran >= (1 << 32):
        a("v_add_u32 v3, s3, v0")
        a("v_min_u32 v3, 200, v3")
        a("v_mul_lo_u32 v1, s31, v3")
    a("s_waitcnt lgkmcnt(0)")
    sizes = [D * 3 * D * 2, D * D * 2, D * DFF * 2, D * DFF * 2]
    order = [0, 2, 3, 1]
    mask = cfg.get("pf_mask", 15)
    n = 0
    for b in order:
        if not (mask >> b) & 1: continue
        srd(a, 12 + 4 * b, 4 + 2 * b, sizes[b])
        step = nthr * gran
        for off in range(0, sizes[b], step):
            a("s_mov_b32 s30, 0x%x" % off)
            if mode == 0: a("buffer_load_dwordx4 %s, v1, s[%d:%d], s30 offen" % (r4("v", 8 + 4 * n), 12 + 4 * b, 15 + 4 * b))
            else: a("buffer_load_dword v%d, v1, s[%d:%d], s30 offen" % (8 + n, 12 + 4 * b, 15 + 4 * b))
            n += 1
    stamp(a, cfg, 1, 62); stamp(a, cfg, 2, 64); stamp(a, cfg, 3, 66)
    a("s_waitcnt vmcnt(0)")
    if cfg.get("stamp"): srd_off(a, 12, 36, 0, WS_END)
    stamp_out(a, cfg, 4, 60, 34, 12, 0x50000, 8)
    a.label("PF_end")
    a("s_endpgm")
    kernel_desc(a, name, 72, sgpr=80)
    return "; @launch kernel=%s grid=(256,1,1) block=(512,1,1) lds=0" % name

def gen_em(a, cfg):
    kernel_begin(a, "em_kernel")
    a("s_endpgm")
    kernel_desc(a, "em_kernel", 8, sgpr=16)
    return "; @launch kernel=em_kernel grid=(256,1,1) block=(256,1,1) lds=0"

def gen_amp(a, cfg):
    kernel_begin(a, "amp_kernel")
    a("s_cmp_ge_u32 s2, 1")
    a("s_cbranch_scc1 AMP_end")
    a("s_load_dwordx2 s[8:9], s[0:1], 64")
    a("s_waitcnt lgkmcnt(0)")
    a("s_load_dword s10, s[8:9], 0x%x" % cfg["amp_a"])
    a("s_load_dword s11, s[8:9], 0x%x" % cfg["amp_b"])
    a("s_memrealtime s[12:13]")
    a("s_waitcnt lgkmcnt(0)")
    if cfg.get("amp_abs"): a("s_mov_b32 s10, 0")
    a("s_sub_u32 s10, s11, s10")
    a("s_mul_i32 s10, s10, %d" % cfg.get("amp_k", 10))
    a("s_lshr_b32 s10, s10, %d" % cfg.get("amp_sh", 0))
    a("s_min_u32 s10, s10, 100000")
    a.label("AMP_l")
    a("s_memrealtime s[14:15]")
    a("s_waitcnt lgkmcnt(0)")
    a("s_sub_u32 s14, s14, s12")
    a("s_cmp_lt_u32 s14, s10")
    a("s_cbranch_scc1 AMP_l")
    a.label("AMP_end")
    a("s_endpgm")
    kernel_desc(a, "amp_kernel", 8, sgpr=24)
    return "; @launch kernel=amp_kernel grid=(1,1,1) block=(64,1,1) lds=0"

def gen_amq(a, cfg):
    kernel_begin(a, "amq_kernel")
    a("s_cmp_ge_u32 s2, 1")
    a("s_cbranch_scc1 AMQ_end")
    a("s_load_dwordx2 s[8:9], s[0:1], 64")
    a("v_lshlrev_b32 v1, 7, v0")
    a("v_add_u32 v1, 0x%x, v1" % (cfg.get("wsoff", 0) << 20))
    a("s_waitcnt lgkmcnt(0)")
    for k in range(4):
        a("global_load_dword v%d, v1, s[8:9] offset:%d" % (2 + k, cfg["amp_a"]))
        a("global_load_dword v%d, v1, s[8:9] offset:%d" % (6 + k, cfg["amp_b"]))
        a("v_add_u32 v1, 8192, v1")
    a("s_waitcnt vmcnt(0)")
    mb = "v_min_u32" if cfg.get("amp_minb") else "v_max_u32"
    for k in range(1, 4):
        a("v_min_u32 v2, v2, v%d" % (2 + k)); a("%s v6, v6, v%d" % (mb, 6 + k))
    a("s_nop 1")
    a("v_readlane_b32 s10, v2, 0"); a("v_readlane_b32 s11, v6, 0")
    for l in range(1, 64):
        a("v_readlane_b32 s16, v2, %d" % l); a("v_readlane_b32 s17, v6, %d" % l)
        a("s_min_u32 s10, s10, s16"); a("%s s11, s11, s17" % mb.replace("v_", "s_"))
    a("s_memrealtime s[12:13]")
    a("s_waitcnt lgkmcnt(0)")
    if cfg.get("amp_now"): a("s_mov_b32 s10, s11\ns_mov_b32 s11, s12")
    a("s_sub_u32 s10, s11, s10")
    a("s_mul_i32 s10, s10, %d" % cfg.get("amp_k", 10))
    a("s_min_u32 s10, s10, 100000")
    a.label("AMQ_l")
    a("s_memrealtime s[14:15]")
    a("s_waitcnt lgkmcnt(0)")
    a("s_sub_u32 s14, s14, s12")
    a("s_cmp_lt_u32 s14, s10")
    a("s_cbranch_scc1 AMQ_l")
    a.label("AMQ_end")
    a("s_endpgm")
    kernel_desc(a, "amq_kernel", 16, sgpr=24)
    return "; @launch kernel=amq_kernel grid=(1,1,1) block=(64,1,1) lds=0"

def gen_cp(a, cfg):
    kernel_begin(a, "cp_kernel")
    a("s_cmp_ge_u32 s2, 1024")
    a("s_cbranch_scc1 CP_end")
    a("s_load_dwordx2 s[4:5], s[0:1], 64")
    a("s_load_dwordx2 s[6:7], s[0:1], 48")
    a("s_lshr_b32 s16, s2, 2")
    a("s_and_b32 s17, s2, 3")
    a("s_and_b32 s18, s16, 1"); a("s_lshl_b32 s18, s18, 2"); a("s_bfe_u32 s19, s16, 0x20003"); a("s_add_u32 s18, s18, s19")
    a("s_lshl_b32 s18, s18, 2"); a("s_add_u32 s18, s18, s17"); a("s_lshl_b32 s18, s18, 17")
    a("s_lshr_b32 s19, s16, 5"); a("s_lshl_b32 s19, s19, 8"); a("s_add_u32 s18, s18, s19")
    a("s_bfe_u32 s19, s16, 0x20001"); a("s_lshl_b32 s19, s19, 6"); a("s_add_u32 s18, s18, s19")
    a("s_lshl_b32 s20, s2, 12")
    a("v_lshlrev_b32 v1, 4, v0")
    a("v_lshrrev_b32 v2, 2, v0"); a("v_lshlrev_b32 v2, 11, v2"); a("v_and_b32 v3, 3, v0"); a("v_lshl_add_u32 v2, v3, 4, v2")
    a("s_waitcnt lgkmcnt(0)")
    srd_off(a, 8, 4, WS_Q, S * D * 2)
    if cfg.get("cp_real"): srd(a, 12, 6, S * D * 2)
    else: srd_off(a, 12, 4, 0x4000000, S * D * 2)
    a("buffer_load_dwordx4 v[4:7], v1, s[8:11], s20 offen")
    a("s_waitcnt vmcnt(0)")
    a("buffer_store_dwordx4 v[4:7], v2, s[12:15], s18 offen")
    a.label("CP_end")
    a("s_endpgm")
    kernel_desc(a, "cp_kernel", 16, sgpr=32)
    return "; @launch kernel=cp_kernel grid=(1024,1,1) block=(256,1,1) lds=0"

def build(cfg, kernels):
    a = Prog()
    heads = []
    for k in kernels:
        heads.append(globals()["gen_" + k](a, cfg))
    a.raw(".text")
    a.label("CODE_END")
    for _ in range(cfg.get("nempty", 0)): heads.append(heads[-1])
    if cfg.get("single"):
        assert len(heads) == 1
        heads = [heads[0].replace("kernel=%s_kernel " % NAME, "")]
    hdr = "\n".join(heads) + "\n" + '.amdgcn_target "amdgcn-amd-amdhsa--gfx950"\n'
    return hdr + a.text()

if __name__ == "__main__":
    cfg = dict(g1_mt=4)
    out = sys.argv[1]
    kernels = sys.argv[2].split(",")
    for kv in sys.argv[3:]:
        k, v = kv.split("="); cfg[k] = int(v, 0)
    open(out, "w").write(build(cfg, kernels))
```

```python
import sys, math
from asmlib import *
import gen
from gen import *

class SA:
    def __init__(self, start, end):
        self.n = start; self.end = end; self.m = {}
    def new(self, name, cnt=1, align=1):
        self.n = (self.n + align - 1) // align * align
        r = self.n; self.n += cnt
        assert self.n <= self.end, "out of sgprs"
        self.m[name] = r
        return r

def s4(b): return "s[%d:%d]" % (b, b + 3)
MF = "v_mfma_f32_16x16x32_bf16"

def kind_of(op):
    if op is None: return None
    if isinstance(op, tuple): return op[0]
    t = op.lstrip()
    if t.startswith("s_"): return "s"
    if t.startswith("v_"): return "v"
    raise ValueError(op)

class Gaps:
    def __init__(self, a):
        self.a = a
        self.sal = []
        self.side = []
    def run(self, op):
        if isinstance(op, tuple): op[1]()
        else: self.a(op)
    def gap(self, first=None, fixed=None, mem=None):
        used0 = False
        room = 2
        if first is not None: used0 = bool(first())
        if not used0:
            if self.sal:
                x = self.sal.pop(0); self.a(x); used0 = True
                room -= x.count("\n")
            elif self.side and kind_of(self.side[0]) == "s":
                self.run(self.side.pop(0)); used0 = True
        if mem is not None:
            mem(); return
        if fixed is not None:
            fixed(); room -= 1
        if self.side and self.side[0] is None:
            self.side.pop(0)
            skip = True
        else: skip = False
        while room > 0:
            if self.sal and self.sal[0].count("\n") < room:
                x = self.sal.pop(0); self.a(x); room -= 1 + x.count("\n"); continue
            if skip or not self.side or self.side[0] is None: break
            k = kind_of(self.side[0])
            if k in ("m", "x"):
                if room == 2:
                    self.run(self.side.pop(0))
                break
            self.run(self.side.pop(0)); room -= 1
    def drain_sal(self):
        while self.sal: self.a(self.sal.pop(0))
    def drain(self):
        self.drain_sal()
        for op in self.side:
            if op is not None: self.run(op)
        self.side = []

def ln_ops(exact=1):
    o = []
    a = o.append
    pk = lambda op, d, x, y, mod="": a("%s v[%d:%d], v[%d:%d], v[%d:%d]%s" % (op, d, d + 1, x, x + 1, y, y + 1, mod))
    for i in range(16):
        if i % 4 == 0: a("WAIT%d" % (i // 4))
        a("v_lshlrev_b32 v%d, 16, v%d" % (24 + 2 * i, 8 + i))
        a("v_and_b32 v%d, 0xffff0000, v%d" % (25 + 2 * i, 8 + i))
        if i == 1: pk("v_pk_add_f32", 56, 24, 26)
        elif i == 3: pk("v_pk_add_f32", 58, 28, 30)
        elif i > 3: pk("v_pk_add_f32", 56 + 2 * (i & 1), 56 + 2 * (i & 1), 24 + 2 * i)
    pk("v_pk_add_f32", 56, 56, 58)
    a("v_add_f32 v56, v56, v57")
    def xlane_sum(r, t):
        a("s_nop 1")
        a("v_add_f32_dpp v%d, v%d, v%d row_ror:8 row_mask:0xf bank_mask:0xf" % (r, r, r))
        for op in ("v_permlane16_swap_b32", "v_permlane32_swap_b32"):
            a("v_mov_b32 v%d, v%d" % (t, r))
            a("s_nop 1")
            a("%s v%d, v%d" % (op, r, t))
            a("v_add_f32 v%d, v%d, v%d" % (r, r, t))
    xlane_sum(56, 57)
    a("v_mul_f32 v56, 0x%x, v56" % f2u(1.0 / 256))
    neg = " op_sel_hi:[1,0] neg_lo:[0,1] neg_hi:[0,1]"
    for i in range(16):
        t = 62 + 2 * (i & 1); ac = 66 + 2 * (i & 1)
        pk("v_pk_add_f32", t, 24 + 2 * i, 56, neg)
        if i < 2: pk("v_pk_mul_f32", ac, t, t)
        else: a("v_pk_fma_f32 v[%d:%d], v[%d:%d], v[%d:%d], v[%d:%d]" % (ac, ac + 1, t, t + 1, t, t + 1, ac, ac + 1))
    pk("v_pk_add_f32", 66, 66, 68)
    a("v_add_f32 v57, v66, v67")
    xlane_sum(57, 58)
    a("ds_write_b64 v7, v[56:57]")
    a("s_waitcnt lgkmcnt(0)")
    a("s_barrier")
    for k in range(4): a("ds_read_b64 v[%d:%d], v60 offset:%d" % (62 + 2 * k, 63 + 2 * k, 64 * k))
    a("s_waitcnt lgkmcnt(0)")
    pk("v_pk_add_f32", 56, 62, 64)
    pk("v_pk_add_f32", 58, 66, 68)
    pk("v_pk_add_f32", 56, 56, 58)
    a("v_mul_f32 v56, 0x3e800000, v56")
    a("v_sub_f32 v59, v62, v56")
    a("v_mul_f32 v58, v59, v59")
    for r in (64, 66, 68):
        a("v_sub_f32 v59, v%d, v56" % r)
        a("v_fmac_f32 v58, v59, v59")
    a("v_fmac_f32 v57, 0x43800000, v58")
    a("v_mul_f32 v57, 0x%x, v57" % f2u(1.0 / 1024))
    a("v_cvt_pk_bf16_f32 v58, v56, v57")
    a("v_lshlrev_b32 v56, 16, v58")
    a("v_and_b32 v57, 0xffff0000, v58")
    a("v_add_f32 v57, 0x%x, v57" % f2u(1e-5))
    a("v_cvt_pk_bf16_f32 v57, v57, v57")
    a("v_and_b32 v57, 0xffff0000, v57")
    a("v_sqrt_f32 v57, v57")
    a("s_nop 0")
    a("v_cvt_pk_bf16_f32 v57, v57, v57")
    a("v_and_b32 v57, 0xffff0000, v57")
    a("v_rcp_f32 v58, v57")
    for i in range(16):
        pk("v_pk_add_f32", 24 + 2 * i, 24 + 2 * i, 56, neg)
        if i > 0:
            j = i - 1
            if exact:
                a("v_cvt_pk_bf16_f32 v%d, v%d, v%d" % (25 + 2 * j, 24 + 2 * j, 25 + 2 * j))
                a("v_lshlrev_b32 v%d, 16, v%d" % (24 + 2 * j, 25 + 2 * j))
                a("v_and_b32 v%d, 0xffff0000, v%d" % (25 + 2 * j, 25 + 2 * j))
            pk("v_pk_mul_f32", 24 + 2 * j, 24 + 2 * j, 58, " op_sel_hi:[1,0]")
            a("v_cvt_pk_bf16_f32 v%d, v%d, v%d" % (8 + j, 24 + 2 * j, 25 + 2 * j))
            if j % 4 == 3: a("STORE%d" % (j // 4))
    if exact:
        a("v_cvt_pk_bf16_f32 v55, v54, v55")
        a("v_lshlrev_b32 v54, 16, v55")
        a("v_and_b32 v55, 0xffff0000, v55")
    pk("v_pk_mul_f32", 54, 54, 58, " op_sel_hi:[1,0]")
    a("v_cvt_pk_bf16_f32 v23, v54, v55")
    a("STORE3")
    return o

def gen_f(a, cfg):
    name = NAME + "_kernel" if cfg.get("single") else "f_kernel"
    FLN = cfg.get("f_ln", 0)
    SPIN = cfg.get("spin", 0x40000)
    ST = cfg.get("stamp")
    MT = 4
    sa = SA(3, 84)
    P_WQ = sa.new("pwq", 2, 2); P_W1 = sa.new("pw1", 2, 2); P_WS = sa.new("pws", 2, 2); P_X = sa.new("px", 2, 2)
    P_W2 = sa.new("pw2", 2, 2); P_WO = sa.new("pwo", 2, 2); P_OUT = sa.new("pout", 2, 2)
    R_WQ = sa.new("rwq", 4, 4); R_W1 = sa.new("rw1", 4, 4); R_W2 = sa.new("rw2", 4, 4); R_WO = sa.new("rwo", 4, 4)
    R_WS = sa.new("rws", 4, 4)
    sW = sa.new("w"); sI = sa.new("i"); sJ = sa.new("j"); sJ1 = sa.new("j1"); sQ = sa.new("q"); sN = sa.new("n")
    sBQ = sa.new("bq"); sBV = sa.new("bv"); sBW = sa.new("bw"); sBL = sa.new("bl"); sLB = sa.new("lb"); sA = sa.new("a")
    sCLS = sa.new("cls"); t0 = sa.new("t0"); t1 = sa.new("t1"); t2 = sa.new("t2"); t3 = sa.new("t3")
    sMK = sa.new("mask", 8, 2)
    sKV = sa.new("kv"); sKV2 = sa.new("kv2"); sKP = sa.new("kp"); sKP2 = sa.new("kp2"); sFK = sa.new("fk"); sFO = sa.new("fo")
    sH = sa.new("h", 4); sSC = sa.new("sc", 2, 2); sO = sSC + 1; sA0 = sa.new("a0"); sB0 = sa.new("b0"); sAE = sa.new("aend"); sBE = sa.new("bend")
    sXO = sa.new("xo"); sSP = sa.new("spin")
    sDL = sMK
    STB = 84
    SETS = {1: ["start", "bar0", "g1end", "attbeg", "attend", "g2beg", "g2end", "end"],
            2: ["bar0", "g1s8", "g1half", "g1tail", "g1kv", "g1flag1", "g1chk", "attbeg"],
            3: ["start", "attbeg", "att0", "att1", "att2", "att3", "att4", "attend"],
            4: ["start", "att4", "g2h", "g2beg", "g2p4", "g2p12", "g2tail", "g2end"],
            5: ["start", "g2end", "x1", "x2", "x3", "x4", "x5", "end"],
            7: ["g2beg", "g2p3", "g2p6", "g2p10", "g2p14", "g2p18", "g2p22", "g2end"],
            8: ["g2p22", "g2tail", "g2l1", "g2l2", "g2l3", "g2end", "x3", "end"],
            9: ["start", "lnx", "lns", "lnd", "lnp", "g1s1", "g1s4", "g1s8"],
            10: ["start", "k0", "k1", "k2", "k3", "k4", "lnx", "lns"],
            11: ["start", "bar0", "g1tail", "attbeg", "g2beg", "g2p6", "g2end", "end"],
            6: ["start", "bar0", "g1s2", "g1s4", "g1s8", "g1half", "g1s20", "g1tail"]}
    jn = [0]
    def stampr(nm):
        J = cfg.get("jit", 0)
        if J and nm != "start":
            jn[0] += 1
            lab = a.newlabel("F_j")
            a("s_lshl_b32 s84, s2, 2")
            if J & 1: a("s_add_u32 s84, s84, s%d" % sW)
            a("s_add_u32 s84, s84, %d" % (jn[0] * 7919 + J * 31))
            a("s_mul_i32 s84, s84, 0x9e3779b1")
            a("s_lshr_b32 s84, s84, 28")
            a("s_cmp_lg_u32 s84, 0")
            a("s_cbranch_scc1 %s" % lab)
            for _ in range(cfg.get("jitn", 2)): a("s_sleep 127")
            a.label(lab)
        if ST and nm in SETS[ST]:
            i = SETS[ST].index(nm)
            a("%s s[%d:%d]" % ("s_memtime" if cfg.get("clk") else "s_memrealtime", STB + 2 * i, STB + 2 * i + 1))

    NT = 13; KS = 32
    NS = 5; REG = 7168; STAGE = 4 * REG
    D1 = cfg.get("f_d1", 8)
    RA = cfg.get("f_ra1", 12)
    LA = cfg.get("f_la1", 4)
    C1 = cfg.get("f_c1", 2)
    C1K = cfg.get("f_c1k", 2); C1T = cfg.get("f_c1t", 4); C1S = cfg.get("f_c1s", 0)
    CM1 = max(C1, C1K, C1T)
    DB = cfg.get("f_db1", CM1 + 2); RB = DB + max(CM1, 2)
    assert DB >= CM1
    S1 = KS - D1
    def slot1(g): return (15 - g) % 5
    KVB = 96 * 1024
    def acc(mt, t): return (t * MT + mt) * 4
    V_L16 = 208; V_QKV = 209; V_W1 = 210; V_LEFT = 211
    V_RD = 212
    V_P0, V_P1, V_P2 = 221, 222, 223
    V_LANE = 224; V_FL0 = 225; V_ONE = 226; V_POLL = 227; V_KVW = 228; V_FG = 229; V_PL = 230
    T = 232
    A_PD = 255
    AR = 0; BR = RA * 16
    assert BR + RB * 4 <= 254

    kernel_begin(a, name)
    a.reset()
    stampr("start")
    a("s_cmp_ge_u32 s2, 256")
    a("s_cbranch_scc1 F_end")
    if cfg.get("idx"): a("s_xor_b32 s2, s2, %d" % cfg["idx"])
    SWP = cfg.get("f_swp", 0)
    if SWP:
        a("s_lshr_b32 s%d, s2, 1" % t0)
        a("s_xor_b32 s%d, s%d, s2" % (t0, t0))
        a("s_and_b32 s%d, s%d, 1" % (t0, t0))
        a("s_mul_i32 s%d, s%d, 3" % (t0, t0))
        a("s_xor_b32 s2, s2, s%d" % t0)
    if cfg.get("jit"):
        a("s_mul_i32 s84, s2, 0x9e3779b1")
        a("s_lshr_b32 s84, s84, 28")
        a("s_cmp_lg_u32 s84, %d" % (cfg["jit"] & 15))
        a("s_cbranch_scc1 F_j0")
        for _ in range(4): a("s_sleep 127")
        a.label("F_j0")
    a("s_load_dwordx2 s[%d:%d], s[0:1], 8" % (P_WQ, P_WQ + 1))
    a("s_load_dwordx2 s[%d:%d], s[0:1], 32" % (P_W1, P_W1 + 1))
    a("s_load_dwordx2 s[%d:%d], s[0:1], 64" % (P_WS, P_WS + 1))
    a("s_load_dwordx2 s[%d:%d], s[0:1], 0" % (P_X, P_X + 1))
    a("s_load_dwordx2 s[%d:%d], s[0:1], 40" % (P_W2, P_W2 + 1))
    a("s_load_dwordx2 s[%d:%d], s[0:1], 16" % (P_WO, P_WO + 1))
    a("s_load_dwordx2 s[%d:%d], s[0:1], 48" % (P_OUT, P_OUT + 1))
    if FLN:
        lab = a.newlabel("F_pc")
        a("s_getpc_b64 s[%d:%d]" % (R_WO, R_WO + 1))
        a.label(lab)
        a("s_and_b32 s%d, s%d, 0xffff" % (R_WO + 1, R_WO + 1))
        a("s_mov_b32 s%d, CODE_END - %s" % (R_WO + 2, lab))
        a("s_mov_b32 s%d, 0x00020000" % (R_WO + 3))
        a("s_lshr_b32 s%d, s2, 3" % t0)
        a("s_lshl_b32 s%d, s%d, 7" % (t0, t0))
        a("v_lshlrev_b32 v70, 12, v0")
        a.vmem("buffer_load_dword v76, v70, %s, s%d offen" % (s4(R_WO), t0), "T")
    if FLN: a("s_load_dwordx2 s[100:101], s[0:1], 56")
    L = V_LANE
    a("v_and_b32 v%d, 63, v0" % L)
    a("v_lshrrev_b32 v%d, 6, v0" % (T + 1))
    a("v_lshlrev_b32 v%d, 4, v%d" % (V_L16, L))
    a("v_readfirstlane_b32 s%d, v%d" % (sW, T + 1))
    a("s_and_b32 s%d, s2, 1" % sI)
    a("s_lshl_b32 s%d, s%d, 2" % (sI, sI))
    a("s_bfe_u32 s%d, s2, 0x20003" % t0)
    a("s_add_u32 s%d, s%d, s%d" % (sI, sI, t0))
    a("s_bfe_u32 s%d, s2, 0x20001" % sQ)
    a("s_lshr_b32 s%d, s2, 5" % sN)
    a("s_lshl_b32 s%d, s%d, 3" % (sJ, sQ))
    a("s_add_u32 s%d, s%d, s%d" % (sJ, sJ, sN))
    a("s_and_b32 s%d, s%d, 1" % (sJ1, sN))
    if FLN:
        a("v_and_b32 v3, 7, v%d" % L)
        a("v_lshrrev_b32 v4, 3, v%d" % L)
        LXD = cfg.get("f_lxd", 0)
        if LXD:
            a("v_xor_b32 v83, v3, v4")
            a("v_lshlrev_b32 v5, 11, v4")
            a("v_lshl_add_u32 v5, v%d, 9, v5" % (T + 1))
            a("v_lshl_add_u32 v5, v83, 4, v5")
            a("s_lshl_b32 s%d, s%d, 12" % (t1, sW))
            a("s_add_u32 s%d, s%d, %d" % (t1, t1, 144 * 1024))
            a("s_mov_b32 m0, s%d" % t1)
        else:
            a("v_lshlrev_b32 v5, 11, v3")
            a("v_lshl_add_u32 v5, v%d, 9, v5" % (T + 1))
            a("v_lshl_add_u32 v5, v4, 4, v5")
        a("s_lshl_b32 s%d, s%d, 5" % (t3, sI))
        a("s_add_u32 s%d, s%d, s%d" % (t3, t3, sJ))
        a("s_lshl_b32 s%d, s%d, 14" % (sFK, t3))
        assert not LXD or not cfg.get("f_early", 0)
    def xloads():
        stampr("k0")
        a("s_waitcnt lgkmcnt(0)")
        stampr("k1")
        srd(a, R_W2, P_X, S * D * 2)
        for i in range(4):
            if LXD:
                a.vmem("buffer_load_dwordx4 v5, %s, s%d offen offset:%d lds" % (s4(R_W2), sFK, i * 128), ("LX", i))
                if i < 3:
                    a("s_add_u32 m0, m0, %d" % (1024 - 128))
                    a("s_nop 0")
            else: a.vmem("buffer_load_dwordx4 %s, v5, %s, s%d offen offset:%d" % (r4("v", 8 + 4 * i), s4(R_W2), sFK, i * 128), ("LX", i))
        if LXD:
            a("v_lshlrev_b32 v83, 4, v83")
            a("v_lshl_add_u32 v83, v3, 7, v83")
            a("v_add_u32 v83, s%d, v83" % t1)
        stampr("k2")
        srd(a, R_WS, P_WS, WS_END)
        a("s_lshl_b32 s%d, s%d, 12" % (sSP, sI))
        a("s_add_u32 s%d, s%d, 0x%x" % (sXO, sSP, WS_LF))
        a("v_and_b32 v80, 31, v%d" % L)
        a("v_lshlrev_b32 v80, %d, v80" % cfg.get("f_lfs", 2))
        a("v_add_u32 v80, s%d, v80" % sXO)
        a.vmem("buffer_load_dword v81, v80, %s, 0 offen sc1" % s4(R_WS), "SN")
    if FLN and not cfg.get("f_early", 0): xloads()
    VQ3 = [V_QKV, 240, 241]; VW3 = [V_W1, 242, 243]
    a("v_lshrrev_b32 v%d, 2, v%d" % (T + 2, L))
    a("v_and_b32 v%d, 3, v%d" % (T + 4, L))
    a("v_lshlrev_b32 v%d, 4, v%d" % (T + 4, T + 4))
    a("v_mul_u32_u24 v%d, %d, v%d" % (T + 5, 16 * 6144, T + 1))
    a("v_lshl_add_u32 v%d, v%d, 11, v%d" % (T + 5, T + 2, T + 5))
    a("v_add_u32 v%d, v%d, v%d" % (VQ3[0], T + 5, T + 4))
    a("v_and_b32 v%d, 32, v%d" % (T + 3, L))
    a("v_xor_b32 v%d, v%d, v%d" % (VQ3[1], VQ3[0], T + 3))
    a("v_add_u32 v%d, 32768, v%d" % (VQ3[1], VQ3[1]))
    a("v_xor_b32 v%d, 32, v%d" % (VQ3[2], VQ3[0]))
    a("v_add_u32 v%d, 65536, v%d" % (VQ3[2], VQ3[2]))
    a("v_mul_u32_u24 v%d, %d, v%d" % (T + 5, 16 * 7168, T + 1))
    a("v_add_u32 v%d, v%d, v%d" % (T + 5, T + 5, T + 4))
    for m in range(3):
        if m: a("v_add_u32 v%d, 16, v%d" % (T + 2, T + 2))
        a("v_mul_u32_u24 v%d, 43, v%d" % (T + 4, T + 2))
        a("v_lshrrev_b32 v%d, 7, v%d" % (T + 4, T + 4))
        a("v_mul_u32_u24 v%d, %d, v%d" % (T + 4, 7168 - 192, T + 4))
        a("v_lshl_add_u32 v%d, v%d, 6, v%d" % (T + 4, T + 2, T + 4))
        a("v_add_u32 v%d, v%d, v%d" % (VW3[m], T + 4, T + 5))
        if m == 1: a("v_xor_b32 v%d, v%d, v%d" % (VW3[m], VW3[m], T + 3))
        if m == 2: a("v_xor_b32 v%d, 32, v%d" % (VW3[m], VW3[m]))
    a("v_bfe_u32 v%d, v%d, 3, 1" % (T + 2, L))
    a("v_lshlrev_b32 v%d, 3, v%d" % (T + 2, T + 2))
    a("v_bfe_u32 v%d, v%d, 4, 1" % (T + 3, L))
    a("v_lshl_add_u32 v%d, v%d, 2, v%d" % (T + 2, T + 3, T + 2))
    a("v_bfe_u32 v%d, v%d, 1, 2" % (T + 3, L))
    a("v_add_u32 v%d, v%d, v%d" % (T + 2, T + 2, T + 3))
    a("v_lshl_add_u32 v%d, v%d, 4, v%d" % (T + 2, T + 1, T + 2))
    a("v_mul_u32_u24 v%d, 7168, v%d" % (V_LEFT, T + 2))
    a("v_and_b32 v%d, 1, v%d" % (T + 3, L))
    a("v_lshl_add_u32 v%d, v%d, 4, v%d" % (V_LEFT, T + 3, V_LEFT))
    a("v_lshrrev_b32 v%d, 5, v%d" % (T + 3, L))
    a("v_lshl_add_u32 v%d, v%d, 30, v%d" % (V_LEFT, T + 3, V_LEFT))
    a("s_lshl_b32 s%d, s%d, 6" % (sBQ, sJ))
    a("s_mul_i32 s%d, s%d, 224" % (sBL, sJ))
    a("s_lshl_b32 s%d, s%d, 5" % (t0, sJ1))
    a("s_add_u32 s%d, s%d, s%d" % (sBW, sBL, t0))
    a("s_xor_b32 s%d, s%d, 1" % (t0, sJ1))
    a("s_mul_i32 s%d, s%d, 192" % (t0, t0))
    a("s_add_u32 s%d, s%d, s%d" % (sBL, sBL, t0))
    a("s_mul_i32 s%d, s%d, %d" % (sLB, sW, REG))
    a("s_lshl_b32 s%d, s%d, 2" % (sA, sI))
    a("s_add_u32 s%d, s%d, s%d" % (sA, sA, sW))
    a("s_lshl_b32 s%d, s%d, 17" % (sA, sA))
    a("s_add_u32 s%d, s%d, 0x%x" % (sA, sA, WS_XN))
    ROT = cfg.get("f_rot", 1)
    a("s_add_u32 s%d, s%d, s%d" % (t1, sI, sN))
    a("s_and_b32 s%d, s%d, %d" % (t1, t1, 3 if ROT else 0))
    for k in range(3):
        a("s_cmp_eq_u32 s%d, %d" % (t1, 3 - k))
        a("s_cselect_b32 s%d, -3, 1" % (sDL + k))
    a("s_cmp_eq_u32 s%d, 0" % t1)
    a("s_cselect_b32 s%d, 1, 5" % (sDL + 3))
    a("s_mul_i32 s%d, s%d, %d" % (t0, t1, 64 * 6144))
    a("s_add_u32 s%d, s%d, s%d" % (sBQ, sBQ, t0))
    a("s_mul_i32 s%d, s%d, %d" % (t0, t1, 64 * 7168))
    a("s_add_u32 s%d, s%d, s%d" % (sBW, sBW, t0))
    a("s_add_u32 s%d, s%d, s%d" % (sBL, sBL, t0))
    a("s_lshl_b32 s%d, s%d, 13" % (t0, t1))
    a("s_add_u32 s%d, s%d, s%d" % (sA, sA, t0))
    for k in range(4):
        a("s_lshl_b32 s%d, s%d, 13" % (sDL + 4 + k, sDL + k))
        a("s_sub_u32 s%d, s%d, 4096" % (sDL + 4 + k, sDL + 4 + k))
    if FLN and cfg.get("f_early", 0): xloads()
    elif not FLN: a("s_waitcnt lgkmcnt(0)")
    srd(a, R_WQ, P_WQ, D * 3 * D * 2)
    srd(a, R_W1, P_W1, D * DFF * 2)
    if not FLN: srd(a, R_WS, P_WS, WS_END)

    G = Gaps(a)
    PAIRPOS = [0, 2, 1, 3, 4, 5]
    def dma1(g, k, part):
        p, vreg, sb, so, imm = [(0, VQ3[0], R_WQ, sBQ, 0), (1, VQ3[1], R_WQ, sBQ, 0), (2, VQ3[2], R_WQ, sBQ, 0),
                                (3, VW3[0], R_W1, sBW, 0), (4, VW3[1], R_W1, sBW, 0), (5, VW3[2], R_W1, sBW, 0), (6, V_LEFT, R_W1, sBL, 0)][k]
        if part == 0:
            a("s_add_u32 m0, s%d, %d" % (sLB, slot1(g) * STAGE + p * 1024 - imm))
        else:
            a.vmem("buffer_load_dwordx4 v%d, %s, s%d offen offset:%d lds" % (vreg, s4(sb), so, imm), ("B", g))
            if k == 0: G.sal.append("s_mul_i32 s%d, s%d, %d" % (t2, sDL + (g & 3), 64 * 6144))
            if k == 2: G.sal.append("s_add_u32 s%d, s%d, s%d" % (sBQ, sBQ, t2))
            if k == 3: G.sal.append("s_mul_i32 s%d, s%d, %d" % (t2, sDL + (g & 3), 64 * 7168))
            if k == 5: G.sal.append("s_add_u32 s%d, s%d, s%d" % (sBW, sBW, t2))
            if k == 6: G.sal.append("s_add_u32 s%d, s%d, s%d" % (sBL, sBL, t2))
    def aload1(s, mt):
        a.vmem("buffer_load_dwordx4 %s, v%d, %s, s%d offen offset:%d%s" % (r4("a", AR + (s % RA) * 16 + mt * 4), V_L16, s4(R_WS), sA, mt * 1024, " sc1" if FLN else ""), ("A", s))
        if mt == MT - 1:
            if s % 2 == 0: G.sal.append("s_add_u32 s%d, s%d, 4096" % (sA, sA))
            else: G.sal.append("s_add_u32 s%d, s%d, s%d" % (sA, sA, sDL + 4 + ((s // 2) & 3)))
    order = []
    for g in range(16):
        for k in range(7): order.append(("B", g, k))
        for s in (2 * g, 2 * g + 1):
            for mt in range(MT): order.append(("A", s, mt))
    def issue1(op):
        G.drain_sal()
        if op[0] == "A": aload1(op[1], op[2])
        else:
            dma1(op[1], op[2], 0); a("s_nop 0"); dma1(op[1], op[2], 1)
        G.drain_sal()
    if FLN:
        nb = cfg.get("f_lnb", 1)
        bops = [o for o in order if o[0] == "B" and o[1] < nb]
        for o in bops: order.remove(o)
        BO = cfg.get("f_bo", 0)
        late_b = []
        if BO == 1: late_b = bops[:3]; bops = bops[3:]
        if BO == 2: late_b = bops[3:]; bops = bops[:3]
        TB0 = cfg.get("f_tb", 0)
        def touchb():
            a("s_lshr_b32 s%d, s2, 3" % t1)
            a("s_lshl_b32 s%d, s%d, 2" % (t1, t1))
            a("s_add_u32 s%d, s%d, s%d" % (t1, t1, sW))
            a("v_lshrrev_b32 v84, 4, v%d" % L)
            a("v_and_b32 v85, 15, v%d" % L)
            a("v_mul_u32_u24 v86, 7168, v84")
            a("v_lshl_add_u32 v86, v85, 7, v86")
            a("v_mul_u32_u24 v84, 6144, v84")
            a("v_lshrrev_b32 v87, 2, v85")
            a("v_lshl_add_u32 v84, v87, 11, v84")
            a("v_and_b32 v87, 3, v85")
            a("v_lshl_add_u32 v84, v87, 7, v84")
            a("s_mul_i32 s%d, s%d, %d" % (t0, t1, 2 * 6144))
            a("s_lshl_b32 s%d, s%d, 9" % (t2, sQ))
            a("s_add_u32 s%d, s%d, s%d" % (sKV, t0, t2))
            a("s_mul_i32 s%d, s%d, %d" % (t0, t1, 2 * 7168))
            a("s_mul_i32 s%d, s%d, 1792" % (t2, sQ))
            a("s_add_u32 s%d, s%d, s%d" % (sKV2, t0, t2))
        def touchb2():
            a("s_mov_b64 exec, 0x0fff0fff")
            a.vmem("buffer_load_dword a%d, v84, %s, s%d offen" % (A_PD, s4(R_WQ), sKV), "T")
            a("s_mov_b64 exec, 0x3fff3fff")
            a.vmem("buffer_load_dword a%d, v86, %s, s%d offen" % (A_PD, s4(R_W1), sKV2), "T")
            a("s_mov_b64 exec, -1")
        HT = cfg.get("f_ht", 0)
        def hottouch(b):
            a("s_mov_b32 s%d, %d" % (t0, b * 256 * 6144))
            a.vmem("buffer_load_dword a%d, v%d, %s, s%d offen" % (A_PD, V_P1, s4(R_WQ), t0), "T")
        if HT:
            a("s_lshr_b32 s%d, s2, 3" % t1)
            a("s_lshl_b32 s%d, s%d, 2" % (t1, t1))
            a("s_add_u32 s%d, s%d, s%d" % (t1, t1, sW))
            a("s_mul_i32 s%d, s%d, %d" % (t1, t1, 2 * 6144))
            a("s_mul_i32 s%d, s%d, 0x40000200" % (t0, sQ))
            a("s_and_b32 s%d, s%d, 0x7fffffff" % (t0, t0))
            a("s_add_u32 s%d, s%d, s%d" % (t1, t1, t0))
            a("s_add_u32 s%d, s%d, 384" % (t1, t1))
            a("v_lshlrev_b32 v%d, 11, v%d" % (V_P1, L))
            a("v_add_u32 v84, 58, v%d" % L)
            a("v_lshrrev_b32 v84, 6, v84")
            a("v_lshl_add_u32 v%d, v84, 30, v%d" % (V_P1, V_P1))
            a("v_add_u32 v%d, s%d, v%d" % (V_P1, t1, V_P1))
            if HT & 1: hottouch(0)
        if TB0: touchb()
        if TB0 == 1: touchb2()
        for _ in range(cfg.get("f_lnb0", 2)): issue1(bops.pop(0))
        a("s_lshl_b32 s%d, s2, 9" % t0)
        a("s_add_u32 s%d, s%d, 0x%x" % (t0, t0, WS_FL))
        a("v_lshlrev_b32 v70, 2, v0")
        a("v_lshrrev_b32 v71, 7, v0")
        a("v_lshl_add_u32 v70, v71, 30, v70")
        a("v_mov_b32 v71, 0")
        a.vmem("buffer_store_dword v71, v70, %s, s%d offen sc1" % (s4(R_WS), t0), "Z")
        a("s_lshr_b32 s%d, s%d, 3" % (t0, t3))
        a("s_lshl_b32 s%d, s%d, 17" % (t0, t0))
        a("s_bfe_u32 s%d, s%d, 0x20001" % (t1, t3))
        a("s_lshl_b32 s%d, s%d, 10" % (t1, t1))
        a("s_add_u32 s%d, s%d, s%d" % (t0, t0, t1))
        a("s_and_b32 s%d, s%d, 1" % (t1, t3))
        a("s_lshl_b32 s%d, s%d, 7" % (t1, t1))
        a("s_add_u32 s%d, s%d, s%d" % (t0, t0, t1))
        a("s_add_u32 s%d, s%d, 0x%x" % (t3, t0, WS_XN))
        a("v_lshrrev_b32 v6, 2, v4")
        a("v_lshl_add_u32 v6, v%d, 3, v6" % (T + 1))
        a("v_lshlrev_b32 v6, 12, v6")
        a("v_and_b32 v7, 3, v4")
        a("v_lshl_add_u32 v6, v7, 8, v6")
        a("v_lshl_add_u32 v6, v3, 4, v6")
        a("v_lshl_add_u32 v7, v%d, 3, v3" % (T + 1))
        a("v_lshlrev_b32 v7, 3, v7")
        a("v_add_u32 v7, %d, v7" % (5 * STAGE))
        a("v_lshlrev_b32 v60, 3, v3")
        a("v_add_u32 v60, %d, v60" % (5 * STAGE))
        stampr("k3")
        if LXD:
            for i in range(4):
                a.wait(vm=("LX", i))
                if i == 0: stampr("k4")
                a("ds_read_b128 %s, v83 offset:%d" % (r4("v", 8 + 4 * i), i * 1024))
            a("s_waitcnt lgkmcnt(0)")
        elif not cfg.get("f_lxp", 1): a.wait(vm=("LX", 3))
        stampr("lnx")
        if TB0 == 2: touchb2()
        lo_ = ln_ops(cfg.get("f_lnex", 1))
        gap_ = cfg.get("f_lngap", 20)
        for k, x in enumerate(lo_):
            if x.startswith("WAIT"): a.wait(vm=("LX", int(x[4:])))
            elif x.startswith("STORE"):
                i = int(x[5:])
                a.vmem("buffer_store_dwordx4 %s, v6, %s, s%d offen sc1" % (r4("v", 8 + 4 * i), s4(R_WS), t3), "XS")
                if i < 3: a("s_add_u32 s%d, s%d, %d" % (t3, t3, 8192))
            else: a(x)
            if k % gap_ == gap_ - 1 and bops and k < cfg.get("f_lnk", 110): issue1(bops.pop(0))
        bops += late_b
        if cfg.get("f_bnow", 1):
            while bops: issue1(bops.pop(0))
        stampr("lns")
    else:
        for _ in range(cfg.get("f_pro1", 15)): issue1(order.pop(0))

    srd(a, R_W2, P_W2, DFF * D * 2)
    srd(a, R_WO, P_WO, D * D * 2)
    a("s_bfe_u32 s%d, s2, 0x30003" % sCLS)
    a("v_bfrev_b32 v%d, 1" % (T + 6))
    if cfg.get("f_pf", 0):
        a("s_lshr_b32 s%d, s2, 6" % t1)
        a("s_lshl_b32 s%d, s%d, 2" % (t1, t1))
        a("s_add_u32 s%d, s%d, s%d" % (t1, t1, sW))
        a("v_bfrev_b32 v%d, 1" % (T + 6))
        a("v_lshrrev_b32 v%d, 5, v%d" % (T + 2, L))
        a("s_lshl_b32 s%d, s%d, 1" % (t0, t1))
        a("v_add_u32 v%d, s%d, v%d" % (T + 2, t0, T + 2))
        a("v_and_b32 v%d, 31, v%d" % (T + 3, L))
        a("v_mul_u32_u24 v%d, 7168, v%d" % (V_P1, T + 2))
        a("v_lshl_add_u32 v%d, v%d, 7, v%d" % (V_P1, T + 3, V_P1))
        a("s_mul_i32 s%d, s%d, 1792" % (t0, sQ))
        a("v_add_u32 v%d, s%d, v%d" % (V_P1, t0, V_P1))
        a("v_mul_u32_u24 v%d, 6144, v%d" % (V_P0, T + 2))
        a("v_lshrrev_b32 v%d, 2, v%d" % (T + 4, T + 3))
        a("v_lshl_add_u32 v%d, v%d, 11, v%d" % (V_P0, T + 4, V_P0))
        a("v_and_b32 v%d, 3, v%d" % (T + 4, T + 3))
        a("v_lshl_add_u32 v%d, v%d, 7, v%d" % (V_P0, T + 4, V_P0))
        a("s_lshl_b32 s%d, s%d, 9" % (t0, sQ))
        a("v_add_u32 v%d, s%d, v%d" % (V_P0, t0, V_P0))
        a("v_cmp_le_u32 vcc, 12, v%d" % (T + 3))
        a("s_and_b32 s%d, s2, 1" % t0)
        a("s_lshl_b32 s%d, s%d, 4" % (t0, t0))
        a("v_cndmask_b32 v%d, v%d, v%d, vcc" % (V_P0, V_P0, T + 6))
        a("v_cmp_le_u32 vcc, 14, v%d" % (T + 3))
        a("s_add_u32 s%d, s%d, s%d" % (t0, t0, t1))
        a("s_lshl_b32 s%d, s%d, 17" % (t0, t0))
        a("v_cndmask_b32 v%d, v%d, v%d, vcc" % (V_P1, V_P1, T + 6))
        a("s_add_u32 s%d, s%d, 0x%x" % (t0, t0, WS_XN))
        a("v_lshlrev_b32 v%d, 7, v%d" % (V_P2, L))
        a("v_add_u32 v%d, s%d, v%d" % (V_P2, t0, V_P2))
        a("v_cmp_le_u32 vcc, 32, v%d" % L)
        a("s_lshl_b32 s%d, s%d, 12" % (t0, sCLS))
        a("s_nop 0")
        a("v_cndmask_b32 v%d, v%d, v%d, vcc" % (V_P2, V_P2, T + 6))
    PFM = cfg.get("f_pf", 0)
    PF0 = cfg.get("f_pf0", 8)
    if PFM & 2:
        a("buffer_load_dword a%d, v%d, %s, s%d offen" % (A_PD, V_P2, s4(R_WS), t0))
    def touch(n):
        lab = a.newlabel("F_pf")
        a("s_cmp_lg_u32 s%d, %d" % (sCLS, n & 7))
        a("s_cbranch_scc1 %s" % lab)
        if PFM & 1:
            a("s_mov_b32 s%d, %d" % (t0, n * 32 * 6144))
            a("s_mov_b32 s%d, %d" % (t1, n * 32 * 7168))
            a("buffer_load_dword a%d, v%d, %s, s%d offen" % (A_PD, V_P0, s4(R_WQ), t0))
            a("buffer_load_dword a%d, v%d, %s, s%d offen" % (A_PD - 1, V_P1, s4(R_W1), t1))
        if PFM & 2:
            a("s_mov_b32 s%d, %d" % (t0, n * 4096))
            a("buffer_load_dword a%d, v%d, %s, s%d offen" % (A_PD, V_P2, s4(R_WS), t0))
        a.label(lab)
    if PFM & 4:
        a("s_and_b32 s%d, s2, 1" % t0)
        a("v_lshrrev_b32 v%d, 5, v%d" % (T + 2, L))
        a("v_cmp_ne_u32 vcc, s%d, v%d" % (t0, T + 2))
        a("s_nop 1")
        a("v_cndmask_b32 v%d, v%d, v%d, vcc" % (V_P0, V_P0, T + 6))
        a("v_cndmask_b32 v%d, v%d, v%d, vcc" % (V_P1, V_P1, T + 6))
    PW = cfg.get("f_pw", 2); PW0 = cfg.get("f_pw0", 12)
    V_PW = 231
    a("v_lshlrev_b32 v%d, 7, v%d" % (V_PW, L))
    a("v_cmp_le_u32 vcc, 56, v%d" % L)
    a("s_nop 1")
    a("v_cndmask_b32 v%d, v%d, v%d, vcc" % (V_PW, V_PW, T + 6))
    ASY = cfg.get("f_asy", 1)
    if ASY:
        if cfg.get("f_xcc", 0):
            a("s_getreg_b32 s%d, hwreg(HW_REG_XCC_ID)" % t0)
            a("s_and_b32 s%d, s%d, 1" % (t0, t0))
        else: a("s_bfe_u32 s%d, s2, 0x%x" % (t0, 0x10001 if SWP else 0x10000))
        if ASY == 2: a("s_xor_b32 s%d, s%d, 1" % (t0, t0))
        a("s_lshl_b32 s%d, s%d, 4" % (t0, t0))
        a("s_or_b32 s%d, s%d, s%d" % (sCLS, sCLS, t0))
    HOT = cfg.get("f_hot", 0); LO = cfg.get("f_lo", 64)
    if HOT:
        a("s_bfe_u32 s%d, s2, 0x30003" % sCLS)
        a("s_and_b32 s%d, s%d, 14" % (t0, sJ))
        a("s_cmp_eq_u32 s%d, 6" % t0)
        a("s_cselect_b32 s%d, 16, s%d" % (sCLS, sCLS))
        if LO == 0:
            a("s_bitcmp1_b32 s2, 0")
            a("s_cselect_b32 s%d, 16, s%d" % (sCLS, sCLS))
        a("v_lshlrev_b32 v%d, 7, v%d" % (V_PW, L))
    def toucht(cls):
        lab = a.newlabel("F_pw"); l2 = a.newlabel("F_po")
        def ex(n):
            m_ = (1 << n) - 1
            a("s_mov_b32 exec_lo, 0x%x" % (m_ & 0xffffffff)); a("s_mov_b32 exec_hi, 0x%x" % (m_ >> 32))
        a("s_cmp_lg_u32 s%d, %d" % (sCLS, cls))
        a("s_cbranch_scc1 %s" % lab)
        a("s_add_u32 s%d, s%d, 8" % (t0, sJ))
        a("s_lshr_b32 s%d, s%d, 4" % (t0, t0))
        a("s_lshl_b32 s%d, s%d, 1" % (t0, t0))
        a("s_sub_u32 s%d, s%d, s%d" % (t0, sJ, t0))
        a("s_lshl_b32 s%d, s%d, 2" % (t0, t0))
        a("s_and_b32 s%d, s%d, 3" % (t1, sI))
        a("s_add_u32 s%d, s%d, s%d" % (t0, t0, t1))
        a("s_lshl_b32 s%d, s%d, 2" % (t0, t0))
        a("s_add_u32 s%d, s%d, s%d" % (t0, t0, sW))
        a("s_lshl_b32 s%d, s%d, 14" % (t1, t0))
        a("s_bitcmp1_b32 s2, 0")
        a("s_cbranch_scc1 %s" % l2)
        a("buffer_load_dword a%d, v%d, %s, s%d offen" % (A_PD, V_PW, s4(R_W2), t1))
        if LO < 64:
            a("s_add_u32 s%d, s%d, 8192" % (t1, t1))
            ex(64 - LO)
            a("buffer_load_dword a%d, v%d, %s, s%d offen" % (A_PD, V_PW, s4(R_W2), t1))
        a("s_mul_i32 s%d, s%d, %d" % (t1, t0, 37 * 128))
        ex(37)
        a("buffer_load_dword a%d, v%d, %s, s%d offen" % (A_PD - 1, V_PW, s4(R_WO), t1))
        a("s_mov_b64 exec, -1")
        a("s_branch %s" % lab)
        a.label(l2)
        if LO:
            a("s_add_u32 s%d, s%d, %d" % (t1, t1, (128 - LO) * 128))
            ex(LO)
            a("buffer_load_dword a%d, v%d, %s, s%d offen" % (A_PD, V_PW, s4(R_W2), t1))
            a("s_mov_b64 exec, -1")
        a.label(lab)
    def touchw(cls, flip=0):
        lab = a.newlabel("F_pw")
        if cls is not None:
            a("s_cmp_lg_u32 s%d, %d" % (sCLS, cls))
            a("s_cbranch_scc1 %s" % lab)
        if flip:
            a("s_xor_b32 s%d, s2, %d" % (t0, 2 if SWP else 1))
            a("s_lshl_b32 s%d, s%d, 2" % (t0, t0))
        else: a("s_lshl_b32 s%d, s2, 2" % t0)
        a("s_add_u32 s%d, s%d, s%d" % (t0, t0, sW))
        a("s_mul_i32 s%d, s%d, 7168" % (t1, t0))
        a("buffer_load_dword a%d, v%d, %s, s%d offen" % (A_PD, V_PW, s4(R_W2), t1))
        a("s_lshl_b32 s%d, s%d, 11" % (t1, t0))
        a("s_mov_b64 exec, 0xffff")
        a("buffer_load_dword a%d, v%d, %s, s%d offen" % (A_PD - 1, V_PW, s4(R_WO), t1))
        a("s_mov_b64 exec, -1")
        a.label(lab)
    def touchp(k):
        a("s_lshl_b32 s%d, s2, 2" % t0)
        a("s_add_u32 s%d, s%d, s%d" % (t0, t0, sW))
        if k < 2:
            a("s_mul_i32 s%d, s%d, 7168" % (t1, t0))
            a("s_mov_b64 exec, 0xfffffff")
            a.vmem("buffer_load_dword a%d, v%d, %s, s%d offen offset:%d" % (A_PD, V_PW, s4(R_W2), t1, k * 3584), "T")
        else:
            a("s_lshl_b32 s%d, s%d, 11" % (t1, t0))
            a("s_mov_b64 exec, 0xffff")
            a.vmem("buffer_load_dword a%d, v%d, %s, s%d offen" % (A_PD, V_PW, s4(R_WO), t1), "T")
        a("s_mov_b64 exec, -1")
    def touchx(k):
        a("s_lshr_b32 s%d, s2, 3" % t0)
        a("s_lshl_b32 s%d, s%d, 2" % (t0, t0))
        a("s_add_u32 s%d, s%d, s%d" % (t0, t0, sW))
        a("s_lshl_b32 s%d, s%d, 7" % (t1, sQ))
        a("s_add_u32 s%d, s%d, s%d" % (t0, t0, t1))
        if k < 2:
            a("s_mul_i32 s%d, s%d, 14336" % (t1, t0))
            if k: a("s_add_u32 s%d, s%d, 7168" % (t1, t1))
            a("buffer_load_dword a%d, v%d, %s, s%d offen" % (A_PD - k, V_PW, s4(R_W2), t1))
        else:
            a("s_lshl_b32 s%d, s%d, 12" % (t1, t0))
            a("s_mov_b32 exec_hi, 0")
            a("buffer_load_dword a%d, v%d, %s, s%d offen" % (A_PD, V_PW, s4(R_WO), t1))
            a("s_mov_b32 exec_hi, -1")
    pfq = list(range(PF0, KS)) if PFM else []
    PFA = cfg.get("f_pfa", 30)
    a("v_lshrrev_b32 v%d, 5, v%d" % (T + 2, L))
    a("v_mul_u32_u24 v%d, %d, v%d" % (T + 2, REG, T + 2))
    a("v_and_b32 v%d, 3, v%d" % (T + 3, L))
    a("v_lshl_add_u32 v%d, v%d, 3, v%d" % (T + 2, T + 3, T + 2))
    a("v_bfe_u32 v%d, v%d, 2, 2" % (T + 3, L))
    a("v_bfe_u32 v%d, v%d, 4, 1" % (T + 4, L))
    a("v_mul_u32_u24 v%d, 192, v%d" % (V_RD, T + 3))
    a("v_add_u32 v%d, v%d, v%d" % (V_RD, V_RD, T + 2))
    a("v_mul_u32_u24 v%d, %d, v%d" % (T + 5, 8 * 192 + 32, T + 4))
    a("v_add_u32 v%d, v%d, v%d" % (V_RD, V_RD, T + 5))
    a("v_xor_b32 v%d, 32, v%d" % (V_RD + 1, V_RD))
    a("v_lshl_add_u32 v%d, v%d, 5, v%d" % (V_RD + 2, T + 3, T + 2))
    a("v_lshl_add_u32 v%d, v%d, 7, v%d" % (V_RD + 2, T + 4, V_RD + 2))
    for st_ in (1, 2):
        for x in range(3):
            a("v_add_u32 v%d, %d, v%d" % (V_RD + 3 * st_ + x, st_ * 2 * STAGE, V_RD + x))
    a("s_lshl_b32 s%d, s%d, 7" % (sKV, sJ))
    a("s_lshl_b32 s%d, s%d, 4" % (t0, sI))
    a("s_add_u32 s%d, s%d, s%d" % (sKV, sKV, t0))
    a("s_lshl_b32 s%d, s%d, 2" % (t0, sW))
    a("s_add_u32 s%d, s%d, s%d" % (sKV, sKV, t0))
    a("s_lshl_b32 s%d, s%d, 10" % (sKV, sKV))
    a("s_add_u32 s%d, s%d, 0x%x" % (sKV2, sKV, WS_V))
    a("s_add_u32 s%d, s%d, 0x%x" % (sKV, sKV, WS_K))
    a("s_sub_u32 s%d, s%d, 16384" % (sKP, sKV))
    a("s_sub_u32 s%d, s%d, 16384" % (sKP2, sKV2))
    a("s_cmp_eq_u32 s%d, 0" % sI)
    a("s_cselect_b32 s%d, 0x40000000, s%d" % (sKP, sKP))
    a("s_cselect_b32 s%d, 0x40000000, s%d" % (sKP2, sKP2))
    a("s_lshl_b32 s%d, s2, 2" % sFO)
    a("s_add_u32 s%d, s%d, s%d" % (sFO, sFO, sW))
    a("s_lshl_b32 s%d, s%d, 7" % (sFO, sFO))
    a("s_add_u32 s%d, s%d, 0x%x" % (sFO, sFO, WS_FL))
    a("s_add_u32 s%d, s%d, 1" % (t0, sI))
    a("s_and_b32 s%d, s%d, 3" % (t1, t0))
    a("s_lshl_b32 s%d, s%d, 3" % (t1, t1))
    a("s_lshr_b32 s%d, s%d, 2" % (t0, t0))
    a("s_or_b32 s%d, s%d, s%d" % (t1, t1, t0))
    a("s_and_b32 s%d, s2, 0xe6" % t0)
    a("s_or_b32 s%d, s%d, s%d" % (t1, t1, t0))
    a("s_lshl_b32 s%d, s%d, 2" % (t1, t1))
    a("s_add_u32 s%d, s%d, s%d" % (t1, t1, sW))
    a("s_lshl_b32 s%d, s%d, 7" % (t1, t1))
    a("s_add_u32 s%d, s%d, 0x%x" % (sFK, t1, WS_FL + 12))
    a("s_cmp_eq_u32 s%d, 7" % sI)
    a("s_cselect_b32 s%d, 0x40000000, s%d" % (sFK, sFK))
    if cfg.get("f_k7", 1):
        a("s_cselect_b32 s%d, 0x40000000, s%d" % (sKV, sKV))
        a("s_cselect_b32 s%d, 0x40000000, s%d" % (sKV2, sKV2))
    a("v_cmp_ne_u32 vcc, 0, v%d" % L)
    a("v_mov_b32 v%d, 1" % V_ONE)
    a("v_and_b32 v%d, 31, v%d" % (V_PL, L))
    a("v_cndmask_b32 v%d, 0, v%d, vcc" % (V_FL0, T + 6))
    a("v_lshlrev_b32 v%d, 2, v%d" % (V_PL, V_PL))
    a("s_and_b32 s%d, s2, 31" % t0)
    a("s_lshl_b32 s%d, s%d, 2" % (t0, t0))
    a("s_add_u32 s%d, s%d, s%d" % (t0, t0, sW))
    a("s_lshl_b32 s%d, s%d, 7" % (t0, t0))
    a("s_lshl_b32 s%d, s%d, 2" % (t1, sN))
    a("s_add_u32 s%d, s%d, s%d" % (t0, t0, t1))
    a("s_add_u32 s%d, s%d, 0x%x" % (t0, t0, WS_FL))
    a("v_lshlrev_b32 v%d, 14, v%d" % (V_FG, L))
    a("v_add_u32 v%d, s%d, v%d" % (V_FG, t0, V_FG))
    a("v_cmp_le_u32 vcc, 8, v%d" % L)
    a("s_lshl_b32 s%d, s%d, 12" % (t0, sW))
    a("s_add_u32 s%d, s%d, %d" % (t0, t0, KVB))
    a("v_cndmask_b32 v%d, v%d, v%d, vcc" % (V_FG, V_FG, T + 6))
    a("v_add_u32 v%d, s%d, v%d" % (V_KVW, t0, V_L16))
    a("s_lshl_b32 s%d, s%d, 2" % (t0, sI))
    a("s_add_u32 s%d, s%d, s%d" % (t0, t0, sW))
    a("s_lshl_b32 s%d, s%d, 17" % (sXO, t0))
    a("s_mul_i32 s%d, s%d, 144" % (t0, t0))
    a("s_mul_i32 s%d, s%d, 36" % (t1, sQ))
    a("s_add_u32 s%d, s%d, s%d" % (t0, t0, t1))
    a("s_lshl_b32 s%d, s%d, 12" % (t0, t0))
    a("s_add_u32 s%d, s%d, 0x%x" % (t0, t0, WS_A2))
    a("s_add_u32 s%d, s%d, %d" % (sAE, t0, 28 * 4096))
    a("s_lshl_b32 s%d, s%d, 12" % (t1, sN))
    a("s_add_u32 s%d, s%d, s%d" % (sO, sAE, t1))
    a("s_lshr_b32 s%d, s%d, 1" % (t1, t1))
    a("s_add_u32 s%d, s%d, s%d" % (sH + 3, t0, t1))
    a("s_add_u32 s%d, s%d, %d" % (sH + 3, sH + 3, 24 * 4096))
    a("s_mul_i32 s%d, s%d, %d" % (t1, sN, 3 * 4096))
    a("s_add_u32 s%d, s%d, s%d" % (sH, t0, t1))
    a("s_add_u32 s%d, s%d, 4096" % (sH + 1, sH))
    a("s_add_u32 s%d, s%d, 8192" % (sH + 2, sH))
    a("s_lshl_b32 s%d, s%d, 8" % (t0, sN))
    a("s_add_u32 s%d, s%d, s%d" % (sXO, sXO, t0))
    a("s_lshl_b32 s%d, s%d, 6" % (t0, sQ))
    a("s_add_u32 s%d, s%d, s%d" % (sXO, sXO, t0))
    a("s_mov_b32 s%d, 0x%x" % (sSC, f2u(QSCALE)))
    def spin(mask, skip_if_i0=False):
        l0 = a.newlabel("F_sp"); l1 = a.newlabel("F_ok")
        if skip_if_i0:
            a("s_cmp_eq_u32 s%d, 0" % sI)
            a("s_cbranch_scc1 %s" % l1)
        a("s_mov_b32 s%d, 0x%x" % (sSP, SPIN))
        a.label(l0)
        a("v_cmp_ne_u32 vcc, 0, v%d" % V_POLL)
        a("s_and_b32 s%d, vcc_lo, 0x%x" % (t0, mask))
        a("s_cmp_eq_u32 s%d, 0x%x" % (t0, mask))
        a("s_cbranch_scc1 %s" % l1)
        a("buffer_load_dword v%d, v%d, %s, s%d offen sc1" % (V_POLL, V_PL, s4(R_WS), sFO))
        a("s_sub_u32 s%d, s%d, 1" % (sSP, sSP))
        a("s_waitcnt vmcnt(0)")
        a("s_cbranch_scc0 %s" % l0)
        a.label(l1)
    def poll_issue(tag):
        a.vmem("buffer_load_dword v%d, v%d, %s, s%d offen sc1" % (V_POLL, V_PL, s4(R_WS), sFO), tag)

    if FLN:
        while bops: issue1(bops.pop(0))
        if PW & 8: touchw(None)
        nb2 = cfg.get("f_lnb2", 3)
        b2 = [o for o in order if o[0] == "B" and o[1] < nb + nb2]
        for o in b2: order.remove(o)
        if BO == 1: b2 = [o for o in b2 if o[2] >= 3] + [o for o in b2 if o[2] < 3]
        if BO == 2: b2 = [o for o in b2 if o[2] < 3] + [o for o in b2 if o[2] >= 3]
        for _ in range(cfg.get("f_lnb2e", 0)): issue1(b2.pop(0))
        if PW & 8: a.vm += ["T", "T"]
        a.wait(vm="XS")
        stampr("lnd")
        a("s_barrier")
        lab = a.newlabel("F_ln"); l2 = a.newlabel("F_lp"); l3 = a.newlabel("F_lq"); l4 = a.newlabel("F_la")
        a("s_lshl_b32 s%d, s%d, 5" % (t0, sI))
        a("v_mov_b32 v1, s%d" % t0)
        a("s_cmp_lg_u32 s%d, 0" % sW)
        a("s_cbranch_scc1 %s" % lab)
        a("v_add_u32 v82, 1, v81")
        a("s_lshl_b64 exec, 1, s%d" % sJ)
        a("buffer_store_dword v82, v80, %s, 0 offen sc1" % s4(R_WS))
        a("s_mov_b64 exec, -1")
        a.label(lab)
        while b2: issue1(b2.pop(0))
        if PW & 16: touchw(None)
        a("s_cmp_lg_u32 s%d, 1" % sW)
        a("s_cbranch_scc1 %s" % l4)
        a("s_mov_b64 exec, 1")
        a("global_atomic_add v1, v%d, s[100:101] sc1" % V_ONE)
        a("s_mov_b64 exec, -1")
        a.label(l4)
        PALL = cfg.get("f_pall", 0)
        if not PALL:
            a("s_cmp_lg_u32 s%d, 0" % sW)
            a("s_cbranch_scc1 %s" % l3)
        else:
            a("s_lshl_b32 s%d, s%d, 3" % (t1, sW))
            a("s_lshl_b32 s%d, 0xff, s%d" % (t1, t1))
        a("s_mov_b32 s%d, 0x%x" % (sSP, SPIN))
        a.label(l2)
        a("buffer_load_dword v82, v80, %s, 0 offen sc1" % s4(R_WS))
        a("s_waitcnt vmcnt(0)")
        a("v_cmp_ne_u32 vcc, v81, v82")
        if PALL:
            a("s_and_b32 s%d, vcc_lo, s%d" % (t0, t1))
            a("s_cmp_eq_u32 s%d, s%d" % (t0, t1))
        else: a("s_cmp_eq_u32 vcc_lo, -1")
        a("s_cbranch_scc1 %s" % l3)
        a("s_sub_u32 s%d, s%d, 1" % (sSP, sSP))
        a("s_cbranch_scc1 %s" % l3)
        a("s_and_b32 s%d, s%d, 7" % (t0, sSP))
        a("s_cbranch_scc1 %s" % l2)
        a("global_load_dword v2, v1, s[100:101] sc1")
        a("s_waitcnt vmcnt(0)")
        a("v_readfirstlane_b32 s%d, v2" % t0)
        a("s_cmp_lt_u32 s%d, 32" % t0)
        a("s_cbranch_scc1 %s" % l2)
        a.label(l3)
        if not PALL: a("s_barrier")
        stampr("lnp")
        for _ in range(8): issue1(order.pop(0))
        order[:0] = bops
    gi = []
    def grp(units, s0, s1, tiles, C):
        s = s0
        while s < s1:
            c = min(C, s1 - s)
            for t in tiles:
                g0 = len(units); gn = gi[-1][2] + 1 if gi else 0
                for k in range(c):
                    units.append((s + k, t)); gi.append((g0, c, gn))
            s += c
    units = []
    grp(units, 0, C1S, range(NT), 2)
    C1E = cfg.get("f_c1e", S1)
    grp(units, C1S, C1E, range(NT), C1)
    grp(units, C1E, S1, range(NT), 2)
    grp(units, S1, KS, (2, 3, 4, 5), C1K)
    UKV = len(units)
    grp(units, S1, KS, (6, 7, 8, 9), C1T)
    UH01 = len(units)
    grp(units, S1, KS, (10, 11, 12, 0, 1), C1T)
    NU = len(units)
    last_unit_of_stage = {}
    last_unit_of_step = {}
    for u, (s, t) in enumerate(units):
        last_unit_of_stage[s // 2] = u; last_unit_of_step[s] = u
    stt = dict(ready=-1, free=set(), waited=-1, issued=-1)
    def barrier():
        a("s_barrier")
        for g, lu in last_unit_of_stage.items():
            if lu <= stt["waited"]: stt["free"].add(g)
    def can1(op):
        if op[0] == "B": return op[1] < NS or (op[1] - NS) in stt["free"]
        return op[1] < RA or last_unit_of_step[op[1] - RA] <= stt["issued"]
    def flush1(tag):
        while any(o[:2] == tag for o in order):
            op = order.pop(0)
            assert can1(op), (op, stt)
            if cfg.get("verbose"): print("late flush", op, file=sys.stderr)
            issue1(op)
    def bread1(u, j2):
        s, t = units[u]
        slot = slot1(s // 2); st_ = slot // 2
        off = (slot % 2) * STAGE + (s % 2) * 2 * REG
        if t < 12: off += j2 * 768 + (t // 6) * 3072 + ((t // 2) % 3) * 64; vr = V_RD + 3 * st_ + (t % 2)
        else: off += 6144 + j2 * 256; vr = V_RD + 3 * st_ + 2
        a.lds("ds_read_b64_tr_b16 %s, v%d offset:%d" % (r2("a", BR + (u % RB) * 4 + j2 * 2), vr, off), ("b", u))
    def need1(u):
        g = units[u][0] // 2
        if g > stt["ready"]:
            flush1(("B", g)); a.wait(vm=("B", g)); barrier(); stt["ready"] = g
    def pack(c0, c1, relu=False):
        ops = []
        for hh, c in enumerate((c0, c1)):
            if c is None: continue
            for e2 in range(2):
                ops.append("v_cvt_pk_bf16_f32 v%d, v%d, v%d" % (c0 + 2 * hh + e2, c + 2 * e2, c + 2 * e2 + 1))
            if relu:
                for e2 in range(2):
                    ops.append("v_pk_max_i16 v%d, v%d, 0" % (c0 + 2 * hh + e2, c0 + 2 * hh + e2))
        return ops
    HF = ["sc1", "", "nt", "sc0"][cfg.get("f_hf", 0)]
    def hstore(p, mt):
        if p < 3: a.vmem("buffer_store_dwordx4 %s, v%d, %s, s%d offen offset:%d %s" % (r4("v", acc(mt, 6 + 2 * p)), V_L16, s4(R_WS), sH + p, mt * 1024, HF), "H")
        else: a.vmem("buffer_store_dwordx2 %s, v%d, %s, s%d offen offset:%d %s" % (r2("v", acc(mt, 12)), 211, s4(R_WS), sH + 3, mt * 512, HF), "L" if cfg.get("f_ll", 1) else "H")
    need1(0)
    stampr("bar0")
    for u in range(DB):
        need1(u)
        bread1(u, 0); bread1(u, 1)
    kvq = [(acc(mt, 2), acc(mt, 3), sKV, mt * 1024, 16384 + mt * 1024) for mt in range(MT)] + \
          [(acc(2 * b, 4 + dt), acc(2 * b + 1, 4 + dt), sKV2, (2 * b + dt) * 1024, 49152 + (2 * b + dt) * 1024) for b in range(2) for dt in range(2)]
    NREST = NU - UKV
    UFLAG = UKV + cfg.get("f_uf", 28)
    UPOLL = UFLAG + cfg.get("f_up", 14)
    UCHK = min(UPOLL + cfg.get("f_uc", 8), NU - 1)
    UPW = UCHK + cfg.get("f_uw", 14)
    V2_DMA = 209; V_XO = 211; V2_RD = 232; V2_B = 231
    bias = [232, 236, 240, 244]; VONES = 248; VM = 252
    sB2 = sBQ; sBO = sBV
    class Rec:
        def __init__(self): self.l = []
        def __call__(self, x): self.l.append(x)
    su = Rec(); TT = VM
    HO = 0
    su("v_lshrrev_b32 v%d, 4, v%d" % (TT, L))
    su("v_lshlrev_b32 v%d, 11, v%d" % (V2_DMA, TT))
    su("v_lshlrev_b32 v%d, 1, v%d" % (TT, TT))
    su("v_and_b32 v%d, 15, v%d" % (TT + 1, L))
    su("v_xor_b32 v%d, v%d, v%d" % (TT, TT, TT + 1))
    su("v_lshl_add_u32 v%d, v%d, 4, v%d" % (V2_DMA, TT, V2_DMA))
    su("s_and_b32 s%d, s%d, 1" % (t1, sW))
    su("s_lshl_b32 s%d, s%d, 7" % (t1, t1))
    su("v_xor_b32 v%d, s%d, v%d" % (V2_DMA, t1, V2_DMA))
    su("v_add_u32 v%d, %d, v%d" % (V2_DMA + 1, 32768 - 1024, V2_DMA))
    su("v_lshrrev_b32 v%d, 4, v%d" % (TT, L))
    su("v_lshlrev_b32 v%d, 2, v%d" % (TT, TT))
    for e in range(4):
        su("v_add_u32 v%d, %d, v%d" % (TT + 2, e, TT))
        su("v_cmp_le_u32 s[%d:%d], v%d, v%d" % (sMK + 2 * e, sMK + 2 * e + 1, TT + 2, TT + 1))
    su("s_lshl_b32 s%d, s%d, 13" % (t2, sW))
    su("s_lshl_b32 s%d, s%d, 8" % (t1, sN))
    su("s_add_u32 s%d, s%d, s%d" % (t2, t2, t1))
    su("s_lshl_b32 s%d, s%d, 19" % (sBO, sQ))
    su("s_add_u32 s%d, s%d, s%d" % (sBO, sBO, t2))
    su("s_mul_i32 s%d, s%d, %d" % (sB0, sQ, 896 * 2048))
    su("s_add_u32 s%d, s%d, s%d" % (sB0, sB0, t2))
    su("s_mul_i32 s%d, s%d, 7" % (t1, sN))
    su("s_add_u32 s%d, s%d, s%d" % (t1, t1, sJ1))
    su("s_lshl_b32 s%d, s%d, 15" % (t1, t1))
    su("s_add_u32 s%d, s%d, s%d" % (sB2, sB0, t1))
    LIN = cfg.get("f_lin", 1)
    if LIN:
        su("s_sub_u32 s%d, s%d, %d" % (sA, sAE, 28 * 4096))
        su("s_mov_b32 s%d, s%d" % (sAE, sH))
        su("s_add_u32 s%d, s%d, %d" % (sA0, sH, 3 * 4096))
        su("s_mov_b32 s%d, s%d" % (sBW, sB0))
    else:
        su("s_add_u32 s%d, s%d, %d" % (sA, sH, 3 * 4096))
        su("s_sub_u32 s%d, s%d, %d" % (sA0, sAE, 28 * 4096))
    su("s_cmp_eq_u32 s%d, s%d\ns_cselect_b32 s%d, s%d, s%d" % (sA, sAE, sA, sA0, sA))
    su0 = su.l; su = Rec()
    KS2 = 36
    LOC = [(0, 1), (1, 1), (2, 1), (0, 3), (1, 3), (2, 3), (0, 5), (1, 5), (2, 5), (3, 1), (3, 3), (3, 5), (4, 1), (4, 3), (4, 5)]
    NSL = len(LOC)
    def dma2_txt(p):
        sb, so = (R_W2, sB2) if p < 28 else (R_WO, sBO)
        sl, pos = LOC[p % NSL]
        ops = [(0, "s_add_u32 m0, s%d, %d" % (sLB, sl * STAGE + pos * 1024)),
               (1, "buffer_load_dwordx4 v%d, %s, s%d offen lds" % (V2_DMA, s4(sb), so)),
               (1, "buffer_load_dwordx4 v%d, %s, s%d offen offset:1024 lds" % (V2_DMA + 1, s4(sb), so))]
        R_ = lambda n_: (112 * n_ + 16 * (n_ & 1)) * 2048
        if p <= 20 and p % 3 == 2:
            g_ = (p - 2) // 3
            ops.append((0, "s_cmp_le_u32 s%d, %d\ns_cselect_b32 s%d, %d, 0" % (sN, g_, sB0, R_(g_ + 1) - R_(g_))))
            ops.append((0, "s_add_u32 s%d, s%d, s%d" % (sB2, sBW, sB0)))
            if g_: ops.append((0, "s_add_u32 s%d, s%d, %d" % (sB2, sB2, R_(g_))))
        elif p == 23: ops.append((0, "s_add_u32 s%d, s%d, %d" % (sB2, sBW, 96 * 2048)))
        elif 24 <= p < 27: ops.append((0, "s_add_u32 s%d, s%d, %d" % (sB2, sB2, 224 * 2048)))
        elif p != 27 and p != 35: ops.append((0, "s_add_u32 s%d, s%d, 65536" % (so, so)))
        return ops
    def dma2_ops(p):
        return [(k, (lambda x=x: a.vmem(x, ("B2", p))) if k else (lambda x=x: a(x))) for k, x in dma2_txt(p)]
    def hole_ops(ps):
        o = []
        for p in ps:
            for k, x in dma2_txt(p):
                if k: o += [("m", lambda x=x, p=p: a.vmem(x, ("B2", p)))] + [None] * cfg.get("f_hosp", 3)
                else: o += [x] + ([None] if "m0" in x else [])
        return o
    su("s_lshl_b32 s%d, s%d, 2" % (t1, sI))
    su("s_add_u32 s%d, s%d, s%d" % (t1, t1, sW))
    for gq in range(4):
        su("s_cmp_lt_u32 s%d, %d\ns_cselect_b32 s%d, 0x%x, 0" % (t1, 4 - gq, t2, f2u(-1e30)))
        for e in range(4): su("v_mov_b32 v%d, s%d" % (bias[gq] + e, t2))
    for e in range(4): su("v_mov_b32 v%d, 0x3f803f80" % (VONES + e))
    su("v_lshrrev_b32 v%d, 2, v%d" % (TT, L))
    su("v_and_b32 v%d, 7, v%d" % (TT + 2, TT))
    su("v_and_b32 v%d, 3, v%d" % (TT, TT))
    su("v_lshlrev_b32 v%d, 8, v%d" % (TT, TT))
    su("v_lshrrev_b32 v%d, 4, v%d" % (TT + 1, L))
    su("v_mul_u32_u24 v%d, %d, v%d" % (TT + 1, REG, TT + 1))
    su("v_add_u32 v%d, v%d, v%d" % (TT, TT, TT + 1))
    su("v_and_b32 v%d, 3, v%d" % (TT + 1, L))
    su("v_lshl_add_u32 v%d, v%d, 3, v%d" % (TT, TT + 1, TT))
    su("v_lshl_add_u32 v%d, v%d, 5, v%d" % (V2_B, TT + 2, TT))
    su("s_lshl_b32 s%d, s%d, 6" % (t1, sQ))
    su("s_xor_b32 s%d, s%d, 192" % (t1, t1))
    su("v_xor_b32 v%d, s%d, v%d" % (V2_B, t1, V2_B))
    su("v_mov_b32 v%d, 0xffff" % TT)
    su("v_mov_b32 v%d, 0xffff0000" % (TT + 1))
    su("v_cndmask_b32 v%d, 0, v%d, s[%d:%d]" % (VM + 2, TT, sMK, sMK + 1))
    su("v_cndmask_b32 v%d, 0, v%d, s[%d:%d]" % (VM + 3, TT, sMK + 4, sMK + 5))
    su("v_cndmask_b32 v%d, 0, v%d, s[%d:%d]" % (TT, TT + 1, sMK + 2, sMK + 3))
    su("v_cndmask_b32 v%d, 0, v%d, s[%d:%d]" % (TT + 1, TT + 1, sMK + 6, sMK + 7))
    su("v_or_b32 v%d, v%d, v%d" % (VM + 2, VM + 2, TT))
    su("v_or_b32 v%d, v%d, v%d" % (VM + 3, VM + 3, TT + 1))
    SPF = cfg.get("f_spf", 0)
    if SPF:
        su("s_lshr_b32 s%d, s2, 3" % t1)
        su("s_lshl_b32 s%d, s%d, 1" % (t1, t1))
        su("s_and_b32 s%d, s2, 1" % t2)
        su("s_add_u32 s%d, s%d, s%d" % (t1, t1, t2))
        su("s_lshl_b32 s%d, s%d, 2" % (t1, t1))
        su("s_add_u32 s%d, s%d, s%d" % (t1, t1, sW))
        su("s_lshl_b32 s%d, s%d, 7" % (t1, t1))
        su("s_mul_i32 s%d, s%d, %d" % (t2, sQ, 14336 * 128))
        su("s_add_u32 s%d, s%d, s%d" % (t2, t2, t1))
        su("s_add_u32 s%d, s%d, s%d\ns_addc_u32 s%d, s%d, 0" % (P_W2, P_W2, t2, P_W2 + 1, P_W2 + 1))
        su("s_add_u32 s%d, s%d, %d\ns_addc_u32 s%d, s%d, 0" % (P_WQ, P_W2, 28 * 32768, P_WQ + 1, P_W2 + 1))
        su("s_lshl_b32 s%d, s%d, 19" % (t2, sQ))
        su("s_add_u32 s%d, s%d, s%d" % (t2, t2, t1))
        su("s_add_u32 s%d, s%d, s%d\ns_addc_u32 s%d, s%d, 0" % (P_WO, P_WO, t2, P_WO + 1, P_WO + 1))
    V_T128 = V_XO
    TCN = cfg.get("f_tc", 0)
    su("v_lshlrev_b32 v%d, 3, v%d" % (211, L))
    if TCN:
        su("s_lshr_b32 s%d, s2, 3" % t1)
        su("s_lshl_b32 s%d, s%d, 1" % (t1, t1))
        su("s_and_b32 s%d, s2, 1" % t2)
        su("s_add_u32 s%d, s%d, s%d" % (t1, t1, t2))
        su("s_lshl_b32 s%d, s%d, 2" % (t1, t1))
        su("s_add_u32 s%d, s%d, s%d" % (t1, t1, sW))
        su("s_lshl_b32 s%d, s%d, 7" % (t1, t1))
        su("s_mul_i32 s%d, s%d, %d" % (sCLS, sQ, 14336 * 128))
        su("s_add_u32 s%d, s%d, s%d" % (sCLS, sCLS, t1))
        su("s_lshl_b32 s%d, s%d, 19" % (t3, sQ))
        su("s_add_u32 s%d, s%d, s%d" % (t3, t3, t1))
    def selftouch(so, half):
        if half: a("s_mov_b32 exec_hi, 0")
        a.vmem("buffer_load_dword a%d, v%d, %s, s%d offen sc1" % (A_PD, V_T128, s4(R_WS), so), "T")
        if half: a("s_mov_b32 exec_hi, -1")
    HK = cfg.get("f_hk", 0)
    if HK:
        assert RA == 12 and D1 == 8 and BR + RB * 4 <= 232 and UPW < NU
        kreg = lambda kt: 128 + 4 * kt if kt < 16 else 232 + 4 * (kt - 16)
        VF = 0
    else:
        kreg = lambda kt: 4 * kt
        VF = 80
    def kread(kt): a.lds("ds_read_b128 %s, v%d offset:%d" % (r4("a", kreg(kt)), V_KVW, kt * 1024), ("k", kt))
    def kpw(x):
        c0, c1, so, go, lo = kvq[x]
        a.wait(vm=("KP", x))
        a.lds("ds_write_b128 v%d, %s offset:%d" % (V_KVW, r4("v", c1), lo - 16384), "kvw")
    def codepf(vreg=None, mask=15):
        if vreg is None: vreg = V_PW
        lab = a.newlabel("F_pc")
        a("s_getpc_b64 s[%d:%d]" % (R_WQ, R_WQ + 1))
        a.label(lab)
        a("s_and_b32 s%d, s%d, 0xffff" % (R_WQ + 1, R_WQ + 1))
        a("s_mov_b32 s%d, CODE_END - %s" % (R_WQ + 2, lab))
        a("s_lshr_b32 s%d, s2, 3" % t0)
        a("s_lshl_b32 s%d, s%d, 2" % (t0, t0))
        a("s_add_u32 s%d, s%d, s%d" % (t0, t0, sW))
        a("s_lshl_b32 s%d, s%d, 9" % (t0, t0))
        a("s_mov_b64 exec, 0x%x" % mask)
        a.vmem("buffer_load_dword a%d, v%d, %s, s%d offen" % (A_PD, vreg, s4(R_WQ), t0), "T")
        a("s_mov_b64 exec, -1")
    seenA = set()
    ramp = (RA - 1 - LA) / float(S1 * NT)
    WM = cfg.get("f_wm", 200) / 100.0
    W0 = cfg.get("f_w0", 100) / 100.0
    UEND = S1 * NT + cfg.get("f_uend", 8)
    wts = [0.0] + [W0 * sum(1 for o in order if (o[1] if o[0] == "B" else o[1] // 2) == g) / 15.0 for g in (1, 2, 3)] + [WM if g % 4 == 0 else 1.0 for g in range(4, 16)]
    ipos = {}
    if cfg.get("f_lw", 0) == 2:
        no = []
        for g in range(16):
            bl = [o for o in order if o[0] == "B" and o[1] == g]; al = [o for o in order if o[0] == "A" and o[1] // 2 == g]
            if len(bl) == 7: mix = [bl[0], al[0], al[1], bl[1], al[2], al[3], bl[2], al[4], bl[3], bl[4], bl[5], bl[6], al[5], al[6], al[7]]
            else: mix = bl + al
            for k, o in enumerate(mix): ipos[o] = k
            no += mix
        order[:] = no
    noB = set(g for g in range(16) if not any(o[0] == "B" and o[1] == g for o in order))
    tau = [0.0]
    for g in range(16): tau.append(tau[-1] + wts[g])
    tau = [x * UEND / tau[-1] for x in tau]
    def due(op):
        g = op[1] if op[0] == "B" else op[1] // 2
        idx = op[2] if op[0] == "B" else 7 + (op[1] % 2) * 4 + op[2]
        if cfg.get("f_wb", 0) and op[0] == "B" and op[2] > 3: idx = 3
        if g in noB: return tau[g] + (tau[g + 1] - tau[g]) * (idx - 7) / 8.0
        if cfg.get("f_lw", 0) == 1:
            lw = [64, 64, 64, 56, 36, 44, 24] + [32] * 8
            return tau[g] + (tau[g + 1] - tau[g]) * sum(lw[:idx]) / float(sum(lw))
        if cfg.get("f_lw", 0) == 2: return tau[g] + (tau[g + 1] - tau[g]) * ipos[op] / 15.0
        return tau[g] + (tau[g + 1] - tau[g]) * idx / 15.0
    DF = cfg.get("f_df", 0); PZ0 = cfg.get("f_pz0", 4)
    THR1 = cfg.get("f_thr1", 63)
    side = G.side
    def prewait1(u):
        u += gi[u][1] - 1
        s, t = units[u]
        if s not in seenA:
            flush1(("A", s)); seenA.add(s)
            r = a.wait(vm=("A", s), lg=("b", u))
        else: r = a.wait(lg=("b", u))
        stt["waited"] = u
        return r
    prewait1(0)
    for u in range(NU):
        u0, C_, gn = gi[u]; kk = u - u0
        s, t = divmod(u, NT) if u < S1 * NT else units[u]
        un = u + DB
        if un < NU: need1(un)
        if u in ((S1 - 4) * NT + 2, (S1 - 2) * NT + 2, S1 * NT + 2): barrier()
        elif cfg.get("f_xb", 0) and u < S1 * NT and u % (2 * NT) == 0 and u > 0: barrier()
        if S1 // 2 <= 12 and u == last_unit_of_stage[12] + 2: barrier()
        if pfq and u % 4 == 2 and pfq[0] - 1 <= (u + PFA) / NT + LA + ramp * (u + PFA): touch(pfq.pop(0))
        if PW & 4:
            for k in range(3):
                if u == S1 * NT + cfg.get("f_px0", 4) + k * cfg.get("f_pxd", 16): touchx(k)
        if PW == 1 and u == UKV - PW0: touchw(None)
        if PW & 3 == 2 and u < S1 * NT and t == 8 and PW0 <= s < PW0 + 8: (toucht if HOT else touchw)((s + 4) & 7)
        PW1 = cfg.get("f_pw1", 4)
        if ASY and not HOT and PW & 3 == 2 and u < S1 * NT and t == 8 and PW1 <= s < PW1 + 8: touchw((s + 4 + PW0 - PW1) & 7, 1)
        if u == 16 * NT: stampr("g1half")
        if u < S1 * NT and t == 0: stampr("g1s%d" % s)
        if u == S1 * NT: stampr("g1tail")
        if u == UKV:
            stampr("g1kv")
            if cfg.get("f_cpf", 1): codepf()
        if DF and u == 3 * NT:
            side += ["v_mov_b32 v%d, -1" % (T + e) for e in range(4)]
            side += ["s_lshl_b32 s%d, s2, 2" % t3, "s_add_u32 s%d, s%d, s%d" % (t3, t3, sW), "s_mul_i32 s%d, s%d, 12288" % (t3, t3),
                     "s_add_u32 s%d, s%d, 0x%x" % (t3, t3, WS_XC),
                     "v_xor_b32 v%d, 3, v%d" % (T + 4, L), "v_lshlrev_b32 v%d, 1, v%d" % (T + 4, T + 4), "v_xor_b32 v%d, s2, v%d" % (T + 4, T + 4),
                     "v_lshlrev_b32 v%d, 9, v%d" % (T + 4, T + 4), "v_lshl_add_u32 v%d, v%d, 2, v%d" % (T + 4, L, T + 4)]
        if DF and u < S1 * NT and t == 4 and PZ0 <= s < PZ0 + 12:
            k_ = s - PZ0
            side.append(("m", lambda k_=k_: a.vmem("buffer_store_dwordx4 %s, v%d, %s, s%d offen offset:%d sc1" % (r4("v", T), V_L16, s4(R_WS), t3, (k_ % 4) * 1024), "PZ")))
            if k_ % 4 == 3: side.append("s_add_u32 s%d, s%d, 4096" % (t3, t3))
        if DF and u == (PZ0 + 14) * NT + 5:
            assert a.vm.count("PZ") == 12
            a.wait(vm="PZ")
            a("s_lshl_b32 s%d, s%d, 7" % (t3, sW))
            a("s_add_u32 s%d, s%d, 0x%x" % (t3, t3, WS_FL))
            a("s_mov_b64 exec, 7")
            a.vmem("buffer_store_dword v%d, v%d, %s, s%d offen sc1" % (V_ONE, T + 4, s4(R_WS), t3), "RF")
            a("s_mov_b64 exec, -1")
        if u == cfg.get("f_tlb", -1):
            sh = cfg.get("f_tlbs", 21)
            a("v_lshlrev_b32 v%d, %d, v%d" % (V_P2, sh, L))
            a.vmem("buffer_load_dword a%d, v%d, %s, 0 offen" % (A_PD, V_P2, s4(R_WS)), "T")
            a.vmem("buffer_load_dword a%d, v%d, %s, 0 offen" % (A_PD, V_P2, s4(R_W2)), "T")
            a.vmem("buffer_load_dword a%d, v%d, %s, 0 offen" % (A_PD, V_P2, s4(R_WO)), "T")
            a("s_mov_b64 exec, %d" % ((1 << ((S * D * 2) >> sh)) - 1))
            a.vmem("global_load_dword a%d, v%d, s[%d:%d]" % (A_PD, V_P2, P_OUT, P_OUT + 1), "T")
            a("s_mov_b64 exec, -1")
        if FLN and u == 20 * NT + 3:
            a("v_and_b32 v%d, 7, v%d" % (V_P0, L))
            a("v_lshlrev_b32 v%d, 5, v%d" % (V_P0, V_P0))
            a.vmem("global_load_dword v%d, v%d, s[100:101] sc1" % (V_POLL, V_P0), "CN")
        if FLN and u == 22 * NT + 3:
            a.wait(vm="CN")
            l0 = a.newlabel("F_cn"); l1 = a.newlabel("F_ok")
            a("s_mov_b32 s%d, 0x%x" % (sSP, SPIN))
            a.label(l0)
            a("v_cmp_le_u32 vcc, 32, v%d" % V_POLL)
            a("s_cmp_eq_u32 vcc_lo, -1")
            a("s_cbranch_scc1 %s" % l1)
            a("global_load_dword v%d, v%d, s[100:101] sc1" % (V_POLL, V_P0))
            a("s_sub_u32 s%d, s%d, 1" % (sSP, sSP))
            a("s_waitcnt vmcnt(0)")
            a("s_cbranch_scc0 %s" % l0)
            a.label(l1)
        if u == UFLAG:
            stampr("g1flag0")
            assert a.vm.count("KV") == 8
            a.wait(vm="KV")
            stampr("g1flag1")
            a.vmem("buffer_store_dword v%d, v%d, %s, s%d offen sc1" % (V_ONE, V_FL0, s4(R_WS), sFK), "FK")
        if u == UPOLL: poll_issue("PK")
        if u == UCHK:
            a.wait(vm="PK")
            spin(1 << 3, skip_if_i0=True)
            stampr("g1chk")
            if HK:
                def kd(so, k, chk):
                    if chk: assert 12 in stt["free"]
                    a.vmem("buffer_load_dwordx4 v%d, %s, s%d offen offset:%d sc1 lds" % (V_L16, s4(R_WS), so, k * 1024), "KD")
                new_ = ["s_lshl_b32 s%d, s%d, 12\ns_add_u32 m0, s%d, %d" % (t0, sW, t0, KVB + 32768), None]
                new_ += [("m", lambda k=k: kd(sKP2, k, False)) for k in range(4)]
                new_ += ["s_sub_u32 m0, m0, 32768", None]
                new_ += [("m", lambda k=k: kd(sKP, k, True)) for k in range(4)]
                side[:0] = new_
            else:
              for x, (c0, c1, so, go, lo) in enumerate(kvq):
                def f(c1=c1, so=(sKP if x < 4 else sKP2), go=go, x=x):
                    a.vmem("buffer_load_dwordx4 %s, v%d, %s, s%d offen offset:%d sc1" % (r4("v", c1), V_L16, s4(R_WS), so, go), ("KP", x))
                side.insert(x, ("m", f))
        if HK and u == UPW:
            assert a.vm.count("KD") == 8 and a.lg.count("kvw") == 8
            a.wait(vm="KD", lg="kvw"); barrier()
            stampr("g1kb")
            side[:0] = [("v", lambda kt=kt: kread(kt)) for kt in range(20)]
        nxt = None
        if order and can1(order[0]) and len(G.sal) <= 1 and due(order[0]) <= u: nxt = order.pop(0)
        if nxt and cfg.get("verbose", 0) > 1: print("issue", u, nxt, "due %.0f" % due(nxt), file=sys.stderr)
        if FLN and HT & 2:
            for b in (1, 2, 3):
                if u == max(0, int(tau[4 * b]) - cfg.get("f_hta", 0)): hottouch(b)
        if PW & 32 and nxt:
            tk = cfg.get("f_tk", 0)
            key = ("B", nxt[1], tk) if tk < 7 else ("A", nxt[1], (tk - 7) % 4)
            g_ = nxt[1] if nxt[0] == "B" else nxt[1] // 2
            if nxt == key and g_ in (4, 8, 12) and (nxt[0] == "B" or nxt[1] % 2 == (tk - 7) // 4): touchp(g_ // 4 - 1)
        for mt in range(MT):
            m_, k_ = divmod(kk * MT + mt, C_)
            if cfg.get("f_kz", 1) and m_ % 2 == 1 and units[u0][0] > 0: k_ = C_ - 1 - k_
            mz = m_ if gn % 2 == 0 else MT - 1 - m_
            s_, t_ = units[u0 + k_]
            bf = r4("a", BR + ((u0 + k_) % RB) * 4)
            af = r4("a", AR + (s_ % RA) * 16 + mz * 4)
            c = r4("v", acc(mz, t_))
            src = "0" if s_ == 0 else c
            if t_ in (4, 5): a("%s %s, %s, %s, %s" % (MF, c, af, bf, src))
            else:            a("%s %s, %s, %s, %s" % (MF, c, bf, af, src))
            rd = (lambda mt=mt: bread1(un, mt)) if (mt < 2 and un < NU) else None
            if mt == 0: G.gap(fixed=rd)
            elif mt == 1:
                if nxt and nxt[0] == "B": G.gap(first=lambda: (dma1(nxt[1], nxt[2], 0), True)[1], fixed=rd)
                else: G.gap(fixed=rd)
            elif mt == 2:
                if nxt:
                    assert not G.sal
                    G.gap(first=(lambda: a.throttle(THR1)), mem=((lambda: aload1(nxt[1], nxt[2])) if nxt[0] == "A" else (lambda: dma1(nxt[1], nxt[2], 1))))
                else: G.gap()
            else:
                if kk == C_ - 1:
                    stt["issued"] = u
                    G.gap(first=(lambda: prewait1(u + 1)) if u + 1 < NU else None)
                else: G.gap()
        if u == UKV - 1:
            assert 11 in stt["free"], stt
            side += [None] * 5
            for (c0, c1, so, go, lo) in kvq:
                side += pack(c0, c1)
                def f(c0=c0, so=so, go=go):
                    a.vmem("buffer_store_dwordx4 %s, v%d, %s, s%d offen offset:%d sc1" % (r4("v", c0), V_L16, s4(R_WS), so, go), "KV")
                side.append(("m", f))
            for (c0, c1, so, go, lo) in kvq:
                def f(c0=c0, lo=lo):
                    a.lds("ds_write_b128 v%d, %s offset:%d" % (V_KVW, r4("v", c0), lo), "kvw")
                side += [("x", f), None]
            assert not order and stt.get("su0")
            side += su.l
        if u >= S1 * NT and not order and not G.sal and not stt.get("su0"):
            side += su0; stt["su0"] = True
        if HO and u == UKV + cfg.get("f_ho1", 30):
            barrier(); side[:0] = hole_ops(range(0, min(3, HO)))
        if HO > 3 and u == UKV + cfg.get("f_ho2", 56):
            assert u > UH01 and a.vm.count(("B2", 2)) == 2 and not any(isinstance(x, str) and ("s%d, s%d" % (sB2, sBE)) in x for x in side)
            barrier(); side[:0] = hole_ops(range(3, HO))
        if u == UPW and not HK:
            assert 12 in stt["free"]
            side[:0] = [y for x in range(8) for y in (("x", lambda x=x: kpw(x)), None)]
        if u == UH01 - 1:
            side += [None] * 5
            for p in range(2):
                for mt in range(MT):
                    side += pack(acc(mt, 6 + 2 * p), acc(mt, 7 + 2 * p), relu=True)
                    if p * 4 + mt < cfg.get("f_hearly", 8):
                        side.append(("m", lambda p=p, mt=mt: hstore(p, mt)))
                        side += [None] * cfg.get("f_hsp", 8)
        if u == UCHK:
            assert UCHK >= UH01
            for x in range(cfg.get("f_hearly", 8), 8):
                side += [("m", lambda x=x: hstore(x // 4, x % 4))] + [None] * cfg.get("f_hsp2", 6)
    if cfg.get("verbose"): print("G1 side left", len([x for x in side if x is not None]), file=sys.stderr)
    G.drain()
    assert not order
    assert 12 in stt["free"]
    stampr("g1end")

    va = []
    for mt in range(MT): va += pack(acc(mt, 10), acc(mt, 11), relu=True)
    if HK:
        stampr("attbeg")
        for _ in range(8): a(va.pop(0))
    else:
        if UPW >= NU:
            for x in range(8): kpw(x)
        a.wait(lg="kvw")
        a("s_barrier")
        stampr("attbeg")
        for kt in range(20):
            kread(kt)
            a(va.pop(0))
    for mt in range(MT):
        for t in (0, 1):
            for e2 in range(2):
                c = acc(mt, t) + 2 * e2
                a("v_pk_mul_f32 v[%d:%d], v[%d:%d], s[%d:%d] op_sel_hi:[1,0]" % (c, c + 1, c, c + 1, sSC, sSC + 1))
        if mt == 0:
            for x in pack(acc(mt, 0), acc(mt, 1)): a(x)
    STCH = cfg.get("f_st", 0)
    a.vm = [("H01" if t == "H" else t) for t in a.vm]
    stq = [(cfg.get("f_st0", 200), sH), (cfg.get("f_st1", 380), sH + 1)] if STCH & 1 else []
    hstore(2, 0)
    for mt in range(1, MT): va += pack(acc(mt, 0), acc(mt, 1))
    for mt in range(MT): va += pack(acc(mt, 12), None, relu=True)
    free = [acc(mt, t) for t in (2, 3, 4, 5, 7, 9) for mt in range(MT)] + [212, 216, 220] + [acc(mt, t) for t in (11, 1) for mt in range(MT)]

    C2 = cfg.get("f_c2", 2)
    C2T = cfg.get("f_c2t", 4); C2S = cfg.get("f_c2s", 5)
    CM2 = max(C2, C2T, 3)
    RA2 = cfg.get("f_ra2", 13); DB2 = cfg.get("f_db2", CM2 + 2); RB2 = DB2 + CM2
    assert DB2 >= CM2
    BR2 = RA2 * 16
    assert BR2 + RB2 * 4 <= 256
    def aslot(p): return ((p - 3 + 10) % RA2) * 16
    vl8 = [None]
    def aload2(p, mt):
        if 24 <= p < 28:
            for hh in range(2):
                a.vmem("buffer_load_dwordx2 %s, v%d, %s, s%d offen offset:%d sc1" % (r2("a", aslot(p) + mt * 4 + hh * 2), vl8[0], s4(R_WS), sA, hh * 2048 + mt * 512), ("A2", p))
            last = mt == MT - 1
        else:
            a.vmem("buffer_load_dwordx4 %s, v%d, %s, s%d offen offset:%d sc1" % (r4("a", aslot(p) + mt * 4), V_L16, s4(R_WS), sA, mt * 1024), ("A2", p))
            last = mt == MT - 1
        if last and p < 35:
            G.sal.append("s_add_u32 s%d, s%d, 4096" % (sA, sA))
            if p <= 23 and p % 3 == 2: G.sal.append("s_cmp_eq_u32 s%d, s%d\ns_cselect_b32 s%d, s%d, s%d" % (sA, sAE, sA, sA0, sA))
    LL = cfg.get("f_ll", 1)
    hst = [(2, 1), (2, 2), (2, 3)] + ([] if LL else [(3, mt) for mt in range(MT)])
    lst = [(3, mt) for mt in range(MT)] if LL else []
    NPRE = cfg.get("f_npre", 10)
    assert NPRE >= 3
    pre = []
    assert HO <= NPRE <= NSL
    for p in range(HO, NPRE): pre += [(p,) + op for op in dma2_ops(p)]

    S_ = {}; P_ = {}; O_ = {}
    def s_mfma(qa, kt):
        q = free.pop(0); S_[(qa, kt)] = q
        a.wait(lg=("k", kt))
        c = r4("v", bias[kt // 4]) if kt < 16 else "0"
        a("%s %s, %s, %s, %s" % (MF, r4("v", q), r4("a", kreg(kt)), r4("v", acc(qa, 0)), c))
    def pv_list(qa):
        b0 = qa // 2
        out = []
        for b in range(b0, b0 + 9):
            for z in range(3):
                def f(b=b, z=z):
                    if b == b0: O_[(qa, z)] = free.pop(0)
                    o = r4("v", O_[(qa, z)])
                    if z < 2:
                        a.wait(lg=("v", 2 * b + z)); A = r4("a", VF + (2 * b + z) * 4)
                    else: A = r4("v", VONES)
                    a("%s %s, %s, %s, %s" % (MF, o, A, r4("v", P_[(qa, b)]), "0" if b == b0 else o))
                    if z == 2: free.append(P_[(qa, b)])
                out.append(f)
        return out
    def fin_list(qa):
        o0, o1, sm = O_[(qa, 0)], O_[(qa, 1)], O_[(qa, 2)]
        ops = ["v_rcp_f32 v%d, v%d" % (sm, sm), "s_nop 0"]
        for o in (o0, o1):
            for e in range(4): ops.append("v_mul_f32 v%d, v%d, v%d" % (o + e, o + e, sm))
        ops += pack(o0, o1)
        def f():
            a.vmem("buffer_store_dwordx4 %s, v%d, %s, s%d offen offset:%d %s" % (r4("v", o0), V_L16, s4(R_WS), sO, qa * 1024, HF), "O")
            free.extend([o1, sm]); late_free.append(o0)
        ops.append(f)
        return ops
    late_free = []
    pready = set()
    def soft_list(qa):
        k0, k1 = qa, qa + 16
        ops = []
        f_, l_ = S_[(qa, k0)], S_[(qa, k1)]
        odd = qa & 1
        g_, z_ = (l_, f_) if odd else (f_, l_)
        o_ = 2 * odd
        for e in range(4):
            ops.append((1, "v_cndmask_b32 v%d, v%d, v%d, s[%d:%d]" % (g_ + e, f_ + e, l_ + e, sMK + 2 * e, sMK + 2 * e + 1)))
        quads = [S_[(qa, kt)] for kt in range(k0 + 1, k1)] + [g_]
        vals = [q + e for q in quads for e in range(4)]
        m0, m1 = VM, VM + 1
        ops.append((1, "v_max3_f32 v%d, v%d, v%d, v%d" % (m0, vals[0], vals[1], vals[2])))
        ops.append((1, "v_max3_f32 v%d, v%d, v%d, v%d" % (m1, vals[3], vals[4], vals[5])))
        ops.insert(2, (0, "SLOT")); ops.insert(5, (0, "SLOT")); ops.append((0, "SLOT"))
        for x in range(6, 62, 4):
            ops.append((1, "v_max3_f32 v%d, v%d, v%d, v%d" % (m0, m0, vals[x], vals[x + 1])))
            ops.append((1, "v_max3_f32 v%d, v%d, v%d, v%d" % (m1, m1, vals[x + 2], vals[x + 3])))
            ops.append((0, "SLOT"))
        ops.append((1, "v_max3_f32 v%d, v%d, v%d, v%d" % (m0, m0, vals[62], vals[63])))
        ops.append((1, "v_max_f32 v%d, v%d, v%d" % (m0, m0, m1)))
        ops.append((1, "v_mov_b32 v%d, v%d" % (m1, m0)))
        ops.append((0, "SLOT2"))
        ops.append((1, "v_permlane16_swap_b32 v%d, v%d" % (m0, m1)))
        ops.append((1, "v_max_f32 v%d, v%d, v%d" % (m0, m0, m1)))
        ops.append((1, "v_mov_b32 v%d, v%d" % (m1, m0)))
        ops.append((1, "v_mov_b32 v%d, 0" % (z_ + 2 - o_)))
        ops.append((1, "v_mov_b32 v%d, 0" % (z_ + 3 - o_)))
        ops.append((1, "v_permlane32_swap_b32 v%d, v%d" % (m0, m1)))
        ops.append((1, "v_max_f32 v%d, v%d, v%d" % (m0, m0, m1)))
        def subexp(q):
            r = []
            for e2 in range(2):
                r.append((1, "v_pk_add_f32 v[%d:%d], v[%d:%d], v[%d:%d] op_sel_hi:[1,0] neg_lo:[0,1] neg_hi:[0,1]" % (q + 2 * e2, q + 2 * e2 + 1, q + 2 * e2, q + 2 * e2 + 1, m0, m0 + 1)))
            for e in range(4):
                if e < 2: r.append((0, "SLOT"))
                r.append((2, "v_exp_f32 v%d, v%d" % (q + e, q + e)))
            r.append((0, "MEM"))
            return r
        ops += subexp(g_)
        ops += subexp(S_[(qa, k0 + 1)])
        cv = ["v_cvt_pk_bf16_f32 v%d, v%d, v%d" % (g_ + o_ + x, g_ + 2 * x, g_ + 2 * x + 1) for x in range(2)]
        if odd: cv.reverse()
        ops += [(1, x) for x in cv]
        for x in range(2):
            if odd: ops.append((1, "v_bfi_b32 v%d, v%d, 0, v%d" % (z_ + o_ + x, VM + 2 + x, g_ + o_ + x)))
            else:   ops.append((1, "v_and_b32 v%d, v%d, v%d" % (z_ + o_ + x, VM + 2 + x, g_ + o_ + x)))
        for x in range(2): ops.append((1, "v_xor_b32 v%d, v%d, v%d" % (g_ + o_ + x, g_ + o_ + x, z_ + o_ + x)))
        done = {k0, k0 + 1, k1}
        b0 = qa // 2
        pend_pack = None
        for b in range(b0, b0 + 9):
            for kt in (2 * b, 2 * b + 1):
                if k0 <= kt <= k1 and kt not in done:
                    ops += subexp(S_[(qa, kt)]); done.add(kt)
            if pend_pack: ops += pend_pack
            lo, hi = S_.get((qa, 2 * b)), S_.get((qa, 2 * b + 1))
            pk = []
            if lo is None or hi is None: d = z_
            elif g_ in (lo, hi):
                d = g_; ot = hi if lo == g_ else lo
                pk += [(1, "v_cvt_pk_bf16_f32 v%d, v%d, v%d" % (d + 2 - o_ + x, ot + 2 * x, ot + 2 * x + 1)) for x in range(2)]
                pk.append((0, (lambda ot=ot: free.append(ot))))
            else:
                d = lo
                pk += [(1, x) for x in pack(lo, hi)]
                pk.append((0, (lambda hi=hi: free.append(hi))))
            P_[(qa, b)] = d
            pk.append((0, (lambda b=b: pready.add((qa, b)))))
            pend_pack = pk
        ops += pend_pack
        return ops
    def run(op):
        if isinstance(op, str): a(op)
        else: op()
    vr = list(range(20))
    def vread():
        f = vr.pop(0)
        a.lds("ds_read_b128 %s, v%d offset:%d" % (r4("a", VF + 4 * f), V_KVW, 32768 + f * 1024), ("v", f))
    for kt in range(17):
        s_mfma(0, kt)
        vread(); a(va.pop(0))
    while vr:
        vread(); a(va.pop(0))
    hstore(*hst.pop(0))
    while va: a(va.pop(0))
    HGAP = cfg.get("f_hgap", 30); PGAP = cfg.get("f_pgap", 28)
    HFL = cfg.get("f_hfl", 400)
    HPO = cfg.get("f_hpo", 900)
    HCK = cfg.get("f_hck", 2000)
    hok = False
    ordA = [("A2", p, mt) for p in range(3, KS2) for mt in range(MT)]
    napre = cfg.get("f_apre", 16)
    pv3 = pv_list(3); pv3b = [1 + x // 3 for x in range(27)]
    tq = [(cfg.get("f_tb0", 200) + k * cfg.get("f_tbd", 150), k) for k in range(cfg.get("f_tbn", 0))]
    tcq = []
    if TCN:
        k0 = cfg.get("f_tck", 6); nr = cfg.get("f_tcr", 2)
        ed = [k0 + (56 - k0) * x // nr for x in range(nr + 1)]
        rr = [(ed[x], ed[x + 1]) for x in range(nr)] + [(56, 72)]
        tcq = [(cfg.get("f_tc0", 540) + x * cfg.get("f_tcd", 130), lo_, hi_) for x, (lo_, hi_) in enumerate(rr)]
    sq = []
    if SPF:
        for k in range(cfg.get("f_spf0", 6), 56): sq.append("s_load_dword s%d, s[%d:%d], 0x%x" % (t3, (P_W2 if k < 28 else P_WQ), (P_W2 if k < 28 else P_WQ) + 1, (k % 28) * 32768))
        for k in range(16): sq.append("s_load_dword s%d, s[%d:%d], 0x%x" % (t3, P_WO, P_WO + 1, k * 32768))
    next_s = 0; SGAP = cfg.get("f_sgap", 8)
    kvbar = False; hflag = False; hpoll = False
    cost_total = 0; next_h = HGAP; next_p = 0
    for qa in range(4):
        stampr("att%d" % qa)
        ops = soft_list(qa)
        tot = sum(c for c, _ in ops)
        pv = pv_list(qa - 1) if qa > 0 else []
        fin = None
        sm = [(qa + 1, kt) for kt in range(qa + 1, qa + 18)] if qa < 3 else []
        c = 0
        pv_done_at = None
        for (cost, op) in ops:
            if op == "SLOT2":
                if pv:
                    pv.pop(0)(); a("s_nop 0")
                    if not pv: pv_done_at = c
                else: a("s_nop 1")
                continue
            if op == "SLOT":
                did = False
                if pv:
                    pv.pop(0)(); did = True
                    if not pv: pv_done_at = c
                elif sm and len(free) > 0 and c >= tot * 0.2:
                    s_mfma(*sm.pop(0)); did = True
                elif qa == 3 and pv3 and (3, pv3b[0]) in pready:
                    pv3.pop(0)(); pv3b.pop(0); did = True
                if did and G.sal:
                    a(G.sal.pop(0)); continue
                if did and pre and pre[0][1] == 0 and (kvbar or (pre[0][0] < 9 and not HK)): pre.pop(0)[2]()
                elif sq and kvbar and cost_total >= next_s and (did or cost_total >= next_s + SGAP):
                    a(sq.pop(0)); next_s = cost_total + SGAP
                    if not sq and cfg.get("verbose"): print("scalar prefetch done at", cost_total, file=sys.stderr)
                continue
            if op == "MEM":
                if qa > 0 and fin is None and pv_done_at is not None and c >= pv_done_at + 18:
                    fin = fin_list(qa - 1)
                    for x in fin: run(x)
                elif hst and cost_total >= next_h:
                    hstore(*hst.pop(0)); next_h = cost_total + HGAP
                elif stq and cost_total >= stq[0][0]:
                    a.wait(vm="H01"); selftouch(stq.pop(0)[1], True)
                elif tcq and cost_total >= tcq[0][0]:
                    _, lo_, hi_ = tcq.pop(0)
                    if lo_ < 56:
                        m_ = ((1 << hi_) - 1) ^ ((1 << lo_) - 1)
                        a("s_mov_b32 exec_lo, 0x%x" % (m_ & 0xffffffff))
                        a("s_mov_b32 exec_hi, 0x%x" % (m_ >> 32))
                        a.vmem("buffer_load_dword a%d, v%d, %s, s%d offen" % (A_PD, V_T128, s4(R_W2), sCLS), "T")
                    else:
                        a("s_mov_b64 exec, 0xffff")
                        a.vmem("buffer_load_dword a%d, v%d, %s, s%d offen" % (A_PD, V_T128, s4(R_WO), t3), "T")
                    a("s_mov_b64 exec, -1")
                elif not hst and tq and cost_total >= tq[0][0]:
                    k_ = tq.pop(0)[1]
                    a("s_lshr_b32 s%d, s2, 3" % t0)
                    a("s_lshl_b32 s%d, s%d, 2" % (t0, t0))
                    a("s_add_u32 s%d, s%d, s%d" % (t0, t0, sW))
                    if k_ < 4:
                        a("s_mul_i32 s%d, s%d, 3584" % (t0, t0))
                        a("s_mul_i32 s%d, s%d, %d" % (t1, sQ, 896 * 2048))
                        a("s_add_u32 s%d, s%d, s%d" % (t0, t0, t1))
                        if k_: a("s_add_u32 s%d, s%d, %d" % (t0, t0, k_ * 224 * 2048))
                        a("s_mov_b64 exec, 0xfffffff")
                        a.vmem("buffer_load_dword a%d, v%d, %s, s%d offen" % (A_PD, V_T128, s4(R_W2), t0), "T")
                    else:
                        a("s_lshl_b32 s%d, s%d, 12" % (t0, t0))
                        a("s_lshl_b32 s%d, s%d, 19" % (t1, sQ))
                        a("s_add_u32 s%d, s%d, s%d" % (t0, t0, t1))
                        a("s_mov_b32 exec_hi, 0")
                        a.vmem("buffer_load_dword a%d, v%d, %s, s%d offen" % (A_PD, V_T128, s4(R_WO), t0), "T")
                    a("s_mov_b64 exec, -1")
                elif not hst and not hflag and cost_total >= HFL:
                    a.wait(vm="H")
                    a.vmem("buffer_store_dword v%d, v%d, %s, 0 offen offset:32 sc1" % (V_ONE, V_FG, s4(R_WS)), "FH")
                    hflag = True
                    if STCH & 2: selftouch(sH + 2, True)
                elif hflag and lst and cost_total >= cfg.get("f_llp", 500):
                    while lst: hstore(*lst.pop(0))
                elif hflag and not hpoll and cost_total >= HPO:
                    if cfg.get("f_cpf2", 1): codepf(V_L16, 0x01010101)
                    poll_issue("PH"); hpoll = True
                elif hpoll and not hok and cost_total >= HCK:
                    a.wait(vm="PH"); spin(0xff00); hok = True
                    stampr("g2h")
                elif hok and napre > 0:
                    G.drain_sal()
                    op_ = ordA.pop(0); aload2(op_[1], op_[2]); napre -= 1
                elif pre and pre[0][1] == 1 and cost_total >= next_p:
                    pre.pop(0)[2](); next_p = cost_total + PGAP
                    if cfg.get("f_p2", 0) and pre and pre[0][1] == 1: pre.pop(0)[2]()
                continue
            run(op); c += cost; cost_total += cost
            if qa == 0 and not kvbar and c >= 30:
                a.wait(lg=("v", 19)); a("s_barrier"); kvbar = True
        assert not pv and (qa == 0 or fin)
        free.extend(late_free); del late_free[:]
        if sm and cfg.get("verbose"): print("late S mfmas", qa, len(sm), file=sys.stderr)
        late = bool(sm)
        while sm: s_mfma(*sm.pop(0))
        if late: a("s_nop 7")
    if cfg.get("verbose"): print("attention cost", cost_total, "pre left", len(pre), file=sys.stderr)
    stampr("att4")
    assert not hst and not lst and hflag and hpoll and not sq and not tcq
    if not hok: napre = 0
    while pre:
        pre.pop(0)[2](); a("s_nop 0")
    G.drain_sal()
    assert napre <= 4 * (RA2 - 10) and not (HK and hok)
    a("v_mov_b32 v%d, v%d" % (V2_RD, V2_B))
    a("v_xor_b32 v%d, 32, v%d" % (V2_RD + 1, V2_B))
    xr = ["v_xor_b32 v%d, %d, v%d" % (V2_RD + t, t * 32, V2_B) for t in range(2, 8)]
    xr += ["v_add_u32 v%d, %d, v%d" % (V2_RD + 8 + t, 2 * STAGE, V2_RD + t) for t in range(8)]
    if cfg.get("verbose"): print("pv3 left", len(pv3), "apre left", napre, file=sys.stderr)
    for f in pv3:
        f()
        if napre > 0:
            op_ = ordA.pop(0); aload2(op_[1], op_[2]); napre -= 1; G.drain_sal()
        else:
            for _ in range(2):
                if xr: a(xr.pop(0))
    while xr: a(xr.pop(0))
    stampr("attend")

    NT2 = 8
    DL = cfg.get("f_dl", 8); S2 = KS2 - DL
    assert RA2 >= DL
    own = set(acc(mt, 6 + 2 * p) for p in range(3) for mt in range(MT))
    busy = own | set(O_[(3, z)] for z in range(3)) | {208}
    q2 = [q for q in range(0, 224, 4) if q not in busy]
    acc2 = {}
    for t in range(NT2):
        for mt in range(MT): acc2[(mt, t)] = q2.pop(0)
    VX = [q2.pop(0) for _ in range(4)]
    TT = q2.pop(0); V_XI = TT + 2
    R_X = R_WQ; R_OUT = R_W1
    rec = Rec()
    rec.l += [None] * 5 + [x if isinstance(x, str) else ("m", x) for x in fin_list(3)]
    for t in range(8): rec("v_add_u32 v%d, %d, v%d" % (V2_RD + 16 + t, 4 * STAGE, V2_RD + t))
    srd(rec, R_X, P_X, S * D * 2)
    srd(rec, R_OUT, P_OUT, S * D * 2)
    vl8[0] = TT + 3
    rec("v_lshlrev_b32 v%d, 3, v%d" % (TT + 3, L))
    rec2 = Rec()
    rec2("v_and_b32 v%d, 15, v%d" % (TT, L))
    rec2("v_lshlrev_b32 v%d, 11, v%d" % (V_XO, TT))
    rec2("v_lshrrev_b32 v%d, 4, v%d" % (TT, L))
    rec2("v_lshl_add_u32 v%d, v%d, 3, v%d" % (V_XI, TT, V_XO))
    rec2("v_bfe_u32 v%d, v%d, 4, 1" % (TT, L))
    rec2("v_lshl_add_u32 v%d, v%d, 5, v%d" % (V_XO, TT, V_XO))
    rec2("v_lshrrev_b32 v%d, 5, v%d" % (TT, L))
    rec2("v_lshl_add_u32 v%d, v%d, 4, v%d" % (V_XO, TT, V_XO))
    CO = cfg.get("f_co", 1)
    if CO:
        V_OW = V_KVW; V_OR = V2_B
        rec2("s_mul_i32 s%d, s%d, 5120" % (t1, sW))
        rec2("s_add_u32 s%d, s%d, %d" % (t1, t1, 5 * STAGE))
        rec2("v_and_b32 v%d, 15, v%d" % (TT, L))
        rec2("v_mul_u32_u24 v%d, 80, v%d" % (V_OW, TT))
        rec2("v_lshrrev_b32 v%d, 4, v%d" % (TT, L))
        rec2("v_lshl_add_u32 v%d, v%d, 3, v%d" % (V_OW, TT, V_OW))
        rec2("v_add_u32 v%d, s%d, v%d" % (V_OW, t1, V_OW))
        rec2("v_lshrrev_b32 v%d, 2, v%d" % (TT, L))
        rec2("v_mul_u32_u24 v%d, 80, v%d" % (V_OR, TT))
        rec2("v_lshlrev_b32 v%d, 11, v%d" % (V_XO, TT))
        rec2("v_and_b32 v%d, 3, v%d" % (TT, L))
        rec2("v_lshl_add_u32 v%d, v%d, 4, v%d" % (V_OR, TT, V_OR))
        rec2("v_add_u32 v%d, s%d, v%d" % (V_OR, t1, V_OR))
        rec2("v_lshl_add_u32 v%d, v%d, 4, v%d" % (V_XO, TT, V_XO))
    XD = cfg.get("f_xd", 1) and CO
    if XD:
        assert "f_ux" not in cfg
        rec2("v_and_b32 v%d, 15, v%d" % (TT, L))
        rec2("v_lshlrev_b32 v%d, 6, v%d" % (V_XI, TT))
        rec2("v_lshrrev_b32 v%d, 4, v%d" % (TT, L))
        rec2("v_lshl_add_u32 v%d, v%d, 3, v%d" % (V_XI, TT, V_XI))
        rec2("v_add_u32 v%d, s%d, v%d" % (V_XI, t1, V_XI))
    sSX = [sKV, sKV2, sKP]; sSF = [sKP2, sFK, sH]; sRX = sH + 1
    for lam in range(3):
        rec("s_xor_b32 s%d, s2, %d" % (t1, (lam ^ 3) << 1))
        rec("s_lshl_b32 s%d, s%d, 2" % (t1, t1))
        rec("s_add_u32 s%d, s%d, s%d" % (t1, t1, sW))
        rec("s_mul_i32 s%d, s%d, 12288" % (sSX[lam], t1))
        rec("s_add_u32 s%d, s%d, 0x%x" % (sSX[lam], sSX[lam], WS_XC + lam * 4096))
        rec("s_lshl_b32 s%d, s%d, 7" % (sSF[lam], t1))
        rec("s_add_u32 s%d, s%d, 0x%x" % (sSF[lam], sSF[lam], WS_FL + lam * 4))
    rec("s_lshl_b32 s%d, s2, 2" % t1)
    rec("s_add_u32 s%d, s%d, s%d" % (t1, t1, sW))
    rec("s_mul_i32 s%d, s%d, 12288" % (sRX, t1))
    rec("s_add_u32 s%d, s%d, 0x%x" % (sRX, sRX, WS_XC))
    if DF:
        for lam in range(3): rec("s_add_u32 s%d, s%d, %d" % (sSF[lam], sRX, lam * 4096))
    side = G.side
    side += rec.l

    units = []; del gi[:]
    grp(units, 0, 3, range(NT2), 3)
    grp(units, 3, C2S, range(NT2), 2)
    DLO = cfg.get("f_dlo", 11); S2O = KS2 - DLO
    assert DL <= DLO <= RA2
    grp(units, C2S, S2O, range(NT2), C2)
    grp(units, S2O, S2, range(6), C2)
    UT = len(units)
    for lam in range(4): grp(units, S2 if lam < 3 else S2O, KS2, (2 * lam, 2 * lam + 1), C2T if lam else min(C2T, cfg.get("f_c2t0", 4)))
    NU = len(units)
    PL = 2 * DL
    last_unit = {}
    for u, (p, t) in enumerate(units): last_unit[p] = u
    stt = dict(ready=-1, free=set(), waited=-1, issued=-1, ook=False, hok=hok)
    ordB = [("B2", p) for p in range(NPRE, KS2)]
    def barrier2():
        a("s_barrier")
        for p, lu in last_unit.items():
            if lu <= stt["waited"]: stt["free"].add(p)
    def can2(op):
        if op[0] == "B2": return op[1] < NSL or (op[1] - NSL) in stt["free"]
        if not stt["hok"] or (op[1] >= (24 if LL else 28) and not stt["ook"]): return False
        return op[1] - 3 < RA2 or last_unit[op[1] - RA2] <= stt["issued"]
    def issue2(op):
        if cfg.get("verbose"): print("late flush2", op, file=sys.stderr)
        G.drain_sal()
        if op[0] == "A2": aload2(op[1], op[2])
        else:
            for x in dma2_ops(op[1]): x[1](); a("s_nop 0")
        G.drain_sal()
    def flush2(q, tag):
        while any(o[:2] == tag for o in q):
            op = q.pop(0); assert can2(op), (op, stt); issue2(op)
    def bread2(u, j2):
        p, t = units[u]
        sl, pos = LOC[p % NSL]
        a.lds("ds_read_b64_tr_b16 %s, v%d offset:%d" % (r2("a", BR2 + (u % RB2) * 4 + j2 * 2), V2_RD + 8 * (sl // 2) + t, (sl % 2) * STAGE + (pos + j2) * 1024), ("b2", u))
    def need2(u):
        p = units[u][0]
        if p > stt["ready"]:
            flush2(ordB, ("B2", p))
            grp = cfg.get("f_bgrp", 4)
            top = max(x for x in range(p, min(p + grp, KS2)) if not any(o[1] == x for o in ordB))
            if p == 0: top = min(NPRE - 1, cfg.get("f_top0", 5))
            elif p < NPRE: top = NPRE - 1
            a.wait(vm=("B2", top)); barrier2(); stt["ready"] = top
    need2(0)
    for u in range(DB2):
        bread2(u, 0); bread2(u, 1)
    stampr("g2beg")
    UOF = cfg.get("f_uof", 26)
    UOP = cfg.get("f_uop", 80); UOC = UOP + 12
    seenA = {0, 1, 2}
    xdone = False
    rq = sorted(own)
    def flag(lam):
        a.wait(vm=("S", lam))
        a.vmem("buffer_store_dword v%d, v%d, %s, s%d offen sc1" % (V_ONE, V_FL0, s4(R_WS), sSF[lam]), ("F", lam))
    def recv(lam, mt):
        a.vmem("buffer_load_dwordx4 %s, v%d, %s, s%d offen offset:%d sc1" % (r4("v", rq[4 * lam + mt]), V_L16, s4(R_WS), sRX, mt * 1024), ("R", lam, mt))
        if mt == 3 and lam < 2: a("s_add_u32 s%d, s%d, 4096" % (sRX, sRX))
    PS = lambda mt, hh: acc2[(mt, hh)]
    def addpk(dst, src, first=False):
        ops = []
        for hh in range(2):
            for e2 in range(2):
                pp = src + 2 * hh + e2; c = dst[hh] + 2 * e2
                if first:
                    ops += ["v_lshlrev_b32 v%d, 16, v%d" % (c, pp), "v_and_b32 v%d, 0xffff0000, v%d" % (c + 1, pp)]
                else:
                    ops += ["v_lshlrev_b32 v%d, 16, v%d" % (TT, pp), "v_and_b32 v%d, 0xffff0000, v%d" % (TT + 1, pp),
                            "v_pk_add_f32 v[%d:%d], v[%d:%d], v[%d:%d]" % (c, c + 1, c, c + 1, TT, TT + 1)]
        return ops
    FD = cfg.get("f_fd", 26)
    ev = {}
    def at(u, f): ev.setdefault(u, []).append(f)
    def rtxt(lam, mt): return "buffer_load_dwordx4 %s, v%d, %s, s%d offen offset:%d sc1" % (r4("v", rq[4 * lam + mt]), V_L16, s4(R_WS), sSF[lam], mt * 1024)
    def rmax(lam):
        rg = [rq[4 * lam + mt] + e for mt in range(MT) for e in range(4)]
        o = ["v_max3_u32 v%d, v%d, v%d, v%d" % (V_POLL, rg[0], rg[1], rg[2])]
        for k in range(3, 15, 2): o.append("v_max3_u32 v%d, v%d, v%d, v%d" % (V_POLL, V_POLL, rg[k], rg[k + 1]))
        o.append("v_max_u32 v%d, v%d, v%d" % (V_POLL, V_POLL, rg[15]))
        return o
    def rcheck(lam):
        l0 = a.newlabel("F_rt"); l1 = a.newlabel("F_ok")
        a("s_mov_b32 s%d, 0x%x" % (sSP, SPIN))
        a.label(l0)
        a("v_cmp_eq_u32 vcc, -1, v%d" % V_POLL)
        a("s_cmp_eq_u64 vcc, 0")
        a("s_cbranch_scc1 %s" % l1)
        for mt in range(MT): a(rtxt(lam, mt))
        a("s_waitcnt vmcnt(0)")
        for x in rmax(lam): a(x)
        a("s_sub_u32 s%d, s%d, 1" % (sSP, sSP))
        a("s_cbranch_scc0 %s" % l0)
        a.label(l1)
    def addplain(dst, src):
        ops = []
        for hh in range(2):
            for e2 in range(2):
                pp = src + 2 * hh + e2; c = dst[hh] + 2 * e2
                ops += ["v_lshlrev_b32 v%d, 16, v%d" % (TT, pp), "v_and_b32 v%d, 0xffff0000, v%d" % (TT + 1, pp),
                        "v_add_f32 v%d, v%d, v%d" % (c, c, TT), "v_add_f32 v%d, v%d, v%d" % (c + 1, c + 1, TT + 1)]
        return ops
    if DF:
        R0U = UT + 3 * PL + cfg.get("f_r0", -6); R1U = UT + 4 * PL + cfg.get("f_r1", -5)
        at(R0U, lambda: side.extend(("m", lambda mt=mt: a.vmem(rtxt(0, mt), ("R", 0))) for mt in range(MT)))
        at(R1U, lambda: side.__setitem__(slice(0, 0), [("m", lambda mt=mt: a.vmem(rtxt(1, mt), ("R", 1))) for mt in range(MT)]))
    else:
        at(UT + PL + FD, lambda: flag(0))
        at(UT + 2 * PL + FD, lambda: flag(1))
        if cfg.get("f_fin2", 1): at(UT + 3 * PL + FD, lambda: flag(2))
        if cfg.get("f_pe", 4): at(NU - cfg.get("f_pe", 4), lambda: poll_issue("P1"))
    UP0 = UT + 3 * PL + cfg.get("f_p0", 4)
    F2 = cfg.get("f_fin2", 1)
    if not DF and not F2: at(UP0, lambda: poll_issue("P0"))
    def chk0():
        a.wait(vm="P0"); spin(1)
        for mt in range(MT): side.append(("m", lambda mt=mt: recv(0, mt)))
    if not DF and not F2: at(UP0 + cfg.get("f_c0", 8), chk0)
    def presum():
        side.append(("s", lambda: a.wait(vm="X")))
        if XD:
            for mt in range(MT):
                for hh in range(2):
                    side.append(("v", lambda mt=mt, hh=hh: a.lds("ds_read_b64 %s, v%d offset:%d" % (r2("v", VX[mt] + 2 * hh), V_XI, mt * 1024 + hh * 32), "xr")))
            side.extend([None] * 4 + [("s", lambda: a.wait(lg="xr"))])
        for mt in range(MT): side.extend(addpk([PS(mt, 0), PS(mt, 1)], VX[mt], first=True))
    at(UT + 2 * PL + PL // 2, presum)
    first_unit = {}
    for u, (p, t) in enumerate(units): first_unit.setdefault(p, u)
    NOPS = len(ordA) + 2 * len(ordB)
    UE2 = UT + cfg.get("f_ue2", 0)
    MARG = cfg.get("f_marg", 20)
    THR2 = cfg.get("f_thr2", 63)
    def prewait2(u):
        u += gi[u][1] - 1
        p, t = units[u]
        if p not in seenA:
            flush2(ordA, ("A2", p)); seenA.add(p)
            r = a.wait(vm=("A2", p), lg=("b2", u))
        else: r = a.wait(lg=("b2", u))
        stt["waited"] = u
        return r
    def b2sal(p): G.sal.extend(x for k, x in dma2_txt(p)[3:])
    prewait2(0)
    half = None
    for u in range(NU):
        u0, C_, gn = gi[u]; kk = u - u0
        p, t = divmod(u, NT2) if u < UT else units[u]
        un = u + DB2
        if u == UOF:
            a.wait(vm="O")
            a.vmem("buffer_store_dword v%d, v%d, %s, 0 offen offset:64 sc1" % (V_ONE, V_FG, s4(R_WS)), "FO")
            if STCH & 4: selftouch(sO, True)
            side.extend(rec2.l)
        if u == cfg.get("f_uh", 2) and not stt["hok"]:
            a.wait(vm="PH"); spin(0xff00); stt["hok"] = True
            stampr("g2h")
        if u < UT and t == 1: stampr("g2p%d" % p)
        if u == UT: stampr("g2tail")
        if u > UT and (u - UT) % PL == 0: stampr("g2l%d" % ((u - UT) // PL))
        if u == UOP: poll_issue("PO")
        if u == UOC:
            a.wait(vm="PO"); spin(0xff0000 | (7 if DF else 0)); stt["ook"] = True
        for f in ev.get(u, []): f()
        if un < NU and units[un][0] > stt["ready"]:
            if half is not None:
                dma2_ops(half)[2][1](); b2sal(half); half = None
            need2(un)
        if u < UT and t == 2 and p % 2 == 1 and p > 1 and p - 2 + NSL < KS2: barrier2()
        pre_ = None; mem_ = None
        if half is not None:
            def mem_(h=half): dma2_ops(h)[2][1](); b2sal(h)
            half = None
        elif len(G.sal) <= 1:
            cand = [q for q in (ordA, ordB) if q and can2(q[0])]
            if cand:
                cand.sort(key=lambda q: q[0][1] - (cfg.get("f_bprio", 5) if q[0][0] == "B2" else 0))
                done_ = NOPS - len(ordA) - 2 * len(ordB)
                if done_ * UE2 <= u * NOPS or first_unit[cand[0][0][1]] - u <= MARG + (16 if cand[0][0][0] == "B2" else 0):
                    nxt = cand[0].pop(0)
                    if nxt[0] == "B2":
                        ops_ = dma2_ops(nxt[1])
                        pre_ = lambda o=ops_: (o[0][1](), True)[1]
                        mem_ = ops_[1][1]; half = nxt[1]
                    else:
                        mem_ = lambda n_=nxt: aload2(n_[1], n_[2])
        if not xdone and (u == cfg.get("f_ux", 9999) or (not ordA and not ordB and half is None and mem_ is None)):
            xdone = True
            if XD:
                side.append("s_mul_i32 s%d, s%d, 5120" % (t1, sW))
                for mt in range(MT):
                    side += ["s_add_u32 m0, s%d, %d" % (t1, 5 * STAGE + mt * 1024), None,
                             ("m", lambda: a.vmem("buffer_load_dwordx4 v%d, %s, s%d offen lds" % (V_XO, s4(R_X), sXO), "X")),
                             "s_add_u32 s%d, s%d, %d" % (sXO, sXO, 32768 if mt < 3 else -3 * 32768)]
            for mt in range(MT if not XD else 0):
                for hh in range(2):
                    def f(mt=mt, hh=hh):
                        a.vmem("buffer_load_dwordx2 %s, v%d, %s, s%d offen offset:%d" % (r2("v", VX[mt] + 2 * hh), V_XI, s4(R_X), sXO, hh * 32), "X")
                    side += [("m", f)] + [None] * (cfg.get("f_xsp", 1) if hh else 1)
                side.append("s_add_u32 s%d, s%d, %d" % (sXO, sXO, 32768 if mt < 3 else -3 * 32768))
        for mt in range(MT):
            m_, k_ = divmod(kk * MT + mt, C_)
            if cfg.get("f_kz", 1) and m_ % 2 == 1 and units[u0][0] > 0: k_ = C_ - 1 - k_
            mz = m_ if gn % 2 == 0 else MT - 1 - m_
            p_, t_ = units[u0 + k_]
            bf = r4("a", BR2 + ((u0 + k_) % RB2) * 4)
            af = r4("v", acc(mz, 6 + 2 * p_)) if p_ < 3 else r4("a", aslot(p_) + mz * 4)
            c = r4("v", acc2[(mz, t_)])
            a("%s %s, %s, %s, %s" % (MF, c, bf, af, "0" if p_ == 0 else c))
            rd = (lambda mt=mt: bread2(un, mt)) if (mt < 2 and un < NU) else None
            if mt == 0: G.gap(fixed=rd)
            elif mt == 1: G.gap(first=pre_, fixed=rd)
            elif mt == 2:
                if mem_:
                    assert not G.sal
                    G.gap(first=(lambda: a.throttle(THR2)), mem=mem_)
                else: G.gap()
            else:
                if kk == C_ - 1:
                    stt["issued"] = u
                    G.gap(first=(lambda: prewait2(u + 1)) if u + 1 < NU else None)
                else: G.gap()
        if u >= UT and (u - UT) % PL == PL - 1:
            lam = (u - UT) // PL
            if lam < 3:
                new_ = [None] * 5
                for mt in range(MT):
                    new_ += pack(acc2[(mt, 2 * lam)], acc2[(mt, 2 * lam + 1)])
                    if DF: new_ += ["v_min_u32 v%d, -2, v%d" % (acc2[(mt, 2 * lam)] + e, acc2[(mt, 2 * lam)] + e) for e in range(4)]
                    def f(mt=mt, lam=lam):
                        a.vmem("buffer_store_dwordx4 %s, v%d, %s, s%d offen offset:%d sc1" % (r4("v", acc2[(mt, 2 * lam)]), V_L16, s4(R_WS), sSX[lam], mt * 1024), ("S", lam))
                    new_.append(("m", f))
                side[:0] = new_
    if cfg.get("verbose"): print("G2 side left", len([x for x in side if x is not None]), file=sys.stderr)
    G.drain()
    assert not ordA and not ordB and xdone
    stampr("g2end")
    def ownadd():
        for mt in range(MT):
            for hh in range(2):
                for e2 in range(2):
                    c = PS(mt, hh) + 2 * e2; o_ = acc2[(mt, 6 + hh)] + 2 * e2
                    a("v_pk_add_f32 v[%d:%d], v[%d:%d], v[%d:%d]" % (c, c + 1, c, c + 1, o_, o_ + 1))
    if DF:
        R2D = cfg.get("f_r2d", 1)
        def rd2():
            for mt in range(MT): a.vmem(rtxt(2, mt), ("R", 2, mt))
        assert a.vm.count(("R", 0)) == 4 and a.vm.count(("R", 1)) == 4
        if R2D == 0: rd2()
        a.wait(vm=("R", 0))
        for x in rmax(0): a(x)
        rcheck(0)
        for mt in range(MT):
            for x in addpk([PS(mt, 0), PS(mt, 1)], rq[mt]): a(x)
        stampr("x1")
        if R2D == 1: rd2()
        ownadd()
        a.wait(vm=("R", 1))
        for x in rmax(1): a(x)
        rcheck(1)
        stampr("x2")
        if R2D == 2: rd2()
        for mt in range(MT):
            for x in addpk([PS(mt, 0), PS(mt, 1)], rq[4 + mt]): a(x)
        stampr("x3")
        a.wait(vm=("R", 2, 3))
        for x in rmax(2): a(x)
        rcheck(2)
        stampr("x4")
    elif F2:
        for lam in range(2):
            if ("F", lam) not in a.vm: flag(lam)
        early = "P1" in a.vm
        if not early:
            a("s_nop 7")
            ownadd()
        if ("F", 2) not in a.vm: flag(2)
        if not early: poll_issue("P1")
        stampr("x1")
        a.wait(vm="P1"); spin(1)
        for mt in range(MT): recv(0, mt)
        spin(2)
        stampr("x2")
        for mt in range(MT): recv(1, mt)
        poll_issue("P2")
        if early: ownadd()
        for mt in range(MT):
            a.wait(vm=("R", 0, mt))
            for x in addpk([PS(mt, 0), PS(mt, 1)], rq[mt]): a(x)
        a.wait(vm="P2"); spin(4)
        stampr("x3")
        for mt in range(MT): recv(2, mt)
        for mt in range(MT):
            for x in addpk([PS(mt, 0), PS(mt, 1)], rq[4 + mt]): a(x)
        stampr("x4")
    else:
        flag(2)
        poll_issue("P1")
        stampr("x1")
        for mt in range(MT):
            a.wait(vm=("R", 0, mt))
            for x in addpk([PS(mt, 0), PS(mt, 1)], rq[mt]): a(x)
        a.wait(vm="P1"); spin(2)
        stampr("x2")
        for mt in range(MT): recv(1, mt)
        poll_issue("P2")
        for mt in range(MT):
            for hh in range(2):
                for e2 in range(2):
                    c = PS(mt, hh) + 2 * e2; o_ = acc2[(mt, 6 + hh)] + 2 * e2
                    a("v_pk_add_f32 v[%d:%d], v[%d:%d], v[%d:%d]" % (c, c + 1, c, c + 1, o_, o_ + 1))
        a.wait(vm="P2"); spin(4)
        stampr("x3")
        for mt in range(MT): recv(2, mt)
        for mt in range(MT):
            for x in addpk([PS(mt, 0), PS(mt, 1)], rq[4 + mt]): a(x)
        stampr("x4")
    for mt in range(MT):
        a.wait(vm=("R", 2, mt))
        for x in addpk([PS(mt, 0), PS(mt, 1)], rq[8 + mt]): a(x)
        c0 = PS(mt, 0)
        if cfg.get("eps"):
            for hh in range(2):
                for e in range(4): a("v_mul_f32 v%d, 0x%x, v%d" % (PS(mt, hh) + e, f2u(1.0 + cfg["eps"] / 10000.0), PS(mt, hh) + e))
        for x in pack(c0, PS(mt, 1)): a(x)
        def ostore(m, reg):
            if cfg.get("cp_real"):
                if m == 0:
                    a("s_lshl_b32 s%d, s2, 2" % t1); a("s_add_u32 s%d, s%d, s%d" % (t1, t1, sW)); a("s_lshl_b32 s%d, s%d, 12" % (t1, t1)); a("s_add_u32 s%d, s%d, 0x%x" % (t1, t1, WS_Q))
                a.vmem("buffer_store_dwordx4 %s, v%d, %s, s%d offen offset:%d %s" % (r4("v", reg), V_L16, s4(R_WS), t1, m * 1024, ["", "sc1", "nt"][cfg.get("f_of", 2)]), "OUT")
                return
            a.vmem("buffer_store_dwordx4 %s, v%d, %s, s%d offen %s" % (r4("v", reg), V_XO, s4(R_OUT), sXO, ["", "sc1", "nt"][cfg.get("f_of", 2)]), "OUT")
            if m < 3: a("s_add_u32 s%d, s%d, 32768" % (sXO, sXO))
        if CO:
            a.lds("ds_write_b64 v%d, %s offset:%d" % (V_OW, r2("v", c0), mt * 1280), ("ow", mt))
            a.lds("ds_write_b64 v%d, %s offset:%d" % (V_OW, r2("v", c0 + 2), mt * 1280 + 32), ("ow", mt))
            a.lds("ds_read_b128 %s, v%d offset:%d" % (r4("v", PS(mt, 1)), V_OR, mt * 1280), ("or", mt))
            if mt > 0:
                a.wait(lg=("or", mt - 1)); ostore(mt - 1, PS(mt - 1, 1))
            if mt == 3:
                a.wait(lg=("or", 3)); ostore(3, PS(3, 1))
        else:
            a("s_nop 1")
            a("v_permlane16_swap_b32 v%d, v%d" % (c0, c0 + 2))
            a("v_permlane16_swap_b32 v%d, v%d" % (c0 + 1, c0 + 3))
            ostore(mt, c0)
    stampr("x5")
    if ST:
        a("s_waitcnt vmcnt(0)")
        stampr("end")
        a("s_waitcnt lgkmcnt(0)")
        for i in range(8): a("v_mov_b32 v%d, s%d" % (i, STB + 2 * i))
        a("s_lshl_b32 s%d, s2, 2" % t0)
        a("s_add_u32 s%d, s%d, s%d" % (t0, t0, sW))
        a("s_lshl_b32 s%d, s%d, 5" % (t0, t0))
        a("v_mov_b32 v8, 0")
        a("s_nop 4")
        a("buffer_store_dwordx4 v[0:3], v8, %s, s%d offen" % (s4(R_WS), t0))
        a("buffer_store_dwordx4 v[4:7], v8, %s, s%d offen offset:16" % (s4(R_WS), t0))
    a.label("F_end")
    a("s_endpgm")
    kernel_desc(a, name, 256, sgpr=102, accum=256, agpr=256)
    return "; @launch kernel=%s grid=(256,1,1) block=(256,1,1) lds=163840" % name

gen.gen_f = gen_f

if __name__ == "__main__":
    cfg = dict(g1_mt=4)
    out = sys.argv[1]
    kernels = sys.argv[2].split(",")
    for kv in sys.argv[3:]:
        k, v = kv.split("="); cfg[k] = int(v, 0)
    open(out, "w").write(gen.build(cfg, kernels))
```

```python
import sys, math
from asmlib import *
import gen
from gen import *

class SA:
    def __init__(self, start, end):
        self.n = start; self.end = end; self.m = {}
    def new(self, name, cnt=1, align=1):
        self.n = (self.n + align - 1) // align * align
        r = self.n; self.n += cnt
        assert self.n <= self.end, "out of sgprs"
        self.m[name] = r
        return r

def s4(b): return "s[%d:%d]" % (b, b + 3)
MF = "v_mfma_f32_16x16x32_bf16"

def kind_of(op):
    if op is None: return None
    if isinstance(op, tuple): return op[0]
    t = op.lstrip()
    if t.startswith("s_"): return "s"
    if t.startswith("v_"): return "v"
    raise ValueError(op)

class Gaps:
    def __init__(self, a):
        self.a = a
        self.sal = []
        self.side = []
    def run(self, op):
        if isinstance(op, tuple): op[1]()
        else: self.a(op)
    def gap(self, first=None, fixed=None, mem=None):
        used0 = False
        room = 2
        if first is not None: used0 = bool(first())
        if not used0:
            if self.sal:
                x = self.sal.pop(0); self.a(x); used0 = True
                room -= x.count("\n")
            elif self.side and kind_of(self.side[0]) == "s":
                self.run(self.side.pop(0)); used0 = True
        if mem is not None:
            mem(); return
        if fixed is not None:
            fixed(); room -= 1
        if self.side and self.side[0] is None:
            self.side.pop(0)
            skip = True
        else: skip = False
        while room > 0:
            if self.sal and self.sal[0].count("\n") < room:
                x = self.sal.pop(0); self.a(x); room -= 1 + x.count("\n"); continue
            if skip or not self.side or self.side[0] is None: break
            k = kind_of(self.side[0])
            if k in ("m", "x"):
                if room == 2:
                    self.run(self.side.pop(0))
                break
            self.run(self.side.pop(0)); room -= 1
    def drain_sal(self):
        while self.sal: self.a(self.sal.pop(0))
    def drain(self):
        self.drain_sal()
        for op in self.side:
            if op is not None: self.run(op)
        self.side = []

def ln_ops(exact=1):
    o = []
    a = o.append
    pk = lambda op, d, x, y, mod="": a("%s v[%d:%d], v[%d:%d], v[%d:%d]%s" % (op, d, d + 1, x, x + 1, y, y + 1, mod))
    for i in range(16):
        if i % 4 == 0: a("WAIT%d" % (i // 4))
        a("v_lshlrev_b32 v%d, 16, v%d" % (24 + 2 * i, 8 + i))
        a("v_and_b32 v%d, 0xffff0000, v%d" % (25 + 2 * i, 8 + i))
        if i == 1: pk("v_pk_add_f32", 56, 24, 26)
        elif i == 3: pk("v_pk_add_f32", 58, 28, 30)
        elif i > 3: pk("v_pk_add_f32", 56 + 2 * (i & 1), 56 + 2 * (i & 1), 24 + 2 * i)
    pk("v_pk_add_f32", 56, 56, 58)
    a("v_add_f32 v56, v56, v57")
    def xlane_sum(r, t):
        a("s_nop 1")
        a("v_add_f32_dpp v%d, v%d, v%d row_ror:8 row_mask:0xf bank_mask:0xf" % (r, r, r))
        for op in ("v_permlane16_swap_b32", "v_permlane32_swap_b32"):
            a("v_mov_b32 v%d, v%d" % (t, r))
            a("s_nop 1")
            a("%s v%d, v%d" % (op, r, t))
            a("v_add_f32 v%d, v%d, v%d" % (r, r, t))
    xlane_sum(56, 57)
    a("v_mul_f32 v56, 0x%x, v56" % f2u(1.0 / 256))
    neg = " op_sel_hi:[1,0] neg_lo:[0,1] neg_hi:[0,1]"
    for i in range(16):
        t = 62 + 2 * (i & 1); ac = 66 + 2 * (i & 1)
        pk("v_pk_add_f32", t, 24 + 2 * i, 56, neg)
        if i < 2: pk("v_pk_mul_f32", ac, t, t)
        else: a("v_pk_fma_f32 v[%d:%d], v[%d:%d], v[%d:%d], v[%d:%d]" % (ac, ac + 1, t, t + 1, t, t + 1, ac, ac + 1))
    pk("v_pk_add_f32", 66, 66, 68)
    a("v_add_f32 v57, v66, v67")
    xlane_sum(57, 58)
    a("ds_write_b64 v7, v[56:57]")
    a("s_waitcnt lgkmcnt(0)")
    a("s_barrier")
    for k in range(4): a("ds_read_b64 v[%d:%d], v60 offset:%d" % (62 + 2 * k, 63 + 2 * k, 64 * k))
    a("s_waitcnt lgkmcnt(0)")
    pk("v_pk_add_f32", 56, 62, 64)
    pk("v_pk_add_f32", 58, 66, 68)
    pk("v_pk_add_f32", 56, 56, 58)
    a("v_mul_f32 v56, 0x3e800000, v56")
    a("v_sub_f32 v59, v62, v56")
    a("v_mul_f32 v58, v59, v59")
    for r in (64, 66, 68):
        a("v_sub_f32 v59, v%d, v56" % r)
        a("v_fmac_f32 v58, v59, v59")
    a("v_fmac_f32 v57, 0x43800000, v58")
    a("v_mul_f32 v57, 0x%x, v57" % f2u(1.0 / 1024))
    a("v_cvt_pk_bf16_f32 v58, v56, v57")
    a("v_lshlrev_b32 v56, 16, v58")
    a("v_and_b32 v57, 0xffff0000, v58")
    a("v_add_f32 v57, 0x%x, v57" % f2u(1e-5))
    a("v_cvt_pk_bf16_f32 v57, v57, v57")
    a("v_and_b32 v57, 0xffff0000, v57")
    a("v_sqrt_f32 v57, v57")
    a("s_nop 0")
    a("v_cvt_pk_bf16_f32 v57, v57, v57")
    a("v_and_b32 v57, 0xffff0000, v57")
    a("v_rcp_f32 v58, v57")
    for i in range(16):
        pk("v_pk_add_f32", 24 + 2 * i, 24 + 2 * i, 56, neg)
        if i > 0:
            j = i - 1
            if exact:
                a("v_cvt_pk_bf16_f32 v%d, v%d, v%d" % (25 + 2 * j, 24 + 2 * j, 25 + 2 * j))
                a("v_lshlrev_b32 v%d, 16, v%d" % (24 + 2 * j, 25 + 2 * j))
                a("v_and_b32 v%d, 0xffff0000, v%d" % (25 + 2 * j, 25 + 2 * j))
            pk("v_pk_mul_f32", 24 + 2 * j, 24 + 2 * j, 58, " op_sel_hi:[1,0]")
            a("v_cvt_pk_bf16_f32 v%d, v%d, v%d" % (8 + j, 24 + 2 * j, 25 + 2 * j))
            if j % 4 == 3: a("STORE%d" % (j // 4))
    if exact:
        a("v_cvt_pk_bf16_f32 v55, v54, v55")
        a("v_lshlrev_b32 v54, 16, v55")
        a("v_and_b32 v55, 0xffff0000, v55")
    pk("v_pk_mul_f32", 54, 54, 58, " op_sel_hi:[1,0]")
    a("v_cvt_pk_bf16_f32 v23, v54, v55")
    a("STORE3")
    return o

def gen_f(a, cfg):
    name = NAME + "_kernel" if cfg.get("single") else "f_kernel"
    FLN = cfg.get("f_ln", 0)
    SPIN = cfg.get("spin", 0x40000)
    ST = cfg.get("stamp")
    MT = 4
    sa = SA(3, 84)
    P_WQ = sa.new("pwq", 2, 2); P_W1 = sa.new("pw1", 2, 2); P_WS = sa.new("pws", 2, 2); P_X = sa.new("px", 2, 2)
    P_W2 = sa.new("pw2", 2, 2); P_WO = sa.new("pwo", 2, 2); P_OUT = sa.new("pout", 2, 2)
    R_WQ = sa.new("rwq", 4, 4); R_W1 = sa.new("rw1", 4, 4); R_W2 = sa.new("rw2", 4, 4); R_WO = sa.new("rwo", 4, 4)
    R_WS = sa.new("rws", 4, 4)
    sW = sa.new("w"); sI = sa.new("i"); sJ = sa.new("j"); sJ1 = sa.new("j1"); sQ = sa.new("q"); sN = sa.new("n")
    sBQ = sa.new("bq"); sBV = sa.new("bv"); sBW = sa.new("bw"); sBL = sa.new("bl"); sLB = sa.new("lb"); sA = sa.new("a")
    sCLS = sa.new("cls"); t0 = sa.new("t0"); t1 = sa.new("t1"); t2 = sa.new("t2"); t3 = sa.new("t3")
    sMK = sa.new("mask", 8, 2)
    sKV = sa.new("kv"); sKV2 = sa.new("kv2"); sKP = sa.new("kp"); sKP2 = sa.new("kp2"); sFK = sa.new("fk"); sFO = sa.new("fo")
    sH = sa.new("h", 4); sSC = sa.new("sc", 2, 2); sO = sSC + 1; sA0 = sa.new("a0"); sB0 = sa.new("b0"); sAE = sa.new("aend"); sBE = sa.new("bend")
    sXO = sa.new("xo"); sSP = sa.new("spin")
    sDL = sMK
    STB = 84
    SETS = {1: ["start", "bar0", "g1end", "attbeg", "attend", "g2beg", "g2end", "end"],
            2: ["start", "g1half", "g1tail", "g1kv", "g1flag1", "g1chk", "g1kb", "g1end"],
            3: ["start", "attbeg", "att0", "att1", "att2", "att3", "att4", "attend"],
            4: ["start", "att4", "g2h", "g2beg", "g2p4", "g2p12", "g2tail", "g2end"],
            5: ["start", "g2end", "x1", "x2", "x3", "x4", "x5", "end"],
            7: ["g2beg", "g2p3", "g2p6", "g2p10", "g2p14", "g2p18", "g2p22", "g2end"],
            8: ["g2p22", "g2tail", "g2l1", "g2l2", "g2l3", "g2end", "x3", "end"],
            9: ["start", "lnx", "lns", "lnd", "lnp", "g1s1", "g1s4", "g1s8"],
            10: ["start", "k0", "k1", "k2", "k3", "k4", "lnx", "lns"],
            6: ["start", "bar0", "g1s2", "g1s4", "g1s8", "g1half", "g1s20", "g1tail"]}
    jn = [0]
    def stampr(nm):
        J = cfg.get("jit", 0)
        if J and nm != "start":
            jn[0] += 1
            lab = a.newlabel("F_j")
            a("s_lshl_b32 s84, s2, 2")
            if J & 1: a("s_add_u32 s84, s84, s%d" % sW)
            a("s_add_u32 s84, s84, %d" % (jn[0] * 7919 + J * 31))
            a("s_mul_i32 s84, s84, 0x9e3779b1")
            a("s_lshr_b32 s84, s84, 28")
            a("s_cmp_lg_u32 s84, 0")
            a("s_cbranch_scc1 %s" % lab)
            for _ in range(cfg.get("jitn", 2)): a("s_sleep 127")
            a.label(lab)
        if ST and nm in SETS[ST]:
            i = SETS[ST].index(nm)
            a("%s s[%d:%d]" % ("s_memtime" if cfg.get("clk") else "s_memrealtime", STB + 2 * i, STB + 2 * i + 1))

    NT = 13; KS = 32
    NS = 5; REG = 7168; STAGE = 4 * REG
    D1 = cfg.get("f_d1", 8)
    RA = cfg.get("f_ra1", 12)
    LA = cfg.get("f_la1", 4)
    C1 = cfg.get("f_c1", 2)
    C1K = cfg.get("f_c1k", 2); C1T = cfg.get("f_c1t", 4); C1S = cfg.get("f_c1s", 0)
    CM1 = max(C1, C1K, C1T)
    DB = cfg.get("f_db1", CM1 + 2); RB = DB + max(CM1, 2)
    assert DB >= CM1
    S1 = KS - D1
    def slot1(g): return (15 - g) % 5
    KVB = 96 * 1024
    def acc(mt, t): return (t * MT + mt) * 4
    V_L16 = 208; V_QKV = 209; V_W1 = 210; V_LEFT = 211
    V_RD = 212
    V_P0, V_P1, V_P2 = 221, 222, 223
    V_LANE = 224; V_FL0 = 225; V_ONE = 226; V_POLL = 227; V_KVW = 228; V_FG = 229; V_PL = 230
    T = 232
    A_PD = 255
    AR = 0; BR = RA * 16
    assert BR + RB * 4 <= 254

    kernel_begin(a, name)
    a.reset()
    stampr("start")
    a("s_cmp_ge_u32 s2, 256")
    a("s_cbranch_scc1 F_end")
    if cfg.get("idx"): a("s_xor_b32 s2, s2, %d" % cfg["idx"])
    SWP = cfg.get("f_swp", 0)
    if SWP:
        a("s_lshr_b32 s%d, s2, 1" % t0)
        a("s_xor_b32 s%d, s%d, s2" % (t0, t0))
        a("s_and_b32 s%d, s%d, 1" % (t0, t0))
        a("s_mul_i32 s%d, s%d, 3" % (t0, t0))
        a("s_xor_b32 s2, s2, s%d" % t0)
    if cfg.get("jit"):
        a("s_mul_i32 s84, s2, 0x9e3779b1")
        a("s_lshr_b32 s84, s84, 28")
        a("s_cmp_lg_u32 s84, %d" % (cfg["jit"] & 15))
        a("s_cbranch_scc1 F_j0")
        for _ in range(4): a("s_sleep 127")
        a.label("F_j0")
    a("s_load_dwordx2 s[%d:%d], s[0:1], 8" % (P_WQ, P_WQ + 1))
    a("s_load_dwordx2 s[%d:%d], s[0:1], 32" % (P_W1, P_W1 + 1))
    a("s_load_dwordx2 s[%d:%d], s[0:1], 64" % (P_WS, P_WS + 1))
    a("s_load_dwordx2 s[%d:%d], s[0:1], 0" % (P_X, P_X + 1))
    a("s_load_dwordx2 s[%d:%d], s[0:1], 40" % (P_W2, P_W2 + 1))
    a("s_load_dwordx2 s[%d:%d], s[0:1], 16" % (P_WO, P_WO + 1))
    a("s_load_dwordx2 s[%d:%d], s[0:1], 48" % (P_OUT, P_OUT + 1))
    if FLN:
        lab = a.newlabel("F_pc")
        a("s_getpc_b64 s[%d:%d]" % (R_WO, R_WO + 1))
        a.label(lab)
        a("s_and_b32 s%d, s%d, 0xffff" % (R_WO + 1, R_WO + 1))
        a("s_mov_b32 s%d, CODE_END - %s" % (R_WO + 2, lab))
        a("s_mov_b32 s%d, 0x00020000" % (R_WO + 3))
        a("s_lshr_b32 s%d, s2, 3" % t0)
        a("s_lshl_b32 s%d, s%d, 7" % (t0, t0))
        a("v_lshlrev_b32 v70, 12, v0")
        a.vmem("buffer_load_dword v76, v70, %s, s%d offen" % (s4(R_WO), t0), "T")
    if FLN: a("s_load_dwordx2 s[100:101], s[0:1], 56")
    L = V_LANE
    a("v_and_b32 v%d, 63, v0" % L)
    a("v_lshrrev_b32 v%d, 6, v0" % (T + 1))
    a("v_lshlrev_b32 v%d, 4, v%d" % (V_L16, L))
    a("v_readfirstlane_b32 s%d, v%d" % (sW, T + 1))
    a("s_and_b32 s%d, s2, 1" % sI)
    a("s_lshl_b32 s%d, s%d, 2" % (sI, sI))
    a("s_bfe_u32 s%d, s2, 0x20003" % t0)
    a("s_add_u32 s%d, s%d, s%d" % (sI, sI, t0))
    a("s_bfe_u32 s%d, s2, 0x20001" % sQ)
    a("s_lshr_b32 s%d, s2, 5" % sN)
    a("s_lshl_b32 s%d, s%d, 3" % (sJ, sQ))
    a("s_add_u32 s%d, s%d, s%d" % (sJ, sJ, sN))
    a("s_and_b32 s%d, s%d, 1" % (sJ1, sN))
    if FLN:
        a("v_and_b32 v3, 7, v%d" % L)
        a("v_lshrrev_b32 v4, 3, v%d" % L)
        LXD = cfg.get("f_lxd", 0)
        if LXD:
            a("v_xor_b32 v83, v3, v4")
            a("v_lshlrev_b32 v5, 11, v4")
            a("v_lshl_add_u32 v5, v%d, 9, v5" % (T + 1))
            a("v_lshl_add_u32 v5, v83, 4, v5")
            a("s_lshl_b32 s%d, s%d, 12" % (t1, sW))
            a("s_add_u32 s%d, s%d, %d" % (t1, t1, 144 * 1024))
            a("s_mov_b32 m0, s%d" % t1)
        else:
            a("v_lshlrev_b32 v5, 11, v3")
            a("v_lshl_add_u32 v5, v%d, 9, v5" % (T + 1))
            a("v_lshl_add_u32 v5, v4, 4, v5")
        a("s_lshl_b32 s%d, s%d, 5" % (t3, sI))
        a("s_add_u32 s%d, s%d, s%d" % (t3, t3, sJ))
        a("s_lshl_b32 s%d, s%d, 14" % (sFK, t3))
        assert not LXD or not cfg.get("f_early", 0)
    def xloads():
        stampr("k0")
        a("s_waitcnt lgkmcnt(0)")
        stampr("k1")
        srd(a, R_W2, P_X, S * D * 2)
        for i in range(4):
            if LXD:
                a.vmem("buffer_load_dwordx4 v5, %s, s%d offen offset:%d lds" % (s4(R_W2), sFK, i * 128), ("LX", i))
                if i < 3:
                    a("s_add_u32 m0, m0, %d" % (1024 - 128))
                    a("s_nop 0")
            else: a.vmem("buffer_load_dwordx4 %s, v5, %s, s%d offen offset:%d" % (r4("v", 8 + 4 * i), s4(R_W2), sFK, i * 128), ("LX", i))
        if LXD:
            a("v_lshlrev_b32 v83, 4, v83")
            a("v_lshl_add_u32 v83, v3, 7, v83")
            a("v_add_u32 v83, s%d, v83" % t1)
        stampr("k2")
        srd(a, R_WS, P_WS, WS_END)
        a("s_lshl_b32 s%d, s%d, 12" % (sSP, sI))
        a("s_add_u32 s%d, s%d, 0x%x" % (sXO, sSP, WS_LF))
        a("v_and_b32 v80, 31, v%d" % L)
        a("v_lshlrev_b32 v80, %d, v80" % cfg.get("f_lfs", 2))
        a("v_add_u32 v80, s%d, v80" % sXO)
        a.vmem("buffer_load_dword v81, v80, %s, 0 offen sc1" % s4(R_WS), "SN")
    if FLN and not cfg.get("f_early", 0): xloads()
    VQ3 = [V_QKV, 240, 241]; VW3 = [V_W1, 242, 243]
    a("v_lshrrev_b32 v%d, 2, v%d" % (T + 2, L))
    a("v_and_b32 v%d, 3, v%d" % (T + 4, L))
    a("v_lshlrev_b32 v%d, 4, v%d" % (T + 4, T + 4))
    a("v_mul_u32_u24 v%d, %d, v%d" % (T + 5, 16 * 6144, T + 1))
    a("v_lshl_add_u32 v%d, v%d, 11, v%d" % (T + 5, T + 2, T + 5))
    a("v_add_u32 v%d, v%d, v%d" % (VQ3[0], T + 5, T + 4))
    a("v_and_b32 v%d, 32, v%d" % (T + 3, L))
    a("v_xor_b32 v%d, v%d, v%d" % (VQ3[1], VQ3[0], T + 3))
    a("v_add_u32 v%d, 32768, v%d" % (VQ3[1], VQ3[1]))
    a("v_xor_b32 v%d, 32, v%d" % (VQ3[2], VQ3[0]))
    a("v_add_u32 v%d, 65536, v%d" % (VQ3[2], VQ3[2]))
    a("v_mul_u32_u24 v%d, %d, v%d" % (T + 5, 16 * 7168, T + 1))
    a("v_add_u32 v%d, v%d, v%d" % (T + 5, T + 5, T + 4))
    for m in range(3):
        if m: a("v_add_u32 v%d, 16, v%d" % (T + 2, T + 2))
        a("v_mul_u32_u24 v%d, 43, v%d" % (T + 4, T + 2))
        a("v_lshrrev_b32 v%d, 7, v%d" % (T + 4, T + 4))
        a("v_mul_u32_u24 v%d, %d, v%d" % (T + 4, 7168 - 192, T + 4))
        a("v_lshl_add_u32 v%d, v%d, 6, v%d" % (T + 4, T + 2, T + 4))
        a("v_add_u32 v%d, v%d, v%d" % (VW3[m], T + 4, T + 5))
        if m == 1: a("v_xor_b32 v%d, v%d, v%d" % (VW3[m], VW3[m], T + 3))
        if m == 2: a("v_xor_b32 v%d, 32, v%d" % (VW3[m], VW3[m]))
    a("v_bfe_u32 v%d, v%d, 3, 1" % (T + 2, L))
    a("v_lshlrev_b32 v%d, 3, v%d" % (T + 2, T + 2))
    a("v_bfe_u32 v%d, v%d, 4, 1" % (T + 3, L))
    a("v_lshl_add_u32 v%d, v%d, 2, v%d" % (T + 2, T + 3, T + 2))
    a("v_bfe_u32 v%d, v%d, 1, 2" % (T + 3, L))
    a("v_add_u32 v%d, v%d, v%d" % (T + 2, T + 2, T + 3))
    a("v_lshl_add_u32 v%d, v%d, 4, v%d" % (T + 2, T + 1, T + 2))
    a("v_mul_u32_u24 v%d, 7168, v%d" % (V_LEFT, T + 2))
    a("v_and_b32 v%d, 1, v%d" % (T + 3, L))
    a("v_lshl_add_u32 v%d, v%d, 4, v%d" % (V_LEFT, T + 3, V_LEFT))
    a("v_lshrrev_b32 v%d, 5, v%d" % (T + 3, L))
    a("v_lshl_add_u32 v%d, v%d, 30, v%d" % (V_LEFT, T + 3, V_LEFT))
    a("s_lshl_b32 s%d, s%d, 6" % (sBQ, sJ))
    a("s_mul_i32 s%d, s%d, 224" % (sBL, sJ))
    a("s_lshl_b32 s%d, s%d, 5" % (t0, sJ1))
    a("s_add_u32 s%d, s%d, s%d" % (sBW, sBL, t0))
    a("s_xor_b32 s%d, s%d, 1" % (t0, sJ1))
    a("s_mul_i32 s%d, s%d, 192" % (t0, t0))
    a("s_add_u32 s%d, s%d, s%d" % (sBL, sBL, t0))
    a("s_mul_i32 s%d, s%d, %d" % (sLB, sW, REG))
    a("s_lshl_b32 s%d, s%d, 2" % (sA, sI))
    a("s_add_u32 s%d, s%d, s%d" % (sA, sA, sW))
    a("s_lshl_b32 s%d, s%d, 17" % (sA, sA))
    a("s_add_u32 s%d, s%d, 0x%x" % (sA, sA, WS_XN))
    ROT = cfg.get("f_rot", 1)
    a("s_add_u32 s%d, s%d, s%d" % (t1, sI, sN))
    a("s_and_b32 s%d, s%d, %d" % (t1, t1, 3 if ROT else 0))
    for k in range(3):
        a("s_cmp_eq_u32 s%d, %d" % (t1, 3 - k))
        a("s_cselect_b32 s%d, -3, 1" % (sDL + k))
    a("s_cmp_eq_u32 s%d, 0" % t1)
    a("s_cselect_b32 s%d, 1, 5" % (sDL + 3))
    a("s_mul_i32 s%d, s%d, %d" % (t0, t1, 64 * 6144))
    a("s_add_u32 s%d, s%d, s%d" % (sBQ, sBQ, t0))
    a("s_mul_i32 s%d, s%d, %d" % (t0, t1, 64 * 7168))
    a("s_add_u32 s%d, s%d, s%d" % (sBW, sBW, t0))
    a("s_add_u32 s%d, s%d, s%d" % (sBL, sBL, t0))
    a("s_lshl_b32 s%d, s%d, 13" % (t0, t1))
    a("s_add_u32 s%d, s%d, s%d" % (sA, sA, t0))
    for k in range(4):
        a("s_lshl_b32 s%d, s%d, 13" % (sDL + 4 + k, sDL + k))
        a("s_sub_u32 s%d, s%d, 4096" % (sDL + 4 + k, sDL + 4 + k))
    if FLN and cfg.get("f_early", 0): xloads()
    elif not FLN: a("s_waitcnt lgkmcnt(0)")
    srd(a, R_WQ, P_WQ, D * 3 * D * 2)
    srd(a, R_W1, P_W1, D * DFF * 2)
    if not FLN: srd(a, R_WS, P_WS, WS_END)

    G = Gaps(a)
    PAIRPOS = [0, 2, 1, 3, 4, 5]
    def dma1(g, k, part):
        p, vreg, sb, so, imm = [(0, VQ3[0], R_WQ, sBQ, 0), (1, VQ3[1], R_WQ, sBQ, 0), (2, VQ3[2], R_WQ, sBQ, 0),
                                (3, VW3[0], R_W1, sBW, 0), (4, VW3[1], R_W1, sBW, 0), (5, VW3[2], R_W1, sBW, 0), (6, V_LEFT, R_W1, sBL, 0)][k]
        if part == 0:
            a("s_add_u32 m0, s%d, %d" % (sLB, slot1(g) * STAGE + p * 1024 - imm))
        else:
            a.vmem("buffer_load_dwordx4 v%d, %s, s%d offen offset:%d lds" % (vreg, s4(sb), so, imm), ("B", g))
            if k == 0: G.sal.append("s_mul_i32 s%d, s%d, %d" % (t2, sDL + (g & 3), 64 * 6144))
            if k == 2: G.sal.append("s_add_u32 s%d, s%d, s%d" % (sBQ, sBQ, t2))
            if k == 3: G.sal.append("s_mul_i32 s%d, s%d, %d" % (t2, sDL + (g & 3), 64 * 7168))
            if k == 5: G.sal.append("s_add_u32 s%d, s%d, s%d" % (sBW, sBW, t2))
            if k == 6: G.sal.append("s_add_u32 s%d, s%d, s%d" % (sBL, sBL, t2))
    def aload1(s, mt):
        a.vmem("buffer_load_dwordx4 %s, v%d, %s, s%d offen offset:%d%s" % (r4("a", AR + (s % RA) * 16 + mt * 4), V_L16, s4(R_WS), sA, mt * 1024, " sc1" if FLN else ""), ("A", s))
        if mt == MT - 1:
            if s % 2 == 0: G.sal.append("s_add_u32 s%d, s%d, 4096" % (sA, sA))
            else: G.sal.append("s_add_u32 s%d, s%d, s%d" % (sA, sA, sDL + 4 + ((s // 2) & 3)))
    order = []
    for g in range(16):
        for k in range(7): order.append(("B", g, k))
        for s in (2 * g, 2 * g + 1):
            for mt in range(MT): order.append(("A", s, mt))
    def issue1(op):
        G.drain_sal()
        if op[0] == "A": aload1(op[1], op[2])
        else:
            dma1(op[1], op[2], 0); a("s_nop 0"); dma1(op[1], op[2], 1)
        G.drain_sal()
    if FLN:
        nb = cfg.get("f_lnb", 1)
        bops = [o for o in order if o[0] == "B" and o[1] < nb]
        for o in bops: order.remove(o)
        BO = cfg.get("f_bo", 0)
        late_b = []
        if BO == 1: late_b = bops[:3]; bops = bops[3:]
        if BO == 2: late_b = bops[3:]; bops = bops[:3]
        TB0 = cfg.get("f_tb", 0)
        def touchb():
            a("s_lshr_b32 s%d, s2, 3" % t1)
            a("s_lshl_b32 s%d, s%d, 2" % (t1, t1))
            a("s_add_u32 s%d, s%d, s%d" % (t1, t1, sW))
            a("v_lshrrev_b32 v84, 4, v%d" % L)
            a("v_and_b32 v85, 15, v%d" % L)
            a("v_mul_u32_u24 v86, 7168, v84")
            a("v_lshl_add_u32 v86, v85, 7, v86")
            a("v_mul_u32_u24 v84, 6144, v84")
            a("v_lshrrev_b32 v87, 2, v85")
            a("v_lshl_add_u32 v84, v87, 11, v84")
            a("v_and_b32 v87, 3, v85")
            a("v_lshl_add_u32 v84, v87, 7, v84")
            a("s_mul_i32 s%d, s%d, %d" % (t0, t1, 2 * 6144))
            a("s_lshl_b32 s%d, s%d, 9" % (t2, sQ))
            a("s_add_u32 s%d, s%d, s%d" % (sKV, t0, t2))
            a("s_mul_i32 s%d, s%d, %d" % (t0, t1, 2 * 7168))
            a("s_mul_i32 s%d, s%d, 1792" % (t2, sQ))
            a("s_add_u32 s%d, s%d, s%d" % (sKV2, t0, t2))
        def touchb2():
            a("s_mov_b64 exec, 0x0fff0fff")
            a.vmem("buffer_load_dword a%d, v84, %s, s%d offen" % (A_PD, s4(R_WQ), sKV), "T")
            a("s_mov_b64 exec, 0x3fff3fff")
            a.vmem("buffer_load_dword a%d, v86, %s, s%d offen" % (A_PD, s4(R_W1), sKV2), "T")
            a("s_mov_b64 exec, -1")
        HT = cfg.get("f_ht", 0)
        def hottouch(b):
            a("s_mov_b32 s%d, %d" % (t0, b * 256 * 6144))
            a.vmem("buffer_load_dword a%d, v%d, %s, s%d offen" % (A_PD, V_P1, s4(R_WQ), t0), "T")
        if HT:
            a("s_lshr_b32 s%d, s2, 3" % t1)
            a("s_lshl_b32 s%d, s%d, 2" % (t1, t1))
            a("s_add_u32 s%d, s%d, s%d" % (t1, t1, sW))
            a("s_mul_i32 s%d, s%d, %d" % (t1, t1, 2 * 6144))
            a("s_mul_i32 s%d, s%d, 0x40000200" % (t0, sQ))
            a("s_and_b32 s%d, s%d, 0x7fffffff" % (t0, t0))
            a("s_add_u32 s%d, s%d, s%d" % (t1, t1, t0))
            a("s_add_u32 s%d, s%d, 384" % (t1, t1))
            a("v_lshlrev_b32 v%d, 11, v%d" % (V_P1, L))
            a("v_add_u32 v84, 58, v%d" % L)
            a("v_lshrrev_b32 v84, 6, v84")
            a("v_lshl_add_u32 v%d, v84, 30, v%d" % (V_P1, V_P1))
            a("v_add_u32 v%d, s%d, v%d" % (V_P1, t1, V_P1))
            if HT & 1: hottouch(0)
        if TB0: touchb()
        if TB0 == 1: touchb2()
        for _ in range(cfg.get("f_lnb0", 2)): issue1(bops.pop(0))
        a("s_lshl_b32 s%d, s2, 9" % t0)
        a("s_add_u32 s%d, s%d, 0x%x" % (t0, t0, WS_FL))
        a("v_lshlrev_b32 v70, 2, v0")
        a("v_lshrrev_b32 v71, 7, v0")
        a("v_lshl_add_u32 v70, v71, 30, v70")
        a("v_mov_b32 v71, 0")
        a.vmem("buffer_store_dword v71, v70, %s, s%d offen sc1" % (s4(R_WS), t0), "Z")
        a("s_lshr_b32 s%d, s%d, 3" % (t0, t3))
        a("s_lshl_b32 s%d, s%d, 17" % (t0, t0))
        a("s_bfe_u32 s%d, s%d, 0x20001" % (t1, t3))
        a("s_lshl_b32 s%d, s%d, 10" % (t1, t1))
        a("s_add_u32 s%d, s%d, s%d" % (t0, t0, t1))
        a("s_and_b32 s%d, s%d, 1" % (t1, t3))
        a("s_lshl_b32 s%d, s%d, 7" % (t1, t1))
        a("s_add_u32 s%d, s%d, s%d" % (t0, t0, t1))
        a("s_add_u32 s%d, s%d, 0x%x" % (t3, t0, WS_XN))
        a("v_lshrrev_b32 v6, 2, v4")
        a("v_lshl_add_u32 v6, v%d, 3, v6" % (T + 1))
        a("v_lshlrev_b32 v6, 12, v6")
        a("v_and_b32 v7, 3, v4")
        a("v_lshl_add_u32 v6, v7, 8, v6")
        a("v_lshl_add_u32 v6, v3, 4, v6")
        a("v_lshl_add_u32 v7, v%d, 3, v3" % (T + 1))
        a("v_lshlrev_b32 v7, 3, v7")
        a("v_add_u32 v7, %d, v7" % (5 * STAGE))
        a("v_lshlrev_b32 v60, 3, v3")
        a("v_add_u32 v60, %d, v60" % (5 * STAGE))
        stampr("k3")
        if LXD:
            for i in range(4):
                a.wait(vm=("LX", i))
                if i == 0: stampr("k4")
                a("ds_read_b128 %s, v83 offset:%d" % (r4("v", 8 + 4 * i), i * 1024))
            a("s_waitcnt lgkmcnt(0)")
        elif not cfg.get("f_lxp", 1): a.wait(vm=("LX", 3))
        stampr("lnx")
        if TB0 == 2: touchb2()
        lo_ = ln_ops(cfg.get("f_lnex", 1))
        gap_ = cfg.get("f_lngap", 20)
        for k, x in enumerate(lo_):
            if x.startswith("WAIT"): a.wait(vm=("LX", int(x[4:])))
            elif x.startswith("STORE"):
                i = int(x[5:])
                a.vmem("buffer_store_dwordx4 %s, v6, %s, s%d offen sc1" % (r4("v", 8 + 4 * i), s4(R_WS), t3), "XS")
                if i < 3: a("s_add_u32 s%d, s%d, %d" % (t3, t3, 8192))
            else: a(x)
            if k % gap_ == gap_ - 1 and bops and k < cfg.get("f_lnk", 110): issue1(bops.pop(0))
        bops += late_b
        if cfg.get("f_bnow", 1):
            while bops: issue1(bops.pop(0))
        stampr("lns")
    else:
        for _ in range(cfg.get("f_pro1", 15)): issue1(order.pop(0))

    srd(a, R_W2, P_W2, DFF * D * 2)
    srd(a, R_WO, P_WO, D * D * 2)
    a("s_bfe_u32 s%d, s2, 0x30003" % sCLS)
    a("v_bfrev_b32 v%d, 1" % (T + 6))
    if cfg.get("f_pf", 0):
        a("s_lshr_b32 s%d, s2, 6" % t1)
        a("s_lshl_b32 s%d, s%d, 2" % (t1, t1))
        a("s_add_u32 s%d, s%d, s%d" % (t1, t1, sW))
        a("v_bfrev_b32 v%d, 1" % (T + 6))
        a("v_lshrrev_b32 v%d, 5, v%d" % (T + 2, L))
        a("s_lshl_b32 s%d, s%d, 1" % (t0, t1))
        a("v_add_u32 v%d, s%d, v%d" % (T + 2, t0, T + 2))
        a("v_and_b32 v%d, 31, v%d" % (T + 3, L))
        a("v_mul_u32_u24 v%d, 7168, v%d" % (V_P1, T + 2))
        a("v_lshl_add_u32 v%d, v%d, 7, v%d" % (V_P1, T + 3, V_P1))
        a("s_mul_i32 s%d, s%d, 1792" % (t0, sQ))
        a("v_add_u32 v%d, s%d, v%d" % (V_P1, t0, V_P1))
        a("v_mul_u32_u24 v%d, 6144, v%d" % (V_P0, T + 2))
        a("v_lshrrev_b32 v%d, 2, v%d" % (T + 4, T + 3))
        a("v_lshl_add_u32 v%d, v%d, 11, v%d" % (V_P0, T + 4, V_P0))
        a("v_and_b32 v%d, 3, v%d" % (T + 4, T + 3))
        a("v_lshl_add_u32 v%d, v%d, 7, v%d" % (V_P0, T + 4, V_P0))
        a("s_lshl_b32 s%d, s%d, 9" % (t0, sQ))
        a("v_add_u32 v%d, s%d, v%d" % (V_P0, t0, V_P0))
        a("v_cmp_le_u32 vcc, 12, v%d" % (T + 3))
        a("s_and_b32 s%d, s2, 1" % t0)
        a("s_lshl_b32 s%d, s%d, 4" % (t0, t0))
        a("v_cndmask_b32 v%d, v%d, v%d, vcc" % (V_P0, V_P0, T + 6))
        a("v_cmp_le_u32 vcc, 14, v%d" % (T + 3))
        a("s_add_u32 s%d, s%d, s%d" % (t0, t0, t1))
        a("s_lshl_b32 s%d, s%d, 17" % (t0, t0))
        a("v_cndmask_b32 v%d, v%d, v%d, vcc" % (V_P1, V_P1, T + 6))
        a("s_add_u32 s%d, s%d, 0x%x" % (t0, t0, WS_XN))
        a("v_lshlrev_b32 v%d, 7, v%d" % (V_P2, L))
        a("v_add_u32 v%d, s%d, v%d" % (V_P2, t0, V_P2))
        a("v_cmp_le_u32 vcc, 32, v%d" % L)
        a("s_lshl_b32 s%d, s%d, 12" % (t0, sCLS))
        a("s_nop 0")
        a("v_cndmask_b32 v%d, v%d, v%d, vcc" % (V_P2, V_P2, T + 6))
    PFM = cfg.get("f_pf", 0)
    PF0 = cfg.get("f_pf0", 8)
    if PFM & 2:
        a("buffer_load_dword a%d, v%d, %s, s%d offen" % (A_PD, V_P2, s4(R_WS), t0))
    def touch(n):
        lab = a.newlabel("F_pf")
        a("s_cmp_lg_u32 s%d, %d" % (sCLS, n & 7))
        a("s_cbranch_scc1 %s" % lab)
        if PFM & 1:
            a("s_mov_b32 s%d, %d" % (t0, n * 32 * 6144))
            a("s_mov_b32 s%d, %d" % (t1, n * 32 * 7168))
            a("buffer_load_dword a%d, v%d, %s, s%d offen" % (A_PD, V_P0, s4(R_WQ), t0))
            a("buffer_load_dword a%d, v%d, %s, s%d offen" % (A_PD - 1, V_P1, s4(R_W1), t1))
        if PFM & 2:
            a("s_mov_b32 s%d, %d" % (t0, n * 4096))
            a("buffer_load_dword a%d, v%d, %s, s%d offen" % (A_PD, V_P2, s4(R_WS), t0))
        a.label(lab)
    if PFM & 4:
        a("s_and_b32 s%d, s2, 1" % t0)
        a("v_lshrrev_b32 v%d, 5, v%d" % (T + 2, L))
        a("v_cmp_ne_u32 vcc, s%d, v%d" % (t0, T + 2))
        a("s_nop 1")
        a("v_cndmask_b32 v%d, v%d, v%d, vcc" % (V_P0, V_P0, T + 6))
        a("v_cndmask_b32 v%d, v%d, v%d, vcc" % (V_P1, V_P1, T + 6))
    PW = cfg.get("f_pw", 2); PW0 = cfg.get("f_pw0", 12)
    V_PW = 231
    a("v_lshlrev_b32 v%d, 7, v%d" % (V_PW, L))
    a("v_cmp_le_u32 vcc, 56, v%d" % L)
    a("s_nop 1")
    a("v_cndmask_b32 v%d, v%d, v%d, vcc" % (V_PW, V_PW, T + 6))
    ASY = cfg.get("f_asy", 1)
    if ASY:
        if cfg.get("f_xcc", 0):
            a("s_getreg_b32 s%d, hwreg(HW_REG_XCC_ID)" % t0)
            a("s_and_b32 s%d, s%d, 1" % (t0, t0))
        else: a("s_bfe_u32 s%d, s2, 0x%x" % (t0, 0x10001 if SWP else 0x10000))
        if ASY == 2: a("s_xor_b32 s%d, s%d, 1" % (t0, t0))
        a("s_lshl_b32 s%d, s%d, 4" % (t0, t0))
        a("s_or_b32 s%d, s%d, s%d" % (sCLS, sCLS, t0))
    HOT = cfg.get("f_hot", 0); LO = cfg.get("f_lo", 64)
    if HOT:
        a("s_bfe_u32 s%d, s2, 0x30003" % sCLS)
        a("s_and_b32 s%d, s%d, 14" % (t0, sJ))
        a("s_cmp_eq_u32 s%d, 6" % t0)
        a("s_cselect_b32 s%d, 16, s%d" % (sCLS, sCLS))
        if LO == 0:
            a("s_bitcmp1_b32 s2, 0")
            a("s_cselect_b32 s%d, 16, s%d" % (sCLS, sCLS))
        a("v_lshlrev_b32 v%d, 7, v%d" % (V_PW, L))
    def toucht(cls):
        lab = a.newlabel("F_pw"); l2 = a.newlabel("F_po")
        def ex(n):
            m_ = (1 << n) - 1
            a("s_mov_b32 exec_lo, 0x%x" % (m_ & 0xffffffff)); a("s_mov_b32 exec_hi, 0x%x" % (m_ >> 32))
        a("s_cmp_lg_u32 s%d, %d" % (sCLS, cls))
        a("s_cbranch_scc1 %s" % lab)
        a("s_add_u32 s%d, s%d, 8" % (t0, sJ))
        a("s_lshr_b32 s%d, s%d, 4" % (t0, t0))
        a("s_lshl_b32 s%d, s%d, 1" % (t0, t0))
        a("s_sub_u32 s%d, s%d, s%d" % (t0, sJ, t0))
        a("s_lshl_b32 s%d, s%d, 2" % (t0, t0))
        a("s_and_b32 s%d, s%d, 3" % (t1, sI))
        a("s_add_u32 s%d, s%d, s%d" % (t0, t0, t1))
        a("s_lshl_b32 s%d, s%d, 2" % (t0, t0))
        a("s_add_u32 s%d, s%d, s%d" % (t0, t0, sW))
        a("s_lshl_b32 s%d, s%d, 14" % (t1, t0))
        a("s_bitcmp1_b32 s2, 0")
        a("s_cbranch_scc1 %s" % l2)
        a("buffer_load_dword a%d, v%d, %s, s%d offen" % (A_PD, V_PW, s4(R_W2), t1))
        if LO < 64:
            a("s_add_u32 s%d, s%d, 8192" % (t1, t1))
            ex(64 - LO)
            a("buffer_load_dword a%d, v%d, %s, s%d offen" % (A_PD, V_PW, s4(R_W2), t1))
        a("s_mul_i32 s%d, s%d, %d" % (t1, t0, 37 * 128))
        ex(37)
        a("buffer_load_dword a%d, v%d, %s, s%d offen" % (A_PD - 1, V_PW, s4(R_WO), t1))
        a("s_mov_b64 exec, -1")
        a("s_branch %s" % lab)
        a.label(l2)
        if LO:
            a("s_add_u32 s%d, s%d, %d" % (t1, t1, (128 - LO) * 128))
            ex(LO)
            a("buffer_load_dword a%d, v%d, %s, s%d offen" % (A_PD, V_PW, s4(R_W2), t1))
            a("s_mov_b64 exec, -1")
        a.label(lab)
    def touchw(cls, flip=0):
        lab = a.newlabel("F_pw")
        if cls is not None:
            a("s_cmp_lg_u32 s%d, %d" % (sCLS, cls))
            a("s_cbranch_scc1 %s" % lab)
        if flip:
            a("s_xor_b32 s%d, s2, %d" % (t0, 2 if SWP else 1))
            a("s_lshl_b32 s%d, s%d, 2" % (t0, t0))
        else: a("s_lshl_b32 s%d, s2, 2" % t0)
        a("s_add_u32 s%d, s%d, s%d" % (t0, t0, sW))
        a("s_mul_i32 s%d, s%d, 7168" % (t1, t0))
        a("buffer_load_dword a%d, v%d, %s, s%d offen" % (A_PD, V_PW, s4(R_W2), t1))
        a("s_lshl_b32 s%d, s%d, 11" % (t1, t0))
        a("s_mov_b64 exec, 0xffff")
        a("buffer_load_dword a%d, v%d, %s, s%d offen" % (A_PD - 1, V_PW, s4(R_WO), t1))
        a("s_mov_b64 exec, -1")
        a.label(lab)
    def touchp(k):
        a("s_lshl_b32 s%d, s2, 2" % t0)
        a("s_add_u32 s%d, s%d, s%d" % (t0, t0, sW))
        if k < 2:
            a("s_mul_i32 s%d, s%d, 7168" % (t1, t0))
            a("s_mov_b64 exec, 0xfffffff")
            a.vmem("buffer_load_dword a%d, v%d, %s, s%d offen offset:%d" % (A_PD, V_PW, s4(R_W2), t1, k * 3584), "T")
        else:
            a("s_lshl_b32 s%d, s%d, 11" % (t1, t0))
            a("s_mov_b64 exec, 0xffff")
            a.vmem("buffer_load_dword a%d, v%d, %s, s%d offen" % (A_PD, V_PW, s4(R_WO), t1), "T")
        a("s_mov_b64 exec, -1")
    def touchx(k):
        a("s_lshr_b32 s%d, s2, 3" % t0)
        a("s_lshl_b32 s%d, s%d, 2" % (t0, t0))
        a("s_add_u32 s%d, s%d, s%d" % (t0, t0, sW))
        a("s_lshl_b32 s%d, s%d, 7" % (t1, sQ))
        a("s_add_u32 s%d, s%d, s%d" % (t0, t0, t1))
        if k < 2:
            a("s_mul_i32 s%d, s%d, 14336" % (t1, t0))
            if k: a("s_add_u32 s%d, s%d, 7168" % (t1, t1))
            a("buffer_load_dword a%d, v%d, %s, s%d offen" % (A_PD - k, V_PW, s4(R_W2), t1))
        else:
            a("s_lshl_b32 s%d, s%d, 12" % (t1, t0))
            a("s_mov_b32 exec_hi, 0")
            a("buffer_load_dword a%d, v%d, %s, s%d offen" % (A_PD, V_PW, s4(R_WO), t1))
            a("s_mov_b32 exec_hi, -1")
    pfq = list(range(PF0, KS)) if PFM else []
    PFA = cfg.get("f_pfa", 30)
    a("v_lshrrev_b32 v%d, 5, v%d" % (T + 2, L))
    a("v_mul_u32_u24 v%d, %d, v%d" % (T + 2, REG, T + 2))
    a("v_and_b32 v%d, 3, v%d" % (T + 3, L))
    a("v_lshl_add_u32 v%d, v%d, 3, v%d" % (T + 2, T + 3, T + 2))
    a("v_bfe_u32 v%d, v%d, 2, 2" % (T + 3, L))
    a("v_bfe_u32 v%d, v%d, 4, 1" % (T + 4, L))
    a("v_mul_u32_u24 v%d, 192, v%d" % (V_RD, T + 3))
    a("v_add_u32 v%d, v%d, v%d" % (V_RD, V_RD, T + 2))
    a("v_mul_u32_u24 v%d, %d, v%d" % (T + 5, 8 * 192 + 32, T + 4))
    a("v_add_u32 v%d, v%d, v%d" % (V_RD, V_RD, T + 5))
    a("v_xor_b32 v%d, 32, v%d" % (V_RD + 1, V_RD))
    a("v_lshl_add_u32 v%d, v%d, 5, v%d" % (V_RD + 2, T + 3, T + 2))
    a("v_lshl_add_u32 v%d, v%d, 7, v%d" % (V_RD + 2, T + 4, V_RD + 2))
    for st_ in (1, 2):
        for x in range(3):
            a("v_add_u32 v%d, %d, v%d" % (V_RD + 3 * st_ + x, st_ * 2 * STAGE, V_RD + x))
    a("s_lshl_b32 s%d, s%d, 7" % (sKV, sJ))
    a("s_lshl_b32 s%d, s%d, 4" % (t0, sI))
    a("s_add_u32 s%d, s%d, s%d" % (sKV, sKV, t0))
    a("s_lshl_b32 s%d, s%d, 2" % (t0, sW))
    a("s_add_u32 s%d, s%d, s%d" % (sKV, sKV, t0))
    a("s_lshl_b32 s%d, s%d, 10" % (sKV, sKV))
    a("s_add_u32 s%d, s%d, 0x%x" % (sKV2, sKV, WS_V))
    a("s_add_u32 s%d, s%d, 0x%x" % (sKV, sKV, WS_K))
    a("s_sub_u32 s%d, s%d, 16384" % (sKP, sKV))
    a("s_sub_u32 s%d, s%d, 16384" % (sKP2, sKV2))
    a("s_cmp_eq_u32 s%d, 0" % sI)
    a("s_cselect_b32 s%d, 0x40000000, s%d" % (sKP, sKP))
    a("s_cselect_b32 s%d, 0x40000000, s%d" % (sKP2, sKP2))
    a("s_lshl_b32 s%d, s2, 2" % sFO)
    a("s_add_u32 s%d, s%d, s%d" % (sFO, sFO, sW))
    a("s_lshl_b32 s%d, s%d, 7" % (sFO, sFO))
    a("s_add_u32 s%d, s%d, 0x%x" % (sFO, sFO, WS_FL))
    a("s_add_u32 s%d, s%d, 1" % (t0, sI))
    a("s_and_b32 s%d, s%d, 3" % (t1, t0))
    a("s_lshl_b32 s%d, s%d, 3" % (t1, t1))
    a("s_lshr_b32 s%d, s%d, 2" % (t0, t0))
    a("s_or_b32 s%d, s%d, s%d" % (t1, t1, t0))
    a("s_and_b32 s%d, s2, 0xe6" % t0)
    a("s_or_b32 s%d, s%d, s%d" % (t1, t1, t0))
    a("s_lshl_b32 s%d, s%d, 2" % (t1, t1))
    a("s_add_u32 s%d, s%d, s%d" % (t1, t1, sW))
    a("s_lshl_b32 s%d, s%d, 7" % (t1, t1))
    a("s_add_u32 s%d, s%d, 0x%x" % (sFK, t1, WS_FL + 12))
    a("s_cmp_eq_u32 s%d, 7" % sI)
    a("s_cselect_b32 s%d, 0x40000000, s%d" % (sFK, sFK))
    if cfg.get("f_k7", 1):
        a("s_cselect_b32 s%d, 0x40000000, s%d" % (sKV, sKV))
        a("s_cselect_b32 s%d, 0x40000000, s%d" % (sKV2, sKV2))
    a("v_cmp_ne_u32 vcc, 0, v%d" % L)
    a("v_mov_b32 v%d, 1" % V_ONE)
    a("v_and_b32 v%d, 31, v%d" % (V_PL, L))
    a("v_cndmask_b32 v%d, 0, v%d, vcc" % (V_FL0, T + 6))
    a("v_lshlrev_b32 v%d, 2, v%d" % (V_PL, V_PL))
    a("s_and_b32 s%d, s2, 31" % t0)
    a("s_lshl_b32 s%d, s%d, 2" % (t0, t0))
    a("s_add_u32 s%d, s%d, s%d" % (t0, t0, sW))
    a("s_lshl_b32 s%d, s%d, 7" % (t0, t0))
    a("s_lshl_b32 s%d, s%d, 2" % (t1, sN))
    a("s_add_u32 s%d, s%d, s%d" % (t0, t0, t1))
    a("s_add_u32 s%d, s%d, 0x%x" % (t0, t0, WS_FL))
    a("v_lshlrev_b32 v%d, 14, v%d" % (V_FG, L))
    a("v_add_u32 v%d, s%d, v%d" % (V_FG, t0, V_FG))
    a("v_cmp_le_u32 vcc, 8, v%d" % L)
    a("s_lshl_b32 s%d, s%d, 12" % (t0, sW))
    a("s_add_u32 s%d, s%d, %d" % (t0, t0, KVB))
    a("v_cndmask_b32 v%d, v%d, v%d, vcc" % (V_FG, V_FG, T + 6))
    a("v_add_u32 v%d, s%d, v%d" % (V_KVW, t0, V_L16))
    a("s_lshl_b32 s%d, s%d, 2" % (t0, sI))
    a("s_add_u32 s%d, s%d, s%d" % (t0, t0, sW))
    a("s_lshl_b32 s%d, s%d, 17" % (sXO, t0))
    a("s_mul_i32 s%d, s%d, 144" % (t0, t0))
    a("s_mul_i32 s%d, s%d, 36" % (t1, sQ))
    a("s_add_u32 s%d, s%d, s%d" % (t0, t0, t1))
    a("s_lshl_b32 s%d, s%d, 12" % (t0, t0))
    a("s_add_u32 s%d, s%d, 0x%x" % (t0, t0, WS_A2))
    a("s_add_u32 s%d, s%d, %d" % (sAE, t0, 28 * 4096))
    a("s_lshl_b32 s%d, s%d, 12" % (t1, sN))
    a("s_add_u32 s%d, s%d, s%d" % (sO, sAE, t1))
    a("s_mul_i32 s%d, s%d, 7" % (t1, sN))
    a("s_add_u32 s%d, s%d, s%d" % (t1, t1, sJ1))
    a("s_lshl_b32 s%d, s%d, 11" % (t1, t1))
    a("s_add_u32 s%d, s%d, s%d" % (sH, t0, t1))
    a("s_add_u32 s%d, s%d, 4096" % (sH + 1, sH))
    a("s_add_u32 s%d, s%d, 8192" % (sH + 2, sH))
    a("s_mul_i32 s%d, s%d, %d" % (sH + 3, sJ1, -4096 + 8 - 3 * 4096))
    a("s_add_u32 s%d, s%d, %d" % (sH + 3, sH + 3, 3 * 4096))
    a("s_add_u32 s%d, s%d, s%d" % (sH + 3, sH + 3, sH))
    a("s_lshl_b32 s%d, s%d, 8" % (t0, sN))
    a("s_add_u32 s%d, s%d, s%d" % (sXO, sXO, t0))
    a("s_lshl_b32 s%d, s%d, 6" % (t0, sQ))
    a("s_add_u32 s%d, s%d, s%d" % (sXO, sXO, t0))
    a("s_mov_b32 s%d, 0x%x" % (sSC, f2u(QSCALE)))
    def spin(mask, skip_if_i0=False):
        l0 = a.newlabel("F_sp"); l1 = a.newlabel("F_ok")
        if skip_if_i0:
            a("s_cmp_eq_u32 s%d, 0" % sI)
            a("s_cbranch_scc1 %s" % l1)
        a("s_mov_b32 s%d, 0x%x" % (sSP, SPIN))
        a.label(l0)
        a("v_cmp_ne_u32 vcc, 0, v%d" % V_POLL)
        a("s_and_b32 s%d, vcc_lo, 0x%x" % (t0, mask))
        a("s_cmp_eq_u32 s%d, 0x%x" % (t0, mask))
        a("s_cbranch_scc1 %s" % l1)
        a("buffer_load_dword v%d, v%d, %s, s%d offen sc1" % (V_POLL, V_PL, s4(R_WS), sFO))
        a("s_sub_u32 s%d, s%d, 1" % (sSP, sSP))
        a("s_waitcnt vmcnt(0)")
        a("s_cbranch_scc0 %s" % l0)
        a.label(l1)
    def poll_issue(tag):
        a.vmem("buffer_load_dword v%d, v%d, %s, s%d offen sc1" % (V_POLL, V_PL, s4(R_WS), sFO), tag)

    if FLN:
        while bops: issue1(bops.pop(0))
        if PW & 8: touchw(None)
        nb2 = cfg.get("f_lnb2", 3)
        b2 = [o for o in order if o[0] == "B" and o[1] < nb + nb2]
        for o in b2: order.remove(o)
        if BO == 1: b2 = [o for o in b2 if o[2] >= 3] + [o for o in b2 if o[2] < 3]
        if BO == 2: b2 = [o for o in b2 if o[2] < 3] + [o for o in b2 if o[2] >= 3]
        for _ in range(cfg.get("f_lnb2e", 0)): issue1(b2.pop(0))
        if PW & 8: a.vm += ["T", "T"]
        a.wait(vm="XS")
        stampr("lnd")
        a("s_barrier")
        lab = a.newlabel("F_ln"); l2 = a.newlabel("F_lp"); l3 = a.newlabel("F_lq"); l4 = a.newlabel("F_la")
        a("s_lshl_b32 s%d, s%d, 5" % (t0, sI))
        a("v_mov_b32 v1, s%d" % t0)
        a("s_cmp_lg_u32 s%d, 0" % sW)
        a("s_cbranch_scc1 %s" % lab)
        a("v_add_u32 v82, 1, v81")
        a("s_lshl_b64 exec, 1, s%d" % sJ)
        a("buffer_store_dword v82, v80, %s, 0 offen sc1" % s4(R_WS))
        a("s_mov_b64 exec, -1")
        a.label(lab)
        while b2: issue1(b2.pop(0))
        if PW & 16: touchw(None)
        a("s_cmp_lg_u32 s%d, 1" % sW)
        a("s_cbranch_scc1 %s" % l4)
        a("s_mov_b64 exec, 1")
        a("global_atomic_add v1, v%d, s[100:101] sc1" % V_ONE)
        a("s_mov_b64 exec, -1")
        a.label(l4)
        PALL = cfg.get("f_pall", 0)
        if not PALL:
            a("s_cmp_lg_u32 s%d, 0" % sW)
            a("s_cbranch_scc1 %s" % l3)
        else:
            a("s_lshl_b32 s%d, s%d, 3" % (t1, sW))
            a("s_lshl_b32 s%d, 0xff, s%d" % (t1, t1))
        a("s_mov_b32 s%d, 0x%x" % (sSP, SPIN))
        a.label(l2)
        a("buffer_load_dword v82, v80, %s, 0 offen sc1" % s4(R_WS))
        a("s_waitcnt vmcnt(0)")
        a("v_cmp_ne_u32 vcc, v81, v82")
        if PALL:
            a("s_and_b32 s%d, vcc_lo, s%d" % (t0, t1))
            a("s_cmp_eq_u32 s%d, s%d" % (t0, t1))
        else: a("s_cmp_eq_u32 vcc_lo, -1")
        a("s_cbranch_scc1 %s" % l3)
        a("s_sub_u32 s%d, s%d, 1" % (sSP, sSP))
        a("s_cbranch_scc1 %s" % l3)
        a("s_and_b32 s%d, s%d, 7" % (t0, sSP))
        a("s_cbranch_scc1 %s" % l2)
        a("global_load_dword v2, v1, s[100:101] sc1")
        a("s_waitcnt vmcnt(0)")
        a("v_readfirstlane_b32 s%d, v2" % t0)
        a("s_cmp_lt_u32 s%d, 32" % t0)
        a("s_cbranch_scc1 %s" % l2)
        a.label(l3)
        if not PALL: a("s_barrier")
        stampr("lnp")
        for _ in range(8): issue1(order.pop(0))
        order[:0] = bops
    gi = []
    def grp(units, s0, s1, tiles, C):
        s = s0
        while s < s1:
            c = min(C, s1 - s)
            for t in tiles:
                g0 = len(units); gn = gi[-1][2] + 1 if gi else 0
                for k in range(c):
                    units.append((s + k, t)); gi.append((g0, c, gn))
            s += c
    units = []
    grp(units, 0, C1S, range(NT), 2)
    C1E = cfg.get("f_c1e", S1)
    grp(units, C1S, C1E, range(NT), C1)
    grp(units, C1E, S1, range(NT), 2)
    grp(units, S1, KS, (2, 3, 4, 5), C1K)
    UKV = len(units)
    grp(units, S1, KS, (6, 7, 8, 9), C1T)
    UH01 = len(units)
    grp(units, S1, KS, (10, 11, 12, 0, 1), C1T)
    NU = len(units)
    last_unit_of_stage = {}
    last_unit_of_step = {}
    for u, (s, t) in enumerate(units):
        last_unit_of_stage[s // 2] = u; last_unit_of_step[s] = u
    stt = dict(ready=-1, free=set(), waited=-1, issued=-1)
    def barrier():
        a("s_barrier")
        for g, lu in last_unit_of_stage.items():
            if lu <= stt["waited"]: stt["free"].add(g)
    def can1(op):
        if op[0] == "B": return op[1] < NS or (op[1] - NS) in stt["free"]
        return op[1] < RA or last_unit_of_step[op[1] - RA] <= stt["issued"]
    def flush1(tag):
        while any(o[:2] == tag for o in order):
            op = order.pop(0)
            assert can1(op), (op, stt)
            if cfg.get("verbose"): print("late flush", op, file=sys.stderr)
            issue1(op)
    def bread1(u, j2):
        s, t = units[u]
        slot = slot1(s // 2); st_ = slot // 2
        off = (slot % 2) * STAGE + (s % 2) * 2 * REG
        if t < 12: off += j2 * 768 + (t // 6) * 3072 + ((t // 2) % 3) * 64; vr = V_RD + 3 * st_ + (t % 2)
        else: off += 6144 + j2 * 256; vr = V_RD + 3 * st_ + 2
        a.lds("ds_read_b64_tr_b16 %s, v%d offset:%d" % (r2("a", BR + (u % RB) * 4 + j2 * 2), vr, off), ("b", u))
    def need1(u):
        g = units[u][0] // 2
        if g > stt["ready"]:
            flush1(("B", g)); a.wait(vm=("B", g)); barrier(); stt["ready"] = g
    def pack(c0, c1, relu=False):
        ops = []
        for hh, c in enumerate((c0, c1)):
            if c is None: continue
            for e2 in range(2):
                ops.append("v_cvt_pk_bf16_f32 v%d, v%d, v%d" % (c0 + 2 * hh + e2, c + 2 * e2, c + 2 * e2 + 1))
            if relu:
                for e2 in range(2):
                    ops.append("v_pk_max_i16 v%d, v%d, 0" % (c0 + 2 * hh + e2, c0 + 2 * hh + e2))
        return ops
    HF = ["sc1", "", "nt", "sc0"][cfg.get("f_hf", 0)]
    def hstore(p, mt):
        if p < 3: a.vmem("buffer_store_dwordx4 %s, v%d, %s, s%d offen offset:%d %s" % (r4("v", acc(mt, 6 + 2 * p)), V_L16, s4(R_WS), sH + p, mt * 1024, HF), "H")
        else: a.vmem("buffer_store_dwordx2 %s, v%d, %s, s%d offen offset:%d %s" % (r2("v", acc(mt, 12)), V_L16, s4(R_WS), sH + 3, mt * 1024, HF), "H")
    need1(0)
    stampr("bar0")
    for u in range(DB):
        need1(u)
        bread1(u, 0); bread1(u, 1)
    kvq = [(acc(mt, 2), acc(mt, 3), sKV, mt * 1024, 16384 + mt * 1024) for mt in range(MT)] + \
          [(acc(2 * b, 4 + dt), acc(2 * b + 1, 4 + dt), sKV2, (2 * b + dt) * 1024, 49152 + (2 * b + dt) * 1024) for b in range(2) for dt in range(2)]
    NREST = NU - UKV
    UFLAG = UKV + cfg.get("f_uf", 28)
    UPOLL = UFLAG + cfg.get("f_up", 14)
    UCHK = min(UPOLL + cfg.get("f_uc", 8), NU - 1)
    UPW = UCHK + cfg.get("f_uw", 14)
    V2_DMA = 209; V_XO = 211; V2_RD = 232; V2_B = 231
    bias = [232, 236, 240, 244]; VONES = 248; VM = 252
    sB2 = sBQ; sBO = sBV
    class Rec:
        def __init__(self): self.l = []
        def __call__(self, x): self.l.append(x)
    su = Rec(); TT = VM
    HO = 0
    su("v_lshrrev_b32 v%d, 4, v%d" % (TT, L))
    su("v_lshlrev_b32 v%d, 11, v%d" % (V2_DMA, TT))
    su("v_lshlrev_b32 v%d, 1, v%d" % (TT, TT))
    su("v_and_b32 v%d, 15, v%d" % (TT + 1, L))
    su("v_xor_b32 v%d, v%d, v%d" % (TT, TT, TT + 1))
    su("v_lshl_add_u32 v%d, v%d, 4, v%d" % (V2_DMA, TT, V2_DMA))
    su("s_and_b32 s%d, s%d, 1" % (t1, sW))
    su("s_lshl_b32 s%d, s%d, 7" % (t1, t1))
    su("v_xor_b32 v%d, s%d, v%d" % (V2_DMA, t1, V2_DMA))
    su("v_add_u32 v%d, %d, v%d" % (V2_DMA + 1, 32768 - 1024, V2_DMA))
    su("v_lshrrev_b32 v%d, 4, v%d" % (TT, L))
    su("v_lshlrev_b32 v%d, 2, v%d" % (TT, TT))
    for e in range(4):
        su("v_add_u32 v%d, %d, v%d" % (TT + 2, e, TT))
        su("v_cmp_le_u32 s[%d:%d], v%d, v%d" % (sMK + 2 * e, sMK + 2 * e + 1, TT + 2, TT + 1))
    su("s_lshl_b32 s%d, s%d, 13" % (t2, sW))
    su("s_lshl_b32 s%d, s%d, 8" % (t1, sN))
    su("s_add_u32 s%d, s%d, s%d" % (t2, t2, t1))
    su("s_lshl_b32 s%d, s%d, 19" % (sBO, sQ))
    su("s_add_u32 s%d, s%d, s%d" % (sBO, sBO, t2))
    su("s_mul_i32 s%d, s%d, %d" % (sB0, sQ, 896 * 2048))
    su("s_add_u32 s%d, s%d, s%d" % (sB0, sB0, t2))
    su("s_add_u32 s%d, s%d, %d" % (sBE, sB0, 896 * 2048))
    su("s_mul_i32 s%d, s%d, 7" % (t1, sN))
    su("s_add_u32 s%d, s%d, s%d" % (t1, t1, sJ1))
    su("s_lshl_b32 s%d, s%d, 15" % (t1, t1))
    su("s_add_u32 s%d, s%d, s%d" % (sB2, sB0, t1))
    LIN = cfg.get("f_lin", 1)
    if LIN:
        su("s_sub_u32 s%d, s%d, %d" % (sA, sAE, 28 * 4096))
        su("s_mov_b32 s%d, s%d" % (sAE, sH))
        su("s_add_u32 s%d, s%d, %d" % (sA0, sH, 3 * 4096))
        su("s_mov_b32 s%d, s%d" % (sBW, sB0))
        su("s_mov_b32 s%d, s%d" % (sBE, sB2))
        su("s_add_u32 s%d, s%d, %d" % (sB0, sB2, 3 * 65536))
    else:
        su("s_add_u32 s%d, s%d, %d" % (sA, sH, 3 * 4096))
        su("s_sub_u32 s%d, s%d, %d" % (sA0, sAE, 28 * 4096))
    su("s_cmp_eq_u32 s%d, s%d\ns_cselect_b32 s%d, s%d, s%d" % (sA, sAE, sA, sA0, sA))
    su0 = su.l; su = Rec()
    KS2 = 36
    LOC = [(0, 1), (1, 1), (2, 1), (0, 3), (1, 3), (2, 3), (0, 5), (1, 5), (2, 5), (3, 1), (3, 3), (3, 5), (4, 1), (4, 3), (4, 5)]
    NSL = len(LOC)
    def dma2_txt(p):
        sb, so = (R_W2, sB2) if p < 28 else (R_WO, sBO)
        sl, pos = LOC[p % NSL]
        ops = [(0, "s_add_u32 m0, s%d, %d" % (sLB, sl * STAGE + pos * 1024)),
               (1, "buffer_load_dwordx4 v%d, %s, s%d offen lds" % (V2_DMA, s4(sb), so)),
               (1, "buffer_load_dwordx4 v%d, %s, s%d offen offset:1024 lds" % (V2_DMA + 1, s4(sb), so))]
        if p == 2: ops.append((0, "s_mov_b32 s%d, s%d" % (sB2, sBW)))
        elif p != 27 and p != 35: ops.append((0, "s_add_u32 s%d, s%d, 65536" % (so, so)))
        if 2 <= p < 27: ops.append((0, "s_cmp_eq_u32 s%d, s%d\ns_cselect_b32 s%d, s%d, s%d" % (sB2, sBE, sB2, sB0, sB2)))
        return ops
    def dma2_ops(p):
        return [(k, (lambda x=x: a.vmem(x, ("B2", p))) if k else (lambda x=x: a(x))) for k, x in dma2_txt(p)]
    def hole_ops(ps):
        o = []
        for p in ps:
            for k, x in dma2_txt(p):
                if k: o += [("m", lambda x=x, p=p: a.vmem(x, ("B2", p)))] + [None] * cfg.get("f_hosp", 3)
                else: o += [x] + ([None] if "m0" in x else [])
        return o
    su("s_lshl_b32 s%d, s%d, 2" % (t1, sI))
    su("s_add_u32 s%d, s%d, s%d" % (t1, t1, sW))
    for gq in range(4):
        su("s_cmp_lt_u32 s%d, %d\ns_cselect_b32 s%d, 0x%x, 0" % (t1, 4 - gq, t2, f2u(-1e30)))
        for e in range(4): su("v_mov_b32 v%d, s%d" % (bias[gq] + e, t2))
    for e in range(4): su("v_mov_b32 v%d, 0x3f803f80" % (VONES + e))
    su("v_lshrrev_b32 v%d, 2, v%d" % (TT, L))
    su("v_and_b32 v%d, 7, v%d" % (TT + 2, TT))
    su("v_and_b32 v%d, 3, v%d" % (TT, TT))
    su("v_lshlrev_b32 v%d, 8, v%d" % (TT, TT))
    su("v_lshrrev_b32 v%d, 4, v%d" % (TT + 1, L))
    su("v_mul_u32_u24 v%d, %d, v%d" % (TT + 1, REG, TT + 1))
    su("v_add_u32 v%d, v%d, v%d" % (TT, TT, TT + 1))
    su("v_and_b32 v%d, 3, v%d" % (TT + 1, L))
    su("v_lshl_add_u32 v%d, v%d, 3, v%d" % (TT, TT + 1, TT))
    su("v_lshl_add_u32 v%d, v%d, 5, v%d" % (V2_B, TT + 2, TT))
    su("s_lshl_b32 s%d, s%d, 6" % (t1, sQ))
    su("s_xor_b32 s%d, s%d, 192" % (t1, t1))
    su("v_xor_b32 v%d, s%d, v%d" % (V2_B, t1, V2_B))
    su("v_mov_b32 v%d, 0xffff" % TT)
    su("v_mov_b32 v%d, 0xffff0000" % (TT + 1))
    su("v_cndmask_b32 v%d, 0, v%d, s[%d:%d]" % (VM + 2, TT, sMK, sMK + 1))
    su("v_cndmask_b32 v%d, 0, v%d, s[%d:%d]" % (VM + 3, TT, sMK + 4, sMK + 5))
    su("v_cndmask_b32 v%d, 0, v%d, s[%d:%d]" % (TT, TT + 1, sMK + 2, sMK + 3))
    su("v_cndmask_b32 v%d, 0, v%d, s[%d:%d]" % (TT + 1, TT + 1, sMK + 6, sMK + 7))
    su("v_or_b32 v%d, v%d, v%d" % (VM + 2, VM + 2, TT))
    su("v_or_b32 v%d, v%d, v%d" % (VM + 3, VM + 3, TT + 1))
    SPF = cfg.get("f_spf", 0)
    if SPF:
        su("s_lshr_b32 s%d, s2, 3" % t1)
        su("s_lshl_b32 s%d, s%d, 1" % (t1, t1))
        su("s_and_b32 s%d, s2, 1" % t2)
        su("s_add_u32 s%d, s%d, s%d" % (t1, t1, t2))
        su("s_lshl_b32 s%d, s%d, 2" % (t1, t1))
        su("s_add_u32 s%d, s%d, s%d" % (t1, t1, sW))
        su("s_lshl_b32 s%d, s%d, 7" % (t1, t1))
        su("s_mul_i32 s%d, s%d, %d" % (t2, sQ, 14336 * 128))
        su("s_add_u32 s%d, s%d, s%d" % (t2, t2, t1))
        su("s_add_u32 s%d, s%d, s%d\ns_addc_u32 s%d, s%d, 0" % (P_W2, P_W2, t2, P_W2 + 1, P_W2 + 1))
        su("s_add_u32 s%d, s%d, %d\ns_addc_u32 s%d, s%d, 0" % (P_WQ, P_W2, 28 * 32768, P_WQ + 1, P_W2 + 1))
        su("s_lshl_b32 s%d, s%d, 19" % (t2, sQ))
        su("s_add_u32 s%d, s%d, s%d" % (t2, t2, t1))
        su("s_add_u32 s%d, s%d, s%d\ns_addc_u32 s%d, s%d, 0" % (P_WO, P_WO, t2, P_WO + 1, P_WO + 1))
    V_T128 = V_XO
    TCN = cfg.get("f_tc", 0)
    su("v_lshlrev_b32 v%d, %d, v%d" % (V_T128, 15 if TCN else 7, L))
    if TCN:
        su("s_lshr_b32 s%d, s2, 3" % t1)
        su("s_lshl_b32 s%d, s%d, 1" % (t1, t1))
        su("s_and_b32 s%d, s2, 1" % t2)
        su("s_add_u32 s%d, s%d, s%d" % (t1, t1, t2))
        su("s_lshl_b32 s%d, s%d, 2" % (t1, t1))
        su("s_add_u32 s%d, s%d, s%d" % (t1, t1, sW))
        su("s_lshl_b32 s%d, s%d, 7" % (t1, t1))
        su("s_mul_i32 s%d, s%d, %d" % (sCLS, sQ, 14336 * 128))
        su("s_add_u32 s%d, s%d, s%d" % (sCLS, sCLS, t1))
        su("s_lshl_b32 s%d, s%d, 19" % (t3, sQ))
        su("s_add_u32 s%d, s%d, s%d" % (t3, t3, t1))
    def selftouch(so, half):
        if half: a("s_mov_b32 exec_hi, 0")
        a.vmem("buffer_load_dword a%d, v%d, %s, s%d offen sc1" % (A_PD, V_T128, s4(R_WS), so), "T")
        if half: a("s_mov_b32 exec_hi, -1")
    HK = cfg.get("f_hk", 0)
    if HK:
        assert RA == 12 and D1 == 8 and BR + RB * 4 <= 232 and UPW < NU
        kreg = lambda kt: 128 + 4 * kt if kt < 16 else 232 + 4 * (kt - 16)
        VF = 0
    else:
        kreg = lambda kt: 4 * kt
        VF = 80
    def kread(kt): a.lds("ds_read_b128 %s, v%d offset:%d" % (r4("a", kreg(kt)), V_KVW, kt * 1024), ("k", kt))
    def kpw(x):
        c0, c1, so, go, lo = kvq[x]
        a.wait(vm=("KP", x))
        a.lds("ds_write_b128 v%d, %s offset:%d" % (V_KVW, r4("v", c1), lo - 16384), "kvw")
    def codepf(vreg=None):
        if vreg is None: vreg = V_PW
        lab = a.newlabel("F_pc")
        a("s_getpc_b64 s[%d:%d]" % (R_WQ, R_WQ + 1))
        a.label(lab)
        a("s_and_b32 s%d, s%d, 0xffff" % (R_WQ + 1, R_WQ + 1))
        a("s_mov_b32 s%d, CODE_END - %s" % (R_WQ + 2, lab))
        a("s_lshr_b32 s%d, s2, 3" % t0)
        a("s_lshl_b32 s%d, s%d, 2" % (t0, t0))
        a("s_add_u32 s%d, s%d, s%d" % (t0, t0, sW))
        a("s_lshl_b32 s%d, s%d, 9" % (t0, t0))
        a("s_mov_b64 exec, 15")
        a.vmem("buffer_load_dword a%d, v%d, %s, s%d offen" % (A_PD, vreg, s4(R_WQ), t0), "T")
        a("s_mov_b64 exec, -1")
    seenA = set()
    ramp = (RA - 1 - LA) / float(S1 * NT)
    WM = cfg.get("f_wm", 200) / 100.0
    W0 = cfg.get("f_w0", 100) / 100.0
    UEND = S1 * NT + cfg.get("f_uend", 8)
    wts = [0.0] + [W0 * sum(1 for o in order if (o[1] if o[0] == "B" else o[1] // 2) == g) / 15.0 for g in (1, 2, 3)] + [WM if g % 4 == 0 else 1.0 for g in range(4, 16)]
    ipos = {}
    if cfg.get("f_lw", 0) == 2:
        no = []
        for g in range(16):
            bl = [o for o in order if o[0] == "B" and o[1] == g]; al = [o for o in order if o[0] == "A" and o[1] // 2 == g]
            if len(bl) == 7: mix = [bl[0], al[0], al[1], bl[1], al[2], al[3], bl[2], al[4], bl[3], bl[4], bl[5], bl[6], al[5], al[6], al[7]]
            else: mix = bl + al
            for k, o in enumerate(mix): ipos[o] = k
            no += mix
        order[:] = no
    noB = set(g for g in range(16) if not any(o[0] == "B" and o[1] == g for o in order))
    tau = [0.0]
    for g in range(16): tau.append(tau[-1] + wts[g])
    tau = [x * UEND / tau[-1] for x in tau]
    def due(op):
        g = op[1] if op[0] == "B" else op[1] // 2
        idx = op[2] if op[0] == "B" else 7 + (op[1] % 2) * 4 + op[2]
        if cfg.get("f_wb", 0) and op[0] == "B" and op[2] > 3: idx = 3
        if g in noB: return tau[g] + (tau[g + 1] - tau[g]) * (idx - 7) / 8.0
        if cfg.get("f_lw", 0) == 1:
            lw = [64, 64, 64, 56, 36, 44, 24] + [32] * 8
            return tau[g] + (tau[g + 1] - tau[g]) * sum(lw[:idx]) / float(sum(lw))
        if cfg.get("f_lw", 0) == 2: return tau[g] + (tau[g + 1] - tau[g]) * ipos[op] / 15.0
        return tau[g] + (tau[g + 1] - tau[g]) * idx / 15.0
    DF = cfg.get("f_df", 0); PZ0 = cfg.get("f_pz0", 4)
    THR1 = cfg.get("f_thr1", 63)
    side = G.side
    def prewait1(u):
        u += gi[u][1] - 1
        s, t = units[u]
        if s not in seenA:
            flush1(("A", s)); seenA.add(s)
            r = a.wait(vm=("A", s), lg=("b", u))
        else: r = a.wait(lg=("b", u))
        stt["waited"] = u
        return r
    prewait1(0)
    for u in range(NU):
        u0, C_, gn = gi[u]; kk = u - u0
        s, t = divmod(u, NT) if u < S1 * NT else units[u]
        un = u + DB
        if un < NU: need1(un)
        if u in ((S1 - 4) * NT + 2, (S1 - 2) * NT + 2, S1 * NT + 2): barrier()
        elif cfg.get("f_xb", 0) and u < S1 * NT and u % (2 * NT) == 0 and u > 0: barrier()
        if S1 // 2 <= 12 and u == last_unit_of_stage[12] + 2: barrier()
        if pfq and u % 4 == 2 and pfq[0] - 1 <= (u + PFA) / NT + LA + ramp * (u + PFA): touch(pfq.pop(0))
        if PW & 4:
            for k in range(3):
                if u == S1 * NT + cfg.get("f_px0", 4) + k * cfg.get("f_pxd", 16): touchx(k)
        if PW == 1 and u == UKV - PW0: touchw(None)
        if PW & 3 == 2 and u < S1 * NT and t == 8 and PW0 <= s < PW0 + 8: (toucht if HOT else touchw)((s + 4) & 7)
        PW1 = cfg.get("f_pw1", 4)
        if ASY and not HOT and PW & 3 == 2 and u < S1 * NT and t == 8 and PW1 <= s < PW1 + 8: touchw((s + 4 + PW0 - PW1) & 7, 1)
        if u == 16 * NT: stampr("g1half")
        if u < S1 * NT and t == 0: stampr("g1s%d" % s)
        if u == S1 * NT: stampr("g1tail")
        if u == UKV:
            stampr("g1kv")
            if cfg.get("f_cpf", 1): codepf()
        if DF and u == 3 * NT:
            side += ["v_mov_b32 v%d, -1" % (T + e) for e in range(4)]
            side += ["s_lshl_b32 s%d, s2, 2" % t3, "s_add_u32 s%d, s%d, s%d" % (t3, t3, sW), "s_mul_i32 s%d, s%d, 12288" % (t3, t3),
                     "s_add_u32 s%d, s%d, 0x%x" % (t3, t3, WS_XC),
                     "v_xor_b32 v%d, 3, v%d" % (T + 4, L), "v_lshlrev_b32 v%d, 1, v%d" % (T + 4, T + 4), "v_xor_b32 v%d, s2, v%d" % (T + 4, T + 4),
                     "v_lshlrev_b32 v%d, 9, v%d" % (T + 4, T + 4), "v_lshl_add_u32 v%d, v%d, 2, v%d" % (T + 4, L, T + 4)]
        if DF and u < S1 * NT and t == 4 and PZ0 <= s < PZ0 + 12:
            k_ = s - PZ0
            side.append(("m", lambda k_=k_: a.vmem("buffer_store_dwordx4 %s, v%d, %s, s%d offen offset:%d sc1" % (r4("v", T), V_L16, s4(R_WS), t3, (k_ % 4) * 1024), "PZ")))
            if k_ % 4 == 3: side.append("s_add_u32 s%d, s%d, 4096" % (t3, t3))
        if DF and u == (PZ0 + 14) * NT + 5:
            assert a.vm.count("PZ") == 12
            a.wait(vm="PZ")
            a("s_lshl_b32 s%d, s%d, 7" % (t3, sW))
            a("s_add_u32 s%d, s%d, 0x%x" % (t3, t3, WS_FL))
            a("s_mov_b64 exec, 7")
            a.vmem("buffer_store_dword v%d, v%d, %s, s%d offen sc1" % (V_ONE, T + 4, s4(R_WS), t3), "RF")
            a("s_mov_b64 exec, -1")
        if u == cfg.get("f_tlb", -1):
            sh = cfg.get("f_tlbs", 21)
            a("v_lshlrev_b32 v%d, %d, v%d" % (V_P2, sh, L))
            a.vmem("buffer_load_dword a%d, v%d, %s, 0 offen" % (A_PD, V_P2, s4(R_WS)), "T")
            a.vmem("buffer_load_dword a%d, v%d, %s, 0 offen" % (A_PD, V_P2, s4(R_W2)), "T")
            a.vmem("buffer_load_dword a%d, v%d, %s, 0 offen" % (A_PD, V_P2, s4(R_WO)), "T")
            a("s_mov_b64 exec, %d" % ((1 << ((S * D * 2) >> sh)) - 1))
            a.vmem("global_load_dword a%d, v%d, s[%d:%d]" % (A_PD, V_P2, P_OUT, P_OUT + 1), "T")
            a("s_mov_b64 exec, -1")
        if FLN and u == 20 * NT + 3:
            a("v_and_b32 v%d, 7, v%d" % (V_P0, L))
            a("v_lshlrev_b32 v%d, 5, v%d" % (V_P0, V_P0))
            a.vmem("global_load_dword v%d, v%d, s[100:101] sc1" % (V_POLL, V_P0), "CN")
        if FLN and u == 22 * NT + 3:
            a.wait(vm="CN")
            l0 = a.newlabel("F_cn"); l1 = a.newlabel("F_ok")
            a("s_mov_b32 s%d, 0x%x" % (sSP, SPIN))
            a.label(l0)
            a("v_cmp_le_u32 vcc, 32, v%d" % V_POLL)
            a("s_cmp_eq_u32 vcc_lo, -1")
            a("s_cbranch_scc1 %s" % l1)
            a("global_load_dword v%d, v%d, s[100:101] sc1" % (V_POLL, V_P0))
            a("s_sub_u32 s%d, s%d, 1" % (sSP, sSP))
            a("s_waitcnt vmcnt(0)")
            a("s_cbranch_scc0 %s" % l0)
            a.label(l1)
        if u == UFLAG:
            stampr("g1flag0")
            assert a.vm.count("KV") == 8
            a.wait(vm="KV")
            stampr("g1flag1")
            a.vmem("buffer_store_dword v%d, v%d, %s, s%d offen sc1" % (V_ONE, V_FL0, s4(R_WS), sFK), "FK")
        if u == UPOLL: poll_issue("PK")
        if u == UCHK:
            a.wait(vm="PK")
            spin(1 << 3, skip_if_i0=True)
            stampr("g1chk")
            if HK:
                def kd(so, k, chk):
                    if chk: assert 12 in stt["free"]
                    a.vmem("buffer_load_dwordx4 v%d, %s, s%d offen offset:%d sc1 lds" % (V_L16, s4(R_WS), so, k * 1024), "KD")
                new_ = ["s_lshl_b32 s%d, s%d, 12\ns_add_u32 m0, s%d, %d" % (t0, sW, t0, KVB + 32768), None]
                new_ += [("m", lambda k=k: kd(sKP2, k, False)) for k in range(4)]
                new_ += ["s_sub_u32 m0, m0, 32768", None]
                new_ += [("m", lambda k=k: kd(sKP, k, True)) for k in range(4)]
                side[:0] = new_
            else:
              for x, (c0, c1, so, go, lo) in enumerate(kvq):
                def f(c1=c1, so=(sKP if x < 4 else sKP2), go=go, x=x):
                    a.vmem("buffer_load_dwordx4 %s, v%d, %s, s%d offen offset:%d sc1" % (r4("v", c1), V_L16, s4(R_WS), so, go), ("KP", x))
                side.insert(x, ("m", f))
        if HK and u == UPW:
            assert a.vm.count("KD") == 8 and a.lg.count("kvw") == 8
            a.wait(vm="KD", lg="kvw"); barrier()
            stampr("g1kb")
            side[:0] = [("v", lambda kt=kt: kread(kt)) for kt in range(20)]
        nxt = None
        if order and can1(order[0]) and len(G.sal) <= 1 and due(order[0]) <= u: nxt = order.pop(0)
        if nxt and cfg.get("verbose", 0) > 1: print("issue", u, nxt, "due %.0f" % due(nxt), file=sys.stderr)
        if FLN and HT & 2:
            for b in (1, 2, 3):
                if u == max(0, int(tau[4 * b]) - cfg.get("f_hta", 0)): hottouch(b)
        if PW & 32 and nxt:
            tk = cfg.get("f_tk", 0)
            key = ("B", nxt[1], tk) if tk < 7 else ("A", nxt[1], (tk - 7) % 4)
            g_ = nxt[1] if nxt[0] == "B" else nxt[1] // 2
            if nxt == key and g_ in (4, 8, 12) and (nxt[0] == "B" or nxt[1] % 2 == (tk - 7) // 4): touchp(g_ // 4 - 1)
        for mt in range(MT):
            m_, k_ = divmod(kk * MT + mt, C_)
            if cfg.get("f_kz", 1) and m_ % 2 == 1 and units[u0][0] > 0: k_ = C_ - 1 - k_
            mz = m_ if gn % 2 == 0 else MT - 1 - m_
            s_, t_ = units[u0 + k_]
            bf = r4("a", BR + ((u0 + k_) % RB) * 4)
            af = r4("a", AR + (s_ % RA) * 16 + mz * 4)
            c = r4("v", acc(mz, t_))
            src = "0" if s_ == 0 else c
            if t_ in (4, 5): a("%s %s, %s, %s, %s" % (MF, c, af, bf, src))
            else:            a("%s %s, %s, %s, %s" % (MF, c, bf, af, src))
            rd = (lambda mt=mt: bread1(un, mt)) if (mt < 2 and un < NU) else None
            if mt == 0: G.gap(fixed=rd)
            elif mt == 1:
                if nxt and nxt[0] == "B": G.gap(first=lambda: (dma1(nxt[1], nxt[2], 0), True)[1], fixed=rd)
                else: G.gap(fixed=rd)
            elif mt == 2:
                if nxt:
                    assert not G.sal
                    G.gap(first=(lambda: a.throttle(THR1)), mem=((lambda: aload1(nxt[1], nxt[2])) if nxt[0] == "A" else (lambda: dma1(nxt[1], nxt[2], 1))))
                else: G.gap()
            else:
                if kk == C_ - 1:
                    stt["issued"] = u
                    G.gap(first=(lambda: prewait1(u + 1)) if u + 1 < NU else None)
                else: G.gap()
        if u == UKV - 1:
            assert 11 in stt["free"], stt
            side += [None] * 5
            for (c0, c1, so, go, lo) in kvq:
                side += pack(c0, c1)
                def f(c0=c0, so=so, go=go):
                    a.vmem("buffer_store_dwordx4 %s, v%d, %s, s%d offen offset:%d sc1" % (r4("v", c0), V_L16, s4(R_WS), so, go), "KV")
                side.append(("m", f))
            for (c0, c1, so, go, lo) in kvq:
                def f(c0=c0, lo=lo):
                    a.lds("ds_write_b128 v%d, %s offset:%d" % (V_KVW, r4("v", c0), lo), "kvw")
                side += [("x", f), None]
            assert not order and stt.get("su0")
            side += su.l
        if u >= S1 * NT and not order and not G.sal and not stt.get("su0"):
            side += su0; stt["su0"] = True
        if HO and u == UKV + cfg.get("f_ho1", 30):
            barrier(); side[:0] = hole_ops(range(0, min(3, HO)))
        if HO > 3 and u == UKV + cfg.get("f_ho2", 56):
            assert u > UH01 and a.vm.count(("B2", 2)) == 2 and not any(isinstance(x, str) and ("s%d, s%d" % (sB2, sBE)) in x for x in side)
            barrier(); side[:0] = hole_ops(range(3, HO))
        if u == UPW and not HK:
            assert 12 in stt["free"]
            side[:0] = [y for x in range(8) for y in (("x", lambda x=x: kpw(x)), None)]
        if u == UH01 - 1:
            side += [None] * 5
            for p in range(2):
                for mt in range(MT):
                    side += pack(acc(mt, 6 + 2 * p), acc(mt, 7 + 2 * p), relu=True)
                    if p * 4 + mt < cfg.get("f_hearly", 8):
                        side.append(("m", lambda p=p, mt=mt: hstore(p, mt)))
                        side += [None] * cfg.get("f_hsp", 8)
        if u == UCHK:
            assert UCHK >= UH01
            for x in range(cfg.get("f_hearly", 8), 8):
                side += [("m", lambda x=x: hstore(x // 4, x % 4))] + [None] * cfg.get("f_hsp2", 6)
    if cfg.get("verbose"): print("G1 side left", len([x for x in side if x is not None]), file=sys.stderr)
    G.drain()
    assert not order
    assert 12 in stt["free"]
    stampr("g1end")

    va = []
    for mt in range(MT): va += pack(acc(mt, 10), acc(mt, 11), relu=True)
    if HK:
        stampr("attbeg")
        for _ in range(8): a(va.pop(0))
    else:
        if UPW >= NU:
            for x in range(8): kpw(x)
        a.wait(lg="kvw")
        a("s_barrier")
        stampr("attbeg")
        for kt in range(20):
            kread(kt)
            a(va.pop(0))
    for mt in range(MT):
        for t in (0, 1):
            for e2 in range(2):
                c = acc(mt, t) + 2 * e2
                a("v_pk_mul_f32 v[%d:%d], v[%d:%d], s[%d:%d] op_sel_hi:[1,0]" % (c, c + 1, c, c + 1, sSC, sSC + 1))
        if mt == 0:
            for x in pack(acc(mt, 0), acc(mt, 1)): a(x)
    STCH = cfg.get("f_st", 0)
    a.vm = [("H01" if t == "H" else t) for t in a.vm]
    stq = [(cfg.get("f_st0", 200), sH), (cfg.get("f_st1", 380), sH + 1)] if STCH & 1 else []
    hstore(2, 0)
    for mt in range(1, MT): va += pack(acc(mt, 0), acc(mt, 1))
    for mt in range(MT): va += pack(acc(mt, 12), None, relu=True)
    free = [acc(mt, t) for t in (2, 3, 4, 5, 7, 9) for mt in range(MT)] + [212, 216, 220] + [acc(mt, t) for t in (11, 1) for mt in range(MT)]

    C2 = cfg.get("f_c2", 2)
    C2T = cfg.get("f_c2t", 4); C2S = cfg.get("f_c2s", 5)
    CM2 = max(C2, C2T, 3)
    RA2 = cfg.get("f_ra2", 13); DB2 = cfg.get("f_db2", CM2 + 2); RB2 = DB2 + CM2
    assert DB2 >= CM2
    BR2 = RA2 * 16
    assert BR2 + RB2 * 4 <= 256
    def aslot(p): return ((p - 3 + 10) % RA2) * 16
    def aload2(p, mt):
        a.vmem("buffer_load_dwordx4 %s, v%d, %s, s%d offen offset:%d %s" % (r4("a", aslot(p) + mt * 4), V_L16, s4(R_WS), sA, mt * 1024, ["sc1", "sc1 nt", ""][cfg.get("f_af", 0)]), ("A2", p))
        if mt == MT - 1:
            if p == 27 and not LIN: G.sal.append("s_mov_b32 s%d, s%d" % (sA, sAE))
            else:
                G.sal.append("s_add_u32 s%d, s%d, 4096" % (sA, sA))
                if p <= 27: G.sal.append("s_cmp_eq_u32 s%d, s%d\ns_cselect_b32 s%d, s%d, s%d" % (sA, sAE, sA, sA0, sA))
    hst = [(2, 1), (2, 2), (2, 3)] + [(3, mt) for mt in range(MT)]
    NPRE = cfg.get("f_npre", 10)
    assert NPRE >= 3
    pre = []
    assert HO <= NPRE <= NSL
    for p in range(HO, NPRE): pre += [(p,) + op for op in dma2_ops(p)]

    S_ = {}; P_ = {}; O_ = {}
    def s_mfma(qa, kt):
        q = free.pop(0); S_[(qa, kt)] = q
        a.wait(lg=("k", kt))
        c = r4("v", bias[kt // 4]) if kt < 16 else "0"
        a("%s %s, %s, %s, %s" % (MF, r4("v", q), r4("a", kreg(kt)), r4("v", acc(qa, 0)), c))
    def pv_list(qa):
        b0 = qa // 2
        out = []
        for b in range(b0, b0 + 9):
            for z in range(3):
                def f(b=b, z=z):
                    if b == b0: O_[(qa, z)] = free.pop(0)
                    o = r4("v", O_[(qa, z)])
                    if z < 2:
                        a.wait(lg=("v", 2 * b + z)); A = r4("a", VF + (2 * b + z) * 4)
                    else: A = r4("v", VONES)
                    a("%s %s, %s, %s, %s" % (MF, o, A, r4("v", P_[(qa, b)]), "0" if b == b0 else o))
                    if z == 2: free.append(P_[(qa, b)])
                out.append(f)
        return out
    def fin_list(qa):
        o0, o1, sm = O_[(qa, 0)], O_[(qa, 1)], O_[(qa, 2)]
        ops = ["v_rcp_f32 v%d, v%d" % (sm, sm), "s_nop 0"]
        for o in (o0, o1):
            for e in range(4): ops.append("v_mul_f32 v%d, v%d, v%d" % (o + e, o + e, sm))
        ops += pack(o0, o1)
        def f():
            a.vmem("buffer_store_dwordx4 %s, v%d, %s, s%d offen offset:%d %s" % (r4("v", o0), V_L16, s4(R_WS), sO, qa * 1024, HF), "O")
            free.extend([o1, sm]); late_free.append(o0)
        ops.append(f)
        return ops
    late_free = []
    pready = set()
    def soft_list(qa):
        k0, k1 = qa, qa + 16
        ops = []
        f_, l_ = S_[(qa, k0)], S_[(qa, k1)]
        odd = qa & 1
        g_, z_ = (l_, f_) if odd else (f_, l_)
        o_ = 2 * odd
        for e in range(4):
            ops.append((1, "v_cndmask_b32 v%d, v%d, v%d, s[%d:%d]" % (g_ + e, f_ + e, l_ + e, sMK + 2 * e, sMK + 2 * e + 1)))
        quads = [S_[(qa, kt)] for kt in range(k0 + 1, k1)] + [g_]
        vals = [q + e for q in quads for e in range(4)]
        m0, m1 = VM, VM + 1
        ops.append((1, "v_max3_f32 v%d, v%d, v%d, v%d" % (m0, vals[0], vals[1], vals[2])))
        ops.append((1, "v_max3_f32 v%d, v%d, v%d, v%d" % (m1, vals[3], vals[4], vals[5])))
        ops.insert(2, (0, "SLOT")); ops.insert(5, (0, "SLOT")); ops.append((0, "SLOT"))
        for x in range(6, 62, 4):
            ops.append((1, "v_max3_f32 v%d, v%d, v%d, v%d" % (m0, m0, vals[x], vals[x + 1])))
            ops.append((1, "v_max3_f32 v%d, v%d, v%d, v%d" % (m1, m1, vals[x + 2], vals[x + 3])))
            ops.append((0, "SLOT"))
        ops.append((1, "v_max3_f32 v%d, v%d, v%d, v%d" % (m0, m0, vals[62], vals[63])))
        ops.append((1, "v_max_f32 v%d, v%d, v%d" % (m0, m0, m1)))
        ops.append((1, "v_mov_b32 v%d, v%d" % (m1, m0)))
        ops.append((0, "SLOT2"))
        ops.append((1, "v_permlane16_swap_b32 v%d, v%d" % (m0, m1)))
        ops.append((1, "v_max_f32 v%d, v%d, v%d" % (m0, m0, m1)))
        ops.append((1, "v_mov_b32 v%d, v%d" % (m1, m0)))
        ops.append((1, "v_mov_b32 v%d, 0" % (z_ + 2 - o_)))
        ops.append((1, "v_mov_b32 v%d, 0" % (z_ + 3 - o_)))
        ops.append((1, "v_permlane32_swap_b32 v%d, v%d" % (m0, m1)))
        ops.append((1, "v_max_f32 v%d, v%d, v%d" % (m0, m0, m1)))
        def subexp(q):
            r = []
            for e2 in range(2):
                r.append((1, "v_pk_add_f32 v[%d:%d], v[%d:%d], v[%d:%d] op_sel_hi:[1,0] neg_lo:[0,1] neg_hi:[0,1]" % (q + 2 * e2, q + 2 * e2 + 1, q + 2 * e2, q + 2 * e2 + 1, m0, m0 + 1)))
            for e in range(4):
                if e < 2: r.append((0, "SLOT"))
                r.append((2, "v_exp_f32 v%d, v%d" % (q + e, q + e)))
            r.append((0, "MEM"))
            return r
        ops += subexp(g_)
        ops += subexp(S_[(qa, k0 + 1)])
        cv = ["v_cvt_pk_bf16_f32 v%d, v%d, v%d" % (g_ + o_ + x, g_ + 2 * x, g_ + 2 * x + 1) for x in range(2)]
        if odd: cv.reverse()
        ops += [(1, x) for x in cv]
        for x in range(2):
            if odd: ops.append((1, "v_bfi_b32 v%d, v%d, 0, v%d" % (z_ + o_ + x, VM + 2 + x, g_ + o_ + x)))
            else:   ops.append((1, "v_and_b32 v%d, v%d, v%d" % (z_ + o_ + x, VM + 2 + x, g_ + o_ + x)))
        for x in range(2): ops.append((1, "v_xor_b32 v%d, v%d, v%d" % (g_ + o_ + x, g_ + o_ + x, z_ + o_ + x)))
        done = {k0, k0 + 1, k1}
        b0 = qa // 2
        pend_pack = None
        for b in range(b0, b0 + 9):
            for kt in (2 * b, 2 * b + 1):
                if k0 <= kt <= k1 and kt not in done:
                    ops += subexp(S_[(qa, kt)]); done.add(kt)
            if pend_pack: ops += pend_pack
            lo, hi = S_.get((qa, 2 * b)), S_.get((qa, 2 * b + 1))
            pk = []
            if lo is None or hi is None: d = z_
            elif g_ in (lo, hi):
                d = g_; ot = hi if lo == g_ else lo
                pk += [(1, "v_cvt_pk_bf16_f32 v%d, v%d, v%d" % (d + 2 - o_ + x, ot + 2 * x, ot + 2 * x + 1)) for x in range(2)]
                pk.append((0, (lambda ot=ot: free.append(ot))))
            else:
                d = lo
                pk += [(1, x) for x in pack(lo, hi)]
                pk.append((0, (lambda hi=hi: free.append(hi))))
            P_[(qa, b)] = d
            pk.append((0, (lambda b=b: pready.add((qa, b)))))
            pend_pack = pk
        ops += pend_pack
        return ops
    def run(op):
        if isinstance(op, str): a(op)
        else: op()
    vr = list(range(20))
    def vread():
        f = vr.pop(0)
        a.lds("ds_read_b128 %s, v%d offset:%d" % (r4("a", VF + 4 * f), V_KVW, 32768 + f * 1024), ("v", f))
    for kt in range(17):
        s_mfma(0, kt)
        vread(); a(va.pop(0))
    while vr:
        vread(); a(va.pop(0))
    hstore(*hst.pop(0))
    while va: a(va.pop(0))
    HGAP = cfg.get("f_hgap", 30); PGAP = cfg.get("f_pgap", 28)
    HFL = cfg.get("f_hfl", 500)
    HPO = cfg.get("f_hpo", 900)
    HCK = cfg.get("f_hck", 2000)
    hok = False
    ordA = [("A2", p, mt) for p in range(3, KS2) for mt in range(MT)]
    napre = cfg.get("f_apre", 16)
    pv3 = pv_list(3); pv3b = [1 + x // 3 for x in range(27)]
    tq = [(cfg.get("f_tb0", 200) + k * cfg.get("f_tbd", 150), k) for k in range(cfg.get("f_tbn", 0))]
    tcq = []
    if TCN:
        k0 = cfg.get("f_tck", 6); nr = cfg.get("f_tcr", 2)
        ed = [k0 + (56 - k0) * x // nr for x in range(nr + 1)]
        rr = [(ed[x], ed[x + 1]) for x in range(nr)] + [(56, 72)]
        tcq = [(cfg.get("f_tc0", 540) + x * cfg.get("f_tcd", 130), lo_, hi_) for x, (lo_, hi_) in enumerate(rr)]
    sq = []
    if SPF:
        for k in range(cfg.get("f_spf0", 6), 56): sq.append("s_load_dword s%d, s[%d:%d], 0x%x" % (t3, (P_W2 if k < 28 else P_WQ), (P_W2 if k < 28 else P_WQ) + 1, (k % 28) * 32768))
        for k in range(16): sq.append("s_load_dword s%d, s[%d:%d], 0x%x" % (t3, P_WO, P_WO + 1, k * 32768))
    next_s = 0; SGAP = cfg.get("f_sgap", 8)
    kvbar = False; hflag = False; hpoll = False
    cost_total = 0; next_h = HGAP; next_p = 0
    for qa in range(4):
        stampr("att%d" % qa)
        ops = soft_list(qa)
        tot = sum(c for c, _ in ops)
        pv = pv_list(qa - 1) if qa > 0 else []
        fin = None
        sm = [(qa + 1, kt) for kt in range(qa + 1, qa + 18)] if qa < 3 else []
        c = 0
        pv_done_at = None
        for (cost, op) in ops:
            if op == "SLOT2":
                if pv:
                    pv.pop(0)(); a("s_nop 0")
                    if not pv: pv_done_at = c
                else: a("s_nop 1")
                continue
            if op == "SLOT":
                did = False
                if pv:
                    pv.pop(0)(); did = True
                    if not pv: pv_done_at = c
                elif sm and len(free) > 0 and c >= tot * 0.2:
                    s_mfma(*sm.pop(0)); did = True
                elif qa == 3 and pv3 and (3, pv3b[0]) in pready:
                    pv3.pop(0)(); pv3b.pop(0); did = True
                if did and G.sal:
                    a(G.sal.pop(0)); continue
                if did and pre and pre[0][1] == 0 and (kvbar or (pre[0][0] < 9 and not HK)): pre.pop(0)[2]()
                elif sq and kvbar and cost_total >= next_s and (did or cost_total >= next_s + SGAP):
                    a(sq.pop(0)); next_s = cost_total + SGAP
                    if not sq and cfg.get("verbose"): print("scalar prefetch done at", cost_total, file=sys.stderr)
                continue
            if op == "MEM":
                if qa > 0 and fin is None and pv_done_at is not None and c >= pv_done_at + 18:
                    fin = fin_list(qa - 1)
                    for x in fin: run(x)
                elif hst and cost_total >= next_h:
                    hstore(*hst.pop(0)); next_h = cost_total + HGAP
                elif stq and cost_total >= stq[0][0]:
                    a.wait(vm="H01"); selftouch(stq.pop(0)[1], True)
                elif tcq and cost_total >= tcq[0][0]:
                    _, lo_, hi_ = tcq.pop(0)
                    if lo_ < 56:
                        m_ = ((1 << hi_) - 1) ^ ((1 << lo_) - 1)
                        a("s_mov_b32 exec_lo, 0x%x" % (m_ & 0xffffffff))
                        a("s_mov_b32 exec_hi, 0x%x" % (m_ >> 32))
                        a.vmem("buffer_load_dword a%d, v%d, %s, s%d offen" % (A_PD, V_T128, s4(R_W2), sCLS), "T")
                    else:
                        a("s_mov_b64 exec, 0xffff")
                        a.vmem("buffer_load_dword a%d, v%d, %s, s%d offen" % (A_PD, V_T128, s4(R_WO), t3), "T")
                    a("s_mov_b64 exec, -1")
                elif not hst and tq and cost_total >= tq[0][0]:
                    k_ = tq.pop(0)[1]
                    a("s_lshr_b32 s%d, s2, 3" % t0)
                    a("s_lshl_b32 s%d, s%d, 2" % (t0, t0))
                    a("s_add_u32 s%d, s%d, s%d" % (t0, t0, sW))
                    if k_ < 4:
                        a("s_mul_i32 s%d, s%d, 3584" % (t0, t0))
                        a("s_mul_i32 s%d, s%d, %d" % (t1, sQ, 896 * 2048))
                        a("s_add_u32 s%d, s%d, s%d" % (t0, t0, t1))
                        if k_: a("s_add_u32 s%d, s%d, %d" % (t0, t0, k_ * 224 * 2048))
                        a("s_mov_b64 exec, 0xfffffff")
                        a.vmem("buffer_load_dword a%d, v%d, %s, s%d offen" % (A_PD, V_T128, s4(R_W2), t0), "T")
                    else:
                        a("s_lshl_b32 s%d, s%d, 12" % (t0, t0))
                        a("s_lshl_b32 s%d, s%d, 19" % (t1, sQ))
                        a("s_add_u32 s%d, s%d, s%d" % (t0, t0, t1))
                        a("s_mov_b32 exec_hi, 0")
                        a.vmem("buffer_load_dword a%d, v%d, %s, s%d offen" % (A_PD, V_T128, s4(R_WO), t0), "T")
                    a("s_mov_b64 exec, -1")
                elif not hst and not hflag and cost_total >= HFL:
                    a.wait(vm="H")
                    a.vmem("buffer_store_dword v%d, v%d, %s, 0 offen offset:32 sc1" % (V_ONE, V_FG, s4(R_WS)), "FH")
                    hflag = True
                    if STCH & 2: selftouch(sH + 2, True)
                elif hflag and not hpoll and cost_total >= HPO:
                    if cfg.get("f_cpf2", 1): codepf(V_T128)
                    poll_issue("PH"); hpoll = True
                elif hpoll and not hok and cost_total >= HCK:
                    a.wait(vm="PH"); spin(0xff00); hok = True
                    stampr("g2h")
                elif hok and napre > 0:
                    G.drain_sal()
                    op_ = ordA.pop(0); aload2(op_[1], op_[2]); napre -= 1
                elif pre and pre[0][1] == 1 and cost_total >= next_p:
                    pre.pop(0)[2](); next_p = cost_total + PGAP
                    if cfg.get("f_p2", 0) and pre and pre[0][1] == 1: pre.pop(0)[2]()
                continue
            run(op); c += cost; cost_total += cost
            if qa == 0 and not kvbar and c >= 30:
                a.wait(lg=("v", 19)); a("s_barrier"); kvbar = True
        assert not pv and (qa == 0 or fin)
        free.extend(late_free); del late_free[:]
        if sm and cfg.get("verbose"): print("late S mfmas", qa, len(sm), file=sys.stderr)
        late = bool(sm)
        while sm: s_mfma(*sm.pop(0))
        if late: a("s_nop 7")
    if cfg.get("verbose"): print("attention cost", cost_total, "pre left", len(pre), file=sys.stderr)
    stampr("att4")
    assert not hst and hflag and hpoll and not sq and not tcq
    if not hok: napre = 0
    while pre:
        pre.pop(0)[2](); a("s_nop 0")
    G.drain_sal()
    assert napre <= 4 * (RA2 - 10) and not (HK and hok)
    a("v_mov_b32 v%d, v%d" % (V2_RD, V2_B))
    a("v_xor_b32 v%d, 32, v%d" % (V2_RD + 1, V2_B))
    xr = ["v_xor_b32 v%d, %d, v%d" % (V2_RD + t, t * 32, V2_B) for t in range(2, 8)]
    xr += ["v_add_u32 v%d, %d, v%d" % (V2_RD + 8 + t, 2 * STAGE, V2_RD + t) for t in range(8)]
    if cfg.get("verbose"): print("pv3 left", len(pv3), "apre left", napre, file=sys.stderr)
    for f in pv3:
        f()
        if napre > 0:
            op_ = ordA.pop(0); aload2(op_[1], op_[2]); napre -= 1; G.drain_sal()
        else:
            for _ in range(2):
                if xr: a(xr.pop(0))
    while xr: a(xr.pop(0))
    stampr("attend")

    NT2 = 8
    DL = cfg.get("f_dl", 8); S2 = KS2 - DL
    assert RA2 >= DL
    own = set(acc(mt, 6 + 2 * p) for p in range(3) for mt in range(MT))
    busy = own | set(O_[(3, z)] for z in range(3)) | {208}
    q2 = [q for q in range(0, 224, 4) if q not in busy]
    acc2 = {}
    for t in range(NT2):
        for mt in range(MT): acc2[(mt, t)] = q2.pop(0)
    VX = [q2.pop(0) for _ in range(4)]
    TT = q2.pop(0); V_XI = TT + 2
    R_X = R_WQ; R_OUT = R_W1
    rec = Rec()
    rec.l += [None] * 5 + [x if isinstance(x, str) else ("m", x) for x in fin_list(3)]
    for t in range(8): rec("v_add_u32 v%d, %d, v%d" % (V2_RD + 16 + t, 4 * STAGE, V2_RD + t))
    srd(rec, R_X, P_X, S * D * 2)
    srd(rec, R_OUT, P_OUT, S * D * 2)
    rec2 = Rec()
    rec2("v_and_b32 v%d, 15, v%d" % (TT, L))
    rec2("v_lshlrev_b32 v%d, 11, v%d" % (V_XO, TT))
    rec2("v_lshrrev_b32 v%d, 4, v%d" % (TT, L))
    rec2("v_lshl_add_u32 v%d, v%d, 3, v%d" % (V_XI, TT, V_XO))
    rec2("v_bfe_u32 v%d, v%d, 4, 1" % (TT, L))
    rec2("v_lshl_add_u32 v%d, v%d, 5, v%d" % (V_XO, TT, V_XO))
    rec2("v_lshrrev_b32 v%d, 5, v%d" % (TT, L))
    rec2("v_lshl_add_u32 v%d, v%d, 4, v%d" % (V_XO, TT, V_XO))
    CO = cfg.get("f_co", 1)
    if CO:
        V_OW = V_KVW; V_OR = V2_B
        rec2("s_mul_i32 s%d, s%d, 5120" % (t1, sW))
        rec2("s_add_u32 s%d, s%d, %d" % (t1, t1, 5 * STAGE))
        rec2("v_and_b32 v%d, 15, v%d" % (TT, L))
        rec2("v_mul_u32_u24 v%d, 80, v%d" % (V_OW, TT))
        rec2("v_lshrrev_b32 v%d, 4, v%d" % (TT, L))
        rec2("v_lshl_add_u32 v%d, v%d, 3, v%d" % (V_OW, TT, V_OW))
        rec2("v_add_u32 v%d, s%d, v%d" % (V_OW, t1, V_OW))
        rec2("v_lshrrev_b32 v%d, 2, v%d" % (TT, L))
        rec2("v_mul_u32_u24 v%d, 80, v%d" % (V_OR, TT))
        rec2("v_lshlrev_b32 v%d, 11, v%d" % (V_XO, TT))
        rec2("v_and_b32 v%d, 3, v%d" % (TT, L))
        rec2("v_lshl_add_u32 v%d, v%d, 4, v%d" % (V_OR, TT, V_OR))
        rec2("v_add_u32 v%d, s%d, v%d" % (V_OR, t1, V_OR))
        rec2("v_lshl_add_u32 v%d, v%d, 4, v%d" % (V_XO, TT, V_XO))
    XD = cfg.get("f_xd", 1) and CO
    if XD:
        assert "f_ux" not in cfg
        rec2("v_and_b32 v%d, 15, v%d" % (TT, L))
        rec2("v_lshlrev_b32 v%d, 6, v%d" % (V_XI, TT))
        rec2("v_lshrrev_b32 v%d, 4, v%d" % (TT, L))
        rec2("v_lshl_add_u32 v%d, v%d, 3, v%d" % (V_XI, TT, V_XI))
        rec2("v_add_u32 v%d, s%d, v%d" % (V_XI, t1, V_XI))
    sSX = [sKV, sKV2, sKP]; sSF = [sKP2, sFK, sH]; sRX = sH + 1
    for lam in range(3):
        rec("s_xor_b32 s%d, s2, %d" % (t1, (lam ^ 3) << 1))
        rec("s_lshl_b32 s%d, s%d, 2" % (t1, t1))
        rec("s_add_u32 s%d, s%d, s%d" % (t1, t1, sW))
        rec("s_mul_i32 s%d, s%d, 12288" % (sSX[lam], t1))
        rec("s_add_u32 s%d, s%d, 0x%x" % (sSX[lam], sSX[lam], WS_XC + lam * 4096))
        rec("s_lshl_b32 s%d, s%d, 7" % (sSF[lam], t1))
        rec("s_add_u32 s%d, s%d, 0x%x" % (sSF[lam], sSF[lam], WS_FL + lam * 4))
    rec("s_lshl_b32 s%d, s2, 2" % t1)
    rec("s_add_u32 s%d, s%d, s%d" % (t1, t1, sW))
    rec("s_mul_i32 s%d, s%d, 12288" % (sRX, t1))
    rec("s_add_u32 s%d, s%d, 0x%x" % (sRX, sRX, WS_XC))
    if DF:
        for lam in range(3): rec("s_add_u32 s%d, s%d, %d" % (sSF[lam], sRX, lam * 4096))
    side = G.side
    side += rec.l

    units = []; del gi[:]
    grp(units, 0, 3, range(NT2), 3)
    grp(units, 3, C2S, range(NT2), 2)
    DLO = cfg.get("f_dlo", 11); S2O = KS2 - DLO
    assert DL <= DLO <= RA2
    grp(units, C2S, S2O, range(NT2), C2)
    grp(units, S2O, S2, range(6), C2)
    UT = len(units)
    for lam in range(4): grp(units, S2 if lam < 3 else S2O, KS2, (2 * lam, 2 * lam + 1), C2T if lam else min(C2T, cfg.get("f_c2t0", 4)))
    NU = len(units)
    PL = 2 * DL
    last_unit = {}
    for u, (p, t) in enumerate(units): last_unit[p] = u
    stt = dict(ready=-1, free=set(), waited=-1, issued=-1, ook=False, hok=hok)
    ordB = [("B2", p) for p in range(NPRE, KS2)]
    def barrier2():
        a("s_barrier")
        for p, lu in last_unit.items():
            if lu <= stt["waited"]: stt["free"].add(p)
    def can2(op):
        if op[0] == "B2": return op[1] < NSL or (op[1] - NSL) in stt["free"]
        if not stt["hok"] or (op[1] >= 28 and not stt["ook"]): return False
        return op[1] - 3 < RA2 or last_unit[op[1] - RA2] <= stt["issued"]
    def issue2(op):
        if cfg.get("verbose"): print("late flush2", op, file=sys.stderr)
        G.drain_sal()
        if op[0] == "A2": aload2(op[1], op[2])
        else:
            for x in dma2_ops(op[1]): x[1](); a("s_nop 0")
        G.drain_sal()
    def flush2(q, tag):
        while any(o[:2] == tag for o in q):
            op = q.pop(0); assert can2(op), (op, stt); issue2(op)
    def bread2(u, j2):
        p, t = units[u]
        sl, pos = LOC[p % NSL]
        a.lds("ds_read_b64_tr_b16 %s, v%d offset:%d" % (r2("a", BR2 + (u % RB2) * 4 + j2 * 2), V2_RD + 8 * (sl // 2) + t, (sl % 2) * STAGE + (pos + j2) * 1024), ("b2", u))
    def need2(u):
        p = units[u][0]
        if p > stt["ready"]:
            flush2(ordB, ("B2", p))
            grp = cfg.get("f_bgrp", 4)
            top = max(x for x in range(p, min(p + grp, KS2)) if not any(o[1] == x for o in ordB))
            if p == 0: top = min(NPRE - 1, cfg.get("f_top0", 5))
            elif p < NPRE: top = NPRE - 1
            a.wait(vm=("B2", top)); barrier2(); stt["ready"] = top
    need2(0)
    for u in range(DB2):
        bread2(u, 0); bread2(u, 1)
    stampr("g2beg")
    UOF = cfg.get("f_uof", 26)
    UOP = cfg.get("f_uop", 80); UOC = UOP + 12
    seenA = {0, 1, 2}
    xdone = False
    rq = sorted(own)
    def flag(lam):
        a.wait(vm=("S", lam))
        a.vmem("buffer_store_dword v%d, v%d, %s, s%d offen sc1" % (V_ONE, V_FL0, s4(R_WS), sSF[lam]), ("F", lam))
    def recv(lam, mt):
        a.vmem("buffer_load_dwordx4 %s, v%d, %s, s%d offen offset:%d sc1" % (r4("v", rq[4 * lam + mt]), V_L16, s4(R_WS), sRX, mt * 1024), ("R", lam, mt))
        if mt == 3 and lam < 2: a("s_add_u32 s%d, s%d, 4096" % (sRX, sRX))
    PS = lambda mt, hh: acc2[(mt, hh)]
    def addpk(dst, src, first=False):
        ops = []
        for hh in range(2):
            for e2 in range(2):
                pp = src + 2 * hh + e2; c = dst[hh] + 2 * e2
                if first:
                    ops += ["v_lshlrev_b32 v%d, 16, v%d" % (c, pp), "v_and_b32 v%d, 0xffff0000, v%d" % (c + 1, pp)]
                else:
                    ops += ["v_lshlrev_b32 v%d, 16, v%d" % (TT, pp), "v_and_b32 v%d, 0xffff0000, v%d" % (TT + 1, pp),
                            "v_pk_add_f32 v[%d:%d], v[%d:%d], v[%d:%d]" % (c, c + 1, c, c + 1, TT, TT + 1)]
        return ops
    FD = cfg.get("f_fd", 26)
    ev = {}
    def at(u, f): ev.setdefault(u, []).append(f)
    def rtxt(lam, mt): return "buffer_load_dwordx4 %s, v%d, %s, s%d offen offset:%d sc1" % (r4("v", rq[4 * lam + mt]), V_L16, s4(R_WS), sSF[lam], mt * 1024)
    def rmax(lam):
        rg = [rq[4 * lam + mt] + e for mt in range(MT) for e in range(4)]
        o = ["v_max3_u32 v%d, v%d, v%d, v%d" % (V_POLL, rg[0], rg[1], rg[2])]
        for k in range(3, 15, 2): o.append("v_max3_u32 v%d, v%d, v%d, v%d" % (V_POLL, V_POLL, rg[k], rg[k + 1]))
        o.append("v_max_u32 v%d, v%d, v%d" % (V_POLL, V_POLL, rg[15]))
        return o
    def rcheck(lam):
        l0 = a.newlabel("F_rt"); l1 = a.newlabel("F_ok")
        a("s_mov_b32 s%d, 0x%x" % (sSP, SPIN))
        a.label(l0)
        a("v_cmp_eq_u32 vcc, -1, v%d" % V_POLL)
        a("s_cmp_eq_u64 vcc, 0")
        a("s_cbranch_scc1 %s" % l1)
        for mt in range(MT): a(rtxt(lam, mt))
        a("s_waitcnt vmcnt(0)")
        for x in rmax(lam): a(x)
        a("s_sub_u32 s%d, s%d, 1" % (sSP, sSP))
        a("s_cbranch_scc0 %s" % l0)
        a.label(l1)
    def addplain(dst, src):
        ops = []
        for hh in range(2):
            for e2 in range(2):
                pp = src + 2 * hh + e2; c = dst[hh] + 2 * e2
                ops += ["v_lshlrev_b32 v%d, 16, v%d" % (TT, pp), "v_and_b32 v%d, 0xffff0000, v%d" % (TT + 1, pp),
                        "v_add_f32 v%d, v%d, v%d" % (c, c, TT), "v_add_f32 v%d, v%d, v%d" % (c + 1, c + 1, TT + 1)]
        return ops
    if DF:
        R0U = UT + 3 * PL + cfg.get("f_r0", -6); R1U = UT + 4 * PL + cfg.get("f_r1", -5)
        at(R0U, lambda: side.extend(("m", lambda mt=mt: a.vmem(rtxt(0, mt), ("R", 0))) for mt in range(MT)))
        at(R1U, lambda: side.__setitem__(slice(0, 0), [("m", lambda mt=mt: a.vmem(rtxt(1, mt), ("R", 1))) for mt in range(MT)]))
    else:
        at(UT + PL + FD, lambda: flag(0))
        at(UT + 2 * PL + FD, lambda: flag(1))
        if cfg.get("f_fin2", 1): at(UT + 3 * PL + FD, lambda: flag(2))
        if cfg.get("f_pe", 4): at(NU - cfg.get("f_pe", 4), lambda: poll_issue("P1"))
    UP0 = UT + 3 * PL + cfg.get("f_p0", 4)
    F2 = cfg.get("f_fin2", 1)
    if not DF and not F2: at(UP0, lambda: poll_issue("P0"))
    def chk0():
        a.wait(vm="P0"); spin(1)
        for mt in range(MT): side.append(("m", lambda mt=mt: recv(0, mt)))
    if not DF and not F2: at(UP0 + cfg.get("f_c0", 8), chk0)
    def presum():
        side.append(("s", lambda: a.wait(vm="X")))
        if XD:
            for mt in range(MT):
                for hh in range(2):
                    side.append(("v", lambda mt=mt, hh=hh: a.lds("ds_read_b64 %s, v%d offset:%d" % (r2("v", VX[mt] + 2 * hh), V_XI, mt * 1024 + hh * 32), "xr")))
            side.extend([None] * 4 + [("s", lambda: a.wait(lg="xr"))])
        for mt in range(MT): side.extend(addpk([PS(mt, 0), PS(mt, 1)], VX[mt], first=True))
    at(UT + 2 * PL + PL // 2, presum)
    first_unit = {}
    for u, (p, t) in enumerate(units): first_unit.setdefault(p, u)
    NOPS = len(ordA) + 2 * len(ordB)
    UE2 = UT + cfg.get("f_ue2", 0)
    MARG = cfg.get("f_marg", 20)
    THR2 = cfg.get("f_thr2", 63)
    def prewait2(u):
        u += gi[u][1] - 1
        p, t = units[u]
        if p not in seenA:
            flush2(ordA, ("A2", p)); seenA.add(p)
            r = a.wait(vm=("A2", p), lg=("b2", u))
        else: r = a.wait(lg=("b2", u))
        stt["waited"] = u
        return r
    def b2sal(p):
        so = sB2 if p < 28 else sBO
        if p != 27 and p != 35: G.sal.append("s_add_u32 s%d, s%d, 65536" % (so, so))
        if p < 27: G.sal.append("s_cmp_eq_u32 s%d, s%d\ns_cselect_b32 s%d, s%d, s%d" % (sB2, sBE, sB2, sB0, sB2))
    prewait2(0)
    half = None
    for u in range(NU):
        u0, C_, gn = gi[u]; kk = u - u0
        p, t = divmod(u, NT2) if u < UT else units[u]
        un = u + DB2
        if u == UOF:
            a.wait(vm="O")
            a.vmem("buffer_store_dword v%d, v%d, %s, 0 offen offset:64 sc1" % (V_ONE, V_FG, s4(R_WS)), "FO")
            if STCH & 4: selftouch(sO, True)
            side.extend(rec2.l)
        if u == cfg.get("f_uh", 2) and not stt["hok"]:
            a.wait(vm="PH"); spin(0xff00); stt["hok"] = True
            stampr("g2h")
        if u < UT and t == 1: stampr("g2p%d" % p)
        if u == UT: stampr("g2tail")
        if u > UT and (u - UT) % PL == 0: stampr("g2l%d" % ((u - UT) // PL))
        if u == UOP: poll_issue("PO")
        if u == UOC:
            a.wait(vm="PO"); spin(0xff0000 | (7 if DF else 0)); stt["ook"] = True
        for f in ev.get(u, []): f()
        if un < NU and units[un][0] > stt["ready"]:
            if half is not None:
                dma2_ops(half)[2][1](); b2sal(half); half = None
            need2(un)
        if u < UT and t == 2 and p % 2 == 1 and p > 1 and p - 2 + NSL < KS2: barrier2()
        pre_ = None; mem_ = None
        if half is not None:
            def mem_(h=half): dma2_ops(h)[2][1](); b2sal(h)
            half = None
        elif len(G.sal) <= 1:
            cand = [q for q in (ordA, ordB) if q and can2(q[0])]
            if cand:
                cand.sort(key=lambda q: q[0][1] - (cfg.get("f_bprio", 5) if q[0][0] == "B2" else 0))
                done_ = NOPS - len(ordA) - 2 * len(ordB)
                if done_ * UE2 <= u * NOPS or first_unit[cand[0][0][1]] - u <= MARG + (16 if cand[0][0][0] == "B2" else 0):
                    nxt = cand[0].pop(0)
                    if nxt[0] == "B2":
                        ops_ = dma2_ops(nxt[1])
                        pre_ = lambda o=ops_: (o[0][1](), True)[1]
                        mem_ = ops_[1][1]; half = nxt[1]
                    else:
                        mem_ = lambda n_=nxt: aload2(n_[1], n_[2])
        if not xdone and (u == cfg.get("f_ux", 9999) or (not ordA and not ordB and half is None and mem_ is None)):
            xdone = True
            if XD:
                side.append("s_mul_i32 s%d, s%d, 5120" % (t1, sW))
                for mt in range(MT):
                    side += ["s_add_u32 m0, s%d, %d" % (t1, 5 * STAGE + mt * 1024), None,
                             ("m", lambda: a.vmem("buffer_load_dwordx4 v%d, %s, s%d offen lds" % (V_XO, s4(R_X), sXO), "X")),
                             "s_add_u32 s%d, s%d, %d" % (sXO, sXO, 32768 if mt < 3 else -3 * 32768)]
            for mt in range(MT if not XD else 0):
                for hh in range(2):
                    def f(mt=mt, hh=hh):
                        a.vmem("buffer_load_dwordx2 %s, v%d, %s, s%d offen offset:%d" % (r2("v", VX[mt] + 2 * hh), V_XI, s4(R_X), sXO, hh * 32), "X")
                    side += [("m", f)] + [None] * (cfg.get("f_xsp", 1) if hh else 1)
                side.append("s_add_u32 s%d, s%d, %d" % (sXO, sXO, 32768 if mt < 3 else -3 * 32768))
        for mt in range(MT):
            m_, k_ = divmod(kk * MT + mt, C_)
            if cfg.get("f_kz", 1) and m_ % 2 == 1 and units[u0][0] > 0: k_ = C_ - 1 - k_
            mz = m_ if gn % 2 == 0 else MT - 1 - m_
            p_, t_ = units[u0 + k_]
            bf = r4("a", BR2 + ((u0 + k_) % RB2) * 4)
            af = r4("v", acc(mz, 6 + 2 * p_)) if p_ < 3 else r4("a", aslot(p_) + mz * 4)
            c = r4("v", acc2[(mz, t_)])
            a("%s %s, %s, %s, %s" % (MF, c, bf, af, "0" if p_ == 0 else c))
            rd = (lambda mt=mt: bread2(un, mt)) if (mt < 2 and un < NU) else None
            if mt == 0: G.gap(fixed=rd)
            elif mt == 1: G.gap(first=pre_, fixed=rd)
            elif mt == 2:
                if mem_:
                    assert not G.sal
                    G.gap(first=(lambda: a.throttle(THR2)), mem=mem_)
                else: G.gap()
            else:
                if kk == C_ - 1:
                    stt["issued"] = u
                    G.gap(first=(lambda: prewait2(u + 1)) if u + 1 < NU else None)
                else: G.gap()
        if u >= UT and (u - UT) % PL == PL - 1:
            lam = (u - UT) // PL
            if lam < 3:
                new_ = [None] * 5
                for mt in range(MT):
                    new_ += pack(acc2[(mt, 2 * lam)], acc2[(mt, 2 * lam + 1)])
                    if DF: new_ += ["v_min_u32 v%d, -2, v%d" % (acc2[(mt, 2 * lam)] + e, acc2[(mt, 2 * lam)] + e) for e in range(4)]
                    def f(mt=mt, lam=lam):
                        a.vmem("buffer_store_dwordx4 %s, v%d, %s, s%d offen offset:%d sc1" % (r4("v", acc2[(mt, 2 * lam)]), V_L16, s4(R_WS), sSX[lam], mt * 1024), ("S", lam))
                    new_.append(("m", f))
                side[:0] = new_
    if cfg.get("verbose"): print("G2 side left", len([x for x in side if x is not None]), file=sys.stderr)
    G.drain()
    assert not ordA and not ordB and xdone
    stampr("g2end")
    def ownadd():
        for mt in range(MT):
            for hh in range(2):
                for e2 in range(2):
                    c = PS(mt, hh) + 2 * e2; o_ = acc2[(mt, 6 + hh)] + 2 * e2
                    a("v_pk_add_f32 v[%d:%d], v[%d:%d], v[%d:%d]" % (c, c + 1, c, c + 1, o_, o_ + 1))
    if DF:
        R2D = cfg.get("f_r2d", 1)
        def rd2():
            for mt in range(MT): a.vmem(rtxt(2, mt), ("R", 2, mt))
        assert a.vm.count(("R", 0)) == 4 and a.vm.count(("R", 1)) == 4
        if R2D == 0: rd2()
        a.wait(vm=("R", 0))
        for x in rmax(0): a(x)
        rcheck(0)
        for mt in range(MT):
            for x in addpk([PS(mt, 0), PS(mt, 1)], rq[mt]): a(x)
        stampr("x1")
        if R2D == 1: rd2()
        ownadd()
        a.wait(vm=("R", 1))
        for x in rmax(1): a(x)
        rcheck(1)
        stampr("x2")
        if R2D == 2: rd2()
        for mt in range(MT):
            for x in addpk([PS(mt, 0), PS(mt, 1)], rq[4 + mt]): a(x)
        stampr("x3")
        a.wait(vm=("R", 2, 3))
        for x in rmax(2): a(x)
        rcheck(2)
        stampr("x4")
    elif F2:
        for lam in range(2):
            if ("F", lam) not in a.vm: flag(lam)
        early = "P1" in a.vm
        if not early:
            a("s_nop 7")
            ownadd()
        if ("F", 2) not in a.vm: flag(2)
        if not early: poll_issue("P1")
        stampr("x1")
        a.wait(vm="P1"); spin(1)
        for mt in range(MT): recv(0, mt)
        spin(2)
        stampr("x2")
        for mt in range(MT): recv(1, mt)
        poll_issue("P2")
        if early: ownadd()
        for mt in range(MT):
            a.wait(vm=("R", 0, mt))
            for x in addpk([PS(mt, 0), PS(mt, 1)], rq[mt]): a(x)
        a.wait(vm="P2"); spin(4)
        stampr("x3")
        for mt in range(MT): recv(2, mt)
        for mt in range(MT):
            for x in addpk([PS(mt, 0), PS(mt, 1)], rq[4 + mt]): a(x)
        stampr("x4")
    else:
        flag(2)
        poll_issue("P1")
        stampr("x1")
        for mt in range(MT):
            a.wait(vm=("R", 0, mt))
            for x in addpk([PS(mt, 0), PS(mt, 1)], rq[mt]): a(x)
        a.wait(vm="P1"); spin(2)
        stampr("x2")
        for mt in range(MT): recv(1, mt)
        poll_issue("P2")
        for mt in range(MT):
            for hh in range(2):
                for e2 in range(2):
                    c = PS(mt, hh) + 2 * e2; o_ = acc2[(mt, 6 + hh)] + 2 * e2
                    a("v_pk_add_f32 v[%d:%d], v[%d:%d], v[%d:%d]" % (c, c + 1, c, c + 1, o_, o_ + 1))
        a.wait(vm="P2"); spin(4)
        stampr("x3")
        for mt in range(MT): recv(2, mt)
        for mt in range(MT):
            for x in addpk([PS(mt, 0), PS(mt, 1)], rq[4 + mt]): a(x)
        stampr("x4")
    for mt in range(MT):
        a.wait(vm=("R", 2, mt))
        for x in addpk([PS(mt, 0), PS(mt, 1)], rq[8 + mt]): a(x)
        c0 = PS(mt, 0)
        if cfg.get("eps"):
            for hh in range(2):
                for e in range(4): a("v_mul_f32 v%d, 0x%x, v%d" % (PS(mt, hh) + e, f2u(1.0 + cfg["eps"] / 10000.0), PS(mt, hh) + e))
        for x in pack(c0, PS(mt, 1)): a(x)
        def ostore(m, reg):
            a.vmem("buffer_store_dwordx4 %s, v%d, %s, s%d offen %s" % (r4("v", reg), V_XO, s4(R_OUT), sXO, ["", "sc1", "nt"][cfg.get("f_of", 2)]), "OUT")
            if m < 3: a("s_add_u32 s%d, s%d, 32768" % (sXO, sXO))
        if CO:
            a.lds("ds_write_b64 v%d, %s offset:%d" % (V_OW, r2("v", c0), mt * 1280), ("ow", mt))
            a.lds("ds_write_b64 v%d, %s offset:%d" % (V_OW, r2("v", c0 + 2), mt * 1280 + 32), ("ow", mt))
            a.lds("ds_read_b128 %s, v%d offset:%d" % (r4("v", PS(mt, 1)), V_OR, mt * 1280), ("or", mt))
            if mt > 0:
                a.wait(lg=("or", mt - 1)); ostore(mt - 1, PS(mt - 1, 1))
            if mt == 3:
                a.wait(lg=("or", 3)); ostore(3, PS(3, 1))
        else:
            a("s_nop 1")
            a("v_permlane16_swap_b32 v%d, v%d" % (c0, c0 + 2))
            a("v_permlane16_swap_b32 v%d, v%d" % (c0 + 1, c0 + 3))
            ostore(mt, c0)
    stampr("x5")
    if ST:
        a("s_waitcnt vmcnt(0)")
        stampr("end")
        a("s_waitcnt lgkmcnt(0)")
        for i in range(8): a("v_mov_b32 v%d, s%d" % (i, STB + 2 * i))
        a("s_lshl_b32 s%d, s2, 2" % t0)
        a("s_add_u32 s%d, s%d, s%d" % (t0, t0, sW))
        a("s_lshl_b32 s%d, s%d, 5" % (t0, t0))
        a("v_mov_b32 v8, 0")
        a("s_nop 4")
        a("buffer_store_dwordx4 v[0:3], v8, %s, s%d offen" % (s4(R_WS), t0))
        a("buffer_store_dwordx4 v[4:7], v8, %s, s%d offen offset:16" % (s4(R_WS), t0))
    a.label("F_end")
    a("s_endpgm")
    kernel_desc(a, name, 256, sgpr=102, accum=256, agpr=256)
    return "; @launch kernel=%s grid=(256,1,1) block=(256,1,1) lds=163840" % name

gen.gen_o = gen_f

if __name__ == "__main__":
    cfg = dict(g1_mt=4)
    out = sys.argv[1]
    kernels = sys.argv[2].split(",")
    for kv in sys.argv[3:]:
        k, v = kv.split("="); cfg[k] = int(v, 0)
    open(out, "w").write(gen.build(cfg, kernels))
```

```python
import sys, math
from asmlib import *
import gen
from gen import *

class SA:
    def __init__(self, start, end):
        self.n = start; self.end = end; self.m = {}
    def new(self, name, cnt=1, align=1):
        self.n = (self.n + align - 1) // align * align
        r = self.n; self.n += cnt
        assert self.n <= self.end, "out of sgprs"
        self.m[name] = r
        return r

def s4(b): return "s[%d:%d]" % (b, b + 3)
MF = "v_mfma_f32_16x16x32_bf16"

def kind_of(op):
    if op is None: return None
    if isinstance(op, tuple): return op[0]
    t = op.lstrip()
    if t.startswith("s_"): return "s"
    if t.startswith("v_"): return "v"
    raise ValueError(op)

class Gaps:
    def __init__(self, a):
        self.a = a
        self.sal = []
        self.side = []
    def run(self, op):
        if isinstance(op, tuple): op[1]()
        else: self.a(op)
    def gap(self, first=None, fixed=None, mem=None):
        used0 = False
        room = 2
        if first is not None: used0 = bool(first())
        if not used0:
            if self.sal:
                x = self.sal.pop(0); self.a(x); used0 = True
                room -= x.count("\n")
            elif self.side and kind_of(self.side[0]) == "s":
                self.run(self.side.pop(0)); used0 = True
        if mem is not None:
            mem(); return
        if fixed is not None:
            fixed(); room -= 1
        if self.side and self.side[0] is None:
            self.side.pop(0)
            skip = True
        else: skip = False
        while room > 0:
            if self.sal and self.sal[0].count("\n") < room:
                x = self.sal.pop(0); self.a(x); room -= 1 + x.count("\n"); continue
            if skip or not self.side or self.side[0] is None: break
            k = kind_of(self.side[0])
            if k in ("m", "x"):
                if room == 2:
                    self.run(self.side.pop(0))
                break
            self.run(self.side.pop(0)); room -= 1
    def drain_sal(self):
        while self.sal: self.a(self.sal.pop(0))
    def drain(self):
        self.drain_sal()
        for op in self.side:
            if op is not None: self.run(op)
        self.side = []

def ln_ops(exact=1):
    o = []
    a = o.append
    pk = lambda op, d, x, y, mod="": a("%s v[%d:%d], v[%d:%d], v[%d:%d]%s" % (op, d, d + 1, x, x + 1, y, y + 1, mod))
    for i in range(16):
        if i % 4 == 0: a("WAIT%d" % (i // 4))
        a("v_lshlrev_b32 v%d, 16, v%d" % (24 + 2 * i, 8 + i))
        a("v_and_b32 v%d, 0xffff0000, v%d" % (25 + 2 * i, 8 + i))
        if i == 1: pk("v_pk_add_f32", 56, 24, 26)
        elif i == 3: pk("v_pk_add_f32", 58, 28, 30)
        elif i > 3: pk("v_pk_add_f32", 56 + 2 * (i & 1), 56 + 2 * (i & 1), 24 + 2 * i)
    pk("v_pk_add_f32", 56, 56, 58)
    a("v_add_f32 v56, v56, v57")
    def xlane_sum(r, t):
        a("s_nop 1")
        a("v_add_f32_dpp v%d, v%d, v%d row_ror:8 row_mask:0xf bank_mask:0xf" % (r, r, r))
        for op in ("v_permlane16_swap_b32", "v_permlane32_swap_b32"):
            a("v_mov_b32 v%d, v%d" % (t, r))
            a("s_nop 1")
            a("%s v%d, v%d" % (op, r, t))
            a("v_add_f32 v%d, v%d, v%d" % (r, r, t))
    xlane_sum(56, 57)
    a("v_mul_f32 v56, 0x%x, v56" % f2u(1.0 / 256))
    neg = " op_sel_hi:[1,0] neg_lo:[0,1] neg_hi:[0,1]"
    for i in range(16):
        t = 62 + 2 * (i & 1); ac = 66 + 2 * (i & 1)
        pk("v_pk_add_f32", t, 24 + 2 * i, 56, neg)
        if i < 2: pk("v_pk_mul_f32", ac, t, t)
        else: a("v_pk_fma_f32 v[%d:%d], v[%d:%d], v[%d:%d], v[%d:%d]" % (ac, ac + 1, t, t + 1, t, t + 1, ac, ac + 1))
    pk("v_pk_add_f32", 66, 66, 68)
    a("v_add_f32 v57, v66, v67")
    xlane_sum(57, 58)
    a("ds_write_b64 v7, v[56:57]")
    a("s_waitcnt lgkmcnt(0)")
    a("s_barrier")
    for k in range(4): a("ds_read_b64 v[%d:%d], v60 offset:%d" % (62 + 2 * k, 63 + 2 * k, 64 * k))
    a("s_waitcnt lgkmcnt(0)")
    pk("v_pk_add_f32", 56, 62, 64)
    pk("v_pk_add_f32", 58, 66, 68)
    pk("v_pk_add_f32", 56, 56, 58)
    a("v_mul_f32 v56, 0x3e800000, v56")
    a("v_sub_f32 v59, v62, v56")
    a("v_mul_f32 v58, v59, v59")
    for r in (64, 66, 68):
        a("v_sub_f32 v59, v%d, v56" % r)
        a("v_fmac_f32 v58, v59, v59")
    a("v_fmac_f32 v57, 0x43800000, v58")
    a("v_mul_f32 v57, 0x%x, v57" % f2u(1.0 / 1024))
    a("v_cvt_pk_bf16_f32 v58, v56, v57")
    a("v_lshlrev_b32 v56, 16, v58")
    a("v_and_b32 v57, 0xffff0000, v58")
    a("v_add_f32 v57, 0x%x, v57" % f2u(1e-5))
    a("v_cvt_pk_bf16_f32 v57, v57, v57")
    a("v_and_b32 v57, 0xffff0000, v57")
    a("v_sqrt_f32 v57, v57")
    a("s_nop 0")
    a("v_cvt_pk_bf16_f32 v57, v57, v57")
    a("v_and_b32 v57, 0xffff0000, v57")
    a("v_rcp_f32 v58, v57")
    for i in range(16):
        pk("v_pk_add_f32", 24 + 2 * i, 24 + 2 * i, 56, neg)
        if i > 0:
            j = i - 1
            if exact:
                a("v_cvt_pk_bf16_f32 v%d, v%d, v%d" % (25 + 2 * j, 24 + 2 * j, 25 + 2 * j))
                a("v_lshlrev_b32 v%d, 16, v%d" % (24 + 2 * j, 25 + 2 * j))
                a("v_and_b32 v%d, 0xffff0000, v%d" % (25 + 2 * j, 25 + 2 * j))
            pk("v_pk_mul_f32", 24 + 2 * j, 24 + 2 * j, 58, " op_sel_hi:[1,0]")
            a("v_cvt_pk_bf16_f32 v%d, v%d, v%d" % (8 + j, 24 + 2 * j, 25 + 2 * j))
            if j % 4 == 3: a("STORE%d" % (j // 4))
    if exact:
        a("v_cvt_pk_bf16_f32 v55, v54, v55")
        a("v_lshlrev_b32 v54, 16, v55")
        a("v_and_b32 v55, 0xffff0000, v55")
    pk("v_pk_mul_f32", 54, 54, 58, " op_sel_hi:[1,0]")
    a("v_cvt_pk_bf16_f32 v23, v54, v55")
    a("STORE3")
    return o

def gen_f(a, cfg):
    name = NAME + "_kernel" if cfg.get("single") else "f_kernel"
    FLN = cfg.get("f_ln", 0)
    SPIN = cfg.get("spin", 0x40000)
    ST = cfg.get("stamp")
    MT = 4
    sa = SA(3, 84)
    P_WQ = sa.new("pwq", 2, 2); P_W1 = sa.new("pw1", 2, 2); P_WS = sa.new("pws", 2, 2); P_X = sa.new("px", 2, 2)
    P_W2 = sa.new("pw2", 2, 2); P_WO = sa.new("pwo", 2, 2); P_OUT = sa.new("pout", 2, 2)
    R_WQ = sa.new("rwq", 4, 4); R_W1 = sa.new("rw1", 4, 4); R_W2 = sa.new("rw2", 4, 4); R_WO = sa.new("rwo", 4, 4)
    R_WS = sa.new("rws", 4, 4)
    sW = sa.new("w"); sI = sa.new("i"); sJ = sa.new("j"); sJ1 = sa.new("j1"); sQ = sa.new("q"); sN = sa.new("n")
    sBQ = sa.new("bq"); sBV = sa.new("bv"); sBW = sa.new("bw"); sBL = sa.new("bl"); sLB = sa.new("lb"); sA = sa.new("a")
    sCLS = sa.new("cls"); t0 = sa.new("t0"); t1 = sa.new("t1"); t2 = sa.new("t2"); t3 = sa.new("t3")
    sMK = sa.new("mask", 8, 2)
    sKV = sa.new("kv"); sKV2 = sa.new("kv2"); sKP = sa.new("kp"); sKP2 = sa.new("kp2"); sFK = sa.new("fk"); sFO = sa.new("fo")
    sH = sa.new("h", 4); sSC = sa.new("sc", 2, 2); sO = sSC + 1; sA0 = sa.new("a0"); sB0 = sa.new("b0"); sAE = sa.new("aend"); sBE = sa.new("bend")
    sXO = sa.new("xo"); sSP = sa.new("spin")
    sDL = sMK
    STB = 84
    SETS = {1: ["start", "bar0", "g1end", "attbeg", "attend", "g2beg", "g2end", "end"],
            2: ["bar0", "g1s8", "g1half", "g1tail", "g1kv", "g1flag1", "g1chk", "attbeg"],
            3: ["start", "attbeg", "att0", "att1", "att2", "att3", "att4", "attend"],
            4: ["start", "att4", "g2h", "g2beg", "g2p4", "g2p12", "g2tail", "g2end"],
            5: ["start", "g2end", "x1", "x2", "x3", "x4", "x5", "end"],
            7: ["g2beg", "g2p3", "g2p6", "g2p10", "g2p14", "g2p18", "g2p22", "g2end"],
            8: ["g2p22", "g2tail", "g2l1", "g2l2", "g2l3", "g2end", "x3", "end"],
            9: ["start", "lnx", "lns", "lnd", "lnp", "g1s1", "g1s4", "g1s8"],
            10: ["start", "k0", "k1", "k2", "k3", "k4", "lnx", "lns"],
            11: ["start", "bar0", "g1tail", "attbeg", "g2beg", "g2p6", "g2end", "end"],
            6: ["start", "bar0", "g1s2", "g1s4", "g1s8", "g1half", "g1s20", "g1tail"]}
    jn = [0]
    def stampr(nm):
        J = cfg.get("jit", 0)
        if J and nm != "start":
            jn[0] += 1
            lab = a.newlabel("F_j")
            a("s_lshl_b32 s84, s2, 2")
            if J & 1: a("s_add_u32 s84, s84, s%d" % sW)
            a("s_add_u32 s84, s84, %d" % (jn[0] * 7919 + J * 31))
            a("s_mul_i32 s84, s84, 0x9e3779b1")
            a("s_lshr_b32 s84, s84, 28")
            a("s_cmp_lg_u32 s84, 0")
            a("s_cbranch_scc1 %s" % lab)
            for _ in range(cfg.get("jitn", 2)): a("s_sleep 127")
            a.label(lab)
        if ST and nm in SETS[ST]:
            i = SETS[ST].index(nm)
            a("%s s[%d:%d]" % ("s_memtime" if cfg.get("clk") else "s_memrealtime", STB + 2 * i, STB + 2 * i + 1))

    NT = 13; KS = 32
    NS = 5; REG = 7168; STAGE = 4 * REG
    D1 = cfg.get("f_d1", 8)
    RA = cfg.get("f_ra1", 12)
    LA = cfg.get("f_la1", 4)
    C1 = cfg.get("f_c1", 2)
    C1K = cfg.get("f_c1k", 2); C1T = cfg.get("f_c1t", 4); C1S = cfg.get("f_c1s", 0)
    CM1 = max(C1, C1K, C1T)
    DB = cfg.get("f_db1", CM1 + 2); RB = DB + max(CM1, 2)
    assert DB >= CM1
    S1 = KS - D1
    def slot1(g): return (15 - g) % 5
    KVB = 96 * 1024
    def acc(mt, t): return (t * MT + mt) * 4
    V_L16 = 208; V_QKV = 209; V_W1 = 210; V_LEFT = 211
    V_RD = 212
    V_P0, V_P1, V_P2 = 221, 222, 223
    V_LANE = 224; V_FL0 = 225; V_ONE = 226; V_POLL = 227; V_KVW = 228; V_FG = 229; V_PL = 230
    T = 232
    A_PD = 255
    AR = 0; BR = RA * 16
    assert BR + RB * 4 <= 254

    kernel_begin(a, name)
    a.reset()
    stampr("start")
    a("s_cmp_ge_u32 s2, 256")
    a("s_cbranch_scc1 F_end")
    if cfg.get("idx"): a("s_xor_b32 s2, s2, %d" % cfg["idx"])
    SWP = cfg.get("f_swp", 0)
    if SWP:
        a("s_lshr_b32 s%d, s2, 1" % t0)
        a("s_xor_b32 s%d, s%d, s2" % (t0, t0))
        a("s_and_b32 s%d, s%d, 1" % (t0, t0))
        a("s_mul_i32 s%d, s%d, 3" % (t0, t0))
        a("s_xor_b32 s2, s2, s%d" % t0)
    if cfg.get("jit"):
        a("s_mul_i32 s84, s2, 0x9e3779b1")
        a("s_lshr_b32 s84, s84, 28")
        a("s_cmp_lg_u32 s84, %d" % (cfg["jit"] & 15))
        a("s_cbranch_scc1 F_j0")
        for _ in range(4): a("s_sleep 127")
        a.label("F_j0")
    a("s_load_dwordx2 s[%d:%d], s[0:1], 8" % (P_WQ, P_WQ + 1))
    a("s_load_dwordx2 s[%d:%d], s[0:1], 32" % (P_W1, P_W1 + 1))
    a("s_load_dwordx2 s[%d:%d], s[0:1], 64" % (P_WS, P_WS + 1))
    a("s_load_dwordx2 s[%d:%d], s[0:1], 0" % (P_X, P_X + 1))
    a("s_load_dwordx2 s[%d:%d], s[0:1], 40" % (P_W2, P_W2 + 1))
    a("s_load_dwordx2 s[%d:%d], s[0:1], 16" % (P_WO, P_WO + 1))
    a("s_load_dwordx2 s[%d:%d], s[0:1], 48" % (P_OUT, P_OUT + 1))
    if FLN:
        lab = a.newlabel("F_pc")
        a("s_getpc_b64 s[%d:%d]" % (R_WO, R_WO + 1))
        a.label(lab)
        a("s_and_b32 s%d, s%d, 0xffff" % (R_WO + 1, R_WO + 1))
        a("s_mov_b32 s%d, CODE_END - %s" % (R_WO + 2, lab))
        a("s_mov_b32 s%d, 0x00020000" % (R_WO + 3))
        a("s_lshr_b32 s%d, s2, 3" % t0)
        a("s_lshl_b32 s%d, s%d, 7" % (t0, t0))
        a("v_lshlrev_b32 v70, 12, v0")
        a.vmem("buffer_load_dword v76, v70, %s, s%d offen" % (s4(R_WO), t0), "T")
    if FLN: a("s_load_dwordx2 s[100:101], s[0:1], 56")
    L = V_LANE
    a("v_and_b32 v%d, 63, v0" % L)
    a("v_lshrrev_b32 v%d, 6, v0" % (T + 1))
    a("v_lshlrev_b32 v%d, 4, v%d" % (V_L16, L))
    a("v_readfirstlane_b32 s%d, v%d" % (sW, T + 1))
    a("s_and_b32 s%d, s2, 1" % sI)
    a("s_lshl_b32 s%d, s%d, 2" % (sI, sI))
    a("s_bfe_u32 s%d, s2, 0x20003" % t0)
    a("s_add_u32 s%d, s%d, s%d" % (sI, sI, t0))
    a("s_bfe_u32 s%d, s2, 0x20001" % sQ)
    a("s_lshr_b32 s%d, s2, 5" % sN)
    a("s_lshl_b32 s%d, s%d, 3" % (sJ, sQ))
    a("s_add_u32 s%d, s%d, s%d" % (sJ, sJ, sN))
    a("s_and_b32 s%d, s%d, 1" % (sJ1, sN))
    if FLN:
        a("v_and_b32 v3, 7, v%d" % L)
        a("v_lshrrev_b32 v4, 3, v%d" % L)
        LXD = cfg.get("f_lxd", 0)
        if LXD:
            a("v_xor_b32 v83, v3, v4")
            a("v_lshlrev_b32 v5, 11, v4")
            a("v_lshl_add_u32 v5, v%d, 9, v5" % (T + 1))
            a("v_lshl_add_u32 v5, v83, 4, v5")
            a("s_lshl_b32 s%d, s%d, 12" % (t1, sW))
            a("s_add_u32 s%d, s%d, %d" % (t1, t1, 144 * 1024))
            a("s_mov_b32 m0, s%d" % t1)
        else:
            a("v_lshlrev_b32 v5, 11, v3")
            a("v_lshl_add_u32 v5, v%d, 9, v5" % (T + 1))
            a("v_lshl_add_u32 v5, v4, 4, v5")
        a("s_lshl_b32 s%d, s%d, 5" % (t3, sI))
        a("s_add_u32 s%d, s%d, s%d" % (t3, t3, sJ))
        a("s_lshl_b32 s%d, s%d, 14" % (sFK, t3))
        assert not LXD or not cfg.get("f_early", 0)
    def xloads():
        stampr("k0")
        a("s_waitcnt lgkmcnt(0)")
        stampr("k1")
        srd(a, R_W2, P_X, S * D * 2)
        for i in range(4):
            if LXD:
                a.vmem("buffer_load_dwordx4 v5, %s, s%d offen offset:%d lds" % (s4(R_W2), sFK, i * 128), ("LX", i))
                if i < 3:
                    a("s_add_u32 m0, m0, %d" % (1024 - 128))
                    a("s_nop 0")
            else: a.vmem("buffer_load_dwordx4 %s, v5, %s, s%d offen offset:%d" % (r4("v", 8 + 4 * i), s4(R_W2), sFK, i * 128), ("LX", i))
        if LXD:
            a("v_lshlrev_b32 v83, 4, v83")
            a("v_lshl_add_u32 v83, v3, 7, v83")
            a("v_add_u32 v83, s%d, v83" % t1)
        stampr("k2")
        if cfg.get("wsoff"): srd_off(a, R_WS, P_WS, cfg["wsoff"] << 20, WS_END)
        else: srd(a, R_WS, P_WS, WS_END)
        a("s_lshl_b32 s%d, s%d, 12" % (sSP, sI))
        a("s_add_u32 s%d, s%d, 0x%x" % (sXO, sSP, WS_LF))
        a("v_and_b32 v80, 31, v%d" % L)
        a("v_lshlrev_b32 v80, %d, v80" % cfg.get("f_lfs", 2))
        a("v_add_u32 v80, s%d, v80" % sXO)
        a.vmem("buffer_load_dword v81, v80, %s, 0 offen sc1" % s4(R_WS), "SN")
    if FLN and not cfg.get("f_early", 0): xloads()
    VQ3 = [V_QKV, 240, 241]; VW3 = [V_W1, 242, 243]
    a("v_lshrrev_b32 v%d, 2, v%d" % (T + 2, L))
    a("v_and_b32 v%d, 3, v%d" % (T + 4, L))
    a("v_lshlrev_b32 v%d, 4, v%d" % (T + 4, T + 4))
    a("v_mul_u32_u24 v%d, %d, v%d" % (T + 5, 16 * 6144, T + 1))
    a("v_lshl_add_u32 v%d, v%d, 11, v%d" % (T + 5, T + 2, T + 5))
    a("v_add_u32 v%d, v%d, v%d" % (VQ3[0], T + 5, T + 4))
    a("v_and_b32 v%d, 32, v%d" % (T + 3, L))
    a("v_xor_b32 v%d, v%d, v%d" % (VQ3[1], VQ3[0], T + 3))
    a("v_add_u32 v%d, 32768, v%d" % (VQ3[1], VQ3[1]))
    a("v_xor_b32 v%d, 32, v%d" % (VQ3[2], VQ3[0]))
    a("v_add_u32 v%d, 65536, v%d" % (VQ3[2], VQ3[2]))
    a("v_mul_u32_u24 v%d, %d, v%d" % (T + 5, 16 * 7168, T + 1))
    a("v_add_u32 v%d, v%d, v%d" % (T + 5, T + 5, T + 4))
    for m in range(3):
        if m: a("v_add_u32 v%d, 16, v%d" % (T + 2, T + 2))
        a("v_mul_u32_u24 v%d, 43, v%d" % (T + 4, T + 2))
        a("v_lshrrev_b32 v%d, 7, v%d" % (T + 4, T + 4))
        a("v_mul_u32_u24 v%d, %d, v%d" % (T + 4, 7168 - 192, T + 4))
        a("v_lshl_add_u32 v%d, v%d, 6, v%d" % (T + 4, T + 2, T + 4))
        a("v_add_u32 v%d, v%d, v%d" % (VW3[m], T + 4, T + 5))
        if m == 1: a("v_xor_b32 v%d, v%d, v%d" % (VW3[m], VW3[m], T + 3))
        if m == 2: a("v_xor_b32 v%d, 32, v%d" % (VW3[m], VW3[m]))
    a("v_bfe_u32 v%d, v%d, 3, 1" % (T + 2, L))
    a("v_lshlrev_b32 v%d, 3, v%d" % (T + 2, T + 2))
    a("v_bfe_u32 v%d, v%d, 4, 1" % (T + 3, L))
    a("v_lshl_add_u32 v%d, v%d, 2, v%d" % (T + 2, T + 3, T + 2))
    a("v_bfe_u32 v%d, v%d, 1, 2" % (T + 3, L))
    a("v_add_u32 v%d, v%d, v%d" % (T + 2, T + 2, T + 3))
    a("v_lshl_add_u32 v%d, v%d, 4, v%d" % (T + 2, T + 1, T + 2))
    a("v_mul_u32_u24 v%d, 7168, v%d" % (V_LEFT, T + 2))
    a("v_and_b32 v%d, 1, v%d" % (T + 3, L))
    a("v_lshl_add_u32 v%d, v%d, 4, v%d" % (V_LEFT, T + 3, V_LEFT))
    a("v_lshrrev_b32 v%d, 5, v%d" % (T + 3, L))
    a("v_lshl_add_u32 v%d, v%d, 30, v%d" % (V_LEFT, T + 3, V_LEFT))
    a("s_lshl_b32 s%d, s%d, 6" % (sBQ, sJ))
    a("s_mul_i32 s%d, s%d, 224" % (sBL, sJ))
    a("s_lshl_b32 s%d, s%d, 5" % (t0, sJ1))
    a("s_add_u32 s%d, s%d, s%d" % (sBW, sBL, t0))
    a("s_xor_b32 s%d, s%d, 1" % (t0, sJ1))
    a("s_mul_i32 s%d, s%d, 192" % (t0, t0))
    a("s_add_u32 s%d, s%d, s%d" % (sBL, sBL, t0))
    a("s_mul_i32 s%d, s%d, %d" % (sLB, sW, REG))
    a("s_lshl_b32 s%d, s%d, 2" % (sA, sI))
    a("s_add_u32 s%d, s%d, s%d" % (sA, sA, sW))
    a("s_lshl_b32 s%d, s%d, 17" % (sA, sA))
    a("s_add_u32 s%d, s%d, 0x%x" % (sA, sA, WS_XN))
    ROT = cfg.get("f_rot", 1)
    a("s_add_u32 s%d, s%d, s%d" % (t1, sI, sN))
    a("s_and_b32 s%d, s%d, %d" % (t1, t1, 3 if ROT else 0))
    for k in range(3):
        a("s_cmp_eq_u32 s%d, %d" % (t1, 3 - k))
        a("s_cselect_b32 s%d, -3, 1" % (sDL + k))
    a("s_cmp_eq_u32 s%d, 0" % t1)
    a("s_cselect_b32 s%d, 1, 5" % (sDL + 3))
    a("s_mul_i32 s%d, s%d, %d" % (t0, t1, 64 * 6144))
    a("s_add_u32 s%d, s%d, s%d" % (sBQ, sBQ, t0))
    a("s_mul_i32 s%d, s%d, %d" % (t0, t1, 64 * 7168))
    a("s_add_u32 s%d, s%d, s%d" % (sBW, sBW, t0))
    a("s_add_u32 s%d, s%d, s%d" % (sBL, sBL, t0))
    a("s_lshl_b32 s%d, s%d, 13" % (t0, t1))
    a("s_add_u32 s%d, s%d, s%d" % (sA, sA, t0))
    for k in range(4):
        a("s_lshl_b32 s%d, s%d, 13" % (sDL + 4 + k, sDL + k))
        a("s_sub_u32 s%d, s%d, 4096" % (sDL + 4 + k, sDL + 4 + k))
    if FLN and cfg.get("f_early", 0): xloads()
    elif not FLN: a("s_waitcnt lgkmcnt(0)")
    srd(a, R_WQ, P_WQ, D * 3 * D * 2)
    srd(a, R_W1, P_W1, D * DFF * 2)
    if not FLN: srd(a, R_WS, P_WS, WS_END)

    G = Gaps(a)
    PAIRPOS = [0, 2, 1, 3, 4, 5]
    def dma1(g, k, part):
        p, vreg, sb, so, imm = [(0, VQ3[0], R_WQ, sBQ, 0), (1, VQ3[1], R_WQ, sBQ, 0), (2, VQ3[2], R_WQ, sBQ, 0),
                                (3, VW3[0], R_W1, sBW, 0), (4, VW3[1], R_W1, sBW, 0), (5, VW3[2], R_W1, sBW, 0), (6, V_LEFT, R_W1, sBL, 0)][k]
        if part == 0:
            a("s_add_u32 m0, s%d, %d" % (sLB, slot1(g) * STAGE + p * 1024 - imm))
        else:
            a.vmem("buffer_load_dwordx4 v%d, %s, s%d offen offset:%d lds" % (vreg, s4(sb), so, imm), ("B", g))
            if k == 0: G.sal.append("s_mul_i32 s%d, s%d, %d" % (t2, sDL + (g & 3), 64 * 6144))
            if k == 2: G.sal.append("s_add_u32 s%d, s%d, s%d" % (sBQ, sBQ, t2))
            if k == 3: G.sal.append("s_mul_i32 s%d, s%d, %d" % (t2, sDL + (g & 3), 64 * 7168))
            if k == 5: G.sal.append("s_add_u32 s%d, s%d, s%d" % (sBW, sBW, t2))
            if k == 6: G.sal.append("s_add_u32 s%d, s%d, s%d" % (sBL, sBL, t2))
    def aload1(s, mt):
        a.vmem("buffer_load_dwordx4 %s, v%d, %s, s%d offen offset:%d%s" % (r4("a", AR + (s % RA) * 16 + mt * 4), V_L16, s4(R_WS), sA, mt * 1024, " sc1" if FLN else ""), ("A", s))
        if mt == MT - 1:
            if s % 2 == 0: G.sal.append("s_add_u32 s%d, s%d, 4096" % (sA, sA))
            else: G.sal.append("s_add_u32 s%d, s%d, s%d" % (sA, sA, sDL + 4 + ((s // 2) & 3)))
    order = []
    for g in range(16):
        for k in range(7): order.append(("B", g, k))
        for s in (2 * g, 2 * g + 1):
            for mt in range(MT): order.append(("A", s, mt))
    def issue1(op):
        G.drain_sal()
        if op[0] == "A": aload1(op[1], op[2])
        else:
            dma1(op[1], op[2], 0); a("s_nop 0"); dma1(op[1], op[2], 1)
        G.drain_sal()
    if FLN:
        nb = cfg.get("f_lnb", 1)
        bops = [o for o in order if o[0] == "B" and o[1] < nb]
        for o in bops: order.remove(o)
        BO = cfg.get("f_bo", 0)
        late_b = []
        if BO == 1: late_b = bops[:3]; bops = bops[3:]
        if BO == 2: late_b = bops[3:]; bops = bops[:3]
        TB0 = cfg.get("f_tb", 0)
        def touchb():
            a("s_lshr_b32 s%d, s2, 3" % t1)
            a("s_lshl_b32 s%d, s%d, 2" % (t1, t1))
            a("s_add_u32 s%d, s%d, s%d" % (t1, t1, sW))
            a("v_lshrrev_b32 v84, 4, v%d" % L)
            a("v_and_b32 v85, 15, v%d" % L)
            a("v_mul_u32_u24 v86, 7168, v84")
            a("v_lshl_add_u32 v86, v85, 7, v86")
            a("v_mul_u32_u24 v84, 6144, v84")
            a("v_lshrrev_b32 v87, 2, v85")
            a("v_lshl_add_u32 v84, v87, 11, v84")
            a("v_and_b32 v87, 3, v85")
            a("v_lshl_add_u32 v84, v87, 7, v84")
            a("s_mul_i32 s%d, s%d, %d" % (t0, t1, 2 * 6144))
            a("s_lshl_b32 s%d, s%d, 9" % (t2, sQ))
            a("s_add_u32 s%d, s%d, s%d" % (sKV, t0, t2))
            a("s_mul_i32 s%d, s%d, %d" % (t0, t1, 2 * 7168))
            a("s_mul_i32 s%d, s%d, 1792" % (t2, sQ))
            a("s_add_u32 s%d, s%d, s%d" % (sKV2, t0, t2))
        def touchb2():
            a("s_mov_b64 exec, 0x0fff0fff")
            a.vmem("buffer_load_dword a%d, v84, %s, s%d offen" % (A_PD, s4(R_WQ), sKV), "T")
            a("s_mov_b64 exec, 0x3fff3fff")
            a.vmem("buffer_load_dword a%d, v86, %s, s%d offen" % (A_PD, s4(R_W1), sKV2), "T")
            a("s_mov_b64 exec, -1")
        HT = cfg.get("f_ht", 0)
        def hottouch(b):
            a("s_mov_b32 s%d, %d" % (t0, b * 256 * 6144))
            a.vmem("buffer_load_dword a%d, v%d, %s, s%d offen" % (A_PD, V_P1, s4(R_WQ), t0), "T")
        if HT:
            a("s_lshr_b32 s%d, s2, 3" % t1)
            a("s_lshl_b32 s%d, s%d, 2" % (t1, t1))
            a("s_add_u32 s%d, s%d, s%d" % (t1, t1, sW))
            a("s_mul_i32 s%d, s%d, %d" % (t1, t1, 2 * 6144))
            a("s_mul_i32 s%d, s%d, 0x40000200" % (t0, sQ))
            a("s_and_b32 s%d, s%d, 0x7fffffff" % (t0, t0))
            a("s_add_u32 s%d, s%d, s%d" % (t1, t1, t0))
            a("s_add_u32 s%d, s%d, 384" % (t1, t1))
            a("v_lshlrev_b32 v%d, 11, v%d" % (V_P1, L))
            a("v_add_u32 v84, 58, v%d" % L)
            a("v_lshrrev_b32 v84, 6, v84")
            a("v_lshl_add_u32 v%d, v84, 30, v%d" % (V_P1, V_P1))
            a("v_add_u32 v%d, s%d, v%d" % (V_P1, t1, V_P1))
            if HT & 1: hottouch(0)
        if TB0: touchb()
        if TB0 == 1: touchb2()
        for _ in range(cfg.get("f_lnb0", 2)): issue1(bops.pop(0))
        a("s_lshl_b32 s%d, s2, 9" % t0)
        a("s_add_u32 s%d, s%d, 0x%x" % (t0, t0, WS_FL))
        a("v_lshlrev_b32 v70, 2, v0")
        a("v_lshrrev_b32 v71, 7, v0")
        a("v_lshl_add_u32 v70, v71, 30, v70")
        a("v_mov_b32 v71, 0")
        a.vmem("buffer_store_dword v71, v70, %s, s%d offen sc1" % (s4(R_WS), t0), "Z")
        a("s_lshr_b32 s%d, s%d, 3" % (t0, t3))
        a("s_lshl_b32 s%d, s%d, 17" % (t0, t0))
        a("s_bfe_u32 s%d, s%d, 0x20001" % (t1, t3))
        a("s_lshl_b32 s%d, s%d, 10" % (t1, t1))
        a("s_add_u32 s%d, s%d, s%d" % (t0, t0, t1))
        a("s_and_b32 s%d, s%d, 1" % (t1, t3))
        a("s_lshl_b32 s%d, s%d, 7" % (t1, t1))
        a("s_add_u32 s%d, s%d, s%d" % (t0, t0, t1))
        a("s_add_u32 s%d, s%d, 0x%x" % (t3, t0, WS_XN))
        a("v_lshrrev_b32 v6, 2, v4")
        a("v_lshl_add_u32 v6, v%d, 3, v6" % (T + 1))
        a("v_lshlrev_b32 v6, 12, v6")
        a("v_and_b32 v7, 3, v4")
        a("v_lshl_add_u32 v6, v7, 8, v6")
        a("v_lshl_add_u32 v6, v3, 4, v6")
        a("v_lshl_add_u32 v7, v%d, 3, v3" % (T + 1))
        a("v_lshlrev_b32 v7, 3, v7")
        a("v_add_u32 v7, %d, v7" % (5 * STAGE))
        a("v_lshlrev_b32 v60, 3, v3")
        a("v_add_u32 v60, %d, v60" % (5 * STAGE))
        stampr("k3")
        if LXD:
            for i in range(4):
                a.wait(vm=("LX", i))
                if i == 0: stampr("k4")
                a("ds_read_b128 %s, v83 offset:%d" % (r4("v", 8 + 4 * i), i * 1024))
            a("s_waitcnt lgkmcnt(0)")
        elif not cfg.get("f_lxp", 1): a.wait(vm=("LX", 3))
        stampr("lnx")
        if TB0 == 2: touchb2()
        lo_ = ln_ops(cfg.get("f_lnex", 1))
        gap_ = cfg.get("f_lngap", 20)
        for k, x in enumerate(lo_):
            if x.startswith("WAIT"): a.wait(vm=("LX", int(x[4:])))
            elif x.startswith("STORE"):
                i = int(x[5:])
                a.vmem("buffer_store_dwordx4 %s, v6, %s, s%d offen sc1" % (r4("v", 8 + 4 * i), s4(R_WS), t3), "XS")
                if i < 3: a("s_add_u32 s%d, s%d, %d" % (t3, t3, 8192))
            else: a(x)
            if k % gap_ == gap_ - 1 and bops and k < cfg.get("f_lnk", 110): issue1(bops.pop(0))
        bops += late_b
        if cfg.get("f_bnow", 1):
            while bops: issue1(bops.pop(0))
        stampr("lns")
    else:
        for _ in range(cfg.get("f_pro1", 15)): issue1(order.pop(0))

    srd(a, R_W2, P_W2, DFF * D * 2)
    srd(a, R_WO, P_WO, D * D * 2)
    a("s_bfe_u32 s%d, s2, 0x30003" % sCLS)
    a("v_bfrev_b32 v%d, 1" % (T + 6))
    if cfg.get("f_pf", 0):
        a("s_lshr_b32 s%d, s2, 6" % t1)
        a("s_lshl_b32 s%d, s%d, 2" % (t1, t1))
        a("s_add_u32 s%d, s%d, s%d" % (t1, t1, sW))
        a("v_bfrev_b32 v%d, 1" % (T + 6))
        a("v_lshrrev_b32 v%d, 5, v%d" % (T + 2, L))
        a("s_lshl_b32 s%d, s%d, 1" % (t0, t1))
        a("v_add_u32 v%d, s%d, v%d" % (T + 2, t0, T + 2))
        a("v_and_b32 v%d, 31, v%d" % (T + 3, L))
        a("v_mul_u32_u24 v%d, 7168, v%d" % (V_P1, T + 2))
        a("v_lshl_add_u32 v%d, v%d, 7, v%d" % (V_P1, T + 3, V_P1))
        a("s_mul_i32 s%d, s%d, 1792" % (t0, sQ))
        a("v_add_u32 v%d, s%d, v%d" % (V_P1, t0, V_P1))
        a("v_mul_u32_u24 v%d, 6144, v%d" % (V_P0, T + 2))
        a("v_lshrrev_b32 v%d, 2, v%d" % (T + 4, T + 3))
        a("v_lshl_add_u32 v%d, v%d, 11, v%d" % (V_P0, T + 4, V_P0))
        a("v_and_b32 v%d, 3, v%d" % (T + 4, T + 3))
        a("v_lshl_add_u32 v%d, v%d, 7, v%d" % (V_P0, T + 4, V_P0))
        a("s_lshl_b32 s%d, s%d, 9" % (t0, sQ))
        a("v_add_u32 v%d, s%d, v%d" % (V_P0, t0, V_P0))
        a("v_cmp_le_u32 vcc, 12, v%d" % (T + 3))
        a("s_and_b32 s%d, s2, 1" % t0)
        a("s_lshl_b32 s%d, s%d, 4" % (t0, t0))
        a("v_cndmask_b32 v%d, v%d, v%d, vcc" % (V_P0, V_P0, T + 6))
        a("v_cmp_le_u32 vcc, 14, v%d" % (T + 3))
        a("s_add_u32 s%d, s%d, s%d" % (t0, t0, t1))
        a("s_lshl_b32 s%d, s%d, 17" % (t0, t0))
        a("v_cndmask_b32 v%d, v%d, v%d, vcc" % (V_P1, V_P1, T + 6))
        a("s_add_u32 s%d, s%d, 0x%x" % (t0, t0, WS_XN))
        a("v_lshlrev_b32 v%d, 7, v%d" % (V_P2, L))
        a("v_add_u32 v%d, s%d, v%d" % (V_P2, t0, V_P2))
        a("v_cmp_le_u32 vcc, 32, v%d" % L)
        a("s_lshl_b32 s%d, s%d, 12" % (t0, sCLS))
        a("s_nop 0")
        a("v_cndmask_b32 v%d, v%d, v%d, vcc" % (V_P2, V_P2, T + 6))
    PFM = cfg.get("f_pf", 0)
    PF0 = cfg.get("f_pf0", 8)
    if PFM & 2:
        a("buffer_load_dword a%d, v%d, %s, s%d offen" % (A_PD, V_P2, s4(R_WS), t0))
    def touch(n):
        lab = a.newlabel("F_pf")
        a("s_cmp_lg_u32 s%d, %d" % (sCLS, n & 7))
        a("s_cbranch_scc1 %s" % lab)
        if PFM & 1:
            a("s_mov_b32 s%d, %d" % (t0, n * 32 * 6144))
            a("s_mov_b32 s%d, %d" % (t1, n * 32 * 7168))
            a("buffer_load_dword a%d, v%d, %s, s%d offen" % (A_PD, V_P0, s4(R_WQ), t0))
            a("buffer_load_dword a%d, v%d, %s, s%d offen" % (A_PD - 1, V_P1, s4(R_W1), t1))
        if PFM & 2:
            a("s_mov_b32 s%d, %d" % (t0, n * 4096))
            a("buffer_load_dword a%d, v%d, %s, s%d offen" % (A_PD, V_P2, s4(R_WS), t0))
        a.label(lab)
    if PFM & 4:
        a("s_and_b32 s%d, s2, 1" % t0)
        a("v_lshrrev_b32 v%d, 5, v%d" % (T + 2, L))
        a("v_cmp_ne_u32 vcc, s%d, v%d" % (t0, T + 2))
        a("s_nop 1")
        a("v_cndmask_b32 v%d, v%d, v%d, vcc" % (V_P0, V_P0, T + 6))
        a("v_cndmask_b32 v%d, v%d, v%d, vcc" % (V_P1, V_P1, T + 6))
    PW = cfg.get("f_pw", 2); PW0 = cfg.get("f_pw0", 12)
    V_PW = 231
    a("v_lshlrev_b32 v%d, 7, v%d" % (V_PW, L))
    a("v_cmp_le_u32 vcc, 56, v%d" % L)
    a("s_nop 1")
    a("v_cndmask_b32 v%d, v%d, v%d, vcc" % (V_PW, V_PW, T + 6))
    ASY = cfg.get("f_asy", 1)
    if ASY:
        if cfg.get("f_xcc", 0):
            a("s_getreg_b32 s%d, hwreg(HW_REG_XCC_ID)" % t0)
            a("s_and_b32 s%d, s%d, 1" % (t0, t0))
        else: a("s_bfe_u32 s%d, s2, 0x%x" % (t0, 0x10001 if SWP else 0x10000))
        if ASY == 2: a("s_xor_b32 s%d, s%d, 1" % (t0, t0))
        a("s_lshl_b32 s%d, s%d, 4" % (t0, t0))
        a("s_or_b32 s%d, s%d, s%d" % (sCLS, sCLS, t0))
    HOT = cfg.get("f_hot", 0); LO = cfg.get("f_lo", 64)
    if HOT:
        a("s_bfe_u32 s%d, s2, 0x30003" % sCLS)
        a("s_and_b32 s%d, s%d, 14" % (t0, sJ))
        a("s_cmp_eq_u32 s%d, 6" % t0)
        a("s_cselect_b32 s%d, 16, s%d" % (sCLS, sCLS))
        if LO == 0:
            a("s_bitcmp1_b32 s2, 0")
            a("s_cselect_b32 s%d, 16, s%d" % (sCLS, sCLS))
        a("v_lshlrev_b32 v%d, 7, v%d" % (V_PW, L))
    def toucht(cls):
        lab = a.newlabel("F_pw"); l2 = a.newlabel("F_po")
        def ex(n):
            m_ = (1 << n) - 1
            a("s_mov_b32 exec_lo, 0x%x" % (m_ & 0xffffffff)); a("s_mov_b32 exec_hi, 0x%x" % (m_ >> 32))
        a("s_cmp_lg_u32 s%d, %d" % (sCLS, cls))
        a("s_cbranch_scc1 %s" % lab)
        a("s_add_u32 s%d, s%d, 8" % (t0, sJ))
        a("s_lshr_b32 s%d, s%d, 4" % (t0, t0))
        a("s_lshl_b32 s%d, s%d, 1" % (t0, t0))
        a("s_sub_u32 s%d, s%d, s%d" % (t0, sJ, t0))
        a("s_lshl_b32 s%d, s%d, 2" % (t0, t0))
        a("s_and_b32 s%d, s%d, 3" % (t1, sI))
        a("s_add_u32 s%d, s%d, s%d" % (t0, t0, t1))
        a("s_lshl_b32 s%d, s%d, 2" % (t0, t0))
        a("s_add_u32 s%d, s%d, s%d" % (t0, t0, sW))
        a("s_lshl_b32 s%d, s%d, 14" % (t1, t0))
        a("s_bitcmp1_b32 s2, 0")
        a("s_cbranch_scc1 %s" % l2)
        a("buffer_load_dword a%d, v%d, %s, s%d offen" % (A_PD, V_PW, s4(R_W2), t1))
        if LO < 64:
            a("s_add_u32 s%d, s%d, 8192" % (t1, t1))
            ex(64 - LO)
            a("buffer_load_dword a%d, v%d, %s, s%d offen" % (A_PD, V_PW, s4(R_W2), t1))
        a("s_mul_i32 s%d, s%d, %d" % (t1, t0, 37 * 128))
        ex(37)
        a("buffer_load_dword a%d, v%d, %s, s%d offen" % (A_PD - 1, V_PW, s4(R_WO), t1))
        a("s_mov_b64 exec, -1")
        a("s_branch %s" % lab)
        a.label(l2)
        if LO:
            a("s_add_u32 s%d, s%d, %d" % (t1, t1, (128 - LO) * 128))
            ex(LO)
            a("buffer_load_dword a%d, v%d, %s, s%d offen" % (A_PD, V_PW, s4(R_W2), t1))
            a("s_mov_b64 exec, -1")
        a.label(lab)
    def touchw(cls, flip=0):
        lab = a.newlabel("F_pw")
        if cls is not None:
            a("s_cmp_lg_u32 s%d, %d" % (sCLS, cls))
            a("s_cbranch_scc1 %s" % lab)
        if flip:
            a("s_xor_b32 s%d, s2, %d" % (t0, 2 if SWP else 1))
            a("s_lshl_b32 s%d, s%d, 2" % (t0, t0))
        else: a("s_lshl_b32 s%d, s2, 2" % t0)
        a("s_add_u32 s%d, s%d, s%d" % (t0, t0, sW))
        a("s_mul_i32 s%d, s%d, 7168" % (t1, t0))
        a("buffer_load_dword a%d, v%d, %s, s%d offen" % (A_PD, V_PW, s4(R_W2), t1))
        a("s_lshl_b32 s%d, s%d, 11" % (t1, t0))
        a("s_mov_b64 exec, 0xffff")
        a("buffer_load_dword a%d, v%d, %s, s%d offen" % (A_PD - 1, V_PW, s4(R_WO), t1))
        a("s_mov_b64 exec, -1")
        a.label(lab)
    def touchp(k):
        a("s_lshl_b32 s%d, s2, 2" % t0)
        a("s_add_u32 s%d, s%d, s%d" % (t0, t0, sW))
        if k < 2:
            a("s_mul_i32 s%d, s%d, 7168" % (t1, t0))
            a("s_mov_b64 exec, 0xfffffff")
            a.vmem("buffer_load_dword a%d, v%d, %s, s%d offen offset:%d" % (A_PD, V_PW, s4(R_W2), t1, k * 3584), "T")
        else:
            a("s_lshl_b32 s%d, s%d, 11" % (t1, t0))
            a("s_mov_b64 exec, 0xffff")
            a.vmem("buffer_load_dword a%d, v%d, %s, s%d offen" % (A_PD, V_PW, s4(R_WO), t1), "T")
        a("s_mov_b64 exec, -1")
    def touchx(k):
        a("s_lshr_b32 s%d, s2, 3" % t0)
        a("s_lshl_b32 s%d, s%d, 2" % (t0, t0))
        a("s_add_u32 s%d, s%d, s%d" % (t0, t0, sW))
        a("s_lshl_b32 s%d, s%d, 7" % (t1, sQ))
        a("s_add_u32 s%d, s%d, s%d" % (t0, t0, t1))
        if k < 2:
            a("s_mul_i32 s%d, s%d, 14336" % (t1, t0))
            if k: a("s_add_u32 s%d, s%d, 7168" % (t1, t1))
            a("buffer_load_dword a%d, v%d, %s, s%d offen" % (A_PD - k, V_PW, s4(R_W2), t1))
        else:
            a("s_lshl_b32 s%d, s%d, 12" % (t1, t0))
            a("s_mov_b32 exec_hi, 0")
            a("buffer_load_dword a%d, v%d, %s, s%d offen" % (A_PD, V_PW, s4(R_WO), t1))
            a("s_mov_b32 exec_hi, -1")
    pfq = list(range(PF0, KS)) if PFM else []
    PFA = cfg.get("f_pfa", 30)
    a("v_lshrrev_b32 v%d, 5, v%d" % (T + 2, L))
    a("v_mul_u32_u24 v%d, %d, v%d" % (T + 2, REG, T + 2))
    a("v_and_b32 v%d, 3, v%d" % (T + 3, L))
    a("v_lshl_add_u32 v%d, v%d, 3, v%d" % (T + 2, T + 3, T + 2))
    a("v_bfe_u32 v%d, v%d, 2, 2" % (T + 3, L))
    a("v_bfe_u32 v%d, v%d, 4, 1" % (T + 4, L))
    a("v_mul_u32_u24 v%d, 192, v%d" % (V_RD, T + 3))
    a("v_add_u32 v%d, v%d, v%d" % (V_RD, V_RD, T + 2))
    a("v_mul_u32_u24 v%d, %d, v%d" % (T + 5, 8 * 192 + 32, T + 4))
    a("v_add_u32 v%d, v%d, v%d" % (V_RD, V_RD, T + 5))
    a("v_xor_b32 v%d, 32, v%d" % (V_RD + 1, V_RD))
    a("v_lshl_add_u32 v%d, v%d, 5, v%d" % (V_RD + 2, T + 3, T + 2))
    a("v_lshl_add_u32 v%d, v%d, 7, v%d" % (V_RD + 2, T + 4, V_RD + 2))
    for st_ in (1, 2):
        for x in range(3):
            a("v_add_u32 v%d, %d, v%d" % (V_RD + 3 * st_ + x, st_ * 2 * STAGE, V_RD + x))
    a("s_lshl_b32 s%d, s%d, 7" % (sKV, sJ))
    a("s_lshl_b32 s%d, s%d, 4" % (t0, sI))
    a("s_add_u32 s%d, s%d, s%d" % (sKV, sKV, t0))
    a("s_lshl_b32 s%d, s%d, 2" % (t0, sW))
    a("s_add_u32 s%d, s%d, s%d" % (sKV, sKV, t0))
    a("s_lshl_b32 s%d, s%d, 10" % (sKV, sKV))
    a("s_add_u32 s%d, s%d, 0x%x" % (sKV2, sKV, WS_V))
    a("s_add_u32 s%d, s%d, 0x%x" % (sKV, sKV, WS_K))
    a("s_sub_u32 s%d, s%d, 16384" % (sKP, sKV))
    a("s_sub_u32 s%d, s%d, 16384" % (sKP2, sKV2))
    a("s_cmp_eq_u32 s%d, 0" % sI)
    a("s_cselect_b32 s%d, 0x40000000, s%d" % (sKP, sKP))
    a("s_cselect_b32 s%d, 0x40000000, s%d" % (sKP2, sKP2))
    a("s_lshl_b32 s%d, s2, 2" % sFO)
    a("s_add_u32 s%d, s%d, s%d" % (sFO, sFO, sW))
    a("s_lshl_b32 s%d, s%d, 7" % (sFO, sFO))
    a("s_add_u32 s%d, s%d, 0x%x" % (sFO, sFO, WS_FL))
    a("s_add_u32 s%d, s%d, 1" % (t0, sI))
    a("s_and_b32 s%d, s%d, 3" % (t1, t0))
    a("s_lshl_b32 s%d, s%d, 3" % (t1, t1))
    a("s_lshr_b32 s%d, s%d, 2" % (t0, t0))
    a("s_or_b32 s%d, s%d, s%d" % (t1, t1, t0))
    a("s_and_b32 s%d, s2, 0xe6" % t0)
    a("s_or_b32 s%d, s%d, s%d" % (t1, t1, t0))
    a("s_lshl_b32 s%d, s%d, 2" % (t1, t1))
    a("s_add_u32 s%d, s%d, s%d" % (t1, t1, sW))
    a("s_lshl_b32 s%d, s%d, 7" % (t1, t1))
    a("s_add_u32 s%d, s%d, 0x%x" % (sFK, t1, WS_FL + 12))
    a("s_cmp_eq_u32 s%d, 7" % sI)
    a("s_cselect_b32 s%d, 0x40000000, s%d" % (sFK, sFK))
    if cfg.get("f_k7", 1):
        a("s_cselect_b32 s%d, 0x40000000, s%d" % (sKV, sKV))
        a("s_cselect_b32 s%d, 0x40000000, s%d" % (sKV2, sKV2))
    a("v_cmp_ne_u32 vcc, 0, v%d" % L)
    a("v_mov_b32 v%d, 1" % V_ONE)
    a("v_and_b32 v%d, 31, v%d" % (V_PL, L))
    a("v_cndmask_b32 v%d, 0, v%d, vcc" % (V_FL0, T + 6))
    a("v_lshlrev_b32 v%d, 2, v%d" % (V_PL, V_PL))
    a("s_and_b32 s%d, s2, 31" % t0)
    a("s_lshl_b32 s%d, s%d, 2" % (t0, t0))
    a("s_add_u32 s%d, s%d, s%d" % (t0, t0, sW))
    a("s_lshl_b32 s%d, s%d, 7" % (t0, t0))
    a("s_lshl_b32 s%d, s%d, 2" % (t1, sN))
    a("s_add_u32 s%d, s%d, s%d" % (t0, t0, t1))
    a("s_add_u32 s%d, s%d, 0x%x" % (t0, t0, WS_FL))
    a("v_lshlrev_b32 v%d, 14, v%d" % (V_FG, L))
    a("v_add_u32 v%d, s%d, v%d" % (V_FG, t0, V_FG))
    a("v_cmp_le_u32 vcc, 8, v%d" % L)
    a("s_lshl_b32 s%d, s%d, 12" % (t0, sW))
    a("s_add_u32 s%d, s%d, %d" % (t0, t0, KVB))
    a("v_cndmask_b32 v%d, v%d, v%d, vcc" % (V_FG, V_FG, T + 6))
    a("v_add_u32 v%d, s%d, v%d" % (V_KVW, t0, V_L16))
    a("s_lshl_b32 s%d, s%d, 2" % (t0, sI))
    a("s_add_u32 s%d, s%d, s%d" % (t0, t0, sW))
    a("s_lshl_b32 s%d, s%d, 17" % (sXO, t0))
    a("s_mul_i32 s%d, s%d, 144" % (t0, t0))
    a("s_mul_i32 s%d, s%d, 36" % (t1, sQ))
    a("s_add_u32 s%d, s%d, s%d" % (t0, t0, t1))
    a("s_lshl_b32 s%d, s%d, 12" % (t0, t0))
    a("s_add_u32 s%d, s%d, 0x%x" % (t0, t0, WS_A2))
    a("s_add_u32 s%d, s%d, %d" % (sAE, t0, 28 * 4096))
    a("s_lshl_b32 s%d, s%d, 12" % (t1, sN))
    a("s_add_u32 s%d, s%d, s%d" % (sO, sAE, t1))
    a("s_lshr_b32 s%d, s%d, 1" % (t1, t1))
    a("s_add_u32 s%d, s%d, s%d" % (sH + 3, t0, t1))
    a("s_add_u32 s%d, s%d, %d" % (sH + 3, sH + 3, 24 * 4096))
    a("s_mul_i32 s%d, s%d, %d" % (t1, sN, 3 * 4096))
    a("s_add_u32 s%d, s%d, s%d" % (sH, t0, t1))
    a("s_add_u32 s%d, s%d, 4096" % (sH + 1, sH))
    a("s_add_u32 s%d, s%d, 8192" % (sH + 2, sH))
    a("s_lshl_b32 s%d, s%d, 8" % (t0, sN))
    a("s_add_u32 s%d, s%d, s%d" % (sXO, sXO, t0))
    a("s_lshl_b32 s%d, s%d, 6" % (t0, sQ))
    a("s_add_u32 s%d, s%d, s%d" % (sXO, sXO, t0))
    a("s_mov_b32 s%d, 0x%x" % (sSC, f2u(QSCALE)))
    def spin(mask, skip_if_i0=False):
        l0 = a.newlabel("F_sp"); l1 = a.newlabel("F_ok")
        if skip_if_i0:
            a("s_cmp_eq_u32 s%d, 0" % sI)
            a("s_cbranch_scc1 %s" % l1)
        a("s_mov_b32 s%d, 0x%x" % (sSP, SPIN))
        a.label(l0)
        a("v_cmp_ne_u32 vcc, 0, v%d" % V_POLL)
        a("s_and_b32 s%d, vcc_lo, 0x%x" % (t0, mask))
        a("s_cmp_eq_u32 s%d, 0x%x" % (t0, mask))
        a("s_cbranch_scc1 %s" % l1)
        a("buffer_load_dword v%d, v%d, %s, s%d offen sc1" % (V_POLL, V_PL, s4(R_WS), sFO))
        a("s_sub_u32 s%d, s%d, 1" % (sSP, sSP))
        a("s_waitcnt vmcnt(0)")
        a("s_cbranch_scc0 %s" % l0)
        a.label(l1)
    def poll_issue(tag):
        a.vmem("buffer_load_dword v%d, v%d, %s, s%d offen sc1" % (V_POLL, V_PL, s4(R_WS), sFO), tag)

    if FLN:
        while bops: issue1(bops.pop(0))
        if PW & 8: touchw(None)
        nb2 = cfg.get("f_lnb2", 3)
        b2 = [o for o in order if o[0] == "B" and o[1] < nb + nb2]
        for o in b2: order.remove(o)
        if BO == 1: b2 = [o for o in b2 if o[2] >= 3] + [o for o in b2 if o[2] < 3]
        if BO == 2: b2 = [o for o in b2 if o[2] < 3] + [o for o in b2 if o[2] >= 3]
        for _ in range(cfg.get("f_lnb2e", 0)): issue1(b2.pop(0))
        if PW & 8: a.vm += ["T", "T"]
        a.wait(vm="XS")
        stampr("lnd")
        a("s_barrier")
        lab = a.newlabel("F_ln"); l2 = a.newlabel("F_lp"); l3 = a.newlabel("F_lq"); l4 = a.newlabel("F_la")
        a("s_lshl_b32 s%d, s%d, 5" % (t0, sI))
        a("v_mov_b32 v1, s%d" % t0)
        a("s_cmp_lg_u32 s%d, 0" % sW)
        a("s_cbranch_scc1 %s" % lab)
        a("v_add_u32 v82, 1, v81")
        a("s_lshl_b64 exec, 1, s%d" % sJ)
        a("buffer_store_dword v82, v80, %s, 0 offen sc1" % s4(R_WS))
        a("s_mov_b64 exec, -1")
        a.label(lab)
        while b2: issue1(b2.pop(0))
        if PW & 16: touchw(None)
        a("s_cmp_lg_u32 s%d, 1" % sW)
        a("s_cbranch_scc1 %s" % l4)
        a("s_mov_b64 exec, 1")
        a("global_atomic_add v1, v%d, s[100:101] sc1" % V_ONE)
        a("s_mov_b64 exec, -1")
        a.label(l4)
        PALL = cfg.get("f_pall", 0)
        if not PALL:
            a("s_cmp_lg_u32 s%d, 0" % sW)
            a("s_cbranch_scc1 %s" % l3)
        else:
            a("s_lshl_b32 s%d, s%d, 3" % (t1, sW))
            a("s_lshl_b32 s%d, 0xff, s%d" % (t1, t1))
        a("s_mov_b32 s%d, 0x%x" % (sSP, SPIN))
        a.label(l2)
        a("buffer_load_dword v82, v80, %s, 0 offen sc1" % s4(R_WS))
        a("s_waitcnt vmcnt(0)")
        a("v_cmp_ne_u32 vcc, v81, v82")
        if PALL:
            a("s_and_b32 s%d, vcc_lo, s%d" % (t0, t1))
            a("s_cmp_eq_u32 s%d, s%d" % (t0, t1))
        else: a("s_cmp_eq_u32 vcc_lo, -1")
        a("s_cbranch_scc1 %s" % l3)
        a("s_sub_u32 s%d, s%d, 1" % (sSP, sSP))
        a("s_cbranch_scc1 %s" % l3)
        a("s_and_b32 s%d, s%d, 7" % (t0, sSP))
        a("s_cbranch_scc1 %s" % l2)
        a("global_load_dword v2, v1, s[100:101] sc1")
        a("s_waitcnt vmcnt(0)")
        a("v_readfirstlane_b32 s%d, v2" % t0)
        a("s_cmp_lt_u32 s%d, 32" % t0)
        a("s_cbranch_scc1 %s" % l2)
        a.label(l3)
        if not PALL: a("s_barrier")
        stampr("lnp")
        for _ in range(8): issue1(order.pop(0))
        order[:0] = bops
    gi = []
    def grp(units, s0, s1, tiles, C):
        s = s0
        while s < s1:
            c = min(C, s1 - s)
            for t in tiles:
                g0 = len(units); gn = gi[-1][2] + 1 if gi else 0
                for k in range(c):
                    units.append((s + k, t)); gi.append((g0, c, gn))
            s += c
    units = []
    grp(units, 0, C1S, range(NT), 2)
    C1E = cfg.get("f_c1e", S1)
    grp(units, C1S, C1E, range(NT), C1)
    grp(units, C1E, S1, range(NT), 2)
    grp(units, S1, KS, (2, 3, 4, 5), C1K)
    UKV = len(units)
    grp(units, S1, KS, (6, 7, 8, 9), C1T)
    UH01 = len(units)
    grp(units, S1, KS, (10, 11, 12, 0, 1), C1T)
    NU = len(units)
    last_unit_of_stage = {}
    last_unit_of_step = {}
    for u, (s, t) in enumerate(units):
        last_unit_of_stage[s // 2] = u; last_unit_of_step[s] = u
    stt = dict(ready=-1, free=set(), waited=-1, issued=-1)
    def barrier():
        a("s_barrier")
        for g, lu in last_unit_of_stage.items():
            if lu <= stt["waited"]: stt["free"].add(g)
    def can1(op):
        if op[0] == "B": return op[1] < NS or (op[1] - NS) in stt["free"]
        return op[1] < RA or last_unit_of_step[op[1] - RA] <= stt["issued"]
    def flush1(tag):
        while any(o[:2] == tag for o in order):
            op = order.pop(0)
            assert can1(op), (op, stt)
            if cfg.get("verbose"): print("late flush", op, file=sys.stderr)
            issue1(op)
    def bread1(u, j2):
        s, t = units[u]
        slot = slot1(s // 2); st_ = slot // 2
        off = (slot % 2) * STAGE + (s % 2) * 2 * REG
        if t < 12: off += j2 * 768 + (t // 6) * 3072 + ((t // 2) % 3) * 64; vr = V_RD + 3 * st_ + (t % 2)
        else: off += 6144 + j2 * 256; vr = V_RD + 3 * st_ + 2
        a.lds("ds_read_b64_tr_b16 %s, v%d offset:%d" % (r2("a", BR + (u % RB) * 4 + j2 * 2), vr, off), ("b", u))
    def need1(u):
        g = units[u][0] // 2
        if g > stt["ready"]:
            flush1(("B", g)); a.wait(vm=("B", g)); barrier(); stt["ready"] = g
    def pack(c0, c1, relu=False):
        ops = []
        for hh, c in enumerate((c0, c1)):
            if c is None: continue
            for e2 in range(2):
                ops.append("v_cvt_pk_bf16_f32 v%d, v%d, v%d" % (c0 + 2 * hh + e2, c + 2 * e2, c + 2 * e2 + 1))
            if relu:
                for e2 in range(2):
                    ops.append("v_pk_max_i16 v%d, v%d, 0" % (c0 + 2 * hh + e2, c0 + 2 * hh + e2))
        return ops
    HF = ["sc1", "", "nt", "sc0"][cfg.get("f_hf", 0)]
    def hstore(p, mt):
        if p < 3: a.vmem("buffer_store_dwordx4 %s, v%d, %s, s%d offen offset:%d %s" % (r4("v", acc(mt, 6 + 2 * p)), V_L16, s4(R_WS), sH + p, mt * 1024, HF), "H")
        elif cfg.get("f_l4", 1):
            if mt % 2 == 0: a.vmem("buffer_store_dwordx4 %s, v%d, %s, s%d offen offset:%d %s" % (r4("v", acc(mt, 12)), V_L16, s4(R_WS), sH + 3, mt * 512, HF), "L")
        else: a.vmem("buffer_store_dwordx2 %s, v%d, %s, s%d offen offset:%d %s" % (r2("v", acc(mt, 12)), 211, s4(R_WS), sH + 3, mt * 512, HF), "L" if cfg.get("f_ll", 1) else "H")
    need1(0)
    stampr("bar0")
    for u in range(DB):
        need1(u)
        bread1(u, 0); bread1(u, 1)
    kvq = [(acc(mt, 2), acc(mt, 3), sKV, mt * 1024, 16384 + mt * 1024) for mt in range(MT)] + \
          [(acc(2 * b, 4 + dt), acc(2 * b + 1, 4 + dt), sKV2, (2 * b + dt) * 1024, 49152 + (2 * b + dt) * 1024) for b in range(2) for dt in range(2)]
    NREST = NU - UKV
    UFLAG = UKV + cfg.get("f_uf", 28)
    UPOLL = UFLAG + cfg.get("f_up", 14)
    UCHK = min(UPOLL + cfg.get("f_uc", 8), NU - 1)
    UPW = UCHK + cfg.get("f_uw", 14)
    V2_DMA = 209; V_XO = 211; V2_RD = 232; V2_B = 231
    bias = [232, 236, 240, 244]; VONES = 248; VM = 252
    sB2 = sBQ; sBO = sBV
    class Rec:
        def __init__(self): self.l = []
        def __call__(self, x): self.l.append(x)
    su = Rec(); TT = VM
    HO = 0
    su("v_lshrrev_b32 v%d, 4, v%d" % (TT, L))
    su("v_lshlrev_b32 v%d, 11, v%d" % (V2_DMA, TT))
    su("v_lshlrev_b32 v%d, 1, v%d" % (TT, TT))
    su("v_and_b32 v%d, 15, v%d" % (TT + 1, L))
    su("v_xor_b32 v%d, v%d, v%d" % (TT, TT, TT + 1))
    su("v_lshl_add_u32 v%d, v%d, 4, v%d" % (V2_DMA, TT, V2_DMA))
    su("s_and_b32 s%d, s%d, 1" % (t1, sW))
    su("s_lshl_b32 s%d, s%d, 7" % (t1, t1))
    su("v_xor_b32 v%d, s%d, v%d" % (V2_DMA, t1, V2_DMA))
    su("v_add_u32 v%d, %d, v%d" % (V2_DMA + 1, 32768 - 1024, V2_DMA))
    su("v_lshrrev_b32 v%d, 4, v%d" % (TT, L))
    su("v_lshlrev_b32 v%d, 2, v%d" % (TT, TT))
    for e in range(4):
        su("v_add_u32 v%d, %d, v%d" % (TT + 2, e, TT))
        su("v_cmp_le_u32 s[%d:%d], v%d, v%d" % (sMK + 2 * e, sMK + 2 * e + 1, TT + 2, TT + 1))
    su("s_lshl_b32 s%d, s%d, 13" % (t2, sW))
    su("s_lshl_b32 s%d, s%d, 8" % (t1, sN))
    su("s_add_u32 s%d, s%d, s%d" % (t2, t2, t1))
    su("s_lshl_b32 s%d, s%d, 19" % (sBO, sQ))
    su("s_add_u32 s%d, s%d, s%d" % (sBO, sBO, t2))
    su("s_mul_i32 s%d, s%d, %d" % (sB0, sQ, 896 * 2048))
    su("s_add_u32 s%d, s%d, s%d" % (sB0, sB0, t2))
    su("s_mul_i32 s%d, s%d, 7" % (t1, sN))
    su("s_add_u32 s%d, s%d, s%d" % (t1, t1, sJ1))
    su("s_lshl_b32 s%d, s%d, 15" % (t1, t1))
    su("s_add_u32 s%d, s%d, s%d" % (sB2, sB0, t1))
    LIN = cfg.get("f_lin", 1)
    if LIN:
        su("s_sub_u32 s%d, s%d, %d" % (sA, sAE, 28 * 4096))
        su("s_mov_b32 s%d, s%d" % (sAE, sH))
        su("s_add_u32 s%d, s%d, %d" % (sA0, sH, 3 * 4096))
        su("s_mov_b32 s%d, s%d" % (sBW, sB0))
    else:
        su("s_add_u32 s%d, s%d, %d" % (sA, sH, 3 * 4096))
        su("s_sub_u32 s%d, s%d, %d" % (sA0, sAE, 28 * 4096))
    su("s_cmp_eq_u32 s%d, s%d\ns_cselect_b32 s%d, s%d, s%d" % (sA, sAE, sA, sA0, sA))
    su0 = su.l; su = Rec()
    KS2 = 36
    LOC = [(0, 1), (1, 1), (2, 1), (0, 3), (1, 3), (2, 3), (0, 5), (1, 5), (2, 5), (3, 1), (3, 3), (3, 5), (4, 1), (4, 3), (4, 5)]
    NSL = len(LOC)
    def dma2_txt(p):
        sb, so = (R_W2, sB2) if p < 28 else (R_WO, sBO)
        sl, pos = LOC[p % NSL]
        ops = [(0, "s_add_u32 m0, s%d, %d" % (sLB, sl * STAGE + pos * 1024)),
               (1, "buffer_load_dwordx4 v%d, %s, s%d offen lds" % (V2_DMA, s4(sb), so)),
               (1, "buffer_load_dwordx4 v%d, %s, s%d offen offset:1024 lds" % (V2_DMA + 1, s4(sb), so))]
        R_ = lambda n_: (112 * n_ + 16 * (n_ & 1)) * 2048
        if p <= 20 and p % 3 == 2:
            g_ = (p - 2) // 3
            ops.append((0, "s_cmp_le_u32 s%d, %d\ns_cselect_b32 s%d, %d, 0" % (sN, g_, sB0, R_(g_ + 1) - R_(g_))))
            ops.append((0, "s_add_u32 s%d, s%d, s%d" % (sB2, sBW, sB0)))
            if g_: ops.append((0, "s_add_u32 s%d, s%d, %d" % (sB2, sB2, R_(g_))))
        elif p == 23: ops.append((0, "s_add_u32 s%d, s%d, %d" % (sB2, sBW, 96 * 2048)))
        elif 24 <= p < 27: ops.append((0, "s_add_u32 s%d, s%d, %d" % (sB2, sB2, 224 * 2048)))
        elif p != 27 and p != 35: ops.append((0, "s_add_u32 s%d, s%d, 65536" % (so, so)))
        return ops
    def dma2_ops(p):
        return [(k, (lambda x=x: a.vmem(x, ("B2", p))) if k else (lambda x=x: a(x))) for k, x in dma2_txt(p)]
    def hole_ops(ps):
        o = []
        for p in ps:
            for k, x in dma2_txt(p):
                if k: o += [("m", lambda x=x, p=p: a.vmem(x, ("B2", p)))] + [None] * cfg.get("f_hosp", 3)
                else: o += [x] + ([None] if "m0" in x else [])
        return o
    su("s_lshl_b32 s%d, s%d, 2" % (t1, sI))
    su("s_add_u32 s%d, s%d, s%d" % (t1, t1, sW))
    for gq in range(4):
        su("s_cmp_lt_u32 s%d, %d\ns_cselect_b32 s%d, 0x%x, 0" % (t1, 4 - gq, t2, f2u(-1e30)))
        for e in range(4): su("v_mov_b32 v%d, s%d" % (bias[gq] + e, t2))
    for e in range(4): su("v_mov_b32 v%d, 0x3f803f80" % (VONES + e))
    su("v_lshrrev_b32 v%d, 2, v%d" % (TT, L))
    su("v_and_b32 v%d, 7, v%d" % (TT + 2, TT))
    su("v_and_b32 v%d, 3, v%d" % (TT, TT))
    su("v_lshlrev_b32 v%d, 8, v%d" % (TT, TT))
    su("v_lshrrev_b32 v%d, 4, v%d" % (TT + 1, L))
    su("v_mul_u32_u24 v%d, %d, v%d" % (TT + 1, REG, TT + 1))
    su("v_add_u32 v%d, v%d, v%d" % (TT, TT, TT + 1))
    su("v_and_b32 v%d, 3, v%d" % (TT + 1, L))
    su("v_lshl_add_u32 v%d, v%d, 3, v%d" % (TT, TT + 1, TT))
    su("v_lshl_add_u32 v%d, v%d, 5, v%d" % (V2_B, TT + 2, TT))
    su("s_lshl_b32 s%d, s%d, 6" % (t1, sQ))
    su("s_xor_b32 s%d, s%d, 192" % (t1, t1))
    su("v_xor_b32 v%d, s%d, v%d" % (V2_B, t1, V2_B))
    su("v_mov_b32 v%d, 0xffff" % TT)
    su("v_mov_b32 v%d, 0xffff0000" % (TT + 1))
    su("v_cndmask_b32 v%d, 0, v%d, s[%d:%d]" % (VM + 2, TT, sMK, sMK + 1))
    su("v_cndmask_b32 v%d, 0, v%d, s[%d:%d]" % (VM + 3, TT, sMK + 4, sMK + 5))
    su("v_cndmask_b32 v%d, 0, v%d, s[%d:%d]" % (TT, TT + 1, sMK + 2, sMK + 3))
    su("v_cndmask_b32 v%d, 0, v%d, s[%d:%d]" % (TT + 1, TT + 1, sMK + 6, sMK + 7))
    su("v_or_b32 v%d, v%d, v%d" % (VM + 2, VM + 2, TT))
    su("v_or_b32 v%d, v%d, v%d" % (VM + 3, VM + 3, TT + 1))
    SPF = cfg.get("f_spf", 0)
    if SPF:
        su("s_lshr_b32 s%d, s2, 3" % t1)
        su("s_lshl_b32 s%d, s%d, 1" % (t1, t1))
        su("s_and_b32 s%d, s2, 1" % t2)
        su("s_add_u32 s%d, s%d, s%d" % (t1, t1, t2))
        su("s_lshl_b32 s%d, s%d, 2" % (t1, t1))
        su("s_add_u32 s%d, s%d, s%d" % (t1, t1, sW))
        su("s_lshl_b32 s%d, s%d, 7" % (t1, t1))
        su("s_mul_i32 s%d, s%d, %d" % (t2, sQ, 14336 * 128))
        su("s_add_u32 s%d, s%d, s%d" % (t2, t2, t1))
        su("s_add_u32 s%d, s%d, s%d\ns_addc_u32 s%d, s%d, 0" % (P_W2, P_W2, t2, P_W2 + 1, P_W2 + 1))
        su("s_add_u32 s%d, s%d, %d\ns_addc_u32 s%d, s%d, 0" % (P_WQ, P_W2, 28 * 32768, P_WQ + 1, P_W2 + 1))
        su("s_lshl_b32 s%d, s%d, 19" % (t2, sQ))
        su("s_add_u32 s%d, s%d, s%d" % (t2, t2, t1))
        su("s_add_u32 s%d, s%d, s%d\ns_addc_u32 s%d, s%d, 0" % (P_WO, P_WO, t2, P_WO + 1, P_WO + 1))
    V_T128 = V_XO
    TCN = cfg.get("f_tc", 0)
    su("v_lshlrev_b32 v%d, 3, v%d" % (211, L))
    if TCN:
        su("s_lshr_b32 s%d, s2, 3" % t1)
        su("s_lshl_b32 s%d, s%d, 1" % (t1, t1))
        su("s_and_b32 s%d, s2, 1" % t2)
        su("s_add_u32 s%d, s%d, s%d" % (t1, t1, t2))
        su("s_lshl_b32 s%d, s%d, 2" % (t1, t1))
        su("s_add_u32 s%d, s%d, s%d" % (t1, t1, sW))
        su("s_lshl_b32 s%d, s%d, 7" % (t1, t1))
        su("s_mul_i32 s%d, s%d, %d" % (sCLS, sQ, 14336 * 128))
        su("s_add_u32 s%d, s%d, s%d" % (sCLS, sCLS, t1))
        su("s_lshl_b32 s%d, s%d, 19" % (t3, sQ))
        su("s_add_u32 s%d, s%d, s%d" % (t3, t3, t1))
    def selftouch(so, half):
        if half: a("s_mov_b32 exec_hi, 0")
        a.vmem("buffer_load_dword a%d, v%d, %s, s%d offen sc1" % (A_PD, V_T128, s4(R_WS), so), "T")
        if half: a("s_mov_b32 exec_hi, -1")
    HK = cfg.get("f_hk", 0)
    if HK:
        assert RA == 12 and D1 == 8 and BR + RB * 4 <= 232 and UPW < NU
        kreg = lambda kt: 128 + 4 * kt if kt < 16 else 232 + 4 * (kt - 16)
        VF = 0
    else:
        kreg = lambda kt: 4 * kt
        VF = 80
    def kread(kt): a.lds("ds_read_b128 %s, v%d offset:%d" % (r4("a", kreg(kt)), V_KVW, kt * 1024), ("k", kt))
    def kpw(x):
        c0, c1, so, go, lo = kvq[x]
        a.wait(vm=("KP", x))
        a.lds("ds_write_b128 v%d, %s offset:%d" % (V_KVW, r4("v", c1), lo - 16384), "kvw")
    def codepf(vreg=None, mask=15):
        if vreg is None: vreg = V_PW
        lab = a.newlabel("F_pc")
        a("s_getpc_b64 s[%d:%d]" % (R_WQ, R_WQ + 1))
        a.label(lab)
        a("s_and_b32 s%d, s%d, 0xffff" % (R_WQ + 1, R_WQ + 1))
        a("s_mov_b32 s%d, CODE_END - %s" % (R_WQ + 2, lab))
        a("s_lshr_b32 s%d, s2, 3" % t0)
        a("s_lshl_b32 s%d, s%d, 2" % (t0, t0))
        a("s_add_u32 s%d, s%d, s%d" % (t0, t0, sW))
        a("s_lshl_b32 s%d, s%d, 9" % (t0, t0))
        a("s_mov_b64 exec, 0x%x" % mask)
        a.vmem("buffer_load_dword a%d, v%d, %s, s%d offen" % (A_PD, vreg, s4(R_WQ), t0), "T")
        a("s_mov_b64 exec, -1")
    seenA = set()
    ramp = (RA - 1 - LA) / float(S1 * NT)
    WM = cfg.get("f_wm", 200) / 100.0
    W0 = cfg.get("f_w0", 100) / 100.0
    UEND = S1 * NT + cfg.get("f_uend", 8)
    wts = [0.0] + [W0 * sum(1 for o in order if (o[1] if o[0] == "B" else o[1] // 2) == g) / 15.0 for g in (1, 2, 3)] + [WM if g % 4 == 0 else 1.0 for g in range(4, 16)]
    ipos = {}
    if cfg.get("f_lw", 0) == 2:
        no = []
        for g in range(16):
            bl = [o for o in order if o[0] == "B" and o[1] == g]; al = [o for o in order if o[0] == "A" and o[1] // 2 == g]
            if len(bl) == 7: mix = [bl[0], al[0], al[1], bl[1], al[2], al[3], bl[2], al[4], bl[3], bl[4], bl[5], bl[6], al[5], al[6], al[7]]
            else: mix = bl + al
            for k, o in enumerate(mix): ipos[o] = k
            no += mix
        order[:] = no
    noB = set(g for g in range(16) if not any(o[0] == "B" and o[1] == g for o in order))
    tau = [0.0]
    for g in range(16): tau.append(tau[-1] + wts[g])
    tau = [x * UEND / tau[-1] for x in tau]
    def due(op):
        g = op[1] if op[0] == "B" else op[1] // 2
        idx = op[2] if op[0] == "B" else 7 + (op[1] % 2) * 4 + op[2]
        if cfg.get("f_wb", 0) and op[0] == "B" and op[2] > 3: idx = 3
        if g in noB: return tau[g] + (tau[g + 1] - tau[g]) * (idx - 7) / 8.0
        if cfg.get("f_lw", 0) == 1:
            lw = [64, 64, 64, 56, 36, 44, 24] + [32] * 8
            return tau[g] + (tau[g + 1] - tau[g]) * sum(lw[:idx]) / float(sum(lw))
        if cfg.get("f_lw", 0) == 2: return tau[g] + (tau[g + 1] - tau[g]) * ipos[op] / 15.0
        return tau[g] + (tau[g + 1] - tau[g]) * idx / 15.0
    DF = cfg.get("f_df", 0); PZ0 = cfg.get("f_pz0", 4)
    THR1 = cfg.get("f_thr1", 63)
    side = G.side
    def prewait1(u):
        u += gi[u][1] - 1
        s, t = units[u]
        if s not in seenA:
            flush1(("A", s)); seenA.add(s)
            r = a.wait(vm=("A", s), lg=("b", u))
        else: r = a.wait(lg=("b", u))
        stt["waited"] = u
        return r
    prewait1(0)
    for u in range(NU):
        u0, C_, gn = gi[u]; kk = u - u0
        s, t = divmod(u, NT) if u < S1 * NT else units[u]
        un = u + DB
        if un < NU: need1(un)
        if u in ((S1 - 4) * NT + 2, (S1 - 2) * NT + 2, S1 * NT + 2): barrier()
        elif cfg.get("f_xb", 0) and u < S1 * NT and u % (2 * NT) == 0 and u > 0: barrier()
        if S1 // 2 <= 12 and u == last_unit_of_stage[12] + 2: barrier()
        if pfq and u % 4 == 2 and pfq[0] - 1 <= (u + PFA) / NT + LA + ramp * (u + PFA): touch(pfq.pop(0))
        if PW & 4:
            for k in range(3):
                if u == S1 * NT + cfg.get("f_px0", 4) + k * cfg.get("f_pxd", 16): touchx(k)
        if PW == 1 and u == UKV - PW0: touchw(None)
        if PW & 3 == 2 and u < S1 * NT and t == 8 and PW0 <= s < PW0 + 8: (toucht if HOT else touchw)((s + 4) & 7)
        PW1 = cfg.get("f_pw1", 4)
        if ASY and not HOT and PW & 3 == 2 and u < S1 * NT and t == 8 and PW1 <= s < PW1 + 8: touchw((s + 4 + PW0 - PW1) & 7, 1)
        if u == 16 * NT: stampr("g1half")
        if u < S1 * NT and t == 0: stampr("g1s%d" % s)
        if u == S1 * NT: stampr("g1tail")
        if u == UKV:
            stampr("g1kv")
            if cfg.get("f_cpf", 1): codepf()
        if DF and u == 3 * NT:
            side += ["v_mov_b32 v%d, -1" % (T + e) for e in range(4)]
            side += ["s_lshl_b32 s%d, s2, 2" % t3, "s_add_u32 s%d, s%d, s%d" % (t3, t3, sW), "s_mul_i32 s%d, s%d, 12288" % (t3, t3),
                     "s_add_u32 s%d, s%d, 0x%x" % (t3, t3, WS_XC),
                     "v_xor_b32 v%d, 3, v%d" % (T + 4, L), "v_lshlrev_b32 v%d, 1, v%d" % (T + 4, T + 4), "v_xor_b32 v%d, s2, v%d" % (T + 4, T + 4),
                     "v_lshlrev_b32 v%d, 9, v%d" % (T + 4, T + 4), "v_lshl_add_u32 v%d, v%d, 2, v%d" % (T + 4, L, T + 4)]
        if DF and u < S1 * NT and t == 4 and PZ0 <= s < PZ0 + 12:
            k_ = s - PZ0
            side.append(("m", lambda k_=k_: a.vmem("buffer_store_dwordx4 %s, v%d, %s, s%d offen offset:%d sc1" % (r4("v", T), V_L16, s4(R_WS), t3, (k_ % 4) * 1024), "PZ")))
            if k_ % 4 == 3: side.append("s_add_u32 s%d, s%d, 4096" % (t3, t3))
        if DF and u == (PZ0 + 14) * NT + 5:
            assert a.vm.count("PZ") == 12
            a.wait(vm="PZ")
            a("s_lshl_b32 s%d, s%d, 7" % (t3, sW))
            a("s_add_u32 s%d, s%d, 0x%x" % (t3, t3, WS_FL))
            a("s_mov_b64 exec, 7")
            a.vmem("buffer_store_dword v%d, v%d, %s, s%d offen sc1" % (V_ONE, T + 4, s4(R_WS), t3), "RF")
            a("s_mov_b64 exec, -1")
        if u == cfg.get("f_tlb", -1):
            sh = cfg.get("f_tlbs", 21)
            a("v_lshlrev_b32 v%d, %d, v%d" % (V_P2, sh, L))
            a.vmem("buffer_load_dword a%d, v%d, %s, 0 offen" % (A_PD, V_P2, s4(R_WS)), "T")
            a.vmem("buffer_load_dword a%d, v%d, %s, 0 offen" % (A_PD, V_P2, s4(R_W2)), "T")
            a.vmem("buffer_load_dword a%d, v%d, %s, 0 offen" % (A_PD, V_P2, s4(R_WO)), "T")
            a("s_mov_b64 exec, %d" % ((1 << ((S * D * 2) >> sh)) - 1))
            a.vmem("global_load_dword a%d, v%d, s[%d:%d]" % (A_PD, V_P2, P_OUT, P_OUT + 1), "T")
            a("s_mov_b64 exec, -1")
        if FLN and u == 20 * NT + 3:
            a("v_and_b32 v%d, 7, v%d" % (V_P0, L))
            a("v_lshlrev_b32 v%d, 5, v%d" % (V_P0, V_P0))
            a.vmem("global_load_dword v%d, v%d, s[100:101] sc1" % (V_POLL, V_P0), "CN")
        if FLN and u == 22 * NT + 3:
            a.wait(vm="CN")
            l0 = a.newlabel("F_cn"); l1 = a.newlabel("F_ok")
            a("s_mov_b32 s%d, 0x%x" % (sSP, SPIN))
            a.label(l0)
            a("v_cmp_le_u32 vcc, 32, v%d" % V_POLL)
            a("s_cmp_eq_u32 vcc_lo, -1")
            a("s_cbranch_scc1 %s" % l1)
            a("global_load_dword v%d, v%d, s[100:101] sc1" % (V_POLL, V_P0))
            a("s_sub_u32 s%d, s%d, 1" % (sSP, sSP))
            a("s_waitcnt vmcnt(0)")
            a("s_cbranch_scc0 %s" % l0)
            a.label(l1)
        if u == UFLAG:
            stampr("g1flag0")
            assert a.vm.count("KV") == 8
            a.wait(vm="KV")
            stampr("g1flag1")
            a.vmem("buffer_store_dword v%d, v%d, %s, s%d offen sc1" % (V_ONE, V_FL0, s4(R_WS), sFK), "FK")
        if u == UPOLL: poll_issue("PK")
        if u == UCHK:
            a.wait(vm="PK")
            spin(1 << 3, skip_if_i0=True)
            stampr("g1chk")
            if HK:
                def kd(so, k, chk):
                    if chk: assert 12 in stt["free"]
                    a.vmem("buffer_load_dwordx4 v%d, %s, s%d offen offset:%d sc1 lds" % (V_L16, s4(R_WS), so, k * 1024), "KD")
                new_ = ["s_lshl_b32 s%d, s%d, 12\ns_add_u32 m0, s%d, %d" % (t0, sW, t0, KVB + 32768), None]
                new_ += [("m", lambda k=k: kd(sKP2, k, False)) for k in range(4)]
                new_ += ["s_sub_u32 m0, m0, 32768", None]
                new_ += [("m", lambda k=k: kd(sKP, k, True)) for k in range(4)]
                side[:0] = new_
            else:
              for x, (c0, c1, so, go, lo) in enumerate(kvq):
                def f(c1=c1, so=(sKP if x < 4 else sKP2), go=go, x=x):
                    a.vmem("buffer_load_dwordx4 %s, v%d, %s, s%d offen offset:%d sc1" % (r4("v", c1), V_L16, s4(R_WS), so, go), ("KP", x))
                side.insert(x, ("m", f))
        if HK and u == UPW:
            assert a.vm.count("KD") == 8 and a.lg.count("kvw") == 8
            a.wait(vm="KD", lg="kvw"); barrier()
            stampr("g1kb")
            side[:0] = [("v", lambda kt=kt: kread(kt)) for kt in range(20)]
        nxt = None
        if order and can1(order[0]) and len(G.sal) <= 1 and due(order[0]) <= u: nxt = order.pop(0)
        if nxt and cfg.get("verbose", 0) > 1: print("issue", u, nxt, "due %.0f" % due(nxt), file=sys.stderr)
        if FLN and HT & 2:
            for b in (1, 2, 3):
                if u == max(0, int(tau[4 * b]) - cfg.get("f_hta", 0)): hottouch(b)
        if PW & 32 and nxt:
            tk = cfg.get("f_tk", 0)
            key = ("B", nxt[1], tk) if tk < 7 else ("A", nxt[1], (tk - 7) % 4)
            g_ = nxt[1] if nxt[0] == "B" else nxt[1] // 2
            if nxt == key and g_ in (4, 8, 12) and (nxt[0] == "B" or nxt[1] % 2 == (tk - 7) // 4): touchp(g_ // 4 - 1)
        for mt in range(MT):
            m_, k_ = divmod(kk * MT + mt, C_)
            if cfg.get("f_kz", 1) and m_ % 2 == 1 and units[u0][0] > 0: k_ = C_ - 1 - k_
            mz = m_ if gn % 2 == 0 else MT - 1 - m_
            s_, t_ = units[u0 + k_]
            bf = r4("a", BR + ((u0 + k_) % RB) * 4)
            af = r4("a", AR + (s_ % RA) * 16 + mz * 4)
            c = r4("v", acc(mz, t_))
            src = "0" if s_ == 0 else c
            if t_ in (4, 5): a("%s %s, %s, %s, %s" % (MF, c, af, bf, src))
            else:            a("%s %s, %s, %s, %s" % (MF, c, bf, af, src))
            rd = (lambda mt=mt: bread1(un, mt)) if (mt < 2 and un < NU) else None
            if mt == 0: G.gap(fixed=rd)
            elif mt == 1:
                if nxt and nxt[0] == "B": G.gap(first=lambda: (dma1(nxt[1], nxt[2], 0), True)[1], fixed=rd)
                else: G.gap(fixed=rd)
            elif mt == 2:
                if nxt:
                    assert not G.sal
                    G.gap(first=(lambda: a.throttle(THR1)), mem=((lambda: aload1(nxt[1], nxt[2])) if nxt[0] == "A" else (lambda: dma1(nxt[1], nxt[2], 1))))
                else: G.gap()
            else:
                if kk == C_ - 1:
                    stt["issued"] = u
                    G.gap(first=(lambda: prewait1(u + 1)) if u + 1 < NU else None)
                else: G.gap()
        if u == UKV - 1:
            assert 11 in stt["free"], stt
            side += [None] * 5
            for (c0, c1, so, go, lo) in kvq:
                side += pack(c0, c1)
                def f(c0=c0, so=so, go=go):
                    a.vmem("buffer_store_dwordx4 %s, v%d, %s, s%d offen offset:%d sc1" % (r4("v", c0), V_L16, s4(R_WS), so, go), "KV")
                side.append(("m", f))
            for (c0, c1, so, go, lo) in kvq:
                def f(c0=c0, lo=lo):
                    a.lds("ds_write_b128 v%d, %s offset:%d" % (V_KVW, r4("v", c0), lo), "kvw")
                side += [("x", f), None]
            assert not order and stt.get("su0")
            side += su.l
        if u >= S1 * NT and not order and not G.sal and not stt.get("su0"):
            side += su0; stt["su0"] = True
        if HO and u == UKV + cfg.get("f_ho1", 30):
            barrier(); side[:0] = hole_ops(range(0, min(3, HO)))
        if HO > 3 and u == UKV + cfg.get("f_ho2", 56):
            assert u > UH01 and a.vm.count(("B2", 2)) == 2 and not any(isinstance(x, str) and ("s%d, s%d" % (sB2, sBE)) in x for x in side)
            barrier(); side[:0] = hole_ops(range(3, HO))
        if u == UPW and not HK:
            assert 12 in stt["free"]
            side[:0] = [y for x in range(8) for y in (("x", lambda x=x: kpw(x)), None)]
        if u == UH01 - 1:
            side += [None] * 5
            for p in range(2):
                for mt in range(MT):
                    side += pack(acc(mt, 6 + 2 * p), acc(mt, 7 + 2 * p), relu=True)
                    if p * 4 + mt < cfg.get("f_hearly", 8):
                        side.append(("m", lambda p=p, mt=mt: hstore(p, mt)))
                        side += [None] * cfg.get("f_hsp", 8)
        if u == UCHK:
            assert UCHK >= UH01
            for x in range(cfg.get("f_hearly", 8), 8):
                side += [("m", lambda x=x: hstore(x // 4, x % 4))] + [None] * cfg.get("f_hsp2", 6)
    if cfg.get("verbose"): print("G1 side left", len([x for x in side if x is not None]), file=sys.stderr)
    G.drain()
    assert not order
    assert 12 in stt["free"]
    stampr("g1end")

    va = []
    for mt in range(MT): va += pack(acc(mt, 10), acc(mt, 11), relu=True)
    if HK:
        stampr("attbeg")
        for _ in range(8): a(va.pop(0))
    else:
        if UPW >= NU:
            for x in range(8): kpw(x)
        a.wait(lg="kvw")
        a("s_barrier")
        stampr("attbeg")
        for kt in range(20):
            kread(kt)
            a(va.pop(0))
    for mt in range(MT):
        for t in (0, 1):
            for e2 in range(2):
                c = acc(mt, t) + 2 * e2
                a("v_pk_mul_f32 v[%d:%d], v[%d:%d], s[%d:%d] op_sel_hi:[1,0]" % (c, c + 1, c, c + 1, sSC, sSC + 1))
        if mt == 0:
            for x in pack(acc(mt, 0), acc(mt, 1)): a(x)
    STCH = cfg.get("f_st", 0)
    a.vm = [("H01" if t == "H" else t) for t in a.vm]
    stq = [(cfg.get("f_st0", 200), sH), (cfg.get("f_st1", 380), sH + 1)] if STCH & 1 else []
    hstore(2, 0)
    for mt in range(1, MT): va += pack(acc(mt, 0), acc(mt, 1))
    L4 = cfg.get("f_l4", 1)
    if L4:
        assert cfg.get("f_ll", 1)
        for mt in (0, 2): va += pack(acc(mt, 12), acc(mt + 1, 12), relu=True)
    else:
        for mt in range(MT): va += pack(acc(mt, 12), None, relu=True)
    free = [acc(mt, t) for t in (2, 3, 4, 5, 7, 9) for mt in range(MT)] + [212, 216, 220] + [acc(mt, t) for t in (11, 1) for mt in range(MT)]

    C2 = cfg.get("f_c2", 2)
    C2T = cfg.get("f_c2t", 4); C2S = cfg.get("f_c2s", 5)
    CM2 = max(C2, C2T, 3)
    RA2 = cfg.get("f_ra2", 13); DB2 = cfg.get("f_db2", CM2 + 2); RB2 = DB2 + CM2
    assert DB2 >= CM2
    BR2 = RA2 * 16
    assert BR2 + RB2 * 4 <= 252
    def aslot(p): return ((p - 3 + 10) % RA2) * 16
    vl8 = [None]
    def aload2(p, mt):
        if 24 <= p < 28 and L4:
            a.vmem("buffer_load_dwordx4 %s, v%d, %s, s%d offen offset:%d sc1" % (r4("a", aslot(p) + (0, 8, 4, 12)[mt]), V_L16, s4(R_WS), sA, mt * 1024), ("A2", p))
            last = mt == MT - 1
        elif 24 <= p < 28:
            for hh in range(2):
                a.vmem("buffer_load_dwordx2 %s, v%d, %s, s%d offen offset:%d sc1" % (r2("a", aslot(p) + mt * 4 + hh * 2), vl8[0], s4(R_WS), sA, hh * 2048 + mt * 512), ("A2", p))
            last = mt == MT - 1
        else:
            a.vmem("buffer_load_dwordx4 %s, v%d, %s, s%d offen offset:%d sc1" % (r4("a", aslot(p) + mt * 4), V_L16, s4(R_WS), sA, mt * 1024), ("A2", p))
            last = mt == MT - 1
        if last and p < 35:
            G.sal.append("s_add_u32 s%d, s%d, 4096" % (sA, sA))
            if p <= 23 and p % 3 == 2: G.sal.append("s_cmp_eq_u32 s%d, s%d\ns_cselect_b32 s%d, s%d, s%d" % (sA, sAE, sA, sA0, sA))
    LL = cfg.get("f_ll", 1)
    hst = [(2, 1), (2, 2), (2, 3)] + ([] if LL else [(3, mt) for mt in range(MT)])
    lst = [(3, mt) for mt in range(MT)] if LL else []
    NPRE = cfg.get("f_npre", 10)
    assert NPRE >= 3
    pre = []
    assert HO <= NPRE <= NSL
    for p in range(HO, NPRE): pre += [(p,) + op for op in dma2_ops(p)]

    S_ = {}; P_ = {}; O_ = {}
    def s_mfma(qa, kt):
        q = free.pop(0); S_[(qa, kt)] = q
        a.wait(lg=("k", kt))
        c = r4("v", bias[kt // 4]) if kt < 16 else "0"
        a("%s %s, %s, %s, %s" % (MF, r4("v", q), r4("a", kreg(kt)), r4("v", acc(qa, 0)), c))
    def pv_list(qa):
        b0 = qa // 2
        out = []
        for b in range(b0, b0 + 9):
            for z in range(3):
                def f(b=b, z=z):
                    if b == b0: O_[(qa, z)] = free.pop(0)
                    o = r4("v", O_[(qa, z)])
                    if z < 2:
                        a.wait(lg=("v", 2 * b + z)); A = r4("a", VF + (2 * b + z) * 4)
                    else: A = r4("v", VONES)
                    a("%s %s, %s, %s, %s" % (MF, o, A, r4("v", P_[(qa, b)]), "0" if b == b0 else o))
                    if z == 2: free.append(P_[(qa, b)])
                out.append(f)
        return out
    def fin_list(qa):
        o0, o1, sm = O_[(qa, 0)], O_[(qa, 1)], O_[(qa, 2)]
        ops = ["v_rcp_f32 v%d, v%d" % (sm, sm), "s_nop 0"]
        for o in (o0, o1):
            for e in range(4): ops.append("v_mul_f32 v%d, v%d, v%d" % (o + e, o + e, sm))
        ops += pack(o0, o1)
        def f():
            a.vmem("buffer_store_dwordx4 %s, v%d, %s, s%d offen offset:%d %s" % (r4("v", o0), V_L16, s4(R_WS), sO, qa * 1024, HF), "O")
            free.extend([o1, sm]); late_free.append(o0)
        ops.append(f)
        return ops
    late_free = []
    pready = set()
    def soft_list(qa):
        k0, k1 = qa, qa + 16
        ops = []
        f_, l_ = S_[(qa, k0)], S_[(qa, k1)]
        odd = qa & 1
        g_, z_ = (l_, f_) if odd else (f_, l_)
        o_ = 2 * odd
        for e in range(4):
            ops.append((1, "v_cndmask_b32 v%d, v%d, v%d, s[%d:%d]" % (g_ + e, f_ + e, l_ + e, sMK + 2 * e, sMK + 2 * e + 1)))
        quads = [S_[(qa, kt)] for kt in range(k0 + 1, k1)] + [g_]
        vals = [q + e for q in quads for e in range(4)]
        m0, m1 = VM, VM + 1
        ops.append((1, "v_max3_f32 v%d, v%d, v%d, v%d" % (m0, vals[0], vals[1], vals[2])))
        ops.append((1, "v_max3_f32 v%d, v%d, v%d, v%d" % (m1, vals[3], vals[4], vals[5])))
        ops.insert(2, (0, "SLOT")); ops.insert(5, (0, "SLOT")); ops.append((0, "SLOT"))
        for x in range(6, 62, 4):
            ops.append((1, "v_max3_f32 v%d, v%d, v%d, v%d" % (m0, m0, vals[x], vals[x + 1])))
            ops.append((1, "v_max3_f32 v%d, v%d, v%d, v%d" % (m1, m1, vals[x + 2], vals[x + 3])))
            ops.append((0, "SLOT"))
        ops.append((1, "v_max3_f32 v%d, v%d, v%d, v%d" % (m0, m0, vals[62], vals[63])))
        ops.append((1, "v_max_f32 v%d, v%d, v%d" % (m0, m0, m1)))
        ops.append((1, "v_mov_b32 v%d, v%d" % (m1, m0)))
        ops.append((0, "SLOT2"))
        ops.append((1, "v_permlane16_swap_b32 v%d, v%d" % (m0, m1)))
        ops.append((1, "v_max_f32 v%d, v%d, v%d" % (m0, m0, m1)))
        ops.append((1, "v_mov_b32 v%d, v%d" % (m1, m0)))
        ops.append((1, "v_mov_b32 v%d, 0" % (z_ + 2 - o_)))
        ops.append((1, "v_mov_b32 v%d, 0" % (z_ + 3 - o_)))
        ops.append((1, "v_permlane32_swap_b32 v%d, v%d" % (m0, m1)))
        ops.append((1, "v_max_f32 v%d, v%d, v%d" % (m0, m0, m1)))
        def subexp(q):
            r = []
            for e2 in range(2):
                r.append((1, "v_pk_add_f32 v[%d:%d], v[%d:%d], v[%d:%d] op_sel_hi:[1,0] neg_lo:[0,1] neg_hi:[0,1]" % (q + 2 * e2, q + 2 * e2 + 1, q + 2 * e2, q + 2 * e2 + 1, m0, m0 + 1)))
            for e in range(4):
                if e < 2: r.append((0, "SLOT"))
                r.append((2, "v_exp_f32 v%d, v%d" % (q + e, q + e)))
            r.append((0, "MEM"))
            return r
        ops += subexp(g_)
        ops += subexp(S_[(qa, k0 + 1)])
        cv = ["v_cvt_pk_bf16_f32 v%d, v%d, v%d" % (g_ + o_ + x, g_ + 2 * x, g_ + 2 * x + 1) for x in range(2)]
        if odd: cv.reverse()
        ops += [(1, x) for x in cv]
        for x in range(2):
            if odd: ops.append((1, "v_bfi_b32 v%d, v%d, 0, v%d" % (z_ + o_ + x, VM + 2 + x, g_ + o_ + x)))
            else:   ops.append((1, "v_and_b32 v%d, v%d, v%d" % (z_ + o_ + x, VM + 2 + x, g_ + o_ + x)))
        for x in range(2): ops.append((1, "v_xor_b32 v%d, v%d, v%d" % (g_ + o_ + x, g_ + o_ + x, z_ + o_ + x)))
        done = {k0, k0 + 1, k1}
        b0 = qa // 2
        pend_pack = None
        for b in range(b0, b0 + 9):
            for kt in (2 * b, 2 * b + 1):
                if k0 <= kt <= k1 and kt not in done:
                    ops += subexp(S_[(qa, kt)]); done.add(kt)
            if pend_pack: ops += pend_pack
            lo, hi = S_.get((qa, 2 * b)), S_.get((qa, 2 * b + 1))
            pk = []
            if lo is None or hi is None: d = z_
            elif g_ in (lo, hi):
                d = g_; ot = hi if lo == g_ else lo
                pk += [(1, "v_cvt_pk_bf16_f32 v%d, v%d, v%d" % (d + 2 - o_ + x, ot + 2 * x, ot + 2 * x + 1)) for x in range(2)]
                pk.append((0, (lambda ot=ot: free.append(ot))))
            else:
                d = lo
                pk += [(1, x) for x in pack(lo, hi)]
                pk.append((0, (lambda hi=hi: free.append(hi))))
            P_[(qa, b)] = d
            pk.append((0, (lambda b=b: pready.add((qa, b)))))
            pend_pack = pk
        ops += pend_pack
        return ops
    def run(op):
        if isinstance(op, str): a(op)
        else: op()
    vr = list(range(20))
    def vread():
        f = vr.pop(0)
        a.lds("ds_read_b128 %s, v%d offset:%d" % (r4("a", VF + 4 * f), V_KVW, 32768 + f * 1024), ("v", f))
    for kt in range(17):
        s_mfma(0, kt)
        vread(); a(va.pop(0))
    while vr:
        vread(); a(va.pop(0))
    hstore(*hst.pop(0))
    while va: a(va.pop(0))
    HGAP = cfg.get("f_hgap", 30); PGAP = cfg.get("f_pgap", 24)
    HFL = cfg.get("f_hfl", 400)
    HPO = cfg.get("f_hpo", 760)
    HCK = cfg.get("f_hck", 860)
    hok = False
    ordA = [("A2", p, mt) for p in range(3, KS2) for mt in range(MT)]
    napre = cfg.get("f_apre", 8)
    pv3 = pv_list(3); pv3b = [1 + x // 3 for x in range(27)]
    tq = [(cfg.get("f_tb0", 200) + k * cfg.get("f_tbd", 150), k) for k in range(cfg.get("f_tbn", 0))]
    tcq = []
    if TCN:
        k0 = cfg.get("f_tck", 6); nr = cfg.get("f_tcr", 2)
        ed = [k0 + (56 - k0) * x // nr for x in range(nr + 1)]
        rr = [(ed[x], ed[x + 1]) for x in range(nr)] + [(56, 72)]
        tcq = [(cfg.get("f_tc0", 540) + x * cfg.get("f_tcd", 130), lo_, hi_) for x, (lo_, hi_) in enumerate(rr)]
    sq = []
    if SPF:
        for k in range(cfg.get("f_spf0", 6), 56): sq.append("s_load_dword s%d, s[%d:%d], 0x%x" % (t3, (P_W2 if k < 28 else P_WQ), (P_W2 if k < 28 else P_WQ) + 1, (k % 28) * 32768))
        for k in range(16): sq.append("s_load_dword s%d, s[%d:%d], 0x%x" % (t3, P_WO, P_WO + 1, k * 32768))
    next_s = 0; SGAP = cfg.get("f_sgap", 8)
    kvbar = False; hflag = False; hpoll = False
    cost_total = 0; next_h = HGAP; next_p = 0
    for qa in range(4):
        stampr("att%d" % qa)
        ops = soft_list(qa)
        tot = sum(c for c, _ in ops)
        pv = pv_list(qa - 1) if qa > 0 else []
        fin = None
        sm = [(qa + 1, kt) for kt in range(qa + 1, qa + 18)] if qa < 3 else []
        c = 0
        pv_done_at = None
        for (cost, op) in ops:
            if op == "SLOT2":
                if pv:
                    pv.pop(0)(); a("s_nop 0")
                    if not pv: pv_done_at = c
                else: a("s_nop 1")
                continue
            if op == "SLOT":
                did = False
                if pv:
                    pv.pop(0)(); did = True
                    if not pv: pv_done_at = c
                elif sm and len(free) > 0 and c >= tot * 0.2:
                    s_mfma(*sm.pop(0)); did = True
                elif qa == 3 and pv3 and (3, pv3b[0]) in pready:
                    pv3.pop(0)(); pv3b.pop(0); did = True
                if did and G.sal:
                    a(G.sal.pop(0)); continue
                if did and pre and pre[0][1] == 0 and (kvbar or (pre[0][0] < 9 and not HK)): pre.pop(0)[2]()
                elif sq and kvbar and cost_total >= next_s and (did or cost_total >= next_s + SGAP):
                    a(sq.pop(0)); next_s = cost_total + SGAP
                    if not sq and cfg.get("verbose"): print("scalar prefetch done at", cost_total, file=sys.stderr)
                continue
            if op == "MEM":
                if qa > 0 and fin is None and pv_done_at is not None and c >= pv_done_at + 18:
                    fin = fin_list(qa - 1)
                    for x in fin: run(x)
                elif hst and cost_total >= next_h:
                    hstore(*hst.pop(0)); next_h = cost_total + HGAP
                elif stq and cost_total >= stq[0][0]:
                    a.wait(vm="H01"); selftouch(stq.pop(0)[1], True)
                elif tcq and cost_total >= tcq[0][0]:
                    _, lo_, hi_ = tcq.pop(0)
                    if lo_ < 56:
                        m_ = ((1 << hi_) - 1) ^ ((1 << lo_) - 1)
                        a("s_mov_b32 exec_lo, 0x%x" % (m_ & 0xffffffff))
                        a("s_mov_b32 exec_hi, 0x%x" % (m_ >> 32))
                        a.vmem("buffer_load_dword a%d, v%d, %s, s%d offen" % (A_PD, V_T128, s4(R_W2), sCLS), "T")
                    else:
                        a("s_mov_b64 exec, 0xffff")
                        a.vmem("buffer_load_dword a%d, v%d, %s, s%d offen" % (A_PD, V_T128, s4(R_WO), t3), "T")
                    a("s_mov_b64 exec, -1")
                elif not hst and tq and cost_total >= tq[0][0]:
                    k_ = tq.pop(0)[1]
                    a("s_lshr_b32 s%d, s2, 3" % t0)
                    a("s_lshl_b32 s%d, s%d, 2" % (t0, t0))
                    a("s_add_u32 s%d, s%d, s%d" % (t0, t0, sW))
                    if k_ < 4:
                        a("s_mul_i32 s%d, s%d, 3584" % (t0, t0))
                        a("s_mul_i32 s%d, s%d, %d" % (t1, sQ, 896 * 2048))
                        a("s_add_u32 s%d, s%d, s%d" % (t0, t0, t1))
                        if k_: a("s_add_u32 s%d, s%d, %d" % (t0, t0, k_ * 224 * 2048))
                        a("s_mov_b64 exec, 0xfffffff")
                        a.vmem("buffer_load_dword a%d, v%d, %s, s%d offen" % (A_PD, V_T128, s4(R_W2), t0), "T")
                    else:
                        a("s_lshl_b32 s%d, s%d, 12" % (t0, t0))
                        a("s_lshl_b32 s%d, s%d, 19" % (t1, sQ))
                        a("s_add_u32 s%d, s%d, s%d" % (t0, t0, t1))
                        a("s_mov_b32 exec_hi, 0")
                        a.vmem("buffer_load_dword a%d, v%d, %s, s%d offen" % (A_PD, V_T128, s4(R_WO), t0), "T")
                    a("s_mov_b64 exec, -1")
                elif not hst and not hflag and cost_total >= HFL:
                    a.wait(vm="H")
                    a.vmem("buffer_store_dword v%d, v%d, %s, 0 offen offset:32 sc1" % (V_ONE, V_FG, s4(R_WS)), "FH")
                    hflag = True
                    if STCH & 2: selftouch(sH + 2, True)
                elif hflag and lst and cost_total >= cfg.get("f_llp", 640):
                    while lst: hstore(*lst.pop(0))
                elif hflag and not hpoll and cost_total >= HPO:
                    if cfg.get("f_cpf2", 1): codepf(V_L16, 0x01010101)
                    poll_issue("PH"); hpoll = True
                elif hpoll and not hok and cost_total >= HCK:
                    a.wait(vm="PH"); spin(0xff00); hok = True
                    stampr("g2h")
                elif hok and napre > 0:
                    G.drain_sal()
                    op_ = ordA.pop(0); aload2(op_[1], op_[2]); napre -= 1
                elif pre and pre[0][1] == 1 and cost_total >= next_p:
                    pre.pop(0)[2](); next_p = cost_total + PGAP
                    if cfg.get("f_p2", 0) and pre and pre[0][1] == 1: pre.pop(0)[2]()
                continue
            run(op); c += cost; cost_total += cost
            if qa == 0 and not kvbar and c >= 30:
                a.wait(lg=("v", 19)); a("s_barrier"); kvbar = True
        assert not pv and (qa == 0 or fin)
        free.extend(late_free); del late_free[:]
        if sm and cfg.get("verbose"): print("late S mfmas", qa, len(sm), file=sys.stderr)
        late = bool(sm)
        while sm: s_mfma(*sm.pop(0))
        if late: a("s_nop 7")
    if cfg.get("verbose"): print("attention cost", cost_total, "pre left", len(pre), file=sys.stderr)
    stampr("att4")
    assert not hst and not lst and hflag and hpoll and not sq and not tcq
    if not hok: napre = 0
    while pre:
        pre.pop(0)[2](); a("s_nop 0")
    G.drain_sal()
    assert napre <= 4 * (RA2 - 10) and not (HK and hok)
    a("v_mov_b32 v%d, v%d" % (V2_RD, V2_B))
    a("v_xor_b32 v%d, 32, v%d" % (V2_RD + 1, V2_B))
    xr = ["v_xor_b32 v%d, %d, v%d" % (V2_RD + t, t * 32, V2_B) for t in range(2, 8)]
    xr += ["v_add_u32 v%d, %d, v%d" % (V2_RD + 8 + t, 2 * STAGE, V2_RD + t) for t in range(8)]
    if cfg.get("verbose"): print("pv3 left", len(pv3), "apre left", napre, file=sys.stderr)
    for f in pv3:
        f()
        if napre > 0:
            op_ = ordA.pop(0); aload2(op_[1], op_[2]); napre -= 1; G.drain_sal()
        else:
            for _ in range(2):
                if xr: a(xr.pop(0))
    while xr: a(xr.pop(0))
    stampr("attend")

    NT2 = 8
    DL = cfg.get("f_dl", 8); S2 = KS2 - DL
    assert RA2 >= DL
    own = set(acc(mt, 6 + 2 * p) for p in range(3) for mt in range(MT))
    busy = own | set(O_[(3, z)] for z in range(3)) | {208}
    q2 = [q for q in range(0, 224, 4) if q not in busy]
    acc2 = {}
    for t in range(NT2):
        for mt in range(MT): acc2[(mt, t)] = q2.pop(0)
    VX = [q2.pop(0) for _ in range(4)]
    TT = q2.pop(0); V_XI = TT + 2
    R_X = R_WQ; R_OUT = R_W1
    rec = Rec()
    rec.l += [None] * 5 + [x if isinstance(x, str) else ("m", x) for x in fin_list(3)]
    for t in range(8): rec("v_add_u32 v%d, %d, v%d" % (V2_RD + 16 + t, 4 * STAGE, V2_RD + t))
    srd(rec, R_X, P_X, S * D * 2)
    srd(rec, R_OUT, P_OUT, S * D * 2)
    vl8[0] = TT + 3
    rec("v_lshlrev_b32 v%d, 3, v%d" % (TT + 3, L))
    rec2 = Rec()
    rec2("v_and_b32 v%d, 15, v%d" % (TT, L))
    rec2("v_lshlrev_b32 v%d, 11, v%d" % (V_XO, TT))
    rec2("v_lshrrev_b32 v%d, 4, v%d" % (TT, L))
    rec2("v_lshl_add_u32 v%d, v%d, 3, v%d" % (V_XI, TT, V_XO))
    rec2("v_bfe_u32 v%d, v%d, 4, 1" % (TT, L))
    rec2("v_lshl_add_u32 v%d, v%d, 5, v%d" % (V_XO, TT, V_XO))
    rec2("v_lshrrev_b32 v%d, 5, v%d" % (TT, L))
    rec2("v_lshl_add_u32 v%d, v%d, 4, v%d" % (V_XO, TT, V_XO))
    CO = cfg.get("f_co", 1)
    if CO:
        V_OW = V_KVW; V_OR = V2_B
        rec2("s_mul_i32 s%d, s%d, 5120" % (t1, sW))
        rec2("s_add_u32 s%d, s%d, %d" % (t1, t1, 5 * STAGE))
        rec2("v_and_b32 v%d, 15, v%d" % (TT, L))
        rec2("v_mul_u32_u24 v%d, 80, v%d" % (V_OW, TT))
        rec2("v_lshrrev_b32 v%d, 4, v%d" % (TT, L))
        rec2("v_lshl_add_u32 v%d, v%d, 3, v%d" % (V_OW, TT, V_OW))
        rec2("v_add_u32 v%d, s%d, v%d" % (V_OW, t1, V_OW))
        rec2("v_lshrrev_b32 v%d, 2, v%d" % (TT, L))
        rec2("v_mul_u32_u24 v%d, 80, v%d" % (V_OR, TT))
        rec2("v_lshlrev_b32 v%d, 11, v%d" % (V_XO, TT))
        rec2("v_and_b32 v%d, 3, v%d" % (TT, L))
        rec2("v_lshl_add_u32 v%d, v%d, 4, v%d" % (V_OR, TT, V_OR))
        rec2("v_add_u32 v%d, s%d, v%d" % (V_OR, t1, V_OR))
        rec2("v_lshl_add_u32 v%d, v%d, 4, v%d" % (V_XO, TT, V_XO))
    XD = cfg.get("f_xd", 1) and CO
    if XD:
        assert "f_ux" not in cfg
        rec2("v_and_b32 v%d, 15, v%d" % (TT, L))
        rec2("v_lshlrev_b32 v%d, 6, v%d" % (V_XI, TT))
        rec2("v_lshrrev_b32 v%d, 4, v%d" % (TT, L))
        rec2("v_lshl_add_u32 v%d, v%d, 3, v%d" % (V_XI, TT, V_XI))
        rec2("v_add_u32 v%d, s%d, v%d" % (V_XI, t1, V_XI))
    sSX = [sKV, sKV2, sKP]; sSF = [sKP2, sFK, sH]; sRX = sH + 1
    for lam in range(3):
        rec("s_xor_b32 s%d, s2, %d" % (t1, (lam ^ 3) << 1))
        rec("s_lshl_b32 s%d, s%d, 2" % (t1, t1))
        rec("s_add_u32 s%d, s%d, s%d" % (t1, t1, sW))
        rec("s_mul_i32 s%d, s%d, 12288" % (sSX[lam], t1))
        rec("s_add_u32 s%d, s%d, 0x%x" % (sSX[lam], sSX[lam], WS_XC + lam * 4096))
        rec("s_lshl_b32 s%d, s%d, 7" % (sSF[lam], t1))
        rec("s_add_u32 s%d, s%d, 0x%x" % (sSF[lam], sSF[lam], WS_FL + lam * 4))
    rec("s_lshl_b32 s%d, s2, 2" % t1)
    rec("s_add_u32 s%d, s%d, s%d" % (t1, t1, sW))
    rec("s_mul_i32 s%d, s%d, 12288" % (sRX, t1))
    rec("s_add_u32 s%d, s%d, 0x%x" % (sRX, sRX, WS_XC))
    if DF:
        for lam in range(3): rec("s_add_u32 s%d, s%d, %d" % (sSF[lam], sRX, lam * 4096))
    side = G.side
    side += rec.l

    units = []; del gi[:]
    grp(units, 0, 3, range(NT2), 3)
    grp(units, 3, C2S, range(NT2), 2)
    DLO = cfg.get("f_dlo", 11); S2O = KS2 - DLO
    assert DL <= DLO <= RA2
    grp(units, C2S, S2O, range(NT2), C2)
    grp(units, S2O, S2, range(6), C2)
    UT = len(units)
    for lam in range(4): grp(units, S2 if lam < 3 else S2O, KS2, (2 * lam, 2 * lam + 1), C2T if lam else min(C2T, cfg.get("f_c2t0", 4)))
    NU = len(units)
    PL = 2 * DL
    last_unit = {}
    for u, (p, t) in enumerate(units): last_unit[p] = u
    stt = dict(ready=-1, free=set(), waited=-1, issued=-1, ook=False, hok=hok)
    ordB = [("B2", p) for p in range(NPRE, KS2)]
    def barrier2():
        a("s_barrier")
        for p, lu in last_unit.items():
            if lu <= stt["waited"]: stt["free"].add(p)
    def can2(op):
        if op[0] == "B2": return op[1] < NSL or (op[1] - NSL) in stt["free"]
        if not stt["hok"] or (op[1] >= (24 if LL else 28) and not stt["ook"]): return False
        return op[1] - 3 < RA2 or last_unit[op[1] - RA2] <= stt["issued"]
    def issue2(op):
        if cfg.get("verbose"): print("late flush2", op, file=sys.stderr)
        G.drain_sal()
        if op[0] == "A2": aload2(op[1], op[2])
        else:
            for x in dma2_ops(op[1]): x[1](); a("s_nop 0")
        G.drain_sal()
    def flush2(q, tag):
        while any(o[:2] == tag for o in q):
            op = q.pop(0); assert can2(op), (op, stt); issue2(op)
    def bread2(u, j2):
        p, t = units[u]
        sl, pos = LOC[p % NSL]
        a.lds("ds_read_b64_tr_b16 %s, v%d offset:%d" % (r2("a", BR2 + (u % RB2) * 4 + j2 * 2), V2_RD + 8 * (sl // 2) + t, (sl % 2) * STAGE + (pos + j2) * 1024), ("b2", u))
    def need2(u):
        p = units[u][0]
        if p > stt["ready"]:
            flush2(ordB, ("B2", p))
            grp = cfg.get("f_bgrp", 4)
            top = max(x for x in range(p, min(p + grp, KS2)) if not any(o[1] == x for o in ordB))
            if p == 0: top = min(NPRE - 1, cfg.get("f_top0", 5))
            elif p < NPRE: top = NPRE - 1
            a.wait(vm=("B2", top)); barrier2(); stt["ready"] = top
    need2(0)
    for u in range(DB2):
        bread2(u, 0); bread2(u, 1)
    stampr("g2beg")
    UOF = cfg.get("f_uof", 26)
    UOP = cfg.get("f_uop", 80); UOC = UOP + 12
    seenA = {0, 1, 2}
    xdone = False
    rq = sorted(own)
    def flag(lam):
        a.wait(vm=("S", lam))
        a.vmem("buffer_store_dword v%d, v%d, %s, s%d offen sc1" % (V_ONE, V_FL0, s4(R_WS), sSF[lam]), ("F", lam))
    def recv(lam, mt):
        a.vmem("buffer_load_dwordx4 %s, v%d, %s, s%d offen offset:%d sc1" % (r4("v", rq[4 * lam + mt]), V_L16, s4(R_WS), sRX, mt * 1024), ("R", lam, mt))
        if mt == 3 and lam < 2: a("s_add_u32 s%d, s%d, 4096" % (sRX, sRX))
    PS = lambda mt, hh: acc2[(mt, hh)]
    def addpk(dst, src, first=False):
        ops = []
        for hh in range(2):
            for e2 in range(2):
                pp = src + 2 * hh + e2; c = dst[hh] + 2 * e2
                if first:
                    ops += ["v_lshlrev_b32 v%d, 16, v%d" % (c, pp), "v_and_b32 v%d, 0xffff0000, v%d" % (c + 1, pp)]
                else:
                    ops += ["v_lshlrev_b32 v%d, 16, v%d" % (TT, pp), "v_and_b32 v%d, 0xffff0000, v%d" % (TT + 1, pp),
                            "v_pk_add_f32 v[%d:%d], v[%d:%d], v[%d:%d]" % (c, c + 1, c, c + 1, TT, TT + 1)]
        return ops
    FD = cfg.get("f_fd", 26)
    ev = {}
    def at(u, f): ev.setdefault(u, []).append(f)
    def rtxt(lam, mt): return "buffer_load_dwordx4 %s, v%d, %s, s%d offen offset:%d sc1" % (r4("v", rq[4 * lam + mt]), V_L16, s4(R_WS), sSF[lam], mt * 1024)
    def rmax(lam):
        rg = [rq[4 * lam + mt] + e for mt in range(MT) for e in range(4)]
        o = ["v_max3_u32 v%d, v%d, v%d, v%d" % (V_POLL, rg[0], rg[1], rg[2])]
        for k in range(3, 15, 2): o.append("v_max3_u32 v%d, v%d, v%d, v%d" % (V_POLL, V_POLL, rg[k], rg[k + 1]))
        o.append("v_max_u32 v%d, v%d, v%d" % (V_POLL, V_POLL, rg[15]))
        return o
    def rcheck(lam):
        l0 = a.newlabel("F_rt"); l1 = a.newlabel("F_ok")
        a("s_mov_b32 s%d, 0x%x" % (sSP, SPIN))
        a.label(l0)
        a("v_cmp_eq_u32 vcc, -1, v%d" % V_POLL)
        a("s_cmp_eq_u64 vcc, 0")
        a("s_cbranch_scc1 %s" % l1)
        for mt in range(MT): a(rtxt(lam, mt))
        a("s_waitcnt vmcnt(0)")
        for x in rmax(lam): a(x)
        a("s_sub_u32 s%d, s%d, 1" % (sSP, sSP))
        a("s_cbranch_scc0 %s" % l0)
        a.label(l1)
    def addplain(dst, src):
        ops = []
        for hh in range(2):
            for e2 in range(2):
                pp = src + 2 * hh + e2; c = dst[hh] + 2 * e2
                ops += ["v_lshlrev_b32 v%d, 16, v%d" % (TT, pp), "v_and_b32 v%d, 0xffff0000, v%d" % (TT + 1, pp),
                        "v_add_f32 v%d, v%d, v%d" % (c, c, TT), "v_add_f32 v%d, v%d, v%d" % (c + 1, c + 1, TT + 1)]
        return ops
    if DF:
        R0U = UT + 3 * PL + cfg.get("f_r0", -6); R1U = UT + 4 * PL + cfg.get("f_r1", -5)
        at(R0U, lambda: side.extend(("m", lambda mt=mt: a.vmem(rtxt(0, mt), ("R", 0))) for mt in range(MT)))
        at(R1U, lambda: side.__setitem__(slice(0, 0), [("m", lambda mt=mt: a.vmem(rtxt(1, mt), ("R", 1))) for mt in range(MT)]))
    else:
        at(UT + PL + FD, lambda: flag(0))
        at(UT + 2 * PL + FD, lambda: flag(1))
        if cfg.get("f_fin2", 1): at(UT + 3 * PL + FD, lambda: flag(2))
        if cfg.get("f_pe", 4): at(NU - cfg.get("f_pe", 4), lambda: poll_issue("P1"))
    UP0 = UT + 3 * PL + cfg.get("f_p0", 4)
    F2 = cfg.get("f_fin2", 1)
    if not DF and not F2: at(UP0, lambda: poll_issue("P0"))
    def chk0():
        a.wait(vm="P0"); spin(1)
        for mt in range(MT): side.append(("m", lambda mt=mt: recv(0, mt)))
    if not DF and not F2: at(UP0 + cfg.get("f_c0", 8), chk0)
    def presum():
        side.append(("s", lambda: a.wait(vm="X")))
        if XD:
            for mt in range(MT):
                for hh in range(2):
                    side.append(("v", lambda mt=mt, hh=hh: a.lds("ds_read_b64 %s, v%d offset:%d" % (r2("v", VX[mt] + 2 * hh), V_XI, mt * 1024 + hh * 32), "xr")))
            side.extend([None] * 4 + [("s", lambda: a.wait(lg="xr"))])
        for mt in range(MT): side.extend(addpk([PS(mt, 0), PS(mt, 1)], VX[mt], first=True))
    at(UT + 2 * PL + PL // 2, presum)
    first_unit = {}
    for u, (p, t) in enumerate(units): first_unit.setdefault(p, u)
    NOPS = len(ordA) + 2 * len(ordB)
    UE2 = UT + cfg.get("f_ue2", 0)
    MARG = cfg.get("f_marg", 20)
    THR2 = cfg.get("f_thr2", 63)
    def prewait2(u):
        u += gi[u][1] - 1
        p, t = units[u]
        if p not in seenA:
            flush2(ordA, ("A2", p)); seenA.add(p)
            r = a.wait(vm=("A2", p), lg=("b2", u))
        else: r = a.wait(lg=("b2", u))
        stt["waited"] = u
        return r
    def b2sal(p): G.sal.extend(x for k, x in dma2_txt(p)[3:])
    if L4:
        def swp(p):
            def w_():
                assert a.vm.count(("A2", p)) == 4
                return a.wait(vm=("A2", p))
            o = [("s", w_)]
            for b in (0, 8):
                for e in range(2):
                    x, y = aslot(p) + b + 2 + e, aslot(p) + b + 4 + e
                    o += ["v_accvgpr_mov_b32 a252, a%d" % x, "v_accvgpr_mov_b32 a%d, a%d" % (x, y), "v_accvgpr_mov_b32 a%d, a252" % y]
            o.append(("s", lambda: swdone.add(p)))
            side.extend(o)
        swdone = set()
        for p in range(24, 28): at(gi[first_unit[p]][0] - cfg.get("f_swu", 12), lambda p=p: swp(p))
    prewait2(0)
    half = None
    for u in range(NU):
        u0, C_, gn = gi[u]; kk = u - u0
        p, t = divmod(u, NT2) if u < UT else units[u]
        un = u + DB2
        if u == UOF:
            a.wait(vm="O")
            a.vmem("buffer_store_dword v%d, v%d, %s, 0 offen offset:64 sc1" % (V_ONE, V_FG, s4(R_WS)), "FO")
            if STCH & 4: selftouch(sO, True)
            side.extend(rec2.l)
        if u == cfg.get("f_uh", 2) and not stt["hok"]:
            a.wait(vm="PH"); spin(0xff00); stt["hok"] = True
            stampr("g2h")
        if u < UT and t == 1: stampr("g2p%d" % p)
        if u == UT: stampr("g2tail")
        if u > UT and (u - UT) % PL == 0: stampr("g2l%d" % ((u - UT) // PL))
        if u == UOP: poll_issue("PO")
        if u == UOC:
            a.wait(vm="PO"); spin(0xff0000 | (7 if DF else 0)); stt["ook"] = True
        for f in ev.get(u, []): f()
        if un < NU and units[un][0] > stt["ready"]:
            if half is not None:
                dma2_ops(half)[2][1](); b2sal(half); half = None
            need2(un)
        if u < UT and t == 2 and p % 2 == 1 and p > 1 and p - 2 + NSL < KS2: barrier2()
        pre_ = None; mem_ = None
        if half is not None:
            def mem_(h=half): dma2_ops(h)[2][1](); b2sal(h)
            half = None
        elif len(G.sal) <= 1:
            cand = [q for q in (ordA, ordB) if q and can2(q[0])]
            if cand:
                cand.sort(key=lambda q: q[0][1] - (cfg.get("f_bprio", 5) if q[0][0] == "B2" else 0))
                done_ = NOPS - len(ordA) - 2 * len(ordB)
                if done_ * UE2 <= u * NOPS or first_unit[cand[0][0][1]] - u <= MARG + (16 if cand[0][0][0] == "B2" else 0):
                    nxt = cand[0].pop(0)
                    if nxt[0] == "B2":
                        ops_ = dma2_ops(nxt[1])
                        pre_ = lambda o=ops_: (o[0][1](), True)[1]
                        mem_ = ops_[1][1]; half = nxt[1]
                    else:
                        mem_ = lambda n_=nxt: aload2(n_[1], n_[2])
        if not xdone and (u == cfg.get("f_ux", 9999) or (not ordA and not ordB and half is None and mem_ is None)):
            xdone = True
            if XD:
                side.append("s_mul_i32 s%d, s%d, 5120" % (t1, sW))
                for mt in range(MT):
                    side += ["s_add_u32 m0, s%d, %d" % (t1, 5 * STAGE + mt * 1024), None,
                             ("m", lambda: a.vmem("buffer_load_dwordx4 v%d, %s, s%d offen lds" % (V_XO, s4(R_X), sXO), "X")),
                             "s_add_u32 s%d, s%d, %d" % (sXO, sXO, 32768 if mt < 3 else -3 * 32768)]
            for mt in range(MT if not XD else 0):
                for hh in range(2):
                    def f(mt=mt, hh=hh):
                        a.vmem("buffer_load_dwordx2 %s, v%d, %s, s%d offen offset:%d" % (r2("v", VX[mt] + 2 * hh), V_XI, s4(R_X), sXO, hh * 32), "X")
                    side += [("m", f)] + [None] * (cfg.get("f_xsp", 1) if hh else 1)
                side.append("s_add_u32 s%d, s%d, %d" % (sXO, sXO, 32768 if mt < 3 else -3 * 32768))
        for mt in range(MT):
            m_, k_ = divmod(kk * MT + mt, C_)
            if cfg.get("f_kz", 1) and m_ % 2 == 1 and units[u0][0] > 0: k_ = C_ - 1 - k_
            mz = m_ if gn % 2 == 0 else MT - 1 - m_
            p_, t_ = units[u0 + k_]
            assert not (L4 and 24 <= p_ < 28) or p_ in swdone, p_
            bf = r4("a", BR2 + ((u0 + k_) % RB2) * 4)
            af = r4("v", acc(mz, 6 + 2 * p_)) if p_ < 3 else r4("a", aslot(p_) + mz * 4)
            c = r4("v", acc2[(mz, t_)])
            a("%s %s, %s, %s, %s" % (MF, c, bf, af, "0" if p_ == 0 else c))
            rd = (lambda mt=mt: bread2(un, mt)) if (mt < 2 and un < NU) else None
            if mt == 0: G.gap(fixed=rd)
            elif mt == 1: G.gap(first=pre_, fixed=rd)
            elif mt == 2:
                if mem_:
                    assert not G.sal
                    G.gap(first=(lambda: a.throttle(THR2)), mem=mem_)
                else: G.gap()
            else:
                if kk == C_ - 1:
                    stt["issued"] = u
                    G.gap(first=(lambda: prewait2(u + 1)) if u + 1 < NU else None)
                else: G.gap()
        if u >= UT and (u - UT) % PL == PL - 1:
            lam = (u - UT) // PL
            if lam < 3:
                new_ = [None] * 5
                for mt in range(MT):
                    new_ += pack(acc2[(mt, 2 * lam)], acc2[(mt, 2 * lam + 1)])
                    if DF: new_ += ["v_min_u32 v%d, -2, v%d" % (acc2[(mt, 2 * lam)] + e, acc2[(mt, 2 * lam)] + e) for e in range(4)]
                    def f(mt=mt, lam=lam):
                        a.vmem("buffer_store_dwordx4 %s, v%d, %s, s%d offen offset:%d sc1" % (r4("v", acc2[(mt, 2 * lam)]), V_L16, s4(R_WS), sSX[lam], mt * 1024), ("S", lam))
                    new_.append(("m", f))
                side[:0] = new_
    if cfg.get("verbose"): print("G2 side left", len([x for x in side if x is not None]), file=sys.stderr)
    G.drain()
    assert not ordA and not ordB and xdone
    stampr("g2end")
    def ownadd():
        for mt in range(MT):
            for hh in range(2):
                for e2 in range(2):
                    c = PS(mt, hh) + 2 * e2; o_ = acc2[(mt, 6 + hh)] + 2 * e2
                    a("v_pk_add_f32 v[%d:%d], v[%d:%d], v[%d:%d]" % (c, c + 1, c, c + 1, o_, o_ + 1))
    if DF:
        R2D = cfg.get("f_r2d", 1)
        def rd2():
            for mt in range(MT): a.vmem(rtxt(2, mt), ("R", 2, mt))
        assert a.vm.count(("R", 0)) == 4 and a.vm.count(("R", 1)) == 4
        if R2D == 0: rd2()
        a.wait(vm=("R", 0))
        for x in rmax(0): a(x)
        rcheck(0)
        for mt in range(MT):
            for x in addpk([PS(mt, 0), PS(mt, 1)], rq[mt]): a(x)
        stampr("x1")
        if R2D == 1: rd2()
        ownadd()
        a.wait(vm=("R", 1))
        for x in rmax(1): a(x)
        rcheck(1)
        stampr("x2")
        if R2D == 2: rd2()
        for mt in range(MT):
            for x in addpk([PS(mt, 0), PS(mt, 1)], rq[4 + mt]): a(x)
        stampr("x3")
        a.wait(vm=("R", 2, 3))
        for x in rmax(2): a(x)
        rcheck(2)
        stampr("x4")
    elif F2:
        for lam in range(2):
            if ("F", lam) not in a.vm: flag(lam)
        early = "P1" in a.vm
        if not early:
            a("s_nop 7")
            ownadd()
        if ("F", 2) not in a.vm: flag(2)
        if not early: poll_issue("P1")
        stampr("x1")
        a.wait(vm="P1"); spin(1)
        for mt in range(MT): recv(0, mt)
        spin(2)
        stampr("x2")
        for mt in range(MT): recv(1, mt)
        poll_issue("P2")
        if early: ownadd()
        for mt in range(MT):
            a.wait(vm=("R", 0, mt))
            for x in addpk([PS(mt, 0), PS(mt, 1)], rq[mt]): a(x)
        a.wait(vm="P2"); spin(4)
        stampr("x3")
        for mt in range(MT): recv(2, mt)
        for mt in range(MT):
            for x in addpk([PS(mt, 0), PS(mt, 1)], rq[4 + mt]): a(x)
        stampr("x4")
    else:
        flag(2)
        poll_issue("P1")
        stampr("x1")
        for mt in range(MT):
            a.wait(vm=("R", 0, mt))
            for x in addpk([PS(mt, 0), PS(mt, 1)], rq[mt]): a(x)
        a.wait(vm="P1"); spin(2)
        stampr("x2")
        for mt in range(MT): recv(1, mt)
        poll_issue("P2")
        for mt in range(MT):
            for hh in range(2):
                for e2 in range(2):
                    c = PS(mt, hh) + 2 * e2; o_ = acc2[(mt, 6 + hh)] + 2 * e2
                    a("v_pk_add_f32 v[%d:%d], v[%d:%d], v[%d:%d]" % (c, c + 1, c, c + 1, o_, o_ + 1))
        a.wait(vm="P2"); spin(4)
        stampr("x3")
        for mt in range(MT): recv(2, mt)
        for mt in range(MT):
            for x in addpk([PS(mt, 0), PS(mt, 1)], rq[4 + mt]): a(x)
        stampr("x4")
    for mt in range(MT):
        a.wait(vm=("R", 2, mt))
        for x in addpk([PS(mt, 0), PS(mt, 1)], rq[8 + mt]): a(x)
        c0 = PS(mt, 0)
        if cfg.get("eps"):
            for hh in range(2):
                for e in range(4): a("v_mul_f32 v%d, 0x%x, v%d" % (PS(mt, hh) + e, f2u(1.0 + cfg["eps"] / 10000.0), PS(mt, hh) + e))
        for x in pack(c0, PS(mt, 1)): a(x)
        def ostore(m, reg):
            if cfg.get("cp_real"):
                if m == 0:
                    a("s_lshl_b32 s%d, s2, 2" % t1); a("s_add_u32 s%d, s%d, s%d" % (t1, t1, sW)); a("s_lshl_b32 s%d, s%d, 12" % (t1, t1)); a("s_add_u32 s%d, s%d, 0x%x" % (t1, t1, WS_Q))
                a.vmem("buffer_store_dwordx4 %s, v%d, %s, s%d offen offset:%d %s" % (r4("v", reg), V_L16, s4(R_WS), t1, m * 1024, ["", "sc1", "nt"][cfg.get("f_of", 2)]), "OUT")
                return
            a.vmem("buffer_store_dwordx4 %s, v%d, %s, s%d offen %s" % (r4("v", reg), V_XO, s4(R_OUT), sXO, ["", "sc1", "nt"][cfg.get("f_of", 2)]), "OUT")
            if m < 3: a("s_add_u32 s%d, s%d, 32768" % (sXO, sXO))
        if CO:
            a.lds("ds_write_b64 v%d, %s offset:%d" % (V_OW, r2("v", c0), mt * 1280), ("ow", mt))
            a.lds("ds_write_b64 v%d, %s offset:%d" % (V_OW, r2("v", c0 + 2), mt * 1280 + 32), ("ow", mt))
            a.lds("ds_read_b128 %s, v%d offset:%d" % (r4("v", PS(mt, 1)), V_OR, mt * 1280), ("or", mt))
            if mt > 0:
                a.wait(lg=("or", mt - 1)); ostore(mt - 1, PS(mt - 1, 1))
            if mt == 3:
                a.wait(lg=("or", 3)); ostore(3, PS(3, 1))
        else:
            a("s_nop 1")
            a("v_permlane16_swap_b32 v%d, v%d" % (c0, c0 + 2))
            a("v_permlane16_swap_b32 v%d, v%d" % (c0 + 1, c0 + 3))
            ostore(mt, c0)
    stampr("x5")
    if ST:
        a("s_waitcnt vmcnt(0)")
        stampr("end")
        a("s_waitcnt lgkmcnt(0)")
        for i in range(8): a("v_mov_b32 v%d, s%d" % (i, STB + 2 * i))
        a("s_lshl_b32 s%d, s2, 2" % t0)
        a("s_add_u32 s%d, s%d, s%d" % (t0, t0, sW))
        a("s_lshl_b32 s%d, s%d, 5" % (t0, t0))
        a("v_mov_b32 v8, 0")
        a("s_nop 4")
        a("buffer_store_dwordx4 v[0:3], v8, %s, s%d offen" % (s4(R_WS), t0))
        a("buffer_store_dwordx4 v[4:7], v8, %s, s%d offen offset:16" % (s4(R_WS), t0))
    a.label("F_end")
    a("s_endpgm")
    kernel_desc(a, name, 256, sgpr=102, accum=256, agpr=256)
    return "; @launch kernel=%s grid=(256,1,1) block=(256,1,1) lds=163840" % name

gen.gen_f = gen_f

if __name__ == "__main__":
    cfg = dict(g1_mt=4)
    out = sys.argv[1]
    kernels = sys.argv[2].split(",")
    for kv in sys.argv[3:]:
        k, v = kv.split("="); cfg[k] = int(v, 0)
    open(out, "w").write(gen.build(cfg, kernels))
```

```python
import sys, math
from asmlib import *
import gen
from gen import *

class SA:
    def __init__(self, start, end):
        self.n = start; self.end = end; self.m = {}
    def new(self, name, cnt=1, align=1):
        self.n = (self.n + align - 1) // align * align
        r = self.n; self.n += cnt
        assert self.n <= self.end, "out of sgprs"
        self.m[name] = r
        return r

def s4(b): return "s[%d:%d]" % (b, b + 3)
MF = "v_mfma_f32_16x16x32_bf16"

def kind_of(op):
    if op is None: return None
    if isinstance(op, tuple): return op[0]
    t = op.lstrip()
    if t.startswith("s_"): return "s"
    if t.startswith(("v_exp", "v_rcp")): return "e"
    if t.startswith("v_"): return "v"
    raise ValueError(op)

class Gaps:
    def __init__(self, a):
        self.a = a
        self.lazy = False
        self.sal = []
        self.side = []
    def run(self, op):
        if isinstance(op, tuple): op[1]()
        else: self.a(op)
    def gap(self, first=None, fixed=None, mem=None, nfixed=1, extra=False):
        self._gap(first, fixed, mem, nfixed)
        n = 0
        while extra and n < 2:
            while self.side and kind_of(self.side[0]) == "z": self.run(self.side.pop(0))
            if not (self.side and kind_of(self.side[0]) == "f"): break
            self.run(self.side.pop(0)); self._gap(None, None, None, 1); n += 1
    def _gap(self, first, fixed, mem, nfixed):
        used0 = False
        room = 2
        if first is not None: used0 = bool(first())
        if not used0:
            if self.sal:
                x = self.sal.pop(0); self.a(x); used0 = True
                room -= x.count("\n")
            elif self.side and kind_of(self.side[0]) == "s":
                self.run(self.side.pop(0)); used0 = True
        if mem is not None:
            mem(); return
        if fixed is not None:
            fixed(); room -= nfixed
        while self.side and kind_of(self.side[0]) == "z": self.run(self.side.pop(0))
        if self.side and self.side[0] is None:
            self.side.pop(0)
            skip = True
        else: skip = False
        while room > 0:
            if self.sal and self.sal[0].count("\n") < room and not (self.lazy and len(self.sal) == 1 and "\n" not in self.sal[0]):
                x = self.sal.pop(0); self.a(x); room -= 1 + x.count("\n"); continue
            if skip or not self.side or self.side[0] is None: break
            k = kind_of(self.side[0])
            if k == "z":
                self.run(self.side.pop(0)); continue
            if k == "f": break
            if k in ("m", "x", "e"):
                if room == 2:
                    self.run(self.side.pop(0))
                break
            self.run(self.side.pop(0)); room -= 1
    def drain_sal(self):
        while self.sal: self.a(self.sal.pop(0))
    def drain(self):
        self.drain_sal()
        for op in self.side:
            if op is not None: self.run(op)
        self.side = []

def ln_ops(exact=1):
    o = []
    a = o.append
    pk = lambda op, d, x, y, mod="": a("%s v[%d:%d], v[%d:%d], v[%d:%d]%s" % (op, d, d + 1, x, x + 1, y, y + 1, mod))
    for i in range(16):
        if i % 4 == 0: a("WAIT%d" % (i // 4))
        a("v_lshlrev_b32 v%d, 16, v%d" % (24 + 2 * i, 8 + i))
        a("v_and_b32 v%d, 0xffff0000, v%d" % (25 + 2 * i, 8 + i))
        if i == 1: pk("v_pk_add_f32", 56, 24, 26)
        elif i == 3: pk("v_pk_add_f32", 58, 28, 30)
        elif i > 3: pk("v_pk_add_f32", 56 + 2 * (i & 1), 56 + 2 * (i & 1), 24 + 2 * i)
    pk("v_pk_add_f32", 56, 56, 58)
    a("v_add_f32 v56, v56, v57")
    def xlane_sum(r, t):
        a("s_nop 1")
        a("v_add_f32_dpp v%d, v%d, v%d row_ror:8 row_mask:0xf bank_mask:0xf" % (r, r, r))
        for op in ("v_permlane16_swap_b32", "v_permlane32_swap_b32"):
            a("v_mov_b32 v%d, v%d" % (t, r))
            a("s_nop 1")
            a("%s v%d, v%d" % (op, r, t))
            a("v_add_f32 v%d, v%d, v%d" % (r, r, t))
    xlane_sum(56, 57)
    a("v_mul_f32 v56, 0x%x, v56" % f2u(1.0 / 256))
    neg = " op_sel_hi:[1,0] neg_lo:[0,1] neg_hi:[0,1]"
    for i in range(16):
        t = 62 + 2 * (i & 1); ac = 66 + 2 * (i & 1)
        pk("v_pk_add_f32", t, 24 + 2 * i, 56, neg)
        if i < 2: pk("v_pk_mul_f32", ac, t, t)
        else: a("v_pk_fma_f32 v[%d:%d], v[%d:%d], v[%d:%d], v[%d:%d]" % (ac, ac + 1, t, t + 1, t, t + 1, ac, ac + 1))
    pk("v_pk_add_f32", 66, 66, 68)
    a("v_add_f32 v57, v66, v67")
    xlane_sum(57, 58)
    a("ds_write_b64 v7, v[56:57]")
    a("s_waitcnt lgkmcnt(0)")
    a("s_barrier")
    for k in range(4): a("ds_read_b64 v[%d:%d], v60 offset:%d" % (62 + 2 * k, 63 + 2 * k, 64 * k))
    a("s_waitcnt lgkmcnt(0)")
    pk("v_pk_add_f32", 56, 62, 64)
    pk("v_pk_add_f32", 58, 66, 68)
    pk("v_pk_add_f32", 56, 56, 58)
    a("v_mul_f32 v56, 0x3e800000, v56")
    a("v_sub_f32 v59, v62, v56")
    a("v_mul_f32 v58, v59, v59")
    for r in (64, 66, 68):
        a("v_sub_f32 v59, v%d, v56" % r)
        a("v_fmac_f32 v58, v59, v59")
    a("v_fmac_f32 v57, 0x43800000, v58")
    a("v_mul_f32 v57, 0x%x, v57" % f2u(1.0 / 1024))
    a("v_cvt_pk_bf16_f32 v58, v56, v57")
    a("v_lshlrev_b32 v56, 16, v58")
    a("v_and_b32 v57, 0xffff0000, v58")
    a("v_add_f32 v57, 0x%x, v57" % f2u(1e-5))
    a("v_cvt_pk_bf16_f32 v57, v57, v57")
    a("v_and_b32 v57, 0xffff0000, v57")
    a("v_sqrt_f32 v57, v57")
    a("s_nop 0")
    a("v_cvt_pk_bf16_f32 v57, v57, v57")
    a("v_and_b32 v57, 0xffff0000, v57")
    a("v_rcp_f32 v58, v57")
    for i in range(16):
        pk("v_pk_add_f32", 24 + 2 * i, 24 + 2 * i, 56, neg)
        if i > 0:
            j = i - 1
            if exact:
                a("v_cvt_pk_bf16_f32 v%d, v%d, v%d" % (25 + 2 * j, 24 + 2 * j, 25 + 2 * j))
                a("v_lshlrev_b32 v%d, 16, v%d" % (24 + 2 * j, 25 + 2 * j))
                a("v_and_b32 v%d, 0xffff0000, v%d" % (25 + 2 * j, 25 + 2 * j))
            pk("v_pk_mul_f32", 24 + 2 * j, 24 + 2 * j, 58, " op_sel_hi:[1,0]")
            a("v_cvt_pk_bf16_f32 v%d, v%d, v%d" % (8 + j, 24 + 2 * j, 25 + 2 * j))
            if j % 4 == 3: a("STORE%d" % (j // 4))
    if exact:
        a("v_cvt_pk_bf16_f32 v55, v54, v55")
        a("v_lshlrev_b32 v54, 16, v55")
        a("v_and_b32 v55, 0xffff0000, v55")
    pk("v_pk_mul_f32", 54, 54, 58, " op_sel_hi:[1,0]")
    a("v_cvt_pk_bf16_f32 v23, v54, v55")
    a("STORE3")
    return o

def gen_f(a, cfg):
    name = NAME + "_kernel" if cfg.get("single") else "f_kernel"
    FLN = cfg.get("f_ln", 0)
    SPIN = cfg.get("spin", 0x40000)
    ST = cfg.get("stamp")
    MT = 4
    sa = SA(3, 84)
    P_WQ = sa.new("pwq", 2, 2); P_W1 = sa.new("pw1", 2, 2); P_WS = sa.new("pws", 2, 2); P_X = sa.new("px", 2, 2)
    P_W2 = sa.new("pw2", 2, 2); P_WO = sa.new("pwo", 2, 2); P_OUT = sa.new("pout", 2, 2)
    R_WQ = sa.new("rwq", 4, 4); R_W1 = sa.new("rw1", 4, 4); R_W2 = sa.new("rw2", 4, 4); R_WO = sa.new("rwo", 4, 4)
    R_WS = sa.new("rws", 4, 4)
    sW = sa.new("w"); sI = sa.new("i"); sJ = sa.new("j"); sJ1 = sa.new("j1"); sQ = sa.new("q"); sN = sa.new("n")
    sBQ = sa.new("bq"); sBV = sa.new("bv"); sBW = sa.new("bw"); sBL = sa.new("bl"); sLB = sa.new("lb"); sA = sa.new("a")
    sCLS = sa.new("cls"); t0 = sa.new("t0"); t1 = sa.new("t1"); t2 = sa.new("t2"); t3 = sa.new("t3")
    sMK = sa.new("mask", 8, 2)
    sKV = sa.new("kv"); sKV2 = sa.new("kv2"); sKP = sa.new("kp"); sKP2 = sa.new("kp2"); sFK = sa.new("fk"); sFO = sa.new("fo")
    sH = sa.new("h", 4); sSC = sa.new("sc", 2, 2); sO = sSC + 1; sA0 = sa.new("a0"); sB0 = sa.new("b0"); sAE = sa.new("aend"); sBE = sa.new("bend")
    sXO = sa.new("xo"); sSP = sa.new("spin")
    sDL = sMK
    STB = 84
    SETS = {1: ["start", "bar0", "g1end", "attbeg", "attend", "g2beg", "g2end", "end"],
            2: ["bar0", "g1s8", "g1half", "g1tail", "g1kv", "g1flag1", "g1chk", "attbeg"],
            3: ["start", "attbeg", "att0", "att1", "att2", "att3", "att4", "attend"],
            4: ["start", "att4", "g2h", "g2beg", "g2p4", "g2p12", "g2tail", "g2end"],
            5: ["start", "g2end", "x1", "x2", "x3", "x4", "x5", "end"],
            7: ["g2beg", "g2p3", "g2p6", "g2p10", "g2p14", "g2p18", "g2p22", "g2end"],
            8: ["g2p22", "g2tail", "g2l1", "g2l2", "g2l3", "g2end", "x3", "end"],
            9: ["start", "lnx", "lns", "lnd", "lnp", "g1s1", "g1s4", "g1s8"],
            10: ["start", "k0", "k1", "k2", "k3", "k4", "lnx", "lns"],
            11: ["start", "bar0", "g1tail", "attbeg", "g2beg", "g2p6", "g2end", "end"],
            6: ["start", "bar0", "g1s2", "g1s4", "g1s8", "g1half", "g1s20", "g1tail"]}
    jn = [0]
    def stampr(nm):
        J = cfg.get("jit", 0)
        if J and nm != "start":
            jn[0] += 1
            lab = a.newlabel("F_j")
            a("s_lshl_b32 s84, s2, 2")
            if J & 1: a("s_add_u32 s84, s84, s%d" % sW)
            a("s_add_u32 s84, s84, %d" % (jn[0] * 7919 + J * 31))
            a("s_mul_i32 s84, s84, 0x9e3779b1")
            a("s_lshr_b32 s84, s84, 28")
            a("s_cmp_lg_u32 s84, 0")
            a("s_cbranch_scc1 %s" % lab)
            for _ in range(cfg.get("jitn", 2)): a("s_sleep 127")
            a.label(lab)
        if ST and nm in SETS[ST]:
            i = SETS[ST].index(nm)
            a("%s s[%d:%d]" % ("s_memtime" if cfg.get("clk") else "s_memrealtime", STB + 2 * i, STB + 2 * i + 1))

    NT = 13; KS = 32
    NS = 5; REG = 7168; STAGE = 4 * REG
    D1 = cfg.get("f_d1", 8)
    RA = cfg.get("f_ra1", 12)
    LA = cfg.get("f_la1", 4)
    C1 = cfg.get("f_c1", 2)
    C1K = cfg.get("f_c1k", 2); C1T = cfg.get("f_c1t", 4); C1S = cfg.get("f_c1s", 0)
    CM1 = max(C1, C1K, C1T)
    DB = cfg.get("f_db1", CM1 + 2); RB = DB + max(CM1, 2)
    assert DB >= CM1
    S1 = KS - D1
    def slot1(g): return (15 - g) % 5
    KVB = 96 * 1024
    def acc(mt, t): return (t * MT + mt) * 4
    V_L16 = 208; V_QKV = 209; V_W1 = 210; V_LEFT = 211
    V_RD = 212
    V_P0, V_P1, V_P2 = 221, 222, 223
    V_LANE = 224; V_FL0 = 225; V_ONE = 226; V_POLL = 227; V_KVW = 228; V_FG = 229; V_PL = 230
    T = 232
    A_PD = 255
    AR = 0; BR = RA * 16
    assert BR + RB * 4 <= 254

    kernel_begin(a, name)
    a.reset()
    stampr("start")
    a("s_cmp_ge_u32 s2, 256")
    a("s_cbranch_scc1 F_end")
    if cfg.get("idx"): a("s_xor_b32 s2, s2, %d" % cfg["idx"])
    SWP = cfg.get("f_swp", 0)
    if SWP:
        a("s_lshr_b32 s%d, s2, 1" % t0)
        a("s_xor_b32 s%d, s%d, s2" % (t0, t0))
        a("s_and_b32 s%d, s%d, 1" % (t0, t0))
        a("s_mul_i32 s%d, s%d, 3" % (t0, t0))
        a("s_xor_b32 s2, s2, s%d" % t0)
    if cfg.get("jit"):
        a("s_mul_i32 s84, s2, 0x9e3779b1")
        a("s_lshr_b32 s84, s84, 28")
        a("s_cmp_lg_u32 s84, %d" % (cfg["jit"] & 15))
        a("s_cbranch_scc1 F_j0")
        for _ in range(4): a("s_sleep 127")
        a.label("F_j0")
    a("s_load_dwordx2 s[%d:%d], s[0:1], 8" % (P_WQ, P_WQ + 1))
    a("s_load_dwordx2 s[%d:%d], s[0:1], 32" % (P_W1, P_W1 + 1))
    a("s_load_dwordx2 s[%d:%d], s[0:1], 64" % (P_WS, P_WS + 1))
    a("s_load_dwordx2 s[%d:%d], s[0:1], 0" % (P_X, P_X + 1))
    a("s_load_dwordx2 s[%d:%d], s[0:1], 40" % (P_W2, P_W2 + 1))
    a("s_load_dwordx2 s[%d:%d], s[0:1], 16" % (P_WO, P_WO + 1))
    a("s_load_dwordx2 s[%d:%d], s[0:1], 48" % (P_OUT, P_OUT + 1))
    if FLN:
        lab = a.newlabel("F_pc")
        a("s_getpc_b64 s[%d:%d]" % (R_WO, R_WO + 1))
        a.label(lab)
        a("s_and_b32 s%d, s%d, 0xffff" % (R_WO + 1, R_WO + 1))
        a("s_mov_b32 s%d, CODE_END - %s" % (R_WO + 2, lab))
        a("s_mov_b32 s%d, 0x00020000" % (R_WO + 3))
        a("s_lshr_b32 s%d, s2, 3" % t0)
        a("s_lshl_b32 s%d, s%d, 7" % (t0, t0))
        a("v_lshlrev_b32 v70, 12, v0")
        a.vmem("buffer_load_dword v76, v70, %s, s%d offen" % (s4(R_WO), t0), "T")
    if FLN: a("s_load_dwordx2 s[100:101], s[0:1], 56")
    L = V_LANE
    a("v_and_b32 v%d, 63, v0" % L)
    a("v_lshrrev_b32 v%d, 6, v0" % (T + 1))
    a("v_lshlrev_b32 v%d, 4, v%d" % (V_L16, L))
    a("v_readfirstlane_b32 s%d, v%d" % (sW, T + 1))
    a("s_and_b32 s%d, s2, 1" % sI)
    a("s_lshl_b32 s%d, s%d, 2" % (sI, sI))
    a("s_bfe_u32 s%d, s2, 0x20003" % t0)
    a("s_add_u32 s%d, s%d, s%d" % (sI, sI, t0))
    a("s_bfe_u32 s%d, s2, 0x20001" % sQ)
    a("s_lshr_b32 s%d, s2, 5" % sN)
    a("s_lshl_b32 s%d, s%d, 3" % (sJ, sQ))
    a("s_add_u32 s%d, s%d, s%d" % (sJ, sJ, sN))
    a("s_and_b32 s%d, s%d, 1" % (sJ1, sN))
    if FLN:
        a("v_and_b32 v3, 7, v%d" % L)
        a("v_lshrrev_b32 v4, 3, v%d" % L)
        LXD = cfg.get("f_lxd", 0)
        if LXD:
            a("v_xor_b32 v83, v3, v4")
            a("v_lshlrev_b32 v5, 11, v4")
            a("v_lshl_add_u32 v5, v%d, 9, v5" % (T + 1))
            a("v_lshl_add_u32 v5, v83, 4, v5")
            a("s_lshl_b32 s%d, s%d, 12" % (t1, sW))
            a("s_add_u32 s%d, s%d, %d" % (t1, t1, 144 * 1024))
            a("s_mov_b32 m0, s%d" % t1)
        else:
            a("v_lshlrev_b32 v5, 11, v3")
            a("v_lshl_add_u32 v5, v%d, 9, v5" % (T + 1))
            a("v_lshl_add_u32 v5, v4, 4, v5")
        a("s_lshl_b32 s%d, s%d, 5" % (t3, sI))
        a("s_add_u32 s%d, s%d, s%d" % (t3, t3, sJ))
        a("s_lshl_b32 s%d, s%d, 14" % (sFK, t3))
        assert not LXD or not cfg.get("f_early", 0)
    def xloads():
        stampr("k0")
        a("s_waitcnt lgkmcnt(0)")
        stampr("k1")
        srd(a, R_W2, P_X, S * D * 2)
        for i in range(4):
            if LXD:
                a.vmem("buffer_load_dwordx4 v5, %s, s%d offen offset:%d lds" % (s4(R_W2), sFK, i * 128), ("LX", i))
                if i < 3:
                    a("s_add_u32 m0, m0, %d" % (1024 - 128))
                    a("s_nop 0")
            else: a.vmem("buffer_load_dwordx4 %s, v5, %s, s%d offen offset:%d" % (r4("v", 8 + 4 * i), s4(R_W2), sFK, i * 128), ("LX", i))
        if LXD:
            a("v_lshlrev_b32 v83, 4, v83")
            a("v_lshl_add_u32 v83, v3, 7, v83")
            a("v_add_u32 v83, s%d, v83" % t1)
        stampr("k2")
        if cfg.get("wsoff"): srd_off(a, R_WS, P_WS, cfg["wsoff"] << 20, WS_END)
        else: srd(a, R_WS, P_WS, WS_END)
        a("s_lshl_b32 s%d, s%d, 12" % (sSP, sI))
        a("s_add_u32 s%d, s%d, 0x%x" % (sXO, sSP, WS_LF))
        a("v_and_b32 v80, 31, v%d" % L)
        a("v_lshlrev_b32 v80, %d, v80" % cfg.get("f_lfs", 2))
        a("v_add_u32 v80, s%d, v80" % sXO)
        a.vmem("buffer_load_dword v81, v80, %s, 0 offen sc1" % s4(R_WS), "SN")
    if FLN and not cfg.get("f_early", 0): xloads()
    VQ3 = [V_QKV, 240, 241]; VW3 = [V_W1, 242, 243]
    a("v_lshrrev_b32 v%d, 2, v%d" % (T + 2, L))
    a("v_and_b32 v%d, 3, v%d" % (T + 4, L))
    a("v_lshlrev_b32 v%d, 4, v%d" % (T + 4, T + 4))
    a("v_mul_u32_u24 v%d, %d, v%d" % (T + 5, 16 * 6144, T + 1))
    a("v_lshl_add_u32 v%d, v%d, 11, v%d" % (T + 5, T + 2, T + 5))
    a("v_add_u32 v%d, v%d, v%d" % (VQ3[0], T + 5, T + 4))
    a("v_and_b32 v%d, 32, v%d" % (T + 3, L))
    a("v_xor_b32 v%d, v%d, v%d" % (VQ3[1], VQ3[0], T + 3))
    a("v_add_u32 v%d, 32768, v%d" % (VQ3[1], VQ3[1]))
    a("v_xor_b32 v%d, 32, v%d" % (VQ3[2], VQ3[0]))
    a("v_add_u32 v%d, 65536, v%d" % (VQ3[2], VQ3[2]))
    a("v_mul_u32_u24 v%d, %d, v%d" % (T + 5, 16 * 7168, T + 1))
    a("v_add_u32 v%d, v%d, v%d" % (T + 5, T + 5, T + 4))
    for m in range(3):
        if m: a("v_add_u32 v%d, 16, v%d" % (T + 2, T + 2))
        a("v_mul_u32_u24 v%d, 43, v%d" % (T + 4, T + 2))
        a("v_lshrrev_b32 v%d, 7, v%d" % (T + 4, T + 4))
        a("v_mul_u32_u24 v%d, %d, v%d" % (T + 4, 7168 - 192, T + 4))
        a("v_lshl_add_u32 v%d, v%d, 6, v%d" % (T + 4, T + 2, T + 4))
        a("v_add_u32 v%d, v%d, v%d" % (VW3[m], T + 4, T + 5))
        if m == 1: a("v_xor_b32 v%d, v%d, v%d" % (VW3[m], VW3[m], T + 3))
        if m == 2: a("v_xor_b32 v%d, 32, v%d" % (VW3[m], VW3[m]))
    a("v_bfe_u32 v%d, v%d, 3, 1" % (T + 2, L))
    a("v_lshlrev_b32 v%d, 3, v%d" % (T + 2, T + 2))
    a("v_bfe_u32 v%d, v%d, 4, 1" % (T + 3, L))
    a("v_lshl_add_u32 v%d, v%d, 2, v%d" % (T + 2, T + 3, T + 2))
    a("v_bfe_u32 v%d, v%d, 1, 2" % (T + 3, L))
    a("v_add_u32 v%d, v%d, v%d" % (T + 2, T + 2, T + 3))
    a("v_lshl_add_u32 v%d, v%d, 4, v%d" % (T + 2, T + 1, T + 2))
    a("v_mul_u32_u24 v%d, 7168, v%d" % (V_LEFT, T + 2))
    a("v_and_b32 v%d, 1, v%d" % (T + 3, L))
    a("v_lshl_add_u32 v%d, v%d, 4, v%d" % (V_LEFT, T + 3, V_LEFT))
    a("v_lshrrev_b32 v%d, 5, v%d" % (T + 3, L))
    a("v_lshl_add_u32 v%d, v%d, 30, v%d" % (V_LEFT, T + 3, V_LEFT))
    a("s_lshl_b32 s%d, s%d, 6" % (sBQ, sJ))
    a("s_mul_i32 s%d, s%d, 224" % (sBL, sJ))
    a("s_lshl_b32 s%d, s%d, 5" % (t0, sJ1))
    a("s_add_u32 s%d, s%d, s%d" % (sBW, sBL, t0))
    a("s_xor_b32 s%d, s%d, 1" % (t0, sJ1))
    a("s_mul_i32 s%d, s%d, 192" % (t0, t0))
    a("s_add_u32 s%d, s%d, s%d" % (sBL, sBL, t0))
    a("s_mul_i32 s%d, s%d, %d" % (sLB, sW, REG))
    a("s_lshl_b32 s%d, s%d, 2" % (sA, sI))
    a("s_add_u32 s%d, s%d, s%d" % (sA, sA, sW))
    a("s_lshl_b32 s%d, s%d, 17" % (sA, sA))
    a("s_add_u32 s%d, s%d, 0x%x" % (sA, sA, WS_XN))
    ROT = cfg.get("f_rot", 1)
    a("s_add_u32 s%d, s%d, s%d" % (t1, sI, sN))
    a("s_and_b32 s%d, s%d, %d" % (t1, t1, 3 if ROT else 0))
    for k in range(3):
        a("s_cmp_eq_u32 s%d, %d" % (t1, 3 - k))
        a("s_cselect_b32 s%d, -3, 1" % (sDL + k))
    a("s_cmp_eq_u32 s%d, 0" % t1)
    a("s_cselect_b32 s%d, 1, 5" % (sDL + 3))
    a("s_mul_i32 s%d, s%d, %d" % (t0, t1, 64 * 6144))
    a("s_add_u32 s%d, s%d, s%d" % (sBQ, sBQ, t0))
    a("s_mul_i32 s%d, s%d, %d" % (t0, t1, 64 * 7168))
    a("s_add_u32 s%d, s%d, s%d" % (sBW, sBW, t0))
    a("s_add_u32 s%d, s%d, s%d" % (sBL, sBL, t0))
    a("s_lshl_b32 s%d, s%d, 13" % (t0, t1))
    a("s_add_u32 s%d, s%d, s%d" % (sA, sA, t0))
    for k in range(4):
        a("s_lshl_b32 s%d, s%d, 13" % (sDL + 4 + k, sDL + k))
        a("s_sub_u32 s%d, s%d, 4096" % (sDL + 4 + k, sDL + 4 + k))
    if FLN and cfg.get("f_early", 0): xloads()
    elif not FLN: a("s_waitcnt lgkmcnt(0)")
    srd(a, R_WQ, P_WQ, D * 3 * D * 2)
    srd(a, R_W1, P_W1, D * DFF * 2)
    if not FLN: srd(a, R_WS, P_WS, WS_END)

    G = Gaps(a)
    PAIRPOS = [0, 2, 1, 3, 4, 5]
    def dma1(g, k, part):
        p, vreg, sb, so, imm = [(0, VQ3[0], R_WQ, sBQ, 0), (1, VQ3[1], R_WQ, sBQ, 0), (2, VQ3[2], R_WQ, sBQ, 0),
                                (3, VW3[0], R_W1, sBW, 0), (4, VW3[1], R_W1, sBW, 0), (5, VW3[2], R_W1, sBW, 0), (6, V_LEFT, R_W1, sBL, 0)][k]
        if part == 0:
            a("s_add_u32 m0, s%d, %d" % (sLB, slot1(g) * STAGE + p * 1024 - imm))
        else:
            a.vmem("buffer_load_dwordx4 v%d, %s, s%d offen offset:%d lds" % (vreg, s4(sb), so, imm), ("B", g))
            if k == 0: G.sal.append("s_mul_i32 s%d, s%d, %d" % (sBV, sDL + (g & 3), 64 * 6144))
            if k == 2: G.sal.append("s_add_u32 s%d, s%d, s%d" % (sBQ, sBQ, sBV))
            if k == 3: G.sal.append("s_mul_i32 s%d, s%d, %d" % (t2, sDL + (g & 3), 64 * 7168))
            if k == 5: G.sal.append("s_add_u32 s%d, s%d, s%d" % (sBW, sBW, t2))
            if k == 6: G.sal.append("s_add_u32 s%d, s%d, s%d" % (sBL, sBL, t2))
    def aload1(s, mt):
        a.vmem("buffer_load_dwordx4 %s, v%d, %s, s%d offen offset:%d%s" % (r4("a", AR + (s % RA) * 16 + mt * 4), V_L16, s4(R_WS), sA, mt * 1024, " sc1" if FLN else ""), ("A", s))
        if mt == MT - 1:
            if s % 2 == 0: G.sal.append("s_add_u32 s%d, s%d, 4096" % (sA, sA))
            else: G.sal.append("s_add_u32 s%d, s%d, s%d" % (sA, sA, sDL + 4 + ((s // 2) & 3)))
    order = []
    KORD = [(0, 1, 2, 3, 4, 5, 6), (0, 3, 1, 4, 2, 5, 6), (0, 3, 4, 1, 5, 6, 2)][cfg.get("f_ko", 0)]
    for g in range(16):
        for k in KORD: order.append(("B", g, k))
        for s in (2 * g, 2 * g + 1):
            for mt in range(MT): order.append(("A", s, mt))
    def issue1(op):
        G.drain_sal()
        if op[0] == "A": aload1(op[1], op[2])
        else:
            dma1(op[1], op[2], 0); a("s_nop 0"); dma1(op[1], op[2], 1)
        G.drain_sal()
    if FLN:
        nb = cfg.get("f_lnb", 1)
        bops = [o for o in order if o[0] == "B" and o[1] < nb]
        for o in bops: order.remove(o)
        BO = cfg.get("f_bo", 0)
        late_b = []
        if BO == 1: late_b = bops[:3]; bops = bops[3:]
        if BO == 2: late_b = bops[3:]; bops = bops[:3]
        HD = cfg.get("f_hd", 0)
        qops = []
        if HD:
            qops = [o for o in bops if o[2] < 3]; bops = [o for o in bops if o[2] >= 3]
            a("s_and_b32 s%d, s%d, 14" % (sKP, sJ))
        def qsite(k, late):
            lab = a.newlabel("F_hd")
            a("s_cmp_eq_u32 s%d, 6" % sKP)
            a("s_cbranch_scc%d %s" % (0 if late else 1, lab))
            for o in ([qops[k]] if not late else qops):
                issue1(o)
                if not late: a.vm.pop()
            a.label(lab)
        TB0 = cfg.get("f_tb", 0)
        def touchb():
            a("s_lshr_b32 s%d, s2, 3" % t1)
            a("s_lshl_b32 s%d, s%d, 2" % (t1, t1))
            a("s_add_u32 s%d, s%d, s%d" % (t1, t1, sW))
            a("v_lshrrev_b32 v84, 4, v%d" % L)
            a("v_and_b32 v85, 15, v%d" % L)
            a("v_mul_u32_u24 v86, 7168, v84")
            a("v_lshl_add_u32 v86, v85, 7, v86")
            a("v_mul_u32_u24 v84, 6144, v84")
            a("v_lshrrev_b32 v87, 2, v85")
            a("v_lshl_add_u32 v84, v87, 11, v84")
            a("v_and_b32 v87, 3, v85")
            a("v_lshl_add_u32 v84, v87, 7, v84")
            a("s_mul_i32 s%d, s%d, %d" % (t0, t1, 2 * 6144))
            a("s_lshl_b32 s%d, s%d, 9" % (t2, sQ))
            a("s_add_u32 s%d, s%d, s%d" % (sKV, t0, t2))
            a("s_mul_i32 s%d, s%d, %d" % (t0, t1, 2 * 7168))
            a("s_mul_i32 s%d, s%d, 1792" % (t2, sQ))
            a("s_add_u32 s%d, s%d, s%d" % (sKV2, t0, t2))
        def touchb2():
            a("s_mov_b64 exec, 0x0fff0fff")
            a.vmem("buffer_load_dword a%d, v84, %s, s%d offen" % (A_PD, s4(R_WQ), sKV), "T")
            a("s_mov_b64 exec, 0x3fff3fff")
            a.vmem("buffer_load_dword a%d, v86, %s, s%d offen" % (A_PD, s4(R_W1), sKV2), "T")
            a("s_mov_b64 exec, -1")
        HT = cfg.get("f_ht", 0)
        def hottouch(b):
            a("s_mov_b32 s%d, %d" % (t0, b * 256 * 6144))
            a.vmem("buffer_load_dword a%d, v%d, %s, s%d offen" % (A_PD, V_P1, s4(R_WQ), t0), "T")
        if HT:
            a("s_lshr_b32 s%d, s2, 3" % t1)
            a("s_lshl_b32 s%d, s%d, 2" % (t1, t1))
            a("s_add_u32 s%d, s%d, s%d" % (t1, t1, sW))
            a("s_mul_i32 s%d, s%d, %d" % (t1, t1, 2 * 6144))
            a("s_mul_i32 s%d, s%d, 0x40000200" % (t0, sQ))
            a("s_and_b32 s%d, s%d, 0x7fffffff" % (t0, t0))
            a("s_add_u32 s%d, s%d, s%d" % (t1, t1, t0))
            a("s_add_u32 s%d, s%d, 384" % (t1, t1))
            a("v_lshlrev_b32 v%d, 11, v%d" % (V_P1, L))
            a("v_add_u32 v84, 58, v%d" % L)
            a("v_lshrrev_b32 v84, 6, v84")
            a("v_lshl_add_u32 v%d, v84, 30, v%d" % (V_P1, V_P1))
            a("v_add_u32 v%d, s%d, v%d" % (V_P1, t1, V_P1))
            if HT & 1: hottouch(0)
        if TB0: touchb()
        if TB0 == 1: touchb2()
        for _ in range(cfg.get("f_lnb0", 2)): issue1(bops.pop(0))
        a("s_lshl_b32 s%d, s2, 9" % t0)
        a("s_add_u32 s%d, s%d, 0x%x" % (t0, t0, WS_FL))
        a("v_lshlrev_b32 v70, 2, v0")
        a("v_lshrrev_b32 v71, 7, v0")
        a("v_lshl_add_u32 v70, v71, 30, v70")
        a("v_mov_b32 v71, 0")
        a.vmem("buffer_store_dword v71, v70, %s, s%d offen sc1" % (s4(R_WS), t0), "Z")
        a("s_lshr_b32 s%d, s%d, 3" % (t0, t3))
        a("s_lshl_b32 s%d, s%d, 17" % (t0, t0))
        a("s_bfe_u32 s%d, s%d, 0x20001" % (t1, t3))
        a("s_lshl_b32 s%d, s%d, 10" % (t1, t1))
        a("s_add_u32 s%d, s%d, s%d" % (t0, t0, t1))
        a("s_and_b32 s%d, s%d, 1" % (t1, t3))
        a("s_lshl_b32 s%d, s%d, 7" % (t1, t1))
        a("s_add_u32 s%d, s%d, s%d" % (t0, t0, t1))
        a("s_add_u32 s%d, s%d, 0x%x" % (t3, t0, WS_XN))
        a("v_lshrrev_b32 v6, 2, v4")
        a("v_lshl_add_u32 v6, v%d, 3, v6" % (T + 1))
        a("v_lshlrev_b32 v6, 12, v6")
        a("v_and_b32 v7, 3, v4")
        a("v_lshl_add_u32 v6, v7, 8, v6")
        a("v_lshl_add_u32 v6, v3, 4, v6")
        a("v_lshl_add_u32 v7, v%d, 3, v3" % (T + 1))
        a("v_lshlrev_b32 v7, 3, v7")
        a("v_add_u32 v7, %d, v7" % (5 * STAGE))
        a("v_lshlrev_b32 v60, 3, v3")
        a("v_add_u32 v60, %d, v60" % (5 * STAGE))
        stampr("k3")
        if LXD:
            for i in range(4):
                a.wait(vm=("LX", i))
                if i == 0: stampr("k4")
                a("ds_read_b128 %s, v83 offset:%d" % (r4("v", 8 + 4 * i), i * 1024))
            a("s_waitcnt lgkmcnt(0)")
        elif not cfg.get("f_lxp", 1): a.wait(vm=("LX", 3))
        stampr("lnx")
        if TB0 == 2: touchb2()
        lo_ = ln_ops(cfg.get("f_lnex", 1))
        gap_ = cfg.get("f_lngap", 20)
        for k, x in enumerate(lo_):
            if x.startswith("WAIT"): a.wait(vm=("LX", int(x[4:])))
            elif x.startswith("STORE"):
                i = int(x[5:])
                a.vmem("buffer_store_dwordx4 %s, v6, %s, s%d offen sc1" % (r4("v", 8 + 4 * i), s4(R_WS), t3), "XS")
                if i < 3: a("s_add_u32 s%d, s%d, %d" % (t3, t3, 8192))
            else: a(x)
            if k % gap_ == gap_ - 1 and bops and k < cfg.get("f_lnk", 110): issue1(bops.pop(0))
            if HD and k >= 44 and (k - 44) % cfg.get("f_hdg", 12) == 0 and (k - 44) // cfg.get("f_hdg", 12) < 3: qsite((k - 44) // cfg.get("f_hdg", 12), False)
        bops += late_b
        if cfg.get("f_bnow", 1):
            while bops: issue1(bops.pop(0))
        stampr("lns")
    else:
        for _ in range(cfg.get("f_pro1", 15)): issue1(order.pop(0))

    srd(a, R_W2, P_W2, DFF * D * 2)
    srd(a, R_WO, P_WO, D * D * 2)
    a("s_bfe_u32 s%d, s2, 0x30003" % sCLS)
    a("v_bfrev_b32 v%d, 1" % (T + 6))
    if cfg.get("f_pf", 0):
        a("s_lshr_b32 s%d, s2, 6" % t1)
        a("s_lshl_b32 s%d, s%d, 2" % (t1, t1))
        a("s_add_u32 s%d, s%d, s%d" % (t1, t1, sW))
        a("v_bfrev_b32 v%d, 1" % (T + 6))
        a("v_lshrrev_b32 v%d, 5, v%d" % (T + 2, L))
        a("s_lshl_b32 s%d, s%d, 1" % (t0, t1))
        a("v_add_u32 v%d, s%d, v%d" % (T + 2, t0, T + 2))
        a("v_and_b32 v%d, 31, v%d" % (T + 3, L))
        a("v_mul_u32_u24 v%d, 7168, v%d" % (V_P1, T + 2))
        a("v_lshl_add_u32 v%d, v%d, 7, v%d" % (V_P1, T + 3, V_P1))
        a("s_mul_i32 s%d, s%d, 1792" % (t0, sQ))
        a("v_add_u32 v%d, s%d, v%d" % (V_P1, t0, V_P1))
        a("v_mul_u32_u24 v%d, 6144, v%d" % (V_P0, T + 2))
        a("v_lshrrev_b32 v%d, 2, v%d" % (T + 4, T + 3))
        a("v_lshl_add_u32 v%d, v%d, 11, v%d" % (V_P0, T + 4, V_P0))
        a("v_and_b32 v%d, 3, v%d" % (T + 4, T + 3))
        a("v_lshl_add_u32 v%d, v%d, 7, v%d" % (V_P0, T + 4, V_P0))
        a("s_lshl_b32 s%d, s%d, 9" % (t0, sQ))
        a("v_add_u32 v%d, s%d, v%d" % (V_P0, t0, V_P0))
        a("v_cmp_le_u32 vcc, 12, v%d" % (T + 3))
        a("s_and_b32 s%d, s2, 1" % t0)
        a("s_lshl_b32 s%d, s%d, 4" % (t0, t0))
        a("v_cndmask_b32 v%d, v%d, v%d, vcc" % (V_P0, V_P0, T + 6))
        a("v_cmp_le_u32 vcc, 14, v%d" % (T + 3))
        a("s_add_u32 s%d, s%d, s%d" % (t0, t0, t1))
        a("s_lshl_b32 s%d, s%d, 17" % (t0, t0))
        a("v_cndmask_b32 v%d, v%d, v%d, vcc" % (V_P1, V_P1, T + 6))
        a("s_add_u32 s%d, s%d, 0x%x" % (t0, t0, WS_XN))
        a("v_lshlrev_b32 v%d, 7, v%d" % (V_P2, L))
        a("v_add_u32 v%d, s%d, v%d" % (V_P2, t0, V_P2))
        a("v_cmp_le_u32 vcc, 32, v%d" % L)
        a("s_lshl_b32 s%d, s%d, 12" % (t0, sCLS))
        a("s_nop 0")
        a("v_cndmask_b32 v%d, v%d, v%d, vcc" % (V_P2, V_P2, T + 6))
    PFM = cfg.get("f_pf", 0)
    PF0 = cfg.get("f_pf0", 8)
    if PFM & 2:
        a("buffer_load_dword a%d, v%d, %s, s%d offen" % (A_PD, V_P2, s4(R_WS), t0))
    def touch(n):
        lab = a.newlabel("F_pf")
        a("s_cmp_lg_u32 s%d, %d" % (sCLS, n & 7))
        a("s_cbranch_scc1 %s" % lab)
        if PFM & 1:
            a("s_mov_b32 s%d, %d" % (t0, n * 32 * 6144))
            a("s_mov_b32 s%d, %d" % (t1, n * 32 * 7168))
            a("buffer_load_dword a%d, v%d, %s, s%d offen" % (A_PD, V_P0, s4(R_WQ), t0))
            a("buffer_load_dword a%d, v%d, %s, s%d offen" % (A_PD - 1, V_P1, s4(R_W1), t1))
        if PFM & 2:
            a("s_mov_b32 s%d, %d" % (t0, n * 4096))
            a("buffer_load_dword a%d, v%d, %s, s%d offen" % (A_PD, V_P2, s4(R_WS), t0))
        a.label(lab)
    if PFM & 4:
        a("s_and_b32 s%d, s2, 1" % t0)
        a("v_lshrrev_b32 v%d, 5, v%d" % (T + 2, L))
        a("v_cmp_ne_u32 vcc, s%d, v%d" % (t0, T + 2))
        a("s_nop 1")
        a("v_cndmask_b32 v%d, v%d, v%d, vcc" % (V_P0, V_P0, T + 6))
        a("v_cndmask_b32 v%d, v%d, v%d, vcc" % (V_P1, V_P1, T + 6))
    PW = cfg.get("f_pw", 2); PW0 = cfg.get("f_pw0", 12)
    V_PW = 231
    a("v_lshlrev_b32 v%d, 7, v%d" % (V_PW, L))
    a("v_cmp_le_u32 vcc, 56, v%d" % L)
    a("s_nop 1")
    a("v_cndmask_b32 v%d, v%d, v%d, vcc" % (V_PW, V_PW, T + 6))
    ASY = cfg.get("f_asy", 1)
    if ASY:
        if cfg.get("f_xcc", 0):
            a("s_getreg_b32 s%d, hwreg(HW_REG_XCC_ID)" % t0)
            a("s_and_b32 s%d, s%d, 1" % (t0, t0))
        else: a("s_bfe_u32 s%d, s2, 0x%x" % (t0, 0x10001 if SWP else 0x10000))
        if ASY == 2: a("s_xor_b32 s%d, s%d, 1" % (t0, t0))
        a("s_lshl_b32 s%d, s%d, 4" % (t0, t0))
        a("s_or_b32 s%d, s%d, s%d" % (sCLS, sCLS, t0))
    HOT = cfg.get("f_hot", 0); LO = cfg.get("f_lo", 64)
    if HOT:
        a("s_bfe_u32 s%d, s2, 0x30003" % sCLS)
        a("s_and_b32 s%d, s%d, 14" % (t0, sJ))
        a("s_cmp_eq_u32 s%d, 6" % t0)
        a("s_cselect_b32 s%d, 16, s%d" % (sCLS, sCLS))
        if LO == 0:
            a("s_bitcmp1_b32 s2, 0")
            a("s_cselect_b32 s%d, 16, s%d" % (sCLS, sCLS))
        a("v_lshlrev_b32 v%d, 7, v%d" % (V_PW, L))
    def toucht(cls):
        lab = a.newlabel("F_pw"); l2 = a.newlabel("F_po")
        def ex(n):
            m_ = (1 << n) - 1
            a("s_mov_b32 exec_lo, 0x%x" % (m_ & 0xffffffff)); a("s_mov_b32 exec_hi, 0x%x" % (m_ >> 32))
        a("s_cmp_lg_u32 s%d, %d" % (sCLS, cls))
        a("s_cbranch_scc1 %s" % lab)
        a("s_add_u32 s%d, s%d, 8" % (t0, sJ))
        a("s_lshr_b32 s%d, s%d, 4" % (t0, t0))
        a("s_lshl_b32 s%d, s%d, 1" % (t0, t0))
        a("s_sub_u32 s%d, s%d, s%d" % (t0, sJ, t0))
        a("s_lshl_b32 s%d, s%d, 2" % (t0, t0))
        a("s_and_b32 s%d, s%d, 3" % (t1, sI))
        a("s_add_u32 s%d, s%d, s%d" % (t0, t0, t1))
        a("s_lshl_b32 s%d, s%d, 2" % (t0, t0))
        a("s_add_u32 s%d, s%d, s%d" % (t0, t0, sW))
        a("s_lshl_b32 s%d, s%d, 14" % (t1, t0))
        a("s_bitcmp1_b32 s2, 0")
        a("s_cbranch_scc1 %s" % l2)
        a("buffer_load_dword a%d, v%d, %s, s%d offen" % (A_PD, V_PW, s4(R_W2), t1))
        if LO < 64:
            a("s_add_u32 s%d, s%d, 8192" % (t1, t1))
            ex(64 - LO)
            a("buffer_load_dword a%d, v%d, %s, s%d offen" % (A_PD, V_PW, s4(R_W2), t1))
        a("s_mul_i32 s%d, s%d, %d" % (t1, t0, 37 * 128))
        ex(37)
        a("buffer_load_dword a%d, v%d, %s, s%d offen" % (A_PD - 1, V_PW, s4(R_WO), t1))
        a("s_mov_b64 exec, -1")
        a("s_branch %s" % lab)
        a.label(l2)
        if LO:
            a("s_add_u32 s%d, s%d, %d" % (t1, t1, (128 - LO) * 128))
            ex(LO)
            a("buffer_load_dword a%d, v%d, %s, s%d offen" % (A_PD, V_PW, s4(R_W2), t1))
            a("s_mov_b64 exec, -1")
        a.label(lab)
    def touchw(cls, flip=0):
        lab = a.newlabel("F_pw")
        if cls is not None:
            a("s_cmp_lg_u32 s%d, %d" % (sCLS, cls))
            a("s_cbranch_scc1 %s" % lab)
        if flip:
            a("s_xor_b32 s%d, s2, %d" % (t0, 2 if SWP else 1))
            a("s_lshl_b32 s%d, s%d, 2" % (t0, t0))
        else: a("s_lshl_b32 s%d, s2, 2" % t0)
        a("s_add_u32 s%d, s%d, s%d" % (t0, t0, sW))
        a("s_mul_i32 s%d, s%d, 7168" % (t1, t0))
        a("buffer_load_dword a%d, v%d, %s, s%d offen" % (A_PD, V_PW, s4(R_W2), t1))
        a("s_lshl_b32 s%d, s%d, 11" % (t1, t0))
        a("s_mov_b64 exec, 0xffff")
        a("buffer_load_dword a%d, v%d, %s, s%d offen" % (A_PD - 1, V_PW, s4(R_WO), t1))
        a("s_mov_b64 exec, -1")
        a.label(lab)
    def touchp(k):
        a("s_lshl_b32 s%d, s2, 2" % t0)
        a("s_add_u32 s%d, s%d, s%d" % (t0, t0, sW))
        if k < 2:
            a("s_mul_i32 s%d, s%d, 7168" % (t1, t0))
            a("s_mov_b64 exec, 0xfffffff")
            a.vmem("buffer_load_dword a%d, v%d, %s, s%d offen offset:%d" % (A_PD, V_PW, s4(R_W2), t1, k * 3584), "T")
        else:
            a("s_lshl_b32 s%d, s%d, 11" % (t1, t0))
            a("s_mov_b64 exec, 0xffff")
            a.vmem("buffer_load_dword a%d, v%d, %s, s%d offen" % (A_PD, V_PW, s4(R_WO), t1), "T")
        a("s_mov_b64 exec, -1")
    def touchx(k):
        a("s_lshr_b32 s%d, s2, 3" % t0)
        a("s_lshl_b32 s%d, s%d, 2" % (t0, t0))
        a("s_add_u32 s%d, s%d, s%d" % (t0, t0, sW))
        a("s_lshl_b32 s%d, s%d, 7" % (t1, sQ))
        a("s_add_u32 s%d, s%d, s%d" % (t0, t0, t1))
        if k < 2:
            a("s_mul_i32 s%d, s%d, 14336" % (t1, t0))
            if k: a("s_add_u32 s%d, s%d, 7168" % (t1, t1))
            a("buffer_load_dword a%d, v%d, %s, s%d offen" % (A_PD - k, V_PW, s4(R_W2), t1))
        else:
            a("s_lshl_b32 s%d, s%d, 12" % (t1, t0))
            a("s_mov_b32 exec_hi, 0")
            a("buffer_load_dword a%d, v%d, %s, s%d offen" % (A_PD, V_PW, s4(R_WO), t1))
            a("s_mov_b32 exec_hi, -1")
    pfq = list(range(PF0, KS)) if PFM else []
    PFA = cfg.get("f_pfa", 30)
    a("v_lshrrev_b32 v%d, 5, v%d" % (T + 2, L))
    a("v_mul_u32_u24 v%d, %d, v%d" % (T + 2, REG, T + 2))
    a("v_and_b32 v%d, 3, v%d" % (T + 3, L))
    a("v_lshl_add_u32 v%d, v%d, 3, v%d" % (T + 2, T + 3, T + 2))
    a("v_bfe_u32 v%d, v%d, 2, 2" % (T + 3, L))
    a("v_bfe_u32 v%d, v%d, 4, 1" % (T + 4, L))
    a("v_mul_u32_u24 v%d, 192, v%d" % (V_RD, T + 3))
    a("v_add_u32 v%d, v%d, v%d" % (V_RD, V_RD, T + 2))
    a("v_mul_u32_u24 v%d, %d, v%d" % (T + 5, 8 * 192 + 32, T + 4))
    a("v_add_u32 v%d, v%d, v%d" % (V_RD, V_RD, T + 5))
    a("v_xor_b32 v%d, 32, v%d" % (V_RD + 1, V_RD))
    a("v_lshl_add_u32 v%d, v%d, 5, v%d" % (V_RD + 2, T + 3, T + 2))
    a("v_lshl_add_u32 v%d, v%d, 7, v%d" % (V_RD + 2, T + 4, V_RD + 2))
    for st_ in (1, 2):
        for x in range(3):
            a("v_add_u32 v%d, %d, v%d" % (V_RD + 3 * st_ + x, st_ * 2 * STAGE, V_RD + x))
    a("s_lshl_b32 s%d, s%d, 7" % (sKV, sJ))
    a("s_lshl_b32 s%d, s%d, 4" % (t0, sI))
    a("s_add_u32 s%d, s%d, s%d" % (sKV, sKV, t0))
    a("s_lshl_b32 s%d, s%d, 2" % (t0, sW))
    a("s_add_u32 s%d, s%d, s%d" % (sKV, sKV, t0))
    a("s_lshl_b32 s%d, s%d, 10" % (sKV, sKV))
    a("s_add_u32 s%d, s%d, 0x%x" % (sKV2, sKV, WS_V))
    a("s_add_u32 s%d, s%d, 0x%x" % (sKV, sKV, WS_K))
    a("s_sub_u32 s%d, s%d, 16384" % (sKP, sKV))
    a("s_sub_u32 s%d, s%d, 16384" % (sKP2, sKV2))
    a("s_cmp_eq_u32 s%d, 0" % sI)
    a("s_cselect_b32 s%d, 0x40000000, s%d" % (sKP, sKP))
    a("s_cselect_b32 s%d, 0x40000000, s%d" % (sKP2, sKP2))
    a("s_lshl_b32 s%d, s2, 2" % sFO)
    a("s_add_u32 s%d, s%d, s%d" % (sFO, sFO, sW))
    a("s_lshl_b32 s%d, s%d, 7" % (sFO, sFO))
    a("s_add_u32 s%d, s%d, 0x%x" % (sFO, sFO, WS_FL))
    a("s_add_u32 s%d, s%d, 1" % (t0, sI))
    a("s_and_b32 s%d, s%d, 3" % (t1, t0))
    a("s_lshl_b32 s%d, s%d, 3" % (t1, t1))
    a("s_lshr_b32 s%d, s%d, 2" % (t0, t0))
    a("s_or_b32 s%d, s%d, s%d" % (t1, t1, t0))
    a("s_and_b32 s%d, s2, 0xe6" % t0)
    a("s_or_b32 s%d, s%d, s%d" % (t1, t1, t0))
    a("s_lshl_b32 s%d, s%d, 2" % (t1, t1))
    a("s_add_u32 s%d, s%d, s%d" % (t1, t1, sW))
    a("s_lshl_b32 s%d, s%d, 7" % (t1, t1))
    a("s_add_u32 s%d, s%d, 0x%x" % (sFK, t1, WS_FL + 12))
    a("s_cmp_eq_u32 s%d, 7" % sI)
    a("s_cselect_b32 s%d, 0x40000000, s%d" % (sFK, sFK))
    if cfg.get("f_k7", 1):
        a("s_cselect_b32 s%d, 0x40000000, s%d" % (sKV, sKV))
        a("s_cselect_b32 s%d, 0x40000000, s%d" % (sKV2, sKV2))
    a("v_cmp_ne_u32 vcc, 0, v%d" % L)
    a("v_mov_b32 v%d, 1" % V_ONE)
    a("v_and_b32 v%d, 31, v%d" % (V_PL, L))
    a("v_cndmask_b32 v%d, 0, v%d, vcc" % (V_FL0, T + 6))
    a("v_lshlrev_b32 v%d, 2, v%d" % (V_PL, V_PL))
    a("s_and_b32 s%d, s2, 31" % t0)
    a("s_lshl_b32 s%d, s%d, 2" % (t0, t0))
    a("s_add_u32 s%d, s%d, s%d" % (t0, t0, sW))
    a("s_lshl_b32 s%d, s%d, 7" % (t0, t0))
    a("s_lshl_b32 s%d, s%d, 2" % (t1, sN))
    a("s_add_u32 s%d, s%d, s%d" % (t0, t0, t1))
    a("s_add_u32 s%d, s%d, 0x%x" % (t0, t0, WS_FL))
    a("v_lshlrev_b32 v%d, 14, v%d" % (V_FG, L))
    a("v_add_u32 v%d, s%d, v%d" % (V_FG, t0, V_FG))
    a("v_cmp_le_u32 vcc, 8, v%d" % L)
    a("s_lshl_b32 s%d, s%d, 12" % (t0, sW))
    a("s_add_u32 s%d, s%d, %d" % (t0, t0, KVB))
    a("v_cndmask_b32 v%d, v%d, v%d, vcc" % (V_FG, V_FG, T + 6))
    a("v_add_u32 v%d, s%d, v%d" % (V_KVW, t0, V_L16))
    a("s_lshl_b32 s%d, s%d, 2" % (t0, sI))
    a("s_add_u32 s%d, s%d, s%d" % (t0, t0, sW))
    a("s_lshl_b32 s%d, s%d, 17" % (sXO, t0))
    a("s_mul_i32 s%d, s%d, 144" % (t0, t0))
    a("s_mul_i32 s%d, s%d, 36" % (t1, sQ))
    a("s_add_u32 s%d, s%d, s%d" % (t0, t0, t1))
    a("s_lshl_b32 s%d, s%d, 12" % (t0, t0))
    a("s_add_u32 s%d, s%d, 0x%x" % (t0, t0, WS_A2))
    a("s_add_u32 s%d, s%d, %d" % (sAE, t0, 28 * 4096))
    a("s_lshl_b32 s%d, s%d, 12" % (t1, sN))
    a("s_add_u32 s%d, s%d, s%d" % (sO, sAE, t1))
    a("s_lshr_b32 s%d, s%d, 1" % (t1, t1))
    a("s_add_u32 s%d, s%d, s%d" % (sH + 3, t0, t1))
    a("s_add_u32 s%d, s%d, %d" % (sH + 3, sH + 3, 24 * 4096))
    a("s_mul_i32 s%d, s%d, %d" % (t1, sN, 3 * 4096))
    a("s_add_u32 s%d, s%d, s%d" % (sH, t0, t1))
    a("s_add_u32 s%d, s%d, 4096" % (sH + 1, sH))
    a("s_add_u32 s%d, s%d, 8192" % (sH + 2, sH))
    a("s_lshl_b32 s%d, s%d, 8" % (t0, sN))
    a("s_add_u32 s%d, s%d, s%d" % (sXO, sXO, t0))
    a("s_lshl_b32 s%d, s%d, 6" % (t0, sQ))
    a("s_add_u32 s%d, s%d, s%d" % (sXO, sXO, t0))
    a("s_mov_b32 s%d, 0x%x" % (sSC, f2u(QSCALE)))
    def spin(mask, skip_if_i0=False):
        l0 = a.newlabel("F_sp"); l1 = a.newlabel("F_ok")
        if skip_if_i0:
            a("s_cmp_eq_u32 s%d, 0" % sI)
            a("s_cbranch_scc1 %s" % l1)
        a("s_mov_b32 s%d, 0x%x" % (sSP, SPIN))
        a.label(l0)
        a("v_cmp_ne_u32 vcc, 0, v%d" % V_POLL)
        a("s_and_b32 s%d, vcc_lo, 0x%x" % (t0, mask))
        a("s_cmp_eq_u32 s%d, 0x%x" % (t0, mask))
        a("s_cbranch_scc1 %s" % l1)
        a("buffer_load_dword v%d, v%d, %s, s%d offen sc1" % (V_POLL, V_PL, s4(R_WS), sFO))
        a("s_sub_u32 s%d, s%d, 1" % (sSP, sSP))
        a("s_waitcnt vmcnt(0)")
        a("s_cbranch_scc0 %s" % l0)
        a.label(l1)
    def poll_issue(tag):
        a.vmem("buffer_load_dword v%d, v%d, %s, s%d offen sc1" % (V_POLL, V_PL, s4(R_WS), sFO), tag)

    if FLN:
        while bops: issue1(bops.pop(0))
        if PW & 8: touchw(None)
        nb2 = cfg.get("f_lnb2", 3)
        b2 = [o for o in order if o[0] == "B" and o[1] < nb + nb2]
        for o in b2: order.remove(o)
        if BO == 1: b2 = [o for o in b2 if o[2] >= 3] + [o for o in b2 if o[2] < 3]
        if BO == 2: b2 = [o for o in b2 if o[2] < 3] + [o for o in b2 if o[2] >= 3]
        for _ in range(cfg.get("f_lnb2e", 0)): issue1(b2.pop(0))
        if PW & 8: a.vm += ["T", "T"]
        a.wait(vm="XS")
        stampr("lnd")
        a("s_barrier")
        lab = a.newlabel("F_ln"); l2 = a.newlabel("F_lp"); l3 = a.newlabel("F_lq"); l4 = a.newlabel("F_la")
        a("s_lshl_b32 s%d, s%d, 5" % (t0, sI))
        a("v_mov_b32 v1, s%d" % t0)
        a("s_cmp_lg_u32 s%d, 0" % sW)
        a("s_cbranch_scc1 %s" % lab)
        a("v_add_u32 v82, 1, v81")
        a("s_lshl_b64 exec, 1, s%d" % sJ)
        a("buffer_store_dword v82, v80, %s, 0 offen sc1" % s4(R_WS))
        a("s_mov_b64 exec, -1")
        a.label(lab)
        if HD:
            a("s_and_b32 s%d, s%d, 14" % (t1, sJ))
            hl = a.newlabel("F_hd")
            a("s_cmp_eq_u32 s%d, 6" % t1)
            a("s_cbranch_scc0 %s" % hl)
            for o in qops: issue1(o)
            a.label(hl)
        while b2: issue1(b2.pop(0))
        if PW & 16: touchw(None)
        a("s_cmp_lg_u32 s%d, 1" % sW)
        a("s_cbranch_scc1 %s" % l4)
        a("s_mov_b64 exec, 1")
        a("global_atomic_add v1, v%d, s[100:101] sc1" % V_ONE)
        a("s_mov_b64 exec, -1")
        a.label(l4)
        PALL = cfg.get("f_pall", 0)
        if not PALL:
            a("s_cmp_lg_u32 s%d, 0" % sW)
            a("s_cbranch_scc1 %s" % l3)
        else:
            a("s_lshl_b32 s%d, s%d, 3" % (t1, sW))
            a("s_lshl_b32 s%d, 0xff, s%d" % (t1, t1))
        a("s_mov_b32 s%d, 0x%x" % (sSP, SPIN))
        a.label(l2)
        a("buffer_load_dword v82, v80, %s, 0 offen sc1" % s4(R_WS))
        a("s_waitcnt vmcnt(0)")
        a("v_cmp_ne_u32 vcc, v81, v82")
        if PALL:
            a("s_and_b32 s%d, vcc_lo, s%d" % (t0, t1))
            a("s_cmp_eq_u32 s%d, s%d" % (t0, t1))
        else: a("s_cmp_eq_u32 vcc_lo, -1")
        a("s_cbranch_scc1 %s" % l3)
        a("s_sub_u32 s%d, s%d, 1" % (sSP, sSP))
        a("s_cbranch_scc1 %s" % l3)
        a("s_and_b32 s%d, s%d, 7" % (t0, sSP))
        a("s_cbranch_scc1 %s" % l2)
        a("global_load_dword v2, v1, s[100:101] sc1")
        a("s_waitcnt vmcnt(0)")
        a("v_readfirstlane_b32 s%d, v2" % t0)
        a("s_cmp_lt_u32 s%d, 32" % t0)
        a("s_cbranch_scc1 %s" % l2)
        a.label(l3)
        if not PALL: a("s_barrier")
        stampr("lnp")
        for _ in range(8): issue1(order.pop(0))
        order[:0] = bops
    gi = []
    def grp(units, s0, s1, tiles, C):
        s = s0
        while s < s1:
            c = min(C, s1 - s)
            for t in tiles:
                g0 = len(units); gn = gi[-1][2] + 1 if gi else 0
                for k in range(c):
                    units.append((s + k, t)); gi.append((g0, c, gn))
            s += c
    units = []
    grp(units, 0, C1S, range(NT), 2)
    C1E = cfg.get("f_c1e", S1)
    grp(units, C1S, C1E, range(NT), C1)
    grp(units, C1E, S1, range(NT), 2)
    grp(units, S1, KS, (2, 3, 4, 5), C1K)
    UKV = len(units)
    grp(units, S1, KS, (6, 7, 8, 9), C1T)
    UH01 = len(units)
    grp(units, S1, KS, (10, 11, 12, 0, 1), C1T)
    NU = len(units)
    last_unit_of_stage = {}
    last_unit_of_step = {}
    for u, (s, t) in enumerate(units):
        last_unit_of_stage[s // 2] = u; last_unit_of_step[s] = u
    stt = dict(ready=-1, free=set(), waited=-1, issued=-1)
    def barrier():
        a("s_barrier")
        for g, lu in last_unit_of_stage.items():
            if lu <= stt["waited"]: stt["free"].add(g)
    def can1(op):
        if op[0] == "B": return op[1] < NS or (op[1] - NS) in stt["free"]
        return op[1] < RA or last_unit_of_step[op[1] - RA] <= stt["issued"]
    def flush1(tag):
        while any(o[:2] == tag for o in order):
            op = order.pop(0)
            assert can1(op), (op, stt)
            if cfg.get("verbose"): print("late flush", op, file=sys.stderr)
            issue1(op)
    def bread1(u, j2):
        s, t = units[u]
        slot = slot1(s // 2); st_ = slot // 2
        off = (slot % 2) * STAGE + (s % 2) * 2 * REG
        if t < 12: off += j2 * 768 + (t // 6) * 3072 + ((t // 2) % 3) * 64; vr = V_RD + 3 * st_ + (t % 2)
        else: off += 6144 + j2 * 256; vr = V_RD + 3 * st_ + 2
        a.lds("ds_read_b64_tr_b16 %s, v%d offset:%d" % (r2("a", BR + (u % RB) * 4 + j2 * 2), vr, off), ("b", u))
    def need1(u):
        g = units[u][0] // 2
        if g > stt["ready"]:
            flush1(("B", g)); a.wait(vm=("B", g)); barrier(); stt["ready"] = g
    def pack(c0, c1, relu=False):
        ops = []
        for hh, c in enumerate((c0, c1)):
            if c is None: continue
            for e2 in range(2):
                ops.append("v_cvt_pk_bf16_f32 v%d, v%d, v%d" % (c0 + 2 * hh + e2, c + 2 * e2, c + 2 * e2 + 1))
            if relu:
                for e2 in range(2):
                    ops.append("v_pk_max_i16 v%d, v%d, 0" % (c0 + 2 * hh + e2, c0 + 2 * hh + e2))
        return ops
    HF = ["sc1", "", "nt", "sc0"][cfg.get("f_hf", 0)]
    def hstore(p, mt):
        if p < 3: a.vmem("buffer_store_dwordx4 %s, v%d, %s, s%d offen offset:%d %s" % (r4("v", acc(mt, 6 + 2 * p)), V_L16, s4(R_WS), sH + p, mt * 1024, HF), "H")
        elif cfg.get("f_l4", 1):
            if mt % 2 == 0: a.vmem("buffer_store_dwordx4 %s, v%d, %s, s%d offen offset:%d %s" % (r4("v", acc(mt, 12)), V_L16, s4(R_WS), sH + 3, mt * 512, HF), "L" if cfg.get("f_ll", 1) else "H")
        else: a.vmem("buffer_store_dwordx2 %s, v%d, %s, s%d offen offset:%d %s" % (r2("v", acc(mt, 12)), 211, s4(R_WS), sH + 3, mt * 512, HF), "L" if cfg.get("f_ll", 1) else "H")
    need1(0)
    stampr("bar0")
    for u in range(DB):
        need1(u)
        bread1(u, 0); bread1(u, 1)
    kvq = [(acc(mt, 2), acc(mt, 3), sKV, mt * 1024, 16384 + mt * 1024) for mt in range(MT)] + \
          [(acc(2 * b, 4 + dt), acc(2 * b + 1, 4 + dt), sKV2, (2 * b + dt) * 1024, 49152 + (2 * b + dt) * 1024) for b in range(2) for dt in range(2)]
    NREST = NU - UKV
    UFLAG = UKV + cfg.get("f_uf", 28)
    UPOLL = UFLAG + cfg.get("f_up", 14)
    UCHK = min(UPOLL + cfg.get("f_uc", 8), NU - 1)
    UPW = UCHK + cfg.get("f_uw", 14)
    V2_DMA = 209; V_XO = 211; V2_RD = 232; V2_B = 231
    bias = [232, 236, 240, 244]; VONES = 248; VM = 252
    sB2 = sBQ; sBO = sBV
    class Rec:
        def __init__(self): self.l = []
        def __call__(self, x): self.l.append(x)
    su = Rec(); TT = VM
    HO = 0
    su("v_lshrrev_b32 v%d, 4, v%d" % (TT, L))
    su("v_lshlrev_b32 v%d, 11, v%d" % (V2_DMA, TT))
    su("v_lshlrev_b32 v%d, 1, v%d" % (TT, TT))
    su("v_and_b32 v%d, 15, v%d" % (TT + 1, L))
    su("v_xor_b32 v%d, v%d, v%d" % (TT, TT, TT + 1))
    su("v_lshl_add_u32 v%d, v%d, 4, v%d" % (V2_DMA, TT, V2_DMA))
    su("s_and_b32 s%d, s%d, 1" % (t1, sW))
    su("s_lshl_b32 s%d, s%d, 7" % (t1, t1))
    su("v_xor_b32 v%d, s%d, v%d" % (V2_DMA, t1, V2_DMA))
    su("v_add_u32 v%d, %d, v%d" % (V2_DMA + 1, 32768 - 1024, V2_DMA))
    su("v_lshrrev_b32 v%d, 4, v%d" % (TT, L))
    su("v_lshlrev_b32 v%d, 2, v%d" % (TT, TT))
    for e in range(4):
        su("v_add_u32 v%d, %d, v%d" % (TT + 2, e, TT))
        su("v_cmp_le_u32 s[%d:%d], v%d, v%d" % (sMK + 2 * e, sMK + 2 * e + 1, TT + 2, TT + 1))
    su("s_lshl_b32 s%d, s%d, 13" % (t2, sW))
    su("s_lshl_b32 s%d, s%d, 8" % (t1, sN))
    su("s_add_u32 s%d, s%d, s%d" % (t2, t2, t1))
    su("s_lshl_b32 s%d, s%d, 19" % (sBO, sQ))
    su("s_add_u32 s%d, s%d, s%d" % (sBO, sBO, t2))
    su("s_mul_i32 s%d, s%d, %d" % (sB0, sQ, 896 * 2048))
    su("s_add_u32 s%d, s%d, s%d" % (sB0, sB0, t2))
    su("s_mul_i32 s%d, s%d, 7" % (t1, sN))
    su("s_add_u32 s%d, s%d, s%d" % (t1, t1, sJ1))
    su("s_lshl_b32 s%d, s%d, 15" % (t1, t1))
    su("s_add_u32 s%d, s%d, s%d" % (sB2, sB0, t1))
    LIN = cfg.get("f_lin", 1)
    if LIN:
        su("s_sub_u32 s%d, s%d, %d" % (sA, sAE, 28 * 4096))
        su("s_mov_b32 s%d, s%d" % (sAE, sH))
        su("s_add_u32 s%d, s%d, %d" % (sA0, sH, 3 * 4096))
        su("s_mov_b32 s%d, s%d" % (sBW, sB0))
    else:
        su("s_add_u32 s%d, s%d, %d" % (sA, sH, 3 * 4096))
        su("s_sub_u32 s%d, s%d, %d" % (sA0, sAE, 28 * 4096))
    su("s_cmp_eq_u32 s%d, s%d\ns_cselect_b32 s%d, s%d, s%d" % (sA, sAE, sA, sA0, sA))
    su0 = su.l; su = Rec()
    KS2 = 36
    LOC = [(0, 1), (1, 1), (2, 1), (0, 3), (1, 3), (2, 3), (0, 5), (1, 5), (2, 5), (3, 1), (3, 3), (3, 5), (4, 1), (4, 3), (4, 5)]
    NSL = len(LOC)
    bloc = {}; bpool = list(LOC[:9] if cfg.get("f_sh", 0) else LOC)
    def dma2_txt(p):
        sb, so = (R_W2, sB2) if p < 28 else (R_WO, sBO)
        if p not in bloc: bloc[p] = bpool.pop(0)
        sl, pos = bloc[p]
        ops = [(0, "s_add_u32 m0, s%d, %d" % (sLB, sl * STAGE + pos * 1024)),
               (1, "buffer_load_dwordx4 v%d, %s, s%d offen lds" % (V2_DMA, s4(sb), so)),
               (1, "buffer_load_dwordx4 v%d, %s, s%d offen offset:1024 lds" % (V2_DMA + 1, s4(sb), so))]
        R_ = lambda n_: (112 * n_ + 16 * (n_ & 1)) * 2048
        if p <= 20 and p % 3 == 2:
            g_ = (p - 2) // 3
            ops.append((0, "s_cmp_le_u32 s%d, %d\ns_cselect_b32 s%d, %d, 0" % (sN, g_, sB0, R_(g_ + 1) - R_(g_))))
            ops.append((0, "s_add_u32 s%d, s%d, s%d" % (sB2, sBW, sB0)))
            if g_: ops.append((0, "s_add_u32 s%d, s%d, %d" % (sB2, sB2, R_(g_))))
        elif p == 23: ops.append((0, "s_add_u32 s%d, s%d, %d" % (sB2, sBW, 96 * 2048)))
        elif 24 <= p < 27: ops.append((0, "s_add_u32 s%d, s%d, %d" % (sB2, sB2, 224 * 2048)))
        elif p != 27 and p != 35: ops.append((0, "s_add_u32 s%d, s%d, 65536" % (so, so)))
        return ops
    def dma2_ops(p):
        return [(k, (lambda x=x: a.vmem(x, ("B2", p))) if k else (lambda x=x: a(x))) for k, x in dma2_txt(p)]
    def hole_ops(ps):
        o = []
        for p in ps:
            for k, x in dma2_txt(p):
                if k: o += [("m", lambda x=x, p=p: a.vmem(x, ("B2", p)))] + [None] * cfg.get("f_hosp", 3)
                else: o += [x] + ([None] if "m0" in x else [])
        return o
    su("s_lshl_b32 s%d, s%d, 2" % (t1, sI))
    su("s_add_u32 s%d, s%d, s%d" % (t1, t1, sW))
    for gq in range(4):
        su("s_cmp_lt_u32 s%d, %d\ns_cselect_b32 s%d, 0x%x, 0" % (t1, 4 - gq, t2, f2u(-1e30)))
        for e in range(4): su("v_mov_b32 v%d, s%d" % (bias[gq] + e, t2))
    SH = cfg.get("f_sh", 0); QL = 3 - SH
    A_ONE = 248
    su("v_mov_b32 v%d, 0x3f803f80" % VONES)
    for e in range(4): su("v_accvgpr_write_b32 a%d, v%d" % (A_ONE + e, VONES))
    su("v_lshrrev_b32 v%d, 2, v%d" % (TT, L))
    su("v_and_b32 v%d, 7, v%d" % (TT + 2, TT))
    su("v_and_b32 v%d, 3, v%d" % (TT, TT))
    su("v_lshlrev_b32 v%d, 8, v%d" % (TT, TT))
    su("v_lshrrev_b32 v%d, 4, v%d" % (TT + 1, L))
    su("v_mul_u32_u24 v%d, %d, v%d" % (TT + 1, REG, TT + 1))
    su("v_add_u32 v%d, v%d, v%d" % (TT, TT, TT + 1))
    su("v_and_b32 v%d, 3, v%d" % (TT + 1, L))
    su("v_lshl_add_u32 v%d, v%d, 3, v%d" % (TT, TT + 1, TT))
    su("v_lshl_add_u32 v%d, v%d, 5, v%d" % (V2_B, TT + 2, TT))
    su("s_lshl_b32 s%d, s%d, 6" % (t1, sQ))
    su("s_xor_b32 s%d, s%d, 192" % (t1, t1))
    su("v_xor_b32 v%d, s%d, v%d" % (V2_B, t1, V2_B))
    su("v_mov_b32 v%d, 0xffff" % TT)
    su("v_mov_b32 v%d, 0xffff0000" % (TT + 1))
    su("v_cndmask_b32 v%d, 0, v%d, s[%d:%d]" % (VM + 2, TT, sMK, sMK + 1))
    su("v_cndmask_b32 v%d, 0, v%d, s[%d:%d]" % (VM + 3, TT, sMK + 4, sMK + 5))
    su("v_cndmask_b32 v%d, 0, v%d, s[%d:%d]" % (TT, TT + 1, sMK + 2, sMK + 3))
    su("v_cndmask_b32 v%d, 0, v%d, s[%d:%d]" % (TT + 1, TT + 1, sMK + 6, sMK + 7))
    su("v_or_b32 v%d, v%d, v%d" % (VM + 2, VM + 2, TT))
    su("v_or_b32 v%d, v%d, v%d" % (VM + 3, VM + 3, TT + 1))
    SPF = cfg.get("f_spf", 0)
    if SPF:
        su("s_lshr_b32 s%d, s2, 3" % t1)
        su("s_lshl_b32 s%d, s%d, 1" % (t1, t1))
        su("s_and_b32 s%d, s2, 1" % t2)
        su("s_add_u32 s%d, s%d, s%d" % (t1, t1, t2))
        su("s_lshl_b32 s%d, s%d, 2" % (t1, t1))
        su("s_add_u32 s%d, s%d, s%d" % (t1, t1, sW))
        su("s_lshl_b32 s%d, s%d, 7" % (t1, t1))
        su("s_mul_i32 s%d, s%d, %d" % (t2, sQ, 14336 * 128))
        su("s_add_u32 s%d, s%d, s%d" % (t2, t2, t1))
        su("s_add_u32 s%d, s%d, s%d\ns_addc_u32 s%d, s%d, 0" % (P_W2, P_W2, t2, P_W2 + 1, P_W2 + 1))
        su("s_add_u32 s%d, s%d, %d\ns_addc_u32 s%d, s%d, 0" % (P_WQ, P_W2, 28 * 32768, P_WQ + 1, P_W2 + 1))
        su("s_lshl_b32 s%d, s%d, 19" % (t2, sQ))
        su("s_add_u32 s%d, s%d, s%d" % (t2, t2, t1))
        su("s_add_u32 s%d, s%d, s%d\ns_addc_u32 s%d, s%d, 0" % (P_WO, P_WO, t2, P_WO + 1, P_WO + 1))
    V_T128 = V_XO
    TCN = cfg.get("f_tc", 0)
    su("v_lshlrev_b32 v%d, 3, v%d" % (211, L))
    if TCN:
        su("s_lshr_b32 s%d, s2, 3" % t1)
        su("s_lshl_b32 s%d, s%d, 1" % (t1, t1))
        su("s_and_b32 s%d, s2, 1" % t2)
        su("s_add_u32 s%d, s%d, s%d" % (t1, t1, t2))
        su("s_lshl_b32 s%d, s%d, 2" % (t1, t1))
        su("s_add_u32 s%d, s%d, s%d" % (t1, t1, sW))
        su("s_lshl_b32 s%d, s%d, 7" % (t1, t1))
        su("s_mul_i32 s%d, s%d, %d" % (sCLS, sQ, 14336 * 128))
        su("s_add_u32 s%d, s%d, s%d" % (sCLS, sCLS, t1))
        su("s_lshl_b32 s%d, s%d, 19" % (t3, sQ))
        su("s_add_u32 s%d, s%d, s%d" % (t3, t3, t1))
    def selftouch(so, half):
        if half: a("s_mov_b32 exec_hi, 0")
        a.vmem("buffer_load_dword a%d, v%d, %s, s%d offen sc1" % (A_PD, V_T128, s4(R_WS), so), "T")
        if half: a("s_mov_b32 exec_hi, -1")
    HK = cfg.get("f_hk", 0)
    if HK:
        assert RA == 12 and D1 == 8 and BR + RB * 4 <= 232 and UPW < NU
        kreg = lambda kt: 128 + 4 * kt if kt < 16 else 232 + 4 * (kt - 16)
        VF = 0
    else:
        kreg = lambda kt: 4 * kt
        VF = 80
    def kread(kt): a.lds("ds_read_b128 %s, v%d offset:%d" % (r4("a", kreg(kt)), V_KVW, kt * 1024), ("k", kt))
    def kpw(x):
        c0, c1, so, go, lo = kvq[x]
        a.wait(vm=("KP", x))
        a.lds("ds_write_b128 v%d, %s offset:%d" % (V_KVW, r4("v", c1), lo - 16384), "kvw")
    def codepf(vreg=None, mask=15):
        if vreg is None: vreg = V_PW
        lab = a.newlabel("F_pc")
        a("s_getpc_b64 s[%d:%d]" % (R_WQ, R_WQ + 1))
        a.label(lab)
        a("s_and_b32 s%d, s%d, 0xffff" % (R_WQ + 1, R_WQ + 1))
        a("s_mov_b32 s%d, CODE_END - %s" % (R_WQ + 2, lab))
        a("s_lshr_b32 s%d, s2, 3" % t0)
        a("s_lshl_b32 s%d, s%d, 2" % (t0, t0))
        a("s_add_u32 s%d, s%d, s%d" % (t0, t0, sW))
        a("s_lshl_b32 s%d, s%d, 9" % (t0, t0))
        a("s_mov_b64 exec, 0x%x" % mask)
        a.vmem("buffer_load_dword a%d, v%d, %s, s%d offen" % (A_PD, vreg, s4(R_WQ), t0), "T")
        a("s_mov_b64 exec, -1")
    seenA = set()
    ramp = (RA - 1 - LA) / float(S1 * NT)
    WM = cfg.get("f_wm", 200) / 100.0
    W0 = cfg.get("f_w0", 100) / 100.0
    UEND = S1 * NT + cfg.get("f_uend", 8)
    wts = [0.0] + [W0 * sum(1 for o in order if (o[1] if o[0] == "B" else o[1] // 2) == g) / 15.0 for g in (1, 2, 3)] + [WM if g % 4 == 0 else 1.0 for g in range(4, 16)]
    ipos = {}
    if cfg.get("f_lw", 0) == 2:
        no = []
        for g in range(16):
            bl = [o for o in order if o[0] == "B" and o[1] == g]; al = [o for o in order if o[0] == "A" and o[1] // 2 == g]
            bl.sort()
            if len(bl) == 7: mix = [bl[0], al[0], al[1], bl[1], al[2], al[3], bl[2], al[4], bl[3], bl[4], bl[5], bl[6], al[5], al[6], al[7]]
            else: mix = bl + al
            for k, o in enumerate(mix): ipos[o] = k
            no += mix
        order[:] = no
    noB = set(g for g in range(16) if not any(o[0] == "B" and o[1] == g for o in order))
    tau = [0.0]
    for g in range(16): tau.append(tau[-1] + wts[g])
    tau = [x * UEND / tau[-1] for x in tau]
    def due(op):
        g = op[1] if op[0] == "B" else op[1] // 2
        idx = KORD.index(op[2]) if op[0] == "B" else 7 + (op[1] % 2) * 4 + op[2]
        if cfg.get("f_wb", 0) and op[0] == "B" and op[2] > 3: idx = 3
        if g in noB: return tau[g] + (tau[g + 1] - tau[g]) * (idx - 7) / 8.0
        if cfg.get("f_lw", 0) == 1:
            lw = [64, 64, 64, 56, 36, 44, 24] + [32] * 8
            return tau[g] + (tau[g + 1] - tau[g]) * sum(lw[:idx]) / float(sum(lw))
        if cfg.get("f_lw", 0) == 2: return tau[g] + (tau[g + 1] - tau[g]) * ipos[op] / 15.0
        return tau[g] + (tau[g + 1] - tau[g]) * idx / 15.0
    DF = cfg.get("f_df", 0); PZ0 = cfg.get("f_pz0", 4)
    THR1 = cfg.get("f_thr1", 63)
    side = G.side
    def prewait1(u):
        u += gi[u][1] - 1
        s, t = units[u]
        if s not in seenA:
            flush1(("A", s)); seenA.add(s)
            r = a.wait(vm=("A", s), lg=("b", u))
        else: r = a.wait(lg=("b", u))
        stt["waited"] = u
        return r
    prewait1(0)
    for u in range(NU):
        u0, C_, gn = gi[u]; kk = u - u0
        s, t = divmod(u, NT) if u < S1 * NT else units[u]
        un = u + DB
        if un < NU: need1(un)
        if u in ((S1 - 4) * NT + 2, (S1 - 2) * NT + 2, S1 * NT + 2): barrier()
        elif cfg.get("f_xb", 0) and u < S1 * NT and u % (2 * NT) == 0 and u > 0: barrier()
        if S1 // 2 <= 12 and u == last_unit_of_stage[12] + 2: barrier()
        if pfq and u % 4 == 2 and pfq[0] - 1 <= (u + PFA) / NT + LA + ramp * (u + PFA): touch(pfq.pop(0))
        if PW & 4:
            for k in range(3):
                if u == S1 * NT + cfg.get("f_px0", 4) + k * cfg.get("f_pxd", 16): touchx(k)
        if PW == 1 and u == UKV - PW0: touchw(None)
        if PW & 3 == 2 and u < S1 * NT and t == 8 and PW0 <= s < PW0 + 8: (toucht if HOT else touchw)((s + 4) & 7)
        PW1 = cfg.get("f_pw1", 4)
        if ASY and not HOT and PW & 3 == 2 and u < S1 * NT and t == 8 and PW1 <= s < PW1 + 8: touchw((s + 4 + PW0 - PW1) & 7, 1)
        if u == 16 * NT: stampr("g1half")
        if u < S1 * NT and t == 0: stampr("g1s%d" % s)
        if u == S1 * NT: stampr("g1tail")
        if u == UKV:
            stampr("g1kv")
            if cfg.get("f_cpf", 1): codepf()
        if DF and u == 3 * NT:
            side += ["v_mov_b32 v%d, -1" % (T + e) for e in range(4)]
            side += ["s_lshl_b32 s%d, s2, 2" % t3, "s_add_u32 s%d, s%d, s%d" % (t3, t3, sW), "s_mul_i32 s%d, s%d, 12288" % (t3, t3),
                     "s_add_u32 s%d, s%d, 0x%x" % (t3, t3, WS_XC),
                     "v_xor_b32 v%d, 3, v%d" % (T + 4, L), "v_lshlrev_b32 v%d, 1, v%d" % (T + 4, T + 4), "v_xor_b32 v%d, s2, v%d" % (T + 4, T + 4),
                     "v_lshlrev_b32 v%d, 9, v%d" % (T + 4, T + 4), "v_lshl_add_u32 v%d, v%d, 2, v%d" % (T + 4, L, T + 4)]
        if DF and u < S1 * NT and t == 4 and PZ0 <= s < PZ0 + 12:
            k_ = s - PZ0
            side.append(("m", lambda k_=k_: a.vmem("buffer_store_dwordx4 %s, v%d, %s, s%d offen offset:%d sc1" % (r4("v", T), V_L16, s4(R_WS), t3, (k_ % 4) * 1024), "PZ")))
            if k_ % 4 == 3: side.append("s_add_u32 s%d, s%d, 4096" % (t3, t3))
        if DF and u == (PZ0 + 14) * NT + 5:
            assert a.vm.count("PZ") == 12
            a.wait(vm="PZ")
            a("s_lshl_b32 s%d, s%d, 7" % (t3, sW))
            a("s_add_u32 s%d, s%d, 0x%x" % (t3, t3, WS_FL))
            a("s_mov_b64 exec, 7")
            a.vmem("buffer_store_dword v%d, v%d, %s, s%d offen sc1" % (V_ONE, T + 4, s4(R_WS), t3), "RF")
            a("s_mov_b64 exec, -1")
        if u == cfg.get("f_tlb", -1):
            sh = cfg.get("f_tlbs", 21)
            a("v_lshlrev_b32 v%d, %d, v%d" % (V_P2, sh, L))
            a.vmem("buffer_load_dword a%d, v%d, %s, 0 offen" % (A_PD, V_P2, s4(R_WS)), "T")
            a.vmem("buffer_load_dword a%d, v%d, %s, 0 offen" % (A_PD, V_P2, s4(R_W2)), "T")
            a.vmem("buffer_load_dword a%d, v%d, %s, 0 offen" % (A_PD, V_P2, s4(R_WO)), "T")
            a("s_mov_b64 exec, %d" % ((1 << ((S * D * 2) >> sh)) - 1))
            a.vmem("global_load_dword a%d, v%d, s[%d:%d]" % (A_PD, V_P2, P_OUT, P_OUT + 1), "T")
            a("s_mov_b64 exec, -1")
        if FLN and u == 20 * NT + 3:
            a("v_and_b32 v%d, 7, v%d" % (V_P0, L))
            a("v_lshlrev_b32 v%d, 5, v%d" % (V_P0, V_P0))
            a.vmem("global_load_dword v%d, v%d, s[100:101] sc1" % (V_POLL, V_P0), "CN")
        if FLN and u == 22 * NT + 3:
            a.wait(vm="CN")
            l0 = a.newlabel("F_cn"); l1 = a.newlabel("F_ok")
            a("s_mov_b32 s%d, 0x%x" % (sSP, SPIN))
            a.label(l0)
            a("v_cmp_le_u32 vcc, 32, v%d" % V_POLL)
            a("s_cmp_eq_u32 vcc_lo, -1")
            a("s_cbranch_scc1 %s" % l1)
            a("global_load_dword v%d, v%d, s[100:101] sc1" % (V_POLL, V_P0))
            a("s_sub_u32 s%d, s%d, 1" % (sSP, sSP))
            a("s_waitcnt vmcnt(0)")
            a("s_cbranch_scc0 %s" % l0)
            a.label(l1)
        if u == UFLAG:
            stampr("g1flag0")
            assert a.vm.count("KV") == 8
            a.wait(vm="KV")
            stampr("g1flag1")
            a.vmem("buffer_store_dword v%d, v%d, %s, s%d offen sc1" % (V_ONE, V_FL0, s4(R_WS), sFK), "FK")
        if u == UPOLL: poll_issue("PK")
        if u == UCHK:
            a.wait(vm="PK")
            spin(1 << 3, skip_if_i0=True)
            stampr("g1chk")
            if HK:
                def kd(so, k, chk):
                    if chk: assert 12 in stt["free"]
                    a.vmem("buffer_load_dwordx4 v%d, %s, s%d offen offset:%d sc1 lds" % (V_L16, s4(R_WS), so, k * 1024), "KD")
                new_ = ["s_lshl_b32 s%d, s%d, 12\ns_add_u32 m0, s%d, %d" % (t0, sW, t0, KVB + 32768), None]
                new_ += [("m", lambda k=k: kd(sKP2, k, False)) for k in range(4)]
                new_ += ["s_sub_u32 m0, m0, 32768", None]
                new_ += [("m", lambda k=k: kd(sKP, k, True)) for k in range(4)]
                side[:0] = new_
            else:
              for x, (c0, c1, so, go, lo) in enumerate(kvq):
                def f(c1=c1, so=(sKP if x < 4 else sKP2), go=go, x=x):
                    a.vmem("buffer_load_dwordx4 %s, v%d, %s, s%d offen offset:%d sc1" % (r4("v", c1), V_L16, s4(R_WS), so, go), ("KP", x))
                side.insert(x, ("m", f))
        if HK and u == UPW:
            assert a.vm.count("KD") == 8 and a.lg.count("kvw") == 8
            a.wait(vm="KD", lg="kvw"); barrier()
            stampr("g1kb")
            side[:0] = [("v", lambda kt=kt: kread(kt)) for kt in range(20)]
        nxt = None
        if order and can1(order[0]) and len(G.sal) <= 1 and due(order[0]) <= u: nxt = order.pop(0)
        if nxt and cfg.get("verbose", 0) > 1: print("issue", u, nxt, "due %.0f" % due(nxt), file=sys.stderr)
        if FLN and HT & 2:
            for b in (1, 2, 3):
                if u == max(0, int(tau[4 * b]) - cfg.get("f_hta", 0)): hottouch(b)
        if PW & 32 and nxt:
            tk = cfg.get("f_tk", 0)
            key = ("B", nxt[1], tk) if tk < 7 else ("A", nxt[1], (tk - 7) % 4)
            g_ = nxt[1] if nxt[0] == "B" else nxt[1] // 2
            if nxt == key and g_ in (4, 8, 12) and (nxt[0] == "B" or nxt[1] % 2 == (tk - 7) // 4): touchp(g_ // 4 - 1)
        for mt in range(MT):
            m_, k_ = divmod(kk * MT + mt, C_)
            if cfg.get("f_kz", 1) and m_ % 2 == 1 and units[u0][0] > 0: k_ = C_ - 1 - k_
            mz = m_ if gn % 2 == 0 else MT - 1 - m_
            s_, t_ = units[u0 + k_]
            bf = r4("a", BR + ((u0 + k_) % RB) * 4)
            af = r4("a", AR + (s_ % RA) * 16 + mz * 4)
            c = r4("v", acc(mz, t_))
            src = "0" if s_ == 0 else c
            if t_ in (4, 5): a("%s %s, %s, %s, %s" % (MF, c, af, bf, src))
            else:            a("%s %s, %s, %s, %s" % (MF, c, bf, af, src))
            rd = (lambda mt=mt: bread1(un, mt)) if (mt < 2 and un < NU) else None
            if mt == 0: G.gap(fixed=rd)
            elif mt == 1:
                if nxt and nxt[0] == "B": G.gap(first=lambda: (dma1(nxt[1], nxt[2], 0), True)[1], fixed=rd)
                else: G.gap(fixed=rd)
            elif mt == 2:
                if nxt:
                    assert not G.sal
                    G.gap(first=(lambda: a.throttle(THR1)), mem=((lambda: aload1(nxt[1], nxt[2])) if nxt[0] == "A" else (lambda: dma1(nxt[1], nxt[2], 1))))
                else: G.gap()
            else:
                if kk == C_ - 1:
                    stt["issued"] = u
                    G.gap(first=(lambda: prewait1(u + 1)) if u + 1 < NU else None)
                else: G.gap()
        if u == UKV - 1:
            assert 11 in stt["free"], stt
            side += [None] * 5
            for (c0, c1, so, go, lo) in kvq:
                side += pack(c0, c1)
                def f(c0=c0, so=so, go=go):
                    a.vmem("buffer_store_dwordx4 %s, v%d, %s, s%d offen offset:%d sc1" % (r4("v", c0), V_L16, s4(R_WS), so, go), "KV")
                side.append(("m", f))
            for (c0, c1, so, go, lo) in kvq:
                def f(c0=c0, lo=lo):
                    a.lds("ds_write_b128 v%d, %s offset:%d" % (V_KVW, r4("v", c0), lo), "kvw")
                side += [("x", f), None]
            assert not order and stt.get("su0")
            side += su.l
        if u >= S1 * NT and not order and not G.sal and not stt.get("su0"):
            side += su0; stt["su0"] = True
        if HO and u == UKV + cfg.get("f_ho1", 30):
            barrier(); side[:0] = hole_ops(range(0, min(3, HO)))
        if HO > 3 and u == UKV + cfg.get("f_ho2", 56):
            assert u > UH01 and a.vm.count(("B2", 2)) == 2 and not any(isinstance(x, str) and ("s%d, s%d" % (sB2, sBE)) in x for x in side)
            barrier(); side[:0] = hole_ops(range(3, HO))
        if u == UPW and not HK:
            assert 12 in stt["free"]
            side[:0] = [y for x in range(8) for y in (("x", lambda x=x: kpw(x)), None)]
        if u == UH01 - 1:
            side += [None] * 5
            for p in range(2):
                for mt in range(MT):
                    side += pack(acc(mt, 6 + 2 * p), acc(mt, 7 + 2 * p), relu=True)
                    if p * 4 + mt < cfg.get("f_hearly", 8):
                        side.append(("m", lambda p=p, mt=mt: hstore(p, mt)))
                        side += [None] * cfg.get("f_hsp", 8)
        if u == UCHK:
            assert UCHK >= UH01
            for x in range(cfg.get("f_hearly", 8), 8):
                side += [("m", lambda x=x: hstore(x // 4, x % 4))] + [None] * cfg.get("f_hsp2", 6)
    if cfg.get("verbose"): print("G1 side left", len([x for x in side if x is not None]), file=sys.stderr)
    G.drain()
    assert not order
    assert 12 in stt["free"]
    stampr("g1end")

    va = []
    for mt in range(MT): va += pack(acc(mt, 10), acc(mt, 11), relu=True)
    if HK:
        stampr("attbeg")
        for _ in range(8): a(va.pop(0))
    else:
        if UPW >= NU:
            for x in range(8): kpw(x)
        a.wait(lg="kvw")
        a("s_barrier")
        stampr("attbeg")
        for kt in range(20):
            kread(kt)
            a(va.pop(0))
    for mt in range(MT):
        for t in (0, 1):
            for e2 in range(2):
                c = acc(mt, t) + 2 * e2
                a("v_pk_mul_f32 v[%d:%d], v[%d:%d], s[%d:%d] op_sel_hi:[1,0]" % (c, c + 1, c, c + 1, sSC, sSC + 1))
        if mt == 0:
            for x in pack(acc(mt, 0), acc(mt, 1)): a(x)
    STCH = cfg.get("f_st", 0)
    a.vm = [("H01" if t == "H" else t) for t in a.vm]
    stq = [(cfg.get("f_st0", 200), sH), (cfg.get("f_st1", 380), sH + 1)] if STCH & 1 else []
    hstore(2, 0)
    for mt in range(1, MT): va += pack(acc(mt, 0), acc(mt, 1))
    L4 = cfg.get("f_l4", 1)
    if L4:
        for mt in (0, 2): va += pack(acc(mt, 12), acc(mt + 1, 12), relu=True)
    else:
        for mt in range(MT): va += pack(acc(mt, 12), None, relu=True)
    free = [acc(mt, t) for t in (2, 3, 4, 5, 7, 9) for mt in range(MT)] + [212, 216, 220] + [acc(mt, t) for t in (11, 1) for mt in range(MT)]

    C2 = cfg.get("f_c2", 2)
    C2T = cfg.get("f_c2t", 4); C2S = cfg.get("f_c2s", 5)
    CM2 = max(C2, C2T, 3)
    RA2 = cfg.get("f_ra2", 13); DB2 = cfg.get("f_db2", CM2 + 2); RB2 = DB2 + CM2
    assert DB2 >= CM2
    BR2 = RA2 * 16
    assert BR2 + RB2 * 4 <= A_ONE
    aloc = {}
    apool = [16 * x for x in list(range(10, RA2)) + ([1, 2, 3, 4] if SH else list(range(10)))]
    def aslot(p):
        if p not in aloc: aloc[p] = apool.pop(0)
        return aloc[p]
    vl8 = [None]
    def aload2(p, mt):
        if 24 <= p < 28 and L4:
            a.vmem("buffer_load_dwordx4 %s, v%d, %s, s%d offen offset:%d sc1" % (r4("a", aslot(p) + (0, 8, 4, 12)[mt]), V_L16, s4(R_WS), sA, mt * 1024), ("A2", p))
            last = mt == MT - 1
        elif 24 <= p < 28:
            for hh in range(2):
                a.vmem("buffer_load_dwordx2 %s, v%d, %s, s%d offen offset:%d sc1" % (r2("a", aslot(p) + mt * 4 + hh * 2), vl8[0], s4(R_WS), sA, hh * 2048 + mt * 512), ("A2", p))
            last = mt == MT - 1
        else:
            a.vmem("buffer_load_dwordx4 %s, v%d, %s, s%d offen offset:%d sc1" % (r4("a", aslot(p) + mt * 4), V_L16, s4(R_WS), sA, mt * 1024), ("A2", p))
            last = mt == MT - 1
        if last and p < 35:
            G.sal.append("s_add_u32 s%d, s%d, 4096" % (sA, sA))
            if p <= 23 and p % 3 == 2: G.sal.append("s_cmp_eq_u32 s%d, s%d\ns_cselect_b32 s%d, s%d, s%d" % (sA, sAE, sA, sA0, sA))
    LL = cfg.get("f_ll", 1)
    hst = [(2, 1), (2, 2), (2, 3)] + ([] if LL else [(3, mt) for mt in ((0, 2) if L4 else range(MT))])
    lst = [(3, mt) for mt in range(MT)] if LL else []
    NPRE = cfg.get("f_npre", 9 if SH else 10)
    assert NPRE >= 3
    pre = []
    assert HO <= NPRE <= len(bpool)
    for p in range(HO, NPRE): pre += [(p,) + op for op in dma2_ops(p)]

    S_ = {}; P_ = {}; O_ = {}
    def s_mfma(qa, kt):
        q = free.pop(0); S_[(qa, kt)] = q
        a.wait(lg=("k", kt))
        c = r4("v", bias[kt // 4]) if kt < 16 else "0"
        a("%s %s, %s, %s, %s" % (MF, r4("v", q), r4("a", kreg(kt)), r4("v", acc(qa, 0)), c))
    def pv_list(qa):
        b0 = qa // 2
        out = []
        for b in range(b0, b0 + 9):
            for z in range(3):
                def f(b=b, z=z):
                    if b == b0: O_[(qa, z)] = free.pop(0)
                    o = r4("v", O_[(qa, z)])
                    if z < 2:
                        a.wait(lg=("v", 2 * b + z)); A = r4("a", VF + (2 * b + z) * 4)
                    else: A = r4("a", A_ONE)
                    a("%s %s, %s, %s, %s" % (MF, o, A, r4("v", P_[(qa, b)]), "0" if b == b0 else o))
                    if z == 2: free.append(P_[(qa, b)])
                out.append(f)
        return out
    def fin_list(qa):
        o0, o1, sm = O_[(qa, 0)], O_[(qa, 1)], O_[(qa, 2)]
        ops = ["v_rcp_f32 v%d, v%d" % (sm, sm), "s_nop 0"]
        for o in (o0, o1):
            for e in range(4): ops.append("v_mul_f32 v%d, v%d, v%d" % (o + e, o + e, sm))
        ops += pack(o0, o1)
        def f():
            a.vmem("buffer_store_dwordx4 %s, v%d, %s, s%d offen offset:%d %s" % (r4("v", o0), V_L16, s4(R_WS), sO, qa * 1024, HF), "O")
            free.extend([o1, sm]); late_free.append(o0)
        ops.append(f)
        return ops
    late_free = []
    pready = set()
    def soft_list(qa, plain=False):
        k0, k1 = qa, qa + 16
        ops = []
        f_, l_ = S_[(qa, k0)], S_[(qa, k1)]
        odd = qa & 1
        g_, z_ = (l_, f_) if odd else (f_, l_)
        o_ = 2 * odd
        for e in range(4):
            ops.append((1, "v_cndmask_b32 v%d, v%d, v%d, s[%d:%d]" % (g_ + e, f_ + e, l_ + e, sMK + 2 * e, sMK + 2 * e + 1)))
        quads = [S_[(qa, kt)] for kt in range(k0 + 1, k1)] + [g_]
        vals = [q + e for q in quads for e in range(4)]
        m0, m1 = VM, VM + 1
        ops.append((1, "v_max3_f32 v%d, v%d, v%d, v%d" % (m0, vals[0], vals[1], vals[2])))
        ops.append((1, "v_max3_f32 v%d, v%d, v%d, v%d" % (m1, vals[3], vals[4], vals[5])))
        ops.insert(2, (0, "SLOT")); ops.insert(5, (0, "SLOT")); ops.append((0, "SLOT"))
        for x in range(6, 62, 4):
            ops.append((1, "v_max3_f32 v%d, v%d, v%d, v%d" % (m0, m0, vals[x], vals[x + 1])))
            ops.append((1, "v_max3_f32 v%d, v%d, v%d, v%d" % (m1, m1, vals[x + 2], vals[x + 3])))
            ops.append((0, "SLOT"))
        ops.append((1, "v_max3_f32 v%d, v%d, v%d, v%d" % (m0, m0, vals[62], vals[63])))
        ops.append((1, "v_max_f32 v%d, v%d, v%d" % (m0, m0, m1)))
        ops.append((1, "v_mov_b32 v%d, v%d" % (m1, m0)))
        ops.append((0, "SLOT2"))
        ops.append((1, "v_permlane16_swap_b32 v%d, v%d" % (m0, m1)))
        ops.append((1, "v_max_f32 v%d, v%d, v%d" % (m0, m0, m1)))
        ops.append((1, "v_mov_b32 v%d, v%d" % (m1, m0)))
        ops.append((1, "v_mov_b32 v%d, 0" % (z_ + 2 - o_)))
        ops.append((1, "v_mov_b32 v%d, 0" % (z_ + 3 - o_)))
        ops.append((1, "v_permlane32_swap_b32 v%d, v%d" % (m0, m1)))
        ops.append((1, "v_max_f32 v%d, v%d, v%d" % (m0, m0, m1)))
        def subexp(q):
            r = []
            if plain:
                for e2 in range(2):
                    r += [(1, "v_sub_f32 v%d, v%d, v%d" % (q + 2 * e2 + e, q + 2 * e2 + e, m0)) for e in range(2)]
                    r += [(2, "v_exp_f32 v%d, v%d" % (q + 2 * e2 + e, q + 2 * e2 + e)) for e in range(2)]
                    r.append((0, "SLOT"))
                return r
            for e2 in range(2):
                r.append((1, "v_pk_add_f32 v[%d:%d], v[%d:%d], v[%d:%d] op_sel_hi:[1,0] neg_lo:[0,1] neg_hi:[0,1]" % (q + 2 * e2, q + 2 * e2 + 1, q + 2 * e2, q + 2 * e2 + 1, m0, m0 + 1)))
            for e in range(4):
                if e < 2: r.append((0, "SLOT"))
                r.append((2, "v_exp_f32 v%d, v%d" % (q + e, q + e)))
            r.append((0, "MEM"))
            return r
        ops += subexp(g_)
        ops += subexp(S_[(qa, k0 + 1)])
        cv = ["v_cvt_pk_bf16_f32 v%d, v%d, v%d" % (g_ + o_ + x, g_ + 2 * x, g_ + 2 * x + 1) for x in range(2)]
        if odd: cv.reverse()
        ops += [(1, x) for x in cv]
        for x in range(2):
            if odd: ops.append((1, "v_bfi_b32 v%d, v%d, 0, v%d" % (z_ + o_ + x, VM + 2 + x, g_ + o_ + x)))
            else:   ops.append((1, "v_and_b32 v%d, v%d, v%d" % (z_ + o_ + x, VM + 2 + x, g_ + o_ + x)))
        for x in range(2): ops.append((1, "v_xor_b32 v%d, v%d, v%d" % (g_ + o_ + x, g_ + o_ + x, z_ + o_ + x)))
        done = {k0, k0 + 1, k1}
        b0 = qa // 2
        pend_pack = None
        for b in range(b0, b0 + 9):
            for kt in (2 * b, 2 * b + 1):
                if k0 <= kt <= k1 and kt not in done:
                    ops += subexp(S_[(qa, kt)]); done.add(kt)
            if pend_pack: ops += pend_pack
            lo, hi = S_.get((qa, 2 * b)), S_.get((qa, 2 * b + 1))
            pk = []
            if lo is None or hi is None: d = z_
            elif g_ in (lo, hi):
                d = g_; ot = hi if lo == g_ else lo
                pk += [(1, "v_cvt_pk_bf16_f32 v%d, v%d, v%d" % (d + 2 - o_ + x, ot + 2 * x, ot + 2 * x + 1)) for x in range(2)]
                pk.append((0, (lambda ot=ot: free.append(ot))))
            else:
                d = lo
                pk += [(1, x) for x in pack(lo, hi)]
                pk.append((0, (lambda hi=hi: free.append(hi))))
            P_[(qa, b)] = d
            pk.append((0, (lambda b=b: pready.add((qa, b)))))
            pend_pack = pk
        ops += pend_pack
        return ops
    def run(op):
        if isinstance(op, str): a(op)
        else: op()
    vr = list(range(20))
    def vread():
        f = vr.pop(0)
        a.lds("ds_read_b128 %s, v%d offset:%d" % (r4("a", VF + 4 * f), V_KVW, 32768 + f * 1024), ("v", f))
    for kt in range(17):
        s_mfma(0, kt)
        vread(); a(va.pop(0))
    while vr:
        vread(); a(va.pop(0))
    hstore(*hst.pop(0))
    while va: a(va.pop(0))
    HGAP = cfg.get("f_hgap", 30); PGAP = cfg.get("f_pgap", 24)
    HFL = cfg.get("f_hfl", 400 - 90 * SH)
    HPO = cfg.get("f_hpo", 760 - 200 * SH)
    HCK = cfg.get("f_hck", 860 - 220 * SH)
    hok = False
    ordA = [("A2", p, mt) for p in range(3, KS2) for mt in range(MT)]
    napre = cfg.get("f_apre", 8)
    pv3 = pv_list(QL); pv3b = [QL // 2 + x // 3 for x in range(27)]
    tq = [(cfg.get("f_tb0", 200) + k * cfg.get("f_tbd", 150), k) for k in range(cfg.get("f_tbn", 0))]
    tcq = []
    if TCN:
        k0 = cfg.get("f_tck", 6); nr = cfg.get("f_tcr", 2)
        ed = [k0 + (56 - k0) * x // nr for x in range(nr + 1)]
        rr = [(ed[x], ed[x + 1]) for x in range(nr)] + [(56, 72)]
        tcq = [(cfg.get("f_tc0", 540) + x * cfg.get("f_tcd", 130), lo_, hi_) for x, (lo_, hi_) in enumerate(rr)]
    sq = []
    if SPF:
        for k in range(cfg.get("f_spf0", 6), 56): sq.append("s_load_dword s%d, s[%d:%d], 0x%x" % (t3, (P_W2 if k < 28 else P_WQ), (P_W2 if k < 28 else P_WQ) + 1, (k % 28) * 32768))
        for k in range(16): sq.append("s_load_dword s%d, s[%d:%d], 0x%x" % (t3, P_WO, P_WO + 1, k * 32768))
    next_s = 0; SGAP = cfg.get("f_sgap", 8)
    kvbar = False; hflag = False; hpoll = False
    cost_total = 0; next_h = HGAP; next_p = 0
    for qa in range(QL + 1):
        stampr("att%d" % qa)
        ops = soft_list(qa)
        tot = sum(c for c, _ in ops)
        pv = pv_list(qa - 1) if qa > 0 else []
        fin = None
        sm = [(qa + 1, kt) for kt in range(qa + 1, qa + 18)] if qa < QL else []
        c = 0
        pv_done_at = None
        for (cost, op) in ops:
            if op == "SLOT2":
                if pv:
                    pv.pop(0)(); a("s_nop 0")
                    if not pv: pv_done_at = c
                else: a("s_nop 1")
                continue
            if op == "SLOT":
                did = False
                if pv:
                    pv.pop(0)(); did = True
                    if not pv: pv_done_at = c
                elif sm and len(free) > 0 and c >= tot * 0.2:
                    s_mfma(*sm.pop(0)); did = True
                elif qa == QL and pv3 and (QL, pv3b[0]) in pready:
                    pv3.pop(0)(); pv3b.pop(0); did = True
                if did and G.sal:
                    a(G.sal.pop(0)); continue
                if did and pre and pre[0][1] == 0 and (kvbar or (pre[0][0] < 9 and not HK)): pre.pop(0)[2]()
                elif sq and kvbar and cost_total >= next_s and (did or cost_total >= next_s + SGAP):
                    a(sq.pop(0)); next_s = cost_total + SGAP
                    if not sq and cfg.get("verbose"): print("scalar prefetch done at", cost_total, file=sys.stderr)
                continue
            if op == "MEM":
                if qa > 0 and fin is None and pv_done_at is not None and c >= pv_done_at + 18:
                    fin = fin_list(qa - 1)
                    for x in fin: run(x)
                elif hst and cost_total >= next_h:
                    hstore(*hst.pop(0)); next_h = cost_total + HGAP
                elif stq and cost_total >= stq[0][0]:
                    a.wait(vm="H01"); selftouch(stq.pop(0)[1], True)
                elif tcq and cost_total >= tcq[0][0]:
                    _, lo_, hi_ = tcq.pop(0)
                    if lo_ < 56:
                        m_ = ((1 << hi_) - 1) ^ ((1 << lo_) - 1)
                        a("s_mov_b32 exec_lo, 0x%x" % (m_ & 0xffffffff))
                        a("s_mov_b32 exec_hi, 0x%x" % (m_ >> 32))
                        a.vmem("buffer_load_dword a%d, v%d, %s, s%d offen" % (A_PD, V_T128, s4(R_W2), sCLS), "T")
                    else:
                        a("s_mov_b64 exec, 0xffff")
                        a.vmem("buffer_load_dword a%d, v%d, %s, s%d offen" % (A_PD, V_T128, s4(R_WO), t3), "T")
                    a("s_mov_b64 exec, -1")
                elif not hst and tq and cost_total >= tq[0][0]:
                    k_ = tq.pop(0)[1]
                    a("s_lshr_b32 s%d, s2, 3" % t0)
                    a("s_lshl_b32 s%d, s%d, 2" % (t0, t0))
                    a("s_add_u32 s%d, s%d, s%d" % (t0, t0, sW))
                    if k_ < 4:
                        a("s_mul_i32 s%d, s%d, 3584" % (t0, t0))
                        a("s_mul_i32 s%d, s%d, %d" % (t1, sQ, 896 * 2048))
                        a("s_add_u32 s%d, s%d, s%d" % (t0, t0, t1))
                        if k_: a("s_add_u32 s%d, s%d, %d" % (t0, t0, k_ * 224 * 2048))
                        a("s_mov_b64 exec, 0xfffffff")
                        a.vmem("buffer_load_dword a%d, v%d, %s, s%d offen" % (A_PD, V_T128, s4(R_W2), t0), "T")
                    else:
                        a("s_lshl_b32 s%d, s%d, 12" % (t0, t0))
                        a("s_lshl_b32 s%d, s%d, 19" % (t1, sQ))
                        a("s_add_u32 s%d, s%d, s%d" % (t0, t0, t1))
                        a("s_mov_b32 exec_hi, 0")
                        a.vmem("buffer_load_dword a%d, v%d, %s, s%d offen" % (A_PD, V_T128, s4(R_WO), t0), "T")
                    a("s_mov_b64 exec, -1")
                elif not hst and not hflag and cost_total >= HFL:
                    a.wait(vm="H")
                    a.vmem("buffer_store_dword v%d, v%d, %s, 0 offen offset:32 sc1" % (V_ONE, V_FG, s4(R_WS)), "FH")
                    hflag = True
                    if STCH & 2: selftouch(sH + 2, True)
                elif hflag and lst and cost_total >= cfg.get("f_llp", 640 - 180 * SH):
                    while lst: hstore(*lst.pop(0))
                elif hflag and not hpoll and cost_total >= HPO:
                    if cfg.get("f_cpf2", 1): codepf(V_L16, 0x01010101)
                    poll_issue("PH"); hpoll = True
                elif hpoll and not hok and cost_total >= HCK:
                    a.wait(vm="PH"); spin(0xff00); hok = True
                    stampr("g2h")
                elif hok and napre > 0:
                    G.drain_sal()
                    op_ = ordA.pop(0); aload2(op_[1], op_[2]); napre -= 1
                elif pre and pre[0][1] == 1 and cost_total >= next_p:
                    pre.pop(0)[2](); next_p = cost_total + PGAP
                    if cfg.get("f_p2", 0) and pre and pre[0][1] == 1: pre.pop(0)[2]()
                continue
            run(op); c += cost; cost_total += cost
            if qa == 0 and not kvbar and c >= 30 and not SH:
                a.wait(lg=("v", 19)); a("s_barrier"); kvbar = True
        assert not pv and (qa == 0 or fin)
        free.extend(late_free); del late_free[:]
        if sm and cfg.get("verbose"): print("late S mfmas", qa, len(sm), file=sys.stderr)
        late = bool(sm)
        while sm: s_mfma(*sm.pop(0))
        if late: a("s_nop 7")
    if cfg.get("verbose"): print("attention cost", cost_total, "pre left", len(pre), file=sys.stderr)
    stampr("att4")
    assert not hst and not lst and hflag and hpoll and not sq and not tcq
    if not hok: napre = 0
    while pre:
        pre.pop(0)[2](); a("s_nop 0")
    G.drain_sal()
    assert napre <= 4 * (RA2 - 10) and not (HK and hok)
    a("v_mov_b32 v%d, v%d" % (V2_RD, V2_B))
    a("v_xor_b32 v%d, 32, v%d" % (V2_RD + 1, V2_B))
    xr = ["v_xor_b32 v%d, %d, v%d" % (V2_RD + t, t * 32, V2_B) for t in range(2, 8)]
    xr += ["v_add_u32 v%d, %d, v%d" % (V2_RD + 8 + t, 2 * STAGE, V2_RD + t) for t in range(8)]
    if cfg.get("verbose"): print("pv3 left", len(pv3), "apre left", napre, file=sys.stderr)
    for f in pv3:
        f()
        if napre > 0:
            op_ = ordA.pop(0); aload2(op_[1], op_[2]); napre -= 1; G.drain_sal()
        else:
            for _ in range(2):
                if xr: a(xr.pop(0))
    while xr: a(xr.pop(0))
    stampr("attend")

    NT2 = 8
    DL = cfg.get("f_dl", 8); S2 = KS2 - DL
    assert RA2 >= DL
    own = set(acc(mt, 6 + 2 * p) for p in range(3) for mt in range(MT))
    busy = own | set(O_[(QL, z)] for z in range(3)) | {208} | ({acc(3, 0)} if SH else set())
    q2 = [q for q in range(0, 224, 4) if q not in busy]
    acc2 = {}
    for t in range(NT2):
        for mt in range(MT): acc2[(mt, t)] = q2.pop(0)
    VX = [q2.pop(0) for _ in range(4)]
    TT = q2.pop(0); V_XI = TT + 2
    R_X = R_WQ; R_OUT = R_W1
    rec = Rec()
    del free[:]; del late_free[:]
    rec.l += [None] * 5 + [x if isinstance(x, str) else ("m", x) for x in fin_list(QL)]
    set2 = ["v_add_u32 v%d, %d, v%d" % (V2_RD + 16 + t, 4 * STAGE, V2_RD + t) for t in range(8)]
    if not SH: rec.l += set2
    def shadow():
        free[:0] = VX + q2
        free.extend(late_free); del late_free[:]
        free.extend(sorted(own))
        o = []
        KR = [0, 4, 8, 12, 80, 84]; VB1 = 248
        kts = list(range(3, 20))
        def kr(x): return ("v", lambda: a.lds("ds_read_b128 %s, v%d offset:%d" % (r4("a", KR[x % 6]), V_KVW, kts[x] * 1024), ("k2", x)))
        o += ["s_lshl_b32 s%d, s%d, 2" % (t3, sI), "s_add_u32 s%d, s%d, s%d" % (t3, t3, sW)]
        o += [kr(x) for x in range(4)]
        for x, kt in enumerate(kts):
            S_[(3, kt)] = free.pop(0)
            if kt == 3 or (kt % 4 == 0 and kt < 16):
                o += [None, "s_cmp_lt_u32 s%d, %d\ns_cselect_b32 s%d, 0x%x, 0" % (t3, 4 - kt // 4, t2, f2u(-1e30))]
                o += ["v_mov_b32 v%d, s%d" % (VB1 + e, t2) for e in range(4)] + [None]
            def f(x=x, kt=kt):
                a.wait(lg=("k2", x))
                a("%s %s, %s, %s, %s" % (MF, r4("v", S_[(3, kt)]), r4("a", KR[x % 6]), r4("v", acc(3, 0)), r4("v", VB1) if kt < 16 else "0"))
            o.append(("f", f))
            if x + 4 < 17: o.append(kr(x + 4))
        def kd():
            stt["kdone"] = 1; apool.append(0)
        o += [("z", kd)] + [None] * 5
        pvl = pv_list(3); rdy = []
        ops = soft_list(3, plain=True)
        b_ = 1
        for cost, op in ops:
            if op == "SLOT2": o.append("s_nop 1")
            elif op == "SLOT":
                for _ in range(2):
                    if rdy: o.append(("f", rdy.pop(0)))
            elif op == "MEM": pass
            elif isinstance(op, str): o.append(op)
            else:
                o.append(("z", op))
                if op.__defaults__ and op.__code__.co_varnames[:1] == ("b",):
                    rdy += pvl[:3]; del pvl[:3]
        o += [None, None] + [("f", x) for x in rdy]
        assert not pvl
        def vd(): apool.extend([80, 96, 112, 128, 144])
        def fin3(): side[:0] = [None] * 5 + [x if isinstance(x, str) else ("m", x) for x in fin_list(3)] + set2 + [("z", lambda: stt.__setitem__("set2", 1)), ("z", lambda: stt.__setitem__("shdone", True))]
        o += [("z", vd), ("z", fin3)]
        side.extend(o)
    srd(rec, R_X, P_X, S * D * 2)
    srd(rec, R_OUT, P_OUT, S * D * 2)
    vl8[0] = TT + 3
    rec("v_lshlrev_b32 v%d, 3, v%d" % (TT + 3, L))
    rec2 = Rec()
    rec2("v_and_b32 v%d, 15, v%d" % (TT, L))
    rec2("v_lshlrev_b32 v%d, 11, v%d" % (V_XO, TT))
    rec2("v_lshrrev_b32 v%d, 4, v%d" % (TT, L))
    rec2("v_lshl_add_u32 v%d, v%d, 3, v%d" % (V_XI, TT, V_XO))
    rec2("v_bfe_u32 v%d, v%d, 4, 1" % (TT, L))
    rec2("v_lshl_add_u32 v%d, v%d, 5, v%d" % (V_XO, TT, V_XO))
    rec2("v_lshrrev_b32 v%d, 5, v%d" % (TT, L))
    rec2("v_lshl_add_u32 v%d, v%d, 4, v%d" % (V_XO, TT, V_XO))
    CO = cfg.get("f_co", 1)
    if CO:
        V_OW = V_KVW; V_OR = V2_B
        rec2("s_mul_i32 s%d, s%d, 5120" % (t1, sW))
        rec2("s_add_u32 s%d, s%d, %d" % (t1, t1, 5 * STAGE))
        rec2("v_and_b32 v%d, 15, v%d" % (TT, L))
        rec2("v_mul_u32_u24 v%d, 80, v%d" % (V_OW, TT))
        rec2("v_lshrrev_b32 v%d, 4, v%d" % (TT, L))
        rec2("v_lshl_add_u32 v%d, v%d, 3, v%d" % (V_OW, TT, V_OW))
        rec2("v_add_u32 v%d, s%d, v%d" % (V_OW, t1, V_OW))
        rec2("v_lshrrev_b32 v%d, 2, v%d" % (TT, L))
        rec2("v_mul_u32_u24 v%d, 80, v%d" % (V_OR, TT))
        rec2("v_lshlrev_b32 v%d, 11, v%d" % (V_XO, TT))
        rec2("v_and_b32 v%d, 3, v%d" % (TT, L))
        rec2("v_lshl_add_u32 v%d, v%d, 4, v%d" % (V_OR, TT, V_OR))
        rec2("v_add_u32 v%d, s%d, v%d" % (V_OR, t1, V_OR))
        rec2("v_lshl_add_u32 v%d, v%d, 4, v%d" % (V_XO, TT, V_XO))
    XD = cfg.get("f_xd", 1) and CO
    if XD:
        assert "f_ux" not in cfg
        rec2("v_and_b32 v%d, 15, v%d" % (TT, L))
        rec2("v_lshlrev_b32 v%d, 6, v%d" % (V_XI, TT))
        rec2("v_lshrrev_b32 v%d, 4, v%d" % (TT, L))
        rec2("v_lshl_add_u32 v%d, v%d, 3, v%d" % (V_XI, TT, V_XI))
        rec2("v_add_u32 v%d, s%d, v%d" % (V_XI, t1, V_XI))
    sSX = [sKV, sKV2, sKP]; sSF = [sKP2, sFK, sH]; sRX = sH + 1
    for lam in range(3):
        rec("s_xor_b32 s%d, s2, %d" % (t1, (lam ^ 3) << 1))
        rec("s_lshl_b32 s%d, s%d, 2" % (t1, t1))
        rec("s_add_u32 s%d, s%d, s%d" % (t1, t1, sW))
        rec("s_mul_i32 s%d, s%d, 12288" % (sSX[lam], t1))
        rec("s_add_u32 s%d, s%d, 0x%x" % (sSX[lam], sSX[lam], WS_XC + lam * 4096))
        rec("s_lshl_b32 s%d, s%d, 7" % (sSF[lam], t1))
        rec("s_add_u32 s%d, s%d, 0x%x" % (sSF[lam], sSF[lam], WS_FL + lam * 4))
    rec("s_lshl_b32 s%d, s2, 2" % t1)
    rec("s_add_u32 s%d, s%d, s%d" % (t1, t1, sW))
    rec("s_mul_i32 s%d, s%d, 12288" % (sRX, t1))
    rec("s_add_u32 s%d, s%d, 0x%x" % (sRX, sRX, WS_XC))
    if DF:
        for lam in range(3): rec("s_add_u32 s%d, s%d, %d" % (sSF[lam], sRX, lam * 4096))
    side = G.side
    side += rec.l

    units = []; del gi[:]
    grp(units, 0, 3, range(NT2), 3)
    grp(units, 3, C2S, range(NT2), 2)
    DLO = cfg.get("f_dlo", 11); S2O = KS2 - DLO
    assert DL <= DLO <= RA2
    grp(units, C2S, S2O, range(NT2), C2)
    grp(units, S2O, S2, range(6), C2)
    UT = len(units)
    for lam in range(4): grp(units, S2 if lam < 3 else S2O, KS2, (2 * lam, 2 * lam + 1), C2T if lam else min(C2T, cfg.get("f_c2t0", 4)))
    NU = len(units)
    PL = 2 * DL
    last_unit = {}
    for u, (p, t) in enumerate(units): last_unit[p] = u
    stt = dict(ready=-1, free=set(), waited=-1, issued=-1, ook=False, hok=hok)
    ordB = [("B2", p) for p in range(NPRE, KS2)]
    def barrier2():
        a("s_barrier")
        for p, lu in last_unit.items():
            if lu <= stt["waited"] and p not in stt["free"]:
                stt["free"].add(p); bpool.append(bloc[p])
        if stt.get("kdone") == 1:
            stt["kdone"] = 2; bpool.extend(LOC[9:12])
        if stt.get("kdone") == 2 and stt.get("set2") == 1:
            stt["set2"] = 2; bpool.extend(LOC[12:])
    afree = set()
    def can2(op):
        if op[0] == "B2": return op[1] in bloc or bool(bpool)
        if not stt["hok"] or (op[1] >= (24 if LL else 28) and not stt["ook"]): return False
        for p_ in list(aloc):
            if p_ not in afree and last_unit[p_] <= stt["issued"]:
                afree.add(p_); apool.append(aloc[p_])
        return op[1] in aloc or bool(apool)
    def issue2(op):
        if cfg.get("verbose"): print("late flush2", op, file=sys.stderr)
        G.drain_sal()
        if op[0] == "A2": aload2(op[1], op[2])
        else:
            for x in dma2_ops(op[1]): x[1](); a("s_nop 0")
        G.drain_sal()
    def flush2(q, tag):
        while any(o[:2] == tag for o in q):
            op = q.pop(0); assert can2(op), (op, stt); issue2(op)
    def bread2(u, j2):
        p, t = units[u]
        sl, pos = bloc[p]
        a.lds("ds_read_b64_tr_b16 %s, v%d offset:%d" % (r2("a", BR2 + (u % RB2) * 4 + j2 * 2), V2_RD + 8 * (sl // 2) + t, (sl % 2) * STAGE + (pos + j2) * 1024), ("b2", u))
    def need2(u):
        p = units[u][0]
        if p > stt["ready"]:
            flush2(ordB, ("B2", p))
            grp = cfg.get("f_bgrp", 4)
            top = max(x for x in range(p, min(p + grp, KS2)) if not any(o[1] == x for o in ordB))
            if p == 0: top = min(NPRE - 1, cfg.get("f_top0", 5))
            elif p < NPRE: top = NPRE - 1
            a.wait(vm=("B2", top)); barrier2(); stt["ready"] = top
    need2(0)
    for u in range(DB2):
        bread2(u, 0); bread2(u, 1)
    stampr("g2beg")
    UOF = cfg.get("f_uof", 26)
    UOP = cfg.get("f_uop", 80); UOC = UOP + 12
    if SH: UOF = UOP = UOC = 9999
    seenA = {0, 1, 2}
    xdone = False
    rq = sorted(own)
    def flag(lam):
        a.wait(vm=("S", lam))
        a.vmem("buffer_store_dword v%d, v%d, %s, s%d offen sc1" % (V_ONE, V_FL0, s4(R_WS), sSF[lam]), ("F", lam))
    def recv(lam, mt):
        a.vmem("buffer_load_dwordx4 %s, v%d, %s, s%d offen offset:%d sc1" % (r4("v", rq[4 * lam + mt]), V_L16, s4(R_WS), sRX, mt * 1024), ("R", lam, mt))
        if mt == 3 and lam < 2: a("s_add_u32 s%d, s%d, 4096" % (sRX, sRX))
    PS = lambda mt, hh: acc2[(mt, hh)]
    def addpk(dst, src, first=False):
        ops = []
        for hh in range(2):
            for e2 in range(2):
                pp = src + 2 * hh + e2; c = dst[hh] + 2 * e2
                if first:
                    ops += ["v_lshlrev_b32 v%d, 16, v%d" % (c, pp), "v_and_b32 v%d, 0xffff0000, v%d" % (c + 1, pp)]
                else:
                    ops += ["v_lshlrev_b32 v%d, 16, v%d" % (TT, pp), "v_and_b32 v%d, 0xffff0000, v%d" % (TT + 1, pp),
                            "v_pk_add_f32 v[%d:%d], v[%d:%d], v[%d:%d]" % (c, c + 1, c, c + 1, TT, TT + 1)]
        return ops
    FD = cfg.get("f_fd", 26)
    ev = {}
    def at(u, f): ev.setdefault(u, []).append(f)
    def rtxt(lam, mt): return "buffer_load_dwordx4 %s, v%d, %s, s%d offen offset:%d sc1" % (r4("v", rq[4 * lam + mt]), V_L16, s4(R_WS), sSF[lam], mt * 1024)
    def rmax(lam):
        rg = [rq[4 * lam + mt] + e for mt in range(MT) for e in range(4)]
        o = ["v_max3_u32 v%d, v%d, v%d, v%d" % (V_POLL, rg[0], rg[1], rg[2])]
        for k in range(3, 15, 2): o.append("v_max3_u32 v%d, v%d, v%d, v%d" % (V_POLL, V_POLL, rg[k], rg[k + 1]))
        o.append("v_max_u32 v%d, v%d, v%d" % (V_POLL, V_POLL, rg[15]))
        return o
    def rcheck(lam):
        l0 = a.newlabel("F_rt"); l1 = a.newlabel("F_ok")
        a("s_mov_b32 s%d, 0x%x" % (sSP, SPIN))
        a.label(l0)
        a("v_cmp_eq_u32 vcc, -1, v%d" % V_POLL)
        a("s_cmp_eq_u64 vcc, 0")
        a("s_cbranch_scc1 %s" % l1)
        for mt in range(MT): a(rtxt(lam, mt))
        a("s_waitcnt vmcnt(0)")
        for x in rmax(lam): a(x)
        a("s_sub_u32 s%d, s%d, 1" % (sSP, sSP))
        a("s_cbranch_scc0 %s" % l0)
        a.label(l1)
    def addplain(dst, src):
        ops = []
        for hh in range(2):
            for e2 in range(2):
                pp = src + 2 * hh + e2; c = dst[hh] + 2 * e2
                ops += ["v_lshlrev_b32 v%d, 16, v%d" % (TT, pp), "v_and_b32 v%d, 0xffff0000, v%d" % (TT + 1, pp),
                        "v_add_f32 v%d, v%d, v%d" % (c, c, TT), "v_add_f32 v%d, v%d, v%d" % (c + 1, c + 1, TT + 1)]
        return ops
    if DF:
        R0U = UT + 3 * PL + cfg.get("f_r0", -6); R1U = UT + 4 * PL + cfg.get("f_r1", -5)
        at(R0U, lambda: side.extend(("m", lambda mt=mt: a.vmem(rtxt(0, mt), ("R", 0))) for mt in range(MT)))
        at(R1U, lambda: side.__setitem__(slice(0, 0), [("m", lambda mt=mt: a.vmem(rtxt(1, mt), ("R", 1))) for mt in range(MT)]))
    else:
        at(UT + PL + FD, lambda: flag(0))
        at(UT + 2 * PL + FD, lambda: flag(1))
        if cfg.get("f_fin2", 1): at(UT + 3 * PL + FD, lambda: flag(2))
        if cfg.get("f_pe", 4): at(NU - cfg.get("f_pe", 4), lambda: poll_issue("P1"))
    UP0 = UT + 3 * PL + cfg.get("f_p0", 4)
    F2 = cfg.get("f_fin2", 1)
    if not DF and not F2: at(UP0, lambda: poll_issue("P0"))
    def chk0():
        a.wait(vm="P0"); spin(1)
        for mt in range(MT): side.append(("m", lambda mt=mt: recv(0, mt)))
    if not DF and not F2: at(UP0 + cfg.get("f_c0", 8), chk0)
    def presum():
        side.append(("s", lambda: a.wait(vm="X")))
        if XD:
            for mt in range(MT):
                for hh in range(2):
                    side.append(("v", lambda mt=mt, hh=hh: a.lds("ds_read_b64 %s, v%d offset:%d" % (r2("v", VX[mt] + 2 * hh), V_XI, mt * 1024 + hh * 32), "xr")))
            side.extend([None] * 4 + [("s", lambda: a.wait(lg="xr"))])
        for mt in range(MT): side.extend(addpk([PS(mt, 0), PS(mt, 1)], VX[mt], first=True))
    at(UT + 2 * PL + PL // 2, presum)
    first_unit = {}
    for u, (p, t) in enumerate(units): first_unit.setdefault(p, u)
    NOPS = len(ordA) + 2 * len(ordB)
    UE2 = UT + cfg.get("f_ue2", 0)
    MARG = cfg.get("f_marg", 20)
    THR2 = cfg.get("f_thr2", 63)
    def prewait2(u):
        u += gi[u][1] - 1
        p, t = units[u]
        if p not in seenA:
            flush2(ordA, ("A2", p)); seenA.add(p)
            r = a.wait(vm=("A2", p), lg=("b2", u))
        else: r = a.wait(lg=("b2", u))
        stt["waited"] = u
        return r
    def b2sal(p): G.sal.extend(x for k, x in dma2_txt(p)[3:])
    if L4:
        def swp(p):
            def w_():
                assert a.vm.count(("A2", p)) == 4
                return a.wait(vm=("A2", p))
            o = [("s", w_)]
            for b in (0, 8):
                for e in range(2):
                    x, y = aslot(p) + b + 2 + e, aslot(p) + b + 4 + e
                    o += ["v_accvgpr_mov_b32 a252, a%d" % x, "v_accvgpr_mov_b32 a%d, a%d" % (x, y), "v_accvgpr_mov_b32 a%d, a252" % y]
            o.append(("s", lambda: swdone.add(p)))
            side.extend(o)
        swdone = set()
        for p in range(24, 28): at(gi[first_unit[p]][0] - cfg.get("f_swu", 12), lambda p=p: swp(p))
    prewait2(0)
    half = None
    for u in range(NU):
        u0, C_, gn = gi[u]; kk = u - u0
        p, t = divmod(u, NT2) if u < UT else units[u]
        un = u + DB2
        if SH and u == 24:
            assert a.vm.count("O") == 3
            shadow()
        if SH and UOF == 9999 and stt.get("shdone"):
            UOF = u + cfg.get("f_uof2", 16); UOP = UOF + cfg.get("f_uop2", 28); UOC = UOP + 12
            if cfg.get("verbose"): print("shadow done at unit", u, file=sys.stderr)
        insh = SH and u >= 24 and not stt.get("shdone")
        G.lazy = bool(insh)
        if u == UOF:
            assert a.vm.count("O") == 4
            a.wait(vm="O")
            a.vmem("buffer_store_dword v%d, v%d, %s, 0 offen offset:64 sc1" % (V_ONE, V_FG, s4(R_WS)), "FO")
            if STCH & 4: selftouch(sO, True)
            side.extend(rec2.l)
        if u == cfg.get("f_uh", 2) and not stt["hok"]:
            a.wait(vm="PH"); spin(0xff00); stt["hok"] = True
            stampr("g2h")
        if u < UT and t == 1: stampr("g2p%d" % p)
        if u == UT: stampr("g2tail")
        if u > UT and (u - UT) % PL == 0: stampr("g2l%d" % ((u - UT) // PL))
        if u == UOP: poll_issue("PO")
        if u == UOC:
            a.wait(vm="PO"); spin(0xff0000 | (7 if DF else 0)); stt["ook"] = True
        for f in ev.get(u, []): f()
        if un < NU and units[un][0] > stt["ready"]:
            if half is not None:
                dma2_ops(half)[2][1](); b2sal(half); half = None
            need2(un)
        if u < UT and t == 2 and p % 2 == 1 and p > 1 and len(bpool) < len(ordB): barrier2()
        pre_ = None; mem_ = None
        if half is not None:
            def mem_(h=half): dma2_ops(h)[2][1](); b2sal(h)
            half = None
        elif len(G.sal) <= 1:
            cand = [q for q in (ordA, ordB) if q and can2(q[0])]
            if cand:
                cand.sort(key=lambda q: q[0][1] - (cfg.get("f_bprio", 5) if q[0][0] == "B2" else 0))
                done_ = NOPS - len(ordA) - 2 * len(ordB)
                if done_ * UE2 <= u * NOPS or first_unit[cand[0][0][1]] - u <= MARG + (16 if cand[0][0][0] == "B2" else 0):
                    nxt = cand[0].pop(0)
                    if nxt[0] == "B2":
                        ops_ = dma2_ops(nxt[1])
                        pre_ = lambda o=ops_: (o[0][1](), True)[1]
                        mem_ = ops_[1][1]; half = nxt[1]
                    else:
                        mem_ = lambda n_=nxt: aload2(n_[1], n_[2])
        if not xdone and (u == cfg.get("f_ux", 9999) or (not ordA and not ordB and half is None and mem_ is None)):
            xdone = True
            if XD:
                side.append("s_mul_i32 s%d, s%d, 5120" % (t1, sW))
                for mt in range(MT):
                    side += ["s_add_u32 m0, s%d, %d" % (t1, 5 * STAGE + mt * 1024), None,
                             ("m", lambda: a.vmem("buffer_load_dwordx4 v%d, %s, s%d offen lds" % (V_XO, s4(R_X), sXO), "X")),
                             "s_add_u32 s%d, s%d, %d" % (sXO, sXO, 32768 if mt < 3 else -3 * 32768)]
            for mt in range(MT if not XD else 0):
                for hh in range(2):
                    def f(mt=mt, hh=hh):
                        a.vmem("buffer_load_dwordx2 %s, v%d, %s, s%d offen offset:%d" % (r2("v", VX[mt] + 2 * hh), V_XI, s4(R_X), sXO, hh * 32), "X")
                    side += [("m", f)] + [None] * (cfg.get("f_xsp", 1) if hh else 1)
                side.append("s_add_u32 s%d, s%d, %d" % (sXO, sXO, 32768 if mt < 3 else -3 * 32768))
        for mt in range(MT):
            m_, k_ = divmod(kk * MT + mt, C_)
            if cfg.get("f_kz", 1) and m_ % 2 == 1 and units[u0][0] > 0: k_ = C_ - 1 - k_
            mz = m_ if gn % 2 == 0 else MT - 1 - m_
            p_, t_ = units[u0 + k_]
            assert not (L4 and 24 <= p_ < 28) or p_ in swdone, p_
            bf = r4("a", BR2 + ((u0 + k_) % RB2) * 4)
            af = r4("v", acc(mz, 6 + 2 * p_)) if p_ < 3 else r4("a", aslot(p_) + mz * 4)
            c = r4("v", acc2[(mz, t_)])
            a("%s %s, %s, %s, %s" % (MF, c, bf, af, "0" if p_ == 0 else c))
            rd = (lambda mt=mt: bread2(un, mt)) if (mt < 2 and un < NU) else None
            if insh and mt == 0: G.gap(fixed=lambda: (bread2(un, 0), bread2(un, 1)), nfixed=2)
            elif insh and mt == 1: G.gap(first=pre_, extra=True)
            elif mt == 0: G.gap(fixed=rd)
            elif mt == 1: G.gap(first=pre_, fixed=rd)
            elif mt == 2:
                if mem_:
                    assert not G.sal
                    G.gap(first=(lambda: a.throttle(THR2)), mem=mem_)
                else: G.gap()
            else:
                if kk == C_ - 1:
                    stt["issued"] = u
                    G.gap(first=(lambda: prewait2(u + 1)) if u + 1 < NU else None, extra=insh)
                else: G.gap(extra=insh)
        if u >= UT and (u - UT) % PL == PL - 1:
            lam = (u - UT) // PL
            if lam < 3:
                new_ = [None] * 5
                for mt in range(MT):
                    new_ += pack(acc2[(mt, 2 * lam)], acc2[(mt, 2 * lam + 1)])
                    if DF: new_ += ["v_min_u32 v%d, -2, v%d" % (acc2[(mt, 2 * lam)] + e, acc2[(mt, 2 * lam)] + e) for e in range(4)]
                    def f(mt=mt, lam=lam):
                        a.vmem("buffer_store_dwordx4 %s, v%d, %s, s%d offen offset:%d sc1" % (r4("v", acc2[(mt, 2 * lam)]), V_L16, s4(R_WS), sSX[lam], mt * 1024), ("S", lam))
                    new_.append(("m", f))
                side[:0] = new_
    if cfg.get("verbose"): print("G2 side left", len([x for x in side if x is not None]), file=sys.stderr)
    G.drain()
    assert not ordA and not ordB and xdone
    stampr("g2end")
    def ownadd():
        for mt in range(MT):
            for hh in range(2):
                for e2 in range(2):
                    c = PS(mt, hh) + 2 * e2; o_ = acc2[(mt, 6 + hh)] + 2 * e2
                    a("v_pk_add_f32 v[%d:%d], v[%d:%d], v[%d:%d]" % (c, c + 1, c, c + 1, o_, o_ + 1))
    if DF:
        R2D = cfg.get("f_r2d", 1)
        def rd2():
            for mt in range(MT): a.vmem(rtxt(2, mt), ("R", 2, mt))
        assert a.vm.count(("R", 0)) == 4 and a.vm.count(("R", 1)) == 4
        if R2D == 0: rd2()
        a.wait(vm=("R", 0))
        for x in rmax(0): a(x)
        rcheck(0)
        for mt in range(MT):
            for x in addpk([PS(mt, 0), PS(mt, 1)], rq[mt]): a(x)
        stampr("x1")
        if R2D == 1: rd2()
        ownadd()
        a.wait(vm=("R", 1))
        for x in rmax(1): a(x)
        rcheck(1)
        stampr("x2")
        if R2D == 2: rd2()
        for mt in range(MT):
            for x in addpk([PS(mt, 0), PS(mt, 1)], rq[4 + mt]): a(x)
        stampr("x3")
        a.wait(vm=("R", 2, 3))
        for x in rmax(2): a(x)
        rcheck(2)
        stampr("x4")
    elif F2:
        for lam in range(2):
            if ("F", lam) not in a.vm: flag(lam)
        early = "P1" in a.vm
        if not early:
            a("s_nop 7")
            ownadd()
        if ("F", 2) not in a.vm: flag(2)
        if not early: poll_issue("P1")
        stampr("x1")
        a.wait(vm="P1"); spin(1)
        for mt in range(MT): recv(0, mt)
        spin(2)
        stampr("x2")
        for mt in range(MT): recv(1, mt)
        poll_issue("P2")
        if early: ownadd()
        for mt in range(MT):
            a.wait(vm=("R", 0, mt))
            for x in addpk([PS(mt, 0), PS(mt, 1)], rq[mt]): a(x)
        a.wait(vm="P2"); spin(4)
        stampr("x3")
        for mt in range(MT): recv(2, mt)
        for mt in range(MT):
            for x in addpk([PS(mt, 0), PS(mt, 1)], rq[4 + mt]): a(x)
        stampr("x4")
    else:
        flag(2)
        poll_issue("P1")
        stampr("x1")
        for mt in range(MT):
            a.wait(vm=("R", 0, mt))
            for x in addpk([PS(mt, 0), PS(mt, 1)], rq[mt]): a(x)
        a.wait(vm="P1"); spin(2)
        stampr("x2")
        for mt in range(MT): recv(1, mt)
        poll_issue("P2")
        for mt in range(MT):
            for hh in range(2):
                for e2 in range(2):
                    c = PS(mt, hh) + 2 * e2; o_ = acc2[(mt, 6 + hh)] + 2 * e2
                    a("v_pk_add_f32 v[%d:%d], v[%d:%d], v[%d:%d]" % (c, c + 1, c, c + 1, o_, o_ + 1))
        a.wait(vm="P2"); spin(4)
        stampr("x3")
        for mt in range(MT): recv(2, mt)
        for mt in range(MT):
            for x in addpk([PS(mt, 0), PS(mt, 1)], rq[4 + mt]): a(x)
        stampr("x4")
    for mt in range(MT):
        a.wait(vm=("R", 2, mt))
        for x in addpk([PS(mt, 0), PS(mt, 1)], rq[8 + mt]): a(x)
        c0 = PS(mt, 0)
        if cfg.get("eps"):
            for hh in range(2):
                for e in range(4): a("v_mul_f32 v%d, 0x%x, v%d" % (PS(mt, hh) + e, f2u(1.0 + cfg["eps"] / 10000.0), PS(mt, hh) + e))
        for x in pack(c0, PS(mt, 1)): a(x)
        def ostore(m, reg):
            if cfg.get("cp_real"):
                if m == 0:
                    a("s_lshl_b32 s%d, s2, 2" % t1); a("s_add_u32 s%d, s%d, s%d" % (t1, t1, sW)); a("s_lshl_b32 s%d, s%d, 12" % (t1, t1)); a("s_add_u32 s%d, s%d, 0x%x" % (t1, t1, WS_Q))
                a.vmem("buffer_store_dwordx4 %s, v%d, %s, s%d offen offset:%d %s" % (r4("v", reg), V_L16, s4(R_WS), t1, m * 1024, ["", "sc1", "nt"][cfg.get("f_of", 2)]), "OUT")
                return
            a.vmem("buffer_store_dwordx4 %s, v%d, %s, s%d offen %s" % (r4("v", reg), V_XO, s4(R_OUT), sXO, ["", "sc1", "nt"][cfg.get("f_of", 2)]), "OUT")
            if m < 3: a("s_add_u32 s%d, s%d, 32768" % (sXO, sXO))
        if CO:
            a.lds("ds_write_b64 v%d, %s offset:%d" % (V_OW, r2("v", c0), mt * 1280), ("ow", mt))
            a.lds("ds_write_b64 v%d, %s offset:%d" % (V_OW, r2("v", c0 + 2), mt * 1280 + 32), ("ow", mt))
            a.lds("ds_read_b128 %s, v%d offset:%d" % (r4("v", PS(mt, 1)), V_OR, mt * 1280), ("or", mt))
            if mt > 0:
                a.wait(lg=("or", mt - 1)); ostore(mt - 1, PS(mt - 1, 1))
            if mt == 3:
                a.wait(lg=("or", 3)); ostore(3, PS(3, 1))
        else:
            a("s_nop 1")
            a("v_permlane16_swap_b32 v%d, v%d" % (c0, c0 + 2))
            a("v_permlane16_swap_b32 v%d, v%d" % (c0 + 1, c0 + 3))
            ostore(mt, c0)
    stampr("x5")
    if ST:
        a("s_waitcnt vmcnt(0)")
        stampr("end")
        a("s_waitcnt lgkmcnt(0)")
        for i in range(8): a("v_mov_b32 v%d, s%d" % (i, STB + 2 * i))
        a("s_lshl_b32 s%d, s2, 2" % t0)
        a("s_add_u32 s%d, s%d, s%d" % (t0, t0, sW))
        a("s_lshl_b32 s%d, s%d, 5" % (t0, t0))
        a("v_mov_b32 v8, 0")
        a("s_nop 4")
        a("buffer_store_dwordx4 v[0:3], v8, %s, s%d offen" % (s4(R_WS), t0))
        a("buffer_store_dwordx4 v[4:7], v8, %s, s%d offen offset:16" % (s4(R_WS), t0))
    a.label("F_end")
    a("s_endpgm")
    kernel_desc(a, name, 256, sgpr=102, accum=256, agpr=256)
    return "; @launch kernel=%s grid=(256,1,1) block=(256,1,1) lds=163840" % name

gen.gen_f = gen_f

if __name__ == "__main__":
    cfg = dict(g1_mt=4)
    out = sys.argv[1]
    kernels = sys.argv[2].split(",")
    for kv in sys.argv[3:]:
        k, v = kv.split("="); cfg[k] = int(v, 0)
    open(out, "w").write(gen.build(cfg, kernels))
```
